```python
import torch

def _softmax(x, axis=-1):
    return torch.softmax(x, dim=axis)
def _gelu(x):
    return torch.nn.functional.gelu(x, approximate="tanh")
def _silu(x):
    return torch.nn.functional.silu(x)
def _sigmoid(x):
    return torch.sigmoid(x)
def _layernorm(x, axis=-1, eps=1e-5):
    m = x.mean(dim=axis, keepdim=True)
    v = x.var(dim=axis, keepdim=True, unbiased=False)
    return (x - m) / torch.sqrt(v + eps)
def _scatter_add(tgt, idx, src, axis=0):
    return tgt.clone().index_add_(axis, idx, src)
def _segment_sum(src, seg, n):
    out = torch.zeros((n,) + src.shape[1:], dtype=src.dtype)
    return out.index_add_(0, seg, src)
def _pad(x, pw):
    flat = tuple(v for pair in reversed(pw) for v in pair)
    return torch.nn.functional.pad(x, flat)

kernel_name = 'recurrent_scan__ssm_conv_h3__dense_activation_relu__prompt'

def setup_inputs():

    _w = (lambda a: (lambda t: t.to(torch.bfloat16) if t.is_floating_point() else t)(torch.as_tensor(a)))
    def _A_setup():
        B, S, D = 1, 2048, 512
        ks = 4
        return {
            "q": _w((lambda *s: torch.randn(*s, dtype=torch.bfloat16) * 0.05)(B, S, D)),
            "k": _w((lambda *s: torch.randn(*s, dtype=torch.bfloat16) * 0.2)(B, S, D)),
            "v": _w((lambda *s: torch.randn(*s, dtype=torch.bfloat16) * 0.2)(B, S, D)),
            "shift_k": _w((lambda *s: torch.randn(*s, dtype=torch.bfloat16) * 0.2)(D, ks) * 0.5),
            "ssm_k": _w((lambda *s: torch.randn(*s, dtype=torch.bfloat16) * 0.2)(D, S) * (1.0 / S ** 0.5)),
            "ssm_D": _w((lambda *s: torch.randn(*s, dtype=torch.bfloat16) * 0.2)(D)),
        }
    _A_in = _A_setup()

    def _B_setup():
        B, S, D, Dff = 1, 2048, 512, 1376
        return {
            "x": _w((lambda *s: torch.randn(*s, dtype=torch.bfloat16) * 0.05)(B, S, D)),
            "w1": _w((lambda *s: torch.randn(*s, dtype=torch.bfloat16) * 0.1)(D, Dff)),
            "w2": _w((lambda *s: torch.randn(*s, dtype=torch.bfloat16) * 0.1)(Dff, D)),
        }
    _B_in = _B_setup()

    return {
        "A_q": _A_in["q"],
        "A_k": _A_in["k"],
        "A_v": _A_in["v"],
        "A_shift_k": _A_in["shift_k"],
        "A_ssm_k": _A_in["ssm_k"],
        "A_ssm_D": _A_in["ssm_D"],
        "B_x": _B_in["x"],
        "B_w1": _B_in["w1"],
        "B_w2": _B_in["w2"],
    }

def reference(A_q, A_k, A_v, A_shift_k, A_ssm_k, A_ssm_D, B_x, B_w1, B_w2):
    def _A_ref(q, k, v, shift_k, ssm_k, ssm_D):
        B, S, D = q.shape
        ks = shift_k.shape[-1]
        k_pad = _pad(k, ((0, 0), (ks - 1, 0), (0, 0)))
        k_shift = torch.zeros_like(k)
        for t in range(ks):
            k_shift = k_shift + k_pad[:, t:t + S, :] * shift_k[:, ks - 1 - t][None, None, :]
        kv = k_shift * v
        L = 2 * S
        kv_pad = _pad(kv, ((0, 0), (0, S), (0, 0)))
        kf_pad = _pad(ssm_k, ((0, 0), (0, S)))
        kv_f = (lambda x, axes=(-2,-1): torch.fft.rfft2(x.float(), dim=axes))(kv_pad[:, None, :, :], axes=(1, 2))
        kf_f = (lambda x, axes=(-2,-1): torch.fft.rfft2(x.float(), dim=axes))(kf_pad[:, None, :], axes=(1, 2))
        kf_f = (lambda x, *d: x.permute(*d))(kf_f, 1, 2, 0)
        y_f = kv_f * kf_f[None, :, :, :]
        y = (lambda x, s, axes=(-2,-1): torch.fft.irfft2(x, s=s, dim=axes).to(torch.bfloat16))(y_f, (1, L), axes=(1, 2))[:, 0, :S, :]
        y = y + kv * ssm_D[None, None, :]
        return q * y

    def _B_ref(x, w1, w2):
        h = torch.einsum("bsd,df->bsf", x, w1)
        zero = torch.zeros_like(h)
        h = torch.maximum(h, zero)
        return torch.einsum("bsf,fd->bsd", h, w2)

    x = A_q
    xn = _layernorm(x, axis=-1)
    s = _A_ref(xn, A_k, A_v, A_shift_k, A_ssm_k, A_ssm_D)
    g = _silu(_B_ref(xn, B_w1, B_w2))
    return x + s * g
```

```python
class VM:
    def __init__(self, init=None):
        self.q = list(init) if init else []
    def copy(self):
        return VM(self.q)
    def issue(self, tag):
        self.q.append(tag)
    def count_after(self, tag):
        idx = max(i for i, t in enumerate(self.q) if t == tag)
        return len(self.q) - 1 - idx

class Asm:
    def __init__(self):
        self.lines = []
        self.vm = VM()
        self.lbl = 0
    def __call__(self, s, *a):
        for ln in s.split("\n"):
            ln = ln.strip()
            if ln:
                self.lines.append("    " + ln)
    def raw(self, s):
        self.lines.append(s)
    def label(self, name):
        self.lines.append(name + ":")
    def newlabel(self, p="L"):
        self.lbl += 1
        return "%s_%d" % (p, self.lbl)
    def comment(self, s):
        self.lines.append("    ; " + s)
    def vmem(self, instr, tag):
        self(instr); self.vm.issue(tag)
    def wait_vm(self, tag, extra=""):
        n = min(self.vm.count_after(tag), 63)
        self("s_waitcnt vmcnt(%d)%s" % (n, extra))
        return n
    def nop(self, n):
        while n > 0:
            k = min(n, 16)
            self("s_nop %d" % (k - 1)); n -= k
    def text(self):
        return "\n".join(self.lines) + "\n"

def vr(a, n=1):
    return "v%d" % a if n == 1 else "v[%d:%d]" % (a, a + n - 1)
def sr(a, n=1):
    return "s%d" % a if n == 1 else "s[%d:%d]" % (a, a + n - 1)
```

```python
import sys
from emit import *

KNAME = "recurrent_scan__ssm_conv_h3__dense_activation_relu__prompt_kernel"

WS_KVT = 0
WS_YT = 2 << 20
WS_H = 4 << 20
WS_FLAG = 10 << 20
F_H1 = WS_FLAG
F_H2 = WS_FLAG + 32768
F_H3 = WS_FLAG + 65536
WS_STAMP = WS_FLAG + (256 << 10)
WS_SIZE = 11 << 20

L_XN = 0
L_W1 = 65536
W1_SLOT = 22528
L_PREP = 0
L_T = 0
T_CH = 16640
T_CP = 4160
L_U = 33280
U_CH = 4608
L_B = 43008
L_A = 0
L_STATS = 161792
L_SYNC = 162304
LDS_SIZE = 163840

S_X, S_K, S_V, S_W1, S_W2, S_OUT, S_SSM, S_WS, S_SH, S_DBG = 8, 12, 16, 20, 24, 28, 32, 36, 40, 44
sR, sC, sW, sNONCE = 48, 49, 50, 51
sF0 = 52
sBP = 53
sNB = 54
sT0, sT1, sT2, sT3 = 55, 56, 57, 58
sEX = 60
sM48 = 62
sDD = 88
sSTAMP = 90
PTR = 64

class Gen:
    def __init__(self, stop_after=None, stamps=False, noflags=False, exp=""):
        self.exp = set(exp.split(",")) if exp else set()
        self.a = Asm()
        self.stop_after = stop_after
        self.stamps = stamps
        self.noflags = noflags
        self.nstamp = 0

    def srd(self, dst, ptr, size):
        a = self.a
        a("s_mov_b32 s%d, s%d" % (dst, ptr))
        a("s_and_b32 s%d, s%d, 0xffff" % (dst + 1, ptr + 1))
        a("s_mov_b32 s%d, 0x%x" % (dst + 2, size))
        a("s_mov_b32 s%d, 0x00020000" % (dst + 3))

    def stamp(self, idx):
        if not self.stamps:
            return
        a = self.a
        a("s_memrealtime s[4:5]")
        a("s_waitcnt lgkmcnt(0)")
        a("v_writelane_b32 v255, s4, %d" % idx)

    def dump_stamps(self, n):
        if not self.stamps:
            return
        a = self.a
        a("s_lshl_b32 s%d, s2, 3" % sT0)
        a("s_add_u32 s%d, s%d, s%d" % (sT0, sT0, sW))
        a("s_lshl_b32 s%d, s%d, 7" % (sT0, sT0))
        a("s_add_u32 s%d, s%d, 0x%x" % (sT0, sT0, WS_STAMP))
        a("v_lshlrev_b32 v2, 2, v1")
        a("v_add_u32 v2, s%d, v2" % sT0)
        a("s_mov_b32 exec_lo, -1")
        a("s_mov_b32 exec_hi, 0")
        a("buffer_store_dword v255, v2, s[%d:%d], 0 offen" % (S_WS, S_WS + 3))
        a("s_mov_b64 exec, -1")

    def p0(self):
        a = self.a
        a("s_cmp_ge_u32 s2, 256")
        a("s_cbranch_scc1 L_end")
        a("s_load_dwordx16 s[64:79], s[0:1], 0")
        a("s_load_dwordx8 s[80:87], s[0:1], 64")
        self.stamp_raw0()
        a("v_and_b32 v1, 63, v0")
        a("v_lshrrev_b32 v2, 6, v0")
        a("s_and_b32 s%d, s2, 31" % sR)
        a("s_lshr_b32 s%d, s2, 5" % sC)
        a("v_readfirstlane_b32 s%d, v2" % sW)
        a("s_mul_i32 s%d, s%d, 176" % (sF0, sC))
        a("s_cmp_eq_u32 s%d, 7" % sC)
        a("s_cselect_b32 s%d, 16, 0" % sT0)
        a("s_sub_u32 s%d, s%d, s%d" % (sF0, sF0, sT0))
        a("s_lshr_b32 s%d, s%d, 4" % (sBP, sF0))
        a("s_cmp_ge_u32 s%d, 6" % sC)
        a("s_cselect_b32 s%d, 10, 11" % sNB)
        a("s_mov_b64 s[%d:%d], 0xffffffffffff" % (sM48, sM48 + 1)) if False else None
        a("s_mov_b32 s%d, -1" % sM48)
        a("s_mov_b32 s%d, 0xffff" % (sM48 + 1))
        a("s_waitcnt lgkmcnt(0)")
        self.srd(S_X, 64, 2097152)
        self.srd(S_K, 66, 2097152)
        self.srd(S_V, 68, 2097152)
        self.srd(S_SH, 70, 4096)
        self.srd(S_SSM, 72, 2097152)
        self.srd(S_W1, 78, 1409024)
        self.srd(S_W2, 80, 1409024)
        self.srd(S_OUT, 82, 2097152)
        self.srd(S_DBG, 84, 256)
        self.srd(S_WS, 86, WS_SIZE)
        a("s_lshl_b32 s%d, s%d, 7" % (sT0, sC))
        a("s_lshl_b32 s%d, s%d, 2" % (sT1, sR))
        a("s_add_u32 s%d, s%d, s%d" % (sT0, sT0, sT1))
        a("s_load_dword s%d, s[74:75], s%d" % (sDD, sT0))
        if not self.noflags:
            a("s_or_b32 s%d, s2, s%d" % (sT1, sW))
            a("s_cmp_lg_u32 s%d, 0" % sT1)
            a("s_cbranch_scc1 L_nononce")
            a("s_memrealtime s[4:5]")
            a("s_waitcnt lgkmcnt(0)")
            a("s_or_b32 s4, s4, 1")
            a("v_mov_b32 v2, s4")
            a("v_mov_b32 v3, 0")
            a("s_mov_b64 exec, 1")
            a("buffer_store_dword v2, v3, s[%d:%d], 0 offen sc1" % (S_DBG, S_DBG + 3))
            a("s_mov_b64 exec, -1")
            a.label("L_nononce")
        a("v_lshrrev_b32 v2, 5, v0")
        a("v_and_b32 v3, 31, v0")
        a("s_lshl_b32 s%d, s%d, 16" % (sT0, sR))
        a("s_lshl_b32 s%d, s%d, 7" % (sT1, sC))
        a("s_add_u32 s%d, s%d, s%d" % (sT0, sT0, sT1))
        a("v_lshlrev_b32 v17, 12, v2")
        a("v_lshl_add_u32 v17, v3, 2, v17")
        a("v_add_u32 v17, s%d, v17" % sT0)
        a("v_add_u32 v18, 0xfffff400, v17")
        a("v_add_u32 v19, 0xfffff800, v17")
        a("v_add_u32 v4, 0xfffffc00, v17")
        K = 52
        a.vmem("buffer_load_dword v%d, v18, s[%d:%d], 0 offen" % (K + 0, S_K, S_K + 3), "prep")
        a.vmem("buffer_load_dword v%d, v19, s[%d:%d], 0 offen" % (K + 1, S_K, S_K + 3), "prep")
        a.vmem("buffer_load_dword v%d, v4, s[%d:%d], 0 offen" % (K + 2, S_K, S_K + 3), "prep")
        for t in range(4):
            a.vmem("buffer_load_dword v%d, v17, s[%d:%d], 0 offen offset:%d" % (K + 3 + t, S_K, S_K + 3, 1024 * t), "prep")
        for t in range(4):
            a.vmem("buffer_load_dword v%d, v17, s[%d:%d], 0 offen offset:%d" % (60 + t, S_V, S_V + 3, 1024 * t), "prep")
        a("s_lshl_b32 s%d, s%d, 9" % (sT0, sC))
        a("v_lshlrev_b32 v5, 4, v3")
        a("v_add_u32 v5, s%d, v5" % sT0)
        a.vmem("buffer_load_dwordx4 v[64:67], v5, s[%d:%d], 0 offen" % (S_SH, S_SH + 3), "prep")
        a("s_lshl_b32 s%d, s%d, 16" % (sT0, sR))
        a("s_lshl_b32 s%d, s%d, 13" % (sT1, sW))
        a("s_add_u32 s%d, s%d, s%d" % (sT0, sT0, sT1))
        a("v_lshrrev_b32 v6, 3, v1")
        a("v_lshlrev_b32 v6, 10, v6")
        a("v_and_b32 v7, 7, v1")
        a("v_lshl_add_u32 v6, v7, 4, v6")
        a("v_add_u32 v6, s%d, v6" % sT0)
        for jj in range(8):
            a.vmem("buffer_load_dwordx4 v[%d:%d], v6, s[%d:%d], 0 offen offset:%d" % (20 + 4 * jj, 23 + 4 * jj, S_X, S_X + 3, 128 * jj), "x")
        a("s_and_b32 s%d, s%d, 1" % (sT0, sW))
        a("s_lshl_b32 s%d, s%d, 2" % (sT0, sT0))
        a("s_lshr_b32 s%d, s%d, 1" % (sT1, sW))
        a("s_lshl_b32 s%d, s%d, 4" % (sT1, sT1))
        a("s_add_u32 s%d, s%d, s%d" % (sT0, sT0, sT1))
        a("s_mul_i32 s%d, s%d, 2752" % (sT0, sT0))
        a("s_lshl_b32 s%d, s%d, 1" % (sT1, sF0))
        a("s_add_u32 s%d, s%d, s%d" % (sT0, sT0, sT1))
        a("s_movk_i32 s%d, 2979" % sT2)
        a("s_movk_i32 s%d, 2752" % sT3)
        for i in range(3):
            a("v_add_u32 v2, %d, v1" % (64 * i))
            a("v_mul_lo_u32 v3, v2, s%d" % sT2)
            a("v_lshrrev_b32 v3, 16, v3")
            a("v_mul_u32_u24 v4, 22, v3")
            a("v_sub_u32 v4, v2, v4")
            a("v_and_b32 v5, 3, v3")
            a("v_lshrrev_b32 v7, 2, v3")
            a("v_lshl_add_u32 v5, v7, 3, v5")
            a("v_mul_lo_u32 v5, v5, s%d" % sT3)
            a("v_lshl_add_u32 v5, v4, 4, v5")
            a("v_add_u32 v%d, s%d, v5" % (14 + i, sT0))
        for ch in range(4):
            self.w1_dma(ch)
        a("s_lshl_b32 s%d, s%d, 6" % (sT0, sC))
        a("s_lshl_b32 s%d, s%d, 1" % (sT1, sR))
        a("s_add_u32 s%d, s%d, s%d" % (sT0, sT0, sT1))
        a("s_lshl_b32 s%d, s%d, 12" % (sT0, sT0))
        a("v_lshrrev_b32 v2, 8, v0")
        a("v_lshlrev_b32 v2, 12, v2")
        a("v_and_b32 v3, 255, v0")
        a("v_lshl_add_u32 v2, v3, 4, v2")
        a("v_add_u32 v2, s%d, v2" % sT0)
        a.vmem("buffer_load_dwordx4 v[8:11], v2, s[%d:%d], 0 offen" % (S_SSM, S_SSM + 3), "ssm")
        a.vmem("buffer_load_dwordx2 v[12:13], v2, s[%d:%d], 0 offen offset:16" % (S_SSM, S_SSM + 3), "ssm")

    def stamp_raw0(self):
        if self.stamps:
            a = self.a
            a("v_mov_b32 v255, 0")
            a("s_memrealtime s[4:5]")
            a("s_waitcnt lgkmcnt(0)")
            a("v_writelane_b32 v255, s4, 0")

    def w1_dma(self, ch):
        a = self.a
        slot = ch % 4
        a("s_mul_i32 s%d, s%d, 2816" % (sT0, sW))
        a("s_add_u32 s%d, s%d, %d" % (sT0, sT0, L_W1 + slot * W1_SLOT))
        a("s_mov_b32 s%d, %d" % (sT1, ch * 64 * 2752))
        for i in range(3):
            if i == 0:
                a("s_mov_b32 m0, s%d" % sT0)
            else:
                a("s_add_u32 m0, s%d, %d" % (sT0, 1024 * i))
            if i == 2:
                a("s_mov_b64 exec, s[%d:%d]" % (sM48, sM48 + 1))
            else:
                a("s_nop 0")
            a.vmem("buffer_load_dwordx4 v%d, s[%d:%d], s%d offen lds" % (14 + i, S_W1, S_W1 + 3, sT1), "w1c%d" % ch)
        a("s_mov_b64 exec, -1")

    def p1(self):
        a = self.a
        K, V, SH = 52, 60, 64
        KL, KH = 68, 75
        VL, VH = 82, 86
        W0, W1 = 90, 94
        O = 98
        a.wait_vm("prep")
        self.stamp(12)
        a("s_mov_b32 s%d, 0xffff0000" % sT0)
        for t in range(7):
            a("v_lshlrev_b32 v%d, 16, v%d" % (KL + t, K + t))
            a("v_and_b32 v%d, s%d, v%d" % (KH + t, sT0, K + t))
        for t in range(4):
            a("v_lshlrev_b32 v%d, 16, v%d" % (VL + t, V + t))
            a("v_and_b32 v%d, s%d, v%d" % (VH + t, sT0, V + t))
        for j in range(2):
            a("v_lshlrev_b32 v%d, 16, v%d" % (W0 + 2 * j, SH + j))
            a("v_and_b32 v%d, s%d, v%d" % (W0 + 2 * j + 1, sT0, SH + j))
            a("v_lshlrev_b32 v%d, 16, v%d" % (W1 + 2 * j, SH + 2 + j))
            a("v_and_b32 v%d, s%d, v%d" % (W1 + 2 * j + 1, sT0, SH + 2 + j))
        TMP = 110
        def rnd8(base):
            for r in range(4):
                a("v_cvt_pk_bf16_f32 v%d, v%d, v%d" % (TMP + 8 + r, base + r, base + 4 + r))
            for r in range(4):
                a("v_lshlrev_b32 v%d, 16, v%d" % (base + r, TMP + 8 + r))
                a("v_and_b32 v%d, s%d, v%d" % (base + 4 + r, sT0, TMP + 8 + r))
        for r in range(4):
            a("v_mul_f32 v%d, v%d, v%d" % (O + r, KL + r, W0 + 3))
            a("v_mul_f32 v%d, v%d, v%d" % (O + 4 + r, KH + r, W1 + 3))
        rnd8(O)
        for j in (2, 1, 0):
            for r in range(4):
                a("v_mul_f32 v%d, v%d, v%d" % (TMP + r, KL + 3 + r - j, W0 + j))
                a("v_mul_f32 v%d, v%d, v%d" % (TMP + 4 + r, KH + 3 + r - j, W1 + j))
            rnd8(TMP)
            for r in range(8):
                a("v_add_f32 v%d, v%d, v%d" % (O + r, O + r, TMP + r))
            rnd8(O)
        for r in range(4):
            a("v_mul_f32 v%d, v%d, v%d" % (O + r, O + r, VL + r))
            a("v_mul_f32 v%d, v%d, v%d" % (O + 4 + r, O + 4 + r, VH + r))
        a("v_cvt_pk_bf16_f32 v106, v%d, v%d" % (O + 3, O + 2))
        a("v_cvt_pk_bf16_f32 v107, v%d, v%d" % (O + 1, O + 0))
        a("v_cvt_pk_bf16_f32 v108, v%d, v%d" % (O + 7, O + 6))
        a("v_cvt_pk_bf16_f32 v109, v%d, v%d" % (O + 5, O + 4))
        a("v_and_b32 v2, 31, v0")
        a("v_mul_u32_u24 v2, 288, v2")
        a("v_lshrrev_b32 v3, 5, v0")
        a("v_lshlrev_b32 v3, 3, v3")
        a("v_sub_u32 v2, v2, v3")
        a("ds_write_b64 v2, v[106:107] offset:%d" % (L_PREP + 120))
        a("ds_write_b64 v2, v[108:109] offset:%d" % (L_PREP + 120 + 144))
        a("v_and_b32 v3, 15, v0")
        a("v_lshlrev_b32 v3, 2, v3")
        a("v_add_u32 v3, %d, v3" % L_SYNC)
        a("v_mov_b32 v4, 0")
        a("ds_write_b32 v3, v4")
        a("s_waitcnt lgkmcnt(0)")
        a("s_barrier")
        a("v_lshrrev_b32 v2, 3, v0")
        a("v_and_b32 v3, 7, v0")
        a("v_mul_u32_u24 v4, 144, v2")
        a("v_lshl_add_u32 v4, v3, 4, v4")
        a("ds_read_b128 v[108:111], v4 offset:%d" % L_PREP)
        a("s_lshl_b32 s%d, s%d, 18" % (sT0, sC))
        a("s_lshl_b32 s%d, s%d, 7" % (sT1, sR))
        a("s_sub_u32 s%d, s%d, s%d" % (sT0, sT0, sT1))
        a("s_add_u32 s%d, s%d, %d" % (sT0, sT0, WS_KVT + 3968))
        a("v_lshlrev_b32 v5, 12, v2")
        a("v_lshl_add_u32 v5, v3, 4, v5")
        a("v_add_u32 v5, s%d, v5" % sT0)
        a("s_waitcnt lgkmcnt(0)")
        a.vmem("buffer_store_dwordx4 v[108:111], v5, s[%d:%d], 0 offen sc1" % (S_WS, S_WS + 3), "kvt")
        if not self.noflags:
            a("v_mov_b32 v7, 0")
            a.vmem("buffer_load_dword v19, v7, s[%d:%d], 0 offen sc1" % (S_DBG, S_DBG + 3), "nonce")
        a("s_barrier")

    def p2(self):
        a = self.a
        X = 20
        D = 100
        a.wait_vm("x")
        self.stamp(13)
        a("s_mov_b32 s%d, 0x3f803f80" % sT0)
        a("v_mov_b32 v2, 0")
        a("v_mov_b32 v3, 0")
        a("v_mov_b32 v4, 0")
        a("v_mov_b32 v5, 0")
        for i in range(32):
            a("v_dot2_f32_bf16 v%d, v%d, s%d, v%d" % (2 + (i & 3), X + i, sT0, 2 + (i & 3)))
        a("v_add_f32 v2, v2, v3")
        a("v_add_f32 v4, v4, v5")
        a("v_add_f32 v2, v2, v4")
        self.dpp_reduce8(2)
        a("v_mul_f32 v2, 0x3b000000, v2")
        a("v_cvt_pk_bf16_f32 v3, v2, v2")
        a("v_lshlrev_b32 v3, 16, v3")
        a("v_sub_f32 v4, v2, v3")
        a("s_mov_b32 s%d, 0xffff0000" % sT1)
        a("v_mov_b32 v6, v3")
        a("v_mov_b32 v7, v3")
        a("v_mov_b32 v168, 0")
        a("v_mov_b32 v169, 0")
        a("v_mov_b32 v170, 0")
        a("v_mov_b32 v171, 0")
        for i in range(32):
            a("v_lshlrev_b32 v%d, 16, v%d" % (D + 2 * i, X + i))
            a("v_and_b32 v%d, s%d, v%d" % (D + 2 * i + 1, sT1, X + i))
        for i in range(32):
            a("v_pk_add_f32 v[%d:%d], v[%d:%d], v[6:7] neg_lo:[0,1] neg_hi:[0,1]" % (D + 2 * i, D + 2 * i + 1, D + 2 * i, D + 2 * i + 1))
        for i in range(32):
            acc = 168 + 2 * (i & 1)
            a("v_pk_fma_f32 v[%d:%d], v[%d:%d], v[%d:%d], v[%d:%d]" % (acc, acc + 1, D + 2 * i, D + 2 * i + 1, D + 2 * i, D + 2 * i + 1, acc, acc + 1))
        a("v_add_f32 v168, v168, v169")
        a("v_add_f32 v170, v170, v171")
        a("v_add_f32 v2, v168, v170")
        self.dpp_reduce8(2)
        a("v_mul_f32 v2, 0x3b000000, v2")
        a("v_fma_f32 v2, -v4, v4, v2")
        a("v_max_f32 v2, 0, v2")
        a("v_cvt_pk_bf16_f32 v2, v2, v2")
        a("v_lshlrev_b32 v2, 16, v2")
        a("v_add_f32 v2, 0x3727c5ac, v2")
        a("v_cvt_pk_bf16_f32 v2, v2, v2")
        a("v_lshlrev_b32 v2, 16, v2")
        a("v_sqrt_f32 v2, v2")
        a("s_nop 0")
        a("v_cvt_pk_bf16_f32 v2, v2, v2")
        a("v_lshlrev_b32 v2, 16, v2")
        a("v_rcp_f32 v6, v2")
        a("s_nop 0")
        a("v_mov_b32 v7, v6")
        a("v_lshrrev_b32 v4, 3, v1")
        a("s_lshl_b32 s%d, s%d, 3" % (sT2, sW))
        a("v_add_u32 v4, s%d, v4" % sT2)
        a("v_lshlrev_b32 v5, 3, v4")
        a("v_add_u32 v5, %d, v5" % L_STATS)
        a("v_mov_b32 v2, v3")
        a("v_mov_b32 v3, v6")
        a("ds_write_b64 v5, v[2:3]")
        for i in range(32):
            a("v_cvt_pk_bf16_f32 v%d, v%d, v%d" % (X + i, D + 2 * i, D + 2 * i + 1))
        for i in range(32):
            a("v_lshlrev_b32 v%d, 16, v%d" % (D + 2 * i, X + i))
            a("v_and_b32 v%d, s%d, v%d" % (D + 2 * i + 1, sT1, X + i))
        for i in range(32):
            a("v_pk_mul_f32 v[%d:%d], v[%d:%d], v[6:7]" % (D + 2 * i, D + 2 * i + 1, D + 2 * i, D + 2 * i + 1))
        for i in range(32):
            a("v_cvt_pk_bf16_f32 v%d, v%d, v%d" % (X + i, D + 2 * i, D + 2 * i + 1))
        a("v_and_b32 v5, 7, v1")
        a("v_lshrrev_b32 v4, 3, v1")
        a("s_and_b32 s%d, s%d, 1" % (sT2, sW))
        a("s_lshl_b32 s%d, s%d, 3" % (sT2, sT2))
        a("v_add_u32 v4, s%d, v4" % sT2)
        a("v_xor_b32 v4, v4, v5")
        a("v_lshlrev_b32 v4, 4, v4")
        a("v_lshrrev_b32 v7, 2, v5")
        a("v_lshl_add_u32 v4, v7, 10, v4")
        a("v_and_b32 v7, 3, v5")
        a("v_lshl_add_u32 v4, v7, 8, v4")
        a("s_lshr_b32 s%d, s%d, 1" % (sT2, sW))
        a("s_lshl_b32 s%d, s%d, 14" % (sT2, sT2))
        a("v_add_u32 v4, s%d, v4" % sT2)
        for jj in range(8):
            a("ds_write_b128 v4, v[%d:%d] offset:%d" % (X + 4 * jj, X + 4 * jj + 3, L_XN + 2048 * jj))

    def dpp_reduce8(self, r):
        a = self.a
        a("s_nop 1")
        a("v_add_f32_dpp v%d, v%d, v%d quad_perm:[1,0,3,2] row_mask:0xf bank_mask:0xf" % (r, r, r))
        a("s_nop 1")
        a("v_add_f32_dpp v%d, v%d, v%d quad_perm:[2,3,0,1] row_mask:0xf bank_mask:0xf" % (r, r, r))
        a("s_nop 1")
        a("v_add_f32_dpp v%d, v%d, v%d row_half_mirror row_mask:0xf bank_mask:0xf" % (r, r, r))

    def get_nonce(self):
        if self.noflags:
            return
        a = self.a
        a.wait_vm("nonce")
        lo = a.newlabel("L_nz"); lp = a.newlabel("L_nl")
        a("v_readfirstlane_b32 s%d, v19" % sNONCE)
        a("s_nop 3")
        a("s_cmp_lg_u32 s%d, 0" % sNONCE)
        a("s_cbranch_scc1 %s" % lo)
        a("s_mov_b32 s%d, 0" % sT3)
        a.label(lp)
        a("v_mov_b32 v7, 0")
        a("buffer_load_dword v19, v7, s[%d:%d], 0 offen sc1" % (S_DBG, S_DBG + 3))
        a("s_waitcnt vmcnt(0)")
        a("v_readfirstlane_b32 s%d, v19" % sNONCE)
        a("s_add_u32 s%d, s%d, 1" % (sT3, sT3))
        a("s_cmp_gt_u32 s%d, 100000" % sT3)
        a("s_cbranch_scc1 %s" % lo)
        a("s_cmp_eq_u32 s%d, 0" % sNONCE)
        a("s_cbranch_scc1 %s" % lp)
        a.label(lo)

    def flag_store(self, off_sreg, tag):
        if self.noflags:
            return
        a = self.a
        a("v_mov_b32 v2, s%d" % off_sreg)
        a("v_mov_b32 v3, s%d" % sNONCE)
        a("s_mov_b64 exec, 1")
        a.vmem("buffer_store_dword v3, v2, s[%d:%d], 0 offen sc1" % (S_WS, S_WS + 3), tag)
        a("s_mov_b64 exec, -1")

    def poll(self, base_sreg, nlanes, width, stride):
        if self.noflags:
            return
        a = self.a
        lp = a.newlabel("L_poll"); dn = a.newlabel("L_pdone")
        a("v_mul_u32_u24 v2, %d, v1" % stride)
        a("v_add_u32 v2, s%d, v2" % base_sreg)
        a("s_mov_b32 s%d, 0" % sT3)
        a("s_mov_b64 exec, 0x%x" % ((1 << nlanes) - 1)) if nlanes <= 16 else None
        if nlanes > 16:
            assert nlanes == 32
            a("s_mov_b32 exec_lo, -1")
            a("s_mov_b32 exec_hi, 0")
        a.label(lp)
        if width == 1:
            a("buffer_load_dword v4, v2, s[%d:%d], 0 offen sc1" % (S_WS, S_WS + 3))
            a("s_waitcnt vmcnt(0)")
            a("v_cmp_ne_u32 vcc, s%d, v4" % sNONCE)
        else:
            a("buffer_load_dwordx4 v[4:7], v2, s[%d:%d], 0 offen sc1" % (S_WS, S_WS + 3))
            a("s_waitcnt vmcnt(0)")
            a("v_xor_b32 v4, s%d, v4" % sNONCE)
            a("v_xor_b32 v5, s%d, v5" % sNONCE)
            a("v_xor_b32 v6, s%d, v6" % sNONCE)
            a("v_xor_b32 v7, s%d, v7" % sNONCE)
            a("v_or3_b32 v4, v4, v5, v6")
            a("v_or_b32 v4, v4, v7")
            a("v_cmp_ne_u32 vcc, 0, v4")
        a("s_add_u32 s%d, s%d, 1" % (sT3, sT3))
        a("s_cmp_gt_u32 s%d, 100000" % sT3)
        a("s_cbranch_scc1 %s" % dn)
        a("s_cbranch_vccnz %s" % lp)
        a.label(dn)
        a("s_mov_b64 exec, -1")
        a.vm.q = []

    def p3(self):
        a = self.a
        ACC = 164
        BUF = [188, 208]
        AX0, AX1, AW = 228, 229, 230
        a("v_and_b32 v2, 15, v1")
        a("v_lshrrev_b32 v3, 4, v1")
        a("s_and_b32 s%d, s%d, 1" % (sT0, sW))
        a("s_lshl_b32 s%d, s%d, 15" % (sT0, sT0))
        a("v_xor_b32 v4, v2, v3")
        a("v_lshlrev_b32 v4, 4, v4")
        a("v_lshl_add_u32 v4, v3, 8, v4")
        a("v_add_u32 v%d, s%d, v4" % (AX0, sT0))
        a("v_or_b32 v4, 4, v3")
        a("v_xor_b32 v4, v2, v4")
        a("v_lshlrev_b32 v4, 4, v4")
        a("v_lshl_add_u32 v4, v3, 8, v4")
        a("v_add_u32 v%d, s%d, v4" % (AX1, sT0))
        a("v_lshrrev_b32 v4, 1, v3")
        a("v_lshlrev_b32 v4, 4, v4")
        a("v_and_b32 v5, 1, v3")
        a("v_lshl_add_u32 v4, v5, 2, v4")
        a("v_lshrrev_b32 v5, 2, v2")
        a("v_add_u32 v4, v4, v5")
        a("v_mul_u32_u24 v4, 352, v4")
        a("v_and_b32 v5, 3, v1")
        a("v_lshl_add_u32 v4, v5, 3, v4")
        a("s_lshr_b32 s%d, s%d, 1" % (sT0, sW))
        a("s_mul_i32 s%d, s%d, 96" % (sT0, sT0))
        a("s_add_u32 s%d, s%d, %d" % (sT0, sT0, L_W1))
        a("v_add_u32 v%d, s%d, v4" % (AW, sT0))
        AW2 = 231
        a("v_add_u32 v%d, %d, v%d" % (AW2, 2 * W1_SLOT, AW))
        for i in range(24):
            a("v_mov_b32 v%d, 0" % (ACC + i))

        def reads(ks, buf):
            if "g1noreads" in self.exp:
                return
            ch = ks >> 1; slot = ch % 4; ksl = ks & 1
            ax = AX1 if (ks & 1) else AX0
            for t in range(2):
                a("ds_read_b128 v[%d:%d], v%d offset:%d" % (buf + 4 * t, buf + 4 * t + 3, ax, L_XN + t * 16384 + ks * 1024))
            aw = AW2 if slot >= 2 else AW
            so = (slot % 2) * W1_SLOT + ksl * 32 * 352
            for b in range(3):
                for hh in range(2):
                    r0 = buf + 8 + 4 * b + 2 * hh
                    a("ds_read_b64_tr_b16 v[%d:%d], v%d offset:%d" % (r0, r0 + 1, aw, so + hh * 8 * 352 + b * 32))

        a.wait_vm("w1c0", " lgkmcnt(0)")
        a("s_barrier")
        self.stamp(14)
        reads(0, BUF[0])
        for ks in range(16):
            cur = BUF[ks & 1]; nxt = BUF[(ks + 1) & 1]
            if ks < 15:
                if ks & 1:
                    j = ks >> 1
                    if "g1nodma" not in self.exp: a.wait_vm("w1c%d" % (j + 1))
                    if j == 2 and not self.noflags:
                        a.wait_vm("kvt")
                    if "g1nobar" not in self.exp: a("s_barrier")
                    if j + 4 <= 7 and j >= 0:
                        pass
                    if j >= 1 and j + 3 <= 7:
                        if "g1nodma" in self.exp: a.vm.issue("w1c%d" % (j + 3))
                        else: self.w1_dma(j + 3)
                    if j == 2 and not self.noflags:
                        self.publish_h1()
                reads(ks + 1, nxt)
                a("s_waitcnt lgkmcnt(8)")
            else:
                a("s_waitcnt lgkmcnt(0)")
            for b in range(3):
                for t in range(2):
                    if "g1nomfma" in self.exp: continue
                    acc = ACC + (b * 2 + t) * 4
                    a("v_mfma_f32_16x16x32_bf16 v[%d:%d], v[%d:%d], v[%d:%d], v[%d:%d]" % (
                        acc, acc + 3, cur + 8 + 4 * b, cur + 11 + 4 * b, cur + 4 * t, cur + 4 * t + 3, acc, acc + 3))
        a("s_barrier")

    def publish_h1(self):
        a = self.a
        sk = a.newlabel("L_sk")
        self.get_nonce()
        a("s_cmp_lg_u32 s%d, 0" % sW)
        a("s_cbranch_scc1 %s" % sk)
        a("s_lshl_b32 s%d, s2, 7" % sT0)
        a("s_add_u32 s%d, s%d, 0x%x" % (sT0, sT0, F_H1))
        q = list(a.vm.q)
        self.flag_store(sT0, "flag")
        a.vm.q = q
        a.label(sk)

    def h_store_addr(self, wreg):
        a = self.a
        a("v_lshrrev_b32 v2, 4, v1")
        a("v_and_b32 v3, 15, v1")
        a("v_lshlrev_b32 v5, 4, v3")
        a("v_lshrrev_b32 v4, 1, v2")
        a("v_lshl_add_u32 v5, v4, 8, v5")
        a("v_and_b32 v4, 1, v2")
        a("v_lshl_add_u32 v5, v4, 3, v5")
        a("s_and_b32 s%d, s%d, 1" % (sT0, wreg))
        a("s_lshl_b32 s%d, s%d, 1" % (sT0, sT0))
        a("s_lshl_b32 s%d, s%d, 2" % (sT1, sR))
        a("s_add_u32 s%d, s%d, s%d" % (sT0, sT0, sT1))
        a("s_mul_i32 s%d, s%d, 44032" % (sT0, sT0))
        a("s_lshr_b32 s%d, s%d, 1" % (sT1, wreg))
        a("s_mul_i32 s%d, s%d, 3" % (sT1, sT1))
        a("s_add_u32 s%d, s%d, s%d" % (sT2, sT1, sBP))
        a("s_lshl_b32 s%d, s%d, 9" % (sT2, sT2))
        a("s_add_u32 s%d, s%d, s%d" % (sT0, sT0, sT2))
        a("s_add_u32 s%d, s%d, 0x%x" % (sT0, sT0, WS_H))
        a("v_add_u32 v5, s%d, v5" % sT0)
        a("v_add_u32 v6, 44032, v5")

    def h_stores(self, HB, tag):
        a = self.a
        for b in range(3):
            sk = a.newlabel("L_hs")
            a("s_add_u32 s%d, s%d, %d" % (sT2, sT1, b))
            a("s_cmp_ge_u32 s%d, s%d" % (sT2, sNB))
            a("s_cbranch_scc1 %s" % sk)
            for t in range(2):
                r = HB + (b * 2 + t) * 2
                a.vmem("buffer_store_dwordx2 v[%d:%d], v%d, s[%d:%d], 0 offen offset:%d sc1" % (r, r + 1, 5 + t, S_WS, S_WS + 3, 512 * b), tag)
            a.label(sk)

    def p4(self):
        a = self.a
        ACC = 164
        HB = 188
        a.nop(8)
        for i in range(6):
            a("v_cvt_pk_bf16_f32 v%d, v%d, v%d" % (HB + 2 * i, ACC + 4 * i, ACC + 4 * i + 1))
            a("v_cvt_pk_bf16_f32 v%d, v%d, v%d" % (HB + 2 * i + 1, ACC + 4 * i + 2, ACC + 4 * i + 3))
        for i in range(12):
            a("v_pk_max_i16 v%d, v%d, 0" % (HB + i, HB + i))
        lm = a.newlabel("L_p4m"); le = a.newlabel("L_p4e")
        a("s_cmp_lt_u32 s%d, 4" % sW)
        a("s_cbranch_scc1 %s" % lm)
        self.h_store_addr(sW)
        q0 = list(a.vm.q)
        self.h_stores(HB, "hst")
        self.vm_h_own = list(a.vm.q)
        a("s_branch %s" % le)
        a.label(lm)
        a.vm.q = list(q0)
        a("v_lshlrev_b32 v2, 3, v1")
        a("s_lshl_b32 s%d, s%d, 12" % (sT0, sW))
        a("v_add_u32 v2, s%d, v2" % sT0)
        for i in range(6):
            a("ds_write_b64 v2, v[%d:%d] offset:%d" % (HB + 2 * i, HB + 2 * i + 1, L_B + 512 * i))
        a.label(le)
        a.wait_vm("ssm") if False else None
        a("s_waitcnt vmcnt(63)") if False else None
        E = 200
        for p in range(5):
            a("v_alignbit_b32 v%d, v%d, v%d, 16" % (E + p, 9 + p, 8 + p))
        for p in range(4):
            a("v_mov_b32 v%d, v%d" % (206 + p, 9 + p))
            a("v_mov_b32 v%d, v%d" % (210 + p, E + 1 + p))
        a("v_lshrrev_b32 v2, 8, v0")
        a("v_mul_u32_u24 v2, %d, v2" % T_CH)
        a("v_and_b32 v3, 255, v0")
        a("v_lshl_add_u32 v2, v3, 4, v2")
        a("ds_write_b128 v2, v[%d:%d] offset:%d" % (E, E + 3, L_T + 0 * T_CP + 32))
        a("ds_write_b128 v2, v[206:209] offset:%d" % (L_T + 1 * T_CP + 32))
        a("ds_write_b128 v2, v[210:213] offset:%d" % (L_T + 2 * T_CP + 32))
        a("ds_write_b128 v2, v[10:13] offset:%d" % (L_T + 3 * T_CP + 32))
        a("v_cmp_eq_u32 vcc, 0, v3")
        a("s_and_saveexec_b64 s[%d:%d], vcc" % (sEX, sEX + 1))
        hd = a.newlabel("L_hd")
        a("s_cbranch_execz %s" % hd)
        Z = 214
        for i in range(4):
            a("v_mov_b32 v%d, 0" % (Z + i))
        a("v_lshlrev_b32 v218, 16, v8")
        for cp in range(4):
            a("ds_write_b128 v2, v[%d:%d] offset:%d" % (Z, Z + 3, L_T + cp * T_CP))
        a("v_mov_b32 v220, 0\nv_mov_b32 v221, 0\nv_mov_b32 v222, 0\nv_mov_b32 v223, v218")
        a("v_mov_b32 v224, 0\nv_mov_b32 v225, 0\nv_mov_b32 v226, 0\nv_mov_b32 v227, v8")
        a("v_mov_b32 v228, 0\nv_mov_b32 v229, 0\nv_mov_b32 v230, v218\nv_mov_b32 v231, v%d" % E)
        a("v_mov_b32 v232, 0\nv_mov_b32 v233, 0\nv_mov_b32 v234, v8\nv_mov_b32 v235, v9")
        for cp in range(4):
            a("ds_write_b128 v2, v[%d:%d] offset:%d" % (220 + 4 * cp, 223 + 4 * cp, L_T + cp * T_CP + 16))
        a.label(hd)
        a("s_mov_b64 exec, s[%d:%d]" % (sEX, sEX + 1))
        a("v_and_b32 v3, 31, v0")
        a("v_lshrrev_b32 v2, 5, v0")
        a("v_mul_u32_u24 v2, %d, v2" % U_CH)
        a("v_lshl_add_u32 v2, v3, 4, v2")
        a("v_cmp_gt_u32 vcc, 32, v3")
        a("v_cmp_gt_u32 s[4:5], 64, v0")
        a("s_and_b64 vcc, vcc, s[4:5]")
        a("s_and_saveexec_b64 s[%d:%d], vcc" % (sEX, sEX + 1))
        hd2 = a.newlabel("L_hd")
        a("s_cbranch_execz %s" % hd2)
        for i in range(4):
            a("v_mov_b32 v%d, 0" % (214 + i))
        a("ds_write_b128 v2, v[214:217] offset:%d" % (L_U + 4096))
        a.label(hd2)
        a("s_mov_b64 exec, s[%d:%d]" % (sEX, sEX + 1))
        a("s_waitcnt lgkmcnt(0)")
        a("s_barrier")
        self.vm_m = VM(q0)
        self.vm_h = VM(self.vm_h_own)

    def w2_voff(self):
        a = self.a
        a("v_lshrrev_b32 v2, 3, v1")
        a("v_and_b32 v2, 3, v2")
        a("v_lshrrev_b32 v3, 5, v1")
        a("v_lshl_add_u32 v2, v3, 3, v2")
        a("v_lshlrev_b32 v2, 10, v2")
        a("v_lshrrev_b32 v3, 4, v1")
        a("v_and_b32 v3, 3, v3")
        a("v_lshlrev_b32 v3, 1, v3")
        a("v_and_b32 v4, 7, v1")
        a("v_xor_b32 v3, v3, v4")
        a("v_lshl_add_u32 v2, v3, 4, v2")
        a("s_lshl_b32 s%d, s%d, 7" % (sT0, sC))
        a("v_add_u32 v14, s%d, v2" % sT0)

    def w2_dma_slot(self, lds_sreg, ks_sreg, tag):
        a = self.a
        a("s_lshl_b32 s%d, s%d, 15" % (sT2, ks_sreg))
        for m in range(4):
            if m == 0:
                a("s_mov_b32 m0, s%d" % lds_sreg)
                a("s_nop 0")
            else:
                a("s_add_u32 m0, s%d, %d" % (lds_sreg, 1024 * m))
                a("s_add_u32 s%d, s%d, %d" % (sT2, sT2, [0, 4096, 12288, 4096][m]))
            a.vmem("buffer_load_dwordx4 v14, s[%d:%d], s%d offen lds" % (S_W2, S_W2 + 3, sT2), tag)

    def role_h(self):
        a = self.a
        a.vm = self.vm_h
        hw = sT3
        a("s_sub_u32 s%d, s%d, 4" % (59, sW))
        a("v_lshlrev_b32 v2, 3, v1")
        a("s_lshl_b32 s%d, s59, 12" % sT0)
        a("v_add_u32 v2, s%d, v2" % sT0)
        HB = 188
        for i in range(6):
            a("ds_read_b64 v[%d:%d], v2 offset:%d" % (HB + 2 * i, HB + 2 * i + 1, L_B + 512 * i))
        self.h_store_addr(59)
        a("s_waitcnt lgkmcnt(0)")
        self.h_stores(HB, "hst")
        self.w2_voff()
        for m in range(7):
            a("s_add_u32 s%d, s59, %d" % (sT0, 4 * m))
            a("s_add_u32 s%d, s%d, 8" % (sT1, sT0))
            a("s_cmp_lt_u32 s%d, 14" % sT0)
            a("s_cselect_b32 s%d, s%d, s%d" % (sT1, sT0, sT1))
            a("s_lshl_b32 s%d, s%d, 12" % (sT0, sT0))
            a("s_add_u32 s%d, s%d, %d" % (sT0, sT0, L_B))
            self.w2_dma_slot(sT0, sT1, "w2b")
        a("s_barrier")
        a("s_barrier")
        a.wait_vm("hst")
        if not self.noflags:
            a("s_lshl_b32 s%d, s%d, 3" % (sT0, sR))
            a("s_add_u32 s%d, s%d, s%d" % (sT0, sT0, sC))
            a("s_lshl_b32 s%d, s%d, 7" % (sT0, sT0))
            a("s_lshl_b32 s%d, s59, 2" % sT1)
            a("s_add_u32 s%d, s%d, s%d" % (sT0, sT0, sT1))
            a("s_add_u32 s%d, s%d, 0x%x" % (sT0, sT0, F_H2))
            self.flag_store(sT0, "flag")
        self.stamp(5)
        a.wait_vm("w2b")
        sk = a.newlabel("L_hp")
        if not self.noflags:
            a("s_cmp_lg_u32 s59, 0")
            a("s_cbranch_scc1 %s" % sk)
            a("s_lshl_b32 s%d, s%d, 10" % (sT0, sR))
            a("s_add_u32 s%d, s%d, 0x%x" % (sT0, sT0, F_H2))
            q = list(a.vm.q)
            self.poll(sT0, 8, 4, 128)
            a.vm.q = q
            a.label(sk)
        self.stamp(6)
        a("s_barrier")
        for m in range(3):
            sk2 = a.newlabel("L_ha")
            a("s_add_u32 s%d, s59, %d" % (sT0, 4 * m))
            if m == 2:
                a("s_cmp_ge_u32 s%d, 10" % sT0)
                a("s_cbranch_scc1 %s" % sk2)
            a("s_add_u32 s%d, s%d, 14" % (sT1, sT0))
            a("s_add_u32 s4, s%d, 31" % sT0)
            a("s_cmp_lt_u32 s%d, 5" % sT0)
            a("s_cselect_b32 s%d, s%d, s4" % (sT1, sT1))
            a("s_lshl_b32 s%d, s%d, 12" % (sT0, sT0))
            a("s_add_u32 s%d, s%d, %d" % (sT0, sT0, L_A))
            self.w2_dma_slot(sT0, sT1, "w2a")
            a.label(sk2)
        self.final_x_load()
        a("s_waitcnt vmcnt(1)")
        a("s_barrier")
        a("s_add_u32 s%d, s59, 19" % sT1)
        a("s_mov_b32 s%d, s59" % sT0)
        a("s_cmp_eq_u32 s59, 3")
        a("s_cselect_b32 s%d, 41, s%d" % (sT1, sT1))
        a("s_cselect_b32 s%d, 14, s%d" % (sT0, sT0))
        a("s_lshl_b32 s%d, s%d, 12" % (sT0, sT0))
        a("s_add_u32 s%d, s%d, %d" % (sT0, sT0, L_B))
        self.w2_dma_slot(sT0, sT1, "w2l")
        sk3 = a.newlabel("L_hl")
        a("s_cmp_lg_u32 s59, 0")
        a("s_cbranch_scc1 %s" % sk3)
        a("s_mov_b32 s%d, %d" % (sT0, L_B + 15 * 4096))
        a("s_mov_b32 s%d, 42" % sT1)
        self.w2_dma_slot(sT0, sT1, "w2l")
        a.label(sk3)
        a("s_waitcnt vmcnt(0)")
        a("s_barrier")
        if not self.noflags:
            a("s_lshl_b32 s%d, s%d, 12" % (sT0, sC))
            a("s_add_u32 s%d, s%d, 0x%x" % (sT0, sT0, F_H3))
            self.poll(sT0, 32, 4, 128)
        self.stamp(7)
        a("v_subrev_u32 v2, 256, v0")
        a("v_lshrrev_b32 v3, 2, v2")
        a("v_and_b32 v4, 3, v2")
        a("v_lshlrev_b32 v5, 7, v3")
        a("v_lshl_add_u32 v5, v4, 5, v5")
        a("s_lshl_b32 s%d, s%d, 16" % (sT0, sR))
        a("s_lshl_b32 s%d, s%d, 13" % (sT1, sC))
        a("s_add_u32 s%d, s%d, s%d" % (sT0, sT0, sT1))
        a("s_add_u32 s%d, s%d, 0x%x" % (sT0, sT0, WS_YT))
        a("v_add_u32 v5, s%d, v5" % sT0)
        a.vmem("buffer_load_dwordx4 v[20:23], v5, s[%d:%d], 0 offen sc1" % (S_WS, S_WS + 3), "y")
        a.vmem("buffer_load_dwordx4 v[24:27], v5, s[%d:%d], 0 offen offset:16 sc1" % (S_WS, S_WS + 3), "y")
        a("v_mul_u32_u24 v6, 144, v3")
        a("v_lshl_add_u32 v6, v4, 5, v6")
        a("s_waitcnt vmcnt(0)")
        a("ds_write_b128 v6, v[20:23] offset:%d" % (L_B + 3 * 4096))
        a("ds_write_b128 v6, v[24:27] offset:%d" % (L_B + 3 * 4096 + 16))
        a("s_waitcnt lgkmcnt(0)")
        a("s_barrier")

    def final_x_load(self):
        a = self.a
        a("s_and_b32 s%d, s%d, 3" % (sT0, sW))
        a("s_lshl_b32 s%d, s%d, 4" % (sT0, sT0))
        a("s_lshl_b32 s%d, s%d, 6" % (sT1, sR))
        a("s_add_u32 s%d, s%d, s%d" % (sT0, sT0, sT1))
        a("s_lshl_b32 s%d, s%d, 10" % (sT0, sT0))
        a("s_lshl_b32 s%d, s%d, 7" % (sT1, sC))
        a("s_add_u32 s%d, s%d, s%d" % (sT0, sT0, sT1))
        a("s_lshr_b32 s%d, s%d, 2" % (sT1, sW))
        a("s_lshl_b32 s%d, s%d, 6" % (sT1, sT1))
        a("s_add_u32 s%d, s%d, s%d" % (sT0, sT0, sT1))
        a("v_lshrrev_b32 v2, 2, v1")
        a("v_lshlrev_b32 v2, 10, v2")
        a("v_and_b32 v3, 3, v1")
        a("v_lshl_add_u32 v2, v3, 4, v2")
        a("v_add_u32 v244, s%d, v2" % sT0)
        a.vmem("buffer_load_dwordx4 v[240:243], v244, s[%d:%d], 0 offen" % (S_X, S_X + 3), "xf")

    def role_m(self):
        a = self.a
        a.vm = self.vm_m
        if not self.noflags:
            sk = a.newlabel("L_m1")
            a("s_cmp_lg_u32 s%d, 0" % sW)
            a("s_cbranch_scc1 %s" % sk)
            a("s_lshl_b32 s%d, s%d, 12" % (sT0, sC))
            a("s_add_u32 s%d, s%d, 0x%x" % (sT0, sT0, F_H1))
            q = list(a.vm.q)
            self.poll(sT0, 32, 1, 128)
            a.vm.q = q
            a.label(sk)
        self.stamp(3)
        a("s_barrier")
        a("v_lshrrev_b32 v2, 7, v0")
        a("v_and_b32 v3, 127, v0")
        a("s_lshl_b32 s%d, s%d, 6" % (sT0, sC))
        a("s_lshl_b32 s%d, s%d, 1" % (sT1, sR))
        a("s_add_u32 s%d, s%d, s%d" % (sT0, sT0, sT1))
        a("s_lshl_b32 s%d, s%d, 12" % (sT0, sT0))
        a("s_add_u32 s%d, s%d, 0x%x" % (sT0, sT0, WS_KVT))
        a("v_lshlrev_b32 v4, 12, v2")
        a("v_lshl_add_u32 v4, v3, 4, v4")
        a("v_add_u32 v4, s%d, v4" % sT0)
        a.vmem("buffer_load_dwordx4 v[20:23], v4, s[%d:%d], 0 offen sc1" % (S_WS, S_WS + 3), "u")
        a.vmem("buffer_load_dwordx4 v[24:27], v4, s[%d:%d], 0 offen offset:2048 sc1" % (S_WS, S_WS + 3), "u")
        a("v_mul_u32_u24 v5, %d, v2" % U_CH)
        a("v_lshl_add_u32 v5, v3, 4, v5")
        a.wait_vm("u")
        a("ds_write_b128 v5, v[20:23] offset:%d" % L_U)
        a("ds_write_b128 v5, v[24:27] offset:%d" % (L_U + 2048))
        a("s_waitcnt lgkmcnt(0)")
        a("s_barrier")
        self.stamp(4)
        self.conv()
        self.gemm2()

    def pair_sync(self, stage):
        a = self.a
        lp = a.newlabel("L_ps"); dn = a.newlabel("L_psd")
        a("s_lshl_b32 s4, s%d, 2" % sW)
        a("s_add_u32 s4, s4, %d" % (L_SYNC + 16 * stage))
        a("s_xor_b32 s5, s4, 4")
        a("v_mov_b32 v16, s4")
        a("v_mov_b32 v17, 1")
        a("s_waitcnt lgkmcnt(0)")
        a("ds_write_b32 v16, v17")
        a("v_mov_b32 v16, s5")
        a("s_mov_b32 s%d, 0" % sT3)
        a.label(lp)
        a("ds_read_b32 v17, v16")
        a("s_waitcnt lgkmcnt(0)")
        a("v_readfirstlane_b32 s4, v17")
        a("s_add_u32 s%d, s%d, 1" % (sT3, sT3))
        a("s_cmp_gt_u32 s%d, 1000000" % sT3)
        a("s_cbranch_scc1 %s" % dn)
        a("s_cmp_eq_u32 s4, 0")
        a("s_cbranch_scc1 %s" % lp)
        a.label(dn)

    def conv(self):
        a = self.a
        BF = 20
        ACC = 148
        AF = 180
        NA = 16
        AU, AT = 2, 3
        a("v_and_b32 v4, 15, v1")
        a("v_lshrrev_b32 v5, 4, v1")
        a("v_lshlrev_b32 v6, 4, v5")
        a("v_lshlrev_b32 v7, 5, v4")
        a("v_sub_u32 v6, v6, v7")
        a("s_lshr_b32 s%d, s%d, 1" % (sT0, sW))
        a("s_and_b32 s%d, s%d, 1" % (sT1, sW))
        a("s_mul_i32 s%d, s%d, %d" % (sT2, sT0, U_CH))
        a("s_add_u32 s%d, s%d, %d" % (sT2, sT2, L_U + 2 * 2032 - 64 * 56))
        a("s_lshl_b32 s4, s%d, 6" % sT1)
        a("s_add_u32 s%d, s%d, s4" % (sT2, sT2))
        a("v_add_u32 v%d, s%d, v6" % (AU, sT2))
        a("v_and_b32 v6, 3, v4")
        a("v_mul_u32_u24 v6, %d, v6" % T_CP)
        a("v_lshrrev_b32 v7, 2, v4")
        a("v_lshl_add_u32 v6, v7, 3, v6")
        a("v_lshl_add_u32 v6, v5, 4, v6")
        a("s_mul_i32 s%d, s%d, %d" % (sT2, sT0, T_CH))
        a("s_lshl_b32 s4, s%d, 6" % sT1)
        a("s_add_u32 s%d, s%d, s4" % (sT2, sT2))
        a("s_add_u32 s%d, s%d, %d" % (sT2, sT2, L_T))
        a("v_add_u32 v%d, s%d, v6" % (AT, sT2))
        for i in range(32):
            a("v_mov_b32 v%d, 0" % (ACC + i))
        lds = []
        issued = []
        def emit_A(ee):
            r = AF + 4 * (ee % NA)
            a("ds_read_b64 v[%d:%d], v%d offset:%d" % (r, r + 1, AT, 128 * ee))
            a("ds_read_b64 v[%d:%d], v%d offset:%d" % (r + 2, r + 3, AT, 128 * ee + 8))
            issued.append(("A", ee)); issued.append(("A", ee))
        def emit_B(idx):
            r = BF + 4 * idx
            a("ds_read_b128 v[%d:%d], v%d offset:%d" % (r, r + 3, AU, 128 * idx))
            issued.append(("B", idx))
        sched = []
        for ee in range(32):
            for j in range(7, (ee >> 2) - 1, -1):
                sched.append((ee, j, 28 - 4 * j + ee))
        order = []
        seen = set()
        for (ee, j, idx) in sched:
            if ("A", ee) not in seen:
                seen.add(("A", ee)); order.append(("A", ee))
            if ("B", idx) not in seen:
                seen.add(("B", idx)); order.append(("B", idx))
        first_use = {}
        for n, (ee, j, idx) in enumerate(sched):
            first_use.setdefault(("A", ee), n); first_use.setdefault(("B", idx), n)
        last_use_A = {}
        for n, (ee, j, idx) in enumerate(sched):
            last_use_A[ee] = n
        ptr = 0
        LOOK = 10
        def can_issue(item, n):
            if item[0] == "A" and item[1] >= NA:
                return last_use_A[item[1] - NA] < n
            return True
        def issue_upto(n_limit, n_now, maxinstr):
            nonlocal ptr
            cnt = 0
            while ptr < len(order) and first_use[order[ptr]] <= n_limit and can_issue(order[ptr], n_now) and cnt < maxinstr:
                it = order[ptr]
                if it[0] == "A": emit_A(it[1]); cnt += 2
                else: emit_B(it[1]); cnt += 1
                ptr += 1
        waited = -1
        def need(item):
            nonlocal waited
            idxs = [i for i, t in enumerate(issued) if t == item]
            last = idxs[-1]
            if last > waited:
                n = len(issued) - 1 - last
                a("s_waitcnt lgkmcnt(%d)" % min(n, 15))
                assert n <= 15
                waited = last
        issue_upto(LOOK, 0, 14)
        for n, (ee, j, idx) in enumerate(sched):
            while ("A", ee) not in issued or ("B", idx) not in issued:
                issue_upto(n, n, 2)
            need(("A", ee)); need(("B", idx))
            ar = AF + 4 * (ee % NA); br = BF + 4 * idx; acc = ACC + 4 * j
            a("v_mfma_f32_16x16x32_bf16 v[%d:%d], v[%d:%d], v[%d:%d], v[%d:%d]" % (acc, acc + 3, ar, ar + 3, br, br + 3, acc, acc + 3))
            inflight = len(issued) - 1 - waited
            if inflight < 12:
                issue_upto(n + 1 + LOOK + 20, n + 1, 2)
        self.stamp(16)
        self.pair_sync(0)
        a.nop(2)
        a("v_lshlrev_b32 v4, 4, v1")
        a("s_lshr_b32 s%d, s%d, 1" % (sT0, sW))
        a("s_mul_i32 s%d, s%d, %d" % (sT0, sT0, T_CH))
        a("s_lshl_b32 s%d, s%d, 12" % (sT2, sT1))
        a("s_add_u32 s%d, s%d, s%d" % (sT2, sT2, sT0))
        a("v_add_u32 v5, s%d, v4" % sT2)
        a("s_xor_b32 s%d, s%d, 1" % (sT2, sT1))
        a("s_lshl_b32 s%d, s%d, 12" % (sT2, sT2))
        a("s_add_u32 s%d, s%d, s%d" % (sT2, sT2, sT0))
        a("v_add_u32 v6, s%d, v4" % sT2)
        l0 = a.newlabel("L_cr0"); l1 = a.newlabel("L_cr1")
        a("s_cmp_eq_u32 s%d, 0" % sT1)
        a("s_cbranch_scc1 %s" % l0)
        for i in range(4):
            a("ds_write_b128 v5, v[%d:%d] offset:%d" % (ACC + 4 * i, ACC + 4 * i + 3, L_T + 1024 * i))
        a("s_nop 0")
        for i in range(16):
            a("v_mov_b32 v%d, v%d" % (200 + i, ACC + 16 + i))
        a("s_branch %s" % l1)
        a.label(l0)
        for i in range(4):
            a("ds_write_b128 v5, v[%d:%d] offset:%d" % (ACC + 16 + 4 * i, ACC + 16 + 4 * i + 3, L_T + 1024 * i))
        for i in range(16):
            a("v_mov_b32 v%d, v%d" % (200 + i, ACC + i))
        a.label(l1)
        self.pair_sync(1)
        for i in range(4):
            a("ds_read_b128 v[%d:%d], v6 offset:%d" % (220 + 4 * i, 223 + 4 * i, L_T + 1024 * i))
        a("v_and_b32 v4, 15, v1")
        a("v_lshrrev_b32 v7, 4, v1")
        a("v_lshlrev_b32 v4, 5, v4")
        a("v_lshl_add_u32 v4, v7, 3, v4")
        a("s_lshr_b32 s%d, s%d, 1" % (sT0, sW))
        a("s_mul_i32 s%d, s%d, %d" % (sT2, sT0, U_CH))
        a("s_add_u32 s%d, s%d, %d" % (sT2, sT2, L_U + 2 * 2044 - 3 * 512))
        a("s_lshl_b32 s4, s%d, 11" % sT1)
        a("s_sub_u32 s%d, s%d, s4" % (sT2, sT2))
        a("v_sub_u32 v4, s%d, v4" % sT2)
        for i in range(4):
            a("ds_read_b64 v[%d:%d], v4 offset:%d" % (236 + 2 * i, 237 + 2 * i, (3 - i) * 512))
        a("s_waitcnt lgkmcnt(0)")
        a("s_lshl_b32 s4, s%d, 16" % sDD)
        a("s_and_b32 s5, s%d, 0xffff0000" % sDD)
        a("s_cmp_eq_u32 s%d, 0" % sT0)
        a("s_cselect_b32 s4, s4, s5")
        a("s_mov_b32 s5, 0xffff0000")
        for i in range(4):
            for r in range(4):
                a("v_add_f32 v%d, v%d, v%d" % (200 + 4 * i + r, 200 + 4 * i + r, 220 + 4 * i + r))
        for i in range(4):
            y = 200 + 4 * i
            u0, u1 = 236 + 2 * i, 237 + 2 * i
            a("v_cvt_pk_bf16_f32 v8, v%d, v%d" % (y, y + 1))
            a("v_cvt_pk_bf16_f32 v9, v%d, v%d" % (y + 2, y + 3))
            a("v_lshlrev_b32 v%d, 16, v8" % y)
            a("v_and_b32 v%d, s5, v8" % (y + 1))
            a("v_lshlrev_b32 v%d, 16, v9" % (y + 2))
            a("v_and_b32 v%d, s5, v9" % (y + 3))
            a("v_and_b32 v10, s5, v%d" % u1)
            a("v_lshlrev_b32 v11, 16, v%d" % u1)
            a("v_and_b32 v12, s5, v%d" % u0)
            a("v_lshlrev_b32 v13, 16, v%d" % u0)
            for r in range(4):
                a("v_mul_f32 v%d, s4, v%d" % (10 + r, 10 + r))
            a("v_cvt_pk_bf16_f32 v8, v10, v11")
            a("v_cvt_pk_bf16_f32 v9, v12, v13")
            a("v_lshlrev_b32 v10, 16, v8")
            a("v_and_b32 v11, s5, v8")
            a("v_lshlrev_b32 v12, 16, v9")
            a("v_and_b32 v13, s5, v9")
            for r in range(4):
                a("v_add_f32 v%d, v%d, v%d" % (y + r, y + r, 10 + r))
            a("v_cvt_pk_bf16_f32 v%d, v%d, v%d" % (220 + 2 * i, y, y + 1))
            a("v_cvt_pk_bf16_f32 v%d, v%d, v%d" % (221 + 2 * i, y + 2, y + 3))
        a("v_and_b32 v4, 15, v1")
        a("v_lshrrev_b32 v5, 2, v4")
        a("v_lshlrev_b32 v5, 16, v5")
        a("v_and_b32 v4, 3, v4")
        a("v_lshl_add_u32 v5, v4, 5, v5")
        a("v_lshrrev_b32 v7, 4, v1")
        a("v_lshl_add_u32 v5, v7, 3, v5")
        a("s_lshl_b32 s%d, s%d, 6" % (sT2, sC))
        a("s_lshl_b32 s4, s%d, 1" % sR)
        a("s_add_u32 s%d, s%d, s4" % (sT2, sT2))
        a("s_add_u32 s%d, s%d, s%d" % (sT2, sT2, sT0))
        a("s_lshl_b32 s%d, s%d, 7" % (sT2, sT2))
        a("s_lshl_b32 s4, s%d, 20" % sT1)
        a("s_add_u32 s%d, s%d, s4" % (sT2, sT2))
        a("s_add_u32 s%d, s%d, 0x%x" % (sT2, sT2, WS_YT))
        a("v_add_u32 v5, s%d, v5" % sT2)
        for i in range(4):
            if i:
                a("v_add_u32 v5, 0x40000, v5")
            a.vmem("buffer_store_dwordx2 v[%d:%d], v5, s[%d:%d], 0 offen sc1" % (220 + 2 * i, 221 + 2 * i, S_WS, S_WS + 3), "yst")
        a("s_waitcnt lgkmcnt(0)")
        self.stamp(17)
        a("s_barrier")
        self.stamp(18)

    def gemm2(self):
        a = self.a
        HF = 20
        ACC = 196
        WB = [228, 228]
        WBUF = [228, 2]
        AB, AA = 246, 250
        a("s_lshr_b32 s%d, s%d, 1" % (sT0, sW))
        a("s_and_b32 s%d, s%d, 1" % (sT1, sW))
        a("s_lshl_b32 s%d, s%d, 2" % (sT2, sR))
        a("s_lshl_b32 s4, s%d, 1" % sT1)
        a("s_add_u32 s%d, s%d, s4" % (sT2, sT2))
        a("s_mul_i32 s%d, s%d, 44032" % (sT2, sT2))
        a("s_mul_i32 s4, s%d, %d" % (sT0, 22 * 1024))
        a("s_add_u32 s%d, s%d, s4" % (sT2, sT2))
        a("s_add_u32 s%d, s%d, 0x%x" % (sT2, sT2, WS_H))
        a("v_lshlrev_b32 v18, 4, v1")
        a("v_add_u32 v18, s%d, v18" % sT2)
        a("v_add_u32 v19, 44032, v18")
        for i in range(22):
            for t in range(2):
                r = HF + (i * 2 + t) * 4
                so = i * 1024
                if so < 4096:
                    a.vmem("buffer_load_dwordx4 v[%d:%d], v%d, s[%d:%d], 0 offen offset:%d sc1" % (r, r + 3, 18 + t, S_WS, S_WS + 3, so), "h%d" % i)
                else:
                    if t == 0:
                        a("s_movk_i32 s4, %d" % (so & ~4095) if (so & ~4095) < 32768 else "s_mov_b32 s4, %d" % (so & ~4095))
                    a.vmem("buffer_load_dwordx4 v[%d:%d], v%d, s[%d:%d], s4 offen offset:%d sc1" % (r, r + 3, 18 + t, S_WS, S_WS + 3, so & 4095), "h%d" % i)
        a("v_lshrrev_b32 v2, 4, v1")
        a("v_and_b32 v3, 15, v1")
        a("v_lshrrev_b32 v3, 2, v3")
        a("v_lshrrev_b32 v4, 1, v2")
        a("v_lshlrev_b32 v4, 4, v4")
        a("v_and_b32 v5, 1, v2")
        a("v_lshl_add_u32 v4, v5, 2, v4")
        a("v_add_u32 v4, v4, v3")
        a("v_lshlrev_b32 v4, 7, v4")
        a("v_and_b32 v6, 1, v1")
        a("v_lshl_add_u32 v4, v6, 3, v4")
        a("v_lshlrev_b32 v5, 1, v5")
        a("v_lshrrev_b32 v6, 1, v3")
        a("v_add_u32 v5, v5, v6")
        a("v_lshlrev_b32 v5, 1, v5")
        a("v_and_b32 v6, 3, v1")
        a("v_lshrrev_b32 v6, 1, v6")
        a("s_mul_i32 s4, s%d, %d" % (sT0, 14 * 4096))
        a("s_add_u32 s4, s4, %d" % L_B)
        a("s_mul_i32 s5, s%d, %d" % (sT0, 5 * 4096))
        a("s_add_u32 s5, s5, %d" % L_A) if L_A else None
        for b in range(4):
            a("v_add_u32 v7, %d, v6" % (2 * b))
            a("v_xor_b32 v7, v7, v5")
            a("v_lshl_add_u32 v7, v7, 4, v4")
            a("v_add_u32 v%d, s4, v7" % (AB + b))
            a("v_add_u32 v%d, s5, v7" % (AA + b))
        for i in range(32):
            a("v_mov_b32 v%d, 0" % (ACC + i))

        def reads(i, buf):
            if i < 14: base, so = AB, i * 4096
            elif i < 19: base, so = AA, (i - 14) * 4096
            else: base, so = AB, (i - 19) * 4096
            for b in range(4):
                for hh in range(2):
                    r0 = buf + 4 * b + 2 * hh
                    a("ds_read_b64_tr_b16 v[%d:%d], v%d offset:%d" % (r0, r0 + 1, base + b, so + hh * 1024))

        def mfmas(i, buf):
            for b in range(4):
                for t in range(2):
                    acc = ACC + (b * 2 + t) * 4
                    hr = HF + (i * 2 + t) * 4
                    a("v_mfma_f32_16x16x32_bf16 v[%d:%d], v[%d:%d], v[%d:%d], v[%d:%d]" % (acc, acc + 3, buf + 4 * b, buf + 4 * b + 3, hr, hr + 3, acc, acc + 3))

        self.stamp(19)
        reads(0, WBUF[0])
        for i in range(22):
            if i == 2: self.stamp(20)
            if i == 12: self.stamp(21)
            cur = WBUF[i & 1]; nxt = WBUF[(i + 1) & 1]
            if i == 7:
                a("s_waitcnt lgkmcnt(0)")
                a("s_barrier")
            if i == 18:
                a("s_waitcnt lgkmcnt(0)")
                a("s_barrier")
            last = a.newlabel("L_g2l")
            if i == 21:
                a("s_cmp_eq_u32 s%d, 1" % sT0)
                a("s_cbranch_scc1 %s" % last)
            if i < 21:
                if i == 20:
                    pass
                reads(i + 1, nxt)
                a.wait_vm("h%d" % i, " lgkmcnt(8)")
            else:
                a.wait_vm("h%d" % i, " lgkmcnt(0)")
            if i == 1 and not self.noflags:
                a("s_lshl_b32 s4, s2, 7")
                a("s_lshl_b32 s5, s%d, 2" % sW)
                a("s_add_u32 s4, s4, s5")
                a("s_add_u32 s4, s4, 0x%x" % F_H3)
                a("s_mov_b32 s%d, s4" % sT2)
                a("v_mov_b32 v244, s%d" % sT2)
                a("v_mov_b32 v245, s%d" % sNONCE)
                a("s_mov_b64 exec, 1")
                a.vmem("buffer_store_dword v245, v244, s[%d:%d], 0 offen sc1" % (S_WS, S_WS + 3), "flag")
                a("s_mov_b64 exec, -1")
            mfmas(i, cur)
            if i == 21:
                a.label(last)
        a("s_waitcnt lgkmcnt(0)")
        self.stamp(22)
        a.nop(8)
        a("v_and_b32 v2, 15, v1")
        a("v_lshrrev_b32 v3, 4, v1")
        a("v_mul_u32_u24 v2, 272, v2")
        a("v_lshl_add_u32 v2, v3, 4, v2")
        a("s_mul_i32 s4, s%d, %d" % (sT0, 14 * 4096))
        a("s_mul_i32 s5, s%d, %d" % (sT1, 32 * 272))
        a("s_add_u32 s4, s4, s5")
        a("s_add_u32 s4, s4, %d" % (L_B + 6 * 4096))
        a("v_add_u32 v2, s4, v2")
        for b in range(4):
            for t in range(2):
                acc = ACC + (b * 2 + t) * 4
                a("ds_write_b128 v2, v[%d:%d] offset:%d" % (acc, acc + 3, t * 16 * 272 + b * 64))
        self.final_x_load()
        a("s_waitcnt lgkmcnt(0)")
        a("s_barrier")

    def final(self):
        a = self.a
        P0 = L_B + 6 * 4096; P1 = L_B + 20 * 4096; YL = L_B + 3 * 4096
        a("s_and_b32 s%d, s%d, 3" % (sT0, sW))
        a("s_lshr_b32 s%d, s%d, 2" % (sT1, sW))
        a("v_lshrrev_b32 v2, 2, v1")
        a("v_and_b32 v3, 3, v1")
        a("s_lshl_b32 s4, s%d, 4" % sT0)
        a("v_add_u32 v2, s4, v2")
        a("v_mul_u32_u24 v4, 272, v2")
        a("v_lshl_add_u32 v4, v3, 5, v4")
        a("s_lshl_b32 s4, s%d, 7" % sT1)
        a("s_add_u32 s4, s4, %d" % P0)
        a("v_add_u32 v4, s4, v4")
        a("ds_read_b128 v[20:23], v4")
        a("ds_read_b128 v[24:27], v4 offset:16")
        a("ds_read_b128 v[28:31], v4 offset:%d" % (P1 - P0))
        a("ds_read_b128 v[32:35], v4 offset:%d" % (P1 - P0 + 16))
        a("v_lshlrev_b32 v6, 3, v2")
        a("v_add_u32 v6, %d, v6" % L_STATS)
        a("ds_read_b64 v[36:37], v6")
        a("v_lshrrev_b32 v7, 4, v1")
        a("v_lshlrev_b32 v7, 3, v7")
        a("v_and_b32 v8, 15, v1")
        a("v_lshrrev_b32 v8, 2, v8")
        a("v_add_u32 v7, v7, v8")
        a("s_lshl_b32 s4, s%d, 5" % sT1)
        a("v_add_u32 v7, s4, v7")
        a("v_mul_u32_u24 v7, 144, v7")
        a("v_and_b32 v8, 3, v1")
        a("v_lshl_add_u32 v7, v8, 3, v7")
        a("s_lshl_b32 s4, s%d, 5" % sT0)
        a("v_add_u32 v7, s4, v7")
        a("ds_read_b64_tr_b16 v[38:39], v7 offset:%d" % YL)
        a("ds_read_b64_tr_b16 v[40:41], v7 offset:%d" % (YL + 4 * 144))
        a("v_and_b32 v8, 3, v1")
        a("v_lshlrev_b32 v8, 4, v8")
        a("v_lshrrev_b32 v9, 2, v1")
        a("v_or_b32 v8, v8, v9")
        a("v_lshlrev_b32 v8, 2, v8")
        a("s_waitcnt lgkmcnt(0)")
        for i in range(4):
            a("ds_bpermute_b32 v%d, v8, v%d" % (42 + i, 38 + i))
        a("s_mov_b32 s5, 0xffff0000")
        for i in range(8):
            a("v_add_f32 v%d, v%d, v%d" % (20 + i, 20 + i, 28 + i))
        for i in range(4):
            a("v_cvt_pk_bf16_f32 v%d, v%d, v%d" % (28 + i, 20 + 2 * i, 21 + 2 * i))
        for i in range(4):
            a("v_lshlrev_b32 v%d, 16, v%d" % (20 + 2 * i, 28 + i))
            a("v_and_b32 v%d, s5, v%d" % (21 + 2 * i, 28 + i))
        a("s_mov_b32 s4, 0xbfb8aa3b")
        for i in range(8):
            a("v_mul_f32 v%d, s4, v%d" % (48 + i, 20 + i))
        for i in range(8):
            a("v_exp_f32 v%d, v%d" % (48 + i, 48 + i))
        for i in range(8):
            a("v_add_f32 v%d, 1.0, v%d" % (48 + i, 48 + i))
        for i in range(8):
            a("v_rcp_f32 v%d, v%d" % (48 + i, 48 + i))
        a("s_nop 0")
        def rnd(base, tmp):
            for i in range(4):
                a("v_cvt_pk_bf16_f32 v%d, v%d, v%d" % (tmp + i, base + 2 * i, base + 2 * i + 1))
            for i in range(4):
                a("v_lshlrev_b32 v%d, 16, v%d" % (base + 2 * i, tmp + i))
                a("v_and_b32 v%d, s5, v%d" % (base + 2 * i + 1, tmp + i))
        for i in range(8):
            a("v_mul_f32 v%d, v%d, v%d" % (20 + i, 20 + i, 48 + i))
        rnd(20, 28)
        a("s_waitcnt vmcnt(0) lgkmcnt(0)")
        for i in range(4):
            a("v_lshlrev_b32 v%d, 16, v%d" % (56 + 2 * i, 240 + i))
            a("v_and_b32 v%d, s5, v%d" % (57 + 2 * i, 240 + i))
            a("v_lshlrev_b32 v%d, 16, v%d" % (64 + 2 * i, 42 + i))
            a("v_and_b32 v%d, s5, v%d" % (65 + 2 * i, 42 + i))
        for i in range(8):
            a("v_sub_f32 v%d, v%d, v36" % (72 + i, 56 + i))
        rnd(72, 80)
        for i in range(8):
            a("v_mul_f32 v%d, v%d, v37" % (72 + i, 72 + i))
        rnd(72, 80)
        for i in range(8):
            a("v_mul_f32 v%d, v%d, v%d" % (72 + i, 72 + i, 64 + i))
        rnd(72, 80)
        for i in range(8):
            a("v_mul_f32 v%d, v%d, v%d" % (72 + i, 72 + i, 20 + i))
        rnd(72, 80)
        for i in range(8):
            a("v_add_f32 v%d, v%d, v%d" % (72 + i, 72 + i, 56 + i))
        for i in range(4):
            a("v_cvt_pk_bf16_f32 v%d, v%d, v%d" % (80 + i, 72 + 2 * i, 73 + 2 * i))
        a("buffer_store_dwordx4 v[80:83], v244, s[%d:%d], 0 offen" % (S_OUT, S_OUT + 3))

    def build(self):
        a = self.a
        self.p0()
        self.stamp(1)
        self.p1()
        self.stamp(10)
        if self.stop_after == "p1": return self.finish()
        self.p2()
        self.stamp(11)
        self.p3()
        self.stamp(2)
        self.p4()
        if self.stop_after == "p4":
            pass
        lm = "L_role_m"; lf = "L_final"
        a("s_cmp_lt_u32 s%d, 4" % sW)
        a("s_cbranch_scc1 %s" % lm)
        self.role_h()
        a("s_branch %s" % lf)
        a.label(lm)
        self.role_m()
        a.label(lf)
        self.stamp(8)
        self.final()
        self.stamp(9)
        return self.finish()

    def finish(self):
        a = self.a
        self.dump_stamps(10)
        a("s_waitcnt vmcnt(0)")
        a.label("L_end")
        a("s_endpgm")
        hdr = """; Kernarg layout: see the harness header (x,k,v,shift_k,ssm_k,ssm_D,B_x,w1,w2,out,debug,ws)
; @launch grid=(256,1,1) block=(512,1,1) lds=%d
.amdgcn_target "amdgcn-amd-amdhsa--gfx950"
.text
.globl %s
.p2align 8
.type %s,@function
%s:
""" % (LDS_SIZE, KNAME, KNAME, KNAME)
        ftr = """.section .rodata,"a"
.p2align 6
.amdhsa_kernel %s
  .amdhsa_next_free_vgpr 256
  .amdhsa_next_free_sgpr 102
  .amdhsa_accum_offset 256
  .amdhsa_group_segment_fixed_size 0
  .amdhsa_kernarg_size 96
  .amdhsa_user_sgpr_count 2
  .amdhsa_user_sgpr_kernarg_segment_ptr 1
  .amdhsa_system_sgpr_workgroup_id_x 1
.end_amdhsa_kernel
""" % KNAME
        return hdr + a.text() + ftr

if __name__ == "__main__":
    import argparse
    ap = argparse.ArgumentParser()
    ap.add_argument("-o", default="k.s")
    ap.add_argument("--stop", default=None)
    ap.add_argument("--stamps", action="store_true")
    ap.add_argument("--noflags", action="store_true")
    ap.add_argument("--exp", default="")
    args = ap.parse_args()
    g = Gen(stop_after=args.stop, stamps=args.stamps, noflags=args.noflags, exp=args.exp)
    txt = g.build()
    open(args.o, "w").write(txt)
    print("wrote", args.o, len(txt.splitlines()), "lines")
```

```python
import sys
from emit import *

KNAME = "recurrent_scan__ssm_conv_h3__dense_activation_relu__prompt_kernel"

WS_KVT = 0
WS_YT = 2 << 20
WS_H = 4 << 20
WS_FLAG = 10 << 20
F_H1 = WS_FLAG
F_H2 = WS_FLAG + 32768
F_H3 = WS_FLAG + 65536
WS_STAMP = WS_FLAG + (256 << 10)
WS_SIZE = 16 << 20

L_XN = 0
L_W1 = 65536
W1_SLOT = 22528
L_PREP = 0
L_T = 0
T_CH = 16640
T_CP = 4160
L_U = 33280
U_CH = 4608
L_B = 43008
L_A = 0
L_STATS = 161792
L_SYNC = 162304
LDS_SIZE = 163840

S_X, S_K, S_V, S_W1, S_W2, S_OUT, S_SSM, S_WS, S_SH, S_DBG = 8, 12, 16, 20, 24, 28, 32, 36, 40, 44
sR, sC, sW, sNONCE = 48, 49, 50, 51
sF0 = 52
sBP = 53
sNB = 54
sT0, sT1, sT2, sT3 = 55, 56, 57, 58
sEX = 60
sM48 = 62
sDD = 88
sSTAMP = 90
PTR = 64

class Gen:
    def __init__(self, stop_after=None, stamps=False, noflags=False, exp=""):
        self.exp = set(exp.split(",")) if exp else set()
        self.a = Asm()
        self.stop_after = stop_after
        self.stamps = stamps
        self.noflags = noflags
        self.nstamp = 0

    def srd(self, dst, ptr, size):
        a = self.a
        a("s_mov_b32 s%d, s%d" % (dst, ptr))
        a("s_and_b32 s%d, s%d, 0xffff" % (dst + 1, ptr + 1))
        a("s_mov_b32 s%d, 0x%x" % (dst + 2, size))
        a("s_mov_b32 s%d, 0x00020000" % (dst + 3))

    def stamp(self, idx):
        if not self.stamps:
            return
        a = self.a
        a("s_memrealtime s[4:5]")
        a("s_waitcnt lgkmcnt(0)")
        a("v_writelane_b32 v255, s4, %d" % idx)

    def dump_stamps(self, n):
        if not self.stamps:
            return
        a = self.a
        a("s_lshl_b32 s%d, s2, 3" % sT0)
        a("s_add_u32 s%d, s%d, s%d" % (sT0, sT0, sW))
        a("s_lshl_b32 s%d, s%d, 7" % (sT0, sT0))
        a("s_add_u32 s%d, s%d, 0x%x" % (sT0, sT0, WS_STAMP))
        a("v_lshlrev_b32 v2, 2, v1")
        a("v_add_u32 v2, s%d, v2" % sT0)
        a("s_mov_b32 exec_lo, -1")
        a("s_mov_b32 exec_hi, 0")
        a("buffer_store_dword v255, v2, s[%d:%d], 0 offen" % (S_WS, S_WS + 3))
        a("s_mov_b64 exec, -1")

    def p0(self):
        a = self.a
        a("s_cmp_ge_u32 s2, 256")
        a("s_cbranch_scc1 L_end")
        a("s_load_dwordx16 s[64:79], s[0:1], 0")
        a("s_load_dwordx8 s[80:87], s[0:1], 64")
        self.stamp_raw0()
        a("v_and_b32 v1, 63, v0")
        a("v_lshrrev_b32 v2, 6, v0")
        a("s_and_b32 s%d, s2, 31" % sR)
        a("s_lshr_b32 s%d, s2, 5" % sC)
        a("v_readfirstlane_b32 s%d, v2" % sW)
        a("s_mul_i32 s%d, s%d, 176" % (sF0, sC))
        a("s_cmp_eq_u32 s%d, 7" % sC)
        a("s_cselect_b32 s%d, 16, 0" % sT0)
        a("s_sub_u32 s%d, s%d, s%d" % (sF0, sF0, sT0))
        a("s_lshr_b32 s%d, s%d, 4" % (sBP, sF0))
        a("s_cmp_ge_u32 s%d, 6" % sC)
        a("s_cselect_b32 s%d, 10, 11" % sNB)
        a("s_mov_b64 s[%d:%d], 0xffffffffffff" % (sM48, sM48 + 1)) if False else None
        a("s_mov_b32 s%d, -1" % sM48)
        a("s_mov_b32 s%d, 0xffff" % (sM48 + 1))
        a("s_waitcnt lgkmcnt(0)")
        self.srd(S_X, 64, 2097152)
        self.srd(S_K, 66, 2097152)
        self.srd(S_V, 68, 2097152)
        self.srd(S_SH, 70, 4096)
        self.srd(S_SSM, 72, 2097152)
        self.srd(S_W1, 78, 1409024)
        self.srd(S_W2, 80, 1409024)
        self.srd(S_OUT, 82, 2097152)
        self.srd(S_DBG, 84, 256)
        self.srd(S_WS, 86, WS_SIZE)
        a("s_lshl_b32 s%d, s%d, 7" % (sT0, sC))
        a("s_lshl_b32 s%d, s%d, 2" % (sT1, sR))
        a("s_add_u32 s%d, s%d, s%d" % (sT0, sT0, sT1))
        a("s_load_dword s%d, s[74:75], s%d" % (sDD, sT0))
        if not self.noflags:
            a("s_or_b32 s%d, s2, s%d" % (sT1, sW))
            a("s_cmp_lg_u32 s%d, 0" % sT1)
            a("s_cbranch_scc1 L_nononce")
            a("s_memrealtime s[4:5]")
            a("s_waitcnt lgkmcnt(0)")
            a("s_or_b32 s4, s4, 1")
            a("v_mov_b32 v2, s4")
            a("v_mov_b32 v3, 0")
            a("s_mov_b64 exec, 1")
            a("buffer_store_dword v2, v3, s[%d:%d], 0 offen sc1" % (S_DBG, S_DBG + 3))
            a("s_mov_b64 exec, -1")
            a.label("L_nononce")
        a("v_lshrrev_b32 v2, 5, v0")
        a("v_and_b32 v3, 31, v0")
        a("s_lshl_b32 s%d, s%d, 16" % (sT0, sR))
        a("s_lshl_b32 s%d, s%d, 7" % (sT1, sC))
        a("s_add_u32 s%d, s%d, s%d" % (sT0, sT0, sT1))
        a("v_lshlrev_b32 v17, 12, v2")
        a("v_lshl_add_u32 v17, v3, 2, v17")
        a("v_add_u32 v17, s%d, v17" % sT0)
        a("v_add_u32 v18, 0xfffff400, v17")
        a("v_add_u32 v19, 0xfffff800, v17")
        a("v_add_u32 v4, 0xfffffc00, v17")
        K = 52
        a.vmem("buffer_load_dword v%d, v18, s[%d:%d], 0 offen" % (K + 0, S_K, S_K + 3), "prep")
        a.vmem("buffer_load_dword v%d, v19, s[%d:%d], 0 offen" % (K + 1, S_K, S_K + 3), "prep")
        a.vmem("buffer_load_dword v%d, v4, s[%d:%d], 0 offen" % (K + 2, S_K, S_K + 3), "prep")
        for t in range(4):
            a.vmem("buffer_load_dword v%d, v17, s[%d:%d], 0 offen offset:%d" % (K + 3 + t, S_K, S_K + 3, 1024 * t), "prep")
        for t in range(4):
            a.vmem("buffer_load_dword v%d, v17, s[%d:%d], 0 offen offset:%d" % (60 + t, S_V, S_V + 3, 1024 * t), "prep")
        a("s_lshl_b32 s%d, s%d, 9" % (sT0, sC))
        a("v_lshlrev_b32 v5, 4, v3")
        a("v_add_u32 v5, s%d, v5" % sT0)
        a.vmem("buffer_load_dwordx4 v[64:67], v5, s[%d:%d], 0 offen" % (S_SH, S_SH + 3), "prep")
        a("s_lshl_b32 s%d, s%d, 16" % (sT0, sR))
        a("s_lshl_b32 s%d, s%d, 13" % (sT1, sW))
        a("s_add_u32 s%d, s%d, s%d" % (sT0, sT0, sT1))
        a("v_lshrrev_b32 v6, 3, v1")
        a("v_lshlrev_b32 v6, 10, v6")
        a("v_and_b32 v7, 7, v1")
        a("v_lshl_add_u32 v6, v7, 4, v6")
        a("v_add_u32 v6, s%d, v6" % sT0)
        for jj in range(8):
            a.vmem("buffer_load_dwordx4 v[%d:%d], v6, s[%d:%d], 0 offen offset:%d" % (20 + 4 * jj, 23 + 4 * jj, S_X, S_X + 3, 128 * jj), "x")
        a("s_and_b32 s%d, s%d, 1" % (sT0, sW))
        a("s_lshl_b32 s%d, s%d, 2" % (sT0, sT0))
        a("s_lshr_b32 s%d, s%d, 1" % (sT1, sW))
        a("s_lshl_b32 s%d, s%d, 4" % (sT1, sT1))
        a("s_add_u32 s%d, s%d, s%d" % (sT0, sT0, sT1))
        a("s_mul_i32 s%d, s%d, 2752" % (sT0, sT0))
        a("s_lshl_b32 s%d, s%d, 1" % (sT1, sF0))
        a("s_add_u32 s%d, s%d, s%d" % (sT0, sT0, sT1))
        a("s_movk_i32 s%d, 2979" % sT2)
        a("s_movk_i32 s%d, 2752" % sT3)
        for i in range(3):
            a("v_add_u32 v2, %d, v1" % (64 * i))
            a("v_mul_lo_u32 v3, v2, s%d" % sT2)
            a("v_lshrrev_b32 v3, 16, v3")
            a("v_mul_u32_u24 v4, 22, v3")
            a("v_sub_u32 v4, v2, v4")
            a("v_and_b32 v5, 3, v3")
            a("v_lshrrev_b32 v7, 2, v3")
            a("v_lshl_add_u32 v5, v7, 3, v5")
            a("v_mul_lo_u32 v5, v5, s%d" % sT3)
            a("v_lshl_add_u32 v5, v4, 4, v5")
            a("v_add_u32 v%d, s%d, v5" % (14 + i, sT0))
        for ch in range(4):
            self.w1_dma(ch)
        a("s_lshl_b32 s%d, s%d, 6" % (sT0, sC))
        a("s_lshl_b32 s%d, s%d, 1" % (sT1, sR))
        a("s_add_u32 s%d, s%d, s%d" % (sT0, sT0, sT1))
        a("s_lshl_b32 s%d, s%d, 12" % (sT0, sT0))
        a("v_lshrrev_b32 v2, 8, v0")
        a("v_lshlrev_b32 v2, 12, v2")
        a("v_and_b32 v3, 255, v0")
        a("v_lshl_add_u32 v2, v3, 4, v2")
        a("v_add_u32 v2, s%d, v2" % sT0)
        a.vmem("buffer_load_dwordx4 v[8:11], v2, s[%d:%d], 0 offen" % (S_SSM, S_SSM + 3), "ssm")
        a.vmem("buffer_load_dwordx2 v[12:13], v2, s[%d:%d], 0 offen offset:16" % (S_SSM, S_SSM + 3), "ssm")

    def stamp_raw0(self):
        if self.stamps:
            a = self.a
            a("v_mov_b32 v255, 0")
            a("s_memrealtime s[4:5]")
            a("s_waitcnt lgkmcnt(0)")
            a("v_writelane_b32 v255, s4, 0")

    def w1_dma(self, ch):
        a = self.a
        slot = ch % 4
        a("s_mul_i32 s%d, s%d, 2816" % (sT0, sW))
        a("s_add_u32 s%d, s%d, %d" % (sT0, sT0, L_W1 + slot * W1_SLOT))
        a("s_mov_b32 s%d, %d" % (sT1, ch * 64 * 2752))
        for i in range(3):
            if i == 0:
                a("s_mov_b32 m0, s%d" % sT0)
            else:
                a("s_add_u32 m0, s%d, %d" % (sT0, 1024 * i))
            if i == 2:
                a("s_mov_b64 exec, s[%d:%d]" % (sM48, sM48 + 1))
            else:
                a("s_nop 0")
            a.vmem("buffer_load_dwordx4 v%d, s[%d:%d], s%d offen lds" % (14 + i, S_W1, S_W1 + 3, sT1), "w1c%d" % ch)
        a("s_mov_b64 exec, -1")

    def p1(self):
        a = self.a
        K, V, SH = 52, 60, 64
        KL, KH = 68, 75
        VL, VH = 82, 86
        W0, W1 = 90, 94
        O = 98
        a.wait_vm("prep")
        self.stamp(12)
        a("s_mov_b32 s%d, 0xffff0000" % sT0)
        for t in range(7):
            a("v_lshlrev_b32 v%d, 16, v%d" % (KL + t, K + t))
            a("v_and_b32 v%d, s%d, v%d" % (KH + t, sT0, K + t))
        for t in range(4):
            a("v_lshlrev_b32 v%d, 16, v%d" % (VL + t, V + t))
            a("v_and_b32 v%d, s%d, v%d" % (VH + t, sT0, V + t))
        for j in range(2):
            a("v_lshlrev_b32 v%d, 16, v%d" % (W0 + 2 * j, SH + j))
            a("v_and_b32 v%d, s%d, v%d" % (W0 + 2 * j + 1, sT0, SH + j))
            a("v_lshlrev_b32 v%d, 16, v%d" % (W1 + 2 * j, SH + 2 + j))
            a("v_and_b32 v%d, s%d, v%d" % (W1 + 2 * j + 1, sT0, SH + 2 + j))
        TMP = 110
        def rnd8(base):
            for r in range(4):
                a("v_cvt_pk_bf16_f32 v%d, v%d, v%d" % (TMP + 8 + r, base + r, base + 4 + r))
            for r in range(4):
                a("v_lshlrev_b32 v%d, 16, v%d" % (base + r, TMP + 8 + r))
                a("v_and_b32 v%d, s%d, v%d" % (base + 4 + r, sT0, TMP + 8 + r))
        for r in range(4):
            a("v_mul_f32 v%d, v%d, v%d" % (O + r, KL + r, W0 + 3))
            a("v_mul_f32 v%d, v%d, v%d" % (O + 4 + r, KH + r, W1 + 3))
        rnd8(O)
        for j in (2, 1, 0):
            for r in range(4):
                a("v_mul_f32 v%d, v%d, v%d" % (TMP + r, KL + 3 + r - j, W0 + j))
                a("v_mul_f32 v%d, v%d, v%d" % (TMP + 4 + r, KH + 3 + r - j, W1 + j))
            rnd8(TMP)
            for r in range(8):
                a("v_add_f32 v%d, v%d, v%d" % (O + r, O + r, TMP + r))
            rnd8(O)
        for r in range(4):
            a("v_mul_f32 v%d, v%d, v%d" % (O + r, O + r, VL + r))
            a("v_mul_f32 v%d, v%d, v%d" % (O + 4 + r, O + 4 + r, VH + r))
        a("v_cvt_pk_bf16_f32 v106, v%d, v%d" % (O + 3, O + 2))
        a("v_cvt_pk_bf16_f32 v107, v%d, v%d" % (O + 1, O + 0))
        a("v_cvt_pk_bf16_f32 v108, v%d, v%d" % (O + 7, O + 6))
        a("v_cvt_pk_bf16_f32 v109, v%d, v%d" % (O + 5, O + 4))
        a("v_and_b32 v2, 31, v0")
        a("v_mul_u32_u24 v2, 288, v2")
        a("v_lshrrev_b32 v3, 5, v0")
        a("v_lshlrev_b32 v3, 3, v3")
        a("v_sub_u32 v2, v2, v3")
        a("ds_write_b64 v2, v[106:107] offset:%d" % (L_PREP + 120))
        a("ds_write_b64 v2, v[108:109] offset:%d" % (L_PREP + 120 + 144))
        a("v_and_b32 v3, 15, v0")
        a("v_lshlrev_b32 v3, 2, v3")
        a("v_add_u32 v3, %d, v3" % L_SYNC)
        a("v_mov_b32 v4, 0")
        a("ds_write_b32 v3, v4")
        a("s_waitcnt lgkmcnt(0)")
        a("s_barrier")
        a("v_lshrrev_b32 v2, 3, v0")
        a("v_and_b32 v3, 7, v0")
        a("v_mul_u32_u24 v4, 144, v2")
        a("v_lshl_add_u32 v4, v3, 4, v4")
        a("ds_read_b128 v[108:111], v4 offset:%d" % L_PREP)
        a("s_lshl_b32 s%d, s%d, 18" % (sT0, sC))
        a("s_lshl_b32 s%d, s%d, 7" % (sT1, sR))
        a("s_sub_u32 s%d, s%d, s%d" % (sT0, sT0, sT1))
        a("s_add_u32 s%d, s%d, %d" % (sT0, sT0, WS_KVT + 3968))
        a("v_lshlrev_b32 v5, 12, v2")
        a("v_lshl_add_u32 v5, v3, 4, v5")
        a("v_add_u32 v5, s%d, v5" % sT0)
        a("s_waitcnt lgkmcnt(0)")
        a.vmem("buffer_store_dwordx4 v[108:111], v5, s[%d:%d], 0 offen sc1" % (S_WS, S_WS + 3), "kvt")
        if not self.noflags:
            a("v_mov_b32 v7, 0")
            a.vmem("buffer_load_dword v19, v7, s[%d:%d], 0 offen sc1" % (S_DBG, S_DBG + 3), "nonce")
        a("s_barrier")

    def p2(self):
        a = self.a
        X = 20
        D = 100
        a.wait_vm("x")
        self.stamp(13)
        a("s_mov_b32 s%d, 0x3f803f80" % sT0)
        a("v_mov_b32 v2, 0")
        a("v_mov_b32 v3, 0")
        a("v_mov_b32 v4, 0")
        a("v_mov_b32 v5, 0")
        for i in range(32):
            a("v_dot2_f32_bf16 v%d, v%d, s%d, v%d" % (2 + (i & 3), X + i, sT0, 2 + (i & 3)))
        a("s_nop 3")
        a("v_add_f32 v2, v2, v3")
        a("v_add_f32 v4, v4, v5")
        a("v_add_f32 v2, v2, v4")
        self.dpp_reduce8(2)
        a("v_mul_f32 v2, 0x3b000000, v2")
        a("v_cvt_pk_bf16_f32 v3, v2, v2")
        a("v_lshlrev_b32 v3, 16, v3")
        a("v_sub_f32 v4, v2, v3")
        a("s_mov_b32 s%d, 0xffff0000" % sT1)
        a("v_mov_b32 v6, v3")
        a("v_mov_b32 v7, v3")
        a("v_mov_b32 v168, 0")
        a("v_mov_b32 v169, 0")
        a("v_mov_b32 v170, 0")
        a("v_mov_b32 v171, 0")
        for i in range(32):
            a("v_lshlrev_b32 v%d, 16, v%d" % (D + 2 * i, X + i))
            a("v_and_b32 v%d, s%d, v%d" % (D + 2 * i + 1, sT1, X + i))
        for i in range(32):
            a("v_pk_add_f32 v[%d:%d], v[%d:%d], v[6:7] neg_lo:[0,1] neg_hi:[0,1]" % (D + 2 * i, D + 2 * i + 1, D + 2 * i, D + 2 * i + 1))
        for i in range(32):
            acc = 168 + 2 * (i & 1)
            a("v_pk_fma_f32 v[%d:%d], v[%d:%d], v[%d:%d], v[%d:%d]" % (acc, acc + 1, D + 2 * i, D + 2 * i + 1, D + 2 * i, D + 2 * i + 1, acc, acc + 1))
        a("v_add_f32 v168, v168, v169")
        a("v_add_f32 v170, v170, v171")
        a("v_add_f32 v2, v168, v170")
        self.dpp_reduce8(2)
        a("v_mul_f32 v2, 0x3b000000, v2")
        a("v_fma_f32 v2, -v4, v4, v2")
        a("v_max_f32 v2, 0, v2")
        a("v_cvt_pk_bf16_f32 v2, v2, v2")
        a("v_lshlrev_b32 v2, 16, v2")
        a("v_add_f32 v2, 0x3727c5ac, v2")
        a("v_cvt_pk_bf16_f32 v2, v2, v2")
        a("v_lshlrev_b32 v2, 16, v2")
        a("v_sqrt_f32 v2, v2")
        a("s_nop 0")
        a("v_cvt_pk_bf16_f32 v2, v2, v2")
        a("v_lshlrev_b32 v2, 16, v2")
        a("v_rcp_f32 v6, v2")
        a("s_nop 0")
        a("v_mov_b32 v7, v6")
        a("v_lshrrev_b32 v4, 3, v1")
        a("s_lshl_b32 s%d, s%d, 3" % (sT2, sW))
        a("v_add_u32 v4, s%d, v4" % sT2)
        a("v_lshlrev_b32 v5, 3, v4")
        a("v_add_u32 v5, %d, v5" % L_STATS)
        a("v_mov_b32 v2, v3")
        a("v_mov_b32 v3, v6")
        a("ds_write_b64 v5, v[2:3]")
        for i in range(32):
            a("v_cvt_pk_bf16_f32 v%d, v%d, v%d" % (X + i, D + 2 * i, D + 2 * i + 1))
        for i in range(32):
            a("v_lshlrev_b32 v%d, 16, v%d" % (D + 2 * i, X + i))
            a("v_and_b32 v%d, s%d, v%d" % (D + 2 * i + 1, sT1, X + i))
        for i in range(32):
            a("v_pk_mul_f32 v[%d:%d], v[%d:%d], v[6:7]" % (D + 2 * i, D + 2 * i + 1, D + 2 * i, D + 2 * i + 1))
        for i in range(32):
            a("v_cvt_pk_bf16_f32 v%d, v%d, v%d" % (X + i, D + 2 * i, D + 2 * i + 1))
        if "dumpxn" in self.exp:
            a("s_lshl_b32 s%d, s%d, 16" % (sT2, sR))
            a("s_lshl_b32 s%d, s%d, 13" % (sT3, sW))
            a("s_add_u32 s%d, s%d, s%d" % (sT2, sT2, sT3))
            a("s_add_u32 s%d, s%d, 0x%x" % (sT2, sT2, 12 << 20))
            a("v_lshrrev_b32 v4, 3, v1")
            a("v_lshlrev_b32 v4, 10, v4")
            a("v_and_b32 v5, 7, v1")
            a("v_lshl_add_u32 v4, v5, 4, v4")
            a("v_add_u32 v4, s%d, v4" % sT2)
            for jj in range(8):
                a.vmem("buffer_store_dwordx4 v[%d:%d], v4, s[%d:%d], 0 offen offset:%d" % (X + 4 * jj, X + 4 * jj + 3, S_WS, S_WS + 3, 128 * jj), "dump")
        a("v_and_b32 v5, 7, v1")
        a("v_lshrrev_b32 v4, 3, v1")
        a("s_and_b32 s%d, s%d, 1" % (sT2, sW))
        a("s_lshl_b32 s%d, s%d, 3" % (sT2, sT2))
        a("v_add_u32 v4, s%d, v4" % sT2)
        a("v_xor_b32 v4, v4, v5")
        a("v_lshlrev_b32 v4, 4, v4")
        a("v_lshrrev_b32 v7, 2, v5")
        a("v_lshl_add_u32 v4, v7, 10, v4")
        a("v_and_b32 v7, 3, v5")
        a("v_lshl_add_u32 v4, v7, 8, v4")
        a("s_lshr_b32 s%d, s%d, 1" % (sT2, sW))
        a("s_lshl_b32 s%d, s%d, 14" % (sT2, sT2))
        a("v_add_u32 v4, s%d, v4" % sT2)
        for jj in range(8):
            a("ds_write_b128 v4, v[%d:%d] offset:%d" % (X + 4 * jj, X + 4 * jj + 3, L_XN + 2048 * jj))

    def dpp_reduce8(self, r):
        a = self.a
        a("s_nop 1")
        a("v_add_f32_dpp v%d, v%d, v%d quad_perm:[1,0,3,2] row_mask:0xf bank_mask:0xf" % (r, r, r))
        a("s_nop 1")
        a("v_add_f32_dpp v%d, v%d, v%d quad_perm:[2,3,0,1] row_mask:0xf bank_mask:0xf" % (r, r, r))
        a("s_nop 1")
        a("v_add_f32_dpp v%d, v%d, v%d row_half_mirror row_mask:0xf bank_mask:0xf" % (r, r, r))

    def get_nonce(self):
        if self.noflags:
            return
        a = self.a
        a.wait_vm("nonce")
        lo = a.newlabel("L_nz"); lp = a.newlabel("L_nl")
        a("v_readfirstlane_b32 s%d, v19" % sNONCE)
        a("s_nop 3")
        a("s_cmp_lg_u32 s%d, 0" % sNONCE)
        a("s_cbranch_scc1 %s" % lo)
        a("s_mov_b32 s%d, 0" % sT3)
        a.label(lp)
        a("v_mov_b32 v7, 0")
        a("buffer_load_dword v19, v7, s[%d:%d], 0 offen sc1" % (S_DBG, S_DBG + 3))
        a("s_waitcnt vmcnt(0)")
        a("v_readfirstlane_b32 s%d, v19" % sNONCE)
        a("s_add_u32 s%d, s%d, 1" % (sT3, sT3))
        a("s_cmp_gt_u32 s%d, 100000" % sT3)
        a("s_cbranch_scc1 %s" % lo)
        a("s_cmp_eq_u32 s%d, 0" % sNONCE)
        a("s_cbranch_scc1 %s" % lp)
        a.label(lo)

    def flag_store(self, off_sreg, tag):
        if self.noflags:
            return
        a = self.a
        a("v_mov_b32 v2, s%d" % off_sreg)
        a("v_mov_b32 v3, s%d" % sNONCE)
        a("s_mov_b64 exec, 1")
        a.vmem("buffer_store_dword v3, v2, s[%d:%d], 0 offen sc1" % (S_WS, S_WS + 3), tag)
        a("s_mov_b64 exec, -1")

    def poll(self, base_sreg, nlanes, width, stride):
        if self.noflags:
            return
        a = self.a
        lp = a.newlabel("L_poll"); dn = a.newlabel("L_pdone")
        a("v_mul_u32_u24 v2, %d, v1" % stride)
        a("v_add_u32 v2, s%d, v2" % base_sreg)
        a("s_mov_b32 s%d, 0" % sT3)
        a("s_mov_b64 exec, 0x%x" % ((1 << nlanes) - 1)) if nlanes <= 16 else None
        if nlanes > 16:
            assert nlanes == 32
            a("s_mov_b32 exec_lo, -1")
            a("s_mov_b32 exec_hi, 0")
        a.label(lp)
        if width == 1:
            a("buffer_load_dword v4, v2, s[%d:%d], 0 offen sc1" % (S_WS, S_WS + 3))
            a("s_waitcnt vmcnt(0)")
            a("v_cmp_ne_u32 vcc, s%d, v4" % sNONCE)
        else:
            a("buffer_load_dwordx4 v[4:7], v2, s[%d:%d], 0 offen sc1" % (S_WS, S_WS + 3))
            a("s_waitcnt vmcnt(0)")
            a("v_xor_b32 v4, s%d, v4" % sNONCE)
            a("v_xor_b32 v5, s%d, v5" % sNONCE)
            a("v_xor_b32 v6, s%d, v6" % sNONCE)
            a("v_xor_b32 v7, s%d, v7" % sNONCE)
            a("v_or3_b32 v4, v4, v5, v6")
            a("v_or_b32 v4, v4, v7")
            a("v_cmp_ne_u32 vcc, 0, v4")
        a("s_add_u32 s%d, s%d, 1" % (sT3, sT3))
        a("s_cmp_gt_u32 s%d, 100000" % sT3)
        a("s_cbranch_scc1 %s" % dn)
        a("s_cbranch_vccnz %s" % lp)
        a.label(dn)
        a("s_mov_b64 exec, -1")
        a.vm.q = []

    def p3(self):
        a = self.a
        ACC = 164
        BUF = [188, 208]
        AX0, AX1, AW = 228, 229, 230
        a("v_and_b32 v2, 15, v1")
        a("v_lshrrev_b32 v3, 4, v1")
        a("s_and_b32 s%d, s%d, 1" % (sT0, sW))
        a("s_lshl_b32 s%d, s%d, 15" % (sT0, sT0))
        a("v_xor_b32 v4, v2, v3")
        a("v_lshlrev_b32 v4, 4, v4")
        a("v_lshl_add_u32 v4, v3, 8, v4")
        a("v_add_u32 v%d, s%d, v4" % (AX0, sT0))
        a("v_or_b32 v4, 4, v3")
        a("v_xor_b32 v4, v2, v4")
        a("v_lshlrev_b32 v4, 4, v4")
        a("v_lshl_add_u32 v4, v3, 8, v4")
        a("v_add_u32 v%d, s%d, v4" % (AX1, sT0))
        a("v_lshrrev_b32 v4, 1, v3")
        a("v_lshlrev_b32 v4, 4, v4")
        a("v_and_b32 v5, 1, v3")
        a("v_lshl_add_u32 v4, v5, 2, v4")
        a("v_lshrrev_b32 v5, 2, v2")
        a("v_add_u32 v4, v4, v5")
        a("v_mul_u32_u24 v4, 352, v4")
        a("v_and_b32 v5, 3, v1")
        a("v_lshl_add_u32 v4, v5, 3, v4")
        a("s_lshr_b32 s%d, s%d, 1" % (sT0, sW))
        a("s_mul_i32 s%d, s%d, 96" % (sT0, sT0))
        a("s_add_u32 s%d, s%d, %d" % (sT0, sT0, L_W1))
        a("v_add_u32 v%d, s%d, v4" % (AW, sT0))
        AW2 = 231
        a("v_add_u32 v%d, %d, v%d" % (AW2, 2 * W1_SLOT, AW))
        for i in range(24):
            a("v_mov_b32 v%d, 0" % (ACC + i))

        def reads(ks, buf):
            if "g1noreads" in self.exp:
                return
            ch = ks >> 1; slot = ch % 4; ksl = ks & 1
            ax = AX1 if (ks & 1) else AX0
            for t in range(2):
                a("ds_read_b128 v[%d:%d], v%d offset:%d" % (buf + 4 * t, buf + 4 * t + 3, ax, L_XN + t * 16384 + ks * 1024))
            aw = AW2 if slot >= 2 else AW
            so = (slot % 2) * W1_SLOT + ksl * 32 * 352
            for b in range(3):
                for hh in range(2):
                    r0 = buf + 8 + 4 * b + 2 * hh
                    a("ds_read_b64_tr_b16 v[%d:%d], v%d offset:%d" % (r0, r0 + 1, aw, so + hh * 8 * 352 + b * 32))

        a.wait_vm("w1c0", " lgkmcnt(0)")
        a("s_barrier")
        self.stamp(14)
        reads(0, BUF[0])
        for ks in range(16):
            cur = BUF[ks & 1]; nxt = BUF[(ks + 1) & 1]
            if ks < 15:
                if ks & 1:
                    j = ks >> 1
                    if "g1nodma" not in self.exp: a.wait_vm("w1c%d" % (j + 1))
                    if j == 2 and not self.noflags:
                        a.wait_vm("kvt")
                    if "g1nobar" not in self.exp: a("s_barrier")
                    if j + 4 <= 7 and j >= 0:
                        pass
                    if j >= 1 and j + 3 <= 7:
                        if "g1nodma" in self.exp: a.vm.issue("w1c%d" % (j + 3))
                        else: self.w1_dma(j + 3)
                    if j == 2 and not self.noflags:
                        self.publish_h1()
                reads(ks + 1, nxt)
                a("s_waitcnt lgkmcnt(8)")
            else:
                a("s_waitcnt lgkmcnt(0)")
            for b in range(3):
                for t in range(2):
                    if "g1nomfma" in self.exp: continue
                    acc = ACC + (b * 2 + t) * 4
                    a("v_mfma_f32_16x16x32_bf16 v[%d:%d], v[%d:%d], v[%d:%d], v[%d:%d]" % (
                        acc, acc + 3, cur + 8 + 4 * b, cur + 11 + 4 * b, cur + 4 * t, cur + 4 * t + 3, acc, acc + 3))
        a("s_barrier")

    def publish_h1(self):
        a = self.a
        sk = a.newlabel("L_sk")
        self.get_nonce()
        a("s_cmp_lg_u32 s%d, 0" % sW)
        a("s_cbranch_scc1 %s" % sk)
        a("s_lshl_b32 s%d, s2, 7" % sT0)
        a("s_add_u32 s%d, s%d, 0x%x" % (sT0, sT0, F_H1))
        q = list(a.vm.q)
        self.flag_store(sT0, "flag")
        a.vm.q = q
        a.label(sk)

    def h_store_addr(self, wreg):
        a = self.a
        a("v_lshrrev_b32 v2, 4, v1")
        a("v_and_b32 v3, 15, v1")
        a("v_lshlrev_b32 v5, 4, v3")
        a("v_lshrrev_b32 v4, 1, v2")
        a("v_lshl_add_u32 v5, v4, 8, v5")
        a("v_and_b32 v4, 1, v2")
        a("v_lshl_add_u32 v5, v4, 3, v5")
        a("s_and_b32 s%d, s%d, 1" % (sT0, wreg))
        a("s_lshl_b32 s%d, s%d, 1" % (sT0, sT0))
        a("s_lshl_b32 s%d, s%d, 2" % (sT1, sR))
        a("s_add_u32 s%d, s%d, s%d" % (sT0, sT0, sT1))
        a("s_mul_i32 s%d, s%d, 44032" % (sT0, sT0))
        a("s_lshr_b32 s%d, s%d, 1" % (sT1, wreg))
        a("s_mul_i32 s%d, s%d, 3" % (sT1, sT1))
        a("s_add_u32 s%d, s%d, s%d" % (sT2, sT1, sBP))
        a("s_lshl_b32 s%d, s%d, 9" % (sT2, sT2))
        a("s_add_u32 s%d, s%d, s%d" % (sT0, sT0, sT2))
        a("s_add_u32 s%d, s%d, 0x%x" % (sT0, sT0, WS_H))
        a("v_add_u32 v5, s%d, v5" % sT0)
        a("v_add_u32 v6, 44032, v5")

    def h_stores(self, HB, tag):
        a = self.a
        for b in range(3):
            sk = a.newlabel("L_hs")
            a("s_add_u32 s%d, s%d, %d" % (sT2, sT1, b))
            a("s_cmp_ge_u32 s%d, s%d" % (sT2, sNB))
            a("s_cbranch_scc1 %s" % sk)
            for t in range(2):
                r = HB + (b * 2 + t) * 2
                a.vmem("buffer_store_dwordx2 v[%d:%d], v%d, s[%d:%d], 0 offen offset:%d sc1" % (r, r + 1, 5 + t, S_WS, S_WS + 3, 512 * b), tag)
            a.label(sk)

    def p4(self):
        a = self.a
        ACC = 164
        HB = 188
        a.nop(8)
        for i in range(6):
            a("v_cvt_pk_bf16_f32 v%d, v%d, v%d" % (HB + 2 * i, ACC + 4 * i, ACC + 4 * i + 1))
            a("v_cvt_pk_bf16_f32 v%d, v%d, v%d" % (HB + 2 * i + 1, ACC + 4 * i + 2, ACC + 4 * i + 3))
        for i in range(12):
            a("v_pk_max_i16 v%d, v%d, 0" % (HB + i, HB + i))
        lm = a.newlabel("L_p4m"); le = a.newlabel("L_p4e")
        a("s_cmp_lt_u32 s%d, 4" % sW)
        a("s_cbranch_scc1 %s" % lm)
        self.h_store_addr(sW)
        q0 = list(a.vm.q)
        self.h_stores(HB, "hst")
        self.vm_h_own = list(a.vm.q)
        a("s_branch %s" % le)
        a.label(lm)
        a.vm.q = list(q0)
        a("v_lshlrev_b32 v2, 3, v1")
        a("s_lshl_b32 s%d, s%d, 12" % (sT0, sW))
        a("v_add_u32 v2, s%d, v2" % sT0)
        for i in range(6):
            a("ds_write_b64 v2, v[%d:%d] offset:%d" % (HB + 2 * i, HB + 2 * i + 1, L_B + 512 * i))
        a.label(le)
        a.wait_vm("ssm") if False else None
        a("s_waitcnt vmcnt(63)") if False else None
        E = 200
        for p in range(5):
            a("v_alignbit_b32 v%d, v%d, v%d, 16" % (E + p, 9 + p, 8 + p))
        for p in range(4):
            a("v_mov_b32 v%d, v%d" % (206 + p, 9 + p))
            a("v_mov_b32 v%d, v%d" % (210 + p, E + 1 + p))
        a("v_lshrrev_b32 v2, 8, v0")
        a("v_mul_u32_u24 v2, %d, v2" % T_CH)
        a("v_and_b32 v3, 255, v0")
        a("v_lshl_add_u32 v2, v3, 4, v2")
        a("ds_write_b128 v2, v[%d:%d] offset:%d" % (E, E + 3, L_T + 0 * T_CP + 32))
        a("ds_write_b128 v2, v[206:209] offset:%d" % (L_T + 1 * T_CP + 32))
        a("ds_write_b128 v2, v[210:213] offset:%d" % (L_T + 2 * T_CP + 32))
        a("ds_write_b128 v2, v[10:13] offset:%d" % (L_T + 3 * T_CP + 32))
        a("v_cmp_eq_u32 vcc, 0, v3")
        a("s_and_saveexec_b64 s[%d:%d], vcc" % (sEX, sEX + 1))
        hd = a.newlabel("L_hd")
        a("s_cbranch_execz %s" % hd)
        Z = 214
        for i in range(4):
            a("v_mov_b32 v%d, 0" % (Z + i))
        a("v_lshlrev_b32 v218, 16, v8")
        for cp in range(4):
            a("ds_write_b128 v2, v[%d:%d] offset:%d" % (Z, Z + 3, L_T + cp * T_CP))
        a("v_mov_b32 v220, 0\nv_mov_b32 v221, 0\nv_mov_b32 v222, 0\nv_mov_b32 v223, v218")
        a("v_mov_b32 v224, 0\nv_mov_b32 v225, 0\nv_mov_b32 v226, 0\nv_mov_b32 v227, v8")
        a("v_mov_b32 v228, 0\nv_mov_b32 v229, 0\nv_mov_b32 v230, v218\nv_mov_b32 v231, v%d" % E)
        a("v_mov_b32 v232, 0\nv_mov_b32 v233, 0\nv_mov_b32 v234, v8\nv_mov_b32 v235, v9")
        for cp in range(4):
            a("ds_write_b128 v2, v[%d:%d] offset:%d" % (220 + 4 * cp, 223 + 4 * cp, L_T + cp * T_CP + 16))
        a.label(hd)
        a("s_mov_b64 exec, s[%d:%d]" % (sEX, sEX + 1))
        a("v_and_b32 v3, 31, v0")
        a("v_lshrrev_b32 v2, 5, v0")
        a("v_mul_u32_u24 v2, %d, v2" % U_CH)
        a("v_lshl_add_u32 v2, v3, 4, v2")
        a("v_cmp_gt_u32 vcc, 32, v3")
        a("v_cmp_gt_u32 s[4:5], 64, v0")
        a("s_and_b64 vcc, vcc, s[4:5]")
        a("s_and_saveexec_b64 s[%d:%d], vcc" % (sEX, sEX + 1))
        hd2 = a.newlabel("L_hd")
        a("s_cbranch_execz %s" % hd2)
        for i in range(4):
            a("v_mov_b32 v%d, 0" % (214 + i))
        a("ds_write_b128 v2, v[214:217] offset:%d" % (L_U + 4096))
        a.label(hd2)
        a("s_mov_b64 exec, s[%d:%d]" % (sEX, sEX + 1))
        a("s_waitcnt lgkmcnt(0)")
        a("s_barrier")
        self.vm_m = VM(q0)
        self.vm_h = VM(self.vm_h_own)

    def w2_voff(self):
        a = self.a
        a("v_lshrrev_b32 v2, 3, v1")
        a("v_and_b32 v2, 3, v2")
        a("v_lshrrev_b32 v3, 5, v1")
        a("v_lshl_add_u32 v2, v3, 3, v2")
        a("v_lshlrev_b32 v2, 10, v2")
        a("v_lshrrev_b32 v3, 4, v1")
        a("v_and_b32 v3, 3, v3")
        a("v_lshlrev_b32 v3, 1, v3")
        a("v_and_b32 v4, 7, v1")
        a("v_xor_b32 v3, v3, v4")
        a("v_lshl_add_u32 v2, v3, 4, v2")
        a("s_lshl_b32 s%d, s%d, 7" % (sT0, sC))
        a("v_add_u32 v14, s%d, v2" % sT0)

    def w2_dma_slot(self, lds_sreg, ks_sreg, tag):
        a = self.a
        a("s_lshl_b32 s%d, s%d, 15" % (sT2, ks_sreg))
        for m in range(4):
            if m == 0:
                a("s_mov_b32 m0, s%d" % lds_sreg)
                a("s_nop 0")
            else:
                a("s_add_u32 m0, s%d, %d" % (lds_sreg, 1024 * m))
                a("s_add_u32 s%d, s%d, %d" % (sT2, sT2, [0, 4096, 12288, 4096][m]))
            a.vmem("buffer_load_dwordx4 v14, s[%d:%d], s%d offen lds" % (S_W2, S_W2 + 3, sT2), tag)

    def role_h(self):
        a = self.a
        a.vm = self.vm_h
        hw = sT3
        a("s_sub_u32 s%d, s%d, 4" % (59, sW))
        a("v_lshlrev_b32 v2, 3, v1")
        a("s_lshl_b32 s%d, s59, 12" % sT0)
        a("v_add_u32 v2, s%d, v2" % sT0)
        HB = 188
        for i in range(6):
            a("ds_read_b64 v[%d:%d], v2 offset:%d" % (HB + 2 * i, HB + 2 * i + 1, L_B + 512 * i))
        self.h_store_addr(59)
        a("s_waitcnt lgkmcnt(0)")
        self.h_stores(HB, "hst")
        self.w2_voff()
        for m in range(7):
            a("s_add_u32 s%d, s59, %d" % (sT0, 4 * m))
            a("s_add_u32 s%d, s%d, 8" % (sT1, sT0))
            a("s_cmp_lt_u32 s%d, 14" % sT0)
            a("s_cselect_b32 s%d, s%d, s%d" % (sT1, sT0, sT1))
            a("s_lshl_b32 s%d, s%d, 12" % (sT0, sT0))
            a("s_add_u32 s%d, s%d, %d" % (sT0, sT0, L_B))
            self.w2_dma_slot(sT0, sT1, "w2b")
        a("s_barrier")
        a("s_barrier")
        a.wait_vm("hst")
        if not self.noflags:
            a("s_lshl_b32 s%d, s%d, 3" % (sT0, sR))
            a("s_add_u32 s%d, s%d, s%d" % (sT0, sT0, sC))
            a("s_lshl_b32 s%d, s%d, 7" % (sT0, sT0))
            a("s_lshl_b32 s%d, s59, 2" % sT1)
            a("s_add_u32 s%d, s%d, s%d" % (sT0, sT0, sT1))
            a("s_add_u32 s%d, s%d, 0x%x" % (sT0, sT0, F_H2))
            self.flag_store(sT0, "flag")
        self.stamp(5)
        a.wait_vm("w2b")
        sk = a.newlabel("L_hp")
        if not self.noflags:
            a("s_cmp_lg_u32 s59, 0")
            a("s_cbranch_scc1 %s" % sk)
            a("s_lshl_b32 s%d, s%d, 10" % (sT0, sR))
            a("s_add_u32 s%d, s%d, 0x%x" % (sT0, sT0, F_H2))
            q = list(a.vm.q)
            self.poll(sT0, 8, 4, 128)
            a.vm.q = q
            a.label(sk)
        self.stamp(6)
        a("s_barrier")
        for m in range(3):
            sk2 = a.newlabel("L_ha")
            a("s_add_u32 s%d, s59, %d" % (sT0, 4 * m))
            if m == 2:
                a("s_cmp_ge_u32 s%d, 10" % sT0)
                a("s_cbranch_scc1 %s" % sk2)
            a("s_add_u32 s%d, s%d, 14" % (sT1, sT0))
            a("s_add_u32 s4, s%d, 31" % sT0)
            a("s_cmp_lt_u32 s%d, 5" % sT0)
            a("s_cselect_b32 s%d, s%d, s4" % (sT1, sT1))
            a("s_lshl_b32 s%d, s%d, 12" % (sT0, sT0))
            a("s_add_u32 s%d, s%d, %d" % (sT0, sT0, L_A))
            self.w2_dma_slot(sT0, sT1, "w2a")
            a.label(sk2)
        self.final_x_load()
        a("s_waitcnt vmcnt(1)")
        a("s_barrier")
        a("s_add_u32 s%d, s59, 19" % sT1)
        a("s_mov_b32 s%d, s59" % sT0)
        a("s_cmp_eq_u32 s59, 3")
        a("s_cselect_b32 s%d, 41, s%d" % (sT1, sT1))
        a("s_cselect_b32 s%d, 14, s%d" % (sT0, sT0))
        a("s_lshl_b32 s%d, s%d, 12" % (sT0, sT0))
        a("s_add_u32 s%d, s%d, %d" % (sT0, sT0, L_B))
        self.w2_dma_slot(sT0, sT1, "w2l")
        sk3 = a.newlabel("L_hl")
        a("s_cmp_lg_u32 s59, 0")
        a("s_cbranch_scc1 %s" % sk3)
        a("s_mov_b32 s%d, %d" % (sT0, L_B + 15 * 4096))
        a("s_mov_b32 s%d, 42" % sT1)
        self.w2_dma_slot(sT0, sT1, "w2l")
        a.label(sk3)
        a("s_waitcnt vmcnt(0)")
        a("s_barrier")
        if not self.noflags:
            a("s_lshl_b32 s%d, s%d, 12" % (sT0, sC))
            a("s_add_u32 s%d, s%d, 0x%x" % (sT0, sT0, F_H3))
            self.poll(sT0, 32, 4, 128)
        self.stamp(7)
        a("v_subrev_u32 v2, 256, v0")
        a("v_lshrrev_b32 v3, 2, v2")
        a("v_and_b32 v4, 3, v2")
        a("v_lshlrev_b32 v5, 7, v3")
        a("v_lshl_add_u32 v5, v4, 5, v5")
        a("s_lshl_b32 s%d, s%d, 16" % (sT0, sR))
        a("s_lshl_b32 s%d, s%d, 13" % (sT1, sC))
        a("s_add_u32 s%d, s%d, s%d" % (sT0, sT0, sT1))
        a("s_add_u32 s%d, s%d, 0x%x" % (sT0, sT0, WS_YT))
        a("v_add_u32 v5, s%d, v5" % sT0)
        a.vmem("buffer_load_dwordx4 v[20:23], v5, s[%d:%d], 0 offen sc1" % (S_WS, S_WS + 3), "y")
        a.vmem("buffer_load_dwordx4 v[24:27], v5, s[%d:%d], 0 offen offset:16 sc1" % (S_WS, S_WS + 3), "y")
        a("v_mul_u32_u24 v6, 144, v3")
        a("v_lshl_add_u32 v6, v4, 5, v6")
        a("s_waitcnt vmcnt(0)")
        a("ds_write_b128 v6, v[20:23] offset:%d" % (L_B + 3 * 4096))
        a("ds_write_b128 v6, v[24:27] offset:%d" % (L_B + 3 * 4096 + 16))
        a("s_waitcnt lgkmcnt(0)")
        a("s_barrier")

    def final_x_load(self):
        a = self.a
        a("s_and_b32 s%d, s%d, 3" % (sT0, sW))
        a("s_lshl_b32 s%d, s%d, 4" % (sT0, sT0))
        a("s_lshl_b32 s%d, s%d, 6" % (sT1, sR))
        a("s_add_u32 s%d, s%d, s%d" % (sT0, sT0, sT1))
        a("s_lshl_b32 s%d, s%d, 10" % (sT0, sT0))
        a("s_lshl_b32 s%d, s%d, 7" % (sT1, sC))
        a("s_add_u32 s%d, s%d, s%d" % (sT0, sT0, sT1))
        a("s_lshr_b32 s%d, s%d, 2" % (sT1, sW))
        a("s_lshl_b32 s%d, s%d, 6" % (sT1, sT1))
        a("s_add_u32 s%d, s%d, s%d" % (sT0, sT0, sT1))
        a("v_lshrrev_b32 v2, 2, v1")
        a("v_lshlrev_b32 v2, 10, v2")
        a("v_and_b32 v3, 3, v1")
        a("v_lshl_add_u32 v2, v3, 4, v2")
        a("v_add_u32 v244, s%d, v2" % sT0)
        a.vmem("buffer_load_dwordx4 v[240:243], v244, s[%d:%d], 0 offen" % (S_X, S_X + 3), "xf")

    def role_m(self):
        a = self.a
        a.vm = self.vm_m
        if not self.noflags:
            sk = a.newlabel("L_m1")
            a("s_cmp_lg_u32 s%d, 0" % sW)
            a("s_cbranch_scc1 %s" % sk)
            a("s_lshl_b32 s%d, s%d, 12" % (sT0, sC))
            a("s_add_u32 s%d, s%d, 0x%x" % (sT0, sT0, F_H1))
            q = list(a.vm.q)
            self.poll(sT0, 32, 1, 128)
            a.vm.q = q
            a.label(sk)
        self.stamp(3)
        a("s_barrier")
        a("v_lshrrev_b32 v2, 7, v0")
        a("v_and_b32 v3, 127, v0")
        a("s_lshl_b32 s%d, s%d, 6" % (sT0, sC))
        a("s_lshl_b32 s%d, s%d, 1" % (sT1, sR))
        a("s_add_u32 s%d, s%d, s%d" % (sT0, sT0, sT1))
        a("s_lshl_b32 s%d, s%d, 12" % (sT0, sT0))
        a("s_add_u32 s%d, s%d, 0x%x" % (sT0, sT0, WS_KVT))
        a("v_lshlrev_b32 v4, 12, v2")
        a("v_lshl_add_u32 v4, v3, 4, v4")
        a("v_add_u32 v4, s%d, v4" % sT0)
        a.vmem("buffer_load_dwordx4 v[20:23], v4, s[%d:%d], 0 offen sc1" % (S_WS, S_WS + 3), "u")
        a.vmem("buffer_load_dwordx4 v[24:27], v4, s[%d:%d], 0 offen offset:2048 sc1" % (S_WS, S_WS + 3), "u")
        a("v_mul_u32_u24 v5, %d, v2" % U_CH)
        a("v_lshl_add_u32 v5, v3, 4, v5")
        a.wait_vm("u")
        a("ds_write_b128 v5, v[20:23] offset:%d" % L_U)
        a("ds_write_b128 v5, v[24:27] offset:%d" % (L_U + 2048))
        a("s_waitcnt lgkmcnt(0)")
        a("s_barrier")
        self.stamp(4)
        self.conv()
        self.gemm2()

    def pair_sync(self, stage):
        a = self.a
        lp = a.newlabel("L_ps"); dn = a.newlabel("L_psd")
        a("s_lshl_b32 s4, s%d, 2" % sW)
        a("s_add_u32 s4, s4, %d" % (L_SYNC + 16 * stage))
        a("s_xor_b32 s5, s4, 4")
        a("v_mov_b32 v16, s4")
        a("v_mov_b32 v17, 1")
        a("s_waitcnt lgkmcnt(0)")
        a("ds_write_b32 v16, v17")
        a("v_mov_b32 v16, s5")
        a("s_mov_b32 s%d, 0" % sT3)
        a.label(lp)
        a("ds_read_b32 v17, v16")
        a("s_waitcnt lgkmcnt(0)")
        a("v_readfirstlane_b32 s4, v17")
        a("s_add_u32 s%d, s%d, 1" % (sT3, sT3))
        a("s_cmp_gt_u32 s%d, 1000000" % sT3)
        a("s_cbranch_scc1 %s" % dn)
        a("s_cmp_eq_u32 s4, 0")
        a("s_cbranch_scc1 %s" % lp)
        a.label(dn)

    def conv(self):
        a = self.a
        BF = 20
        ACC = 148
        AF = 180
        NA = 16
        AU, AT = 2, 3
        a("v_and_b32 v4, 15, v1")
        a("v_lshrrev_b32 v5, 4, v1")
        a("v_lshlrev_b32 v6, 4, v5")
        a("v_lshlrev_b32 v7, 5, v4")
        a("v_sub_u32 v6, v6, v7")
        a("s_lshr_b32 s%d, s%d, 1" % (sT0, sW))
        a("s_and_b32 s%d, s%d, 1" % (sT1, sW))
        a("s_mul_i32 s%d, s%d, %d" % (sT2, sT0, U_CH))
        a("s_add_u32 s%d, s%d, %d" % (sT2, sT2, L_U + 2 * 2032 - 64 * 56))
        a("s_lshl_b32 s4, s%d, 6" % sT1)
        a("s_add_u32 s%d, s%d, s4" % (sT2, sT2))
        a("v_add_u32 v%d, s%d, v6" % (AU, sT2))
        a("v_and_b32 v6, 3, v4")
        a("v_mul_u32_u24 v6, %d, v6" % T_CP)
        a("v_lshrrev_b32 v7, 2, v4")
        a("v_lshl_add_u32 v6, v7, 3, v6")
        a("v_lshl_add_u32 v6, v5, 4, v6")
        a("s_mul_i32 s%d, s%d, %d" % (sT2, sT0, T_CH))
        a("s_lshl_b32 s4, s%d, 6" % sT1)
        a("s_add_u32 s%d, s%d, s4" % (sT2, sT2))
        a("s_add_u32 s%d, s%d, %d" % (sT2, sT2, L_T))
        a("v_add_u32 v%d, s%d, v6" % (AT, sT2))
        for i in range(32):
            a("v_mov_b32 v%d, 0" % (ACC + i))
        lds = []
        issued = []
        def emit_A(ee):
            r = AF + 4 * (ee % NA)
            a("ds_read_b64 v[%d:%d], v%d offset:%d" % (r, r + 1, AT, 128 * ee))
            a("ds_read_b64 v[%d:%d], v%d offset:%d" % (r + 2, r + 3, AT, 128 * ee + 8))
            issued.append(("A", ee)); issued.append(("A", ee))
        def emit_B(idx):
            r = BF + 4 * idx
            a("ds_read_b128 v[%d:%d], v%d offset:%d" % (r, r + 3, AU, 128 * idx))
            issued.append(("B", idx))
        sched = []
        for ee in range(32):
            for j in range(7, (ee >> 2) - 1, -1):
                sched.append((ee, j, 28 - 4 * j + ee))
        order = []
        seen = set()
        for (ee, j, idx) in sched:
            if ("A", ee) not in seen:
                seen.add(("A", ee)); order.append(("A", ee))
            if ("B", idx) not in seen:
                seen.add(("B", idx)); order.append(("B", idx))
        first_use = {}
        for n, (ee, j, idx) in enumerate(sched):
            first_use.setdefault(("A", ee), n); first_use.setdefault(("B", idx), n)
        last_use_A = {}
        for n, (ee, j, idx) in enumerate(sched):
            last_use_A[ee] = n
        ptr = 0
        LOOK = 10
        def can_issue(item, n):
            if item[0] == "A" and item[1] >= NA:
                return last_use_A[item[1] - NA] < n
            return True
        def issue_upto(n_limit, n_now, maxinstr):
            nonlocal ptr
            cnt = 0
            while ptr < len(order) and first_use[order[ptr]] <= n_limit and can_issue(order[ptr], n_now) and cnt < maxinstr:
                it = order[ptr]
                if it[0] == "A": emit_A(it[1]); cnt += 2
                else: emit_B(it[1]); cnt += 1
                ptr += 1
        waited = -1
        def need(item):
            nonlocal waited
            idxs = [i for i, t in enumerate(issued) if t == item]
            last = idxs[-1]
            if last > waited:
                n = len(issued) - 1 - last
                a("s_waitcnt lgkmcnt(%d)" % min(n, 15))
                assert n <= 15
                waited = last
        issue_upto(LOOK, 0, 14)
        for n, (ee, j, idx) in enumerate(sched):
            while ("A", ee) not in issued or ("B", idx) not in issued:
                issue_upto(n, n, 2)
            need(("A", ee)); need(("B", idx))
            ar = AF + 4 * (ee % NA); br = BF + 4 * idx; acc = ACC + 4 * j
            a("v_mfma_f32_16x16x32_bf16 v[%d:%d], v[%d:%d], v[%d:%d], v[%d:%d]" % (acc, acc + 3, ar, ar + 3, br, br + 3, acc, acc + 3))
            inflight = len(issued) - 1 - waited
            if inflight < 12:
                issue_upto(n + 1 + LOOK + 20, n + 1, 2)
        self.stamp(16)
        self.pair_sync(0)
        a.nop(2)
        a("v_lshlrev_b32 v4, 4, v1")
        a("s_lshr_b32 s%d, s%d, 1" % (sT0, sW))
        a("s_mul_i32 s%d, s%d, %d" % (sT0, sT0, T_CH))
        a("s_lshl_b32 s%d, s%d, 12" % (sT2, sT1))
        a("s_add_u32 s%d, s%d, s%d" % (sT2, sT2, sT0))
        a("v_add_u32 v5, s%d, v4" % sT2)
        a("s_xor_b32 s%d, s%d, 1" % (sT2, sT1))
        a("s_lshl_b32 s%d, s%d, 12" % (sT2, sT2))
        a("s_add_u32 s%d, s%d, s%d" % (sT2, sT2, sT0))
        a("v_add_u32 v6, s%d, v4" % sT2)
        l0 = a.newlabel("L_cr0"); l1 = a.newlabel("L_cr1")
        a("s_cmp_eq_u32 s%d, 0" % sT1)
        a("s_cbranch_scc1 %s" % l0)
        for i in range(4):
            a("ds_write_b128 v5, v[%d:%d] offset:%d" % (ACC + 4 * i, ACC + 4 * i + 3, L_T + 1024 * i))
        a("s_nop 0")
        for i in range(16):
            a("v_mov_b32 v%d, v%d" % (200 + i, ACC + 16 + i))
        a("s_branch %s" % l1)
        a.label(l0)
        for i in range(4):
            a("ds_write_b128 v5, v[%d:%d] offset:%d" % (ACC + 16 + 4 * i, ACC + 16 + 4 * i + 3, L_T + 1024 * i))
        for i in range(16):
            a("v_mov_b32 v%d, v%d" % (200 + i, ACC + i))
        a.label(l1)
        self.pair_sync(1)
        for i in range(4):
            a("ds_read_b128 v[%d:%d], v6 offset:%d" % (220 + 4 * i, 223 + 4 * i, L_T + 1024 * i))
        a("v_and_b32 v4, 15, v1")
        a("v_lshrrev_b32 v7, 4, v1")
        a("v_lshlrev_b32 v4, 5, v4")
        a("v_lshl_add_u32 v4, v7, 3, v4")
        a("s_lshr_b32 s%d, s%d, 1" % (sT0, sW))
        a("s_mul_i32 s%d, s%d, %d" % (sT2, sT0, U_CH))
        a("s_add_u32 s%d, s%d, %d" % (sT2, sT2, L_U + 2 * 2044 - 3 * 512))
        a("s_lshl_b32 s4, s%d, 11" % sT1)
        a("s_sub_u32 s%d, s%d, s4" % (sT2, sT2))
        a("v_sub_u32 v4, s%d, v4" % sT2)
        for i in range(4):
            a("ds_read_b64 v[%d:%d], v4 offset:%d" % (236 + 2 * i, 237 + 2 * i, (3 - i) * 512))
        a("s_waitcnt lgkmcnt(0)")
        a("s_lshl_b32 s4, s%d, 16" % sDD)
        a("s_and_b32 s5, s%d, 0xffff0000" % sDD)
        a("s_cmp_eq_u32 s%d, 0" % sT0)
        a("s_cselect_b32 s4, s4, s5")
        a("s_mov_b32 s5, 0xffff0000")
        for i in range(4):
            for r in range(4):
                a("v_add_f32 v%d, v%d, v%d" % (200 + 4 * i + r, 200 + 4 * i + r, 220 + 4 * i + r))
        for i in range(4):
            y = 200 + 4 * i
            u0, u1 = 236 + 2 * i, 237 + 2 * i
            a("v_cvt_pk_bf16_f32 v8, v%d, v%d" % (y, y + 1))
            a("v_cvt_pk_bf16_f32 v9, v%d, v%d" % (y + 2, y + 3))
            a("v_lshlrev_b32 v%d, 16, v8" % y)
            a("v_and_b32 v%d, s5, v8" % (y + 1))
            a("v_lshlrev_b32 v%d, 16, v9" % (y + 2))
            a("v_and_b32 v%d, s5, v9" % (y + 3))
            a("v_and_b32 v10, s5, v%d" % u1)
            a("v_lshlrev_b32 v11, 16, v%d" % u1)
            a("v_and_b32 v12, s5, v%d" % u0)
            a("v_lshlrev_b32 v13, 16, v%d" % u0)
            for r in range(4):
                a("v_mul_f32 v%d, s4, v%d" % (10 + r, 10 + r))
            a("v_cvt_pk_bf16_f32 v8, v10, v11")
            a("v_cvt_pk_bf16_f32 v9, v12, v13")
            a("v_lshlrev_b32 v10, 16, v8")
            a("v_and_b32 v11, s5, v8")
            a("v_lshlrev_b32 v12, 16, v9")
            a("v_and_b32 v13, s5, v9")
            for r in range(4):
                a("v_add_f32 v%d, v%d, v%d" % (y + r, y + r, 10 + r))
            a("v_cvt_pk_bf16_f32 v%d, v%d, v%d" % (220 + 2 * i, y, y + 1))
            a("v_cvt_pk_bf16_f32 v%d, v%d, v%d" % (221 + 2 * i, y + 2, y + 3))
        a("v_and_b32 v4, 15, v1")
        a("v_lshrrev_b32 v5, 2, v4")
        a("v_lshlrev_b32 v5, 16, v5")
        a("v_and_b32 v4, 3, v4")
        a("v_lshl_add_u32 v5, v4, 5, v5")
        a("v_lshrrev_b32 v7, 4, v1")
        a("v_lshl_add_u32 v5, v7, 3, v5")
        a("s_lshl_b32 s%d, s%d, 6" % (sT2, sC))
        a("s_lshl_b32 s4, s%d, 1" % sR)
        a("s_add_u32 s%d, s%d, s4" % (sT2, sT2))
        a("s_add_u32 s%d, s%d, s%d" % (sT2, sT2, sT0))
        a("s_lshl_b32 s%d, s%d, 7" % (sT2, sT2))
        a("s_lshl_b32 s4, s%d, 20" % sT1)
        a("s_add_u32 s%d, s%d, s4" % (sT2, sT2))
        a("s_add_u32 s%d, s%d, 0x%x" % (sT2, sT2, WS_YT))
        a("v_add_u32 v5, s%d, v5" % sT2)
        for i in range(4):
            if i:
                a("v_add_u32 v5, 0x40000, v5")
            a.vmem("buffer_store_dwordx2 v[%d:%d], v5, s[%d:%d], 0 offen sc1" % (220 + 2 * i, 221 + 2 * i, S_WS, S_WS + 3), "yst")
        a("s_waitcnt lgkmcnt(0)")
        self.stamp(17)
        a("s_barrier")
        self.stamp(18)

    def gemm2(self):
        a = self.a
        HF = 20
        ACC = 196
        WB = [228, 228]
        WBUF = [228, 2]
        AB, AA = 246, 250
        a("s_lshr_b32 s%d, s%d, 1" % (sT0, sW))
        a("s_and_b32 s%d, s%d, 1" % (sT1, sW))
        a("s_lshl_b32 s%d, s%d, 2" % (sT2, sR))
        a("s_lshl_b32 s4, s%d, 1" % sT1)
        a("s_add_u32 s%d, s%d, s4" % (sT2, sT2))
        a("s_mul_i32 s%d, s%d, 44032" % (sT2, sT2))
        a("s_mul_i32 s4, s%d, %d" % (sT0, 22 * 1024))
        a("s_add_u32 s%d, s%d, s4" % (sT2, sT2))
        a("s_add_u32 s%d, s%d, 0x%x" % (sT2, sT2, WS_H))
        a("v_lshlrev_b32 v18, 4, v1")
        a("v_add_u32 v18, s%d, v18" % sT2)
        a("v_add_u32 v19, 44032, v18")
        for i in range(22):
            for t in range(2):
                r = HF + (i * 2 + t) * 4
                so = i * 1024
                if so < 4096:
                    a.vmem("buffer_load_dwordx4 v[%d:%d], v%d, s[%d:%d], 0 offen offset:%d sc1" % (r, r + 3, 18 + t, S_WS, S_WS + 3, so), "h%d" % i)
                else:
                    if t == 0:
                        a("s_movk_i32 s4, %d" % (so & ~4095) if (so & ~4095) < 32768 else "s_mov_b32 s4, %d" % (so & ~4095))
                    a.vmem("buffer_load_dwordx4 v[%d:%d], v%d, s[%d:%d], s4 offen offset:%d sc1" % (r, r + 3, 18 + t, S_WS, S_WS + 3, so & 4095), "h%d" % i)
        a("v_lshrrev_b32 v2, 4, v1")
        a("v_and_b32 v3, 15, v1")
        a("v_lshrrev_b32 v3, 2, v3")
        a("v_lshrrev_b32 v4, 1, v2")
        a("v_lshlrev_b32 v4, 4, v4")
        a("v_and_b32 v5, 1, v2")
        a("v_lshl_add_u32 v4, v5, 2, v4")
        a("v_add_u32 v4, v4, v3")
        a("v_lshlrev_b32 v4, 7, v4")
        a("v_and_b32 v6, 1, v1")
        a("v_lshl_add_u32 v4, v6, 3, v4")
        a("v_lshlrev_b32 v5, 1, v5")
        a("v_lshrrev_b32 v6, 1, v3")
        a("v_add_u32 v5, v5, v6")
        a("v_lshlrev_b32 v5, 1, v5")
        a("v_and_b32 v6, 3, v1")
        a("v_lshrrev_b32 v6, 1, v6")
        a("s_mul_i32 s4, s%d, %d" % (sT0, 14 * 4096))
        a("s_add_u32 s4, s4, %d" % L_B)
        a("s_mul_i32 s5, s%d, %d" % (sT0, 5 * 4096))
        a("s_add_u32 s5, s5, %d" % L_A) if L_A else None
        for b in range(4):
            a("v_add_u32 v7, %d, v6" % (2 * b))
            a("v_xor_b32 v7, v7, v5")
            a("v_lshl_add_u32 v7, v7, 4, v4")
            a("v_add_u32 v%d, s4, v7" % (AB + b))
            a("v_add_u32 v%d, s5, v7" % (AA + b))
        for i in range(32):
            a("v_mov_b32 v%d, 0" % (ACC + i))

        def reads(i, buf):
            if i < 14: base, so = AB, i * 4096
            elif i < 19: base, so = AA, (i - 14) * 4096
            else: base, so = AB, (i - 19) * 4096
            for b in range(4):
                for hh in range(2):
                    r0 = buf + 4 * b + 2 * hh
                    a("ds_read_b64_tr_b16 v[%d:%d], v%d offset:%d" % (r0, r0 + 1, base + b, so + hh * 1024))

        def mfmas(i, buf):
            for b in range(4):
                for t in range(2):
                    acc = ACC + (b * 2 + t) * 4
                    hr = HF + (i * 2 + t) * 4
                    a("v_mfma_f32_16x16x32_bf16 v[%d:%d], v[%d:%d], v[%d:%d], v[%d:%d]" % (acc, acc + 3, buf + 4 * b, buf + 4 * b + 3, hr, hr + 3, acc, acc + 3))

        self.stamp(19)
        reads(0, WBUF[0])
        for i in range(22):
            if i == 2: self.stamp(20)
            if i == 12: self.stamp(21)
            cur = WBUF[i & 1]; nxt = WBUF[(i + 1) & 1]
            if i == 7:
                a("s_waitcnt lgkmcnt(0)")
                a("s_barrier")
            if i == 18:
                a("s_waitcnt lgkmcnt(0)")
                a("s_barrier")
            last = a.newlabel("L_g2l")
            if i == 21:
                a("s_cmp_eq_u32 s%d, 1" % sT0)
                a("s_cbranch_scc1 %s" % last)
            if i < 21:
                if i == 20:
                    pass
                reads(i + 1, nxt)
                a.wait_vm("h%d" % i, " lgkmcnt(8)")
            else:
                a.wait_vm("h%d" % i, " lgkmcnt(0)")
            if i == 1 and not self.noflags:
                a("s_lshl_b32 s4, s2, 7")
                a("s_lshl_b32 s5, s%d, 2" % sW)
                a("s_add_u32 s4, s4, s5")
                a("s_add_u32 s4, s4, 0x%x" % F_H3)
                a("s_mov_b32 s%d, s4" % sT2)
                a("v_mov_b32 v244, s%d" % sT2)
                a("v_mov_b32 v245, s%d" % sNONCE)
                a("s_mov_b64 exec, 1")
                a.vmem("buffer_store_dword v245, v244, s[%d:%d], 0 offen sc1" % (S_WS, S_WS + 3), "flag")
                a("s_mov_b64 exec, -1")
            mfmas(i, cur)
            if i == 21:
                a.label(last)
        a("s_waitcnt lgkmcnt(0)")
        self.stamp(22)
        a.nop(8)
        a("v_and_b32 v2, 15, v1")
        a("v_lshrrev_b32 v3, 4, v1")
        a("v_mul_u32_u24 v2, 272, v2")
        a("v_lshl_add_u32 v2, v3, 4, v2")
        a("s_mul_i32 s4, s%d, %d" % (sT0, 14 * 4096))
        a("s_mul_i32 s5, s%d, %d" % (sT1, 32 * 272))
        a("s_add_u32 s4, s4, s5")
        a("s_add_u32 s4, s4, %d" % (L_B + 6 * 4096))
        a("v_add_u32 v2, s4, v2")
        for b in range(4):
            for t in range(2):
                acc = ACC + (b * 2 + t) * 4
                a("ds_write_b128 v2, v[%d:%d] offset:%d" % (acc, acc + 3, t * 16 * 272 + b * 64))
        self.final_x_load()
        a("s_waitcnt lgkmcnt(0)")
        a("s_barrier")

    def final(self):
        a = self.a
        P0 = L_B + 6 * 4096; P1 = L_B + 20 * 4096; YL = L_B + 3 * 4096
        a("s_and_b32 s%d, s%d, 3" % (sT0, sW))
        a("s_lshr_b32 s%d, s%d, 2" % (sT1, sW))
        a("v_lshrrev_b32 v2, 2, v1")
        a("v_and_b32 v3, 3, v1")
        a("s_lshl_b32 s4, s%d, 4" % sT0)
        a("v_add_u32 v2, s4, v2")
        a("v_mul_u32_u24 v4, 272, v2")
        a("v_lshl_add_u32 v4, v3, 5, v4")
        a("s_lshl_b32 s4, s%d, 7" % sT1)
        a("s_add_u32 s4, s4, %d" % P0)
        a("v_add_u32 v4, s4, v4")
        a("ds_read_b128 v[20:23], v4")
        a("ds_read_b128 v[24:27], v4 offset:16")
        a("ds_read_b128 v[28:31], v4 offset:%d" % (P1 - P0))
        a("ds_read_b128 v[32:35], v4 offset:%d" % (P1 - P0 + 16))
        a("v_lshlrev_b32 v6, 3, v2")
        a("v_add_u32 v6, %d, v6" % L_STATS)
        a("ds_read_b64 v[36:37], v6")
        a("v_lshrrev_b32 v7, 4, v1")
        a("v_lshlrev_b32 v7, 3, v7")
        a("v_and_b32 v8, 15, v1")
        a("v_lshrrev_b32 v8, 2, v8")
        a("v_add_u32 v7, v7, v8")
        a("s_lshl_b32 s4, s%d, 5" % sT1)
        a("v_add_u32 v7, s4, v7")
        a("v_mul_u32_u24 v7, 144, v7")
        a("v_and_b32 v8, 3, v1")
        a("v_lshl_add_u32 v7, v8, 3, v7")
        a("s_lshl_b32 s4, s%d, 5" % sT0)
        a("v_add_u32 v7, s4, v7")
        a("ds_read_b64_tr_b16 v[38:39], v7 offset:%d" % YL)
        a("ds_read_b64_tr_b16 v[40:41], v7 offset:%d" % (YL + 4 * 144))
        a("v_and_b32 v8, 3, v1")
        a("v_lshlrev_b32 v8, 4, v8")
        a("v_lshrrev_b32 v9, 2, v1")
        a("v_or_b32 v8, v8, v9")
        a("v_lshlrev_b32 v8, 2, v8")
        a("s_waitcnt lgkmcnt(0)")
        for i in range(4):
            a("ds_bpermute_b32 v%d, v8, v%d" % (42 + i, 38 + i))
        a("s_mov_b32 s5, 0xffff0000")
        for i in range(8):
            a("v_add_f32 v%d, v%d, v%d" % (20 + i, 20 + i, 28 + i))
        for i in range(4):
            a("v_cvt_pk_bf16_f32 v%d, v%d, v%d" % (28 + i, 20 + 2 * i, 21 + 2 * i))
        for i in range(4):
            a("v_lshlrev_b32 v%d, 16, v%d" % (20 + 2 * i, 28 + i))
            a("v_and_b32 v%d, s5, v%d" % (21 + 2 * i, 28 + i))
        a("s_mov_b32 s4, 0xbfb8aa3b")
        for i in range(8):
            a("v_mul_f32 v%d, s4, v%d" % (48 + i, 20 + i))
        for i in range(8):
            a("v_exp_f32 v%d, v%d" % (48 + i, 48 + i))
        for i in range(8):
            a("v_add_f32 v%d, 1.0, v%d" % (48 + i, 48 + i))
        for i in range(8):
            a("v_rcp_f32 v%d, v%d" % (48 + i, 48 + i))
        a("s_nop 0")
        def rnd(base, tmp):
            for i in range(4):
                a("v_cvt_pk_bf16_f32 v%d, v%d, v%d" % (tmp + i, base + 2 * i, base + 2 * i + 1))
            for i in range(4):
                a("v_lshlrev_b32 v%d, 16, v%d" % (base + 2 * i, tmp + i))
                a("v_and_b32 v%d, s5, v%d" % (base + 2 * i + 1, tmp + i))
        for i in range(8):
            a("v_mul_f32 v%d, v%d, v%d" % (20 + i, 20 + i, 48 + i))
        rnd(20, 28)
        a("s_waitcnt vmcnt(0) lgkmcnt(0)")
        for i in range(4):
            a("v_lshlrev_b32 v%d, 16, v%d" % (56 + 2 * i, 240 + i))
            a("v_and_b32 v%d, s5, v%d" % (57 + 2 * i, 240 + i))
            a("v_lshlrev_b32 v%d, 16, v%d" % (64 + 2 * i, 42 + i))
            a("v_and_b32 v%d, s5, v%d" % (65 + 2 * i, 42 + i))
        for i in range(8):
            a("v_sub_f32 v%d, v%d, v36" % (72 + i, 56 + i))
        rnd(72, 80)
        for i in range(8):
            a("v_mul_f32 v%d, v%d, v37" % (72 + i, 72 + i))
        rnd(72, 80)
        for i in range(8):
            a("v_mul_f32 v%d, v%d, v%d" % (72 + i, 72 + i, 64 + i))
        rnd(72, 80)
        for i in range(8):
            a("v_mul_f32 v%d, v%d, v%d" % (72 + i, 72 + i, 20 + i))
        rnd(72, 80)
        for i in range(8):
            a("v_add_f32 v%d, v%d, v%d" % (72 + i, 72 + i, 56 + i))
        for i in range(4):
            a("v_cvt_pk_bf16_f32 v%d, v%d, v%d" % (80 + i, 72 + 2 * i, 73 + 2 * i))
        a("buffer_store_dwordx4 v[80:83], v244, s[%d:%d], 0 offen" % (S_OUT, S_OUT + 3))

    def build(self):
        a = self.a
        self.p0()
        self.stamp(1)
        self.p1()
        self.stamp(10)
        if self.stop_after == "p1": return self.finish()
        self.p2()
        self.stamp(11)
        self.p3()
        self.stamp(2)
        self.p4()
        if self.stop_after == "p4":
            pass
        lm = "L_role_m"; lf = "L_final"
        a("s_cmp_lt_u32 s%d, 4" % sW)
        a("s_cbranch_scc1 %s" % lm)
        self.role_h()
        a("s_branch %s" % lf)
        a.label(lm)
        self.role_m()
        a.label(lf)
        self.stamp(8)
        self.final()
        self.stamp(9)
        return self.finish()

    def finish(self):
        a = self.a
        self.dump_stamps(10)
        a("s_waitcnt vmcnt(0)")
        a.label("L_end")
        a("s_endpgm")
        hdr = """; Kernarg layout: see the harness header (x,k,v,shift_k,ssm_k,ssm_D,B_x,w1,w2,out,debug,ws)
; @launch grid=(256,1,1) block=(512,1,1) lds=%d
.amdgcn_target "amdgcn-amd-amdhsa--gfx950"
.text
.globl %s
.p2align 8
.type %s,@function
%s:
""" % (LDS_SIZE, KNAME, KNAME, KNAME)
        ftr = """.section .rodata,"a"
.p2align 6
.amdhsa_kernel %s
  .amdhsa_next_free_vgpr 256
  .amdhsa_next_free_sgpr 102
  .amdhsa_accum_offset 256
  .amdhsa_group_segment_fixed_size 0
  .amdhsa_kernarg_size 96
  .amdhsa_user_sgpr_count 2
  .amdhsa_user_sgpr_kernarg_segment_ptr 1
  .amdhsa_system_sgpr_workgroup_id_x 1
.end_amdhsa_kernel
""" % KNAME
        return hdr + a.text() + ftr

if __name__ == "__main__":
    import argparse
    ap = argparse.ArgumentParser()
    ap.add_argument("-o", default="k.s")
    ap.add_argument("--stop", default=None)
    ap.add_argument("--stamps", action="store_true")
    ap.add_argument("--noflags", action="store_true")
    ap.add_argument("--exp", default="")
    args = ap.parse_args()
    g = Gen(stop_after=args.stop, stamps=args.stamps, noflags=args.noflags, exp=args.exp)
    txt = g.build()
    open(args.o, "w").write(txt)
    print("wrote", args.o, len(txt.splitlines()), "lines")
```

```python
class Q:
    def __init__(self, init=None):
        self.q = list(init) if init else []
    def issue(self, tag):
        self.q.append(tag)
    def has(self, tag):
        return tag in self.q
    def count_after(self, tag):
        idx = max(i for i, t in enumerate(self.q) if t == tag)
        return len(self.q) - 1 - idx
VM = Q

class Asm:
    def __init__(self):
        self.lines = []
        self.vm = Q()
        self.lg = Q()
        self.lg_done = 0
        self.lbl = 0
    def __call__(self, s, *a):
        for ln in s.split("\n"):
            ln = ln.strip()
            if ln:
                self.lines.append("    " + ln)
    def raw(self, s):
        self.lines.append(s)
    def label(self, name):
        self.lines.append(name + ":")
    def newlabel(self, p="L"):
        self.lbl += 1
        return "%s_%d" % (p, self.lbl)
    def comment(self, s):
        self.lines.append("    ; " + s)
    def vmem(self, instr, tag):
        self(instr); self.vm.issue(tag)
    def vm_n(self, tag):
        return min(self.vm.count_after(tag), 63)
    def wait_vm(self, tag, extra=""):
        n = self.vm_n(tag)
        self("s_waitcnt vmcnt(%d)%s" % (n, extra))
        return n
    def lds(self, instr, tag):
        self(instr); self.lg.issue(tag)
    def need_lds(self, *tags):
        last = -1
        for tag in tags:
            idxs = [i for i, t in enumerate(self.lg.q) if t == tag]
            if idxs: last = max(last, idxs[-1])
        if last < self.lg_done:
            return
        n = len(self.lg.q) - 1 - last
        if n > 15:
            n = 15
            last = len(self.lg.q) - 1 - 15
        self("s_waitcnt lgkmcnt(%d)" % n)
        self.lg_done = last + 1
    def lg0(self, extra=""):
        self("s_waitcnt lgkmcnt(0)%s" % extra)
        self.lg_clear()
    def lg_clear(self):
        self.lg.q = []; self.lg_done = 0
    def wait_vm_lg0(self, tag):
        self("s_waitcnt vmcnt(%d) lgkmcnt(0)" % self.vm_n(tag))
        self.lg_clear()
    def nop(self, n):
        while n > 0:
            k = min(n, 16)
            self("s_nop %d" % (k - 1)); n -= k
    def text(self):
        return "\n".join(self.lines) + "\n"

def interleave(a, main, fill, lead=0):
    def run(x):
        if callable(x): x()
        else: a(x)
    fill = list(fill)
    for x in fill[:lead]: run(x)
    fill = fill[lead:]
    n = len(main); m = len(fill); k = 0
    for i, f in enumerate(main):
        run(f)
        tgt = (i + 1) * m // n
        while k < tgt:
            run(fill[k]); k += 1
    while k < m:
        run(fill[k]); k += 1
```

```python
import re

def regs_of(op):
    op = op.strip()
    op = re.sub(r"^-|^\|", "", op); op = op.rstrip("|")
    m = re.fullmatch(r"v(\d+)", op)
    if m: return [("v", int(m.group(1)))]
    m = re.fullmatch(r"v\[(\d+):(\d+)\]", op)
    if m: return [("v", i) for i in range(int(m.group(1)), int(m.group(2)) + 1)]
    m = re.fullmatch(r"s(\d+)", op)
    if m: return [("s", int(m.group(1)))]
    m = re.fullmatch(r"s\[(\d+):(\d+)\]", op)
    if m: return [("s", i) for i in range(int(m.group(1)), int(m.group(2)) + 1)]
    if op in ("vcc", "vcc_lo", "vcc_hi"): return [("vcc", 0)]
    if op in ("exec", "exec_lo", "exec_hi"): return [("exec", 0)]
    if op == "m0": return [("m0", 0)]
    return []

TRANS = ("v_exp_f32", "v_log_f32", "v_rcp_f32", "v_rsq_f32", "v_sqrt_f32", "v_sin_f32", "v_cos_f32")

class I:
    __slots__ = ("line", "mn", "dst", "src", "kind", "srcC", "srcAB", "dpp", "lds_dma", "store_data")
    def __init__(self, line):
        self.line = line
        s = line.split(";")[0].strip()
        parts = s.split(None, 1)
        self.mn = parts[0] if parts else ""
        rest = parts[1] if len(parts) > 1 else ""
        ops = [o.strip() for o in re.split(r",(?![^\[]*\])", rest)] if rest else []
        clean = []
        for o in ops:
            clean.append(o.split()[0] if o.split() else o)
        mn = self.mn
        self.dst, self.src, self.srcC, self.srcAB, self.store_data = [], [], [], [], []
        self.dpp = ("_dpp" in mn) or ("quad_perm" in s) or ("row_" in s and "row_mask" in s)
        self.lds_dma = False
        if mn.startswith("v_mfma"):
            self.kind = "mfma"
            self.dst = regs_of(clean[0]); self.srcAB = regs_of(clean[1]) + regs_of(clean[2]); self.srcC = regs_of(clean[3])
            self.src = self.srcAB + self.srcC
        elif mn.startswith("v_cmp"):
            self.kind = "valu"
            self.dst = regs_of(clean[0]); self.src = sum((regs_of(o) for o in clean[1:]), [])
        elif mn.startswith("v_readfirstlane") or mn.startswith("v_readlane"):
            self.kind = "valu"; self.dst = regs_of(clean[0]); self.src = sum((regs_of(o) for o in clean[1:]), [])
        elif mn.startswith("v_permlane"):
            self.kind = "valu"; self.dst = regs_of(clean[0]) + regs_of(clean[1]); self.src = list(self.dst)
        elif mn.startswith("v_"):
            self.kind = "dot" if mn.startswith("v_dot") else ("trans" if mn.replace("_e32", "").replace("_e64", "") in TRANS else "valu")
            self.dst = regs_of(clean[0]); self.src = sum((regs_of(o) for o in clean[1:]), [])
            if mn.startswith("v_fmac") or mn.startswith("v_dot2c") or mn.startswith("v_writelane"):
                self.src += self.dst
            if mn.startswith("v_cndmask") and len(clean) == 3: self.src += [("vcc", 0)]
            if mn.startswith("v_dot2_f32"):
                self.srcC = regs_of(clean[3]); self.srcAB = regs_of(clean[1]) + regs_of(clean[2])
            if mn.startswith("v_dot2c"):
                self.srcC = list(self.dst); self.srcAB = regs_of(clean[1]) + regs_of(clean[2])
            if mn.startswith("v_add_co") or mn.startswith("v_sub_co") or mn.startswith("v_addc"):
                self.dst += regs_of(clean[1])
        elif mn.startswith("ds_"):
            self.kind = "ds"
            if mn.startswith("ds_read") or mn.startswith("ds_bpermute") or mn.startswith("ds_permute") or mn.startswith("ds_swizzle"):
                self.dst = regs_of(clean[0]); self.src = sum((regs_of(o) for o in clean[1:]), [])
            else:
                self.src = sum((regs_of(o) for o in clean), [])
        elif mn.startswith("buffer_") or mn.startswith("global_"):
            self.kind = "vmem"
            self.lds_dma = bool(re.search(r"\blds\b", s))
            if "load" in mn and not self.lds_dma:
                self.dst = regs_of(clean[0]); self.src = sum((regs_of(o) for o in clean[1:]), [])
            elif "load" in mn:
                self.src = sum((regs_of(o) for o in clean), [])
            else:
                self.src = sum((regs_of(o) for o in clean), [])
                if "x4" in mn or "x3" in mn: self.store_data = regs_of(clean[0])
        elif mn.startswith("s_"):
            self.kind = "salu"
            if mn in ("s_nop", "s_waitcnt", "s_barrier", "s_branch", "s_endpgm", "s_sleep", "s_setprio") or mn.startswith("s_cbranch"):
                pass
            elif mn.startswith("s_cmp") or mn.startswith("s_bitcmp"):
                self.src = sum((regs_of(o) for o in clean), [])
            else:
                self.dst = regs_of(clean[0]) if clean else []; self.src = sum((regs_of(o) for o in clean[1:]), [])
        else:
            self.kind = "other"

def states(ins):
    if ins.mn == "s_nop":
        return int(ins.line.split()[1]) + 1
    return 1

def required(p, c):
    need = 0
    pv = set(p.dst);
    cr = set(c.src); cw = set(c.dst)
    isvalu = lambda k: k in ("valu", "dot", "trans")
    if p.kind == "dot":
        if pv & (cr | cw):
            if c.mn == p.mn and (pv & set(c.srcC)) and not (pv & set(c.srcAB)) :
                pass
            elif isvalu(c.kind) or c.kind in ("mfma", "vmem", "ds"):
                need = max(need, 3)
    if isvalu(p.kind):
        vw = {r for r in pv if r[0] == "v"}
        sw = {r for r in pv if r[0] in ("s", "vcc")}
        if c.kind == "mfma" and vw & cr: need = max(need, 2)
        if c.dpp and vw & cr: need = max(need, 2)
        if c.mn.startswith("v_permlane") and vw & cr: need = max(need, 2)
        if (c.mn.startswith("v_readfirstlane") or c.mn.startswith("v_readlane")) and vw & cr: need = max(need, 1)
        if isvalu(c.kind) and sw & cr: need = max(need, 2)
        if c.kind == "vmem" and sw & cr: need = max(need, 5)
        if c.kind == "salu" and sw & cr: need = max(need, 1)
        if p.kind == "trans" and isvalu(c.kind) and c.kind != "trans" and vw & cr: need = max(need, 1)
    if p.kind == "mfma":
        big = "32x32" in p.mn
        if pv & (cr | cw):
            if c.kind == "mfma":
                if set(c.srcC) == pv and not (pv & set(c.srcAB)): pass
                elif pv & set(c.srcAB): need = max(need, 12 if big else 8)
                else: need = max(need, 10 if big else 6)
            else:
                need = max(need, 12 if big else 8)
        if isvalu(c.kind) and set(p.srcC) & cw: need = max(need, 7 if big else 3)
    if p.kind == "salu" and ("m0", 0) in pv and c.lds_dma: need = max(need, 1)
    if p.kind == "vmem" and p.store_data and isvalu(c.kind) and set(p.store_data) & cw: need = max(need, 2)
    return need

def fix(lines):
    out = []
    hist = []
    nins = 0
    for line in lines:
        s = line.strip()
        if not s or s.startswith(";") or s.endswith(":") or s.startswith("."):
            out.append(line)
            continue
        c = I(line.strip())
        dist = 0; need = 0
        for p in reversed(hist[-24:]):
            r = required(p, c)
            if r > dist: need = max(need, r - dist)
            dist += states(p)
            if dist >= 12: break
        while need > 0:
            k = min(need, 16)
            nop = "    s_nop %d" % (k - 1)
            out.append(nop); hist.append(I(nop.strip())); need -= k; nins += 1
        out.append(line); hist.append(c)
    return out, nins
```

```python
import sys
from emit import *
import hazard

KNAME = "recurrent_scan__ssm_conv_h3__dense_activation_relu__prompt_kernel"

WS_KVT = 0
WS_YT = 2 << 20
WS_H = 4 << 20
WS_FLAG = 10 << 20
F_H1 = WS_FLAG
F_H2 = WS_FLAG + 32768
F_H3 = WS_FLAG + 65536
WS_STAMP = WS_FLAG + (256 << 10)
WS_SIZE = 16 << 20

L_XN = 0
L_W1 = 32768
W1_SLOT = 22784
NW1 = 5
L_PREP = L_W1 + NW1 * W1_SLOT
L_T = 0
T_CH = 16640
T_CP = 4160
L_U = 33280
U_CH = 4608
L_B = 43008
L_A = 0
L_STATS = 161792
L_SYNC = 162304
LDS_SIZE = 163840

S_X, S_K, S_V, S_W1, S_W2, S_OUT, S_SSM, S_WS, S_SH, S_DBG = 8, 12, 16, 20, 24, 28, 32, 36, 40, 44
sR, sC, sW, sNONCE = 48, 49, 50, 51
sF0, sBP, sNB = 52, 53, 54
sT0, sT1, sT2, sT3 = 55, 56, 57, 58
sHW = 59
sEX = 60
sROT = 62
sDP = 64
sDD = 66
sM0B = 67
vMLO, vMHI, vONELO, vONEHI, vONES = 248, 249, 250, 251, 252

class Gen:
    def __init__(self, stamps=False, noflags=False, exp=""):
        self.exp = set(exp.split(",")) if exp else set()
        self.a = Asm()
        self.stamps = stamps
        self.noflags = noflags
        self.relax_ln = "relax_ln" in self.exp
        self.stampset = None
        for e in self.exp:
            if e.startswith("st="):
                self.stampset = set(int(x) for x in e[3:].split("+"))

    def stamp(self, idx):
        if not self.stamps: return
        if self.stampset is not None and idx not in self.stampset: return
        a = self.a
        a("s_memrealtime s[4:5]")
        a.lg0()
        a("v_writelane_b32 v255, s4, %d" % idx)

    def dump_stamps(self):
        if not self.stamps: return
        a = self.a
        a("s_lshl_b32 s%d, s2, 3" % sT0)
        a("s_add_u32 s%d, s%d, s%d" % (sT0, sT0, sW))
        a("s_lshl_b32 s%d, s%d, 7" % (sT0, sT0))
        a("s_add_u32 s%d, s%d, 0x%x" % (sT0, sT0, WS_STAMP))
        a("v_lshlrev_b32 v2, 2, v1")
        a("v_add_u32 v2, s%d, v2" % sT0)
        a("s_mov_b32 exec_lo, -1")
        a("s_mov_b32 exec_hi, 0")
        a("buffer_store_dword v255, v2, s[%d:%d], 0 offen" % (S_WS, S_WS + 3))
        a("s_mov_b64 exec, -1")

    def p0(self):
        a = self.a
        a("s_cmp_ge_u32 s2, 256")
        a("s_cbranch_scc1 L_end")
        for dst, off in ((S_K, 8), (S_V, 16), (S_SH, 24), (S_X, 0), (S_W1, 56), (S_SSM, 32), (S_WS, 88), (S_DBG, 80), (S_W2, 64), (S_OUT, 72), (sDP, 40)):
            a("s_load_dwordx2 s[%d:%d], s[0:1], %d" % (dst, dst + 1, off))
        if self.stamps:
            a("v_mov_b32 v255, 0")
        for dst, size in ((S_K, 2097152), (S_V, 2097152), (S_SH, 4096), (S_X, 2097152), (S_W1, 1409024), (S_SSM, 2097152), (S_WS, WS_SIZE), (S_DBG, 256), (S_W2, 1409024), (S_OUT, 2097152)):
            a("s_mov_b32 s%d, 0x%x" % (dst + 2, size))
            a("s_mov_b32 s%d, 0x00020000" % (dst + 3))
        a("v_and_b32 v1, 63, v0")
        a("v_lshrrev_b32 v2, 6, v0")
        a("s_and_b32 s%d, s2, 31" % sR)
        a("s_lshr_b32 s%d, s2, 5" % sC)
        a("v_readfirstlane_b32 s%d, v2" % sW)
        a("v_lshrrev_b32 v2, 5, v0")
        a("v_and_b32 v3, 31, v0")
        a("s_lshl_b32 s%d, s%d, 16" % (sT0, sR))
        a("s_lshl_b32 s%d, s%d, 7" % (sT1, sC))
        a("s_add_u32 s%d, s%d, s%d" % (sT0, sT0, sT1))
        a("v_lshlrev_b32 v17, 12, v2")
        a("v_lshl_add_u32 v17, v3, 2, v17")
        a("v_add_u32 v17, s%d, v17" % sT0)
        a("v_add_u32 v18, 0xfffff400, v17")
        a("v_add_u32 v19, 0xfffff800, v17")
        a("v_add_u32 v4, 0xfffffc00, v17")
        a("s_lshl_b32 s%d, s%d, 9" % (sT2, sC))
        a("v_lshlrev_b32 v5, 4, v3")
        a("v_add_u32 v5, s%d, v5" % sT2)
        a("s_lshl_b32 s%d, s%d, 16" % (sT0, sR))
        a("s_lshl_b32 s%d, s%d, 13" % (sT1, sW))
        a("s_add_u32 s%d, s%d, s%d" % (sT0, sT0, sT1))
        a("v_lshrrev_b32 v6, 3, v1")
        a("v_lshlrev_b32 v6, 10, v6")
        a("v_and_b32 v7, 7, v1")
        a("v_lshl_add_u32 v6, v7, 4, v6")
        a("v_add_u32 v6, s%d, v6" % sT0)
        a("s_lshr_b32 s%d, s%d, 3" % (sT0, sR))
        a("s_lshl_b32 s%d, s%d, 1" % (sT0, sT0))
        a("s_add_u32 s%d, s%d, s%d" % (sT0, sT0, sC))
        a("s_add_u32 s%d, s%d, s%d" % (sT0, sT0, sR))
        a("s_and_b32 s%d, s%d, 7" % (sROT, sT0))
        if "norot" in self.exp: a("s_mov_b32 s%d, 0" % sROT)
        a.lg0()
        if self.stamps:
            a("s_memrealtime s[4:5]"); a.lg0(); a("v_writelane_b32 v255, s4, 0")
        K = 52
        a.vmem("buffer_load_dword v%d, v18, s[%d:%d], 0 offen" % (K + 0, S_K, S_K + 3), "prep")
        a.vmem("buffer_load_dword v%d, v19, s[%d:%d], 0 offen" % (K + 1, S_K, S_K + 3), "prep")
        a.vmem("buffer_load_dword v%d, v4, s[%d:%d], 0 offen" % (K + 2, S_K, S_K + 3), "prep")
        for t in range(4):
            a.vmem("buffer_load_dword v%d, v17, s[%d:%d], 0 offen offset:%d" % (K + 3 + t, S_K, S_K + 3, 1024 * t), "prep")
        for t in range(4):
            a.vmem("buffer_load_dword v%d, v17, s[%d:%d], 0 offen offset:%d" % (60 + t, S_V, S_V + 3, 1024 * t), "prep")
        a.vmem("buffer_load_dwordx4 v[64:67], v5, s[%d:%d], 0 offen" % (S_SH, S_SH + 3), "prep")
        a("s_lshl_b32 s%d, s%d, 7" % (sT0, sROT))
        for j in range(8):
            if j:
                a("s_add_u32 s%d, s%d, 128" % (sT0, sT0))
                a("s_and_b32 s%d, s%d, 1023" % (sT0, sT0))
            a.vmem("buffer_load_dwordx4 v[%d:%d], v6, s[%d:%d], s%d offen" % (20 + 4 * j, 23 + 4 * j, S_X, S_X + 3, sT0), "x")
        a("s_mul_i32 s%d, s%d, 176" % (sF0, sC))
        a("s_cmp_eq_u32 s%d, 7" % sC)
        a("s_cselect_b32 s%d, 16, 0" % sT0)
        a("s_sub_u32 s%d, s%d, s%d" % (sF0, sF0, sT0))
        a("s_lshr_b32 s%d, s%d, 4" % (sBP, sF0))
        a("s_cmp_ge_u32 s%d, 6" % sC)
        a("s_cselect_b32 s%d, 10, 11" % sNB)
        a("s_lshl_b32 s%d, s%d, 7" % (sT0, sC))
        a("s_lshl_b32 s%d, s%d, 2" % (sT1, sR))
        a("s_add_u32 s%d, s%d, s%d" % (sT0, sT0, sT1))
        a("s_load_dword s%d, s[%d:%d], s%d" % (sDD, sDP, sDP + 1, sT0))
        if not self.noflags:
            a("s_or_b32 s%d, s2, s%d" % (sT1, sW))
            a("s_cmp_lg_u32 s%d, 0" % sT1)
            a("s_cbranch_scc1 L_nononce")
            a("s_memrealtime s[4:5]")
            a("s_waitcnt lgkmcnt(0)")
            a("s_or_b32 s4, s4, 1")
            a("v_mov_b32 v2, s4")
            a("v_mov_b32 v3, 0")
            a("s_mov_b64 exec, 1")
            a("buffer_store_dword v2, v3, s[%d:%d], 0 offen sc1" % (S_DBG, S_DBG + 3))
            a("s_mov_b64 exec, -1")
            a.label("L_nononce")
        a("v_mov_b32 v%d, 0xffff" % vMLO)
        a("v_mov_b32 v%d, 0xffff0000" % vMHI)
        a("v_mov_b32 v%d, 0x3f80" % vONELO)
        a("v_mov_b32 v%d, 0x3f800000" % vONEHI)
        a("v_mov_b32 v%d, 0x3f803f80" % vONES)
        a("s_movk_i32 s%d, 2979" % sT2)
        a("s_movk_i32 s%d, 2752" % sT3)
        a("s_lshl_b32 s%d, s%d, 3" % (sT0, sW))
        a("s_lshl_b32 s%d, s%d, 1" % (sT1, sF0))
        for i in range(3):
            a("v_add_u32 v2, %d, v1" % (64 * i))
            a("v_mul_lo_u32 v3, v2, s%d" % sT2)
            a("v_lshrrev_b32 v3, 16, v3")
            a("v_mul_u32_u24 v4, 22, v3")
            a("v_sub_u32 v4, v2, v4")
            a("v_add_u32 v3, s%d, v3" % sT0)
            a("v_and_b32 v5, 0x33, v3")
            a("v_bfe_u32 v7, v3, 3, 1")
            a("v_lshl_add_u32 v5, v7, 2, v5")
            a("v_bfe_u32 v7, v3, 2, 1")
            a("v_lshl_add_u32 v5, v7, 3, v5")
            a("v_and_b32 v7, 64, v3")
            a("v_add_u32 v5, v5, v7")
            a("v_mul_lo_u32 v5, v5, s%d" % sT3)
            a("v_lshl_add_u32 v5, v4, 4, v5")
            a("v_add_u32 v%d, s%d, v5" % (14 + i, sT1))
        a("s_mul_i32 s%d, s%d, 2816" % (sM0B, sW))
        a("s_add_u32 s%d, s%d, %d" % (sM0B, sM0B, L_W1))

    def w1_dma_ops(self, j):
        a = self.a
        slot = j % NW1
        ops = []
        def head():
            a("s_add_u32 s%d, s%d, %d" % (sT1, sROT, j))
            a("s_and_b32 s%d, s%d, 7" % (sT1, sT1))
            a("s_mul_i32 s%d, s%d, %d" % (sT1, sT1, 64 * 2752))
            a("s_add_u32 m0, s%d, %d" % (sM0B, slot * W1_SLOT))
            a.vmem("buffer_load_dwordx4 v14, s[%d:%d], s%d offen lds" % (S_W1, S_W1 + 3, sT1), "w1c%d" % j)
        ops.append(head)
        for i in (1, 2):
            def nxt(i=i):
                a("s_add_u32 m0, s%d, %d" % (sM0B, slot * W1_SLOT + 1024 * i))
                a.vmem("buffer_load_dwordx4 v%d, s[%d:%d], s%d offen lds" % (14 + i, S_W1, S_W1 + 3, sT1), "w1c%d" % j)
            ops.append(nxt)
        return ops

    def p1(self):
        a = self.a
        K, V, SH = 52, 60, 64
        WL, WH = 68, 72
        PL, PH = 76, 80
        PP, AC = 84, 88
        TA, TB = 92, 96
        KV = 100
        dma = self.w1_dma_ops(0) + self.w1_dma_ops(1)
        a.wait_vm("prep")
        self.stamp(12)
        seq = []
        e = seq.append
        e("v_and_b32 v%d, v%d, v%d" % (WL + 0, vMLO, SH + 0)); e("v_lshrrev_b32 v%d, 16, v%d" % (WL + 1, SH + 0))
        e("v_and_b32 v%d, v%d, v%d" % (WL + 2, vMLO, SH + 1)); e("v_lshrrev_b32 v%d, 16, v%d" % (WL + 3, SH + 1))
        e("v_lshlrev_b32 v%d, 16, v%d" % (WH + 0, SH + 2)); e("v_and_b32 v%d, v%d, v%d" % (WH + 1, vMHI, SH + 2))
        e("v_lshlrev_b32 v%d, 16, v%d" % (WH + 2, SH + 3)); e("v_and_b32 v%d, v%d, v%d" % (WH + 3, vMHI, SH + 3))
        for j in (3, 2, 1, 0):
            for r in range(4):
                e("v_dot2_f32_bf16 v%d, v%d, v%d, 0" % (PL + r, K + 3 + r - j, WL + j))
                e("v_dot2_f32_bf16 v%d, v%d, v%d, 0" % (PH + r, K + 3 + r - j, WH + j))
            dstp = AC if j == 3 else PP
            for r in range(4):
                e("v_cvt_pk_bf16_f32 v%d, v%d, v%d" % (dstp + r, PL + r, PH + r))
            if j != 3:
                for r in range(4):
                    e("v_perm_b32 v%d, v%d, v%d, s%d" % (TA + r, PP + r, AC + r, 68))
                    e("v_perm_b32 v%d, v%d, v%d, s%d" % (TB + r, PP + r, AC + r, 69))
                for r in range(4):
                    e("v_dot2_f32_bf16 v%d, v%d, v%d, 0" % (PL + r, TA + r, vONES))
                    e("v_dot2_f32_bf16 v%d, v%d, v%d, 0" % (PH + r, TB + r, vONES))
                for r in range(4):
                    e("v_cvt_pk_bf16_f32 v%d, v%d, v%d" % (AC + r, PL + r, PH + r))
        for r in range(4):
            e("v_and_b32 v%d, v%d, v%d" % (TA + r, vMLO, V + r))
            e("v_and_b32 v%d, v%d, v%d" % (TB + r, vMHI, V + r))
        for r in range(4):
            e("v_dot2_f32_bf16 v%d, v%d, v%d, 0" % (KV + r, AC + r, TA + r))
            e("v_dot2_f32_bf16 v%d, v%d, v%d, 0" % (KV + 4 + r, AC + r, TB + r))
        e("v_and_b32 v2, 31, v0"); e("v_mul_u32_u24 v2, 288, v2"); e("v_lshrrev_b32 v3, 5, v0"); e("v_lshlrev_b32 v3, 3, v3")
        e("v_sub_u32 v2, v2, v3"); e("v_add_u32 v2, %d, v2" % (L_PREP + 120))
        e("v_cvt_pk_bf16_f32 v108, v%d, v%d" % (KV + 3, KV + 2))
        e("v_cvt_pk_bf16_f32 v109, v%d, v%d" % (KV + 1, KV + 0))
        e("v_cvt_pk_bf16_f32 v110, v%d, v%d" % (KV + 7, KV + 6))
        e("v_cvt_pk_bf16_f32 v111, v%d, v%d" % (KV + 5, KV + 4))
        a("s_mov_b32 s68, 0x05040100")
        a("s_mov_b32 s69, 0x07060302")
        step = len(seq) // (len(dma) + 1)
        k = 0
        for i, ins in enumerate(seq):
            a(ins)
            if (i + 1) % step == 0 and k < len(dma):
                dma[k](); k += 1
        while k < len(dma):
            dma[k](); k += 1
        a("ds_write_b64 v2, v[108:109]")
        a("ds_write_b64 v2, v[110:111] offset:144")
        a("v_and_b32 v3, 15, v0")
        a("v_lshlrev_b32 v3, 2, v3")
        a("v_add_u32 v3, %d, v3" % L_SYNC)
        a("v_mov_b32 v4, 0")
        a("ds_write_b32 v3, v4")
        a("v_lshrrev_b32 v2, 3, v0")
        a("v_and_b32 v3, 7, v0")
        a("v_mul_u32_u24 v4, 144, v2")
        a("v_lshl_add_u32 v4, v3, 4, v4")
        a("v_add_u32 v4, %d, v4" % L_PREP)
        a("s_lshl_b32 s%d, s%d, 18" % (sT0, sC))
        a("s_lshl_b32 s%d, s%d, 7" % (sT1, sR))
        a("s_sub_u32 s%d, s%d, s%d" % (sT0, sT0, sT1))
        a("s_add_u32 s%d, s%d, %d" % (sT0, sT0, WS_KVT + 3968))
        a("v_lshlrev_b32 v5, 12, v2")
        a("v_lshl_add_u32 v5, v3, 4, v5")
        a("v_add_u32 v5, s%d, v5" % sT0)
        a.lg0()
        a("s_barrier")
        a("ds_read_b128 v[108:111], v4")
        a.lg0()
        a.vmem("buffer_store_dwordx4 v[108:111], v5, s[%d:%d], 0 offen sc1" % (S_WS, S_WS + 3), "kvt")

    NEGM, RS, NMRS = 120, 121, 134
    def norm2(self, g, half):
        X = 20 + 4 * g + 2 * half
        t = 122 + 6 * half
        L = []
        L.append("v_lshlrev_b32 v%d, 16, v%d" % (t + 0, X))
        L.append("v_and_b32 v%d, v%d, v%d" % (t + 1, vMHI, X))
        L.append("v_lshlrev_b32 v%d, 16, v%d" % (t + 2, X + 1))
        L.append("v_and_b32 v%d, v%d, v%d" % (t + 3, vMHI, X + 1))
        if self.relax_ln:
            for i in range(4):
                L.append("v_fma_f32 v%d, v%d, v%d, v%d" % (t + i, t + i, self.RS, self.NMRS))
        else:
            for i in range(4):
                L.append("v_add_f32 v%d, v%d, v%d" % (t + i, t + i, self.NEGM))
            L.append("v_cvt_pk_bf16_f32 v%d, v%d, v%d" % (t + 4, t + 0, t + 1))
            L.append("v_cvt_pk_bf16_f32 v%d, v%d, v%d" % (t + 5, t + 2, t + 3))
            L.append("v_lshlrev_b32 v%d, 16, v%d" % (t + 0, t + 4))
            L.append("v_and_b32 v%d, v%d, v%d" % (t + 1, vMHI, t + 4))
            L.append("v_lshlrev_b32 v%d, 16, v%d" % (t + 2, t + 5))
            L.append("v_and_b32 v%d, v%d, v%d" % (t + 3, vMHI, t + 5))
            for i in range(4):
                L.append("v_mul_f32 v%d, v%d, v%d" % (t + i, t + i, self.RS))
        L.append("v_cvt_pk_bf16_f32 v%d, v%d, v%d" % (X, t + 0, t + 1))
        L.append("v_cvt_pk_bf16_f32 v%d, v%d, v%d" % (X + 1, t + 2, t + 3))
        return L

    def xn_write(self, g):
        a = self.a
        return lambda: a.lds("ds_write_b128 v233, v[%d:%d] offset:%d" % (20 + 4 * g, 23 + 4 * g, L_XN + (g % 4) * 8192), "xw%d" % g)

    def p2(self):
        a = self.a
        X = 20
        dma = self.w1_dma_ops(2) + self.w1_dma_ops(3) + self.w1_dma_ops(4)
        a.wait_vm("x")
        self.stamp(13)
        seq = []
        e = seq.append
        for i in range(8):
            e("v_mov_b32 v%d, 0" % (112 + i))
        for i in range(32):
            e("v_dot2_f32_bf16 v%d, v%d, v%d, v%d" % (112 + (i & 3), X + i, vONES, 112 + (i & 3)))
            e("v_dot2_f32_bf16 v%d, v%d, v%d, v%d" % (116 + (i & 3), X + i, X + i, 116 + (i & 3)))
        step = len(seq) // (len(dma) + 1)
        k = 0
        for i, ins in enumerate(seq):
            a(ins)
            if (i + 1) % step == 0 and k < len(dma):
                dma[k](); k += 1
        while k < len(dma):
            dma[k](); k += 1
        a("s_lshl_b32 s%d, s%d, 6" % (sT0, sC))
        a("s_lshl_b32 s%d, s%d, 1" % (sT1, sR))
        a("s_add_u32 s%d, s%d, s%d" % (sT0, sT0, sT1))
        a("s_lshl_b32 s%d, s%d, 12" % (sT0, sT0))
        a("v_lshrrev_b32 v2, 8, v0")
        a("v_lshlrev_b32 v2, 12, v2")
        a("v_and_b32 v3, 255, v0")
        a("v_lshl_add_u32 v2, v3, 4, v2")
        a("v_add_u32 v2, s%d, v2" % sT0)
        a.vmem("buffer_load_dwordx4 v[8:11], v2, s[%d:%d], 0 offen" % (S_SSM, S_SSM + 3), "ssm")
        a.vmem("buffer_load_dwordx2 v[12:13], v2, s[%d:%d], 0 offen offset:16" % (S_SSM, S_SSM + 3), "ssm")
        if not self.noflags:
            a("v_mov_b32 v7, 0")
            a.vmem("buffer_load_dword v19, v7, s[%d:%d], 0 offen sc1" % (S_DBG, S_DBG + 3), "nonce")
        a("v_add_f32 v112, v112, v113"); a("v_add_f32 v114, v114, v115")
        a("v_add_f32 v116, v116, v117"); a("v_add_f32 v118, v118, v119")
        a("v_add_f32 v2, v112, v114"); a("v_add_f32 v3, v116, v118")
        for ctl in ("quad_perm:[1,0,3,2]", "quad_perm:[2,3,0,1]", "row_half_mirror"):
            a("v_add_f32_dpp v2, v2, v2 %s row_mask:0xf bank_mask:0xf" % ctl)
            a("v_add_f32_dpp v3, v3, v3 %s row_mask:0xf bank_mask:0xf" % ctl)
        a("v_mul_f32 v2, 0x3b000000, v2")
        a("v_mul_f32 v3, 0x3b000000, v3")
        a("v_cvt_pk_bf16_f32 v4, v2, v2")
        a("v_fma_f32 v3, -v2, v2, v3")
        a("v_lshlrev_b32 v4, 16, v4")
        a("v_max_f32 v3, 0, v3")
        a("v_cvt_pk_bf16_f32 v3, v3, v3")
        a("v_lshlrev_b32 v3, 16, v3")
        a("v_add_f32 v3, 0x3727c5ac, v3")
        a("v_cvt_pk_bf16_f32 v3, v3, v3")
        a("v_lshlrev_b32 v3, 16, v3")
        a("v_sqrt_f32 v3, v3")
        a("v_cvt_pk_bf16_f32 v3, v3, v3")
        a("v_lshlrev_b32 v3, 16, v3")
        a("v_rcp_f32 v%d, v3" % self.RS)
        a("v_sub_f32 v%d, 0, v4" % self.NEGM)
        a("v_mul_f32 v%d, v%d, v%d" % (self.NMRS, self.NEGM, self.RS))
        a("v_lshrrev_b32 v6, 3, v1")
        a("s_lshl_b32 s%d, s%d, 3" % (sT2, sW))
        a("v_add_u32 v6, s%d, v6" % sT2)
        a("v_lshlrev_b32 v5, 3, v6")
        a("v_add_u32 v5, %d, v5" % L_STATS)
        a("v_mov_b32 v2, v4")
        a("v_mov_b32 v3, v%d" % self.RS)
        a.lds("ds_write_b64 v5, v[2:3]", "st")
        a("v_and_b32 v5, 7, v1")
        a("v_lshrrev_b32 v4, 3, v1")
        a("s_and_b32 s%d, s%d, 1" % (sT2, sW))
        a("s_lshl_b32 s%d, s%d, 3" % (sT2, sT2))
        a("v_add_u32 v4, s%d, v4" % sT2)
        a("v_xor_b32 v4, v4, v5")
        a("v_lshlrev_b32 v4, 4, v4")
        a("v_lshrrev_b32 v7, 2, v5")
        a("v_lshl_add_u32 v4, v7, 10, v4")
        a("v_and_b32 v7, 3, v5")
        a("v_lshl_add_u32 v4, v7, 8, v4")
        a("s_lshr_b32 s%d, s%d, 1" % (sT2, sW))
        a("s_lshl_b32 s%d, s%d, 11" % (sT2, sT2))
        a("v_add_u32 v233, s%d, v4" % sT2)
        for ins in self.norm2(0, 0) + self.norm2(0, 1): a(ins)
        self.xn_write(0)()
        for ins in self.norm2(1, 0): a(ins)

    def get_nonce(self):
        if self.noflags: return
        a = self.a
        a.wait_vm("nonce")
        lo = a.newlabel("L_nz"); lp = a.newlabel("L_nl")
        a("v_readfirstlane_b32 s%d, v19" % sNONCE)
        a("s_nop 3")
        a("s_cmp_lg_u32 s%d, 0" % sNONCE)
        a("s_cbranch_scc1 %s" % lo)
        a("s_mov_b32 s%d, 0" % sT3)
        a.label(lp)
        a("v_mov_b32 v7, 0")
        a("buffer_load_dword v19, v7, s[%d:%d], 0 offen sc1" % (S_DBG, S_DBG + 3))
        a("s_waitcnt vmcnt(0)")
        a("v_readfirstlane_b32 s%d, v19" % sNONCE)
        a("s_add_u32 s%d, s%d, 1" % (sT3, sT3))
        a("s_cmp_gt_u32 s%d, 100000" % sT3)
        a("s_cbranch_scc1 %s" % lo)
        a("s_cmp_eq_u32 s%d, 0" % sNONCE)
        a("s_cbranch_scc1 %s" % lp)
        a.label(lo)

    def flag_store(self, off_sreg, tag, va=2, vb=3):
        if self.noflags: return
        a = self.a
        a("v_mov_b32 v%d, s%d" % (va, off_sreg))
        a("v_mov_b32 v%d, s%d" % (vb, sNONCE))
        a("s_mov_b64 exec, 1")
        a.vmem("buffer_store_dword v%d, v%d, s[%d:%d], 0 offen sc1" % (vb, va, S_WS, S_WS + 3), tag)
        a("s_mov_b64 exec, -1")

    def poll(self, base_sreg, nlanes, width, stride):
        if self.noflags: return
        a = self.a
        lp = a.newlabel("L_poll"); dn = a.newlabel("L_pdone")
        a("v_mul_u32_u24 v2, %d, v1" % stride)
        a("v_add_u32 v2, s%d, v2" % base_sreg)
        a("s_mov_b32 s%d, 0" % sT3)
        if nlanes <= 16: a("s_mov_b64 exec, 0x%x" % ((1 << nlanes) - 1))
        else:
            assert nlanes == 32
            a("s_mov_b32 exec_lo, -1"); a("s_mov_b32 exec_hi, 0")
        a.label(lp)
        if width == 1:
            a("buffer_load_dword v4, v2, s[%d:%d], 0 offen sc1" % (S_WS, S_WS + 3))
            a("s_waitcnt vmcnt(0)")
            a("v_cmp_ne_u32 vcc, s%d, v4" % sNONCE)
        else:
            a("buffer_load_dwordx4 v[4:7], v2, s[%d:%d], 0 offen sc1" % (S_WS, S_WS + 3))
            a("s_waitcnt vmcnt(0)")
            for i in range(4): a("v_xor_b32 v%d, s%d, v%d" % (4 + i, sNONCE, 4 + i))
            a("v_or3_b32 v4, v4, v5, v6")
            a("v_or_b32 v4, v4, v7")
            a("v_cmp_ne_u32 vcc, 0, v4")
        a("s_add_u32 s%d, s%d, 1" % (sT3, sT3))
        a("s_cmp_gt_u32 s%d, 100000" % sT3)
        a("s_cbranch_scc1 %s" % dn)
        a("s_cbranch_vccnz %s" % lp)
        a.label(dn)
        a("s_mov_b64 exec, -1")

    def lds_signal(self, word):
        a = self.a
        a("v_mov_b32 v16, %d" % (L_SYNC + 4 * word))
        a("v_mov_b32 v17, 1")
        a("ds_write_b32 v16, v17")

    def lds_wait(self, addr_sreg=None, word=None):
        a = self.a
        lp = a.newlabel("L_ps"); dn = a.newlabel("L_psd")
        if word is not None: a("v_mov_b32 v16, %d" % (L_SYNC + 4 * word))
        else: a("v_mov_b32 v16, s%d" % addr_sreg)
        a("s_mov_b32 s%d, 0" % sT3)
        a.label(lp)
        a("ds_read_b32 v17, v16")
        a("s_waitcnt lgkmcnt(0)")
        a("v_readfirstlane_b32 s4, v17")
        a("s_add_u32 s%d, s%d, 1" % (sT3, sT3))
        a("s_cmp_gt_u32 s%d, 1000000" % sT3)
        a("s_cbranch_scc1 %s" % dn)
        a("s_cmp_eq_u32 s4, 0")
        a("s_cbranch_scc1 %s" % lp)
        a.label(dn)
        a.lg_clear()

    def pair_sync(self, stage):
        a = self.a
        a("s_lshl_b32 s4, s%d, 2" % sW)
        a("s_add_u32 s4, s4, %d" % (L_SYNC + 16 * stage))
        a("s_xor_b32 s5, s4, 4")
        a("v_mov_b32 v16, s4")
        a("v_mov_b32 v17, 1")
        a.lg0()
        a("ds_write_b32 v16, v17")
        self.lds_wait(addr_sreg=5)

    def p3(self):
        a = self.a
        ACC = 164
        BUF = [188, 208]
        AX = [228, 229]; AW = [230, 231, 232]
        a("v_and_b32 v2, 15, v1")
        a("v_lshrrev_b32 v3, 4, v1")
        a("s_and_b32 s%d, s%d, 1" % (sT0, sW))
        a("s_lshl_b32 s%d, s%d, 12" % (sT0, sT0))
        a("v_xor_b32 v4, v2, v3")
        a("v_lshlrev_b32 v4, 4, v4")
        a("v_lshl_add_u32 v4, v3, 8, v4")
        a("v_add_u32 v%d, s%d, v4" % (AX[0], sT0))
        a("v_or_b32 v4, 4, v3")
        a("v_xor_b32 v4, v2, v4")
        a("v_lshlrev_b32 v4, 4, v4")
        a("v_lshl_add_u32 v4, v3, 8, v4")
        a("s_add_u32 s%d, s%d, 1024" % (sT0, sT0))
        a("v_add_u32 v%d, s%d, v4" % (AX[1], sT0))
        a("v_lshrrev_b32 v4, 1, v3")
        a("v_lshlrev_b32 v4, 4, v4")
        a("v_and_b32 v5, 1, v3")
        a("v_lshl_add_u32 v4, v5, 2, v4")
        a("v_lshrrev_b32 v5, 2, v2")
        a("v_add_u32 v4, v4, v5")
        a("v_mul_u32_u24 v4, 352, v4")
        a("v_and_b32 v5, 3, v1")
        a("v_lshl_add_u32 v4, v5, 3, v4")
        a("s_lshr_b32 s%d, s%d, 1" % (sT0, sW))
        a("s_mul_i32 s%d, s%d, 96" % (sT0, sT0))
        a("s_add_u32 s%d, s%d, %d" % (sT0, sT0, L_W1))
        a("v_add_u32 v%d, s%d, v4" % (AW[0], sT0))
        a("v_add_u32 v%d, %d, v%d" % (AW[1], 2 * W1_SLOT, AW[0]))
        a("v_add_u32 v%d, %d, v%d" % (AW[2], 4 * W1_SLOT, AW[0]))
        for i in range(24):
            a("v_mov_b32 v%d, 0" % (ACC + i))

        def read_ops(ks):
            buf = BUF[ks & 1]
            j = ks >> 1; ksl = ks & 1; slot = j % NW1
            ops = []
            if "g1noreads" in self.exp: return []
            aw = AW[slot // 2]; so = (slot % 2) * W1_SLOT + ksl * 32 * 352
            def rx(t):
                return lambda: a.lds("ds_read_b128 v[%d:%d], v%d offset:%d" % (buf + 4 * t, buf + 4 * t + 3, AX[ksl], L_XN + (j % 4) * 8192 + t * 2048), "x%d_%d" % (ks, t))
            def rw(b, hh):
                r0 = buf + 8 + 4 * b + 2 * hh
                return lambda: a.lds("ds_read_b64_tr_b16 v[%d:%d], v%d offset:%d" % (r0, r0 + 1, aw, so + hh * 8 * 352 + b * 32), "w%d_%d" % (ks, b))
            ops += [rw(0, 0), rw(0, 1), rx(0), rx(1), rw(1, 0), rw(1, 1), rw(2, 0), rw(2, 1)]
            return ops

        def mfma_ops(ks):
            cur = BUF[ks & 1]
            ops = []
            for b in range(3):
                for t in range(2):
                    def f(b=b, t=t):
                        a.need_lds("w%d_%d" % (ks, b), "x%d_%d" % (ks, t))
                        if "g1nomfma" in self.exp: return
                        acc = ACC + (b * 2 + t) * 4
                        a("v_mfma_f32_16x16x32_bf16 v[%d:%d], v[%d:%d], v[%d:%d], v[%d:%d]" % (
                            acc, acc + 3, cur + 8 + 4 * b, cur + 11 + 4 * b, cur + 4 * t, cur + 4 * t + 3, acc, acc + 3))
                    ops.append(f)
            return ops

        def merge(*lists):
            tot = sum(len(l) for l in lists)
            out = []; idx = [0] * len(lists)
            for s in range(tot):
                best = min((i for i in range(len(lists)) if idx[i] < len(lists[i])), key=lambda i: (idx[i] + 0.5) / len(lists[i]))
                out.append(lists[best][idx[best]]); idx[best] += 1
            return out

        a.wait_vm_lg0("w1c0")
        a("s_barrier")
        self.stamp(14)
        for f in read_ops(0): f()
        for j in range(8):
            ka, kb = 2 * j, 2 * j + 1
            fill = read_ops(kb)
            valu = []
            if j + 1 <= 7:
                valu = (self.norm2(j + 1, 1) if "g1nonorm" not in self.exp else []) + ([self.xn_write(j + 1)] if "g1noxw" not in self.exp else [])
            ls = [l for l in (fill, valu) if l]
            interleave(a, mfma_ops(ka), merge(*ls) if ls else [])
            if j < 7:
                if "g1nodma" in self.exp and j + 1 >= 5: a.lg0()
                else: a.wait_vm_lg0("w1c%d" % (j + 1))
                if j == 1 and not self.noflags:
                    a.wait_vm("kvt")
                if "g1nobar" not in self.exp: a("s_barrier")
            fill = read_ops(ka + 2) if j < 7 else []
            extra = []
            if j + 2 <= 7 and "g1nonorm" not in self.exp: extra += self.norm2(j + 2, 0)
            dm = self.w1_dma_ops(j + 5) if j + 5 <= 7 else []
            if "g1nodma" in self.exp:
                for _ in dm: a.vm.issue("w1c%d" % (j + 5))
                dm = []
            lists = [l for l in (fill, extra, dm) if l]
            interleave(a, mfma_ops(kb), merge(*lists) if lists else [])
            if j == 1 and not self.noflags:
                self.publish_h1()
        a.lg0()
        a("s_barrier")

    def publish_h1(self):
        a = self.a
        sk = a.newlabel("L_sk")
        self.get_nonce()
        a("s_cmp_lg_u32 s%d, 0" % sW)
        a("s_cbranch_scc1 %s" % sk)
        a("s_lshl_b32 s%d, s2, 7" % sT0)
        a("s_add_u32 s%d, s%d, 0x%x" % (sT0, sT0, F_H1))
        q = list(a.vm.q)
        self.flag_store(sT0, "flag")
        a.vm.q = q
        a.label(sk)

    def h_store_addr(self, wreg):
        a = self.a
        a("v_lshrrev_b32 v2, 4, v1")
        a("v_and_b32 v3, 15, v1")
        a("v_lshlrev_b32 v5, 4, v3")
        a("v_lshrrev_b32 v4, 1, v2")
        a("v_lshl_add_u32 v5, v4, 8, v5")
        a("v_and_b32 v4, 1, v2")
        a("v_lshl_add_u32 v5, v4, 3, v5")
        a("s_and_b32 s%d, s%d, 1" % (sT0, wreg))
        a("s_lshl_b32 s%d, s%d, 1" % (sT0, sT0))
        a("s_lshl_b32 s%d, s%d, 2" % (sT1, sR))
        a("s_add_u32 s%d, s%d, s%d" % (sT0, sT0, sT1))
        a("s_mul_i32 s%d, s%d, 44032" % (sT0, sT0))
        a("s_lshr_b32 s%d, s%d, 1" % (sT1, wreg))
        a("s_mul_i32 s%d, s%d, 3" % (sT1, sT1))
        a("s_add_u32 s%d, s%d, s%d" % (sT2, sT1, sBP))
        a("s_lshl_b32 s%d, s%d, 9" % (sT2, sT2))
        a("s_add_u32 s%d, s%d, s%d" % (sT0, sT0, sT2))
        a("s_add_u32 s%d, s%d, 0x%x" % (sT0, sT0, WS_H))
        a("v_add_u32 v5, s%d, v5" % sT0)
        a("v_add_u32 v6, 44032, v5")

    def h_stores(self, HB, tag):
        a = self.a
        for b in range(3):
            sk = a.newlabel("L_hs")
            if b > 0:
                a("s_add_u32 s%d, s%d, %d" % (sT2, sT1, b))
                a("s_cmp_ge_u32 s%d, s%d" % (sT2, sNB))
                a("s_cbranch_scc1 %s" % sk)
            for t in range(2):
                r = HB + (b * 2 + t) * 2
                a.vmem("buffer_store_dwordx2 v[%d:%d], v%d, s[%d:%d], 0 offen offset:%d sc1" % (r, r + 1, 5 + t, S_WS, S_WS + 3, 512 * b), tag)
            a.label(sk)

    def p4(self):
        a = self.a
        ACC = 164; HB = 188
        for i in range(6):
            a("v_cvt_pk_bf16_f32 v%d, v%d, v%d" % (HB + 2 * i, ACC + 4 * i, ACC + 4 * i + 1))
            a("v_cvt_pk_bf16_f32 v%d, v%d, v%d" % (HB + 2 * i + 1, ACC + 4 * i + 2, ACC + 4 * i + 3))
        for i in range(12):
            a("v_pk_max_i16 v%d, v%d, 0" % (HB + i, HB + i))
        lm = a.newlabel("L_p4m"); le = a.newlabel("L_p4e")
        a("s_cmp_lt_u32 s%d, 4" % sW)
        a("s_cbranch_scc1 %s" % lm)
        self.h_store_addr(sW)
        q0 = list(a.vm.q)
        self.h_stores(HB, "hst")
        self.vm_h_own = list(a.vm.q)
        a("s_branch %s" % le)
        a.label(lm)
        a.vm.q = list(q0)
        a("v_lshlrev_b32 v2, 3, v1")
        a("s_lshl_b32 s%d, s%d, 12" % (sT0, sW))
        a("v_add_u32 v2, s%d, v2" % sT0)
        for i in range(6):
            a("ds_write_b64 v2, v[%d:%d] offset:%d" % (HB + 2 * i, HB + 2 * i + 1, L_B + 512 * i))
        a.label(le)
        E = 200
        for p in range(5):
            a("v_alignbit_b32 v%d, v%d, v%d, 16" % (E + p, 9 + p, 8 + p))
        for p in range(4):
            a("v_mov_b32 v%d, v%d" % (206 + p, 9 + p))
            a("v_mov_b32 v%d, v%d" % (210 + p, E + 1 + p))
        a("v_lshrrev_b32 v2, 8, v0")
        a("v_mul_u32_u24 v2, %d, v2" % T_CH)
        a("v_and_b32 v3, 255, v0")
        a("v_lshl_add_u32 v2, v3, 4, v2")
        a("ds_write_b128 v2, v[%d:%d] offset:%d" % (E, E + 3, L_T + 0 * T_CP + 32))
        a("ds_write_b128 v2, v[206:209] offset:%d" % (L_T + 1 * T_CP + 32))
        a("ds_write_b128 v2, v[210:213] offset:%d" % (L_T + 2 * T_CP + 32))
        a("ds_write_b128 v2, v[10:13] offset:%d" % (L_T + 3 * T_CP + 32))
        a("v_cmp_eq_u32 vcc, 0, v3")
        a("s_and_saveexec_b64 s[%d:%d], vcc" % (sEX, sEX + 1))
        hd = a.newlabel("L_hd")
        a("s_cbranch_execz %s" % hd)
        Z = 214
        for i in range(4): a("v_mov_b32 v%d, 0" % (Z + i))
        a("v_lshlrev_b32 v218, 16, v8")
        for cp in range(4):
            a("ds_write_b128 v2, v[%d:%d] offset:%d" % (Z, Z + 3, L_T + cp * T_CP))
        a("v_mov_b32 v220, 0\nv_mov_b32 v221, 0\nv_mov_b32 v222, 0\nv_mov_b32 v223, v218")
        a("v_mov_b32 v224, 0\nv_mov_b32 v225, 0\nv_mov_b32 v226, 0\nv_mov_b32 v227, v8")
        a("v_mov_b32 v228, 0\nv_mov_b32 v229, 0\nv_mov_b32 v230, v218\nv_mov_b32 v231, v%d" % E)
        a("v_mov_b32 v232, 0\nv_mov_b32 v233, 0\nv_mov_b32 v234, v8\nv_mov_b32 v235, v9")
        for cp in range(4):
            a("ds_write_b128 v2, v[%d:%d] offset:%d" % (220 + 4 * cp, 223 + 4 * cp, L_T + cp * T_CP + 16))
        a.label(hd)
        a("s_mov_b64 exec, s[%d:%d]" % (sEX, sEX + 1))
        a("v_and_b32 v3, 31, v0")
        a("v_lshrrev_b32 v2, 5, v0")
        a("v_mul_u32_u24 v2, %d, v2" % U_CH)
        a("v_lshl_add_u32 v2, v3, 4, v2")
        a("v_cmp_gt_u32 vcc, 64, v0")
        a("s_and_saveexec_b64 s[%d:%d], vcc" % (sEX, sEX + 1))
        hd2 = a.newlabel("L_hd")
        a("s_cbranch_execz %s" % hd2)
        for i in range(4): a("v_mov_b32 v%d, 0" % (214 + i))
        a("ds_write_b128 v2, v[214:217] offset:%d" % (L_U + 4096))
        a.label(hd2)
        a("s_mov_b64 exec, s[%d:%d]" % (sEX, sEX + 1))
        a.lg0()
        a("s_barrier")
        self.vm_m = Q(q0)
        self.vm_h = Q(self.vm_h_own)

    def w2_voff(self):
        a = self.a
        a("v_lshrrev_b32 v2, 3, v1")
        a("v_and_b32 v2, 3, v2")
        a("v_lshrrev_b32 v3, 5, v1")
        a("v_lshl_add_u32 v2, v3, 3, v2")
        a("v_lshlrev_b32 v2, 10, v2")
        a("v_lshrrev_b32 v3, 4, v1")
        a("v_and_b32 v3, 3, v3")
        a("v_lshlrev_b32 v3, 1, v3")
        a("v_and_b32 v4, 7, v1")
        a("v_xor_b32 v3, v3, v4")
        a("v_lshl_add_u32 v2, v3, 4, v2")
        a("s_lshl_b32 s%d, s%d, 7" % (sT0, sC))
        a("v_add_u32 v14, s%d, v2" % sT0)

    def w2_dma_slot(self, lds_sreg, ks_sreg, tag):
        a = self.a
        a("s_lshl_b32 s%d, s%d, 15" % (sT2, ks_sreg))
        for m in range(4):
            if m == 0:
                a("s_mov_b32 m0, s%d" % lds_sreg)
            else:
                a("s_add_u32 m0, s%d, %d" % (lds_sreg, 1024 * m))
                a("s_add_u32 s%d, s%d, %d" % (sT2, sT2, [0, 4096, 12288, 4096][m]))
            a.vmem("buffer_load_dwordx4 v14, s[%d:%d], s%d offen lds" % (S_W2, S_W2 + 3, sT2), tag)

    def role_h(self):
        a = self.a
        a.vm = self.vm_h
        a("s_sub_u32 s%d, s%d, 4" % (sHW, sW))
        a("v_lshlrev_b32 v2, 3, v1")
        a("s_lshl_b32 s%d, s%d, 12" % (sT0, sHW))
        a("v_add_u32 v2, s%d, v2" % sT0)
        HB = 188
        for i in range(6):
            a("ds_read_b64 v[%d:%d], v2 offset:%d" % (HB + 2 * i, HB + 2 * i + 1, L_B + 512 * i))
        self.h_store_addr(sHW)
        a.lg0()
        self.h_stores(HB, "hst")
        self.w2_voff()
        for m in range(7):
            a("s_add_u32 s%d, s%d, %d" % (sT0, sHW, 4 * m))
            a("s_add_u32 s%d, s%d, 8" % (sT1, sT0))
            a("s_cmp_lt_u32 s%d, 14" % sT0)
            a("s_cselect_b32 s%d, s%d, s%d" % (sT1, sT0, sT1))
            a("s_lshl_b32 s%d, s%d, 12" % (sT0, sT0))
            a("s_add_u32 s%d, s%d, %d" % (sT0, sT0, L_B))
            self.w2_dma_slot(sT0, sT1, "w2b")
            if m == 1:
                a.wait_vm("hst")
                if not self.noflags:
                    a("s_lshl_b32 s%d, s%d, 3" % (sT0, sR))
                    a("s_add_u32 s%d, s%d, s%d" % (sT0, sT0, sC))
                    a("s_lshl_b32 s%d, s%d, 7" % (sT0, sT0))
                    a("s_lshl_b32 s%d, s%d, 2" % (sT1, sHW))
                    a("s_add_u32 s%d, s%d, s%d" % (sT0, sT0, sT1))
                    a("s_add_u32 s%d, s%d, 0x%x" % (sT0, sT0, F_H2))
                    self.flag_store(sT0, "flag")
                self.stamp(5)
        a.wait_vm("w2b")
        sk = a.newlabel("L_hp")
        if not self.noflags:
            a("s_cmp_lg_u32 s%d, 0" % sHW)
            a("s_cbranch_scc1 %s" % sk)
            a("s_lshl_b32 s%d, s%d, 10" % (sT0, sR))
            a("s_add_u32 s%d, s%d, 0x%x" % (sT0, sT0, F_H2))
            self.poll(sT0, 8, 4, 128)
            a.label(sk)
        self.stamp(6)
        a("s_barrier")
        for m in range(3):
            sk2 = a.newlabel("L_ha")
            a("s_add_u32 s%d, s%d, %d" % (sT0, sHW, 4 * m))
            if m == 2:
                a("s_cmp_ge_u32 s%d, 10" % sT0)
                a("s_cbranch_scc1 %s" % sk2)
            a("s_add_u32 s%d, s%d, 14" % (sT1, sT0))
            a("s_add_u32 s4, s%d, 31" % sT0)
            a("s_cmp_lt_u32 s%d, 5" % sT0)
            a("s_cselect_b32 s%d, s%d, s4" % (sT1, sT1))
            a("s_lshl_b32 s%d, s%d, 12" % (sT0, sT0))
            if L_A: a("s_add_u32 s%d, s%d, %d" % (sT0, sT0, L_A))
            self.w2_dma_slot(sT0, sT1, "w2a")
            a.label(sk2)
        self.final_x_load(240, 244)
        a("s_waitcnt vmcnt(1)")
        a("s_barrier")
        a("s_add_u32 s%d, s%d, 19" % (sT1, sHW))
        a("s_mov_b32 s%d, s%d" % (sT0, sHW))
        a("s_cmp_eq_u32 s%d, 3" % sHW)
        a("s_cselect_b32 s%d, 41, s%d" % (sT1, sT1))
        a("s_cselect_b32 s%d, 14, s%d" % (sT0, sT0))
        a("s_lshl_b32 s%d, s%d, 12" % (sT0, sT0))
        a("s_add_u32 s%d, s%d, %d" % (sT0, sT0, L_B))
        self.w2_dma_slot(sT0, sT1, "w2l")
        sk3 = a.newlabel("L_hl")
        a("s_cmp_lg_u32 s%d, 0" % sHW)
        a("s_cbranch_scc1 %s" % sk3)
        a("s_mov_b32 s%d, %d" % (sT0, L_B + 15 * 4096))
        a("s_mov_b32 s%d, 42" % sT1)
        self.w2_dma_slot(sT0, sT1, "w2l")
        a.label(sk3)
        a("s_waitcnt vmcnt(0)")
        a("s_barrier")
        if not self.noflags:
            a("s_lshl_b32 s%d, s%d, 12" % (sT0, sC))
            a("s_add_u32 s%d, s%d, 0x%x" % (sT0, sT0, F_H3))
            self.poll(sT0, 32, 4, 128)
        self.stamp(7)
        a("v_subrev_u32 v2, 256, v0")
        a("v_lshrrev_b32 v3, 2, v2")
        a("v_and_b32 v4, 3, v2")
        a("v_lshlrev_b32 v5, 7, v3")
        a("v_lshl_add_u32 v5, v4, 5, v5")
        a("s_lshl_b32 s%d, s%d, 16" % (sT0, sR))
        a("s_lshl_b32 s%d, s%d, 13" % (sT1, sC))
        a("s_add_u32 s%d, s%d, s%d" % (sT0, sT0, sT1))
        a("s_add_u32 s%d, s%d, 0x%x" % (sT0, sT0, WS_YT))
        a("v_add_u32 v5, s%d, v5" % sT0)
        a.vmem("buffer_load_dwordx4 v[20:23], v5, s[%d:%d], 0 offen sc1" % (S_WS, S_WS + 3), "y")
        a.vmem("buffer_load_dwordx4 v[24:27], v5, s[%d:%d], 0 offen offset:16 sc1" % (S_WS, S_WS + 3), "y")
        a("v_mul_u32_u24 v6, 144, v3")
        a("v_lshl_add_u32 v6, v4, 5, v6")
        a("v_add_u32 v6, %d, v6" % (L_B + 3 * 4096))
        a("s_waitcnt vmcnt(0)")
        a("ds_write_b128 v6, v[20:23]")
        a("ds_write_b128 v6, v[24:27] offset:16")
        a.lg0()
        a("s_barrier")

    def final_x_load(self, xr, ar):
        a = self.a
        a("s_and_b32 s%d, s%d, 3" % (sT0, sW))
        a("s_lshl_b32 s%d, s%d, 4" % (sT0, sT0))
        a("s_lshl_b32 s%d, s%d, 6" % (sT1, sR))
        a("s_add_u32 s%d, s%d, s%d" % (sT0, sT0, sT1))
        a("s_lshl_b32 s%d, s%d, 10" % (sT0, sT0))
        a("s_lshl_b32 s%d, s%d, 7" % (sT1, sC))
        a("s_add_u32 s%d, s%d, s%d" % (sT0, sT0, sT1))
        a("s_lshr_b32 s%d, s%d, 2" % (sT1, sW))
        a("s_lshl_b32 s%d, s%d, 6" % (sT1, sT1))
        a("s_add_u32 s%d, s%d, s%d" % (sT0, sT0, sT1))
        a("v_lshrrev_b32 v2, 2, v1")
        a("v_lshlrev_b32 v2, 10, v2")
        a("v_and_b32 v3, 3, v1")
        a("v_lshl_add_u32 v2, v3, 4, v2")
        a("v_add_u32 v%d, s%d, v2" % (ar, sT0))
        a.vmem("buffer_load_dwordx4 v[%d:%d], v%d, s[%d:%d], 0 offen" % (xr, xr + 3, ar, S_X, S_X + 3), "xf")

    def role_m(self):
        a = self.a
        a.vm = self.vm_m
        if not self.noflags:
            sk = a.newlabel("L_m1"); dn = a.newlabel("L_m1d")
            a("s_cmp_lg_u32 s%d, 0" % sW)
            a("s_cbranch_scc1 %s" % sk)
            a("s_lshl_b32 s%d, s%d, 12" % (sT0, sC))
            a("s_add_u32 s%d, s%d, 0x%x" % (sT0, sT0, F_H1))
            self.poll(sT0, 32, 1, 128)
            self.lds_signal(8)
            a("s_branch %s" % dn)
            a.label(sk)
            self.lds_wait(word=8)
            a.label(dn)
        self.stamp(3)
        a("s_lshr_b32 s%d, s%d, 1" % (sT3, sW))
        a("s_lshl_b32 s%d, s%d, 6" % (sT0, sC))
        a("s_lshl_b32 s%d, s%d, 1" % (sT1, sR))
        a("s_add_u32 s%d, s%d, s%d" % (sT0, sT0, sT1))
        a("s_add_u32 s%d, s%d, s%d" % (sT0, sT0, sT3))
        a("s_lshl_b32 s%d, s%d, 12" % (sT0, sT0))
        a("s_add_u32 s%d, s%d, 0x%x" % (sT0, sT0, WS_KVT))
        a("v_lshlrev_b32 v4, 4, v1")
        a("v_add_u32 v5, s%d, v4" % sT0)
        for i in range(4):
            a.vmem("buffer_load_dwordx4 v[%d:%d], v5, s[%d:%d], 0 offen offset:%d sc1" % (20 + 4 * i, 23 + 4 * i, S_WS, S_WS + 3, 1024 * i), "u")
        a("s_mul_i32 s%d, s%d, %d" % (sT3, sT3, U_CH))
        a("s_add_u32 s%d, s%d, %d" % (sT3, sT3, L_U))
        a("v_add_u32 v6, s%d, v4" % sT3)
        self.conv_setup()
        a.wait_vm("u")
        for i in range(4):
            a.lds("ds_write_b128 v6, v[%d:%d] offset:%d" % (20 + 4 * i, 23 + 4 * i, 1024 * i), "uw")
        self.stamp(4)
        self.conv()
        self.gemm2()

    def conv_setup(self):
        a = self.a
        AU, AT = 2, 3
        ACC = 148
        a("v_and_b32 v8, 15, v1")
        a("v_lshrrev_b32 v9, 4, v1")
        a("v_lshlrev_b32 v10, 4, v9")
        a("v_lshlrev_b32 v11, 5, v8")
        a("v_sub_u32 v10, v10, v11")
        a("s_lshr_b32 s%d, s%d, 1" % (sT0, sW))
        a("s_and_b32 s%d, s%d, 1" % (sT1, sW))
        a("s_mul_i32 s%d, s%d, %d" % (sT2, sT0, U_CH))
        a("s_add_u32 s%d, s%d, %d" % (sT2, sT2, L_U + 2 * 2032 - 64 * 56))
        a("s_lshl_b32 s4, s%d, 6" % sT1)
        a("s_add_u32 s%d, s%d, s4" % (sT2, sT2))
        a("v_add_u32 v%d, s%d, v10" % (AU, sT2))
        a("v_and_b32 v10, 3, v8")
        a("v_mul_u32_u24 v10, %d, v10" % T_CP)
        a("v_lshrrev_b32 v11, 2, v8")
        a("v_lshl_add_u32 v10, v11, 3, v10")
        a("v_lshl_add_u32 v10, v9, 4, v10")
        a("s_mul_i32 s%d, s%d, %d" % (sT2, sT0, T_CH))
        a("s_add_u32 s%d, s%d, s4" % (sT2, sT2))
        if L_T: a("s_add_u32 s%d, s%d, %d" % (sT2, sT2, L_T))
        a("v_add_u32 v%d, s%d, v10" % (AT, sT2))
        for i in range(32):
            a("v_mov_b32 v%d, 0" % (ACC + i))

    def conv(self):
        a = self.a
        BF, ACC, AF, NA = 20, 148, 180, 16
        AU, AT = 2, 3
        def emit_A(ee):
            r = AF + 4 * (ee % NA)
            a.lds("ds_read_b64 v[%d:%d], v%d offset:%d" % (r, r + 1, AT, 128 * ee), ("A", ee))
            a.lds("ds_read_b64 v[%d:%d], v%d offset:%d" % (r + 2, r + 3, AT, 128 * ee + 8), ("A", ee))
        def emit_B(idx):
            r = BF + 4 * idx
            a.lds("ds_read_b128 v[%d:%d], v%d offset:%d" % (r, r + 3, AU, 128 * idx), ("B", idx))
        sched = []
        for ee in range(32):
            for j in range(7, (ee >> 2) - 1, -1):
                sched.append((ee, j, 28 - 4 * j + ee))
        order = []; seen = set(); first_use = {}; last_use_A = {}
        for n, (ee, j, idx) in enumerate(sched):
            for it in (("A", ee), ("B", idx)):
                if it not in seen:
                    seen.add(it); order.append(it); first_use[it] = n
            last_use_A[ee] = n
        ptr = 0
        issued = set()
        def can_issue(item, n):
            if item[0] == "A" and item[1] >= NA:
                return last_use_A[item[1] - NA] < n
            return True
        def issue_next(n_now):
            nonlocal ptr
            if ptr < len(order) and can_issue(order[ptr], n_now):
                it = order[ptr]
                (emit_A if it[0] == "A" else emit_B)(it[1])
                issued.add(it); ptr += 1
                return True
            return False
        def inflight():
            return len(a.lg.q) - a.lg_done
        while inflight() < 12 and issue_next(0): pass
        for n, (ee, j, idx) in enumerate(sched):
            while ("A", ee) not in issued or ("B", idx) not in issued:
                assert issue_next(n)
            a.need_lds(("A", ee), ("B", idx))
            ar = AF + 4 * (ee % NA); br = BF + 4 * idx; acc = ACC + 4 * j
            a("v_mfma_f32_16x16x32_bf16 v[%d:%d], v[%d:%d], v[%d:%d], v[%d:%d]" % (acc, acc + 3, ar, ar + 3, br, br + 3, acc, acc + 3))
            if inflight() < 13:
                issue_next(n + 1)
                if n < 40 and inflight() < 13: issue_next(n + 1)
        self.stamp(16)
        self.pair_sync(0)
        a("v_lshlrev_b32 v4, 4, v1")
        a("s_lshr_b32 s%d, s%d, 1" % (sT0, sW))
        a("s_and_b32 s%d, s%d, 1" % (sT1, sW))
        a("s_mul_i32 s%d, s%d, %d" % (sT0, sT0, T_CH))
        a("s_lshl_b32 s%d, s%d, 12" % (sT2, sT1))
        a("s_add_u32 s%d, s%d, s%d" % (sT2, sT2, sT0))
        a("v_add_u32 v5, s%d, v4" % sT2)
        a("s_xor_b32 s%d, s%d, 1" % (sT2, sT1))
        a("s_lshl_b32 s%d, s%d, 12" % (sT2, sT2))
        a("s_add_u32 s%d, s%d, s%d" % (sT2, sT2, sT0))
        a("v_add_u32 v6, s%d, v4" % sT2)
        l0 = a.newlabel("L_cr0"); l1 = a.newlabel("L_cr1")
        a("s_cmp_eq_u32 s%d, 0" % sT1)
        a("s_cbranch_scc1 %s" % l0)
        for i in range(4):
            a("ds_write_b128 v5, v[%d:%d] offset:%d" % (ACC + 4 * i, ACC + 4 * i + 3, L_T + 1024 * i))
        for i in range(16):
            a("v_mov_b32 v%d, v%d" % (200 + i, ACC + 16 + i))
        a("s_branch %s" % l1)
        a.label(l0)
        for i in range(4):
            a("ds_write_b128 v5, v[%d:%d] offset:%d" % (ACC + 16 + 4 * i, ACC + 16 + 4 * i + 3, L_T + 1024 * i))
        for i in range(16):
            a("v_mov_b32 v%d, v%d" % (200 + i, ACC + i))
        a.label(l1)
        a("v_and_b32 v4, 15, v1")
        a("v_lshrrev_b32 v7, 4, v1")
        a("v_lshlrev_b32 v4, 5, v4")
        a("v_lshl_add_u32 v4, v7, 3, v4")
        a("s_lshr_b32 s%d, s%d, 1" % (sT0, sW))
        a("s_mul_i32 s%d, s%d, %d" % (sT2, sT0, U_CH))
        a("s_add_u32 s%d, s%d, %d" % (sT2, sT2, L_U + 2 * 2044 - 3 * 512))
        a("s_lshl_b32 s4, s%d, 11" % sT1)
        a("s_sub_u32 s%d, s%d, s4" % (sT2, sT2))
        a("v_sub_u32 v4, s%d, v4" % sT2)
        for i in range(4):
            a("ds_read_b64 v[%d:%d], v4 offset:%d" % (236 + 2 * i, 237 + 2 * i, (3 - i) * 512))
        a("s_and_b32 s4, s%d, 0xffff" % sDD)
        a("s_lshr_b32 s5, s%d, 16" % sDD)
        a("s_cmp_eq_u32 s%d, 0" % sT0)
        a("s_cselect_b32 s4, s4, s5")
        a("s_lshl_b32 s5, s4, 16")
        a("v_mov_b32 v8, s4")
        a("v_mov_b32 v9, s5")
        a("s_mov_b32 s68, 0x05040100")
        a("s_mov_b32 s69, 0x07060302")
        self.pair_sync(1)
        for i in range(4):
            a("ds_read_b128 v[%d:%d], v6 offset:%d" % (220 + 4 * i, 223 + 4 * i, L_T + 1024 * i))
        TT = 148
        for i in range(4):
            u0, u1 = 236 + 2 * i, 237 + 2 * i
            a("v_dot2_f32_bf16 v%d, v%d, v9, 0" % (TT + 4 * i + 0, u1))
            a("v_dot2_f32_bf16 v%d, v%d, v8, 0" % (TT + 4 * i + 1, u1))
            a("v_dot2_f32_bf16 v%d, v%d, v9, 0" % (TT + 4 * i + 2, u0))
            a("v_dot2_f32_bf16 v%d, v%d, v8, 0" % (TT + 4 * i + 3, u0))
        TB = 164
        for i in range(4):
            a("v_cvt_pk_bf16_f32 v%d, v%d, v%d" % (TB + 2 * i, TT + 4 * i, TT + 4 * i + 1))
            a("v_cvt_pk_bf16_f32 v%d, v%d, v%d" % (TB + 2 * i + 1, TT + 4 * i + 2, TT + 4 * i + 3))
        a.lg0()
        for i in range(16):
            a("v_add_f32 v%d, v%d, v%d" % (200 + i, 200 + i, 220 + i))
        YB = 172
        for i in range(8):
            a("v_cvt_pk_bf16_f32 v%d, v%d, v%d" % (YB + i, 200 + 2 * i, 201 + 2 * i))
        for i in range(8):
            a("v_perm_b32 v%d, v%d, v%d, s68" % (200 + 2 * i, TB + i, YB + i))
            a("v_perm_b32 v%d, v%d, v%d, s69" % (201 + 2 * i, TB + i, YB + i))
        for i in range(16):
            a("v_dot2_f32_bf16 v%d, v%d, v%d, 0" % (220 + i, 200 + i, vONES))
        a("v_and_b32 v4, 15, v1")
        a("v_lshrrev_b32 v5, 2, v4")
        a("v_lshlrev_b32 v5, 16, v5")
        a("v_and_b32 v4, 3, v4")
        a("v_lshl_add_u32 v5, v4, 5, v5")
        a("v_lshrrev_b32 v7, 4, v1")
        a("v_lshl_add_u32 v5, v7, 3, v5")
        a("s_lshl_b32 s%d, s%d, 6" % (sT2, sC))
        a("s_lshl_b32 s4, s%d, 1" % sR)
        a("s_add_u32 s%d, s%d, s4" % (sT2, sT2))
        a("s_add_u32 s%d, s%d, s%d" % (sT2, sT2, sT0))
        a("s_lshl_b32 s%d, s%d, 7" % (sT2, sT2))
        a("s_lshl_b32 s4, s%d, 20" % sT1)
        a("s_add_u32 s%d, s%d, s4" % (sT2, sT2))
        a("s_add_u32 s%d, s%d, 0x%x" % (sT2, sT2, WS_YT))
        a("v_add_u32 v5, s%d, v5" % sT2)
        for i in range(8):
            a("v_cvt_pk_bf16_f32 v%d, v%d, v%d" % (180 + i, 220 + 2 * i, 221 + 2 * i))
        for i in range(4):
            if i: a("v_add_u32 v5, 0x40000, v5")
            a.vmem("buffer_store_dwordx2 v[%d:%d], v5, s[%d:%d], 0 offen sc1" % (180 + 2 * i, 181 + 2 * i, S_WS, S_WS + 3), "yst")
        self.stamp(17)

    def gemm2(self):
        a = self.a
        HF, ACC = 20, 196
        WBUF = [228, 2]
        AB = 244
        PF = 6
        a("s_lshr_b32 s%d, s%d, 1" % (sT0, sW))
        a("s_and_b32 s%d, s%d, 1" % (sT1, sW))
        a("s_lshl_b32 s%d, s%d, 2" % (sT2, sR))
        a("s_lshl_b32 s4, s%d, 1" % sT1)
        a("s_add_u32 s%d, s%d, s4" % (sT2, sT2))
        a("s_mul_i32 s%d, s%d, 44032" % (sT2, sT2))
        a("s_mul_i32 s4, s%d, %d" % (sT0, 22 * 1024))
        a("s_add_u32 s%d, s%d, s4" % (sT2, sT2))
        a("s_add_u32 s%d, s%d, 0x%x" % (sT2, sT2, WS_H))
        a("v_lshlrev_b32 v18, 4, v1")
        a("v_add_u32 v18, s%d, v18" % sT2)
        a("v_add_u32 v19, 44032, v18")
        a("v_lshrrev_b32 v2, 4, v1")
        a("v_and_b32 v3, 15, v1")
        a("v_lshrrev_b32 v3, 2, v3")
        a("v_lshrrev_b32 v4, 1, v2")
        a("v_lshlrev_b32 v4, 4, v4")
        a("v_and_b32 v5, 1, v2")
        a("v_lshl_add_u32 v4, v5, 2, v4")
        a("v_add_u32 v4, v4, v3")
        a("v_lshlrev_b32 v4, 7, v4")
        a("v_and_b32 v6, 1, v1")
        a("v_lshl_add_u32 v4, v6, 3, v4")
        a("v_lshlrev_b32 v5, 1, v5")
        a("v_lshrrev_b32 v6, 1, v3")
        a("v_add_u32 v5, v5, v6")
        a("v_lshlrev_b32 v5, 1, v5")
        a("v_and_b32 v6, 3, v1")
        a("v_lshrrev_b32 v6, 1, v6")
        a("s_mul_i32 s4, s%d, %d" % (sT0, 14 * 4096))
        a("s_add_u32 s4, s4, %d" % L_B)
        for b in range(4):
            a("v_add_u32 v7, %d, v6" % (2 * b))
            a("v_xor_b32 v7, v7, v5")
            a("v_lshl_add_u32 v7, v7, 4, v4")
            a("v_add_u32 v%d, s4, v7" % (AB + b))
        a("s_mul_i32 s5, s%d, %d" % (sT0, 5 * 4096))
        a("s_sub_u32 s70, s5, s4")
        if L_A: a("s_add_u32 s70, s70, %d" % L_A)
        for i in range(32):
            a("v_mov_b32 v%d, 0" % (ACC + i))
        a.lg0()
        a("s_barrier")
        self.stamp(18)

        def hload(i):
            ops = []
            for t in range(2):
                def f(t=t):
                    r = HF + (i * 2 + t) * 4
                    so = i * 1024
                    if so < 4096:
                        a.vmem("buffer_load_dwordx4 v[%d:%d], v%d, s[%d:%d], 0 offen offset:%d sc1" % (r, r + 3, 18 + t, S_WS, S_WS + 3, so), "h%d" % i)
                    else:
                        if t == 0: a("s_mov_b32 s71, %d" % (so & ~4095))
                        a.vmem("buffer_load_dwordx4 v[%d:%d], v%d, s[%d:%d], s71 offen offset:%d sc1" % (r, r + 3, 18 + t, S_WS, S_WS + 3, so & 4095), "h%d" % i)
                ops.append(f)
            return ops

        def read_ops(i):
            buf = WBUF[i & 1]
            if i < 14: so = i * 4096
            elif i < 19: so = (i - 14) * 4096
            else: so = (i - 19) * 4096
            ops = []
            if i == 14:
                for b in range(4): ops.append("v_add_u32 v%d, s70, v%d" % (AB + b, AB + b))
            if i == 19:
                for b in range(4): ops.append("v_subrev_u32 v%d, s70, v%d" % (AB + b, AB + b))
            for b in range(4):
                for hh in range(2):
                    r0 = buf + 4 * b + 2 * hh
                    ops.append(lambda r0=r0, b=b, hh=hh: a.lds("ds_read_b64_tr_b16 v[%d:%d], v%d offset:%d" % (r0, r0 + 1, AB + b, so + hh * 1024), "w%d_%d" % (i, b)))
            return ops

        def mfma_ops(i):
            buf = WBUF[i & 1]
            ops = []
            for b in range(4):
                for t in range(2):
                    def f(b=b, t=t):
                        if b == 0 and t == 0:
                            a.wait_vm("h%d" % i)
                        a.need_lds("w%d_%d" % (i, b))
                        acc = ACC + (b * 2 + t) * 4
                        hr = HF + (i * 2 + t) * 4
                        a("v_mfma_f32_16x16x32_bf16 v[%d:%d], v[%d:%d], v[%d:%d], v[%d:%d]" % (acc, acc + 3, buf + 4 * b, buf + 4 * b + 3, hr, hr + 3, acc, acc + 3))
                    ops.append(f)
            return ops

        for i in range(PF):
            for f in hload(i): f()
        self.stamp(19)
        for f in read_ops(0):
            f() if callable(f) else a(f)
        last = a.newlabel("L_g2l")
        for i in range(22):
            if i == 2: self.stamp(20)
            if i == 12: self.stamp(21)
            if i == 7:
                a.lg0()
                a("s_barrier")
            if i == 18:
                a.lg0()
                a("s_barrier")
            if i == 21:
                a("s_cmp_eq_u32 s%d, 1" % sT0)
                a("s_cbranch_scc1 %s" % last)
            fill = []
            if i < 21: fill += read_ops(i + 1)
            if i + PF < 22: fill = hload(i + PF) + fill
            interleave(a, mfma_ops(i), fill)
            if i == 1 and not self.noflags:
                a("s_lshl_b32 s4, s2, 7")
                a("s_lshl_b32 s5, s%d, 2" % sW)
                a("s_add_u32 s4, s4, s5")
                a("s_add_u32 s%d, s4, 0x%x" % (sT2, F_H3))
                self.flag_store(sT2, "flag", 253, 254)
        a.label(last)
        a.lg0()
        self.stamp(22)
        a("v_and_b32 v2, 15, v1")
        a("v_lshrrev_b32 v3, 4, v1")
        a("v_mul_u32_u24 v2, 272, v2")
        a("v_lshl_add_u32 v2, v3, 4, v2")
        a("s_mul_i32 s4, s%d, %d" % (sT0, 14 * 4096))
        a("s_mul_i32 s5, s%d, %d" % (sT1, 32 * 272))
        a("s_add_u32 s4, s4, s5")
        a("s_add_u32 s4, s4, %d" % (L_B + 6 * 4096))
        a("v_add_u32 v2, s4, v2")
        for b in range(4):
            for t in range(2):
                acc = ACC + (b * 2 + t) * 4
                a("ds_write_b128 v2, v[%d:%d] offset:%d" % (acc, acc + 3, t * 16 * 272 + b * 64))
        self.final_x_load(240, 244)
        a.lg0()
        a("s_barrier")

    def final(self):
        a = self.a
        P0 = L_B + 6 * 4096; P1 = L_B + 20 * 4096; YL = L_B + 3 * 4096
        XR = 240; OA = 244
        a("s_and_b32 s%d, s%d, 3" % (sT0, sW))
        a("s_lshr_b32 s%d, s%d, 2" % (sT1, sW))
        a("v_lshrrev_b32 v2, 2, v1")
        a("v_and_b32 v3, 3, v1")
        a("s_lshl_b32 s4, s%d, 4" % sT0)
        a("v_add_u32 v2, s4, v2")
        a("v_mul_u32_u24 v4, 272, v2")
        a("v_lshl_add_u32 v4, v3, 5, v4")
        a("s_lshl_b32 s4, s%d, 7" % sT1)
        a("s_add_u32 s4, s4, %d" % P0)
        a("v_add_u32 v4, s4, v4")
        a("ds_read_b128 v[20:23], v4")
        a("ds_read_b128 v[24:27], v4 offset:16")
        a("ds_read_b128 v[28:31], v4 offset:%d" % (P1 - P0))
        a("ds_read_b128 v[32:35], v4 offset:%d" % (P1 - P0 + 16))
        a("v_lshlrev_b32 v6, 3, v2")
        a("v_add_u32 v6, %d, v6" % L_STATS)
        a("ds_read_b64 v[36:37], v6")
        a("v_lshrrev_b32 v7, 4, v1")
        a("v_lshlrev_b32 v7, 3, v7")
        a("v_and_b32 v8, 15, v1")
        a("v_lshrrev_b32 v8, 2, v8")
        a("v_add_u32 v7, v7, v8")
        a("s_lshl_b32 s4, s%d, 5" % sT1)
        a("v_add_u32 v7, s4, v7")
        a("v_mul_u32_u24 v7, 144, v7")
        a("v_and_b32 v8, 3, v1")
        a("v_lshl_add_u32 v7, v8, 3, v7")
        a("s_lshl_b32 s4, s%d, 5" % sT0)
        a("s_add_u32 s4, s4, %d" % YL)
        a("v_add_u32 v7, s4, v7")
        a("ds_read_b64_tr_b16 v[38:39], v7")
        a("ds_read_b64_tr_b16 v[40:41], v7 offset:%d" % (4 * 144))
        a("v_and_b32 v8, 3, v1")
        a("v_lshlrev_b32 v8, 4, v8")
        a("v_lshrrev_b32 v9, 2, v1")
        a("v_or_b32 v8, v8, v9")
        a("v_lshlrev_b32 v8, 2, v8")
        a("v_mov_b32 v10, 0xbfb8aa3b")
        a("v_mov_b32 v11, 1.0")
        a("s_waitcnt lgkmcnt(0)")
        for i in range(4):
            a("ds_bpermute_b32 v%d, v8, v%d" % (42 + i, 38 + i))
        for i in range(8):
            a("v_add_f32 v%d, v%d, v%d" % (20 + i, 20 + i, 28 + i))
        for i in range(4):
            a("v_cvt_pk_bf16_f32 v%d, v%d, v%d" % (28 + i, 20 + 2 * i, 21 + 2 * i))
        for i in range(4):
            a("v_alignbit_b32 v%d, v%d, 0, 16" % (20 + 2 * i, 28 + i))
            a("v_and_b32 v%d, v%d, v%d" % (21 + 2 * i, vMHI, 28 + i))
        for i in range(8):
            a("v_mul_f32 v%d, v10, v%d" % (48 + i, 20 + i))
        for i in range(8):
            a("v_exp_f32 v%d, v%d" % (48 + i, 48 + i))
        a("s_waitcnt vmcnt(0)")
        a("v_sub_f32 v12, 0, v36")
        for i in range(4):
            a("v_dot2_f32_bf16 v%d, v%d, v%d, v12" % (72 + 2 * i, XR + i, vONELO))
            a("v_dot2_f32_bf16 v%d, v%d, v%d, v12" % (73 + 2 * i, XR + i, vONEHI))
        for i in range(8):
            a("v_add_f32 v%d, v11, v%d" % (48 + i, 48 + i))
        for i in range(4):
            a("v_cvt_pk_bf16_f32 v%d, v%d, v%d" % (80 + i, 72 + 2 * i, 73 + 2 * i))
        for i in range(8):
            a("v_rcp_f32 v%d, v%d" % (48 + i, 48 + i))
        for i in range(4):
            a("v_alignbit_b32 v%d, v%d, 0, 16" % (72 + 2 * i, 80 + i))
            a("v_and_b32 v%d, v%d, v%d" % (73 + 2 * i, vMHI, 80 + i))
        for i in range(8):
            a("v_mul_f32 v%d, v%d, v37" % (72 + i, 72 + i))
        for i in range(8):
            a("v_mul_f32 v%d, v%d, v%d" % (20 + i, 20 + i, 48 + i))
        for i in range(4):
            a("v_cvt_pk_bf16_f32 v%d, v%d, v%d" % (80 + i, 72 + 2 * i, 73 + 2 * i))
        for i in range(4):
            a("v_cvt_pk_bf16_f32 v%d, v%d, v%d" % (28 + i, 20 + 2 * i, 21 + 2 * i))
        a("s_waitcnt lgkmcnt(0)")
        for i in range(4):
            a("v_and_b32 v%d, v%d, v%d" % (56 + 2 * i, vMLO, 42 + i))
            a("v_and_b32 v%d, v%d, v%d" % (57 + 2 * i, vMHI, 42 + i))
            a("v_and_b32 v%d, v%d, v%d" % (64 + 2 * i, vMLO, 28 + i))
            a("v_and_b32 v%d, v%d, v%d" % (65 + 2 * i, vMHI, 28 + i))
        for i in range(4):
            a("v_dot2_f32_bf16 v%d, v%d, v%d, 0" % (72 + 2 * i, 80 + i, 56 + 2 * i))
            a("v_dot2_f32_bf16 v%d, v%d, v%d, 0" % (73 + 2 * i, 80 + i, 57 + 2 * i))
        for i in range(4):
            a("v_alignbit_b32 v%d, v%d, 0, 16" % (88 + 2 * i, XR + i))
            a("v_and_b32 v%d, v%d, v%d" % (89 + 2 * i, vMHI, XR + i))
        for i in range(4):
            a("v_cvt_pk_bf16_f32 v%d, v%d, v%d" % (80 + i, 72 + 2 * i, 73 + 2 * i))
        for i in range(4):
            a("v_dot2_f32_bf16 v%d, v%d, v%d, 0" % (72 + 2 * i, 80 + i, 64 + 2 * i))
            a("v_dot2_f32_bf16 v%d, v%d, v%d, 0" % (73 + 2 * i, 80 + i, 65 + 2 * i))
        for i in range(4):
            a("v_cvt_pk_bf16_f32 v%d, v%d, v%d" % (80 + i, 72 + 2 * i, 73 + 2 * i))
        for i in range(4):
            a("v_dot2_f32_bf16 v%d, v%d, v%d, v%d" % (72 + 2 * i, 80 + i, vONELO, 88 + 2 * i))
            a("v_dot2_f32_bf16 v%d, v%d, v%d, v%d" % (73 + 2 * i, 80 + i, vONEHI, 89 + 2 * i))
        for i in range(4):
            a("v_cvt_pk_bf16_f32 v%d, v%d, v%d" % (80 + i, 72 + 2 * i, 73 + 2 * i))
        a("buffer_store_dwordx4 v[80:83], v%d, s[%d:%d], 0 offen" % (OA, S_OUT, S_OUT + 3))

    def build(self):
        a = self.a
        self.p0()
        self.stamp(1)
        self.p1()
        self.stamp(10)
        self.p2()
        self.stamp(11)
        self.p3()
        self.stamp(2)
        self.p4()
        lm = "L_role_m"; lf = "L_final"
        a("s_cmp_lt_u32 s%d, 4" % sW)
        a("s_cbranch_scc1 %s" % lm)
        self.role_h()
        a("s_branch %s" % lf)
        a.label(lm)
        a.lg_clear()
        self.role_m()
        a.label(lf)
        a.lg_clear()
        self.stamp(8)
        self.final()
        self.stamp(9)
        self.dump_stamps()
        a("s_waitcnt vmcnt(0)")
        a.label("L_end")
        a("s_endpgm")
        lines, n = hazard.fix(a.lines)
        self.nnops = n
        hdr = """; Kernarg layout: x,k,v,shift_k,ssm_k,ssm_D,B_x,w1,w2,out,debug,ws (8-byte pointers)
; @launch grid=(256,1,1) block=(512,1,1) lds=%d
.amdgcn_target "amdgcn-amd-amdhsa--gfx950"
.text
.globl %s
.p2align 8
.type %s,@function
%s:
""" % (LDS_SIZE, KNAME, KNAME, KNAME)
        ftr = """.section .rodata,"a"
.p2align 6
.amdhsa_kernel %s
  .amdhsa_next_free_vgpr 256
  .amdhsa_next_free_sgpr 102
  .amdhsa_accum_offset 256
  .amdhsa_group_segment_fixed_size 0
  .amdhsa_kernarg_size 96
  .amdhsa_user_sgpr_count 2
  .amdhsa_user_sgpr_kernarg_segment_ptr 1
  .amdhsa_system_sgpr_workgroup_id_x 1
.end_amdhsa_kernel
""" % KNAME
        return hdr + "\n".join(lines) + "\n" + ftr

if __name__ == "__main__":
    import argparse
    ap = argparse.ArgumentParser()
    ap.add_argument("-o", default="k.s")
    ap.add_argument("--stamps", action="store_true")
    ap.add_argument("--noflags", action="store_true")
    ap.add_argument("--exp", default="")
    args = ap.parse_args()
    g = Gen(stamps=args.stamps, noflags=args.noflags, exp=args.exp)
    txt = g.build()
    open(args.o, "w").write(txt)
    print("wrote", args.o, len(txt.splitlines()), "lines; hazard nops:", g.nnops)
```

```python
import sys
from emit import *
import hazard

KNAME = "recurrent_scan__ssm_conv_h3__dense_activation_relu__prompt_kernel"

WS_KVT = 0
WS_YT = 2 << 20
WS_H = 4 << 20
WS_FLAG = 10 << 20
F_H1 = WS_FLAG
F_H2 = WS_FLAG + 32768
F_H3 = WS_FLAG + 65536
WS_STAMP = WS_FLAG + (256 << 10)
WS_SIZE = 16 << 20

L_XN = 0
NXN = 4
L_W1 = 32768
W1_SLOT = 23040
NW1 = 5
L_PREP = L_W1 + NW1 * W1_SLOT
L_A = L_W1 + 3 * W1_SLOT
L_T = L_A + 8
T_CH = 16640
T_CP = 4160
L_U = L_A + 33408
U_CH = 4608
L_B = 0
NB_H = 12
B_HALF = NB_H * 4096
L_C = L_PREP
L_Y = 16384
L_P = L_A
L_STATS = 161792
L_SYNC = 162304
LDS_SIZE = 163840
assert L_U % 16 == 0 and L_U + 2 * U_CH <= L_PREP and L_T + 2 * T_CH <= L_U
assert L_A + 10 * 4096 <= L_PREP and L_C + 2 * 4096 <= L_STATS and 2 * B_HALF <= L_A and L_PREP + 9216 <= L_STATS

S_X, S_K, S_V, S_W1, S_W2, S_OUT, S_SSM, S_WS, S_SH, S_DBG = 8, 12, 16, 20, 24, 28, 32, 36, 40, 44
sR, sC, sW, sNONCE = 48, 49, 50, 51
sF0, sBP, sNB = 52, 53, 54
sT0, sT1, sT2, sT3 = 55, 56, 57, 58
sRW = 59
sEX = 60
sROT = 62
sDP = 64
sDD = 66
sM0B = 67
sP0, sP1 = 68, 69
sUOK = 72
sID = 81
sINV1, sINV2 = 73, 74
vMLO, vMHI, vONELO, vONEHI, vONES = 248, 249, 250, 251, 252

def merge(*lists):
    lists = [l for l in lists if l]
    tot = sum(len(l) for l in lists)
    out = []; idx = [0] * len(lists)
    for s in range(tot):
        best = min((i for i in range(len(lists)) if idx[i] < len(lists[i])), key=lambda i: (idx[i] + 0.5) / len(lists[i]))
        out.append(lists[best][idx[best]]); idx[best] += 1
    return out

class Gen:
    def __init__(self, stamps=False, noflags=False, exp=""):
        self.exp = set(exp.split(",")) if exp else set()
        self.a = Asm()
        self.stamps = stamps
        self.noflags = noflags
        self.relax_ln = "relax_ln" in self.exp
        self.stampset = None
        for e in self.exp:
            if e.startswith("st="):
                self.stampset = set(int(x) for x in e[3:].split("+"))

    def stamp(self, idx):
        if not self.stamps: return
        if self.stampset is not None and idx not in self.stampset: return
        a = self.a
        a("s_memrealtime s[4:5]")
        if "clk" in self.exp and idx in (14, 2, 4, 16):
            a("s_memtime s[6:7]")
        a.lg0()
        a("v_writelane_b32 v255, s4, %d" % idx)
        if "clk" in self.exp and idx in (14, 2, 4, 16):
            a("v_writelane_b32 v255, s6, %d" % {14: 29, 2: 30, 4: 31, 16: 15}[idx])

    def dump_stamps(self):
        if not self.stamps: return
        a = self.a
        a("s_lshl_b32 s%d, s2, 3" % sT0)
        a("s_add_u32 s%d, s%d, s%d" % (sT0, sT0, sW))
        a("s_lshl_b32 s%d, s%d, 7" % (sT0, sT0))
        a("s_add_u32 s%d, s%d, 0x%x" % (sT0, sT0, WS_STAMP))
        a("v_lshlrev_b32 v2, 2, v1")
        a("v_add_u32 v2, s%d, v2" % sT0)
        a("s_mov_b32 exec_lo, -1")
        a("s_mov_b32 exec_hi, 0")
        a("buffer_store_dword v255, v2, s[%d:%d], 0 offen" % (S_WS, S_WS + 3))
        a("s_mov_b64 exec, -1")

    def run(self, x):
        if callable(x): x()
        else: self.a(x)

    def spread(self, seq, extra):
        a = self.a
        if not extra:
            for x in seq: self.run(x)
            return
        step = max(1, len(seq) // (len(extra) + 1))
        k = 0
        for i, ins in enumerate(seq):
            self.run(ins)
            if (i + 1) % step == 0 and k < len(extra):
                self.run(extra[k]); k += 1
        while k < len(extra):
            self.run(extra[k]); k += 1

    def p0(self):
        a = self.a
        a("s_cmp_ge_u32 s2, 256")
        a("s_cbranch_scc1 L_end")
        for dst, off in ((S_K, 8), (S_V, 16), (S_SH, 24), (S_X, 0), (S_W1, 56), (S_SSM, 32), (S_WS, 88), (S_DBG, 80), (S_W2, 64), (S_OUT, 72), (sDP, 40)):
            a("s_load_dwordx2 s[%d:%d], s[0:1], %d" % (dst, dst + 1, off))
        if self.stamps: a("v_mov_b32 v255, 0")
        a("v_lshrrev_b32 v2, 6, v0")
        a("v_and_b32 v1, 63, v0")
        a("s_and_b32 s%d, s2, 7" % sR)
        a("s_lshr_b32 s3, s2, 6")
        a("s_lshl_b32 s3, s3, 3")
        a("s_add_u32 s%d, s%d, s3" % (sR, sR))
        a("s_bfe_u32 s%d, s2, 0x30003" % sC)
        a("s_lshl_b32 s%d, s%d, 5" % (sID, sC))
        a("s_add_u32 s%d, s%d, s%d" % (sID, sID, sR))
        a("v_readfirstlane_b32 s%d, v2" % sW)
        for dst, size in ((S_K, 2097152), (S_V, 2097152), (S_SH, 4096), (S_X, 2097152), (S_W1, 1409024), (S_SSM, 2097152), (S_WS, WS_SIZE), (S_DBG, 256), (S_W2, 1409024), (S_OUT, 2097152)):
            a("s_mov_b32 s%d, 0x%x" % (dst + 2, size))
            a("s_mov_b32 s%d, 0x00020000" % (dst + 3))
        a("s_and_b32 s%d, s%d, 3" % (sRW, sW))
        a("s_lshr_b32 s%d, s%d, 3" % (sT0, sR))
        a("s_lshl_b32 s%d, s%d, 1" % (sT0, sT0))
        a("s_add_u32 s%d, s%d, s%d" % (sT0, sT0, sC))
        a("s_add_u32 s%d, s%d, s%d" % (sT0, sT0, sR))
        a("s_and_b32 s%d, s%d, 7" % (sROT, sT0))
        a("v_mov_b32 v%d, 0xffff" % vMLO)
        a("v_mov_b32 v%d, 0xffff0000" % vMHI)
        a("v_mov_b32 v%d, 0x3f80" % vONELO)
        a("v_mov_b32 v%d, 0x3f800000" % vONEHI)
        a("v_mov_b32 v%d, 0x3f803f80" % vONES)
        a("s_mov_b32 s%d, 0x05040100" % sP0)
        a("s_mov_b32 s%d, 0x07060302" % sP1)
        a("s_cmp_ge_u32 s%d, 4" % sW)
        a("s_cbranch_scc1 L_H")
        a("s_setprio 2")

    def w1_dma_ops(self, j):
        a = self.a
        slot = j % NW1
        ops = []
        def head():
            a("s_add_u32 s%d, s%d, %d" % (sT1, sROT, j))
            a("s_and_b32 s%d, s%d, 7" % (sT1, sT1))
            a("s_mul_i32 s%d, s%d, %d" % (sT1, sT1, 64 * 2752))
            a("s_add_u32 m0, s%d, %d" % (sM0B, slot * W1_SLOT))
            a.vmem("buffer_load_dwordx4 v12, s[%d:%d], s%d offen lds" % (S_W1, S_W1 + 3, sT1), "w1c%d" % j)
        ops.append(head)
        for i in range(1, 6):
            def nxt(i=i):
                a("s_add_u32 m0, s%d, %d" % (sM0B, slot * W1_SLOT + 1024 * i))
                a.vmem("buffer_load_dwordx4 v%d, s[%d:%d], s%d offen lds" % (12 + i, S_W1, S_W1 + 3, sT1), "w1c%d" % j)
            ops.append(nxt)
        return ops

    def m_front(self):
        a = self.a
        a("v_lshrrev_b32 v3, 5, v0")
        a("v_and_b32 v4, 31, v0")
        a("s_lshl_b32 s%d, s%d, 16" % (sT0, sR))
        a("s_lshl_b32 s%d, s%d, 7" % (sT1, sC))
        a("s_add_u32 s%d, s%d, s%d" % (sT0, sT0, sT1))
        a("v_lshlrev_b32 v2, 13, v3")
        a("v_lshl_add_u32 v2, v4, 2, v2")
        a("v_add_u32 v2, s%d, v2" % sT0)
        a("v_add_u32 v5, 0xfffff400, v2")
        a("v_add_u32 v6, 0xfffff800, v2")
        a("v_add_u32 v7, 0xfffffc00, v2")
        a("v_add_u32 v8, 4096, v2")
        a("s_lshl_b32 s%d, s%d, 9" % (sT2, sC))
        a("v_lshlrev_b32 v9, 4, v4")
        a("v_add_u32 v9, s%d, v9" % sT2)
        a.lg0()
        if self.stamps:
            a("s_memrealtime s[4:5]"); a.lg0(); a("v_writelane_b32 v255, s4, 0")
        K, V, SH = 20, 32, 40
        for t, r in enumerate((5, 6, 7)):
            a.vmem("buffer_load_dword v%d, v%d, s[%d:%d], 0 offen" % (K + t, r, S_K, S_K + 3), "prep")
        for t in range(8):
            a.vmem("buffer_load_dword v%d, v%d, s[%d:%d], 0 offen offset:%d" % (K + 3 + t, 2 if t < 4 else 8, S_K, S_K + 3, 1024 * (t & 3)), "prep")
        a.vmem("buffer_load_dwordx4 v[40:43], v9, s[%d:%d], 0 offen" % (S_SH, S_SH + 3), "prep")
        for t in range(8):
            a.vmem("buffer_load_dword v%d, v%d, s[%d:%d], 0 offen offset:%d" % (V + t, 2 if t < 4 else 8, S_V, S_V + 3, 1024 * (t & 3)), "prep")
        a("s_setprio 0")
        a("s_mul_i32 s%d, s%d, 176" % (sF0, sC))
        a("s_cmp_eq_u32 s%d, 7" % sC)
        a("s_cselect_b32 s%d, 16, 0" % sT0)
        a("s_sub_u32 s%d, s%d, s%d" % (sF0, sF0, sT0))
        if not self.noflags:
            a("s_or_b32 s%d, s2, s%d" % (sT1, sW))
            a("s_cmp_lg_u32 s%d, 0" % sT1)
            a("s_cbranch_scc1 L_nononce")
            a("s_memrealtime s[4:5]")
            a("s_waitcnt lgkmcnt(0)")
            a("s_or_b32 s4, s4, 1")
            a("v_mov_b32 v2, s4")
            a("v_mov_b32 v3, 0")
            a("s_mov_b64 exec, 1")
            a("buffer_store_dword v2, v3, s[%d:%d], 0 offen sc1" % (S_DBG, S_DBG + 3))
            a("s_mov_b64 exec, -1")
            a.label("L_nononce")
        a("s_lshl_b32 s%d, s%d, 4" % (sT0, sRW))
        a("s_lshl_b32 s%d, s%d, 1" % (sT1, sF0))
        for i in range(6):
            a("v_add_u32 v2, %d, v1" % (64 * i))
            a("v_mul_u32_u24 v3, 2979, v2")
            a("v_lshrrev_b32 v3, 16, v3")
            a("v_mul_u32_u24 v4, 22, v3")
            a("v_sub_u32 v4, v2, v4")
            a("v_add_u32 v3, s%d, v3" % sT0)
            a("v_and_b32 v5, 0x73, v3")
            a("v_bfe_u32 v7, v3, 3, 1")
            a("v_lshl_add_u32 v5, v7, 2, v5")
            a("v_bfe_u32 v7, v3, 2, 1")
            a("v_lshl_add_u32 v5, v7, 3, v5")
            a("v_mul_u32_u24 v5, 2752, v5")
            a("v_lshl_add_u32 v5, v4, 4, v5")
            a("v_add_u32 v%d, s%d, v5" % (12 + i, sT1))
        a("s_mul_i32 s%d, s%d, %d" % (sM0B, sRW, 16 * 352))
        a("s_add_u32 s%d, s%d, %d" % (sM0B, sM0B, L_W1))
        a("s_lshl_b32 s%d, s%d, 7" % (sT0, sC))
        a("s_lshl_b32 s%d, s%d, 2" % (sT1, sR))
        a("s_add_u32 s%d, s%d, s%d" % (sT0, sT0, sT1))
        a("s_load_dword s%d, s[%d:%d], s%d" % (sDD, sDP, sDP + 1, sT0))

    def m_prep(self):
        a = self.a
        K, V, SH = 20, 32, 40
        WL, WH = 44, 48
        PL, PH = 52, 56
        PP, AC = 60, 64
        TA, TB = 68, 72
        KV = 76
        OUT = 92
        dma = self.w1_dma_ops(0) + self.w1_dma_ops(1) + self.w1_dma_ops(2)
        a.wait_vm("prep")
        self.stamp(12)
        seq = []; e = seq.append
        e("v_and_b32 v%d, v%d, v%d" % (WL + 0, vMLO, SH + 0)); e("v_lshrrev_b32 v%d, 16, v%d" % (WL + 1, SH + 0))
        e("v_and_b32 v%d, v%d, v%d" % (WL + 2, vMLO, SH + 1)); e("v_lshrrev_b32 v%d, 16, v%d" % (WL + 3, SH + 1))
        e("v_lshlrev_b32 v%d, 16, v%d" % (WH + 0, SH + 2)); e("v_and_b32 v%d, v%d, v%d" % (WH + 1, vMHI, SH + 2))
        e("v_lshlrev_b32 v%d, 16, v%d" % (WH + 2, SH + 3)); e("v_and_b32 v%d, v%d, v%d" % (WH + 3, vMHI, SH + 3))
        for hb in range(2):
            r0 = 4 * hb
            if "relax_prep" in self.exp:
                for r in range(4):
                    e("v_dot2_f32_bf16 v%d, v%d, v%d, 0" % (PL + r, K + r0 + r, WL + 3))
                    e("v_dot2_f32_bf16 v%d, v%d, v%d, 0" % (PH + r, K + r0 + r, WH + 3))
                for j in (2, 1, 0):
                    for r in range(4):
                        e("v_dot2_f32_bf16 v%d, v%d, v%d, v%d" % (PL + r, K + 3 + r0 + r - j, WL + j, PL + r))
                        e("v_dot2_f32_bf16 v%d, v%d, v%d, v%d" % (PH + r, K + 3 + r0 + r - j, WH + j, PH + r))
                for r in range(4):
                    e("v_cvt_pk_bf16_f32 v%d, v%d, v%d" % (AC + r, PL + r, PH + r))
            else:
                for j in (3, 2, 1, 0):
                    for r in range(4):
                        e("v_dot2_f32_bf16 v%d, v%d, v%d, 0" % (PL + r, K + 3 + r0 + r - j, WL + j))
                        e("v_dot2_f32_bf16 v%d, v%d, v%d, 0" % (PH + r, K + 3 + r0 + r - j, WH + j))
                    dstp = AC if j == 3 else PP
                    for r in range(4):
                        e("v_cvt_pk_bf16_f32 v%d, v%d, v%d" % (dstp + r, PL + r, PH + r))
                    if j != 3:
                        for r in range(4):
                            e("v_perm_b32 v%d, v%d, v%d, s%d" % (TA + r, PP + r, AC + r, sP0))
                            e("v_perm_b32 v%d, v%d, v%d, s%d" % (TB + r, PP + r, AC + r, sP1))
                        for r in range(4):
                            e("v_dot2_f32_bf16 v%d, v%d, v%d, 0" % (PL + r, TA + r, vONES))
                            e("v_dot2_f32_bf16 v%d, v%d, v%d, 0" % (PH + r, TB + r, vONES))
                        for r in range(4):
                            e("v_cvt_pk_bf16_f32 v%d, v%d, v%d" % (AC + r, PL + r, PH + r))
            for r in range(4):
                e("v_and_b32 v%d, v%d, v%d" % (TA + r, vMLO, V + r0 + r))
                e("v_and_b32 v%d, v%d, v%d" % (TB + r, vMHI, V + r0 + r))
            for r in range(4):
                e("v_dot2_f32_bf16 v%d, v%d, v%d, 0" % (KV + r0 + r, AC + r, TA + r))
                e("v_dot2_f32_bf16 v%d, v%d, v%d, 0" % (KV + 8 + r0 + r, AC + r, TB + r))
        e("v_and_b32 v2, 31, v0"); e("v_mul_u32_u24 v2, 288, v2"); e("v_lshrrev_b32 v3, 5, v0"); e("v_lshlrev_b32 v3, 4, v3")
        e("v_sub_u32 v2, v2, v3"); e("v_add_u32 v2, %d, v2" % (L_PREP + 112))
        for ch in range(2):
            for d in range(4):
                e("v_cvt_pk_bf16_f32 v%d, v%d, v%d" % (OUT + 4 * ch + d, KV + 8 * ch + 7 - 2 * d, KV + 8 * ch + 6 - 2 * d))
        self.spread(seq, dma)
        a("ds_write_b128 v2, v[%d:%d]" % (OUT, OUT + 3))
        a("ds_write_b128 v2, v[%d:%d] offset:144" % (OUT + 4, OUT + 7))
        a("v_and_b32 v3, 15, v0")
        a("v_lshlrev_b32 v3, 2, v3")
        a("v_add_u32 v3, %d, v3" % L_SYNC)
        a("v_mov_b32 v4, 0")
        a("ds_write_b32 v3, v4")
        a("v_lshrrev_b32 v2, 3, v0")
        a("v_and_b32 v3, 7, v0")
        a("v_mul_u32_u24 v4, 144, v2")
        a("v_lshl_add_u32 v4, v3, 4, v4")
        a("v_add_u32 v4, %d, v4" % L_PREP)
        a("s_lshl_b32 s%d, s%d, 18" % (sT0, sC))
        a("s_lshl_b32 s%d, s%d, 7" % (sT1, sR))
        a("s_sub_u32 s%d, s%d, s%d" % (sT0, sT0, sT1))
        a("s_add_u32 s%d, s%d, %d" % (sT0, sT0, WS_KVT + 3968))
        a("v_lshlrev_b32 v5, 12, v2")
        a("v_lshl_add_u32 v5, v3, 4, v5")
        a("v_add_u32 v5, s%d, v5" % sT0)
        a("v_add_u32 v6, %d, v5" % (32 * 4096))
        a.lg0()
        a("s_barrier")
        a("ds_read_b128 v[92:95], v4")
        a("ds_read_b128 v[96:99], v4 offset:%d" % (32 * 144))
        a.lg0()
        a.vmem("buffer_store_dwordx4 v[92:95], v5, s[%d:%d], 0 offen sc1" % (S_WS, S_WS + 3), "kvt")
        a.vmem("buffer_store_dwordx4 v[96:99], v6, s[%d:%d], 0 offen sc1" % (S_WS, S_WS + 3), "kvt")
        if not self.noflags:
            a("v_mov_b32 v7, 0")
            a.vmem("buffer_load_dword v19, v7, s[%d:%d], 0 offen sc1" % (S_DBG, S_DBG + 3), "nonce")

    def m_gemm1(self):
        a = self.a
        ACC = 20
        BUF = [68, 96, 124]
        AX = 8; AW = [9, 10, 11]
        UREG = 152
        for f in self.w1_dma_ops(3): f()
        a("v_and_b32 v2, 15, v1")
        a("v_lshrrev_b32 v3, 4, v1")
        a("v_lshlrev_b32 v4, 1, v3")
        a("v_xor_b32 v4, v2, v4")
        a("v_lshlrev_b32 v4, 4, v4")
        a("v_lshl_add_u32 v%d, v3, 8, v4" % AX)
        a("v_lshrrev_b32 v4, 1, v3")
        a("v_lshlrev_b32 v4, 4, v4")
        a("v_and_b32 v5, 1, v3")
        a("v_lshl_add_u32 v4, v5, 2, v4")
        a("v_lshrrev_b32 v5, 2, v2")
        a("v_add_u32 v4, v4, v5")
        a("v_mul_u32_u24 v4, 352, v4")
        a("v_and_b32 v5, 3, v1")
        a("v_lshl_add_u32 v4, v5, 3, v4")
        a("s_mul_i32 s%d, s%d, 96" % (sT0, sRW))
        a("s_add_u32 s%d, s%d, %d" % (sT0, sT0, L_W1))
        a("v_add_u32 v%d, s%d, v4" % (AW[0], sT0))
        a("v_add_u32 v%d, %d, v%d" % (AW[1], 2 * W1_SLOT, AW[0]))
        a("v_add_u32 v%d, %d, v%d" % (AW[2], 4 * W1_SLOT, AW[0]))
        a("v_lshlrev_b32 v5, 4, v2")
        a("v_lshrrev_b32 v4, 1, v3")
        a("v_lshl_add_u32 v5, v4, 8, v5")
        a("v_and_b32 v4, 1, v3")
        a("v_lshl_add_u32 v5, v4, 3, v5")
        a("s_lshr_b32 s%d, s%d, 4" % (sBP, sF0))
        a("s_mul_i32 s%d, s%d, %d" % (sT0, sR, 4 * 44032))
        a("s_mul_i32 s%d, s%d, 3" % (sT1, sRW))
        a("s_add_u32 s%d, s%d, s%d" % (sT2, sT1, sBP))
        a("s_lshl_b32 s%d, s%d, 9" % (sT2, sT2))
        a("s_add_u32 s%d, s%d, s%d" % (sT0, sT0, sT2))
        a("s_add_u32 s%d, s%d, 0x%x" % (sT0, sT0, WS_H))
        a("v_add_u32 v168, s%d, v5" % sT0)
        for tb in range(1, 4):
            a("v_add_u32 v%d, %d, v168" % (168 + tb, 44032 * tb))
        a("s_cmp_ge_u32 s%d, 6" % sC)
        a("s_cselect_b32 s%d, 10, 11" % sNB)
        for b, sr_ in ((1, sINV1), (2, sINV2)):
            a("s_add_u32 s%d, s%d, %d" % (sT2, sT1, b))
            a("s_cmp_lt_u32 s%d, s%d" % (sT2, sNB))
            a("s_cselect_b32 s%d, 0, 0x40000000" % sr_)
        for i in range(48):
            a("v_mov_b32 v%d, 0" % (ACC + i))

        def read_ops(ks):
            buf = BUF[ks % 3]
            j = ks >> 1; ksl = ks & 1; slot = j % NW1
            aw = AW[slot // 2]; so = (slot % 2) * W1_SLOT + ksl * 32 * 352
            def rx(t):
                return lambda: a.lds("ds_read_b128 v[%d:%d], v%d offset:%d" % (buf + 4 * t, buf + 4 * t + 3, AX, L_XN + (j % NXN) * 8192 + t * 2048 + ksl * 1024), "x%d_%d" % (ks, t))
            def rw(b, hh):
                r0 = buf + 16 + 4 * b + 2 * hh
                return lambda: a.lds("ds_read_b64_tr_b16 v[%d:%d], v%d offset:%d" % (r0, r0 + 1, aw, so + hh * 8 * 352 + b * 32), "w%d_%d" % (ks, b))
            if "mnoreads" in self.exp: return []
            return [rw(0, 0), rw(0, 1), rx(0), rx(1), rx(2), rx(3), rw(1, 0), rw(1, 1), rw(2, 0), rw(2, 1)]

        def mfma_ops(ks):
            cur = BUF[ks % 3]
            ops = []
            for b in range(3):
                for t in range(4):
                    def f(b=b, t=t):
                        a.need_lds("w%d_%d" % (ks, b), "x%d_%d" % (ks, t))
                        acc = ACC + (b * 4 + t) * 4
                        if "mnomfma" in self.exp: return
                        a("v_mfma_f32_16x16x32_bf16 v[%d:%d], v[%d:%d], v[%d:%d], v[%d:%d]" % (
                            acc, acc + 3, cur + 16 + 4 * b, cur + 19 + 4 * b, cur + 4 * t, cur + 4 * t + 3, acc, acc + 3))
                    ops.append(f)
            return ops

        a.wait_vm("w1c1")
        a("s_barrier")
        self.stamp(14)
        for f in read_ops(0): f()
        for f in read_ops(1)[:5]: f()
        pend = read_ops(1)[5:]
        for j in range(8):
            if j >= 1 and j <= 6:
                if not ("mnodma" in self.exp and j + 1 >= 5): a.wait_vm("w1c%d" % (j + 1))
                a("s_barrier")
                if "itst" in self.exp: self.stamp(22 + j)
                if j == 2 and not self.noflags: self.publish_h1()
            dm = self.w1_dma_ops(j + 4) if (j + 4 <= 7) else []
            if "mnodma" in self.exp:
                for _ in dm: a.vm.issue("w1c%d" % (j + 4))
                dm = []
            ex = []
            for half in range(2):
                ks = 2 * j + half
                fill = list(pend); pend = []
                if ks + 2 <= 15:
                    fill += read_ops(ks + 2)
                extra = (dm[:3] + ex if half == 0 else dm[3:])
                interleave(a, mfma_ops(ks), merge(fill, extra))
        a.lg0()
        self.stamp(2)
        HB = 68
        for i in range(12):
            a("v_cvt_pk_bf16_f32 v%d, v%d, v%d" % (HB + 2 * i, ACC + 4 * i, ACC + 4 * i + 1))
            a("v_cvt_pk_bf16_f32 v%d, v%d, v%d" % (HB + 2 * i + 1, ACC + 4 * i + 2, ACC + 4 * i + 3))
        for i in range(24):
            a("v_pk_max_i16 v%d, v%d, 0" % (HB + i, HB + i))
        for b in range(3):
            so = "0" if b == 0 else "s%d" % (sINV1 if b == 1 else sINV2)
            for t in range(4):
                r = HB + (b * 4 + t) * 2
                a.vmem("buffer_store_dwordx2 v[%d:%d], v%d, s[%d:%d], %s offen offset:%d sc1" % (r, r + 1, 168 + t, S_WS, S_WS + 3, so, 512 * b), "hst")
        a("s_barrier")

    def get_nonce(self):
        if self.noflags: return
        a = self.a
        a.wait_vm("nonce")
        lo = a.newlabel("L_nz"); lp = a.newlabel("L_nl")
        a("v_readfirstlane_b32 s%d, v19" % sNONCE)
        a("s_nop 3")
        a("s_cmp_lg_u32 s%d, 0" % sNONCE)
        a("s_cbranch_scc1 %s" % lo)
        a("s_mov_b32 s%d, 0" % sT3)
        a.label(lp)
        a("v_mov_b32 v7, 0")
        a("buffer_load_dword v19, v7, s[%d:%d], 0 offen sc1" % (S_DBG, S_DBG + 3))
        a("s_waitcnt vmcnt(0)")
        a("v_readfirstlane_b32 s%d, v19" % sNONCE)
        a("s_add_u32 s%d, s%d, 1" % (sT3, sT3))
        a("s_cmp_gt_u32 s%d, 100000" % sT3)
        a("s_cbranch_scc1 %s" % lo)
        a("s_cmp_eq_u32 s%d, 0" % sNONCE)
        a("s_cbranch_scc1 %s" % lp)
        a.label(lo)

    def flag_store(self, off_sreg, tag, va=2, vb=3):
        if self.noflags: return
        a = self.a
        a("v_mov_b32 v%d, s%d" % (va, off_sreg))
        a("v_mov_b32 v%d, s%d" % (vb, sNONCE))
        a("s_mov_b64 exec, 1")
        a.vmem("buffer_store_dword v%d, v%d, s[%d:%d], 0 offen sc1" % (vb, va, S_WS, S_WS + 3), tag)
        a("s_mov_b64 exec, -1")

    def publish_h1(self):
        a = self.a
        self.get_nonce()
        a.wait_vm("kvt")
        a("s_lshl_b32 s%d, s%d, 7" % (sT0, sID))
        a("s_lshl_b32 s%d, s%d, 2" % (sT2, sRW))
        a("s_add_u32 s%d, s%d, s%d" % (sT0, sT0, sT2))
        a("s_add_u32 s%d, s%d, 0x%x" % (sT0, sT0, F_H1))
        self.flag_store(sT0, "flag")

    def poll(self, base_sreg, nlanes, width, stride):
        if self.noflags: return
        a = self.a
        lp = a.newlabel("L_poll"); dn = a.newlabel("L_pdone")
        a("v_mul_u32_u24 v2, %d, v1" % stride)
        a("v_add_u32 v2, s%d, v2" % base_sreg)
        a("s_mov_b32 s%d, 0" % sT3)
        if nlanes <= 16: a("s_mov_b64 exec, 0x%x" % ((1 << nlanes) - 1))
        else:
            a("s_mov_b32 exec_lo, -1"); a("s_mov_b32 exec_hi, 0")
        a.label(lp)
        if width == 1:
            a("buffer_load_dword v4, v2, s[%d:%d], 0 offen sc1" % (S_WS, S_WS + 3))
            a("s_waitcnt vmcnt(0)")
            a("v_cmp_ne_u32 vcc, s%d, v4" % sNONCE)
        else:
            a("buffer_load_dwordx4 v[4:7], v2, s[%d:%d], 0 offen sc1" % (S_WS, S_WS + 3))
            a("s_waitcnt vmcnt(0)")
            for i in range(4): a("v_xor_b32 v%d, s%d, v%d" % (4 + i, sNONCE, 4 + i))
            a("v_or3_b32 v4, v4, v5, v6")
            a("v_or_b32 v4, v4, v7")
            a("v_cmp_ne_u32 vcc, 0, v4")
        a("s_add_u32 s%d, s%d, 1" % (sT3, sT3))
        a("s_cmp_gt_u32 s%d, 100000" % sT3)
        a("s_cbranch_scc1 %s" % dn)
        a("s_cbranch_vccnz %s" % lp)
        a.label(dn)
        a("s_mov_b64 exec, -1")

    def lds_wait(self, addr_sreg, val=1, va=16, vb=17):
        a = self.a
        lp = a.newlabel("L_ps"); dn = a.newlabel("L_psd")
        a("v_mov_b32 v%d, s%d" % (va, addr_sreg))
        a("s_mov_b32 s%d, 0" % sT3)
        a.label(lp)
        a("ds_read_b32 v%d, v%d" % (vb, va))
        a("s_waitcnt lgkmcnt(0)")
        a("v_readfirstlane_b32 s4, v%d" % vb)
        a("s_add_u32 s%d, s%d, 1" % (sT3, sT3))
        a("s_cmp_ge_u32 s4, %d" % val)
        a("s_cbranch_scc1 %s" % dn)
        a("s_cmp_lt_u32 s%d, 1000000" % sT3)
        a("s_cbranch_scc1 %s" % lp)
        a.label(dn)
        a.lg_clear()

    def pair_sync(self, stage, va=16, vb=17):
        a = self.a
        a("s_lshl_b32 s4, s%d, 2" % sRW)
        a("s_add_u32 s4, s4, %d" % (L_SYNC + 16 * stage))
        a("s_xor_b32 s5, s4, 4")
        a("v_mov_b32 v%d, s4" % va)
        a("v_mov_b32 v%d, 1" % vb)
        a.lg0()
        a("ds_write_b32 v%d, v%d" % (va, vb))
        self.lds_wait(5, 1, va, vb)

    def m_conv(self):
        a = self.a
        BF, ACC, AF, NA = 20, 148, 180, 16
        AU, AT = 2, 3
        a("v_and_b32 v8, 15, v1")
        a("v_lshrrev_b32 v9, 4, v1")
        a("v_lshlrev_b32 v10, 4, v9")
        a("v_lshlrev_b32 v11, 5, v8")
        a("v_sub_u32 v10, v10, v11")
        a("s_lshr_b32 s%d, s%d, 1" % (sT0, sRW))
        a("s_and_b32 s%d, s%d, 1" % (sT1, sRW))
        a("s_mul_i32 s%d, s%d, %d" % (sT2, sT0, U_CH))
        a("s_add_u32 s%d, s%d, %d" % (sT2, sT2, L_U + 2 * 2032 - 64 * 56))
        a("s_lshl_b32 s4, s%d, 6" % sT1)
        a("s_add_u32 s%d, s%d, s4" % (sT2, sT2))
        a("v_add_u32 v%d, s%d, v10" % (AU, sT2))
        a("v_and_b32 v10, 3, v8")
        a("v_mul_u32_u24 v10, %d, v10" % T_CP)
        a("v_lshrrev_b32 v11, 2, v8")
        a("v_lshl_add_u32 v10, v11, 3, v10")
        a("v_lshl_add_u32 v10, v9, 4, v10")
        a("s_mul_i32 s%d, s%d, %d" % (sT2, sT0, T_CH))
        a("s_add_u32 s%d, s%d, s4" % (sT2, sT2))
        a("s_add_u32 s%d, s%d, %d" % (sT2, sT2, L_T))
        a("v_add_u32 v%d, s%d, v10" % (AT, sT2))
        a("v_lshl_add_u32 v10, v9, 3, v8")
        a("s_lshl_b32 s4, s%d, 5" % sT1)
        a("v_add_u32 v10, s4, v10")
        MK = 12
        for d in range(4):
            a("v_sub_u32 v11, %d, v10" % (15 - 2 * d))
            a("v_med3_i32 v11, v11, 0, 2")
            a("v_lshlrev_b32 v11, 4, v11")
            a("v_mov_b32 v%d, -1" % (MK + d))
            a("v_lshlrev_b32 v16, v11, v%d" % (MK + d))
            a("v_cmp_eq_u32 vcc, 32, v11")
            a("v_cndmask_b32_e64 v%d, v16, 0, vcc" % (MK + d))
        for i in range(32):
            a("v_mov_b32 v%d, 0" % (ACC + i))
        def emit_A(ee):
            r = AF + 4 * (ee % NA)
            a.lds("ds_read_b64 v[%d:%d], v%d offset:%d" % (r, r + 1, AT, 128 * ee), ("A", ee))
            a.lds("ds_read_b64 v[%d:%d], v%d offset:%d" % (r + 2, r + 3, AT, 128 * ee + 8), ("A", ee))
        def emit_B(idx):
            r = BF + 4 * idx
            a.lds("ds_read_b128 v[%d:%d], v%d offset:%d" % (r, r + 3, AU, 128 * idx), ("B", idx))
        sched = []
        for ee in range(32):
            for j in range(7, (ee >> 2) - 1, -1):
                sched.append((ee, j, 28 - 4 * j + ee))
        order = []; seen = set(); last_use_A = {}
        for n, (ee, j, idx) in enumerate(sched):
            for it in (("A", ee), ("B", idx)):
                if it not in seen:
                    seen.add(it); order.append(it)
            last_use_A[ee] = n
        ptr = 0; issued = set()
        def can_issue(item, n):
            if item[0] == "A" and item[1] >= NA:
                return last_use_A[item[1] - NA] < n
            return True
        def issue_next(n_now):
            nonlocal ptr
            if ptr < len(order) and can_issue(order[ptr], n_now):
                it = order[ptr]
                (emit_A if it[0] == "A" else emit_B)(it[1])
                issued.add(it); ptr += 1
                return True
            return False
        def inflight():
            return len(a.lg.q) - a.lg_done
        while inflight() < 12 and issue_next(0): pass
        masked = False
        for n, (ee, j, idx) in enumerate(sched):
            while ("A", ee) not in issued or ("B", idx) not in issued:
                assert issue_next(n)
            a.need_lds(("A", ee), ("B", idx))
            ar = AF + 4 * (ee % NA); br = BF + 4 * idx; acc = ACC + 4 * j
            if ee == 0 and not masked:
                for d in range(4): a("v_and_b32 v%d, v%d, v%d" % (ar + d, MK + d, ar + d))
                masked = True
            a("v_mfma_f32_16x16x32_bf16 v[%d:%d], v[%d:%d], v[%d:%d], v[%d:%d]" % (acc, acc + 3, ar, ar + 3, br, br + 3, acc, acc + 3))
            if inflight() < 13:
                issue_next(n + 1)
                if n < 40 and inflight() < 13: issue_next(n + 1)
            if n == 100 and not self.noflags:
                a.wait_vm("hst")
                a("s_lshl_b32 s4, s%d, 3" % sR)
                a("s_add_u32 s4, s4, s%d" % sC)
                a("s_lshl_b32 s4, s4, 7")
                a("s_lshl_b32 s5, s%d, 2" % sRW)
                a("s_add_u32 s4, s4, s5")
                a("s_add_u32 s%d, s4, 0x%x" % (sT2, F_H2))
                self.flag_store(sT2, "flag", 4, 5)
        self.stamp(16)
        self.pair_sync(0)
        a("v_lshlrev_b32 v4, 4, v1")
        a("s_mul_i32 s%d, s%d, %d" % (sT0, sT0, T_CH))
        a("s_add_u32 s%d, s%d, %d" % (sT0, sT0, L_T + 8))
        a("s_lshl_b32 s%d, s%d, 12" % (sT2, sT1))
        a("s_add_u32 s%d, s%d, s%d" % (sT2, sT2, sT0))
        a("v_add_u32 v5, s%d, v4" % sT2)
        a("s_xor_b32 s%d, s%d, 1" % (sT2, sT1))
        a("s_lshl_b32 s%d, s%d, 12" % (sT2, sT2))
        a("s_add_u32 s%d, s%d, s%d" % (sT2, sT2, sT0))
        a("v_add_u32 v6, s%d, v4" % sT2)
        l0 = a.newlabel("L_cr0"); l1 = a.newlabel("L_cr1")
        a("s_cmp_eq_u32 s%d, 0" % sT1)
        a("s_cbranch_scc1 %s" % l0)
        for i in range(4):
            a("ds_write_b128 v5, v[%d:%d] offset:%d" % (ACC + 4 * i, ACC + 4 * i + 3, 1024 * i))
        for i in range(16):
            a("v_mov_b32 v%d, v%d" % (200 + i, ACC + 16 + i))
        a("s_branch %s" % l1)
        a.label(l0)
        for i in range(4):
            a("ds_write_b128 v5, v[%d:%d] offset:%d" % (ACC + 16 + 4 * i, ACC + 16 + 4 * i + 3, 1024 * i))
        for i in range(16):
            a("v_mov_b32 v%d, v%d" % (200 + i, ACC + i))
        a.label(l1)
        a("v_and_b32 v4, 15, v1")
        a("v_lshrrev_b32 v7, 4, v1")
        a("v_lshlrev_b32 v4, 5, v4")
        a("v_lshl_add_u32 v4, v7, 3, v4")
        a("s_lshr_b32 s%d, s%d, 1" % (sT0, sRW))
        a("s_mul_i32 s%d, s%d, %d" % (sT2, sT0, U_CH))
        a("s_add_u32 s%d, s%d, %d" % (sT2, sT2, L_U + 2 * 2044 - 3 * 512))
        a("s_lshl_b32 s4, s%d, 11" % sT1)
        a("s_sub_u32 s%d, s%d, s4" % (sT2, sT2))
        a("v_sub_u32 v4, s%d, v4" % sT2)
        for i in range(4):
            a("ds_read_b64 v[%d:%d], v4 offset:%d" % (236 + 2 * i, 237 + 2 * i, (3 - i) * 512))
        a("s_and_b32 s4, s%d, 0xffff" % sDD)
        a("s_lshr_b32 s5, s%d, 16" % sDD)
        a("s_cmp_eq_u32 s%d, 0" % sT0)
        a("s_cselect_b32 s4, s4, s5")
        a("s_lshl_b32 s5, s4, 16")
        a("v_mov_b32 v8, s4")
        a("v_mov_b32 v9, s5")
        self.pair_sync(1)
        for i in range(4):
            a("ds_read_b128 v[%d:%d], v6 offset:%d" % (220 + 4 * i, 223 + 4 * i, 1024 * i))
        TT = 148
        for i in range(4):
            u0, u1 = 236 + 2 * i, 237 + 2 * i
            a("v_dot2_f32_bf16 v%d, v%d, v9, 0" % (TT + 4 * i + 0, u1))
            a("v_dot2_f32_bf16 v%d, v%d, v8, 0" % (TT + 4 * i + 1, u1))
            a("v_dot2_f32_bf16 v%d, v%d, v9, 0" % (TT + 4 * i + 2, u0))
            a("v_dot2_f32_bf16 v%d, v%d, v8, 0" % (TT + 4 * i + 3, u0))
        TB = 164
        for i in range(4):
            a("v_cvt_pk_bf16_f32 v%d, v%d, v%d" % (TB + 2 * i, TT + 4 * i, TT + 4 * i + 1))
            a("v_cvt_pk_bf16_f32 v%d, v%d, v%d" % (TB + 2 * i + 1, TT + 4 * i + 2, TT + 4 * i + 3))
        a("v_and_b32 v4, 15, v1")
        a("v_lshrrev_b32 v5, 2, v4")
        a("v_lshlrev_b32 v5, 16, v5")
        a("v_and_b32 v4, 3, v4")
        a("v_lshl_add_u32 v5, v4, 5, v5")
        a("v_lshrrev_b32 v7, 4, v1")
        a("v_lshl_add_u32 v5, v7, 3, v5")
        a("s_lshl_b32 s%d, s%d, 6" % (sT2, sC))
        a("s_lshl_b32 s4, s%d, 1" % sR)
        a("s_add_u32 s%d, s%d, s4" % (sT2, sT2))
        a("s_add_u32 s%d, s%d, s%d" % (sT2, sT2, sT0))
        a("s_lshl_b32 s%d, s%d, 7" % (sT2, sT2))
        a("s_lshl_b32 s4, s%d, 20" % sT1)
        a("s_add_u32 s%d, s%d, s4" % (sT2, sT2))
        a("s_add_u32 s%d, s%d, 0x%x" % (sT2, sT2, WS_YT))
        a("v_add_u32 v5, s%d, v5" % sT2)
        a.lg0()
        for i in range(16):
            a("v_add_f32 v%d, v%d, v%d" % (200 + i, 200 + i, 220 + i))
        YB = 172
        for i in range(8):
            a("v_cvt_pk_bf16_f32 v%d, v%d, v%d" % (YB + i, 200 + 2 * i, 201 + 2 * i))
        for i in range(8):
            a("v_perm_b32 v%d, v%d, v%d, s%d" % (200 + 2 * i, TB + i, YB + i, sP0))
            a("v_perm_b32 v%d, v%d, v%d, s%d" % (201 + 2 * i, TB + i, YB + i, sP1))
        for i in range(16):
            a("v_dot2_f32_bf16 v%d, v%d, v%d, 0" % (220 + i, 200 + i, vONES))
        for i in range(8):
            a("v_cvt_pk_bf16_f32 v%d, v%d, v%d" % (180 + i, 220 + 2 * i, 221 + 2 * i))
        for i in range(4):
            if i: a("v_add_u32 v5, 0x40000, v5")
            a.vmem("buffer_store_dwordx2 v[%d:%d], v5, s[%d:%d], 0 offen sc1" % (180 + 2 * i, 181 + 2 * i, S_WS, S_WS + 3), "yst")
        self.stamp(17)

    def w2_voff(self):
        a = self.a
        a("v_lshrrev_b32 v2, 3, v1")
        a("v_and_b32 v2, 3, v2")
        a("v_lshrrev_b32 v3, 5, v1")
        a("v_lshl_add_u32 v2, v3, 3, v2")
        a("v_lshlrev_b32 v2, 10, v2")
        a("v_lshrrev_b32 v3, 4, v1")
        a("v_and_b32 v3, 3, v3")
        a("v_lshlrev_b32 v3, 1, v3")
        a("v_and_b32 v4, 7, v1")
        a("v_xor_b32 v3, v3, v4")
        a("v_lshl_add_u32 v2, v3, 4, v2")
        a("s_lshl_b32 s%d, s%d, 7" % (sT0, sC))
        a("v_add_u32 v14, s%d, v2" % sT0)

    def w2_dma(self, lds_base_sreg, lds_off, src_base_sreg, ks_off, tag):
        a = self.a
        a("s_add_u32 s%d, s%d, %d" % (sT2, src_base_sreg, ks_off * 32768))
        for m in range(4):
            a("s_add_u32 m0, s%d, %d" % (lds_base_sreg, lds_off + 1024 * m))
            if m: a("s_add_u32 s%d, s%d, %d" % (sT2, sT2, [0, 4096, 12288, 4096][m]))
            a.vmem("buffer_load_dwordx4 v14, s[%d:%d], s%d offen lds" % (S_W2, S_W2 + 3, sT2), tag)

    def m_tail(self):
        a = self.a
        self.w2_voff()
        a("s_lshr_b32 s75, s%d, 1" % sRW)
        a("s_and_b32 s76, s%d, 1" % sRW)
        a("s_mul_i32 s70, s75, %d" % (22 * 32768))
        a("v_mov_b32 v16, %d" % (L_SYNC + 48))
        a("v_mov_b32 v17, 1")
        a.lg0()
        a("s_mov_b64 exec, 1")
        a("ds_add_u32 v16, v17")
        a("s_mov_b64 exec, -1")
        a("s_mov_b32 s5, %d" % (L_SYNC + 48))
        self.lds_wait(5, 4)
        a("s_mul_i32 s71, s75, 20480")
        a("s_add_u32 s71, s71, %d" % L_A)
        a("s_lshl_b32 s4, s76, 12")
        a("s_add_u32 s71, s71, s4")
        a("s_lshl_b32 s4, s76, 15")
        a("s_add_u32 s70, s70, s4")
        self.w2_dma(71, 0, 70, 12, "w2a")
        self.w2_dma(71, 8192, 70, 14, "w2a")
        sk = a.newlabel("L_ma")
        a("s_cmp_eq_u32 s76, 1")
        a("s_cbranch_scc1 %s" % sk)
        q = list(a.vm.q)
        self.w2_dma(71, 16384, 70, 16, "w2a")
        a.vm.q = q
        a.label(sk)
        self.final_x_load(240, 244)
        a("s_waitcnt vmcnt(0)")
        a.vm.q = []
        if not self.noflags:
            a("s_lshl_b32 s4, s%d, 7" % sID)
            a("s_lshl_b32 s5, s%d, 2" % sRW)
            a("s_add_u32 s4, s4, s5")
            a("s_add_u32 s%d, s4, 0x%x" % (sT2, F_H3))
            self.flag_store(sT2, "flag", 2, 3)
        self.stamp(18)
        a("s_barrier")
        a("s_mul_i32 s71, s75, %d" % B_HALF)
        a("s_lshl_b32 s4, s76, 12")
        a("s_add_u32 s71, s71, s4")
        if L_B: a("s_add_u32 s71, s71, %d" % L_B)
        self.w2_dma(71, 0, 70, 18, "w2l")
        self.w2_dma(71, 8192, 70, 20, "w2l")
        a("s_waitcnt vmcnt(0)")
        a("s_barrier")
        if not self.noflags:
            a("s_lshl_b32 s%d, s%d, 12" % (sT0, sC))
            a("s_add_u32 s%d, s%d, 0x%x" % (sT0, sT0, F_H3))
            self.poll(sT0, 32, 4, 128)
        self.stamp(7)
        a("v_lshrrev_b32 v3, 2, v0")
        a("v_and_b32 v4, 3, v0")
        a("v_lshlrev_b32 v5, 7, v3")
        a("v_lshl_add_u32 v5, v4, 5, v5")
        a("s_lshl_b32 s%d, s%d, 16" % (sT0, sR))
        a("s_lshl_b32 s%d, s%d, 13" % (sT1, sC))
        a("s_add_u32 s%d, s%d, s%d" % (sT0, sT0, sT1))
        a("s_add_u32 s%d, s%d, 0x%x" % (sT0, sT0, WS_YT))
        a("v_add_u32 v5, s%d, v5" % sT0)
        a.vmem("buffer_load_dwordx4 v[20:23], v5, s[%d:%d], 0 offen sc1" % (S_WS, S_WS + 3), "y")
        a.vmem("buffer_load_dwordx4 v[24:27], v5, s[%d:%d], 0 offen offset:16 sc1" % (S_WS, S_WS + 3), "y")
        a("v_mul_u32_u24 v6, 144, v3")
        a("v_lshl_add_u32 v6, v4, 5, v6")
        a("v_add_u32 v6, %d, v6" % L_Y)
        a("s_waitcnt vmcnt(0)")
        a("ds_write_b128 v6, v[20:23]")
        a("ds_write_b128 v6, v[24:27] offset:16")
        a.lg0()
        a("s_barrier")

    def final_x_load(self, xr, ar):
        a = self.a
        a("s_and_b32 s%d, s%d, 3" % (sT0, sW))
        a("s_lshl_b32 s%d, s%d, 4" % (sT0, sT0))
        a("s_lshl_b32 s%d, s%d, 6" % (sT1, sR))
        a("s_add_u32 s%d, s%d, s%d" % (sT0, sT0, sT1))
        a("s_lshl_b32 s%d, s%d, 10" % (sT0, sT0))
        a("s_lshl_b32 s%d, s%d, 7" % (sT1, sC))
        a("s_add_u32 s%d, s%d, s%d" % (sT0, sT0, sT1))
        a("s_lshr_b32 s%d, s%d, 2" % (sT1, sW))
        a("s_lshl_b32 s%d, s%d, 6" % (sT1, sT1))
        a("s_add_u32 s%d, s%d, s%d" % (sT0, sT0, sT1))
        a("v_lshrrev_b32 v2, 2, v1")
        a("v_lshlrev_b32 v2, 10, v2")
        a("v_and_b32 v3, 3, v1")
        a("v_lshl_add_u32 v2, v3, 4, v2")
        a("v_add_u32 v%d, s%d, v2" % (ar, sT0))
        a.vmem("buffer_load_dwordx4 v[%d:%d], v%d, s[%d:%d], 0 offen" % (xr, xr + 3, ar, S_X, S_X + 3), "xf")

    def u_slow(self):
        a = self.a
        a.label("L_uslow")
        a("s_lshl_b32 s%d, s%d, 12" % (sT0, sC))
        a("s_add_u32 s%d, s%d, 0x%x" % (sT0, sT0, F_H1))
        self.poll(sT0, 32, 1, 128)
        for i in range(4):
            a("buffer_load_dwordx4 v[%d:%d], v172, s[%d:%d], 0 offen offset:%d sc1" % (152 + 4 * i, 155 + 4 * i, S_WS, S_WS + 3, 1024 * i))
        a("s_waitcnt vmcnt(0)")
        for i in range(4):
            a("ds_write_b128 v174, v[%d:%d] offset:%d" % (152 + 4 * i, 155 + 4 * i, 1024 * i))
        a("s_waitcnt lgkmcnt(0)")
        a("s_branch L_uback")

    NEGM, RS, NMRS = 100, 101, 102
    def norm2(self, X, t):
        L = []
        L.append("v_lshlrev_b32 v%d, 16, v%d" % (t + 0, X))
        L.append("v_and_b32 v%d, v%d, v%d" % (t + 1, vMHI, X))
        L.append("v_lshlrev_b32 v%d, 16, v%d" % (t + 2, X + 1))
        L.append("v_and_b32 v%d, v%d, v%d" % (t + 3, vMHI, X + 1))
        if self.relax_ln:
            for i in range(4):
                L.append("v_fma_f32 v%d, v%d, v%d, v%d" % (t + i, t + i, self.RS, self.NMRS))
        else:
            for i in range(4):
                L.append("v_add_f32 v%d, v%d, v%d" % (t + i, t + i, self.NEGM))
            L.append("v_cvt_pk_bf16_f32 v%d, v%d, v%d" % (t + 4, t + 0, t + 1))
            L.append("v_cvt_pk_bf16_f32 v%d, v%d, v%d" % (t + 5, t + 2, t + 3))
            L.append("v_lshlrev_b32 v%d, 16, v%d" % (t + 0, t + 4))
            L.append("v_and_b32 v%d, v%d, v%d" % (t + 1, vMHI, t + 4))
            L.append("v_lshlrev_b32 v%d, 16, v%d" % (t + 2, t + 5))
            L.append("v_and_b32 v%d, v%d, v%d" % (t + 3, vMHI, t + 5))
            for i in range(4):
                L.append("v_mul_f32 v%d, v%d, v%d" % (t + i, t + i, self.RS))
        L.append("v_cvt_pk_bf16_f32 v%d, v%d, v%d" % (X, t + 0, t + 1))
        L.append("v_cvt_pk_bf16_f32 v%d, v%d, v%d" % (X + 1, t + 2, t + 3))
        return L

    def norm_chunk(self, j):
        a = self.a
        X = 20 + 8 * j
        for half in range(2):
            s1 = self.norm2(X + 4 * half, 104); s2 = self.norm2(X + 4 * half + 2, 110)
            for x, y in zip(s1, s2):
                a(x); a(y)
            a.lds("ds_write_b128 v116, v[%d:%d] offset:%d" % (X + 4 * half, X + 4 * half + 3, L_XN + (j % NXN) * 8192 + half * 1024), "xw")

    def h_front(self):
        a = self.a
        a.vm = Q(); a.lg_clear()
        a("s_setprio 1")
        a("s_lshl_b32 s%d, s%d, 16" % (sT0, sR))
        a("s_lshl_b32 s%d, s%d, 14" % (sT1, sRW))
        a("s_add_u32 s%d, s%d, s%d" % (sT0, sT0, sT1))
        a("v_lshrrev_b32 v6, 2, v1")
        a("v_lshlrev_b32 v6, 10, v6")
        a("v_and_b32 v7, 3, v1")
        a("v_lshl_add_u32 v6, v7, 4, v6")
        a("v_add_u32 v6, s%d, v6" % sT0)
        a("s_lshl_b32 s%d, s%d, 7" % (sT0, sROT))
        a.lg0()
        if self.stamps:
            a("s_memrealtime s[4:5]"); a.lg0(); a("v_writelane_b32 v255, s4, 0")
        for j in range(8):
            if j:
                a("s_add_u32 s%d, s%d, 128" % (sT0, sT0))
                a("s_and_b32 s%d, s%d, 1023" % (sT0, sT0))
            a.vmem("buffer_load_dwordx4 v[%d:%d], v6, s[%d:%d], s%d offen" % (20 + 8 * j, 23 + 8 * j, S_X, S_X + 3, sT0), "x")
            a.vmem("buffer_load_dwordx4 v[%d:%d], v6, s[%d:%d], s%d offen offset:64" % (24 + 8 * j, 27 + 8 * j, S_X, S_X + 3, sT0), "x")
        a("s_setprio 0")
        if not self.noflags:
            a("v_mov_b32 v7, 0")
        a("v_lshrrev_b32 v4, 2, v1")
        a("v_and_b32 v5, 3, v1")
        a("v_lshlrev_b32 v2, 1, v5")
        a("v_xor_b32 v4, v4, v2")
        a("v_lshlrev_b32 v4, 4, v4")
        a("v_lshl_add_u32 v4, v5, 8, v4")
        a("s_lshl_b32 s%d, s%d, 11" % (sT2, sRW))
        a("v_add_u32 v116, s%d, v4" % sT2)

    def h_ssm_load(self):
        a = self.a
        a("s_lshl_b32 s%d, s%d, 6" % (sT2, sC))
        a("s_lshl_b32 s%d, s%d, 1" % (sT1, sR))
        a("s_add_u32 s%d, s%d, s%d" % (sT2, sT2, sT1))
        a("s_lshl_b32 s%d, s%d, 12" % (sT2, sT2))
        a("v_and_b32 v3, 255, v0")
        a("v_lshlrev_b32 v3, 4, v3")
        a("v_add_u32 v2, s%d, v3" % sT2)
        a("v_add_u32 v4, -8, v2")
        for ch in range(2):
            a.vmem("buffer_load_dwordx2 v[%d:%d], v4, s[%d:%d], 0 offen" % (84 + 6 * ch, 85 + 6 * ch, S_SSM, S_SSM + 3), "ssm")
            a.vmem("buffer_load_dwordx4 v[%d:%d], v2, s[%d:%d], 0 offen" % (86 + 6 * ch, 89 + 6 * ch, S_SSM, S_SSM + 3), "ssm")
            if ch == 0:
                a("v_add_u32 v2, 4096, v2")
                a("v_add_u32 v4, 4096, v4")

    def h_stats(self):
        a = self.a
        X = 20
        a.wait_vm("x")
        self.stamp(13)
        for i in range(8): a("v_mov_b32 v%d, 0" % (104 + i))
        for i in range(64):
            a("v_dot2_f32_bf16 v%d, v%d, v%d, v%d" % (104 + (i & 3), X + i, vONES, 104 + (i & 3)))
            a("v_dot2_f32_bf16 v%d, v%d, v%d, v%d" % (108 + (i & 3), X + i, X + i, 108 + (i & 3)))
        a("v_add_f32 v104, v104, v105"); a("v_add_f32 v106, v106, v107")
        a("v_add_f32 v108, v108, v109"); a("v_add_f32 v110, v110, v111")
        a("v_add_f32 v2, v104, v106"); a("v_add_f32 v3, v108, v110")
        for ctl in ("quad_perm:[1,0,3,2]", "quad_perm:[2,3,0,1]"):
            a("v_add_f32_dpp v2, v2, v2 %s row_mask:0xf bank_mask:0xf" % ctl)
            a("v_add_f32_dpp v3, v3, v3 %s row_mask:0xf bank_mask:0xf" % ctl)
        a("v_mul_f32 v2, 0x3b000000, v2")
        a("v_mul_f32 v3, 0x3b000000, v3")
        a("v_cvt_pk_bf16_f32 v4, v2, v2")
        a("v_fma_f32 v3, -v2, v2, v3")
        a("v_lshlrev_b32 v4, 16, v4")
        a("v_max_f32 v3, 0, v3")
        a("v_cvt_pk_bf16_f32 v3, v3, v3")
        a("v_lshlrev_b32 v3, 16, v3")
        a("v_add_f32 v3, 0x3727c5ac, v3")
        a("v_cvt_pk_bf16_f32 v3, v3, v3")
        a("v_lshlrev_b32 v3, 16, v3")
        a("v_sqrt_f32 v3, v3")
        a("v_cvt_pk_bf16_f32 v3, v3, v3")
        a("v_lshlrev_b32 v3, 16, v3")
        a("v_rcp_f32 v%d, v3" % self.RS)
        a("v_sub_f32 v%d, 0, v4" % self.NEGM)
        a("v_mul_f32 v%d, v%d, v%d" % (self.NMRS, self.NEGM, self.RS))
        a("v_lshrrev_b32 v6, 2, v1")
        a("s_lshl_b32 s%d, s%d, 4" % (sT2, sRW))
        a("v_add_u32 v6, s%d, v6" % sT2)
        a("v_lshlrev_b32 v5, 3, v6")
        a("v_add_u32 v5, %d, v5" % L_STATS)
        a("v_mov_b32 v2, v4")
        a("v_mov_b32 v3, v%d" % self.RS)
        a.lds("ds_write_b64 v5, v[2:3]", "st")

    def h_tbuild(self, ch):
        a = self.a
        D = 84 + 6 * ch
        E = 118
        for p in range(5):
            a("v_alignbit_b32 v%d, v%d, v%d, 16" % (E + p, D + p + 1, D + p))
        for p in range(4):
            a("v_mov_b32 v%d, v%d" % (124 + p, D + 1 + p))
            a("v_mov_b32 v%d, v%d" % (128 + p, E + 1 + p))
        a("v_and_b32 v3, 255, v0")
        a("v_lshlrev_b32 v3, 4, v3")
        a("v_add_u32 v3, %d, v3" % (L_T + ch * T_CH + 24))
        a("ds_write_b128 v3, v[118:121]")
        a("ds_write_b128 v3, v[124:127] offset:%d" % T_CP)
        a("ds_write_b128 v3, v[128:131] offset:%d" % (2 * T_CP))
        a("ds_write_b128 v3, v[%d:%d] offset:%d" % (D + 2, D + 5, 3 * T_CP))

    def h_uload(self):
        a = self.a
        if not self.noflags:
            a("s_lshl_b32 s%d, s%d, 12" % (sT0, sC))
            a("s_add_u32 s%d, s%d, 0x%x" % (sT0, sT0, F_H1))
            self.poll(sT0, 32, 4, 128)
        self.stamp(3)
        a("s_lshl_b32 s%d, s%d, 6" % (sT0, sC))
        a("s_lshl_b32 s%d, s%d, 1" % (sT1, sR))
        a("s_add_u32 s%d, s%d, s%d" % (sT0, sT0, sT1))
        a("s_lshl_b32 s%d, s%d, 12" % (sT0, sT0))
        a("s_lshl_b32 s%d, s%d, 11" % (sT1, sRW))
        a("s_add_u32 s%d, s%d, s%d" % (sT0, sT0, sT1))
        a("v_lshlrev_b32 v4, 4, v1")
        a("v_add_u32 v5, s%d, v4" % sT0)
        a.vmem("buffer_load_dwordx4 v[20:23], v5, s[%d:%d], 0 offen sc1" % (S_WS, S_WS + 3), "u")
        a.vmem("buffer_load_dwordx4 v[24:27], v5, s[%d:%d], 0 offen offset:1024 sc1" % (S_WS, S_WS + 3), "u")
        a("s_lshr_b32 s%d, s%d, 1" % (sT0, sRW))
        a("s_mul_i32 s%d, s%d, %d" % (sT0, sT0, U_CH))
        a("s_and_b32 s%d, s%d, 1" % (sT1, sRW))
        a("s_lshl_b32 s%d, s%d, 11" % (sT2, sT1))
        a("s_add_u32 s%d, s%d, s%d" % (sT0, sT0, sT2))
        a("s_add_u32 s%d, s%d, %d" % (sT0, sT0, L_U))
        a("v_add_u32 v6, s%d, v4" % sT0)
        for i in range(4): a("v_mov_b32 v%d, 0" % (28 + i))
        a("s_cmp_eq_u32 s%d, 1" % sT1)
        a("s_cselect_b32 exec_lo, -1, 0")
        a("s_mov_b32 exec_hi, 0")
        a("ds_write_b128 v6, v[28:31] offset:2048")
        a("s_mov_b64 exec, -1")
        a.wait_vm("u")
        a("ds_write_b128 v6, v[20:23]")
        a("ds_write_b128 v6, v[24:27] offset:1024")

    def norm_seq(self, j):
        a = self.a
        X = 20 + 8 * j
        seq = []
        for half in range(2):
            s1 = self.norm2(X + 4 * half, 104); s2 = self.norm2(X + 4 * half + 2, 110)
            if "hnonorm" in self.exp and j >= 2:
                s1 = ["s_nop 0"] * 8; s2 = ["s_nop 0"] * 8
            for x, y in zip(s1, s2):
                seq.append(x); seq.append(y)
            if "hnowrite" in self.exp and j >= 2: continue
            seq.append(lambda half=half: a.lds("ds_write_b128 v116, v[%d:%d] offset:%d" % (X + 4 * half, X + 4 * half + 3, L_XN + (j % NXN) * 8192 + half * 1024), "xw%d" % j))
        return seq

    def h_gemm1_side(self):
        a = self.a
        for x in self.norm_seq(0): self.run(x)
        s1 = self.norm_seq(1)
        h = len(s1) // 2
        for x in s1[:h]: self.run(x)
        a("s_barrier")
        for x in s1[h:]: self.run(x)
        if not self.noflags:
            a.vmem("buffer_load_dword v19, v7, s[%d:%d], 0 offen sc1" % (S_DBG, S_DBG + 3), "nonce")
        s2 = self.norm_seq(2)
        for x in s2[:h]: self.run(x)
        a.need_lds("xw0", "xw1")
        a("s_barrier")
        for x in s2[h:]: self.run(x)
        for j in range(8):
            if j + 3 <= 7:
                for x in self.norm_seq(j + 3): self.run(x)
            if j == 1: self.h_ssm_load()
            if j == 5:
                a.wait_vm("ssm")
                self.h_tbuild(0)
            if j == 6:
                self.h_tbuild(1)
            if j + 1 <= 6:
                if j + 2 <= 7 and "hnowrite" not in self.exp: a.need_lds("xw%d" % (j + 2))
                a("s_barrier")
                if "itst" in self.exp: self.stamp(23 + j)
        self.get_nonce()
        self.h_uload()
        self.w2_voff()
        a.lg0()
        a("s_barrier")
        self.stamp(2)

    def h_gemm2(self):
        a = self.a
        HF, ACC = 20, 196
        WBUF = [228, 2]
        AB = 244
        PF = 10
        a("s_lshr_b32 s75, s%d, 1" % sRW)
        a("s_and_b32 s76, s%d, 1" % sRW)
        a("s_mul_i32 s70, s75, %d" % (22 * 32768))
        a("s_lshl_b32 s4, s76, 15")
        a("s_add_u32 s70, s70, s4")
        a("s_mul_i32 s71, s75, %d" % B_HALF)
        a("s_lshl_b32 s4, s76, 12")
        a("s_add_u32 s71, s71, s4")
        for m in range(NB_H // 2):
            self.w2_dma(71, L_B + 8192 * m, 70, 2 * m, "w2b")
        a("s_mul_i32 s71, s75, 4096")
        a("s_lshl_b32 s4, s76, 11")
        a("s_add_u32 s71, s71, s4")
        a("s_mul_i32 s%d, s75, %d" % (sT2, 22 * 32768))
        a("s_lshl_b32 s4, s76, 14")
        a("s_add_u32 s%d, s%d, s4" % (sT2, sT2))
        a("s_add_u32 s%d, s%d, %d" % (sT2, sT2, 17 * 32768))
        a("s_add_u32 m0, s71, %d" % L_C)
        a.vmem("buffer_load_dwordx4 v14, s[%d:%d], s%d offen lds" % (S_W2, S_W2 + 3, sT2), "w2b")
        a("s_add_u32 m0, s71, %d" % (L_C + 1024))
        a("s_add_u32 s%d, s%d, 4096" % (sT2, sT2))
        a.vmem("buffer_load_dwordx4 v14, s[%d:%d], s%d offen lds" % (S_W2, S_W2 + 3, sT2), "w2b")
        a("s_lshl_b32 s%d, s%d, 2" % (sT2, sR))
        a("s_lshl_b32 s4, s76, 1")
        a("s_add_u32 s%d, s%d, s4" % (sT2, sT2))
        a("s_mul_i32 s%d, s%d, 44032" % (sT2, sT2))
        a("s_mul_i32 s4, s75, %d" % (22 * 1024))
        a("s_add_u32 s%d, s%d, s4" % (sT2, sT2))
        a("s_add_u32 s%d, s%d, 0x%x" % (sT2, sT2, WS_H))
        a("v_lshlrev_b32 v18, 4, v1")
        a("v_add_u32 v18, s%d, v18" % sT2)
        a("v_add_u32 v19, 44032, v18")
        a("v_lshrrev_b32 v2, 4, v1")
        a("v_and_b32 v3, 15, v1")
        a("v_lshrrev_b32 v3, 2, v3")
        a("v_lshrrev_b32 v4, 1, v2")
        a("v_lshlrev_b32 v4, 4, v4")
        a("v_and_b32 v5, 1, v2")
        a("v_lshl_add_u32 v4, v5, 2, v4")
        a("v_add_u32 v4, v4, v3")
        a("v_lshlrev_b32 v4, 7, v4")
        a("v_and_b32 v6, 1, v1")
        a("v_lshl_add_u32 v4, v6, 3, v4")
        a("v_lshlrev_b32 v5, 1, v5")
        a("v_lshrrev_b32 v6, 1, v3")
        a("v_add_u32 v5, v5, v6")
        a("v_lshlrev_b32 v5, 1, v5")
        a("v_and_b32 v6, 3, v1")
        a("v_lshrrev_b32 v6, 1, v6")
        a("s_mul_i32 s4, s75, %d" % B_HALF)
        if L_B: a("s_add_u32 s4, s4, %d" % L_B)
        for b in range(4):
            a("v_add_u32 v7, %d, v6" % (2 * b))
            a("v_xor_b32 v7, v7, v5")
            a("v_lshl_add_u32 v7, v7, 4, v4")
            a("v_add_u32 v%d, s4, v7" % (AB + b))
        a("s_mul_i32 s5, s75, 20480")
        a("s_add_u32 s5, s5, %d" % L_A)
        a("s_sub_u32 s77, s5, s4")
        a("s_mul_i32 s79, s75, 4096")
        a("s_add_u32 s79, s79, %d" % L_C)
        a("s_sub_u32 s78, s79, s5")
        a("s_sub_u32 s79, s4, s79")
        for i in range(32): a("v_mov_b32 v%d, 0" % (ACC + i))
        a("s_waitcnt vmcnt(0)")
        a.vm.q = []
        self.pair_sync(2, 253, 254)
        self.stamp(5)
        if not self.noflags:
            a("s_lshl_b32 s%d, s%d, 10" % (sT0, sR))
            a("s_add_u32 s%d, s%d, 0x%x" % (sT0, sT0, F_H2))
            self.poll(sT0, 8, 4, 128)
        self.stamp(6)

        def hload(i):
            ops = []
            for t in range(2):
                def f(t=t):
                    r = HF + (i * 2 + t) * 4
                    so = i * 1024
                    if so < 4096:
                        a.vmem("buffer_load_dwordx4 v[%d:%d], v%d, s[%d:%d], 0 offen offset:%d sc1" % (r, r + 3, 18 + t, S_WS, S_WS + 3, so), "h%d" % i)
                    else:
                        if t == 0: a("s_mov_b32 s80, %d" % (so & ~4095))
                        a.vmem("buffer_load_dwordx4 v[%d:%d], v%d, s[%d:%d], s80 offen offset:%d sc1" % (r, r + 3, 18 + t, S_WS, S_WS + 3, so & 4095), "h%d" % i)
                ops.append(f)
            return ops

        def read_ops(i):
            buf = WBUF[i & 1]
            if i < 12: so = i * 4096
            elif i < 17: so = (i - 12) * 4096
            elif i < 18: so = 0
            else: so = (i - 18) * 4096
            ops = []
            sw = {12: 77, 17: 78, 18: 79}.get(i)
            if sw:
                for b in range(4): ops.append("v_add_u32 v%d, s%d, v%d" % (AB + b, sw, AB + b))
            for b in range(4):
                for hh in range(2):
                    r0 = buf + 4 * b + 2 * hh
                    ops.append(lambda r0=r0, b=b, hh=hh: a.lds("ds_read_b64_tr_b16 v[%d:%d], v%d offset:%d" % (r0, r0 + 1, AB + b, so + hh * 1024), "w%d_%d" % (i, b)))
            return ops

        def mfma_ops(i):
            buf = WBUF[i & 1]
            ops = []
            for b in range(4):
                for t in range(2):
                    def f(b=b, t=t):
                        if b == 0 and t == 0: a.wait_vm("h%d" % i)
                        a.need_lds("w%d_%d" % (i, b))
                        acc = ACC + (b * 2 + t) * 4
                        hr = HF + (i * 2 + t) * 4
                        a("v_mfma_f32_16x16x32_bf16 v[%d:%d], v[%d:%d], v[%d:%d], v[%d:%d]" % (acc, acc + 3, buf + 4 * b, buf + 4 * b + 3, hr, hr + 3, acc, acc + 3))
                    ops.append(f)
            return ops

        for i in range(PF):
            for f in hload(i): f()
        self.stamp(19)
        for f in read_ops(0): self.run(f)
        last = a.newlabel("L_g2l")
        for i in range(22):
            if i == 11:
                a.lg0()
                a("s_barrier")
            if i == 17:
                a.lg0()
                a("s_barrier")
            if i == 21:
                a("s_cmp_eq_u32 s75, 1")
                a("s_cbranch_scc1 %s" % last)
            fill = []
            if i < 21: fill += read_ops(i + 1)
            if i + PF < 22: fill = hload(i + PF) + fill
            interleave(a, mfma_ops(i), fill)
        a.label(last)
        a.lg0()
        self.stamp(22)
        a("v_and_b32 v2, 15, v1")
        a("v_lshrrev_b32 v3, 4, v1")
        a("v_mul_u32_u24 v2, 272, v2")
        a("v_lshl_add_u32 v2, v3, 4, v2")
        a("s_mul_i32 s4, s75, 20480")
        a("s_mul_i32 s5, s76, %d" % (32 * 272))
        a("s_add_u32 s4, s4, s5")
        a("s_add_u32 s4, s4, %d" % L_P)
        a("v_add_u32 v2, s4, v2")
        for b in range(4):
            for t in range(2):
                acc = ACC + (b * 2 + t) * 4
                a("ds_write_b128 v2, v[%d:%d] offset:%d" % (acc, acc + 3, t * 16 * 272 + b * 64))
        self.final_x_load(240, 244)
        a.lg0()
        a("s_barrier")

    def final(self):
        a = self.a
        P0 = L_P; P1 = L_P + 20480; YL = L_Y
        XR = 240; OA = 244
        a("s_and_b32 s%d, s%d, 3" % (sT0, sW))
        a("s_lshr_b32 s%d, s%d, 2" % (sT1, sW))
        a("v_lshrrev_b32 v2, 2, v1")
        a("v_and_b32 v3, 3, v1")
        a("s_lshl_b32 s4, s%d, 4" % sT0)
        a("v_add_u32 v2, s4, v2")
        a("v_mul_u32_u24 v4, 272, v2")
        a("v_lshl_add_u32 v4, v3, 5, v4")
        a("s_lshl_b32 s4, s%d, 7" % sT1)
        a("s_add_u32 s4, s4, %d" % P0)
        a("v_add_u32 v4, s4, v4")
        a("ds_read_b128 v[20:23], v4")
        a("ds_read_b128 v[24:27], v4 offset:16")
        a("ds_read_b128 v[28:31], v4 offset:%d" % (P1 - P0))
        a("ds_read_b128 v[32:35], v4 offset:%d" % (P1 - P0 + 16))
        a("v_lshlrev_b32 v6, 3, v2")
        a("v_add_u32 v6, %d, v6" % L_STATS)
        a("ds_read_b64 v[36:37], v6")
        a("v_lshrrev_b32 v7, 4, v1")
        a("v_lshlrev_b32 v7, 3, v7")
        a("v_and_b32 v8, 15, v1")
        a("v_lshrrev_b32 v8, 2, v8")
        a("v_add_u32 v7, v7, v8")
        a("s_lshl_b32 s4, s%d, 5" % sT1)
        a("v_add_u32 v7, s4, v7")
        a("v_mul_u32_u24 v7, 144, v7")
        a("v_and_b32 v8, 3, v1")
        a("v_lshl_add_u32 v7, v8, 3, v7")
        a("s_lshl_b32 s4, s%d, 5" % sT0)
        a("s_add_u32 s4, s4, %d" % YL)
        a("v_add_u32 v7, s4, v7")
        a("ds_read_b64_tr_b16 v[38:39], v7")
        a("ds_read_b64_tr_b16 v[40:41], v7 offset:%d" % (4 * 144))
        a("v_and_b32 v8, 3, v1")
        a("v_lshlrev_b32 v8, 4, v8")
        a("v_lshrrev_b32 v9, 2, v1")
        a("v_or_b32 v8, v8, v9")
        a("v_lshlrev_b32 v8, 2, v8")
        a("v_mov_b32 v10, 0xbfb8aa3b")
        a("v_mov_b32 v11, 1.0")
        a("s_waitcnt lgkmcnt(0)")
        for i in range(4):
            a("ds_bpermute_b32 v%d, v8, v%d" % (42 + i, 38 + i))
        for i in range(8):
            a("v_add_f32 v%d, v%d, v%d" % (20 + i, 20 + i, 28 + i))
        for i in range(4):
            a("v_cvt_pk_bf16_f32 v%d, v%d, v%d" % (28 + i, 20 + 2 * i, 21 + 2 * i))
        for i in range(4):
            a("v_alignbit_b32 v%d, v%d, 0, 16" % (20 + 2 * i, 28 + i))
            a("v_and_b32 v%d, v%d, v%d" % (21 + 2 * i, vMHI, 28 + i))
        for i in range(8):
            a("v_mul_f32 v%d, v10, v%d" % (48 + i, 20 + i))
        for i in range(8):
            a("v_exp_f32 v%d, v%d" % (48 + i, 48 + i))
        a("s_waitcnt vmcnt(0)")
        a("v_sub_f32 v12, 0, v36")
        for i in range(4):
            a("v_dot2_f32_bf16 v%d, v%d, v%d, v12" % (72 + 2 * i, XR + i, vONELO))
            a("v_dot2_f32_bf16 v%d, v%d, v%d, v12" % (73 + 2 * i, XR + i, vONEHI))
        for i in range(8):
            a("v_add_f32 v%d, v11, v%d" % (48 + i, 48 + i))
        for i in range(4):
            a("v_cvt_pk_bf16_f32 v%d, v%d, v%d" % (80 + i, 72 + 2 * i, 73 + 2 * i))
        for i in range(8):
            a("v_rcp_f32 v%d, v%d" % (48 + i, 48 + i))
        for i in range(4):
            a("v_alignbit_b32 v%d, v%d, 0, 16" % (72 + 2 * i, 80 + i))
            a("v_and_b32 v%d, v%d, v%d" % (73 + 2 * i, vMHI, 80 + i))
        for i in range(8):
            a("v_mul_f32 v%d, v%d, v37" % (72 + i, 72 + i))
        for i in range(8):
            a("v_mul_f32 v%d, v%d, v%d" % (20 + i, 20 + i, 48 + i))
        for i in range(4):
            a("v_cvt_pk_bf16_f32 v%d, v%d, v%d" % (80 + i, 72 + 2 * i, 73 + 2 * i))
        for i in range(4):
            a("v_cvt_pk_bf16_f32 v%d, v%d, v%d" % (28 + i, 20 + 2 * i, 21 + 2 * i))
        a("s_waitcnt lgkmcnt(0)")
        for i in range(4):
            a("v_and_b32 v%d, v%d, v%d" % (56 + 2 * i, vMLO, 42 + i))
            a("v_and_b32 v%d, v%d, v%d" % (57 + 2 * i, vMHI, 42 + i))
            a("v_and_b32 v%d, v%d, v%d" % (64 + 2 * i, vMLO, 28 + i))
            a("v_and_b32 v%d, v%d, v%d" % (65 + 2 * i, vMHI, 28 + i))
        for i in range(4):
            a("v_dot2_f32_bf16 v%d, v%d, v%d, 0" % (72 + 2 * i, 80 + i, 56 + 2 * i))
            a("v_dot2_f32_bf16 v%d, v%d, v%d, 0" % (73 + 2 * i, 80 + i, 57 + 2 * i))
        for i in range(4):
            a("v_alignbit_b32 v%d, v%d, 0, 16" % (88 + 2 * i, XR + i))
            a("v_and_b32 v%d, v%d, v%d" % (89 + 2 * i, vMHI, XR + i))
        for i in range(4):
            a("v_cvt_pk_bf16_f32 v%d, v%d, v%d" % (80 + i, 72 + 2 * i, 73 + 2 * i))
        for i in range(4):
            a("v_dot2_f32_bf16 v%d, v%d, v%d, 0" % (72 + 2 * i, 80 + i, 64 + 2 * i))
            a("v_dot2_f32_bf16 v%d, v%d, v%d, 0" % (73 + 2 * i, 80 + i, 65 + 2 * i))
        for i in range(4):
            a("v_cvt_pk_bf16_f32 v%d, v%d, v%d" % (80 + i, 72 + 2 * i, 73 + 2 * i))
        for i in range(4):
            a("v_dot2_f32_bf16 v%d, v%d, v%d, v%d" % (72 + 2 * i, 80 + i, vONELO, 88 + 2 * i))
            a("v_dot2_f32_bf16 v%d, v%d, v%d, v%d" % (73 + 2 * i, 80 + i, vONEHI, 89 + 2 * i))
        for i in range(4):
            a("v_cvt_pk_bf16_f32 v%d, v%d, v%d" % (80 + i, 72 + 2 * i, 73 + 2 * i))
        a("buffer_store_dwordx4 v[80:83], v%d, s[%d:%d], 0 offen" % (OA, S_OUT, S_OUT + 3))

    def build(self):
        a = self.a
        self.p0()
        self.m_front()
        self.stamp(1)
        self.m_prep()
        self.stamp(10)
        self.m_gemm1()
        self.stamp(4)
        self.m_conv()
        self.m_tail()
        a("s_branch L_final")
        a.label("L_H")
        self.h_front()
        self.stamp(1)
        self.h_stats()
        self.stamp(11)
        self.h_gemm1_side()
        self.h_gemm2()
        a.label("L_final")
        a.lg_clear()
        self.stamp(8)
        self.final()
        self.stamp(9)
        self.dump_stamps()
        a("s_waitcnt vmcnt(0)")
        a.label("L_end")
        a("s_endpgm")
        lines, n = hazard.fix(a.lines)
        self.nnops = n
        hdr = """; Kernarg layout: x,k,v,shift_k,ssm_k,ssm_D,B_x,w1,w2,out,debug,ws (8-byte pointers)
; @launch grid=(256,1,1) block=(512,1,1) lds=%d
.amdgcn_target "amdgcn-amd-amdhsa--gfx950"
.text
.globl %s
.p2align 8
.type %s,@function
%s:
""" % (LDS_SIZE, KNAME, KNAME, KNAME)
        ftr = """.section .rodata,"a"
.p2align 6
.amdhsa_kernel %s
  .amdhsa_next_free_vgpr 256
  .amdhsa_next_free_sgpr 102
  .amdhsa_accum_offset 256
  .amdhsa_group_segment_fixed_size 0
  .amdhsa_kernarg_size 96
  .amdhsa_user_sgpr_count 2
  .amdhsa_user_sgpr_kernarg_segment_ptr 1
  .amdhsa_system_sgpr_workgroup_id_x 1
.end_amdhsa_kernel
""" % KNAME
        return hdr + "\n".join(lines) + "\n" + ftr

if __name__ == "__main__":
    import argparse
    ap = argparse.ArgumentParser()
    ap.add_argument("-o", default="k.s")
    ap.add_argument("--stamps", action="store_true")
    ap.add_argument("--noflags", action="store_true")
    ap.add_argument("--exp", default="")
    args = ap.parse_args()
    g = Gen(stamps=args.stamps, noflags=args.noflags, exp=args.exp)
    txt = g.build()
    open(args.o, "w").write(txt)
    print("wrote", args.o, len(txt.splitlines()), "lines; hazard nops:", g.nnops)
```

```python
import sys
from emit import *
import hazard

KNAME = "recurrent_scan__ssm_conv_h3__dense_activation_relu__prompt_kernel"

WS_KVT = 0
WS_YT = 2 << 20
WS_H = 4 << 20
WS_FLAG = 10 << 20
F_H1 = WS_FLAG
F_H2 = WS_FLAG + 32768
F_H3 = WS_FLAG + 65536
WS_STAMP = WS_FLAG + (256 << 10)
WS_SIZE = 16 << 20

L_XN = 0
NXN = 4
L_W1 = 32768
W1_SLOT = 23040
NW1 = 5
L_PREP = L_W1 + NW1 * W1_SLOT
L_A = L_W1 + 3 * W1_SLOT
L_T = L_A + 8
T_CH = 16640
T_CP = 4160
L_U = L_A + 33408
U_CH = 4608
L_B = 0
NB_H = 12
B_HALF = NB_H * 4096
L_C = L_PREP
L_Y = 16384
L_P = L_A
L_STATS = 161792
L_SYNC = 162304
LDS_SIZE = 163840
assert L_U % 16 == 0 and L_U + 2 * U_CH <= L_PREP and L_T + 2 * T_CH <= L_U
assert L_A + 10 * 4096 <= L_PREP and L_C + 2 * 4096 <= L_STATS and 2 * B_HALF <= L_A and L_PREP + 9216 <= L_STATS

S_X, S_K, S_V, S_W1, S_W2, S_OUT, S_SSM, S_WS, S_SH, S_DBG = 8, 12, 16, 20, 24, 28, 32, 36, 40, 44
sR, sC, sW, sNONCE = 48, 49, 50, 51
sF0, sBP, sNB = 52, 53, 54
sT0, sT1, sT2, sT3 = 55, 56, 57, 58
sRW = 59
sEX = 60
sROT = 62
sDP = 64
sDD = 66
sM0B = 67
sP0, sP1 = 68, 69
sUOK = 72
sID = 81
sINV1, sINV2 = 73, 74
vMLO, vMHI, vONELO, vONEHI, vONES = 248, 249, 250, 251, 252

def merge(*lists):
    lists = [l for l in lists if l]
    tot = sum(len(l) for l in lists)
    out = []; idx = [0] * len(lists)
    for s in range(tot):
        best = min((i for i in range(len(lists)) if idx[i] < len(lists[i])), key=lambda i: (idx[i] + 0.5) / len(lists[i]))
        out.append(lists[best][idx[best]]); idx[best] += 1
    return out

class Gen:
    def __init__(self, stamps=False, noflags=False, exp=""):
        self.exp = set(exp.split(",")) if exp else set()
        self.a = Asm()
        self.stamps = stamps
        self.noflags = noflags
        self.relax_ln = "relax_ln" in self.exp
        self.stampset = None
        for e in self.exp:
            if e.startswith("st="):
                self.stampset = set(int(x) for x in e[3:].split("+"))

    def stamp(self, idx):
        if not self.stamps: return
        if self.stampset is not None and idx not in self.stampset: return
        a = self.a
        a("s_memrealtime s[4:5]")
        if "clk" in self.exp and idx in (14, 2, 4, 16):
            a("s_memtime s[6:7]")
        a.lg0()
        a("v_writelane_b32 v255, s4, %d" % idx)
        if "clk" in self.exp and idx in (14, 2, 4, 16):
            a("v_writelane_b32 v255, s6, %d" % {14: 29, 2: 30, 4: 31, 16: 15}[idx])

    def dump_stamps(self):
        if not self.stamps: return
        a = self.a
        if "dbgst" in self.exp:
            sk = a.newlabel("L_ds")
            a("s_or_b32 s4, s2, s%d" % sW)
            a("s_cmp_lg_u32 s4, 0")
            a("s_cbranch_scc1 %s" % sk)
            a("v_readlane_b32 s4, v255, 0")
            a("s_nop 3")
            a("v_subrev_u32 v3, s4, v255")
            order = [12, 10, 14, 2, 4, 16, 17, 18, 7, 8, 9]
            for k, i in enumerate(order):
                a("v_readlane_b32 s5, v3, %d" % i)
                a("s_nop 3")
                a("v_mov_b32 v4, s5")
                a("v_mov_b32 v5, %d" % (4 * (k + 1)))
                a("s_mov_b64 exec, 1")
                a("buffer_store_dword v4, v5, s[%d:%d], 0 offen" % (S_DBG, S_DBG + 3))
                a("s_mov_b64 exec, -1")
            a.label(sk)
        a("s_lshl_b32 s%d, s2, 3" % sT0)
        a("s_add_u32 s%d, s%d, s%d" % (sT0, sT0, sW))
        a("s_lshl_b32 s%d, s%d, 7" % (sT0, sT0))
        a("s_add_u32 s%d, s%d, 0x%x" % (sT0, sT0, WS_STAMP))
        a("v_lshlrev_b32 v2, 2, v1")
        a("v_add_u32 v2, s%d, v2" % sT0)
        a("s_mov_b32 exec_lo, -1")
        a("s_mov_b32 exec_hi, 0")
        a("buffer_store_dword v255, v2, s[%d:%d], 0 offen" % (S_WS, S_WS + 3))
        a("s_mov_b64 exec, -1")

    def run(self, x):
        if callable(x): x()
        else: self.a(x)

    def spread(self, seq, extra):
        a = self.a
        if not extra:
            for x in seq: self.run(x)
            return
        step = max(1, len(seq) // (len(extra) + 1))
        k = 0
        for i, ins in enumerate(seq):
            self.run(ins)
            if (i + 1) % step == 0 and k < len(extra):
                self.run(extra[k]); k += 1
        while k < len(extra):
            self.run(extra[k]); k += 1

    def p0(self):
        a = self.a
        a("s_cmp_ge_u32 s2, 256")
        a("s_cbranch_scc1 L_end")
        for dst, off in ((S_K, 8), (S_V, 16), (S_SH, 24), (S_X, 0), (S_W1, 56), (S_SSM, 32), (S_WS, 88), (S_DBG, 80), (S_W2, 64), (S_OUT, 72), (sDP, 40)):
            a("s_load_dwordx2 s[%d:%d], s[0:1], %d" % (dst, dst + 1, off))
        if self.stamps: a("v_mov_b32 v255, 0")
        a("v_lshrrev_b32 v2, 6, v0")
        a("v_and_b32 v1, 63, v0")
        a("s_and_b32 s%d, s2, 7" % sR)
        a("s_lshr_b32 s3, s2, 6")
        a("s_lshl_b32 s3, s3, 3")
        a("s_add_u32 s%d, s%d, s3" % (sR, sR))
        a("s_bfe_u32 s%d, s2, 0x30003" % sC)
        a("s_lshl_b32 s%d, s%d, 5" % (sID, sC))
        a("s_add_u32 s%d, s%d, s%d" % (sID, sID, sR))
        a("v_readfirstlane_b32 s%d, v2" % sW)
        for dst, size in ((S_K, 2097152), (S_V, 2097152), (S_SH, 4096), (S_X, 2097152), (S_W1, 1409024), (S_SSM, 2097152), (S_WS, WS_SIZE), (S_DBG, 256), (S_W2, 1409024), (S_OUT, 2097152)):
            a("s_mov_b32 s%d, 0x%x" % (dst + 2, size))
            a("s_mov_b32 s%d, 0x00020000" % (dst + 3))
        a("s_and_b32 s%d, s%d, 3" % (sRW, sW))
        a("s_lshr_b32 s%d, s%d, 3" % (sT0, sR))
        a("s_lshl_b32 s%d, s%d, 1" % (sT0, sT0))
        a("s_add_u32 s%d, s%d, s%d" % (sT0, sT0, sC))
        a("s_add_u32 s%d, s%d, s%d" % (sT0, sT0, sR))
        a("s_and_b32 s%d, s%d, 7" % (sROT, sT0))
        a("s_mul_i32 s%d, s%d, 176" % (sF0, sC))
        a("s_cmp_eq_u32 s%d, 7" % sC)
        a("s_cselect_b32 s%d, 16, 0" % sT0)
        a("s_sub_u32 s%d, s%d, s%d" % (sF0, sF0, sT0))
        a("v_mov_b32 v%d, 0xffff" % vMLO)
        a("v_mov_b32 v%d, 0xffff0000" % vMHI)
        a("v_mov_b32 v%d, 0x3f80" % vONELO)
        a("v_mov_b32 v%d, 0x3f800000" % vONEHI)
        a("v_mov_b32 v%d, 0x3f803f80" % vONES)
        a("s_mov_b32 s%d, 0x05040100" % sP0)
        a("s_mov_b32 s%d, 0x07060302" % sP1)
        a("s_cmp_ge_u32 s%d, 4" % sW)
        a("s_cbranch_scc1 L_H")
        a("s_setprio 2")

    def w1_dma_ops(self, j):
        a = self.a
        slot = j % NW1
        ops = []
        def head():
            a("s_add_u32 s%d, s%d, %d" % (sT1, sROT, j))
            a("s_and_b32 s%d, s%d, 7" % (sT1, sT1))
            a("s_mul_i32 s%d, s%d, %d" % (sT1, sT1, 64 * 2752))
            a("s_add_u32 m0, s%d, %d" % (sM0B, slot * W1_SLOT))
            a.vmem("buffer_load_dwordx4 v12, s[%d:%d], s%d offen lds" % (S_W1, S_W1 + 3, sT1), "w1c%d" % j)
        ops.append(head)
        for i in range(1, 6):
            def nxt(i=i):
                a("s_add_u32 m0, s%d, %d" % (sM0B, slot * W1_SLOT + 1024 * i))
                a.vmem("buffer_load_dwordx4 v%d, s[%d:%d], s%d offen lds" % (12 + i, S_W1, S_W1 + 3, sT1), "w1c%d" % j)
            ops.append(nxt)
        return ops

    def w1_voffs(self):
        a = self.a
        a("s_lshl_b32 s%d, s%d, 4" % (sT0, sRW))
        a("s_lshl_b32 s%d, s%d, 1" % (sT1, sF0))
        for i in range(6):
            a("v_add_u32 v2, %d, v1" % (64 * i))
            a("v_mul_u32_u24 v3, 2979, v2")
            a("v_lshrrev_b32 v3, 16, v3")
            a("v_mul_u32_u24 v4, 22, v3")
            a("v_sub_u32 v4, v2, v4")
            a("v_add_u32 v3, s%d, v3" % sT0)
            a("v_and_b32 v5, 0x73, v3")
            a("v_bfe_u32 v7, v3, 3, 1")
            a("v_lshl_add_u32 v5, v7, 2, v5")
            a("v_bfe_u32 v7, v3, 2, 1")
            a("v_lshl_add_u32 v5, v7, 3, v5")
            a("v_mul_u32_u24 v5, 2752, v5")
            a("v_lshl_add_u32 v5, v4, 4, v5")
            a("v_add_u32 v%d, s%d, v5" % (12 + i, sT1))
        a("s_mul_i32 s%d, s%d, %d" % (sM0B, sRW, 16 * 352))
        a("s_add_u32 s%d, s%d, %d" % (sM0B, sM0B, L_W1))

    def line_prefetch(self, srd, nlines_per_cu, vd):
        a = self.a
        a("s_lshr_b32 s%d, s2, 3" % sT0)
        a("s_mul_i32 s%d, s%d, %d" % (sT0, sT0, nlines_per_cu * 128))
        a("v_and_b32 v2, 255, v0")
        a("v_lshlrev_b32 v2, 7, v2")
        a("v_add_u32 v2, s%d, v2" % sT0)
        a.vmem("buffer_load_dword v%d, v2, s[%d:%d], 0 offen" % (vd, srd, srd + 3), "pf")
        a("v_and_b32 v3, 255, v0")
        a("v_cmp_gt_u32 vcc, %d, v3" % (nlines_per_cu - 256))
        a("v_add_u32 v2, 32768, v2")
        a("v_mov_b32 v3, 0x40000000")
        a("v_cndmask_b32 v2, v3, v2, vcc")
        a.vmem("buffer_load_dword v%d, v2, s[%d:%d], 0 offen" % (vd + 1, srd, srd + 3), "pf")

    def m_front(self):
        a = self.a
        a("v_lshrrev_b32 v3, 5, v0")
        a("v_and_b32 v4, 31, v0")
        a("s_lshl_b32 s%d, s%d, 16" % (sT0, sR))
        a("s_lshl_b32 s%d, s%d, 7" % (sT1, sC))
        a("s_add_u32 s%d, s%d, s%d" % (sT0, sT0, sT1))
        a("v_lshlrev_b32 v2, 13, v3")
        a("v_lshl_add_u32 v2, v4, 2, v2")
        a("v_add_u32 v2, s%d, v2" % sT0)
        a("v_add_u32 v5, 0xfffff400, v2")
        a("v_add_u32 v6, 0xfffff800, v2")
        a("v_add_u32 v7, 0xfffffc00, v2")
        a("v_add_u32 v8, 4096, v2")
        a("s_lshl_b32 s%d, s%d, 9" % (sT2, sC))
        a("v_lshlrev_b32 v9, 4, v4")
        a("v_add_u32 v9, s%d, v9" % sT2)
        a.lg0()
        if self.stamps:
            a("s_memrealtime s[4:5]"); a.lg0(); a("v_writelane_b32 v255, s4, 0")
        K, V, SH = 20, 32, 40
        for t, r in enumerate((5, 6, 7)):
            a.vmem("buffer_load_dword v%d, v%d, s[%d:%d], 0 offen" % (K + t, r, S_K, S_K + 3), "prep")
        for t in range(8):
            a.vmem("buffer_load_dword v%d, v%d, s[%d:%d], 0 offen offset:%d" % (K + 3 + t, 2 if t < 4 else 8, S_K, S_K + 3, 1024 * (t & 3)), "prep")
        a.vmem("buffer_load_dwordx4 v[40:43], v9, s[%d:%d], 0 offen" % (S_SH, S_SH + 3), "prep")
        for t in range(8):
            a.vmem("buffer_load_dword v%d, v%d, s[%d:%d], 0 offen offset:%d" % (V + t, 2 if t < 4 else 8, S_V, S_V + 3, 1024 * (t & 3)), "prep")
        a("s_setprio 0")
        if "nopf" not in self.exp:
            self.line_prefetch(S_W1, 344, 240)
            self.line_prefetch(S_W2, 344, 242)
        if not self.noflags:
            a("s_or_b32 s%d, s2, s%d" % (sT1, sW))
            a("s_cmp_lg_u32 s%d, 0" % sT1)
            a("s_cbranch_scc1 L_nononce")
            a("s_memrealtime s[4:5]")
            a("s_waitcnt lgkmcnt(0)")
            a("s_or_b32 s4, s4, 1")
            a("v_mov_b32 v2, s4")
            a("v_mov_b32 v3, 0")
            a("s_mov_b64 exec, 1")
            a("buffer_store_dword v2, v3, s[%d:%d], 0 offen sc1" % (S_DBG, S_DBG + 3))
            a("s_mov_b64 exec, -1")
            a.label("L_nononce")
        self.w1_voffs()
        a("s_lshl_b32 s%d, s%d, 7" % (sT0, sC))
        a("s_lshl_b32 s%d, s%d, 2" % (sT1, sR))
        a("s_add_u32 s%d, s%d, s%d" % (sT0, sT0, sT1))
        a("s_load_dword s%d, s[%d:%d], s%d" % (sDD, sDP, sDP + 1, sT0))

    def m_prep(self):
        a = self.a
        K, V, SH = 20, 32, 40
        WL, WH = 44, 48
        PL, PH = 52, 56
        PP, AC = 60, 64
        TA, TB = 68, 72
        KV = 76
        OUT = 92
        dma = self.w1_dma_ops(2) + self.w1_dma_ops(3)
        a.wait_vm("prep")
        self.stamp(12)
        seq = []; e = seq.append
        e("v_and_b32 v%d, v%d, v%d" % (WL + 0, vMLO, SH + 0)); e("v_lshrrev_b32 v%d, 16, v%d" % (WL + 1, SH + 0))
        e("v_and_b32 v%d, v%d, v%d" % (WL + 2, vMLO, SH + 1)); e("v_lshrrev_b32 v%d, 16, v%d" % (WL + 3, SH + 1))
        e("v_lshlrev_b32 v%d, 16, v%d" % (WH + 0, SH + 2)); e("v_and_b32 v%d, v%d, v%d" % (WH + 1, vMHI, SH + 2))
        e("v_lshlrev_b32 v%d, 16, v%d" % (WH + 2, SH + 3)); e("v_and_b32 v%d, v%d, v%d" % (WH + 3, vMHI, SH + 3))
        for hb in range(2):
            r0 = 4 * hb
            if "relax_prep" in self.exp:
                for r in range(4):
                    e("v_dot2_f32_bf16 v%d, v%d, v%d, 0" % (PL + r, K + r0 + r, WL + 3))
                    e("v_dot2_f32_bf16 v%d, v%d, v%d, 0" % (PH + r, K + r0 + r, WH + 3))
                for j in (2, 1, 0):
                    for r in range(4):
                        e("v_dot2_f32_bf16 v%d, v%d, v%d, v%d" % (PL + r, K + 3 + r0 + r - j, WL + j, PL + r))
                        e("v_dot2_f32_bf16 v%d, v%d, v%d, v%d" % (PH + r, K + 3 + r0 + r - j, WH + j, PH + r))
                for r in range(4):
                    e("v_cvt_pk_bf16_f32 v%d, v%d, v%d" % (AC + r, PL + r, PH + r))
            else:
                for j in (3, 2, 1, 0):
                    for r in range(4):
                        e("v_dot2_f32_bf16 v%d, v%d, v%d, 0" % (PL + r, K + 3 + r0 + r - j, WL + j))
                        e("v_dot2_f32_bf16 v%d, v%d, v%d, 0" % (PH + r, K + 3 + r0 + r - j, WH + j))
                    dstp = AC if j == 3 else PP
                    for r in range(4):
                        e("v_cvt_pk_bf16_f32 v%d, v%d, v%d" % (dstp + r, PL + r, PH + r))
                    if j != 3:
                        for r in range(4):
                            e("v_perm_b32 v%d, v%d, v%d, s%d" % (TA + r, PP + r, AC + r, sP0))
                            e("v_perm_b32 v%d, v%d, v%d, s%d" % (TB + r, PP + r, AC + r, sP1))
                        for r in range(4):
                            e("v_dot2_f32_bf16 v%d, v%d, v%d, 0" % (PL + r, TA + r, vONES))
                            e("v_dot2_f32_bf16 v%d, v%d, v%d, 0" % (PH + r, TB + r, vONES))
                        for r in range(4):
                            e("v_cvt_pk_bf16_f32 v%d, v%d, v%d" % (AC + r, PL + r, PH + r))
            for r in range(4):
                e("v_and_b32 v%d, v%d, v%d" % (TA + r, vMLO, V + r0 + r))
                e("v_and_b32 v%d, v%d, v%d" % (TB + r, vMHI, V + r0 + r))
            for r in range(4):
                e("v_dot2_f32_bf16 v%d, v%d, v%d, 0" % (KV + r0 + r, AC + r, TA + r))
                e("v_dot2_f32_bf16 v%d, v%d, v%d, 0" % (KV + 8 + r0 + r, AC + r, TB + r))
        e("v_and_b32 v2, 31, v0"); e("v_mul_u32_u24 v2, 288, v2"); e("v_lshrrev_b32 v3, 5, v0"); e("v_lshlrev_b32 v3, 4, v3")
        e("v_sub_u32 v2, v2, v3"); e("v_add_u32 v2, %d, v2" % (L_PREP + 112))
        for ch in range(2):
            for d in range(4):
                e("v_cvt_pk_bf16_f32 v%d, v%d, v%d" % (OUT + 4 * ch + d, KV + 8 * ch + 7 - 2 * d, KV + 8 * ch + 6 - 2 * d))
        self.spread(seq, dma)
        a("ds_write_b128 v2, v[%d:%d]" % (OUT, OUT + 3))
        a("ds_write_b128 v2, v[%d:%d] offset:144" % (OUT + 4, OUT + 7))
        a("v_and_b32 v3, 15, v0")
        a("v_lshlrev_b32 v3, 2, v3")
        a("v_add_u32 v3, %d, v3" % L_SYNC)
        a("v_mov_b32 v4, 0")
        a("ds_write_b32 v3, v4")
        a("v_lshrrev_b32 v2, 3, v0")
        a("v_and_b32 v3, 7, v0")
        a("v_mul_u32_u24 v4, 144, v2")
        a("v_lshl_add_u32 v4, v3, 4, v4")
        a("v_add_u32 v4, %d, v4" % L_PREP)
        a("s_lshl_b32 s%d, s%d, 18" % (sT0, sC))
        a("s_lshl_b32 s%d, s%d, 7" % (sT1, sR))
        a("s_sub_u32 s%d, s%d, s%d" % (sT0, sT0, sT1))
        a("s_add_u32 s%d, s%d, %d" % (sT0, sT0, WS_KVT + 3968))
        a("v_lshlrev_b32 v5, 12, v2")
        a("v_lshl_add_u32 v5, v3, 4, v5")
        a("v_add_u32 v5, s%d, v5" % sT0)
        a("v_add_u32 v6, %d, v5" % (32 * 4096))
        a.lg0()
        a("s_barrier")
        a("ds_read_b128 v[92:95], v4")
        a("ds_read_b128 v[96:99], v4 offset:%d" % (32 * 144))
        a.lg0()
        a.vmem("buffer_store_dwordx4 v[92:95], v5, s[%d:%d], 0 offen sc1" % (S_WS, S_WS + 3), "kvt")
        a.vmem("buffer_store_dwordx4 v[96:99], v6, s[%d:%d], 0 offen sc1" % (S_WS, S_WS + 3), "kvt")
        if not self.noflags:
            a("v_mov_b32 v7, 0")
            a.vmem("buffer_load_dword v19, v7, s[%d:%d], 0 offen sc1" % (S_DBG, S_DBG + 3), "nonce")

    def m_gemm1(self):
        a = self.a
        ACC = 20
        BUF = [68, 96, 124]
        AX = 8; AW = [9, 10, 11]
        UREG = 152
        a("v_and_b32 v2, 15, v1")
        a("v_lshrrev_b32 v3, 4, v1")
        a("v_lshlrev_b32 v4, 1, v3")
        a("v_xor_b32 v4, v2, v4")
        a("v_lshlrev_b32 v4, 4, v4")
        a("v_lshl_add_u32 v%d, v3, 8, v4" % AX)
        a("v_lshrrev_b32 v4, 1, v3")
        a("v_lshlrev_b32 v4, 4, v4")
        a("v_and_b32 v5, 1, v3")
        a("v_lshl_add_u32 v4, v5, 2, v4")
        a("v_lshrrev_b32 v5, 2, v2")
        a("v_add_u32 v4, v4, v5")
        a("v_mul_u32_u24 v4, 352, v4")
        a("v_and_b32 v5, 3, v1")
        a("v_lshl_add_u32 v4, v5, 3, v4")
        a("s_mul_i32 s%d, s%d, 96" % (sT0, sRW))
        a("s_add_u32 s%d, s%d, %d" % (sT0, sT0, L_W1))
        a("v_add_u32 v%d, s%d, v4" % (AW[0], sT0))
        a("v_add_u32 v%d, %d, v%d" % (AW[1], 2 * W1_SLOT, AW[0]))
        a("v_add_u32 v%d, %d, v%d" % (AW[2], 4 * W1_SLOT, AW[0]))
        a("v_lshlrev_b32 v5, 4, v2")
        a("v_lshrrev_b32 v4, 1, v3")
        a("v_lshl_add_u32 v5, v4, 8, v5")
        a("v_and_b32 v4, 1, v3")
        a("v_lshl_add_u32 v5, v4, 3, v5")
        a("s_lshr_b32 s%d, s%d, 4" % (sBP, sF0))
        a("s_mul_i32 s%d, s%d, %d" % (sT0, sR, 4 * 44032))
        a("s_mul_i32 s%d, s%d, 3" % (sT1, sRW))
        a("s_add_u32 s%d, s%d, s%d" % (sT2, sT1, sBP))
        a("s_lshl_b32 s%d, s%d, 9" % (sT2, sT2))
        a("s_add_u32 s%d, s%d, s%d" % (sT0, sT0, sT2))
        a("s_add_u32 s%d, s%d, 0x%x" % (sT0, sT0, WS_H))
        a("v_add_u32 v168, s%d, v5" % sT0)
        for tb in range(1, 4):
            a("v_add_u32 v%d, %d, v168" % (168 + tb, 44032 * tb))
        a("s_cmp_ge_u32 s%d, 6" % sC)
        a("s_cselect_b32 s%d, 10, 11" % sNB)
        for b, sr_ in ((1, sINV1), (2, sINV2)):
            a("s_add_u32 s%d, s%d, %d" % (sT2, sT1, b))
            a("s_cmp_lt_u32 s%d, s%d" % (sT2, sNB))
            a("s_cselect_b32 s%d, 0, 0x40000000" % sr_)
        for i in range(48):
            a("v_mov_b32 v%d, 0" % (ACC + i))

        def read_ops(ks):
            buf = BUF[ks % 3]
            j = ks >> 1; ksl = ks & 1; slot = j % NW1
            aw = AW[slot // 2]; so = (slot % 2) * W1_SLOT + ksl * 32 * 352
            def rx(t):
                return lambda: a.lds("ds_read_b128 v[%d:%d], v%d offset:%d" % (buf + 4 * t, buf + 4 * t + 3, AX, L_XN + (j % NXN) * 8192 + t * 2048 + ksl * 1024), "x%d_%d" % (ks, t))
            def rw(b, hh):
                r0 = buf + 16 + 4 * b + 2 * hh
                return lambda: a.lds("ds_read_b64_tr_b16 v[%d:%d], v%d offset:%d" % (r0, r0 + 1, aw, so + hh * 8 * 352 + b * 32), "w%d_%d" % (ks, b))
            if "mnoreads" in self.exp: return []
            return [rw(0, 0), rw(0, 1), rx(0), rx(1), rx(2), rx(3), rw(1, 0), rw(1, 1), rw(2, 0), rw(2, 1)]

        def mfma_ops(ks):
            cur = BUF[ks % 3]
            ops = []
            for b in range(3):
                for t in range(4):
                    def f(b=b, t=t):
                        a.need_lds("w%d_%d" % (ks, b), "x%d_%d" % (ks, t))
                        acc = ACC + (b * 4 + t) * 4
                        if "mnomfma" in self.exp: return
                        a("v_mfma_f32_16x16x32_bf16 v[%d:%d], v[%d:%d], v[%d:%d], v[%d:%d]" % (
                            acc, acc + 3, cur + 16 + 4 * b, cur + 19 + 4 * b, cur + 4 * t, cur + 4 * t + 3, acc, acc + 3))
                    ops.append(f)
            return ops

        a("s_barrier")
        self.stamp(14)
        for f in read_ops(0): f()
        for f in read_ops(1)[:5]: f()
        pend = read_ops(1)[5:]
        for j in range(8):
            if j >= 1 and j <= 6:
                if not ("mnodma" in self.exp and j + 1 >= 5): a.wait_vm("w1c%d" % (j + 1))
                a("s_barrier")
                if "itst" in self.exp: self.stamp(22 + j)
                if j == 2 and not self.noflags: self.publish_h1()
            dm = self.w1_dma_ops(j + 4) if (j + 4 <= 7) else []
            if "mnodma" in self.exp:
                for _ in dm: a.vm.issue("w1c%d" % (j + 4))
                dm = []
            ex = []
            for half in range(2):
                ks = 2 * j + half
                fill = list(pend); pend = []
                if ks + 2 <= 15:
                    fill += read_ops(ks + 2)
                extra = (dm[:3] + ex if half == 0 else dm[3:])
                interleave(a, mfma_ops(ks), merge(fill, extra))
        a.lg0()
        self.stamp(2)
        HB = 68
        for i in range(12):
            a("v_cvt_pk_bf16_f32 v%d, v%d, v%d" % (HB + 2 * i, ACC + 4 * i, ACC + 4 * i + 1))
            a("v_cvt_pk_bf16_f32 v%d, v%d, v%d" % (HB + 2 * i + 1, ACC + 4 * i + 2, ACC + 4 * i + 3))
        for i in range(24):
            a("v_pk_max_i16 v%d, v%d, 0" % (HB + i, HB + i))
        for b in range(3):
            so = "0" if b == 0 else "s%d" % (sINV1 if b == 1 else sINV2)
            for t in range(4):
                r = HB + (b * 4 + t) * 2
                a.vmem("buffer_store_dwordx2 v[%d:%d], v%d, s[%d:%d], %s offen offset:%d sc1" % (r, r + 1, 168 + t, S_WS, S_WS + 3, so, 512 * b), "hst")
        a("s_barrier")

    def get_nonce(self):
        if self.noflags: return
        a = self.a
        a.wait_vm("nonce")
        lo = a.newlabel("L_nz"); lp = a.newlabel("L_nl")
        a("v_readfirstlane_b32 s%d, v19" % sNONCE)
        a("s_nop 3")
        a("s_cmp_lg_u32 s%d, 0" % sNONCE)
        a("s_cbranch_scc1 %s" % lo)
        a("s_mov_b32 s%d, 0" % sT3)
        a.label(lp)
        a("v_mov_b32 v7, 0")
        a("buffer_load_dword v19, v7, s[%d:%d], 0 offen sc1" % (S_DBG, S_DBG + 3))
        a("s_waitcnt vmcnt(0)")
        a("v_readfirstlane_b32 s%d, v19" % sNONCE)
        a("s_add_u32 s%d, s%d, 1" % (sT3, sT3))
        a("s_cmp_gt_u32 s%d, 100000" % sT3)
        a("s_cbranch_scc1 %s" % lo)
        a("s_cmp_eq_u32 s%d, 0" % sNONCE)
        a("s_cbranch_scc1 %s" % lp)
        a.label(lo)

    def flag_store(self, off_sreg, tag, va=2, vb=3):
        if self.noflags: return
        a = self.a
        a("v_mov_b32 v%d, s%d" % (va, off_sreg))
        a("v_mov_b32 v%d, s%d" % (vb, sNONCE))
        a("s_mov_b64 exec, 1")
        a.vmem("buffer_store_dword v%d, v%d, s[%d:%d], 0 offen sc1" % (vb, va, S_WS, S_WS + 3), tag)
        a("s_mov_b64 exec, -1")

    def publish_h1(self):
        a = self.a
        self.get_nonce()
        a.wait_vm("kvt")
        a("s_lshl_b32 s%d, s%d, 7" % (sT0, sID))
        a("s_lshl_b32 s%d, s%d, 2" % (sT2, sRW))
        a("s_add_u32 s%d, s%d, s%d" % (sT0, sT0, sT2))
        a("s_add_u32 s%d, s%d, 0x%x" % (sT0, sT0, F_H1))
        self.flag_store(sT0, "flag")

    def poll(self, base_sreg, nlanes, width, stride):
        if self.noflags: return
        a = self.a
        lp = a.newlabel("L_poll"); dn = a.newlabel("L_pdone")
        a("v_mul_u32_u24 v2, %d, v1" % stride)
        a("v_add_u32 v2, s%d, v2" % base_sreg)
        a("s_mov_b32 s%d, 0" % sT3)
        if nlanes <= 16: a("s_mov_b64 exec, 0x%x" % ((1 << nlanes) - 1))
        else:
            a("s_mov_b32 exec_lo, -1"); a("s_mov_b32 exec_hi, 0")
        a.label(lp)
        if width == 1:
            a("buffer_load_dword v4, v2, s[%d:%d], 0 offen sc1" % (S_WS, S_WS + 3))
            a("s_waitcnt vmcnt(0)")
            a("v_cmp_ne_u32 vcc, s%d, v4" % sNONCE)
        else:
            a("buffer_load_dwordx4 v[4:7], v2, s[%d:%d], 0 offen sc1" % (S_WS, S_WS + 3))
            a("s_waitcnt vmcnt(0)")
            for i in range(4): a("v_xor_b32 v%d, s%d, v%d" % (4 + i, sNONCE, 4 + i))
            a("v_or3_b32 v4, v4, v5, v6")
            a("v_or_b32 v4, v4, v7")
            a("v_cmp_ne_u32 vcc, 0, v4")
        a("s_add_u32 s%d, s%d, 1" % (sT3, sT3))
        a("s_cmp_gt_u32 s%d, 100000" % sT3)
        a("s_cbranch_scc1 %s" % dn)
        a("s_cbranch_vccnz %s" % lp)
        a.label(dn)
        a("s_mov_b64 exec, -1")

    def lds_wait(self, addr_sreg, val=1, va=16, vb=17):
        a = self.a
        lp = a.newlabel("L_ps"); dn = a.newlabel("L_psd")
        a("v_mov_b32 v%d, s%d" % (va, addr_sreg))
        a("s_mov_b32 s%d, 0" % sT3)
        a.label(lp)
        a("ds_read_b32 v%d, v%d" % (vb, va))
        a("s_waitcnt lgkmcnt(0)")
        a("v_readfirstlane_b32 s4, v%d" % vb)
        a("s_add_u32 s%d, s%d, 1" % (sT3, sT3))
        a("s_cmp_ge_u32 s4, %d" % val)
        a("s_cbranch_scc1 %s" % dn)
        a("s_cmp_lt_u32 s%d, 1000000" % sT3)
        a("s_cbranch_scc1 %s" % lp)
        a.label(dn)
        a.lg_clear()

    def pair_sync(self, stage, va=16, vb=17):
        a = self.a
        a("s_lshl_b32 s4, s%d, 2" % sRW)
        a("s_add_u32 s4, s4, %d" % (L_SYNC + 16 * stage))
        a("s_xor_b32 s5, s4, 4")
        a("v_mov_b32 v%d, s4" % va)
        a("v_mov_b32 v%d, 1" % vb)
        a.lg0()
        a("ds_write_b32 v%d, v%d" % (va, vb))
        self.lds_wait(5, 1, va, vb)

    def m_conv(self):
        a = self.a
        BF, ACC, AF, NA = 20, 148, 180, 16
        AU, AT = 2, 3
        a("v_and_b32 v8, 15, v1")
        a("v_lshrrev_b32 v9, 4, v1")
        a("v_lshlrev_b32 v10, 4, v9")
        a("v_lshlrev_b32 v11, 5, v8")
        a("v_sub_u32 v10, v10, v11")
        a("s_lshr_b32 s%d, s%d, 1" % (sT0, sRW))
        a("s_and_b32 s%d, s%d, 1" % (sT1, sRW))
        a("s_mul_i32 s%d, s%d, %d" % (sT2, sT0, U_CH))
        a("s_add_u32 s%d, s%d, %d" % (sT2, sT2, L_U + 2 * 2032 - 64 * 56))
        a("s_lshl_b32 s4, s%d, 6" % sT1)
        a("s_add_u32 s%d, s%d, s4" % (sT2, sT2))
        a("v_add_u32 v%d, s%d, v10" % (AU, sT2))
        a("v_and_b32 v10, 3, v8")
        a("v_mul_u32_u24 v10, %d, v10" % T_CP)
        a("v_lshrrev_b32 v11, 2, v8")
        a("v_lshl_add_u32 v10, v11, 3, v10")
        a("v_lshl_add_u32 v10, v9, 4, v10")
        a("s_mul_i32 s%d, s%d, %d" % (sT2, sT0, T_CH))
        a("s_add_u32 s%d, s%d, s4" % (sT2, sT2))
        a("s_add_u32 s%d, s%d, %d" % (sT2, sT2, L_T))
        a("v_add_u32 v%d, s%d, v10" % (AT, sT2))
        a("v_lshl_add_u32 v10, v9, 3, v8")
        a("s_lshl_b32 s4, s%d, 5" % sT1)
        a("v_add_u32 v10, s4, v10")
        MK = 12
        for d in range(4):
            a("v_sub_u32 v11, %d, v10" % (15 - 2 * d))
            a("v_med3_i32 v11, v11, 0, 2")
            a("v_lshlrev_b32 v11, 4, v11")
            a("v_mov_b32 v%d, -1" % (MK + d))
            a("v_lshlrev_b32 v16, v11, v%d" % (MK + d))
            a("v_cmp_eq_u32 vcc, 32, v11")
            a("v_cndmask_b32_e64 v%d, v16, 0, vcc" % (MK + d))
        for i in range(32):
            a("v_mov_b32 v%d, 0" % (ACC + i))
        def emit_A(ee):
            r = AF + 4 * (ee % NA)
            a.lds("ds_read_b64 v[%d:%d], v%d offset:%d" % (r, r + 1, AT, 128 * ee), ("A", ee))
            a.lds("ds_read_b64 v[%d:%d], v%d offset:%d" % (r + 2, r + 3, AT, 128 * ee + 8), ("A", ee))
        def emit_B(idx):
            r = BF + 4 * idx
            a.lds("ds_read_b128 v[%d:%d], v%d offset:%d" % (r, r + 3, AU, 128 * idx), ("B", idx))
        sched = []
        for ee in range(32):
            for j in range(7, (ee >> 2) - 1, -1):
                sched.append((ee, j, 28 - 4 * j + ee))
        order = []; seen = set(); last_use_A = {}
        for n, (ee, j, idx) in enumerate(sched):
            for it in (("A", ee), ("B", idx)):
                if it not in seen:
                    seen.add(it); order.append(it)
            last_use_A[ee] = n
        ptr = 0; issued = set()
        def can_issue(item, n):
            if item[0] == "A" and item[1] >= NA:
                return last_use_A[item[1] - NA] < n
            return True
        def issue_next(n_now):
            nonlocal ptr
            if ptr < len(order) and can_issue(order[ptr], n_now):
                it = order[ptr]
                (emit_A if it[0] == "A" else emit_B)(it[1])
                issued.add(it); ptr += 1
                return True
            return False
        def inflight():
            return len(a.lg.q) - a.lg_done
        while inflight() < 12 and issue_next(0): pass
        masked = False
        for n, (ee, j, idx) in enumerate(sched):
            while ("A", ee) not in issued or ("B", idx) not in issued:
                assert issue_next(n)
            a.need_lds(("A", ee), ("B", idx))
            ar = AF + 4 * (ee % NA); br = BF + 4 * idx; acc = ACC + 4 * j
            if ee == 0 and not masked:
                for d in range(4): a("v_and_b32 v%d, v%d, v%d" % (ar + d, MK + d, ar + d))
                masked = True
            a("v_mfma_f32_16x16x32_bf16 v[%d:%d], v[%d:%d], v[%d:%d], v[%d:%d]" % (acc, acc + 3, ar, ar + 3, br, br + 3, acc, acc + 3))
            if inflight() < 13:
                issue_next(n + 1)
                if n < 40 and inflight() < 13: issue_next(n + 1)
            if n == 100 and not self.noflags:
                a.wait_vm("hst")
                a("s_lshl_b32 s4, s%d, 3" % sR)
                a("s_add_u32 s4, s4, s%d" % sC)
                a("s_lshl_b32 s4, s4, 7")
                a("s_lshl_b32 s5, s%d, 2" % sRW)
                a("s_add_u32 s4, s4, s5")
                a("s_add_u32 s%d, s4, 0x%x" % (sT2, F_H2))
                self.flag_store(sT2, "flag", 4, 5)
        self.stamp(16)
        self.pair_sync(0)
        a("v_lshlrev_b32 v4, 4, v1")
        a("s_mul_i32 s%d, s%d, %d" % (sT0, sT0, T_CH))
        a("s_add_u32 s%d, s%d, %d" % (sT0, sT0, L_T + 8))
        a("s_lshl_b32 s%d, s%d, 12" % (sT2, sT1))
        a("s_add_u32 s%d, s%d, s%d" % (sT2, sT2, sT0))
        a("v_add_u32 v5, s%d, v4" % sT2)
        a("s_xor_b32 s%d, s%d, 1" % (sT2, sT1))
        a("s_lshl_b32 s%d, s%d, 12" % (sT2, sT2))
        a("s_add_u32 s%d, s%d, s%d" % (sT2, sT2, sT0))
        a("v_add_u32 v6, s%d, v4" % sT2)
        l0 = a.newlabel("L_cr0"); l1 = a.newlabel("L_cr1")
        a("s_cmp_eq_u32 s%d, 0" % sT1)
        a("s_cbranch_scc1 %s" % l0)
        for i in range(4):
            a("ds_write_b128 v5, v[%d:%d] offset:%d" % (ACC + 4 * i, ACC + 4 * i + 3, 1024 * i))
        for i in range(16):
            a("v_mov_b32 v%d, v%d" % (200 + i, ACC + 16 + i))
        a("s_branch %s" % l1)
        a.label(l0)
        for i in range(4):
            a("ds_write_b128 v5, v[%d:%d] offset:%d" % (ACC + 16 + 4 * i, ACC + 16 + 4 * i + 3, 1024 * i))
        for i in range(16):
            a("v_mov_b32 v%d, v%d" % (200 + i, ACC + i))
        a.label(l1)
        a("v_and_b32 v4, 15, v1")
        a("v_lshrrev_b32 v7, 4, v1")
        a("v_lshlrev_b32 v4, 5, v4")
        a("v_lshl_add_u32 v4, v7, 3, v4")
        a("s_lshr_b32 s%d, s%d, 1" % (sT0, sRW))
        a("s_mul_i32 s%d, s%d, %d" % (sT2, sT0, U_CH))
        a("s_add_u32 s%d, s%d, %d" % (sT2, sT2, L_U + 2 * 2044 - 3 * 512))
        a("s_lshl_b32 s4, s%d, 11" % sT1)
        a("s_sub_u32 s%d, s%d, s4" % (sT2, sT2))
        a("v_sub_u32 v4, s%d, v4" % sT2)
        for i in range(4):
            a("ds_read_b64 v[%d:%d], v4 offset:%d" % (236 + 2 * i, 237 + 2 * i, (3 - i) * 512))
        a("s_and_b32 s4, s%d, 0xffff" % sDD)
        a("s_lshr_b32 s5, s%d, 16" % sDD)
        a("s_cmp_eq_u32 s%d, 0" % sT0)
        a("s_cselect_b32 s4, s4, s5")
        a("s_lshl_b32 s5, s4, 16")
        a("v_mov_b32 v8, s4")
        a("v_mov_b32 v9, s5")
        self.pair_sync(1)
        for i in range(4):
            a("ds_read_b128 v[%d:%d], v6 offset:%d" % (220 + 4 * i, 223 + 4 * i, 1024 * i))
        TT = 148
        for i in range(4):
            u0, u1 = 236 + 2 * i, 237 + 2 * i
            a("v_dot2_f32_bf16 v%d, v%d, v9, 0" % (TT + 4 * i + 0, u1))
            a("v_dot2_f32_bf16 v%d, v%d, v8, 0" % (TT + 4 * i + 1, u1))
            a("v_dot2_f32_bf16 v%d, v%d, v9, 0" % (TT + 4 * i + 2, u0))
            a("v_dot2_f32_bf16 v%d, v%d, v8, 0" % (TT + 4 * i + 3, u0))
        TB = 164
        for i in range(4):
            a("v_cvt_pk_bf16_f32 v%d, v%d, v%d" % (TB + 2 * i, TT + 4 * i, TT + 4 * i + 1))
            a("v_cvt_pk_bf16_f32 v%d, v%d, v%d" % (TB + 2 * i + 1, TT + 4 * i + 2, TT + 4 * i + 3))
        a("v_and_b32 v4, 15, v1")
        a("v_lshrrev_b32 v5, 2, v4")
        a("v_lshlrev_b32 v5, 16, v5")
        a("v_and_b32 v4, 3, v4")
        a("v_lshl_add_u32 v5, v4, 5, v5")
        a("v_lshrrev_b32 v7, 4, v1")
        a("v_lshl_add_u32 v5, v7, 3, v5")
        a("s_lshl_b32 s%d, s%d, 6" % (sT2, sC))
        a("s_lshl_b32 s4, s%d, 1" % sR)
        a("s_add_u32 s%d, s%d, s4" % (sT2, sT2))
        a("s_add_u32 s%d, s%d, s%d" % (sT2, sT2, sT0))
        a("s_lshl_b32 s%d, s%d, 7" % (sT2, sT2))
        a("s_lshl_b32 s4, s%d, 20" % sT1)
        a("s_add_u32 s%d, s%d, s4" % (sT2, sT2))
        a("s_add_u32 s%d, s%d, 0x%x" % (sT2, sT2, WS_YT))
        a("v_add_u32 v5, s%d, v5" % sT2)
        a.lg0()
        for i in range(16):
            a("v_add_f32 v%d, v%d, v%d" % (200 + i, 200 + i, 220 + i))
        YB = 172
        for i in range(8):
            a("v_cvt_pk_bf16_f32 v%d, v%d, v%d" % (YB + i, 200 + 2 * i, 201 + 2 * i))
        for i in range(8):
            a("v_perm_b32 v%d, v%d, v%d, s%d" % (200 + 2 * i, TB + i, YB + i, sP0))
            a("v_perm_b32 v%d, v%d, v%d, s%d" % (201 + 2 * i, TB + i, YB + i, sP1))
        for i in range(16):
            a("v_dot2_f32_bf16 v%d, v%d, v%d, 0" % (220 + i, 200 + i, vONES))
        for i in range(8):
            a("v_cvt_pk_bf16_f32 v%d, v%d, v%d" % (180 + i, 220 + 2 * i, 221 + 2 * i))
        for i in range(4):
            if i: a("v_add_u32 v5, 0x40000, v5")
            a.vmem("buffer_store_dwordx2 v[%d:%d], v5, s[%d:%d], 0 offen sc1" % (180 + 2 * i, 181 + 2 * i, S_WS, S_WS + 3), "yst")
        self.stamp(17)

    def w2_voff(self):
        a = self.a
        a("v_lshrrev_b32 v2, 3, v1")
        a("v_and_b32 v2, 3, v2")
        a("v_lshrrev_b32 v3, 5, v1")
        a("v_lshl_add_u32 v2, v3, 3, v2")
        a("v_lshlrev_b32 v2, 10, v2")
        a("v_lshrrev_b32 v3, 4, v1")
        a("v_and_b32 v3, 3, v3")
        a("v_lshlrev_b32 v3, 1, v3")
        a("v_and_b32 v4, 7, v1")
        a("v_xor_b32 v3, v3, v4")
        a("v_lshl_add_u32 v2, v3, 4, v2")
        a("s_lshl_b32 s%d, s%d, 7" % (sT0, sC))
        a("v_add_u32 v14, s%d, v2" % sT0)

    def w2_dma(self, lds_base_sreg, lds_off, src_base_sreg, ks_off, tag):
        a = self.a
        a("s_add_u32 s%d, s%d, %d" % (sT2, src_base_sreg, ks_off * 32768))
        for m in range(4):
            a("s_add_u32 m0, s%d, %d" % (lds_base_sreg, lds_off + 1024 * m))
            if m: a("s_add_u32 s%d, s%d, %d" % (sT2, sT2, [0, 4096, 12288, 4096][m]))
            a.vmem("buffer_load_dwordx4 v14, s[%d:%d], s%d offen lds" % (S_W2, S_W2 + 3, sT2), tag)

    def m_tail(self):
        a = self.a
        self.w2_voff()
        a("s_lshr_b32 s75, s%d, 1" % sRW)
        a("s_and_b32 s76, s%d, 1" % sRW)
        a("s_mul_i32 s70, s75, %d" % (22 * 32768))
        a("v_mov_b32 v16, %d" % (L_SYNC + 48))
        a("v_mov_b32 v17, 1")
        a.lg0()
        a("s_mov_b64 exec, 1")
        a("ds_add_u32 v16, v17")
        a("s_mov_b64 exec, -1")
        a("s_mov_b32 s5, %d" % (L_SYNC + 48))
        self.lds_wait(5, 4)
        a("s_mul_i32 s71, s75, 20480")
        a("s_add_u32 s71, s71, %d" % L_A)
        a("s_lshl_b32 s4, s76, 12")
        a("s_add_u32 s71, s71, s4")
        a("s_lshl_b32 s4, s76, 15")
        a("s_add_u32 s70, s70, s4")
        self.w2_dma(71, 0, 70, 12, "w2a")
        self.w2_dma(71, 8192, 70, 14, "w2a")
        sk = a.newlabel("L_ma")
        a("s_cmp_eq_u32 s76, 1")
        a("s_cbranch_scc1 %s" % sk)
        q = list(a.vm.q)
        self.w2_dma(71, 16384, 70, 16, "w2a")
        a.vm.q = q
        a.label(sk)
        self.final_x_load(240, 244)
        a("s_waitcnt vmcnt(0)")
        a.vm.q = []
        if not self.noflags:
            a("s_lshl_b32 s4, s%d, 7" % sID)
            a("s_lshl_b32 s5, s%d, 2" % sRW)
            a("s_add_u32 s4, s4, s5")
            a("s_add_u32 s%d, s4, 0x%x" % (sT2, F_H3))
            self.flag_store(sT2, "flag", 2, 3)
        self.stamp(18)
        a("s_barrier")
        a("s_mul_i32 s71, s75, %d" % B_HALF)
        a("s_lshl_b32 s4, s76, 12")
        a("s_add_u32 s71, s71, s4")
        if L_B: a("s_add_u32 s71, s71, %d" % L_B)
        self.w2_dma(71, 0, 70, 18, "w2l")
        self.w2_dma(71, 8192, 70, 20, "w2l")
        a("s_waitcnt vmcnt(0)")
        a("s_barrier")
        if not self.noflags:
            a("s_lshl_b32 s%d, s%d, 12" % (sT0, sC))
            a("s_add_u32 s%d, s%d, 0x%x" % (sT0, sT0, F_H3))
            self.poll(sT0, 32, 4, 128)
        self.stamp(7)
        a("v_lshrrev_b32 v3, 2, v0")
        a("v_and_b32 v4, 3, v0")
        a("v_lshlrev_b32 v5, 7, v3")
        a("v_lshl_add_u32 v5, v4, 5, v5")
        a("s_lshl_b32 s%d, s%d, 16" % (sT0, sR))
        a("s_lshl_b32 s%d, s%d, 13" % (sT1, sC))
        a("s_add_u32 s%d, s%d, s%d" % (sT0, sT0, sT1))
        a("s_add_u32 s%d, s%d, 0x%x" % (sT0, sT0, WS_YT))
        a("v_add_u32 v5, s%d, v5" % sT0)
        a.vmem("buffer_load_dwordx4 v[20:23], v5, s[%d:%d], 0 offen sc1" % (S_WS, S_WS + 3), "y")
        a.vmem("buffer_load_dwordx4 v[24:27], v5, s[%d:%d], 0 offen offset:16 sc1" % (S_WS, S_WS + 3), "y")
        a("v_mul_u32_u24 v6, 144, v3")
        a("v_lshl_add_u32 v6, v4, 5, v6")
        a("v_add_u32 v6, %d, v6" % L_Y)
        a("s_waitcnt vmcnt(0)")
        a("ds_write_b128 v6, v[20:23]")
        a("ds_write_b128 v6, v[24:27] offset:16")
        a.lg0()
        a("s_barrier")

    def final_x_load(self, xr, ar):
        a = self.a
        a("s_and_b32 s%d, s%d, 3" % (sT0, sW))
        a("s_lshl_b32 s%d, s%d, 4" % (sT0, sT0))
        a("s_lshl_b32 s%d, s%d, 6" % (sT1, sR))
        a("s_add_u32 s%d, s%d, s%d" % (sT0, sT0, sT1))
        a("s_lshl_b32 s%d, s%d, 10" % (sT0, sT0))
        a("s_lshl_b32 s%d, s%d, 7" % (sT1, sC))
        a("s_add_u32 s%d, s%d, s%d" % (sT0, sT0, sT1))
        a("s_lshr_b32 s%d, s%d, 2" % (sT1, sW))
        a("s_lshl_b32 s%d, s%d, 6" % (sT1, sT1))
        a("s_add_u32 s%d, s%d, s%d" % (sT0, sT0, sT1))
        a("v_lshrrev_b32 v2, 2, v1")
        a("v_lshlrev_b32 v2, 10, v2")
        a("v_and_b32 v3, 3, v1")
        a("v_lshl_add_u32 v2, v3, 4, v2")
        a("v_add_u32 v%d, s%d, v2" % (ar, sT0))
        a.vmem("buffer_load_dwordx4 v[%d:%d], v%d, s[%d:%d], 0 offen" % (xr, xr + 3, ar, S_X, S_X + 3), "xf")

    def u_slow(self):
        a = self.a
        a.label("L_uslow")
        a("s_lshl_b32 s%d, s%d, 12" % (sT0, sC))
        a("s_add_u32 s%d, s%d, 0x%x" % (sT0, sT0, F_H1))
        self.poll(sT0, 32, 1, 128)
        for i in range(4):
            a("buffer_load_dwordx4 v[%d:%d], v172, s[%d:%d], 0 offen offset:%d sc1" % (152 + 4 * i, 155 + 4 * i, S_WS, S_WS + 3, 1024 * i))
        a("s_waitcnt vmcnt(0)")
        for i in range(4):
            a("ds_write_b128 v174, v[%d:%d] offset:%d" % (152 + 4 * i, 155 + 4 * i, 1024 * i))
        a("s_waitcnt lgkmcnt(0)")
        a("s_branch L_uback")

    NEGM, RS, NMRS = 100, 101, 102
    def norm2(self, X, t):
        L = []
        L.append("v_lshlrev_b32 v%d, 16, v%d" % (t + 0, X))
        L.append("v_and_b32 v%d, v%d, v%d" % (t + 1, vMHI, X))
        L.append("v_lshlrev_b32 v%d, 16, v%d" % (t + 2, X + 1))
        L.append("v_and_b32 v%d, v%d, v%d" % (t + 3, vMHI, X + 1))
        if self.relax_ln:
            for i in range(4):
                L.append("v_fma_f32 v%d, v%d, v%d, v%d" % (t + i, t + i, self.RS, self.NMRS))
        else:
            for i in range(4):
                L.append("v_add_f32 v%d, v%d, v%d" % (t + i, t + i, self.NEGM))
            L.append("v_cvt_pk_bf16_f32 v%d, v%d, v%d" % (t + 4, t + 0, t + 1))
            L.append("v_cvt_pk_bf16_f32 v%d, v%d, v%d" % (t + 5, t + 2, t + 3))
            L.append("v_lshlrev_b32 v%d, 16, v%d" % (t + 0, t + 4))
            L.append("v_and_b32 v%d, v%d, v%d" % (t + 1, vMHI, t + 4))
            L.append("v_lshlrev_b32 v%d, 16, v%d" % (t + 2, t + 5))
            L.append("v_and_b32 v%d, v%d, v%d" % (t + 3, vMHI, t + 5))
            for i in range(4):
                L.append("v_mul_f32 v%d, v%d, v%d" % (t + i, t + i, self.RS))
        L.append("v_cvt_pk_bf16_f32 v%d, v%d, v%d" % (X, t + 0, t + 1))
        L.append("v_cvt_pk_bf16_f32 v%d, v%d, v%d" % (X + 1, t + 2, t + 3))
        return L

    def norm_chunk(self, j):
        a = self.a
        X = 20 + 8 * j
        for half in range(2):
            s1 = self.norm2(X + 4 * half, 104); s2 = self.norm2(X + 4 * half + 2, 110)
            for x, y in zip(s1, s2):
                a(x); a(y)
            a.lds("ds_write_b128 v116, v[%d:%d] offset:%d" % (X + 4 * half, X + 4 * half + 3, L_XN + (j % NXN) * 8192 + half * 1024), "xw")

    def h_front(self):
        a = self.a
        a.vm = Q(); a.lg_clear()
        a("s_setprio 1")
        a("s_lshl_b32 s%d, s%d, 16" % (sT0, sR))
        a("s_lshl_b32 s%d, s%d, 14" % (sT1, sRW))
        a("s_add_u32 s%d, s%d, s%d" % (sT0, sT0, sT1))
        a("v_lshrrev_b32 v6, 2, v1")
        a("v_lshlrev_b32 v6, 10, v6")
        a("v_and_b32 v7, 3, v1")
        a("v_lshl_add_u32 v6, v7, 4, v6")
        a("v_add_u32 v6, s%d, v6" % sT0)
        a("s_lshl_b32 s%d, s%d, 7" % (sT0, sROT))
        a.lg0()
        if self.stamps:
            a("s_memrealtime s[4:5]"); a.lg0(); a("v_writelane_b32 v255, s4, 0")
        for j in range(8):
            if j:
                a("s_add_u32 s%d, s%d, 128" % (sT0, sT0))
                a("s_and_b32 s%d, s%d, 1023" % (sT0, sT0))
            a.vmem("buffer_load_dwordx4 v[%d:%d], v6, s[%d:%d], s%d offen" % (20 + 8 * j, 23 + 8 * j, S_X, S_X + 3, sT0), "x")
            a.vmem("buffer_load_dwordx4 v[%d:%d], v6, s[%d:%d], s%d offen offset:64" % (24 + 8 * j, 27 + 8 * j, S_X, S_X + 3, sT0), "x")
        self.w1_voffs()
        for f in self.w1_dma_ops(0) + self.w1_dma_ops(1): f()
        a("s_setprio 0")
        if not self.noflags:
            a("v_mov_b32 v7, 0")
        a("v_lshrrev_b32 v4, 2, v1")
        a("v_and_b32 v5, 3, v1")
        a("v_lshlrev_b32 v2, 1, v5")
        a("v_xor_b32 v4, v4, v2")
        a("v_lshlrev_b32 v4, 4, v4")
        a("v_lshl_add_u32 v4, v5, 8, v4")
        a("s_lshl_b32 s%d, s%d, 11" % (sT2, sRW))
        a("v_add_u32 v116, s%d, v4" % sT2)

    def h_ssm_load(self):
        a = self.a
        a("s_lshl_b32 s%d, s%d, 6" % (sT2, sC))
        a("s_lshl_b32 s%d, s%d, 1" % (sT1, sR))
        a("s_add_u32 s%d, s%d, s%d" % (sT2, sT2, sT1))
        a("s_lshl_b32 s%d, s%d, 12" % (sT2, sT2))
        a("v_and_b32 v3, 255, v0")
        a("v_lshlrev_b32 v3, 4, v3")
        a("v_add_u32 v2, s%d, v3" % sT2)
        a("v_add_u32 v4, -8, v2")
        for ch in range(2):
            a.vmem("buffer_load_dwordx2 v[%d:%d], v4, s[%d:%d], 0 offen" % (84 + 6 * ch, 85 + 6 * ch, S_SSM, S_SSM + 3), "ssm")
            a.vmem("buffer_load_dwordx4 v[%d:%d], v2, s[%d:%d], 0 offen" % (86 + 6 * ch, 89 + 6 * ch, S_SSM, S_SSM + 3), "ssm")
            if ch == 0:
                a("v_add_u32 v2, 4096, v2")
                a("v_add_u32 v4, 4096, v4")

    def h_stats(self):
        a = self.a
        X = 20
        a.wait_vm("x")
        self.stamp(13)
        for i in range(8): a("v_mov_b32 v%d, 0" % (104 + i))
        for i in range(64):
            a("v_dot2_f32_bf16 v%d, v%d, v%d, v%d" % (104 + (i & 3), X + i, vONES, 104 + (i & 3)))
            a("v_dot2_f32_bf16 v%d, v%d, v%d, v%d" % (108 + (i & 3), X + i, X + i, 108 + (i & 3)))
        a("v_add_f32 v104, v104, v105"); a("v_add_f32 v106, v106, v107")
        a("v_add_f32 v108, v108, v109"); a("v_add_f32 v110, v110, v111")
        a("v_add_f32 v2, v104, v106"); a("v_add_f32 v3, v108, v110")
        for ctl in ("quad_perm:[1,0,3,2]", "quad_perm:[2,3,0,1]"):
            a("v_add_f32_dpp v2, v2, v2 %s row_mask:0xf bank_mask:0xf" % ctl)
            a("v_add_f32_dpp v3, v3, v3 %s row_mask:0xf bank_mask:0xf" % ctl)
        a("v_mul_f32 v2, 0x3b000000, v2")
        a("v_mul_f32 v3, 0x3b000000, v3")
        a("v_cvt_pk_bf16_f32 v4, v2, v2")
        a("v_fma_f32 v3, -v2, v2, v3")
        a("v_lshlrev_b32 v4, 16, v4")
        a("v_max_f32 v3, 0, v3")
        a("v_cvt_pk_bf16_f32 v3, v3, v3")
        a("v_lshlrev_b32 v3, 16, v3")
        a("v_add_f32 v3, 0x3727c5ac, v3")
        a("v_cvt_pk_bf16_f32 v3, v3, v3")
        a("v_lshlrev_b32 v3, 16, v3")
        a("v_sqrt_f32 v3, v3")
        a("v_cvt_pk_bf16_f32 v3, v3, v3")
        a("v_lshlrev_b32 v3, 16, v3")
        a("v_rcp_f32 v%d, v3" % self.RS)
        a("v_sub_f32 v%d, 0, v4" % self.NEGM)
        a("v_mul_f32 v%d, v%d, v%d" % (self.NMRS, self.NEGM, self.RS))
        a("v_lshrrev_b32 v6, 2, v1")
        a("s_lshl_b32 s%d, s%d, 4" % (sT2, sRW))
        a("v_add_u32 v6, s%d, v6" % sT2)
        a("v_lshlrev_b32 v5, 3, v6")
        a("v_add_u32 v5, %d, v5" % L_STATS)
        a("v_mov_b32 v2, v4")
        a("v_mov_b32 v3, v%d" % self.RS)
        a.lds("ds_write_b64 v5, v[2:3]", "st")

    def h_tbuild(self, ch):
        a = self.a
        D = 84 + 6 * ch
        E = 118
        for p in range(5):
            a("v_alignbit_b32 v%d, v%d, v%d, 16" % (E + p, D + p + 1, D + p))
        for p in range(4):
            a("v_mov_b32 v%d, v%d" % (124 + p, D + 1 + p))
            a("v_mov_b32 v%d, v%d" % (128 + p, E + 1 + p))
        a("v_and_b32 v3, 255, v0")
        a("v_lshlrev_b32 v3, 4, v3")
        a("v_add_u32 v3, %d, v3" % (L_T + ch * T_CH + 24))
        a("ds_write_b128 v3, v[118:121]")
        a("ds_write_b128 v3, v[124:127] offset:%d" % T_CP)
        a("ds_write_b128 v3, v[128:131] offset:%d" % (2 * T_CP))
        a("ds_write_b128 v3, v[%d:%d] offset:%d" % (D + 2, D + 5, 3 * T_CP))

    def h_uload(self):
        a = self.a
        if not self.noflags:
            a("s_lshl_b32 s%d, s%d, 12" % (sT0, sC))
            a("s_add_u32 s%d, s%d, 0x%x" % (sT0, sT0, F_H1))
            self.poll(sT0, 32, 4, 128)
        self.stamp(3)
        a("s_lshl_b32 s%d, s%d, 6" % (sT0, sC))
        a("s_lshl_b32 s%d, s%d, 1" % (sT1, sR))
        a("s_add_u32 s%d, s%d, s%d" % (sT0, sT0, sT1))
        a("s_lshl_b32 s%d, s%d, 12" % (sT0, sT0))
        a("s_lshl_b32 s%d, s%d, 11" % (sT1, sRW))
        a("s_add_u32 s%d, s%d, s%d" % (sT0, sT0, sT1))
        a("v_lshlrev_b32 v4, 4, v1")
        a("v_add_u32 v5, s%d, v4" % sT0)
        a.vmem("buffer_load_dwordx4 v[20:23], v5, s[%d:%d], 0 offen sc1" % (S_WS, S_WS + 3), "u")
        a.vmem("buffer_load_dwordx4 v[24:27], v5, s[%d:%d], 0 offen offset:1024 sc1" % (S_WS, S_WS + 3), "u")
        a("s_lshr_b32 s%d, s%d, 1" % (sT0, sRW))
        a("s_mul_i32 s%d, s%d, %d" % (sT0, sT0, U_CH))
        a("s_and_b32 s%d, s%d, 1" % (sT1, sRW))
        a("s_lshl_b32 s%d, s%d, 11" % (sT2, sT1))
        a("s_add_u32 s%d, s%d, s%d" % (sT0, sT0, sT2))
        a("s_add_u32 s%d, s%d, %d" % (sT0, sT0, L_U))
        a("v_add_u32 v6, s%d, v4" % sT0)
        for i in range(4): a("v_mov_b32 v%d, 0" % (28 + i))
        a("s_cmp_eq_u32 s%d, 1" % sT1)
        a("s_cselect_b32 exec_lo, -1, 0")
        a("s_mov_b32 exec_hi, 0")
        a("ds_write_b128 v6, v[28:31] offset:2048")
        a("s_mov_b64 exec, -1")
        a.wait_vm("u")
        a("ds_write_b128 v6, v[20:23]")
        a("ds_write_b128 v6, v[24:27] offset:1024")

    def norm_seq(self, j):
        a = self.a
        X = 20 + 8 * j
        seq = []
        for half in range(2):
            s1 = self.norm2(X + 4 * half, 104); s2 = self.norm2(X + 4 * half + 2, 110)
            if "hnonorm" in self.exp and j >= 2:
                s1 = ["s_nop 0"] * 8; s2 = ["s_nop 0"] * 8
            for x, y in zip(s1, s2):
                seq.append(x); seq.append(y)
        if not ("hnowrite" in self.exp and j >= 2):
            for half in range(2):
                seq.append(lambda half=half: a.lds("ds_write_b128 v116, v[%d:%d] offset:%d" % (X + 4 * half, X + 4 * half + 3, L_XN + (j % NXN) * 8192 + half * 1024), "xw%d" % j))
        return seq

    def h_gemm1_side(self):
        a = self.a
        for x in self.norm_seq(0): self.run(x)
        s1 = self.norm_seq(1)
        h = len(s1) // 2
        for x in s1[:h]: self.run(x)
        a("s_barrier")
        for x in s1[h:]: self.run(x)
        if not self.noflags:
            a.vmem("buffer_load_dword v19, v7, s[%d:%d], 0 offen sc1" % (S_DBG, S_DBG + 3), "nonce")
        s2 = self.norm_seq(2)
        for x in s2[:h]: self.run(x)
        a.need_lds("xw0", "xw1")
        a.wait_vm("w1c1")
        a("s_barrier")
        for x in s2[h:]: self.run(x)
        for j in range(8):
            if j + 3 <= 7:
                for x in self.norm_seq(j + 3): self.run(x)
            if j == 1: self.h_ssm_load()
            if j == 5:
                a.wait_vm("ssm")
                self.h_tbuild(0)
            if j == 6:
                self.h_tbuild(1)
            if j + 1 <= 6:
                if j + 2 <= 7 and "hnowrite" not in self.exp: a.need_lds("xw%d" % (j + 2))
                a("s_barrier")
                if "itst" in self.exp: self.stamp(23 + j)
        self.get_nonce()
        self.h_uload()
        self.w2_voff()
        a.lg0()
        a("s_barrier")
        self.stamp(2)

    def h_gemm2(self):
        a = self.a
        HF, ACC = 20, 196
        WBUF = [228, 2]
        AB = 244
        PF = 10
        a("s_lshr_b32 s75, s%d, 1" % sRW)
        a("s_and_b32 s76, s%d, 1" % sRW)
        a("s_mul_i32 s70, s75, %d" % (22 * 32768))
        a("s_lshl_b32 s4, s76, 15")
        a("s_add_u32 s70, s70, s4")
        a("s_mul_i32 s71, s75, %d" % B_HALF)
        a("s_lshl_b32 s4, s76, 12")
        a("s_add_u32 s71, s71, s4")
        for m in range(NB_H // 2):
            self.w2_dma(71, L_B + 8192 * m, 70, 2 * m, "w2b")
        a("s_mul_i32 s71, s75, 4096")
        a("s_lshl_b32 s4, s76, 11")
        a("s_add_u32 s71, s71, s4")
        a("s_mul_i32 s%d, s75, %d" % (sT2, 22 * 32768))
        a("s_lshl_b32 s4, s76, 14")
        a("s_add_u32 s%d, s%d, s4" % (sT2, sT2))
        a("s_add_u32 s%d, s%d, %d" % (sT2, sT2, 17 * 32768))
        a("s_add_u32 m0, s71, %d" % L_C)
        a.vmem("buffer_load_dwordx4 v14, s[%d:%d], s%d offen lds" % (S_W2, S_W2 + 3, sT2), "w2b")
        a("s_add_u32 m0, s71, %d" % (L_C + 1024))
        a("s_add_u32 s%d, s%d, 4096" % (sT2, sT2))
        a.vmem("buffer_load_dwordx4 v14, s[%d:%d], s%d offen lds" % (S_W2, S_W2 + 3, sT2), "w2b")
        a("s_lshl_b32 s%d, s%d, 2" % (sT2, sR))
        a("s_lshl_b32 s4, s76, 1")
        a("s_add_u32 s%d, s%d, s4" % (sT2, sT2))
        a("s_mul_i32 s%d, s%d, 44032" % (sT2, sT2))
        a("s_mul_i32 s4, s75, %d" % (22 * 1024))
        a("s_add_u32 s%d, s%d, s4" % (sT2, sT2))
        a("s_add_u32 s%d, s%d, 0x%x" % (sT2, sT2, WS_H))
        a("v_lshlrev_b32 v18, 4, v1")
        a("v_add_u32 v18, s%d, v18" % sT2)
        a("v_add_u32 v19, 44032, v18")
        a("v_lshrrev_b32 v2, 4, v1")
        a("v_and_b32 v3, 15, v1")
        a("v_lshrrev_b32 v3, 2, v3")
        a("v_lshrrev_b32 v4, 1, v2")
        a("v_lshlrev_b32 v4, 4, v4")
        a("v_and_b32 v5, 1, v2")
        a("v_lshl_add_u32 v4, v5, 2, v4")
        a("v_add_u32 v4, v4, v3")
        a("v_lshlrev_b32 v4, 7, v4")
        a("v_and_b32 v6, 1, v1")
        a("v_lshl_add_u32 v4, v6, 3, v4")
        a("v_lshlrev_b32 v5, 1, v5")
        a("v_lshrrev_b32 v6, 1, v3")
        a("v_add_u32 v5, v5, v6")
        a("v_lshlrev_b32 v5, 1, v5")
        a("v_and_b32 v6, 3, v1")
        a("v_lshrrev_b32 v6, 1, v6")
        a("s_mul_i32 s4, s75, %d" % B_HALF)
        if L_B: a("s_add_u32 s4, s4, %d" % L_B)
        for b in range(4):
            a("v_add_u32 v7, %d, v6" % (2 * b))
            a("v_xor_b32 v7, v7, v5")
            a("v_lshl_add_u32 v7, v7, 4, v4")
            a("v_add_u32 v%d, s4, v7" % (AB + b))
        a("s_mul_i32 s5, s75, 20480")
        a("s_add_u32 s5, s5, %d" % L_A)
        a("s_sub_u32 s77, s5, s4")
        a("s_mul_i32 s79, s75, 4096")
        a("s_add_u32 s79, s79, %d" % L_C)
        a("s_sub_u32 s78, s79, s5")
        a("s_sub_u32 s79, s4, s79")
        for i in range(32): a("v_mov_b32 v%d, 0" % (ACC + i))
        a("s_waitcnt vmcnt(0)")
        a.vm.q = []
        self.pair_sync(2, 253, 254)
        self.stamp(5)
        if not self.noflags:
            a("s_lshl_b32 s%d, s%d, 10" % (sT0, sR))
            a("s_add_u32 s%d, s%d, 0x%x" % (sT0, sT0, F_H2))
            self.poll(sT0, 8, 4, 128)
        self.stamp(6)

        def hload(i):
            ops = []
            for t in range(2):
                def f(t=t):
                    r = HF + (i * 2 + t) * 4
                    so = i * 1024
                    if so < 4096:
                        a.vmem("buffer_load_dwordx4 v[%d:%d], v%d, s[%d:%d], 0 offen offset:%d sc1" % (r, r + 3, 18 + t, S_WS, S_WS + 3, so), "h%d" % i)
                    else:
                        if t == 0: a("s_mov_b32 s80, %d" % (so & ~4095))
                        a.vmem("buffer_load_dwordx4 v[%d:%d], v%d, s[%d:%d], s80 offen offset:%d sc1" % (r, r + 3, 18 + t, S_WS, S_WS + 3, so & 4095), "h%d" % i)
                ops.append(f)
            return ops

        def read_ops(i):
            buf = WBUF[i & 1]
            if i < 12: so = i * 4096
            elif i < 17: so = (i - 12) * 4096
            elif i < 18: so = 0
            else: so = (i - 18) * 4096
            ops = []
            sw = {12: 77, 17: 78, 18: 79}.get(i)
            if sw:
                for b in range(4): ops.append("v_add_u32 v%d, s%d, v%d" % (AB + b, sw, AB + b))
            for b in range(4):
                for hh in range(2):
                    r0 = buf + 4 * b + 2 * hh
                    ops.append(lambda r0=r0, b=b, hh=hh: a.lds("ds_read_b64_tr_b16 v[%d:%d], v%d offset:%d" % (r0, r0 + 1, AB + b, so + hh * 1024), "w%d_%d" % (i, b)))
            return ops

        def mfma_ops(i):
            buf = WBUF[i & 1]
            ops = []
            for b in range(4):
                for t in range(2):
                    def f(b=b, t=t):
                        if b == 0 and t == 0: a.wait_vm("h%d" % i)
                        a.need_lds("w%d_%d" % (i, b))
                        acc = ACC + (b * 2 + t) * 4
                        hr = HF + (i * 2 + t) * 4
                        a("v_mfma_f32_16x16x32_bf16 v[%d:%d], v[%d:%d], v[%d:%d], v[%d:%d]" % (acc, acc + 3, buf + 4 * b, buf + 4 * b + 3, hr, hr + 3, acc, acc + 3))
                    ops.append(f)
            return ops

        for i in range(PF):
            for f in hload(i): f()
        self.stamp(19)
        for f in read_ops(0): self.run(f)
        last = a.newlabel("L_g2l")
        for i in range(22):
            if i == 11:
                a.lg0()
                a("s_barrier")
            if i == 17:
                a.lg0()
                a("s_barrier")
            if i == 21:
                a("s_cmp_eq_u32 s75, 1")
                a("s_cbranch_scc1 %s" % last)
            fill = []
            if i < 21: fill += read_ops(i + 1)
            if i + PF < 22: fill = hload(i + PF) + fill
            interleave(a, mfma_ops(i), fill)
        a.label(last)
        a.lg0()
        self.stamp(22)
        a("v_and_b32 v2, 15, v1")
        a("v_lshrrev_b32 v3, 4, v1")
        a("v_mul_u32_u24 v2, 272, v2")
        a("v_lshl_add_u32 v2, v3, 4, v2")
        a("s_mul_i32 s4, s75, 20480")
        a("s_mul_i32 s5, s76, %d" % (32 * 272))
        a("s_add_u32 s4, s4, s5")
        a("s_add_u32 s4, s4, %d" % L_P)
        a("v_add_u32 v2, s4, v2")
        for b in range(4):
            for t in range(2):
                acc = ACC + (b * 2 + t) * 4
                a("ds_write_b128 v2, v[%d:%d] offset:%d" % (acc, acc + 3, t * 16 * 272 + b * 64))
        self.final_x_load(240, 244)
        a.lg0()
        a("s_barrier")

    def final(self):
        a = self.a
        P0 = L_P; P1 = L_P + 20480; YL = L_Y
        XR = 240; OA = 244
        a("s_and_b32 s%d, s%d, 3" % (sT0, sW))
        a("s_lshr_b32 s%d, s%d, 2" % (sT1, sW))
        a("v_lshrrev_b32 v2, 2, v1")
        a("v_and_b32 v3, 3, v1")
        a("s_lshl_b32 s4, s%d, 4" % sT0)
        a("v_add_u32 v2, s4, v2")
        a("v_mul_u32_u24 v4, 272, v2")
        a("v_lshl_add_u32 v4, v3, 5, v4")
        a("s_lshl_b32 s4, s%d, 7" % sT1)
        a("s_add_u32 s4, s4, %d" % P0)
        a("v_add_u32 v4, s4, v4")
        a("ds_read_b128 v[20:23], v4")
        a("ds_read_b128 v[24:27], v4 offset:16")
        a("ds_read_b128 v[28:31], v4 offset:%d" % (P1 - P0))
        a("ds_read_b128 v[32:35], v4 offset:%d" % (P1 - P0 + 16))
        a("v_lshlrev_b32 v6, 3, v2")
        a("v_add_u32 v6, %d, v6" % L_STATS)
        a("ds_read_b64 v[36:37], v6")
        a("v_lshrrev_b32 v7, 4, v1")
        a("v_lshlrev_b32 v7, 3, v7")
        a("v_and_b32 v8, 15, v1")
        a("v_lshrrev_b32 v8, 2, v8")
        a("v_add_u32 v7, v7, v8")
        a("s_lshl_b32 s4, s%d, 5" % sT1)
        a("v_add_u32 v7, s4, v7")
        a("v_mul_u32_u24 v7, 144, v7")
        a("v_and_b32 v8, 3, v1")
        a("v_lshl_add_u32 v7, v8, 3, v7")
        a("s_lshl_b32 s4, s%d, 5" % sT0)
        a("s_add_u32 s4, s4, %d" % YL)
        a("v_add_u32 v7, s4, v7")
        a("ds_read_b64_tr_b16 v[38:39], v7")
        a("ds_read_b64_tr_b16 v[40:41], v7 offset:%d" % (4 * 144))
        a("v_and_b32 v8, 3, v1")
        a("v_lshlrev_b32 v8, 4, v8")
        a("v_lshrrev_b32 v9, 2, v1")
        a("v_or_b32 v8, v8, v9")
        a("v_lshlrev_b32 v8, 2, v8")
        a("v_mov_b32 v10, 0xbfb8aa3b")
        a("v_mov_b32 v11, 1.0")
        a("s_waitcnt lgkmcnt(0)")
        for i in range(4):
            a("ds_bpermute_b32 v%d, v8, v%d" % (42 + i, 38 + i))
        for i in range(8):
            a("v_add_f32 v%d, v%d, v%d" % (20 + i, 20 + i, 28 + i))
        for i in range(4):
            a("v_cvt_pk_bf16_f32 v%d, v%d, v%d" % (28 + i, 20 + 2 * i, 21 + 2 * i))
        for i in range(4):
            a("v_alignbit_b32 v%d, v%d, 0, 16" % (20 + 2 * i, 28 + i))
            a("v_and_b32 v%d, v%d, v%d" % (21 + 2 * i, vMHI, 28 + i))
        for i in range(8):
            a("v_mul_f32 v%d, v10, v%d" % (48 + i, 20 + i))
        for i in range(8):
            a("v_exp_f32 v%d, v%d" % (48 + i, 48 + i))
        a("s_waitcnt vmcnt(0)")
        a("v_sub_f32 v12, 0, v36")
        for i in range(4):
            a("v_dot2_f32_bf16 v%d, v%d, v%d, v12" % (72 + 2 * i, XR + i, vONELO))
            a("v_dot2_f32_bf16 v%d, v%d, v%d, v12" % (73 + 2 * i, XR + i, vONEHI))
        for i in range(8):
            a("v_add_f32 v%d, v11, v%d" % (48 + i, 48 + i))
        for i in range(4):
            a("v_cvt_pk_bf16_f32 v%d, v%d, v%d" % (80 + i, 72 + 2 * i, 73 + 2 * i))
        for i in range(8):
            a("v_rcp_f32 v%d, v%d" % (48 + i, 48 + i))
        for i in range(4):
            a("v_alignbit_b32 v%d, v%d, 0, 16" % (72 + 2 * i, 80 + i))
            a("v_and_b32 v%d, v%d, v%d" % (73 + 2 * i, vMHI, 80 + i))
        for i in range(8):
            a("v_mul_f32 v%d, v%d, v37" % (72 + i, 72 + i))
        for i in range(8):
            a("v_mul_f32 v%d, v%d, v%d" % (20 + i, 20 + i, 48 + i))
        for i in range(4):
            a("v_cvt_pk_bf16_f32 v%d, v%d, v%d" % (80 + i, 72 + 2 * i, 73 + 2 * i))
        for i in range(4):
            a("v_cvt_pk_bf16_f32 v%d, v%d, v%d" % (28 + i, 20 + 2 * i, 21 + 2 * i))
        a("s_waitcnt lgkmcnt(0)")
        for i in range(4):
            a("v_and_b32 v%d, v%d, v%d" % (56 + 2 * i, vMLO, 42 + i))
            a("v_and_b32 v%d, v%d, v%d" % (57 + 2 * i, vMHI, 42 + i))
            a("v_and_b32 v%d, v%d, v%d" % (64 + 2 * i, vMLO, 28 + i))
            a("v_and_b32 v%d, v%d, v%d" % (65 + 2 * i, vMHI, 28 + i))
        for i in range(4):
            a("v_dot2_f32_bf16 v%d, v%d, v%d, 0" % (72 + 2 * i, 80 + i, 56 + 2 * i))
            a("v_dot2_f32_bf16 v%d, v%d, v%d, 0" % (73 + 2 * i, 80 + i, 57 + 2 * i))
        for i in range(4):
            a("v_alignbit_b32 v%d, v%d, 0, 16" % (88 + 2 * i, XR + i))
            a("v_and_b32 v%d, v%d, v%d" % (89 + 2 * i, vMHI, XR + i))
        for i in range(4):
            a("v_cvt_pk_bf16_f32 v%d, v%d, v%d" % (80 + i, 72 + 2 * i, 73 + 2 * i))
        for i in range(4):
            a("v_dot2_f32_bf16 v%d, v%d, v%d, 0" % (72 + 2 * i, 80 + i, 64 + 2 * i))
            a("v_dot2_f32_bf16 v%d, v%d, v%d, 0" % (73 + 2 * i, 80 + i, 65 + 2 * i))
        for i in range(4):
            a("v_cvt_pk_bf16_f32 v%d, v%d, v%d" % (80 + i, 72 + 2 * i, 73 + 2 * i))
        for i in range(4):
            a("v_dot2_f32_bf16 v%d, v%d, v%d, v%d" % (72 + 2 * i, 80 + i, vONELO, 88 + 2 * i))
            a("v_dot2_f32_bf16 v%d, v%d, v%d, v%d" % (73 + 2 * i, 80 + i, vONEHI, 89 + 2 * i))
        for i in range(4):
            a("v_cvt_pk_bf16_f32 v%d, v%d, v%d" % (80 + i, 72 + 2 * i, 73 + 2 * i))
        a("buffer_store_dwordx4 v[80:83], v%d, s[%d:%d], 0 offen" % (OA, S_OUT, S_OUT + 3))

    def build(self):
        a = self.a
        self.p0()
        self.m_front()
        self.stamp(1)
        self.m_prep()
        self.stamp(10)
        self.m_gemm1()
        self.stamp(4)
        self.m_conv()
        self.m_tail()
        a("s_branch L_final")
        a.label("L_H")
        self.h_front()
        self.stamp(1)
        self.h_stats()
        self.stamp(11)
        self.h_gemm1_side()
        self.h_gemm2()
        a.label("L_final")
        a.lg_clear()
        self.stamp(8)
        self.final()
        self.stamp(9)
        self.dump_stamps()
        a("s_waitcnt vmcnt(0)")
        a.label("L_end")
        a("s_endpgm")
        lines, n = hazard.fix(a.lines)
        self.nnops = n
        hdr = """; Kernarg layout: x,k,v,shift_k,ssm_k,ssm_D,B_x,w1,w2,out,debug,ws (8-byte pointers)
; @launch grid=(256,1,1) block=(512,1,1) lds=%d
.amdgcn_target "amdgcn-amd-amdhsa--gfx950"
.text
.globl %s
.p2align 8
.type %s,@function
%s:
""" % (LDS_SIZE, KNAME, KNAME, KNAME)
        ftr = """.section .rodata,"a"
.p2align 6
.amdhsa_kernel %s
  .amdhsa_next_free_vgpr 256
  .amdhsa_next_free_sgpr 102
  .amdhsa_accum_offset 256
  .amdhsa_group_segment_fixed_size 0
  .amdhsa_kernarg_size 96
  .amdhsa_user_sgpr_count 2
  .amdhsa_user_sgpr_kernarg_segment_ptr 1
  .amdhsa_system_sgpr_workgroup_id_x 1
.end_amdhsa_kernel
""" % KNAME
        return hdr + "\n".join(lines) + "\n" + ftr

if __name__ == "__main__":
    import argparse
    ap = argparse.ArgumentParser()
    ap.add_argument("-o", default="k.s")
    ap.add_argument("--stamps", action="store_true")
    ap.add_argument("--noflags", action="store_true")
    ap.add_argument("--exp", default="")
    args = ap.parse_args()
    g = Gen(stamps=args.stamps, noflags=args.noflags, exp=args.exp)
    txt = g.build()
    open(args.o, "w").write(txt)
    print("wrote", args.o, len(txt.splitlines()), "lines; hazard nops:", g.nnops)
```

```python
class Q:
    def __init__(self, init=None):
        self.q = list(init) if init else []
    def issue(self, tag):
        self.q.append(tag)
    def has(self, tag):
        return tag in self.q
    def count_after(self, tag):
        idx = max(i for i, t in enumerate(self.q) if t == tag)
        return len(self.q) - 1 - idx
VM = Q

class Asm:
    def __init__(self):
        self.lines = []
        self.vm = Q()
        self.lg = Q()
        self.lg_done = 0
        self.lbl = 0
    def __call__(self, s, *a):
        for ln in s.split("\n"):
            ln = ln.strip()
            if ln:
                self.lines.append("    " + ln)
    def raw(self, s):
        self.lines.append(s)
    def label(self, name):
        self.lines.append(name + ":")
    def newlabel(self, p="L"):
        self.lbl += 1
        return "%s_%d" % (p, self.lbl)
    def comment(self, s):
        self.lines.append("    ; " + s)
    def vmem(self, instr, tag):
        self(instr); self.vm.issue(tag)
    def vm_n(self, tag):
        return min(self.vm.count_after(tag), 63)
    def wait_vm(self, tag, extra=""):
        n = self.vm_n(tag)
        self("s_waitcnt vmcnt(%d)%s" % (n, extra))
        return n
    def lds(self, instr, tag):
        self(instr); self.lg.issue(tag)
    def need_lds(self, *tags):
        last = -1
        for tag in tags:
            idxs = [i for i, t in enumerate(self.lg.q) if t == tag]
            if idxs: last = max(last, idxs[-1])
        if last < self.lg_done:
            return
        n = len(self.lg.q) - 1 - last
        if n > 15:
            n = 15
            last = len(self.lg.q) - 1 - 15
        self("s_waitcnt lgkmcnt(%d)" % n)
        self.lg_done = last + 1
    def lds_done(self, tag):
        idxs = [i for i, t in enumerate(self.lg.q) if t == tag]
        return (not idxs) or idxs[-1] < self.lg_done
    def wait_both(self, vtag, ltags):
        n = self.vm_n(vtag)
        last = -1
        for tag in ltags:
            idxs = [i for i, t in enumerate(self.lg.q) if t == tag]
            if idxs: last = max(last, idxs[-1])
        if last < self.lg_done:
            self("s_waitcnt vmcnt(%d)" % n); return
        m = len(self.lg.q) - 1 - last
        if m > 15:
            m = 15; last = len(self.lg.q) - 1 - 15
        self("s_waitcnt vmcnt(%d) lgkmcnt(%d)" % (n, m))
        self.lg_done = last + 1
    def lg0(self, extra=""):
        self("s_waitcnt lgkmcnt(0)%s" % extra)
        self.lg_clear()
    def lg_clear(self):
        self.lg.q = []; self.lg_done = 0
    def wait_vm_lg0(self, tag):
        self("s_waitcnt vmcnt(%d) lgkmcnt(0)" % self.vm_n(tag))
        self.lg_clear()
    def nop(self, n):
        while n > 0:
            k = min(n, 16)
            self("s_nop %d" % (k - 1)); n -= k
    def text(self):
        return "\n".join(self.lines) + "\n"

def interleave(a, main, fill, lead=0):
    def run(x):
        if callable(x): x()
        else: a(x)
    fill = list(fill)
    for x in fill[:lead]: run(x)
    fill = fill[lead:]
    n = len(main); m = len(fill); k = 0
    for i, f in enumerate(main):
        run(f)
        tgt = (i + 1) * m // n
        while k < tgt:
            run(fill[k]); k += 1
    while k < m:
        run(fill[k]); k += 1
```

```python
import sys
from emit import *
import hazard

KNAME = "recurrent_scan__ssm_conv_h3__dense_activation_relu__prompt_kernel"

WS_KVT = 0
WS_YT = 2 << 20
WS_H = 4 << 20
WS_FLAG = 10 << 20
F_H1 = WS_FLAG
F_H2 = WS_FLAG + 32768
F_H3 = WS_FLAG + 65536
WS_STAMP = WS_FLAG + (256 << 10)
WS_SIZE = 16 << 20

L_XN = 0
NXN = 4
L_W1 = 32768
W1_SLOT = 24576
NW1 = 5
L_PREP = L_W1 + 4 * W1_SLOT
L_A = L_W1 + 3 * W1_SLOT
NA_H = 6
L_T = L_A + 8
T_CH = 16640
T_CP = 4160
L_U = L_A + 33408
U_CH = 4608
L_B = 0
NB_H = 13
B_HALF = NB_H * 4096
L_Y = 16384
L_P = L_B + 7 * 4096
P_STRIDE = B_HALF
L_STATS = 161792
L_SYNC = 162304
LDS_SIZE = 163840
assert L_U % 16 == 0 and L_U + 2 * U_CH <= L_W1 + 5 * W1_SLOT and L_T + 2 * T_CH <= L_U
assert L_A + 2 * NA_H * 4096 <= L_STATS and 2 * B_HALF <= L_A and L_W1 + NW1 * W1_SLOT <= L_STATS

S_X, S_K, S_V, S_W1, S_W2, S_OUT, S_SSM, S_WS, S_SH, S_DBG = 8, 12, 16, 20, 24, 28, 32, 36, 40, 44
sR, sC, sW, sNONCE = 48, 49, 50, 51
sF0, sBP, sNB = 52, 53, 54
sT0, sT1, sT2, sT3 = 55, 56, 57, 58
sRW = 59
sEX = 60
sROT = 62
sDP = 64
sDD = 66
sM0B = 67
sP0, sP1 = 68, 69
sUOK = 72
sID = 81
sINV1, sINV2 = 73, 74
vMLO, vMHI, vONELO, vONEHI, vONES = 248, 249, 250, 251, 252

def merge(*lists):
    lists = [l for l in lists if l]
    tot = sum(len(l) for l in lists)
    out = []; idx = [0] * len(lists)
    for s in range(tot):
        best = min((i for i in range(len(lists)) if idx[i] < len(lists[i])), key=lambda i: (idx[i] + 0.5) / len(lists[i]))
        out.append(lists[best][idx[best]]); idx[best] += 1
    return out

class Gen:
    def __init__(self, stamps=False, noflags=False, exp=""):
        self.exp = set(exp.split(",")) if exp else set()
        self.a = Asm()
        self.stamps = stamps
        self.noflags = noflags
        self.relax_ln = "relax_ln" in self.exp
        self.stampset = None
        self.h2n = 75
        self.hwin = 22; self.hper = 6; self.hinit = 12
        for e in self.exp:
            if e.startswith('hw='): self.hwin, self.hper, self.hinit = [int(x) for x in e[3:].split('+')]
        for e in self.exp:
            if e.startswith("st="):
                self.stampset = set(int(x) for x in e[3:].split("+"))

    def stamp(self, idx):
        if not self.stamps: return
        if self.stampset is not None and idx not in self.stampset: return
        a = self.a
        a("s_memrealtime s[4:5]")
        if "clk" in self.exp and idx in (14, 2, 4, 16):
            a("s_memtime s[6:7]")
        a.lg0()
        a("v_writelane_b32 v255, s4, %d" % idx)
        if "clk" in self.exp and idx in (14, 2, 4, 16):
            a("v_writelane_b32 v255, s6, %d" % {14: 29, 2: 30, 4: 31, 16: 15}[idx])

    def dump_stamps(self):
        if not self.stamps: return
        a = self.a
        if "dbgst" in self.exp:
            sk = a.newlabel("L_ds")
            a("s_or_b32 s4, s2, s%d" % sW)
            a("s_cmp_lg_u32 s4, 0")
            a("s_cbranch_scc1 %s" % sk)
            a("v_readlane_b32 s4, v255, 0")
            a("s_nop 3")
            a("v_subrev_u32 v3, s4, v255")
            order = [12, 10, 14, 2, 4, 16, 17, 18, 7, 8, 9]
            for k, i in enumerate(order):
                a("v_readlane_b32 s5, v3, %d" % i)
                a("s_nop 3")
                a("v_mov_b32 v4, s5")
                a("v_mov_b32 v5, %d" % (4 * (k + 1)))
                a("s_mov_b64 exec, 1")
                a("buffer_store_dword v4, v5, s[%d:%d], 0 offen" % (S_DBG, S_DBG + 3))
                a("s_mov_b64 exec, -1")
            a.label(sk)
        a("s_lshl_b32 s%d, s2, 3" % sT0)
        a("s_add_u32 s%d, s%d, s%d" % (sT0, sT0, sW))
        a("s_lshl_b32 s%d, s%d, 7" % (sT0, sT0))
        a("s_add_u32 s%d, s%d, 0x%x" % (sT0, sT0, WS_STAMP))
        a("v_lshlrev_b32 v2, 2, v1")
        a("v_add_u32 v2, s%d, v2" % sT0)
        a("s_mov_b32 exec_lo, -1")
        a("s_mov_b32 exec_hi, 0")
        a("buffer_store_dword v255, v2, s[%d:%d], 0 offen" % (S_WS, S_WS + 3))
        a("s_mov_b64 exec, -1")

    def run(self, x):
        if callable(x): x()
        else: self.a(x)

    def spread(self, seq, extra):
        a = self.a
        if not extra:
            for x in seq: self.run(x)
            return
        step = max(1, len(seq) // (len(extra) + 1))
        k = 0
        for i, ins in enumerate(seq):
            self.run(ins)
            if (i + 1) % step == 0 and k < len(extra):
                self.run(extra[k]); k += 1
        while k < len(extra):
            self.run(extra[k]); k += 1

    def p0(self):
        a = self.a
        a("s_cmp_ge_u32 s2, 256")
        a("s_cbranch_scc1 L_end")
        for dst, off in ((S_K, 8), (S_V, 16), (S_SH, 24), (S_X, 0), (S_W1, 56), (S_SSM, 32), (S_WS, 88), (S_DBG, 80), (S_W2, 64), (S_OUT, 72), (sDP, 40)):
            a("s_load_dwordx2 s[%d:%d], s[0:1], %d" % (dst, dst + 1, off))
        if self.stamps: a("v_mov_b32 v255, 0")
        a("v_lshrrev_b32 v2, 6, v0")
        a("v_and_b32 v1, 63, v0")
        if "map42" in self.exp:
            a("s_and_b32 s%d, s2, 3" % sR)
            a("s_lshl_b32 s%d, s%d, 3" % (sR, sR))
            a("s_bfe_u32 s3, s2, 0x30003")
            a("s_add_u32 s%d, s%d, s3" % (sR, sR))
            a("s_bfe_u32 s%d, s2, 0x10002" % sC)
            a("s_lshl_b32 s%d, s%d, 2" % (sC, sC))
            a("s_lshr_b32 s3, s2, 6")
            a("s_add_u32 s%d, s%d, s3" % (sC, sC))
        else:
            a("s_and_b32 s%d, s2, 7" % sR)
            a("s_lshr_b32 s3, s2, 6")
            a("s_lshl_b32 s3, s3, 3")
            a("s_add_u32 s%d, s%d, s3" % (sR, sR))
            a("s_bfe_u32 s%d, s2, 0x30003" % sC)
        a("s_lshl_b32 s%d, s%d, 5" % (sID, sC))
        a("s_add_u32 s%d, s%d, s%d" % (sID, sID, sR))
        a("v_readfirstlane_b32 s%d, v2" % sW)
        for dst, size in ((S_K, 2097152), (S_V, 2097152), (S_SH, 4096), (S_X, 2097152), (S_W1, 1409024), (S_SSM, 2097152), (S_WS, WS_SIZE), (S_DBG, 256), (S_W2, 1409024), (S_OUT, 2097152)):
            a("s_mov_b32 s%d, 0x%x" % (dst + 2, size))
            a("s_mov_b32 s%d, 0x00020000" % (dst + 3))
        a("s_and_b32 s%d, s%d, 3" % (sRW, sW))
        if "map42" in self.exp:
            a("s_lshl_b32 s%d, s%d, 1" % (sT0, sC))
            a("s_add_u32 s%d, s%d, s%d" % (sT0, sT0, sR))
            a("s_and_b32 s%d, s%d, 7" % (sROT, sT0))
        else:
            a("s_lshr_b32 s%d, s%d, 3" % (sT0, sR))
            a("s_lshl_b32 s%d, s%d, 1" % (sT0, sT0))
            a("s_add_u32 s%d, s%d, s%d" % (sT0, sT0, sC))
            a("s_add_u32 s%d, s%d, s%d" % (sT0, sT0, sR))
            a("s_and_b32 s%d, s%d, 7" % (sROT, sT0))
        if "norot" in self.exp: a("s_mov_b32 s%d, 0" % sROT)
        a("s_mul_i32 s%d, s%d, 6" % (sBP, sC))
        a("s_sub_i32 s%d, s%d, 3" % (sT0, sC))
        a("s_max_i32 s%d, s%d, 0" % (sT0, sT0))
        a("s_sub_u32 s%d, s%d, s%d" % (sBP, sBP, sT0))
        a("s_lshl_b32 s%d, s%d, 5" % (sF0, sBP))
        a("s_cmp_lt_u32 s%d, 3" % sC)
        a("s_cselect_b32 s%d, 12, 10" % sNB)
        a("v_mov_b32 v%d, 0xffff" % vMLO)
        a("v_mov_b32 v%d, 0xffff0000" % vMHI)
        a("v_mov_b32 v%d, 0x3f80" % vONELO)
        a("v_mov_b32 v%d, 0x3f800000" % vONEHI)
        a("v_mov_b32 v%d, 0x3f803f80" % vONES)
        a("s_mov_b32 s%d, 0x05040100" % sP0)
        a("s_mov_b32 s%d, 0x07060302" % sP1)
        a("v_and_b32 v3, 15, v0")
        a("v_lshlrev_b32 v3, 2, v3")
        a("v_add_u32 v3, %d, v3" % L_SYNC)
        a("v_mov_b32 v4, 0")
        a("ds_write_b32 v3, v4")
        a("s_cmp_ge_u32 s%d, 4" % sW)
        a("s_cbranch_scc1 L_H")
        a("s_setprio 2")

    def w1_dma_ops(self, j):
        a = self.a
        slot = j % NW1
        ops = []
        def head():
            a("s_add_u32 s%d, s%d, %d" % (sT1, sROT, j))
            a("s_and_b32 s%d, s%d, 7" % (sT1, sT1))
            a("s_mul_i32 s%d, s%d, %d" % (sT1, sT1, 64 * 2752))
            a("s_add_u32 m0, s%d, %d" % (sM0B, slot * W1_SLOT))
            a.vmem("buffer_load_dwordx4 v12, s[%d:%d], s%d offen lds" % (S_W1, S_W1 + 3, sT1), "w1c%d" % j)
        ops.append(head)
        for i in range(1, 6):
            def nxt(i=i):
                a("s_add_u32 m0, s%d, %d" % (sM0B, slot * W1_SLOT + 1024 * i))
                a.vmem("buffer_load_dwordx4 v%d, s[%d:%d], s%d offen lds" % (12 + i, S_W1, S_W1 + 3, sT1), "w1c%d" % j)
            ops.append(nxt)
        return ops

    def w1_voffs(self):
        a = self.a
        V = 12
        a("s_mul_i32 s%d, s%d, %d" % (sT0, sRW, 16 * 2752))
        a("s_lshl_b32 s%d, s%d, 1" % (sT1, sF0))
        a("s_add_u32 s%d, s%d, s%d" % (sT0, sT0, sT1))
        a("s_lshl_b32 s%d, s%d, 1" % (sT1, sNB))
        a("v_mov_b32 v7, 0x40000000")
        for i in range(6):
            a("v_add_u32 v2, %d, v1" % (64 * i))
            a("v_mul_u32_u24 v3, 2731, v2")
            a("v_lshrrev_b32 v3, 16, v3")
            a("v_mul_u32_u24 v4, 24, v3")
            a("v_sub_u32 v4, v2, v4")
            a("v_and_b32 v5, 2, v3")
            a("v_lshrrev_b32 v6, 1, v3")
            a("v_and_b32 v6, 4, v6")
            a("v_or_b32 v5, v5, v6")
            a("v_xor_b32 v4, v4, v5")
            a("v_mul_u32_u24 v5, 2752, v3")
            a("v_lshl_add_u32 v5, v4, 4, v5")
            a("v_add_u32 v5, s%d, v5" % sT0)
            a("v_cmp_gt_u32 vcc, s%d, v4" % sT1)
            a("v_cndmask_b32 v%d, v7, v5, vcc" % (V + i))
        a("s_mul_i32 s%d, s%d, %d" % (sM0B, sRW, 16 * 384))
        a("s_add_u32 s%d, s%d, %d" % (sM0B, sM0B, L_W1))

    def line_prefetch(self, which, vd):
        a = self.a
        a("s_lshr_b32 s%d, s2, 3" % sT0)
        a("v_and_b32 v2, 255, v0")
        if "map42" not in self.exp:
            srd = S_W1 if which == "w1" else S_W2
            a("s_mul_i32 s%d, s%d, %d" % (sT0, sT0, 344 * 128))
            a("v_lshlrev_b32 v3, 7, v2")
            a("v_add_u32 v3, s%d, v3" % sT0)
            a.vmem("buffer_load_dword v%d, v3, s[%d:%d], 0 offen" % (vd, srd, srd + 3), "pf")
            a("v_cmp_gt_u32 vcc, %d, v2" % (344 - 256))
            a("v_add_u32 v3, 32768, v3")
            a("v_mov_b32 v4, 0x40000000")
            a("v_cndmask_b32 v3, v4, v3, vcc")
            a.vmem("buffer_load_dword v%d, v3, s[%d:%d], 0 offen" % (vd + 1, srd, srd + 3), "pf")
        elif which == "w2":
            a("s_mul_i32 s%d, s%d, 43" % (sT0, sT0))
            a("s_bfe_u32 s%d, s2, 0x10002" % sT1)
            a("s_lshl_b32 s%d, s%d, 9" % (sT1, sT1))
            a("s_lshl_b32 s%d, s%d, 10" % (sT0, sT0))
            a("s_add_u32 s%d, s%d, s%d" % (sT0, sT0, sT1))
            a("v_lshrrev_b32 v3, 2, v2")
            a("v_lshlrev_b32 v3, 10, v3")
            a("v_and_b32 v4, 3, v2")
            a("v_lshl_add_u32 v3, v4, 7, v3")
            a("v_add_u32 v3, s%d, v3" % sT0)
            a("v_cmp_gt_u32 vcc, 172, v2")
            a("v_mov_b32 v4, 0x40000000")
            a("v_cndmask_b32 v3, v4, v3, vcc")
            a.vmem("buffer_load_dword v%d, v3, s[%d:%d], 0 offen" % (vd, S_W2, S_W2 + 3), "pf")
        else:
            a("s_lshl_b32 s%d, s%d, 4" % (sT0, sT0))
            a("s_mul_i32 s%d, s%d, 2752" % (sT0, sT0))
            a("s_bfe_u32 s%d, s2, 0x10002" % sT1)
            a("s_mul_i32 s%d, s%d, 1472" % (sT1, sT1))
            a("s_add_u32 s%d, s%d, s%d" % (sT0, sT0, sT1))
            a("v_mul_u32_u24 v3, 5462, v2")
            a("v_lshrrev_b32 v3, 16, v3")
            a("v_mul_u32_u24 v4, 12, v3")
            a("v_sub_u32 v4, v2, v4")
            a("v_mul_u32_u24 v3, 2752, v3")
            a("v_lshl_add_u32 v3, v4, 7, v3")
            a("v_add_u32 v3, s%d, v3" % sT0)
            a("v_cmp_gt_u32 vcc, 192, v2")
            a("v_mov_b32 v4, 0x40000000")
            a("v_cndmask_b32 v3, v4, v3, vcc")
            a.vmem("buffer_load_dword v%d, v3, s[%d:%d], 0 offen" % (vd, S_W1, S_W1 + 3), "pf")

    def m_front(self):
        a = self.a
        a("v_lshrrev_b32 v3, 5, v0")
        a("v_and_b32 v4, 31, v0")
        a("s_lshl_b32 s%d, s%d, 16" % (sT0, sR))
        a("s_lshl_b32 s%d, s%d, 7" % (sT1, sC))
        a("s_add_u32 s%d, s%d, s%d" % (sT0, sT0, sT1))
        a("v_lshlrev_b32 v2, 13, v3")
        a("v_lshl_add_u32 v2, v4, 2, v2")
        a("v_add_u32 v2, s%d, v2" % sT0)
        a("v_add_u32 v5, 0xfffff400, v2")
        a("v_add_u32 v6, 0xfffff800, v2")
        a("v_add_u32 v7, 0xfffffc00, v2")
        a("v_add_u32 v8, 4096, v2")
        a("s_lshl_b32 s%d, s%d, 9" % (sT2, sC))
        a("v_lshlrev_b32 v9, 4, v4")
        a("v_add_u32 v9, s%d, v9" % sT2)
        a.lg0()
        if self.stamps:
            a("s_memrealtime s[4:5]"); a.lg0(); a("v_writelane_b32 v255, s4, 0")
        K, V, SH = 20, 32, 40
        for t, r in enumerate((5, 6, 7)):
            a.vmem("buffer_load_dword v%d, v%d, s[%d:%d], 0 offen" % (K + t, r, S_K, S_K + 3), "prep")
        for t in range(8):
            a.vmem("buffer_load_dword v%d, v%d, s[%d:%d], 0 offen offset:%d" % (K + 3 + t, 2 if t < 4 else 8, S_K, S_K + 3, 1024 * (t & 3)), "prep")
        a.vmem("buffer_load_dwordx4 v[40:43], v9, s[%d:%d], 0 offen" % (S_SH, S_SH + 3), "prep")
        for t in range(8):
            a.vmem("buffer_load_dword v%d, v%d, s[%d:%d], 0 offen offset:%d" % (V + t, 2 if t < 4 else 8, S_V, S_V + 3, 1024 * (t & 3)), "prep")
        a("s_setprio 0")
        a("s_waitcnt lgkmcnt(0)")
        a("s_barrier")
        if "pfM" in self.exp:
            self.line_prefetch("w1", 240)
        if not self.noflags:
            a("s_or_b32 s%d, s2, s%d" % (sT1, sW))
            a("s_cmp_lg_u32 s%d, 0" % sT1)
            a("s_cbranch_scc1 L_nononce")
            a("s_memrealtime s[4:5]")
            a("s_waitcnt lgkmcnt(0)")
            a("s_or_b32 s4, s4, 1")
            a("v_mov_b32 v2, s4")
            a("v_mov_b32 v3, 0")
            a("s_mov_b64 exec, 1")
            a("buffer_store_dword v2, v3, s[%d:%d], 0 offen sc1" % (S_DBG, S_DBG + 3))
            a("s_mov_b64 exec, -1")
            a.label("L_nononce")
        self.w1_voffs()
        self.m_gemm1_setup()
        a("s_lshl_b32 s%d, s%d, 7" % (sT0, sC))
        a("s_lshl_b32 s%d, s%d, 2" % (sT1, sR))
        a("s_add_u32 s%d, s%d, s%d" % (sT0, sT0, sT1))
        a("s_load_dword s%d, s[%d:%d], s%d" % (sDD, sDP, sDP + 1, sT0))

    def m_gemm1_setup(self):
        a = self.a
        AX = 8; AW = [9, 10, 11]
        a("v_and_b32 v2, 15, v1")
        a("v_lshrrev_b32 v3, 4, v1")
        a("v_lshlrev_b32 v4, 1, v3")
        a("v_xor_b32 v4, v2, v4")
        a("v_lshlrev_b32 v4, 4, v4")
        a("v_lshl_add_u32 v%d, v3, 8, v4" % AX)
        a("v_lshrrev_b32 v5, 2, v2")
        a("v_lshl_add_u32 v4, v3, 3, v5")
        a("v_mul_u32_u24 v4, 384, v4")
        a("v_and_b32 v6, 3, v1")
        a("v_lshl_add_u32 v4, v6, 3, v4")
        a("v_lshrrev_b32 v5, 1, v5")
        a("v_and_b32 v6, 1, v3")
        a("v_lshl_add_u32 v5, v6, 1, v5")
        a("s_mul_i32 s%d, s%d, 3" % (sT0, sRW))
        for b in range(3):
            a("s_add_u32 s%d, s%d, %d" % (sT1, sT0, b))
            a("v_xor_b32 v6, s%d, v5" % sT1)
            a("v_lshl_add_u32 v6, v6, 5, v4")
            a("v_add_u32 v%d, %d, v6" % (AW[b], L_W1))
        a("v_lshlrev_b32 v5, 4, v2")
        a("v_lshrrev_b32 v4, 1, v3")
        a("v_lshl_add_u32 v5, v4, 8, v5")
        a("v_and_b32 v4, 1, v3")
        a("v_lshl_add_u32 v5, v4, 3, v5")
        a("s_lshr_b32 s%d, s%d, 4" % (sBP, sF0))
        a("s_mul_i32 s%d, s%d, %d" % (sT0, sR, 4 * 44032))
        a("s_mul_i32 s%d, s%d, 3" % (sT1, sRW))
        a("s_add_u32 s%d, s%d, s%d" % (sT2, sT1, sBP))
        a("s_lshl_b32 s%d, s%d, 9" % (sT2, sT2))
        a("s_add_u32 s%d, s%d, s%d" % (sT0, sT0, sT2))
        a("s_add_u32 s%d, s%d, 0x%x" % (sT0, sT0, WS_H))
        a("v_add_u32 v168, s%d, v5" % sT0)
        for tb in range(1, 4):
            a("v_add_u32 v%d, %d, v168" % (168 + tb, 44032 * tb))
        for b, sr_ in ((1, sINV1), (2, sINV2)):
            a("s_add_u32 s%d, s%d, %d" % (sT2, sT1, b))
            a("s_cmp_lt_u32 s%d, s%d" % (sT2, sNB))
            a("s_cselect_b32 s%d, 0, 0x40000000" % sr_)

    def m_prep(self):
        a = self.a
        K, V, SH = 20, 32, 40
        WL, WH = 44, 48
        PL, PH = 52, 56
        PP, AC = 60, 64
        TA, TB = 68, 72
        KV = 76
        OUT = 92
        dma = []
        if "V2" in self.exp:
            for f in self.w1_dma_ops(0) + self.w1_dma_ops(1): f()
        a.wait_vm("prep")
        self.stamp(12)
        seq = []; e = seq.append
        e("v_and_b32 v%d, v%d, v%d" % (WL + 0, vMLO, SH + 0)); e("v_lshrrev_b32 v%d, 16, v%d" % (WL + 1, SH + 0))
        e("v_and_b32 v%d, v%d, v%d" % (WL + 2, vMLO, SH + 1)); e("v_lshrrev_b32 v%d, 16, v%d" % (WL + 3, SH + 1))
        e("v_lshlrev_b32 v%d, 16, v%d" % (WH + 0, SH + 2)); e("v_and_b32 v%d, v%d, v%d" % (WH + 1, vMHI, SH + 2))
        e("v_lshlrev_b32 v%d, 16, v%d" % (WH + 2, SH + 3)); e("v_and_b32 v%d, v%d, v%d" % (WH + 3, vMHI, SH + 3))
        for hb in range(2):
            r0 = 4 * hb
            if "relax_prep" in self.exp:
                for r in range(4):
                    e("v_dot2_f32_bf16 v%d, v%d, v%d, 0" % (PL + r, K + r0 + r, WL + 3))
                    e("v_dot2_f32_bf16 v%d, v%d, v%d, 0" % (PH + r, K + r0 + r, WH + 3))
                for j in (2, 1, 0):
                    for r in range(4):
                        e("v_dot2_f32_bf16 v%d, v%d, v%d, v%d" % (PL + r, K + 3 + r0 + r - j, WL + j, PL + r))
                        e("v_dot2_f32_bf16 v%d, v%d, v%d, v%d" % (PH + r, K + 3 + r0 + r - j, WH + j, PH + r))
                for r in range(4):
                    e("v_cvt_pk_bf16_f32 v%d, v%d, v%d" % (AC + r, PL + r, PH + r))
            else:
                for j in (3, 2, 1, 0):
                    for r in range(4):
                        e("v_dot2_f32_bf16 v%d, v%d, v%d, 0" % (PL + r, K + 3 + r0 + r - j, WL + j))
                        e("v_dot2_f32_bf16 v%d, v%d, v%d, 0" % (PH + r, K + 3 + r0 + r - j, WH + j))
                    dstp = AC if j == 3 else PP
                    for r in range(4):
                        e("v_cvt_pk_bf16_f32 v%d, v%d, v%d" % (dstp + r, PL + r, PH + r))
                    if j != 3:
                        for r in range(4):
                            e("v_perm_b32 v%d, v%d, v%d, s%d" % (TA + r, PP + r, AC + r, sP0))
                            e("v_perm_b32 v%d, v%d, v%d, s%d" % (TB + r, PP + r, AC + r, sP1))
                        for r in range(4):
                            e("v_dot2_f32_bf16 v%d, v%d, v%d, 0" % (PL + r, TA + r, vONES))
                            e("v_dot2_f32_bf16 v%d, v%d, v%d, 0" % (PH + r, TB + r, vONES))
                        for r in range(4):
                            e("v_cvt_pk_bf16_f32 v%d, v%d, v%d" % (AC + r, PL + r, PH + r))
            for r in range(4):
                e("v_and_b32 v%d, v%d, v%d" % (TA + r, vMLO, V + r0 + r))
                e("v_and_b32 v%d, v%d, v%d" % (TB + r, vMHI, V + r0 + r))
            for r in range(4):
                e("v_dot2_f32_bf16 v%d, v%d, v%d, 0" % (KV + r0 + r, AC + r, TA + r))
                e("v_dot2_f32_bf16 v%d, v%d, v%d, 0" % (KV + 8 + r0 + r, AC + r, TB + r))
        e("v_and_b32 v2, 31, v0"); e("v_mul_u32_u24 v2, 288, v2"); e("v_lshrrev_b32 v3, 5, v0"); e("v_lshlrev_b32 v3, 4, v3")
        e("v_sub_u32 v2, v2, v3"); e("v_add_u32 v2, %d, v2" % (L_PREP + 112))
        for ch in range(2):
            for d in range(4):
                e("v_cvt_pk_bf16_f32 v%d, v%d, v%d" % (OUT + 4 * ch + d, KV + 8 * ch + 7 - 2 * d, KV + 8 * ch + 6 - 2 * d))
        self.spread(seq, dma)
        self.stamp(20)
        a("ds_write_b128 v2, v[%d:%d]" % (OUT, OUT + 3))
        a("ds_write_b128 v2, v[%d:%d] offset:144" % (OUT + 4, OUT + 7))
        a("v_lshrrev_b32 v2, 3, v0")
        a("v_and_b32 v3, 7, v0")
        a("v_mul_u32_u24 v4, 144, v2")
        a("v_lshl_add_u32 v4, v3, 4, v4")
        a("v_add_u32 v4, %d, v4" % L_PREP)
        a("s_lshl_b32 s%d, s%d, 18" % (sT0, sC))
        a("s_lshl_b32 s%d, s%d, 7" % (sT1, sR))
        a("s_sub_u32 s%d, s%d, s%d" % (sT0, sT0, sT1))
        a("s_add_u32 s%d, s%d, %d" % (sT0, sT0, WS_KVT + 3968))
        a("v_lshlrev_b32 v5, 12, v2")
        a("v_lshl_add_u32 v5, v3, 4, v5")
        a("v_add_u32 v5, s%d, v5" % sT0)
        a("v_add_u32 v6, %d, v5" % (32 * 4096))
        if "dmafirst" in self.exp:
            for f in self.w1_dma_ops(0) + self.w1_dma_ops(1) + self.w1_dma_ops(2): f()
            self.stamp(15)
        self.m_sync(13, va=2, vb=3)
        a("ds_read_b128 v[92:95], v4")
        a("ds_read_b128 v[96:99], v4 offset:%d" % (32 * 144))
        a.lg0()
        a.vmem("buffer_store_dwordx4 v[92:95], v5, s[%d:%d], 0 offen sc1" % (S_WS, S_WS + 3), "kvt")
        a.vmem("buffer_store_dwordx4 v[96:99], v6, s[%d:%d], 0 offen sc1" % (S_WS, S_WS + 3), "kvt")
        if not self.noflags:
            a("v_mov_b32 v7, 0")
            a.vmem("buffer_load_dword v19, v7, s[%d:%d], 0 offen sc1" % (S_DBG, S_DBG + 3), "nonce")
        if "dmafirst" not in self.exp:
            self.stamp(15)
            if "V3" in self.exp: lst = self.w1_dma_ops(2) + self.w1_dma_ops(3)
            elif "V2" in self.exp: lst = self.w1_dma_ops(2)
            else: lst = self.w1_dma_ops(0) + self.w1_dma_ops(1) + self.w1_dma_ops(2)
            for f in lst: f()

    def m_gemm1(self):
        a = self.a
        ACC = 20
        BUF = [68, 96, 124]
        AX = 8; AW = [9, 10, 11]
        UREG = 152
        for i in range(48):
            a("v_mov_b32 v%d, 0" % (ACC + i))

        def read_ops(ks):
            buf = BUF[ks % 3]
            j = ks >> 1; ksl = ks & 1; slot = j % NW1
            pre = []
            if ksl == 0 and j > 0:
                d = W1_SLOT if slot != 0 else -(NW1 - 1) * W1_SLOT
                for b in range(3):
                    pre.append("v_add_u32 v%d, %d, v%d" % (AW[b], d & 0xffffffff, AW[b]))
            so = ksl * 32 * 384
            def rx(t):
                return lambda: a.lds("ds_read_b128 v[%d:%d], v%d offset:%d" % (buf + 4 * t, buf + 4 * t + 3, AX, L_XN + (j % NXN) * 8192 + t * 2048 + ksl * 1024), "x%d_%d" % (ks, t))
            def rw(b, hh):
                r0 = buf + 16 + 4 * b + 2 * hh
                return lambda: a.lds("ds_read_b64_tr_b16 v[%d:%d], v%d offset:%d" % (r0, r0 + 1, AW[b], so + hh * 4 * 384), "w%d_%d" % (ks, b))
            if "mnoreads" in self.exp: return pre
            return pre + [rw(0, 0), rw(0, 1), rx(0), rx(1), rx(2), rx(3), rw(1, 0), rw(1, 1), rw(2, 0), rw(2, 1)]

        def mfma_ops(ks):
            cur = BUF[ks % 3]
            ops = []
            for b in range(3):
                for t in range(4):
                    def f(b=b, t=t):
                        if "finewait" in self.exp:
                            a.need_lds("w%d_%d" % (ks, b), "x%d_%d" % (ks, t))
                        elif b == 0 and t == 0:
                            a.need_lds(*(["w%d_%d" % (ks, bb) for bb in range(3)] + ["x%d_%d" % (ks, tt) for tt in range(4)]))
                        acc = ACC + (b * 4 + t) * 4
                        if "mnomfma" in self.exp: return
                        a("v_mfma_f32_16x16x32_bf16 v[%d:%d], v[%d:%d], v[%d:%d], v[%d:%d]" % (
                            acc, acc + 3, cur + 16 + 4 * b, cur + 19 + 4 * b, cur + 4 * t, cur + 4 * t + 3, acc, acc + 3))
                    ops.append(f)
            return ops

        if not self.noflags: self.publish_h1()
        if "V3" not in self.exp: a.wait_vm("w1c1")
        a("s_barrier")
        self.stamp(14)
        for f in read_ops(0): self.run(f)
        for f in read_ops(1)[:5]: self.run(f)
        pend = read_ops(1)[5:]
        for j in range(8):
            if j >= 1 and j <= 6:
                if not ("mnodma" in self.exp and j + 1 >= 3) and "novmw" not in self.exp: a.wait_vm("w1c%d" % (j + 1))
                a("s_barrier")
                if "itst" in self.exp: self.stamp(22 + j)
            dm = self.w1_dma_ops(j + 4) if (j + 4 <= 7) else []
            if j == 0 and "V3" not in self.exp: dm = self.w1_dma_ops(3) + dm
            if "mnodma" in self.exp:
                for _ in dm: a.vm.issue("dummy")
                dm = []
            ex = []
            for half in range(2):
                ks = 2 * j + half
                fill = list(pend); pend = []
                if ks + 2 <= 15:
                    fill += read_ops(ks + 2)
                hlf = (len(dm) + 1) // 2
                extra = (dm[:hlf] + ex if half == 0 else dm[hlf:])
                interleave(a, mfma_ops(ks), merge(fill, extra))
        a.lg0()
        self.stamp(2)
        HB = 68
        for i in range(12):
            a("v_cvt_pk_bf16_f32 v%d, v%d, v%d" % (HB + 2 * i, ACC + 4 * i, ACC + 4 * i + 1))
            a("v_cvt_pk_bf16_f32 v%d, v%d, v%d" % (HB + 2 * i + 1, ACC + 4 * i + 2, ACC + 4 * i + 3))
        for i in range(24):
            a("v_pk_max_i16 v%d, v%d, 0" % (HB + i, HB + i))
        for b in range(3):
            so = "0" if b == 0 else "s%d" % (sINV1 if b == 1 else sINV2)
            for t in range(4):
                r = HB + (b * 4 + t) * 2
                a.vmem("buffer_store_dwordx2 v[%d:%d], v%d, s[%d:%d], %s offen offset:%d sc1" % (r, r + 1, 168 + t, S_WS, S_WS + 3, so, 512 * b), "hst")
        a("s_barrier")

    def get_nonce(self):
        if self.noflags: return
        a = self.a
        a.wait_vm("nonce")
        lo = a.newlabel("L_nz"); lp = a.newlabel("L_nl")
        a("v_readfirstlane_b32 s%d, v19" % sNONCE)
        a("s_nop 3")
        a("s_cmp_lg_u32 s%d, 0" % sNONCE)
        a("s_cbranch_scc1 %s" % lo)
        a("s_mov_b32 s%d, 0" % sT3)
        a.label(lp)
        a("v_mov_b32 v7, 0")
        a("buffer_load_dword v19, v7, s[%d:%d], 0 offen sc1" % (S_DBG, S_DBG + 3))
        a("s_waitcnt vmcnt(0)")
        a("v_readfirstlane_b32 s%d, v19" % sNONCE)
        a("s_add_u32 s%d, s%d, 1" % (sT3, sT3))
        a("s_cmp_gt_u32 s%d, 100000" % sT3)
        a("s_cbranch_scc1 %s" % lo)
        a("s_cmp_eq_u32 s%d, 0" % sNONCE)
        a("s_cbranch_scc1 %s" % lp)
        a.label(lo)

    def flag_store(self, off_sreg, tag, va=2, vb=3):
        if self.noflags: return
        a = self.a
        a("v_mov_b32 v%d, s%d" % (va, off_sreg))
        a("v_mov_b32 v%d, s%d" % (vb, sNONCE))
        a("s_mov_b64 exec, 1")
        a.vmem("buffer_store_dword v%d, v%d, s[%d:%d], 0 offen sc1" % (vb, va, S_WS, S_WS + 3), tag)
        a("s_mov_b64 exec, -1")

    def publish_h1(self):
        a = self.a
        self.get_nonce()
        a.wait_vm("kvt")
        a("s_lshl_b32 s%d, s%d, 7" % (sT0, sID))
        a("s_lshl_b32 s%d, s%d, 2" % (sT2, sRW))
        a("s_add_u32 s%d, s%d, s%d" % (sT0, sT0, sT2))
        a("s_add_u32 s%d, s%d, 0x%x" % (sT0, sT0, F_H1))
        self.flag_store(sT0, "flag")

    def poll(self, base_sreg, nlanes, width, stride):
        if self.noflags: return
        a = self.a
        lp = a.newlabel("L_poll"); dn = a.newlabel("L_pdone")
        a("v_mul_u32_u24 v2, %d, v1" % stride)
        a("v_add_u32 v2, s%d, v2" % base_sreg)
        a("s_mov_b32 s%d, 0" % sT3)
        if nlanes <= 16: a("s_mov_b64 exec, 0x%x" % ((1 << nlanes) - 1))
        else:
            a("s_mov_b32 exec_lo, -1"); a("s_mov_b32 exec_hi, 0")
        a.label(lp)
        if width == 1:
            a("buffer_load_dword v4, v2, s[%d:%d], 0 offen sc1" % (S_WS, S_WS + 3))
            a("s_waitcnt vmcnt(0)")
            a("v_cmp_ne_u32 vcc, s%d, v4" % sNONCE)
        else:
            a("buffer_load_dwordx4 v[4:7], v2, s[%d:%d], 0 offen sc1" % (S_WS, S_WS + 3))
            a("s_waitcnt vmcnt(0)")
            for i in range(4): a("v_xor_b32 v%d, s%d, v%d" % (4 + i, sNONCE, 4 + i))
            a("v_or3_b32 v4, v4, v5, v6")
            a("v_or_b32 v4, v4, v7")
            a("v_cmp_ne_u32 vcc, 0, v4")
        a("s_add_u32 s%d, s%d, 1" % (sT3, sT3))
        a("s_cmp_gt_u32 s%d, 100000" % sT3)
        a("s_cbranch_scc1 %s" % dn)
        a("s_cbranch_vccnz %s" % lp)
        a.label(dn)
        a("s_mov_b64 exec, -1")

    def lds_wait(self, addr_sreg, val=1, va=16, vb=17):
        a = self.a
        lp = a.newlabel("L_ps"); dn = a.newlabel("L_psd")
        a("v_mov_b32 v%d, s%d" % (va, addr_sreg))
        a("s_mov_b32 s%d, 0" % sT3)
        a.label(lp)
        a("ds_read_b32 v%d, v%d" % (vb, va))
        a("s_waitcnt lgkmcnt(0)")
        a("v_readfirstlane_b32 s4, v%d" % vb)
        a("s_add_u32 s%d, s%d, 1" % (sT3, sT3))
        a("s_cmp_ge_u32 s4, %d" % val)
        a("s_cbranch_scc1 %s" % dn)
        a("s_cmp_lt_u32 s%d, 1000000" % sT3)
        a("s_cbranch_scc1 %s" % lp)
        a.label(dn)
        a.lg_clear()

    def m_sync(self, word, n=4, va=16, vb=17):
        a = self.a
        a("v_mov_b32 v%d, %d" % (va, L_SYNC + 4 * word))
        a("v_mov_b32 v%d, 1" % vb)
        a.lg0()
        a("s_mov_b64 exec, 1")
        a("ds_add_u32 v%d, v%d" % (va, vb))
        a("s_mov_b64 exec, -1")
        a("s_mov_b32 s5, %d" % (L_SYNC + 4 * word))
        self.lds_wait(5, n, va, vb)

    def pair_sync(self, stage, va=16, vb=17):
        a = self.a
        a("s_lshl_b32 s4, s%d, 2" % sRW)
        a("s_add_u32 s4, s4, %d" % (L_SYNC + 16 * stage))
        a("s_xor_b32 s5, s4, 4")
        a("v_mov_b32 v%d, s4" % va)
        a("v_mov_b32 v%d, 1" % vb)
        a.lg0()
        a("ds_write_b32 v%d, v%d" % (va, vb))
        self.lds_wait(5, 1, va, vb)

    def m_conv(self):
        a = self.a
        BF, ACC, AF, NA = 20, 148, 180, 16
        AU, AT = 2, 3
        a("v_and_b32 v8, 15, v1")
        a("v_lshrrev_b32 v9, 4, v1")
        a("v_lshlrev_b32 v10, 4, v9")
        a("v_lshlrev_b32 v11, 5, v8")
        a("v_sub_u32 v10, v10, v11")
        a("s_lshr_b32 s%d, s%d, 1" % (sT0, sRW))
        a("s_and_b32 s%d, s%d, 1" % (sT1, sRW))
        a("s_mul_i32 s%d, s%d, %d" % (sT2, sT0, U_CH))
        a("s_add_u32 s%d, s%d, %d" % (sT2, sT2, L_U + 2 * 2032 - 64 * 56))
        a("s_lshl_b32 s4, s%d, 6" % sT1)
        a("s_add_u32 s%d, s%d, s4" % (sT2, sT2))
        a("v_add_u32 v%d, s%d, v10" % (AU, sT2))
        a("v_and_b32 v10, 3, v8")
        a("v_mul_u32_u24 v10, %d, v10" % T_CP)
        a("v_lshrrev_b32 v11, 2, v8")
        a("v_lshl_add_u32 v10, v11, 3, v10")
        a("v_lshl_add_u32 v10, v9, 4, v10")
        a("s_mul_i32 s%d, s%d, %d" % (sT2, sT0, T_CH))
        a("s_add_u32 s%d, s%d, s4" % (sT2, sT2))
        a("s_add_u32 s%d, s%d, %d" % (sT2, sT2, L_T))
        a("v_add_u32 v%d, s%d, v10" % (AT, sT2))
        a("v_lshl_add_u32 v10, v9, 3, v8")
        a("s_lshl_b32 s4, s%d, 5" % sT1)
        a("v_add_u32 v10, s4, v10")
        MK = 12
        for d in range(4):
            a("v_sub_u32 v11, %d, v10" % (15 - 2 * d))
            a("v_med3_i32 v11, v11, 0, 2")
            a("v_lshlrev_b32 v11, 4, v11")
            a("v_mov_b32 v%d, -1" % (MK + d))
            a("v_lshlrev_b32 v16, v11, v%d" % (MK + d))
            a("v_cmp_eq_u32 vcc, 32, v11")
            a("v_cndmask_b32_e64 v%d, v16, 0, vcc" % (MK + d))
        for i in range(32):
            a("v_mov_b32 v%d, 0" % (ACC + i))
        def emit_A(ee):
            r = AF + 4 * (ee % NA)
            a.lds("ds_read_b64 v[%d:%d], v%d offset:%d" % (r, r + 1, AT, 128 * ee), ("A", ee))
            a.lds("ds_read_b64 v[%d:%d], v%d offset:%d" % (r + 2, r + 3, AT, 128 * ee + 8), ("A", ee))
        def emit_B(idx):
            r = BF + 4 * idx
            a.lds("ds_read_b128 v[%d:%d], v%d offset:%d" % (r, r + 3, AU, 128 * idx), ("B", idx))
        sched = []
        for ee in range(32):
            for j in range(7, (ee >> 2) - 1, -1):
                sched.append((ee, j, 28 - 4 * j + ee))
        order = []; seen = set(); last_use_A = {}
        for n, (ee, j, idx) in enumerate(sched):
            for it in (("A", ee), ("B", idx)):
                if it not in seen:
                    seen.add(it); order.append(it)
            last_use_A[ee] = n
        ptr = 0; issued = set()
        def can_issue(item, n):
            if item[0] == "A" and item[1] >= NA:
                return last_use_A[item[1] - NA] < n
            return True
        def issue_next(n_now):
            nonlocal ptr
            if ptr < len(order) and can_issue(order[ptr], n_now):
                it = order[ptr]
                (emit_A if it[0] == "A" else emit_B)(it[1])
                issued.add(it); ptr += 1
                return True
            return False
        def inflight():
            return len(a.lg.q) - a.lg_done
        GRP = 4
        while inflight() < 14 and issue_next(0): pass
        masked = False
        for n, (ee, j, idx) in enumerate(sched):
            while ("A", ee) not in issued or ("B", idx) not in issued:
                assert issue_next(n)
            if not (a.lds_done(("A", ee)) and a.lds_done(("B", idx))):
                tags = [("A", ee), ("B", idx)]
                for (e2, j2, i2) in sched[n + 1:n + GRP]:
                    if ("A", e2) in issued and ("B", i2) in issued: tags += [("A", e2), ("B", i2)]
                    else: break
                a.need_lds(*tags)
            ar = AF + 4 * (ee % NA); br = BF + 4 * idx; acc = ACC + 4 * j
            if ee == 0 and not masked:
                for d in range(4): a("v_and_b32 v%d, v%d, v%d" % (ar + d, MK + d, ar + d))
                masked = True
            a("v_mfma_f32_16x16x32_bf16 v[%d:%d], v[%d:%d], v[%d:%d], v[%d:%d]" % (acc, acc + 3, ar, ar + 3, br, br + 3, acc, acc + 3))
            if inflight() < 14:
                issue_next(n + 1)
                if n < 40 and inflight() < 14: issue_next(n + 1)
            if n == self.h2n and not self.noflags:
                a.wait_vm("hst")
                a("s_lshl_b32 s4, s%d, 3" % sR)
                a("s_add_u32 s4, s4, s%d" % sC)
                a("s_lshl_b32 s4, s4, 7")
                a("s_lshl_b32 s5, s%d, 2" % sRW)
                a("s_add_u32 s4, s4, s5")
                a("s_add_u32 s%d, s4, 0x%x" % (sT2, F_H2))
                self.flag_store(sT2, "flag", 4, 5)
        self.stamp(16)
        self.pair_sync(0)
        a("v_lshlrev_b32 v4, 4, v1")
        a("s_mul_i32 s%d, s%d, %d" % (sT0, sT0, T_CH))
        a("s_add_u32 s%d, s%d, %d" % (sT0, sT0, L_T + 8))
        a("s_lshl_b32 s%d, s%d, 12" % (sT2, sT1))
        a("s_add_u32 s%d, s%d, s%d" % (sT2, sT2, sT0))
        a("v_add_u32 v5, s%d, v4" % sT2)
        a("s_xor_b32 s%d, s%d, 1" % (sT2, sT1))
        a("s_lshl_b32 s%d, s%d, 12" % (sT2, sT2))
        a("s_add_u32 s%d, s%d, s%d" % (sT2, sT2, sT0))
        a("v_add_u32 v6, s%d, v4" % sT2)
        l0 = a.newlabel("L_cr0"); l1 = a.newlabel("L_cr1")
        a("s_cmp_eq_u32 s%d, 0" % sT1)
        a("s_cbranch_scc1 %s" % l0)
        for i in range(4):
            a("ds_write_b128 v5, v[%d:%d] offset:%d" % (ACC + 4 * i, ACC + 4 * i + 3, 1024 * i))
        for i in range(16):
            a("v_mov_b32 v%d, v%d" % (200 + i, ACC + 16 + i))
        a("s_branch %s" % l1)
        a.label(l0)
        for i in range(4):
            a("ds_write_b128 v5, v[%d:%d] offset:%d" % (ACC + 16 + 4 * i, ACC + 16 + 4 * i + 3, 1024 * i))
        for i in range(16):
            a("v_mov_b32 v%d, v%d" % (200 + i, ACC + i))
        a.label(l1)
        a("v_and_b32 v4, 15, v1")
        a("v_lshrrev_b32 v7, 4, v1")
        a("v_lshlrev_b32 v4, 5, v4")
        a("v_lshl_add_u32 v4, v7, 3, v4")
        a("s_lshr_b32 s%d, s%d, 1" % (sT0, sRW))
        a("s_mul_i32 s%d, s%d, %d" % (sT2, sT0, U_CH))
        a("s_add_u32 s%d, s%d, %d" % (sT2, sT2, L_U + 2 * 2044 - 3 * 512))
        a("s_lshl_b32 s4, s%d, 11" % sT1)
        a("s_sub_u32 s%d, s%d, s4" % (sT2, sT2))
        a("v_sub_u32 v4, s%d, v4" % sT2)
        for i in range(4):
            a("ds_read_b64 v[%d:%d], v4 offset:%d" % (236 + 2 * i, 237 + 2 * i, (3 - i) * 512))
        a("s_and_b32 s4, s%d, 0xffff" % sDD)
        a("s_lshr_b32 s5, s%d, 16" % sDD)
        a("s_cmp_eq_u32 s%d, 0" % sT0)
        a("s_cselect_b32 s4, s4, s5")
        a("s_lshl_b32 s5, s4, 16")
        a("v_mov_b32 v8, s4")
        a("v_mov_b32 v9, s5")
        self.pair_sync(1)
        for i in range(4):
            a("ds_read_b128 v[%d:%d], v6 offset:%d" % (220 + 4 * i, 223 + 4 * i, 1024 * i))
        TT = 148
        for i in range(4):
            u0, u1 = 236 + 2 * i, 237 + 2 * i
            a("v_dot2_f32_bf16 v%d, v%d, v9, 0" % (TT + 4 * i + 0, u1))
            a("v_dot2_f32_bf16 v%d, v%d, v8, 0" % (TT + 4 * i + 1, u1))
            a("v_dot2_f32_bf16 v%d, v%d, v9, 0" % (TT + 4 * i + 2, u0))
            a("v_dot2_f32_bf16 v%d, v%d, v8, 0" % (TT + 4 * i + 3, u0))
        TB = 164
        for i in range(4):
            a("v_cvt_pk_bf16_f32 v%d, v%d, v%d" % (TB + 2 * i, TT + 4 * i, TT + 4 * i + 1))
            a("v_cvt_pk_bf16_f32 v%d, v%d, v%d" % (TB + 2 * i + 1, TT + 4 * i + 2, TT + 4 * i + 3))
        a("v_and_b32 v4, 15, v1")
        a("v_lshrrev_b32 v5, 2, v4")
        a("v_lshlrev_b32 v5, 16, v5")
        a("v_and_b32 v4, 3, v4")
        a("v_lshl_add_u32 v5, v4, 5, v5")
        a("v_lshrrev_b32 v7, 4, v1")
        a("v_lshl_add_u32 v5, v7, 3, v5")
        a("s_lshl_b32 s%d, s%d, 6" % (sT2, sC))
        a("s_lshl_b32 s4, s%d, 1" % sR)
        a("s_add_u32 s%d, s%d, s4" % (sT2, sT2))
        a("s_add_u32 s%d, s%d, s%d" % (sT2, sT2, sT0))
        a("s_lshl_b32 s%d, s%d, 7" % (sT2, sT2))
        a("s_lshl_b32 s4, s%d, 20" % sT1)
        a("s_add_u32 s%d, s%d, s4" % (sT2, sT2))
        a("s_add_u32 s%d, s%d, 0x%x" % (sT2, sT2, WS_YT))
        a("v_add_u32 v5, s%d, v5" % sT2)
        a.lg0()
        for i in range(16):
            a("v_add_f32 v%d, v%d, v%d" % (200 + i, 200 + i, 220 + i))
        YB = 172
        for i in range(8):
            a("v_cvt_pk_bf16_f32 v%d, v%d, v%d" % (YB + i, 200 + 2 * i, 201 + 2 * i))
        for i in range(8):
            a("v_perm_b32 v%d, v%d, v%d, s%d" % (200 + 2 * i, TB + i, YB + i, sP0))
            a("v_perm_b32 v%d, v%d, v%d, s%d" % (201 + 2 * i, TB + i, YB + i, sP1))
        for i in range(16):
            a("v_dot2_f32_bf16 v%d, v%d, v%d, 0" % (220 + i, 200 + i, vONES))
        for i in range(8):
            a("v_cvt_pk_bf16_f32 v%d, v%d, v%d" % (180 + i, 220 + 2 * i, 221 + 2 * i))
        for i in range(4):
            if i: a("v_add_u32 v5, 0x40000, v5")
            a.vmem("buffer_store_dwordx2 v[%d:%d], v5, s[%d:%d], 0 offen sc1" % (180 + 2 * i, 181 + 2 * i, S_WS, S_WS + 3), "yst")
        self.stamp(17)

    def w2_voff(self):
        a = self.a
        a("v_lshrrev_b32 v2, 3, v1")
        a("v_and_b32 v2, 3, v2")
        a("v_lshrrev_b32 v3, 5, v1")
        a("v_lshl_add_u32 v2, v3, 3, v2")
        a("v_lshlrev_b32 v2, 10, v2")
        a("v_lshrrev_b32 v3, 4, v1")
        a("v_and_b32 v3, 3, v3")
        a("v_lshlrev_b32 v3, 1, v3")
        a("v_and_b32 v4, 7, v1")
        a("v_xor_b32 v3, v3, v4")
        a("v_lshl_add_u32 v2, v3, 4, v2")
        a("s_lshl_b32 s%d, s%d, 7" % (sT0, sC))
        a("v_add_u32 v14, s%d, v2" % sT0)

    def w2_dma(self, lds_base_sreg, lds_off, src_base_sreg, ks_off, tag):
        a = self.a
        a("s_add_u32 s%d, s%d, %d" % (sT2, src_base_sreg, ks_off * 32768))
        for m in range(4):
            a("s_add_u32 m0, s%d, %d" % (lds_base_sreg, lds_off + 1024 * m))
            if m: a("s_add_u32 s%d, s%d, %d" % (sT2, sT2, [0, 4096, 12288, 4096][m]))
            a.vmem("buffer_load_dwordx4 v14, s[%d:%d], s%d offen lds" % (S_W2, S_W2 + 3, sT2), tag)

    def m_regionA(self):
        a = self.a
        self.w2_voff()
        a("s_lshr_b32 s75, s%d, 1" % sRW)
        a("s_and_b32 s76, s%d, 1" % sRW)
        a("s_mul_i32 s70, s75, %d" % (22 * 32768))
        t0, t1 = None, None
        self.m_sync(12)
        a("s_mul_i32 s71, s75, %d" % (NA_H * 4096))
        a("s_add_u32 s71, s71, %d" % L_A)
        a("s_lshl_b32 s4, s76, 12")
        a("s_add_u32 s71, s71, s4")
        a("s_lshl_b32 s4, s76, 15")
        a("s_add_u32 s70, s70, s4")
        for m in range(3):
            self.w2_dma(71, 8192 * m, 70, 13 + 2 * m, "w2a")

    def m_tail(self):
        a = self.a
        self.m_regionA()
        a.wait_vm("yst")
        if not self.noflags:
            a("s_lshl_b32 s4, s%d, 7" % sID)
            a("s_lshl_b32 s5, s%d, 2" % sRW)
            a("s_add_u32 s4, s4, s5")
            a("s_add_u32 s%d, s4, 0x%x" % (sT2, F_H3))
            self.flag_store(sT2, "flag", 2, 3)
        self.stamp(21)
        a("s_mov_b32 s5, %d" % (L_SYNC + 56))
        self.lds_wait(5, 4)
        a("s_mul_i32 s71, s75, %d" % B_HALF)
        a("s_lshl_b32 s4, s76, 12")
        a("s_add_u32 s71, s71, s4")
        if L_B: a("s_add_u32 s71, s71, %d" % L_B)
        self.w2_dma(71, 0, 70, 19, "w2l")
        skl = a.newlabel("L_ml")
        a("s_cmp_eq_u32 s76, 1")
        a("s_cbranch_scc1 %s" % skl)
        self.w2_dma(71, 8192, 70, 21, "w2l")
        a.label(skl)
        self.final_x_load(240, 244)
        self.stamp(18)
        a("s_barrier")
        a("s_waitcnt vmcnt(0)")
        a("s_barrier")
        if not self.noflags:
            a("s_lshl_b32 s%d, s%d, 12" % (sT0, sC))
            a("s_add_u32 s%d, s%d, 0x%x" % (sT0, sT0, F_H3))
            self.poll(sT0, 32, 4, 128)
        self.stamp(7)
        a("v_lshrrev_b32 v3, 2, v0")
        a("v_and_b32 v4, 3, v0")
        a("v_lshlrev_b32 v5, 7, v3")
        a("v_lshl_add_u32 v5, v4, 5, v5")
        a("s_lshl_b32 s%d, s%d, 16" % (sT0, sR))
        a("s_lshl_b32 s%d, s%d, 13" % (sT1, sC))
        a("s_add_u32 s%d, s%d, s%d" % (sT0, sT0, sT1))
        a("s_add_u32 s%d, s%d, 0x%x" % (sT0, sT0, WS_YT))
        a("v_add_u32 v5, s%d, v5" % sT0)
        a.vmem("buffer_load_dwordx4 v[20:23], v5, s[%d:%d], 0 offen sc1" % (S_WS, S_WS + 3), "y")
        a.vmem("buffer_load_dwordx4 v[24:27], v5, s[%d:%d], 0 offen offset:16 sc1" % (S_WS, S_WS + 3), "y")
        a("v_mul_u32_u24 v6, 144, v3")
        a("v_lshl_add_u32 v6, v4, 5, v6")
        a("v_add_u32 v6, %d, v6" % L_Y)
        a("s_waitcnt vmcnt(0)")
        a("ds_write_b128 v6, v[20:23]")
        a("ds_write_b128 v6, v[24:27] offset:16")
        a.lg0()
        a("s_barrier")

    def final_x_load(self, xr, ar):
        a = self.a
        a("s_and_b32 s%d, s%d, 3" % (sT0, sW))
        a("s_lshl_b32 s%d, s%d, 4" % (sT0, sT0))
        a("s_lshl_b32 s%d, s%d, 6" % (sT1, sR))
        a("s_add_u32 s%d, s%d, s%d" % (sT0, sT0, sT1))
        a("s_lshl_b32 s%d, s%d, 10" % (sT0, sT0))
        a("s_lshl_b32 s%d, s%d, 7" % (sT1, sC))
        a("s_add_u32 s%d, s%d, s%d" % (sT0, sT0, sT1))
        a("s_lshr_b32 s%d, s%d, 2" % (sT1, sW))
        a("s_lshl_b32 s%d, s%d, 6" % (sT1, sT1))
        a("s_add_u32 s%d, s%d, s%d" % (sT0, sT0, sT1))
        a("v_lshrrev_b32 v2, 2, v1")
        a("v_lshlrev_b32 v2, 10, v2")
        a("v_and_b32 v3, 3, v1")
        a("v_lshl_add_u32 v2, v3, 4, v2")
        a("v_add_u32 v%d, s%d, v2" % (ar, sT0))
        a.vmem("buffer_load_dwordx4 v[%d:%d], v%d, s[%d:%d], 0 offen" % (xr, xr + 3, ar, S_X, S_X + 3), "xf")

    def u_slow(self):
        a = self.a
        a.label("L_uslow")
        a("s_lshl_b32 s%d, s%d, 12" % (sT0, sC))
        a("s_add_u32 s%d, s%d, 0x%x" % (sT0, sT0, F_H1))
        self.poll(sT0, 32, 1, 128)
        for i in range(4):
            a("buffer_load_dwordx4 v[%d:%d], v172, s[%d:%d], 0 offen offset:%d sc1" % (152 + 4 * i, 155 + 4 * i, S_WS, S_WS + 3, 1024 * i))
        a("s_waitcnt vmcnt(0)")
        for i in range(4):
            a("ds_write_b128 v174, v[%d:%d] offset:%d" % (152 + 4 * i, 155 + 4 * i, 1024 * i))
        a("s_waitcnt lgkmcnt(0)")
        a("s_branch L_uback")

    NEGM, RS, NMRS = 100, 101, 102
    def norm2(self, X, t):
        L = []
        L.append("v_lshlrev_b32 v%d, 16, v%d" % (t + 0, X))
        L.append("v_and_b32 v%d, v%d, v%d" % (t + 1, vMHI, X))
        L.append("v_lshlrev_b32 v%d, 16, v%d" % (t + 2, X + 1))
        L.append("v_and_b32 v%d, v%d, v%d" % (t + 3, vMHI, X + 1))
        if self.relax_ln:
            for i in range(4):
                L.append("v_fma_f32 v%d, v%d, v%d, v%d" % (t + i, t + i, self.RS, self.NMRS))
        else:
            for i in range(4):
                L.append("v_add_f32 v%d, v%d, v%d" % (t + i, t + i, self.NEGM))
            L.append("v_cvt_pk_bf16_f32 v%d, v%d, v%d" % (t + 4, t + 0, t + 1))
            L.append("v_cvt_pk_bf16_f32 v%d, v%d, v%d" % (t + 5, t + 2, t + 3))
            L.append("v_lshlrev_b32 v%d, 16, v%d" % (t + 0, t + 4))
            L.append("v_and_b32 v%d, v%d, v%d" % (t + 1, vMHI, t + 4))
            L.append("v_lshlrev_b32 v%d, 16, v%d" % (t + 2, t + 5))
            L.append("v_and_b32 v%d, v%d, v%d" % (t + 3, vMHI, t + 5))
            for i in range(4):
                L.append("v_mul_f32 v%d, v%d, v%d" % (t + i, t + i, self.RS))
        L.append("v_cvt_pk_bf16_f32 v%d, v%d, v%d" % (X, t + 0, t + 1))
        L.append("v_cvt_pk_bf16_f32 v%d, v%d, v%d" % (X + 1, t + 2, t + 3))
        return L

    def norm_chunk(self, j):
        a = self.a
        X = 20 + 8 * j
        for half in range(2):
            s1 = self.norm2(X + 4 * half, 104); s2 = self.norm2(X + 4 * half + 2, 110)
            for x, y in zip(s1, s2):
                a(x); a(y)
            a.lds("ds_write_b128 v116, v[%d:%d] offset:%d" % (X + 4 * half, X + 4 * half + 3, L_XN + (j % NXN) * 8192 + half * 1024), "xw")

    def h_front(self):
        a = self.a
        a.vm = Q(); a.lg_clear()
        a("s_setprio 1")
        a("s_lshl_b32 s%d, s%d, 16" % (sT0, sR))
        a("s_lshl_b32 s%d, s%d, 14" % (sT1, sRW))
        a("s_add_u32 s%d, s%d, s%d" % (sT0, sT0, sT1))
        a("v_lshrrev_b32 v6, 2, v1")
        a("v_lshlrev_b32 v6, 10, v6")
        a("v_and_b32 v7, 3, v1")
        a("v_lshl_add_u32 v6, v7, 4, v6")
        a("v_add_u32 v6, s%d, v6" % sT0)
        a("s_lshl_b32 s%d, s%d, 7" % (sT0, sROT))
        a.lg0()
        if self.stamps:
            a("s_memrealtime s[4:5]"); a.lg0(); a("v_writelane_b32 v255, s4, 0")
        for j in range(8):
            if j:
                a("s_add_u32 s%d, s%d, 128" % (sT0, sT0))
                a("s_and_b32 s%d, s%d, 1023" % (sT0, sT0))
            a.vmem("buffer_load_dwordx4 v[%d:%d], v6, s[%d:%d], s%d offen" % (20 + 8 * j, 23 + 8 * j, S_X, S_X + 3, sT0), "x%d" % j)
            a.vmem("buffer_load_dwordx4 v[%d:%d], v6, s[%d:%d], s%d offen offset:64" % (24 + 8 * j, 27 + 8 * j, S_X, S_X + 3, sT0), "x%d" % j)
        if "codepf" in self.exp:
            a("s_getpc_b64 s[82:83]")
            a.label("L_pc")
            a("s_sub_u32 s82, s82, L_pc-%s" % KNAME)
            a("s_subb_u32 s83, s83, 0")
            a("v_lshlrev_b32 v2, 7, v1")
            a("s_lshl_b32 s84, s%d, 13" % sRW)
            a("v_add_u32 v2, s84, v2")
            a("v_min_u32 v2, L_codeend-%s, v2" % KNAME)
            a("v_mov_b32 v3, s83")
            a("v_add_co_u32 v2, vcc, s82, v2")
            a("v_addc_co_u32 v3, vcc, 0, v3, vcc")
            a.vmem("global_load_dword v244, v[2:3], off", "cpf")
        a("s_waitcnt lgkmcnt(0)")
        a("s_barrier")

        if "V3" in self.exp:
            self.w1_voffs()
            for f in self.w1_dma_ops(0) + self.w1_dma_ops(1): f()
        a("s_setprio 0")
        if not self.noflags:
            a("v_mov_b32 v7, 0")
        a("v_lshrrev_b32 v4, 2, v1")
        a("v_and_b32 v5, 3, v1")
        a("v_lshlrev_b32 v2, 1, v5")
        a("v_xor_b32 v4, v4, v2")
        a("v_lshlrev_b32 v4, 4, v4")
        a("v_lshl_add_u32 v4, v5, 8, v4")
        a("s_lshl_b32 s%d, s%d, 11" % (sT2, sRW))
        a("v_add_u32 v116, s%d, v4" % sT2)

    def h_ssm_load(self):
        a = self.a
        a("s_lshl_b32 s%d, s%d, 6" % (sT2, sC))
        a("s_lshl_b32 s%d, s%d, 1" % (sT1, sR))
        a("s_add_u32 s%d, s%d, s%d" % (sT2, sT2, sT1))
        a("s_lshl_b32 s%d, s%d, 12" % (sT2, sT2))
        a("v_and_b32 v3, 255, v0")
        a("v_lshlrev_b32 v3, 4, v3")
        a("v_add_u32 v2, s%d, v3" % sT2)
        a("v_add_u32 v4, -8, v2")
        for ch in range(2):
            a.vmem("buffer_load_dwordx2 v[%d:%d], v4, s[%d:%d], 0 offen" % (84 + 6 * ch, 85 + 6 * ch, S_SSM, S_SSM + 3), "ssm")
            a.vmem("buffer_load_dwordx4 v[%d:%d], v2, s[%d:%d], 0 offen" % (86 + 6 * ch, 89 + 6 * ch, S_SSM, S_SSM + 3), "ssm")
            if ch == 0:
                a("v_add_u32 v2, 4096, v2")
                a("v_add_u32 v4, 4096, v4")

    def h_stats(self):
        a = self.a
        X = 20
        for i in range(8): a("v_mov_b32 v%d, 0" % (104 + i))
        for i in range(64):
            if i % 8 == 0:
                a.wait_vm("x%d" % (i // 8))
                if i == 0: self.stamp(13)
            a("v_dot2_f32_bf16 v%d, v%d, v%d, v%d" % (104 + (i & 3), X + i, vONES, 104 + (i & 3)))
            a("v_dot2_f32_bf16 v%d, v%d, v%d, v%d" % (108 + (i & 3), X + i, X + i, 108 + (i & 3)))
        a("v_add_f32 v104, v104, v105"); a("v_add_f32 v106, v106, v107")
        a("v_add_f32 v108, v108, v109"); a("v_add_f32 v110, v110, v111")
        a("v_add_f32 v2, v104, v106"); a("v_add_f32 v3, v108, v110")
        for ctl in ("quad_perm:[1,0,3,2]", "quad_perm:[2,3,0,1]"):
            a("v_add_f32_dpp v2, v2, v2 %s row_mask:0xf bank_mask:0xf" % ctl)
            a("v_add_f32_dpp v3, v3, v3 %s row_mask:0xf bank_mask:0xf" % ctl)
        a("v_mul_f32 v2, 0x3b000000, v2")
        a("v_mul_f32 v3, 0x3b000000, v3")
        a("v_cvt_pk_bf16_f32 v4, v2, v2")
        a("v_fma_f32 v3, -v2, v2, v3")
        a("v_lshlrev_b32 v4, 16, v4")
        a("v_max_f32 v3, 0, v3")
        a("v_cvt_pk_bf16_f32 v3, v3, v3")
        a("v_lshlrev_b32 v3, 16, v3")
        a("v_add_f32 v3, 0x3727c5ac, v3")
        a("v_cvt_pk_bf16_f32 v3, v3, v3")
        a("v_lshlrev_b32 v3, 16, v3")
        a("v_sqrt_f32 v3, v3")
        a("v_cvt_pk_bf16_f32 v3, v3, v3")
        a("v_lshlrev_b32 v3, 16, v3")
        a("v_rcp_f32 v%d, v3" % self.RS)
        a("v_sub_f32 v%d, 0, v4" % self.NEGM)
        a("v_mul_f32 v%d, v%d, v%d" % (self.NMRS, self.NEGM, self.RS))
        a("v_lshrrev_b32 v6, 2, v1")
        a("s_lshl_b32 s%d, s%d, 4" % (sT2, sRW))
        a("v_add_u32 v6, s%d, v6" % sT2)
        a("v_lshlrev_b32 v5, 3, v6")
        a("v_add_u32 v5, %d, v5" % L_STATS)
        a("v_mov_b32 v2, v4")
        a("v_mov_b32 v3, v%d" % self.RS)
        a.lds("ds_write_b64 v5, v[2:3]", "st")

    def h_tbuild(self, ch):
        a = self.a
        D = 84 + 6 * ch
        E = 118
        for p in range(5):
            a("v_alignbit_b32 v%d, v%d, v%d, 16" % (E + p, D + p + 1, D + p))
        for p in range(4):
            a("v_mov_b32 v%d, v%d" % (124 + p, D + 1 + p))
            a("v_mov_b32 v%d, v%d" % (128 + p, E + 1 + p))
        a("v_and_b32 v3, 255, v0")
        a("v_lshlrev_b32 v3, 4, v3")
        a("v_add_u32 v3, %d, v3" % (L_T + ch * T_CH + 24))
        a("ds_write_b128 v3, v[118:121]")
        a("ds_write_b128 v3, v[124:127] offset:%d" % T_CP)
        a("ds_write_b128 v3, v[128:131] offset:%d" % (2 * T_CP))
        a("ds_write_b128 v3, v[%d:%d] offset:%d" % (D + 2, D + 5, 3 * T_CP))

    def h_uload(self):
        a = self.a
        if self.noflags: a.wait_vm("ssm")
        if not self.noflags:
            dn = a.newlabel("L_h1ok")
            a.wait_vm("h1f")
            for i in range(4): a("v_xor_b32 v%d, s%d, v%d" % (96 + i, sNONCE, 96 + i))
            a("v_or3_b32 v96, v96, v97, v98")
            a("v_or_b32 v96, v96, v99")
            a("v_cmp_ne_u32 vcc, 0, v96")
            a("s_cbranch_vccz %s" % dn)
            a("s_lshl_b32 s%d, s%d, 12" % (sT0, sC))
            a("s_add_u32 s%d, s%d, 0x%x" % (sT0, sT0, F_H1))
            self.poll(sT0, 32, 4, 128)
            a.label(dn)
        self.stamp(3)
        a("s_lshl_b32 s%d, s%d, 6" % (sT0, sC))
        a("s_lshl_b32 s%d, s%d, 1" % (sT1, sR))
        a("s_add_u32 s%d, s%d, s%d" % (sT0, sT0, sT1))
        a("s_lshl_b32 s%d, s%d, 12" % (sT0, sT0))
        a("s_lshl_b32 s%d, s%d, 11" % (sT1, sRW))
        a("s_add_u32 s%d, s%d, s%d" % (sT0, sT0, sT1))
        a("v_lshlrev_b32 v4, 4, v1")
        a("v_add_u32 v5, s%d, v4" % sT0)
        a.vmem("buffer_load_dwordx4 v[20:23], v5, s[%d:%d], 0 offen sc1" % (S_WS, S_WS + 3), "u")
        a.vmem("buffer_load_dwordx4 v[24:27], v5, s[%d:%d], 0 offen offset:1024 sc1" % (S_WS, S_WS + 3), "u")
        self.h_tbuild(0)
        self.h_tbuild(1)
        a("v_lshlrev_b32 v4, 4, v1")
        a("s_lshr_b32 s%d, s%d, 1" % (sT0, sRW))
        a("s_mul_i32 s%d, s%d, %d" % (sT0, sT0, U_CH))
        a("s_and_b32 s%d, s%d, 1" % (sT1, sRW))
        a("s_lshl_b32 s%d, s%d, 11" % (sT2, sT1))
        a("s_add_u32 s%d, s%d, s%d" % (sT0, sT0, sT2))
        a("s_add_u32 s%d, s%d, %d" % (sT0, sT0, L_U))
        a("v_add_u32 v6, s%d, v4" % sT0)
        for i in range(4): a("v_mov_b32 v%d, 0" % (28 + i))
        a("s_cmp_eq_u32 s%d, 1" % sT1)
        a("s_cselect_b32 exec_lo, -1, 0")
        a("s_mov_b32 exec_hi, 0")
        a("ds_write_b128 v6, v[28:31] offset:2048")
        a("s_mov_b64 exec, -1")
        a.wait_vm("u")
        a("ds_write_b128 v6, v[20:23]")
        a("ds_write_b128 v6, v[24:27] offset:1024")

    def norm_seq(self, j):
        a = self.a
        X = 20 + 8 * j
        seq = []
        for half in range(2):
            s1 = self.norm2(X + 4 * half, 104); s2 = self.norm2(X + 4 * half + 2, 110)
            if "hnonorm" in self.exp and j >= 2:
                s1 = ["s_nop 0"] * 8; s2 = ["s_nop 0"] * 8
            for x, y in zip(s1, s2):
                seq.append(x); seq.append(y)
            if "wmid" in self.exp:
                seq.append(lambda half=half: a.lds("ds_write_b128 v116, v[%d:%d] offset:%d" % (X + 4 * half, X + 4 * half + 3, L_XN + (j % NXN) * 8192 + half * 1024), "xw%d" % j))
        if not ("hnowrite" in self.exp and j >= 2) and "wmid" not in self.exp:
            for half in range(2):
                seq.append(lambda half=half: a.lds("ds_write_b128 v116, v[%d:%d] offset:%d" % (X + 4 * half, X + 4 * half + 3, L_XN + (j % NXN) * 8192 + half * 1024), "xw%d" % j))
        return seq

    def h_gemm1_side(self):
        a = self.a
        if "hprio" in self.exp: a("s_setprio 2")
        for x in self.norm_seq(0): self.run(x)
        s1 = self.norm_seq(1)
        h = len(s1) // 2
        for x in s1[:h]: self.run(x)
        for x in s1[h:]: self.run(x)
        if not self.noflags:
            a.vmem("buffer_load_dword v19, v7, s[%d:%d], 0 offen sc1" % (S_DBG, S_DBG + 3), "nonce")
        s2 = self.norm_seq(2)
        for x in s2[:h]: self.run(x)
        a.need_lds("xw0", "xw1")
        if "V3" in self.exp: a.wait_vm("w1c1")
        a("s_barrier")
        for x in s2[h:]: self.run(x)
        for j in range(8):
            if j + 3 <= 7:
                for x in self.norm_seq(j + 3): self.run(x)
            if j == 0 and "pf2" in self.exp: self.line_prefetch("w2", 242)
            if j == 1: self.h_ssm_load()
            if j == 4 and not self.noflags:
                self.get_nonce()
            if j == 5:
                if not self.noflags:
                    a("s_lshl_b32 s%d, s%d, 12" % (sT0, sC))
                    a("s_add_u32 s%d, s%d, 0x%x" % (sT0, sT0, F_H1))
                    a("v_and_b32 v2, 31, v1")
                    a("v_lshlrev_b32 v2, 7, v2")
                    a("v_add_u32 v2, s%d, v2" % sT0)
                if not self.noflags:
                    a.vmem("buffer_load_dwordx4 v[96:99], v2, s[%d:%d], 0 offen sc1" % (S_WS, S_WS + 3), "h1f")
            if j + 1 <= 6:
                if j + 2 <= 7 and "hnowrite" not in self.exp: a.need_lds("xw%d" % (j + 2))
                a("s_barrier")
                if "itst" in self.exp: self.stamp(23 + j)
        if "hprio" in self.exp: a("s_setprio 0")
        self.h_uload()
        self.w2_voff()
        a.lg0()
        a("s_barrier")
        self.stamp(2)

    def h_gemm2(self):
        a = self.a
        HF, ACC = 20, 196
        WBUF = [228, 2]
        AB = 244
        PF = 10
        a("s_lshr_b32 s75, s%d, 1" % sRW)
        a("s_and_b32 s76, s%d, 1" % sRW)
        if "poller3" in self.exp:
            lp3 = a.newlabel("L_hp3"); lgo = a.newlabel("L_hgo")
            a("s_cmp_eq_u32 s%d, 3" % sRW)
            a("s_cbranch_scc1 %s" % lp3)
            q0 = list(a.vm.q)
            for m in range(9):
                a("s_add_u32 s%d, s%d, %d" % (sT0, sRW, 3 * m))
                if m == 8: a("s_min_u32 s%d, s%d, 25" % (sT0, sT0))
                a("s_lshr_b32 s%d, s%d, 1" % (sT1, sT0))
                a("s_and_b32 s%d, s%d, 1" % (sT0, sT0))
                a("s_mul_i32 s71, s%d, %d" % (sT0, NB_H))
                a("s_add_u32 s71, s71, s%d" % sT1)
                a("s_lshl_b32 s71, s71, 12")
                a("s_mul_i32 s70, s%d, 22" % sT0)
                a("s_add_u32 s70, s70, s%d" % sT1)
                a("s_lshl_b32 s70, s70, 15")
                self.w2_dma(71, L_B, 70, 0, "w2b")
            a("s_branch %s" % lgo)
            a.label(lp3)
            if not self.noflags:
                a("s_lshl_b32 s%d, s%d, 10" % (sT0, sR))
                a("s_add_u32 s%d, s%d, 0x%x" % (sT0, sT0, F_H2))
                self.poll(sT0, 8, 4, 128)
            a("v_mov_b32 v2, %d" % (L_SYNC + 60))
            a("v_mov_b32 v3, 1")
            a("ds_write_b32 v2, v3")
            a.label(lgo)
        else:
            for m in range(7):
                a("s_add_u32 s%d, s%d, %d" % (sT0, sRW, 4 * m))
                if m == 6: a("s_min_u32 s%d, s%d, 25" % (sT0, sT0))
                a("s_lshr_b32 s%d, s%d, 1" % (sT1, sT0))
                a("s_and_b32 s%d, s%d, 1" % (sT0, sT0))
                a("s_mul_i32 s71, s%d, %d" % (sT0, NB_H))
                a("s_add_u32 s71, s71, s%d" % sT1)
                a("s_lshl_b32 s71, s71, 12")
                a("s_mul_i32 s70, s%d, 22" % sT0)
                a("s_add_u32 s70, s70, s%d" % sT1)
                a("s_lshl_b32 s70, s70, 15")
                self.w2_dma(71, L_B, 70, 0, "w2b")
        a("s_lshl_b32 s%d, s%d, 2" % (sT2, sR))
        a("s_lshl_b32 s4, s76, 1")
        a("s_add_u32 s%d, s%d, s4" % (sT2, sT2))
        a("s_mul_i32 s%d, s%d, 44032" % (sT2, sT2))
        a("s_mul_i32 s4, s75, %d" % (22 * 1024))
        a("s_add_u32 s%d, s%d, s4" % (sT2, sT2))
        a("s_add_u32 s%d, s%d, 0x%x" % (sT2, sT2, WS_H))
        a("v_lshlrev_b32 v18, 4, v1")
        a("v_add_u32 v18, s%d, v18" % sT2)
        a("v_add_u32 v19, 44032, v18")
        a("v_lshrrev_b32 v2, 4, v1")
        a("v_and_b32 v3, 15, v1")
        a("v_lshrrev_b32 v3, 2, v3")
        a("v_lshrrev_b32 v4, 1, v2")
        a("v_lshlrev_b32 v4, 4, v4")
        a("v_and_b32 v5, 1, v2")
        a("v_lshl_add_u32 v4, v5, 2, v4")
        a("v_add_u32 v4, v4, v3")
        a("v_lshlrev_b32 v4, 7, v4")
        a("v_and_b32 v6, 1, v1")
        a("v_lshl_add_u32 v4, v6, 3, v4")
        a("v_lshlrev_b32 v5, 1, v5")
        a("v_lshrrev_b32 v6, 1, v3")
        a("v_add_u32 v5, v5, v6")
        a("v_lshlrev_b32 v5, 1, v5")
        a("v_and_b32 v6, 3, v1")
        a("v_lshrrev_b32 v6, 1, v6")
        a("s_mul_i32 s4, s75, %d" % B_HALF)
        if L_B: a("s_add_u32 s4, s4, %d" % L_B)
        for b in range(4):
            a("v_add_u32 v7, %d, v6" % (2 * b))
            a("v_xor_b32 v7, v7, v5")
            a("v_lshl_add_u32 v7, v7, 4, v4")
            a("v_add_u32 v%d, s4, v7" % (AB + b))
        a("s_mul_i32 s5, s75, %d" % (NA_H * 4096))
        a("s_add_u32 s5, s5, %d" % L_A)
        a("s_sub_u32 s77, s5, s4")
        a("s_sub_u32 s79, s4, s5")
        for i in range(32): a("v_mov_b32 v%d, 0" % (ACC + i))
        if "poller3" in self.exp:
            a("s_mov_b32 s5, %d" % (L_SYNC + 60))
            self.lds_wait(5, 1, 253, 254)
        else:
            self.stamp(5)
            if not self.noflags:
                a("s_lshl_b32 s%d, s%d, 10" % (sT0, sR))
                a("s_add_u32 s%d, s%d, 0x%x" % (sT0, sT0, F_H2))
                self.poll(sT0, 8, 4, 128)
        self.stamp(6)

        def hload(i):
            ops = []
            for t in range(2):
                def f(t=t):
                    r = HF + (i * 2 + t) * 4
                    so = i * 1024
                    if so < 4096:
                        a.vmem("buffer_load_dwordx4 v[%d:%d], v%d, s[%d:%d], 0 offen offset:%d sc1" % (r, r + 3, 18 + t, S_WS, S_WS + 3, so), "h%d" % i)
                    else:
                        if t == 0: a("s_mov_b32 s80, %d" % (so & ~4095))
                        a.vmem("buffer_load_dwordx4 v[%d:%d], v%d, s[%d:%d], s80 offen offset:%d sc1" % (r, r + 3, 18 + t, S_WS, S_WS + 3, so & 4095), "h%d" % i)
                ops.append(f)
            return ops

        def read_ops(i):
            buf = WBUF[i & 1]
            if i < 13: so = i * 4096
            elif i < 19: so = (i - 13) * 4096
            else: so = (i - 19) * 4096
            ops = []
            sw = {13: 77, 19: 79}.get(i)
            if sw:
                for b in range(4): ops.append("v_add_u32 v%d, s%d, v%d" % (AB + b, sw, AB + b))
            for b in range(4):
                for hh in range(2):
                    r0 = buf + 4 * b + 2 * hh
                    ops.append(lambda r0=r0, b=b, hh=hh: a.lds("ds_read_b64_tr_b16 v[%d:%d], v%d offset:%d" % (r0, r0 + 1, AB + b, so + hh * 1024), "w%d_%d" % (i, b)))
            return ops

        def mfma_ops(i):
            buf = WBUF[i & 1]
            ops = []
            for b in range(4):
                for t in range(2):
                    def f(b=b, t=t):
                        if b == 0 and t == 0:
                            a.wait_both("h%d" % i, ["w%d_%d" % (i, bb) for bb in range(4)])
                        acc = ACC + (b * 2 + t) * 4
                        hr = HF + (i * 2 + t) * 4
                        a("v_mfma_f32_16x16x32_bf16 v[%d:%d], v[%d:%d], v[%d:%d], v[%d:%d]" % (acc, acc + 3, buf + 4 * b, buf + 4 * b + 3, hr, hr + 3, acc, acc + 3))
                    ops.append(f)
            return ops

        allh = []
        for i in range(22): allh += hload(i)
        hp = 0
        for f in allh[:self.hinit]: f()
        hp = self.hinit
        a("s_waitcnt vmcnt(%d)" % self.hinit)
        self.m_sync(11, va=253, vb=254)
        self.stamp(19)
        for f in read_ops(0): self.run(f)
        last = a.newlabel("L_g2l")
        for i in range(22):
            if i == 12:
                a.lg0()
                a("s_barrier")
            if i == 18:
                a.lg0()
                a("s_barrier")
            if i == 4:
                a("v_mov_b32 v253, %d" % (L_SYNC + 56))
                a("v_mov_b32 v254, 1")
                a("s_mov_b64 exec, 1")
                a.lds("ds_add_u32 v253, v254", "sig")
                a("s_mov_b64 exec, -1")
            if i == 21:
                a("s_cmp_eq_u32 s75, 1")
                a("s_cbranch_scc1 %s" % last)
            fill = []
            if i < 21: fill += read_ops(i + 1)
            nl = self.hper if hp < 2 * (i + self.hwin) else 2
            nl = min(nl, len(allh) - hp)
            fill = allh[hp:hp + nl] + fill
            hp += nl
            interleave(a, mfma_ops(i), fill)
        a.label(last)
        a.lg0()
        self.stamp(22)
        a("v_and_b32 v2, 15, v1")
        a("v_lshrrev_b32 v3, 4, v1")
        a("v_mul_u32_u24 v2, 272, v2")
        a("v_lshl_add_u32 v2, v3, 4, v2")
        a("s_mul_i32 s4, s75, %d" % P_STRIDE)
        a("s_mul_i32 s5, s76, %d" % (32 * 272))
        a("s_add_u32 s4, s4, s5")
        a("s_add_u32 s4, s4, %d" % L_P)
        a("v_add_u32 v2, s4, v2")
        for b in range(4):
            for t in range(2):
                acc = ACC + (b * 2 + t) * 4
                a("ds_write_b128 v2, v[%d:%d] offset:%d" % (acc, acc + 3, t * 16 * 272 + b * 64))
        self.final_x_load(240, 244)
        a.lg0()
        a("s_barrier")

    def final(self):
        a = self.a
        P0 = L_P; P1 = L_P + P_STRIDE; YL = L_Y
        XR = 240; OA = 244
        a("s_and_b32 s%d, s%d, 3" % (sT0, sW))
        a("s_lshr_b32 s%d, s%d, 2" % (sT1, sW))
        a("v_lshrrev_b32 v2, 2, v1")
        a("v_and_b32 v3, 3, v1")
        a("s_lshl_b32 s4, s%d, 4" % sT0)
        a("v_add_u32 v2, s4, v2")
        a("v_mul_u32_u24 v4, 272, v2")
        a("v_lshl_add_u32 v4, v3, 5, v4")
        a("s_lshl_b32 s4, s%d, 7" % sT1)
        a("s_add_u32 s4, s4, %d" % P0)
        a("v_add_u32 v4, s4, v4")
        a("ds_read_b128 v[20:23], v4")
        a("ds_read_b128 v[24:27], v4 offset:16")
        a("ds_read_b128 v[28:31], v4 offset:%d" % (P1 - P0))
        a("ds_read_b128 v[32:35], v4 offset:%d" % (P1 - P0 + 16))
        a("v_lshlrev_b32 v6, 3, v2")
        a("v_add_u32 v6, %d, v6" % L_STATS)
        a("ds_read_b64 v[36:37], v6")
        a("v_lshrrev_b32 v7, 4, v1")
        a("v_lshlrev_b32 v7, 3, v7")
        a("v_and_b32 v8, 15, v1")
        a("v_lshrrev_b32 v8, 2, v8")
        a("v_add_u32 v7, v7, v8")
        a("s_lshl_b32 s4, s%d, 5" % sT1)
        a("v_add_u32 v7, s4, v7")
        a("v_mul_u32_u24 v7, 144, v7")
        a("v_and_b32 v8, 3, v1")
        a("v_lshl_add_u32 v7, v8, 3, v7")
        a("s_lshl_b32 s4, s%d, 5" % sT0)
        a("s_add_u32 s4, s4, %d" % YL)
        a("v_add_u32 v7, s4, v7")
        a("ds_read_b64_tr_b16 v[38:39], v7")
        a("ds_read_b64_tr_b16 v[40:41], v7 offset:%d" % (4 * 144))
        a("v_and_b32 v8, 3, v1")
        a("v_lshlrev_b32 v8, 4, v8")
        a("v_lshrrev_b32 v9, 2, v1")
        a("v_or_b32 v8, v8, v9")
        a("v_lshlrev_b32 v8, 2, v8")
        a("v_mov_b32 v10, 0xbfb8aa3b")
        a("v_mov_b32 v11, 1.0")
        a("s_waitcnt lgkmcnt(0)")
        for i in range(4):
            a("ds_bpermute_b32 v%d, v8, v%d" % (42 + i, 38 + i))
        for i in range(8):
            a("v_add_f32 v%d, v%d, v%d" % (20 + i, 20 + i, 28 + i))
        for i in range(4):
            a("v_cvt_pk_bf16_f32 v%d, v%d, v%d" % (28 + i, 20 + 2 * i, 21 + 2 * i))
        for i in range(4):
            a("v_alignbit_b32 v%d, v%d, 0, 16" % (20 + 2 * i, 28 + i))
            a("v_and_b32 v%d, v%d, v%d" % (21 + 2 * i, vMHI, 28 + i))
        for i in range(8):
            a("v_mul_f32 v%d, v10, v%d" % (48 + i, 20 + i))
        for i in range(8):
            a("v_exp_f32 v%d, v%d" % (48 + i, 48 + i))
        a("s_waitcnt vmcnt(0)")
        a("v_sub_f32 v12, 0, v36")
        for i in range(4):
            a("v_dot2_f32_bf16 v%d, v%d, v%d, v12" % (72 + 2 * i, XR + i, vONELO))
            a("v_dot2_f32_bf16 v%d, v%d, v%d, v12" % (73 + 2 * i, XR + i, vONEHI))
        for i in range(8):
            a("v_add_f32 v%d, v11, v%d" % (48 + i, 48 + i))
        for i in range(4):
            a("v_cvt_pk_bf16_f32 v%d, v%d, v%d" % (80 + i, 72 + 2 * i, 73 + 2 * i))
        for i in range(8):
            a("v_rcp_f32 v%d, v%d" % (48 + i, 48 + i))
        for i in range(4):
            a("v_alignbit_b32 v%d, v%d, 0, 16" % (72 + 2 * i, 80 + i))
            a("v_and_b32 v%d, v%d, v%d" % (73 + 2 * i, vMHI, 80 + i))
        for i in range(8):
            a("v_mul_f32 v%d, v%d, v37" % (72 + i, 72 + i))
        for i in range(8):
            a("v_mul_f32 v%d, v%d, v%d" % (20 + i, 20 + i, 48 + i))
        for i in range(4):
            a("v_cvt_pk_bf16_f32 v%d, v%d, v%d" % (80 + i, 72 + 2 * i, 73 + 2 * i))
        for i in range(4):
            a("v_cvt_pk_bf16_f32 v%d, v%d, v%d" % (28 + i, 20 + 2 * i, 21 + 2 * i))
        a("s_waitcnt lgkmcnt(0)")
        for i in range(4):
            a("v_and_b32 v%d, v%d, v%d" % (56 + 2 * i, vMLO, 42 + i))
            a("v_and_b32 v%d, v%d, v%d" % (57 + 2 * i, vMHI, 42 + i))
            a("v_and_b32 v%d, v%d, v%d" % (64 + 2 * i, vMLO, 28 + i))
            a("v_and_b32 v%d, v%d, v%d" % (65 + 2 * i, vMHI, 28 + i))
        for i in range(4):
            a("v_dot2_f32_bf16 v%d, v%d, v%d, 0" % (72 + 2 * i, 80 + i, 56 + 2 * i))
            a("v_dot2_f32_bf16 v%d, v%d, v%d, 0" % (73 + 2 * i, 80 + i, 57 + 2 * i))
        for i in range(4):
            a("v_alignbit_b32 v%d, v%d, 0, 16" % (88 + 2 * i, XR + i))
            a("v_and_b32 v%d, v%d, v%d" % (89 + 2 * i, vMHI, XR + i))
        for i in range(4):
            a("v_cvt_pk_bf16_f32 v%d, v%d, v%d" % (80 + i, 72 + 2 * i, 73 + 2 * i))
        for i in range(4):
            a("v_dot2_f32_bf16 v%d, v%d, v%d, 0" % (72 + 2 * i, 80 + i, 64 + 2 * i))
            a("v_dot2_f32_bf16 v%d, v%d, v%d, 0" % (73 + 2 * i, 80 + i, 65 + 2 * i))
        for i in range(4):
            a("v_cvt_pk_bf16_f32 v%d, v%d, v%d" % (80 + i, 72 + 2 * i, 73 + 2 * i))
        for i in range(4):
            a("v_dot2_f32_bf16 v%d, v%d, v%d, v%d" % (72 + 2 * i, 80 + i, vONELO, 88 + 2 * i))
            a("v_dot2_f32_bf16 v%d, v%d, v%d, v%d" % (73 + 2 * i, 80 + i, vONEHI, 89 + 2 * i))
        for i in range(4):
            a("v_cvt_pk_bf16_f32 v%d, v%d, v%d" % (80 + i, 72 + 2 * i, 73 + 2 * i))
        a("buffer_store_dwordx4 v[80:83], v%d, s[%d:%d], 0 offen" % (OA, S_OUT, S_OUT + 3))

    def build(self):
        a = self.a
        self.p0()
        self.m_front()
        self.stamp(1)
        self.m_prep()
        self.stamp(10)
        self.m_gemm1()
        self.stamp(4)
        self.m_conv()
        self.m_tail()
        a("s_branch L_final")
        a.label("L_H")
        self.h_front()
        self.stamp(1)
        self.h_stats()
        self.stamp(11)
        self.h_gemm1_side()
        self.h_gemm2()
        a.label("L_final")
        a.lg_clear()
        self.stamp(8)
        self.final()
        self.stamp(9)
        self.dump_stamps()
        a("s_waitcnt vmcnt(0)")
        a.label("L_end")
        a.label("L_codeend")
        a("s_endpgm")
        lines, n = hazard.fix(a.lines)
        self.nnops = n
        hdr = """; Kernarg layout: x,k,v,shift_k,ssm_k,ssm_D,B_x,w1,w2,out,debug,ws (8-byte pointers)
; @launch grid=(256,1,1) block=(512,1,1) lds=%d
.amdgcn_target "amdgcn-amd-amdhsa--gfx950"
.text
.globl %s
.p2align 8
.type %s,@function
%s:
""" % (LDS_SIZE, KNAME, KNAME, KNAME)
        ftr = """.section .rodata,"a"
.p2align 6
.amdhsa_kernel %s
  .amdhsa_next_free_vgpr 256
  .amdhsa_next_free_sgpr 102
  .amdhsa_accum_offset 256
  .amdhsa_group_segment_fixed_size 0
  .amdhsa_kernarg_size 96
  .amdhsa_user_sgpr_count 2
  .amdhsa_user_sgpr_kernarg_segment_ptr 1
  .amdhsa_system_sgpr_workgroup_id_x 1
.end_amdhsa_kernel
""" % KNAME
        return hdr + "\n".join(lines) + "\n" + ftr

if __name__ == "__main__":
    import argparse
    ap = argparse.ArgumentParser()
    ap.add_argument("-o", default="k.s")
    ap.add_argument("--stamps", action="store_true")
    ap.add_argument("--noflags", action="store_true")
    ap.add_argument("--exp", default="")
    args = ap.parse_args()
    g = Gen(stamps=args.stamps, noflags=args.noflags, exp=args.exp)
    txt = g.build()
    open(args.o, "w").write(txt)
    print("wrote", args.o, len(txt.splitlines()), "lines; hazard nops:", g.nnops)
```

```python
import sys
from emit import *
import hazard

KNAME = "recurrent_scan__ssm_conv_h3__dense_activation_relu__prompt_kernel"

WS_KVT = 0
WS_YT = 2 << 20
WS_H = 4 << 20
WS_FLAG = 10 << 20
F_H1 = WS_FLAG
F_H2 = WS_FLAG + 32768
F_H3 = WS_FLAG + 65536
WS_STAMP = WS_FLAG + (256 << 10)
WS_SIZE = 16 << 20

L_XN = 0
NXN = 4
L_W1 = 32768
W1_SLOT = 24576
NW1 = 5
L_PREP = L_W1 + 4 * W1_SLOT
L_A = L_W1 + 3 * W1_SLOT
NA_H = 6
L_T = L_A + 8
T_CH = 16640
T_CP = 4160
L_U = L_A + 33408
U_CH = 4608
L_B = 0
NB_H = 13
B_HALF = NB_H * 4096
L_Y = 16384
L_P = L_B + 7 * 4096
P_STRIDE = B_HALF
L_STATS = 161792
L_SYNC = 162304
LDS_SIZE = 163840
assert L_U % 16 == 0 and L_U + 2 * U_CH <= L_W1 + 5 * W1_SLOT and L_T + 2 * T_CH <= L_U
assert L_A + 2 * NA_H * 4096 <= L_STATS and 2 * B_HALF <= L_A and L_W1 + NW1 * W1_SLOT <= L_STATS

S_X, S_K, S_V, S_W1, S_W2, S_OUT, S_SSM, S_WS, S_SH, S_DBG = 8, 12, 16, 20, 24, 28, 32, 36, 40, 44
sR, sC, sW, sNONCE = 48, 49, 50, 51
sF0, sBP, sNB = 52, 53, 54
sT0, sT1, sT2, sT3 = 55, 56, 57, 58
sRW = 59
sEX = 60
sROT = 62
sDP = 64
sDD = 66
sM0B = 67
sP0, sP1 = 68, 69
sUOK = 72
sID = 81
sD = 85
sINV1, sINV2 = 73, 74
vMLO, vMHI, vONELO, vONEHI, vONES = 248, 249, 250, 251, 252

def merge(*lists):
    lists = [l for l in lists if l]
    tot = sum(len(l) for l in lists)
    out = []; idx = [0] * len(lists)
    for s in range(tot):
        best = min((i for i in range(len(lists)) if idx[i] < len(lists[i])), key=lambda i: (idx[i] + 0.5) / len(lists[i]))
        out.append(lists[best][idx[best]]); idx[best] += 1
    return out

class Gen:
    def __init__(self, stamps=False, noflags=False, exp=""):
        self.exp = set(exp.split(",")) if exp else set()
        self.a = Asm()
        self.stamps = stamps
        self.noflags = noflags
        self.relax_ln = "relax_ln" in self.exp
        self.stampset = None
        self.h2n = 75
        self.pf2j = 0
        for e in self.exp:
            if e.startswith('pj='): self.pf2j = int(e[3:])
            if e.startswith('h2n='): self.h2n = int(e[4:])
        self.hwin = 22; self.hper = 6; self.hinit = 12
        for e in self.exp:
            if e.startswith('hw='): self.hwin, self.hper, self.hinit = [int(x) for x in e[3:].split('+')]
        for e in self.exp:
            if e.startswith("st="):
                self.stampset = set(int(x) for x in e[3:].split("+"))

    def stamp(self, idx):
        if not self.stamps: return
        if self.stampset is not None and idx not in self.stampset: return
        a = self.a
        a("s_memrealtime s[4:5]")
        if "clk" in self.exp and idx in (14, 2, 4, 16):
            a("s_memtime s[6:7]")
        a.lg0()
        a("v_writelane_b32 v255, s4, %d" % idx)
        if "clk" in self.exp and idx in (14, 2, 4, 16):
            a("v_writelane_b32 v255, s6, %d" % {14: 29, 2: 30, 4: 31, 16: 15}[idx])

    def dump_stamps(self):
        if not self.stamps: return
        a = self.a
        if "dbgst" in self.exp:
            sk = a.newlabel("L_ds")
            a("s_or_b32 s4, s2, s%d" % sW)
            a("s_cmp_lg_u32 s4, 0")
            a("s_cbranch_scc1 %s" % sk)
            a("v_readlane_b32 s4, v255, 0")
            a("s_nop 3")
            a("v_subrev_u32 v3, s4, v255")
            order = [12, 10, 14, 2, 4, 16, 17, 18, 7, 8, 9]
            for k, i in enumerate(order):
                a("v_readlane_b32 s5, v3, %d" % i)
                a("s_nop 3")
                a("v_mov_b32 v4, s5")
                a("v_mov_b32 v5, %d" % (4 * (k + 1)))
                a("s_mov_b64 exec, 1")
                a("buffer_store_dword v4, v5, s[%d:%d], 0 offen" % (S_DBG, S_DBG + 3))
                a("s_mov_b64 exec, -1")
            a.label(sk)
        a("s_lshl_b32 s%d, s2, 3" % sT0)
        a("s_add_u32 s%d, s%d, s%d" % (sT0, sT0, sW))
        a("s_lshl_b32 s%d, s%d, 7" % (sT0, sT0))
        a("s_add_u32 s%d, s%d, 0x%x" % (sT0, sT0, WS_STAMP))
        a("v_lshlrev_b32 v2, 2, v1")
        a("v_add_u32 v2, s%d, v2" % sT0)
        a("s_mov_b32 exec_lo, -1")
        a("s_mov_b32 exec_hi, 0")
        a("buffer_store_dword v255, v2, s[%d:%d], 0 offen" % (S_WS, S_WS + 3))
        a("s_mov_b64 exec, -1")

    def run(self, x):
        if callable(x): x()
        else: self.a(x)

    def spread(self, seq, extra):
        a = self.a
        if not extra:
            for x in seq: self.run(x)
            return
        step = max(1, len(seq) // (len(extra) + 1))
        k = 0
        for i, ins in enumerate(seq):
            self.run(ins)
            if (i + 1) % step == 0 and k < len(extra):
                self.run(extra[k]); k += 1
        while k < len(extra):
            self.run(extra[k]); k += 1

    def p0(self):
        a = self.a
        a("s_cmp_ge_u32 s2, 256")
        a("s_cbranch_scc1 L_end")
        for dst, off in ((S_K, 8), (S_V, 16), (S_SH, 24), (S_X, 0), (S_W1, 56), (S_SSM, 32), (S_WS, 88), (S_DBG, 80), (S_W2, 64), (S_OUT, 72), (sDP, 40)):
            a("s_load_dwordx2 s[%d:%d], s[0:1], %d" % (dst, dst + 1, off))
        if self.stamps: a("v_mov_b32 v255, 0")
        a("v_lshrrev_b32 v2, 6, v0")
        a("v_and_b32 v1, 63, v0")
        if "map42" in self.exp:
            a("s_and_b32 s%d, s2, 3" % sR)
            a("s_lshl_b32 s%d, s%d, 3" % (sR, sR))
            a("s_bfe_u32 s3, s2, 0x30003")
            a("s_add_u32 s%d, s%d, s3" % (sR, sR))
            a("s_bfe_u32 s%d, s2, 0x10002" % sC)
            a("s_lshl_b32 s%d, s%d, 2" % (sC, sC))
            a("s_lshr_b32 s3, s2, 6")
            a("s_add_u32 s%d, s%d, s3" % (sC, sC))
        else:
            a("s_and_b32 s%d, s2, 7" % sR)
            a("s_lshr_b32 s3, s2, 6")
            a("s_lshl_b32 s3, s3, 3")
            a("s_add_u32 s%d, s%d, s3" % (sR, sR))
            a("s_bfe_u32 s%d, s2, 0x30003" % sC)
        if "dshift" in self.exp:
            a("s_add_u32 s%d, s%d, 1" % (sD, sC))
            a("s_and_b32 s%d, s%d, 7" % (sD, sD))
        else:
            a("s_mov_b32 s%d, s%d" % (sD, sC))
        a("s_lshl_b32 s%d, s%d, 5" % (sID, sC))
        a("s_add_u32 s%d, s%d, s%d" % (sID, sID, sR))
        a("v_readfirstlane_b32 s%d, v2" % sW)
        for dst, size in ((S_K, 2097152), (S_V, 2097152), (S_SH, 4096), (S_X, 2097152), (S_W1, 1409024), (S_SSM, 2097152), (S_WS, WS_SIZE), (S_DBG, 256), (S_W2, 1409024), (S_OUT, 2097152)):
            a("s_mov_b32 s%d, 0x%x" % (dst + 2, size))
            a("s_mov_b32 s%d, 0x00020000" % (dst + 3))
        a("s_and_b32 s%d, s%d, 3" % (sRW, sW))
        if "map42" in self.exp:
            a("s_lshl_b32 s%d, s%d, 1" % (sT0, sC))
            a("s_add_u32 s%d, s%d, s%d" % (sT0, sT0, sR))
            a("s_and_b32 s%d, s%d, 7" % (sROT, sT0))
        else:
            a("s_lshr_b32 s%d, s%d, 3" % (sT0, sR))
            a("s_lshl_b32 s%d, s%d, 1" % (sT0, sT0))
            a("s_add_u32 s%d, s%d, s%d" % (sT0, sT0, sC))
            a("s_add_u32 s%d, s%d, s%d" % (sT0, sT0, sR))
            a("s_and_b32 s%d, s%d, 7" % (sROT, sT0))
        if "norot" in self.exp: a("s_mov_b32 s%d, 0" % sROT)
        a("s_mul_i32 s%d, s%d, 6" % (sBP, sC))
        a("s_sub_i32 s%d, s%d, 3" % (sT0, sC))
        a("s_max_i32 s%d, s%d, 0" % (sT0, sT0))
        a("s_sub_u32 s%d, s%d, s%d" % (sBP, sBP, sT0))
        a("s_lshl_b32 s%d, s%d, 5" % (sF0, sBP))
        a("s_cmp_lt_u32 s%d, 3" % sC)
        a("s_cselect_b32 s%d, 12, 10" % sNB)
        a("v_mov_b32 v%d, 0xffff" % vMLO)
        a("v_mov_b32 v%d, 0xffff0000" % vMHI)
        a("v_mov_b32 v%d, 0x3f80" % vONELO)
        a("v_mov_b32 v%d, 0x3f800000" % vONEHI)
        a("v_mov_b32 v%d, 0x3f803f80" % vONES)
        a("s_mov_b32 s%d, 0x05040100" % sP0)
        a("s_mov_b32 s%d, 0x07060302" % sP1)
        a("v_and_b32 v3, 15, v0")
        a("v_lshlrev_b32 v3, 2, v3")
        a("v_add_u32 v3, %d, v3" % L_SYNC)
        a("v_mov_b32 v4, 0")
        a("ds_write_b32 v3, v4")
        a("s_cmp_ge_u32 s%d, 4" % sW)
        a("s_cbranch_scc1 L_H")
        a("s_setprio 2")

    def w1_dma_ops(self, j):
        a = self.a
        slot = j % NW1
        ops = []
        def head():
            a("s_add_u32 s%d, s%d, %d" % (sT1, sROT, j))
            a("s_and_b32 s%d, s%d, 7" % (sT1, sT1))
            a("s_mul_i32 s%d, s%d, %d" % (sT1, sT1, 64 * 2752))
            a("s_add_u32 m0, s%d, %d" % (sM0B, slot * W1_SLOT))
            a.vmem("buffer_load_dwordx4 v12, s[%d:%d], s%d offen lds" % (S_W1, S_W1 + 3, sT1), "w1c%d" % j)
        ops.append(head)
        for i in range(1, 6):
            def nxt(i=i):
                a("s_add_u32 m0, s%d, %d" % (sM0B, slot * W1_SLOT + 1024 * i))
                a.vmem("buffer_load_dwordx4 v%d, s[%d:%d], s%d offen lds" % (12 + i, S_W1, S_W1 + 3, sT1), "w1c%d" % j)
            ops.append(nxt)
        return ops

    def w1_voffs(self):
        a = self.a
        V = 12
        a("s_mul_i32 s%d, s%d, %d" % (sT0, sRW, 16 * 2752))
        a("s_lshl_b32 s%d, s%d, 1" % (sT1, sF0))
        a("s_add_u32 s%d, s%d, s%d" % (sT0, sT0, sT1))
        a("s_lshl_b32 s%d, s%d, 1" % (sT1, sNB))
        a("v_mov_b32 v7, 0x40000000")
        for i in range(6):
            a("v_add_u32 v2, %d, v1" % (64 * i))
            a("v_mul_u32_u24 v3, 2731, v2")
            a("v_lshrrev_b32 v3, 16, v3")
            a("v_mul_u32_u24 v4, 24, v3")
            a("v_sub_u32 v4, v2, v4")
            a("v_and_b32 v5, 2, v3")
            a("v_lshrrev_b32 v6, 1, v3")
            a("v_and_b32 v6, 4, v6")
            a("v_or_b32 v5, v5, v6")
            a("v_xor_b32 v4, v4, v5")
            a("v_mul_u32_u24 v5, 2752, v3")
            a("v_lshl_add_u32 v5, v4, 4, v5")
            a("v_add_u32 v5, s%d, v5" % sT0)
            a("v_cmp_gt_u32 vcc, s%d, v4" % sT1)
            a("v_cndmask_b32 v%d, v7, v5, vcc" % (V + i))
        a("s_mul_i32 s%d, s%d, %d" % (sM0B, sRW, 16 * 384))
        a("s_add_u32 s%d, s%d, %d" % (sM0B, sM0B, L_W1))

    def line_prefetch(self, which, vd):
        a = self.a
        a("s_lshr_b32 s%d, s2, 3" % sT0)
        a("v_and_b32 v2, 255, v0")
        if "map42" not in self.exp:
            srd = S_W1 if which == "w1" else S_W2
            a("s_mul_i32 s%d, s%d, %d" % (sT0, sT0, 344 * 128))
            a("v_lshlrev_b32 v3, 7, v2")
            a("v_add_u32 v3, s%d, v3" % sT0)
            a.vmem("buffer_load_dword v%d, v3, s[%d:%d], 0 offen" % (vd, srd, srd + 3), "pf")
            a("v_cmp_gt_u32 vcc, %d, v2" % (344 - 256))
            a("v_add_u32 v3, 32768, v3")
            a("v_mov_b32 v4, 0x40000000")
            a("v_cndmask_b32 v3, v4, v3, vcc")
            a.vmem("buffer_load_dword v%d, v3, s[%d:%d], 0 offen" % (vd + 1, srd, srd + 3), "pf")
        elif which == "w2":
            a("s_mul_i32 s%d, s%d, 43" % (sT0, sT0))
            a("s_bfe_u32 s%d, s2, 0x10002" % sT1)
            a("s_lshl_b32 s%d, s%d, 9" % (sT1, sT1))
            a("s_lshl_b32 s%d, s%d, 10" % (sT0, sT0))
            a("s_add_u32 s%d, s%d, s%d" % (sT0, sT0, sT1))
            a("v_lshrrev_b32 v3, 2, v2")
            a("v_lshlrev_b32 v3, 10, v3")
            a("v_and_b32 v4, 3, v2")
            a("v_lshl_add_u32 v3, v4, 7, v3")
            a("v_add_u32 v3, s%d, v3" % sT0)
            a("v_cmp_gt_u32 vcc, 172, v2")
            a("v_mov_b32 v4, 0x40000000")
            a("v_cndmask_b32 v3, v4, v3, vcc")
            a.vmem("buffer_load_dword v%d, v3, s[%d:%d], 0 offen" % (vd, S_W2, S_W2 + 3), "pf")
        else:
            a("s_lshl_b32 s%d, s%d, 4" % (sT0, sT0))
            a("s_mul_i32 s%d, s%d, 2752" % (sT0, sT0))
            a("s_bfe_u32 s%d, s2, 0x10002" % sT1)
            a("s_mul_i32 s%d, s%d, 1472" % (sT1, sT1))
            a("s_add_u32 s%d, s%d, s%d" % (sT0, sT0, sT1))
            a("v_mul_u32_u24 v3, 5462, v2")
            a("v_lshrrev_b32 v3, 16, v3")
            a("v_mul_u32_u24 v4, 12, v3")
            a("v_sub_u32 v4, v2, v4")
            a("v_mul_u32_u24 v3, 2752, v3")
            a("v_lshl_add_u32 v3, v4, 7, v3")
            a("v_add_u32 v3, s%d, v3" % sT0)
            a("v_cmp_gt_u32 vcc, 192, v2")
            a("v_mov_b32 v4, 0x40000000")
            a("v_cndmask_b32 v3, v4, v3, vcc")
            a.vmem("buffer_load_dword v%d, v3, s[%d:%d], 0 offen" % (vd, S_W1, S_W1 + 3), "pf")

    def m_front(self):
        a = self.a
        a("v_lshrrev_b32 v3, 5, v0")
        a("v_and_b32 v4, 31, v0")
        a("s_lshl_b32 s%d, s%d, 16" % (sT0, sR))
        a("s_lshl_b32 s%d, s%d, 7" % (sT1, sC))
        a("s_add_u32 s%d, s%d, s%d" % (sT0, sT0, sT1))
        a("v_lshlrev_b32 v2, 13, v3")
        a("v_lshl_add_u32 v2, v4, 2, v2")
        a("v_add_u32 v2, s%d, v2" % sT0)
        a("v_add_u32 v5, 0xfffff400, v2")
        a("v_add_u32 v6, 0xfffff800, v2")
        a("v_add_u32 v7, 0xfffffc00, v2")
        a("v_add_u32 v8, 4096, v2")
        a("s_lshl_b32 s%d, s%d, 9" % (sT2, sC))
        a("v_lshlrev_b32 v9, 4, v4")
        a("v_add_u32 v9, s%d, v9" % sT2)
        a.lg0()
        if self.stamps:
            a("s_memrealtime s[4:5]"); a.lg0(); a("v_writelane_b32 v255, s4, 0")
        K, V, SH = 20, 32, 40
        for t, r in enumerate((5, 6, 7)):
            a.vmem("buffer_load_dword v%d, v%d, s[%d:%d], 0 offen" % (K + t, r, S_K, S_K + 3), "prep")
        for t in range(8):
            a.vmem("buffer_load_dword v%d, v%d, s[%d:%d], 0 offen offset:%d" % (K + 3 + t, 2 if t < 4 else 8, S_K, S_K + 3, 1024 * (t & 3)), "prep")
        a.vmem("buffer_load_dwordx4 v[40:43], v9, s[%d:%d], 0 offen" % (S_SH, S_SH + 3), "prep")
        for t in range(8):
            a.vmem("buffer_load_dword v%d, v%d, s[%d:%d], 0 offen offset:%d" % (V + t, 2 if t < 4 else 8, S_V, S_V + 3, 1024 * (t & 3)), "prep")
        a("s_setprio 0")
        a("s_waitcnt lgkmcnt(0)")
        a("s_barrier")
        if "pfM" in self.exp:
            self.line_prefetch("w1", 240)
        if not self.noflags:
            a("s_or_b32 s%d, s2, s%d" % (sT1, sW))
            a("s_cmp_lg_u32 s%d, 0" % sT1)
            a("s_cbranch_scc1 L_nononce")
            a("s_memrealtime s[4:5]")
            a("s_waitcnt lgkmcnt(0)")
            a("s_or_b32 s4, s4, 1")
            a("v_mov_b32 v2, s4")
            a("v_mov_b32 v3, 0")
            a("s_mov_b64 exec, 1")
            a("buffer_store_dword v2, v3, s[%d:%d], 0 offen sc1" % (S_DBG, S_DBG + 3))
            a("s_mov_b64 exec, -1")
            a.label("L_nononce")
        self.w1_voffs()
        self.m_gemm1_setup()
        a("s_lshl_b32 s%d, s%d, 7" % (sT0, sC))
        a("s_lshl_b32 s%d, s%d, 2" % (sT1, sR))
        a("s_add_u32 s%d, s%d, s%d" % (sT0, sT0, sT1))
        a("s_load_dword s%d, s[%d:%d], s%d" % (sDD, sDP, sDP + 1, sT0))

    def m_gemm1_setup(self):
        a = self.a
        AX = 8; AW = [9, 10, 11]
        a("v_and_b32 v2, 15, v1")
        a("v_lshrrev_b32 v3, 4, v1")
        a("v_lshlrev_b32 v4, 1, v3")
        a("v_xor_b32 v4, v2, v4")
        a("v_lshlrev_b32 v4, 4, v4")
        a("v_lshl_add_u32 v%d, v3, 8, v4" % AX)
        a("v_lshrrev_b32 v5, 2, v2")
        a("v_lshl_add_u32 v4, v3, 3, v5")
        a("v_mul_u32_u24 v4, 384, v4")
        a("v_and_b32 v6, 3, v1")
        a("v_lshl_add_u32 v4, v6, 3, v4")
        a("v_lshrrev_b32 v5, 1, v5")
        a("v_and_b32 v6, 1, v3")
        a("v_lshl_add_u32 v5, v6, 1, v5")
        a("s_mul_i32 s%d, s%d, 3" % (sT0, sRW))
        for b in range(3):
            a("s_add_u32 s%d, s%d, %d" % (sT1, sT0, b))
            a("v_xor_b32 v6, s%d, v5" % sT1)
            a("v_lshl_add_u32 v6, v6, 5, v4")
            a("v_add_u32 v%d, %d, v6" % (AW[b], L_W1))
        a("v_lshlrev_b32 v5, 4, v2")
        a("v_lshrrev_b32 v4, 1, v3")
        a("v_lshl_add_u32 v5, v4, 8, v5")
        a("v_and_b32 v4, 1, v3")
        a("v_lshl_add_u32 v5, v4, 3, v5")
        a("s_lshr_b32 s%d, s%d, 4" % (sBP, sF0))
        a("s_mul_i32 s%d, s%d, %d" % (sT0, sR, 4 * 44032))
        a("s_mul_i32 s%d, s%d, 3" % (sT1, sRW))
        a("s_add_u32 s%d, s%d, s%d" % (sT2, sT1, sBP))
        a("s_lshl_b32 s%d, s%d, 9" % (sT2, sT2))
        a("s_add_u32 s%d, s%d, s%d" % (sT0, sT0, sT2))
        a("s_add_u32 s%d, s%d, 0x%x" % (sT0, sT0, WS_H))
        a("v_add_u32 v168, s%d, v5" % sT0)
        for tb in range(1, 4):
            a("v_add_u32 v%d, %d, v168" % (168 + tb, 44032 * tb))
        for b, sr_ in ((1, sINV1), (2, sINV2)):
            a("s_add_u32 s%d, s%d, %d" % (sT2, sT1, b))
            a("s_cmp_lt_u32 s%d, s%d" % (sT2, sNB))
            a("s_cselect_b32 s%d, 0, 0x40000000" % sr_)

    def m_prep(self):
        a = self.a
        K, V, SH = 20, 32, 40
        WL, WH = 44, 48
        PL, PH = 52, 56
        PP, AC = 60, 64
        TA, TB = 68, 72
        KV = 76
        OUT = 92
        dma = []
        if "V2" in self.exp:
            for f in self.w1_dma_ops(0) + self.w1_dma_ops(1): f()
        a.wait_vm("prep")
        self.stamp(12)
        seq = []; e = seq.append
        e("v_and_b32 v%d, v%d, v%d" % (WL + 0, vMLO, SH + 0)); e("v_lshrrev_b32 v%d, 16, v%d" % (WL + 1, SH + 0))
        e("v_and_b32 v%d, v%d, v%d" % (WL + 2, vMLO, SH + 1)); e("v_lshrrev_b32 v%d, 16, v%d" % (WL + 3, SH + 1))
        e("v_lshlrev_b32 v%d, 16, v%d" % (WH + 0, SH + 2)); e("v_and_b32 v%d, v%d, v%d" % (WH + 1, vMHI, SH + 2))
        e("v_lshlrev_b32 v%d, 16, v%d" % (WH + 2, SH + 3)); e("v_and_b32 v%d, v%d, v%d" % (WH + 3, vMHI, SH + 3))
        for hb in range(2):
            r0 = 4 * hb
            if "relax_prep" in self.exp:
                for r in range(4):
                    e("v_dot2_f32_bf16 v%d, v%d, v%d, 0" % (PL + r, K + r0 + r, WL + 3))
                    e("v_dot2_f32_bf16 v%d, v%d, v%d, 0" % (PH + r, K + r0 + r, WH + 3))
                for j in (2, 1, 0):
                    for r in range(4):
                        e("v_dot2_f32_bf16 v%d, v%d, v%d, v%d" % (PL + r, K + 3 + r0 + r - j, WL + j, PL + r))
                        e("v_dot2_f32_bf16 v%d, v%d, v%d, v%d" % (PH + r, K + 3 + r0 + r - j, WH + j, PH + r))
                for r in range(4):
                    e("v_cvt_pk_bf16_f32 v%d, v%d, v%d" % (AC + r, PL + r, PH + r))
            else:
                for j in (3, 2, 1, 0):
                    for r in range(4):
                        e("v_dot2_f32_bf16 v%d, v%d, v%d, 0" % (PL + r, K + 3 + r0 + r - j, WL + j))
                        e("v_dot2_f32_bf16 v%d, v%d, v%d, 0" % (PH + r, K + 3 + r0 + r - j, WH + j))
                    dstp = AC if j == 3 else PP
                    for r in range(4):
                        e("v_cvt_pk_bf16_f32 v%d, v%d, v%d" % (dstp + r, PL + r, PH + r))
                    if j != 3:
                        for r in range(4):
                            e("v_perm_b32 v%d, v%d, v%d, s%d" % (TA + r, PP + r, AC + r, sP0))
                            e("v_perm_b32 v%d, v%d, v%d, s%d" % (TB + r, PP + r, AC + r, sP1))
                        for r in range(4):
                            e("v_dot2_f32_bf16 v%d, v%d, v%d, 0" % (PL + r, TA + r, vONES))
                            e("v_dot2_f32_bf16 v%d, v%d, v%d, 0" % (PH + r, TB + r, vONES))
                        for r in range(4):
                            e("v_cvt_pk_bf16_f32 v%d, v%d, v%d" % (AC + r, PL + r, PH + r))
            for r in range(4):
                e("v_and_b32 v%d, v%d, v%d" % (TA + r, vMLO, V + r0 + r))
                e("v_and_b32 v%d, v%d, v%d" % (TB + r, vMHI, V + r0 + r))
            for r in range(4):
                e("v_dot2_f32_bf16 v%d, v%d, v%d, 0" % (KV + r0 + r, AC + r, TA + r))
                e("v_dot2_f32_bf16 v%d, v%d, v%d, 0" % (KV + 8 + r0 + r, AC + r, TB + r))
        e("v_and_b32 v2, 31, v0"); e("v_mul_u32_u24 v2, 288, v2"); e("v_lshrrev_b32 v3, 5, v0"); e("v_lshlrev_b32 v3, 4, v3")
        e("v_sub_u32 v2, v2, v3"); e("v_add_u32 v2, %d, v2" % (L_PREP + 112))
        for ch in range(2):
            for d in range(4):
                e("v_cvt_pk_bf16_f32 v%d, v%d, v%d" % (OUT + 4 * ch + d, KV + 8 * ch + 7 - 2 * d, KV + 8 * ch + 6 - 2 * d))
        self.spread(seq, dma)
        self.stamp(20)
        a("ds_write_b128 v2, v[%d:%d]" % (OUT, OUT + 3))
        a("ds_write_b128 v2, v[%d:%d] offset:144" % (OUT + 4, OUT + 7))
        a("v_lshrrev_b32 v2, 3, v0")
        a("v_and_b32 v3, 7, v0")
        a("v_mul_u32_u24 v4, 144, v2")
        a("v_lshl_add_u32 v4, v3, 4, v4")
        a("v_add_u32 v4, %d, v4" % L_PREP)
        a("s_lshl_b32 s%d, s%d, 18" % (sT0, sC))
        a("s_lshl_b32 s%d, s%d, 7" % (sT1, sR))
        a("s_sub_u32 s%d, s%d, s%d" % (sT0, sT0, sT1))
        a("s_add_u32 s%d, s%d, %d" % (sT0, sT0, WS_KVT + 3968))
        a("v_lshlrev_b32 v5, 12, v2")
        a("v_lshl_add_u32 v5, v3, 4, v5")
        a("v_add_u32 v5, s%d, v5" % sT0)
        a("v_add_u32 v6, %d, v5" % (32 * 4096))
        if "dmafirst" in self.exp:
            for f in self.w1_dma_ops(0) + self.w1_dma_ops(1) + self.w1_dma_ops(2): f()
            self.stamp(15)
        self.m_sync(13, va=2, vb=3)
        a("ds_read_b128 v[92:95], v4")
        a("ds_read_b128 v[96:99], v4 offset:%d" % (32 * 144))
        a.lg0()
        a.vmem("buffer_store_dwordx4 v[92:95], v5, s[%d:%d], 0 offen sc1" % (S_WS, S_WS + 3), "kvt")
        a.vmem("buffer_store_dwordx4 v[96:99], v6, s[%d:%d], 0 offen sc1" % (S_WS, S_WS + 3), "kvt")
        if not self.noflags:
            a("v_mov_b32 v7, 0")
            a.vmem("buffer_load_dword v19, v7, s[%d:%d], 0 offen sc1" % (S_DBG, S_DBG + 3), "nonce")
        if "dmafirst" not in self.exp:
            self.stamp(15)
            if "V3" in self.exp: lst = self.w1_dma_ops(2) + self.w1_dma_ops(3)
            elif "V2" in self.exp: lst = self.w1_dma_ops(2)
            else: lst = self.w1_dma_ops(0) + self.w1_dma_ops(1) + self.w1_dma_ops(2)
            for f in lst: f()

    def m_gemm1(self):
        a = self.a
        ACC = 20
        BUF = [68, 96, 124]
        AX = 8; AW = [9, 10, 11]
        UREG = 152
        for i in range(48):
            a("v_mov_b32 v%d, 0" % (ACC + i))

        def read_ops(ks):
            buf = BUF[ks % 3]
            j = ks >> 1; ksl = ks & 1; slot = j % NW1
            pre = []
            if ksl == 0 and j > 0:
                d = W1_SLOT if slot != 0 else -(NW1 - 1) * W1_SLOT
                for b in range(3):
                    pre.append("v_add_u32 v%d, %d, v%d" % (AW[b], d & 0xffffffff, AW[b]))
            so = ksl * 32 * 384
            def rx(t):
                return lambda: a.lds("ds_read_b128 v[%d:%d], v%d offset:%d" % (buf + 4 * t, buf + 4 * t + 3, AX, L_XN + (j % NXN) * 8192 + t * 2048 + ksl * 1024), "x%d_%d" % (ks, t))
            def rw(b, hh):
                r0 = buf + 16 + 4 * b + 2 * hh
                return lambda: a.lds("ds_read_b64_tr_b16 v[%d:%d], v%d offset:%d" % (r0, r0 + 1, AW[b], so + hh * 4 * 384), "w%d_%d" % (ks, b))
            if "mnoreads" in self.exp: return pre
            return pre + [rw(0, 0), rw(0, 1), rx(0), rx(1), rx(2), rx(3), rw(1, 0), rw(1, 1), rw(2, 0), rw(2, 1)]

        def mfma_ops(ks):
            cur = BUF[ks % 3]
            ops = []
            for b in range(3):
                for t in range(4):
                    def f(b=b, t=t):
                        if "finewait" in self.exp:
                            a.need_lds("w%d_%d" % (ks, b), "x%d_%d" % (ks, t))
                        elif b == 0 and t == 0:
                            a.need_lds(*(["w%d_%d" % (ks, bb) for bb in range(3)] + ["x%d_%d" % (ks, tt) for tt in range(4)]))
                        acc = ACC + (b * 4 + t) * 4
                        if "mnomfma" in self.exp: return
                        a("v_mfma_f32_16x16x32_bf16 v[%d:%d], v[%d:%d], v[%d:%d], v[%d:%d]" % (
                            acc, acc + 3, cur + 16 + 4 * b, cur + 19 + 4 * b, cur + 4 * t, cur + 4 * t + 3, acc, acc + 3))
                    ops.append(f)
            return ops

        if not self.noflags: self.publish_h1()
        if "V3" not in self.exp: a.wait_vm("w1c1")
        a("s_barrier")
        self.stamp(14)
        for f in read_ops(0): self.run(f)
        for f in read_ops(1)[:5]: self.run(f)
        pend = read_ops(1)[5:]
        for j in range(8):
            if j >= 1 and j <= 6:
                if not ("mnodma" in self.exp and j + 1 >= 3) and "novmw" not in self.exp: a.wait_vm("w1c%d" % (j + 1))
                a("s_barrier")
                if "itst" in self.exp: self.stamp(22 + j)
            dm = self.w1_dma_ops(j + 4) if (j + 4 <= 7) else []
            if j == 0 and "V3" not in self.exp: dm = self.w1_dma_ops(3) + dm
            if "mnodma" in self.exp:
                for _ in dm: a.vm.issue("dummy")
                dm = []
            ex = []
            for half in range(2):
                ks = 2 * j + half
                fill = list(pend); pend = []
                if ks + 2 <= 15:
                    fill += read_ops(ks + 2)
                hlf = (len(dm) + 1) // 2
                extra = (dm[:hlf] + ex if half == 0 else dm[hlf:])
                interleave(a, mfma_ops(ks), merge(fill, extra))
        a.lg0()
        self.stamp(2)
        HB = 68
        for i in range(12):
            a("v_cvt_pk_bf16_f32 v%d, v%d, v%d" % (HB + 2 * i, ACC + 4 * i, ACC + 4 * i + 1))
            a("v_cvt_pk_bf16_f32 v%d, v%d, v%d" % (HB + 2 * i + 1, ACC + 4 * i + 2, ACC + 4 * i + 3))
        for i in range(24):
            a("v_pk_max_i16 v%d, v%d, 0" % (HB + i, HB + i))
        for b in range(3):
            so = "0" if b == 0 else "s%d" % (sINV1 if b == 1 else sINV2)
            for t in range(4):
                r = HB + (b * 4 + t) * 2
                a.vmem("buffer_store_dwordx2 v[%d:%d], v%d, s[%d:%d], %s offen offset:%d sc1" % (r, r + 1, 168 + t, S_WS, S_WS + 3, so, 512 * b), "hst")
        a("s_barrier")

    def get_nonce(self):
        if self.noflags: return
        a = self.a
        a.wait_vm("nonce")
        lo = a.newlabel("L_nz"); lp = a.newlabel("L_nl")
        a("v_readfirstlane_b32 s%d, v19" % sNONCE)
        a("s_nop 3")
        a("s_cmp_lg_u32 s%d, 0" % sNONCE)
        a("s_cbranch_scc1 %s" % lo)
        a("s_mov_b32 s%d, 0" % sT3)
        a.label(lp)
        a("v_mov_b32 v7, 0")
        a("buffer_load_dword v19, v7, s[%d:%d], 0 offen sc1" % (S_DBG, S_DBG + 3))
        a("s_waitcnt vmcnt(0)")
        a("v_readfirstlane_b32 s%d, v19" % sNONCE)
        a("s_add_u32 s%d, s%d, 1" % (sT3, sT3))
        a("s_cmp_gt_u32 s%d, 100000" % sT3)
        a("s_cbranch_scc1 %s" % lo)
        a("s_cmp_eq_u32 s%d, 0" % sNONCE)
        a("s_cbranch_scc1 %s" % lp)
        a.label(lo)

    def flag_store(self, off_sreg, tag, va=2, vb=3):
        if self.noflags: return
        a = self.a
        a("v_mov_b32 v%d, s%d" % (va, off_sreg))
        a("v_mov_b32 v%d, s%d" % (vb, sNONCE))
        a("s_mov_b64 exec, 1")
        a.vmem("buffer_store_dword v%d, v%d, s[%d:%d], 0 offen sc1" % (vb, va, S_WS, S_WS + 3), tag)
        a("s_mov_b64 exec, -1")

    def publish_h1(self):
        a = self.a
        self.get_nonce()
        a.wait_vm("kvt")
        a("s_lshl_b32 s%d, s%d, 7" % (sT0, sID))
        a("s_lshl_b32 s%d, s%d, 2" % (sT2, sRW))
        a("s_add_u32 s%d, s%d, s%d" % (sT0, sT0, sT2))
        a("s_add_u32 s%d, s%d, 0x%x" % (sT0, sT0, F_H1))
        self.flag_store(sT0, "flag")

    def poll(self, base_sreg, nlanes, width, stride):
        if self.noflags: return
        a = self.a
        lp = a.newlabel("L_poll"); dn = a.newlabel("L_pdone")
        a("v_mul_u32_u24 v2, %d, v1" % stride)
        a("v_add_u32 v2, s%d, v2" % base_sreg)
        a("s_mov_b32 s%d, 0" % sT3)
        if nlanes <= 16: a("s_mov_b64 exec, 0x%x" % ((1 << nlanes) - 1))
        else:
            a("s_mov_b32 exec_lo, -1"); a("s_mov_b32 exec_hi, 0")
        a.label(lp)
        if width == 1:
            a("buffer_load_dword v4, v2, s[%d:%d], 0 offen sc1" % (S_WS, S_WS + 3))
            a("s_waitcnt vmcnt(0)")
            a("v_cmp_ne_u32 vcc, s%d, v4" % sNONCE)
        else:
            a("buffer_load_dwordx4 v[4:7], v2, s[%d:%d], 0 offen sc1" % (S_WS, S_WS + 3))
            a("s_waitcnt vmcnt(0)")
            for i in range(4): a("v_xor_b32 v%d, s%d, v%d" % (4 + i, sNONCE, 4 + i))
            a("v_or3_b32 v4, v4, v5, v6")
            a("v_or_b32 v4, v4, v7")
            a("v_cmp_ne_u32 vcc, 0, v4")
        a("s_add_u32 s%d, s%d, 1" % (sT3, sT3))
        a("s_cmp_gt_u32 s%d, 100000" % sT3)
        a("s_cbranch_scc1 %s" % dn)
        a("s_cbranch_vccnz %s" % lp)
        a.label(dn)
        a("s_mov_b64 exec, -1")

    def lds_wait(self, addr_sreg, val=1, va=16, vb=17):
        a = self.a
        lp = a.newlabel("L_ps"); dn = a.newlabel("L_psd")
        a("v_mov_b32 v%d, s%d" % (va, addr_sreg))
        a("s_mov_b32 s%d, 0" % sT3)
        a.label(lp)
        a("ds_read_b32 v%d, v%d" % (vb, va))
        a("s_waitcnt lgkmcnt(0)")
        a("v_readfirstlane_b32 s4, v%d" % vb)
        a("s_add_u32 s%d, s%d, 1" % (sT3, sT3))
        a("s_cmp_ge_u32 s4, %d" % val)
        a("s_cbranch_scc1 %s" % dn)
        a("s_cmp_lt_u32 s%d, 1000000" % sT3)
        a("s_cbranch_scc1 %s" % lp)
        a.label(dn)
        a.lg_clear()

    def m_sync(self, word, n=4, va=16, vb=17):
        a = self.a
        a("v_mov_b32 v%d, %d" % (va, L_SYNC + 4 * word))
        a("v_mov_b32 v%d, 1" % vb)
        a.lg0()
        a("s_mov_b64 exec, 1")
        a("ds_add_u32 v%d, v%d" % (va, vb))
        a("s_mov_b64 exec, -1")
        a("s_mov_b32 s5, %d" % (L_SYNC + 4 * word))
        self.lds_wait(5, n, va, vb)

    def pair_sync(self, stage, va=16, vb=17):
        a = self.a
        a("s_lshl_b32 s4, s%d, 2" % sRW)
        a("s_add_u32 s4, s4, %d" % (L_SYNC + 16 * stage))
        a("s_xor_b32 s5, s4, 4")
        a("v_mov_b32 v%d, s4" % va)
        a("v_mov_b32 v%d, 1" % vb)
        a.lg0()
        a("ds_write_b32 v%d, v%d" % (va, vb))
        self.lds_wait(5, 1, va, vb)

    def m_conv(self):
        a = self.a
        BF, ACC, AF, NA = 20, 148, 180, 16
        AU, AT = 2, 3
        a("v_and_b32 v8, 15, v1")
        a("v_lshrrev_b32 v9, 4, v1")
        a("v_lshlrev_b32 v10, 4, v9")
        a("v_lshlrev_b32 v11, 5, v8")
        a("v_sub_u32 v10, v10, v11")
        a("s_lshr_b32 s%d, s%d, 1" % (sT0, sRW))
        a("s_and_b32 s%d, s%d, 1" % (sT1, sRW))
        a("s_mul_i32 s%d, s%d, %d" % (sT2, sT0, U_CH))
        a("s_add_u32 s%d, s%d, %d" % (sT2, sT2, L_U + 2 * 2032 - 64 * 56))
        a("s_lshl_b32 s4, s%d, 6" % sT1)
        a("s_add_u32 s%d, s%d, s4" % (sT2, sT2))
        a("v_add_u32 v%d, s%d, v10" % (AU, sT2))
        a("v_and_b32 v10, 3, v8")
        a("v_mul_u32_u24 v10, %d, v10" % T_CP)
        a("v_lshrrev_b32 v11, 2, v8")
        a("v_lshl_add_u32 v10, v11, 3, v10")
        a("v_lshl_add_u32 v10, v9, 4, v10")
        a("s_mul_i32 s%d, s%d, %d" % (sT2, sT0, T_CH))
        a("s_add_u32 s%d, s%d, s4" % (sT2, sT2))
        a("s_add_u32 s%d, s%d, %d" % (sT2, sT2, L_T))
        a("v_add_u32 v%d, s%d, v10" % (AT, sT2))
        a("v_lshl_add_u32 v10, v9, 3, v8")
        a("s_lshl_b32 s4, s%d, 5" % sT1)
        a("v_add_u32 v10, s4, v10")
        MK = 12
        for d in range(4):
            a("v_sub_u32 v11, %d, v10" % (15 - 2 * d))
            a("v_med3_i32 v11, v11, 0, 2")
            a("v_lshlrev_b32 v11, 4, v11")
            a("v_mov_b32 v%d, -1" % (MK + d))
            a("v_lshlrev_b32 v16, v11, v%d" % (MK + d))
            a("v_cmp_eq_u32 vcc, 32, v11")
            a("v_cndmask_b32_e64 v%d, v16, 0, vcc" % (MK + d))
        for i in range(32):
            a("v_mov_b32 v%d, 0" % (ACC + i))
        def emit_A(ee):
            r = AF + 4 * (ee % NA)
            a.lds("ds_read_b64 v[%d:%d], v%d offset:%d" % (r, r + 1, AT, 128 * ee), ("A", ee))
            a.lds("ds_read_b64 v[%d:%d], v%d offset:%d" % (r + 2, r + 3, AT, 128 * ee + 8), ("A", ee))
        def emit_B(idx):
            r = BF + 4 * idx
            a.lds("ds_read_b128 v[%d:%d], v%d offset:%d" % (r, r + 3, AU, 128 * idx), ("B", idx))
        sched = []
        for ee in range(32):
            for j in range(7, (ee >> 2) - 1, -1):
                sched.append((ee, j, 28 - 4 * j + ee))
        order = []; seen = set(); last_use_A = {}
        for n, (ee, j, idx) in enumerate(sched):
            for it in (("A", ee), ("B", idx)):
                if it not in seen:
                    seen.add(it); order.append(it)
            last_use_A[ee] = n
        ptr = 0; issued = set()
        def can_issue(item, n):
            if item[0] == "A" and item[1] >= NA:
                return last_use_A[item[1] - NA] < n
            return True
        def issue_next(n_now):
            nonlocal ptr
            if ptr < len(order) and can_issue(order[ptr], n_now):
                it = order[ptr]
                (emit_A if it[0] == "A" else emit_B)(it[1])
                issued.add(it); ptr += 1
                return True
            return False
        def inflight():
            return len(a.lg.q) - a.lg_done
        GRP = 4
        while inflight() < 14 and issue_next(0): pass
        masked = False
        for n, (ee, j, idx) in enumerate(sched):
            while ("A", ee) not in issued or ("B", idx) not in issued:
                assert issue_next(n)
            if not (a.lds_done(("A", ee)) and a.lds_done(("B", idx))):
                tags = [("A", ee), ("B", idx)]
                for (e2, j2, i2) in sched[n + 1:n + GRP]:
                    if ("A", e2) in issued and ("B", i2) in issued: tags += [("A", e2), ("B", i2)]
                    else: break
                a.need_lds(*tags)
            ar = AF + 4 * (ee % NA); br = BF + 4 * idx; acc = ACC + 4 * j
            if ee == 0 and not masked:
                for d in range(4): a("v_and_b32 v%d, v%d, v%d" % (ar + d, MK + d, ar + d))
                masked = True
            a("v_mfma_f32_16x16x32_bf16 v[%d:%d], v[%d:%d], v[%d:%d], v[%d:%d]" % (acc, acc + 3, ar, ar + 3, br, br + 3, acc, acc + 3))
            if inflight() < 14:
                issue_next(n + 1)
                if n < 40 and inflight() < 14: issue_next(n + 1)
            if n == self.h2n and not self.noflags:
                a.wait_vm("hst")
                a("s_lshl_b32 s4, s%d, 3" % sR)
                a("s_add_u32 s4, s4, s%d" % sC)
                a("s_lshl_b32 s4, s4, 7")
                a("s_lshl_b32 s5, s%d, 2" % sRW)
                a("s_add_u32 s4, s4, s5")
                a("s_add_u32 s%d, s4, 0x%x" % (sT2, F_H2))
                self.flag_store(sT2, "flag", 4, 5)
        self.stamp(16)
        self.pair_sync(0)
        a("v_lshlrev_b32 v4, 4, v1")
        a("s_mul_i32 s%d, s%d, %d" % (sT0, sT0, T_CH))
        a("s_add_u32 s%d, s%d, %d" % (sT0, sT0, L_T + 8))
        a("s_lshl_b32 s%d, s%d, 12" % (sT2, sT1))
        a("s_add_u32 s%d, s%d, s%d" % (sT2, sT2, sT0))
        a("v_add_u32 v5, s%d, v4" % sT2)
        a("s_xor_b32 s%d, s%d, 1" % (sT2, sT1))
        a("s_lshl_b32 s%d, s%d, 12" % (sT2, sT2))
        a("s_add_u32 s%d, s%d, s%d" % (sT2, sT2, sT0))
        a("v_add_u32 v6, s%d, v4" % sT2)
        l0 = a.newlabel("L_cr0"); l1 = a.newlabel("L_cr1")
        a("s_cmp_eq_u32 s%d, 0" % sT1)
        a("s_cbranch_scc1 %s" % l0)
        for i in range(4):
            a("ds_write_b128 v5, v[%d:%d] offset:%d" % (ACC + 4 * i, ACC + 4 * i + 3, 1024 * i))
        for i in range(16):
            a("v_mov_b32 v%d, v%d" % (200 + i, ACC + 16 + i))
        a("s_branch %s" % l1)
        a.label(l0)
        for i in range(4):
            a("ds_write_b128 v5, v[%d:%d] offset:%d" % (ACC + 16 + 4 * i, ACC + 16 + 4 * i + 3, 1024 * i))
        for i in range(16):
            a("v_mov_b32 v%d, v%d" % (200 + i, ACC + i))
        a.label(l1)
        a("v_and_b32 v4, 15, v1")
        a("v_lshrrev_b32 v7, 4, v1")
        a("v_lshlrev_b32 v4, 5, v4")
        a("v_lshl_add_u32 v4, v7, 3, v4")
        a("s_lshr_b32 s%d, s%d, 1" % (sT0, sRW))
        a("s_mul_i32 s%d, s%d, %d" % (sT2, sT0, U_CH))
        a("s_add_u32 s%d, s%d, %d" % (sT2, sT2, L_U + 2 * 2044 - 3 * 512))
        a("s_lshl_b32 s4, s%d, 11" % sT1)
        a("s_sub_u32 s%d, s%d, s4" % (sT2, sT2))
        a("v_sub_u32 v4, s%d, v4" % sT2)
        for i in range(4):
            a("ds_read_b64 v[%d:%d], v4 offset:%d" % (236 + 2 * i, 237 + 2 * i, (3 - i) * 512))
        a("s_and_b32 s4, s%d, 0xffff" % sDD)
        a("s_lshr_b32 s5, s%d, 16" % sDD)
        a("s_cmp_eq_u32 s%d, 0" % sT0)
        a("s_cselect_b32 s4, s4, s5")
        a("s_lshl_b32 s5, s4, 16")
        a("v_mov_b32 v8, s4")
        a("v_mov_b32 v9, s5")
        self.pair_sync(1)
        for i in range(4):
            a("ds_read_b128 v[%d:%d], v6 offset:%d" % (220 + 4 * i, 223 + 4 * i, 1024 * i))
        TT = 148
        for i in range(4):
            u0, u1 = 236 + 2 * i, 237 + 2 * i
            a("v_dot2_f32_bf16 v%d, v%d, v9, 0" % (TT + 4 * i + 0, u1))
            a("v_dot2_f32_bf16 v%d, v%d, v8, 0" % (TT + 4 * i + 1, u1))
            a("v_dot2_f32_bf16 v%d, v%d, v9, 0" % (TT + 4 * i + 2, u0))
            a("v_dot2_f32_bf16 v%d, v%d, v8, 0" % (TT + 4 * i + 3, u0))
        TB = 164
        for i in range(4):
            a("v_cvt_pk_bf16_f32 v%d, v%d, v%d" % (TB + 2 * i, TT + 4 * i, TT + 4 * i + 1))
            a("v_cvt_pk_bf16_f32 v%d, v%d, v%d" % (TB + 2 * i + 1, TT + 4 * i + 2, TT + 4 * i + 3))
        a("v_and_b32 v4, 15, v1")
        a("v_lshrrev_b32 v5, 2, v4")
        a("v_lshlrev_b32 v5, 16, v5")
        a("v_and_b32 v4, 3, v4")
        a("v_lshl_add_u32 v5, v4, 5, v5")
        a("v_lshrrev_b32 v7, 4, v1")
        a("v_lshl_add_u32 v5, v7, 3, v5")
        a("s_lshl_b32 s%d, s%d, 6" % (sT2, sC))
        a("s_lshl_b32 s4, s%d, 1" % sR)
        a("s_add_u32 s%d, s%d, s4" % (sT2, sT2))
        a("s_add_u32 s%d, s%d, s%d" % (sT2, sT2, sT0))
        a("s_lshl_b32 s%d, s%d, 7" % (sT2, sT2))
        a("s_lshl_b32 s4, s%d, 20" % sT1)
        a("s_add_u32 s%d, s%d, s4" % (sT2, sT2))
        a("s_add_u32 s%d, s%d, 0x%x" % (sT2, sT2, WS_YT))
        a("v_add_u32 v5, s%d, v5" % sT2)
        a.lg0()
        for i in range(16):
            a("v_add_f32 v%d, v%d, v%d" % (200 + i, 200 + i, 220 + i))
        YB = 172
        for i in range(8):
            a("v_cvt_pk_bf16_f32 v%d, v%d, v%d" % (YB + i, 200 + 2 * i, 201 + 2 * i))
        for i in range(8):
            a("v_perm_b32 v%d, v%d, v%d, s%d" % (200 + 2 * i, TB + i, YB + i, sP0))
            a("v_perm_b32 v%d, v%d, v%d, s%d" % (201 + 2 * i, TB + i, YB + i, sP1))
        for i in range(16):
            a("v_dot2_f32_bf16 v%d, v%d, v%d, 0" % (220 + i, 200 + i, vONES))
        for i in range(8):
            a("v_cvt_pk_bf16_f32 v%d, v%d, v%d" % (180 + i, 220 + 2 * i, 221 + 2 * i))
        for i in range(4):
            if i: a("v_add_u32 v5, 0x40000, v5")
            a.vmem("buffer_store_dwordx2 v[%d:%d], v5, s[%d:%d], 0 offen sc1" % (180 + 2 * i, 181 + 2 * i, S_WS, S_WS + 3), "yst")
        self.stamp(17)

    def w2_voff(self):
        a = self.a
        a("v_lshrrev_b32 v2, 3, v1")
        a("v_and_b32 v2, 3, v2")
        a("v_lshrrev_b32 v3, 5, v1")
        a("v_lshl_add_u32 v2, v3, 3, v2")
        a("v_lshlrev_b32 v2, 10, v2")
        a("v_lshrrev_b32 v3, 4, v1")
        a("v_and_b32 v3, 3, v3")
        a("v_lshlrev_b32 v3, 1, v3")
        a("v_and_b32 v4, 7, v1")
        a("v_xor_b32 v3, v3, v4")
        a("v_lshl_add_u32 v2, v3, 4, v2")
        a("s_lshl_b32 s%d, s%d, 7" % (sT0, sD))
        a("v_add_u32 v14, s%d, v2" % sT0)

    def w2_dma(self, lds_base_sreg, lds_off, src_base_sreg, ks_off, tag):
        a = self.a
        a("s_add_u32 s%d, s%d, %d" % (sT2, src_base_sreg, ks_off * 32768))
        for m in range(4):
            a("s_add_u32 m0, s%d, %d" % (lds_base_sreg, lds_off + 1024 * m))
            if m: a("s_add_u32 s%d, s%d, %d" % (sT2, sT2, [0, 4096, 12288, 4096][m]))
            a.vmem("buffer_load_dwordx4 v14, s[%d:%d], s%d offen lds" % (S_W2, S_W2 + 3, sT2), tag)

    def m_regionA(self):
        a = self.a
        self.w2_voff()
        a("s_lshr_b32 s75, s%d, 1" % sRW)
        a("s_and_b32 s76, s%d, 1" % sRW)
        a("s_mul_i32 s70, s75, %d" % (22 * 32768))
        t0, t1 = None, None
        self.m_sync(12)
        a("s_mul_i32 s71, s75, %d" % (NA_H * 4096))
        a("s_add_u32 s71, s71, %d" % L_A)
        a("s_lshl_b32 s4, s76, 12")
        a("s_add_u32 s71, s71, s4")
        a("s_lshl_b32 s4, s76, 15")
        a("s_add_u32 s70, s70, s4")
        for m in range(3):
            self.w2_dma(71, 8192 * m, 70, 13 + 2 * m, "w2a")

    def m_tail(self):
        a = self.a
        self.m_regionA()
        a.wait_vm("yst")
        if not self.noflags:
            a("s_lshl_b32 s4, s%d, 7" % sID)
            a("s_lshl_b32 s5, s%d, 2" % sRW)
            a("s_add_u32 s4, s4, s5")
            a("s_add_u32 s%d, s4, 0x%x" % (sT2, F_H3))
            self.flag_store(sT2, "flag", 2, 3)
        self.stamp(21)
        a("s_mov_b32 s5, %d" % (L_SYNC + 56))
        self.lds_wait(5, 4)
        a("s_mul_i32 s71, s75, %d" % B_HALF)
        a("s_lshl_b32 s4, s76, 12")
        a("s_add_u32 s71, s71, s4")
        if L_B: a("s_add_u32 s71, s71, %d" % L_B)
        self.w2_dma(71, 0, 70, 19, "w2l")
        skl = a.newlabel("L_ml")
        a("s_cmp_eq_u32 s76, 1")
        a("s_cbranch_scc1 %s" % skl)
        self.w2_dma(71, 8192, 70, 21, "w2l")
        a.label(skl)
        self.final_x_load(240, 244)
        self.stamp(18)
        a("s_barrier")
        a("s_waitcnt vmcnt(0)")
        a("s_barrier")
        if not self.noflags:
            a("s_lshl_b32 s%d, s%d, 12" % (sT0, sD))
            a("s_add_u32 s%d, s%d, 0x%x" % (sT0, sT0, F_H3))
            self.poll(sT0, 32, 4, 128)
        self.stamp(7)
        a("v_lshrrev_b32 v3, 2, v0")
        a("v_and_b32 v4, 3, v0")
        a("v_lshlrev_b32 v5, 7, v3")
        a("v_lshl_add_u32 v5, v4, 5, v5")
        a("s_lshl_b32 s%d, s%d, 16" % (sT0, sR))
        a("s_lshl_b32 s%d, s%d, 13" % (sT1, sD))
        a("s_add_u32 s%d, s%d, s%d" % (sT0, sT0, sT1))
        a("s_add_u32 s%d, s%d, 0x%x" % (sT0, sT0, WS_YT))
        a("v_add_u32 v5, s%d, v5" % sT0)
        a.vmem("buffer_load_dwordx4 v[20:23], v5, s[%d:%d], 0 offen sc1" % (S_WS, S_WS + 3), "y")
        a.vmem("buffer_load_dwordx4 v[24:27], v5, s[%d:%d], 0 offen offset:16 sc1" % (S_WS, S_WS + 3), "y")
        a("v_mul_u32_u24 v6, 144, v3")
        a("v_lshl_add_u32 v6, v4, 5, v6")
        a("v_add_u32 v6, %d, v6" % L_Y)
        a("s_waitcnt vmcnt(0)")
        a("ds_write_b128 v6, v[20:23]")
        a("ds_write_b128 v6, v[24:27] offset:16")
        a.lg0()
        a("s_barrier")

    def final_x_load(self, xr, ar):
        a = self.a
        a("s_and_b32 s%d, s%d, 3" % (sT0, sW))
        a("s_lshl_b32 s%d, s%d, 4" % (sT0, sT0))
        a("s_lshl_b32 s%d, s%d, 6" % (sT1, sR))
        a("s_add_u32 s%d, s%d, s%d" % (sT0, sT0, sT1))
        a("s_lshl_b32 s%d, s%d, 10" % (sT0, sT0))
        a("s_lshl_b32 s%d, s%d, 7" % (sT1, sD))
        a("s_add_u32 s%d, s%d, s%d" % (sT0, sT0, sT1))
        a("s_lshr_b32 s%d, s%d, 2" % (sT1, sW))
        a("s_lshl_b32 s%d, s%d, 6" % (sT1, sT1))
        a("s_add_u32 s%d, s%d, s%d" % (sT0, sT0, sT1))
        a("v_lshrrev_b32 v2, 2, v1")
        a("v_lshlrev_b32 v2, 10, v2")
        a("v_and_b32 v3, 3, v1")
        a("v_lshl_add_u32 v2, v3, 4, v2")
        a("v_add_u32 v%d, s%d, v2" % (ar, sT0))
        a.vmem("buffer_load_dwordx4 v[%d:%d], v%d, s[%d:%d], 0 offen" % (xr, xr + 3, ar, S_X, S_X + 3), "xf")

    def u_slow(self):
        a = self.a
        a.label("L_uslow")
        a("s_lshl_b32 s%d, s%d, 12" % (sT0, sC))
        a("s_add_u32 s%d, s%d, 0x%x" % (sT0, sT0, F_H1))
        self.poll(sT0, 32, 1, 128)
        for i in range(4):
            a("buffer_load_dwordx4 v[%d:%d], v172, s[%d:%d], 0 offen offset:%d sc1" % (152 + 4 * i, 155 + 4 * i, S_WS, S_WS + 3, 1024 * i))
        a("s_waitcnt vmcnt(0)")
        for i in range(4):
            a("ds_write_b128 v174, v[%d:%d] offset:%d" % (152 + 4 * i, 155 + 4 * i, 1024 * i))
        a("s_waitcnt lgkmcnt(0)")
        a("s_branch L_uback")

    NEGM, RS, NMRS = 100, 101, 102
    def norm2(self, X, t):
        L = []
        L.append("v_lshlrev_b32 v%d, 16, v%d" % (t + 0, X))
        L.append("v_and_b32 v%d, v%d, v%d" % (t + 1, vMHI, X))
        L.append("v_lshlrev_b32 v%d, 16, v%d" % (t + 2, X + 1))
        L.append("v_and_b32 v%d, v%d, v%d" % (t + 3, vMHI, X + 1))
        if self.relax_ln:
            for i in range(4):
                L.append("v_fma_f32 v%d, v%d, v%d, v%d" % (t + i, t + i, self.RS, self.NMRS))
        else:
            for i in range(4):
                L.append("v_add_f32 v%d, v%d, v%d" % (t + i, t + i, self.NEGM))
            L.append("v_cvt_pk_bf16_f32 v%d, v%d, v%d" % (t + 4, t + 0, t + 1))
            L.append("v_cvt_pk_bf16_f32 v%d, v%d, v%d" % (t + 5, t + 2, t + 3))
            L.append("v_lshlrev_b32 v%d, 16, v%d" % (t + 0, t + 4))
            L.append("v_and_b32 v%d, v%d, v%d" % (t + 1, vMHI, t + 4))
            L.append("v_lshlrev_b32 v%d, 16, v%d" % (t + 2, t + 5))
            L.append("v_and_b32 v%d, v%d, v%d" % (t + 3, vMHI, t + 5))
            for i in range(4):
                L.append("v_mul_f32 v%d, v%d, v%d" % (t + i, t + i, self.RS))
        L.append("v_cvt_pk_bf16_f32 v%d, v%d, v%d" % (X, t + 0, t + 1))
        L.append("v_cvt_pk_bf16_f32 v%d, v%d, v%d" % (X + 1, t + 2, t + 3))
        return L

    def norm_chunk(self, j):
        a = self.a
        X = 20 + 8 * j
        for half in range(2):
            s1 = self.norm2(X + 4 * half, 104); s2 = self.norm2(X + 4 * half + 2, 110)
            for x, y in zip(s1, s2):
                a(x); a(y)
            a.lds("ds_write_b128 v116, v[%d:%d] offset:%d" % (X + 4 * half, X + 4 * half + 3, L_XN + (j % NXN) * 8192 + half * 1024), "xw")

    def h_front(self):
        a = self.a
        a.vm = Q(); a.lg_clear()
        a("s_setprio 1")
        a("s_lshl_b32 s%d, s%d, 16" % (sT0, sR))
        a("s_lshl_b32 s%d, s%d, 14" % (sT1, sRW))
        a("s_add_u32 s%d, s%d, s%d" % (sT0, sT0, sT1))
        a("v_lshrrev_b32 v6, 2, v1")
        a("v_lshlrev_b32 v6, 10, v6")
        a("v_and_b32 v7, 3, v1")
        a("v_lshl_add_u32 v6, v7, 4, v6")
        a("v_add_u32 v6, s%d, v6" % sT0)
        a("s_lshl_b32 s%d, s%d, 7" % (sT0, sROT))
        a.lg0()
        if self.stamps:
            a("s_memrealtime s[4:5]"); a.lg0(); a("v_writelane_b32 v255, s4, 0")
        for j in range(8):
            if j:
                a("s_add_u32 s%d, s%d, 128" % (sT0, sT0))
                a("s_and_b32 s%d, s%d, 1023" % (sT0, sT0))
            a.vmem("buffer_load_dwordx4 v[%d:%d], v6, s[%d:%d], s%d offen" % (20 + 8 * j, 23 + 8 * j, S_X, S_X + 3, sT0), "x%d" % j)
            a.vmem("buffer_load_dwordx4 v[%d:%d], v6, s[%d:%d], s%d offen offset:64" % (24 + 8 * j, 27 + 8 * j, S_X, S_X + 3, sT0), "x%d" % j)
        if "codepf" in self.exp:
            a("s_getpc_b64 s[82:83]")
            a.label("L_pc")
            a("s_sub_u32 s82, s82, L_pc-%s" % KNAME)
            a("s_subb_u32 s83, s83, 0")
            a("v_lshlrev_b32 v2, 7, v1")
            a("s_lshl_b32 s84, s%d, 13" % sRW)
            a("v_add_u32 v2, s84, v2")
            a("v_min_u32 v2, L_codeend-%s, v2" % KNAME)
            a("v_mov_b32 v3, s83")
            a("v_add_co_u32 v2, vcc, s82, v2")
            a("v_addc_co_u32 v3, vcc, 0, v3, vcc")
            a.vmem("global_load_dword v244, v[2:3], off", "cpf")
        a("s_waitcnt lgkmcnt(0)")
        a("s_barrier")

        if "V3" in self.exp:
            self.w1_voffs()
            for f in self.w1_dma_ops(0) + self.w1_dma_ops(1): f()
        a("s_setprio 0")
        if not self.noflags:
            a("v_mov_b32 v7, 0")
        a("v_lshrrev_b32 v4, 2, v1")
        a("v_and_b32 v5, 3, v1")
        a("v_lshlrev_b32 v2, 1, v5")
        a("v_xor_b32 v4, v4, v2")
        a("v_lshlrev_b32 v4, 4, v4")
        a("v_lshl_add_u32 v4, v5, 8, v4")
        a("s_lshl_b32 s%d, s%d, 11" % (sT2, sRW))
        a("v_add_u32 v116, s%d, v4" % sT2)

    def h_ssm_load(self):
        a = self.a
        a("s_lshl_b32 s%d, s%d, 6" % (sT2, sC))
        a("s_lshl_b32 s%d, s%d, 1" % (sT1, sR))
        a("s_add_u32 s%d, s%d, s%d" % (sT2, sT2, sT1))
        a("s_lshl_b32 s%d, s%d, 12" % (sT2, sT2))
        a("v_and_b32 v3, 255, v0")
        a("v_lshlrev_b32 v3, 4, v3")
        a("v_add_u32 v2, s%d, v3" % sT2)
        a("v_add_u32 v4, -8, v2")
        for ch in range(2):
            a.vmem("buffer_load_dwordx2 v[%d:%d], v4, s[%d:%d], 0 offen" % (84 + 6 * ch, 85 + 6 * ch, S_SSM, S_SSM + 3), "ssm")
            a.vmem("buffer_load_dwordx4 v[%d:%d], v2, s[%d:%d], 0 offen" % (86 + 6 * ch, 89 + 6 * ch, S_SSM, S_SSM + 3), "ssm")
            if ch == 0:
                a("v_add_u32 v2, 4096, v2")
                a("v_add_u32 v4, 4096, v4")

    def h_stats(self):
        a = self.a
        X = 20
        for i in range(8): a("v_mov_b32 v%d, 0" % (104 + i))
        for i in range(64):
            if i % 8 == 0:
                a.wait_vm("x%d" % (i // 8))
                if i == 0: self.stamp(13)
            a("v_dot2_f32_bf16 v%d, v%d, v%d, v%d" % (104 + (i & 3), X + i, vONES, 104 + (i & 3)))
            a("v_dot2_f32_bf16 v%d, v%d, v%d, v%d" % (108 + (i & 3), X + i, X + i, 108 + (i & 3)))
        a("v_add_f32 v104, v104, v105"); a("v_add_f32 v106, v106, v107")
        a("v_add_f32 v108, v108, v109"); a("v_add_f32 v110, v110, v111")
        a("v_add_f32 v2, v104, v106"); a("v_add_f32 v3, v108, v110")
        for ctl in ("quad_perm:[1,0,3,2]", "quad_perm:[2,3,0,1]"):
            a("v_add_f32_dpp v2, v2, v2 %s row_mask:0xf bank_mask:0xf" % ctl)
            a("v_add_f32_dpp v3, v3, v3 %s row_mask:0xf bank_mask:0xf" % ctl)
        a("v_mul_f32 v2, 0x3b000000, v2")
        a("v_mul_f32 v3, 0x3b000000, v3")
        a("v_cvt_pk_bf16_f32 v4, v2, v2")
        a("v_fma_f32 v3, -v2, v2, v3")
        a("v_lshlrev_b32 v4, 16, v4")
        a("v_max_f32 v3, 0, v3")
        a("v_cvt_pk_bf16_f32 v3, v3, v3")
        a("v_lshlrev_b32 v3, 16, v3")
        a("v_add_f32 v3, 0x3727c5ac, v3")
        a("v_cvt_pk_bf16_f32 v3, v3, v3")
        a("v_lshlrev_b32 v3, 16, v3")
        a("v_sqrt_f32 v3, v3")
        a("v_cvt_pk_bf16_f32 v3, v3, v3")
        a("v_lshlrev_b32 v3, 16, v3")
        a("v_rcp_f32 v%d, v3" % self.RS)
        a("v_sub_f32 v%d, 0, v4" % self.NEGM)
        a("v_mul_f32 v%d, v%d, v%d" % (self.NMRS, self.NEGM, self.RS))
        a("v_lshrrev_b32 v6, 2, v1")
        a("s_lshl_b32 s%d, s%d, 4" % (sT2, sRW))
        a("v_add_u32 v6, s%d, v6" % sT2)
        a("v_lshlrev_b32 v5, 3, v6")
        a("v_add_u32 v5, %d, v5" % L_STATS)
        a("v_mov_b32 v2, v4")
        a("v_mov_b32 v3, v%d" % self.RS)
        a.lds("ds_write_b64 v5, v[2:3]", "st")

    def h_tbuild(self, ch):
        a = self.a
        D = 84 + 6 * ch
        E = 118
        for p in range(5):
            a("v_alignbit_b32 v%d, v%d, v%d, 16" % (E + p, D + p + 1, D + p))
        for p in range(4):
            a("v_mov_b32 v%d, v%d" % (124 + p, D + 1 + p))
            a("v_mov_b32 v%d, v%d" % (128 + p, E + 1 + p))
        a("v_and_b32 v3, 255, v0")
        a("v_lshlrev_b32 v3, 4, v3")
        a("v_add_u32 v3, %d, v3" % (L_T + ch * T_CH + 24))
        a("ds_write_b128 v3, v[118:121]")
        a("ds_write_b128 v3, v[124:127] offset:%d" % T_CP)
        a("ds_write_b128 v3, v[128:131] offset:%d" % (2 * T_CP))
        a("ds_write_b128 v3, v[%d:%d] offset:%d" % (D + 2, D + 5, 3 * T_CP))

    def h_uload(self):
        a = self.a
        if self.noflags: a.wait_vm("ssm")
        if not self.noflags:
            dn = a.newlabel("L_h1ok")
            a.wait_vm("h1f")
            for i in range(4): a("v_xor_b32 v%d, s%d, v%d" % (96 + i, sNONCE, 96 + i))
            a("v_or3_b32 v96, v96, v97, v98")
            a("v_or_b32 v96, v96, v99")
            a("v_cmp_ne_u32 vcc, 0, v96")
            a("s_cbranch_vccz %s" % dn)
            a("s_lshl_b32 s%d, s%d, 12" % (sT0, sC))
            a("s_add_u32 s%d, s%d, 0x%x" % (sT0, sT0, F_H1))
            self.poll(sT0, 32, 4, 128)
            a.label(dn)
        self.stamp(3)
        a("s_lshl_b32 s%d, s%d, 6" % (sT0, sC))
        a("s_lshl_b32 s%d, s%d, 1" % (sT1, sR))
        a("s_add_u32 s%d, s%d, s%d" % (sT0, sT0, sT1))
        a("s_lshl_b32 s%d, s%d, 12" % (sT0, sT0))
        a("s_lshl_b32 s%d, s%d, 11" % (sT1, sRW))
        a("s_add_u32 s%d, s%d, s%d" % (sT0, sT0, sT1))
        a("v_lshlrev_b32 v4, 4, v1")
        a("v_add_u32 v5, s%d, v4" % sT0)
        a.vmem("buffer_load_dwordx4 v[20:23], v5, s[%d:%d], 0 offen sc1" % (S_WS, S_WS + 3), "u")
        a.vmem("buffer_load_dwordx4 v[24:27], v5, s[%d:%d], 0 offen offset:1024 sc1" % (S_WS, S_WS + 3), "u")
        self.h_tbuild(0)
        self.h_tbuild(1)
        a("v_lshlrev_b32 v4, 4, v1")
        a("s_lshr_b32 s%d, s%d, 1" % (sT0, sRW))
        a("s_mul_i32 s%d, s%d, %d" % (sT0, sT0, U_CH))
        a("s_and_b32 s%d, s%d, 1" % (sT1, sRW))
        a("s_lshl_b32 s%d, s%d, 11" % (sT2, sT1))
        a("s_add_u32 s%d, s%d, s%d" % (sT0, sT0, sT2))
        a("s_add_u32 s%d, s%d, %d" % (sT0, sT0, L_U))
        a("v_add_u32 v6, s%d, v4" % sT0)
        for i in range(4): a("v_mov_b32 v%d, 0" % (28 + i))
        a("s_cmp_eq_u32 s%d, 1" % sT1)
        a("s_cselect_b32 exec_lo, -1, 0")
        a("s_mov_b32 exec_hi, 0")
        a("ds_write_b128 v6, v[28:31] offset:2048")
        a("s_mov_b64 exec, -1")
        a.wait_vm("u")
        a("ds_write_b128 v6, v[20:23]")
        a("ds_write_b128 v6, v[24:27] offset:1024")

    def norm_seq(self, j):
        a = self.a
        X = 20 + 8 * j
        seq = []
        for half in range(2):
            s1 = self.norm2(X + 4 * half, 104); s2 = self.norm2(X + 4 * half + 2, 110)
            if "hnonorm" in self.exp and j >= 2:
                s1 = ["s_nop 0"] * 8; s2 = ["s_nop 0"] * 8
            for x, y in zip(s1, s2):
                seq.append(x); seq.append(y)
            if "wmid" in self.exp:
                seq.append(lambda half=half: a.lds("ds_write_b128 v116, v[%d:%d] offset:%d" % (X + 4 * half, X + 4 * half + 3, L_XN + (j % NXN) * 8192 + half * 1024), "xw%d" % j))
        if not ("hnowrite" in self.exp and j >= 2) and "wmid" not in self.exp:
            for half in range(2):
                seq.append(lambda half=half: a.lds("ds_write_b128 v116, v[%d:%d] offset:%d" % (X + 4 * half, X + 4 * half + 3, L_XN + (j % NXN) * 8192 + half * 1024), "xw%d" % j))
        return seq

    def h_gemm1_side(self):
        a = self.a
        if "hprio" in self.exp: a("s_setprio 2")
        for x in self.norm_seq(0): self.run(x)
        s1 = self.norm_seq(1)
        h = len(s1) // 2
        for x in s1[:h]: self.run(x)
        for x in s1[h:]: self.run(x)
        if not self.noflags:
            a.vmem("buffer_load_dword v19, v7, s[%d:%d], 0 offen sc1" % (S_DBG, S_DBG + 3), "nonce")
        s2 = self.norm_seq(2)
        for x in s2[:h]: self.run(x)
        a.need_lds("xw0", "xw1")
        if "V3" in self.exp: a.wait_vm("w1c1")
        a("s_barrier")
        for x in s2[h:]: self.run(x)
        for j in range(8):
            if j + 3 <= 7:
                for x in self.norm_seq(j + 3): self.run(x)
            if j == self.pf2j and "pf2" in self.exp: self.line_prefetch("w2", 242)
            if j == 1: self.h_ssm_load()
            if j == 4 and not self.noflags:
                self.get_nonce()
            if j == 5:
                if not self.noflags:
                    a("s_lshl_b32 s%d, s%d, 12" % (sT0, sC))
                    a("s_add_u32 s%d, s%d, 0x%x" % (sT0, sT0, F_H1))
                    a("v_and_b32 v2, 31, v1")
                    a("v_lshlrev_b32 v2, 7, v2")
                    a("v_add_u32 v2, s%d, v2" % sT0)
                if not self.noflags:
                    a.vmem("buffer_load_dwordx4 v[96:99], v2, s[%d:%d], 0 offen sc1" % (S_WS, S_WS + 3), "h1f")
            if j + 1 <= 6:
                if j + 2 <= 7 and "hnowrite" not in self.exp: a.need_lds("xw%d" % (j + 2))
                a("s_barrier")
                if "itst" in self.exp: self.stamp(23 + j)
        if "hprio" in self.exp: a("s_setprio 0")
        self.h_uload()
        self.w2_voff()
        a.lg0()
        a("s_barrier")
        self.stamp(2)

    def h_gemm2(self):
        a = self.a
        HF, ACC = 20, 196
        WBUF = [228, 2]
        AB = 244
        PF = 10
        a("s_lshr_b32 s75, s%d, 1" % sRW)
        a("s_and_b32 s76, s%d, 1" % sRW)
        if "poller3" in self.exp:
            lp3 = a.newlabel("L_hp3"); lgo = a.newlabel("L_hgo")
            a("s_cmp_eq_u32 s%d, 3" % sRW)
            a("s_cbranch_scc1 %s" % lp3)
            q0 = list(a.vm.q)
            for m in range(9):
                a("s_add_u32 s%d, s%d, %d" % (sT0, sRW, 3 * m))
                if m == 8: a("s_min_u32 s%d, s%d, 25" % (sT0, sT0))
                a("s_lshr_b32 s%d, s%d, 1" % (sT1, sT0))
                a("s_and_b32 s%d, s%d, 1" % (sT0, sT0))
                a("s_mul_i32 s71, s%d, %d" % (sT0, NB_H))
                a("s_add_u32 s71, s71, s%d" % sT1)
                a("s_lshl_b32 s71, s71, 12")
                a("s_mul_i32 s70, s%d, 22" % sT0)
                a("s_add_u32 s70, s70, s%d" % sT1)
                a("s_lshl_b32 s70, s70, 15")
                self.w2_dma(71, L_B, 70, 0, "w2b")
            a("s_branch %s" % lgo)
            a.label(lp3)
            if not self.noflags:
                a("s_lshl_b32 s%d, s%d, 10" % (sT0, sR))
                a("s_add_u32 s%d, s%d, 0x%x" % (sT0, sT0, F_H2))
                self.poll(sT0, 8, 4, 128)
            a("v_mov_b32 v2, %d" % (L_SYNC + 60))
            a("v_mov_b32 v3, 1")
            a("ds_write_b32 v2, v3")
            a.label(lgo)
        else:
            for m in range(7):
                a("s_add_u32 s%d, s%d, %d" % (sT0, sRW, 4 * m))
                if m == 6: a("s_min_u32 s%d, s%d, 25" % (sT0, sT0))
                a("s_lshr_b32 s%d, s%d, 1" % (sT1, sT0))
                a("s_and_b32 s%d, s%d, 1" % (sT0, sT0))
                a("s_mul_i32 s71, s%d, %d" % (sT0, NB_H))
                a("s_add_u32 s71, s71, s%d" % sT1)
                a("s_lshl_b32 s71, s71, 12")
                a("s_mul_i32 s70, s%d, 22" % sT0)
                a("s_add_u32 s70, s70, s%d" % sT1)
                a("s_lshl_b32 s70, s70, 15")
                self.w2_dma(71, L_B, 70, 0, "w2b")
        a("s_lshl_b32 s%d, s%d, 2" % (sT2, sR))
        a("s_lshl_b32 s4, s76, 1")
        a("s_add_u32 s%d, s%d, s4" % (sT2, sT2))
        a("s_mul_i32 s%d, s%d, 44032" % (sT2, sT2))
        a("s_mul_i32 s4, s75, %d" % (22 * 1024))
        a("s_add_u32 s%d, s%d, s4" % (sT2, sT2))
        a("s_add_u32 s%d, s%d, 0x%x" % (sT2, sT2, WS_H))
        a("v_lshlrev_b32 v18, 4, v1")
        a("v_add_u32 v18, s%d, v18" % sT2)
        a("v_add_u32 v19, 44032, v18")
        a("v_lshrrev_b32 v2, 4, v1")
        a("v_and_b32 v3, 15, v1")
        a("v_lshrrev_b32 v3, 2, v3")
        a("v_lshrrev_b32 v4, 1, v2")
        a("v_lshlrev_b32 v4, 4, v4")
        a("v_and_b32 v5, 1, v2")
        a("v_lshl_add_u32 v4, v5, 2, v4")
        a("v_add_u32 v4, v4, v3")
        a("v_lshlrev_b32 v4, 7, v4")
        a("v_and_b32 v6, 1, v1")
        a("v_lshl_add_u32 v4, v6, 3, v4")
        a("v_lshlrev_b32 v5, 1, v5")
        a("v_lshrrev_b32 v6, 1, v3")
        a("v_add_u32 v5, v5, v6")
        a("v_lshlrev_b32 v5, 1, v5")
        a("v_and_b32 v6, 3, v1")
        a("v_lshrrev_b32 v6, 1, v6")
        a("s_mul_i32 s4, s75, %d" % B_HALF)
        if L_B: a("s_add_u32 s4, s4, %d" % L_B)
        for b in range(4):
            a("v_add_u32 v7, %d, v6" % (2 * b))
            a("v_xor_b32 v7, v7, v5")
            a("v_lshl_add_u32 v7, v7, 4, v4")
            a("v_add_u32 v%d, s4, v7" % (AB + b))
        a("s_mul_i32 s5, s75, %d" % (NA_H * 4096))
        a("s_add_u32 s5, s5, %d" % L_A)
        a("s_sub_u32 s77, s5, s4")
        a("s_sub_u32 s79, s4, s5")
        for i in range(32): a("v_mov_b32 v%d, 0" % (ACC + i))
        if "poller3" in self.exp:
            a("s_mov_b32 s5, %d" % (L_SYNC + 60))
            self.lds_wait(5, 1, 253, 254)
        else:
            self.stamp(5)
            if not self.noflags:
                a("s_lshl_b32 s%d, s%d, 10" % (sT0, sR))
                a("s_add_u32 s%d, s%d, 0x%x" % (sT0, sT0, F_H2))
                self.poll(sT0, 8, 4, 128)
        self.stamp(6)

        def hload(i):
            ops = []
            for t in range(2):
                def f(t=t):
                    r = HF + (i * 2 + t) * 4
                    so = i * 1024
                    if so < 4096:
                        a.vmem("buffer_load_dwordx4 v[%d:%d], v%d, s[%d:%d], 0 offen offset:%d sc1" % (r, r + 3, 18 + t, S_WS, S_WS + 3, so), "h%d" % i)
                    else:
                        if t == 0: a("s_mov_b32 s80, %d" % (so & ~4095))
                        a.vmem("buffer_load_dwordx4 v[%d:%d], v%d, s[%d:%d], s80 offen offset:%d sc1" % (r, r + 3, 18 + t, S_WS, S_WS + 3, so & 4095), "h%d" % i)
                ops.append(f)
            return ops

        def read_ops(i):
            buf = WBUF[i & 1]
            if i < 13: so = i * 4096
            elif i < 19: so = (i - 13) * 4096
            else: so = (i - 19) * 4096
            ops = []
            sw = {13: 77, 19: 79}.get(i)
            if sw:
                for b in range(4): ops.append("v_add_u32 v%d, s%d, v%d" % (AB + b, sw, AB + b))
            for b in range(4):
                for hh in range(2):
                    r0 = buf + 4 * b + 2 * hh
                    ops.append(lambda r0=r0, b=b, hh=hh: a.lds("ds_read_b64_tr_b16 v[%d:%d], v%d offset:%d" % (r0, r0 + 1, AB + b, so + hh * 1024), "w%d_%d" % (i, b)))
            return ops

        def mfma_ops(i):
            buf = WBUF[i & 1]
            ops = []
            for b in range(4):
                for t in range(2):
                    def f(b=b, t=t):
                        if b == 0 and t == 0:
                            a.wait_both("h%d" % i, ["w%d_%d" % (i, bb) for bb in range(4)])
                        acc = ACC + (b * 2 + t) * 4
                        hr = HF + (i * 2 + t) * 4
                        a("v_mfma_f32_16x16x32_bf16 v[%d:%d], v[%d:%d], v[%d:%d], v[%d:%d]" % (acc, acc + 3, buf + 4 * b, buf + 4 * b + 3, hr, hr + 3, acc, acc + 3))
                    ops.append(f)
            return ops

        allh = []
        for i in range(22): allh += hload(i)
        hp = 0
        for f in allh[:self.hinit]: f()
        hp = self.hinit
        a("s_waitcnt vmcnt(%d)" % self.hinit)
        self.m_sync(11, va=253, vb=254)
        self.stamp(19)
        for f in read_ops(0): self.run(f)
        last = a.newlabel("L_g2l")
        for i in range(22):
            if i == 12:
                a.lg0()
                a("s_barrier")
            if i == 18:
                a.lg0()
                a("s_barrier")
            if i == 4:
                a("v_mov_b32 v253, %d" % (L_SYNC + 56))
                a("v_mov_b32 v254, 1")
                a("s_mov_b64 exec, 1")
                a.lds("ds_add_u32 v253, v254", "sig")
                a("s_mov_b64 exec, -1")
            if i == 21:
                a("s_cmp_eq_u32 s75, 1")
                a("s_cbranch_scc1 %s" % last)
            fill = []
            if i < 21: fill += read_ops(i + 1)
            nl = self.hper if hp < 2 * (i + self.hwin) else 2
            nl = min(nl, len(allh) - hp)
            fill = allh[hp:hp + nl] + fill
            hp += nl
            interleave(a, mfma_ops(i), fill)
        a.label(last)
        a.lg0()
        self.stamp(22)
        a("v_and_b32 v2, 15, v1")
        a("v_lshrrev_b32 v3, 4, v1")
        a("v_mul_u32_u24 v2, 272, v2")
        a("v_lshl_add_u32 v2, v3, 4, v2")
        a("s_mul_i32 s4, s75, %d" % P_STRIDE)
        a("s_mul_i32 s5, s76, %d" % (32 * 272))
        a("s_add_u32 s4, s4, s5")
        a("s_add_u32 s4, s4, %d" % L_P)
        a("v_add_u32 v2, s4, v2")
        for b in range(4):
            for t in range(2):
                acc = ACC + (b * 2 + t) * 4
                a("ds_write_b128 v2, v[%d:%d] offset:%d" % (acc, acc + 3, t * 16 * 272 + b * 64))
        self.final_x_load(240, 244)
        a.lg0()
        a("s_barrier")

    def final(self):
        a = self.a
        P0 = L_P; P1 = L_P + P_STRIDE; YL = L_Y
        XR = 240; OA = 244
        a("s_and_b32 s%d, s%d, 3" % (sT0, sW))
        a("s_lshr_b32 s%d, s%d, 2" % (sT1, sW))
        a("v_lshrrev_b32 v2, 2, v1")
        a("v_and_b32 v3, 3, v1")
        a("s_lshl_b32 s4, s%d, 4" % sT0)
        a("v_add_u32 v2, s4, v2")
        a("v_mul_u32_u24 v4, 272, v2")
        a("v_lshl_add_u32 v4, v3, 5, v4")
        a("s_lshl_b32 s4, s%d, 7" % sT1)
        a("s_add_u32 s4, s4, %d" % P0)
        a("v_add_u32 v4, s4, v4")
        a("ds_read_b128 v[20:23], v4")
        a("ds_read_b128 v[24:27], v4 offset:16")
        a("ds_read_b128 v[28:31], v4 offset:%d" % (P1 - P0))
        a("ds_read_b128 v[32:35], v4 offset:%d" % (P1 - P0 + 16))
        a("v_lshlrev_b32 v6, 3, v2")
        a("v_add_u32 v6, %d, v6" % L_STATS)
        a("ds_read_b64 v[36:37], v6")
        a("v_lshrrev_b32 v7, 4, v1")
        a("v_lshlrev_b32 v7, 3, v7")
        a("v_and_b32 v8, 15, v1")
        a("v_lshrrev_b32 v8, 2, v8")
        a("v_add_u32 v7, v7, v8")
        a("s_lshl_b32 s4, s%d, 5" % sT1)
        a("v_add_u32 v7, s4, v7")
        a("v_mul_u32_u24 v7, 144, v7")
        a("v_and_b32 v8, 3, v1")
        a("v_lshl_add_u32 v7, v8, 3, v7")
        a("s_lshl_b32 s4, s%d, 5" % sT0)
        a("s_add_u32 s4, s4, %d" % YL)
        a("v_add_u32 v7, s4, v7")
        a("ds_read_b64_tr_b16 v[38:39], v7")
        a("ds_read_b64_tr_b16 v[40:41], v7 offset:%d" % (4 * 144))
        a("v_and_b32 v8, 3, v1")
        a("v_lshlrev_b32 v8, 4, v8")
        a("v_lshrrev_b32 v9, 2, v1")
        a("v_or_b32 v8, v8, v9")
        a("v_lshlrev_b32 v8, 2, v8")
        a("v_mov_b32 v10, 0xbfb8aa3b")
        a("v_mov_b32 v11, 1.0")
        a("s_waitcnt lgkmcnt(0)")
        for i in range(4):
            a("ds_bpermute_b32 v%d, v8, v%d" % (42 + i, 38 + i))
        for i in range(8):
            a("v_add_f32 v%d, v%d, v%d" % (20 + i, 20 + i, 28 + i))
        for i in range(4):
            a("v_cvt_pk_bf16_f32 v%d, v%d, v%d" % (28 + i, 20 + 2 * i, 21 + 2 * i))
        for i in range(4):
            a("v_alignbit_b32 v%d, v%d, 0, 16" % (20 + 2 * i, 28 + i))
            a("v_and_b32 v%d, v%d, v%d" % (21 + 2 * i, vMHI, 28 + i))
        for i in range(8):
            a("v_mul_f32 v%d, v10, v%d" % (48 + i, 20 + i))
        for i in range(8):
            a("v_exp_f32 v%d, v%d" % (48 + i, 48 + i))
        a("s_waitcnt vmcnt(0)")
        a("v_sub_f32 v12, 0, v36")
        for i in range(4):
            a("v_dot2_f32_bf16 v%d, v%d, v%d, v12" % (72 + 2 * i, XR + i, vONELO))
            a("v_dot2_f32_bf16 v%d, v%d, v%d, v12" % (73 + 2 * i, XR + i, vONEHI))
        for i in range(8):
            a("v_add_f32 v%d, v11, v%d" % (48 + i, 48 + i))
        for i in range(4):
            a("v_cvt_pk_bf16_f32 v%d, v%d, v%d" % (80 + i, 72 + 2 * i, 73 + 2 * i))
        for i in range(8):
            a("v_rcp_f32 v%d, v%d" % (48 + i, 48 + i))
        for i in range(4):
            a("v_alignbit_b32 v%d, v%d, 0, 16" % (72 + 2 * i, 80 + i))
            a("v_and_b32 v%d, v%d, v%d" % (73 + 2 * i, vMHI, 80 + i))
        for i in range(8):
            a("v_mul_f32 v%d, v%d, v37" % (72 + i, 72 + i))
        for i in range(8):
            a("v_mul_f32 v%d, v%d, v%d" % (20 + i, 20 + i, 48 + i))
        for i in range(4):
            a("v_cvt_pk_bf16_f32 v%d, v%d, v%d" % (80 + i, 72 + 2 * i, 73 + 2 * i))
        for i in range(4):
            a("v_cvt_pk_bf16_f32 v%d, v%d, v%d" % (28 + i, 20 + 2 * i, 21 + 2 * i))
        a("s_waitcnt lgkmcnt(0)")
        for i in range(4):
            a("v_and_b32 v%d, v%d, v%d" % (56 + 2 * i, vMLO, 42 + i))
            a("v_and_b32 v%d, v%d, v%d" % (57 + 2 * i, vMHI, 42 + i))
            a("v_and_b32 v%d, v%d, v%d" % (64 + 2 * i, vMLO, 28 + i))
            a("v_and_b32 v%d, v%d, v%d" % (65 + 2 * i, vMHI, 28 + i))
        for i in range(4):
            a("v_dot2_f32_bf16 v%d, v%d, v%d, 0" % (72 + 2 * i, 80 + i, 56 + 2 * i))
            a("v_dot2_f32_bf16 v%d, v%d, v%d, 0" % (73 + 2 * i, 80 + i, 57 + 2 * i))
        for i in range(4):
            a("v_alignbit_b32 v%d, v%d, 0, 16" % (88 + 2 * i, XR + i))
            a("v_and_b32 v%d, v%d, v%d" % (89 + 2 * i, vMHI, XR + i))
        for i in range(4):
            a("v_cvt_pk_bf16_f32 v%d, v%d, v%d" % (80 + i, 72 + 2 * i, 73 + 2 * i))
        for i in range(4):
            a("v_dot2_f32_bf16 v%d, v%d, v%d, 0" % (72 + 2 * i, 80 + i, 64 + 2 * i))
            a("v_dot2_f32_bf16 v%d, v%d, v%d, 0" % (73 + 2 * i, 80 + i, 65 + 2 * i))
        for i in range(4):
            a("v_cvt_pk_bf16_f32 v%d, v%d, v%d" % (80 + i, 72 + 2 * i, 73 + 2 * i))
        for i in range(4):
            a("v_dot2_f32_bf16 v%d, v%d, v%d, v%d" % (72 + 2 * i, 80 + i, vONELO, 88 + 2 * i))
            a("v_dot2_f32_bf16 v%d, v%d, v%d, v%d" % (73 + 2 * i, 80 + i, vONEHI, 89 + 2 * i))
        for i in range(4):
            a("v_cvt_pk_bf16_f32 v%d, v%d, v%d" % (80 + i, 72 + 2 * i, 73 + 2 * i))
        a("buffer_store_dwordx4 v[80:83], v%d, s[%d:%d], 0 offen" % (OA, S_OUT, S_OUT + 3))

    def build(self):
        a = self.a
        self.p0()
        self.m_front()
        self.stamp(1)
        self.m_prep()
        self.stamp(10)
        self.m_gemm1()
        self.stamp(4)
        self.m_conv()
        self.m_tail()
        a("s_branch L_final")
        a.label("L_H")
        self.h_front()
        self.stamp(1)
        self.h_stats()
        self.stamp(11)
        self.h_gemm1_side()
        self.h_gemm2()
        a.label("L_final")
        a.lg_clear()
        self.stamp(8)
        self.final()
        self.stamp(9)
        self.dump_stamps()
        a("s_waitcnt vmcnt(0)")
        a.label("L_end")
        a.label("L_codeend")
        a("s_endpgm")
        lines, n = hazard.fix(a.lines)
        self.nnops = n
        hdr = """; Kernarg layout: x,k,v,shift_k,ssm_k,ssm_D,B_x,w1,w2,out,debug,ws (8-byte pointers)
; @launch grid=(256,1,1) block=(512,1,1) lds=%d
.amdgcn_target "amdgcn-amd-amdhsa--gfx950"
.text
.globl %s
.p2align 8
.type %s,@function
%s:
""" % (LDS_SIZE, KNAME, KNAME, KNAME)
        ftr = """.section .rodata,"a"
.p2align 6
.amdhsa_kernel %s
  .amdhsa_next_free_vgpr 256
  .amdhsa_next_free_sgpr 102
  .amdhsa_accum_offset 256
  .amdhsa_group_segment_fixed_size 0
  .amdhsa_kernarg_size 96
  .amdhsa_user_sgpr_count 2
  .amdhsa_user_sgpr_kernarg_segment_ptr 1
  .amdhsa_system_sgpr_workgroup_id_x 1
.end_amdhsa_kernel
""" % KNAME
        return hdr + "\n".join(lines) + "\n" + ftr

if __name__ == "__main__":
    import argparse
    ap = argparse.ArgumentParser()
    ap.add_argument("-o", default="k.s")
    ap.add_argument("--stamps", action="store_true")
    ap.add_argument("--noflags", action="store_true")
    ap.add_argument("--exp", default="")
    args = ap.parse_args()
    g = Gen(stamps=args.stamps, noflags=args.noflags, exp=args.exp)
    txt = g.build()
    open(args.o, "w").write(txt)
    print("wrote", args.o, len(txt.splitlines()), "lines; hazard nops:", g.nnops)
```

```python
import sys
from emit import *
import hazard

KNAME = "recurrent_scan__ssm_conv_h3__dense_activation_relu__prompt_kernel"

WS_KVT = 0
WS_YT = 2 << 20
WS_H = 4 << 20
WS_FLAG = 10 << 20
F_H1 = WS_FLAG
F_H2 = WS_FLAG + 32768
F_H3 = WS_FLAG + 65536
F_H4 = WS_FLAG + 98304
WS_STAMP = WS_FLAG + (256 << 10)
WS_W2S = 12 << 20
WS_SIZE = 16 << 20

L_XN = 0
NXN = 4
L_W1 = 32768
W1_SLOT = 24576
NW1 = 5
L_PREP = L_W1 + 4 * W1_SLOT
L_A = L_W1 + 3 * W1_SLOT
NA_H = 6
L_T = L_A + 8
T_CH = 16640
T_CP = 4160
L_U = L_A + 33408
U_CH = 4608
L_B = 0
NB_H = 13
B_HALF = NB_H * 4096
L_Y = 16384
L_P = L_B + 7 * 4096
P_STRIDE = B_HALF
L_STATS = 161792
L_SYNC = 162304
LDS_SIZE = 163840
assert L_U % 16 == 0 and L_U + 2 * U_CH <= L_W1 + 5 * W1_SLOT and L_T + 2 * T_CH <= L_U
assert L_A + 2 * NA_H * 4096 <= L_STATS and 2 * B_HALF <= L_A and L_W1 + NW1 * W1_SLOT <= L_STATS

S_X, S_K, S_V, S_W1, S_W2, S_OUT, S_SSM, S_WS, S_SH, S_DBG = 8, 12, 16, 20, 24, 28, 32, 36, 40, 44
sR, sC, sW, sNONCE = 48, 49, 50, 51
sF0, sBP, sNB = 52, 53, 54
sT0, sT1, sT2, sT3 = 55, 56, 57, 58
sRW = 59
sEX = 60
sROT = 62
sDP = 64
sDD = 66
sM0B = 67
sP0, sP1 = 68, 69
sUOK = 72
sID = 81
sD = 85
sINV1, sINV2 = 73, 74
vMLO, vMHI, vONELO, vONEHI, vONES = 248, 249, 250, 251, 252

def merge(*lists):
    lists = [l for l in lists if l]
    tot = sum(len(l) for l in lists)
    out = []; idx = [0] * len(lists)
    for s in range(tot):
        best = min((i for i in range(len(lists)) if idx[i] < len(lists[i])), key=lambda i: (idx[i] + 0.5) / len(lists[i]))
        out.append(lists[best][idx[best]]); idx[best] += 1
    return out

class Gen:
    def __init__(self, stamps=False, noflags=False, exp=""):
        self.exp = set(exp.split(",")) if exp else set()
        self.a = Asm()
        self.stamps = stamps
        self.noflags = noflags
        self.relax_ln = "relax_ln" in self.exp
        self.stampset = None
        self.h2n = 75
        self.h1j = 0
        for e in self.exp:
            if e.startswith('h1j='): self.h1j = int(e[4:])
        self.w2j = 0
        self.w2s = 'w2s' in self.exp
        self.KS = 4096 if self.w2s else 32768
        self.pf2j = 0
        for e in self.exp:
            if e.startswith('pj='): self.pf2j = int(e[3:])
            if e.startswith('h2n='): self.h2n = int(e[4:])
        self.hwin = 22; self.hper = 6; self.hinit = 12
        for e in self.exp:
            if e.startswith('hw='): self.hwin, self.hper, self.hinit = [int(x) for x in e[3:].split('+')]
        for e in self.exp:
            if e.startswith("st="):
                self.stampset = set(int(x) for x in e[3:].split("+"))

    def stamp(self, idx):
        if not self.stamps: return
        if self.stampset is not None and idx not in self.stampset: return
        a = self.a
        a("s_memrealtime s[4:5]")
        if "clk" in self.exp and idx in (14, 2, 4, 16):
            a("s_memtime s[6:7]")
        a.lg0()
        a("v_writelane_b32 v255, s4, %d" % idx)
        if "clk" in self.exp and idx in (14, 2, 4, 16):
            a("v_writelane_b32 v255, s6, %d" % {14: 29, 2: 30, 4: 31, 16: 15}[idx])

    def dump_stamps(self):
        if not self.stamps: return
        a = self.a
        if "entry" in self.exp:
            a("v_writelane_b32 v255, s90, 31")
        if "dbgst" in self.exp:
            sk = a.newlabel("L_ds")
            a("s_or_b32 s4, s2, s%d" % sW)
            a("s_cmp_lg_u32 s4, 0")
            a("s_cbranch_scc1 %s" % sk)
            a("v_readlane_b32 s4, v255, 0")
            a("s_nop 3")
            a("v_subrev_u32 v3, s4, v255")
            order = [12, 10, 14, 2, 4, 16, 17, 18, 7, 8, 9]
            for k, i in enumerate(order):
                a("v_readlane_b32 s5, v3, %d" % i)
                a("s_nop 3")
                a("v_mov_b32 v4, s5")
                a("v_mov_b32 v5, %d" % (4 * (k + 1)))
                a("s_mov_b64 exec, 1")
                a("buffer_store_dword v4, v5, s[%d:%d], 0 offen" % (S_DBG, S_DBG + 3))
                a("s_mov_b64 exec, -1")
            a.label(sk)
        a("s_lshl_b32 s%d, s2, 3" % sT0)
        a("s_add_u32 s%d, s%d, s%d" % (sT0, sT0, sW))
        a("s_lshl_b32 s%d, s%d, 7" % (sT0, sT0))
        a("s_add_u32 s%d, s%d, 0x%x" % (sT0, sT0, WS_STAMP))
        a("v_lshlrev_b32 v2, 2, v1")
        a("v_add_u32 v2, s%d, v2" % sT0)
        a("s_mov_b32 exec_lo, -1")
        a("s_mov_b32 exec_hi, 0")
        a("buffer_store_dword v255, v2, s[%d:%d], 0 offen" % (S_WS, S_WS + 3))
        a("s_mov_b64 exec, -1")

    def run(self, x):
        if callable(x): x()
        else: self.a(x)

    def spread(self, seq, extra):
        a = self.a
        if not extra:
            for x in seq: self.run(x)
            return
        step = max(1, len(seq) // (len(extra) + 1))
        k = 0
        for i, ins in enumerate(seq):
            self.run(ins)
            if (i + 1) % step == 0 and k < len(extra):
                self.run(extra[k]); k += 1
        while k < len(extra):
            self.run(extra[k]); k += 1

    def map_rc(self):
        a = self.a
        if "map42" in self.exp:
            a("s_and_b32 s%d, s2, 3" % sR)
            a("s_lshl_b32 s%d, s%d, 3" % (sR, sR))
            a("s_bfe_u32 s3, s2, 0x30003")
            a("s_add_u32 s%d, s%d, s3" % (sR, sR))
            a("s_bfe_u32 s%d, s2, 0x10002" % sC)
            a("s_lshl_b32 s%d, s%d, 2" % (sC, sC))
            a("s_lshr_b32 s3, s2, 6")
            a("s_add_u32 s%d, s%d, s3" % (sC, sC))
        else:
            a("s_and_b32 s%d, s2, 7" % sR)
            a("s_lshr_b32 s3, s2, 6")
            a("s_lshl_b32 s3, s3, 3")
            a("s_add_u32 s%d, s%d, s3" % (sR, sR))
            a("s_bfe_u32 s%d, s2, 0x30003" % sC)

    def rot_calc(self):
        a = self.a
        if "map42" in self.exp:
            a("s_lshl_b32 s%d, s%d, 1" % (sT0, sC))
            a("s_add_u32 s%d, s%d, s%d" % (sT0, sT0, sR))
            a("s_and_b32 s%d, s%d, 7" % (sROT, sT0))
        else:
            a("s_lshr_b32 s%d, s%d, 3" % (sT0, sR))
            a("s_lshl_b32 s%d, s%d, 1" % (sT0, sT0))
            a("s_add_u32 s%d, s%d, s%d" % (sT0, sT0, sC))
            a("s_add_u32 s%d, s%d, s%d" % (sT0, sT0, sR))
            a("s_and_b32 s%d, s%d, 7" % (sROT, sT0))
        if "norot" in self.exp: a("s_mov_b32 s%d, 0" % sROT)

    def p0(self):
        a = self.a
        if self.stamps and "entry" in self.exp:
            a("s_memrealtime s[90:91]")
        a("s_load_dwordx8 s[64:71], s[0:1], 0")
        a("s_cmp_ge_u32 s2, 256")
        a("s_cbranch_scc1 L_end")
        if self.stamps: a("v_mov_b32 v255, 0")
        a("v_lshrrev_b32 v2, 6, v0")
        a("v_and_b32 v1, 63, v0")
        if "codepf0" in self.exp:
            a("s_getpc_b64 s[82:83]")
            a.label("L_pc")
            a("s_sub_u32 s82, s82, L_pc-%s" % KNAME)
            a("s_subb_u32 s83, s83, 0")
            a("v_and_b32 v4, 255, v0")
            a("v_lshlrev_b32 v4, 7, v4")
            a("v_min_u32 v4, L_codeend-%s, v4" % KNAME)
            a("v_mov_b32 v5, s83")
            a("v_add_co_u32 v4, vcc, s82, v4")
            a("v_addc_co_u32 v5, vcc, 0, v5, vcc")
            a.vmem("global_load_dword v244, v[4:5], off", "cpf")
        self.map_rc()
        a("v_readfirstlane_b32 s%d, v2" % sW)
        a("s_mov_b32 s10, 0x200000")
        a("s_mov_b32 s11, 0x00020000")
        a("s_mov_b32 s14, 0x200000")
        a("s_mov_b32 s15, 0x00020000")
        a("s_mov_b32 s18, 0x200000")
        a("s_mov_b32 s19, 0x00020000")
        a("s_movk_i32 s42, 0x1000")
        a("s_mov_b32 s43, 0x00020000")
        a("s_and_b32 s%d, s%d, 3" % (sRW, sW))
        a("s_cmp_ge_u32 s%d, 4" % sW)
        a("s_cbranch_scc1 L_Hfirst")

    def p0_rest(self):
        a = self.a
        for dst, off in ((S_W1, 56), (S_SSM, 32), (S_WS, 88), (S_DBG, 80), (S_W2, 64), (S_OUT, 72), (sDP, 40)):
            a("s_load_dwordx2 s[%d:%d], s[0:1], %d" % (dst, dst + 1, off))
        for dst, size in ((S_W1, 1409024), (S_SSM, 2097152), (S_WS, WS_SIZE), (S_DBG, 256), (S_W2, 1409024), (S_OUT, 2097152)):
            a("s_mov_b32 s%d, 0x%x" % (dst + 2, size))
            a("s_mov_b32 s%d, 0x00020000" % (dst + 3))
        if "dshift" in self.exp:
            a("s_add_u32 s%d, s%d, 1" % (sD, sC))
            a("s_and_b32 s%d, s%d, 7" % (sD, sD))
        else:
            a("s_mov_b32 s%d, s%d" % (sD, sC))
        a("s_lshl_b32 s%d, s%d, 5" % (sID, sC))
        a("s_add_u32 s%d, s%d, s%d" % (sID, sID, sR))
        a("s_mul_i32 s%d, s%d, 6" % (sBP, sC))
        a("s_sub_i32 s%d, s%d, 3" % (sT0, sC))
        a("s_max_i32 s%d, s%d, 0" % (sT0, sT0))
        a("s_sub_u32 s%d, s%d, s%d" % (sBP, sBP, sT0))
        a("s_lshl_b32 s%d, s%d, 5" % (sF0, sBP))
        a("s_cmp_lt_u32 s%d, 3" % sC)
        a("s_cselect_b32 s%d, 12, 10" % sNB)
        a("v_mov_b32 v%d, 0xffff" % vMLO)
        a("v_mov_b32 v%d, 0xffff0000" % vMHI)
        a("v_mov_b32 v%d, 0x3f80" % vONELO)
        a("v_mov_b32 v%d, 0x3f800000" % vONEHI)
        a("v_mov_b32 v%d, 0x3f803f80" % vONES)
        a("s_mov_b32 s%d, 0x05040100" % sP0)
        a("s_mov_b32 s%d, 0x07060302" % sP1)
        a("v_and_b32 v3, 15, v0")
        a("v_lshlrev_b32 v3, 2, v3")
        a("v_add_u32 v3, %d, v3" % L_SYNC)
        a("v_mov_b32 v4, 0")
        a("ds_write_b32 v3, v4")

    def w1_dma_ops(self, j):
        a = self.a
        slot = j % NW1
        ops = []
        def head():
            a("s_add_u32 s%d, s%d, %d" % (sT1, sROT, j))
            a("s_and_b32 s%d, s%d, 7" % (sT1, sT1))
            a("s_mul_i32 s%d, s%d, %d" % (sT1, sT1, 64 * 2752))
            a("s_add_u32 m0, s%d, %d" % (sM0B, slot * W1_SLOT))
            a.vmem("buffer_load_dwordx4 v12, s[%d:%d], s%d offen lds" % (S_W1, S_W1 + 3, sT1), "w1c%d" % j)
        ops.append(head)
        for i in range(1, 6):
            def nxt(i=i):
                a("s_add_u32 m0, s%d, %d" % (sM0B, slot * W1_SLOT + 1024 * i))
                a.vmem("buffer_load_dwordx4 v%d, s[%d:%d], s%d offen lds" % (12 + i, S_W1, S_W1 + 3, sT1), "w1c%d" % j)
            ops.append(nxt)
        return ops

    def w1_voffs(self):
        a = self.a
        V = 12
        a("s_mul_i32 s%d, s%d, %d" % (sT0, sRW, 16 * 2752))
        a("s_lshl_b32 s%d, s%d, 1" % (sT1, sF0))
        a("s_add_u32 s%d, s%d, s%d" % (sT0, sT0, sT1))
        a("s_lshl_b32 s%d, s%d, 1" % (sT1, sNB))
        a("v_mov_b32 v7, 0x40000000")
        for i in range(6):
            a("v_add_u32 v2, %d, v1" % (64 * i))
            a("v_mul_u32_u24 v3, 2731, v2")
            a("v_lshrrev_b32 v3, 16, v3")
            a("v_mul_u32_u24 v4, 24, v3")
            a("v_sub_u32 v4, v2, v4")
            a("v_and_b32 v5, 2, v3")
            a("v_lshrrev_b32 v6, 1, v3")
            a("v_and_b32 v6, 4, v6")
            a("v_or_b32 v5, v5, v6")
            a("v_xor_b32 v4, v4, v5")
            a("v_mul_u32_u24 v5, 2752, v3")
            a("v_lshl_add_u32 v5, v4, 4, v5")
            a("v_add_u32 v5, s%d, v5" % sT0)
            a("v_cmp_gt_u32 vcc, s%d, v4" % sT1)
            a("v_cndmask_b32 v%d, v7, v5, vcc" % (V + i))
        a("s_mul_i32 s%d, s%d, %d" % (sM0B, sRW, 16 * 384))
        a("s_add_u32 s%d, s%d, %d" % (sM0B, sM0B, L_W1))

    def line_prefetch(self, which, vd):
        a = self.a
        a("s_lshr_b32 s%d, s2, 3" % sT0)
        a("v_and_b32 v2, 255, v0")
        if "map42" not in self.exp:
            srd = S_W1 if which == "w1" else S_W2
            a("s_mul_i32 s%d, s%d, %d" % (sT0, sT0, 344 * 128))
            a("v_lshlrev_b32 v3, 7, v2")
            a("v_add_u32 v3, s%d, v3" % sT0)
            a.vmem("buffer_load_dword v%d, v3, s[%d:%d], 0 offen" % (vd, srd, srd + 3), "pf")
            a("v_cmp_gt_u32 vcc, %d, v2" % (344 - 256))
            a("v_add_u32 v3, 32768, v3")
            a("v_mov_b32 v4, 0x40000000")
            a("v_cndmask_b32 v3, v4, v3, vcc")
            a.vmem("buffer_load_dword v%d, v3, s[%d:%d], 0 offen" % (vd + 1, srd, srd + 3), "pf")
        elif which == "w2":
            a("s_mul_i32 s%d, s%d, 43" % (sT0, sT0))
            a("s_bfe_u32 s%d, s2, 0x10002" % sT1)
            a("s_lshl_b32 s%d, s%d, 9" % (sT1, sT1))
            a("s_lshl_b32 s%d, s%d, 10" % (sT0, sT0))
            a("s_add_u32 s%d, s%d, s%d" % (sT0, sT0, sT1))
            a("v_lshrrev_b32 v3, 2, v2")
            a("v_lshlrev_b32 v3, 10, v3")
            a("v_and_b32 v4, 3, v2")
            a("v_lshl_add_u32 v3, v4, 7, v3")
            a("v_add_u32 v3, s%d, v3" % sT0)
            a("v_cmp_gt_u32 vcc, 172, v2")
            a("v_mov_b32 v4, 0x40000000")
            a("v_cndmask_b32 v3, v4, v3, vcc")
            a.vmem("buffer_load_dword v%d, v3, s[%d:%d], 0 offen" % (vd, S_W2, S_W2 + 3), "pf")
        else:
            a("s_lshl_b32 s%d, s%d, 4" % (sT0, sT0))
            a("s_mul_i32 s%d, s%d, 2752" % (sT0, sT0))
            a("s_bfe_u32 s%d, s2, 0x10002" % sT1)
            a("s_mul_i32 s%d, s%d, 1472" % (sT1, sT1))
            a("s_add_u32 s%d, s%d, s%d" % (sT0, sT0, sT1))
            a("v_mul_u32_u24 v3, 5462, v2")
            a("v_lshrrev_b32 v3, 16, v3")
            a("v_mul_u32_u24 v4, 12, v3")
            a("v_sub_u32 v4, v2, v4")
            a("v_mul_u32_u24 v3, 2752, v3")
            a("v_lshl_add_u32 v3, v4, 7, v3")
            a("v_add_u32 v3, s%d, v3" % sT0)
            a("v_cmp_gt_u32 vcc, 192, v2")
            a("v_mov_b32 v4, 0x40000000")
            a("v_cndmask_b32 v3, v4, v3, vcc")
            a.vmem("buffer_load_dword v%d, v3, s[%d:%d], 0 offen" % (vd, S_W1, S_W1 + 3), "pf")

    def m_front(self):
        a = self.a
        a("v_lshrrev_b32 v3, 5, v0")
        a("v_and_b32 v4, 31, v0")
        a("s_lshl_b32 s%d, s%d, 16" % (sT0, sR))
        a("s_lshl_b32 s%d, s%d, 7" % (sT1, sC))
        a("s_add_u32 s%d, s%d, s%d" % (sT0, sT0, sT1))
        a("v_lshlrev_b32 v2, 13, v3")
        a("v_lshl_add_u32 v2, v4, 2, v2")
        a("v_add_u32 v2, s%d, v2" % sT0)
        a("v_add_u32 v5, 0xfffff400, v2")
        a("v_add_u32 v6, 0xfffff800, v2")
        a("v_add_u32 v7, 0xfffffc00, v2")
        a("v_add_u32 v8, 4096, v2")
        a("s_lshl_b32 s%d, s%d, 9" % (sT2, sC))
        a("v_lshlrev_b32 v9, 4, v4")
        a("v_add_u32 v9, s%d, v9" % sT2)
        a.lg0()
        a("s_mov_b64 s[12:13], s[66:67]")
        a("s_mov_b64 s[16:17], s[68:69]")
        a("s_mov_b64 s[40:41], s[70:71]")
        a("s_mov_b64 s[8:9], s[64:65]")
        if self.stamps:
            a("s_memrealtime s[4:5]"); a.lg0(); a("v_writelane_b32 v255, s4, 0")
        K, V, SH = 20, 32, 40
        for t, r in enumerate((5, 6, 7)):
            a.vmem("buffer_load_dword v%d, v%d, s[%d:%d], 0 offen" % (K + t, r, S_K, S_K + 3), "prep")
        for t in range(8):
            a.vmem("buffer_load_dword v%d, v%d, s[%d:%d], 0 offen offset:%d" % (K + 3 + t, 2 if t < 4 else 8, S_K, S_K + 3, 1024 * (t & 3)), "prep")
        a.vmem("buffer_load_dwordx4 v[40:43], v9, s[%d:%d], 0 offen" % (S_SH, S_SH + 3), "prep")
        for t in range(8):
            a.vmem("buffer_load_dword v%d, v%d, s[%d:%d], 0 offen offset:%d" % (V + t, 2 if t < 4 else 8, S_V, S_V + 3, 1024 * (t & 3)), "prep")
        a("s_branch L_Mrest")
        self.h_first()
        a.label("L_Mrest")
        a.vm = self.vm_m_first
        self.rot_calc()
        self.p0_rest()
        a("s_waitcnt lgkmcnt(0)")
        a("s_barrier")
        if "pfM" in self.exp:
            self.line_prefetch("w1", 240)
        if not self.noflags:
            a("s_or_b32 s%d, s2, s%d" % (sT1, sW))
            a("s_cmp_lg_u32 s%d, 0" % sT1)
            a("s_cbranch_scc1 L_nononce")
            a("s_memrealtime s[4:5]")
            a("s_waitcnt lgkmcnt(0)")
            a("s_or_b32 s4, s4, 1")
            a("v_mov_b32 v2, s4")
            a("v_mov_b32 v3, 0")
            a("s_mov_b64 exec, 1")
            a("buffer_store_dword v2, v3, s[%d:%d], 0 offen sc1" % (S_DBG, S_DBG + 3))
            a("s_mov_b64 exec, -1")
            a.label("L_nononce")
        self.w1_voffs()
        self.m_gemm1_setup()
        a("s_lshl_b32 s%d, s%d, 7" % (sT0, sC))
        a("s_lshl_b32 s%d, s%d, 2" % (sT1, sR))
        a("s_add_u32 s%d, s%d, s%d" % (sT0, sT0, sT1))
        a("s_load_dword s%d, s[%d:%d], s%d" % (sDD, sDP, sDP + 1, sT0))

    def m_gemm1_setup(self):
        a = self.a
        AX = 8; AW = [9, 10, 11]
        a("v_and_b32 v2, 15, v1")
        a("v_lshrrev_b32 v3, 4, v1")
        a("v_lshlrev_b32 v4, 1, v3")
        a("v_xor_b32 v4, v2, v4")
        a("v_lshlrev_b32 v4, 4, v4")
        a("v_lshl_add_u32 v%d, v3, 8, v4" % AX)
        a("v_lshrrev_b32 v5, 2, v2")
        a("v_lshl_add_u32 v4, v3, 3, v5")
        a("v_mul_u32_u24 v4, 384, v4")
        a("v_and_b32 v6, 3, v1")
        a("v_lshl_add_u32 v4, v6, 3, v4")
        a("v_lshrrev_b32 v5, 1, v5")
        a("v_and_b32 v6, 1, v3")
        a("v_lshl_add_u32 v5, v6, 1, v5")
        a("s_mul_i32 s%d, s%d, 3" % (sT0, sRW))
        for b in range(3):
            a("s_add_u32 s%d, s%d, %d" % (sT1, sT0, b))
            a("v_xor_b32 v6, s%d, v5" % sT1)
            a("v_lshl_add_u32 v6, v6, 5, v4")
            a("v_add_u32 v%d, %d, v6" % (AW[b], L_W1))
        a("v_lshlrev_b32 v5, 4, v2")
        a("v_lshrrev_b32 v4, 1, v3")
        a("v_lshl_add_u32 v5, v4, 8, v5")
        a("v_and_b32 v4, 1, v3")
        a("v_lshl_add_u32 v5, v4, 3, v5")
        a("s_lshr_b32 s%d, s%d, 4" % (sBP, sF0))
        a("s_mul_i32 s%d, s%d, %d" % (sT0, sR, 4 * 44032))
        a("s_mul_i32 s%d, s%d, 3" % (sT1, sRW))
        a("s_add_u32 s%d, s%d, s%d" % (sT2, sT1, sBP))
        a("s_lshl_b32 s%d, s%d, 9" % (sT2, sT2))
        a("s_add_u32 s%d, s%d, s%d" % (sT0, sT0, sT2))
        a("s_add_u32 s%d, s%d, 0x%x" % (sT0, sT0, WS_H))
        a("v_add_u32 v168, s%d, v5" % sT0)
        for tb in range(1, 4):
            a("v_add_u32 v%d, %d, v168" % (168 + tb, 44032 * tb))
        for b, sr_ in ((1, sINV1), (2, sINV2)):
            a("s_add_u32 s%d, s%d, %d" % (sT2, sT1, b))
            a("s_cmp_lt_u32 s%d, s%d" % (sT2, sNB))
            a("s_cselect_b32 s%d, 0, 0x40000000" % sr_)

    def m_prep(self):
        a = self.a
        K, V, SH = 20, 32, 40
        WL, WH = 44, 48
        PL, PH = 52, 56
        PP, AC = 60, 64
        TA, TB = 68, 72
        KV = 76
        OUT = 92
        dma = []
        if "V2" in self.exp:
            for f in self.w1_dma_ops(0) + self.w1_dma_ops(1): f()
        a.wait_vm("prep")
        self.stamp(12)
        seq = []; e = seq.append
        e("v_and_b32 v%d, v%d, v%d" % (WL + 0, vMLO, SH + 0)); e("v_lshrrev_b32 v%d, 16, v%d" % (WL + 1, SH + 0))
        e("v_and_b32 v%d, v%d, v%d" % (WL + 2, vMLO, SH + 1)); e("v_lshrrev_b32 v%d, 16, v%d" % (WL + 3, SH + 1))
        e("v_lshlrev_b32 v%d, 16, v%d" % (WH + 0, SH + 2)); e("v_and_b32 v%d, v%d, v%d" % (WH + 1, vMHI, SH + 2))
        e("v_lshlrev_b32 v%d, 16, v%d" % (WH + 2, SH + 3)); e("v_and_b32 v%d, v%d, v%d" % (WH + 3, vMHI, SH + 3))
        for hb in range(2):
            r0 = 4 * hb
            if "relax_prep" in self.exp:
                for r in range(4):
                    e("v_dot2_f32_bf16 v%d, v%d, v%d, 0" % (PL + r, K + r0 + r, WL + 3))
                    e("v_dot2_f32_bf16 v%d, v%d, v%d, 0" % (PH + r, K + r0 + r, WH + 3))
                for j in (2, 1, 0):
                    for r in range(4):
                        e("v_dot2_f32_bf16 v%d, v%d, v%d, v%d" % (PL + r, K + 3 + r0 + r - j, WL + j, PL + r))
                        e("v_dot2_f32_bf16 v%d, v%d, v%d, v%d" % (PH + r, K + 3 + r0 + r - j, WH + j, PH + r))
                for r in range(4):
                    e("v_cvt_pk_bf16_f32 v%d, v%d, v%d" % (AC + r, PL + r, PH + r))
            else:
                for j in (3, 2, 1, 0):
                    for r in range(4):
                        e("v_dot2_f32_bf16 v%d, v%d, v%d, 0" % (PL + r, K + 3 + r0 + r - j, WL + j))
                        e("v_dot2_f32_bf16 v%d, v%d, v%d, 0" % (PH + r, K + 3 + r0 + r - j, WH + j))
                    dstp = AC if j == 3 else PP
                    for r in range(4):
                        e("v_cvt_pk_bf16_f32 v%d, v%d, v%d" % (dstp + r, PL + r, PH + r))
                    if j != 3:
                        for r in range(4):
                            e("v_perm_b32 v%d, v%d, v%d, s%d" % (TA + r, PP + r, AC + r, sP0))
                            e("v_perm_b32 v%d, v%d, v%d, s%d" % (TB + r, PP + r, AC + r, sP1))
                        for r in range(4):
                            e("v_dot2_f32_bf16 v%d, v%d, v%d, 0" % (PL + r, TA + r, vONES))
                            e("v_dot2_f32_bf16 v%d, v%d, v%d, 0" % (PH + r, TB + r, vONES))
                        for r in range(4):
                            e("v_cvt_pk_bf16_f32 v%d, v%d, v%d" % (AC + r, PL + r, PH + r))
            for r in range(4):
                e("v_and_b32 v%d, v%d, v%d" % (TA + r, vMLO, V + r0 + r))
                e("v_and_b32 v%d, v%d, v%d" % (TB + r, vMHI, V + r0 + r))
            for r in range(4):
                e("v_dot2_f32_bf16 v%d, v%d, v%d, 0" % (KV + r0 + r, AC + r, TA + r))
                e("v_dot2_f32_bf16 v%d, v%d, v%d, 0" % (KV + 8 + r0 + r, AC + r, TB + r))
        e("v_and_b32 v2, 31, v0"); e("v_mul_u32_u24 v2, 288, v2"); e("v_lshrrev_b32 v3, 5, v0"); e("v_lshlrev_b32 v3, 4, v3")
        e("v_sub_u32 v2, v2, v3"); e("v_add_u32 v2, %d, v2" % (L_PREP + 112))
        for ch in range(2):
            for d in range(4):
                e("v_cvt_pk_bf16_f32 v%d, v%d, v%d" % (OUT + 4 * ch + d, KV + 8 * ch + 7 - 2 * d, KV + 8 * ch + 6 - 2 * d))
        self.spread(seq, dma)
        self.stamp(20)
        a("ds_write_b128 v2, v[%d:%d]" % (OUT, OUT + 3))
        a("ds_write_b128 v2, v[%d:%d] offset:144" % (OUT + 4, OUT + 7))
        a("v_lshrrev_b32 v2, 3, v0")
        a("v_and_b32 v3, 7, v0")
        a("v_mul_u32_u24 v4, 144, v2")
        a("v_lshl_add_u32 v4, v3, 4, v4")
        a("v_add_u32 v4, %d, v4" % L_PREP)
        a("s_lshl_b32 s%d, s%d, 18" % (sT0, sC))
        a("s_lshl_b32 s%d, s%d, 7" % (sT1, sR))
        a("s_sub_u32 s%d, s%d, s%d" % (sT0, sT0, sT1))
        a("s_add_u32 s%d, s%d, %d" % (sT0, sT0, WS_KVT + 3968))
        a("v_lshlrev_b32 v5, 12, v2")
        a("v_lshl_add_u32 v5, v3, 4, v5")
        a("v_add_u32 v5, s%d, v5" % sT0)
        a("v_add_u32 v6, %d, v5" % (32 * 4096))
        if "dmafirst" in self.exp:
            for f in self.w1_dma_ops(0) + self.w1_dma_ops(1) + self.w1_dma_ops(2): f()
            self.stamp(15)
        self.m_sync(13, va=2, vb=3)
        a("ds_read_b128 v[92:95], v4")
        a("ds_read_b128 v[96:99], v4 offset:%d" % (32 * 144))
        a.lg0()
        a.vmem("buffer_store_dwordx4 v[92:95], v5, s[%d:%d], 0 offen sc1" % (S_WS, S_WS + 3), "kvt")
        a.vmem("buffer_store_dwordx4 v[96:99], v6, s[%d:%d], 0 offen sc1" % (S_WS, S_WS + 3), "kvt")
        if not self.noflags:
            a("v_mov_b32 v7, 0")
            a.vmem("buffer_load_dword v19, v7, s[%d:%d], 0 offen sc1" % (S_DBG, S_DBG + 3), "nonce")
        if "dmafirst" not in self.exp:
            self.stamp(15)
            if "V3" in self.exp: lst = self.w1_dma_ops(2) + self.w1_dma_ops(3)
            elif "V2" in self.exp: lst = self.w1_dma_ops(2)
            else: lst = self.w1_dma_ops(0) + self.w1_dma_ops(1) + self.w1_dma_ops(2)
            for f in lst: f()

    def m_gemm1(self):
        a = self.a
        ACC = 20
        BUF = [68, 96, 124]
        AX = 8; AW = [9, 10, 11]
        UREG = 152
        for i in range(48):
            a("v_mov_b32 v%d, 0" % (ACC + i))

        def read_ops(ks):
            buf = BUF[ks % 3]
            j = ks >> 1; ksl = ks & 1; slot = j % NW1
            pre = []
            if ksl == 0 and j > 0:
                d = W1_SLOT if slot != 0 else -(NW1 - 1) * W1_SLOT
                for b in range(3):
                    pre.append("v_add_u32 v%d, %d, v%d" % (AW[b], d & 0xffffffff, AW[b]))
            so = ksl * 32 * 384
            def rx(t):
                return lambda: a.lds("ds_read_b128 v[%d:%d], v%d offset:%d" % (buf + 4 * t, buf + 4 * t + 3, AX, L_XN + (j % NXN) * 8192 + t * 2048 + ksl * 1024), "x%d_%d" % (ks, t))
            def rw(b, hh):
                r0 = buf + 16 + 4 * b + 2 * hh
                return lambda: a.lds("ds_read_b64_tr_b16 v[%d:%d], v%d offset:%d" % (r0, r0 + 1, AW[b], so + hh * 4 * 384), "w%d_%d" % (ks, b))
            if "mnoreads" in self.exp: return pre
            return pre + [rw(0, 0), rw(0, 1), rx(0), rx(1), rx(2), rx(3), rw(1, 0), rw(1, 1), rw(2, 0), rw(2, 1)]

        def mfma_ops(ks):
            cur = BUF[ks % 3]
            ops = []
            for b in range(3):
                for t in range(4):
                    def f(b=b, t=t):
                        if "finewait" in self.exp:
                            a.need_lds("w%d_%d" % (ks, b), "x%d_%d" % (ks, t))
                        elif b == 0 and t == 0:
                            a.need_lds(*(["w%d_%d" % (ks, bb) for bb in range(3)] + ["x%d_%d" % (ks, tt) for tt in range(4)]))
                        acc = ACC + (b * 4 + t) * 4
                        if "mnomfma" in self.exp: return
                        a("v_mfma_f32_16x16x32_bf16 v[%d:%d], v[%d:%d], v[%d:%d], v[%d:%d]" % (
                            acc, acc + 3, cur + 16 + 4 * b, cur + 19 + 4 * b, cur + 4 * t, cur + 4 * t + 3, acc, acc + 3))
                    ops.append(f)
            return ops

        if not self.noflags and "V1" in self.exp: self.publish_h1()
        if "V3" not in self.exp: a.wait_vm("w1c1")
        a("s_barrier")
        self.stamp(14)
        for f in read_ops(0): self.run(f)
        if self.h1j == 0 and not self.noflags and "V1" not in self.exp:
            q_l = (list(a.lg.q), a.lg_done)
            self.publish_h1()
        for f in read_ops(1)[:5]: self.run(f)
        pend = read_ops(1)[5:]
        for j in range(8):
            if j >= 1 and j <= 6:
                if not ("mnodma" in self.exp and j + 1 >= 3) and "novmw" not in self.exp: a.wait_vm("w1c%d" % (j + 1))
                a("s_barrier")
                if "itst" in self.exp: self.stamp(22 + j)
                if j == self.h1j and not self.noflags and "V1" not in self.exp: self.publish_h1()
            dm = self.w1_dma_ops(j + 4) if (j + 4 <= 7) else []
            if j == 0 and "V3" not in self.exp: dm = self.w1_dma_ops(3) + dm
            if "mnodma" in self.exp:
                for _ in dm: a.vm.issue("dummy")
                dm = []
            ex = []
            for half in range(2):
                ks = 2 * j + half
                fill = list(pend); pend = []
                if ks + 2 <= 15:
                    fill += read_ops(ks + 2)
                hlf = (len(dm) + 1) // 2
                extra = (dm[:hlf] + ex if half == 0 else dm[hlf:])
                interleave(a, mfma_ops(ks), merge(fill, extra))
        a.lg0()
        self.stamp(2)
        HB = 68
        for i in range(12):
            a("v_cvt_pk_bf16_f32 v%d, v%d, v%d" % (HB + 2 * i, ACC + 4 * i, ACC + 4 * i + 1))
            a("v_cvt_pk_bf16_f32 v%d, v%d, v%d" % (HB + 2 * i + 1, ACC + 4 * i + 2, ACC + 4 * i + 3))
        for i in range(24):
            a("v_pk_max_i16 v%d, v%d, 0" % (HB + i, HB + i))
        for b in range(3):
            so = "0" if b == 0 else "s%d" % (sINV1 if b == 1 else sINV2)
            for t in range(4):
                r = HB + (b * 4 + t) * 2
                a.vmem("buffer_store_dwordx2 v[%d:%d], v%d, s[%d:%d], %s offen offset:%d sc1" % (r, r + 1, 168 + t, S_WS, S_WS + 3, so, 512 * b), "hst")
        a("s_barrier")

    def get_nonce(self):
        if self.noflags: return
        a = self.a
        a.wait_vm("nonce")
        lo = a.newlabel("L_nz"); lp = a.newlabel("L_nl")
        a("v_readfirstlane_b32 s%d, v19" % sNONCE)
        a("s_nop 3")
        a("s_cmp_lg_u32 s%d, 0" % sNONCE)
        a("s_cbranch_scc1 %s" % lo)
        a("s_mov_b32 s%d, 0" % sT3)
        a.label(lp)
        a("v_mov_b32 v7, 0")
        a("buffer_load_dword v19, v7, s[%d:%d], 0 offen sc1" % (S_DBG, S_DBG + 3))
        a("s_waitcnt vmcnt(0)")
        a("v_readfirstlane_b32 s%d, v19" % sNONCE)
        a("s_add_u32 s%d, s%d, 1" % (sT3, sT3))
        a("s_cmp_gt_u32 s%d, 100000" % sT3)
        a("s_cbranch_scc1 %s" % lo)
        a("s_cmp_eq_u32 s%d, 0" % sNONCE)
        a("s_cbranch_scc1 %s" % lp)
        a.label(lo)

    def flag_store(self, off_sreg, tag, va=2, vb=3):
        if self.noflags: return
        a = self.a
        a("v_mov_b32 v%d, s%d" % (va, off_sreg))
        a("v_mov_b32 v%d, s%d" % (vb, sNONCE))
        a("s_mov_b64 exec, 1")
        a.vmem("buffer_store_dword v%d, v%d, s[%d:%d], 0 offen sc1" % (vb, va, S_WS, S_WS + 3), tag)
        a("s_mov_b64 exec, -1")

    def publish_h1(self):
        a = self.a
        self.get_nonce()
        a.wait_vm("kvt")
        a("s_lshl_b32 s%d, s%d, 7" % (sT0, sID))
        a("s_lshl_b32 s%d, s%d, 2" % (sT2, sRW))
        a("s_add_u32 s%d, s%d, s%d" % (sT0, sT0, sT2))
        a("s_add_u32 s%d, s%d, 0x%x" % (sT0, sT0, F_H1))
        self.flag_store(sT0, "flag")

    def poll(self, base_sreg, nlanes, width, stride):
        if self.noflags: return
        a = self.a
        lp = a.newlabel("L_poll"); dn = a.newlabel("L_pdone")
        a("v_mul_u32_u24 v2, %d, v1" % stride)
        a("v_add_u32 v2, s%d, v2" % base_sreg)
        a("s_mov_b32 s%d, 0" % sT3)
        if nlanes <= 16: a("s_mov_b64 exec, 0x%x" % ((1 << nlanes) - 1))
        else:
            a("s_mov_b32 exec_lo, -1"); a("s_mov_b32 exec_hi, 0")
        a.label(lp)
        if width == 1:
            a("buffer_load_dword v4, v2, s[%d:%d], 0 offen sc1" % (S_WS, S_WS + 3))
            a("s_waitcnt vmcnt(0)")
            a("v_cmp_ne_u32 vcc, s%d, v4" % sNONCE)
        else:
            a("buffer_load_dwordx4 v[4:7], v2, s[%d:%d], 0 offen sc1" % (S_WS, S_WS + 3))
            a("s_waitcnt vmcnt(0)")
            for i in range(4): a("v_xor_b32 v%d, s%d, v%d" % (4 + i, sNONCE, 4 + i))
            a("v_or3_b32 v4, v4, v5, v6")
            a("v_or_b32 v4, v4, v7")
            a("v_cmp_ne_u32 vcc, 0, v4")
        a("s_add_u32 s%d, s%d, 1" % (sT3, sT3))
        a("s_cmp_gt_u32 s%d, 100000" % sT3)
        a("s_cbranch_scc1 %s" % dn)
        a("s_cbranch_vccnz %s" % lp)
        a.label(dn)
        a("s_mov_b64 exec, -1")

    def lds_wait(self, addr_sreg, val=1, va=16, vb=17):
        a = self.a
        lp = a.newlabel("L_ps"); dn = a.newlabel("L_psd")
        a("v_mov_b32 v%d, s%d" % (va, addr_sreg))
        a("s_mov_b32 s%d, 0" % sT3)
        a.label(lp)
        a("ds_read_b32 v%d, v%d" % (vb, va))
        a("s_waitcnt lgkmcnt(0)")
        a("v_readfirstlane_b32 s4, v%d" % vb)
        a("s_add_u32 s%d, s%d, 1" % (sT3, sT3))
        a("s_cmp_ge_u32 s4, %d" % val)
        a("s_cbranch_scc1 %s" % dn)
        a("s_cmp_lt_u32 s%d, 1000000" % sT3)
        a("s_cbranch_scc1 %s" % lp)
        a.label(dn)
        a.lg_clear()

    def m_sync(self, word, n=4, va=16, vb=17):
        a = self.a
        a("v_mov_b32 v%d, %d" % (va, L_SYNC + 4 * word))
        a("v_mov_b32 v%d, 1" % vb)
        a.lg0()
        a("s_mov_b64 exec, 1")
        a("ds_add_u32 v%d, v%d" % (va, vb))
        a("s_mov_b64 exec, -1")
        a("s_mov_b32 s5, %d" % (L_SYNC + 4 * word))
        self.lds_wait(5, n, va, vb)

    def pair_sync(self, stage, va=16, vb=17):
        a = self.a
        a("s_lshl_b32 s4, s%d, 2" % sRW)
        a("s_add_u32 s4, s4, %d" % (L_SYNC + 16 * stage))
        a("s_xor_b32 s5, s4, 4")
        a("v_mov_b32 v%d, s4" % va)
        a("v_mov_b32 v%d, 1" % vb)
        a.lg0()
        a("ds_write_b32 v%d, v%d" % (va, vb))
        self.lds_wait(5, 1, va, vb)

    def m_conv(self):
        a = self.a
        BF, ACC, AF, NA = 20, 148, 180, 16
        AU, AT = 2, 3
        a("v_and_b32 v8, 15, v1")
        a("v_lshrrev_b32 v9, 4, v1")
        a("v_lshlrev_b32 v10, 4, v9")
        a("v_lshlrev_b32 v11, 5, v8")
        a("v_sub_u32 v10, v10, v11")
        a("s_lshr_b32 s%d, s%d, 1" % (sT0, sRW))
        a("s_and_b32 s%d, s%d, 1" % (sT1, sRW))
        a("s_mul_i32 s%d, s%d, %d" % (sT2, sT0, U_CH))
        a("s_add_u32 s%d, s%d, %d" % (sT2, sT2, L_U + 2 * 2032 - 64 * 56))
        a("s_lshl_b32 s4, s%d, 6" % sT1)
        a("s_add_u32 s%d, s%d, s4" % (sT2, sT2))
        a("v_add_u32 v%d, s%d, v10" % (AU, sT2))
        a("v_and_b32 v10, 3, v8")
        a("v_mul_u32_u24 v10, %d, v10" % T_CP)
        a("v_lshrrev_b32 v11, 2, v8")
        a("v_lshl_add_u32 v10, v11, 3, v10")
        a("v_lshl_add_u32 v10, v9, 4, v10")
        a("s_mul_i32 s%d, s%d, %d" % (sT2, sT0, T_CH))
        a("s_add_u32 s%d, s%d, s4" % (sT2, sT2))
        a("s_add_u32 s%d, s%d, %d" % (sT2, sT2, L_T))
        a("v_add_u32 v%d, s%d, v10" % (AT, sT2))
        a("v_lshl_add_u32 v10, v9, 3, v8")
        a("s_lshl_b32 s4, s%d, 5" % sT1)
        a("v_add_u32 v10, s4, v10")
        MK = 12
        for d in range(4):
            a("v_sub_u32 v11, %d, v10" % (15 - 2 * d))
            a("v_med3_i32 v11, v11, 0, 2")
            a("v_lshlrev_b32 v11, 4, v11")
            a("v_mov_b32 v%d, -1" % (MK + d))
            a("v_lshlrev_b32 v16, v11, v%d" % (MK + d))
            a("v_cmp_eq_u32 vcc, 32, v11")
            a("v_cndmask_b32_e64 v%d, v16, 0, vcc" % (MK + d))
        for i in range(32):
            a("v_mov_b32 v%d, 0" % (ACC + i))
        def emit_A(ee):
            r = AF + 4 * (ee % NA)
            a.lds("ds_read_b64 v[%d:%d], v%d offset:%d" % (r, r + 1, AT, 128 * ee), ("A", ee))
            a.lds("ds_read_b64 v[%d:%d], v%d offset:%d" % (r + 2, r + 3, AT, 128 * ee + 8), ("A", ee))
        def emit_B(idx):
            r = BF + 4 * idx
            a.lds("ds_read_b128 v[%d:%d], v%d offset:%d" % (r, r + 3, AU, 128 * idx), ("B", idx))
        sched = []
        for ee in range(32):
            for j in range(7, (ee >> 2) - 1, -1):
                sched.append((ee, j, 28 - 4 * j + ee))
        order = []; seen = set(); last_use_A = {}
        for n, (ee, j, idx) in enumerate(sched):
            for it in (("A", ee), ("B", idx)):
                if it not in seen:
                    seen.add(it); order.append(it)
            last_use_A[ee] = n
        ptr = 0; issued = set()
        def can_issue(item, n):
            if item[0] == "A" and item[1] >= NA:
                return last_use_A[item[1] - NA] < n
            return True
        def issue_next(n_now):
            nonlocal ptr
            if ptr < len(order) and can_issue(order[ptr], n_now):
                it = order[ptr]
                (emit_A if it[0] == "A" else emit_B)(it[1])
                issued.add(it); ptr += 1
                return True
            return False
        def inflight():
            return len(a.lg.q) - a.lg_done
        GRP = 4
        while inflight() < 14 and issue_next(0): pass
        masked = False
        for n, (ee, j, idx) in enumerate(sched):
            while ("A", ee) not in issued or ("B", idx) not in issued:
                assert issue_next(n)
            if not (a.lds_done(("A", ee)) and a.lds_done(("B", idx))):
                tags = [("A", ee), ("B", idx)]
                for (e2, j2, i2) in sched[n + 1:n + GRP]:
                    if ("A", e2) in issued and ("B", i2) in issued: tags += [("A", e2), ("B", i2)]
                    else: break
                a.need_lds(*tags)
            ar = AF + 4 * (ee % NA); br = BF + 4 * idx; acc = ACC + 4 * j
            if ee == 0 and not masked:
                for d in range(4): a("v_and_b32 v%d, v%d, v%d" % (ar + d, MK + d, ar + d))
                masked = True
            a("v_mfma_f32_16x16x32_bf16 v[%d:%d], v[%d:%d], v[%d:%d], v[%d:%d]" % (acc, acc + 3, ar, ar + 3, br, br + 3, acc, acc + 3))
            if inflight() < 14:
                issue_next(n + 1)
                if n < 40 and inflight() < 14: issue_next(n + 1)
            if n == self.h2n and not self.noflags:
                a.wait_vm("hst")
                a("s_lshl_b32 s4, s%d, 3" % sR)
                a("s_add_u32 s4, s4, s%d" % sC)
                a("s_lshl_b32 s4, s4, 7")
                a("s_lshl_b32 s5, s%d, 2" % sRW)
                a("s_add_u32 s4, s4, s5")
                a("s_add_u32 s%d, s4, 0x%x" % (sT2, F_H2))
                self.flag_store(sT2, "flag", 4, 5)
        self.stamp(16)
        self.pair_sync(0)
        a("v_lshlrev_b32 v4, 4, v1")
        a("s_mul_i32 s%d, s%d, %d" % (sT0, sT0, T_CH))
        a("s_add_u32 s%d, s%d, %d" % (sT0, sT0, L_T + 8))
        a("s_lshl_b32 s%d, s%d, 12" % (sT2, sT1))
        a("s_add_u32 s%d, s%d, s%d" % (sT2, sT2, sT0))
        a("v_add_u32 v5, s%d, v4" % sT2)
        a("s_xor_b32 s%d, s%d, 1" % (sT2, sT1))
        a("s_lshl_b32 s%d, s%d, 12" % (sT2, sT2))
        a("s_add_u32 s%d, s%d, s%d" % (sT2, sT2, sT0))
        a("v_add_u32 v6, s%d, v4" % sT2)
        l0 = a.newlabel("L_cr0"); l1 = a.newlabel("L_cr1")
        a("s_cmp_eq_u32 s%d, 0" % sT1)
        a("s_cbranch_scc1 %s" % l0)
        for i in range(4):
            a("ds_write_b128 v5, v[%d:%d] offset:%d" % (ACC + 4 * i, ACC + 4 * i + 3, 1024 * i))
        for i in range(16):
            a("v_mov_b32 v%d, v%d" % (200 + i, ACC + 16 + i))
        a("s_branch %s" % l1)
        a.label(l0)
        for i in range(4):
            a("ds_write_b128 v5, v[%d:%d] offset:%d" % (ACC + 16 + 4 * i, ACC + 16 + 4 * i + 3, 1024 * i))
        for i in range(16):
            a("v_mov_b32 v%d, v%d" % (200 + i, ACC + i))
        a.label(l1)
        a("v_and_b32 v4, 15, v1")
        a("v_lshrrev_b32 v7, 4, v1")
        a("v_lshlrev_b32 v4, 5, v4")
        a("v_lshl_add_u32 v4, v7, 3, v4")
        a("s_lshr_b32 s%d, s%d, 1" % (sT0, sRW))
        a("s_mul_i32 s%d, s%d, %d" % (sT2, sT0, U_CH))
        a("s_add_u32 s%d, s%d, %d" % (sT2, sT2, L_U + 2 * 2044 - 3 * 512))
        a("s_lshl_b32 s4, s%d, 11" % sT1)
        a("s_sub_u32 s%d, s%d, s4" % (sT2, sT2))
        a("v_sub_u32 v4, s%d, v4" % sT2)
        for i in range(4):
            a("ds_read_b64 v[%d:%d], v4 offset:%d" % (236 + 2 * i, 237 + 2 * i, (3 - i) * 512))
        a("s_and_b32 s4, s%d, 0xffff" % sDD)
        a("s_lshr_b32 s5, s%d, 16" % sDD)
        a("s_cmp_eq_u32 s%d, 0" % sT0)
        a("s_cselect_b32 s4, s4, s5")
        a("s_lshl_b32 s5, s4, 16")
        a("v_mov_b32 v8, s4")
        a("v_mov_b32 v9, s5")
        self.pair_sync(1)
        for i in range(4):
            a("ds_read_b128 v[%d:%d], v6 offset:%d" % (220 + 4 * i, 223 + 4 * i, 1024 * i))
        TT = 148
        for i in range(4):
            u0, u1 = 236 + 2 * i, 237 + 2 * i
            a("v_dot2_f32_bf16 v%d, v%d, v9, 0" % (TT + 4 * i + 0, u1))
            a("v_dot2_f32_bf16 v%d, v%d, v8, 0" % (TT + 4 * i + 1, u1))
            a("v_dot2_f32_bf16 v%d, v%d, v9, 0" % (TT + 4 * i + 2, u0))
            a("v_dot2_f32_bf16 v%d, v%d, v8, 0" % (TT + 4 * i + 3, u0))
        TB = 164
        for i in range(4):
            a("v_cvt_pk_bf16_f32 v%d, v%d, v%d" % (TB + 2 * i, TT + 4 * i, TT + 4 * i + 1))
            a("v_cvt_pk_bf16_f32 v%d, v%d, v%d" % (TB + 2 * i + 1, TT + 4 * i + 2, TT + 4 * i + 3))
        a("v_and_b32 v4, 15, v1")
        a("v_lshrrev_b32 v5, 2, v4")
        a("v_lshlrev_b32 v5, 16, v5")
        a("v_and_b32 v4, 3, v4")
        a("v_lshl_add_u32 v5, v4, 5, v5")
        a("v_lshrrev_b32 v7, 4, v1")
        a("v_lshl_add_u32 v5, v7, 3, v5")
        a("s_lshl_b32 s%d, s%d, 6" % (sT2, sC))
        a("s_lshl_b32 s4, s%d, 1" % sR)
        a("s_add_u32 s%d, s%d, s4" % (sT2, sT2))
        a("s_add_u32 s%d, s%d, s%d" % (sT2, sT2, sT0))
        a("s_lshl_b32 s%d, s%d, 7" % (sT2, sT2))
        a("s_lshl_b32 s4, s%d, 20" % sT1)
        a("s_add_u32 s%d, s%d, s4" % (sT2, sT2))
        a("s_add_u32 s%d, s%d, 0x%x" % (sT2, sT2, WS_YT))
        a("v_add_u32 v5, s%d, v5" % sT2)
        a.lg0()
        for i in range(16):
            a("v_add_f32 v%d, v%d, v%d" % (200 + i, 200 + i, 220 + i))
        YB = 172
        for i in range(8):
            a("v_cvt_pk_bf16_f32 v%d, v%d, v%d" % (YB + i, 200 + 2 * i, 201 + 2 * i))
        for i in range(8):
            a("v_perm_b32 v%d, v%d, v%d, s%d" % (200 + 2 * i, TB + i, YB + i, sP0))
            a("v_perm_b32 v%d, v%d, v%d, s%d" % (201 + 2 * i, TB + i, YB + i, sP1))
        for i in range(16):
            a("v_dot2_f32_bf16 v%d, v%d, v%d, 0" % (220 + i, 200 + i, vONES))
        for i in range(8):
            a("v_cvt_pk_bf16_f32 v%d, v%d, v%d" % (180 + i, 220 + 2 * i, 221 + 2 * i))
        for i in range(4):
            if i: a("v_add_u32 v5, 0x40000, v5")
            a.vmem("buffer_store_dwordx2 v[%d:%d], v5, s[%d:%d], 0 offen sc1" % (180 + 2 * i, 181 + 2 * i, S_WS, S_WS + 3), "yst")
        self.stamp(17)

    def w2_voff(self):
        a = self.a
        sh = 7 if self.w2s else 10
        a("v_lshrrev_b32 v2, 3, v1")
        a("v_and_b32 v2, 3, v2")
        a("v_lshrrev_b32 v3, 5, v1")
        a("v_lshl_add_u32 v2, v3, 3, v2")
        a("v_lshlrev_b32 v2, %d, v2" % sh)
        a("v_lshrrev_b32 v3, 4, v1")
        a("v_and_b32 v3, 3, v3")
        a("v_lshlrev_b32 v3, 1, v3")
        a("v_and_b32 v4, 7, v1")
        a("v_xor_b32 v3, v3, v4")
        a("v_lshl_add_u32 v2, v3, 4, v2")
        if self.w2s:
            a("s_mul_i32 s%d, s%d, 176128" % (sT0, sD))
            a("s_add_u32 s%d, s%d, 0x%x" % (sT0, sT0, WS_W2S))
        else:
            a("s_lshl_b32 s%d, s%d, 7" % (sT0, sD))
        a("v_add_u32 v14, s%d, v2" % sT0)

    def w2_dma(self, lds_base_sreg, lds_off, src_base_sreg, ks_off, tag):
        a = self.a
        inc = [0, 512, 1536, 512] if self.w2s else [0, 4096, 12288, 4096]
        srd = S_WS if self.w2s else S_W2
        fl = " sc1" if self.w2s else ""
        a("s_add_u32 s%d, s%d, %d" % (sT2, src_base_sreg, ks_off * self.KS))
        for m in range(4):
            a("s_add_u32 m0, s%d, %d" % (lds_base_sreg, lds_off + 1024 * m))
            if m: a("s_add_u32 s%d, s%d, %d" % (sT2, sT2, inc[m]))
            a.vmem("buffer_load_dwordx4 v14, s[%d:%d], s%d offen%s lds" % (srd, srd + 3, sT2, fl), tag)

    def m_regionA(self):
        a = self.a
        self.w2_voff()
        a("s_lshr_b32 s75, s%d, 1" % sRW)
        a("s_and_b32 s76, s%d, 1" % sRW)
        a("s_mul_i32 s70, s75, %d" % (22 * self.KS))
        self.m_sync(12)
        a("s_mul_i32 s71, s75, %d" % (NA_H * 4096))
        a("s_add_u32 s71, s71, %d" % L_A)
        a("s_lshl_b32 s4, s76, 12")
        a("s_add_u32 s71, s71, s4")
        a("s_lshl_b32 s4, s76, %d" % (12 if self.w2s else 15))
        a("s_add_u32 s70, s70, s4")
        for m in range(3):
            self.w2_dma(71, 8192 * m, 70, 13 + 2 * m, "w2a")

    def m_tail(self):
        a = self.a
        self.m_regionA()
        a.wait_vm("yst")
        if not self.noflags:
            a("s_lshl_b32 s4, s%d, 7" % sID)
            a("s_lshl_b32 s5, s%d, 2" % sRW)
            a("s_add_u32 s4, s4, s5")
            a("s_add_u32 s%d, s4, 0x%x" % (sT2, F_H3))
            self.flag_store(sT2, "flag", 2, 3)
        self.stamp(21)
        a("s_mov_b32 s5, %d" % (L_SYNC + 56))
        self.lds_wait(5, 4)
        a("s_mul_i32 s71, s75, %d" % B_HALF)
        a("s_lshl_b32 s4, s76, 12")
        a("s_add_u32 s71, s71, s4")
        if L_B: a("s_add_u32 s71, s71, %d" % L_B)
        self.w2_dma(71, 0, 70, 19, "w2l")
        skl = a.newlabel("L_ml")
        a("s_cmp_eq_u32 s76, 1")
        a("s_cbranch_scc1 %s" % skl)
        self.w2_dma(71, 8192, 70, 21, "w2l")
        a.label(skl)
        self.final_x_load(240, 244)
        self.stamp(18)
        a("s_barrier")
        a("s_waitcnt vmcnt(0)")
        a("s_barrier")
        if not self.noflags:
            a("s_lshl_b32 s%d, s%d, 12" % (sT0, sD))
            a("s_add_u32 s%d, s%d, 0x%x" % (sT0, sT0, F_H3))
            self.poll(sT0, 32, 4, 128)
        self.stamp(7)
        a("v_lshrrev_b32 v3, 2, v0")
        a("v_and_b32 v4, 3, v0")
        a("v_lshlrev_b32 v5, 7, v3")
        a("v_lshl_add_u32 v5, v4, 5, v5")
        a("s_lshl_b32 s%d, s%d, 16" % (sT0, sR))
        a("s_lshl_b32 s%d, s%d, 13" % (sT1, sD))
        a("s_add_u32 s%d, s%d, s%d" % (sT0, sT0, sT1))
        a("s_add_u32 s%d, s%d, 0x%x" % (sT0, sT0, WS_YT))
        a("v_add_u32 v5, s%d, v5" % sT0)
        a.vmem("buffer_load_dwordx4 v[20:23], v5, s[%d:%d], 0 offen sc1" % (S_WS, S_WS + 3), "y")
        a.vmem("buffer_load_dwordx4 v[24:27], v5, s[%d:%d], 0 offen offset:16 sc1" % (S_WS, S_WS + 3), "y")
        a("v_mul_u32_u24 v6, 144, v3")
        a("v_lshl_add_u32 v6, v4, 5, v6")
        a("v_add_u32 v6, %d, v6" % L_Y)
        a("s_waitcnt vmcnt(0)")
        a("ds_write_b128 v6, v[20:23]")
        a("ds_write_b128 v6, v[24:27] offset:16")
        a.lg0()
        a("s_barrier")

    def final_x_load(self, xr, ar):
        a = self.a
        a("s_and_b32 s%d, s%d, 3" % (sT0, sW))
        a("s_lshl_b32 s%d, s%d, 4" % (sT0, sT0))
        a("s_lshl_b32 s%d, s%d, 6" % (sT1, sR))
        a("s_add_u32 s%d, s%d, s%d" % (sT0, sT0, sT1))
        a("s_lshl_b32 s%d, s%d, 10" % (sT0, sT0))
        a("s_lshl_b32 s%d, s%d, 7" % (sT1, sD))
        a("s_add_u32 s%d, s%d, s%d" % (sT0, sT0, sT1))
        a("s_lshr_b32 s%d, s%d, 2" % (sT1, sW))
        a("s_lshl_b32 s%d, s%d, 6" % (sT1, sT1))
        a("s_add_u32 s%d, s%d, s%d" % (sT0, sT0, sT1))
        a("v_lshrrev_b32 v2, 2, v1")
        a("v_lshlrev_b32 v2, 10, v2")
        a("v_and_b32 v3, 3, v1")
        a("v_lshl_add_u32 v2, v3, 4, v2")
        a("v_add_u32 v%d, s%d, v2" % (ar, sT0))
        a.vmem("buffer_load_dwordx4 v[%d:%d], v%d, s[%d:%d], 0 offen" % (xr, xr + 3, ar, S_X, S_X + 3), "xf")

    def u_slow(self):
        a = self.a
        a.label("L_uslow")
        a("s_lshl_b32 s%d, s%d, 12" % (sT0, sC))
        a("s_add_u32 s%d, s%d, 0x%x" % (sT0, sT0, F_H1))
        self.poll(sT0, 32, 1, 128)
        for i in range(4):
            a("buffer_load_dwordx4 v[%d:%d], v172, s[%d:%d], 0 offen offset:%d sc1" % (152 + 4 * i, 155 + 4 * i, S_WS, S_WS + 3, 1024 * i))
        a("s_waitcnt vmcnt(0)")
        for i in range(4):
            a("ds_write_b128 v174, v[%d:%d] offset:%d" % (152 + 4 * i, 155 + 4 * i, 1024 * i))
        a("s_waitcnt lgkmcnt(0)")
        a("s_branch L_uback")

    NEGM, RS, NMRS = 100, 101, 102
    def norm2(self, X, t):
        L = []
        L.append("v_lshlrev_b32 v%d, 16, v%d" % (t + 0, X))
        L.append("v_and_b32 v%d, v%d, v%d" % (t + 1, vMHI, X))
        L.append("v_lshlrev_b32 v%d, 16, v%d" % (t + 2, X + 1))
        L.append("v_and_b32 v%d, v%d, v%d" % (t + 3, vMHI, X + 1))
        if self.relax_ln:
            for i in range(4):
                L.append("v_fma_f32 v%d, v%d, v%d, v%d" % (t + i, t + i, self.RS, self.NMRS))
        else:
            for i in range(4):
                L.append("v_add_f32 v%d, v%d, v%d" % (t + i, t + i, self.NEGM))
            L.append("v_cvt_pk_bf16_f32 v%d, v%d, v%d" % (t + 4, t + 0, t + 1))
            L.append("v_cvt_pk_bf16_f32 v%d, v%d, v%d" % (t + 5, t + 2, t + 3))
            L.append("v_lshlrev_b32 v%d, 16, v%d" % (t + 0, t + 4))
            L.append("v_and_b32 v%d, v%d, v%d" % (t + 1, vMHI, t + 4))
            L.append("v_lshlrev_b32 v%d, 16, v%d" % (t + 2, t + 5))
            L.append("v_and_b32 v%d, v%d, v%d" % (t + 3, vMHI, t + 5))
            for i in range(4):
                L.append("v_mul_f32 v%d, v%d, v%d" % (t + i, t + i, self.RS))
        L.append("v_cvt_pk_bf16_f32 v%d, v%d, v%d" % (X, t + 0, t + 1))
        L.append("v_cvt_pk_bf16_f32 v%d, v%d, v%d" % (X + 1, t + 2, t + 3))
        return L

    def norm_chunk(self, j):
        a = self.a
        X = 20 + 8 * j
        for half in range(2):
            s1 = self.norm2(X + 4 * half, 104); s2 = self.norm2(X + 4 * half + 2, 110)
            for x, y in zip(s1, s2):
                a(x); a(y)
            a.lds("ds_write_b128 v116, v[%d:%d] offset:%d" % (X + 4 * half, X + 4 * half + 3, L_XN + (j % NXN) * 8192 + half * 1024), "xw")

    def h_first(self):
        a = self.a
        self.vm_m_first = a.vm
        a.vm = Q(["cpf"] if "codepf0" in self.exp else [])
        a.label("L_Hfirst")
        self.rot_calc()
        a("s_lshl_b32 s%d, s%d, 16" % (sT0, sR))
        a("s_lshl_b32 s%d, s%d, 14" % (sT1, sRW))
        a("s_add_u32 s%d, s%d, s%d" % (sT0, sT0, sT1))
        a("v_lshrrev_b32 v6, 2, v1")
        a("v_lshlrev_b32 v6, 10, v6")
        a("v_and_b32 v7, 3, v1")
        a("v_lshl_add_u32 v6, v7, 4, v6")
        a("v_add_u32 v6, s%d, v6" % sT0)
        a("s_lshl_b32 s%d, s%d, 7" % (sT0, sROT))
        a("s_waitcnt lgkmcnt(0)")
        a("s_mov_b64 s[8:9], s[64:65]")
        if self.stamps:
            a("s_memrealtime s[4:5]"); a("s_waitcnt lgkmcnt(0)"); a("v_writelane_b32 v255, s4, 0")
        for j in range(8):
            if j:
                a("s_add_u32 s%d, s%d, 128" % (sT0, sT0))
                a("s_and_b32 s%d, s%d, 1023" % (sT0, sT0))
            a.vmem("buffer_load_dwordx4 v[%d:%d], v6, s[%d:%d], s%d offen" % (20 + 8 * j, 23 + 8 * j, S_X, S_X + 3, sT0), "x%d" % j)
            a.vmem("buffer_load_dwordx4 v[%d:%d], v6, s[%d:%d], s%d offen offset:64" % (24 + 8 * j, 27 + 8 * j, S_X, S_X + 3, sT0), "x%d" % j)
        a("s_branch L_H")
        self.vm_h_first = a.vm

    def h_front(self):
        a = self.a
        a.vm = self.vm_h_first; a.lg_clear()
        self.p0_rest()
        a("s_waitcnt lgkmcnt(0)")
        if self.w2s:
            a("s_lshl_b32 s%d, s2, 13" % sT2)
            a("v_and_b32 v2, 255, v0")
            a("v_lshlrev_b32 v3, 4, v2")
            a("v_add_u32 v3, s%d, v3" % sT2)
            a("s_cmp_lt_u32 s2, 172")
            a("s_cselect_b32 s86, 0, 0x40000000")
            a.vmem("buffer_load_dwordx4 v[224:227], v3, s[%d:%d], s86 offen" % (S_W2, S_W2 + 3), "w2sl")
            a("v_add_u32 v3, 4096, v3")
            a.vmem("buffer_load_dwordx4 v[228:231], v3, s[%d:%d], s86 offen" % (S_W2, S_W2 + 3), "w2sl")
            a("v_bfe_u32 v4, v2, 3, 3")
            a("v_mul_u32_u24 v4, 176128, v4")
            a("v_lshrrev_b32 v5, 6, v2")
            a("v_lshl_add_u32 v4, v5, 7, v4")
            a("v_and_b32 v5, 7, v2")
            a("v_lshl_add_u32 v4, v5, 4, v4")
            a("s_lshl_b32 s%d, s2, 10" % sT2)
            a("s_add_u32 s%d, s%d, 0x%x" % (sT2, sT2, WS_W2S))
            a("v_add_u32 v232, s%d, v4" % sT2)
        if "codepf" in self.exp:
            a("s_getpc_b64 s[82:83]")
            a.label("L_pc")
            a("s_sub_u32 s82, s82, L_pc-%s" % KNAME)
            a("s_subb_u32 s83, s83, 0")
            a("v_lshlrev_b32 v2, 7, v1")
            a("s_lshl_b32 s84, s%d, 13" % sRW)
            a("v_add_u32 v2, s84, v2")
            a("v_min_u32 v2, L_codeend-%s, v2" % KNAME)
            a("v_mov_b32 v3, s83")
            a("v_add_co_u32 v2, vcc, s82, v2")
            a("v_addc_co_u32 v3, vcc, 0, v3, vcc")
            a.vmem("global_load_dword v244, v[2:3], off", "cpf")
        a("s_waitcnt lgkmcnt(0)")
        a("s_barrier")

        if "V3" in self.exp:
            self.w1_voffs()
            for f in self.w1_dma_ops(0) + self.w1_dma_ops(1): f()
        a("s_setprio 0")
        if not self.noflags:
            a("v_mov_b32 v7, 0")
        a("v_lshrrev_b32 v4, 2, v1")
        a("v_and_b32 v5, 3, v1")
        a("v_lshlrev_b32 v2, 1, v5")
        a("v_xor_b32 v4, v4, v2")
        a("v_lshlrev_b32 v4, 4, v4")
        a("v_lshl_add_u32 v4, v5, 8, v4")
        a("s_lshl_b32 s%d, s%d, 11" % (sT2, sRW))
        a("v_add_u32 v116, s%d, v4" % sT2)

    def h_ssm_load(self):
        a = self.a
        a("s_lshl_b32 s%d, s%d, 6" % (sT2, sC))
        a("s_lshl_b32 s%d, s%d, 1" % (sT1, sR))
        a("s_add_u32 s%d, s%d, s%d" % (sT2, sT2, sT1))
        a("s_lshl_b32 s%d, s%d, 12" % (sT2, sT2))
        a("v_and_b32 v3, 255, v0")
        a("v_lshlrev_b32 v3, 4, v3")
        a("v_add_u32 v2, s%d, v3" % sT2)
        a("v_add_u32 v4, -8, v2")
        for ch in range(2):
            a.vmem("buffer_load_dwordx2 v[%d:%d], v4, s[%d:%d], 0 offen" % (84 + 6 * ch, 85 + 6 * ch, S_SSM, S_SSM + 3), "ssm")
            a.vmem("buffer_load_dwordx4 v[%d:%d], v2, s[%d:%d], 0 offen" % (86 + 6 * ch, 89 + 6 * ch, S_SSM, S_SSM + 3), "ssm")
            if ch == 0:
                a("v_add_u32 v2, 4096, v2")
                a("v_add_u32 v4, 4096, v4")

    def h_stats(self):
        a = self.a
        X = 20
        for i in range(8): a("v_mov_b32 v%d, 0" % (104 + i))
        for i in range(64):
            if i % 8 == 0:
                a.wait_vm("x%d" % (i // 8))
                if i == 0: self.stamp(13)
            a("v_dot2_f32_bf16 v%d, v%d, v%d, v%d" % (104 + (i & 3), X + i, vONES, 104 + (i & 3)))
            a("v_dot2_f32_bf16 v%d, v%d, v%d, v%d" % (108 + (i & 3), X + i, X + i, 108 + (i & 3)))
        a("v_add_f32 v104, v104, v105"); a("v_add_f32 v106, v106, v107")
        a("v_add_f32 v108, v108, v109"); a("v_add_f32 v110, v110, v111")
        a("v_add_f32 v2, v104, v106"); a("v_add_f32 v3, v108, v110")
        for ctl in ("quad_perm:[1,0,3,2]", "quad_perm:[2,3,0,1]"):
            a("v_add_f32_dpp v2, v2, v2 %s row_mask:0xf bank_mask:0xf" % ctl)
            a("v_add_f32_dpp v3, v3, v3 %s row_mask:0xf bank_mask:0xf" % ctl)
        a("v_mul_f32 v2, 0x3b000000, v2")
        a("v_mul_f32 v3, 0x3b000000, v3")
        a("v_cvt_pk_bf16_f32 v4, v2, v2")
        a("v_fma_f32 v3, -v2, v2, v3")
        a("v_lshlrev_b32 v4, 16, v4")
        a("v_max_f32 v3, 0, v3")
        a("v_cvt_pk_bf16_f32 v3, v3, v3")
        a("v_lshlrev_b32 v3, 16, v3")
        a("v_add_f32 v3, 0x3727c5ac, v3")
        a("v_cvt_pk_bf16_f32 v3, v3, v3")
        a("v_lshlrev_b32 v3, 16, v3")
        a("v_sqrt_f32 v3, v3")
        a("v_cvt_pk_bf16_f32 v3, v3, v3")
        a("v_lshlrev_b32 v3, 16, v3")
        a("v_rcp_f32 v%d, v3" % self.RS)
        a("v_sub_f32 v%d, 0, v4" % self.NEGM)
        a("v_mul_f32 v%d, v%d, v%d" % (self.NMRS, self.NEGM, self.RS))
        a("v_lshrrev_b32 v6, 2, v1")
        a("s_lshl_b32 s%d, s%d, 4" % (sT2, sRW))
        a("v_add_u32 v6, s%d, v6" % sT2)
        a("v_lshlrev_b32 v5, 3, v6")
        a("v_add_u32 v5, %d, v5" % L_STATS)
        a("v_mov_b32 v2, v4")
        a("v_mov_b32 v3, v%d" % self.RS)
        a.lds("ds_write_b64 v5, v[2:3]", "st")

    def h_tbuild(self, ch):
        a = self.a
        D = 84 + 6 * ch
        E = 118
        for p in range(5):
            a("v_alignbit_b32 v%d, v%d, v%d, 16" % (E + p, D + p + 1, D + p))
        for p in range(4):
            a("v_mov_b32 v%d, v%d" % (124 + p, D + 1 + p))
            a("v_mov_b32 v%d, v%d" % (128 + p, E + 1 + p))
        a("v_and_b32 v3, 255, v0")
        a("v_lshlrev_b32 v3, 4, v3")
        a("v_add_u32 v3, %d, v3" % (L_T + ch * T_CH + 24))
        a("ds_write_b128 v3, v[118:121]")
        a("ds_write_b128 v3, v[124:127] offset:%d" % T_CP)
        a("ds_write_b128 v3, v[128:131] offset:%d" % (2 * T_CP))
        a("ds_write_b128 v3, v[%d:%d] offset:%d" % (D + 2, D + 5, 3 * T_CP))

    def w2flag_loads(self, tag):
        a = self.a
        for i in range(3):
            a("v_add_u32 v3, %d, v1" % (64 * i))
            if i == 2:
                a("v_cmp_gt_u32 vcc, 172, v3")
                a("v_cndmask_b32 v3, 0, v3, vcc")
            a("v_lshlrev_b32 v3, 7, v3")
            a("v_add_u32 v3, 0x%x, v3" % F_H4)
            ins = "buffer_load_dword v%d, v3, s[%d:%d], 0 offen sc1" % (100 + i, S_WS, S_WS + 3)
            if tag: a.vmem(ins, tag)
            else: a(ins)

    def w2flag_check(self):
        a = self.a
        for i in range(3): a("v_xor_b32 v%d, s%d, v%d" % (104 + i, sNONCE, 100 + i))
        a("v_or3_b32 v104, v104, v105, v106")
        a("v_cmp_ne_u32 vcc, 0, v104")

    def h_uload(self):
        a = self.a
        if self.noflags: a.wait_vm("ssm")
        if not self.noflags:
            dn = a.newlabel("L_h1ok")
            a.wait_vm("h1f")
            for i in range(4): a("v_xor_b32 v%d, s%d, v%d" % (96 + i, sNONCE, 96 + i))
            a("v_or3_b32 v96, v96, v97, v98")
            a("v_or_b32 v96, v96, v99")
            a("v_cmp_ne_u32 vcc, 0, v96")
            a("s_cbranch_vccz %s" % dn)
            a("s_lshl_b32 s%d, s%d, 12" % (sT0, sC))
            a("s_add_u32 s%d, s%d, 0x%x" % (sT0, sT0, F_H1))
            self.poll(sT0, 32, 4, 128)
            a.label(dn)
        self.stamp(3)
        a("s_lshl_b32 s%d, s%d, 6" % (sT0, sC))
        a("s_lshl_b32 s%d, s%d, 1" % (sT1, sR))
        a("s_add_u32 s%d, s%d, s%d" % (sT0, sT0, sT1))
        a("s_lshl_b32 s%d, s%d, 12" % (sT0, sT0))
        a("s_lshl_b32 s%d, s%d, 11" % (sT1, sRW))
        a("s_add_u32 s%d, s%d, s%d" % (sT0, sT0, sT1))
        a("v_lshlrev_b32 v4, 4, v1")
        a("v_add_u32 v5, s%d, v4" % sT0)
        a.vmem("buffer_load_dwordx4 v[20:23], v5, s[%d:%d], 0 offen sc1" % (S_WS, S_WS + 3), "u")
        a.vmem("buffer_load_dwordx4 v[24:27], v5, s[%d:%d], 0 offen offset:1024 sc1" % (S_WS, S_WS + 3), "u")
        self.h_tbuild(0)
        self.h_tbuild(1)
        a("v_lshlrev_b32 v4, 4, v1")
        a("s_lshr_b32 s%d, s%d, 1" % (sT0, sRW))
        a("s_mul_i32 s%d, s%d, %d" % (sT0, sT0, U_CH))
        a("s_and_b32 s%d, s%d, 1" % (sT1, sRW))
        a("s_lshl_b32 s%d, s%d, 11" % (sT2, sT1))
        a("s_add_u32 s%d, s%d, s%d" % (sT0, sT0, sT2))
        a("s_add_u32 s%d, s%d, %d" % (sT0, sT0, L_U))
        a("v_add_u32 v6, s%d, v4" % sT0)
        for i in range(4): a("v_mov_b32 v%d, 0" % (28 + i))
        a("s_cmp_eq_u32 s%d, 1" % sT1)
        a("s_cselect_b32 exec_lo, -1, 0")
        a("s_mov_b32 exec_hi, 0")
        a("ds_write_b128 v6, v[28:31] offset:2048")
        a("s_mov_b64 exec, -1")
        a.wait_vm("u")
        a("ds_write_b128 v6, v[20:23]")
        a("ds_write_b128 v6, v[24:27] offset:1024")

    def norm_seq(self, j):
        a = self.a
        X = 20 + 8 * j
        seq = []
        for half in range(2):
            s1 = self.norm2(X + 4 * half, 104); s2 = self.norm2(X + 4 * half + 2, 110)
            if "hnonorm" in self.exp and j >= 2:
                s1 = ["s_nop 0"] * 8; s2 = ["s_nop 0"] * 8
            for x, y in zip(s1, s2):
                seq.append(x); seq.append(y)
            if "wmid" in self.exp:
                seq.append(lambda half=half: a.lds("ds_write_b128 v116, v[%d:%d] offset:%d" % (X + 4 * half, X + 4 * half + 3, L_XN + (j % NXN) * 8192 + half * 1024), "xw%d" % j))
        if not ("hnowrite" in self.exp and j >= 2) and "wmid" not in self.exp:
            for half in range(2):
                seq.append(lambda half=half: a.lds("ds_write_b128 v116, v[%d:%d] offset:%d" % (X + 4 * half, X + 4 * half + 3, L_XN + (j % NXN) * 8192 + half * 1024), "xw%d" % j))
        return seq

    def h_gemm1_side(self):
        a = self.a
        if self.w2s:
            a.wait_vm("w2sl")
            a.vmem("buffer_store_dwordx4 v[224:227], v232, s[%d:%d], s86 offen sc1" % (S_WS, S_WS + 3), "w2st")
            a.vmem("buffer_store_dwordx4 v[228:231], v232, s[%d:%d], s86 offen offset:512 sc1" % (S_WS, S_WS + 3), "w2st")
        if "hprio" in self.exp: a("s_setprio 2")
        for x in self.norm_seq(0): self.run(x)
        s1 = self.norm_seq(1)
        h = len(s1) // 2
        for x in s1[:h]: self.run(x)
        for x in s1[h:]: self.run(x)
        if not self.noflags:
            a.vmem("buffer_load_dword v19, v7, s[%d:%d], 0 offen sc1" % (S_DBG, S_DBG + 3), "nonce")
        s2 = self.norm_seq(2)
        for x in s2[:h]: self.run(x)
        a.need_lds("xw0", "xw1")
        if "V3" in self.exp: a.wait_vm("w1c1")
        a("s_barrier")
        for x in s2[h:]: self.run(x)
        for j in range(8):
            if j + 3 <= 7:
                for x in self.norm_seq(j + 3): self.run(x)
            if j == self.pf2j and "pf2" in self.exp: self.line_prefetch("w2", 242)
            if j == 1: self.h_ssm_load()
            if j == (self.w2j if self.w2s else 4) and not self.noflags:
                self.get_nonce()
            if j == 5:
                if not self.noflags:
                    a("s_lshl_b32 s%d, s%d, 12" % (sT0, sC))
                    a("s_add_u32 s%d, s%d, 0x%x" % (sT0, sT0, F_H1))
                    a("v_and_b32 v2, 31, v1")
                    a("v_lshlrev_b32 v2, 7, v2")
                    a("v_add_u32 v2, s%d, v2" % sT0)
                if self.w2s:
                    skf = a.newlabel("L_w2f")
                    a("s_cmp_lg_u32 s%d, 0" % sRW)
                    a("s_cbranch_scc1 %s" % skf)
                    self.w2flag_loads(tag=None)
                    a.label(skf)
                if not self.noflags:
                    a.vmem("buffer_load_dwordx4 v[96:99], v2, s[%d:%d], 0 offen sc1" % (S_WS, S_WS + 3), "h1f")
            if j + 1 <= 6:
                if j + 2 <= 7 and "hnowrite" not in self.exp: a.need_lds("xw%d" % (j + 2))
                if j == self.w2j and self.w2s: a.wait_vm("w2st")
                a("s_barrier")
                if j == self.w2j and self.w2s:
                    sk = a.newlabel("L_w2c")
                    a("s_cmp_lt_u32 s2, 172")
                    a("s_cselect_b32 s4, s%d, 1" % sRW)
                    a("s_cmp_lg_u32 s4, 0")
                    a("s_cbranch_scc1 %s" % sk)
                    a("s_lshl_b32 s4, s2, 7")
                    a("s_add_u32 s%d, s4, 0x%x" % (sT2, F_H4))
                    q = list(a.vm.q)
                    self.flag_store(sT2, "flag", 2, 3)
                    a.vm.q = q
                    a.label(sk)
                if "itst" in self.exp: self.stamp(23 + j)
        if "hprio" in self.exp: a("s_setprio 0")
        self.h_uload()
        if self.w2s:
            lp = a.newlabel("L_w2p"); dn = a.newlabel("L_w2d")
            a("s_cmp_lg_u32 s%d, 0" % sRW)
            a("s_cbranch_scc1 %s" % dn)
            a("s_mov_b32 s%d, 0" % sT3)
            a.label(lp)
            self.w2flag_check()
            a("s_cbranch_vccz %s" % dn)
            self.w2flag_loads(tag=None)
            a("s_waitcnt vmcnt(0)")
            a("s_add_u32 s%d, s%d, 1" % (sT3, sT3))
            a("s_cmp_lt_u32 s%d, 100000" % sT3)
            a("s_cbranch_scc1 %s" % lp)
            if "pf4" in self.exp:
                lok = a.newlabel("L_w2ok")
                a.lines.pop()
                a("s_cbranch_scc1 %s" % lp)
            a.label(dn)
            if "pf4" in self.exp:
                skp = a.newlabel("L_pf4")
                a("s_cmp_lg_u32 s%d, 0" % sRW)
                a("s_cbranch_scc1 %s" % skp)
                a("s_lshr_b32 s%d, s2, 3" % sT0)
                if "map42" in self.exp:
                    a("s_mul_i32 s%d, s%d, %d" % (sT0, sT0, 172 * 128))
                    a("s_bfe_u32 s%d, s2, 0x10002" % sT1)
                    a("s_mul_i32 s%d, s%d, %d" % (sT1, sT1, 4 * 176128))
                    a("s_add_u32 s%d, s%d, s%d" % (sT0, sT0, sT1))
                    nl = 172
                else:
                    a("s_mul_i32 s%d, s%d, %d" % (sT0, sT0, 344 * 128))
                    nl = 344
                a("s_add_u32 s%d, s%d, 0x%x" % (sT0, sT0, WS_W2S))
                for i in range((nl + 63) // 64):
                    a("v_add_u32 v3, %d, v1" % (64 * i))
                    a("v_min_u32 v3, %d, v3" % (nl - 1))
                    a("v_lshlrev_b32 v3, 7, v3")
                    a("v_add_u32 v3, s%d, v3" % sT0)
                    a("buffer_load_dword v%d, v3, s[%d:%d], 0 offen sc1" % (240 + (i & 3), S_WS, S_WS + 3))
                a.label(skp)
        self.w2_voff()
        a.lg0()
        a("s_barrier")
        self.stamp(2)

    def h_gemm2(self):
        a = self.a
        HF, ACC = 20, 196
        WBUF = [228, 2]
        AB = 244
        PF = 10
        a("s_lshr_b32 s75, s%d, 1" % sRW)
        a("s_and_b32 s76, s%d, 1" % sRW)
        if "poller3" in self.exp:
            lp3 = a.newlabel("L_hp3"); lgo = a.newlabel("L_hgo")
            a("s_cmp_eq_u32 s%d, 3" % sRW)
            a("s_cbranch_scc1 %s" % lp3)
            q0 = list(a.vm.q)
            for m in range(9):
                a("s_add_u32 s%d, s%d, %d" % (sT0, sRW, 3 * m))
                if m == 8: a("s_min_u32 s%d, s%d, 25" % (sT0, sT0))
                a("s_lshr_b32 s%d, s%d, 1" % (sT1, sT0))
                a("s_and_b32 s%d, s%d, 1" % (sT0, sT0))
                a("s_mul_i32 s71, s%d, %d" % (sT0, NB_H))
                a("s_add_u32 s71, s71, s%d" % sT1)
                a("s_lshl_b32 s71, s71, 12")
                a("s_mul_i32 s70, s%d, 22" % sT0)
                a("s_add_u32 s70, s70, s%d" % sT1)
                a("s_lshl_b32 s70, s70, %d" % (12 if self.w2s else 15))
                self.w2_dma(71, L_B, 70, 0, "w2b")
            a("s_branch %s" % lgo)
            a.label(lp3)
            if not self.noflags:
                a("s_lshl_b32 s%d, s%d, 10" % (sT0, sR))
                a("s_add_u32 s%d, s%d, 0x%x" % (sT0, sT0, F_H2))
                self.poll(sT0, 8, 4, 128)
            a("v_mov_b32 v2, %d" % (L_SYNC + 60))
            a("v_mov_b32 v3, 1")
            a("ds_write_b32 v2, v3")
            a.label(lgo)
        else:
            for m in range(7):
                a("s_add_u32 s%d, s%d, %d" % (sT0, sRW, 4 * m))
                if m == 6: a("s_min_u32 s%d, s%d, 25" % (sT0, sT0))
                a("s_lshr_b32 s%d, s%d, 1" % (sT1, sT0))
                a("s_and_b32 s%d, s%d, 1" % (sT0, sT0))
                a("s_mul_i32 s71, s%d, %d" % (sT0, NB_H))
                a("s_add_u32 s71, s71, s%d" % sT1)
                a("s_lshl_b32 s71, s71, 12")
                a("s_mul_i32 s70, s%d, 22" % sT0)
                a("s_add_u32 s70, s70, s%d" % sT1)
                a("s_lshl_b32 s70, s70, %d" % (12 if self.w2s else 15))
                self.w2_dma(71, L_B, 70, 0, "w2b")
        a("s_lshl_b32 s%d, s%d, 2" % (sT2, sR))
        a("s_lshl_b32 s4, s76, 1")
        a("s_add_u32 s%d, s%d, s4" % (sT2, sT2))
        a("s_mul_i32 s%d, s%d, 44032" % (sT2, sT2))
        a("s_mul_i32 s4, s75, %d" % (22 * 1024))
        a("s_add_u32 s%d, s%d, s4" % (sT2, sT2))
        a("s_add_u32 s%d, s%d, 0x%x" % (sT2, sT2, WS_H))
        a("v_lshlrev_b32 v18, 4, v1")
        a("v_add_u32 v18, s%d, v18" % sT2)
        a("v_add_u32 v19, 44032, v18")
        a("v_lshrrev_b32 v2, 4, v1")
        a("v_and_b32 v3, 15, v1")
        a("v_lshrrev_b32 v3, 2, v3")
        a("v_lshrrev_b32 v4, 1, v2")
        a("v_lshlrev_b32 v4, 4, v4")
        a("v_and_b32 v5, 1, v2")
        a("v_lshl_add_u32 v4, v5, 2, v4")
        a("v_add_u32 v4, v4, v3")
        a("v_lshlrev_b32 v4, 7, v4")
        a("v_and_b32 v6, 1, v1")
        a("v_lshl_add_u32 v4, v6, 3, v4")
        a("v_lshlrev_b32 v5, 1, v5")
        a("v_lshrrev_b32 v6, 1, v3")
        a("v_add_u32 v5, v5, v6")
        a("v_lshlrev_b32 v5, 1, v5")
        a("v_and_b32 v6, 3, v1")
        a("v_lshrrev_b32 v6, 1, v6")
        a("s_mul_i32 s4, s75, %d" % B_HALF)
        if L_B: a("s_add_u32 s4, s4, %d" % L_B)
        for b in range(4):
            a("v_add_u32 v7, %d, v6" % (2 * b))
            a("v_xor_b32 v7, v7, v5")
            a("v_lshl_add_u32 v7, v7, 4, v4")
            a("v_add_u32 v%d, s4, v7" % (AB + b))
        a("s_mul_i32 s5, s75, %d" % (NA_H * 4096))
        a("s_add_u32 s5, s5, %d" % L_A)
        a("s_sub_u32 s77, s5, s4")
        a("s_sub_u32 s79, s4, s5")
        for i in range(32): a("v_mov_b32 v%d, 0" % (ACC + i))
        if "poller3" in self.exp:
            a("s_mov_b32 s5, %d" % (L_SYNC + 60))
            self.lds_wait(5, 1, 253, 254)
        else:
            self.stamp(5)
            if not self.noflags:
                a("s_lshl_b32 s%d, s%d, 10" % (sT0, sR))
                a("s_add_u32 s%d, s%d, 0x%x" % (sT0, sT0, F_H2))
                self.poll(sT0, 8, 4, 128)
        self.stamp(6)

        def hload(i):
            ops = []
            for t in range(2):
                def f(t=t):
                    r = HF + (i * 2 + t) * 4
                    so = i * 1024
                    if so < 4096:
                        a.vmem("buffer_load_dwordx4 v[%d:%d], v%d, s[%d:%d], 0 offen offset:%d sc1" % (r, r + 3, 18 + t, S_WS, S_WS + 3, so), "h%d" % i)
                    else:
                        if t == 0: a("s_mov_b32 s80, %d" % (so & ~4095))
                        a.vmem("buffer_load_dwordx4 v[%d:%d], v%d, s[%d:%d], s80 offen offset:%d sc1" % (r, r + 3, 18 + t, S_WS, S_WS + 3, so & 4095), "h%d" % i)
                ops.append(f)
            return ops

        def read_ops(i):
            buf = WBUF[i & 1]
            if i < 13: so = i * 4096
            elif i < 19: so = (i - 13) * 4096
            else: so = (i - 19) * 4096
            ops = []
            sw = {13: 77, 19: 79}.get(i)
            if sw:
                for b in range(4): ops.append("v_add_u32 v%d, s%d, v%d" % (AB + b, sw, AB + b))
            for b in range(4):
                for hh in range(2):
                    r0 = buf + 4 * b + 2 * hh
                    ops.append(lambda r0=r0, b=b, hh=hh: a.lds("ds_read_b64_tr_b16 v[%d:%d], v%d offset:%d" % (r0, r0 + 1, AB + b, so + hh * 1024), "w%d_%d" % (i, b)))
            return ops

        def mfma_ops(i):
            buf = WBUF[i & 1]
            ops = []
            for b in range(4):
                for t in range(2):
                    def f(b=b, t=t):
                        if b == 0 and t == 0:
                            a.wait_both("h%d" % i, ["w%d_%d" % (i, bb) for bb in range(4)])
                        acc = ACC + (b * 2 + t) * 4
                        hr = HF + (i * 2 + t) * 4
                        a("v_mfma_f32_16x16x32_bf16 v[%d:%d], v[%d:%d], v[%d:%d], v[%d:%d]" % (acc, acc + 3, buf + 4 * b, buf + 4 * b + 3, hr, hr + 3, acc, acc + 3))
                    ops.append(f)
            return ops

        allh = []
        for i in range(22): allh += hload(i)
        hp = 0
        for f in allh[:self.hinit]: f()
        hp = self.hinit
        a("s_waitcnt vmcnt(%d)" % self.hinit)
        self.m_sync(11, va=253, vb=254)
        self.stamp(19)
        for f in read_ops(0): self.run(f)
        last = a.newlabel("L_g2l")
        for i in range(22):
            if i == 12:
                a.lg0()
                a("s_barrier")
            if i == 18:
                a.lg0()
                a("s_barrier")
            if i == 4:
                a("v_mov_b32 v253, %d" % (L_SYNC + 56))
                a("v_mov_b32 v254, 1")
                a("s_mov_b64 exec, 1")
                a.lds("ds_add_u32 v253, v254", "sig")
                a("s_mov_b64 exec, -1")
            if i == 21:
                a("s_cmp_eq_u32 s75, 1")
                a("s_cbranch_scc1 %s" % last)
            fill = []
            if i < 21: fill += read_ops(i + 1)
            nl = self.hper if hp < 2 * (i + self.hwin) else 2
            nl = min(nl, len(allh) - hp)
            fill = allh[hp:hp + nl] + fill
            hp += nl
            interleave(a, mfma_ops(i), fill)
        a.label(last)
        a.lg0()
        self.stamp(22)
        a("v_and_b32 v2, 15, v1")
        a("v_lshrrev_b32 v3, 4, v1")
        a("v_mul_u32_u24 v2, 272, v2")
        a("v_lshl_add_u32 v2, v3, 4, v2")
        a("s_mul_i32 s4, s75, %d" % P_STRIDE)
        a("s_mul_i32 s5, s76, %d" % (32 * 272))
        a("s_add_u32 s4, s4, s5")
        a("s_add_u32 s4, s4, %d" % L_P)
        a("v_add_u32 v2, s4, v2")
        for b in range(4):
            for t in range(2):
                acc = ACC + (b * 2 + t) * 4
                a("ds_write_b128 v2, v[%d:%d] offset:%d" % (acc, acc + 3, t * 16 * 272 + b * 64))
        self.final_x_load(240, 244)
        a.lg0()
        a("s_barrier")

    def final(self):
        a = self.a
        P0 = L_P; P1 = L_P + P_STRIDE; YL = L_Y
        XR = 240; OA = 244
        a("s_and_b32 s%d, s%d, 3" % (sT0, sW))
        a("s_lshr_b32 s%d, s%d, 2" % (sT1, sW))
        a("v_lshrrev_b32 v2, 2, v1")
        a("v_and_b32 v3, 3, v1")
        a("s_lshl_b32 s4, s%d, 4" % sT0)
        a("v_add_u32 v2, s4, v2")
        a("v_mul_u32_u24 v4, 272, v2")
        a("v_lshl_add_u32 v4, v3, 5, v4")
        a("s_lshl_b32 s4, s%d, 7" % sT1)
        a("s_add_u32 s4, s4, %d" % P0)
        a("v_add_u32 v4, s4, v4")
        a("ds_read_b128 v[20:23], v4")
        a("ds_read_b128 v[24:27], v4 offset:16")
        a("ds_read_b128 v[28:31], v4 offset:%d" % (P1 - P0))
        a("ds_read_b128 v[32:35], v4 offset:%d" % (P1 - P0 + 16))
        a("v_lshlrev_b32 v6, 3, v2")
        a("v_add_u32 v6, %d, v6" % L_STATS)
        a("ds_read_b64 v[36:37], v6")
        a("v_lshrrev_b32 v7, 4, v1")
        a("v_lshlrev_b32 v7, 3, v7")
        a("v_and_b32 v8, 15, v1")
        a("v_lshrrev_b32 v8, 2, v8")
        a("v_add_u32 v7, v7, v8")
        a("s_lshl_b32 s4, s%d, 5" % sT1)
        a("v_add_u32 v7, s4, v7")
        a("v_mul_u32_u24 v7, 144, v7")
        a("v_and_b32 v8, 3, v1")
        a("v_lshl_add_u32 v7, v8, 3, v7")
        a("s_lshl_b32 s4, s%d, 5" % sT0)
        a("s_add_u32 s4, s4, %d" % YL)
        a("v_add_u32 v7, s4, v7")
        a("ds_read_b64_tr_b16 v[38:39], v7")
        a("ds_read_b64_tr_b16 v[40:41], v7 offset:%d" % (4 * 144))
        a("v_and_b32 v8, 3, v1")
        a("v_lshlrev_b32 v8, 4, v8")
        a("v_lshrrev_b32 v9, 2, v1")
        a("v_or_b32 v8, v8, v9")
        a("v_lshlrev_b32 v8, 2, v8")
        a("v_mov_b32 v10, 0xbfb8aa3b")
        a("v_mov_b32 v11, 1.0")
        a("s_waitcnt lgkmcnt(0)")
        for i in range(4):
            a("ds_bpermute_b32 v%d, v8, v%d" % (42 + i, 38 + i))
        for i in range(8):
            a("v_add_f32 v%d, v%d, v%d" % (20 + i, 20 + i, 28 + i))
        for i in range(4):
            a("v_cvt_pk_bf16_f32 v%d, v%d, v%d" % (28 + i, 20 + 2 * i, 21 + 2 * i))
        for i in range(4):
            a("v_alignbit_b32 v%d, v%d, 0, 16" % (20 + 2 * i, 28 + i))
            a("v_and_b32 v%d, v%d, v%d" % (21 + 2 * i, vMHI, 28 + i))
        for i in range(8):
            a("v_mul_f32 v%d, v10, v%d" % (48 + i, 20 + i))
        for i in range(8):
            a("v_exp_f32 v%d, v%d" % (48 + i, 48 + i))
        a("s_waitcnt vmcnt(0)")
        a("v_sub_f32 v12, 0, v36")
        for i in range(4):
            a("v_dot2_f32_bf16 v%d, v%d, v%d, v12" % (72 + 2 * i, XR + i, vONELO))
            a("v_dot2_f32_bf16 v%d, v%d, v%d, v12" % (73 + 2 * i, XR + i, vONEHI))
        for i in range(8):
            a("v_add_f32 v%d, v11, v%d" % (48 + i, 48 + i))
        for i in range(4):
            a("v_cvt_pk_bf16_f32 v%d, v%d, v%d" % (80 + i, 72 + 2 * i, 73 + 2 * i))
        for i in range(8):
            a("v_rcp_f32 v%d, v%d" % (48 + i, 48 + i))
        for i in range(4):
            a("v_alignbit_b32 v%d, v%d, 0, 16" % (72 + 2 * i, 80 + i))
            a("v_and_b32 v%d, v%d, v%d" % (73 + 2 * i, vMHI, 80 + i))
        for i in range(8):
            a("v_mul_f32 v%d, v%d, v37" % (72 + i, 72 + i))
        for i in range(8):
            a("v_mul_f32 v%d, v%d, v%d" % (20 + i, 20 + i, 48 + i))
        for i in range(4):
            a("v_cvt_pk_bf16_f32 v%d, v%d, v%d" % (80 + i, 72 + 2 * i, 73 + 2 * i))
        for i in range(4):
            a("v_cvt_pk_bf16_f32 v%d, v%d, v%d" % (28 + i, 20 + 2 * i, 21 + 2 * i))
        a("s_waitcnt lgkmcnt(0)")
        for i in range(4):
            a("v_and_b32 v%d, v%d, v%d" % (56 + 2 * i, vMLO, 42 + i))
            a("v_and_b32 v%d, v%d, v%d" % (57 + 2 * i, vMHI, 42 + i))
            a("v_and_b32 v%d, v%d, v%d" % (64 + 2 * i, vMLO, 28 + i))
            a("v_and_b32 v%d, v%d, v%d" % (65 + 2 * i, vMHI, 28 + i))
        for i in range(4):
            a("v_dot2_f32_bf16 v%d, v%d, v%d, 0" % (72 + 2 * i, 80 + i, 56 + 2 * i))
            a("v_dot2_f32_bf16 v%d, v%d, v%d, 0" % (73 + 2 * i, 80 + i, 57 + 2 * i))
        for i in range(4):
            a("v_alignbit_b32 v%d, v%d, 0, 16" % (88 + 2 * i, XR + i))
            a("v_and_b32 v%d, v%d, v%d" % (89 + 2 * i, vMHI, XR + i))
        for i in range(4):
            a("v_cvt_pk_bf16_f32 v%d, v%d, v%d" % (80 + i, 72 + 2 * i, 73 + 2 * i))
        for i in range(4):
            a("v_dot2_f32_bf16 v%d, v%d, v%d, 0" % (72 + 2 * i, 80 + i, 64 + 2 * i))
            a("v_dot2_f32_bf16 v%d, v%d, v%d, 0" % (73 + 2 * i, 80 + i, 65 + 2 * i))
        for i in range(4):
            a("v_cvt_pk_bf16_f32 v%d, v%d, v%d" % (80 + i, 72 + 2 * i, 73 + 2 * i))
        for i in range(4):
            a("v_dot2_f32_bf16 v%d, v%d, v%d, v%d" % (72 + 2 * i, 80 + i, vONELO, 88 + 2 * i))
            a("v_dot2_f32_bf16 v%d, v%d, v%d, v%d" % (73 + 2 * i, 80 + i, vONEHI, 89 + 2 * i))
        for i in range(4):
            a("v_cvt_pk_bf16_f32 v%d, v%d, v%d" % (80 + i, 72 + 2 * i, 73 + 2 * i))
        a("buffer_store_dwordx4 v[80:83], v%d, s[%d:%d], 0 offen" % (OA, S_OUT, S_OUT + 3))

    def build(self):
        a = self.a
        self.p0()
        self.m_front()
        self.stamp(1)
        self.m_prep()
        self.stamp(10)
        self.m_gemm1()
        self.stamp(4)
        self.m_conv()
        self.m_tail()
        a("s_branch L_final")
        a.label("L_H")
        self.h_front()
        self.stamp(1)
        self.h_stats()
        self.stamp(11)
        self.h_gemm1_side()
        self.h_gemm2()
        a.label("L_final")
        a.lg_clear()
        self.stamp(8)
        self.final()
        self.stamp(9)
        self.dump_stamps()
        a("s_waitcnt vmcnt(0)")
        a.label("L_end")
        a.label("L_codeend")
        a("s_endpgm")
        lines, n = hazard.fix(a.lines)
        self.nnops = n
        hdr = """; Kernarg layout: x,k,v,shift_k,ssm_k,ssm_D,B_x,w1,w2,out,debug,ws (8-byte pointers)
; @launch grid=(256,1,1) block=(512,1,1) lds=%d
.amdgcn_target "amdgcn-amd-amdhsa--gfx950"
.text
.globl %s
.p2align 8
.type %s,@function
%s:
""" % (LDS_SIZE, KNAME, KNAME, KNAME)
        ftr = """.section .rodata,"a"
.p2align 6
.amdhsa_kernel %s
  .amdhsa_next_free_vgpr 256
  .amdhsa_next_free_sgpr 102
  .amdhsa_accum_offset 256
  .amdhsa_group_segment_fixed_size 0
  .amdhsa_kernarg_size 96
  .amdhsa_user_sgpr_count 2
  .amdhsa_user_sgpr_kernarg_segment_ptr 1
  .amdhsa_system_sgpr_workgroup_id_x 1
.end_amdhsa_kernel
""" % KNAME
        return hdr + "\n".join(lines) + "\n" + ftr

if __name__ == "__main__":
    import argparse
    ap = argparse.ArgumentParser()
    ap.add_argument("-o", default="k.s")
    ap.add_argument("--stamps", action="store_true")
    ap.add_argument("--noflags", action="store_true")
    ap.add_argument("--exp", default="")
    args = ap.parse_args()
    g = Gen(stamps=args.stamps, noflags=args.noflags, exp=args.exp)
    txt = g.build()
    open(args.o, "w").write(txt)
    print("wrote", args.o, len(txt.splitlines()), "lines; hazard nops:", g.nnops)
```

```python
import sys
from emit import *
import hazard

KNAME = "recurrent_scan__ssm_conv_h3__dense_activation_relu__prompt_kernel"

WS_KVT = 0
WS_YT = 2 << 20
WS_H = 4 << 20
WS_FLAG = 10 << 20
F_H1 = WS_FLAG
F_H2 = WS_FLAG + 32768
F_H3 = WS_FLAG + 65536
F_H4 = WS_FLAG + 98304
WS_STAMP = WS_FLAG + (256 << 10)
WS_W2S = 12 << 20
WS_SIZE = 16 << 20

L_XN = 0
NXN = 4
L_W1 = 32768
W1_SLOT = 24576
NW1 = 5
L_PREP = L_W1 + 4 * W1_SLOT
L_A = L_W1 + 3 * W1_SLOT
NA_H = 6
L_T = L_A + 8
T_CH = 16640
T_CP = 4160
L_U = L_A + 33408
U_CH = 4608
L_B = 0
NB_H = 13
B_HALF = NB_H * 4096
L_Y = 16384
L_P = L_B + 7 * 4096
P_STRIDE = B_HALF
L_STATS = 161792
L_SYNC = 162304
LDS_SIZE = 163840
assert L_U % 16 == 0 and L_U + 2 * U_CH <= L_W1 + 5 * W1_SLOT and L_T + 2 * T_CH <= L_U
assert L_A + 2 * NA_H * 4096 <= L_STATS and 2 * B_HALF <= L_A and L_W1 + NW1 * W1_SLOT <= L_STATS

S_X, S_K, S_V, S_W1, S_W2, S_OUT, S_SSM, S_WS, S_SH, S_DBG = 8, 12, 16, 20, 24, 28, 32, 36, 40, 44
sR, sC, sW, sNONCE = 48, 49, 50, 51
sF0, sBP, sNB = 52, 53, 54
sT0, sT1, sT2, sT3 = 55, 56, 57, 58
sRW = 59
sEX = 60
sROT = 62
sDP = 64
sDD = 66
sM0B = 67
sP0, sP1 = 68, 69
sUOK = 72
sID = 81
sD = 85
sINV1, sINV2 = 73, 74
vMLO, vMHI, vONELO, vONEHI, vONES = 248, 249, 250, 251, 252

def merge(*lists):
    lists = [l for l in lists if l]
    tot = sum(len(l) for l in lists)
    out = []; idx = [0] * len(lists)
    for s in range(tot):
        best = min((i for i in range(len(lists)) if idx[i] < len(lists[i])), key=lambda i: (idx[i] + 0.5) / len(lists[i]))
        out.append(lists[best][idx[best]]); idx[best] += 1
    return out

class Gen:
    def __init__(self, stamps=False, noflags=False, exp=""):
        self.exp = set(exp.split(",")) if exp else set()
        self.a = Asm()
        self.stamps = stamps
        self.noflags = noflags
        self.relax_ln = "relax_ln" in self.exp
        self.stampset = None
        self.h2n = 75
        self.h1j = 0
        self.w2p1 = 7
        for e in self.exp:
            if e.startswith('p1='): self.w2p1 = int(e[3:])
        for e in self.exp:
            if e.startswith('h1j='): self.h1j = int(e[4:])
        self.w2j = 0
        self.w2s = 'w2s' in self.exp
        self.KS = 4096 if self.w2s else 32768
        self.pf2j = 0
        for e in self.exp:
            if e.startswith('pj='): self.pf2j = int(e[3:])
            if e.startswith('h2n='): self.h2n = int(e[4:])
        self.hwin = 22; self.hper = 6; self.hinit = 12
        for e in self.exp:
            if e.startswith('hw='): self.hwin, self.hper, self.hinit = [int(x) for x in e[3:].split('+')]
        for e in self.exp:
            if e.startswith("st="):
                self.stampset = set(int(x) for x in e[3:].split("+"))

    def stamp(self, idx):
        if not self.stamps: return
        if self.stampset is not None and idx not in self.stampset: return
        a = self.a
        a("s_memrealtime s[4:5]")
        if "clk" in self.exp and idx in (14, 2, 4, 16):
            a("s_memtime s[6:7]")
        a.lg0()
        a("v_writelane_b32 v255, s4, %d" % idx)
        if "clk" in self.exp and idx in (14, 2, 4, 16):
            a("v_writelane_b32 v255, s6, %d" % {14: 29, 2: 30, 4: 31, 16: 15}[idx])

    def dump_stamps(self):
        if not self.stamps: return
        a = self.a
        if "entry" in self.exp:
            a("v_writelane_b32 v255, s90, 31")
        if "dbgst" in self.exp:
            sk = a.newlabel("L_ds")
            a("s_or_b32 s4, s2, s%d" % sW)
            a("s_cmp_lg_u32 s4, 0")
            a("s_cbranch_scc1 %s" % sk)
            a("v_readlane_b32 s4, v255, 0")
            a("s_nop 3")
            a("v_subrev_u32 v3, s4, v255")
            order = [12, 10, 14, 2, 4, 16, 17, 18, 7, 8, 9]
            for k, i in enumerate(order):
                a("v_readlane_b32 s5, v3, %d" % i)
                a("s_nop 3")
                a("v_mov_b32 v4, s5")
                a("v_mov_b32 v5, %d" % (4 * (k + 1)))
                a("s_mov_b64 exec, 1")
                a("buffer_store_dword v4, v5, s[%d:%d], 0 offen" % (S_DBG, S_DBG + 3))
                a("s_mov_b64 exec, -1")
            a.label(sk)
        a("s_lshl_b32 s%d, s2, 3" % sT0)
        a("s_add_u32 s%d, s%d, s%d" % (sT0, sT0, sW))
        a("s_lshl_b32 s%d, s%d, 7" % (sT0, sT0))
        a("s_add_u32 s%d, s%d, 0x%x" % (sT0, sT0, WS_STAMP))
        a("v_lshlrev_b32 v2, 2, v1")
        a("v_add_u32 v2, s%d, v2" % sT0)
        a("s_mov_b32 exec_lo, -1")
        a("s_mov_b32 exec_hi, 0")
        a("buffer_store_dword v255, v2, s[%d:%d], 0 offen" % (S_WS, S_WS + 3))
        a("s_mov_b64 exec, -1")

    def run(self, x):
        if callable(x): x()
        else: self.a(x)

    def spread(self, seq, extra):
        a = self.a
        if not extra:
            for x in seq: self.run(x)
            return
        step = max(1, len(seq) // (len(extra) + 1))
        k = 0
        for i, ins in enumerate(seq):
            self.run(ins)
            if (i + 1) % step == 0 and k < len(extra):
                self.run(extra[k]); k += 1
        while k < len(extra):
            self.run(extra[k]); k += 1

    def map_rc(self):
        a = self.a
        if "map42" in self.exp:
            a("s_and_b32 s%d, s2, 3" % sR)
            a("s_lshl_b32 s%d, s%d, 3" % (sR, sR))
            a("s_bfe_u32 s3, s2, 0x30003")
            a("s_add_u32 s%d, s%d, s3" % (sR, sR))
            a("s_bfe_u32 s%d, s2, 0x10002" % sC)
            a("s_lshl_b32 s%d, s%d, 2" % (sC, sC))
            a("s_lshr_b32 s3, s2, 6")
            a("s_add_u32 s%d, s%d, s3" % (sC, sC))
        else:
            a("s_and_b32 s%d, s2, 7" % sR)
            a("s_lshr_b32 s3, s2, 6")
            a("s_lshl_b32 s3, s3, 3")
            a("s_add_u32 s%d, s%d, s3" % (sR, sR))
            a("s_bfe_u32 s%d, s2, 0x30003" % sC)

    def rot_calc(self):
        a = self.a
        if "map42" in self.exp:
            a("s_lshl_b32 s%d, s%d, 1" % (sT0, sC))
            a("s_add_u32 s%d, s%d, s%d" % (sT0, sT0, sR))
            a("s_and_b32 s%d, s%d, 7" % (sROT, sT0))
        else:
            a("s_lshr_b32 s%d, s%d, 3" % (sT0, sR))
            a("s_lshl_b32 s%d, s%d, 1" % (sT0, sT0))
            a("s_add_u32 s%d, s%d, s%d" % (sT0, sT0, sC))
            a("s_add_u32 s%d, s%d, s%d" % (sT0, sT0, sR))
            a("s_and_b32 s%d, s%d, 7" % (sROT, sT0))
        if "norot" in self.exp: a("s_mov_b32 s%d, 0" % sROT)

    def p0(self):
        a = self.a
        if self.stamps and "entry" in self.exp:
            a("s_memrealtime s[90:91]")
        a("s_load_dwordx8 s[64:71], s[0:1], 0")
        a("s_cmp_ge_u32 s2, 256")
        a("s_cbranch_scc1 L_end")
        if self.stamps: a("v_mov_b32 v255, 0")
        a("v_lshrrev_b32 v2, 6, v0")
        a("v_and_b32 v1, 63, v0")
        if "codepf0" in self.exp:
            a("s_getpc_b64 s[82:83]")
            a.label("L_pc")
            a("s_sub_u32 s82, s82, L_pc-%s" % KNAME)
            a("s_subb_u32 s83, s83, 0")
            a("v_and_b32 v4, 255, v0")
            a("v_lshlrev_b32 v4, 7, v4")
            a("v_min_u32 v4, L_codeend-%s, v4" % KNAME)
            a("v_mov_b32 v5, s83")
            a("v_add_co_u32 v4, vcc, s82, v4")
            a("v_addc_co_u32 v5, vcc, 0, v5, vcc")
            a.vmem("global_load_dword v244, v[4:5], off", "cpf")
        self.map_rc()
        a("v_readfirstlane_b32 s%d, v2" % sW)
        a("s_mov_b32 s10, 0x200000")
        a("s_mov_b32 s11, 0x00020000")
        a("s_mov_b32 s14, 0x200000")
        a("s_mov_b32 s15, 0x00020000")
        a("s_mov_b32 s18, 0x200000")
        a("s_mov_b32 s19, 0x00020000")
        a("s_movk_i32 s42, 0x1000")
        a("s_mov_b32 s43, 0x00020000")
        a("s_and_b32 s%d, s%d, 3" % (sRW, sW))
        a("s_cmp_ge_u32 s%d, 4" % sW)
        a("s_cbranch_scc1 L_Hfirst")

    def p0_rest(self):
        a = self.a
        for dst, off in ((S_W1, 56), (S_SSM, 32), (S_WS, 88), (S_DBG, 80), (S_W2, 64), (S_OUT, 72), (sDP, 40)):
            a("s_load_dwordx2 s[%d:%d], s[0:1], %d" % (dst, dst + 1, off))
        for dst, size in ((S_W1, 1409024), (S_SSM, 2097152), (S_WS, WS_SIZE), (S_DBG, 256), (S_W2, 1409024), (S_OUT, 2097152)):
            a("s_mov_b32 s%d, 0x%x" % (dst + 2, size))
            a("s_mov_b32 s%d, 0x00020000" % (dst + 3))
        if "dshift" in self.exp:
            a("s_add_u32 s%d, s%d, 1" % (sD, sC))
            a("s_and_b32 s%d, s%d, 7" % (sD, sD))
        else:
            a("s_mov_b32 s%d, s%d" % (sD, sC))
        a("s_lshl_b32 s%d, s%d, 5" % (sID, sC))
        a("s_add_u32 s%d, s%d, s%d" % (sID, sID, sR))
        a("s_mul_i32 s%d, s%d, 6" % (sBP, sC))
        a("s_sub_i32 s%d, s%d, 3" % (sT0, sC))
        a("s_max_i32 s%d, s%d, 0" % (sT0, sT0))
        a("s_sub_u32 s%d, s%d, s%d" % (sBP, sBP, sT0))
        a("s_lshl_b32 s%d, s%d, 5" % (sF0, sBP))
        a("s_cmp_lt_u32 s%d, 3" % sC)
        a("s_cselect_b32 s%d, 12, 10" % sNB)
        a("v_mov_b32 v%d, 0xffff" % vMLO)
        a("v_mov_b32 v%d, 0xffff0000" % vMHI)
        a("v_mov_b32 v%d, 0x3f80" % vONELO)
        a("v_mov_b32 v%d, 0x3f800000" % vONEHI)
        a("v_mov_b32 v%d, 0x3f803f80" % vONES)
        a("s_mov_b32 s%d, 0x05040100" % sP0)
        a("s_mov_b32 s%d, 0x07060302" % sP1)
        a("v_and_b32 v3, 15, v0")
        a("v_lshlrev_b32 v3, 2, v3")
        a("v_add_u32 v3, %d, v3" % L_SYNC)
        a("v_mov_b32 v4, 0")
        a("ds_write_b32 v3, v4")

    def w1_dma_ops(self, j):
        a = self.a
        slot = j % NW1
        ops = []
        def head():
            a("s_add_u32 s%d, s%d, %d" % (sT1, sROT, j))
            a("s_and_b32 s%d, s%d, 7" % (sT1, sT1))
            a("s_mul_i32 s%d, s%d, %d" % (sT1, sT1, 64 * 2752))
            a("s_add_u32 m0, s%d, %d" % (sM0B, slot * W1_SLOT))
            a.vmem("buffer_load_dwordx4 v12, s[%d:%d], s%d offen lds" % (S_W1, S_W1 + 3, sT1), "w1c%d" % j)
        ops.append(head)
        for i in range(1, 6):
            def nxt(i=i):
                a("s_add_u32 m0, s%d, %d" % (sM0B, slot * W1_SLOT + 1024 * i))
                a.vmem("buffer_load_dwordx4 v%d, s[%d:%d], s%d offen lds" % (12 + i, S_W1, S_W1 + 3, sT1), "w1c%d" % j)
            ops.append(nxt)
        return ops

    def w1_voffs(self):
        a = self.a
        V = 12
        a("s_mul_i32 s%d, s%d, %d" % (sT0, sRW, 16 * 2752))
        a("s_lshl_b32 s%d, s%d, 1" % (sT1, sF0))
        a("s_add_u32 s%d, s%d, s%d" % (sT0, sT0, sT1))
        a("s_lshl_b32 s%d, s%d, 1" % (sT1, sNB))
        a("v_mov_b32 v7, 0x40000000")
        for i in range(6):
            a("v_add_u32 v2, %d, v1" % (64 * i))
            a("v_mul_u32_u24 v3, 2731, v2")
            a("v_lshrrev_b32 v3, 16, v3")
            a("v_mul_u32_u24 v4, 24, v3")
            a("v_sub_u32 v4, v2, v4")
            a("v_and_b32 v5, 2, v3")
            a("v_lshrrev_b32 v6, 1, v3")
            a("v_and_b32 v6, 4, v6")
            a("v_or_b32 v5, v5, v6")
            a("v_xor_b32 v4, v4, v5")
            a("v_mul_u32_u24 v5, 2752, v3")
            a("v_lshl_add_u32 v5, v4, 4, v5")
            a("v_add_u32 v5, s%d, v5" % sT0)
            a("v_cmp_gt_u32 vcc, s%d, v4" % sT1)
            a("v_cndmask_b32 v%d, v7, v5, vcc" % (V + i))
        a("s_mul_i32 s%d, s%d, %d" % (sM0B, sRW, 16 * 384))
        a("s_add_u32 s%d, s%d, %d" % (sM0B, sM0B, L_W1))

    def line_prefetch(self, which, vd):
        a = self.a
        a("s_lshr_b32 s%d, s2, 3" % sT0)
        a("v_and_b32 v2, 255, v0")
        if "map42" not in self.exp:
            srd = S_W1 if which == "w1" else S_W2
            a("s_mul_i32 s%d, s%d, %d" % (sT0, sT0, 344 * 128))
            a("v_lshlrev_b32 v3, 7, v2")
            a("v_add_u32 v3, s%d, v3" % sT0)
            a.vmem("buffer_load_dword v%d, v3, s[%d:%d], 0 offen" % (vd, srd, srd + 3), "pf")
            a("v_cmp_gt_u32 vcc, %d, v2" % (344 - 256))
            a("v_add_u32 v3, 32768, v3")
            a("v_mov_b32 v4, 0x40000000")
            a("v_cndmask_b32 v3, v4, v3, vcc")
            a.vmem("buffer_load_dword v%d, v3, s[%d:%d], 0 offen" % (vd + 1, srd, srd + 3), "pf")
        elif which == "w2":
            a("s_mul_i32 s%d, s%d, 43" % (sT0, sT0))
            a("s_bfe_u32 s%d, s2, 0x10002" % sT1)
            a("s_lshl_b32 s%d, s%d, 9" % (sT1, sT1))
            a("s_lshl_b32 s%d, s%d, 10" % (sT0, sT0))
            a("s_add_u32 s%d, s%d, s%d" % (sT0, sT0, sT1))
            a("v_lshrrev_b32 v3, 2, v2")
            a("v_lshlrev_b32 v3, 10, v3")
            a("v_and_b32 v4, 3, v2")
            a("v_lshl_add_u32 v3, v4, 7, v3")
            a("v_add_u32 v3, s%d, v3" % sT0)
            a("v_cmp_gt_u32 vcc, 172, v2")
            a("v_mov_b32 v4, 0x40000000")
            a("v_cndmask_b32 v3, v4, v3, vcc")
            a.vmem("buffer_load_dword v%d, v3, s[%d:%d], 0 offen" % (vd, S_W2, S_W2 + 3), "pf")
        else:
            a("s_lshl_b32 s%d, s%d, 4" % (sT0, sT0))
            a("s_mul_i32 s%d, s%d, 2752" % (sT0, sT0))
            a("s_bfe_u32 s%d, s2, 0x10002" % sT1)
            a("s_mul_i32 s%d, s%d, 1472" % (sT1, sT1))
            a("s_add_u32 s%d, s%d, s%d" % (sT0, sT0, sT1))
            a("v_mul_u32_u24 v3, 5462, v2")
            a("v_lshrrev_b32 v3, 16, v3")
            a("v_mul_u32_u24 v4, 12, v3")
            a("v_sub_u32 v4, v2, v4")
            a("v_mul_u32_u24 v3, 2752, v3")
            a("v_lshl_add_u32 v3, v4, 7, v3")
            a("v_add_u32 v3, s%d, v3" % sT0)
            a("v_cmp_gt_u32 vcc, 192, v2")
            a("v_mov_b32 v4, 0x40000000")
            a("v_cndmask_b32 v3, v4, v3, vcc")
            a.vmem("buffer_load_dword v%d, v3, s[%d:%d], 0 offen" % (vd, S_W1, S_W1 + 3), "pf")

    def m_front(self):
        a = self.a
        a("v_lshrrev_b32 v3, 5, v0")
        a("v_and_b32 v4, 31, v0")
        a("s_lshl_b32 s%d, s%d, 16" % (sT0, sR))
        a("s_lshl_b32 s%d, s%d, 7" % (sT1, sC))
        a("s_add_u32 s%d, s%d, s%d" % (sT0, sT0, sT1))
        a("v_lshlrev_b32 v2, 13, v3")
        a("v_lshl_add_u32 v2, v4, 2, v2")
        a("v_add_u32 v2, s%d, v2" % sT0)
        a("v_add_u32 v5, 0xfffff400, v2")
        a("v_add_u32 v6, 0xfffff800, v2")
        a("v_add_u32 v7, 0xfffffc00, v2")
        a("v_add_u32 v8, 4096, v2")
        a("s_lshl_b32 s%d, s%d, 9" % (sT2, sC))
        a("v_lshlrev_b32 v9, 4, v4")
        a("v_add_u32 v9, s%d, v9" % sT2)
        a.lg0()
        a("s_mov_b64 s[12:13], s[66:67]")
        a("s_mov_b64 s[16:17], s[68:69]")
        a("s_mov_b64 s[40:41], s[70:71]")
        a("s_mov_b64 s[8:9], s[64:65]")
        if self.stamps:
            a("s_memrealtime s[4:5]"); a.lg0(); a("v_writelane_b32 v255, s4, 0")
        K, V, SH = 20, 32, 40
        for t, r in enumerate((5, 6, 7)):
            a.vmem("buffer_load_dword v%d, v%d, s[%d:%d], 0 offen" % (K + t, r, S_K, S_K + 3), "prep")
        for t in range(8):
            a.vmem("buffer_load_dword v%d, v%d, s[%d:%d], 0 offen offset:%d" % (K + 3 + t, 2 if t < 4 else 8, S_K, S_K + 3, 1024 * (t & 3)), "prep")
        a.vmem("buffer_load_dwordx4 v[40:43], v9, s[%d:%d], 0 offen" % (S_SH, S_SH + 3), "prep")
        for t in range(8):
            a.vmem("buffer_load_dword v%d, v%d, s[%d:%d], 0 offen offset:%d" % (V + t, 2 if t < 4 else 8, S_V, S_V + 3, 1024 * (t & 3)), "prep")
        a("s_branch L_Mrest")
        self.h_first()
        a.label("L_Mrest")
        a.vm = self.vm_m_first
        self.rot_calc()
        self.p0_rest()
        a("s_waitcnt lgkmcnt(0)")
        a("s_barrier")
        if "pfM" in self.exp:
            self.line_prefetch("w1", 240)
        if not self.noflags:
            a("s_or_b32 s%d, s2, s%d" % (sT1, sW))
            a("s_cmp_lg_u32 s%d, 0" % sT1)
            a("s_cbranch_scc1 L_nononce")
            a("s_memrealtime s[4:5]")
            a("s_waitcnt lgkmcnt(0)")
            a("s_or_b32 s4, s4, 1")
            a("v_mov_b32 v2, s4")
            a("v_mov_b32 v3, 0")
            a("s_mov_b64 exec, 1")
            a("buffer_store_dword v2, v3, s[%d:%d], 0 offen sc1" % (S_DBG, S_DBG + 3))
            a("s_mov_b64 exec, -1")
            a.label("L_nononce")
        self.w1_voffs()
        self.m_gemm1_setup()
        a("s_lshl_b32 s%d, s%d, 7" % (sT0, sC))
        a("s_lshl_b32 s%d, s%d, 2" % (sT1, sR))
        a("s_add_u32 s%d, s%d, s%d" % (sT0, sT0, sT1))
        a("s_load_dword s%d, s[%d:%d], s%d" % (sDD, sDP, sDP + 1, sT0))

    def m_gemm1_setup(self):
        a = self.a
        AX = 8; AW = [9, 10, 11]
        a("v_and_b32 v2, 15, v1")
        a("v_lshrrev_b32 v3, 4, v1")
        a("v_lshlrev_b32 v4, 1, v3")
        a("v_xor_b32 v4, v2, v4")
        a("v_lshlrev_b32 v4, 4, v4")
        a("v_lshl_add_u32 v%d, v3, 8, v4" % AX)
        a("v_lshrrev_b32 v5, 2, v2")
        a("v_lshl_add_u32 v4, v3, 3, v5")
        a("v_mul_u32_u24 v4, 384, v4")
        a("v_and_b32 v6, 3, v1")
        a("v_lshl_add_u32 v4, v6, 3, v4")
        a("v_lshrrev_b32 v5, 1, v5")
        a("v_and_b32 v6, 1, v3")
        a("v_lshl_add_u32 v5, v6, 1, v5")
        a("s_mul_i32 s%d, s%d, 3" % (sT0, sRW))
        for b in range(3):
            a("s_add_u32 s%d, s%d, %d" % (sT1, sT0, b))
            a("v_xor_b32 v6, s%d, v5" % sT1)
            a("v_lshl_add_u32 v6, v6, 5, v4")
            a("v_add_u32 v%d, %d, v6" % (AW[b], L_W1))
        a("v_lshlrev_b32 v5, 4, v2")
        a("v_lshrrev_b32 v4, 1, v3")
        a("v_lshl_add_u32 v5, v4, 8, v5")
        a("v_and_b32 v4, 1, v3")
        if "st16" in self.exp:
            a("v_mul_u32_u24 v4, 44032, v4")
            a("v_add_u32 v5, v5, v4")
        else:
            a("v_lshl_add_u32 v5, v4, 3, v5")
        a("s_lshr_b32 s%d, s%d, 4" % (sBP, sF0))
        a("s_mul_i32 s%d, s%d, %d" % (sT0, sR, 4 * 44032))
        a("s_mul_i32 s%d, s%d, 3" % (sT1, sRW))
        a("s_add_u32 s%d, s%d, s%d" % (sT2, sT1, sBP))
        a("s_lshl_b32 s%d, s%d, 9" % (sT2, sT2))
        a("s_add_u32 s%d, s%d, s%d" % (sT0, sT0, sT2))
        a("s_add_u32 s%d, s%d, 0x%x" % (sT0, sT0, WS_H))
        a("v_add_u32 v168, s%d, v5" % sT0)
        for tb in range(1, 4):
            a("v_add_u32 v%d, %d, v168" % (168 + tb, 44032 * tb))
        for b, sr_ in ((1, sINV1), (2, sINV2)):
            a("s_add_u32 s%d, s%d, %d" % (sT2, sT1, b))
            a("s_cmp_lt_u32 s%d, s%d" % (sT2, sNB))
            a("s_cselect_b32 s%d, 0, 0x40000000" % sr_)

    def m_prep(self):
        a = self.a
        K, V, SH = 20, 32, 40
        WL, WH = 44, 48
        PL, PH = 52, 56
        PP, AC = 60, 64
        TA, TB = 68, 72
        KV = 76
        OUT = 92
        dma = []
        if "V2" in self.exp:
            for f in self.w1_dma_ops(0) + self.w1_dma_ops(1): f()
        if "V4" in self.exp:
            for f in self.w1_dma_ops(0): f()
            dma = self.w1_dma_ops(1) + self.w1_dma_ops(2)
        if "V5" in self.exp:
            for f in self.w1_dma_ops(0) + self.w1_dma_ops(1): f()
            dma = self.w1_dma_ops(2)
        a.wait_vm("prep")
        self.stamp(12)
        seq = []; e = seq.append
        e("v_and_b32 v%d, v%d, v%d" % (WL + 0, vMLO, SH + 0)); e("v_lshrrev_b32 v%d, 16, v%d" % (WL + 1, SH + 0))
        e("v_and_b32 v%d, v%d, v%d" % (WL + 2, vMLO, SH + 1)); e("v_lshrrev_b32 v%d, 16, v%d" % (WL + 3, SH + 1))
        e("v_lshlrev_b32 v%d, 16, v%d" % (WH + 0, SH + 2)); e("v_and_b32 v%d, v%d, v%d" % (WH + 1, vMHI, SH + 2))
        e("v_lshlrev_b32 v%d, 16, v%d" % (WH + 2, SH + 3)); e("v_and_b32 v%d, v%d, v%d" % (WH + 3, vMHI, SH + 3))
        for hb in range(2):
            r0 = 4 * hb
            if "relax_prep" in self.exp:
                for r in range(4):
                    e("v_dot2_f32_bf16 v%d, v%d, v%d, 0" % (PL + r, K + r0 + r, WL + 3))
                    e("v_dot2_f32_bf16 v%d, v%d, v%d, 0" % (PH + r, K + r0 + r, WH + 3))
                for j in (2, 1, 0):
                    for r in range(4):
                        e("v_dot2_f32_bf16 v%d, v%d, v%d, v%d" % (PL + r, K + 3 + r0 + r - j, WL + j, PL + r))
                        e("v_dot2_f32_bf16 v%d, v%d, v%d, v%d" % (PH + r, K + 3 + r0 + r - j, WH + j, PH + r))
                for r in range(4):
                    e("v_cvt_pk_bf16_f32 v%d, v%d, v%d" % (AC + r, PL + r, PH + r))
            else:
                for j in (3, 2, 1, 0):
                    for r in range(4):
                        e("v_dot2_f32_bf16 v%d, v%d, v%d, 0" % (PL + r, K + 3 + r0 + r - j, WL + j))
                        e("v_dot2_f32_bf16 v%d, v%d, v%d, 0" % (PH + r, K + 3 + r0 + r - j, WH + j))
                    dstp = AC if j == 3 else PP
                    for r in range(4):
                        e("v_cvt_pk_bf16_f32 v%d, v%d, v%d" % (dstp + r, PL + r, PH + r))
                    if j != 3:
                        for r in range(4):
                            e("v_perm_b32 v%d, v%d, v%d, s%d" % (TA + r, PP + r, AC + r, sP0))
                            e("v_perm_b32 v%d, v%d, v%d, s%d" % (TB + r, PP + r, AC + r, sP1))
                        for r in range(4):
                            e("v_dot2_f32_bf16 v%d, v%d, v%d, 0" % (PL + r, TA + r, vONES))
                            e("v_dot2_f32_bf16 v%d, v%d, v%d, 0" % (PH + r, TB + r, vONES))
                        for r in range(4):
                            e("v_cvt_pk_bf16_f32 v%d, v%d, v%d" % (AC + r, PL + r, PH + r))
            for r in range(4):
                e("v_and_b32 v%d, v%d, v%d" % (TA + r, vMLO, V + r0 + r))
                e("v_and_b32 v%d, v%d, v%d" % (TB + r, vMHI, V + r0 + r))
            for r in range(4):
                e("v_dot2_f32_bf16 v%d, v%d, v%d, 0" % (KV + r0 + r, AC + r, TA + r))
                e("v_dot2_f32_bf16 v%d, v%d, v%d, 0" % (KV + 8 + r0 + r, AC + r, TB + r))
        e("v_and_b32 v2, 31, v0"); e("v_mul_u32_u24 v2, 288, v2"); e("v_lshrrev_b32 v3, 5, v0"); e("v_lshlrev_b32 v3, 4, v3")
        e("v_sub_u32 v2, v2, v3"); e("v_add_u32 v2, %d, v2" % (L_PREP + 112))
        for ch in range(2):
            for d in range(4):
                e("v_cvt_pk_bf16_f32 v%d, v%d, v%d" % (OUT + 4 * ch + d, KV + 8 * ch + 7 - 2 * d, KV + 8 * ch + 6 - 2 * d))
        self.spread(seq, dma)
        self.stamp(20)
        a("ds_write_b128 v2, v[%d:%d]" % (OUT, OUT + 3))
        a("ds_write_b128 v2, v[%d:%d] offset:144" % (OUT + 4, OUT + 7))
        a("v_lshrrev_b32 v2, 3, v0")
        a("v_and_b32 v3, 7, v0")
        a("v_mul_u32_u24 v4, 144, v2")
        a("v_lshl_add_u32 v4, v3, 4, v4")
        a("v_add_u32 v4, %d, v4" % L_PREP)
        a("s_lshl_b32 s%d, s%d, 18" % (sT0, sC))
        a("s_lshl_b32 s%d, s%d, 7" % (sT1, sR))
        a("s_sub_u32 s%d, s%d, s%d" % (sT0, sT0, sT1))
        a("s_add_u32 s%d, s%d, %d" % (sT0, sT0, WS_KVT + 3968))
        a("v_lshlrev_b32 v5, 12, v2")
        a("v_lshl_add_u32 v5, v3, 4, v5")
        a("v_add_u32 v5, s%d, v5" % sT0)
        a("v_add_u32 v6, %d, v5" % (32 * 4096))
        if "dmafirst" in self.exp:
            for f in self.w1_dma_ops(0) + self.w1_dma_ops(1) + self.w1_dma_ops(2): f()
            self.stamp(15)
        self.m_sync(13, va=2, vb=3)
        a("ds_read_b128 v[92:95], v4")
        a("ds_read_b128 v[96:99], v4 offset:%d" % (32 * 144))
        a.lg0()
        a.vmem("buffer_store_dwordx4 v[92:95], v5, s[%d:%d], 0 offen sc1" % (S_WS, S_WS + 3), "kvt")
        a.vmem("buffer_store_dwordx4 v[96:99], v6, s[%d:%d], 0 offen sc1" % (S_WS, S_WS + 3), "kvt")
        if not self.noflags:
            a("v_mov_b32 v7, 0")
            a.vmem("buffer_load_dword v19, v7, s[%d:%d], 0 offen sc1" % (S_DBG, S_DBG + 3), "nonce")
        if "dmafirst" not in self.exp:
            self.stamp(15)
            if "V3" in self.exp: lst = self.w1_dma_ops(2) + self.w1_dma_ops(3)
            elif "V2" in self.exp: lst = self.w1_dma_ops(2)
            elif "V4" in self.exp or "V5" in self.exp: lst = []
            else: lst = self.w1_dma_ops(0) + self.w1_dma_ops(1) + self.w1_dma_ops(2)
            for f in lst: f()

    def m_gemm1(self):
        a = self.a
        ACC = 20
        BUF = [68, 96, 124]
        AX = 8; AW = [9, 10, 11]
        UREG = 152
        for i in range(48):
            a("v_mov_b32 v%d, 0" % (ACC + i))

        def read_ops(ks):
            buf = BUF[ks % 3]
            j = ks >> 1; ksl = ks & 1; slot = j % NW1
            pre = []
            if ksl == 0 and j > 0:
                d = W1_SLOT if slot != 0 else -(NW1 - 1) * W1_SLOT
                for b in range(3):
                    pre.append("v_add_u32 v%d, %d, v%d" % (AW[b], d & 0xffffffff, AW[b]))
            so = ksl * 32 * 384
            def rx(t):
                return lambda: a.lds("ds_read_b128 v[%d:%d], v%d offset:%d" % (buf + 4 * t, buf + 4 * t + 3, AX, L_XN + (j % NXN) * 8192 + t * 2048 + ksl * 1024), "x%d_%d" % (ks, t))
            def rw(b, hh):
                r0 = buf + 16 + 4 * b + 2 * hh
                return lambda: a.lds("ds_read_b64_tr_b16 v[%d:%d], v%d offset:%d" % (r0, r0 + 1, AW[b], so + hh * 4 * 384), "w%d_%d" % (ks, b))
            if "mnoreads" in self.exp: return pre
            return pre + [rw(0, 0), rw(0, 1), rx(0), rx(1), rx(2), rx(3), rw(1, 0), rw(1, 1), rw(2, 0), rw(2, 1)]

        def mfma_ops(ks):
            cur = BUF[ks % 3]
            ops = []
            for b in range(3):
                for t in range(4):
                    def f(b=b, t=t):
                        if "finewait" in self.exp:
                            a.need_lds("w%d_%d" % (ks, b), "x%d_%d" % (ks, t))
                        elif b == 0 and t == 0:
                            a.need_lds(*(["w%d_%d" % (ks, bb) for bb in range(3)] + ["x%d_%d" % (ks, tt) for tt in range(4)]))
                        acc = ACC + (b * 4 + t) * 4
                        if "mnomfma" in self.exp: return
                        a("v_mfma_f32_16x16x32_bf16 v[%d:%d], v[%d:%d], v[%d:%d], v[%d:%d]" % (
                            acc, acc + 3, cur + 16 + 4 * b, cur + 19 + 4 * b, cur + 4 * t, cur + 4 * t + 3, acc, acc + 3))
                    ops.append(f)
            return ops

        if not self.noflags and "V1" in self.exp: self.publish_h1()
        if "V3" not in self.exp: a.wait_vm("w1c1")
        a("s_barrier")
        self.stamp(14)
        for f in read_ops(0): self.run(f)
        if self.h1j == 0 and not self.noflags and "V1" not in self.exp:
            q_l = (list(a.lg.q), a.lg_done)
            self.publish_h1()
        for f in read_ops(1)[:5]: self.run(f)
        pend = read_ops(1)[5:]
        for j in range(8):
            if j >= 1 and j <= 6:
                if not ("mnodma" in self.exp and j + 1 >= 3) and "novmw" not in self.exp: a.wait_vm("w1c%d" % (j + 1))
                a("s_barrier")
                if "itst" in self.exp: self.stamp(22 + j)
                if j == self.h1j and not self.noflags and "V1" not in self.exp: self.publish_h1()
            dm = self.w1_dma_ops(j + 4) if (j + 4 <= 7) else []
            if j == 0 and "V3" not in self.exp: dm = self.w1_dma_ops(3) + dm
            if "mnodma" in self.exp:
                for _ in dm: a.vm.issue("dummy")
                dm = []
            ex = []
            for half in range(2):
                ks = 2 * j + half
                fill = list(pend); pend = []
                if ks + 2 <= 15:
                    fill += read_ops(ks + 2)
                hlf = (len(dm) + 1) // 2
                extra = (dm[:hlf] + ex if half == 0 else dm[hlf:])
                interleave(a, mfma_ops(ks), merge(fill, extra))
        a.lg0()
        self.stamp(2)
        HB = 68
        for i in range(12):
            a("v_cvt_pk_bf16_f32 v%d, v%d, v%d" % (HB + 2 * i, ACC + 4 * i, ACC + 4 * i + 1))
            a("v_cvt_pk_bf16_f32 v%d, v%d, v%d" % (HB + 2 * i + 1, ACC + 4 * i + 2, ACC + 4 * i + 3))
        for i in range(24):
            a("v_pk_max_i16 v%d, v%d, 0" % (HB + i, HB + i))
        if "st16" in self.exp:
            for b in range(3):
                for u in range(2):
                    r = HB + 8 * b + 4 * u
                    a("v_permlane16_swap_b32 v%d, v%d" % (r, r + 2))
                    a("v_permlane16_swap_b32 v%d, v%d" % (r + 1, r + 3))
            for b in range(3):
                so = "0" if b == 0 else "s%d" % (sINV1 if b == 1 else sINV2)
                for u in range(2):
                    r = HB + 8 * b + 4 * u
                    a.vmem("buffer_store_dwordx4 v[%d:%d], v%d, s[%d:%d], %s offen offset:%d sc1" % (r, r + 3, 168 + 2 * u, S_WS, S_WS + 3, so, 512 * b), "hst")
        elif "nohst" in self.exp:
            a.vm.issue("hst")
        else:
          for b in range(3):
            so = "0" if b == 0 else "s%d" % (sINV1 if b == 1 else sINV2)
            for t in range(4):
                r = HB + (b * 4 + t) * 2
                a.vmem("buffer_store_dwordx2 v[%d:%d], v%d, s[%d:%d], %s offen offset:%d sc1" % (r, r + 1, 168 + t, S_WS, S_WS + 3, so, 512 * b), "hst")
        a("s_barrier")

    def get_nonce(self):
        if self.noflags: return
        a = self.a
        a.wait_vm("nonce")
        lo = a.newlabel("L_nz"); lp = a.newlabel("L_nl")
        a("v_readfirstlane_b32 s%d, v19" % sNONCE)
        a("s_nop 3")
        a("s_cmp_lg_u32 s%d, 0" % sNONCE)
        a("s_cbranch_scc1 %s" % lo)
        a("s_mov_b32 s%d, 0" % sT3)
        a.label(lp)
        a("v_mov_b32 v7, 0")
        a("buffer_load_dword v19, v7, s[%d:%d], 0 offen sc1" % (S_DBG, S_DBG + 3))
        a("s_waitcnt vmcnt(0)")
        a("v_readfirstlane_b32 s%d, v19" % sNONCE)
        a("s_add_u32 s%d, s%d, 1" % (sT3, sT3))
        a("s_cmp_gt_u32 s%d, 100000" % sT3)
        a("s_cbranch_scc1 %s" % lo)
        a("s_cmp_eq_u32 s%d, 0" % sNONCE)
        a("s_cbranch_scc1 %s" % lp)
        a.label(lo)

    def flag_store(self, off_sreg, tag, va=2, vb=3):
        if self.noflags: return
        a = self.a
        a("v_mov_b32 v%d, s%d" % (va, off_sreg))
        a("v_mov_b32 v%d, s%d" % (vb, sNONCE))
        a("s_mov_b64 exec, 1")
        a.vmem("buffer_store_dword v%d, v%d, s[%d:%d], 0 offen sc1" % (vb, va, S_WS, S_WS + 3), tag)
        a("s_mov_b64 exec, -1")

    def publish_h1(self):
        a = self.a
        self.get_nonce()
        a.wait_vm("kvt")
        a("s_lshl_b32 s%d, s%d, 7" % (sT0, sID))
        a("s_lshl_b32 s%d, s%d, 2" % (sT2, sRW))
        a("s_add_u32 s%d, s%d, s%d" % (sT0, sT0, sT2))
        a("s_add_u32 s%d, s%d, 0x%x" % (sT0, sT0, F_H1))
        self.flag_store(sT0, "flag")

    def poll(self, base_sreg, nlanes, width, stride):
        if self.noflags: return
        a = self.a
        lp = a.newlabel("L_poll"); dn = a.newlabel("L_pdone")
        a("v_mul_u32_u24 v2, %d, v1" % stride)
        a("v_add_u32 v2, s%d, v2" % base_sreg)
        a("s_mov_b32 s%d, 0" % sT3)
        if nlanes <= 16: a("s_mov_b64 exec, 0x%x" % ((1 << nlanes) - 1))
        else:
            a("s_mov_b32 exec_lo, -1"); a("s_mov_b32 exec_hi, 0")
        a.label(lp)
        if width == 1:
            a("buffer_load_dword v4, v2, s[%d:%d], 0 offen sc1" % (S_WS, S_WS + 3))
            a("s_waitcnt vmcnt(0)")
            a("v_cmp_ne_u32 vcc, s%d, v4" % sNONCE)
        else:
            a("buffer_load_dwordx4 v[4:7], v2, s[%d:%d], 0 offen sc1" % (S_WS, S_WS + 3))
            a("s_waitcnt vmcnt(0)")
            for i in range(4): a("v_xor_b32 v%d, s%d, v%d" % (4 + i, sNONCE, 4 + i))
            a("v_or3_b32 v4, v4, v5, v6")
            a("v_or_b32 v4, v4, v7")
            a("v_cmp_ne_u32 vcc, 0, v4")
        a("s_add_u32 s%d, s%d, 1" % (sT3, sT3))
        a("s_cmp_gt_u32 s%d, 100000" % sT3)
        a("s_cbranch_scc1 %s" % dn)
        a("s_cbranch_vccnz %s" % lp)
        a.label(dn)
        a("s_mov_b64 exec, -1")

    def lds_wait(self, addr_sreg, val=1, va=16, vb=17):
        a = self.a
        lp = a.newlabel("L_ps"); dn = a.newlabel("L_psd")
        a("v_mov_b32 v%d, s%d" % (va, addr_sreg))
        a("s_mov_b32 s%d, 0" % sT3)
        a.label(lp)
        a("ds_read_b32 v%d, v%d" % (vb, va))
        a("s_waitcnt lgkmcnt(0)")
        a("v_readfirstlane_b32 s4, v%d" % vb)
        a("s_add_u32 s%d, s%d, 1" % (sT3, sT3))
        a("s_cmp_ge_u32 s4, %d" % val)
        a("s_cbranch_scc1 %s" % dn)
        a("s_cmp_lt_u32 s%d, 1000000" % sT3)
        a("s_cbranch_scc1 %s" % lp)
        a.label(dn)
        a.lg_clear()

    def m_sync(self, word, n=4, va=16, vb=17):
        a = self.a
        a("v_mov_b32 v%d, %d" % (va, L_SYNC + 4 * word))
        a("v_mov_b32 v%d, 1" % vb)
        a.lg0()
        a("s_mov_b64 exec, 1")
        a("ds_add_u32 v%d, v%d" % (va, vb))
        a("s_mov_b64 exec, -1")
        a("s_mov_b32 s5, %d" % (L_SYNC + 4 * word))
        self.lds_wait(5, n, va, vb)

    def pair_sync(self, stage, va=16, vb=17):
        a = self.a
        a("s_lshl_b32 s4, s%d, 2" % sRW)
        a("s_add_u32 s4, s4, %d" % (L_SYNC + 16 * stage))
        a("s_xor_b32 s5, s4, 4")
        a("v_mov_b32 v%d, s4" % va)
        a("v_mov_b32 v%d, 1" % vb)
        a.lg0()
        a("ds_write_b32 v%d, v%d" % (va, vb))
        self.lds_wait(5, 1, va, vb)

    def m_conv(self):
        a = self.a
        BF, ACC, AF, NA = 20, 148, 180, 16
        AU, AT = 2, 3
        a("v_and_b32 v8, 15, v1")
        a("v_lshrrev_b32 v9, 4, v1")
        a("v_lshlrev_b32 v10, 4, v9")
        a("v_lshlrev_b32 v11, 5, v8")
        a("v_sub_u32 v10, v10, v11")
        a("s_lshr_b32 s%d, s%d, 1" % (sT0, sRW))
        a("s_and_b32 s%d, s%d, 1" % (sT1, sRW))
        a("s_mul_i32 s%d, s%d, %d" % (sT2, sT0, U_CH))
        a("s_add_u32 s%d, s%d, %d" % (sT2, sT2, L_U + 2 * 2032 - 64 * 56))
        a("s_lshl_b32 s4, s%d, 6" % sT1)
        a("s_add_u32 s%d, s%d, s4" % (sT2, sT2))
        a("v_add_u32 v%d, s%d, v10" % (AU, sT2))
        a("v_and_b32 v10, 3, v8")
        a("v_mul_u32_u24 v10, %d, v10" % T_CP)
        a("v_lshrrev_b32 v11, 2, v8")
        a("v_lshl_add_u32 v10, v11, 3, v10")
        a("v_lshl_add_u32 v10, v9, 4, v10")
        a("s_mul_i32 s%d, s%d, %d" % (sT2, sT0, T_CH))
        a("s_add_u32 s%d, s%d, s4" % (sT2, sT2))
        a("s_add_u32 s%d, s%d, %d" % (sT2, sT2, L_T))
        a("v_add_u32 v%d, s%d, v10" % (AT, sT2))
        a("v_lshl_add_u32 v10, v9, 3, v8")
        a("s_lshl_b32 s4, s%d, 5" % sT1)
        a("v_add_u32 v10, s4, v10")
        MK = 12
        for d in range(4):
            a("v_sub_u32 v11, %d, v10" % (15 - 2 * d))
            a("v_med3_i32 v11, v11, 0, 2")
            a("v_lshlrev_b32 v11, 4, v11")
            a("v_mov_b32 v%d, -1" % (MK + d))
            a("v_lshlrev_b32 v16, v11, v%d" % (MK + d))
            a("v_cmp_eq_u32 vcc, 32, v11")
            a("v_cndmask_b32_e64 v%d, v16, 0, vcc" % (MK + d))
        for i in range(32):
            a("v_mov_b32 v%d, 0" % (ACC + i))
        def emit_A(ee):
            r = AF + 4 * (ee % NA)
            a.lds("ds_read_b64 v[%d:%d], v%d offset:%d" % (r, r + 1, AT, 128 * ee), ("A", ee))
            a.lds("ds_read_b64 v[%d:%d], v%d offset:%d" % (r + 2, r + 3, AT, 128 * ee + 8), ("A", ee))
        def emit_B(idx):
            r = BF + 4 * idx
            a.lds("ds_read_b128 v[%d:%d], v%d offset:%d" % (r, r + 3, AU, 128 * idx), ("B", idx))
        sched = []
        for ee in range(32):
            for j in range(7, (ee >> 2) - 1, -1):
                sched.append((ee, j, 28 - 4 * j + ee))
        order = []; seen = set(); last_use_A = {}
        for n, (ee, j, idx) in enumerate(sched):
            for it in (("A", ee), ("B", idx)):
                if it not in seen:
                    seen.add(it); order.append(it)
            last_use_A[ee] = n
        ptr = 0; issued = set()
        def can_issue(item, n):
            if item[0] == "A" and item[1] >= NA:
                return last_use_A[item[1] - NA] < n
            return True
        def issue_next(n_now):
            nonlocal ptr
            if ptr < len(order) and can_issue(order[ptr], n_now):
                it = order[ptr]
                (emit_A if it[0] == "A" else emit_B)(it[1])
                issued.add(it); ptr += 1
                return True
            return False
        def inflight():
            return len(a.lg.q) - a.lg_done
        GRP = 4
        while inflight() < 14 and issue_next(0): pass
        masked = False
        for n, (ee, j, idx) in enumerate(sched):
            while ("A", ee) not in issued or ("B", idx) not in issued:
                assert issue_next(n)
            if not (a.lds_done(("A", ee)) and a.lds_done(("B", idx))):
                tags = [("A", ee), ("B", idx)]
                for (e2, j2, i2) in sched[n + 1:n + GRP]:
                    if ("A", e2) in issued and ("B", i2) in issued: tags += [("A", e2), ("B", i2)]
                    else: break
                a.need_lds(*tags)
            ar = AF + 4 * (ee % NA); br = BF + 4 * idx; acc = ACC + 4 * j
            if ee == 0 and not masked:
                for d in range(4): a("v_and_b32 v%d, v%d, v%d" % (ar + d, MK + d, ar + d))
                masked = True
            a("v_mfma_f32_16x16x32_bf16 v[%d:%d], v[%d:%d], v[%d:%d], v[%d:%d]" % (acc, acc + 3, ar, ar + 3, br, br + 3, acc, acc + 3))
            if inflight() < 14:
                issue_next(n + 1)
                if n < 40 and inflight() < 14: issue_next(n + 1)
            if n == self.h2n and not self.noflags:
                a.wait_vm("hst")
                a("s_lshl_b32 s4, s%d, 3" % sR)
                a("s_add_u32 s4, s4, s%d" % sC)
                a("s_lshl_b32 s4, s4, 7")
                a("s_lshl_b32 s5, s%d, 2" % sRW)
                a("s_add_u32 s4, s4, s5")
                a("s_add_u32 s%d, s4, 0x%x" % (sT2, F_H2))
                self.flag_store(sT2, "flag", 4, 5)
        self.stamp(16)
        self.pair_sync(0)
        a("v_lshlrev_b32 v4, 4, v1")
        a("s_mul_i32 s%d, s%d, %d" % (sT0, sT0, T_CH))
        a("s_add_u32 s%d, s%d, %d" % (sT0, sT0, L_T + 8))
        a("s_lshl_b32 s%d, s%d, 12" % (sT2, sT1))
        a("s_add_u32 s%d, s%d, s%d" % (sT2, sT2, sT0))
        a("v_add_u32 v5, s%d, v4" % sT2)
        a("s_xor_b32 s%d, s%d, 1" % (sT2, sT1))
        a("s_lshl_b32 s%d, s%d, 12" % (sT2, sT2))
        a("s_add_u32 s%d, s%d, s%d" % (sT2, sT2, sT0))
        a("v_add_u32 v6, s%d, v4" % sT2)
        l0 = a.newlabel("L_cr0"); l1 = a.newlabel("L_cr1")
        a("s_cmp_eq_u32 s%d, 0" % sT1)
        a("s_cbranch_scc1 %s" % l0)
        for i in range(4):
            a("ds_write_b128 v5, v[%d:%d] offset:%d" % (ACC + 4 * i, ACC + 4 * i + 3, 1024 * i))
        for i in range(16):
            a("v_mov_b32 v%d, v%d" % (200 + i, ACC + 16 + i))
        a("s_branch %s" % l1)
        a.label(l0)
        for i in range(4):
            a("ds_write_b128 v5, v[%d:%d] offset:%d" % (ACC + 16 + 4 * i, ACC + 16 + 4 * i + 3, 1024 * i))
        for i in range(16):
            a("v_mov_b32 v%d, v%d" % (200 + i, ACC + i))
        a.label(l1)
        a("v_and_b32 v4, 15, v1")
        a("v_lshrrev_b32 v7, 4, v1")
        a("v_lshlrev_b32 v4, 5, v4")
        a("v_lshl_add_u32 v4, v7, 3, v4")
        a("s_lshr_b32 s%d, s%d, 1" % (sT0, sRW))
        a("s_mul_i32 s%d, s%d, %d" % (sT2, sT0, U_CH))
        a("s_add_u32 s%d, s%d, %d" % (sT2, sT2, L_U + 2 * 2044 - 3 * 512))
        a("s_lshl_b32 s4, s%d, 11" % sT1)
        a("s_sub_u32 s%d, s%d, s4" % (sT2, sT2))
        a("v_sub_u32 v4, s%d, v4" % sT2)
        for i in range(4):
            a("ds_read_b64 v[%d:%d], v4 offset:%d" % (236 + 2 * i, 237 + 2 * i, (3 - i) * 512))
        a("s_and_b32 s4, s%d, 0xffff" % sDD)
        a("s_lshr_b32 s5, s%d, 16" % sDD)
        a("s_cmp_eq_u32 s%d, 0" % sT0)
        a("s_cselect_b32 s4, s4, s5")
        a("s_lshl_b32 s5, s4, 16")
        a("v_mov_b32 v8, s4")
        a("v_mov_b32 v9, s5")
        self.pair_sync(1)
        for i in range(4):
            a("ds_read_b128 v[%d:%d], v6 offset:%d" % (220 + 4 * i, 223 + 4 * i, 1024 * i))
        TT = 148
        for i in range(4):
            u0, u1 = 236 + 2 * i, 237 + 2 * i
            a("v_dot2_f32_bf16 v%d, v%d, v9, 0" % (TT + 4 * i + 0, u1))
            a("v_dot2_f32_bf16 v%d, v%d, v8, 0" % (TT + 4 * i + 1, u1))
            a("v_dot2_f32_bf16 v%d, v%d, v9, 0" % (TT + 4 * i + 2, u0))
            a("v_dot2_f32_bf16 v%d, v%d, v8, 0" % (TT + 4 * i + 3, u0))
        TB = 164
        for i in range(4):
            a("v_cvt_pk_bf16_f32 v%d, v%d, v%d" % (TB + 2 * i, TT + 4 * i, TT + 4 * i + 1))
            a("v_cvt_pk_bf16_f32 v%d, v%d, v%d" % (TB + 2 * i + 1, TT + 4 * i + 2, TT + 4 * i + 3))
        a("v_and_b32 v4, 15, v1")
        a("v_lshrrev_b32 v5, 2, v4")
        a("v_lshlrev_b32 v5, 16, v5")
        a("v_and_b32 v4, 3, v4")
        a("v_lshl_add_u32 v5, v4, 5, v5")
        a("v_lshrrev_b32 v7, 4, v1")
        if "st16" in self.exp:
            a("v_lshrrev_b32 v4, 1, v7")
            a("v_lshl_add_u32 v5, v4, 4, v5")
            a("v_and_b32 v4, 1, v7")
            a("v_lshl_add_u32 v5, v4, 18, v5")
        else:
            a("v_lshl_add_u32 v5, v7, 3, v5")
        a("s_lshl_b32 s%d, s%d, 6" % (sT2, sC))
        a("s_lshl_b32 s4, s%d, 1" % sR)
        a("s_add_u32 s%d, s%d, s4" % (sT2, sT2))
        a("s_add_u32 s%d, s%d, s%d" % (sT2, sT2, sT0))
        a("s_lshl_b32 s%d, s%d, 7" % (sT2, sT2))
        a("s_lshl_b32 s4, s%d, 20" % sT1)
        a("s_add_u32 s%d, s%d, s4" % (sT2, sT2))
        a("s_add_u32 s%d, s%d, 0x%x" % (sT2, sT2, WS_YT))
        a("v_add_u32 v5, s%d, v5" % sT2)
        a.lg0()
        for i in range(16):
            a("v_add_f32 v%d, v%d, v%d" % (200 + i, 200 + i, 220 + i))
        YB = 172
        for i in range(8):
            a("v_cvt_pk_bf16_f32 v%d, v%d, v%d" % (YB + i, 200 + 2 * i, 201 + 2 * i))
        for i in range(8):
            a("v_perm_b32 v%d, v%d, v%d, s%d" % (200 + 2 * i, TB + i, YB + i, sP0))
            a("v_perm_b32 v%d, v%d, v%d, s%d" % (201 + 2 * i, TB + i, YB + i, sP1))
        for i in range(16):
            a("v_dot2_f32_bf16 v%d, v%d, v%d, 0" % (220 + i, 200 + i, vONES))
        for i in range(8):
            a("v_cvt_pk_bf16_f32 v%d, v%d, v%d" % (180 + i, 220 + 2 * i, 221 + 2 * i))
        if "st16" in self.exp:
            for u in range(2):
                r = 180 + 4 * u
                a("v_permlane16_swap_b32 v%d, v%d" % (r, r + 2))
                a("v_permlane16_swap_b32 v%d, v%d" % (r + 1, r + 3))
            for u in range(2):
                if u: a("v_add_u32 v5, 0x80000, v5")
                a.vmem("buffer_store_dwordx4 v[%d:%d], v5, s[%d:%d], 0 offen sc1" % (180 + 4 * u, 183 + 4 * u, S_WS, S_WS + 3), "yst")
        else:
          for i in range(4):
            if i: a("v_add_u32 v5, 0x40000, v5")
            a.vmem("buffer_store_dwordx2 v[%d:%d], v5, s[%d:%d], 0 offen sc1" % (180 + 2 * i, 181 + 2 * i, S_WS, S_WS + 3), "yst")
        self.stamp(17)

    def w2_voff(self):
        a = self.a
        sh = 7 if self.w2s else 10
        a("v_lshrrev_b32 v2, 3, v1")
        a("v_and_b32 v2, 3, v2")
        a("v_lshrrev_b32 v3, 5, v1")
        a("v_lshl_add_u32 v2, v3, 3, v2")
        a("v_lshlrev_b32 v2, %d, v2" % sh)
        a("v_lshrrev_b32 v3, 4, v1")
        a("v_and_b32 v3, 3, v3")
        a("v_lshlrev_b32 v3, 1, v3")
        a("v_and_b32 v4, 7, v1")
        a("v_xor_b32 v3, v3, v4")
        a("v_lshl_add_u32 v2, v3, 4, v2")
        if self.w2s:
            a("s_mul_i32 s%d, s%d, 176128" % (sT0, sD))
            a("s_add_u32 s%d, s%d, 0x%x" % (sT0, sT0, WS_W2S))
        else:
            a("s_lshl_b32 s%d, s%d, 7" % (sT0, sD))
        a("v_add_u32 v14, s%d, v2" % sT0)

    def w2_dma(self, lds_base_sreg, lds_off, src_base_sreg, ks_off, tag):
        a = self.a
        inc = [0, 512, 1536, 512] if self.w2s else [0, 4096, 12288, 4096]
        srd = S_WS if self.w2s else S_W2
        fl = " sc1" if self.w2s else ""
        a("s_add_u32 s%d, s%d, %d" % (sT2, src_base_sreg, ks_off * self.KS))
        for m in range(4):
            a("s_add_u32 m0, s%d, %d" % (lds_base_sreg, lds_off + 1024 * m))
            if m: a("s_add_u32 s%d, s%d, %d" % (sT2, sT2, inc[m]))
            a.vmem("buffer_load_dwordx4 v14, s[%d:%d], s%d offen%s lds" % (srd, srd + 3, sT2, fl), tag)

    def w2_slot_dma(self, tag):
        a = self.a
        a("s_lshl_b32 s71, s%d, 12" % sT0)
        a("s_add_u32 s70, s%d, 9" % sT0)
        a("s_cmp_lt_u32 s%d, 13" % sT0)
        a("s_cselect_b32 s70, s%d, s70" % sT0)
        a("s_lshl_b32 s70, s70, %d" % (12 if self.w2s else 15))
        self.w2_dma(71, L_B, 70, 0, tag)

    def w2_early(self):
        a = self.a
        for m in range(3):
            a("s_add_u32 s%d, s%d, %d" % (sT0, sRW, 4 * m))
            if m == 2: a("s_min_u32 s%d, s%d, 9" % (sT0, sT0))
            if m >= 1: a("s_add_u32 s%d, s%d, 4" % (sT0, sT0))
            self.w2_slot_dma("w2e")

    def m_regionA(self):
        a = self.a
        self.w2_voff()
        a("s_lshr_b32 s75, s%d, 1" % sRW)
        a("s_and_b32 s76, s%d, 1" % sRW)
        a("s_mul_i32 s70, s75, %d" % (22 * self.KS))
        self.m_sync(12)
        a("s_mul_i32 s71, s75, %d" % (NA_H * 4096))
        a("s_add_u32 s71, s71, %d" % L_A)
        a("s_lshl_b32 s4, s76, 12")
        a("s_add_u32 s71, s71, s4")
        a("s_lshl_b32 s4, s76, %d" % (12 if self.w2s else 15))
        a("s_add_u32 s70, s70, s4")
        for m in range(3):
            self.w2_dma(71, 8192 * m, 70, 13 + 2 * m, "w2a")

    def m_tail(self):
        a = self.a
        self.m_regionA()
        a.wait_vm("yst")
        if not self.noflags:
            a("s_lshl_b32 s4, s%d, 7" % sID)
            a("s_lshl_b32 s5, s%d, 2" % sRW)
            a("s_add_u32 s4, s4, s5")
            a("s_add_u32 s%d, s4, 0x%x" % (sT2, F_H3))
            self.flag_store(sT2, "flag", 2, 3)
        self.stamp(21)
        a("s_mov_b32 s5, %d" % (L_SYNC + 56))
        self.lds_wait(5, 4)
        a("s_mul_i32 s71, s75, %d" % B_HALF)
        a("s_lshl_b32 s4, s76, 12")
        a("s_add_u32 s71, s71, s4")
        if L_B: a("s_add_u32 s71, s71, %d" % L_B)
        self.w2_dma(71, 0, 70, 19, "w2l")
        skl = a.newlabel("L_ml")
        a("s_cmp_eq_u32 s76, 1")
        a("s_cbranch_scc1 %s" % skl)
        self.w2_dma(71, 8192, 70, 21, "w2l")
        a.label(skl)
        self.final_x_load(240, 244)
        self.stamp(18)
        a("s_barrier")
        a("s_waitcnt vmcnt(0)")
        a("s_barrier")
        if not self.noflags and "noh3" not in self.exp:
            a("s_lshl_b32 s%d, s%d, 12" % (sT0, sD))
            a("s_add_u32 s%d, s%d, 0x%x" % (sT0, sT0, F_H3))
            self.poll(sT0, 32, 4, 128)
        self.stamp(7)
        a("v_lshrrev_b32 v3, 2, v0")
        a("v_and_b32 v4, 3, v0")
        a("v_lshlrev_b32 v5, 7, v3")
        a("v_lshl_add_u32 v5, v4, 5, v5")
        a("s_lshl_b32 s%d, s%d, 16" % (sT0, sR))
        a("s_lshl_b32 s%d, s%d, 13" % (sT1, sD))
        a("s_add_u32 s%d, s%d, s%d" % (sT0, sT0, sT1))
        a("s_add_u32 s%d, s%d, 0x%x" % (sT0, sT0, WS_YT))
        a("v_add_u32 v5, s%d, v5" % sT0)
        a.vmem("buffer_load_dwordx4 v[20:23], v5, s[%d:%d], 0 offen sc1" % (S_WS, S_WS + 3), "y")
        a.vmem("buffer_load_dwordx4 v[24:27], v5, s[%d:%d], 0 offen offset:16 sc1" % (S_WS, S_WS + 3), "y")
        a("v_mul_u32_u24 v6, 144, v3")
        a("v_lshl_add_u32 v6, v4, 5, v6")
        a("v_add_u32 v6, %d, v6" % L_Y)
        a("s_waitcnt vmcnt(0)")
        a("ds_write_b128 v6, v[20:23]")
        a("ds_write_b128 v6, v[24:27] offset:16")
        a.lg0()
        a("s_barrier")

    def final_x_load(self, xr, ar):
        a = self.a
        a("s_and_b32 s%d, s%d, 3" % (sT0, sW))
        a("s_lshl_b32 s%d, s%d, 4" % (sT0, sT0))
        a("s_lshl_b32 s%d, s%d, 6" % (sT1, sR))
        a("s_add_u32 s%d, s%d, s%d" % (sT0, sT0, sT1))
        a("s_lshl_b32 s%d, s%d, 10" % (sT0, sT0))
        a("s_lshl_b32 s%d, s%d, 7" % (sT1, sD))
        a("s_add_u32 s%d, s%d, s%d" % (sT0, sT0, sT1))
        a("s_lshr_b32 s%d, s%d, 2" % (sT1, sW))
        a("s_lshl_b32 s%d, s%d, 6" % (sT1, sT1))
        a("s_add_u32 s%d, s%d, s%d" % (sT0, sT0, sT1))
        a("v_lshrrev_b32 v2, 2, v1")
        a("v_lshlrev_b32 v2, 10, v2")
        a("v_and_b32 v3, 3, v1")
        a("v_lshl_add_u32 v2, v3, 4, v2")
        a("v_add_u32 v%d, s%d, v2" % (ar, sT0))
        a.vmem("buffer_load_dwordx4 v[%d:%d], v%d, s[%d:%d], 0 offen" % (xr, xr + 3, ar, S_X, S_X + 3), "xf")

    def u_slow(self):
        a = self.a
        a.label("L_uslow")
        a("s_lshl_b32 s%d, s%d, 12" % (sT0, sC))
        a("s_add_u32 s%d, s%d, 0x%x" % (sT0, sT0, F_H1))
        self.poll(sT0, 32, 1, 128)
        for i in range(4):
            a("buffer_load_dwordx4 v[%d:%d], v172, s[%d:%d], 0 offen offset:%d sc1" % (152 + 4 * i, 155 + 4 * i, S_WS, S_WS + 3, 1024 * i))
        a("s_waitcnt vmcnt(0)")
        for i in range(4):
            a("ds_write_b128 v174, v[%d:%d] offset:%d" % (152 + 4 * i, 155 + 4 * i, 1024 * i))
        a("s_waitcnt lgkmcnt(0)")
        a("s_branch L_uback")

    NEGM, RS, NMRS = 100, 101, 102
    def norm2(self, X, t):
        L = []
        L.append("v_lshlrev_b32 v%d, 16, v%d" % (t + 0, X))
        L.append("v_and_b32 v%d, v%d, v%d" % (t + 1, vMHI, X))
        L.append("v_lshlrev_b32 v%d, 16, v%d" % (t + 2, X + 1))
        L.append("v_and_b32 v%d, v%d, v%d" % (t + 3, vMHI, X + 1))
        if self.relax_ln:
            for i in range(4):
                L.append("v_fma_f32 v%d, v%d, v%d, v%d" % (t + i, t + i, self.RS, self.NMRS))
        else:
            for i in range(4):
                L.append("v_add_f32 v%d, v%d, v%d" % (t + i, t + i, self.NEGM))
            L.append("v_cvt_pk_bf16_f32 v%d, v%d, v%d" % (t + 4, t + 0, t + 1))
            L.append("v_cvt_pk_bf16_f32 v%d, v%d, v%d" % (t + 5, t + 2, t + 3))
            L.append("v_lshlrev_b32 v%d, 16, v%d" % (t + 0, t + 4))
            L.append("v_and_b32 v%d, v%d, v%d" % (t + 1, vMHI, t + 4))
            L.append("v_lshlrev_b32 v%d, 16, v%d" % (t + 2, t + 5))
            L.append("v_and_b32 v%d, v%d, v%d" % (t + 3, vMHI, t + 5))
            for i in range(4):
                L.append("v_mul_f32 v%d, v%d, v%d" % (t + i, t + i, self.RS))
        L.append("v_cvt_pk_bf16_f32 v%d, v%d, v%d" % (X, t + 0, t + 1))
        L.append("v_cvt_pk_bf16_f32 v%d, v%d, v%d" % (X + 1, t + 2, t + 3))
        return L

    def norm_chunk(self, j):
        a = self.a
        X = 20 + 8 * j
        for half in range(2):
            s1 = self.norm2(X + 4 * half, 104); s2 = self.norm2(X + 4 * half + 2, 110)
            for x, y in zip(s1, s2):
                a(x); a(y)
            a.lds("ds_write_b128 v116, v[%d:%d] offset:%d" % (X + 4 * half, X + 4 * half + 3, L_XN + (j % NXN) * 8192 + half * 1024), "xw")

    def h_first(self):
        a = self.a
        self.vm_m_first = a.vm
        a.vm = Q(["cpf"] if "codepf0" in self.exp else [])
        a.label("L_Hfirst")
        self.rot_calc()
        a("s_lshl_b32 s%d, s%d, 16" % (sT0, sR))
        a("s_lshl_b32 s%d, s%d, 14" % (sT1, sRW))
        a("s_add_u32 s%d, s%d, s%d" % (sT0, sT0, sT1))
        a("v_lshrrev_b32 v6, 2, v1")
        a("v_lshlrev_b32 v6, 10, v6")
        a("v_and_b32 v7, 3, v1")
        a("v_lshl_add_u32 v6, v7, 4, v6")
        a("v_add_u32 v6, s%d, v6" % sT0)
        a("s_lshl_b32 s%d, s%d, 7" % (sT0, sROT))
        a("s_waitcnt lgkmcnt(0)")
        a("s_mov_b64 s[8:9], s[64:65]")
        if self.stamps:
            a("s_memrealtime s[4:5]"); a("s_waitcnt lgkmcnt(0)"); a("v_writelane_b32 v255, s4, 0")
        for j in range(8):
            if j:
                a("s_add_u32 s%d, s%d, 128" % (sT0, sT0))
                a("s_and_b32 s%d, s%d, 1023" % (sT0, sT0))
            a.vmem("buffer_load_dwordx4 v[%d:%d], v6, s[%d:%d], s%d offen" % (20 + 8 * j, 23 + 8 * j, S_X, S_X + 3, sT0), "x%d" % j)
            a.vmem("buffer_load_dwordx4 v[%d:%d], v6, s[%d:%d], s%d offen offset:64" % (24 + 8 * j, 27 + 8 * j, S_X, S_X + 3, sT0), "x%d" % j)
        a("s_branch L_H")
        self.vm_h_first = a.vm

    def h_front(self):
        a = self.a
        a.vm = self.vm_h_first; a.lg_clear()
        self.p0_rest()
        a("s_waitcnt lgkmcnt(0)")
        if "tlbpf" in self.exp:
            a("v_lshlrev_b32 v2, 19, v1")
            a("v_cmp_gt_u32 vcc, 28, v1")
            a("v_mov_b32 v3, 0x40000000")
            a("v_cndmask_b32 v2, v3, v2, vcc")
            a.vmem("buffer_load_dword v245, v2, s[%d:%d], 0 offen" % (S_WS, S_WS + 3), "tlb")
            a("v_lshlrev_b32 v2, 19, v1")
            a.vmem("buffer_load_dword v246, v2, s[%d:%d], 0 offen" % (S_OUT, S_OUT + 3), "tlb")
            a.vmem("buffer_load_dword v247, v2, s[%d:%d], 0 offen" % (S_W2, S_W2 + 3), "tlb")
            a.vmem("buffer_load_dword v243, v2, s[%d:%d], 0 offen" % (S_SSM, S_SSM + 3), "tlb")
        if self.w2s:
            a("s_lshl_b32 s%d, s2, 13" % sT2)
            a("v_and_b32 v2, 255, v0")
            a("v_lshlrev_b32 v3, 4, v2")
            a("v_add_u32 v3, s%d, v3" % sT2)
            a("s_cmp_lt_u32 s2, 172")
            a("s_cselect_b32 s86, 0, 0x40000000")
            a.vmem("buffer_load_dwordx4 v[224:227], v3, s[%d:%d], s86 offen" % (S_W2, S_W2 + 3), "w2sl")
            a("v_add_u32 v3, 4096, v3")
            a.vmem("buffer_load_dwordx4 v[228:231], v3, s[%d:%d], s86 offen" % (S_W2, S_W2 + 3), "w2sl")
            a("v_bfe_u32 v4, v2, 3, 3")
            a("v_mul_u32_u24 v4, 176128, v4")
            a("v_lshrrev_b32 v5, 6, v2")
            a("v_lshl_add_u32 v4, v5, 7, v4")
            a("v_and_b32 v5, 7, v2")
            a("v_lshl_add_u32 v4, v5, 4, v4")
            a("s_lshl_b32 s%d, s2, 10" % sT2)
            a("s_add_u32 s%d, s%d, 0x%x" % (sT2, sT2, WS_W2S))
            a("v_add_u32 v232, s%d, v4" % sT2)
        if "codepf" in self.exp:
            a("s_getpc_b64 s[82:83]")
            a.label("L_pc")
            a("s_sub_u32 s82, s82, L_pc-%s" % KNAME)
            a("s_subb_u32 s83, s83, 0")
            a("v_lshlrev_b32 v2, 7, v1")
            a("s_lshl_b32 s84, s%d, 13" % sRW)
            a("v_add_u32 v2, s84, v2")
            a("v_min_u32 v2, L_codeend-%s, v2" % KNAME)
            a("v_mov_b32 v3, s83")
            a("v_add_co_u32 v2, vcc, s82, v2")
            a("v_addc_co_u32 v3, vcc, 0, v3, vcc")
            a.vmem("global_load_dword v244, v[2:3], off", "cpf")
        a("s_waitcnt lgkmcnt(0)")
        a("s_barrier")

        if "V3" in self.exp:
            self.w1_voffs()
            for f in self.w1_dma_ops(0) + self.w1_dma_ops(1): f()
        a("s_setprio 0")
        if not self.noflags:
            a("v_mov_b32 v7, 0")
        a("v_lshrrev_b32 v4, 2, v1")
        a("v_and_b32 v5, 3, v1")
        a("v_lshlrev_b32 v2, 1, v5")
        a("v_xor_b32 v4, v4, v2")
        a("v_lshlrev_b32 v4, 4, v4")
        a("v_lshl_add_u32 v4, v5, 8, v4")
        a("s_lshl_b32 s%d, s%d, 11" % (sT2, sRW))
        a("v_add_u32 v116, s%d, v4" % sT2)

    def h_ssm_load(self):
        a = self.a
        a("s_lshl_b32 s%d, s%d, 6" % (sT2, sC))
        a("s_lshl_b32 s%d, s%d, 1" % (sT1, sR))
        a("s_add_u32 s%d, s%d, s%d" % (sT2, sT2, sT1))
        a("s_lshl_b32 s%d, s%d, 12" % (sT2, sT2))
        a("v_and_b32 v3, 255, v0")
        a("v_lshlrev_b32 v3, 4, v3")
        a("v_add_u32 v2, s%d, v3" % sT2)
        a("v_add_u32 v4, -8, v2")
        for ch in range(2):
            a.vmem("buffer_load_dwordx2 v[%d:%d], v4, s[%d:%d], 0 offen" % (84 + 6 * ch, 85 + 6 * ch, S_SSM, S_SSM + 3), "ssm")
            a.vmem("buffer_load_dwordx4 v[%d:%d], v2, s[%d:%d], 0 offen" % (86 + 6 * ch, 89 + 6 * ch, S_SSM, S_SSM + 3), "ssm")
            if ch == 0:
                a("v_add_u32 v2, 4096, v2")
                a("v_add_u32 v4, 4096, v4")

    def h_stats(self):
        a = self.a
        X = 20
        for i in range(8): a("v_mov_b32 v%d, 0" % (104 + i))
        for i in range(64):
            if i % 8 == 0:
                a.wait_vm("x%d" % (i // 8))
                if i == 0: self.stamp(13)
            a("v_dot2_f32_bf16 v%d, v%d, v%d, v%d" % (104 + (i & 3), X + i, vONES, 104 + (i & 3)))
            a("v_dot2_f32_bf16 v%d, v%d, v%d, v%d" % (108 + (i & 3), X + i, X + i, 108 + (i & 3)))
        a("v_add_f32 v104, v104, v105"); a("v_add_f32 v106, v106, v107")
        a("v_add_f32 v108, v108, v109"); a("v_add_f32 v110, v110, v111")
        a("v_add_f32 v2, v104, v106"); a("v_add_f32 v3, v108, v110")
        for ctl in ("quad_perm:[1,0,3,2]", "quad_perm:[2,3,0,1]"):
            a("v_add_f32_dpp v2, v2, v2 %s row_mask:0xf bank_mask:0xf" % ctl)
            a("v_add_f32_dpp v3, v3, v3 %s row_mask:0xf bank_mask:0xf" % ctl)
        a("v_mul_f32 v2, 0x3b000000, v2")
        a("v_mul_f32 v3, 0x3b000000, v3")
        a("v_cvt_pk_bf16_f32 v4, v2, v2")
        a("v_fma_f32 v3, -v2, v2, v3")
        a("v_lshlrev_b32 v4, 16, v4")
        a("v_max_f32 v3, 0, v3")
        a("v_cvt_pk_bf16_f32 v3, v3, v3")
        a("v_lshlrev_b32 v3, 16, v3")
        a("v_add_f32 v3, 0x3727c5ac, v3")
        a("v_cvt_pk_bf16_f32 v3, v3, v3")
        a("v_lshlrev_b32 v3, 16, v3")
        a("v_sqrt_f32 v3, v3")
        a("v_cvt_pk_bf16_f32 v3, v3, v3")
        a("v_lshlrev_b32 v3, 16, v3")
        a("v_rcp_f32 v%d, v3" % self.RS)
        a("v_sub_f32 v%d, 0, v4" % self.NEGM)
        a("v_mul_f32 v%d, v%d, v%d" % (self.NMRS, self.NEGM, self.RS))
        a("v_lshrrev_b32 v6, 2, v1")
        a("s_lshl_b32 s%d, s%d, 4" % (sT2, sRW))
        a("v_add_u32 v6, s%d, v6" % sT2)
        a("v_lshlrev_b32 v5, 3, v6")
        a("v_add_u32 v5, %d, v5" % L_STATS)
        a("v_mov_b32 v2, v4")
        a("v_mov_b32 v3, v%d" % self.RS)
        a.lds("ds_write_b64 v5, v[2:3]", "st")

    def h_tbuild(self, ch):
        a = self.a
        D = 84 + 6 * ch
        E = 118
        for p in range(5):
            a("v_alignbit_b32 v%d, v%d, v%d, 16" % (E + p, D + p + 1, D + p))
        for p in range(4):
            a("v_mov_b32 v%d, v%d" % (124 + p, D + 1 + p))
            a("v_mov_b32 v%d, v%d" % (128 + p, E + 1 + p))
        a("v_and_b32 v3, 255, v0")
        a("v_lshlrev_b32 v3, 4, v3")
        a("v_add_u32 v3, %d, v3" % (L_T + ch * T_CH + 24))
        a("ds_write_b128 v3, v[118:121]")
        a("ds_write_b128 v3, v[124:127] offset:%d" % T_CP)
        a("ds_write_b128 v3, v[128:131] offset:%d" % (2 * T_CP))
        a("ds_write_b128 v3, v[%d:%d] offset:%d" % (D + 2, D + 5, 3 * T_CP))

    def w2flag_loads(self, tag):
        a = self.a
        for i in range(3):
            a("v_add_u32 v3, %d, v1" % (64 * i))
            if i == 2:
                a("v_cmp_gt_u32 vcc, 172, v3")
                a("v_cndmask_b32 v3, 0, v3, vcc")
            a("v_lshlrev_b32 v3, 7, v3")
            a("v_add_u32 v3, 0x%x, v3" % F_H4)
            ins = "buffer_load_dword v%d, v3, s[%d:%d], 0 offen sc1" % (100 + i, S_WS, S_WS + 3)
            if tag: a.vmem(ins, tag)
            else: a(ins)

    def w2flag_check(self):
        a = self.a
        for i in range(3): a("v_xor_b32 v%d, s%d, v%d" % (104 + i, sNONCE, 100 + i))
        a("v_or3_b32 v104, v104, v105, v106")
        a("v_cmp_ne_u32 vcc, 0, v104")

    def h_uload(self):
        a = self.a
        if self.noflags: a.wait_vm("ssm")
        if not self.noflags:
            dn = a.newlabel("L_h1ok")
            a.wait_vm("h1f")
            for i in range(4): a("v_xor_b32 v%d, s%d, v%d" % (96 + i, sNONCE, 96 + i))
            a("v_or3_b32 v96, v96, v97, v98")
            a("v_or_b32 v96, v96, v99")
            a("v_cmp_ne_u32 vcc, 0, v96")
            a("s_cbranch_vccz %s" % dn)
            a("s_lshl_b32 s%d, s%d, 12" % (sT0, sC))
            a("s_add_u32 s%d, s%d, 0x%x" % (sT0, sT0, F_H1))
            self.poll(sT0, 32, 4, 128)
            a.label(dn)
        self.stamp(3)
        a("s_lshl_b32 s%d, s%d, 6" % (sT0, sC))
        a("s_lshl_b32 s%d, s%d, 1" % (sT1, sR))
        a("s_add_u32 s%d, s%d, s%d" % (sT0, sT0, sT1))
        a("s_lshl_b32 s%d, s%d, 12" % (sT0, sT0))
        a("s_lshl_b32 s%d, s%d, 11" % (sT1, sRW))
        a("s_add_u32 s%d, s%d, s%d" % (sT0, sT0, sT1))
        a("v_lshlrev_b32 v4, 4, v1")
        a("v_add_u32 v5, s%d, v4" % sT0)
        a.vmem("buffer_load_dwordx4 v[20:23], v5, s[%d:%d], 0 offen sc1" % (S_WS, S_WS + 3), "u")
        a.vmem("buffer_load_dwordx4 v[24:27], v5, s[%d:%d], 0 offen offset:1024 sc1" % (S_WS, S_WS + 3), "u")
        self.h_tbuild(0)
        self.h_tbuild(1)
        if "w2early" in self.exp:
            self.w2_voff()
            self.w2_early()
        a("v_lshlrev_b32 v4, 4, v1")
        a("s_lshr_b32 s%d, s%d, 1" % (sT0, sRW))
        a("s_mul_i32 s%d, s%d, %d" % (sT0, sT0, U_CH))
        a("s_and_b32 s%d, s%d, 1" % (sT1, sRW))
        a("s_lshl_b32 s%d, s%d, 11" % (sT2, sT1))
        a("s_add_u32 s%d, s%d, s%d" % (sT0, sT0, sT2))
        a("s_add_u32 s%d, s%d, %d" % (sT0, sT0, L_U))
        a("v_add_u32 v6, s%d, v4" % sT0)
        for i in range(4): a("v_mov_b32 v%d, 0" % (28 + i))
        a("s_cmp_eq_u32 s%d, 1" % sT1)
        a("s_cselect_b32 exec_lo, -1, 0")
        a("s_mov_b32 exec_hi, 0")
        a("ds_write_b128 v6, v[28:31] offset:2048")
        a("s_mov_b64 exec, -1")
        a.wait_vm("u")
        a("ds_write_b128 v6, v[20:23]")
        a("ds_write_b128 v6, v[24:27] offset:1024")

    def norm_seq(self, j):
        a = self.a
        X = 20 + 8 * j
        seq = []
        for half in range(2):
            s1 = self.norm2(X + 4 * half, 104); s2 = self.norm2(X + 4 * half + 2, 110)
            if "hnonorm" in self.exp and j >= 2:
                s1 = ["s_nop 0"] * 8; s2 = ["s_nop 0"] * 8
            for x, y in zip(s1, s2):
                seq.append(x); seq.append(y)
            if "wmid" in self.exp:
                seq.append(lambda half=half: a.lds("ds_write_b128 v116, v[%d:%d] offset:%d" % (X + 4 * half, X + 4 * half + 3, L_XN + (j % NXN) * 8192 + half * 1024), "xw%d" % j))
        if not ("hnowrite" in self.exp and j >= 2) and "wmid" not in self.exp:
            for half in range(2):
                seq.append(lambda half=half: a.lds("ds_write_b128 v116, v[%d:%d] offset:%d" % (X + 4 * half, X + 4 * half + 3, L_XN + (j % NXN) * 8192 + half * 1024), "xw%d" % j))
        return seq

    def h_gemm1_side(self):
        a = self.a
        if self.w2s:
            a.wait_vm("w2sl")
            a.vmem("buffer_store_dwordx4 v[224:227], v232, s[%d:%d], s86 offen sc1" % (S_WS, S_WS + 3), "w2st")
            a.vmem("buffer_store_dwordx4 v[228:231], v232, s[%d:%d], s86 offen offset:512 sc1" % (S_WS, S_WS + 3), "w2st")
        if "hprio" in self.exp: a("s_setprio 2")
        for x in self.norm_seq(0): self.run(x)
        s1 = self.norm_seq(1)
        h = len(s1) // 2
        for x in s1[:h]: self.run(x)
        for x in s1[h:]: self.run(x)
        if not self.noflags:
            a.vmem("buffer_load_dword v19, v7, s[%d:%d], 0 offen sc1" % (S_DBG, S_DBG + 3), "nonce")
        s2 = self.norm_seq(2)
        for x in s2[:h]: self.run(x)
        a.need_lds("xw0", "xw1")
        if "V3" in self.exp: a.wait_vm("w1c1")
        a("s_barrier")
        for x in s2[h:]: self.run(x)
        for j in range(8):
            if j + 3 <= 7:
                for x in self.norm_seq(j + 3): self.run(x)
            if j == self.pf2j and "pf2" in self.exp: self.line_prefetch("w2", 242)
            if j == 1: self.h_ssm_load()
            if j == (self.w2j if self.w2s else 4) and not self.noflags:
                self.get_nonce()
            if j == 5:
                if not self.noflags:
                    a("s_lshl_b32 s%d, s%d, 12" % (sT0, sC))
                    a("s_add_u32 s%d, s%d, 0x%x" % (sT0, sT0, F_H1))
                    a("v_and_b32 v2, 31, v1")
                    a("v_lshlrev_b32 v2, 7, v2")
                    a("v_add_u32 v2, s%d, v2" % sT0)
                if self.w2s:
                    skf = a.newlabel("L_w2f")
                    a("s_cmp_lg_u32 s%d, 0" % sRW)
                    a("s_cbranch_scc1 %s" % skf)
                    self.w2flag_loads(tag=None)
                    a.label(skf)
                if not self.noflags:
                    a.vmem("buffer_load_dwordx4 v[96:99], v2, s[%d:%d], 0 offen sc1" % (S_WS, S_WS + 3), "h1f")
            if j + 1 <= 6:
                if j + 2 <= 7 and "hnowrite" not in self.exp: a.need_lds("xw%d" % (j + 2))
                if j == self.w2j and self.w2s: a.wait_vm("w2st")
                a("s_barrier")
                if j == self.w2j and self.w2s:
                    sk = a.newlabel("L_w2c")
                    a("s_cmp_lt_u32 s2, 172")
                    a("s_cselect_b32 s4, s%d, 1" % sRW)
                    a("s_cmp_lg_u32 s4, 0")
                    a("s_cbranch_scc1 %s" % sk)
                    a("s_lshl_b32 s4, s2, 7")
                    a("s_add_u32 s%d, s4, 0x%x" % (sT2, F_H4))
                    q = list(a.vm.q)
                    self.flag_store(sT2, "flag", 2, 3)
                    a.vm.q = q
                    a.label(sk)
                if "itst" in self.exp: self.stamp(23 + j)
        if "hprio" in self.exp: a("s_setprio 0")
        self.h_uload()
        if self.w2s:
            lp = a.newlabel("L_w2p"); dn = a.newlabel("L_w2d")
            a("s_cmp_lg_u32 s%d, 0" % sRW)
            a("s_cbranch_scc1 %s" % dn)
            a("s_mov_b32 s%d, 0" % sT3)
            a.label(lp)
            self.w2flag_check()
            a("s_cbranch_vccz %s" % dn)
            self.w2flag_loads(tag=None)
            a("s_waitcnt vmcnt(0)")
            a("s_add_u32 s%d, s%d, 1" % (sT3, sT3))
            a("s_cmp_lt_u32 s%d, 100000" % sT3)
            a("s_cbranch_scc1 %s" % lp)
            if "pf4" in self.exp:
                lok = a.newlabel("L_w2ok")
                a.lines.pop()
                a("s_cbranch_scc1 %s" % lp)
            a.label(dn)
            if "pf4" in self.exp:
                skp = a.newlabel("L_pf4")
                a("s_cmp_lg_u32 s%d, 0" % sRW)
                a("s_cbranch_scc1 %s" % skp)
                a("s_lshr_b32 s%d, s2, 3" % sT0)
                if "map42" in self.exp:
                    a("s_mul_i32 s%d, s%d, %d" % (sT0, sT0, 172 * 128))
                    a("s_bfe_u32 s%d, s2, 0x10002" % sT1)
                    a("s_mul_i32 s%d, s%d, %d" % (sT1, sT1, 4 * 176128))
                    a("s_add_u32 s%d, s%d, s%d" % (sT0, sT0, sT1))
                    nl = 172
                else:
                    a("s_mul_i32 s%d, s%d, %d" % (sT0, sT0, 344 * 128))
                    nl = 344
                a("s_add_u32 s%d, s%d, 0x%x" % (sT0, sT0, WS_W2S))
                for i in range((nl + 63) // 64):
                    a("v_add_u32 v3, %d, v1" % (64 * i))
                    a("v_min_u32 v3, %d, v3" % (nl - 1))
                    a("v_lshlrev_b32 v3, 7, v3")
                    a("v_add_u32 v3, s%d, v3" % sT0)
                    a("buffer_load_dword v%d, v3, s[%d:%d], 0 offen sc1" % (240 + (i & 3), S_WS, S_WS + 3))
                a.label(skp)
        self.w2_voff()
        a.lg0()
        a("s_barrier")
        self.stamp(2)

    def h_gemm2(self):
        a = self.a
        HF, ACC = 20, 196
        WBUF = [228, 2]
        AB = 244
        PF = 10
        a("s_lshr_b32 s75, s%d, 1" % sRW)
        a("s_and_b32 s76, s%d, 1" % sRW)
        if "poller3" in self.exp:
            lp3 = a.newlabel("L_hp3"); lgo = a.newlabel("L_hgo")
            a("s_cmp_eq_u32 s%d, 3" % sRW)
            a("s_cbranch_scc1 %s" % lp3)
            q0 = list(a.vm.q)
            for m in range(9):
                a("s_add_u32 s%d, s%d, %d" % (sT0, sRW, 3 * m))
                if m == 8: a("s_min_u32 s%d, s%d, 25" % (sT0, sT0))
                a("s_lshr_b32 s%d, s%d, 1" % (sT1, sT0))
                a("s_and_b32 s%d, s%d, 1" % (sT0, sT0))
                a("s_mul_i32 s71, s%d, %d" % (sT0, NB_H))
                a("s_add_u32 s71, s71, s%d" % sT1)
                a("s_lshl_b32 s71, s71, 12")
                a("s_mul_i32 s70, s%d, 22" % sT0)
                a("s_add_u32 s70, s70, s%d" % sT1)
                a("s_lshl_b32 s70, s70, %d" % (12 if self.w2s else 15))
                self.w2_dma(71, L_B, 70, 0, "w2b")
            a("s_branch %s" % lgo)
            a.label(lp3)
            if not self.noflags:
                a("s_lshl_b32 s%d, s%d, 10" % (sT0, sR))
                a("s_add_u32 s%d, s%d, 0x%x" % (sT0, sT0, F_H2))
                self.poll(sT0, 8, 4, 128)
            a("v_mov_b32 v2, %d" % (L_SYNC + 60))
            a("v_mov_b32 v3, 1")
            a("ds_write_b32 v2, v3")
            a.label(lgo)
        else:
            def w2b_slot(m):
                a("s_add_u32 s%d, s%d, %d" % (sT0, sRW, 4 * m))
                if m == 6: a("s_min_u32 s%d, s%d, 25" % (sT0, sT0))
                a("s_lshr_b32 s%d, s%d, 1" % (sT1, sT0))
                a("s_and_b32 s%d, s%d, 1" % (sT0, sT0))
                a("s_mul_i32 s71, s%d, %d" % (sT0, NB_H))
                a("s_add_u32 s71, s71, s%d" % sT1)
                a("s_lshl_b32 s71, s71, 12")
                a("s_mul_i32 s70, s%d, 22" % sT0)
                a("s_add_u32 s70, s70, s%d" % sT1)
                a("s_lshl_b32 s70, s70, %d" % (12 if self.w2s else 15))
                self.w2_dma(71, L_B, 70, 0, "w2b" if m < self.w2p1 else "w2b2")
            self.w2b_slot = w2b_slot
            if "w2early" in self.exp:
                for m in range(4):
                    a("s_add_u32 s%d, s%d, %d" % (sT0, sRW, 4 * m + (4 if m == 0 else 10)))
                    self.w2_slot_dma("w2b")
            else:
                for m in range(self.w2p1):
                    w2b_slot(m)
        a("s_lshl_b32 s%d, s%d, 2" % (sT2, sR))
        a("s_lshl_b32 s4, s76, 1")
        a("s_add_u32 s%d, s%d, s4" % (sT2, sT2))
        a("s_mul_i32 s%d, s%d, 44032" % (sT2, sT2))
        a("s_mul_i32 s4, s75, %d" % (22 * 1024))
        a("s_add_u32 s%d, s%d, s4" % (sT2, sT2))
        a("s_add_u32 s%d, s%d, 0x%x" % (sT2, sT2, WS_H))
        a("v_lshlrev_b32 v18, 4, v1")
        a("v_add_u32 v18, s%d, v18" % sT2)
        a("v_add_u32 v19, 44032, v18")
        a("v_lshrrev_b32 v2, 4, v1")
        a("v_and_b32 v3, 15, v1")
        a("v_lshrrev_b32 v3, 2, v3")
        a("v_lshrrev_b32 v4, 1, v2")
        a("v_lshlrev_b32 v4, 4, v4")
        a("v_and_b32 v5, 1, v2")
        a("v_lshl_add_u32 v4, v5, 2, v4")
        a("v_add_u32 v4, v4, v3")
        a("v_lshlrev_b32 v4, 7, v4")
        a("v_and_b32 v6, 1, v1")
        a("v_lshl_add_u32 v4, v6, 3, v4")
        a("v_lshlrev_b32 v5, 1, v5")
        a("v_lshrrev_b32 v6, 1, v3")
        a("v_add_u32 v5, v5, v6")
        a("v_lshlrev_b32 v5, 1, v5")
        a("v_and_b32 v6, 3, v1")
        a("v_lshrrev_b32 v6, 1, v6")
        a("s_mul_i32 s4, s75, %d" % B_HALF)
        if L_B: a("s_add_u32 s4, s4, %d" % L_B)
        for b in range(4):
            a("v_add_u32 v7, %d, v6" % (2 * b))
            a("v_xor_b32 v7, v7, v5")
            a("v_lshl_add_u32 v7, v7, 4, v4")
            a("v_add_u32 v%d, s4, v7" % (AB + b))
        a("s_mul_i32 s5, s75, %d" % (NA_H * 4096))
        a("s_add_u32 s5, s5, %d" % L_A)
        a("s_sub_u32 s77, s5, s4")
        a("s_sub_u32 s79, s4, s5")
        for i in range(32): a("v_mov_b32 v%d, 0" % (ACC + i))
        if "poller3" in self.exp:
            a("s_mov_b32 s5, %d" % (L_SYNC + 60))
            self.lds_wait(5, 1, 253, 254)
        else:
            self.stamp(5)
            if not self.noflags and "noh2" not in self.exp:
                a("s_lshl_b32 s%d, s%d, 10" % (sT0, sR))
                a("s_add_u32 s%d, s%d, 0x%x" % (sT0, sT0, F_H2))
                self.poll(sT0, 8, 4, 128)
        self.stamp(6)

        def hload(i):
            ops = []
            for t in range(2):
                def f(t=t):
                    r = HF + (i * 2 + t) * 4
                    so = i * 1024
                    if so < 4096:
                        a.vmem("buffer_load_dwordx4 v[%d:%d], v%d, s[%d:%d], 0 offen offset:%d sc1" % (r, r + 3, 18 + t, S_WS, S_WS + 3, so), "h%d" % i)
                    else:
                        if t == 0: a("s_mov_b32 s80, %d" % (so & ~4095))
                        a.vmem("buffer_load_dwordx4 v[%d:%d], v%d, s[%d:%d], s80 offen offset:%d sc1" % (r, r + 3, 18 + t, S_WS, S_WS + 3, so & 4095), "h%d" % i)
                ops.append(f)
            return ops

        def read_ops(i):
            buf = WBUF[i & 1]
            if i < 13: so = i * 4096
            elif i < 19: so = (i - 13) * 4096
            else: so = (i - 19) * 4096
            ops = []
            sw = {13: 77, 19: 79}.get(i)
            if sw:
                for b in range(4): ops.append("v_add_u32 v%d, s%d, v%d" % (AB + b, sw, AB + b))
            for b in range(4):
                for hh in range(2):
                    r0 = buf + 4 * b + 2 * hh
                    ops.append(lambda r0=r0, b=b, hh=hh: a.lds("ds_read_b64_tr_b16 v[%d:%d], v%d offset:%d" % (r0, r0 + 1, AB + b, so + hh * 1024), "w%d_%d" % (i, b)))
            return ops

        def mfma_ops(i):
            buf = WBUF[i & 1]
            ops = []
            for b in range(4):
                for t in range(2):
                    def f(b=b, t=t):
                        if b == 0 and t == 0:
                            a.wait_both("h%d" % i, ["w%d_%d" % (i, bb) for bb in range(4)])
                        acc = ACC + (b * 2 + t) * 4
                        hr = HF + (i * 2 + t) * 4
                        a("v_mfma_f32_16x16x32_bf16 v[%d:%d], v[%d:%d], v[%d:%d], v[%d:%d]" % (acc, acc + 3, buf + 4 * b, buf + 4 * b + 3, hr, hr + 3, acc, acc + 3))
                    ops.append(f)
            return ops

        allh = []
        for i in range(22): allh += hload(i)
        hp = 0
        for f in allh[:self.hinit]: f()
        hp = self.hinit
        for m in range(self.w2p1, 7):
            self.w2b_slot(m)
        a("s_waitcnt vmcnt(%d)" % min(63, self.hinit + 4 * (7 - self.w2p1)))
        self.m_sync(11, va=253, vb=254)
        self.stamp(19)
        for f in read_ops(0): self.run(f)
        last = a.newlabel("L_g2l")
        for i in range(22):
            if i == 12:
                a.lg0()
                a("s_barrier")
            if i == 18:
                a.lg0()
                a("s_barrier")
            if self.w2p1 < 7 and i == 2 * self.w2p1 - 1:
                a.wait_vm("w2b2")
                self.m_sync(10, va=253, vb=254)
            if i == 4:
                a("v_mov_b32 v253, %d" % (L_SYNC + 56))
                a("v_mov_b32 v254, 1")
                a("s_mov_b64 exec, 1")
                a.lds("ds_add_u32 v253, v254", "sig")
                a("s_mov_b64 exec, -1")
            if i == 21:
                a("s_cmp_eq_u32 s75, 1")
                a("s_cbranch_scc1 %s" % last)
            fill = []
            if i < 21: fill += read_ops(i + 1)
            nl = self.hper if hp < 2 * (i + self.hwin) else 2
            nl = min(nl, len(allh) - hp)
            fill = allh[hp:hp + nl] + fill
            hp += nl
            interleave(a, mfma_ops(i), fill)
        a.label(last)
        a.lg0()
        self.stamp(22)
        a("v_and_b32 v2, 15, v1")
        a("v_lshrrev_b32 v3, 4, v1")
        a("v_mul_u32_u24 v2, 272, v2")
        a("v_lshl_add_u32 v2, v3, 4, v2")
        a("s_mul_i32 s4, s75, %d" % P_STRIDE)
        a("s_mul_i32 s5, s76, %d" % (32 * 272))
        a("s_add_u32 s4, s4, s5")
        a("s_add_u32 s4, s4, %d" % L_P)
        a("v_add_u32 v2, s4, v2")
        for b in range(4):
            for t in range(2):
                acc = ACC + (b * 2 + t) * 4
                a("ds_write_b128 v2, v[%d:%d] offset:%d" % (acc, acc + 3, t * 16 * 272 + b * 64))
        self.final_x_load(240, 244)
        a.lg0()
        a("s_barrier")

    def final(self):
        a = self.a
        P0 = L_P; P1 = L_P + P_STRIDE; YL = L_Y
        XR = 240; OA = 244
        a("s_and_b32 s%d, s%d, 3" % (sT0, sW))
        a("s_lshr_b32 s%d, s%d, 2" % (sT1, sW))
        a("v_lshrrev_b32 v2, 2, v1")
        a("v_and_b32 v3, 3, v1")
        a("s_lshl_b32 s4, s%d, 4" % sT0)
        a("v_add_u32 v2, s4, v2")
        a("v_mul_u32_u24 v4, 272, v2")
        a("v_lshl_add_u32 v4, v3, 5, v4")
        a("s_lshl_b32 s4, s%d, 7" % sT1)
        a("s_add_u32 s4, s4, %d" % P0)
        a("v_add_u32 v4, s4, v4")
        a("ds_read_b128 v[20:23], v4")
        a("ds_read_b128 v[24:27], v4 offset:16")
        a("ds_read_b128 v[28:31], v4 offset:%d" % (P1 - P0))
        a("ds_read_b128 v[32:35], v4 offset:%d" % (P1 - P0 + 16))
        a("v_lshlrev_b32 v6, 3, v2")
        a("v_add_u32 v6, %d, v6" % L_STATS)
        a("ds_read_b64 v[36:37], v6")
        a("v_lshrrev_b32 v7, 4, v1")
        a("v_lshlrev_b32 v7, 3, v7")
        a("v_and_b32 v8, 15, v1")
        a("v_lshrrev_b32 v8, 2, v8")
        a("v_add_u32 v7, v7, v8")
        a("s_lshl_b32 s4, s%d, 5" % sT1)
        a("v_add_u32 v7, s4, v7")
        a("v_mul_u32_u24 v7, 144, v7")
        a("v_and_b32 v8, 3, v1")
        a("v_lshl_add_u32 v7, v8, 3, v7")
        a("s_lshl_b32 s4, s%d, 5" % sT0)
        a("s_add_u32 s4, s4, %d" % YL)
        a("v_add_u32 v7, s4, v7")
        a("ds_read_b64_tr_b16 v[38:39], v7")
        a("ds_read_b64_tr_b16 v[40:41], v7 offset:%d" % (4 * 144))
        a("v_and_b32 v8, 3, v1")
        a("v_lshlrev_b32 v8, 4, v8")
        a("v_lshrrev_b32 v9, 2, v1")
        a("v_or_b32 v8, v8, v9")
        a("v_lshlrev_b32 v8, 2, v8")
        a("v_mov_b32 v10, 0xbfb8aa3b")
        a("v_mov_b32 v11, 1.0")
        a("s_waitcnt lgkmcnt(0)")
        for i in range(4):
            a("ds_bpermute_b32 v%d, v8, v%d" % (42 + i, 38 + i))
        for i in range(8):
            a("v_add_f32 v%d, v%d, v%d" % (20 + i, 20 + i, 28 + i))
        for i in range(4):
            a("v_cvt_pk_bf16_f32 v%d, v%d, v%d" % (28 + i, 20 + 2 * i, 21 + 2 * i))
        for i in range(4):
            a("v_alignbit_b32 v%d, v%d, 0, 16" % (20 + 2 * i, 28 + i))
            a("v_and_b32 v%d, v%d, v%d" % (21 + 2 * i, vMHI, 28 + i))
        for i in range(8):
            a("v_mul_f32 v%d, v10, v%d" % (48 + i, 20 + i))
        for i in range(8):
            a("v_exp_f32 v%d, v%d" % (48 + i, 48 + i))
        a("s_waitcnt vmcnt(0)")
        a("v_sub_f32 v12, 0, v36")
        for i in range(4):
            a("v_dot2_f32_bf16 v%d, v%d, v%d, v12" % (72 + 2 * i, XR + i, vONELO))
            a("v_dot2_f32_bf16 v%d, v%d, v%d, v12" % (73 + 2 * i, XR + i, vONEHI))
        for i in range(8):
            a("v_add_f32 v%d, v11, v%d" % (48 + i, 48 + i))
        for i in range(4):
            a("v_cvt_pk_bf16_f32 v%d, v%d, v%d" % (80 + i, 72 + 2 * i, 73 + 2 * i))
        for i in range(8):
            a("v_rcp_f32 v%d, v%d" % (48 + i, 48 + i))
        for i in range(4):
            a("v_alignbit_b32 v%d, v%d, 0, 16" % (72 + 2 * i, 80 + i))
            a("v_and_b32 v%d, v%d, v%d" % (73 + 2 * i, vMHI, 80 + i))
        for i in range(8):
            a("v_mul_f32 v%d, v%d, v37" % (72 + i, 72 + i))
        for i in range(8):
            a("v_mul_f32 v%d, v%d, v%d" % (20 + i, 20 + i, 48 + i))
        for i in range(4):
            a("v_cvt_pk_bf16_f32 v%d, v%d, v%d" % (80 + i, 72 + 2 * i, 73 + 2 * i))
        for i in range(4):
            a("v_cvt_pk_bf16_f32 v%d, v%d, v%d" % (28 + i, 20 + 2 * i, 21 + 2 * i))
        a("s_waitcnt lgkmcnt(0)")
        for i in range(4):
            a("v_and_b32 v%d, v%d, v%d" % (56 + 2 * i, vMLO, 42 + i))
            a("v_and_b32 v%d, v%d, v%d" % (57 + 2 * i, vMHI, 42 + i))
            a("v_and_b32 v%d, v%d, v%d" % (64 + 2 * i, vMLO, 28 + i))
            a("v_and_b32 v%d, v%d, v%d" % (65 + 2 * i, vMHI, 28 + i))
        for i in range(4):
            a("v_dot2_f32_bf16 v%d, v%d, v%d, 0" % (72 + 2 * i, 80 + i, 56 + 2 * i))
            a("v_dot2_f32_bf16 v%d, v%d, v%d, 0" % (73 + 2 * i, 80 + i, 57 + 2 * i))
        for i in range(4):
            a("v_alignbit_b32 v%d, v%d, 0, 16" % (88 + 2 * i, XR + i))
            a("v_and_b32 v%d, v%d, v%d" % (89 + 2 * i, vMHI, XR + i))
        for i in range(4):
            a("v_cvt_pk_bf16_f32 v%d, v%d, v%d" % (80 + i, 72 + 2 * i, 73 + 2 * i))
        for i in range(4):
            a("v_dot2_f32_bf16 v%d, v%d, v%d, 0" % (72 + 2 * i, 80 + i, 64 + 2 * i))
            a("v_dot2_f32_bf16 v%d, v%d, v%d, 0" % (73 + 2 * i, 80 + i, 65 + 2 * i))
        for i in range(4):
            a("v_cvt_pk_bf16_f32 v%d, v%d, v%d" % (80 + i, 72 + 2 * i, 73 + 2 * i))
        for i in range(4):
            a("v_dot2_f32_bf16 v%d, v%d, v%d, v%d" % (72 + 2 * i, 80 + i, vONELO, 88 + 2 * i))
            a("v_dot2_f32_bf16 v%d, v%d, v%d, v%d" % (73 + 2 * i, 80 + i, vONEHI, 89 + 2 * i))
        for i in range(4):
            a("v_cvt_pk_bf16_f32 v%d, v%d, v%d" % (80 + i, 72 + 2 * i, 73 + 2 * i))
        fl = " sc1" if "outsc1" in self.exp else (" nt" if "outnt" in self.exp else (" sc0 sc1" if "outsc01" in self.exp else ""))
        a("buffer_store_dwordx4 v[80:83], v%d, s[%d:%d], 0 offen%s" % (OA, S_OUT, S_OUT + 3, fl))

    def build(self):
        a = self.a
        self.p0()
        self.m_front()
        self.stamp(1)
        self.m_prep()
        self.stamp(10)
        self.m_gemm1()
        self.stamp(4)
        self.m_conv()
        self.m_tail()
        a("s_branch L_final")
        a.label("L_H")
        self.h_front()
        self.stamp(1)
        self.h_stats()
        self.stamp(11)
        self.h_gemm1_side()
        self.h_gemm2()
        a.label("L_final")
        a.lg_clear()
        self.stamp(8)
        self.final()
        self.stamp(9)
        self.dump_stamps()
        if "noendwait" not in self.exp: a("s_waitcnt vmcnt(0)")
        a.label("L_end")
        a.label("L_codeend")
        a("s_endpgm")
        lines, n = hazard.fix(a.lines)
        self.nnops = n
        hdr = """; Kernarg layout: x,k,v,shift_k,ssm_k,ssm_D,B_x,w1,w2,out,debug,ws (8-byte pointers)
; @launch grid=(256,1,1) block=(512,1,1) lds=%d
.amdgcn_target "amdgcn-amd-amdhsa--gfx950"
.text
.globl %s
.p2align 8
.type %s,@function
%s:
""" % (LDS_SIZE, KNAME, KNAME, KNAME)
        ftr = """.section .rodata,"a"
.p2align 6
.amdhsa_kernel %s
  .amdhsa_next_free_vgpr 256
  .amdhsa_next_free_sgpr 102
  .amdhsa_accum_offset 256
  .amdhsa_group_segment_fixed_size 0
  .amdhsa_kernarg_size 96
  .amdhsa_user_sgpr_count 2
  .amdhsa_user_sgpr_kernarg_segment_ptr 1
  .amdhsa_system_sgpr_workgroup_id_x 1
.end_amdhsa_kernel
""" % KNAME
        return hdr + "\n".join(lines) + "\n" + ftr

if __name__ == "__main__":
    import argparse
    ap = argparse.ArgumentParser()
    ap.add_argument("-o", default="k.s")
    ap.add_argument("--stamps", action="store_true")
    ap.add_argument("--noflags", action="store_true")
    ap.add_argument("--exp", default="")
    args = ap.parse_args()
    g = Gen(stamps=args.stamps, noflags=args.noflags, exp=args.exp)
    txt = g.build()
    open(args.o, "w").write(txt)
    print("wrote", args.o, len(txt.splitlines()), "lines; hazard nops:", g.nnops)
```

```python
import sys
from emit import *
import hazard

KNAME = "recurrent_scan__ssm_conv_h3__dense_activation_relu__prompt_kernel"

WS_KVT = 0
WS_YT = 2 << 20
WS_H = 4 << 20
WS_FLAG = 10 << 20
F_H1 = WS_FLAG
F_H2 = WS_FLAG + 32768
F_H3 = WS_FLAG + 65536
F_H4 = WS_FLAG + 98304
WS_STAMP = WS_FLAG + (256 << 10)
WS_W2S = 12 << 20
WS_SIZE = 16 << 20

L_XN = 0
NXN = 4
L_W1 = 32768
W1_SLOT = 24576
NW1 = 5
L_PREP = L_W1 + 4 * W1_SLOT
L_A = L_W1 + 3 * W1_SLOT
NA_H = 6
L_T = L_A + 8
T_CH = 16640
T_CP = 4160
L_U = L_A + 33408
U_CH = 4608
L_B = 0
NB_H = 13
B_HALF = NB_H * 4096
L_Y = 16384
L_P = L_B + 7 * 4096
P_STRIDE = B_HALF
L_STATS = 161792
L_SYNC = 162304
LDS_SIZE = 163840
assert L_U % 16 == 0 and L_U + 2 * U_CH <= L_W1 + 5 * W1_SLOT and L_T + 2 * T_CH <= L_U
assert L_A + 2 * NA_H * 4096 <= L_STATS and 2 * B_HALF <= L_A and L_W1 + NW1 * W1_SLOT <= L_STATS

S_X, S_K, S_V, S_W1, S_W2, S_OUT, S_SSM, S_WS, S_SH, S_DBG = 8, 12, 16, 20, 24, 28, 32, 36, 40, 44
sR, sC, sW, sNONCE = 48, 49, 50, 51
sF0, sBP, sNB = 52, 53, 54
sT0, sT1, sT2, sT3 = 55, 56, 57, 58
sRW = 59
sEX = 60
sROT = 62
sDP = 64
sDD = 66
sM0B = 67
sP0, sP1 = 68, 69
sUOK = 72
sID = 81
sD = 85
sINV1, sINV2 = 73, 74
vMLO, vMHI, vONELO, vONEHI, vONES = 248, 249, 250, 251, 252

def merge(*lists):
    lists = [l for l in lists if l]
    tot = sum(len(l) for l in lists)
    out = []; idx = [0] * len(lists)
    for s in range(tot):
        best = min((i for i in range(len(lists)) if idx[i] < len(lists[i])), key=lambda i: (idx[i] + 0.5) / len(lists[i]))
        out.append(lists[best][idx[best]]); idx[best] += 1
    return out

class Gen:
    def __init__(self, stamps=False, noflags=False, exp=""):
        self.exp = set(exp.split(",")) if exp else set()
        self.a = Asm()
        self.stamps = stamps
        self.noflags = noflags
        self.relax_ln = "relax_ln" in self.exp
        self.stampset = None
        self.h2n = 75
        self.h1j = 0
        self.w2p1 = 7
        for e in self.exp:
            if e.startswith('p1='): self.w2p1 = int(e[3:])
        for e in self.exp:
            if e.startswith('h1j='): self.h1j = int(e[4:])
        self.w2j = 0
        self.w2s = 'w2s' in self.exp
        self.KS = 4096 if self.w2s else 32768
        self.pf2j = 0
        for e in self.exp:
            if e.startswith('pj='): self.pf2j = int(e[3:])
            if e.startswith('h2n='): self.h2n = int(e[4:])
        self.hwin = 22; self.hper = 6; self.hinit = 12
        for e in self.exp:
            if e.startswith('hw='): self.hwin, self.hper, self.hinit = [int(x) for x in e[3:].split('+')]
        for e in self.exp:
            if e.startswith("st="):
                self.stampset = set(int(x) for x in e[3:].split("+"))

    def stamp(self, idx):
        if not self.stamps: return
        if self.stampset is not None and idx not in self.stampset: return
        a = self.a
        a("s_memrealtime s[4:5]")
        if "clk" in self.exp and idx in (14, 2, 4, 16):
            a("s_memtime s[6:7]")
        a.lg0()
        a("v_writelane_b32 v255, s4, %d" % idx)
        if "clk" in self.exp and idx in (14, 2, 4, 16):
            a("v_writelane_b32 v255, s6, %d" % {14: 29, 2: 30, 4: 31, 16: 15}[idx])

    def dump_stamps(self):
        if not self.stamps: return
        a = self.a
        if "entry" in self.exp:
            a("v_writelane_b32 v255, s90, 31")
        if "dbgst" in self.exp:
            sk = a.newlabel("L_ds")
            a("s_or_b32 s4, s2, s%d" % sW)
            a("s_cmp_lg_u32 s4, 0")
            a("s_cbranch_scc1 %s" % sk)
            a("v_readlane_b32 s4, v255, 0")
            a("s_nop 3")
            a("v_subrev_u32 v3, s4, v255")
            order = [12, 10, 14, 2, 4, 16, 17, 18, 7, 8, 9]
            for k, i in enumerate(order):
                a("v_readlane_b32 s5, v3, %d" % i)
                a("s_nop 3")
                a("v_mov_b32 v4, s5")
                a("v_mov_b32 v5, %d" % (4 * (k + 1)))
                a("s_mov_b64 exec, 1")
                a("buffer_store_dword v4, v5, s[%d:%d], 0 offen" % (S_DBG, S_DBG + 3))
                a("s_mov_b64 exec, -1")
            a.label(sk)
        a("s_lshl_b32 s%d, s2, 3" % sT0)
        a("s_add_u32 s%d, s%d, s%d" % (sT0, sT0, sW))
        a("s_lshl_b32 s%d, s%d, 7" % (sT0, sT0))
        a("s_add_u32 s%d, s%d, 0x%x" % (sT0, sT0, WS_STAMP))
        a("v_lshlrev_b32 v2, 2, v1")
        a("v_add_u32 v2, s%d, v2" % sT0)
        a("s_mov_b32 exec_lo, -1")
        a("s_mov_b32 exec_hi, 0")
        a("buffer_store_dword v255, v2, s[%d:%d], 0 offen" % (S_WS, S_WS + 3))
        a("s_mov_b64 exec, -1")

    def run(self, x):
        if callable(x): x()
        else: self.a(x)

    def spread(self, seq, extra):
        a = self.a
        if not extra:
            for x in seq: self.run(x)
            return
        step = max(1, len(seq) // (len(extra) + 1))
        k = 0
        for i, ins in enumerate(seq):
            self.run(ins)
            if (i + 1) % step == 0 and k < len(extra):
                self.run(extra[k]); k += 1
        while k < len(extra):
            self.run(extra[k]); k += 1

    def map_rc(self):
        a = self.a
        if "map42" in self.exp:
            a("s_and_b32 s%d, s2, 3" % sR)
            a("s_lshl_b32 s%d, s%d, 3" % (sR, sR))
            a("s_bfe_u32 s3, s2, 0x30003")
            a("s_add_u32 s%d, s%d, s3" % (sR, sR))
            a("s_bfe_u32 s%d, s2, 0x10002" % sC)
            a("s_lshl_b32 s%d, s%d, 2" % (sC, sC))
            a("s_lshr_b32 s3, s2, 6")
            a("s_add_u32 s%d, s%d, s3" % (sC, sC))
        else:
            a("s_and_b32 s%d, s2, 7" % sR)
            a("s_lshr_b32 s3, s2, 6")
            a("s_lshl_b32 s3, s3, 3")
            a("s_add_u32 s%d, s%d, s3" % (sR, sR))
            a("s_bfe_u32 s%d, s2, 0x30003" % sC)

    def rot_calc(self):
        a = self.a
        if "map42" in self.exp:
            a("s_lshl_b32 s%d, s%d, 1" % (sT0, sC))
            a("s_add_u32 s%d, s%d, s%d" % (sT0, sT0, sR))
            a("s_and_b32 s%d, s%d, 7" % (sROT, sT0))
        else:
            a("s_lshr_b32 s%d, s%d, 3" % (sT0, sR))
            a("s_lshl_b32 s%d, s%d, 1" % (sT0, sT0))
            a("s_add_u32 s%d, s%d, s%d" % (sT0, sT0, sC))
            a("s_add_u32 s%d, s%d, s%d" % (sT0, sT0, sR))
            a("s_and_b32 s%d, s%d, 7" % (sROT, sT0))
        if "norot" in self.exp: a("s_mov_b32 s%d, 0" % sROT)

    def p0(self):
        a = self.a
        if self.stamps and "entry" in self.exp:
            a("s_memrealtime s[90:91]")
        a("s_load_dwordx8 s[64:71], s[0:1], 0")
        a("s_cmp_ge_u32 s2, 256")
        a("s_cbranch_scc1 L_end")
        if self.stamps: a("v_mov_b32 v255, 0")
        a("v_lshrrev_b32 v2, 6, v0")
        a("v_and_b32 v1, 63, v0")
        if "codepf0" in self.exp:
            a("s_getpc_b64 s[82:83]")
            a.label("L_pc")
            a("s_sub_u32 s82, s82, L_pc-%s" % KNAME)
            a("s_subb_u32 s83, s83, 0")
            a("v_and_b32 v4, 255, v0")
            a("v_lshlrev_b32 v4, 7, v4")
            a("v_min_u32 v4, L_codeend-%s, v4" % KNAME)
            a("v_mov_b32 v5, s83")
            a("v_add_co_u32 v4, vcc, s82, v4")
            a("v_addc_co_u32 v5, vcc, 0, v5, vcc")
            a.vmem("global_load_dword v244, v[4:5], off", "cpf")
        self.map_rc()
        a("v_readfirstlane_b32 s%d, v2" % sW)
        a("s_mov_b32 s10, 0x200000")
        a("s_mov_b32 s11, 0x00020000")
        a("s_mov_b32 s14, 0x200000")
        a("s_mov_b32 s15, 0x00020000")
        a("s_mov_b32 s18, 0x200000")
        a("s_mov_b32 s19, 0x00020000")
        a("s_movk_i32 s42, 0x1000")
        a("s_mov_b32 s43, 0x00020000")
        a("s_and_b32 s%d, s%d, 3" % (sRW, sW))
        a("s_cmp_ge_u32 s%d, 4" % sW)
        a("s_cbranch_scc1 L_Hfirst")

    def p0_rest(self):
        a = self.a
        for dst, off in ((S_W1, 56), (S_SSM, 32), (S_WS, 88), (S_DBG, 80), (S_W2, 64), (S_OUT, 72), (sDP, 40)):
            a("s_load_dwordx2 s[%d:%d], s[0:1], %d" % (dst, dst + 1, off))
        for dst, size in ((S_W1, 1409024), (S_SSM, 2097152), (S_WS, WS_SIZE), (S_DBG, 256), (S_W2, 1409024), (S_OUT, 2097152)):
            a("s_mov_b32 s%d, 0x%x" % (dst + 2, size))
            a("s_mov_b32 s%d, 0x00020000" % (dst + 3))
        if "dshift" in self.exp:
            a("s_add_u32 s%d, s%d, 1" % (sD, sC))
            a("s_and_b32 s%d, s%d, 7" % (sD, sD))
        else:
            a("s_mov_b32 s%d, s%d" % (sD, sC))
        a("s_lshl_b32 s%d, s%d, 5" % (sID, sC))
        a("s_add_u32 s%d, s%d, s%d" % (sID, sID, sR))
        a("s_mul_i32 s%d, s%d, 6" % (sBP, sC))
        a("s_sub_i32 s%d, s%d, 3" % (sT0, sC))
        a("s_max_i32 s%d, s%d, 0" % (sT0, sT0))
        a("s_sub_u32 s%d, s%d, s%d" % (sBP, sBP, sT0))
        a("s_lshl_b32 s%d, s%d, 5" % (sF0, sBP))
        a("s_cmp_lt_u32 s%d, 3" % sC)
        a("s_cselect_b32 s%d, 12, 10" % sNB)
        a("v_mov_b32 v%d, 0xffff" % vMLO)
        a("v_mov_b32 v%d, 0xffff0000" % vMHI)
        a("v_mov_b32 v%d, 0x3f80" % vONELO)
        a("v_mov_b32 v%d, 0x3f800000" % vONEHI)
        a("v_mov_b32 v%d, 0x3f803f80" % vONES)
        a("s_mov_b32 s%d, 0x05040100" % sP0)
        a("s_mov_b32 s%d, 0x07060302" % sP1)
        a("v_and_b32 v3, 15, v0")
        a("v_lshlrev_b32 v3, 2, v3")
        a("v_add_u32 v3, %d, v3" % L_SYNC)
        a("v_mov_b32 v4, 0")
        a("ds_write_b32 v3, v4")

    def w1_dma_ops(self, j):
        a = self.a
        slot = j % NW1
        ops = []
        def head():
            a("s_add_u32 s%d, s%d, %d" % (sT1, sROT, j))
            a("s_and_b32 s%d, s%d, 7" % (sT1, sT1))
            a("s_mul_i32 s%d, s%d, %d" % (sT1, sT1, 64 * 2752))
            a("s_add_u32 m0, s%d, %d" % (sM0B, slot * W1_SLOT))
            a.vmem("buffer_load_dwordx4 v12, s[%d:%d], s%d offen lds" % (S_W1, S_W1 + 3, sT1), "w1c%d" % j)
        ops.append(head)
        for i in range(1, 6):
            def nxt(i=i):
                a("s_add_u32 m0, s%d, %d" % (sM0B, slot * W1_SLOT + 1024 * i))
                a.vmem("buffer_load_dwordx4 v%d, s[%d:%d], s%d offen lds" % (12 + i, S_W1, S_W1 + 3, sT1), "w1c%d" % j)
            ops.append(nxt)
        return ops

    def w1_voffs(self):
        a = self.a
        V = 12
        a("s_mul_i32 s%d, s%d, %d" % (sT0, sRW, 16 * 2752))
        a("s_lshl_b32 s%d, s%d, 1" % (sT1, sF0))
        a("s_add_u32 s%d, s%d, s%d" % (sT0, sT0, sT1))
        a("s_lshl_b32 s%d, s%d, 1" % (sT1, sNB))
        a("v_mov_b32 v7, 0x40000000")
        for i in range(6):
            a("v_add_u32 v2, %d, v1" % (64 * i))
            a("v_mul_u32_u24 v3, 2731, v2")
            a("v_lshrrev_b32 v3, 16, v3")
            a("v_mul_u32_u24 v4, 24, v3")
            a("v_sub_u32 v4, v2, v4")
            a("v_and_b32 v5, 2, v3")
            a("v_lshrrev_b32 v6, 1, v3")
            a("v_and_b32 v6, 4, v6")
            a("v_or_b32 v5, v5, v6")
            a("v_xor_b32 v4, v4, v5")
            a("v_mul_u32_u24 v5, 2752, v3")
            a("v_lshl_add_u32 v5, v4, 4, v5")
            a("v_add_u32 v5, s%d, v5" % sT0)
            a("v_cmp_gt_u32 vcc, s%d, v4" % sT1)
            a("v_cndmask_b32 v%d, v7, v5, vcc" % (V + i))
        a("s_mul_i32 s%d, s%d, %d" % (sM0B, sRW, 16 * 384))
        a("s_add_u32 s%d, s%d, %d" % (sM0B, sM0B, L_W1))

    def line_prefetch(self, which, vd):
        a = self.a
        a("s_lshr_b32 s%d, s2, 3" % sT0)
        a("v_and_b32 v2, 255, v0")
        if "map42" not in self.exp:
            srd = S_W1 if which == "w1" else S_W2
            a("s_mul_i32 s%d, s%d, %d" % (sT0, sT0, 344 * 128))
            a("v_lshlrev_b32 v3, 7, v2")
            a("v_add_u32 v3, s%d, v3" % sT0)
            a.vmem("buffer_load_dword v%d, v3, s[%d:%d], 0 offen" % (vd, srd, srd + 3), "pf")
            a("v_cmp_gt_u32 vcc, %d, v2" % (344 - 256))
            a("v_add_u32 v3, 32768, v3")
            a("v_mov_b32 v4, 0x40000000")
            a("v_cndmask_b32 v3, v4, v3, vcc")
            a.vmem("buffer_load_dword v%d, v3, s[%d:%d], 0 offen" % (vd + 1, srd, srd + 3), "pf")
        elif which == "w2":
            a("s_mul_i32 s%d, s%d, 43" % (sT0, sT0))
            a("s_bfe_u32 s%d, s2, 0x10002" % sT1)
            a("s_lshl_b32 s%d, s%d, 9" % (sT1, sT1))
            a("s_lshl_b32 s%d, s%d, 10" % (sT0, sT0))
            a("s_add_u32 s%d, s%d, s%d" % (sT0, sT0, sT1))
            a("v_lshrrev_b32 v3, 2, v2")
            a("v_lshlrev_b32 v3, 10, v3")
            a("v_and_b32 v4, 3, v2")
            a("v_lshl_add_u32 v3, v4, 7, v3")
            a("v_add_u32 v3, s%d, v3" % sT0)
            a("v_cmp_gt_u32 vcc, 172, v2")
            a("v_mov_b32 v4, 0x40000000")
            a("v_cndmask_b32 v3, v4, v3, vcc")
            a.vmem("buffer_load_dword v%d, v3, s[%d:%d], 0 offen" % (vd, S_W2, S_W2 + 3), "pf")
        else:
            a("s_lshl_b32 s%d, s%d, 4" % (sT0, sT0))
            a("s_mul_i32 s%d, s%d, 2752" % (sT0, sT0))
            a("s_bfe_u32 s%d, s2, 0x10002" % sT1)
            a("s_mul_i32 s%d, s%d, 1472" % (sT1, sT1))
            a("s_add_u32 s%d, s%d, s%d" % (sT0, sT0, sT1))
            a("v_mul_u32_u24 v3, 5462, v2")
            a("v_lshrrev_b32 v3, 16, v3")
            a("v_mul_u32_u24 v4, 12, v3")
            a("v_sub_u32 v4, v2, v4")
            a("v_mul_u32_u24 v3, 2752, v3")
            a("v_lshl_add_u32 v3, v4, 7, v3")
            a("v_add_u32 v3, s%d, v3" % sT0)
            a("v_cmp_gt_u32 vcc, 192, v2")
            a("v_mov_b32 v4, 0x40000000")
            a("v_cndmask_b32 v3, v4, v3, vcc")
            a.vmem("buffer_load_dword v%d, v3, s[%d:%d], 0 offen" % (vd, S_W1, S_W1 + 3), "pf")

    def m_front(self):
        a = self.a
        a("v_lshrrev_b32 v3, 5, v0")
        a("v_and_b32 v4, 31, v0")
        a("s_lshl_b32 s%d, s%d, 16" % (sT0, sR))
        a("s_lshl_b32 s%d, s%d, 7" % (sT1, sC))
        a("s_add_u32 s%d, s%d, s%d" % (sT0, sT0, sT1))
        a("v_lshlrev_b32 v2, 13, v3")
        a("v_lshl_add_u32 v2, v4, 2, v2")
        a("v_add_u32 v2, s%d, v2" % sT0)
        a("v_add_u32 v5, 0xfffff400, v2")
        a("v_add_u32 v6, 0xfffff800, v2")
        a("v_add_u32 v7, 0xfffffc00, v2")
        a("v_add_u32 v8, 4096, v2")
        a("s_lshl_b32 s%d, s%d, 9" % (sT2, sC))
        a("v_lshlrev_b32 v9, 4, v4")
        a("v_add_u32 v9, s%d, v9" % sT2)
        a.lg0()
        a("s_mov_b64 s[12:13], s[66:67]")
        a("s_mov_b64 s[16:17], s[68:69]")
        a("s_mov_b64 s[40:41], s[70:71]")
        a("s_mov_b64 s[8:9], s[64:65]")
        if self.stamps:
            a("s_memrealtime s[4:5]"); a.lg0(); a("v_writelane_b32 v255, s4, 0")
        K, V, SH = 20, 32, 40
        for t, r in enumerate((5, 6, 7)):
            a.vmem("buffer_load_dword v%d, v%d, s[%d:%d], 0 offen" % (K + t, r, S_K, S_K + 3), "prep")
        for t in range(8):
            a.vmem("buffer_load_dword v%d, v%d, s[%d:%d], 0 offen offset:%d" % (K + 3 + t, 2 if t < 4 else 8, S_K, S_K + 3, 1024 * (t & 3)), "prep")
        a.vmem("buffer_load_dwordx4 v[40:43], v9, s[%d:%d], 0 offen" % (S_SH, S_SH + 3), "prep")
        for t in range(8):
            a.vmem("buffer_load_dword v%d, v%d, s[%d:%d], 0 offen offset:%d" % (V + t, 2 if t < 4 else 8, S_V, S_V + 3, 1024 * (t & 3)), "prep")
        a("s_branch L_Mrest")
        self.h_first()
        a.label("L_Mrest")
        a.vm = self.vm_m_first
        self.rot_calc()
        self.p0_rest()
        a("s_waitcnt lgkmcnt(0)")
        a("s_barrier")
        if "pfM" in self.exp:
            self.line_prefetch("w1", 240)
        if not self.noflags:
            a("s_or_b32 s%d, s2, s%d" % (sT1, sW))
            a("s_cmp_lg_u32 s%d, 0" % sT1)
            a("s_cbranch_scc1 L_nononce")
            a("s_memrealtime s[4:5]")
            a("s_waitcnt lgkmcnt(0)")
            a("s_or_b32 s4, s4, 1")
            a("v_mov_b32 v2, s4")
            a("v_mov_b32 v3, 0")
            a("s_mov_b64 exec, 1")
            a("buffer_store_dword v2, v3, s[%d:%d], 0 offen sc1" % (S_DBG, S_DBG + 3))
            a("s_mov_b64 exec, -1")
            a.label("L_nononce")
        self.w1_voffs()
        self.m_gemm1_setup()
        a("s_lshl_b32 s%d, s%d, 7" % (sT0, sC))
        a("s_lshl_b32 s%d, s%d, 2" % (sT1, sR))
        a("s_add_u32 s%d, s%d, s%d" % (sT0, sT0, sT1))
        a("s_load_dword s%d, s[%d:%d], s%d" % (sDD, sDP, sDP + 1, sT0))

    def m_gemm1_setup(self):
        a = self.a
        AX = 8; AW = [9, 10, 11]
        a("v_and_b32 v2, 15, v1")
        a("v_lshrrev_b32 v3, 4, v1")
        a("v_lshlrev_b32 v4, 1, v3")
        a("v_xor_b32 v4, v2, v4")
        a("v_lshlrev_b32 v4, 4, v4")
        a("v_lshl_add_u32 v%d, v3, 8, v4" % AX)
        a("v_lshrrev_b32 v5, 2, v2")
        a("v_lshl_add_u32 v4, v3, 3, v5")
        a("v_mul_u32_u24 v4, 384, v4")
        a("v_and_b32 v6, 3, v1")
        a("v_lshl_add_u32 v4, v6, 3, v4")
        a("v_lshrrev_b32 v5, 1, v5")
        a("v_and_b32 v6, 1, v3")
        a("v_lshl_add_u32 v5, v6, 1, v5")
        a("s_mul_i32 s%d, s%d, 3" % (sT0, sRW))
        for b in range(3):
            a("s_add_u32 s%d, s%d, %d" % (sT1, sT0, b))
            a("v_xor_b32 v6, s%d, v5" % sT1)
            a("v_lshl_add_u32 v6, v6, 5, v4")
            a("v_add_u32 v%d, %d, v6" % (AW[b], L_W1))
        a("v_lshlrev_b32 v5, 4, v2")
        a("v_lshrrev_b32 v4, 1, v3")
        a("v_lshl_add_u32 v5, v4, 8, v5")
        a("v_and_b32 v4, 1, v3")
        if "st16" in self.exp:
            a("v_mul_u32_u24 v4, 44032, v4")
            a("v_add_u32 v5, v5, v4")
        else:
            a("v_lshl_add_u32 v5, v4, 3, v5")
        a("s_lshr_b32 s%d, s%d, 4" % (sBP, sF0))
        a("s_mul_i32 s%d, s%d, %d" % (sT0, sR, 4 * 44032))
        a("s_mul_i32 s%d, s%d, 3" % (sT1, sRW))
        a("s_add_u32 s%d, s%d, s%d" % (sT2, sT1, sBP))
        a("s_lshl_b32 s%d, s%d, 9" % (sT2, sT2))
        a("s_add_u32 s%d, s%d, s%d" % (sT0, sT0, sT2))
        a("s_add_u32 s%d, s%d, 0x%x" % (sT0, sT0, WS_H))
        a("v_add_u32 v168, s%d, v5" % sT0)
        for tb in range(1, 4):
            a("v_add_u32 v%d, %d, v168" % (168 + tb, 44032 * tb))
        for b, sr_ in ((1, sINV1), (2, sINV2)):
            a("s_add_u32 s%d, s%d, %d" % (sT2, sT1, b))
            a("s_cmp_lt_u32 s%d, s%d" % (sT2, sNB))
            a("s_cselect_b32 s%d, 0, 0x40000000" % sr_)

    def m_prep(self):
        a = self.a
        K, V, SH = 20, 32, 40
        WL, WH = 44, 48
        PL, PH = 52, 56
        PP, AC = 60, 64
        TA, TB = 68, 72
        KV = 76
        OUT = 92
        dma = []
        if "V2" in self.exp:
            for f in self.w1_dma_ops(0) + self.w1_dma_ops(1): f()
        if "V4" in self.exp:
            for f in self.w1_dma_ops(0): f()
            dma = self.w1_dma_ops(1) + self.w1_dma_ops(2)
        if "V5" in self.exp:
            for f in self.w1_dma_ops(0) + self.w1_dma_ops(1): f()
            dma = self.w1_dma_ops(2)
        a.wait_vm("prep")
        self.stamp(12)
        seq = []; e = seq.append
        e("v_and_b32 v%d, v%d, v%d" % (WL + 0, vMLO, SH + 0)); e("v_lshrrev_b32 v%d, 16, v%d" % (WL + 1, SH + 0))
        e("v_and_b32 v%d, v%d, v%d" % (WL + 2, vMLO, SH + 1)); e("v_lshrrev_b32 v%d, 16, v%d" % (WL + 3, SH + 1))
        e("v_lshlrev_b32 v%d, 16, v%d" % (WH + 0, SH + 2)); e("v_and_b32 v%d, v%d, v%d" % (WH + 1, vMHI, SH + 2))
        e("v_lshlrev_b32 v%d, 16, v%d" % (WH + 2, SH + 3)); e("v_and_b32 v%d, v%d, v%d" % (WH + 3, vMHI, SH + 3))
        for hb in range(2):
            r0 = 4 * hb
            if "relax_prep" in self.exp:
                for r in range(4):
                    e("v_dot2_f32_bf16 v%d, v%d, v%d, 0" % (PL + r, K + r0 + r, WL + 3))
                    e("v_dot2_f32_bf16 v%d, v%d, v%d, 0" % (PH + r, K + r0 + r, WH + 3))
                for j in (2, 1, 0):
                    for r in range(4):
                        e("v_dot2_f32_bf16 v%d, v%d, v%d, v%d" % (PL + r, K + 3 + r0 + r - j, WL + j, PL + r))
                        e("v_dot2_f32_bf16 v%d, v%d, v%d, v%d" % (PH + r, K + 3 + r0 + r - j, WH + j, PH + r))
                for r in range(4):
                    e("v_cvt_pk_bf16_f32 v%d, v%d, v%d" % (AC + r, PL + r, PH + r))
            else:
                for j in (3, 2, 1, 0):
                    for r in range(4):
                        e("v_dot2_f32_bf16 v%d, v%d, v%d, 0" % (PL + r, K + 3 + r0 + r - j, WL + j))
                        e("v_dot2_f32_bf16 v%d, v%d, v%d, 0" % (PH + r, K + 3 + r0 + r - j, WH + j))
                    dstp = AC if j == 3 else PP
                    for r in range(4):
                        e("v_cvt_pk_bf16_f32 v%d, v%d, v%d" % (dstp + r, PL + r, PH + r))
                    if j != 3:
                        for r in range(4):
                            e("v_perm_b32 v%d, v%d, v%d, s%d" % (TA + r, PP + r, AC + r, sP0))
                            e("v_perm_b32 v%d, v%d, v%d, s%d" % (TB + r, PP + r, AC + r, sP1))
                        for r in range(4):
                            e("v_dot2_f32_bf16 v%d, v%d, v%d, 0" % (PL + r, TA + r, vONES))
                            e("v_dot2_f32_bf16 v%d, v%d, v%d, 0" % (PH + r, TB + r, vONES))
                        for r in range(4):
                            e("v_cvt_pk_bf16_f32 v%d, v%d, v%d" % (AC + r, PL + r, PH + r))
            for r in range(4):
                e("v_and_b32 v%d, v%d, v%d" % (TA + r, vMLO, V + r0 + r))
                e("v_and_b32 v%d, v%d, v%d" % (TB + r, vMHI, V + r0 + r))
            for r in range(4):
                e("v_dot2_f32_bf16 v%d, v%d, v%d, 0" % (KV + r0 + r, AC + r, TA + r))
                e("v_dot2_f32_bf16 v%d, v%d, v%d, 0" % (KV + 8 + r0 + r, AC + r, TB + r))
        e("v_and_b32 v2, 31, v0"); e("v_mul_u32_u24 v2, 288, v2"); e("v_lshrrev_b32 v3, 5, v0"); e("v_lshlrev_b32 v3, 4, v3")
        e("v_sub_u32 v2, v2, v3"); e("v_add_u32 v2, %d, v2" % (L_PREP + 112))
        for ch in range(2):
            for d in range(4):
                e("v_cvt_pk_bf16_f32 v%d, v%d, v%d" % (OUT + 4 * ch + d, KV + 8 * ch + 7 - 2 * d, KV + 8 * ch + 6 - 2 * d))
        self.spread(seq, dma)
        self.stamp(20)
        a("ds_write_b128 v2, v[%d:%d]" % (OUT, OUT + 3))
        a("ds_write_b128 v2, v[%d:%d] offset:144" % (OUT + 4, OUT + 7))
        a("v_lshrrev_b32 v2, 3, v0")
        a("v_and_b32 v3, 7, v0")
        a("v_mul_u32_u24 v4, 144, v2")
        a("v_lshl_add_u32 v4, v3, 4, v4")
        a("v_add_u32 v4, %d, v4" % L_PREP)
        a("s_lshl_b32 s%d, s%d, 18" % (sT0, sC))
        a("s_lshl_b32 s%d, s%d, 7" % (sT1, sR))
        a("s_sub_u32 s%d, s%d, s%d" % (sT0, sT0, sT1))
        a("s_add_u32 s%d, s%d, %d" % (sT0, sT0, WS_KVT + 3968))
        a("v_lshlrev_b32 v5, 12, v2")
        a("v_lshl_add_u32 v5, v3, 4, v5")
        a("v_add_u32 v5, s%d, v5" % sT0)
        a("v_add_u32 v6, %d, v5" % (32 * 4096))
        if "dmafirst" in self.exp:
            for f in self.w1_dma_ops(0) + self.w1_dma_ops(1) + self.w1_dma_ops(2): f()
            self.stamp(15)
        self.m_sync(13, va=2, vb=3)
        a("ds_read_b128 v[92:95], v4")
        a("ds_read_b128 v[96:99], v4 offset:%d" % (32 * 144))
        a.lg0()
        a.vmem("buffer_store_dwordx4 v[92:95], v5, s[%d:%d], 0 offen sc1" % (S_WS, S_WS + 3), "kvt")
        a.vmem("buffer_store_dwordx4 v[96:99], v6, s[%d:%d], 0 offen sc1" % (S_WS, S_WS + 3), "kvt")
        if not self.noflags:
            a("v_mov_b32 v7, 0")
            a.vmem("buffer_load_dword v19, v7, s[%d:%d], 0 offen sc1" % (S_DBG, S_DBG + 3), "nonce")
        if "dmafirst" not in self.exp:
            self.stamp(15)
            if "V3" in self.exp: lst = self.w1_dma_ops(2) + self.w1_dma_ops(3)
            elif "V2" in self.exp: lst = self.w1_dma_ops(2)
            elif "V4" in self.exp or "V5" in self.exp: lst = []
            else: lst = self.w1_dma_ops(0) + self.w1_dma_ops(1) + self.w1_dma_ops(2)
            for f in lst: f()

    def m_gemm1(self):
        a = self.a
        ACC = 20
        BUF = [68, 96, 124]
        AX = 8; AW = [9, 10, 11]
        UREG = 152
        for i in range(48):
            a("v_mov_b32 v%d, 0" % (ACC + i))

        def read_ops(ks):
            buf = BUF[ks % 3]
            j = ks >> 1; ksl = ks & 1; slot = j % NW1
            pre = []
            if ksl == 0 and j > 0:
                d = W1_SLOT if slot != 0 else -(NW1 - 1) * W1_SLOT
                for b in range(3):
                    pre.append("v_add_u32 v%d, %d, v%d" % (AW[b], d & 0xffffffff, AW[b]))
            so = ksl * 32 * 384
            def rx(t):
                return lambda: a.lds("ds_read_b128 v[%d:%d], v%d offset:%d" % (buf + 4 * t, buf + 4 * t + 3, AX, L_XN + (j % NXN) * 8192 + t * 2048 + ksl * 1024), "x%d_%d" % (ks, t))
            def rw(b, hh):
                r0 = buf + 16 + 4 * b + 2 * hh
                return lambda: a.lds("ds_read_b64_tr_b16 v[%d:%d], v%d offset:%d" % (r0, r0 + 1, AW[b], so + hh * 4 * 384), "w%d_%d" % (ks, b))
            if "mnoreads" in self.exp: return pre
            return pre + [rw(0, 0), rw(0, 1), rx(0), rx(1), rx(2), rx(3), rw(1, 0), rw(1, 1), rw(2, 0), rw(2, 1)]

        def mfma_ops(ks):
            cur = BUF[ks % 3]
            ops = []
            for b in range(3):
                for t in range(4):
                    def f(b=b, t=t):
                        if "finewait" in self.exp:
                            a.need_lds("w%d_%d" % (ks, b), "x%d_%d" % (ks, t))
                        elif b == 0 and t == 0:
                            a.need_lds(*(["w%d_%d" % (ks, bb) for bb in range(3)] + ["x%d_%d" % (ks, tt) for tt in range(4)]))
                        acc = ACC + (b * 4 + t) * 4
                        if "mnomfma" in self.exp: return
                        a("v_mfma_f32_16x16x32_bf16 v[%d:%d], v[%d:%d], v[%d:%d], v[%d:%d]" % (
                            acc, acc + 3, cur + 16 + 4 * b, cur + 19 + 4 * b, cur + 4 * t, cur + 4 * t + 3, acc, acc + 3))
                    ops.append(f)
            return ops

        if not self.noflags and "V1" in self.exp: self.publish_h1()
        if "V3" not in self.exp: a.wait_vm("w1c1")
        a("s_barrier")
        self.stamp(14)
        for f in read_ops(0): self.run(f)
        if self.h1j == 0 and not self.noflags and "V1" not in self.exp:
            q_l = (list(a.lg.q), a.lg_done)
            self.publish_h1()
        for f in read_ops(1)[:5]: self.run(f)
        pend = read_ops(1)[5:]
        for j in range(8):
            if j >= 1 and j <= 6:
                if not ("mnodma" in self.exp and j + 1 >= 3) and "novmw" not in self.exp: a.wait_vm("w1c%d" % (j + 1))
                a("s_barrier")
                if "itst" in self.exp: self.stamp(22 + j)
                if j == self.h1j and not self.noflags and "V1" not in self.exp: self.publish_h1()
            dm = self.w1_dma_ops(j + 4) if (j + 4 <= 7) else []
            if j == 0 and "V3" not in self.exp: dm = self.w1_dma_ops(3) + dm
            if "mnodma" in self.exp:
                for _ in dm: a.vm.issue("dummy")
                dm = []
            ex = []
            for half in range(2):
                ks = 2 * j + half
                fill = list(pend); pend = []
                if ks + 2 <= 15:
                    fill += read_ops(ks + 2)
                hlf = (len(dm) + 1) // 2
                extra = (dm[:hlf] + ex if half == 0 else dm[hlf:])
                interleave(a, mfma_ops(ks), merge(fill, extra))
        a.lg0()
        self.stamp(2)
        HB = 68
        for i in range(12):
            a("v_cvt_pk_bf16_f32 v%d, v%d, v%d" % (HB + 2 * i, ACC + 4 * i, ACC + 4 * i + 1))
            a("v_cvt_pk_bf16_f32 v%d, v%d, v%d" % (HB + 2 * i + 1, ACC + 4 * i + 2, ACC + 4 * i + 3))
        for i in range(24):
            a("v_pk_max_i16 v%d, v%d, 0" % (HB + i, HB + i))
        if "st16" in self.exp:
            for b in range(3):
                for u in range(2):
                    r = HB + 8 * b + 4 * u
                    a("v_permlane16_swap_b32 v%d, v%d" % (r, r + 2))
                    a("v_permlane16_swap_b32 v%d, v%d" % (r + 1, r + 3))
            for b in range(3):
                so = "0" if b == 0 else "s%d" % (sINV1 if b == 1 else sINV2)
                for u in range(2):
                    r = HB + 8 * b + 4 * u
                    a.vmem("buffer_store_dwordx4 v[%d:%d], v%d, s[%d:%d], %s offen offset:%d sc1" % (r, r + 3, 168 + 2 * u, S_WS, S_WS + 3, so, 512 * b), "hst")
        elif "nohst" in self.exp:
            a.vm.issue("hst")
        else:
          for b in range(3):
            so = "0" if b == 0 else "s%d" % (sINV1 if b == 1 else sINV2)
            for t in range(4):
                r = HB + (b * 4 + t) * 2
                a.vmem("buffer_store_dwordx2 v[%d:%d], v%d, s[%d:%d], %s offen offset:%d sc1" % (r, r + 1, 168 + t, S_WS, S_WS + 3, so, 512 * b), "hst")
        a("s_barrier")

    def get_nonce(self):
        if self.noflags: return
        a = self.a
        a.wait_vm("nonce")
        lo = a.newlabel("L_nz"); lp = a.newlabel("L_nl")
        a("v_readfirstlane_b32 s%d, v19" % sNONCE)
        a("s_nop 3")
        a("s_cmp_lg_u32 s%d, 0" % sNONCE)
        a("s_cbranch_scc1 %s" % lo)
        a("s_mov_b32 s%d, 0" % sT3)
        a.label(lp)
        a("v_mov_b32 v7, 0")
        a("buffer_load_dword v19, v7, s[%d:%d], 0 offen sc1" % (S_DBG, S_DBG + 3))
        a("s_waitcnt vmcnt(0)")
        a("v_readfirstlane_b32 s%d, v19" % sNONCE)
        a("s_add_u32 s%d, s%d, 1" % (sT3, sT3))
        a("s_cmp_gt_u32 s%d, 100000" % sT3)
        a("s_cbranch_scc1 %s" % lo)
        a("s_cmp_eq_u32 s%d, 0" % sNONCE)
        a("s_cbranch_scc1 %s" % lp)
        a.label(lo)

    def flag_store(self, off_sreg, tag, va=2, vb=3):
        if self.noflags: return
        a = self.a
        a("v_mov_b32 v%d, s%d" % (va, off_sreg))
        a("v_mov_b32 v%d, s%d" % (vb, sNONCE))
        a("s_mov_b64 exec, 1")
        a.vmem("buffer_store_dword v%d, v%d, s[%d:%d], 0 offen sc1" % (vb, va, S_WS, S_WS + 3), tag)
        a("s_mov_b64 exec, -1")

    def publish_h1(self):
        a = self.a
        self.get_nonce()
        a.wait_vm("kvt")
        a("s_lshl_b32 s%d, s%d, 7" % (sT0, sID))
        a("s_lshl_b32 s%d, s%d, 2" % (sT2, sRW))
        a("s_add_u32 s%d, s%d, s%d" % (sT0, sT0, sT2))
        a("s_add_u32 s%d, s%d, 0x%x" % (sT0, sT0, F_H1))
        self.flag_store(sT0, "flag")

    def poll(self, base_sreg, nlanes, width, stride):
        if self.noflags: return
        a = self.a
        lp = a.newlabel("L_poll"); dn = a.newlabel("L_pdone")
        a("v_mul_u32_u24 v2, %d, v1" % stride)
        a("v_add_u32 v2, s%d, v2" % base_sreg)
        a("s_mov_b32 s%d, 0" % sT3)
        if nlanes <= 16: a("s_mov_b64 exec, 0x%x" % ((1 << nlanes) - 1))
        else:
            a("s_mov_b32 exec_lo, -1"); a("s_mov_b32 exec_hi, 0")
        a.label(lp)
        if width == 1:
            a("buffer_load_dword v4, v2, s[%d:%d], 0 offen sc1" % (S_WS, S_WS + 3))
            a("s_waitcnt vmcnt(0)")
            a("v_cmp_ne_u32 vcc, s%d, v4" % sNONCE)
        else:
            a("buffer_load_dwordx4 v[4:7], v2, s[%d:%d], 0 offen sc1" % (S_WS, S_WS + 3))
            a("s_waitcnt vmcnt(0)")
            for i in range(4): a("v_xor_b32 v%d, s%d, v%d" % (4 + i, sNONCE, 4 + i))
            a("v_or3_b32 v4, v4, v5, v6")
            a("v_or_b32 v4, v4, v7")
            a("v_cmp_ne_u32 vcc, 0, v4")
        a("s_add_u32 s%d, s%d, 1" % (sT3, sT3))
        a("s_cmp_gt_u32 s%d, 100000" % sT3)
        a("s_cbranch_scc1 %s" % dn)
        a("s_cbranch_vccnz %s" % lp)
        a.label(dn)
        a("s_mov_b64 exec, -1")

    def lds_wait(self, addr_sreg, val=1, va=16, vb=17):
        a = self.a
        lp = a.newlabel("L_ps"); dn = a.newlabel("L_psd")
        a("v_mov_b32 v%d, s%d" % (va, addr_sreg))
        a("s_mov_b32 s%d, 0" % sT3)
        a.label(lp)
        a("ds_read_b32 v%d, v%d" % (vb, va))
        a("s_waitcnt lgkmcnt(0)")
        a("v_readfirstlane_b32 s4, v%d" % vb)
        a("s_add_u32 s%d, s%d, 1" % (sT3, sT3))
        a("s_cmp_ge_u32 s4, %d" % val)
        a("s_cbranch_scc1 %s" % dn)
        a("s_cmp_lt_u32 s%d, 1000000" % sT3)
        a("s_cbranch_scc1 %s" % lp)
        a.label(dn)
        a.lg_clear()

    def m_sync(self, word, n=4, va=16, vb=17):
        a = self.a
        a("v_mov_b32 v%d, %d" % (va, L_SYNC + 4 * word))
        a("v_mov_b32 v%d, 1" % vb)
        a.lg0()
        a("s_mov_b64 exec, 1")
        a("ds_add_u32 v%d, v%d" % (va, vb))
        a("s_mov_b64 exec, -1")
        a("s_mov_b32 s5, %d" % (L_SYNC + 4 * word))
        self.lds_wait(5, n, va, vb)

    def pair_sync(self, stage, va=16, vb=17):
        a = self.a
        a("s_lshl_b32 s4, s%d, 2" % sRW)
        a("s_add_u32 s4, s4, %d" % (L_SYNC + 16 * stage))
        a("s_xor_b32 s5, s4, 4")
        a("v_mov_b32 v%d, s4" % va)
        a("v_mov_b32 v%d, 1" % vb)
        a.lg0()
        a("ds_write_b32 v%d, v%d" % (va, vb))
        self.lds_wait(5, 1, va, vb)

    def m_conv(self):
        a = self.a
        BF, ACC, AF, NA = 20, 148, 180, 16
        AU, AT = 2, 3
        a("v_and_b32 v8, 15, v1")
        a("v_lshrrev_b32 v9, 4, v1")
        a("v_lshlrev_b32 v10, 4, v9")
        a("v_lshlrev_b32 v11, 5, v8")
        a("v_sub_u32 v10, v10, v11")
        a("s_lshr_b32 s%d, s%d, 1" % (sT0, sRW))
        a("s_and_b32 s%d, s%d, 1" % (sT1, sRW))
        a("s_mul_i32 s%d, s%d, %d" % (sT2, sT0, U_CH))
        a("s_add_u32 s%d, s%d, %d" % (sT2, sT2, L_U + 2 * 2032 - 64 * 56))
        a("s_lshl_b32 s4, s%d, 6" % sT1)
        a("s_add_u32 s%d, s%d, s4" % (sT2, sT2))
        a("v_add_u32 v%d, s%d, v10" % (AU, sT2))
        a("v_and_b32 v10, 3, v8")
        a("v_mul_u32_u24 v10, %d, v10" % T_CP)
        a("v_lshrrev_b32 v11, 2, v8")
        a("v_lshl_add_u32 v10, v11, 3, v10")
        a("v_lshl_add_u32 v10, v9, 4, v10")
        a("s_mul_i32 s%d, s%d, %d" % (sT2, sT0, T_CH))
        a("s_add_u32 s%d, s%d, s4" % (sT2, sT2))
        a("s_add_u32 s%d, s%d, %d" % (sT2, sT2, L_T))
        a("v_add_u32 v%d, s%d, v10" % (AT, sT2))
        a("v_lshl_add_u32 v10, v9, 3, v8")
        a("s_lshl_b32 s4, s%d, 5" % sT1)
        a("v_add_u32 v10, s4, v10")
        MK = 12
        for d in range(4):
            a("v_sub_u32 v11, %d, v10" % (15 - 2 * d))
            a("v_med3_i32 v11, v11, 0, 2")
            a("v_lshlrev_b32 v11, 4, v11")
            a("v_mov_b32 v%d, -1" % (MK + d))
            a("v_lshlrev_b32 v16, v11, v%d" % (MK + d))
            a("v_cmp_eq_u32 vcc, 32, v11")
            a("v_cndmask_b32_e64 v%d, v16, 0, vcc" % (MK + d))
        for i in range(32):
            a("v_mov_b32 v%d, 0" % (ACC + i))
        def emit_A(ee):
            r = AF + 4 * (ee % NA)
            a.lds("ds_read_b64 v[%d:%d], v%d offset:%d" % (r, r + 1, AT, 128 * ee), ("A", ee))
            a.lds("ds_read_b64 v[%d:%d], v%d offset:%d" % (r + 2, r + 3, AT, 128 * ee + 8), ("A", ee))
        def emit_B(idx):
            r = BF + 4 * idx
            a.lds("ds_read_b128 v[%d:%d], v%d offset:%d" % (r, r + 3, AU, 128 * idx), ("B", idx))
        sched = []
        for ee in range(32):
            for j in range(7, (ee >> 2) - 1, -1):
                sched.append((ee, j, 28 - 4 * j + ee))
        order = []; seen = set(); last_use_A = {}
        for n, (ee, j, idx) in enumerate(sched):
            for it in (("A", ee), ("B", idx)):
                if it not in seen:
                    seen.add(it); order.append(it)
            last_use_A[ee] = n
        ptr = 0; issued = set()
        def can_issue(item, n):
            if item[0] == "A" and item[1] >= NA:
                return last_use_A[item[1] - NA] < n
            return True
        def issue_next(n_now):
            nonlocal ptr
            if ptr < len(order) and can_issue(order[ptr], n_now):
                it = order[ptr]
                (emit_A if it[0] == "A" else emit_B)(it[1])
                issued.add(it); ptr += 1
                return True
            return False
        def inflight():
            return len(a.lg.q) - a.lg_done
        GRP = 4
        while inflight() < 14 and issue_next(0): pass
        masked = False
        for n, (ee, j, idx) in enumerate(sched):
            while ("A", ee) not in issued or ("B", idx) not in issued:
                assert issue_next(n)
            if not (a.lds_done(("A", ee)) and a.lds_done(("B", idx))):
                tags = [("A", ee), ("B", idx)]
                for (e2, j2, i2) in sched[n + 1:n + GRP]:
                    if ("A", e2) in issued and ("B", i2) in issued: tags += [("A", e2), ("B", i2)]
                    else: break
                a.need_lds(*tags)
            ar = AF + 4 * (ee % NA); br = BF + 4 * idx; acc = ACC + 4 * j
            if ee == 0 and not masked:
                for d in range(4): a("v_and_b32 v%d, v%d, v%d" % (ar + d, MK + d, ar + d))
                masked = True
            a("v_mfma_f32_16x16x32_bf16 v[%d:%d], v[%d:%d], v[%d:%d], v[%d:%d]" % (acc, acc + 3, ar, ar + 3, br, br + 3, acc, acc + 3))
            if inflight() < 14:
                issue_next(n + 1)
                if n < 40 and inflight() < 14: issue_next(n + 1)
            if n == self.h2n and not self.noflags:
                a.wait_vm("hst")
                a("s_lshl_b32 s4, s%d, 3" % sR)
                a("s_add_u32 s4, s4, s%d" % sC)
                a("s_lshl_b32 s4, s4, 7")
                a("s_lshl_b32 s5, s%d, 2" % sRW)
                a("s_add_u32 s4, s4, s5")
                a("s_add_u32 s%d, s4, 0x%x" % (sT2, F_H2))
                self.flag_store(sT2, "flag", 4, 5)
        self.stamp(16)
        self.pair_sync(0)
        a("v_lshlrev_b32 v4, 4, v1")
        a("s_mul_i32 s%d, s%d, %d" % (sT0, sT0, T_CH))
        a("s_add_u32 s%d, s%d, %d" % (sT0, sT0, L_T + 8))
        a("s_lshl_b32 s%d, s%d, 12" % (sT2, sT1))
        a("s_add_u32 s%d, s%d, s%d" % (sT2, sT2, sT0))
        a("v_add_u32 v5, s%d, v4" % sT2)
        a("s_xor_b32 s%d, s%d, 1" % (sT2, sT1))
        a("s_lshl_b32 s%d, s%d, 12" % (sT2, sT2))
        a("s_add_u32 s%d, s%d, s%d" % (sT2, sT2, sT0))
        a("v_add_u32 v6, s%d, v4" % sT2)
        l0 = a.newlabel("L_cr0"); l1 = a.newlabel("L_cr1")
        a("s_cmp_eq_u32 s%d, 0" % sT1)
        a("s_cbranch_scc1 %s" % l0)
        for i in range(4):
            a("ds_write_b128 v5, v[%d:%d] offset:%d" % (ACC + 4 * i, ACC + 4 * i + 3, 1024 * i))
        for i in range(16):
            a("v_mov_b32 v%d, v%d" % (200 + i, ACC + 16 + i))
        a("s_branch %s" % l1)
        a.label(l0)
        for i in range(4):
            a("ds_write_b128 v5, v[%d:%d] offset:%d" % (ACC + 16 + 4 * i, ACC + 16 + 4 * i + 3, 1024 * i))
        for i in range(16):
            a("v_mov_b32 v%d, v%d" % (200 + i, ACC + i))
        a.label(l1)
        a("v_and_b32 v4, 15, v1")
        a("v_lshrrev_b32 v7, 4, v1")
        a("v_lshlrev_b32 v4, 5, v4")
        a("v_lshl_add_u32 v4, v7, 3, v4")
        a("s_lshr_b32 s%d, s%d, 1" % (sT0, sRW))
        a("s_mul_i32 s%d, s%d, %d" % (sT2, sT0, U_CH))
        a("s_add_u32 s%d, s%d, %d" % (sT2, sT2, L_U + 2 * 2044 - 3 * 512))
        a("s_lshl_b32 s4, s%d, 11" % sT1)
        a("s_sub_u32 s%d, s%d, s4" % (sT2, sT2))
        a("v_sub_u32 v4, s%d, v4" % sT2)
        for i in range(4):
            a("ds_read_b64 v[%d:%d], v4 offset:%d" % (236 + 2 * i, 237 + 2 * i, (3 - i) * 512))
        a("s_and_b32 s4, s%d, 0xffff" % sDD)
        a("s_lshr_b32 s5, s%d, 16" % sDD)
        a("s_cmp_eq_u32 s%d, 0" % sT0)
        a("s_cselect_b32 s4, s4, s5")
        a("s_lshl_b32 s5, s4, 16")
        a("v_mov_b32 v8, s4")
        a("v_mov_b32 v9, s5")
        self.pair_sync(1)
        for i in range(4):
            a("ds_read_b128 v[%d:%d], v6 offset:%d" % (220 + 4 * i, 223 + 4 * i, 1024 * i))
        TT = 148
        for i in range(4):
            u0, u1 = 236 + 2 * i, 237 + 2 * i
            a("v_dot2_f32_bf16 v%d, v%d, v9, 0" % (TT + 4 * i + 0, u1))
            a("v_dot2_f32_bf16 v%d, v%d, v8, 0" % (TT + 4 * i + 1, u1))
            a("v_dot2_f32_bf16 v%d, v%d, v9, 0" % (TT + 4 * i + 2, u0))
            a("v_dot2_f32_bf16 v%d, v%d, v8, 0" % (TT + 4 * i + 3, u0))
        TB = 164
        for i in range(4):
            a("v_cvt_pk_bf16_f32 v%d, v%d, v%d" % (TB + 2 * i, TT + 4 * i, TT + 4 * i + 1))
            a("v_cvt_pk_bf16_f32 v%d, v%d, v%d" % (TB + 2 * i + 1, TT + 4 * i + 2, TT + 4 * i + 3))
        a("v_and_b32 v4, 15, v1")
        a("v_lshrrev_b32 v5, 2, v4")
        a("v_lshlrev_b32 v5, 16, v5")
        a("v_and_b32 v4, 3, v4")
        a("v_lshl_add_u32 v5, v4, 5, v5")
        a("v_lshrrev_b32 v7, 4, v1")
        if "st16" in self.exp:
            a("v_lshrrev_b32 v4, 1, v7")
            a("v_lshl_add_u32 v5, v4, 4, v5")
            a("v_and_b32 v4, 1, v7")
            a("v_lshl_add_u32 v5, v4, 18, v5")
        else:
            a("v_lshl_add_u32 v5, v7, 3, v5")
        a("s_lshl_b32 s%d, s%d, 6" % (sT2, sC))
        a("s_lshl_b32 s4, s%d, 1" % sR)
        a("s_add_u32 s%d, s%d, s4" % (sT2, sT2))
        a("s_add_u32 s%d, s%d, s%d" % (sT2, sT2, sT0))
        a("s_lshl_b32 s%d, s%d, 7" % (sT2, sT2))
        a("s_lshl_b32 s4, s%d, 20" % sT1)
        a("s_add_u32 s%d, s%d, s4" % (sT2, sT2))
        a("s_add_u32 s%d, s%d, 0x%x" % (sT2, sT2, WS_YT))
        a("v_add_u32 v5, s%d, v5" % sT2)
        a.lg0()
        for i in range(16):
            a("v_add_f32 v%d, v%d, v%d" % (200 + i, 200 + i, 220 + i))
        YB = 172
        for i in range(8):
            a("v_cvt_pk_bf16_f32 v%d, v%d, v%d" % (YB + i, 200 + 2 * i, 201 + 2 * i))
        for i in range(8):
            a("v_perm_b32 v%d, v%d, v%d, s%d" % (200 + 2 * i, TB + i, YB + i, sP0))
            a("v_perm_b32 v%d, v%d, v%d, s%d" % (201 + 2 * i, TB + i, YB + i, sP1))
        for i in range(16):
            a("v_dot2_f32_bf16 v%d, v%d, v%d, 0" % (220 + i, 200 + i, vONES))
        for i in range(8):
            a("v_cvt_pk_bf16_f32 v%d, v%d, v%d" % (180 + i, 220 + 2 * i, 221 + 2 * i))
        if "st16" in self.exp:
            for u in range(2):
                r = 180 + 4 * u
                a("v_permlane16_swap_b32 v%d, v%d" % (r, r + 2))
                a("v_permlane16_swap_b32 v%d, v%d" % (r + 1, r + 3))
            for u in range(2):
                if u: a("v_add_u32 v5, 0x80000, v5")
                a.vmem("buffer_store_dwordx4 v[%d:%d], v5, s[%d:%d], 0 offen sc1" % (180 + 4 * u, 183 + 4 * u, S_WS, S_WS + 3), "yst")
        else:
          for i in range(4):
            if i: a("v_add_u32 v5, 0x40000, v5")
            a.vmem("buffer_store_dwordx2 v[%d:%d], v5, s[%d:%d], 0 offen sc1" % (180 + 2 * i, 181 + 2 * i, S_WS, S_WS + 3), "yst")
        self.stamp(17)

    def w2_voff(self):
        a = self.a
        sh = 7 if self.w2s else 10
        a("v_lshrrev_b32 v2, 3, v1")
        a("v_and_b32 v2, 3, v2")
        a("v_lshrrev_b32 v3, 5, v1")
        a("v_lshl_add_u32 v2, v3, 3, v2")
        a("v_lshlrev_b32 v2, %d, v2" % sh)
        a("v_lshrrev_b32 v3, 4, v1")
        a("v_and_b32 v3, 3, v3")
        a("v_lshlrev_b32 v3, 1, v3")
        a("v_and_b32 v4, 7, v1")
        a("v_xor_b32 v3, v3, v4")
        a("v_lshl_add_u32 v2, v3, 4, v2")
        if self.w2s:
            a("s_mul_i32 s%d, s%d, 176128" % (sT0, sD))
            a("s_add_u32 s%d, s%d, 0x%x" % (sT0, sT0, WS_W2S))
        else:
            a("s_lshl_b32 s%d, s%d, 7" % (sT0, sD))
        a("v_add_u32 v14, s%d, v2" % sT0)

    def w2_dma(self, lds_base_sreg, lds_off, src_base_sreg, ks_off, tag):
        a = self.a
        inc = [0, 512, 1536, 512] if self.w2s else [0, 4096, 12288, 4096]
        srd = S_WS if self.w2s else S_W2
        fl = " sc1" if self.w2s else ""
        a("s_add_u32 s%d, s%d, %d" % (sT2, src_base_sreg, ks_off * self.KS))
        for m in range(4):
            a("s_add_u32 m0, s%d, %d" % (lds_base_sreg, lds_off + 1024 * m))
            if m: a("s_add_u32 s%d, s%d, %d" % (sT2, sT2, inc[m]))
            a.vmem("buffer_load_dwordx4 v14, s[%d:%d], s%d offen%s lds" % (srd, srd + 3, sT2, fl), tag)

    def w2_slot_dma(self, tag):
        a = self.a
        a("s_lshl_b32 s71, s%d, 12" % sT0)
        a("s_add_u32 s70, s%d, 9" % sT0)
        a("s_cmp_lt_u32 s%d, 13" % sT0)
        a("s_cselect_b32 s70, s%d, s70" % sT0)
        a("s_lshl_b32 s70, s70, %d" % (12 if self.w2s else 15))
        self.w2_dma(71, L_B, 70, 0, tag)

    def w2_early(self):
        a = self.a
        for m in range(3):
            a("s_add_u32 s%d, s%d, %d" % (sT0, sRW, 4 * m))
            if m == 2: a("s_min_u32 s%d, s%d, 9" % (sT0, sT0))
            if m >= 1: a("s_add_u32 s%d, s%d, 4" % (sT0, sT0))
            self.w2_slot_dma("w2e")

    def m_regionA(self):
        a = self.a
        self.w2_voff()
        a("s_lshr_b32 s75, s%d, 1" % sRW)
        a("s_and_b32 s76, s%d, 1" % sRW)
        a("s_mul_i32 s70, s75, %d" % (22 * self.KS))
        self.m_sync(12)
        a("s_mul_i32 s71, s75, %d" % (NA_H * 4096))
        a("s_add_u32 s71, s71, %d" % L_A)
        a("s_lshl_b32 s4, s76, 12")
        a("s_add_u32 s71, s71, s4")
        a("s_lshl_b32 s4, s76, %d" % (12 if self.w2s else 15))
        a("s_add_u32 s70, s70, s4")
        for m in range(3):
            self.w2_dma(71, 8192 * m, 70, 13 + 2 * m, "w2a")

    def m_tail(self):
        a = self.a
        self.m_regionA()
        a.wait_vm("yst")
        if not self.noflags:
            a("s_lshl_b32 s4, s%d, 7" % sID)
            a("s_lshl_b32 s5, s%d, 2" % sRW)
            a("s_add_u32 s4, s4, s5")
            a("s_add_u32 s%d, s4, 0x%x" % (sT2, F_H3))
            self.flag_store(sT2, "flag", 2, 3)
        self.stamp(21)
        a("s_mov_b32 s5, %d" % (L_SYNC + 56))
        self.lds_wait(5, 4)
        a("s_mul_i32 s71, s75, %d" % B_HALF)
        a("s_lshl_b32 s4, s76, 12")
        a("s_add_u32 s71, s71, s4")
        if L_B: a("s_add_u32 s71, s71, %d" % L_B)
        self.w2_dma(71, 0, 70, 19, "w2l")
        skl = a.newlabel("L_ml")
        a("s_cmp_eq_u32 s76, 1")
        a("s_cbranch_scc1 %s" % skl)
        self.w2_dma(71, 8192, 70, 21, "w2l")
        a.label(skl)
        self.final_x_load(240, 244)
        self.stamp(18)
        a("s_barrier")
        a("s_waitcnt vmcnt(0)")
        a("s_barrier")
        if not self.noflags and "noh3" not in self.exp:
            a("s_lshl_b32 s%d, s%d, 12" % (sT0, sD))
            a("s_add_u32 s%d, s%d, 0x%x" % (sT0, sT0, F_H3))
            self.poll(sT0, 32, 4, 128)
        self.stamp(7)
        a("v_lshrrev_b32 v3, 2, v0")
        a("v_and_b32 v4, 3, v0")
        a("v_lshlrev_b32 v5, 7, v3")
        a("v_lshl_add_u32 v5, v4, 5, v5")
        a("s_lshl_b32 s%d, s%d, 16" % (sT0, sR))
        a("s_lshl_b32 s%d, s%d, 13" % (sT1, sD))
        a("s_add_u32 s%d, s%d, s%d" % (sT0, sT0, sT1))
        a("s_add_u32 s%d, s%d, 0x%x" % (sT0, sT0, WS_YT))
        a("v_add_u32 v5, s%d, v5" % sT0)
        a.vmem("buffer_load_dwordx4 v[20:23], v5, s[%d:%d], 0 offen sc1" % (S_WS, S_WS + 3), "y")
        a.vmem("buffer_load_dwordx4 v[24:27], v5, s[%d:%d], 0 offen offset:16 sc1" % (S_WS, S_WS + 3), "y")
        a("v_mul_u32_u24 v6, 144, v3")
        a("v_lshl_add_u32 v6, v4, 5, v6")
        a("v_add_u32 v6, %d, v6" % L_Y)
        a("s_waitcnt vmcnt(0)")
        a("ds_write_b128 v6, v[20:23]")
        a("ds_write_b128 v6, v[24:27] offset:16")
        a.lg0()
        a("s_barrier")

    def final_x_load(self, xr, ar):
        a = self.a
        a("s_and_b32 s%d, s%d, 3" % (sT0, sW))
        a("s_lshl_b32 s%d, s%d, 4" % (sT0, sT0))
        a("s_lshl_b32 s%d, s%d, 6" % (sT1, sR))
        a("s_add_u32 s%d, s%d, s%d" % (sT0, sT0, sT1))
        a("s_lshl_b32 s%d, s%d, 10" % (sT0, sT0))
        a("s_lshl_b32 s%d, s%d, 7" % (sT1, sD))
        a("s_add_u32 s%d, s%d, s%d" % (sT0, sT0, sT1))
        a("s_lshr_b32 s%d, s%d, 2" % (sT1, sW))
        a("s_lshl_b32 s%d, s%d, 6" % (sT1, sT1))
        a("s_add_u32 s%d, s%d, s%d" % (sT0, sT0, sT1))
        a("v_lshrrev_b32 v2, 2, v1")
        a("v_lshlrev_b32 v2, 10, v2")
        a("v_and_b32 v3, 3, v1")
        a("v_lshl_add_u32 v2, v3, 4, v2")
        a("v_add_u32 v%d, s%d, v2" % (ar, sT0))
        a.vmem("buffer_load_dwordx4 v[%d:%d], v%d, s[%d:%d], 0 offen" % (xr, xr + 3, ar, S_X, S_X + 3), "xf")

    def u_slow(self):
        a = self.a
        a.label("L_uslow")
        a("s_lshl_b32 s%d, s%d, 12" % (sT0, sC))
        a("s_add_u32 s%d, s%d, 0x%x" % (sT0, sT0, F_H1))
        self.poll(sT0, 32, 1, 128)
        for i in range(4):
            a("buffer_load_dwordx4 v[%d:%d], v172, s[%d:%d], 0 offen offset:%d sc1" % (152 + 4 * i, 155 + 4 * i, S_WS, S_WS + 3, 1024 * i))
        a("s_waitcnt vmcnt(0)")
        for i in range(4):
            a("ds_write_b128 v174, v[%d:%d] offset:%d" % (152 + 4 * i, 155 + 4 * i, 1024 * i))
        a("s_waitcnt lgkmcnt(0)")
        a("s_branch L_uback")

    NEGM, RS, NMRS = 100, 101, 102
    def norm2(self, X, t):
        L = []
        L.append("v_lshlrev_b32 v%d, 16, v%d" % (t + 0, X))
        L.append("v_and_b32 v%d, v%d, v%d" % (t + 1, vMHI, X))
        L.append("v_lshlrev_b32 v%d, 16, v%d" % (t + 2, X + 1))
        L.append("v_and_b32 v%d, v%d, v%d" % (t + 3, vMHI, X + 1))
        if self.relax_ln:
            for i in range(4):
                L.append("v_fma_f32 v%d, v%d, v%d, v%d" % (t + i, t + i, self.RS, self.NMRS))
        else:
            for i in range(4):
                L.append("v_add_f32 v%d, v%d, v%d" % (t + i, t + i, self.NEGM))
            L.append("v_cvt_pk_bf16_f32 v%d, v%d, v%d" % (t + 4, t + 0, t + 1))
            L.append("v_cvt_pk_bf16_f32 v%d, v%d, v%d" % (t + 5, t + 2, t + 3))
            L.append("v_lshlrev_b32 v%d, 16, v%d" % (t + 0, t + 4))
            L.append("v_and_b32 v%d, v%d, v%d" % (t + 1, vMHI, t + 4))
            L.append("v_lshlrev_b32 v%d, 16, v%d" % (t + 2, t + 5))
            L.append("v_and_b32 v%d, v%d, v%d" % (t + 3, vMHI, t + 5))
            for i in range(4):
                L.append("v_mul_f32 v%d, v%d, v%d" % (t + i, t + i, self.RS))
        L.append("v_cvt_pk_bf16_f32 v%d, v%d, v%d" % (X, t + 0, t + 1))
        L.append("v_cvt_pk_bf16_f32 v%d, v%d, v%d" % (X + 1, t + 2, t + 3))
        return L

    def norm_chunk(self, j):
        a = self.a
        X = 20 + 8 * j
        for half in range(2):
            s1 = self.norm2(X + 4 * half, 104); s2 = self.norm2(X + 4 * half + 2, 110)
            for x, y in zip(s1, s2):
                a(x); a(y)
            a.lds("ds_write_b128 v116, v[%d:%d] offset:%d" % (X + 4 * half, X + 4 * half + 3, L_XN + (j % NXN) * 8192 + half * 1024), "xw")

    def h_first(self):
        a = self.a
        self.vm_m_first = a.vm
        a.vm = Q(["cpf"] if "codepf0" in self.exp else [])
        a.label("L_Hfirst")
        self.rot_calc()
        a("s_lshl_b32 s%d, s%d, 16" % (sT0, sR))
        a("s_lshl_b32 s%d, s%d, 14" % (sT1, sRW))
        a("s_add_u32 s%d, s%d, s%d" % (sT0, sT0, sT1))
        a("v_lshrrev_b32 v6, 2, v1")
        a("v_lshlrev_b32 v6, 10, v6")
        a("v_and_b32 v7, 3, v1")
        a("v_lshl_add_u32 v6, v7, 4, v6")
        a("v_add_u32 v6, s%d, v6" % sT0)
        a("s_lshl_b32 s%d, s%d, 7" % (sT0, sROT))
        a("s_waitcnt lgkmcnt(0)")
        a("s_mov_b64 s[8:9], s[64:65]")
        if self.stamps:
            a("s_memrealtime s[4:5]"); a("s_waitcnt lgkmcnt(0)"); a("v_writelane_b32 v255, s4, 0")
        for j in range(8):
            if j:
                a("s_add_u32 s%d, s%d, 128" % (sT0, sT0))
                a("s_and_b32 s%d, s%d, 1023" % (sT0, sT0))
            a.vmem("buffer_load_dwordx4 v[%d:%d], v6, s[%d:%d], s%d offen" % (20 + 8 * j, 23 + 8 * j, S_X, S_X + 3, sT0), "x%d" % j)
            a.vmem("buffer_load_dwordx4 v[%d:%d], v6, s[%d:%d], s%d offen offset:64" % (24 + 8 * j, 27 + 8 * j, S_X, S_X + 3, sT0), "x%d" % j)
        a("s_branch L_H")
        self.vm_h_first = a.vm

    def h_front(self):
        a = self.a
        a.vm = self.vm_h_first; a.lg_clear()
        self.p0_rest()
        a("s_waitcnt lgkmcnt(0)")
        if "tlbpf" in self.exp:
            a("v_lshlrev_b32 v2, 19, v1")
            a("v_cmp_gt_u32 vcc, 28, v1")
            a("v_mov_b32 v3, 0x40000000")
            a("v_cndmask_b32 v2, v3, v2, vcc")
            a.vmem("buffer_load_dword v245, v2, s[%d:%d], 0 offen" % (S_WS, S_WS + 3), "tlb")
            a("v_lshlrev_b32 v2, 19, v1")
            a.vmem("buffer_load_dword v246, v2, s[%d:%d], 0 offen" % (S_OUT, S_OUT + 3), "tlb")
            a.vmem("buffer_load_dword v247, v2, s[%d:%d], 0 offen" % (S_W2, S_W2 + 3), "tlb")
            a.vmem("buffer_load_dword v243, v2, s[%d:%d], 0 offen" % (S_SSM, S_SSM + 3), "tlb")
        if self.w2s:
            a("s_lshl_b32 s%d, s2, 13" % sT2)
            a("v_and_b32 v2, 255, v0")
            a("v_lshlrev_b32 v3, 4, v2")
            a("v_add_u32 v3, s%d, v3" % sT2)
            a("s_cmp_lt_u32 s2, 172")
            a("s_cselect_b32 s86, 0, 0x40000000")
            a.vmem("buffer_load_dwordx4 v[224:227], v3, s[%d:%d], s86 offen" % (S_W2, S_W2 + 3), "w2sl")
            a("v_add_u32 v3, 4096, v3")
            a.vmem("buffer_load_dwordx4 v[228:231], v3, s[%d:%d], s86 offen" % (S_W2, S_W2 + 3), "w2sl")
            a("v_bfe_u32 v4, v2, 3, 3")
            a("v_mul_u32_u24 v4, 176128, v4")
            a("v_lshrrev_b32 v5, 6, v2")
            a("v_lshl_add_u32 v4, v5, 7, v4")
            a("v_and_b32 v5, 7, v2")
            a("v_lshl_add_u32 v4, v5, 4, v4")
            a("s_lshl_b32 s%d, s2, 10" % sT2)
            a("s_add_u32 s%d, s%d, 0x%x" % (sT2, sT2, WS_W2S))
            a("v_add_u32 v232, s%d, v4" % sT2)
        if "codepf" in self.exp:
            a("s_getpc_b64 s[82:83]")
            a.label("L_pc")
            a("s_sub_u32 s82, s82, L_pc-%s" % KNAME)
            a("s_subb_u32 s83, s83, 0")
            a("v_lshlrev_b32 v2, 7, v1")
            a("s_lshl_b32 s84, s%d, 13" % sRW)
            a("v_add_u32 v2, s84, v2")
            a("v_min_u32 v2, L_codeend-%s, v2" % KNAME)
            a("v_mov_b32 v3, s83")
            a("v_add_co_u32 v2, vcc, s82, v2")
            a("v_addc_co_u32 v3, vcc, 0, v3, vcc")
            a.vmem("global_load_dword v244, v[2:3], off", "cpf")
        a("s_waitcnt lgkmcnt(0)")
        a("s_barrier")

        if "V3" in self.exp:
            self.w1_voffs()
            for f in self.w1_dma_ops(0) + self.w1_dma_ops(1): f()
        a("s_setprio 0")
        if not self.noflags:
            a("v_mov_b32 v7, 0")
        a("v_lshrrev_b32 v4, 2, v1")
        a("v_and_b32 v5, 3, v1")
        a("v_lshlrev_b32 v2, 1, v5")
        a("v_xor_b32 v4, v4, v2")
        a("v_lshlrev_b32 v4, 4, v4")
        a("v_lshl_add_u32 v4, v5, 8, v4")
        a("s_lshl_b32 s%d, s%d, 11" % (sT2, sRW))
        a("v_add_u32 v116, s%d, v4" % sT2)

    def h_ssm_load(self):
        a = self.a
        a("s_lshl_b32 s%d, s%d, 6" % (sT2, sC))
        a("s_lshl_b32 s%d, s%d, 1" % (sT1, sR))
        a("s_add_u32 s%d, s%d, s%d" % (sT2, sT2, sT1))
        a("s_lshl_b32 s%d, s%d, 12" % (sT2, sT2))
        a("v_and_b32 v3, 255, v0")
        a("v_lshlrev_b32 v3, 4, v3")
        a("v_add_u32 v2, s%d, v3" % sT2)
        a("v_add_u32 v4, -8, v2")
        for ch in range(2):
            a.vmem("buffer_load_dwordx2 v[%d:%d], v4, s[%d:%d], 0 offen" % (84 + 6 * ch, 85 + 6 * ch, S_SSM, S_SSM + 3), "ssm")
            a.vmem("buffer_load_dwordx4 v[%d:%d], v2, s[%d:%d], 0 offen" % (86 + 6 * ch, 89 + 6 * ch, S_SSM, S_SSM + 3), "ssm")
            if ch == 0:
                a("v_add_u32 v2, 4096, v2")
                a("v_add_u32 v4, 4096, v4")

    def h_stats(self):
        a = self.a
        X = 20
        for i in range(8): a("v_mov_b32 v%d, 0" % (104 + i))
        for i in range(64):
            if i % 8 == 0:
                a.wait_vm("x%d" % (i // 8))
                if i == 0: self.stamp(13)
            a("v_dot2_f32_bf16 v%d, v%d, v%d, v%d" % (104 + (i & 3), X + i, vONES, 104 + (i & 3)))
            a("v_dot2_f32_bf16 v%d, v%d, v%d, v%d" % (108 + (i & 3), X + i, X + i, 108 + (i & 3)))
        a("v_add_f32 v104, v104, v105"); a("v_add_f32 v106, v106, v107")
        a("v_add_f32 v108, v108, v109"); a("v_add_f32 v110, v110, v111")
        a("v_add_f32 v2, v104, v106"); a("v_add_f32 v3, v108, v110")
        for ctl in ("quad_perm:[1,0,3,2]", "quad_perm:[2,3,0,1]"):
            a("v_add_f32_dpp v2, v2, v2 %s row_mask:0xf bank_mask:0xf" % ctl)
            a("v_add_f32_dpp v3, v3, v3 %s row_mask:0xf bank_mask:0xf" % ctl)
        a("v_mul_f32 v2, 0x3b000000, v2")
        a("v_mul_f32 v3, 0x3b000000, v3")
        a("v_cvt_pk_bf16_f32 v4, v2, v2")
        a("v_fma_f32 v3, -v2, v2, v3")
        a("v_lshlrev_b32 v4, 16, v4")
        a("v_max_f32 v3, 0, v3")
        a("v_cvt_pk_bf16_f32 v3, v3, v3")
        a("v_lshlrev_b32 v3, 16, v3")
        a("v_add_f32 v3, 0x3727c5ac, v3")
        a("v_cvt_pk_bf16_f32 v3, v3, v3")
        a("v_lshlrev_b32 v3, 16, v3")
        a("v_sqrt_f32 v3, v3")
        a("v_cvt_pk_bf16_f32 v3, v3, v3")
        a("v_lshlrev_b32 v3, 16, v3")
        a("v_rcp_f32 v%d, v3" % self.RS)
        a("v_sub_f32 v%d, 0, v4" % self.NEGM)
        a("v_mul_f32 v%d, v%d, v%d" % (self.NMRS, self.NEGM, self.RS))
        a("v_lshrrev_b32 v6, 2, v1")
        a("s_lshl_b32 s%d, s%d, 4" % (sT2, sRW))
        a("v_add_u32 v6, s%d, v6" % sT2)
        a("v_lshlrev_b32 v5, 3, v6")
        a("v_add_u32 v5, %d, v5" % L_STATS)
        a("v_mov_b32 v2, v4")
        a("v_mov_b32 v3, v%d" % self.RS)
        a.lds("ds_write_b64 v5, v[2:3]", "st")

    def h_tbuild(self, ch):
        a = self.a
        D = 84 + 6 * ch
        E = 118
        for p in range(5):
            a("v_alignbit_b32 v%d, v%d, v%d, 16" % (E + p, D + p + 1, D + p))
        for p in range(4):
            a("v_mov_b32 v%d, v%d" % (124 + p, D + 1 + p))
            a("v_mov_b32 v%d, v%d" % (128 + p, E + 1 + p))
        a("v_and_b32 v3, 255, v0")
        a("v_lshlrev_b32 v3, 4, v3")
        a("v_add_u32 v3, %d, v3" % (L_T + ch * T_CH + 24))
        a("ds_write_b128 v3, v[118:121]")
        a("ds_write_b128 v3, v[124:127] offset:%d" % T_CP)
        a("ds_write_b128 v3, v[128:131] offset:%d" % (2 * T_CP))
        a("ds_write_b128 v3, v[%d:%d] offset:%d" % (D + 2, D + 5, 3 * T_CP))

    def w2flag_loads(self, tag):
        a = self.a
        for i in range(3):
            a("v_add_u32 v3, %d, v1" % (64 * i))
            if i == 2:
                a("v_cmp_gt_u32 vcc, 172, v3")
                a("v_cndmask_b32 v3, 0, v3, vcc")
            a("v_lshlrev_b32 v3, 7, v3")
            a("v_add_u32 v3, 0x%x, v3" % F_H4)
            ins = "buffer_load_dword v%d, v3, s[%d:%d], 0 offen sc1" % (100 + i, S_WS, S_WS + 3)
            if tag: a.vmem(ins, tag)
            else: a(ins)

    def w2flag_check(self):
        a = self.a
        for i in range(3): a("v_xor_b32 v%d, s%d, v%d" % (104 + i, sNONCE, 100 + i))
        a("v_or3_b32 v104, v104, v105, v106")
        a("v_cmp_ne_u32 vcc, 0, v104")

    def h_uload(self):
        a = self.a
        if self.noflags: a.wait_vm("ssm")
        if not self.noflags:
            dn = a.newlabel("L_h1ok")
            a.wait_vm("h1f")
            for i in range(4): a("v_xor_b32 v%d, s%d, v%d" % (96 + i, sNONCE, 96 + i))
            a("v_or3_b32 v96, v96, v97, v98")
            a("v_or_b32 v96, v96, v99")
            a("v_cmp_ne_u32 vcc, 0, v96")
            a("s_cbranch_vccz %s" % dn)
            a("s_lshl_b32 s%d, s%d, 12" % (sT0, sC))
            a("s_add_u32 s%d, s%d, 0x%x" % (sT0, sT0, F_H1))
            self.poll(sT0, 32, 4, 128)
            a.label(dn)
        self.stamp(3)
        a("s_lshl_b32 s%d, s%d, 6" % (sT0, sC))
        a("s_lshl_b32 s%d, s%d, 1" % (sT1, sR))
        a("s_add_u32 s%d, s%d, s%d" % (sT0, sT0, sT1))
        a("s_lshl_b32 s%d, s%d, 12" % (sT0, sT0))
        a("s_lshl_b32 s%d, s%d, 11" % (sT1, sRW))
        a("s_add_u32 s%d, s%d, s%d" % (sT0, sT0, sT1))
        a("v_lshlrev_b32 v4, 4, v1")
        a("v_add_u32 v5, s%d, v4" % sT0)
        a.vmem("buffer_load_dwordx4 v[20:23], v5, s[%d:%d], 0 offen sc1" % (S_WS, S_WS + 3), "u")
        a.vmem("buffer_load_dwordx4 v[24:27], v5, s[%d:%d], 0 offen offset:1024 sc1" % (S_WS, S_WS + 3), "u")
        self.h_tbuild(0)
        self.h_tbuild(1)
        if "w2early" in self.exp:
            self.w2_voff()
            self.w2_early()
        a("v_lshlrev_b32 v4, 4, v1")
        a("s_lshr_b32 s%d, s%d, 1" % (sT0, sRW))
        a("s_mul_i32 s%d, s%d, %d" % (sT0, sT0, U_CH))
        a("s_and_b32 s%d, s%d, 1" % (sT1, sRW))
        a("s_lshl_b32 s%d, s%d, 11" % (sT2, sT1))
        a("s_add_u32 s%d, s%d, s%d" % (sT0, sT0, sT2))
        a("s_add_u32 s%d, s%d, %d" % (sT0, sT0, L_U))
        a("v_add_u32 v6, s%d, v4" % sT0)
        for i in range(4): a("v_mov_b32 v%d, 0" % (28 + i))
        a("s_cmp_eq_u32 s%d, 1" % sT1)
        a("s_cselect_b32 exec_lo, -1, 0")
        a("s_mov_b32 exec_hi, 0")
        a("ds_write_b128 v6, v[28:31] offset:2048")
        a("s_mov_b64 exec, -1")
        a.wait_vm("u")
        a("ds_write_b128 v6, v[20:23]")
        a("ds_write_b128 v6, v[24:27] offset:1024")

    def norm_seq(self, j):
        a = self.a
        X = 20 + 8 * j
        seq = []
        for half in range(2):
            s1 = self.norm2(X + 4 * half, 104); s2 = self.norm2(X + 4 * half + 2, 110)
            if "hnonorm" in self.exp and j >= 2:
                s1 = ["s_nop 0"] * 8; s2 = ["s_nop 0"] * 8
            for x, y in zip(s1, s2):
                seq.append(x); seq.append(y)
            if "wmid" in self.exp:
                seq.append(lambda half=half: a.lds("ds_write_b128 v116, v[%d:%d] offset:%d" % (X + 4 * half, X + 4 * half + 3, L_XN + (j % NXN) * 8192 + half * 1024), "xw%d" % j))
        if not ("hnowrite" in self.exp and j >= 2) and "wmid" not in self.exp:
            for half in range(2):
                seq.append(lambda half=half: a.lds("ds_write_b128 v116, v[%d:%d] offset:%d" % (X + 4 * half, X + 4 * half + 3, L_XN + (j % NXN) * 8192 + half * 1024), "xw%d" % j))
        return seq

    def h_gemm1_side(self):
        a = self.a
        if self.w2s:
            a.wait_vm("w2sl")
            a.vmem("buffer_store_dwordx4 v[224:227], v232, s[%d:%d], s86 offen sc1" % (S_WS, S_WS + 3), "w2st")
            a.vmem("buffer_store_dwordx4 v[228:231], v232, s[%d:%d], s86 offen offset:512 sc1" % (S_WS, S_WS + 3), "w2st")
        if "hprio" in self.exp: a("s_setprio 2")
        if "lnpre" in self.exp:
            def split(j):
                sq = self.norm_seq(j)
                return sq[:-2], sq[-2:]
            wr = {}
            for j in range(8):
                v_, w_ = split(j)
                for x in v_: self.run(x)
                if j < 4:
                    for x in w_: self.run(x)
                else:
                    wr[j] = w_
                if j == 1 and not self.noflags:
                    a.vmem("buffer_load_dword v19, v7, s[%d:%d], 0 offen sc1" % (S_DBG, S_DBG + 3), "nonce")
            a.need_lds("xw0", "xw1")
            a("s_barrier")
        else:
            for x in self.norm_seq(0): self.run(x)
            s1 = self.norm_seq(1)
            h = len(s1) // 2
            for x in s1[:h]: self.run(x)
            for x in s1[h:]: self.run(x)
            if not self.noflags:
                a.vmem("buffer_load_dword v19, v7, s[%d:%d], 0 offen sc1" % (S_DBG, S_DBG + 3), "nonce")
            s2 = self.norm_seq(2)
            for x in s2[:h]: self.run(x)
            a.need_lds("xw0", "xw1")
            if "V3" in self.exp: a.wait_vm("w1c1")
            a("s_barrier")
            for x in s2[h:]: self.run(x)
        for j in range(8):
            if "lnpre" in self.exp:
                if j >= 1 and j + 3 <= 7:
                    for x in wr[j + 3]: self.run(x)
            elif j + 3 <= 7:
                for x in self.norm_seq(j + 3): self.run(x)
            if j == self.pf2j and "pf2" in self.exp: self.line_prefetch("w2", 242)
            if j == 1: self.h_ssm_load()
            if j == (self.w2j if self.w2s else 4) and not self.noflags:
                self.get_nonce()
            if j == 5:
                if not self.noflags:
                    a("s_lshl_b32 s%d, s%d, 12" % (sT0, sC))
                    a("s_add_u32 s%d, s%d, 0x%x" % (sT0, sT0, F_H1))
                    a("v_and_b32 v2, 31, v1")
                    a("v_lshlrev_b32 v2, 7, v2")
                    a("v_add_u32 v2, s%d, v2" % sT0)
                if self.w2s:
                    skf = a.newlabel("L_w2f")
                    a("s_cmp_lg_u32 s%d, 0" % sRW)
                    a("s_cbranch_scc1 %s" % skf)
                    self.w2flag_loads(tag=None)
                    a.label(skf)
                if not self.noflags:
                    a.vmem("buffer_load_dwordx4 v[96:99], v2, s[%d:%d], 0 offen sc1" % (S_WS, S_WS + 3), "h1f")
            if j + 1 <= 6:
                if j + 2 <= 7 and "hnowrite" not in self.exp: a.need_lds("xw%d" % (j + 2))
                if j == self.w2j and self.w2s: a.wait_vm("w2st")
                a("s_barrier")
                if j == self.w2j and self.w2s:
                    sk = a.newlabel("L_w2c")
                    a("s_cmp_lt_u32 s2, 172")
                    a("s_cselect_b32 s4, s%d, 1" % sRW)
                    a("s_cmp_lg_u32 s4, 0")
                    a("s_cbranch_scc1 %s" % sk)
                    a("s_lshl_b32 s4, s2, 7")
                    a("s_add_u32 s%d, s4, 0x%x" % (sT2, F_H4))
                    q = list(a.vm.q)
                    self.flag_store(sT2, "flag", 2, 3)
                    a.vm.q = q
                    a.label(sk)
                if "itst" in self.exp: self.stamp(23 + j)
        if "hprio" in self.exp: a("s_setprio 0")
        self.h_uload()
        if self.w2s:
            lp = a.newlabel("L_w2p"); dn = a.newlabel("L_w2d")
            a("s_cmp_lg_u32 s%d, 0" % sRW)
            a("s_cbranch_scc1 %s" % dn)
            a("s_mov_b32 s%d, 0" % sT3)
            a.label(lp)
            self.w2flag_check()
            a("s_cbranch_vccz %s" % dn)
            self.w2flag_loads(tag=None)
            a("s_waitcnt vmcnt(0)")
            a("s_add_u32 s%d, s%d, 1" % (sT3, sT3))
            a("s_cmp_lt_u32 s%d, 100000" % sT3)
            a("s_cbranch_scc1 %s" % lp)
            if "pf4" in self.exp:
                lok = a.newlabel("L_w2ok")
                a.lines.pop()
                a("s_cbranch_scc1 %s" % lp)
            a.label(dn)
            if "pf4" in self.exp:
                skp = a.newlabel("L_pf4")
                a("s_cmp_lg_u32 s%d, 0" % sRW)
                a("s_cbranch_scc1 %s" % skp)
                a("s_lshr_b32 s%d, s2, 3" % sT0)
                if "map42" in self.exp:
                    a("s_mul_i32 s%d, s%d, %d" % (sT0, sT0, 172 * 128))
                    a("s_bfe_u32 s%d, s2, 0x10002" % sT1)
                    a("s_mul_i32 s%d, s%d, %d" % (sT1, sT1, 4 * 176128))
                    a("s_add_u32 s%d, s%d, s%d" % (sT0, sT0, sT1))
                    nl = 172
                else:
                    a("s_mul_i32 s%d, s%d, %d" % (sT0, sT0, 344 * 128))
                    nl = 344
                a("s_add_u32 s%d, s%d, 0x%x" % (sT0, sT0, WS_W2S))
                for i in range((nl + 63) // 64):
                    a("v_add_u32 v3, %d, v1" % (64 * i))
                    a("v_min_u32 v3, %d, v3" % (nl - 1))
                    a("v_lshlrev_b32 v3, 7, v3")
                    a("v_add_u32 v3, s%d, v3" % sT0)
                    a("buffer_load_dword v%d, v3, s[%d:%d], 0 offen sc1" % (240 + (i & 3), S_WS, S_WS + 3))
                a.label(skp)
        self.w2_voff()
        a.lg0()
        a("s_barrier")
        self.stamp(2)

    def h_gemm2(self):
        a = self.a
        HF, ACC = 20, 196
        WBUF = [228, 2]
        AB = 244
        PF = 10
        a("s_lshr_b32 s75, s%d, 1" % sRW)
        a("s_and_b32 s76, s%d, 1" % sRW)
        if "poller3" in self.exp:
            lp3 = a.newlabel("L_hp3"); lgo = a.newlabel("L_hgo")
            a("s_cmp_eq_u32 s%d, 3" % sRW)
            a("s_cbranch_scc1 %s" % lp3)
            q0 = list(a.vm.q)
            for m in range(9):
                a("s_add_u32 s%d, s%d, %d" % (sT0, sRW, 3 * m))
                if m == 8: a("s_min_u32 s%d, s%d, 25" % (sT0, sT0))
                a("s_lshr_b32 s%d, s%d, 1" % (sT1, sT0))
                a("s_and_b32 s%d, s%d, 1" % (sT0, sT0))
                a("s_mul_i32 s71, s%d, %d" % (sT0, NB_H))
                a("s_add_u32 s71, s71, s%d" % sT1)
                a("s_lshl_b32 s71, s71, 12")
                a("s_mul_i32 s70, s%d, 22" % sT0)
                a("s_add_u32 s70, s70, s%d" % sT1)
                a("s_lshl_b32 s70, s70, %d" % (12 if self.w2s else 15))
                self.w2_dma(71, L_B, 70, 0, "w2b")
            a("s_branch %s" % lgo)
            a.label(lp3)
            if not self.noflags:
                a("s_lshl_b32 s%d, s%d, 10" % (sT0, sR))
                a("s_add_u32 s%d, s%d, 0x%x" % (sT0, sT0, F_H2))
                self.poll(sT0, 8, 4, 128)
            a("v_mov_b32 v2, %d" % (L_SYNC + 60))
            a("v_mov_b32 v3, 1")
            a("ds_write_b32 v2, v3")
            a.label(lgo)
        else:
            def w2b_slot(m):
                a("s_add_u32 s%d, s%d, %d" % (sT0, sRW, 4 * m))
                if m == 6: a("s_min_u32 s%d, s%d, 25" % (sT0, sT0))
                a("s_lshr_b32 s%d, s%d, 1" % (sT1, sT0))
                a("s_and_b32 s%d, s%d, 1" % (sT0, sT0))
                a("s_mul_i32 s71, s%d, %d" % (sT0, NB_H))
                a("s_add_u32 s71, s71, s%d" % sT1)
                a("s_lshl_b32 s71, s71, 12")
                a("s_mul_i32 s70, s%d, 22" % sT0)
                a("s_add_u32 s70, s70, s%d" % sT1)
                a("s_lshl_b32 s70, s70, %d" % (12 if self.w2s else 15))
                self.w2_dma(71, L_B, 70, 0, "w2b" if m < self.w2p1 else "w2b2")
            self.w2b_slot = w2b_slot
            if "w2early" in self.exp:
                for m in range(4):
                    a("s_add_u32 s%d, s%d, %d" % (sT0, sRW, 4 * m + (4 if m == 0 else 10)))
                    self.w2_slot_dma("w2b")
            else:
                for m in range(self.w2p1):
                    w2b_slot(m)
        a("s_lshl_b32 s%d, s%d, 2" % (sT2, sR))
        a("s_lshl_b32 s4, s76, 1")
        a("s_add_u32 s%d, s%d, s4" % (sT2, sT2))
        a("s_mul_i32 s%d, s%d, 44032" % (sT2, sT2))
        a("s_mul_i32 s4, s75, %d" % (22 * 1024))
        a("s_add_u32 s%d, s%d, s4" % (sT2, sT2))
        a("s_add_u32 s%d, s%d, 0x%x" % (sT2, sT2, WS_H))
        a("v_lshlrev_b32 v18, 4, v1")
        a("v_add_u32 v18, s%d, v18" % sT2)
        a("v_add_u32 v19, 44032, v18")
        a("v_lshrrev_b32 v2, 4, v1")
        a("v_and_b32 v3, 15, v1")
        a("v_lshrrev_b32 v3, 2, v3")
        a("v_lshrrev_b32 v4, 1, v2")
        a("v_lshlrev_b32 v4, 4, v4")
        a("v_and_b32 v5, 1, v2")
        a("v_lshl_add_u32 v4, v5, 2, v4")
        a("v_add_u32 v4, v4, v3")
        a("v_lshlrev_b32 v4, 7, v4")
        a("v_and_b32 v6, 1, v1")
        a("v_lshl_add_u32 v4, v6, 3, v4")
        a("v_lshlrev_b32 v5, 1, v5")
        a("v_lshrrev_b32 v6, 1, v3")
        a("v_add_u32 v5, v5, v6")
        a("v_lshlrev_b32 v5, 1, v5")
        a("v_and_b32 v6, 3, v1")
        a("v_lshrrev_b32 v6, 1, v6")
        a("s_mul_i32 s4, s75, %d" % B_HALF)
        if L_B: a("s_add_u32 s4, s4, %d" % L_B)
        for b in range(4):
            a("v_add_u32 v7, %d, v6" % (2 * b))
            a("v_xor_b32 v7, v7, v5")
            a("v_lshl_add_u32 v7, v7, 4, v4")
            a("v_add_u32 v%d, s4, v7" % (AB + b))
        a("s_mul_i32 s5, s75, %d" % (NA_H * 4096))
        a("s_add_u32 s5, s5, %d" % L_A)
        a("s_sub_u32 s77, s5, s4")
        a("s_sub_u32 s79, s4, s5")
        for i in range(32): a("v_mov_b32 v%d, 0" % (ACC + i))
        if "poller3" in self.exp:
            a("s_mov_b32 s5, %d" % (L_SYNC + 60))
            self.lds_wait(5, 1, 253, 254)
        else:
            self.stamp(5)
            if not self.noflags and "noh2" not in self.exp:
                a("s_lshl_b32 s%d, s%d, 10" % (sT0, sR))
                a("s_add_u32 s%d, s%d, 0x%x" % (sT0, sT0, F_H2))
                self.poll(sT0, 8, 4, 128)
        self.stamp(6)

        def hload(i):
            ops = []
            for t in range(2):
                def f(t=t):
                    r = HF + (i * 2 + t) * 4
                    so = i * 1024
                    if so < 4096:
                        a.vmem("buffer_load_dwordx4 v[%d:%d], v%d, s[%d:%d], 0 offen offset:%d sc1" % (r, r + 3, 18 + t, S_WS, S_WS + 3, so), "h%d" % i)
                    else:
                        if t == 0: a("s_mov_b32 s80, %d" % (so & ~4095))
                        a.vmem("buffer_load_dwordx4 v[%d:%d], v%d, s[%d:%d], s80 offen offset:%d sc1" % (r, r + 3, 18 + t, S_WS, S_WS + 3, so & 4095), "h%d" % i)
                ops.append(f)
            return ops

        def read_ops(i):
            buf = WBUF[i & 1]
            if i < 13: so = i * 4096
            elif i < 19: so = (i - 13) * 4096
            else: so = (i - 19) * 4096
            ops = []
            sw = {13: 77, 19: 79}.get(i)
            if sw:
                for b in range(4): ops.append("v_add_u32 v%d, s%d, v%d" % (AB + b, sw, AB + b))
            for b in range(4):
                for hh in range(2):
                    r0 = buf + 4 * b + 2 * hh
                    ops.append(lambda r0=r0, b=b, hh=hh: a.lds("ds_read_b64_tr_b16 v[%d:%d], v%d offset:%d" % (r0, r0 + 1, AB + b, so + hh * 1024), "w%d_%d" % (i, b)))
            return ops

        def mfma_ops(i):
            buf = WBUF[i & 1]
            ops = []
            for b in range(4):
                for t in range(2):
                    def f(b=b, t=t):
                        if b == 0 and t == 0:
                            a.wait_both("h%d" % i, ["w%d_%d" % (i, bb) for bb in range(4)])
                        acc = ACC + (b * 2 + t) * 4
                        hr = HF + (i * 2 + t) * 4
                        a("v_mfma_f32_16x16x32_bf16 v[%d:%d], v[%d:%d], v[%d:%d], v[%d:%d]" % (acc, acc + 3, buf + 4 * b, buf + 4 * b + 3, hr, hr + 3, acc, acc + 3))
                    ops.append(f)
            return ops

        allh = []
        for i in range(22): allh += hload(i)
        hp = 0
        for f in allh[:self.hinit]: f()
        hp = self.hinit
        for m in range(self.w2p1, 7):
            self.w2b_slot(m)
        a("s_waitcnt vmcnt(%d)" % min(63, self.hinit + 4 * (7 - self.w2p1)))
        self.m_sync(11, va=253, vb=254)
        self.stamp(19)
        for f in read_ops(0): self.run(f)
        last = a.newlabel("L_g2l")
        for i in range(22):
            if i == 12:
                a.lg0()
                a("s_barrier")
            if i == 18:
                a.lg0()
                a("s_barrier")
            if self.w2p1 < 7 and i == 2 * self.w2p1 - 1:
                a.wait_vm("w2b2")
                self.m_sync(10, va=253, vb=254)
            if i == 4:
                a("v_mov_b32 v253, %d" % (L_SYNC + 56))
                a("v_mov_b32 v254, 1")
                a("s_mov_b64 exec, 1")
                a.lds("ds_add_u32 v253, v254", "sig")
                a("s_mov_b64 exec, -1")
            if i == 21:
                a("s_cmp_eq_u32 s75, 1")
                a("s_cbranch_scc1 %s" % last)
            fill = []
            if i < 21: fill += read_ops(i + 1)
            nl = self.hper if hp < 2 * (i + self.hwin) else 2
            nl = min(nl, len(allh) - hp)
            fill = allh[hp:hp + nl] + fill
            hp += nl
            interleave(a, mfma_ops(i), fill)
        a.label(last)
        a.lg0()
        self.stamp(22)
        a("v_and_b32 v2, 15, v1")
        a("v_lshrrev_b32 v3, 4, v1")
        a("v_mul_u32_u24 v2, 272, v2")
        a("v_lshl_add_u32 v2, v3, 4, v2")
        a("s_mul_i32 s4, s75, %d" % P_STRIDE)
        a("s_mul_i32 s5, s76, %d" % (32 * 272))
        a("s_add_u32 s4, s4, s5")
        a("s_add_u32 s4, s4, %d" % L_P)
        a("v_add_u32 v2, s4, v2")
        for b in range(4):
            for t in range(2):
                acc = ACC + (b * 2 + t) * 4
                a("ds_write_b128 v2, v[%d:%d] offset:%d" % (acc, acc + 3, t * 16 * 272 + b * 64))
        self.final_x_load(240, 244)
        a.lg0()
        a("s_barrier")

    def final(self):
        a = self.a
        P0 = L_P; P1 = L_P + P_STRIDE; YL = L_Y
        XR = 240; OA = 244
        a("s_and_b32 s%d, s%d, 3" % (sT0, sW))
        a("s_lshr_b32 s%d, s%d, 2" % (sT1, sW))
        a("v_lshrrev_b32 v2, 2, v1")
        a("v_and_b32 v3, 3, v1")
        a("s_lshl_b32 s4, s%d, 4" % sT0)
        a("v_add_u32 v2, s4, v2")
        a("v_mul_u32_u24 v4, 272, v2")
        a("v_lshl_add_u32 v4, v3, 5, v4")
        a("s_lshl_b32 s4, s%d, 7" % sT1)
        a("s_add_u32 s4, s4, %d" % P0)
        a("v_add_u32 v4, s4, v4")
        a("ds_read_b128 v[20:23], v4")
        a("ds_read_b128 v[24:27], v4 offset:16")
        a("ds_read_b128 v[28:31], v4 offset:%d" % (P1 - P0))
        a("ds_read_b128 v[32:35], v4 offset:%d" % (P1 - P0 + 16))
        a("v_lshlrev_b32 v6, 3, v2")
        a("v_add_u32 v6, %d, v6" % L_STATS)
        a("ds_read_b64 v[36:37], v6")
        a("v_lshrrev_b32 v7, 4, v1")
        a("v_lshlrev_b32 v7, 3, v7")
        a("v_and_b32 v8, 15, v1")
        a("v_lshrrev_b32 v8, 2, v8")
        a("v_add_u32 v7, v7, v8")
        a("s_lshl_b32 s4, s%d, 5" % sT1)
        a("v_add_u32 v7, s4, v7")
        a("v_mul_u32_u24 v7, 144, v7")
        a("v_and_b32 v8, 3, v1")
        a("v_lshl_add_u32 v7, v8, 3, v7")
        a("s_lshl_b32 s4, s%d, 5" % sT0)
        a("s_add_u32 s4, s4, %d" % YL)
        a("v_add_u32 v7, s4, v7")
        a("ds_read_b64_tr_b16 v[38:39], v7")
        a("ds_read_b64_tr_b16 v[40:41], v7 offset:%d" % (4 * 144))
        a("v_and_b32 v8, 3, v1")
        a("v_lshlrev_b32 v8, 4, v8")
        a("v_lshrrev_b32 v9, 2, v1")
        a("v_or_b32 v8, v8, v9")
        a("v_lshlrev_b32 v8, 2, v8")
        a("v_mov_b32 v10, 0xbfb8aa3b")
        a("v_mov_b32 v11, 1.0")
        a("s_waitcnt lgkmcnt(0)")
        for i in range(4):
            a("ds_bpermute_b32 v%d, v8, v%d" % (42 + i, 38 + i))
        for i in range(8):
            a("v_add_f32 v%d, v%d, v%d" % (20 + i, 20 + i, 28 + i))
        for i in range(4):
            a("v_cvt_pk_bf16_f32 v%d, v%d, v%d" % (28 + i, 20 + 2 * i, 21 + 2 * i))
        for i in range(4):
            a("v_alignbit_b32 v%d, v%d, 0, 16" % (20 + 2 * i, 28 + i))
            a("v_and_b32 v%d, v%d, v%d" % (21 + 2 * i, vMHI, 28 + i))
        for i in range(8):
            a("v_mul_f32 v%d, v10, v%d" % (48 + i, 20 + i))
        for i in range(8):
            a("v_exp_f32 v%d, v%d" % (48 + i, 48 + i))
        a("s_waitcnt vmcnt(0)")
        a("v_sub_f32 v12, 0, v36")
        for i in range(4):
            a("v_dot2_f32_bf16 v%d, v%d, v%d, v12" % (72 + 2 * i, XR + i, vONELO))
            a("v_dot2_f32_bf16 v%d, v%d, v%d, v12" % (73 + 2 * i, XR + i, vONEHI))
        for i in range(8):
            a("v_add_f32 v%d, v11, v%d" % (48 + i, 48 + i))
        for i in range(4):
            a("v_cvt_pk_bf16_f32 v%d, v%d, v%d" % (80 + i, 72 + 2 * i, 73 + 2 * i))
        for i in range(8):
            a("v_rcp_f32 v%d, v%d" % (48 + i, 48 + i))
        for i in range(4):
            a("v_alignbit_b32 v%d, v%d, 0, 16" % (72 + 2 * i, 80 + i))
            a("v_and_b32 v%d, v%d, v%d" % (73 + 2 * i, vMHI, 80 + i))
        for i in range(8):
            a("v_mul_f32 v%d, v%d, v37" % (72 + i, 72 + i))
        for i in range(8):
            a("v_mul_f32 v%d, v%d, v%d" % (20 + i, 20 + i, 48 + i))
        for i in range(4):
            a("v_cvt_pk_bf16_f32 v%d, v%d, v%d" % (80 + i, 72 + 2 * i, 73 + 2 * i))
        for i in range(4):
            a("v_cvt_pk_bf16_f32 v%d, v%d, v%d" % (28 + i, 20 + 2 * i, 21 + 2 * i))
        a("s_waitcnt lgkmcnt(0)")
        for i in range(4):
            a("v_and_b32 v%d, v%d, v%d" % (56 + 2 * i, vMLO, 42 + i))
            a("v_and_b32 v%d, v%d, v%d" % (57 + 2 * i, vMHI, 42 + i))
            a("v_and_b32 v%d, v%d, v%d" % (64 + 2 * i, vMLO, 28 + i))
            a("v_and_b32 v%d, v%d, v%d" % (65 + 2 * i, vMHI, 28 + i))
        for i in range(4):
            a("v_dot2_f32_bf16 v%d, v%d, v%d, 0" % (72 + 2 * i, 80 + i, 56 + 2 * i))
            a("v_dot2_f32_bf16 v%d, v%d, v%d, 0" % (73 + 2 * i, 80 + i, 57 + 2 * i))
        for i in range(4):
            a("v_alignbit_b32 v%d, v%d, 0, 16" % (88 + 2 * i, XR + i))
            a("v_and_b32 v%d, v%d, v%d" % (89 + 2 * i, vMHI, XR + i))
        for i in range(4):
            a("v_cvt_pk_bf16_f32 v%d, v%d, v%d" % (80 + i, 72 + 2 * i, 73 + 2 * i))
        for i in range(4):
            a("v_dot2_f32_bf16 v%d, v%d, v%d, 0" % (72 + 2 * i, 80 + i, 64 + 2 * i))
            a("v_dot2_f32_bf16 v%d, v%d, v%d, 0" % (73 + 2 * i, 80 + i, 65 + 2 * i))
        for i in range(4):
            a("v_cvt_pk_bf16_f32 v%d, v%d, v%d" % (80 + i, 72 + 2 * i, 73 + 2 * i))
        for i in range(4):
            a("v_dot2_f32_bf16 v%d, v%d, v%d, v%d" % (72 + 2 * i, 80 + i, vONELO, 88 + 2 * i))
            a("v_dot2_f32_bf16 v%d, v%d, v%d, v%d" % (73 + 2 * i, 80 + i, vONEHI, 89 + 2 * i))
        for i in range(4):
            a("v_cvt_pk_bf16_f32 v%d, v%d, v%d" % (80 + i, 72 + 2 * i, 73 + 2 * i))
        fl = " sc1" if "outsc1" in self.exp else (" nt" if "outnt" in self.exp else (" sc0 sc1" if "outsc01" in self.exp else ""))
        a("buffer_store_dwordx4 v[80:83], v%d, s[%d:%d], 0 offen%s" % (OA, S_OUT, S_OUT + 3, fl))

    def build(self):
        a = self.a
        self.p0()
        self.m_front()
        self.stamp(1)
        self.m_prep()
        self.stamp(10)
        self.m_gemm1()
        self.stamp(4)
        self.m_conv()
        self.m_tail()
        a("s_branch L_final")
        a.label("L_H")
        self.h_front()
        self.stamp(1)
        self.h_stats()
        self.stamp(11)
        self.h_gemm1_side()
        self.h_gemm2()
        a.label("L_final")
        a.lg_clear()
        self.stamp(8)
        self.final()
        self.stamp(9)
        self.dump_stamps()
        if "noendwait" not in self.exp: a("s_waitcnt vmcnt(0)")
        a.label("L_end")
        a.label("L_codeend")
        a("s_endpgm")
        lines, n = hazard.fix(a.lines)
        self.nnops = n
        hdr = """; Kernarg layout: x,k,v,shift_k,ssm_k,ssm_D,B_x,w1,w2,out,debug,ws (8-byte pointers)
; @launch grid=(256,1,1) block=(512,1,1) lds=%d
.amdgcn_target "amdgcn-amd-amdhsa--gfx950"
.text
.globl %s
.p2align 8
.type %s,@function
%s:
""" % (LDS_SIZE, KNAME, KNAME, KNAME)
        ftr = """.section .rodata,"a"
.p2align 6
.amdhsa_kernel %s
  .amdhsa_next_free_vgpr 256
  .amdhsa_next_free_sgpr 102
  .amdhsa_accum_offset 256
  .amdhsa_group_segment_fixed_size 0
  .amdhsa_kernarg_size 96
  .amdhsa_user_sgpr_count 2
  .amdhsa_user_sgpr_kernarg_segment_ptr 1
  .amdhsa_system_sgpr_workgroup_id_x 1
.end_amdhsa_kernel
""" % KNAME
        return hdr + "\n".join(lines) + "\n" + ftr

if __name__ == "__main__":
    import argparse
    ap = argparse.ArgumentParser()
    ap.add_argument("-o", default="k.s")
    ap.add_argument("--stamps", action="store_true")
    ap.add_argument("--noflags", action="store_true")
    ap.add_argument("--exp", default="")
    args = ap.parse_args()
    g = Gen(stamps=args.stamps, noflags=args.noflags, exp=args.exp)
    txt = g.build()
    open(args.o, "w").write(txt)
    print("wrote", args.o, len(txt.splitlines()), "lines; hazard nops:", g.nnops)
```

```python
import sys
from emit import *
import hazard

KNAME = "recurrent_scan__ssm_conv_h3__dense_activation_relu__prompt_kernel"

WS_KVT = 0
WS_YT = 2 << 20
WS_H = 4 << 20
WS_FLAG = 10 << 20
F_H1 = WS_FLAG
F_H2 = WS_FLAG + 32768
F_H3 = WS_FLAG + 65536
F_H4 = WS_FLAG + 98304
WS_STAMP = WS_FLAG + (256 << 10)
WS_W2S = 12 << 20
WS_SIZE = 16 << 20

L_XN = 0
NXN = 4
L_W1 = 32768
W1_SLOT = 24576
NW1 = 5
L_PREP = L_W1 + 4 * W1_SLOT
L_A = L_W1 + 3 * W1_SLOT
NA_H = 6
L_T = L_A + 8
T_CH = 16640
T_CP = 4160
L_U = L_A + 33408
U_CH = 4608
L_B = 0
NB_H = 13
B_HALF = NB_H * 4096
L_Y = 16384
L_P = L_B + 7 * 4096
P_STRIDE = B_HALF
L_STATS = 161792
L_SYNC = 162304
LDS_SIZE = 163840
assert L_U % 16 == 0 and L_U + 2 * U_CH <= L_W1 + 5 * W1_SLOT and L_T + 2 * T_CH <= L_U
assert L_A + 2 * NA_H * 4096 <= L_STATS and 2 * B_HALF <= L_A and L_W1 + NW1 * W1_SLOT <= L_STATS

S_X, S_K, S_V, S_W1, S_W2, S_OUT, S_SSM, S_WS, S_SH, S_DBG = 8, 12, 16, 20, 24, 28, 32, 36, 40, 44
sR, sC, sW, sNONCE = 48, 49, 50, 51
sF0, sBP, sNB = 52, 53, 54
sT0, sT1, sT2, sT3 = 55, 56, 57, 58
sRW = 59
sEX = 60
sROT = 62
sDP = 64
sDD = 66
sM0B = 67
sP0, sP1 = 68, 69
sUOK = 72
sID = 81
sD = 85
sINV1, sINV2 = 73, 74
vMLO, vMHI, vONELO, vONEHI, vONES = 248, 249, 250, 251, 252

def merge(*lists):
    lists = [l for l in lists if l]
    tot = sum(len(l) for l in lists)
    out = []; idx = [0] * len(lists)
    for s in range(tot):
        best = min((i for i in range(len(lists)) if idx[i] < len(lists[i])), key=lambda i: (idx[i] + 0.5) / len(lists[i]))
        out.append(lists[best][idx[best]]); idx[best] += 1
    return out

class Gen:
    def __init__(self, stamps=False, noflags=False, exp=""):
        self.exp = set(exp.split(",")) if exp else set()
        self.a = Asm()
        self.stamps = stamps
        self.noflags = noflags
        self.relax_ln = "relax_ln" in self.exp
        self.stampset = None
        self.h2n = 75
        self.h1j = 0
        self.w2p1 = 7
        for e in self.exp:
            if e.startswith('p1='): self.w2p1 = int(e[3:])
        for e in self.exp:
            if e.startswith('h1j='): self.h1j = int(e[4:])
        self.w2j = 0
        self.w2s = 'w2s' in self.exp
        self.KS = 4096 if self.w2s else 32768
        self.pf2j = 0
        for e in self.exp:
            if e.startswith('pj='): self.pf2j = int(e[3:])
            if e.startswith('h2n='): self.h2n = int(e[4:])
        self.hwin = 22; self.hper = 6; self.hinit = 12
        for e in self.exp:
            if e.startswith('hw='): self.hwin, self.hper, self.hinit = [int(x) for x in e[3:].split('+')]
        for e in self.exp:
            if e.startswith("st="):
                self.stampset = set(int(x) for x in e[3:].split("+"))

    def stamp(self, idx):
        if not self.stamps: return
        if self.stampset is not None and idx not in self.stampset: return
        a = self.a
        a("s_memrealtime s[4:5]")
        if "clk" in self.exp and idx in (14, 2, 4, 16):
            a("s_memtime s[6:7]")
        a.lg0()
        a("v_writelane_b32 v255, s4, %d" % idx)
        if "clk" in self.exp and idx in (14, 2, 4, 16):
            a("v_writelane_b32 v255, s6, %d" % {14: 29, 2: 30, 4: 31, 16: 15}[idx])

    def dump_stamps(self):
        if not self.stamps: return
        a = self.a
        if "entry" in self.exp:
            a("v_writelane_b32 v255, s90, 31")
        if "dbgst" in self.exp:
            sk = a.newlabel("L_ds")
            a("s_or_b32 s4, s2, s%d" % sW)
            a("s_cmp_lg_u32 s4, 0")
            a("s_cbranch_scc1 %s" % sk)
            a("v_readlane_b32 s4, v255, 0")
            a("s_nop 3")
            a("v_subrev_u32 v3, s4, v255")
            order = [12, 10, 14, 2, 4, 16, 17, 18, 7, 8, 9]
            for k, i in enumerate(order):
                a("v_readlane_b32 s5, v3, %d" % i)
                a("s_nop 3")
                a("v_mov_b32 v4, s5")
                a("v_mov_b32 v5, %d" % (4 * (k + 1)))
                a("s_mov_b64 exec, 1")
                a("buffer_store_dword v4, v5, s[%d:%d], 0 offen" % (S_DBG, S_DBG + 3))
                a("s_mov_b64 exec, -1")
            a.label(sk)
        a("s_lshl_b32 s%d, s2, 3" % sT0)
        a("s_add_u32 s%d, s%d, s%d" % (sT0, sT0, sW))
        a("s_lshl_b32 s%d, s%d, 7" % (sT0, sT0))
        a("s_add_u32 s%d, s%d, 0x%x" % (sT0, sT0, WS_STAMP))
        a("v_lshlrev_b32 v2, 2, v1")
        a("v_add_u32 v2, s%d, v2" % sT0)
        a("s_mov_b32 exec_lo, -1")
        a("s_mov_b32 exec_hi, 0")
        a("buffer_store_dword v255, v2, s[%d:%d], 0 offen" % (S_WS, S_WS + 3))
        a("s_mov_b64 exec, -1")

    def run(self, x):
        if callable(x): x()
        else: self.a(x)

    def spread(self, seq, extra):
        a = self.a
        if not extra:
            for x in seq: self.run(x)
            return
        step = max(1, len(seq) // (len(extra) + 1))
        k = 0
        for i, ins in enumerate(seq):
            self.run(ins)
            if (i + 1) % step == 0 and k < len(extra):
                self.run(extra[k]); k += 1
        while k < len(extra):
            self.run(extra[k]); k += 1

    def map_rc(self):
        a = self.a
        if "map42" in self.exp:
            a("s_and_b32 s%d, s2, 3" % sR)
            a("s_lshl_b32 s%d, s%d, 3" % (sR, sR))
            a("s_bfe_u32 s3, s2, 0x30003")
            a("s_add_u32 s%d, s%d, s3" % (sR, sR))
            a("s_bfe_u32 s%d, s2, 0x10002" % sC)
            a("s_lshl_b32 s%d, s%d, 2" % (sC, sC))
            a("s_lshr_b32 s3, s2, 6")
            a("s_add_u32 s%d, s%d, s3" % (sC, sC))
        else:
            a("s_and_b32 s%d, s2, 7" % sR)
            a("s_lshr_b32 s3, s2, 6")
            a("s_lshl_b32 s3, s3, 3")
            a("s_add_u32 s%d, s%d, s3" % (sR, sR))
            a("s_bfe_u32 s%d, s2, 0x30003" % sC)

    def rot_calc(self):
        a = self.a
        if "map42" in self.exp:
            a("s_lshl_b32 s%d, s%d, 1" % (sT0, sC))
            a("s_add_u32 s%d, s%d, s%d" % (sT0, sT0, sR))
            a("s_and_b32 s%d, s%d, 7" % (sROT, sT0))
        else:
            a("s_lshr_b32 s%d, s%d, 3" % (sT0, sR))
            a("s_lshl_b32 s%d, s%d, 1" % (sT0, sT0))
            a("s_add_u32 s%d, s%d, s%d" % (sT0, sT0, sC))
            a("s_add_u32 s%d, s%d, s%d" % (sT0, sT0, sR))
            a("s_and_b32 s%d, s%d, 7" % (sROT, sT0))
        if "norot" in self.exp: a("s_mov_b32 s%d, 0" % sROT)

    def p0(self):
        a = self.a
        if self.stamps and "entry" in self.exp:
            a("s_memrealtime s[90:91]")
        a("s_load_dwordx8 s[64:71], s[0:1], 0")
        a("s_cmp_ge_u32 s2, 256")
        a("s_cbranch_scc1 L_end")
        if self.stamps: a("v_mov_b32 v255, 0")
        a("v_lshrrev_b32 v2, 6, v0")
        a("v_and_b32 v1, 63, v0")
        if "codepf0" in self.exp:
            a("s_getpc_b64 s[82:83]")
            a.label("L_pc")
            a("s_sub_u32 s82, s82, L_pc-%s" % KNAME)
            a("s_subb_u32 s83, s83, 0")
            a("v_and_b32 v4, 255, v0")
            a("v_lshlrev_b32 v4, 7, v4")
            a("v_min_u32 v4, L_codeend-%s, v4" % KNAME)
            a("v_mov_b32 v5, s83")
            a("v_add_co_u32 v4, vcc, s82, v4")
            a("v_addc_co_u32 v5, vcc, 0, v5, vcc")
            a.vmem("global_load_dword v244, v[4:5], off", "cpf")
        self.map_rc()
        a("v_readfirstlane_b32 s%d, v2" % sW)
        a("s_mov_b32 s10, 0x200000")
        a("s_mov_b32 s11, 0x00020000")
        a("s_mov_b32 s14, 0x200000")
        a("s_mov_b32 s15, 0x00020000")
        a("s_mov_b32 s18, 0x200000")
        a("s_mov_b32 s19, 0x00020000")
        a("s_movk_i32 s42, 0x1000")
        a("s_mov_b32 s43, 0x00020000")
        a("s_and_b32 s%d, s%d, 3" % (sRW, sW))
        a("s_cmp_ge_u32 s%d, 4" % sW)
        a("s_cbranch_scc1 L_Hfirst")

    def p0_rest(self):
        a = self.a
        for dst, off in ((S_W1, 56), (S_SSM, 32), (S_WS, 88), (S_DBG, 80), (S_W2, 64), (S_OUT, 72), (sDP, 40)):
            a("s_load_dwordx2 s[%d:%d], s[0:1], %d" % (dst, dst + 1, off))
        for dst, size in ((S_W1, 1409024), (S_SSM, 2097152), (S_WS, WS_SIZE), (S_DBG, 256), (S_W2, 1409024), (S_OUT, 2097152)):
            a("s_mov_b32 s%d, 0x%x" % (dst + 2, size))
            a("s_mov_b32 s%d, 0x00020000" % (dst + 3))
        if "dshift" in self.exp:
            a("s_add_u32 s%d, s%d, 1" % (sD, sC))
            a("s_and_b32 s%d, s%d, 7" % (sD, sD))
        else:
            a("s_mov_b32 s%d, s%d" % (sD, sC))
        a("s_lshl_b32 s%d, s%d, 5" % (sID, sC))
        a("s_add_u32 s%d, s%d, s%d" % (sID, sID, sR))
        a("s_mul_i32 s%d, s%d, 6" % (sBP, sC))
        a("s_sub_i32 s%d, s%d, 3" % (sT0, sC))
        a("s_max_i32 s%d, s%d, 0" % (sT0, sT0))
        a("s_sub_u32 s%d, s%d, s%d" % (sBP, sBP, sT0))
        a("s_lshl_b32 s%d, s%d, 5" % (sF0, sBP))
        a("s_cmp_lt_u32 s%d, 3" % sC)
        a("s_cselect_b32 s%d, 12, 10" % sNB)
        a("v_mov_b32 v%d, 0xffff" % vMLO)
        a("v_mov_b32 v%d, 0xffff0000" % vMHI)
        a("v_mov_b32 v%d, 0x3f80" % vONELO)
        a("v_mov_b32 v%d, 0x3f800000" % vONEHI)
        a("v_mov_b32 v%d, 0x3f803f80" % vONES)
        a("s_mov_b32 s%d, 0x05040100" % sP0)
        a("s_mov_b32 s%d, 0x07060302" % sP1)
        a("v_and_b32 v3, 15, v0")
        a("v_lshlrev_b32 v3, 2, v3")
        a("v_add_u32 v3, %d, v3" % L_SYNC)
        a("v_mov_b32 v4, 0")
        a("ds_write_b32 v3, v4")

    def w1_dma_ops(self, j):
        a = self.a
        slot = j % NW1
        ops = []
        def head():
            a("s_add_u32 s%d, s%d, %d" % (sT1, sROT, j))
            a("s_and_b32 s%d, s%d, 7" % (sT1, sT1))
            a("s_mul_i32 s%d, s%d, %d" % (sT1, sT1, 64 * 2752))
            a("s_add_u32 m0, s%d, %d" % (sM0B, slot * W1_SLOT))
            a.vmem("buffer_load_dwordx4 v12, s[%d:%d], s%d offen lds" % (S_W1, S_W1 + 3, sT1), "w1c%d" % j)
        ops.append(head)
        for i in range(1, 6):
            def nxt(i=i):
                a("s_add_u32 m0, s%d, %d" % (sM0B, slot * W1_SLOT + 1024 * i))
                a.vmem("buffer_load_dwordx4 v%d, s[%d:%d], s%d offen lds" % (12 + i, S_W1, S_W1 + 3, sT1), "w1c%d" % j)
            ops.append(nxt)
        return ops

    def w1_voffs(self):
        a = self.a
        V = 12
        a("s_mul_i32 s%d, s%d, %d" % (sT0, sRW, 16 * 2752))
        a("s_lshl_b32 s%d, s%d, 1" % (sT1, sF0))
        a("s_add_u32 s%d, s%d, s%d" % (sT0, sT0, sT1))
        a("s_lshl_b32 s%d, s%d, 1" % (sT1, sNB))
        a("v_mov_b32 v7, 0x40000000")
        for i in range(6):
            a("v_add_u32 v2, %d, v1" % (64 * i))
            a("v_mul_u32_u24 v3, 2731, v2")
            a("v_lshrrev_b32 v3, 16, v3")
            a("v_mul_u32_u24 v4, 24, v3")
            a("v_sub_u32 v4, v2, v4")
            a("v_and_b32 v5, 2, v3")
            a("v_lshrrev_b32 v6, 1, v3")
            a("v_and_b32 v6, 4, v6")
            a("v_or_b32 v5, v5, v6")
            a("v_xor_b32 v4, v4, v5")
            a("v_mul_u32_u24 v5, 2752, v3")
            a("v_lshl_add_u32 v5, v4, 4, v5")
            a("v_add_u32 v5, s%d, v5" % sT0)
            a("v_cmp_gt_u32 vcc, s%d, v4" % sT1)
            a("v_cndmask_b32 v%d, v7, v5, vcc" % (V + i))
        a("s_mul_i32 s%d, s%d, %d" % (sM0B, sRW, 16 * 384))
        a("s_add_u32 s%d, s%d, %d" % (sM0B, sM0B, L_W1))

    def line_prefetch(self, which, vd):
        a = self.a
        a("s_lshr_b32 s%d, s2, 3" % sT0)
        a("v_and_b32 v2, 255, v0")
        if "map42" not in self.exp:
            srd = S_W1 if which == "w1" else S_W2
            a("s_mul_i32 s%d, s%d, %d" % (sT0, sT0, 344 * 128))
            a("v_lshlrev_b32 v3, 7, v2")
            a("v_add_u32 v3, s%d, v3" % sT0)
            a.vmem("buffer_load_dword v%d, v3, s[%d:%d], 0 offen" % (vd, srd, srd + 3), "pf")
            a("v_cmp_gt_u32 vcc, %d, v2" % (344 - 256))
            a("v_add_u32 v3, 32768, v3")
            a("v_mov_b32 v4, 0x40000000")
            a("v_cndmask_b32 v3, v4, v3, vcc")
            a.vmem("buffer_load_dword v%d, v3, s[%d:%d], 0 offen" % (vd + 1, srd, srd + 3), "pf")
        elif which == "w2":
            a("s_mul_i32 s%d, s%d, 43" % (sT0, sT0))
            a("s_bfe_u32 s%d, s2, 0x10002" % sT1)
            a("s_lshl_b32 s%d, s%d, 9" % (sT1, sT1))
            a("s_lshl_b32 s%d, s%d, 10" % (sT0, sT0))
            a("s_add_u32 s%d, s%d, s%d" % (sT0, sT0, sT1))
            a("v_lshrrev_b32 v3, 2, v2")
            a("v_lshlrev_b32 v3, 10, v3")
            a("v_and_b32 v4, 3, v2")
            a("v_lshl_add_u32 v3, v4, 7, v3")
            a("v_add_u32 v3, s%d, v3" % sT0)
            a("v_cmp_gt_u32 vcc, 172, v2")
            a("v_mov_b32 v4, 0x40000000")
            a("v_cndmask_b32 v3, v4, v3, vcc")
            a.vmem("buffer_load_dword v%d, v3, s[%d:%d], 0 offen" % (vd, S_W2, S_W2 + 3), "pf")
        else:
            a("s_lshl_b32 s%d, s%d, 4" % (sT0, sT0))
            a("s_mul_i32 s%d, s%d, 2752" % (sT0, sT0))
            a("s_bfe_u32 s%d, s2, 0x10002" % sT1)
            a("s_mul_i32 s%d, s%d, 1472" % (sT1, sT1))
            a("s_add_u32 s%d, s%d, s%d" % (sT0, sT0, sT1))
            a("v_mul_u32_u24 v3, 5462, v2")
            a("v_lshrrev_b32 v3, 16, v3")
            a("v_mul_u32_u24 v4, 12, v3")
            a("v_sub_u32 v4, v2, v4")
            a("v_mul_u32_u24 v3, 2752, v3")
            a("v_lshl_add_u32 v3, v4, 7, v3")
            a("v_add_u32 v3, s%d, v3" % sT0)
            a("v_cmp_gt_u32 vcc, 192, v2")
            a("v_mov_b32 v4, 0x40000000")
            a("v_cndmask_b32 v3, v4, v3, vcc")
            a.vmem("buffer_load_dword v%d, v3, s[%d:%d], 0 offen" % (vd, S_W1, S_W1 + 3), "pf")

    def m_front(self):
        a = self.a
        a("v_lshrrev_b32 v3, 5, v0")
        a("v_and_b32 v4, 31, v0")
        a("s_lshl_b32 s%d, s%d, 16" % (sT0, sR))
        a("s_lshl_b32 s%d, s%d, 7" % (sT1, sC))
        a("s_add_u32 s%d, s%d, s%d" % (sT0, sT0, sT1))
        a("v_lshlrev_b32 v2, 13, v3")
        a("v_lshl_add_u32 v2, v4, 2, v2")
        a("v_add_u32 v2, s%d, v2" % sT0)
        a("v_add_u32 v5, 0xfffff400, v2")
        a("v_add_u32 v6, 0xfffff800, v2")
        a("v_add_u32 v7, 0xfffffc00, v2")
        a("v_add_u32 v8, 4096, v2")
        a("s_lshl_b32 s%d, s%d, 9" % (sT2, sC))
        a("v_lshlrev_b32 v9, 4, v4")
        a("v_add_u32 v9, s%d, v9" % sT2)
        a.lg0()
        a("s_mov_b64 s[12:13], s[66:67]")
        a("s_mov_b64 s[16:17], s[68:69]")
        a("s_mov_b64 s[40:41], s[70:71]")
        a("s_mov_b64 s[8:9], s[64:65]")
        if self.stamps:
            a("s_memrealtime s[4:5]"); a.lg0(); a("v_writelane_b32 v255, s4, 0")
        K, V, SH = 20, 32, 40
        for t, r in enumerate((5, 6, 7)):
            a.vmem("buffer_load_dword v%d, v%d, s[%d:%d], 0 offen" % (K + t, r, S_K, S_K + 3), "prep")
        for t in range(8):
            a.vmem("buffer_load_dword v%d, v%d, s[%d:%d], 0 offen offset:%d" % (K + 3 + t, 2 if t < 4 else 8, S_K, S_K + 3, 1024 * (t & 3)), "prep")
        a.vmem("buffer_load_dwordx4 v[40:43], v9, s[%d:%d], 0 offen" % (S_SH, S_SH + 3), "prep")
        for t in range(8):
            a.vmem("buffer_load_dword v%d, v%d, s[%d:%d], 0 offen offset:%d" % (V + t, 2 if t < 4 else 8, S_V, S_V + 3, 1024 * (t & 3)), "prep")
        a("s_branch L_Mrest")
        self.h_first()
        a.label("L_Mrest")
        a.vm = self.vm_m_first
        self.rot_calc()
        self.p0_rest()
        a("s_waitcnt lgkmcnt(0)")
        a("s_barrier")
        if "pfM" in self.exp:
            self.line_prefetch("w1", 240)
        if not self.noflags:
            a("s_or_b32 s%d, s2, s%d" % (sT1, sW))
            a("s_cmp_lg_u32 s%d, 0" % sT1)
            a("s_cbranch_scc1 L_nononce")
            a("s_memrealtime s[4:5]")
            a("s_waitcnt lgkmcnt(0)")
            a("s_or_b32 s4, s4, 1")
            a("v_mov_b32 v2, s4")
            a("v_mov_b32 v3, 0")
            a("s_mov_b64 exec, 1")
            a("buffer_store_dword v2, v3, s[%d:%d], 0 offen sc1" % (S_DBG, S_DBG + 3))
            a("s_mov_b64 exec, -1")
            a.label("L_nononce")
        self.w1_voffs()
        self.m_gemm1_setup()
        a("s_lshl_b32 s%d, s%d, 7" % (sT0, sC))
        a("s_lshl_b32 s%d, s%d, 2" % (sT1, sR))
        a("s_add_u32 s%d, s%d, s%d" % (sT0, sT0, sT1))
        a("s_load_dword s%d, s[%d:%d], s%d" % (sDD, sDP, sDP + 1, sT0))

    def m_gemm1_setup(self):
        a = self.a
        AX = 8; AW = [9, 10, 11]
        a("v_and_b32 v2, 15, v1")
        a("v_lshrrev_b32 v3, 4, v1")
        a("v_lshlrev_b32 v4, 1, v3")
        a("v_xor_b32 v4, v2, v4")
        a("v_lshlrev_b32 v4, 4, v4")
        a("v_lshl_add_u32 v%d, v3, 8, v4" % AX)
        a("v_lshrrev_b32 v5, 2, v2")
        a("v_lshl_add_u32 v4, v3, 3, v5")
        a("v_mul_u32_u24 v4, 384, v4")
        a("v_and_b32 v6, 3, v1")
        a("v_lshl_add_u32 v4, v6, 3, v4")
        a("v_lshrrev_b32 v5, 1, v5")
        a("v_and_b32 v6, 1, v3")
        a("v_lshl_add_u32 v5, v6, 1, v5")
        a("s_mul_i32 s%d, s%d, 3" % (sT0, sRW))
        for b in range(3):
            a("s_add_u32 s%d, s%d, %d" % (sT1, sT0, b))
            a("v_xor_b32 v6, s%d, v5" % sT1)
            a("v_lshl_add_u32 v6, v6, 5, v4")
            a("v_add_u32 v%d, %d, v6" % (AW[b], L_W1))
        a("v_lshlrev_b32 v5, 4, v2")
        a("v_lshrrev_b32 v4, 1, v3")
        a("v_lshl_add_u32 v5, v4, 8, v5")
        a("v_and_b32 v4, 1, v3")
        if "st16" in self.exp:
            a("v_mul_u32_u24 v4, 44032, v4")
            a("v_add_u32 v5, v5, v4")
        else:
            a("v_lshl_add_u32 v5, v4, 3, v5")
        a("s_lshr_b32 s%d, s%d, 4" % (sBP, sF0))
        a("s_mul_i32 s%d, s%d, %d" % (sT0, sR, 4 * 44032))
        a("s_mul_i32 s%d, s%d, 3" % (sT1, sRW))
        a("s_add_u32 s%d, s%d, s%d" % (sT2, sT1, sBP))
        a("s_lshl_b32 s%d, s%d, 9" % (sT2, sT2))
        a("s_add_u32 s%d, s%d, s%d" % (sT0, sT0, sT2))
        a("s_add_u32 s%d, s%d, 0x%x" % (sT0, sT0, WS_H))
        a("v_add_u32 v168, s%d, v5" % sT0)
        for tb in range(1, 4):
            a("v_add_u32 v%d, %d, v168" % (168 + tb, 44032 * tb))
        for b, sr_ in ((1, sINV1), (2, sINV2)):
            a("s_add_u32 s%d, s%d, %d" % (sT2, sT1, b))
            a("s_cmp_lt_u32 s%d, s%d" % (sT2, sNB))
            a("s_cselect_b32 s%d, 0, 0x40000000" % sr_)

    def m_prep(self):
        a = self.a
        K, V, SH = 20, 32, 40
        WL, WH = 44, 48
        PL, PH = 52, 56
        PP, AC = 60, 64
        TA, TB = 68, 72
        KV = 76
        OUT = 92
        dma = []
        if "V2" in self.exp:
            for f in self.w1_dma_ops(0) + self.w1_dma_ops(1): f()
        if "V4" in self.exp:
            for f in self.w1_dma_ops(0): f()
            dma = self.w1_dma_ops(1) + self.w1_dma_ops(2)
        if "V5" in self.exp:
            for f in self.w1_dma_ops(0) + self.w1_dma_ops(1): f()
            dma = self.w1_dma_ops(2)
        a.wait_vm("prep")
        self.stamp(12)
        seq = []; e = seq.append
        e("v_and_b32 v%d, v%d, v%d" % (WL + 0, vMLO, SH + 0)); e("v_lshrrev_b32 v%d, 16, v%d" % (WL + 1, SH + 0))
        e("v_and_b32 v%d, v%d, v%d" % (WL + 2, vMLO, SH + 1)); e("v_lshrrev_b32 v%d, 16, v%d" % (WL + 3, SH + 1))
        e("v_lshlrev_b32 v%d, 16, v%d" % (WH + 0, SH + 2)); e("v_and_b32 v%d, v%d, v%d" % (WH + 1, vMHI, SH + 2))
        e("v_lshlrev_b32 v%d, 16, v%d" % (WH + 2, SH + 3)); e("v_and_b32 v%d, v%d, v%d" % (WH + 3, vMHI, SH + 3))
        for hb in range(2):
            r0 = 4 * hb
            if "relax_prep" in self.exp:
                for r in range(4):
                    e("v_dot2_f32_bf16 v%d, v%d, v%d, 0" % (PL + r, K + r0 + r, WL + 3))
                    e("v_dot2_f32_bf16 v%d, v%d, v%d, 0" % (PH + r, K + r0 + r, WH + 3))
                for j in (2, 1, 0):
                    for r in range(4):
                        e("v_dot2_f32_bf16 v%d, v%d, v%d, v%d" % (PL + r, K + 3 + r0 + r - j, WL + j, PL + r))
                        e("v_dot2_f32_bf16 v%d, v%d, v%d, v%d" % (PH + r, K + 3 + r0 + r - j, WH + j, PH + r))
                for r in range(4):
                    e("v_cvt_pk_bf16_f32 v%d, v%d, v%d" % (AC + r, PL + r, PH + r))
            else:
                for j in (3, 2, 1, 0):
                    for r in range(4):
                        e("v_dot2_f32_bf16 v%d, v%d, v%d, 0" % (PL + r, K + 3 + r0 + r - j, WL + j))
                        e("v_dot2_f32_bf16 v%d, v%d, v%d, 0" % (PH + r, K + 3 + r0 + r - j, WH + j))
                    dstp = AC if j == 3 else PP
                    for r in range(4):
                        e("v_cvt_pk_bf16_f32 v%d, v%d, v%d" % (dstp + r, PL + r, PH + r))
                    if j != 3:
                        for r in range(4):
                            e("v_perm_b32 v%d, v%d, v%d, s%d" % (TA + r, PP + r, AC + r, sP0))
                            e("v_perm_b32 v%d, v%d, v%d, s%d" % (TB + r, PP + r, AC + r, sP1))
                        for r in range(4):
                            e("v_dot2_f32_bf16 v%d, v%d, v%d, 0" % (PL + r, TA + r, vONES))
                            e("v_dot2_f32_bf16 v%d, v%d, v%d, 0" % (PH + r, TB + r, vONES))
                        for r in range(4):
                            e("v_cvt_pk_bf16_f32 v%d, v%d, v%d" % (AC + r, PL + r, PH + r))
            for r in range(4):
                e("v_and_b32 v%d, v%d, v%d" % (TA + r, vMLO, V + r0 + r))
                e("v_and_b32 v%d, v%d, v%d" % (TB + r, vMHI, V + r0 + r))
            for r in range(4):
                e("v_dot2_f32_bf16 v%d, v%d, v%d, 0" % (KV + r0 + r, AC + r, TA + r))
                e("v_dot2_f32_bf16 v%d, v%d, v%d, 0" % (KV + 8 + r0 + r, AC + r, TB + r))
        e("v_and_b32 v2, 31, v0"); e("v_mul_u32_u24 v2, 288, v2"); e("v_lshrrev_b32 v3, 5, v0"); e("v_lshlrev_b32 v3, 4, v3")
        e("v_sub_u32 v2, v2, v3"); e("v_add_u32 v2, %d, v2" % (L_PREP + 112))
        for ch in range(2):
            for d in range(4):
                e("v_cvt_pk_bf16_f32 v%d, v%d, v%d" % (OUT + 4 * ch + d, KV + 8 * ch + 7 - 2 * d, KV + 8 * ch + 6 - 2 * d))
        self.spread(seq, dma)
        self.stamp(20)
        a("ds_write_b128 v2, v[%d:%d]" % (OUT, OUT + 3))
        a("ds_write_b128 v2, v[%d:%d] offset:144" % (OUT + 4, OUT + 7))
        a("v_lshrrev_b32 v2, 3, v0")
        a("v_and_b32 v3, 7, v0")
        a("v_mul_u32_u24 v4, 144, v2")
        a("v_lshl_add_u32 v4, v3, 4, v4")
        a("v_add_u32 v4, %d, v4" % L_PREP)
        a("s_lshl_b32 s%d, s%d, 18" % (sT0, sC))
        a("s_lshl_b32 s%d, s%d, 7" % (sT1, sR))
        a("s_sub_u32 s%d, s%d, s%d" % (sT0, sT0, sT1))
        a("s_add_u32 s%d, s%d, %d" % (sT0, sT0, WS_KVT + 3968))
        a("v_lshlrev_b32 v5, 12, v2")
        a("v_lshl_add_u32 v5, v3, 4, v5")
        a("v_add_u32 v5, s%d, v5" % sT0)
        a("v_add_u32 v6, %d, v5" % (32 * 4096))
        if "dmafirst" in self.exp:
            for f in self.w1_dma_ops(0) + self.w1_dma_ops(1) + self.w1_dma_ops(2): f()
            self.stamp(15)
        self.m_sync(13, va=2, vb=3)
        a("ds_read_b128 v[92:95], v4")
        a("ds_read_b128 v[96:99], v4 offset:%d" % (32 * 144))
        a.lg0()
        a.vmem("buffer_store_dwordx4 v[92:95], v5, s[%d:%d], 0 offen sc1" % (S_WS, S_WS + 3), "kvt")
        a.vmem("buffer_store_dwordx4 v[96:99], v6, s[%d:%d], 0 offen sc1" % (S_WS, S_WS + 3), "kvt")
        if not self.noflags:
            a("v_mov_b32 v7, 0")
            a.vmem("buffer_load_dword v19, v7, s[%d:%d], 0 offen sc1" % (S_DBG, S_DBG + 3), "nonce")
        if "dmafirst" not in self.exp:
            self.stamp(15)
            if "V3" in self.exp: lst = self.w1_dma_ops(2) + self.w1_dma_ops(3)
            elif "V2" in self.exp: lst = self.w1_dma_ops(2)
            elif "V4" in self.exp or "V5" in self.exp: lst = []
            else: lst = self.w1_dma_ops(0) + self.w1_dma_ops(1) + self.w1_dma_ops(2)
            for f in lst: f()

    def m_gemm1(self):
        a = self.a
        ACC = 20
        BUF = [68, 96, 124]
        AX = 8; AW = [9, 10, 11]
        UREG = 152
        for i in range(48):
            a("v_mov_b32 v%d, 0" % (ACC + i))

        def read_ops(ks):
            buf = BUF[ks % 3]
            j = ks >> 1; ksl = ks & 1; slot = j % NW1
            pre = []
            if ksl == 0 and j > 0:
                d = W1_SLOT if slot != 0 else -(NW1 - 1) * W1_SLOT
                for b in range(3):
                    pre.append("v_add_u32 v%d, %d, v%d" % (AW[b], d & 0xffffffff, AW[b]))
            so = ksl * 32 * 384
            def rx(t):
                return lambda: a.lds("ds_read_b128 v[%d:%d], v%d offset:%d" % (buf + 4 * t, buf + 4 * t + 3, AX, L_XN + (j % NXN) * 8192 + t * 2048 + ksl * 1024), "x%d_%d" % (ks, t))
            def rw(b, hh):
                r0 = buf + 16 + 4 * b + 2 * hh
                return lambda: a.lds("ds_read_b64_tr_b16 v[%d:%d], v%d offset:%d" % (r0, r0 + 1, AW[b], so + hh * 4 * 384), "w%d_%d" % (ks, b))
            if "mnoreads" in self.exp: return pre
            return pre + [rw(0, 0), rw(0, 1), rx(0), rx(1), rx(2), rx(3), rw(1, 0), rw(1, 1), rw(2, 0), rw(2, 1)]

        def mfma_ops(ks):
            cur = BUF[ks % 3]
            ops = []
            for b in range(3):
                for t in range(4):
                    def f(b=b, t=t):
                        if "finewait" in self.exp:
                            a.need_lds("w%d_%d" % (ks, b), "x%d_%d" % (ks, t))
                        elif b == 0 and t == 0:
                            a.need_lds(*(["w%d_%d" % (ks, bb) for bb in range(3)] + ["x%d_%d" % (ks, tt) for tt in range(4)]))
                        acc = ACC + (b * 4 + t) * 4
                        if "mnomfma" in self.exp: return
                        a("v_mfma_f32_16x16x32_bf16 v[%d:%d], v[%d:%d], v[%d:%d], v[%d:%d]" % (
                            acc, acc + 3, cur + 16 + 4 * b, cur + 19 + 4 * b, cur + 4 * t, cur + 4 * t + 3, acc, acc + 3))
                    ops.append(f)
            return ops

        if not self.noflags and "V1" in self.exp: self.publish_h1()
        if "V3" not in self.exp: a.wait_vm("w1c1")
        a("s_barrier")
        self.stamp(14)
        for f in read_ops(0): self.run(f)
        if self.h1j == 0 and not self.noflags and "V1" not in self.exp:
            q_l = (list(a.lg.q), a.lg_done)
            self.publish_h1()
        for f in read_ops(1)[:5]: self.run(f)
        pend = read_ops(1)[5:]
        for j in range(8):
            if j >= 1 and j <= 6:
                if not ("mnodma" in self.exp and j + 1 >= 3) and "novmw" not in self.exp: a.wait_vm("w1c%d" % (j + 1))
                a("s_barrier")
                if "itst" in self.exp: self.stamp(22 + j)
                if j == self.h1j and not self.noflags and "V1" not in self.exp: self.publish_h1()
            dm = self.w1_dma_ops(j + 4) if (j + 4 <= 7) else []
            if j == 0 and "V3" not in self.exp: dm = self.w1_dma_ops(3) + dm
            if "mnodma" in self.exp:
                for _ in dm: a.vm.issue("dummy")
                dm = []
            ex = []
            for half in range(2):
                ks = 2 * j + half
                fill = list(pend); pend = []
                if ks + 2 <= 15:
                    fill += read_ops(ks + 2)
                hlf = (len(dm) + 1) // 2
                extra = (dm[:hlf] + ex if half == 0 else dm[hlf:])
                interleave(a, mfma_ops(ks), merge(fill, extra))
        a.lg0()
        self.stamp(2)
        HB = 68
        for i in range(12):
            a("v_cvt_pk_bf16_f32 v%d, v%d, v%d" % (HB + 2 * i, ACC + 4 * i, ACC + 4 * i + 1))
            a("v_cvt_pk_bf16_f32 v%d, v%d, v%d" % (HB + 2 * i + 1, ACC + 4 * i + 2, ACC + 4 * i + 3))
        for i in range(24):
            a("v_pk_max_i16 v%d, v%d, 0" % (HB + i, HB + i))
        if "st16" in self.exp:
            for b in range(3):
                for u in range(2):
                    r = HB + 8 * b + 4 * u
                    a("v_permlane16_swap_b32 v%d, v%d" % (r, r + 2))
                    a("v_permlane16_swap_b32 v%d, v%d" % (r + 1, r + 3))
            for b in range(3):
                so = "0" if b == 0 else "s%d" % (sINV1 if b == 1 else sINV2)
                for u in range(2):
                    r = HB + 8 * b + 4 * u
                    a.vmem("buffer_store_dwordx4 v[%d:%d], v%d, s[%d:%d], %s offen offset:%d sc1" % (r, r + 3, 168 + 2 * u, S_WS, S_WS + 3, so, 512 * b), "hst")
        elif "nohst" in self.exp:
            a.vm.issue("hst")
        else:
          for b in range(3):
            so = "0" if b == 0 else "s%d" % (sINV1 if b == 1 else sINV2)
            for t in range(4):
                r = HB + (b * 4 + t) * 2
                a.vmem("buffer_store_dwordx2 v[%d:%d], v%d, s[%d:%d], %s offen offset:%d sc1" % (r, r + 1, 168 + t, S_WS, S_WS + 3, so, 512 * b), "hst")
        a("s_barrier")

    def get_nonce(self):
        if self.noflags: return
        a = self.a
        a.wait_vm("nonce")
        lo = a.newlabel("L_nz"); lp = a.newlabel("L_nl")
        a("v_readfirstlane_b32 s%d, v19" % sNONCE)
        a("s_nop 3")
        a("s_cmp_lg_u32 s%d, 0" % sNONCE)
        a("s_cbranch_scc1 %s" % lo)
        a("s_mov_b32 s%d, 0" % sT3)
        a.label(lp)
        a("v_mov_b32 v7, 0")
        a("buffer_load_dword v19, v7, s[%d:%d], 0 offen sc1" % (S_DBG, S_DBG + 3))
        a("s_waitcnt vmcnt(0)")
        a("v_readfirstlane_b32 s%d, v19" % sNONCE)
        a("s_add_u32 s%d, s%d, 1" % (sT3, sT3))
        a("s_cmp_gt_u32 s%d, 100000" % sT3)
        a("s_cbranch_scc1 %s" % lo)
        a("s_cmp_eq_u32 s%d, 0" % sNONCE)
        a("s_cbranch_scc1 %s" % lp)
        a.label(lo)

    def flag_store(self, off_sreg, tag, va=2, vb=3):
        if self.noflags: return
        a = self.a
        a("v_mov_b32 v%d, s%d" % (va, off_sreg))
        a("v_mov_b32 v%d, s%d" % (vb, sNONCE))
        a("s_mov_b64 exec, 1")
        a.vmem("buffer_store_dword v%d, v%d, s[%d:%d], 0 offen sc1" % (vb, va, S_WS, S_WS + 3), tag)
        a("s_mov_b64 exec, -1")

    def publish_h1(self):
        a = self.a
        self.get_nonce()
        a.wait_vm("kvt")
        a("s_lshl_b32 s%d, s%d, 7" % (sT0, sID))
        a("s_lshl_b32 s%d, s%d, 2" % (sT2, sRW))
        a("s_add_u32 s%d, s%d, s%d" % (sT0, sT0, sT2))
        a("s_add_u32 s%d, s%d, 0x%x" % (sT0, sT0, F_H1))
        self.flag_store(sT0, "flag")

    def poll(self, base_sreg, nlanes, width, stride):
        if self.noflags: return
        a = self.a
        lp = a.newlabel("L_poll"); dn = a.newlabel("L_pdone")
        a("v_mul_u32_u24 v2, %d, v1" % stride)
        a("v_add_u32 v2, s%d, v2" % base_sreg)
        a("s_mov_b32 s%d, 0" % sT3)
        if nlanes <= 16: a("s_mov_b64 exec, 0x%x" % ((1 << nlanes) - 1))
        else:
            a("s_mov_b32 exec_lo, -1"); a("s_mov_b32 exec_hi, 0")
        a.label(lp)
        if width == 1:
            a("buffer_load_dword v4, v2, s[%d:%d], 0 offen sc1" % (S_WS, S_WS + 3))
            a("s_waitcnt vmcnt(0)")
            a("v_cmp_ne_u32 vcc, s%d, v4" % sNONCE)
        else:
            a("buffer_load_dwordx4 v[4:7], v2, s[%d:%d], 0 offen sc1" % (S_WS, S_WS + 3))
            a("s_waitcnt vmcnt(0)")
            for i in range(4): a("v_xor_b32 v%d, s%d, v%d" % (4 + i, sNONCE, 4 + i))
            a("v_or3_b32 v4, v4, v5, v6")
            a("v_or_b32 v4, v4, v7")
            a("v_cmp_ne_u32 vcc, 0, v4")
        a("s_add_u32 s%d, s%d, 1" % (sT3, sT3))
        a("s_cmp_gt_u32 s%d, 100000" % sT3)
        a("s_cbranch_scc1 %s" % dn)
        a("s_cbranch_vccnz %s" % lp)
        a.label(dn)
        a("s_mov_b64 exec, -1")

    def lds_wait(self, addr_sreg, val=1, va=16, vb=17):
        a = self.a
        lp = a.newlabel("L_ps"); dn = a.newlabel("L_psd")
        a("v_mov_b32 v%d, s%d" % (va, addr_sreg))
        a("s_mov_b32 s%d, 0" % sT3)
        a.label(lp)
        a("ds_read_b32 v%d, v%d" % (vb, va))
        a("s_waitcnt lgkmcnt(0)")
        a("v_readfirstlane_b32 s4, v%d" % vb)
        a("s_add_u32 s%d, s%d, 1" % (sT3, sT3))
        a("s_cmp_ge_u32 s4, %d" % val)
        a("s_cbranch_scc1 %s" % dn)
        a("s_cmp_lt_u32 s%d, 1000000" % sT3)
        a("s_cbranch_scc1 %s" % lp)
        a.label(dn)
        a.lg_clear()

    def m_sync(self, word, n=4, va=16, vb=17):
        a = self.a
        a("v_mov_b32 v%d, %d" % (va, L_SYNC + 4 * word))
        a("v_mov_b32 v%d, 1" % vb)
        a.lg0()
        a("s_mov_b64 exec, 1")
        a("ds_add_u32 v%d, v%d" % (va, vb))
        a("s_mov_b64 exec, -1")
        a("s_mov_b32 s5, %d" % (L_SYNC + 4 * word))
        self.lds_wait(5, n, va, vb)

    def pair_sync(self, stage, va=16, vb=17):
        a = self.a
        a("s_lshl_b32 s4, s%d, 2" % sRW)
        a("s_add_u32 s4, s4, %d" % (L_SYNC + 16 * stage))
        a("s_xor_b32 s5, s4, 4")
        a("v_mov_b32 v%d, s4" % va)
        a("v_mov_b32 v%d, 1" % vb)
        a.lg0()
        a("ds_write_b32 v%d, v%d" % (va, vb))
        self.lds_wait(5, 1, va, vb)

    def m_conv(self):
        a = self.a
        BF, ACC, AF, NA = 20, 148, 180, 16
        AU, AT = 2, 3
        a("v_and_b32 v8, 15, v1")
        a("v_lshrrev_b32 v9, 4, v1")
        a("v_lshlrev_b32 v10, 4, v9")
        a("v_lshlrev_b32 v11, 5, v8")
        a("v_sub_u32 v10, v10, v11")
        a("s_lshr_b32 s%d, s%d, 1" % (sT0, sRW))
        a("s_and_b32 s%d, s%d, 1" % (sT1, sRW))
        a("s_mul_i32 s%d, s%d, %d" % (sT2, sT0, U_CH))
        a("s_add_u32 s%d, s%d, %d" % (sT2, sT2, L_U + 2 * 2032 - 64 * 56))
        a("s_lshl_b32 s4, s%d, 6" % sT1)
        a("s_add_u32 s%d, s%d, s4" % (sT2, sT2))
        a("v_add_u32 v%d, s%d, v10" % (AU, sT2))
        a("v_and_b32 v10, 3, v8")
        a("v_mul_u32_u24 v10, %d, v10" % T_CP)
        a("v_lshrrev_b32 v11, 2, v8")
        a("v_lshl_add_u32 v10, v11, 3, v10")
        a("v_lshl_add_u32 v10, v9, 4, v10")
        a("s_mul_i32 s%d, s%d, %d" % (sT2, sT0, T_CH))
        a("s_add_u32 s%d, s%d, s4" % (sT2, sT2))
        a("s_add_u32 s%d, s%d, %d" % (sT2, sT2, L_T))
        a("v_add_u32 v%d, s%d, v10" % (AT, sT2))
        a("v_lshl_add_u32 v10, v9, 3, v8")
        a("s_lshl_b32 s4, s%d, 5" % sT1)
        a("v_add_u32 v10, s4, v10")
        MK = 12
        for d in range(4):
            a("v_sub_u32 v11, %d, v10" % (15 - 2 * d))
            a("v_med3_i32 v11, v11, 0, 2")
            a("v_lshlrev_b32 v11, 4, v11")
            a("v_mov_b32 v%d, -1" % (MK + d))
            a("v_lshlrev_b32 v16, v11, v%d" % (MK + d))
            a("v_cmp_eq_u32 vcc, 32, v11")
            a("v_cndmask_b32_e64 v%d, v16, 0, vcc" % (MK + d))
        for i in range(32):
            a("v_mov_b32 v%d, 0" % (ACC + i))
        def emit_A(ee):
            r = AF + 4 * (ee % NA)
            a.lds("ds_read_b64 v[%d:%d], v%d offset:%d" % (r, r + 1, AT, 128 * ee), ("A", ee))
            a.lds("ds_read_b64 v[%d:%d], v%d offset:%d" % (r + 2, r + 3, AT, 128 * ee + 8), ("A", ee))
        def emit_B(idx):
            r = BF + 4 * idx
            a.lds("ds_read_b128 v[%d:%d], v%d offset:%d" % (r, r + 3, AU, 128 * idx), ("B", idx))
        sched = []
        for ee in range(32):
            for j in range(7, (ee >> 2) - 1, -1):
                sched.append((ee, j, 28 - 4 * j + ee))
        order = []; seen = set(); last_use_A = {}
        for n, (ee, j, idx) in enumerate(sched):
            for it in (("A", ee), ("B", idx)):
                if it not in seen:
                    seen.add(it); order.append(it)
            last_use_A[ee] = n
        ptr = 0; issued = set()
        def can_issue(item, n):
            if item[0] == "A" and item[1] >= NA:
                return last_use_A[item[1] - NA] < n
            return True
        def issue_next(n_now):
            nonlocal ptr
            if ptr < len(order) and can_issue(order[ptr], n_now):
                it = order[ptr]
                (emit_A if it[0] == "A" else emit_B)(it[1])
                issued.add(it); ptr += 1
                return True
            return False
        def inflight():
            return len(a.lg.q) - a.lg_done
        GRP = 4
        while inflight() < 14 and issue_next(0): pass
        masked = False
        for n, (ee, j, idx) in enumerate(sched):
            while ("A", ee) not in issued or ("B", idx) not in issued:
                assert issue_next(n)
            if not (a.lds_done(("A", ee)) and a.lds_done(("B", idx))):
                tags = [("A", ee), ("B", idx)]
                for (e2, j2, i2) in sched[n + 1:n + GRP]:
                    if ("A", e2) in issued and ("B", i2) in issued: tags += [("A", e2), ("B", i2)]
                    else: break
                a.need_lds(*tags)
            ar = AF + 4 * (ee % NA); br = BF + 4 * idx; acc = ACC + 4 * j
            if ee == 0 and not masked:
                for d in range(4): a("v_and_b32 v%d, v%d, v%d" % (ar + d, MK + d, ar + d))
                masked = True
            a("v_mfma_f32_16x16x32_bf16 v[%d:%d], v[%d:%d], v[%d:%d], v[%d:%d]" % (acc, acc + 3, ar, ar + 3, br, br + 3, acc, acc + 3))
            if inflight() < 14:
                issue_next(n + 1)
                if n < 40 and inflight() < 14: issue_next(n + 1)
            if n == self.h2n and not self.noflags:
                a.wait_vm("hst")
                a("s_lshl_b32 s4, s%d, 3" % sR)
                a("s_add_u32 s4, s4, s%d" % sC)
                a("s_lshl_b32 s4, s4, 7")
                a("s_lshl_b32 s5, s%d, 2" % sRW)
                a("s_add_u32 s4, s4, s5")
                a("s_add_u32 s%d, s4, 0x%x" % (sT2, F_H2))
                self.flag_store(sT2, "flag", 4, 5)
        self.stamp(16)
        self.pair_sync(0)
        a("v_lshlrev_b32 v4, 4, v1")
        a("s_mul_i32 s%d, s%d, %d" % (sT0, sT0, T_CH))
        a("s_add_u32 s%d, s%d, %d" % (sT0, sT0, L_T + 8))
        a("s_lshl_b32 s%d, s%d, 12" % (sT2, sT1))
        a("s_add_u32 s%d, s%d, s%d" % (sT2, sT2, sT0))
        a("v_add_u32 v5, s%d, v4" % sT2)
        a("s_xor_b32 s%d, s%d, 1" % (sT2, sT1))
        a("s_lshl_b32 s%d, s%d, 12" % (sT2, sT2))
        a("s_add_u32 s%d, s%d, s%d" % (sT2, sT2, sT0))
        a("v_add_u32 v6, s%d, v4" % sT2)
        l0 = a.newlabel("L_cr0"); l1 = a.newlabel("L_cr1")
        a("s_cmp_eq_u32 s%d, 0" % sT1)
        a("s_cbranch_scc1 %s" % l0)
        for i in range(4):
            a("ds_write_b128 v5, v[%d:%d] offset:%d" % (ACC + 4 * i, ACC + 4 * i + 3, 1024 * i))
        for i in range(16):
            a("v_mov_b32 v%d, v%d" % (200 + i, ACC + 16 + i))
        a("s_branch %s" % l1)
        a.label(l0)
        for i in range(4):
            a("ds_write_b128 v5, v[%d:%d] offset:%d" % (ACC + 16 + 4 * i, ACC + 16 + 4 * i + 3, 1024 * i))
        for i in range(16):
            a("v_mov_b32 v%d, v%d" % (200 + i, ACC + i))
        a.label(l1)
        a("v_and_b32 v4, 15, v1")
        a("v_lshrrev_b32 v7, 4, v1")
        a("v_lshlrev_b32 v4, 5, v4")
        a("v_lshl_add_u32 v4, v7, 3, v4")
        a("s_lshr_b32 s%d, s%d, 1" % (sT0, sRW))
        a("s_mul_i32 s%d, s%d, %d" % (sT2, sT0, U_CH))
        a("s_add_u32 s%d, s%d, %d" % (sT2, sT2, L_U + 2 * 2044 - 3 * 512))
        a("s_lshl_b32 s4, s%d, 11" % sT1)
        a("s_sub_u32 s%d, s%d, s4" % (sT2, sT2))
        a("v_sub_u32 v4, s%d, v4" % sT2)
        for i in range(4):
            a("ds_read_b64 v[%d:%d], v4 offset:%d" % (236 + 2 * i, 237 + 2 * i, (3 - i) * 512))
        a("s_and_b32 s4, s%d, 0xffff" % sDD)
        a("s_lshr_b32 s5, s%d, 16" % sDD)
        a("s_cmp_eq_u32 s%d, 0" % sT0)
        a("s_cselect_b32 s4, s4, s5")
        a("s_lshl_b32 s5, s4, 16")
        a("v_mov_b32 v8, s4")
        a("v_mov_b32 v9, s5")
        self.pair_sync(1)
        for i in range(4):
            a("ds_read_b128 v[%d:%d], v6 offset:%d" % (220 + 4 * i, 223 + 4 * i, 1024 * i))
        TT = 148
        for i in range(4):
            u0, u1 = 236 + 2 * i, 237 + 2 * i
            a("v_dot2_f32_bf16 v%d, v%d, v9, 0" % (TT + 4 * i + 0, u1))
            a("v_dot2_f32_bf16 v%d, v%d, v8, 0" % (TT + 4 * i + 1, u1))
            a("v_dot2_f32_bf16 v%d, v%d, v9, 0" % (TT + 4 * i + 2, u0))
            a("v_dot2_f32_bf16 v%d, v%d, v8, 0" % (TT + 4 * i + 3, u0))
        TB = 164
        for i in range(4):
            a("v_cvt_pk_bf16_f32 v%d, v%d, v%d" % (TB + 2 * i, TT + 4 * i, TT + 4 * i + 1))
            a("v_cvt_pk_bf16_f32 v%d, v%d, v%d" % (TB + 2 * i + 1, TT + 4 * i + 2, TT + 4 * i + 3))
        a("v_and_b32 v4, 15, v1")
        a("v_lshrrev_b32 v5, 2, v4")
        a("v_lshlrev_b32 v5, 16, v5")
        a("v_and_b32 v4, 3, v4")
        a("v_lshl_add_u32 v5, v4, 5, v5")
        a("v_lshrrev_b32 v7, 4, v1")
        if "st16" in self.exp:
            a("v_lshrrev_b32 v4, 1, v7")
            a("v_lshl_add_u32 v5, v4, 4, v5")
            a("v_and_b32 v4, 1, v7")
            a("v_lshl_add_u32 v5, v4, 18, v5")
        else:
            a("v_lshl_add_u32 v5, v7, 3, v5")
        a("s_lshl_b32 s%d, s%d, 6" % (sT2, sC))
        a("s_lshl_b32 s4, s%d, 1" % sR)
        a("s_add_u32 s%d, s%d, s4" % (sT2, sT2))
        a("s_add_u32 s%d, s%d, s%d" % (sT2, sT2, sT0))
        a("s_lshl_b32 s%d, s%d, 7" % (sT2, sT2))
        a("s_lshl_b32 s4, s%d, 20" % sT1)
        a("s_add_u32 s%d, s%d, s4" % (sT2, sT2))
        a("s_add_u32 s%d, s%d, 0x%x" % (sT2, sT2, WS_YT))
        a("v_add_u32 v5, s%d, v5" % sT2)
        a.lg0()
        for i in range(16):
            a("v_add_f32 v%d, v%d, v%d" % (200 + i, 200 + i, 220 + i))
        YB = 172
        for i in range(8):
            a("v_cvt_pk_bf16_f32 v%d, v%d, v%d" % (YB + i, 200 + 2 * i, 201 + 2 * i))
        for i in range(8):
            a("v_perm_b32 v%d, v%d, v%d, s%d" % (200 + 2 * i, TB + i, YB + i, sP0))
            a("v_perm_b32 v%d, v%d, v%d, s%d" % (201 + 2 * i, TB + i, YB + i, sP1))
        for i in range(16):
            a("v_dot2_f32_bf16 v%d, v%d, v%d, 0" % (220 + i, 200 + i, vONES))
        for i in range(8):
            a("v_cvt_pk_bf16_f32 v%d, v%d, v%d" % (180 + i, 220 + 2 * i, 221 + 2 * i))
        if "st16" in self.exp:
            for u in range(2):
                r = 180 + 4 * u
                a("v_permlane16_swap_b32 v%d, v%d" % (r, r + 2))
                a("v_permlane16_swap_b32 v%d, v%d" % (r + 1, r + 3))
            for u in range(2):
                if u: a("v_add_u32 v5, 0x80000, v5")
                a.vmem("buffer_store_dwordx4 v[%d:%d], v5, s[%d:%d], 0 offen sc1" % (180 + 4 * u, 183 + 4 * u, S_WS, S_WS + 3), "yst")
        else:
          for i in range(4):
            if i: a("v_add_u32 v5, 0x40000, v5")
            a.vmem("buffer_store_dwordx2 v[%d:%d], v5, s[%d:%d], 0 offen sc1" % (180 + 2 * i, 181 + 2 * i, S_WS, S_WS + 3), "yst")
        self.stamp(17)

    def w2_voff(self):
        a = self.a
        sh = 7 if self.w2s else 10
        a("v_lshrrev_b32 v2, 3, v1")
        a("v_and_b32 v2, 3, v2")
        a("v_lshrrev_b32 v3, 5, v1")
        a("v_lshl_add_u32 v2, v3, 3, v2")
        a("v_lshlrev_b32 v2, %d, v2" % sh)
        a("v_lshrrev_b32 v3, 4, v1")
        a("v_and_b32 v3, 3, v3")
        a("v_lshlrev_b32 v3, 1, v3")
        a("v_and_b32 v4, 7, v1")
        a("v_xor_b32 v3, v3, v4")
        a("v_lshl_add_u32 v2, v3, 4, v2")
        if self.w2s:
            a("s_mul_i32 s%d, s%d, 176128" % (sT0, sD))
            a("s_add_u32 s%d, s%d, 0x%x" % (sT0, sT0, WS_W2S))
        else:
            a("s_lshl_b32 s%d, s%d, 7" % (sT0, sD))
        a("v_add_u32 v14, s%d, v2" % sT0)

    def w2_dma(self, lds_base_sreg, lds_off, src_base_sreg, ks_off, tag):
        a = self.a
        inc = [0, 512, 1536, 512] if self.w2s else [0, 4096, 12288, 4096]
        srd = S_WS if self.w2s else S_W2
        fl = " sc1" if self.w2s else ""
        a("s_add_u32 s%d, s%d, %d" % (sT2, src_base_sreg, ks_off * self.KS))
        for m in range(4):
            a("s_add_u32 m0, s%d, %d" % (lds_base_sreg, lds_off + 1024 * m))
            if m: a("s_add_u32 s%d, s%d, %d" % (sT2, sT2, inc[m]))
            a.vmem("buffer_load_dwordx4 v14, s[%d:%d], s%d offen%s lds" % (srd, srd + 3, sT2, fl), tag)

    def w2_slot_dma(self, tag):
        a = self.a
        a("s_lshl_b32 s71, s%d, 12" % sT0)
        a("s_add_u32 s70, s%d, 9" % sT0)
        a("s_cmp_lt_u32 s%d, 13" % sT0)
        a("s_cselect_b32 s70, s%d, s70" % sT0)
        a("s_lshl_b32 s70, s70, %d" % (12 if self.w2s else 15))
        self.w2_dma(71, L_B, 70, 0, tag)

    def w2_early(self):
        a = self.a
        for m in range(3):
            a("s_add_u32 s%d, s%d, %d" % (sT0, sRW, 4 * m))
            if m == 2: a("s_min_u32 s%d, s%d, 9" % (sT0, sT0))
            if m >= 1: a("s_add_u32 s%d, s%d, 4" % (sT0, sT0))
            self.w2_slot_dma("w2e")

    def m_regionA(self):
        a = self.a
        self.w2_voff()
        a("s_lshr_b32 s75, s%d, 1" % sRW)
        a("s_and_b32 s76, s%d, 1" % sRW)
        a("s_mul_i32 s70, s75, %d" % (22 * self.KS))
        self.m_sync(12)
        a("s_mul_i32 s71, s75, %d" % (NA_H * 4096))
        a("s_add_u32 s71, s71, %d" % L_A)
        a("s_lshl_b32 s4, s76, 12")
        a("s_add_u32 s71, s71, s4")
        a("s_lshl_b32 s4, s76, %d" % (12 if self.w2s else 15))
        a("s_add_u32 s70, s70, s4")
        for m in range(3):
            self.w2_dma(71, 8192 * m, 70, 13 + 2 * m, "w2a")

    def n_after_w2a_min(self):
        return (0 if self.noflags else 1) + 4 + 1

    def m_tail(self):
        a = self.a
        self.m_regionA()
        a.wait_vm("yst")
        if not self.noflags:
            a("s_lshl_b32 s4, s%d, 7" % sID)
            a("s_lshl_b32 s5, s%d, 2" % sRW)
            a("s_add_u32 s4, s4, s5")
            a("s_add_u32 s%d, s4, 0x%x" % (sT2, F_H3))
            self.flag_store(sT2, "flag", 2, 3)
        self.stamp(21)
        a("s_mov_b32 s5, %d" % (L_SYNC + 56))
        self.lds_wait(5, 4)
        a("s_mul_i32 s71, s75, %d" % B_HALF)
        a("s_lshl_b32 s4, s76, 12")
        a("s_add_u32 s71, s71, s4")
        if L_B: a("s_add_u32 s71, s71, %d" % L_B)
        self.w2_dma(71, 0, 70, 19, "w2l")
        skl = a.newlabel("L_ml")
        a("s_cmp_eq_u32 s76, 1")
        a("s_cbranch_scc1 %s" % skl)
        self.w2_dma(71, 8192, 70, 21, "w2l")
        a.label(skl)
        self.final_x_load(240, 244)
        a("s_waitcnt vmcnt(%d)" % min(a.vm.count_after("w2a") - (0), 63) if False else "s_waitcnt vmcnt(%d)" % self.n_after_w2a_min())
        self.stamp(18)
        a("s_barrier")
        a("s_waitcnt vmcnt(0)")
        a("s_barrier")
        if not self.noflags and "noh3" not in self.exp:
            a("s_lshl_b32 s%d, s%d, 12" % (sT0, sD))
            a("s_add_u32 s%d, s%d, 0x%x" % (sT0, sT0, F_H3))
            self.poll(sT0, 32, 4, 128)
        self.stamp(7)
        a("v_lshrrev_b32 v3, 2, v0")
        a("v_and_b32 v4, 3, v0")
        a("v_lshlrev_b32 v5, 7, v3")
        a("v_lshl_add_u32 v5, v4, 5, v5")
        a("s_lshl_b32 s%d, s%d, 16" % (sT0, sR))
        a("s_lshl_b32 s%d, s%d, 13" % (sT1, sD))
        a("s_add_u32 s%d, s%d, s%d" % (sT0, sT0, sT1))
        a("s_add_u32 s%d, s%d, 0x%x" % (sT0, sT0, WS_YT))
        a("v_add_u32 v5, s%d, v5" % sT0)
        a.vmem("buffer_load_dwordx4 v[20:23], v5, s[%d:%d], 0 offen sc1" % (S_WS, S_WS + 3), "y")
        a.vmem("buffer_load_dwordx4 v[24:27], v5, s[%d:%d], 0 offen offset:16 sc1" % (S_WS, S_WS + 3), "y")
        a("v_mul_u32_u24 v6, 144, v3")
        a("v_lshl_add_u32 v6, v4, 5, v6")
        a("v_add_u32 v6, %d, v6" % L_Y)
        a("s_waitcnt vmcnt(0)")
        a("ds_write_b128 v6, v[20:23]")
        a("ds_write_b128 v6, v[24:27] offset:16")
        a.lg0()
        a("s_barrier")

    def final_x_load(self, xr, ar):
        a = self.a
        a("s_and_b32 s%d, s%d, 3" % (sT0, sW))
        a("s_lshl_b32 s%d, s%d, 4" % (sT0, sT0))
        a("s_lshl_b32 s%d, s%d, 6" % (sT1, sR))
        a("s_add_u32 s%d, s%d, s%d" % (sT0, sT0, sT1))
        a("s_lshl_b32 s%d, s%d, 10" % (sT0, sT0))
        a("s_lshl_b32 s%d, s%d, 7" % (sT1, sD))
        a("s_add_u32 s%d, s%d, s%d" % (sT0, sT0, sT1))
        a("s_lshr_b32 s%d, s%d, 2" % (sT1, sW))
        a("s_lshl_b32 s%d, s%d, 6" % (sT1, sT1))
        a("s_add_u32 s%d, s%d, s%d" % (sT0, sT0, sT1))
        a("v_lshrrev_b32 v2, 2, v1")
        a("v_lshlrev_b32 v2, 10, v2")
        a("v_and_b32 v3, 3, v1")
        a("v_lshl_add_u32 v2, v3, 4, v2")
        a("v_add_u32 v%d, s%d, v2" % (ar, sT0))
        a.vmem("buffer_load_dwordx4 v[%d:%d], v%d, s[%d:%d], 0 offen" % (xr, xr + 3, ar, S_X, S_X + 3), "xf")

    def u_slow(self):
        a = self.a
        a.label("L_uslow")
        a("s_lshl_b32 s%d, s%d, 12" % (sT0, sC))
        a("s_add_u32 s%d, s%d, 0x%x" % (sT0, sT0, F_H1))
        self.poll(sT0, 32, 1, 128)
        for i in range(4):
            a("buffer_load_dwordx4 v[%d:%d], v172, s[%d:%d], 0 offen offset:%d sc1" % (152 + 4 * i, 155 + 4 * i, S_WS, S_WS + 3, 1024 * i))
        a("s_waitcnt vmcnt(0)")
        for i in range(4):
            a("ds_write_b128 v174, v[%d:%d] offset:%d" % (152 + 4 * i, 155 + 4 * i, 1024 * i))
        a("s_waitcnt lgkmcnt(0)")
        a("s_branch L_uback")

    NEGM, RS, NMRS = 100, 101, 102
    def norm2(self, X, t):
        L = []
        L.append("v_lshlrev_b32 v%d, 16, v%d" % (t + 0, X))
        L.append("v_and_b32 v%d, v%d, v%d" % (t + 1, vMHI, X))
        L.append("v_lshlrev_b32 v%d, 16, v%d" % (t + 2, X + 1))
        L.append("v_and_b32 v%d, v%d, v%d" % (t + 3, vMHI, X + 1))
        if self.relax_ln:
            for i in range(4):
                L.append("v_fma_f32 v%d, v%d, v%d, v%d" % (t + i, t + i, self.RS, self.NMRS))
        else:
            for i in range(4):
                L.append("v_add_f32 v%d, v%d, v%d" % (t + i, t + i, self.NEGM))
            L.append("v_cvt_pk_bf16_f32 v%d, v%d, v%d" % (t + 4, t + 0, t + 1))
            L.append("v_cvt_pk_bf16_f32 v%d, v%d, v%d" % (t + 5, t + 2, t + 3))
            L.append("v_lshlrev_b32 v%d, 16, v%d" % (t + 0, t + 4))
            L.append("v_and_b32 v%d, v%d, v%d" % (t + 1, vMHI, t + 4))
            L.append("v_lshlrev_b32 v%d, 16, v%d" % (t + 2, t + 5))
            L.append("v_and_b32 v%d, v%d, v%d" % (t + 3, vMHI, t + 5))
            for i in range(4):
                L.append("v_mul_f32 v%d, v%d, v%d" % (t + i, t + i, self.RS))
        L.append("v_cvt_pk_bf16_f32 v%d, v%d, v%d" % (X, t + 0, t + 1))
        L.append("v_cvt_pk_bf16_f32 v%d, v%d, v%d" % (X + 1, t + 2, t + 3))
        return L

    def norm_chunk(self, j):
        a = self.a
        X = 20 + 8 * j
        for half in range(2):
            s1 = self.norm2(X + 4 * half, 104); s2 = self.norm2(X + 4 * half + 2, 110)
            for x, y in zip(s1, s2):
                a(x); a(y)
            a.lds("ds_write_b128 v116, v[%d:%d] offset:%d" % (X + 4 * half, X + 4 * half + 3, L_XN + (j % NXN) * 8192 + half * 1024), "xw")

    def h_first(self):
        a = self.a
        self.vm_m_first = a.vm
        a.vm = Q(["cpf"] if "codepf0" in self.exp else [])
        a.label("L_Hfirst")
        self.rot_calc()
        a("s_lshl_b32 s%d, s%d, 16" % (sT0, sR))
        a("s_lshl_b32 s%d, s%d, 14" % (sT1, sRW))
        a("s_add_u32 s%d, s%d, s%d" % (sT0, sT0, sT1))
        a("v_lshrrev_b32 v6, 2, v1")
        a("v_lshlrev_b32 v6, 10, v6")
        a("v_and_b32 v7, 3, v1")
        a("v_lshl_add_u32 v6, v7, 4, v6")
        a("v_add_u32 v6, s%d, v6" % sT0)
        a("s_lshl_b32 s%d, s%d, 7" % (sT0, sROT))
        a("s_waitcnt lgkmcnt(0)")
        a("s_mov_b64 s[8:9], s[64:65]")
        if self.stamps:
            a("s_memrealtime s[4:5]"); a("s_waitcnt lgkmcnt(0)"); a("v_writelane_b32 v255, s4, 0")
        for j in range(8):
            if j:
                a("s_add_u32 s%d, s%d, 128" % (sT0, sT0))
                a("s_and_b32 s%d, s%d, 1023" % (sT0, sT0))
            a.vmem("buffer_load_dwordx4 v[%d:%d], v6, s[%d:%d], s%d offen" % (20 + 8 * j, 23 + 8 * j, S_X, S_X + 3, sT0), "x%d" % j)
            a.vmem("buffer_load_dwordx4 v[%d:%d], v6, s[%d:%d], s%d offen offset:64" % (24 + 8 * j, 27 + 8 * j, S_X, S_X + 3, sT0), "x%d" % j)
        a("s_branch L_H")
        self.vm_h_first = a.vm

    def h_front(self):
        a = self.a
        a.vm = self.vm_h_first; a.lg_clear()
        self.p0_rest()
        a("s_waitcnt lgkmcnt(0)")
        if "tlbpf" in self.exp:
            a("v_lshlrev_b32 v2, 19, v1")
            a("v_cmp_gt_u32 vcc, 28, v1")
            a("v_mov_b32 v3, 0x40000000")
            a("v_cndmask_b32 v2, v3, v2, vcc")
            a.vmem("buffer_load_dword v245, v2, s[%d:%d], 0 offen" % (S_WS, S_WS + 3), "tlb")
            a("v_lshlrev_b32 v2, 19, v1")
            a.vmem("buffer_load_dword v246, v2, s[%d:%d], 0 offen" % (S_OUT, S_OUT + 3), "tlb")
            a.vmem("buffer_load_dword v247, v2, s[%d:%d], 0 offen" % (S_W2, S_W2 + 3), "tlb")
            a.vmem("buffer_load_dword v243, v2, s[%d:%d], 0 offen" % (S_SSM, S_SSM + 3), "tlb")
        if self.w2s:
            a("s_lshl_b32 s%d, s2, 13" % sT2)
            a("v_and_b32 v2, 255, v0")
            a("v_lshlrev_b32 v3, 4, v2")
            a("v_add_u32 v3, s%d, v3" % sT2)
            a("s_cmp_lt_u32 s2, 172")
            a("s_cselect_b32 s86, 0, 0x40000000")
            a.vmem("buffer_load_dwordx4 v[224:227], v3, s[%d:%d], s86 offen" % (S_W2, S_W2 + 3), "w2sl")
            a("v_add_u32 v3, 4096, v3")
            a.vmem("buffer_load_dwordx4 v[228:231], v3, s[%d:%d], s86 offen" % (S_W2, S_W2 + 3), "w2sl")
            a("v_bfe_u32 v4, v2, 3, 3")
            a("v_mul_u32_u24 v4, 176128, v4")
            a("v_lshrrev_b32 v5, 6, v2")
            a("v_lshl_add_u32 v4, v5, 7, v4")
            a("v_and_b32 v5, 7, v2")
            a("v_lshl_add_u32 v4, v5, 4, v4")
            a("s_lshl_b32 s%d, s2, 10" % sT2)
            a("s_add_u32 s%d, s%d, 0x%x" % (sT2, sT2, WS_W2S))
            a("v_add_u32 v232, s%d, v4" % sT2)
        if "codepf" in self.exp:
            a("s_getpc_b64 s[82:83]")
            a.label("L_pc")
            a("s_sub_u32 s82, s82, L_pc-%s" % KNAME)
            a("s_subb_u32 s83, s83, 0")
            a("v_lshlrev_b32 v2, 7, v1")
            a("s_lshl_b32 s84, s%d, 13" % sRW)
            a("v_add_u32 v2, s84, v2")
            a("v_min_u32 v2, L_codeend-%s, v2" % KNAME)
            a("v_mov_b32 v3, s83")
            a("v_add_co_u32 v2, vcc, s82, v2")
            a("v_addc_co_u32 v3, vcc, 0, v3, vcc")
            a.vmem("global_load_dword v244, v[2:3], off", "cpf")
        a("s_waitcnt lgkmcnt(0)")
        a("s_barrier")

        if "V3" in self.exp:
            self.w1_voffs()
            for f in self.w1_dma_ops(0) + self.w1_dma_ops(1): f()
        a("s_setprio 0")
        if not self.noflags:
            a("v_mov_b32 v7, 0")
        a("v_lshrrev_b32 v4, 2, v1")
        a("v_and_b32 v5, 3, v1")
        a("v_lshlrev_b32 v2, 1, v5")
        a("v_xor_b32 v4, v4, v2")
        a("v_lshlrev_b32 v4, 4, v4")
        a("v_lshl_add_u32 v4, v5, 8, v4")
        a("s_lshl_b32 s%d, s%d, 11" % (sT2, sRW))
        a("v_add_u32 v116, s%d, v4" % sT2)

    def h_ssm_load(self):
        a = self.a
        a("s_lshl_b32 s%d, s%d, 6" % (sT2, sC))
        a("s_lshl_b32 s%d, s%d, 1" % (sT1, sR))
        a("s_add_u32 s%d, s%d, s%d" % (sT2, sT2, sT1))
        a("s_lshl_b32 s%d, s%d, 12" % (sT2, sT2))
        a("v_and_b32 v3, 255, v0")
        a("v_lshlrev_b32 v3, 4, v3")
        a("v_add_u32 v2, s%d, v3" % sT2)
        a("v_add_u32 v4, -8, v2")
        for ch in range(2):
            a.vmem("buffer_load_dwordx2 v[%d:%d], v4, s[%d:%d], 0 offen" % (84 + 6 * ch, 85 + 6 * ch, S_SSM, S_SSM + 3), "ssm")
            a.vmem("buffer_load_dwordx4 v[%d:%d], v2, s[%d:%d], 0 offen" % (86 + 6 * ch, 89 + 6 * ch, S_SSM, S_SSM + 3), "ssm")
            if ch == 0:
                a("v_add_u32 v2, 4096, v2")
                a("v_add_u32 v4, 4096, v4")

    def h_stats(self):
        a = self.a
        X = 20
        for i in range(8): a("v_mov_b32 v%d, 0" % (104 + i))
        for i in range(64):
            if i % 8 == 0:
                a.wait_vm("x%d" % (i // 8))
                if i == 0: self.stamp(13)
            a("v_dot2_f32_bf16 v%d, v%d, v%d, v%d" % (104 + (i & 3), X + i, vONES, 104 + (i & 3)))
            a("v_dot2_f32_bf16 v%d, v%d, v%d, v%d" % (108 + (i & 3), X + i, X + i, 108 + (i & 3)))
        a("v_add_f32 v104, v104, v105"); a("v_add_f32 v106, v106, v107")
        a("v_add_f32 v108, v108, v109"); a("v_add_f32 v110, v110, v111")
        a("v_add_f32 v2, v104, v106"); a("v_add_f32 v3, v108, v110")
        for ctl in ("quad_perm:[1,0,3,2]", "quad_perm:[2,3,0,1]"):
            a("v_add_f32_dpp v2, v2, v2 %s row_mask:0xf bank_mask:0xf" % ctl)
            a("v_add_f32_dpp v3, v3, v3 %s row_mask:0xf bank_mask:0xf" % ctl)
        a("v_mul_f32 v2, 0x3b000000, v2")
        a("v_mul_f32 v3, 0x3b000000, v3")
        a("v_cvt_pk_bf16_f32 v4, v2, v2")
        a("v_fma_f32 v3, -v2, v2, v3")
        a("v_lshlrev_b32 v4, 16, v4")
        a("v_max_f32 v3, 0, v3")
        a("v_cvt_pk_bf16_f32 v3, v3, v3")
        a("v_lshlrev_b32 v3, 16, v3")
        a("v_add_f32 v3, 0x3727c5ac, v3")
        a("v_cvt_pk_bf16_f32 v3, v3, v3")
        a("v_lshlrev_b32 v3, 16, v3")
        a("v_sqrt_f32 v3, v3")
        a("v_cvt_pk_bf16_f32 v3, v3, v3")
        a("v_lshlrev_b32 v3, 16, v3")
        a("v_rcp_f32 v%d, v3" % self.RS)
        a("v_sub_f32 v%d, 0, v4" % self.NEGM)
        a("v_mul_f32 v%d, v%d, v%d" % (self.NMRS, self.NEGM, self.RS))
        a("v_lshrrev_b32 v6, 2, v1")
        a("s_lshl_b32 s%d, s%d, 4" % (sT2, sRW))
        a("v_add_u32 v6, s%d, v6" % sT2)
        a("v_lshlrev_b32 v5, 3, v6")
        a("v_add_u32 v5, %d, v5" % L_STATS)
        a("v_mov_b32 v2, v4")
        a("v_mov_b32 v3, v%d" % self.RS)
        a.lds("ds_write_b64 v5, v[2:3]", "st")

    def h_tbuild(self, ch):
        a = self.a
        D = 84 + 6 * ch
        E = 118
        for p in range(5):
            a("v_alignbit_b32 v%d, v%d, v%d, 16" % (E + p, D + p + 1, D + p))
        for p in range(4):
            a("v_mov_b32 v%d, v%d" % (124 + p, D + 1 + p))
            a("v_mov_b32 v%d, v%d" % (128 + p, E + 1 + p))
        a("v_and_b32 v3, 255, v0")
        a("v_lshlrev_b32 v3, 4, v3")
        a("v_add_u32 v3, %d, v3" % (L_T + ch * T_CH + 24))
        a("ds_write_b128 v3, v[118:121]")
        a("ds_write_b128 v3, v[124:127] offset:%d" % T_CP)
        a("ds_write_b128 v3, v[128:131] offset:%d" % (2 * T_CP))
        a("ds_write_b128 v3, v[%d:%d] offset:%d" % (D + 2, D + 5, 3 * T_CP))

    def w2flag_loads(self, tag):
        a = self.a
        for i in range(3):
            a("v_add_u32 v3, %d, v1" % (64 * i))
            if i == 2:
                a("v_cmp_gt_u32 vcc, 172, v3")
                a("v_cndmask_b32 v3, 0, v3, vcc")
            a("v_lshlrev_b32 v3, 7, v3")
            a("v_add_u32 v3, 0x%x, v3" % F_H4)
            ins = "buffer_load_dword v%d, v3, s[%d:%d], 0 offen sc1" % (100 + i, S_WS, S_WS + 3)
            if tag: a.vmem(ins, tag)
            else: a(ins)

    def w2flag_check(self):
        a = self.a
        for i in range(3): a("v_xor_b32 v%d, s%d, v%d" % (104 + i, sNONCE, 100 + i))
        a("v_or3_b32 v104, v104, v105, v106")
        a("v_cmp_ne_u32 vcc, 0, v104")

    def h_uload(self):
        a = self.a
        if self.noflags: a.wait_vm("ssm")
        if not self.noflags:
            dn = a.newlabel("L_h1ok")
            a.wait_vm("h1f")
            for i in range(4): a("v_xor_b32 v%d, s%d, v%d" % (96 + i, sNONCE, 96 + i))
            a("v_or3_b32 v96, v96, v97, v98")
            a("v_or_b32 v96, v96, v99")
            a("v_cmp_ne_u32 vcc, 0, v96")
            a("s_cbranch_vccz %s" % dn)
            a("s_lshl_b32 s%d, s%d, 12" % (sT0, sC))
            a("s_add_u32 s%d, s%d, 0x%x" % (sT0, sT0, F_H1))
            self.poll(sT0, 32, 4, 128)
            a.label(dn)
        self.stamp(3)
        a("s_lshl_b32 s%d, s%d, 6" % (sT0, sC))
        a("s_lshl_b32 s%d, s%d, 1" % (sT1, sR))
        a("s_add_u32 s%d, s%d, s%d" % (sT0, sT0, sT1))
        a("s_lshl_b32 s%d, s%d, 12" % (sT0, sT0))
        a("s_lshl_b32 s%d, s%d, 11" % (sT1, sRW))
        a("s_add_u32 s%d, s%d, s%d" % (sT0, sT0, sT1))
        a("v_lshlrev_b32 v4, 4, v1")
        a("v_add_u32 v5, s%d, v4" % sT0)
        a.vmem("buffer_load_dwordx4 v[20:23], v5, s[%d:%d], 0 offen sc1" % (S_WS, S_WS + 3), "u")
        a.vmem("buffer_load_dwordx4 v[24:27], v5, s[%d:%d], 0 offen offset:1024 sc1" % (S_WS, S_WS + 3), "u")
        self.h_tbuild(0)
        self.h_tbuild(1)
        if "w2early" in self.exp:
            self.w2_voff()
            self.w2_early()
        a("v_lshlrev_b32 v4, 4, v1")
        a("s_lshr_b32 s%d, s%d, 1" % (sT0, sRW))
        a("s_mul_i32 s%d, s%d, %d" % (sT0, sT0, U_CH))
        a("s_and_b32 s%d, s%d, 1" % (sT1, sRW))
        a("s_lshl_b32 s%d, s%d, 11" % (sT2, sT1))
        a("s_add_u32 s%d, s%d, s%d" % (sT0, sT0, sT2))
        a("s_add_u32 s%d, s%d, %d" % (sT0, sT0, L_U))
        a("v_add_u32 v6, s%d, v4" % sT0)
        for i in range(4): a("v_mov_b32 v%d, 0" % (28 + i))
        a("s_cmp_eq_u32 s%d, 1" % sT1)
        a("s_cselect_b32 exec_lo, -1, 0")
        a("s_mov_b32 exec_hi, 0")
        a("ds_write_b128 v6, v[28:31] offset:2048")
        a("s_mov_b64 exec, -1")
        a.wait_vm("u")
        a("ds_write_b128 v6, v[20:23]")
        a("ds_write_b128 v6, v[24:27] offset:1024")

    def norm_seq(self, j):
        a = self.a
        X = 20 + 8 * j
        seq = []
        for half in range(2):
            s1 = self.norm2(X + 4 * half, 104); s2 = self.norm2(X + 4 * half + 2, 110)
            if "hnonorm" in self.exp and j >= 2:
                s1 = ["s_nop 0"] * 8; s2 = ["s_nop 0"] * 8
            for x, y in zip(s1, s2):
                seq.append(x); seq.append(y)
            if "wmid" in self.exp:
                seq.append(lambda half=half: a.lds("ds_write_b128 v116, v[%d:%d] offset:%d" % (X + 4 * half, X + 4 * half + 3, L_XN + (j % NXN) * 8192 + half * 1024), "xw%d" % j))
        if not ("hnowrite" in self.exp and j >= 2) and "wmid" not in self.exp:
            for half in range(2):
                seq.append(lambda half=half: a.lds("ds_write_b128 v116, v[%d:%d] offset:%d" % (X + 4 * half, X + 4 * half + 3, L_XN + (j % NXN) * 8192 + half * 1024), "xw%d" % j))
        return seq

    def h_gemm1_side(self):
        a = self.a
        if self.w2s:
            a.wait_vm("w2sl")
            a.vmem("buffer_store_dwordx4 v[224:227], v232, s[%d:%d], s86 offen sc1" % (S_WS, S_WS + 3), "w2st")
            a.vmem("buffer_store_dwordx4 v[228:231], v232, s[%d:%d], s86 offen offset:512 sc1" % (S_WS, S_WS + 3), "w2st")
        if "hprio" in self.exp: a("s_setprio 2")
        if "lnpre" in self.exp:
            def split(j):
                sq = self.norm_seq(j)
                return sq[:-2], sq[-2:]
            wr = {}
            for j in range(8):
                v_, w_ = split(j)
                for x in v_: self.run(x)
                if j < 4:
                    for x in w_: self.run(x)
                else:
                    wr[j] = w_
                if j == 1 and not self.noflags:
                    a.vmem("buffer_load_dword v19, v7, s[%d:%d], 0 offen sc1" % (S_DBG, S_DBG + 3), "nonce")
            a.need_lds("xw0", "xw1")
            a("s_barrier")
        else:
            for x in self.norm_seq(0): self.run(x)
            s1 = self.norm_seq(1)
            h = len(s1) // 2
            for x in s1[:h]: self.run(x)
            for x in s1[h:]: self.run(x)
            if not self.noflags:
                a.vmem("buffer_load_dword v19, v7, s[%d:%d], 0 offen sc1" % (S_DBG, S_DBG + 3), "nonce")
            s2 = self.norm_seq(2)
            for x in s2[:h]: self.run(x)
            a.need_lds("xw0", "xw1")
            if "V3" in self.exp: a.wait_vm("w1c1")
            a("s_barrier")
            for x in s2[h:]: self.run(x)
        for j in range(8):
            if "lnpre" in self.exp:
                if j >= 1 and j + 3 <= 7:
                    for x in wr[j + 3]: self.run(x)
            elif j + 3 <= 7:
                for x in self.norm_seq(j + 3): self.run(x)
            if j == self.pf2j and "pf2" in self.exp: self.line_prefetch("w2", 242)
            if j == 1: self.h_ssm_load()
            if j == (self.w2j if self.w2s else 4) and not self.noflags:
                self.get_nonce()
            if j == 5:
                if not self.noflags:
                    a("s_lshl_b32 s%d, s%d, 12" % (sT0, sC))
                    a("s_add_u32 s%d, s%d, 0x%x" % (sT0, sT0, F_H1))
                    a("v_and_b32 v2, 31, v1")
                    a("v_lshlrev_b32 v2, 7, v2")
                    a("v_add_u32 v2, s%d, v2" % sT0)
                if self.w2s:
                    skf = a.newlabel("L_w2f")
                    a("s_cmp_lg_u32 s%d, 0" % sRW)
                    a("s_cbranch_scc1 %s" % skf)
                    self.w2flag_loads(tag=None)
                    a.label(skf)
                if not self.noflags:
                    a.vmem("buffer_load_dwordx4 v[96:99], v2, s[%d:%d], 0 offen sc1" % (S_WS, S_WS + 3), "h1f")
            if j + 1 <= 6:
                if j + 2 <= 7 and "hnowrite" not in self.exp: a.need_lds("xw%d" % (j + 2))
                if j == self.w2j and self.w2s: a.wait_vm("w2st")
                a("s_barrier")
                if j == self.w2j and self.w2s:
                    sk = a.newlabel("L_w2c")
                    a("s_cmp_lt_u32 s2, 172")
                    a("s_cselect_b32 s4, s%d, 1" % sRW)
                    a("s_cmp_lg_u32 s4, 0")
                    a("s_cbranch_scc1 %s" % sk)
                    a("s_lshl_b32 s4, s2, 7")
                    a("s_add_u32 s%d, s4, 0x%x" % (sT2, F_H4))
                    q = list(a.vm.q)
                    self.flag_store(sT2, "flag", 2, 3)
                    a.vm.q = q
                    a.label(sk)
                if "itst" in self.exp: self.stamp(23 + j)
        if "hprio" in self.exp: a("s_setprio 0")
        self.h_uload()
        if self.w2s:
            lp = a.newlabel("L_w2p"); dn = a.newlabel("L_w2d")
            a("s_cmp_lg_u32 s%d, 0" % sRW)
            a("s_cbranch_scc1 %s" % dn)
            a("s_mov_b32 s%d, 0" % sT3)
            a.label(lp)
            self.w2flag_check()
            a("s_cbranch_vccz %s" % dn)
            self.w2flag_loads(tag=None)
            a("s_waitcnt vmcnt(0)")
            a("s_add_u32 s%d, s%d, 1" % (sT3, sT3))
            a("s_cmp_lt_u32 s%d, 100000" % sT3)
            a("s_cbranch_scc1 %s" % lp)
            if "pf4" in self.exp:
                lok = a.newlabel("L_w2ok")
                a.lines.pop()
                a("s_cbranch_scc1 %s" % lp)
            a.label(dn)
            if "pf4" in self.exp:
                skp = a.newlabel("L_pf4")
                a("s_cmp_lg_u32 s%d, 0" % sRW)
                a("s_cbranch_scc1 %s" % skp)
                a("s_lshr_b32 s%d, s2, 3" % sT0)
                if "map42" in self.exp:
                    a("s_mul_i32 s%d, s%d, %d" % (sT0, sT0, 172 * 128))
                    a("s_bfe_u32 s%d, s2, 0x10002" % sT1)
                    a("s_mul_i32 s%d, s%d, %d" % (sT1, sT1, 4 * 176128))
                    a("s_add_u32 s%d, s%d, s%d" % (sT0, sT0, sT1))
                    nl = 172
                else:
                    a("s_mul_i32 s%d, s%d, %d" % (sT0, sT0, 344 * 128))
                    nl = 344
                a("s_add_u32 s%d, s%d, 0x%x" % (sT0, sT0, WS_W2S))
                for i in range((nl + 63) // 64):
                    a("v_add_u32 v3, %d, v1" % (64 * i))
                    a("v_min_u32 v3, %d, v3" % (nl - 1))
                    a("v_lshlrev_b32 v3, 7, v3")
                    a("v_add_u32 v3, s%d, v3" % sT0)
                    a("buffer_load_dword v%d, v3, s[%d:%d], 0 offen sc1" % (240 + (i & 3), S_WS, S_WS + 3))
                a.label(skp)
        self.w2_voff()
        a.lg0()
        a("s_barrier")
        self.stamp(2)

    def h_gemm2(self):
        a = self.a
        HF, ACC = 20, 196
        WBUF = [228, 2]
        AB = 244
        PF = 10
        a("s_lshr_b32 s75, s%d, 1" % sRW)
        a("s_and_b32 s76, s%d, 1" % sRW)
        if "poller3" in self.exp:
            lp3 = a.newlabel("L_hp3"); lgo = a.newlabel("L_hgo")
            a("s_cmp_eq_u32 s%d, 3" % sRW)
            a("s_cbranch_scc1 %s" % lp3)
            q0 = list(a.vm.q)
            for m in range(9):
                a("s_add_u32 s%d, s%d, %d" % (sT0, sRW, 3 * m))
                if m == 8: a("s_min_u32 s%d, s%d, 25" % (sT0, sT0))
                a("s_lshr_b32 s%d, s%d, 1" % (sT1, sT0))
                a("s_and_b32 s%d, s%d, 1" % (sT0, sT0))
                a("s_mul_i32 s71, s%d, %d" % (sT0, NB_H))
                a("s_add_u32 s71, s71, s%d" % sT1)
                a("s_lshl_b32 s71, s71, 12")
                a("s_mul_i32 s70, s%d, 22" % sT0)
                a("s_add_u32 s70, s70, s%d" % sT1)
                a("s_lshl_b32 s70, s70, %d" % (12 if self.w2s else 15))
                self.w2_dma(71, L_B, 70, 0, "w2b")
            a("s_branch %s" % lgo)
            a.label(lp3)
            if not self.noflags:
                a("s_lshl_b32 s%d, s%d, 10" % (sT0, sR))
                a("s_add_u32 s%d, s%d, 0x%x" % (sT0, sT0, F_H2))
                self.poll(sT0, 8, 4, 128)
            a("v_mov_b32 v2, %d" % (L_SYNC + 60))
            a("v_mov_b32 v3, 1")
            a("ds_write_b32 v2, v3")
            a.label(lgo)
        else:
            def w2b_slot(m):
                a("s_add_u32 s%d, s%d, %d" % (sT0, sRW, 4 * m))
                if m == 6: a("s_min_u32 s%d, s%d, 25" % (sT0, sT0))
                a("s_lshr_b32 s%d, s%d, 1" % (sT1, sT0))
                a("s_and_b32 s%d, s%d, 1" % (sT0, sT0))
                a("s_mul_i32 s71, s%d, %d" % (sT0, NB_H))
                a("s_add_u32 s71, s71, s%d" % sT1)
                a("s_lshl_b32 s71, s71, 12")
                a("s_mul_i32 s70, s%d, 22" % sT0)
                a("s_add_u32 s70, s70, s%d" % sT1)
                a("s_lshl_b32 s70, s70, %d" % (12 if self.w2s else 15))
                self.w2_dma(71, L_B, 70, 0, "w2b" if m < self.w2p1 else "w2b2")
            self.w2b_slot = w2b_slot
            if "w2early" in self.exp:
                for m in range(4):
                    a("s_add_u32 s%d, s%d, %d" % (sT0, sRW, 4 * m + (4 if m == 0 else 10)))
                    self.w2_slot_dma("w2b")
            else:
                for m in range(self.w2p1):
                    w2b_slot(m)
        a("s_lshl_b32 s%d, s%d, 2" % (sT2, sR))
        a("s_lshl_b32 s4, s76, 1")
        a("s_add_u32 s%d, s%d, s4" % (sT2, sT2))
        a("s_mul_i32 s%d, s%d, 44032" % (sT2, sT2))
        a("s_mul_i32 s4, s75, %d" % (22 * 1024))
        a("s_add_u32 s%d, s%d, s4" % (sT2, sT2))
        a("s_add_u32 s%d, s%d, 0x%x" % (sT2, sT2, WS_H))
        a("v_lshlrev_b32 v18, 4, v1")
        a("v_add_u32 v18, s%d, v18" % sT2)
        a("v_add_u32 v19, 44032, v18")
        a("v_lshrrev_b32 v2, 4, v1")
        a("v_and_b32 v3, 15, v1")
        a("v_lshrrev_b32 v3, 2, v3")
        a("v_lshrrev_b32 v4, 1, v2")
        a("v_lshlrev_b32 v4, 4, v4")
        a("v_and_b32 v5, 1, v2")
        a("v_lshl_add_u32 v4, v5, 2, v4")
        a("v_add_u32 v4, v4, v3")
        a("v_lshlrev_b32 v4, 7, v4")
        a("v_and_b32 v6, 1, v1")
        a("v_lshl_add_u32 v4, v6, 3, v4")
        a("v_lshlrev_b32 v5, 1, v5")
        a("v_lshrrev_b32 v6, 1, v3")
        a("v_add_u32 v5, v5, v6")
        a("v_lshlrev_b32 v5, 1, v5")
        a("v_and_b32 v6, 3, v1")
        a("v_lshrrev_b32 v6, 1, v6")
        a("s_mul_i32 s4, s75, %d" % B_HALF)
        if L_B: a("s_add_u32 s4, s4, %d" % L_B)
        for b in range(4):
            a("v_add_u32 v7, %d, v6" % (2 * b))
            a("v_xor_b32 v7, v7, v5")
            a("v_lshl_add_u32 v7, v7, 4, v4")
            a("v_add_u32 v%d, s4, v7" % (AB + b))
        a("s_mul_i32 s5, s75, %d" % (NA_H * 4096))
        a("s_add_u32 s5, s5, %d" % L_A)
        a("s_sub_u32 s77, s5, s4")
        a("s_sub_u32 s79, s4, s5")
        for i in range(32): a("v_mov_b32 v%d, 0" % (ACC + i))
        if "poller3" in self.exp:
            a("s_mov_b32 s5, %d" % (L_SYNC + 60))
            self.lds_wait(5, 1, 253, 254)
        else:
            self.stamp(5)
            if not self.noflags and "noh2" not in self.exp:
                a("s_lshl_b32 s%d, s%d, 10" % (sT0, sR))
                a("s_add_u32 s%d, s%d, 0x%x" % (sT0, sT0, F_H2))
                self.poll(sT0, 8, 4, 128)
        self.stamp(6)

        def hload(i):
            ops = []
            for t in range(2):
                def f(t=t):
                    r = HF + (i * 2 + t) * 4
                    so = i * 1024
                    if so < 4096:
                        a.vmem("buffer_load_dwordx4 v[%d:%d], v%d, s[%d:%d], 0 offen offset:%d sc1" % (r, r + 3, 18 + t, S_WS, S_WS + 3, so), "h%d" % i)
                    else:
                        if t == 0: a("s_mov_b32 s80, %d" % (so & ~4095))
                        a.vmem("buffer_load_dwordx4 v[%d:%d], v%d, s[%d:%d], s80 offen offset:%d sc1" % (r, r + 3, 18 + t, S_WS, S_WS + 3, so & 4095), "h%d" % i)
                ops.append(f)
            return ops

        def read_ops(i):
            buf = WBUF[i & 1]
            if i < 13: so = i * 4096
            elif i < 19: so = (i - 13) * 4096
            else: so = (i - 19) * 4096
            ops = []
            sw = {13: 77, 19: 79}.get(i)
            if sw:
                for b in range(4): ops.append("v_add_u32 v%d, s%d, v%d" % (AB + b, sw, AB + b))
            for b in range(4):
                for hh in range(2):
                    r0 = buf + 4 * b + 2 * hh
                    ops.append(lambda r0=r0, b=b, hh=hh: a.lds("ds_read_b64_tr_b16 v[%d:%d], v%d offset:%d" % (r0, r0 + 1, AB + b, so + hh * 1024), "w%d_%d" % (i, b)))
            return ops

        def mfma_ops(i):
            buf = WBUF[i & 1]
            ops = []
            for b in range(4):
                for t in range(2):
                    def f(b=b, t=t):
                        if b == 0 and t == 0:
                            a.wait_both("h%d" % i, ["w%d_%d" % (i, bb) for bb in range(4)])
                        acc = ACC + (b * 2 + t) * 4
                        hr = HF + (i * 2 + t) * 4
                        a("v_mfma_f32_16x16x32_bf16 v[%d:%d], v[%d:%d], v[%d:%d], v[%d:%d]" % (acc, acc + 3, buf + 4 * b, buf + 4 * b + 3, hr, hr + 3, acc, acc + 3))
                    ops.append(f)
            return ops

        allh = []
        for i in range(22): allh += hload(i)
        hp = 0
        for f in allh[:self.hinit]: f()
        hp = self.hinit
        for m in range(self.w2p1, 7):
            self.w2b_slot(m)
        a("s_waitcnt vmcnt(%d)" % min(63, self.hinit + 4 * (7 - self.w2p1)))
        self.m_sync(11, va=253, vb=254)
        self.stamp(19)
        for f in read_ops(0): self.run(f)
        last = a.newlabel("L_g2l")
        for i in range(22):
            if i == 12:
                a.lg0()
                a("s_barrier")
            if i == 18:
                a.lg0()
                a("s_barrier")
            if self.w2p1 < 7 and i == 2 * self.w2p1 - 1:
                a.wait_vm("w2b2")
                self.m_sync(10, va=253, vb=254)
            if i == 4:
                a("v_mov_b32 v253, %d" % (L_SYNC + 56))
                a("v_mov_b32 v254, 1")
                a("s_mov_b64 exec, 1")
                a.lds("ds_add_u32 v253, v254", "sig")
                a("s_mov_b64 exec, -1")
            if i == 21:
                a("s_cmp_eq_u32 s75, 1")
                a("s_cbranch_scc1 %s" % last)
            fill = []
            if i < 21: fill += read_ops(i + 1)
            nl = self.hper if hp < 2 * (i + self.hwin) else 2
            nl = min(nl, len(allh) - hp)
            fill = allh[hp:hp + nl] + fill
            hp += nl
            interleave(a, mfma_ops(i), fill)
        a.label(last)
        a.lg0()
        self.stamp(22)
        a("v_and_b32 v2, 15, v1")
        a("v_lshrrev_b32 v3, 4, v1")
        a("v_mul_u32_u24 v2, 272, v2")
        a("v_lshl_add_u32 v2, v3, 4, v2")
        a("s_mul_i32 s4, s75, %d" % P_STRIDE)
        a("s_mul_i32 s5, s76, %d" % (32 * 272))
        a("s_add_u32 s4, s4, s5")
        a("s_add_u32 s4, s4, %d" % L_P)
        a("v_add_u32 v2, s4, v2")
        for b in range(4):
            for t in range(2):
                acc = ACC + (b * 2 + t) * 4
                a("ds_write_b128 v2, v[%d:%d] offset:%d" % (acc, acc + 3, t * 16 * 272 + b * 64))
        self.final_x_load(240, 244)
        a.lg0()
        a("s_barrier")

    def final(self):
        a = self.a
        P0 = L_P; P1 = L_P + P_STRIDE; YL = L_Y
        XR = 240; OA = 244
        a("s_and_b32 s%d, s%d, 3" % (sT0, sW))
        a("s_lshr_b32 s%d, s%d, 2" % (sT1, sW))
        a("v_lshrrev_b32 v2, 2, v1")
        a("v_and_b32 v3, 3, v1")
        a("s_lshl_b32 s4, s%d, 4" % sT0)
        a("v_add_u32 v2, s4, v2")
        a("v_mul_u32_u24 v4, 272, v2")
        a("v_lshl_add_u32 v4, v3, 5, v4")
        a("s_lshl_b32 s4, s%d, 7" % sT1)
        a("s_add_u32 s4, s4, %d" % P0)
        a("v_add_u32 v4, s4, v4")
        a("ds_read_b128 v[20:23], v4")
        a("ds_read_b128 v[24:27], v4 offset:16")
        a("ds_read_b128 v[28:31], v4 offset:%d" % (P1 - P0))
        a("ds_read_b128 v[32:35], v4 offset:%d" % (P1 - P0 + 16))
        a("v_lshlrev_b32 v6, 3, v2")
        a("v_add_u32 v6, %d, v6" % L_STATS)
        a("ds_read_b64 v[36:37], v6")
        a("v_lshrrev_b32 v7, 4, v1")
        a("v_lshlrev_b32 v7, 3, v7")
        a("v_and_b32 v8, 15, v1")
        a("v_lshrrev_b32 v8, 2, v8")
        a("v_add_u32 v7, v7, v8")
        a("s_lshl_b32 s4, s%d, 5" % sT1)
        a("v_add_u32 v7, s4, v7")
        a("v_mul_u32_u24 v7, 144, v7")
        a("v_and_b32 v8, 3, v1")
        a("v_lshl_add_u32 v7, v8, 3, v7")
        a("s_lshl_b32 s4, s%d, 5" % sT0)
        a("s_add_u32 s4, s4, %d" % YL)
        a("v_add_u32 v7, s4, v7")
        a("ds_read_b64_tr_b16 v[38:39], v7")
        a("ds_read_b64_tr_b16 v[40:41], v7 offset:%d" % (4 * 144))
        a("v_and_b32 v8, 3, v1")
        a("v_lshlrev_b32 v8, 4, v8")
        a("v_lshrrev_b32 v9, 2, v1")
        a("v_or_b32 v8, v8, v9")
        a("v_lshlrev_b32 v8, 2, v8")
        a("v_mov_b32 v10, 0xbfb8aa3b")
        a("v_mov_b32 v11, 1.0")
        a("s_waitcnt lgkmcnt(0)")
        for i in range(4):
            a("ds_bpermute_b32 v%d, v8, v%d" % (42 + i, 38 + i))
        for i in range(8):
            a("v_add_f32 v%d, v%d, v%d" % (20 + i, 20 + i, 28 + i))
        for i in range(4):
            a("v_cvt_pk_bf16_f32 v%d, v%d, v%d" % (28 + i, 20 + 2 * i, 21 + 2 * i))
        for i in range(4):
            a("v_alignbit_b32 v%d, v%d, 0, 16" % (20 + 2 * i, 28 + i))
            a("v_and_b32 v%d, v%d, v%d" % (21 + 2 * i, vMHI, 28 + i))
        for i in range(8):
            a("v_mul_f32 v%d, v10, v%d" % (48 + i, 20 + i))
        for i in range(8):
            a("v_exp_f32 v%d, v%d" % (48 + i, 48 + i))
        a("s_waitcnt vmcnt(0)")
        a("v_sub_f32 v12, 0, v36")
        for i in range(4):
            a("v_dot2_f32_bf16 v%d, v%d, v%d, v12" % (72 + 2 * i, XR + i, vONELO))
            a("v_dot2_f32_bf16 v%d, v%d, v%d, v12" % (73 + 2 * i, XR + i, vONEHI))
        for i in range(8):
            a("v_add_f32 v%d, v11, v%d" % (48 + i, 48 + i))
        for i in range(4):
            a("v_cvt_pk_bf16_f32 v%d, v%d, v%d" % (80 + i, 72 + 2 * i, 73 + 2 * i))
        for i in range(8):
            a("v_rcp_f32 v%d, v%d" % (48 + i, 48 + i))
        for i in range(4):
            a("v_alignbit_b32 v%d, v%d, 0, 16" % (72 + 2 * i, 80 + i))
            a("v_and_b32 v%d, v%d, v%d" % (73 + 2 * i, vMHI, 80 + i))
        for i in range(8):
            a("v_mul_f32 v%d, v%d, v37" % (72 + i, 72 + i))
        for i in range(8):
            a("v_mul_f32 v%d, v%d, v%d" % (20 + i, 20 + i, 48 + i))
        for i in range(4):
            a("v_cvt_pk_bf16_f32 v%d, v%d, v%d" % (80 + i, 72 + 2 * i, 73 + 2 * i))
        for i in range(4):
            a("v_cvt_pk_bf16_f32 v%d, v%d, v%d" % (28 + i, 20 + 2 * i, 21 + 2 * i))
        a("s_waitcnt lgkmcnt(0)")
        for i in range(4):
            a("v_and_b32 v%d, v%d, v%d" % (56 + 2 * i, vMLO, 42 + i))
            a("v_and_b32 v%d, v%d, v%d" % (57 + 2 * i, vMHI, 42 + i))
            a("v_and_b32 v%d, v%d, v%d" % (64 + 2 * i, vMLO, 28 + i))
            a("v_and_b32 v%d, v%d, v%d" % (65 + 2 * i, vMHI, 28 + i))
        for i in range(4):
            a("v_dot2_f32_bf16 v%d, v%d, v%d, 0" % (72 + 2 * i, 80 + i, 56 + 2 * i))
            a("v_dot2_f32_bf16 v%d, v%d, v%d, 0" % (73 + 2 * i, 80 + i, 57 + 2 * i))
        for i in range(4):
            a("v_alignbit_b32 v%d, v%d, 0, 16" % (88 + 2 * i, XR + i))
            a("v_and_b32 v%d, v%d, v%d" % (89 + 2 * i, vMHI, XR + i))
        for i in range(4):
            a("v_cvt_pk_bf16_f32 v%d, v%d, v%d" % (80 + i, 72 + 2 * i, 73 + 2 * i))
        for i in range(4):
            a("v_dot2_f32_bf16 v%d, v%d, v%d, 0" % (72 + 2 * i, 80 + i, 64 + 2 * i))
            a("v_dot2_f32_bf16 v%d, v%d, v%d, 0" % (73 + 2 * i, 80 + i, 65 + 2 * i))
        for i in range(4):
            a("v_cvt_pk_bf16_f32 v%d, v%d, v%d" % (80 + i, 72 + 2 * i, 73 + 2 * i))
        for i in range(4):
            a("v_dot2_f32_bf16 v%d, v%d, v%d, v%d" % (72 + 2 * i, 80 + i, vONELO, 88 + 2 * i))
            a("v_dot2_f32_bf16 v%d, v%d, v%d, v%d" % (73 + 2 * i, 80 + i, vONEHI, 89 + 2 * i))
        for i in range(4):
            a("v_cvt_pk_bf16_f32 v%d, v%d, v%d" % (80 + i, 72 + 2 * i, 73 + 2 * i))
        fl = " sc1" if "outsc1" in self.exp else (" nt" if "outnt" in self.exp else (" sc0 sc1" if "outsc01" in self.exp else ""))
        a("buffer_store_dwordx4 v[80:83], v%d, s[%d:%d], 0 offen%s" % (OA, S_OUT, S_OUT + 3, fl))

    def build(self):
        a = self.a
        self.p0()
        self.m_front()
        self.stamp(1)
        self.m_prep()
        self.stamp(10)
        self.m_gemm1()
        self.stamp(4)
        self.m_conv()
        self.m_tail()
        a("s_branch L_final")
        a.label("L_H")
        self.h_front()
        self.stamp(1)
        self.h_stats()
        self.stamp(11)
        self.h_gemm1_side()
        self.h_gemm2()
        a.label("L_final")
        a.lg_clear()
        self.stamp(8)
        self.final()
        self.stamp(9)
        self.dump_stamps()
        if "noendwait" not in self.exp: a("s_waitcnt vmcnt(0)")
        a.label("L_end")
        a.label("L_codeend")
        a("s_endpgm")
        lines, n = hazard.fix(a.lines)
        self.nnops = n
        hdr = """; Kernarg layout: x,k,v,shift_k,ssm_k,ssm_D,B_x,w1,w2,out,debug,ws (8-byte pointers)
; @launch grid=(256,1,1) block=(512,1,1) lds=%d
.amdgcn_target "amdgcn-amd-amdhsa--gfx950"
.text
.globl %s
.p2align 8
.type %s,@function
%s:
""" % (LDS_SIZE, KNAME, KNAME, KNAME)
        ftr = """.section .rodata,"a"
.p2align 6
.amdhsa_kernel %s
  .amdhsa_next_free_vgpr 256
  .amdhsa_next_free_sgpr 102
  .amdhsa_accum_offset 256
  .amdhsa_group_segment_fixed_size 0
  .amdhsa_kernarg_size 96
  .amdhsa_user_sgpr_count 2
  .amdhsa_user_sgpr_kernarg_segment_ptr 1
  .amdhsa_system_sgpr_workgroup_id_x 1
.end_amdhsa_kernel
""" % KNAME
        return hdr + "\n".join(lines) + "\n" + ftr

if __name__ == "__main__":
    import argparse
    ap = argparse.ArgumentParser()
    ap.add_argument("-o", default="k.s")
    ap.add_argument("--stamps", action="store_true")
    ap.add_argument("--noflags", action="store_true")
    ap.add_argument("--exp", default="")
    args = ap.parse_args()
    g = Gen(stamps=args.stamps, noflags=args.noflags, exp=args.exp)
    txt = g.build()
    open(args.o, "w").write(txt)
    print("wrote", args.o, len(txt.splitlines()), "lines; hazard nops:", g.nnops)
```

```python
import sys
from emit import *
import hazard

KNAME = "recurrent_scan__ssm_conv_h3__dense_activation_relu__prompt_kernel"

WS_KVT = 0
WS_YT = 2 << 20
WS_H = 4 << 20
WS_FLAG = 10 << 20
F_H1 = WS_FLAG
F_H2 = WS_FLAG + 32768
F_H3 = WS_FLAG + 65536
F_H4 = WS_FLAG + 98304
WS_STAMP = WS_FLAG + (256 << 10)
WS_W2S = 12 << 20
WS_SIZE = 16 << 20

L_XN = 0
NXN = 4
L_W1 = 32768
W1_SLOT = 24576
NW1 = 5
L_PREP = L_W1 + 4 * W1_SLOT
L_A = L_W1 + 3 * W1_SLOT
NA_H = 6
L_T = L_A + 8
T_CH = 16640
T_CP = 4160
L_U = L_A + 33408
U_CH = 4608
L_B = 0
NB_H = 13
B_HALF = NB_H * 4096
L_Y = 16384
L_P = L_B + 7 * 4096
P_STRIDE = B_HALF
L_STATS = 161792
L_SYNC = 162304
LDS_SIZE = 163840
assert L_U % 16 == 0 and L_U + 2 * U_CH <= L_W1 + 5 * W1_SLOT and L_T + 2 * T_CH <= L_U
assert L_A + 2 * NA_H * 4096 <= L_STATS and 2 * B_HALF <= L_A and L_W1 + NW1 * W1_SLOT <= L_STATS

S_X, S_K, S_V, S_W1, S_W2, S_OUT, S_SSM, S_WS, S_SH, S_DBG = 8, 12, 16, 20, 24, 28, 32, 36, 40, 44
sR, sC, sW, sNONCE = 48, 49, 50, 51
sF0, sBP, sNB = 52, 53, 54
sT0, sT1, sT2, sT3 = 55, 56, 57, 58
sRW = 59
sEX = 60
sROT = 62
sDP = 64
sDD = 66
sM0B = 67
sP0, sP1 = 68, 69
sUOK = 72
sID = 81
sD = 85
sINV1, sINV2 = 73, 74
vMLO, vMHI, vONELO, vONEHI, vONES = 248, 249, 250, 251, 252

def merge(*lists):
    lists = [l for l in lists if l]
    tot = sum(len(l) for l in lists)
    out = []; idx = [0] * len(lists)
    for s in range(tot):
        best = min((i for i in range(len(lists)) if idx[i] < len(lists[i])), key=lambda i: (idx[i] + 0.5) / len(lists[i]))
        out.append(lists[best][idx[best]]); idx[best] += 1
    return out

class Gen:
    def __init__(self, stamps=False, noflags=False, exp=""):
        self.exp = set(exp.split(",")) if exp else set()
        self.a = Asm()
        self.stamps = stamps
        self.noflags = noflags
        self.relax_ln = "relax_ln" in self.exp
        self.stampset = None
        self.h2n = 75
        self.h1j = 0
        self.w2p1 = 7
        for e in self.exp:
            if e.startswith('p1='): self.w2p1 = int(e[3:])
        for e in self.exp:
            if e.startswith('h1j='): self.h1j = int(e[4:])
        self.w2j = 0
        self.w2s = 'w2s' in self.exp
        self.KS = 4096 if self.w2s else 32768
        self.pf2j = 0
        for e in self.exp:
            if e.startswith('pj='): self.pf2j = int(e[3:])
            if e.startswith('h2n='): self.h2n = int(e[4:])
        self.hwin = 22; self.hper = 6; self.hinit = 12
        for e in self.exp:
            if e.startswith('hw='): self.hwin, self.hper, self.hinit = [int(x) for x in e[3:].split('+')]
        for e in self.exp:
            if e.startswith("st="):
                self.stampset = set(int(x) for x in e[3:].split("+"))

    def stamp(self, idx):
        if not self.stamps: return
        if self.stampset is not None and idx not in self.stampset: return
        a = self.a
        a("s_memrealtime s[4:5]")
        if "clk" in self.exp and idx in (14, 2, 4, 16):
            a("s_memtime s[6:7]")
        a.lg0()
        a("v_writelane_b32 v255, s4, %d" % idx)
        if "clk" in self.exp and idx in (14, 2, 4, 16):
            a("v_writelane_b32 v255, s6, %d" % {14: 29, 2: 30, 4: 31, 16: 15}[idx])

    def dump_stamps(self):
        if not self.stamps: return
        a = self.a
        if "entry" in self.exp:
            a("v_writelane_b32 v255, s90, 31")
        if "dbgst" in self.exp:
            sk = a.newlabel("L_ds")
            a("s_or_b32 s4, s2, s%d" % sW)
            a("s_cmp_lg_u32 s4, 0")
            a("s_cbranch_scc1 %s" % sk)
            a("v_readlane_b32 s4, v255, 0")
            a("s_nop 3")
            a("v_subrev_u32 v3, s4, v255")
            order = [12, 10, 14, 2, 4, 16, 17, 18, 7, 8, 9]
            for k, i in enumerate(order):
                a("v_readlane_b32 s5, v3, %d" % i)
                a("s_nop 3")
                a("v_mov_b32 v4, s5")
                a("v_mov_b32 v5, %d" % (4 * (k + 1)))
                a("s_mov_b64 exec, 1")
                a("buffer_store_dword v4, v5, s[%d:%d], 0 offen" % (S_DBG, S_DBG + 3))
                a("s_mov_b64 exec, -1")
            a.label(sk)
        a("s_lshl_b32 s%d, s2, 3" % sT0)
        a("s_add_u32 s%d, s%d, s%d" % (sT0, sT0, sW))
        a("s_lshl_b32 s%d, s%d, 7" % (sT0, sT0))
        a("s_add_u32 s%d, s%d, 0x%x" % (sT0, sT0, WS_STAMP))
        a("v_lshlrev_b32 v2, 2, v1")
        a("v_add_u32 v2, s%d, v2" % sT0)
        a("s_mov_b32 exec_lo, -1")
        a("s_mov_b32 exec_hi, 0")
        a("buffer_store_dword v255, v2, s[%d:%d], 0 offen" % (S_WS, S_WS + 3))
        a("s_mov_b64 exec, -1")

    def run(self, x):
        if callable(x): x()
        else: self.a(x)

    def spread(self, seq, extra):
        a = self.a
        if not extra:
            for x in seq: self.run(x)
            return
        step = max(1, len(seq) // (len(extra) + 1))
        k = 0
        for i, ins in enumerate(seq):
            self.run(ins)
            if (i + 1) % step == 0 and k < len(extra):
                self.run(extra[k]); k += 1
        while k < len(extra):
            self.run(extra[k]); k += 1

    def map_rc(self):
        a = self.a
        if "map42" in self.exp:
            a("s_and_b32 s%d, s2, 3" % sR)
            a("s_lshl_b32 s%d, s%d, 3" % (sR, sR))
            a("s_bfe_u32 s3, s2, 0x30003")
            a("s_add_u32 s%d, s%d, s3" % (sR, sR))
            a("s_bfe_u32 s%d, s2, 0x10002" % sC)
            a("s_lshl_b32 s%d, s%d, 2" % (sC, sC))
            a("s_lshr_b32 s3, s2, 6")
            a("s_add_u32 s%d, s%d, s3" % (sC, sC))
        else:
            a("s_and_b32 s%d, s2, 7" % sR)
            a("s_lshr_b32 s3, s2, 6")
            a("s_lshl_b32 s3, s3, 3")
            a("s_add_u32 s%d, s%d, s3" % (sR, sR))
            a("s_bfe_u32 s%d, s2, 0x30003" % sC)

    def rot_calc(self):
        a = self.a
        if "map42" in self.exp:
            a("s_lshl_b32 s%d, s%d, 1" % (sT0, sC))
            a("s_add_u32 s%d, s%d, s%d" % (sT0, sT0, sR))
            a("s_and_b32 s%d, s%d, 7" % (sROT, sT0))
        else:
            a("s_lshr_b32 s%d, s%d, 3" % (sT0, sR))
            a("s_lshl_b32 s%d, s%d, 1" % (sT0, sT0))
            a("s_add_u32 s%d, s%d, s%d" % (sT0, sT0, sC))
            a("s_add_u32 s%d, s%d, s%d" % (sT0, sT0, sR))
            a("s_and_b32 s%d, s%d, 7" % (sROT, sT0))
        if "norot" in self.exp: a("s_mov_b32 s%d, 0" % sROT)

    def p0(self):
        a = self.a
        if self.stamps and "entry" in self.exp:
            a("s_memrealtime s[90:91]")
        a("s_load_dwordx8 s[64:71], s[0:1], 0")
        a("s_cmp_ge_u32 s2, 256")
        a("s_cbranch_scc1 L_end")
        if self.stamps: a("v_mov_b32 v255, 0")
        a("v_lshrrev_b32 v2, 6, v0")
        a("v_and_b32 v1, 63, v0")
        if "codepf0" in self.exp:
            a("s_getpc_b64 s[82:83]")
            a.label("L_pc")
            a("s_sub_u32 s82, s82, L_pc-%s" % KNAME)
            a("s_subb_u32 s83, s83, 0")
            a("v_and_b32 v4, 255, v0")
            a("v_lshlrev_b32 v4, 7, v4")
            a("v_min_u32 v4, L_codeend-%s, v4" % KNAME)
            a("v_mov_b32 v5, s83")
            a("v_add_co_u32 v4, vcc, s82, v4")
            a("v_addc_co_u32 v5, vcc, 0, v5, vcc")
            a.vmem("global_load_dword v244, v[4:5], off", "cpf")
        self.map_rc()
        a("v_readfirstlane_b32 s%d, v2" % sW)
        a("s_mov_b32 s10, 0x200000")
        a("s_mov_b32 s11, 0x00020000")
        a("s_mov_b32 s14, 0x200000")
        a("s_mov_b32 s15, 0x00020000")
        a("s_mov_b32 s18, 0x200000")
        a("s_mov_b32 s19, 0x00020000")
        a("s_movk_i32 s42, 0x1000")
        a("s_mov_b32 s43, 0x00020000")
        a("s_and_b32 s%d, s%d, 3" % (sRW, sW))
        a("s_cmp_ge_u32 s%d, 4" % sW)
        a("s_cbranch_scc1 L_Hfirst")

    def p0_rest(self):
        a = self.a
        for dst, off in ((S_W1, 56), (S_SSM, 32), (S_WS, 88), (S_DBG, 80), (S_W2, 64), (S_OUT, 72), (sDP, 40)):
            a("s_load_dwordx2 s[%d:%d], s[0:1], %d" % (dst, dst + 1, off))
        for dst, size in ((S_W1, 1409024), (S_SSM, 2097152), (S_WS, WS_SIZE), (S_DBG, 256), (S_W2, 1409024), (S_OUT, 2097152)):
            a("s_mov_b32 s%d, 0x%x" % (dst + 2, size))
            a("s_mov_b32 s%d, 0x00020000" % (dst + 3))
        if "dshift" in self.exp:
            a("s_add_u32 s%d, s%d, 1" % (sD, sC))
            a("s_and_b32 s%d, s%d, 7" % (sD, sD))
        else:
            a("s_mov_b32 s%d, s%d" % (sD, sC))
        a("s_lshl_b32 s%d, s%d, 5" % (sID, sC))
        a("s_add_u32 s%d, s%d, s%d" % (sID, sID, sR))
        a("s_mul_i32 s%d, s%d, 6" % (sBP, sC))
        a("s_sub_i32 s%d, s%d, 3" % (sT0, sC))
        a("s_max_i32 s%d, s%d, 0" % (sT0, sT0))
        a("s_sub_u32 s%d, s%d, s%d" % (sBP, sBP, sT0))
        a("s_lshl_b32 s%d, s%d, 5" % (sF0, sBP))
        a("s_cmp_lt_u32 s%d, 3" % sC)
        a("s_cselect_b32 s%d, 12, 10" % sNB)
        a("v_mov_b32 v%d, 0xffff" % vMLO)
        a("v_mov_b32 v%d, 0xffff0000" % vMHI)
        a("v_mov_b32 v%d, 0x3f80" % vONELO)
        a("v_mov_b32 v%d, 0x3f800000" % vONEHI)
        a("v_mov_b32 v%d, 0x3f803f80" % vONES)
        a("s_mov_b32 s%d, 0x05040100" % sP0)
        a("s_mov_b32 s%d, 0x07060302" % sP1)
        a("v_and_b32 v3, 15, v0")
        a("v_lshlrev_b32 v3, 2, v3")
        a("v_add_u32 v3, %d, v3" % L_SYNC)
        a("v_mov_b32 v4, 0")
        a("ds_write_b32 v3, v4")

    def w1_dma_ops(self, j):
        a = self.a
        slot = j % NW1
        ops = []
        def head():
            a("s_add_u32 s%d, s%d, %d" % (sT1, sROT, j))
            a("s_and_b32 s%d, s%d, 7" % (sT1, sT1))
            a("s_mul_i32 s%d, s%d, %d" % (sT1, sT1, 64 * 2752))
            a("s_add_u32 m0, s%d, %d" % (sM0B, slot * W1_SLOT))
            a.vmem("buffer_load_dwordx4 v12, s[%d:%d], s%d offen lds" % (S_W1, S_W1 + 3, sT1), "w1c%d" % j)
        ops.append(head)
        for i in range(1, 6):
            def nxt(i=i):
                a("s_add_u32 m0, s%d, %d" % (sM0B, slot * W1_SLOT + 1024 * i))
                a.vmem("buffer_load_dwordx4 v%d, s[%d:%d], s%d offen lds" % (12 + i, S_W1, S_W1 + 3, sT1), "w1c%d" % j)
            ops.append(nxt)
        return ops

    def w1_voffs(self):
        a = self.a
        V = 12
        a("s_mul_i32 s%d, s%d, %d" % (sT0, sRW, 16 * 2752))
        a("s_lshl_b32 s%d, s%d, 1" % (sT1, sF0))
        a("s_add_u32 s%d, s%d, s%d" % (sT0, sT0, sT1))
        a("s_lshl_b32 s%d, s%d, 1" % (sT1, sNB))
        a("v_mov_b32 v7, 0x40000000")
        for i in range(6):
            a("v_add_u32 v2, %d, v1" % (64 * i))
            a("v_mul_u32_u24 v3, 2731, v2")
            a("v_lshrrev_b32 v3, 16, v3")
            a("v_mul_u32_u24 v4, 24, v3")
            a("v_sub_u32 v4, v2, v4")
            a("v_and_b32 v5, 2, v3")
            a("v_lshrrev_b32 v6, 1, v3")
            a("v_and_b32 v6, 4, v6")
            a("v_or_b32 v5, v5, v6")
            a("v_xor_b32 v4, v4, v5")
            a("v_mul_u32_u24 v5, 2752, v3")
            a("v_lshl_add_u32 v5, v4, 4, v5")
            a("v_add_u32 v5, s%d, v5" % sT0)
            a("v_cmp_gt_u32 vcc, s%d, v4" % sT1)
            a("v_cndmask_b32 v%d, v7, v5, vcc" % (V + i))
        a("s_mul_i32 s%d, s%d, %d" % (sM0B, sRW, 16 * 384))
        a("s_add_u32 s%d, s%d, %d" % (sM0B, sM0B, L_W1))

    def line_prefetch(self, which, vd):
        a = self.a
        a("s_lshr_b32 s%d, s2, 3" % sT0)
        a("v_and_b32 v2, 255, v0")
        if "map42" not in self.exp:
            srd = S_W1 if which == "w1" else S_W2
            a("s_mul_i32 s%d, s%d, %d" % (sT0, sT0, 344 * 128))
            a("v_lshlrev_b32 v3, 7, v2")
            a("v_add_u32 v3, s%d, v3" % sT0)
            a.vmem("buffer_load_dword v%d, v3, s[%d:%d], 0 offen" % (vd, srd, srd + 3), "pf")
            a("v_cmp_gt_u32 vcc, %d, v2" % (344 - 256))
            a("v_add_u32 v3, 32768, v3")
            a("v_mov_b32 v4, 0x40000000")
            a("v_cndmask_b32 v3, v4, v3, vcc")
            a.vmem("buffer_load_dword v%d, v3, s[%d:%d], 0 offen" % (vd + 1, srd, srd + 3), "pf")
        elif which == "w2":
            a("s_mul_i32 s%d, s%d, 43" % (sT0, sT0))
            a("s_bfe_u32 s%d, s2, 0x10002" % sT1)
            a("s_lshl_b32 s%d, s%d, 9" % (sT1, sT1))
            a("s_lshl_b32 s%d, s%d, 10" % (sT0, sT0))
            a("s_add_u32 s%d, s%d, s%d" % (sT0, sT0, sT1))
            a("v_lshrrev_b32 v3, 2, v2")
            a("v_lshlrev_b32 v3, 10, v3")
            a("v_and_b32 v4, 3, v2")
            a("v_lshl_add_u32 v3, v4, 7, v3")
            a("v_add_u32 v3, s%d, v3" % sT0)
            a("v_cmp_gt_u32 vcc, 172, v2")
            a("v_mov_b32 v4, 0x40000000")
            a("v_cndmask_b32 v3, v4, v3, vcc")
            a.vmem("buffer_load_dword v%d, v3, s[%d:%d], 0 offen" % (vd, S_W2, S_W2 + 3), "pf")
        else:
            a("s_lshl_b32 s%d, s%d, 4" % (sT0, sT0))
            a("s_mul_i32 s%d, s%d, 2752" % (sT0, sT0))
            a("s_bfe_u32 s%d, s2, 0x10002" % sT1)
            a("s_mul_i32 s%d, s%d, 1472" % (sT1, sT1))
            a("s_add_u32 s%d, s%d, s%d" % (sT0, sT0, sT1))
            a("v_mul_u32_u24 v3, 5462, v2")
            a("v_lshrrev_b32 v3, 16, v3")
            a("v_mul_u32_u24 v4, 12, v3")
            a("v_sub_u32 v4, v2, v4")
            a("v_mul_u32_u24 v3, 2752, v3")
            a("v_lshl_add_u32 v3, v4, 7, v3")
            a("v_add_u32 v3, s%d, v3" % sT0)
            a("v_cmp_gt_u32 vcc, 192, v2")
            a("v_mov_b32 v4, 0x40000000")
            a("v_cndmask_b32 v3, v4, v3, vcc")
            a.vmem("buffer_load_dword v%d, v3, s[%d:%d], 0 offen" % (vd, S_W1, S_W1 + 3), "pf")

    def m_front(self):
        a = self.a
        a("v_lshrrev_b32 v3, 5, v0")
        a("v_and_b32 v4, 31, v0")
        a("s_lshl_b32 s%d, s%d, 16" % (sT0, sR))
        a("s_lshl_b32 s%d, s%d, 7" % (sT1, sC))
        a("s_add_u32 s%d, s%d, s%d" % (sT0, sT0, sT1))
        a("v_lshlrev_b32 v2, 13, v3")
        a("v_lshl_add_u32 v2, v4, 2, v2")
        a("v_add_u32 v2, s%d, v2" % sT0)
        a("v_add_u32 v5, 0xfffff400, v2")
        a("v_add_u32 v6, 0xfffff800, v2")
        a("v_add_u32 v7, 0xfffffc00, v2")
        a("v_add_u32 v8, 4096, v2")
        a("s_lshl_b32 s%d, s%d, 9" % (sT2, sC))
        a("v_lshlrev_b32 v9, 4, v4")
        a("v_add_u32 v9, s%d, v9" % sT2)
        a.lg0()
        a("s_mov_b64 s[12:13], s[66:67]")
        a("s_mov_b64 s[16:17], s[68:69]")
        a("s_mov_b64 s[40:41], s[70:71]")
        a("s_mov_b64 s[8:9], s[64:65]")
        if self.stamps:
            a("s_memrealtime s[4:5]"); a.lg0(); a("v_writelane_b32 v255, s4, 0")
        K, V, SH = 20, 32, 40
        for t, r in enumerate((5, 6, 7)):
            a.vmem("buffer_load_dword v%d, v%d, s[%d:%d], 0 offen" % (K + t, r, S_K, S_K + 3), "prep")
        for t in range(8):
            a.vmem("buffer_load_dword v%d, v%d, s[%d:%d], 0 offen offset:%d" % (K + 3 + t, 2 if t < 4 else 8, S_K, S_K + 3, 1024 * (t & 3)), "prep")
        a.vmem("buffer_load_dwordx4 v[40:43], v9, s[%d:%d], 0 offen" % (S_SH, S_SH + 3), "prep")
        for t in range(8):
            a.vmem("buffer_load_dword v%d, v%d, s[%d:%d], 0 offen offset:%d" % (V + t, 2 if t < 4 else 8, S_V, S_V + 3, 1024 * (t & 3)), "prep")
        a("s_branch L_Mrest")
        self.h_first()
        a.label("L_Mrest")
        a.vm = self.vm_m_first
        self.rot_calc()
        self.p0_rest()
        a("s_waitcnt lgkmcnt(0)")
        a("s_barrier")
        if "pfM" in self.exp:
            self.line_prefetch("w1", 240)
        if not self.noflags:
            a("s_or_b32 s%d, s2, s%d" % (sT1, sW))
            a("s_cmp_lg_u32 s%d, 0" % sT1)
            a("s_cbranch_scc1 L_nononce")
            a("s_memrealtime s[4:5]")
            a("s_waitcnt lgkmcnt(0)")
            a("s_or_b32 s4, s4, 1")
            a("v_mov_b32 v2, s4")
            a("v_mov_b32 v3, 0")
            a("s_mov_b64 exec, 1")
            a("buffer_store_dword v2, v3, s[%d:%d], 0 offen sc1" % (S_DBG, S_DBG + 3))
            a("s_mov_b64 exec, -1")
            a.label("L_nononce")
        self.w1_voffs()
        self.m_gemm1_setup()
        a("s_lshl_b32 s%d, s%d, 7" % (sT0, sC))
        a("s_lshl_b32 s%d, s%d, 2" % (sT1, sR))
        a("s_add_u32 s%d, s%d, s%d" % (sT0, sT0, sT1))
        a("s_load_dword s%d, s[%d:%d], s%d" % (sDD, sDP, sDP + 1, sT0))

    def m_gemm1_setup(self):
        a = self.a
        AX = 8; AW = [9, 10, 11]
        a("v_and_b32 v2, 15, v1")
        a("v_lshrrev_b32 v3, 4, v1")
        a("v_lshlrev_b32 v4, 1, v3")
        a("v_xor_b32 v4, v2, v4")
        a("v_lshlrev_b32 v4, 4, v4")
        a("v_lshl_add_u32 v%d, v3, 8, v4" % AX)
        a("v_lshrrev_b32 v5, 2, v2")
        a("v_lshl_add_u32 v4, v3, 3, v5")
        a("v_mul_u32_u24 v4, 384, v4")
        a("v_and_b32 v6, 3, v1")
        a("v_lshl_add_u32 v4, v6, 3, v4")
        a("v_lshrrev_b32 v5, 1, v5")
        a("v_and_b32 v6, 1, v3")
        a("v_lshl_add_u32 v5, v6, 1, v5")
        a("s_mul_i32 s%d, s%d, 3" % (sT0, sRW))
        for b in range(3):
            a("s_add_u32 s%d, s%d, %d" % (sT1, sT0, b))
            a("v_xor_b32 v6, s%d, v5" % sT1)
            a("v_lshl_add_u32 v6, v6, 5, v4")
            a("v_add_u32 v%d, %d, v6" % (AW[b], L_W1))
        a("v_lshlrev_b32 v5, 4, v2")
        a("v_lshrrev_b32 v4, 1, v3")
        a("v_lshl_add_u32 v5, v4, 8, v5")
        a("v_and_b32 v4, 1, v3")
        if "st16" in self.exp:
            a("v_mul_u32_u24 v4, 44032, v4")
            a("v_add_u32 v5, v5, v4")
        else:
            a("v_lshl_add_u32 v5, v4, 3, v5")
        a("s_lshr_b32 s%d, s%d, 4" % (sBP, sF0))
        a("s_mul_i32 s%d, s%d, %d" % (sT0, sR, 4 * 44032))
        a("s_mul_i32 s%d, s%d, 3" % (sT1, sRW))
        a("s_add_u32 s%d, s%d, s%d" % (sT2, sT1, sBP))
        a("s_lshl_b32 s%d, s%d, 9" % (sT2, sT2))
        a("s_add_u32 s%d, s%d, s%d" % (sT0, sT0, sT2))
        a("s_add_u32 s%d, s%d, 0x%x" % (sT0, sT0, WS_H))
        a("v_add_u32 v168, s%d, v5" % sT0)
        for tb in range(1, 4):
            a("v_add_u32 v%d, %d, v168" % (168 + tb, 44032 * tb))
        for b, sr_ in ((1, sINV1), (2, sINV2)):
            a("s_add_u32 s%d, s%d, %d" % (sT2, sT1, b))
            a("s_cmp_lt_u32 s%d, s%d" % (sT2, sNB))
            a("s_cselect_b32 s%d, 0, 0x40000000" % sr_)

    def m_prep(self):
        a = self.a
        K, V, SH = 20, 32, 40
        WL, WH = 44, 48
        PL, PH = 52, 56
        PP, AC = 60, 64
        TA, TB = 68, 72
        KV = 76
        OUT = 92
        dma = []
        if "V2" in self.exp:
            for f in self.w1_dma_ops(0) + self.w1_dma_ops(1): f()
        if "V4" in self.exp:
            for f in self.w1_dma_ops(0): f()
            dma = self.w1_dma_ops(1) + self.w1_dma_ops(2)
        if "V5" in self.exp:
            for f in self.w1_dma_ops(0) + self.w1_dma_ops(1): f()
            dma = self.w1_dma_ops(2)
        a.wait_vm("prep")
        self.stamp(12)
        seq = []; e = seq.append
        e("v_and_b32 v%d, v%d, v%d" % (WL + 0, vMLO, SH + 0)); e("v_lshrrev_b32 v%d, 16, v%d" % (WL + 1, SH + 0))
        e("v_and_b32 v%d, v%d, v%d" % (WL + 2, vMLO, SH + 1)); e("v_lshrrev_b32 v%d, 16, v%d" % (WL + 3, SH + 1))
        e("v_lshlrev_b32 v%d, 16, v%d" % (WH + 0, SH + 2)); e("v_and_b32 v%d, v%d, v%d" % (WH + 1, vMHI, SH + 2))
        e("v_lshlrev_b32 v%d, 16, v%d" % (WH + 2, SH + 3)); e("v_and_b32 v%d, v%d, v%d" % (WH + 3, vMHI, SH + 3))
        for hb in range(2):
            r0 = 4 * hb
            if "relax_prep" in self.exp:
                for r in range(4):
                    e("v_dot2_f32_bf16 v%d, v%d, v%d, 0" % (PL + r, K + r0 + r, WL + 3))
                    e("v_dot2_f32_bf16 v%d, v%d, v%d, 0" % (PH + r, K + r0 + r, WH + 3))
                for j in (2, 1, 0):
                    for r in range(4):
                        e("v_dot2_f32_bf16 v%d, v%d, v%d, v%d" % (PL + r, K + 3 + r0 + r - j, WL + j, PL + r))
                        e("v_dot2_f32_bf16 v%d, v%d, v%d, v%d" % (PH + r, K + 3 + r0 + r - j, WH + j, PH + r))
                for r in range(4):
                    e("v_cvt_pk_bf16_f32 v%d, v%d, v%d" % (AC + r, PL + r, PH + r))
            else:
                for j in (3, 2, 1, 0):
                    for r in range(4):
                        e("v_dot2_f32_bf16 v%d, v%d, v%d, 0" % (PL + r, K + 3 + r0 + r - j, WL + j))
                        e("v_dot2_f32_bf16 v%d, v%d, v%d, 0" % (PH + r, K + 3 + r0 + r - j, WH + j))
                    dstp = AC if j == 3 else PP
                    for r in range(4):
                        e("v_cvt_pk_bf16_f32 v%d, v%d, v%d" % (dstp + r, PL + r, PH + r))
                    if j != 3:
                        for r in range(4):
                            e("v_perm_b32 v%d, v%d, v%d, s%d" % (TA + r, PP + r, AC + r, sP0))
                            e("v_perm_b32 v%d, v%d, v%d, s%d" % (TB + r, PP + r, AC + r, sP1))
                        for r in range(4):
                            e("v_dot2_f32_bf16 v%d, v%d, v%d, 0" % (PL + r, TA + r, vONES))
                            e("v_dot2_f32_bf16 v%d, v%d, v%d, 0" % (PH + r, TB + r, vONES))
                        for r in range(4):
                            e("v_cvt_pk_bf16_f32 v%d, v%d, v%d" % (AC + r, PL + r, PH + r))
            for r in range(4):
                e("v_and_b32 v%d, v%d, v%d" % (TA + r, vMLO, V + r0 + r))
                e("v_and_b32 v%d, v%d, v%d" % (TB + r, vMHI, V + r0 + r))
            for r in range(4):
                e("v_dot2_f32_bf16 v%d, v%d, v%d, 0" % (KV + r0 + r, AC + r, TA + r))
                e("v_dot2_f32_bf16 v%d, v%d, v%d, 0" % (KV + 8 + r0 + r, AC + r, TB + r))
        e("v_and_b32 v2, 31, v0"); e("v_mul_u32_u24 v2, 288, v2"); e("v_lshrrev_b32 v3, 5, v0"); e("v_lshlrev_b32 v3, 4, v3")
        e("v_sub_u32 v2, v2, v3"); e("v_add_u32 v2, %d, v2" % (L_PREP + 112))
        for ch in range(2):
            for d in range(4):
                e("v_cvt_pk_bf16_f32 v%d, v%d, v%d" % (OUT + 4 * ch + d, KV + 8 * ch + 7 - 2 * d, KV + 8 * ch + 6 - 2 * d))
        self.spread(seq, dma)
        self.stamp(20)
        a("ds_write_b128 v2, v[%d:%d]" % (OUT, OUT + 3))
        a("ds_write_b128 v2, v[%d:%d] offset:144" % (OUT + 4, OUT + 7))
        a("v_lshrrev_b32 v2, 3, v0")
        a("v_and_b32 v3, 7, v0")
        a("v_mul_u32_u24 v4, 144, v2")
        a("v_lshl_add_u32 v4, v3, 4, v4")
        a("v_add_u32 v4, %d, v4" % L_PREP)
        a("s_lshl_b32 s%d, s%d, 18" % (sT0, sC))
        a("s_lshl_b32 s%d, s%d, 7" % (sT1, sR))
        a("s_sub_u32 s%d, s%d, s%d" % (sT0, sT0, sT1))
        a("s_add_u32 s%d, s%d, %d" % (sT0, sT0, WS_KVT + 3968))
        a("v_lshlrev_b32 v5, 12, v2")
        a("v_lshl_add_u32 v5, v3, 4, v5")
        a("v_add_u32 v5, s%d, v5" % sT0)
        a("v_add_u32 v6, %d, v5" % (32 * 4096))
        if "dmafirst" in self.exp:
            for f in self.w1_dma_ops(0) + self.w1_dma_ops(1) + self.w1_dma_ops(2): f()
            self.stamp(15)
        self.m_sync(13, va=2, vb=3)
        a("ds_read_b128 v[92:95], v4")
        a("ds_read_b128 v[96:99], v4 offset:%d" % (32 * 144))
        a.lg0()
        a.vmem("buffer_store_dwordx4 v[92:95], v5, s[%d:%d], 0 offen sc1" % (S_WS, S_WS + 3), "kvt")
        a.vmem("buffer_store_dwordx4 v[96:99], v6, s[%d:%d], 0 offen sc1" % (S_WS, S_WS + 3), "kvt")
        if not self.noflags:
            a("v_mov_b32 v7, 0")
            a.vmem("buffer_load_dword v19, v7, s[%d:%d], 0 offen sc1" % (S_DBG, S_DBG + 3), "nonce")
        if "dmafirst" not in self.exp:
            self.stamp(15)
            if "V3" in self.exp: lst = self.w1_dma_ops(2) + self.w1_dma_ops(3)
            elif "V2" in self.exp: lst = self.w1_dma_ops(2)
            elif "V4" in self.exp or "V5" in self.exp: lst = []
            else: lst = self.w1_dma_ops(0) + self.w1_dma_ops(1) + self.w1_dma_ops(2)
            for f in lst: f()

    def m_gemm1(self):
        a = self.a
        ACC = 20
        BUF = [68, 96, 124]
        AX = 8; AW = [9, 10, 11]
        UREG = 152
        for i in range(48):
            a("v_mov_b32 v%d, 0" % (ACC + i))

        def read_ops(ks):
            buf = BUF[ks % 3]
            j = ks >> 1; ksl = ks & 1; slot = j % NW1
            pre = []
            if ksl == 0 and j > 0:
                d = W1_SLOT if slot != 0 else -(NW1 - 1) * W1_SLOT
                for b in range(3):
                    pre.append("v_add_u32 v%d, %d, v%d" % (AW[b], d & 0xffffffff, AW[b]))
            so = ksl * 32 * 384
            def rx(t):
                return lambda: a.lds("ds_read_b128 v[%d:%d], v%d offset:%d" % (buf + 4 * t, buf + 4 * t + 3, AX, L_XN + (j % NXN) * 8192 + t * 2048 + ksl * 1024), "x%d_%d" % (ks, t))
            def rw(b, hh):
                r0 = buf + 16 + 4 * b + 2 * hh
                return lambda: a.lds("ds_read_b64_tr_b16 v[%d:%d], v%d offset:%d" % (r0, r0 + 1, AW[b], so + hh * 4 * 384), "w%d_%d" % (ks, b))
            if "mnoreads" in self.exp: return pre
            return pre + [rw(0, 0), rw(0, 1), rx(0), rx(1), rx(2), rx(3), rw(1, 0), rw(1, 1), rw(2, 0), rw(2, 1)]

        def mfma_ops(ks):
            cur = BUF[ks % 3]
            ops = []
            for b in range(3):
                for t in range(4):
                    def f(b=b, t=t):
                        if "finewait" in self.exp:
                            a.need_lds("w%d_%d" % (ks, b), "x%d_%d" % (ks, t))
                        elif b == 0 and t == 0:
                            a.need_lds(*(["w%d_%d" % (ks, bb) for bb in range(3)] + ["x%d_%d" % (ks, tt) for tt in range(4)]))
                        acc = ACC + (b * 4 + t) * 4
                        if "mnomfma" in self.exp: return
                        a("v_mfma_f32_16x16x32_bf16 v[%d:%d], v[%d:%d], v[%d:%d], v[%d:%d]" % (
                            acc, acc + 3, cur + 16 + 4 * b, cur + 19 + 4 * b, cur + 4 * t, cur + 4 * t + 3, acc, acc + 3))
                    ops.append(f)
            return ops

        if not self.noflags and "V1" in self.exp: self.publish_h1()
        if "V3" not in self.exp: a.wait_vm("w1c1")
        a("s_barrier")
        self.stamp(14)
        for f in read_ops(0): self.run(f)
        if self.h1j == 0 and not self.noflags and "V1" not in self.exp:
            q_l = (list(a.lg.q), a.lg_done)
            self.publish_h1()
        for f in read_ops(1)[:5]: self.run(f)
        pend = read_ops(1)[5:]
        for j in range(8):
            if j >= 1 and j <= 6:
                if not ("mnodma" in self.exp and j + 1 >= 3) and "novmw" not in self.exp: a.wait_vm("w1c%d" % (j + 1))
                a("s_barrier")
                if "itst" in self.exp: self.stamp(22 + j)
                if j == self.h1j and not self.noflags and "V1" not in self.exp: self.publish_h1()
            dm = self.w1_dma_ops(j + 4) if (j + 4 <= 7) else []
            if j == 0 and "V3" not in self.exp: dm = self.w1_dma_ops(3) + dm
            if "mnodma" in self.exp:
                for _ in dm: a.vm.issue("dummy")
                dm = []
            ex = []
            for half in range(2):
                ks = 2 * j + half
                fill = list(pend); pend = []
                if ks + 2 <= 15:
                    fill += read_ops(ks + 2)
                hlf = (len(dm) + 1) // 2
                extra = (dm[:hlf] + ex if half == 0 else dm[hlf:])
                interleave(a, mfma_ops(ks), merge(fill, extra))
        a.lg0()
        self.stamp(2)
        HB = 68
        for i in range(12):
            a("v_cvt_pk_bf16_f32 v%d, v%d, v%d" % (HB + 2 * i, ACC + 4 * i, ACC + 4 * i + 1))
            a("v_cvt_pk_bf16_f32 v%d, v%d, v%d" % (HB + 2 * i + 1, ACC + 4 * i + 2, ACC + 4 * i + 3))
        for i in range(24):
            a("v_pk_max_i16 v%d, v%d, 0" % (HB + i, HB + i))
        if "st16" in self.exp:
            for b in range(3):
                for u in range(2):
                    r = HB + 8 * b + 4 * u
                    a("v_permlane16_swap_b32 v%d, v%d" % (r, r + 2))
                    a("v_permlane16_swap_b32 v%d, v%d" % (r + 1, r + 3))
            for b in range(3):
                so = "0" if b == 0 else "s%d" % (sINV1 if b == 1 else sINV2)
                for u in range(2):
                    r = HB + 8 * b + 4 * u
                    a.vmem("buffer_store_dwordx4 v[%d:%d], v%d, s[%d:%d], %s offen offset:%d sc1" % (r, r + 3, 168 + 2 * u, S_WS, S_WS + 3, so, 512 * b), "hst")
        elif "nohst" in self.exp:
            a.vm.issue("hst")
        else:
          for b in range(3):
            so = "0" if b == 0 else "s%d" % (sINV1 if b == 1 else sINV2)
            for t in range(4):
                r = HB + (b * 4 + t) * 2
                a.vmem("buffer_store_dwordx2 v[%d:%d], v%d, s[%d:%d], %s offen offset:%d sc1" % (r, r + 1, 168 + t, S_WS, S_WS + 3, so, 512 * b), "hst")
        if "h2pre" in self.exp and not self.noflags:
            self.publish_h2()
        a("s_barrier")

    def get_nonce(self):
        if self.noflags: return
        a = self.a
        a.wait_vm("nonce")
        lo = a.newlabel("L_nz"); lp = a.newlabel("L_nl")
        a("v_readfirstlane_b32 s%d, v19" % sNONCE)
        a("s_nop 3")
        a("s_cmp_lg_u32 s%d, 0" % sNONCE)
        a("s_cbranch_scc1 %s" % lo)
        a("s_mov_b32 s%d, 0" % sT3)
        a.label(lp)
        a("v_mov_b32 v7, 0")
        a("buffer_load_dword v19, v7, s[%d:%d], 0 offen sc1" % (S_DBG, S_DBG + 3))
        a("s_waitcnt vmcnt(0)")
        a("v_readfirstlane_b32 s%d, v19" % sNONCE)
        a("s_add_u32 s%d, s%d, 1" % (sT3, sT3))
        a("s_cmp_gt_u32 s%d, 100000" % sT3)
        a("s_cbranch_scc1 %s" % lo)
        a("s_cmp_eq_u32 s%d, 0" % sNONCE)
        a("s_cbranch_scc1 %s" % lp)
        a.label(lo)

    def flag_store(self, off_sreg, tag, va=2, vb=3):
        if self.noflags: return
        a = self.a
        a("v_mov_b32 v%d, s%d" % (va, off_sreg))
        a("v_mov_b32 v%d, s%d" % (vb, sNONCE))
        a("s_mov_b64 exec, 1")
        a.vmem("buffer_store_dword v%d, v%d, s[%d:%d], 0 offen sc1" % (vb, va, S_WS, S_WS + 3), tag)
        a("s_mov_b64 exec, -1")

    def publish_h1(self):
        a = self.a
        self.get_nonce()
        a.wait_vm("kvt")
        a("s_lshl_b32 s%d, s%d, 7" % (sT0, sID))
        a("s_lshl_b32 s%d, s%d, 2" % (sT2, sRW))
        a("s_add_u32 s%d, s%d, s%d" % (sT0, sT0, sT2))
        a("s_add_u32 s%d, s%d, 0x%x" % (sT0, sT0, F_H1))
        self.flag_store(sT0, "flag")

    def poll(self, base_sreg, nlanes, width, stride):
        if self.noflags: return
        a = self.a
        lp = a.newlabel("L_poll"); dn = a.newlabel("L_pdone")
        a("v_mul_u32_u24 v2, %d, v1" % stride)
        a("v_add_u32 v2, s%d, v2" % base_sreg)
        a("s_mov_b32 s%d, 0" % sT3)
        if nlanes <= 16: a("s_mov_b64 exec, 0x%x" % ((1 << nlanes) - 1))
        else:
            a("s_mov_b32 exec_lo, -1"); a("s_mov_b32 exec_hi, 0")
        a.label(lp)
        if width == 1:
            a("buffer_load_dword v4, v2, s[%d:%d], 0 offen sc1" % (S_WS, S_WS + 3))
            a("s_waitcnt vmcnt(0)")
            a("v_cmp_ne_u32 vcc, s%d, v4" % sNONCE)
        else:
            a("buffer_load_dwordx4 v[4:7], v2, s[%d:%d], 0 offen sc1" % (S_WS, S_WS + 3))
            a("s_waitcnt vmcnt(0)")
            for i in range(4): a("v_xor_b32 v%d, s%d, v%d" % (4 + i, sNONCE, 4 + i))
            a("v_or3_b32 v4, v4, v5, v6")
            a("v_or_b32 v4, v4, v7")
            a("v_cmp_ne_u32 vcc, 0, v4")
        a("s_add_u32 s%d, s%d, 1" % (sT3, sT3))
        a("s_cmp_gt_u32 s%d, 100000" % sT3)
        a("s_cbranch_scc1 %s" % dn)
        a("s_cbranch_vccnz %s" % lp)
        a.label(dn)
        a("s_mov_b64 exec, -1")

    def lds_wait(self, addr_sreg, val=1, va=16, vb=17):
        a = self.a
        lp = a.newlabel("L_ps"); dn = a.newlabel("L_psd")
        a("v_mov_b32 v%d, s%d" % (va, addr_sreg))
        a("s_mov_b32 s%d, 0" % sT3)
        a.label(lp)
        a("ds_read_b32 v%d, v%d" % (vb, va))
        a("s_waitcnt lgkmcnt(0)")
        a("v_readfirstlane_b32 s4, v%d" % vb)
        a("s_add_u32 s%d, s%d, 1" % (sT3, sT3))
        a("s_cmp_ge_u32 s4, %d" % val)
        a("s_cbranch_scc1 %s" % dn)
        a("s_cmp_lt_u32 s%d, 1000000" % sT3)
        a("s_cbranch_scc1 %s" % lp)
        a.label(dn)
        a.lg_clear()

    def m_sync(self, word, n=4, va=16, vb=17):
        a = self.a
        a("v_mov_b32 v%d, %d" % (va, L_SYNC + 4 * word))
        a("v_mov_b32 v%d, 1" % vb)
        a.lg0()
        a("s_mov_b64 exec, 1")
        a("ds_add_u32 v%d, v%d" % (va, vb))
        a("s_mov_b64 exec, -1")
        a("s_mov_b32 s5, %d" % (L_SYNC + 4 * word))
        self.lds_wait(5, n, va, vb)

    def pair_sync(self, stage, va=16, vb=17):
        a = self.a
        a("s_lshl_b32 s4, s%d, 2" % sRW)
        a("s_add_u32 s4, s4, %d" % (L_SYNC + 16 * stage))
        a("s_xor_b32 s5, s4, 4")
        a("v_mov_b32 v%d, s4" % va)
        a("v_mov_b32 v%d, 1" % vb)
        a.lg0()
        a("ds_write_b32 v%d, v%d" % (va, vb))
        self.lds_wait(5, 1, va, vb)

    def publish_h2(self):
        a = self.a
        a.wait_vm("hst")
        a("s_lshl_b32 s4, s%d, 3" % sR)
        a("s_add_u32 s4, s4, s%d" % sC)
        a("s_lshl_b32 s4, s4, 7")
        a("s_lshl_b32 s5, s%d, 2" % sRW)
        a("s_add_u32 s4, s4, s5")
        a("s_add_u32 s%d, s4, 0x%x" % (sT2, F_H2))
        self.flag_store(sT2, "flag", 4, 5)

    def m_conv(self):
        a = self.a
        BF, ACC, AF, NA = 20, 148, 180, 16
        AU, AT = 2, 3
        a("v_and_b32 v8, 15, v1")
        a("v_lshrrev_b32 v9, 4, v1")
        a("v_lshlrev_b32 v10, 4, v9")
        a("v_lshlrev_b32 v11, 5, v8")
        a("v_sub_u32 v10, v10, v11")
        a("s_lshr_b32 s%d, s%d, 1" % (sT0, sRW))
        a("s_and_b32 s%d, s%d, 1" % (sT1, sRW))
        a("s_mul_i32 s%d, s%d, %d" % (sT2, sT0, U_CH))
        a("s_add_u32 s%d, s%d, %d" % (sT2, sT2, L_U + 2 * 2032 - 64 * 56))
        a("s_lshl_b32 s4, s%d, 6" % sT1)
        a("s_add_u32 s%d, s%d, s4" % (sT2, sT2))
        a("v_add_u32 v%d, s%d, v10" % (AU, sT2))
        a("v_and_b32 v10, 3, v8")
        a("v_mul_u32_u24 v10, %d, v10" % T_CP)
        a("v_lshrrev_b32 v11, 2, v8")
        a("v_lshl_add_u32 v10, v11, 3, v10")
        a("v_lshl_add_u32 v10, v9, 4, v10")
        a("s_mul_i32 s%d, s%d, %d" % (sT2, sT0, T_CH))
        a("s_add_u32 s%d, s%d, s4" % (sT2, sT2))
        a("s_add_u32 s%d, s%d, %d" % (sT2, sT2, L_T))
        a("v_add_u32 v%d, s%d, v10" % (AT, sT2))
        a("v_lshl_add_u32 v10, v9, 3, v8")
        a("s_lshl_b32 s4, s%d, 5" % sT1)
        a("v_add_u32 v10, s4, v10")
        MK = 12
        for d in range(4):
            a("v_sub_u32 v11, %d, v10" % (15 - 2 * d))
            a("v_med3_i32 v11, v11, 0, 2")
            a("v_lshlrev_b32 v11, 4, v11")
            a("v_mov_b32 v%d, -1" % (MK + d))
            a("v_lshlrev_b32 v16, v11, v%d" % (MK + d))
            a("v_cmp_eq_u32 vcc, 32, v11")
            a("v_cndmask_b32_e64 v%d, v16, 0, vcc" % (MK + d))
        for i in range(32):
            a("v_mov_b32 v%d, 0" % (ACC + i))
        def emit_A(ee):
            r = AF + 4 * (ee % NA)
            a.lds("ds_read_b64 v[%d:%d], v%d offset:%d" % (r, r + 1, AT, 128 * ee), ("A", ee))
            a.lds("ds_read_b64 v[%d:%d], v%d offset:%d" % (r + 2, r + 3, AT, 128 * ee + 8), ("A", ee))
        def emit_B(idx):
            r = BF + 4 * idx
            a.lds("ds_read_b128 v[%d:%d], v%d offset:%d" % (r, r + 3, AU, 128 * idx), ("B", idx))
        sched = []
        for ee in range(32):
            for j in range(7, (ee >> 2) - 1, -1):
                sched.append((ee, j, 28 - 4 * j + ee))
        order = []; seen = set(); last_use_A = {}
        for n, (ee, j, idx) in enumerate(sched):
            for it in (("A", ee), ("B", idx)):
                if it not in seen:
                    seen.add(it); order.append(it)
            last_use_A[ee] = n
        ptr = 0; issued = set()
        def can_issue(item, n):
            if item[0] == "A" and item[1] >= NA:
                return last_use_A[item[1] - NA] < n
            return True
        def issue_next(n_now):
            nonlocal ptr
            if ptr < len(order) and can_issue(order[ptr], n_now):
                it = order[ptr]
                (emit_A if it[0] == "A" else emit_B)(it[1])
                issued.add(it); ptr += 1
                return True
            return False
        def inflight():
            return len(a.lg.q) - a.lg_done
        GRP = 4
        while inflight() < 14 and issue_next(0): pass
        masked = False
        for n, (ee, j, idx) in enumerate(sched):
            while ("A", ee) not in issued or ("B", idx) not in issued:
                assert issue_next(n)
            if not (a.lds_done(("A", ee)) and a.lds_done(("B", idx))):
                tags = [("A", ee), ("B", idx)]
                for (e2, j2, i2) in sched[n + 1:n + GRP]:
                    if ("A", e2) in issued and ("B", i2) in issued: tags += [("A", e2), ("B", i2)]
                    else: break
                a.need_lds(*tags)
            ar = AF + 4 * (ee % NA); br = BF + 4 * idx; acc = ACC + 4 * j
            if ee == 0 and not masked:
                for d in range(4): a("v_and_b32 v%d, v%d, v%d" % (ar + d, MK + d, ar + d))
                masked = True
            a("v_mfma_f32_16x16x32_bf16 v[%d:%d], v[%d:%d], v[%d:%d], v[%d:%d]" % (acc, acc + 3, ar, ar + 3, br, br + 3, acc, acc + 3))
            if inflight() < 14:
                issue_next(n + 1)
                if n < 40 and inflight() < 14: issue_next(n + 1)
            if n == self.h2n and not self.noflags and "h2pre" not in self.exp:
                self.publish_h2()
        self.stamp(16)
        self.pair_sync(0)
        a("v_lshlrev_b32 v4, 4, v1")
        a("s_mul_i32 s%d, s%d, %d" % (sT0, sT0, T_CH))
        a("s_add_u32 s%d, s%d, %d" % (sT0, sT0, L_T + 8))
        a("s_lshl_b32 s%d, s%d, 12" % (sT2, sT1))
        a("s_add_u32 s%d, s%d, s%d" % (sT2, sT2, sT0))
        a("v_add_u32 v5, s%d, v4" % sT2)
        a("s_xor_b32 s%d, s%d, 1" % (sT2, sT1))
        a("s_lshl_b32 s%d, s%d, 12" % (sT2, sT2))
        a("s_add_u32 s%d, s%d, s%d" % (sT2, sT2, sT0))
        a("v_add_u32 v6, s%d, v4" % sT2)
        l0 = a.newlabel("L_cr0"); l1 = a.newlabel("L_cr1")
        a("s_cmp_eq_u32 s%d, 0" % sT1)
        a("s_cbranch_scc1 %s" % l0)
        for i in range(4):
            a("ds_write_b128 v5, v[%d:%d] offset:%d" % (ACC + 4 * i, ACC + 4 * i + 3, 1024 * i))
        for i in range(16):
            a("v_mov_b32 v%d, v%d" % (200 + i, ACC + 16 + i))
        a("s_branch %s" % l1)
        a.label(l0)
        for i in range(4):
            a("ds_write_b128 v5, v[%d:%d] offset:%d" % (ACC + 16 + 4 * i, ACC + 16 + 4 * i + 3, 1024 * i))
        for i in range(16):
            a("v_mov_b32 v%d, v%d" % (200 + i, ACC + i))
        a.label(l1)
        a("v_and_b32 v4, 15, v1")
        a("v_lshrrev_b32 v7, 4, v1")
        a("v_lshlrev_b32 v4, 5, v4")
        a("v_lshl_add_u32 v4, v7, 3, v4")
        a("s_lshr_b32 s%d, s%d, 1" % (sT0, sRW))
        a("s_mul_i32 s%d, s%d, %d" % (sT2, sT0, U_CH))
        a("s_add_u32 s%d, s%d, %d" % (sT2, sT2, L_U + 2 * 2044 - 3 * 512))
        a("s_lshl_b32 s4, s%d, 11" % sT1)
        a("s_sub_u32 s%d, s%d, s4" % (sT2, sT2))
        a("v_sub_u32 v4, s%d, v4" % sT2)
        for i in range(4):
            a("ds_read_b64 v[%d:%d], v4 offset:%d" % (236 + 2 * i, 237 + 2 * i, (3 - i) * 512))
        a("s_and_b32 s4, s%d, 0xffff" % sDD)
        a("s_lshr_b32 s5, s%d, 16" % sDD)
        a("s_cmp_eq_u32 s%d, 0" % sT0)
        a("s_cselect_b32 s4, s4, s5")
        a("s_lshl_b32 s5, s4, 16")
        a("v_mov_b32 v8, s4")
        a("v_mov_b32 v9, s5")
        self.pair_sync(1)
        for i in range(4):
            a("ds_read_b128 v[%d:%d], v6 offset:%d" % (220 + 4 * i, 223 + 4 * i, 1024 * i))
        TT = 148
        for i in range(4):
            u0, u1 = 236 + 2 * i, 237 + 2 * i
            a("v_dot2_f32_bf16 v%d, v%d, v9, 0" % (TT + 4 * i + 0, u1))
            a("v_dot2_f32_bf16 v%d, v%d, v8, 0" % (TT + 4 * i + 1, u1))
            a("v_dot2_f32_bf16 v%d, v%d, v9, 0" % (TT + 4 * i + 2, u0))
            a("v_dot2_f32_bf16 v%d, v%d, v8, 0" % (TT + 4 * i + 3, u0))
        TB = 164
        for i in range(4):
            a("v_cvt_pk_bf16_f32 v%d, v%d, v%d" % (TB + 2 * i, TT + 4 * i, TT + 4 * i + 1))
            a("v_cvt_pk_bf16_f32 v%d, v%d, v%d" % (TB + 2 * i + 1, TT + 4 * i + 2, TT + 4 * i + 3))
        a("v_and_b32 v4, 15, v1")
        a("v_lshrrev_b32 v5, 2, v4")
        a("v_lshlrev_b32 v5, 16, v5")
        a("v_and_b32 v4, 3, v4")
        a("v_lshl_add_u32 v5, v4, 5, v5")
        a("v_lshrrev_b32 v7, 4, v1")
        if "st16" in self.exp:
            a("v_lshrrev_b32 v4, 1, v7")
            a("v_lshl_add_u32 v5, v4, 4, v5")
            a("v_and_b32 v4, 1, v7")
            a("v_lshl_add_u32 v5, v4, 18, v5")
        else:
            a("v_lshl_add_u32 v5, v7, 3, v5")
        a("s_lshl_b32 s%d, s%d, 6" % (sT2, sC))
        a("s_lshl_b32 s4, s%d, 1" % sR)
        a("s_add_u32 s%d, s%d, s4" % (sT2, sT2))
        a("s_add_u32 s%d, s%d, s%d" % (sT2, sT2, sT0))
        a("s_lshl_b32 s%d, s%d, 7" % (sT2, sT2))
        a("s_lshl_b32 s4, s%d, 20" % sT1)
        a("s_add_u32 s%d, s%d, s4" % (sT2, sT2))
        a("s_add_u32 s%d, s%d, 0x%x" % (sT2, sT2, WS_YT))
        a("v_add_u32 v5, s%d, v5" % sT2)
        a.lg0()
        for i in range(16):
            a("v_add_f32 v%d, v%d, v%d" % (200 + i, 200 + i, 220 + i))
        YB = 172
        for i in range(8):
            a("v_cvt_pk_bf16_f32 v%d, v%d, v%d" % (YB + i, 200 + 2 * i, 201 + 2 * i))
        for i in range(8):
            a("v_perm_b32 v%d, v%d, v%d, s%d" % (200 + 2 * i, TB + i, YB + i, sP0))
            a("v_perm_b32 v%d, v%d, v%d, s%d" % (201 + 2 * i, TB + i, YB + i, sP1))
        for i in range(16):
            a("v_dot2_f32_bf16 v%d, v%d, v%d, 0" % (220 + i, 200 + i, vONES))
        for i in range(8):
            a("v_cvt_pk_bf16_f32 v%d, v%d, v%d" % (180 + i, 220 + 2 * i, 221 + 2 * i))
        if "st16" in self.exp:
            for u in range(2):
                r = 180 + 4 * u
                a("v_permlane16_swap_b32 v%d, v%d" % (r, r + 2))
                a("v_permlane16_swap_b32 v%d, v%d" % (r + 1, r + 3))
            for u in range(2):
                if u: a("v_add_u32 v5, 0x80000, v5")
                a.vmem("buffer_store_dwordx4 v[%d:%d], v5, s[%d:%d], 0 offen sc1" % (180 + 4 * u, 183 + 4 * u, S_WS, S_WS + 3), "yst")
        else:
          for i in range(4):
            if i: a("v_add_u32 v5, 0x40000, v5")
            a.vmem("buffer_store_dwordx2 v[%d:%d], v5, s[%d:%d], 0 offen sc1" % (180 + 2 * i, 181 + 2 * i, S_WS, S_WS + 3), "yst")
        self.stamp(17)

    def w2_voff(self):
        a = self.a
        sh = 7 if self.w2s else 10
        a("v_lshrrev_b32 v2, 3, v1")
        a("v_and_b32 v2, 3, v2")
        a("v_lshrrev_b32 v3, 5, v1")
        a("v_lshl_add_u32 v2, v3, 3, v2")
        a("v_lshlrev_b32 v2, %d, v2" % sh)
        a("v_lshrrev_b32 v3, 4, v1")
        a("v_and_b32 v3, 3, v3")
        a("v_lshlrev_b32 v3, 1, v3")
        a("v_and_b32 v4, 7, v1")
        a("v_xor_b32 v3, v3, v4")
        a("v_lshl_add_u32 v2, v3, 4, v2")
        if self.w2s:
            a("s_mul_i32 s%d, s%d, 176128" % (sT0, sD))
            a("s_add_u32 s%d, s%d, 0x%x" % (sT0, sT0, WS_W2S))
        else:
            a("s_lshl_b32 s%d, s%d, 7" % (sT0, sD))
        a("v_add_u32 v14, s%d, v2" % sT0)

    def w2_dma(self, lds_base_sreg, lds_off, src_base_sreg, ks_off, tag):
        a = self.a
        inc = [0, 512, 1536, 512] if self.w2s else [0, 4096, 12288, 4096]
        srd = S_WS if self.w2s else S_W2
        fl = " sc1" if self.w2s else ""
        a("s_add_u32 s%d, s%d, %d" % (sT2, src_base_sreg, ks_off * self.KS))
        for m in range(4):
            a("s_add_u32 m0, s%d, %d" % (lds_base_sreg, lds_off + 1024 * m))
            if m: a("s_add_u32 s%d, s%d, %d" % (sT2, sT2, inc[m]))
            a.vmem("buffer_load_dwordx4 v14, s[%d:%d], s%d offen%s lds" % (srd, srd + 3, sT2, fl), tag)

    def w2_slot_dma(self, tag):
        a = self.a
        a("s_lshl_b32 s71, s%d, 12" % sT0)
        a("s_add_u32 s70, s%d, 9" % sT0)
        a("s_cmp_lt_u32 s%d, 13" % sT0)
        a("s_cselect_b32 s70, s%d, s70" % sT0)
        a("s_lshl_b32 s70, s70, %d" % (12 if self.w2s else 15))
        self.w2_dma(71, L_B, 70, 0, tag)

    def w2_early(self):
        a = self.a
        for m in range(3):
            a("s_add_u32 s%d, s%d, %d" % (sT0, sRW, 4 * m))
            if m == 2: a("s_min_u32 s%d, s%d, 9" % (sT0, sT0))
            if m >= 1: a("s_add_u32 s%d, s%d, 4" % (sT0, sT0))
            self.w2_slot_dma("w2e")

    def m_regionA(self):
        a = self.a
        self.w2_voff()
        a("s_lshr_b32 s75, s%d, 1" % sRW)
        a("s_and_b32 s76, s%d, 1" % sRW)
        a("s_mul_i32 s70, s75, %d" % (22 * self.KS))
        self.m_sync(12)
        a("s_mul_i32 s71, s75, %d" % (NA_H * 4096))
        a("s_add_u32 s71, s71, %d" % L_A)
        a("s_lshl_b32 s4, s76, 12")
        a("s_add_u32 s71, s71, s4")
        a("s_lshl_b32 s4, s76, %d" % (12 if self.w2s else 15))
        a("s_add_u32 s70, s70, s4")
        for m in range(3):
            self.w2_dma(71, 8192 * m, 70, 13 + 2 * m, "w2a")

    def n_after_w2a_min(self):
        return (0 if self.noflags else 1) + 4 + 1

    def m_tail(self):
        a = self.a
        self.m_regionA()
        a.wait_vm("yst")
        if not self.noflags:
            a("s_lshl_b32 s4, s%d, 7" % sID)
            a("s_lshl_b32 s5, s%d, 2" % sRW)
            a("s_add_u32 s4, s4, s5")
            a("s_add_u32 s%d, s4, 0x%x" % (sT2, F_H3))
            self.flag_store(sT2, "flag", 2, 3)
        self.stamp(21)
        a("s_mov_b32 s5, %d" % (L_SYNC + 56))
        self.lds_wait(5, 4)
        a("s_mul_i32 s71, s75, %d" % B_HALF)
        a("s_lshl_b32 s4, s76, 12")
        a("s_add_u32 s71, s71, s4")
        if L_B: a("s_add_u32 s71, s71, %d" % L_B)
        self.w2_dma(71, 0, 70, 19, "w2l")
        skl = a.newlabel("L_ml")
        a("s_cmp_eq_u32 s76, 1")
        a("s_cbranch_scc1 %s" % skl)
        self.w2_dma(71, 8192, 70, 21, "w2l")
        a.label(skl)
        self.final_x_load(240, 244)
        a("s_waitcnt vmcnt(%d)" % min(a.vm.count_after("w2a") - (0), 63) if False else "s_waitcnt vmcnt(%d)" % self.n_after_w2a_min())
        self.stamp(18)
        a("s_barrier")
        a("s_waitcnt vmcnt(0)")
        a("s_barrier")
        if not self.noflags and "noh3" not in self.exp:
            a("s_lshl_b32 s%d, s%d, 12" % (sT0, sD))
            a("s_add_u32 s%d, s%d, 0x%x" % (sT0, sT0, F_H3))
            self.poll(sT0, 32, 4, 128)
        self.stamp(7)
        a("v_lshrrev_b32 v3, 2, v0")
        a("v_and_b32 v4, 3, v0")
        a("v_lshlrev_b32 v5, 7, v3")
        a("v_lshl_add_u32 v5, v4, 5, v5")
        a("s_lshl_b32 s%d, s%d, 16" % (sT0, sR))
        a("s_lshl_b32 s%d, s%d, 13" % (sT1, sD))
        a("s_add_u32 s%d, s%d, s%d" % (sT0, sT0, sT1))
        a("s_add_u32 s%d, s%d, 0x%x" % (sT0, sT0, WS_YT))
        a("v_add_u32 v5, s%d, v5" % sT0)
        a.vmem("buffer_load_dwordx4 v[20:23], v5, s[%d:%d], 0 offen sc1" % (S_WS, S_WS + 3), "y")
        a.vmem("buffer_load_dwordx4 v[24:27], v5, s[%d:%d], 0 offen offset:16 sc1" % (S_WS, S_WS + 3), "y")
        a("v_mul_u32_u24 v6, 144, v3")
        a("v_lshl_add_u32 v6, v4, 5, v6")
        a("v_add_u32 v6, %d, v6" % L_Y)
        a("s_waitcnt vmcnt(0)")
        a("ds_write_b128 v6, v[20:23]")
        a("ds_write_b128 v6, v[24:27] offset:16")
        a.lg0()
        a("s_barrier")

    def final_x_load(self, xr, ar):
        a = self.a
        a("s_and_b32 s%d, s%d, 3" % (sT0, sW))
        a("s_lshl_b32 s%d, s%d, 4" % (sT0, sT0))
        a("s_lshl_b32 s%d, s%d, 6" % (sT1, sR))
        a("s_add_u32 s%d, s%d, s%d" % (sT0, sT0, sT1))
        a("s_lshl_b32 s%d, s%d, 10" % (sT0, sT0))
        a("s_lshl_b32 s%d, s%d, 7" % (sT1, sD))
        a("s_add_u32 s%d, s%d, s%d" % (sT0, sT0, sT1))
        a("s_lshr_b32 s%d, s%d, 2" % (sT1, sW))
        a("s_lshl_b32 s%d, s%d, 6" % (sT1, sT1))
        a("s_add_u32 s%d, s%d, s%d" % (sT0, sT0, sT1))
        a("v_lshrrev_b32 v2, 2, v1")
        a("v_lshlrev_b32 v2, 10, v2")
        a("v_and_b32 v3, 3, v1")
        a("v_lshl_add_u32 v2, v3, 4, v2")
        a("v_add_u32 v%d, s%d, v2" % (ar, sT0))
        a.vmem("buffer_load_dwordx4 v[%d:%d], v%d, s[%d:%d], 0 offen" % (xr, xr + 3, ar, S_X, S_X + 3), "xf")

    def u_slow(self):
        a = self.a
        a.label("L_uslow")
        a("s_lshl_b32 s%d, s%d, 12" % (sT0, sC))
        a("s_add_u32 s%d, s%d, 0x%x" % (sT0, sT0, F_H1))
        self.poll(sT0, 32, 1, 128)
        for i in range(4):
            a("buffer_load_dwordx4 v[%d:%d], v172, s[%d:%d], 0 offen offset:%d sc1" % (152 + 4 * i, 155 + 4 * i, S_WS, S_WS + 3, 1024 * i))
        a("s_waitcnt vmcnt(0)")
        for i in range(4):
            a("ds_write_b128 v174, v[%d:%d] offset:%d" % (152 + 4 * i, 155 + 4 * i, 1024 * i))
        a("s_waitcnt lgkmcnt(0)")
        a("s_branch L_uback")

    NEGM, RS, NMRS = 100, 101, 102
    def norm2(self, X, t):
        L = []
        L.append("v_lshlrev_b32 v%d, 16, v%d" % (t + 0, X))
        L.append("v_and_b32 v%d, v%d, v%d" % (t + 1, vMHI, X))
        L.append("v_lshlrev_b32 v%d, 16, v%d" % (t + 2, X + 1))
        L.append("v_and_b32 v%d, v%d, v%d" % (t + 3, vMHI, X + 1))
        if self.relax_ln:
            for i in range(4):
                L.append("v_fma_f32 v%d, v%d, v%d, v%d" % (t + i, t + i, self.RS, self.NMRS))
        else:
            for i in range(4):
                L.append("v_add_f32 v%d, v%d, v%d" % (t + i, t + i, self.NEGM))
            L.append("v_cvt_pk_bf16_f32 v%d, v%d, v%d" % (t + 4, t + 0, t + 1))
            L.append("v_cvt_pk_bf16_f32 v%d, v%d, v%d" % (t + 5, t + 2, t + 3))
            L.append("v_lshlrev_b32 v%d, 16, v%d" % (t + 0, t + 4))
            L.append("v_and_b32 v%d, v%d, v%d" % (t + 1, vMHI, t + 4))
            L.append("v_lshlrev_b32 v%d, 16, v%d" % (t + 2, t + 5))
            L.append("v_and_b32 v%d, v%d, v%d" % (t + 3, vMHI, t + 5))
            for i in range(4):
                L.append("v_mul_f32 v%d, v%d, v%d" % (t + i, t + i, self.RS))
        L.append("v_cvt_pk_bf16_f32 v%d, v%d, v%d" % (X, t + 0, t + 1))
        L.append("v_cvt_pk_bf16_f32 v%d, v%d, v%d" % (X + 1, t + 2, t + 3))
        return L

    def norm_chunk(self, j):
        a = self.a
        X = 20 + 8 * j
        for half in range(2):
            s1 = self.norm2(X + 4 * half, 104); s2 = self.norm2(X + 4 * half + 2, 110)
            for x, y in zip(s1, s2):
                a(x); a(y)
            a.lds("ds_write_b128 v116, v[%d:%d] offset:%d" % (X + 4 * half, X + 4 * half + 3, L_XN + (j % NXN) * 8192 + half * 1024), "xw")

    def h_first(self):
        a = self.a
        self.vm_m_first = a.vm
        a.vm = Q(["cpf"] if "codepf0" in self.exp else [])
        a.label("L_Hfirst")
        self.rot_calc()
        a("s_lshl_b32 s%d, s%d, 16" % (sT0, sR))
        a("s_lshl_b32 s%d, s%d, 14" % (sT1, sRW))
        a("s_add_u32 s%d, s%d, s%d" % (sT0, sT0, sT1))
        a("v_lshrrev_b32 v6, 2, v1")
        a("v_lshlrev_b32 v6, 10, v6")
        a("v_and_b32 v7, 3, v1")
        a("v_lshl_add_u32 v6, v7, 4, v6")
        a("v_add_u32 v6, s%d, v6" % sT0)
        a("s_lshl_b32 s%d, s%d, 7" % (sT0, sROT))
        a("s_waitcnt lgkmcnt(0)")
        a("s_mov_b64 s[8:9], s[64:65]")
        if self.stamps:
            a("s_memrealtime s[4:5]"); a("s_waitcnt lgkmcnt(0)"); a("v_writelane_b32 v255, s4, 0")
        for j in range(8):
            if j:
                a("s_add_u32 s%d, s%d, 128" % (sT0, sT0))
                a("s_and_b32 s%d, s%d, 1023" % (sT0, sT0))
            a.vmem("buffer_load_dwordx4 v[%d:%d], v6, s[%d:%d], s%d offen" % (20 + 8 * j, 23 + 8 * j, S_X, S_X + 3, sT0), "x%d" % j)
            a.vmem("buffer_load_dwordx4 v[%d:%d], v6, s[%d:%d], s%d offen offset:64" % (24 + 8 * j, 27 + 8 * j, S_X, S_X + 3, sT0), "x%d" % j)
        a("s_branch L_H")
        self.vm_h_first = a.vm

    def h_front(self):
        a = self.a
        a.vm = self.vm_h_first; a.lg_clear()
        self.p0_rest()
        a("s_waitcnt lgkmcnt(0)")
        if "tlbpf" in self.exp:
            a("v_lshlrev_b32 v2, 19, v1")
            a("v_cmp_gt_u32 vcc, 28, v1")
            a("v_mov_b32 v3, 0x40000000")
            a("v_cndmask_b32 v2, v3, v2, vcc")
            a.vmem("buffer_load_dword v245, v2, s[%d:%d], 0 offen" % (S_WS, S_WS + 3), "tlb")
            a("v_lshlrev_b32 v2, 19, v1")
            a.vmem("buffer_load_dword v246, v2, s[%d:%d], 0 offen" % (S_OUT, S_OUT + 3), "tlb")
            a.vmem("buffer_load_dword v247, v2, s[%d:%d], 0 offen" % (S_W2, S_W2 + 3), "tlb")
            a.vmem("buffer_load_dword v243, v2, s[%d:%d], 0 offen" % (S_SSM, S_SSM + 3), "tlb")
        if self.w2s:
            a("s_lshl_b32 s%d, s2, 13" % sT2)
            a("v_and_b32 v2, 255, v0")
            a("v_lshlrev_b32 v3, 4, v2")
            a("v_add_u32 v3, s%d, v3" % sT2)
            a("s_cmp_lt_u32 s2, 172")
            a("s_cselect_b32 s86, 0, 0x40000000")
            a.vmem("buffer_load_dwordx4 v[224:227], v3, s[%d:%d], s86 offen" % (S_W2, S_W2 + 3), "w2sl")
            a("v_add_u32 v3, 4096, v3")
            a.vmem("buffer_load_dwordx4 v[228:231], v3, s[%d:%d], s86 offen" % (S_W2, S_W2 + 3), "w2sl")
            a("v_bfe_u32 v4, v2, 3, 3")
            a("v_mul_u32_u24 v4, 176128, v4")
            a("v_lshrrev_b32 v5, 6, v2")
            a("v_lshl_add_u32 v4, v5, 7, v4")
            a("v_and_b32 v5, 7, v2")
            a("v_lshl_add_u32 v4, v5, 4, v4")
            a("s_lshl_b32 s%d, s2, 10" % sT2)
            a("s_add_u32 s%d, s%d, 0x%x" % (sT2, sT2, WS_W2S))
            a("v_add_u32 v232, s%d, v4" % sT2)
        if "codepf" in self.exp:
            a("s_getpc_b64 s[82:83]")
            a.label("L_pc")
            a("s_sub_u32 s82, s82, L_pc-%s" % KNAME)
            a("s_subb_u32 s83, s83, 0")
            a("v_lshlrev_b32 v2, 7, v1")
            a("s_lshl_b32 s84, s%d, 13" % sRW)
            a("v_add_u32 v2, s84, v2")
            a("v_min_u32 v2, L_codeend-%s, v2" % KNAME)
            a("v_mov_b32 v3, s83")
            a("v_add_co_u32 v2, vcc, s82, v2")
            a("v_addc_co_u32 v3, vcc, 0, v3, vcc")
            a.vmem("global_load_dword v244, v[2:3], off", "cpf")
        a("s_waitcnt lgkmcnt(0)")
        a("s_barrier")

        if "V3" in self.exp:
            self.w1_voffs()
            for f in self.w1_dma_ops(0) + self.w1_dma_ops(1): f()
        a("s_setprio 0")
        if not self.noflags:
            a("v_mov_b32 v7, 0")
        a("v_lshrrev_b32 v4, 2, v1")
        a("v_and_b32 v5, 3, v1")
        a("v_lshlrev_b32 v2, 1, v5")
        a("v_xor_b32 v4, v4, v2")
        a("v_lshlrev_b32 v4, 4, v4")
        a("v_lshl_add_u32 v4, v5, 8, v4")
        a("s_lshl_b32 s%d, s%d, 11" % (sT2, sRW))
        a("v_add_u32 v116, s%d, v4" % sT2)

    def h_ssm_load(self):
        a = self.a
        a("s_lshl_b32 s%d, s%d, 6" % (sT2, sC))
        a("s_lshl_b32 s%d, s%d, 1" % (sT1, sR))
        a("s_add_u32 s%d, s%d, s%d" % (sT2, sT2, sT1))
        a("s_lshl_b32 s%d, s%d, 12" % (sT2, sT2))
        a("v_and_b32 v3, 255, v0")
        a("v_lshlrev_b32 v3, 4, v3")
        a("v_add_u32 v2, s%d, v3" % sT2)
        a("v_add_u32 v4, -8, v2")
        for ch in range(2):
            a.vmem("buffer_load_dwordx2 v[%d:%d], v4, s[%d:%d], 0 offen" % (84 + 6 * ch, 85 + 6 * ch, S_SSM, S_SSM + 3), "ssm")
            a.vmem("buffer_load_dwordx4 v[%d:%d], v2, s[%d:%d], 0 offen" % (86 + 6 * ch, 89 + 6 * ch, S_SSM, S_SSM + 3), "ssm")
            if ch == 0:
                a("v_add_u32 v2, 4096, v2")
                a("v_add_u32 v4, 4096, v4")

    def h_stats(self):
        a = self.a
        X = 20
        for i in range(8): a("v_mov_b32 v%d, 0" % (104 + i))
        for i in range(64):
            if i % 8 == 0:
                a.wait_vm("x%d" % (i // 8))
                if i == 0: self.stamp(13)
            a("v_dot2_f32_bf16 v%d, v%d, v%d, v%d" % (104 + (i & 3), X + i, vONES, 104 + (i & 3)))
            a("v_dot2_f32_bf16 v%d, v%d, v%d, v%d" % (108 + (i & 3), X + i, X + i, 108 + (i & 3)))
        a("v_add_f32 v104, v104, v105"); a("v_add_f32 v106, v106, v107")
        a("v_add_f32 v108, v108, v109"); a("v_add_f32 v110, v110, v111")
        a("v_add_f32 v2, v104, v106"); a("v_add_f32 v3, v108, v110")
        for ctl in ("quad_perm:[1,0,3,2]", "quad_perm:[2,3,0,1]"):
            a("v_add_f32_dpp v2, v2, v2 %s row_mask:0xf bank_mask:0xf" % ctl)
            a("v_add_f32_dpp v3, v3, v3 %s row_mask:0xf bank_mask:0xf" % ctl)
        a("v_mul_f32 v2, 0x3b000000, v2")
        a("v_mul_f32 v3, 0x3b000000, v3")
        a("v_cvt_pk_bf16_f32 v4, v2, v2")
        a("v_fma_f32 v3, -v2, v2, v3")
        a("v_lshlrev_b32 v4, 16, v4")
        a("v_max_f32 v3, 0, v3")
        a("v_cvt_pk_bf16_f32 v3, v3, v3")
        a("v_lshlrev_b32 v3, 16, v3")
        a("v_add_f32 v3, 0x3727c5ac, v3")
        a("v_cvt_pk_bf16_f32 v3, v3, v3")
        a("v_lshlrev_b32 v3, 16, v3")
        a("v_sqrt_f32 v3, v3")
        a("v_cvt_pk_bf16_f32 v3, v3, v3")
        a("v_lshlrev_b32 v3, 16, v3")
        a("v_rcp_f32 v%d, v3" % self.RS)
        a("v_sub_f32 v%d, 0, v4" % self.NEGM)
        a("v_mul_f32 v%d, v%d, v%d" % (self.NMRS, self.NEGM, self.RS))
        a("v_lshrrev_b32 v6, 2, v1")
        a("s_lshl_b32 s%d, s%d, 4" % (sT2, sRW))
        a("v_add_u32 v6, s%d, v6" % sT2)
        a("v_lshlrev_b32 v5, 3, v6")
        a("v_add_u32 v5, %d, v5" % L_STATS)
        a("v_mov_b32 v2, v4")
        a("v_mov_b32 v3, v%d" % self.RS)
        a.lds("ds_write_b64 v5, v[2:3]", "st")

    def h_tbuild(self, ch):
        a = self.a
        D = 84 + 6 * ch
        E = 118
        for p in range(5):
            a("v_alignbit_b32 v%d, v%d, v%d, 16" % (E + p, D + p + 1, D + p))
        for p in range(4):
            a("v_mov_b32 v%d, v%d" % (124 + p, D + 1 + p))
            a("v_mov_b32 v%d, v%d" % (128 + p, E + 1 + p))
        a("v_and_b32 v3, 255, v0")
        a("v_lshlrev_b32 v3, 4, v3")
        a("v_add_u32 v3, %d, v3" % (L_T + ch * T_CH + 24))
        a("ds_write_b128 v3, v[118:121]")
        a("ds_write_b128 v3, v[124:127] offset:%d" % T_CP)
        a("ds_write_b128 v3, v[128:131] offset:%d" % (2 * T_CP))
        a("ds_write_b128 v3, v[%d:%d] offset:%d" % (D + 2, D + 5, 3 * T_CP))

    def w2flag_loads(self, tag):
        a = self.a
        for i in range(3):
            a("v_add_u32 v3, %d, v1" % (64 * i))
            if i == 2:
                a("v_cmp_gt_u32 vcc, 172, v3")
                a("v_cndmask_b32 v3, 0, v3, vcc")
            a("v_lshlrev_b32 v3, 7, v3")
            a("v_add_u32 v3, 0x%x, v3" % F_H4)
            ins = "buffer_load_dword v%d, v3, s[%d:%d], 0 offen sc1" % (100 + i, S_WS, S_WS + 3)
            if tag: a.vmem(ins, tag)
            else: a(ins)

    def w2flag_check(self):
        a = self.a
        for i in range(3): a("v_xor_b32 v%d, s%d, v%d" % (104 + i, sNONCE, 100 + i))
        a("v_or3_b32 v104, v104, v105, v106")
        a("v_cmp_ne_u32 vcc, 0, v104")

    def h_uload(self):
        a = self.a
        if self.noflags: a.wait_vm("ssm")
        if not self.noflags:
            dn = a.newlabel("L_h1ok")
            a.wait_vm("h1f")
            for i in range(4): a("v_xor_b32 v%d, s%d, v%d" % (96 + i, sNONCE, 96 + i))
            a("v_or3_b32 v96, v96, v97, v98")
            a("v_or_b32 v96, v96, v99")
            a("v_cmp_ne_u32 vcc, 0, v96")
            a("s_cbranch_vccz %s" % dn)
            a("s_lshl_b32 s%d, s%d, 12" % (sT0, sC))
            a("s_add_u32 s%d, s%d, 0x%x" % (sT0, sT0, F_H1))
            self.poll(sT0, 32, 4, 128)
            a.label(dn)
        self.stamp(3)
        a("s_lshl_b32 s%d, s%d, 6" % (sT0, sC))
        a("s_lshl_b32 s%d, s%d, 1" % (sT1, sR))
        a("s_add_u32 s%d, s%d, s%d" % (sT0, sT0, sT1))
        a("s_lshl_b32 s%d, s%d, 12" % (sT0, sT0))
        a("s_lshl_b32 s%d, s%d, 11" % (sT1, sRW))
        a("s_add_u32 s%d, s%d, s%d" % (sT0, sT0, sT1))
        a("v_lshlrev_b32 v4, 4, v1")
        a("v_add_u32 v5, s%d, v4" % sT0)
        a.vmem("buffer_load_dwordx4 v[20:23], v5, s[%d:%d], 0 offen sc1" % (S_WS, S_WS + 3), "u")
        a.vmem("buffer_load_dwordx4 v[24:27], v5, s[%d:%d], 0 offen offset:1024 sc1" % (S_WS, S_WS + 3), "u")
        self.h_tbuild(0)
        self.h_tbuild(1)
        if "w2early" in self.exp:
            self.w2_voff()
            self.w2_early()
        a("v_lshlrev_b32 v4, 4, v1")
        a("s_lshr_b32 s%d, s%d, 1" % (sT0, sRW))
        a("s_mul_i32 s%d, s%d, %d" % (sT0, sT0, U_CH))
        a("s_and_b32 s%d, s%d, 1" % (sT1, sRW))
        a("s_lshl_b32 s%d, s%d, 11" % (sT2, sT1))
        a("s_add_u32 s%d, s%d, s%d" % (sT0, sT0, sT2))
        a("s_add_u32 s%d, s%d, %d" % (sT0, sT0, L_U))
        a("v_add_u32 v6, s%d, v4" % sT0)
        for i in range(4): a("v_mov_b32 v%d, 0" % (28 + i))
        a("s_cmp_eq_u32 s%d, 1" % sT1)
        a("s_cselect_b32 exec_lo, -1, 0")
        a("s_mov_b32 exec_hi, 0")
        a("ds_write_b128 v6, v[28:31] offset:2048")
        a("s_mov_b64 exec, -1")
        a.wait_vm("u")
        a("ds_write_b128 v6, v[20:23]")
        a("ds_write_b128 v6, v[24:27] offset:1024")

    def norm_seq(self, j):
        a = self.a
        X = 20 + 8 * j
        seq = []
        for half in range(2):
            s1 = self.norm2(X + 4 * half, 104); s2 = self.norm2(X + 4 * half + 2, 110)
            if "hnonorm" in self.exp and j >= 2:
                s1 = ["s_nop 0"] * 8; s2 = ["s_nop 0"] * 8
            for x, y in zip(s1, s2):
                seq.append(x); seq.append(y)
            if "wmid" in self.exp:
                seq.append(lambda half=half: a.lds("ds_write_b128 v116, v[%d:%d] offset:%d" % (X + 4 * half, X + 4 * half + 3, L_XN + (j % NXN) * 8192 + half * 1024), "xw%d" % j))
        if not ("hnowrite" in self.exp and j >= 2) and "wmid" not in self.exp:
            for half in range(2):
                seq.append(lambda half=half: a.lds("ds_write_b128 v116, v[%d:%d] offset:%d" % (X + 4 * half, X + 4 * half + 3, L_XN + (j % NXN) * 8192 + half * 1024), "xw%d" % j))
        return seq

    def h_gemm1_side(self):
        a = self.a
        if self.w2s:
            a.wait_vm("w2sl")
            a.vmem("buffer_store_dwordx4 v[224:227], v232, s[%d:%d], s86 offen sc1" % (S_WS, S_WS + 3), "w2st")
            a.vmem("buffer_store_dwordx4 v[228:231], v232, s[%d:%d], s86 offen offset:512 sc1" % (S_WS, S_WS + 3), "w2st")
        if "hprio" in self.exp: a("s_setprio 2")
        if "lnpre" in self.exp:
            def split(j):
                sq = self.norm_seq(j)
                return sq[:-2], sq[-2:]
            wr = {}
            for j in range(8):
                v_, w_ = split(j)
                for x in v_: self.run(x)
                if j < 4:
                    for x in w_: self.run(x)
                else:
                    wr[j] = w_
                if j == 1 and not self.noflags:
                    a.vmem("buffer_load_dword v19, v7, s[%d:%d], 0 offen sc1" % (S_DBG, S_DBG + 3), "nonce")
            a.need_lds("xw0", "xw1")
            a("s_barrier")
        else:
            for x in self.norm_seq(0): self.run(x)
            s1 = self.norm_seq(1)
            h = len(s1) // 2
            for x in s1[:h]: self.run(x)
            for x in s1[h:]: self.run(x)
            if not self.noflags:
                a.vmem("buffer_load_dword v19, v7, s[%d:%d], 0 offen sc1" % (S_DBG, S_DBG + 3), "nonce")
            s2 = self.norm_seq(2)
            for x in s2[:h]: self.run(x)
            a.need_lds("xw0", "xw1")
            if "V3" in self.exp: a.wait_vm("w1c1")
            a("s_barrier")
            for x in s2[h:]: self.run(x)
        for j in range(8):
            if "lnpre" in self.exp:
                if j >= 1 and j + 3 <= 7:
                    for x in wr[j + 3]: self.run(x)
            elif j + 3 <= 7:
                for x in self.norm_seq(j + 3): self.run(x)
            if j == self.pf2j and "pf2" in self.exp: self.line_prefetch("w2", 242)
            if j == 1: self.h_ssm_load()
            if j == (self.w2j if self.w2s else 4) and not self.noflags:
                self.get_nonce()
            if j == 5:
                if not self.noflags:
                    a("s_lshl_b32 s%d, s%d, 12" % (sT0, sC))
                    a("s_add_u32 s%d, s%d, 0x%x" % (sT0, sT0, F_H1))
                    a("v_and_b32 v2, 31, v1")
                    a("v_lshlrev_b32 v2, 7, v2")
                    a("v_add_u32 v2, s%d, v2" % sT0)
                if self.w2s:
                    skf = a.newlabel("L_w2f")
                    a("s_cmp_lg_u32 s%d, 0" % sRW)
                    a("s_cbranch_scc1 %s" % skf)
                    self.w2flag_loads(tag=None)
                    a.label(skf)
                if not self.noflags:
                    a.vmem("buffer_load_dwordx4 v[96:99], v2, s[%d:%d], 0 offen sc1" % (S_WS, S_WS + 3), "h1f")
            if j + 1 <= 6:
                if j + 2 <= 7 and "hnowrite" not in self.exp: a.need_lds("xw%d" % (j + 2))
                if j == self.w2j and self.w2s: a.wait_vm("w2st")
                a("s_barrier")
                if j == self.w2j and self.w2s:
                    sk = a.newlabel("L_w2c")
                    a("s_cmp_lt_u32 s2, 172")
                    a("s_cselect_b32 s4, s%d, 1" % sRW)
                    a("s_cmp_lg_u32 s4, 0")
                    a("s_cbranch_scc1 %s" % sk)
                    a("s_lshl_b32 s4, s2, 7")
                    a("s_add_u32 s%d, s4, 0x%x" % (sT2, F_H4))
                    q = list(a.vm.q)
                    self.flag_store(sT2, "flag", 2, 3)
                    a.vm.q = q
                    a.label(sk)
                if "itst" in self.exp: self.stamp(23 + j)
        if "hprio" in self.exp: a("s_setprio 0")
        self.h_uload()
        if self.w2s:
            lp = a.newlabel("L_w2p"); dn = a.newlabel("L_w2d")
            a("s_cmp_lg_u32 s%d, 0" % sRW)
            a("s_cbranch_scc1 %s" % dn)
            a("s_mov_b32 s%d, 0" % sT3)
            a.label(lp)
            self.w2flag_check()
            a("s_cbranch_vccz %s" % dn)
            self.w2flag_loads(tag=None)
            a("s_waitcnt vmcnt(0)")
            a("s_add_u32 s%d, s%d, 1" % (sT3, sT3))
            a("s_cmp_lt_u32 s%d, 100000" % sT3)
            a("s_cbranch_scc1 %s" % lp)
            if "pf4" in self.exp:
                lok = a.newlabel("L_w2ok")
                a.lines.pop()
                a("s_cbranch_scc1 %s" % lp)
            a.label(dn)
            if "pf4" in self.exp:
                skp = a.newlabel("L_pf4")
                a("s_cmp_lg_u32 s%d, 0" % sRW)
                a("s_cbranch_scc1 %s" % skp)
                a("s_lshr_b32 s%d, s2, 3" % sT0)
                if "map42" in self.exp:
                    a("s_mul_i32 s%d, s%d, %d" % (sT0, sT0, 172 * 128))
                    a("s_bfe_u32 s%d, s2, 0x10002" % sT1)
                    a("s_mul_i32 s%d, s%d, %d" % (sT1, sT1, 4 * 176128))
                    a("s_add_u32 s%d, s%d, s%d" % (sT0, sT0, sT1))
                    nl = 172
                else:
                    a("s_mul_i32 s%d, s%d, %d" % (sT0, sT0, 344 * 128))
                    nl = 344
                a("s_add_u32 s%d, s%d, 0x%x" % (sT0, sT0, WS_W2S))
                for i in range((nl + 63) // 64):
                    a("v_add_u32 v3, %d, v1" % (64 * i))
                    a("v_min_u32 v3, %d, v3" % (nl - 1))
                    a("v_lshlrev_b32 v3, 7, v3")
                    a("v_add_u32 v3, s%d, v3" % sT0)
                    a("buffer_load_dword v%d, v3, s[%d:%d], 0 offen sc1" % (240 + (i & 3), S_WS, S_WS + 3))
                a.label(skp)
        self.w2_voff()
        a.lg0()
        a("s_barrier")
        self.stamp(2)

    def h_gemm2(self):
        a = self.a
        HF, ACC = 20, 196
        WBUF = [228, 2]
        AB = 244
        PF = 10
        a("s_lshr_b32 s75, s%d, 1" % sRW)
        a("s_and_b32 s76, s%d, 1" % sRW)
        if "poller3" in self.exp:
            lp3 = a.newlabel("L_hp3"); lgo = a.newlabel("L_hgo")
            a("s_cmp_eq_u32 s%d, 3" % sRW)
            a("s_cbranch_scc1 %s" % lp3)
            q0 = list(a.vm.q)
            for m in range(9):
                a("s_add_u32 s%d, s%d, %d" % (sT0, sRW, 3 * m))
                if m == 8: a("s_min_u32 s%d, s%d, 25" % (sT0, sT0))
                a("s_lshr_b32 s%d, s%d, 1" % (sT1, sT0))
                a("s_and_b32 s%d, s%d, 1" % (sT0, sT0))
                a("s_mul_i32 s71, s%d, %d" % (sT0, NB_H))
                a("s_add_u32 s71, s71, s%d" % sT1)
                a("s_lshl_b32 s71, s71, 12")
                a("s_mul_i32 s70, s%d, 22" % sT0)
                a("s_add_u32 s70, s70, s%d" % sT1)
                a("s_lshl_b32 s70, s70, %d" % (12 if self.w2s else 15))
                self.w2_dma(71, L_B, 70, 0, "w2b")
            a("s_branch %s" % lgo)
            a.label(lp3)
            if not self.noflags:
                a("s_lshl_b32 s%d, s%d, 10" % (sT0, sR))
                a("s_add_u32 s%d, s%d, 0x%x" % (sT0, sT0, F_H2))
                self.poll(sT0, 8, 4, 128)
            a("v_mov_b32 v2, %d" % (L_SYNC + 60))
            a("v_mov_b32 v3, 1")
            a("ds_write_b32 v2, v3")
            a.label(lgo)
        else:
            def w2b_slot(m):
                a("s_add_u32 s%d, s%d, %d" % (sT0, sRW, 4 * m))
                if m == 6: a("s_min_u32 s%d, s%d, 25" % (sT0, sT0))
                a("s_lshr_b32 s%d, s%d, 1" % (sT1, sT0))
                a("s_and_b32 s%d, s%d, 1" % (sT0, sT0))
                a("s_mul_i32 s71, s%d, %d" % (sT0, NB_H))
                a("s_add_u32 s71, s71, s%d" % sT1)
                a("s_lshl_b32 s71, s71, 12")
                a("s_mul_i32 s70, s%d, 22" % sT0)
                a("s_add_u32 s70, s70, s%d" % sT1)
                a("s_lshl_b32 s70, s70, %d" % (12 if self.w2s else 15))
                self.w2_dma(71, L_B, 70, 0, "w2b" if m < self.w2p1 else "w2b2")
            self.w2b_slot = w2b_slot
            if "w2early" in self.exp:
                for m in range(4):
                    a("s_add_u32 s%d, s%d, %d" % (sT0, sRW, 4 * m + (4 if m == 0 else 10)))
                    self.w2_slot_dma("w2b")
            else:
                for m in range(self.w2p1):
                    w2b_slot(m)
        a("s_lshl_b32 s%d, s%d, 2" % (sT2, sR))
        a("s_lshl_b32 s4, s76, 1")
        a("s_add_u32 s%d, s%d, s4" % (sT2, sT2))
        a("s_mul_i32 s%d, s%d, 44032" % (sT2, sT2))
        a("s_mul_i32 s4, s75, %d" % (22 * 1024))
        a("s_add_u32 s%d, s%d, s4" % (sT2, sT2))
        a("s_add_u32 s%d, s%d, 0x%x" % (sT2, sT2, WS_H))
        a("v_lshlrev_b32 v18, 4, v1")
        a("v_add_u32 v18, s%d, v18" % sT2)
        a("v_add_u32 v19, 44032, v18")
        a("v_lshrrev_b32 v2, 4, v1")
        a("v_and_b32 v3, 15, v1")
        a("v_lshrrev_b32 v3, 2, v3")
        a("v_lshrrev_b32 v4, 1, v2")
        a("v_lshlrev_b32 v4, 4, v4")
        a("v_and_b32 v5, 1, v2")
        a("v_lshl_add_u32 v4, v5, 2, v4")
        a("v_add_u32 v4, v4, v3")
        a("v_lshlrev_b32 v4, 7, v4")
        a("v_and_b32 v6, 1, v1")
        a("v_lshl_add_u32 v4, v6, 3, v4")
        a("v_lshlrev_b32 v5, 1, v5")
        a("v_lshrrev_b32 v6, 1, v3")
        a("v_add_u32 v5, v5, v6")
        a("v_lshlrev_b32 v5, 1, v5")
        a("v_and_b32 v6, 3, v1")
        a("v_lshrrev_b32 v6, 1, v6")
        a("s_mul_i32 s4, s75, %d" % B_HALF)
        if L_B: a("s_add_u32 s4, s4, %d" % L_B)
        for b in range(4):
            a("v_add_u32 v7, %d, v6" % (2 * b))
            a("v_xor_b32 v7, v7, v5")
            a("v_lshl_add_u32 v7, v7, 4, v4")
            a("v_add_u32 v%d, s4, v7" % (AB + b))
        a("s_mul_i32 s5, s75, %d" % (NA_H * 4096))
        a("s_add_u32 s5, s5, %d" % L_A)
        a("s_sub_u32 s77, s5, s4")
        a("s_sub_u32 s79, s4, s5")
        for i in range(32): a("v_mov_b32 v%d, 0" % (ACC + i))
        if "poller3" in self.exp:
            a("s_mov_b32 s5, %d" % (L_SYNC + 60))
            self.lds_wait(5, 1, 253, 254)
        else:
            self.stamp(5)
            if not self.noflags and "noh2" not in self.exp:
                a("s_lshl_b32 s%d, s%d, 10" % (sT0, sR))
                a("s_add_u32 s%d, s%d, 0x%x" % (sT0, sT0, F_H2))
                self.poll(sT0, 8, 4, 128)
        self.stamp(6)

        def hload(i):
            ops = []
            for t in range(2):
                def f(t=t):
                    r = HF + (i * 2 + t) * 4
                    so = i * 1024
                    if so < 4096:
                        a.vmem("buffer_load_dwordx4 v[%d:%d], v%d, s[%d:%d], 0 offen offset:%d sc1" % (r, r + 3, 18 + t, S_WS, S_WS + 3, so), "h%d" % i)
                    else:
                        if t == 0: a("s_mov_b32 s80, %d" % (so & ~4095))
                        a.vmem("buffer_load_dwordx4 v[%d:%d], v%d, s[%d:%d], s80 offen offset:%d sc1" % (r, r + 3, 18 + t, S_WS, S_WS + 3, so & 4095), "h%d" % i)
                ops.append(f)
            return ops

        def read_ops(i):
            buf = WBUF[i & 1]
            if i < 13: so = i * 4096
            elif i < 19: so = (i - 13) * 4096
            else: so = (i - 19) * 4096
            ops = []
            sw = {13: 77, 19: 79}.get(i)
            if sw:
                for b in range(4): ops.append("v_add_u32 v%d, s%d, v%d" % (AB + b, sw, AB + b))
            for b in range(4):
                for hh in range(2):
                    r0 = buf + 4 * b + 2 * hh
                    ops.append(lambda r0=r0, b=b, hh=hh: a.lds("ds_read_b64_tr_b16 v[%d:%d], v%d offset:%d" % (r0, r0 + 1, AB + b, so + hh * 1024), "w%d_%d" % (i, b)))
            return ops

        def mfma_ops(i):
            buf = WBUF[i & 1]
            ops = []
            for b in range(4):
                for t in range(2):
                    def f(b=b, t=t):
                        if b == 0 and t == 0:
                            a.wait_both("h%d" % i, ["w%d_%d" % (i, bb) for bb in range(4)])
                        acc = ACC + (b * 2 + t) * 4
                        hr = HF + (i * 2 + t) * 4
                        a("v_mfma_f32_16x16x32_bf16 v[%d:%d], v[%d:%d], v[%d:%d], v[%d:%d]" % (acc, acc + 3, buf + 4 * b, buf + 4 * b + 3, hr, hr + 3, acc, acc + 3))
                    ops.append(f)
            return ops

        allh = []
        for i in range(22): allh += hload(i)
        hp = 0
        for f in allh[:self.hinit]: f()
        hp = self.hinit
        for m in range(self.w2p1, 7):
            self.w2b_slot(m)
        a("s_waitcnt vmcnt(%d)" % min(63, self.hinit + 4 * (7 - self.w2p1)))
        self.m_sync(11, va=253, vb=254)
        self.stamp(19)
        for f in read_ops(0): self.run(f)
        last = a.newlabel("L_g2l")
        for i in range(22):
            if i == 12:
                a.lg0()
                a("s_barrier")
            if i == 18:
                a.lg0()
                a("s_barrier")
            if self.w2p1 < 7 and i == 2 * self.w2p1 - 1:
                a.wait_vm("w2b2")
                self.m_sync(10, va=253, vb=254)
            if i == 4:
                a("v_mov_b32 v253, %d" % (L_SYNC + 56))
                a("v_mov_b32 v254, 1")
                a("s_mov_b64 exec, 1")
                a.lds("ds_add_u32 v253, v254", "sig")
                a("s_mov_b64 exec, -1")
            if i == 21:
                a("s_cmp_eq_u32 s75, 1")
                a("s_cbranch_scc1 %s" % last)
            fill = []
            if i < 21: fill += read_ops(i + 1)
            nl = self.hper if hp < 2 * (i + self.hwin) else 2
            nl = min(nl, len(allh) - hp)
            fill = allh[hp:hp + nl] + fill
            hp += nl
            interleave(a, mfma_ops(i), fill)
        a.label(last)
        a.lg0()
        self.stamp(22)
        a("v_and_b32 v2, 15, v1")
        a("v_lshrrev_b32 v3, 4, v1")
        a("v_mul_u32_u24 v2, 272, v2")
        a("v_lshl_add_u32 v2, v3, 4, v2")
        a("s_mul_i32 s4, s75, %d" % P_STRIDE)
        a("s_mul_i32 s5, s76, %d" % (32 * 272))
        a("s_add_u32 s4, s4, s5")
        a("s_add_u32 s4, s4, %d" % L_P)
        a("v_add_u32 v2, s4, v2")
        for b in range(4):
            for t in range(2):
                acc = ACC + (b * 2 + t) * 4
                a("ds_write_b128 v2, v[%d:%d] offset:%d" % (acc, acc + 3, t * 16 * 272 + b * 64))
        self.final_x_load(240, 244)
        a.lg0()
        a("s_barrier")

    def final(self):
        a = self.a
        P0 = L_P; P1 = L_P + P_STRIDE; YL = L_Y
        XR = 240; OA = 244
        a("s_and_b32 s%d, s%d, 3" % (sT0, sW))
        a("s_lshr_b32 s%d, s%d, 2" % (sT1, sW))
        a("v_lshrrev_b32 v2, 2, v1")
        a("v_and_b32 v3, 3, v1")
        a("s_lshl_b32 s4, s%d, 4" % sT0)
        a("v_add_u32 v2, s4, v2")
        a("v_mul_u32_u24 v4, 272, v2")
        a("v_lshl_add_u32 v4, v3, 5, v4")
        a("s_lshl_b32 s4, s%d, 7" % sT1)
        a("s_add_u32 s4, s4, %d" % P0)
        a("v_add_u32 v4, s4, v4")
        a("ds_read_b128 v[20:23], v4")
        a("ds_read_b128 v[24:27], v4 offset:16")
        a("ds_read_b128 v[28:31], v4 offset:%d" % (P1 - P0))
        a("ds_read_b128 v[32:35], v4 offset:%d" % (P1 - P0 + 16))
        a("v_lshlrev_b32 v6, 3, v2")
        a("v_add_u32 v6, %d, v6" % L_STATS)
        a("ds_read_b64 v[36:37], v6")
        a("v_lshrrev_b32 v7, 4, v1")
        a("v_lshlrev_b32 v7, 3, v7")
        a("v_and_b32 v8, 15, v1")
        a("v_lshrrev_b32 v8, 2, v8")
        a("v_add_u32 v7, v7, v8")
        a("s_lshl_b32 s4, s%d, 5" % sT1)
        a("v_add_u32 v7, s4, v7")
        a("v_mul_u32_u24 v7, 144, v7")
        a("v_and_b32 v8, 3, v1")
        a("v_lshl_add_u32 v7, v8, 3, v7")
        a("s_lshl_b32 s4, s%d, 5" % sT0)
        a("s_add_u32 s4, s4, %d" % YL)
        a("v_add_u32 v7, s4, v7")
        a("ds_read_b64_tr_b16 v[38:39], v7")
        a("ds_read_b64_tr_b16 v[40:41], v7 offset:%d" % (4 * 144))
        a("v_and_b32 v8, 3, v1")
        a("v_lshlrev_b32 v8, 4, v8")
        a("v_lshrrev_b32 v9, 2, v1")
        a("v_or_b32 v8, v8, v9")
        a("v_lshlrev_b32 v8, 2, v8")
        a("v_mov_b32 v10, 0xbfb8aa3b")
        a("v_mov_b32 v11, 1.0")
        a("s_waitcnt lgkmcnt(0)")
        for i in range(4):
            a("ds_bpermute_b32 v%d, v8, v%d" % (42 + i, 38 + i))
        for i in range(8):
            a("v_add_f32 v%d, v%d, v%d" % (20 + i, 20 + i, 28 + i))
        for i in range(4):
            a("v_cvt_pk_bf16_f32 v%d, v%d, v%d" % (28 + i, 20 + 2 * i, 21 + 2 * i))
        for i in range(4):
            a("v_alignbit_b32 v%d, v%d, 0, 16" % (20 + 2 * i, 28 + i))
            a("v_and_b32 v%d, v%d, v%d" % (21 + 2 * i, vMHI, 28 + i))
        for i in range(8):
            a("v_mul_f32 v%d, v10, v%d" % (48 + i, 20 + i))
        for i in range(8):
            a("v_exp_f32 v%d, v%d" % (48 + i, 48 + i))
        a("s_waitcnt vmcnt(0)")
        a("v_sub_f32 v12, 0, v36")
        for i in range(4):
            a("v_dot2_f32_bf16 v%d, v%d, v%d, v12" % (72 + 2 * i, XR + i, vONELO))
            a("v_dot2_f32_bf16 v%d, v%d, v%d, v12" % (73 + 2 * i, XR + i, vONEHI))
        for i in range(8):
            a("v_add_f32 v%d, v11, v%d" % (48 + i, 48 + i))
        for i in range(4):
            a("v_cvt_pk_bf16_f32 v%d, v%d, v%d" % (80 + i, 72 + 2 * i, 73 + 2 * i))
        for i in range(8):
            a("v_rcp_f32 v%d, v%d" % (48 + i, 48 + i))
        for i in range(4):
            a("v_alignbit_b32 v%d, v%d, 0, 16" % (72 + 2 * i, 80 + i))
            a("v_and_b32 v%d, v%d, v%d" % (73 + 2 * i, vMHI, 80 + i))
        for i in range(8):
            a("v_mul_f32 v%d, v%d, v37" % (72 + i, 72 + i))
        for i in range(8):
            a("v_mul_f32 v%d, v%d, v%d" % (20 + i, 20 + i, 48 + i))
        for i in range(4):
            a("v_cvt_pk_bf16_f32 v%d, v%d, v%d" % (80 + i, 72 + 2 * i, 73 + 2 * i))
        for i in range(4):
            a("v_cvt_pk_bf16_f32 v%d, v%d, v%d" % (28 + i, 20 + 2 * i, 21 + 2 * i))
        a("s_waitcnt lgkmcnt(0)")
        for i in range(4):
            a("v_and_b32 v%d, v%d, v%d" % (56 + 2 * i, vMLO, 42 + i))
            a("v_and_b32 v%d, v%d, v%d" % (57 + 2 * i, vMHI, 42 + i))
            a("v_and_b32 v%d, v%d, v%d" % (64 + 2 * i, vMLO, 28 + i))
            a("v_and_b32 v%d, v%d, v%d" % (65 + 2 * i, vMHI, 28 + i))
        for i in range(4):
            a("v_dot2_f32_bf16 v%d, v%d, v%d, 0" % (72 + 2 * i, 80 + i, 56 + 2 * i))
            a("v_dot2_f32_bf16 v%d, v%d, v%d, 0" % (73 + 2 * i, 80 + i, 57 + 2 * i))
        for i in range(4):
            a("v_alignbit_b32 v%d, v%d, 0, 16" % (88 + 2 * i, XR + i))
            a("v_and_b32 v%d, v%d, v%d" % (89 + 2 * i, vMHI, XR + i))
        for i in range(4):
            a("v_cvt_pk_bf16_f32 v%d, v%d, v%d" % (80 + i, 72 + 2 * i, 73 + 2 * i))
        for i in range(4):
            a("v_dot2_f32_bf16 v%d, v%d, v%d, 0" % (72 + 2 * i, 80 + i, 64 + 2 * i))
            a("v_dot2_f32_bf16 v%d, v%d, v%d, 0" % (73 + 2 * i, 80 + i, 65 + 2 * i))
        for i in range(4):
            a("v_cvt_pk_bf16_f32 v%d, v%d, v%d" % (80 + i, 72 + 2 * i, 73 + 2 * i))
        for i in range(4):
            a("v_dot2_f32_bf16 v%d, v%d, v%d, v%d" % (72 + 2 * i, 80 + i, vONELO, 88 + 2 * i))
            a("v_dot2_f32_bf16 v%d, v%d, v%d, v%d" % (73 + 2 * i, 80 + i, vONEHI, 89 + 2 * i))
        for i in range(4):
            a("v_cvt_pk_bf16_f32 v%d, v%d, v%d" % (80 + i, 72 + 2 * i, 73 + 2 * i))
        fl = " sc1" if "outsc1" in self.exp else (" nt" if "outnt" in self.exp else (" sc0 sc1" if "outsc01" in self.exp else ""))
        a("buffer_store_dwordx4 v[80:83], v%d, s[%d:%d], 0 offen%s" % (OA, S_OUT, S_OUT + 3, fl))

    def build(self):
        a = self.a
        self.p0()
        self.m_front()
        self.stamp(1)
        self.m_prep()
        self.stamp(10)
        self.m_gemm1()
        self.stamp(4)
        self.m_conv()
        self.m_tail()
        a("s_branch L_final")
        a.label("L_H")
        self.h_front()
        self.stamp(1)
        self.h_stats()
        self.stamp(11)
        self.h_gemm1_side()
        self.h_gemm2()
        a.label("L_final")
        a.lg_clear()
        self.stamp(8)
        self.final()
        self.stamp(9)
        self.dump_stamps()
        if "noendwait" not in self.exp: a("s_waitcnt vmcnt(0)")
        a.label("L_end")
        a.label("L_codeend")
        a("s_endpgm")
        lines, n = hazard.fix(a.lines)
        self.nnops = n
        hdr = """; Kernarg layout: x,k,v,shift_k,ssm_k,ssm_D,B_x,w1,w2,out,debug,ws (8-byte pointers)
; @launch grid=(256,1,1) block=(512,1,1) lds=%d
.amdgcn_target "amdgcn-amd-amdhsa--gfx950"
.text
.globl %s
.p2align 8
.type %s,@function
%s:
""" % (LDS_SIZE, KNAME, KNAME, KNAME)
        ftr = """.section .rodata,"a"
.p2align 6
.amdhsa_kernel %s
  .amdhsa_next_free_vgpr 256
  .amdhsa_next_free_sgpr 102
  .amdhsa_accum_offset 256
  .amdhsa_group_segment_fixed_size 0
  .amdhsa_kernarg_size 96
  .amdhsa_user_sgpr_count 2
  .amdhsa_user_sgpr_kernarg_segment_ptr 1
  .amdhsa_system_sgpr_workgroup_id_x 1
.end_amdhsa_kernel
""" % KNAME
        return hdr + "\n".join(lines) + "\n" + ftr

if __name__ == "__main__":
    import argparse
    ap = argparse.ArgumentParser()
    ap.add_argument("-o", default="k.s")
    ap.add_argument("--stamps", action="store_true")
    ap.add_argument("--noflags", action="store_true")
    ap.add_argument("--exp", default="")
    args = ap.parse_args()
    g = Gen(stamps=args.stamps, noflags=args.noflags, exp=args.exp)
    txt = g.build()
    open(args.o, "w").write(txt)
    print("wrote", args.o, len(txt.splitlines()), "lines; hazard nops:", g.nnops)
```

```python
import sys
from emit import *
import hazard

KNAME = "recurrent_scan__ssm_conv_h3__dense_activation_relu__prompt_kernel"

WS_KVT = 0
WS_YT = 2 << 20
WS_H = 4 << 20
WS_FLAG = 10 << 20
F_H1 = WS_FLAG
F_H2 = WS_FLAG + 32768
F_H3 = WS_FLAG + 65536
F_H4 = WS_FLAG + 98304
WS_STAMP = WS_FLAG + (256 << 10)
WS_W2S = 12 << 20
WS_SIZE = 16 << 20

L_XN = 0
NXN = 4
L_W1 = 32768
W1_SLOT = 24576
NW1 = 5
L_PREP = L_W1 + 4 * W1_SLOT
L_A = L_W1 + 3 * W1_SLOT
NA_H = 6
L_T = L_A + 8
T_CH = 16640
T_CP = 4160
L_U = L_A + 33408
U_CH = 4608
L_B = 0
NB_H = 13
B_HALF = NB_H * 4096
L_Y = 16384
L_P = L_B + 7 * 4096
P_STRIDE = B_HALF
L_STATS = 161792
L_SYNC = 162304
LDS_SIZE = 163840
assert L_U % 16 == 0 and L_U + 2 * U_CH <= L_W1 + 5 * W1_SLOT and L_T + 2 * T_CH <= L_U
assert L_A + 2 * NA_H * 4096 <= L_STATS and 2 * B_HALF <= L_A and L_W1 + NW1 * W1_SLOT <= L_STATS

S_X, S_K, S_V, S_W1, S_W2, S_OUT, S_SSM, S_WS, S_SH, S_DBG = 8, 12, 16, 20, 24, 28, 32, 36, 40, 44
sR, sC, sW, sNONCE = 48, 49, 50, 51
sF0, sBP, sNB = 52, 53, 54
sT0, sT1, sT2, sT3 = 55, 56, 57, 58
sRW = 59
sEX = 60
sROT = 62
sDP = 64
sDD = 66
sM0B = 67
sP0, sP1 = 68, 69
sUOK = 72
sID = 81
sD = 85
sINV1, sINV2 = 73, 74
vMLO, vMHI, vONELO, vONEHI, vONES = 248, 249, 250, 251, 252

def merge(*lists):
    lists = [l for l in lists if l]
    tot = sum(len(l) for l in lists)
    out = []; idx = [0] * len(lists)
    for s in range(tot):
        best = min((i for i in range(len(lists)) if idx[i] < len(lists[i])), key=lambda i: (idx[i] + 0.5) / len(lists[i]))
        out.append(lists[best][idx[best]]); idx[best] += 1
    return out

class Gen:
    def __init__(self, stamps=False, noflags=False, exp=""):
        self.exp = set(exp.split(",")) if exp else set()
        self.a = Asm()
        self.stamps = stamps
        self.noflags = noflags
        self.relax_ln = "relax_ln" in self.exp
        self.stampset = None
        self.h2n = 75
        self.h1j = 0
        self.w2p1 = 7
        for e in self.exp:
            if e.startswith('p1='): self.w2p1 = int(e[3:])
        for e in self.exp:
            if e.startswith('h1j='): self.h1j = int(e[4:])
        self.w2j = 0
        self.w2s = 'w2s' in self.exp
        self.KS = 4096 if self.w2s else 32768
        self.pf2j = 0
        for e in self.exp:
            if e.startswith('pj='): self.pf2j = int(e[3:])
            if e.startswith('h2n='): self.h2n = int(e[4:])
        self.hwin = 22; self.hper = 6; self.hinit = 12
        for e in self.exp:
            if e.startswith('hw='): self.hwin, self.hper, self.hinit = [int(x) for x in e[3:].split('+')]
        for e in self.exp:
            if e.startswith("st="):
                self.stampset = set(int(x) for x in e[3:].split("+"))

    def stamp(self, idx):
        if not self.stamps: return
        if self.stampset is not None and idx not in self.stampset: return
        a = self.a
        a("s_memrealtime s[4:5]")
        if "clk" in self.exp and idx in (14, 2, 4, 16):
            a("s_memtime s[6:7]")
        a.lg0()
        a("v_writelane_b32 v255, s4, %d" % idx)
        if "clk" in self.exp and idx in (14, 2, 4, 16):
            a("v_writelane_b32 v255, s6, %d" % {14: 29, 2: 30, 4: 31, 16: 15}[idx])

    def dump_stamps(self):
        if not self.stamps: return
        a = self.a
        if "entry" in self.exp:
            a("v_writelane_b32 v255, s90, 31")
        if "dbgst" in self.exp:
            sk = a.newlabel("L_ds")
            a("s_or_b32 s4, s2, s%d" % sW)
            a("s_cmp_lg_u32 s4, 0")
            a("s_cbranch_scc1 %s" % sk)
            a("v_readlane_b32 s4, v255, 0")
            a("s_nop 3")
            a("v_subrev_u32 v3, s4, v255")
            order = [12, 10, 14, 2, 4, 16, 17, 18, 7, 8, 9]
            for k, i in enumerate(order):
                a("v_readlane_b32 s5, v3, %d" % i)
                a("s_nop 3")
                a("v_mov_b32 v4, s5")
                a("v_mov_b32 v5, %d" % (4 * (k + 1)))
                a("s_mov_b64 exec, 1")
                a("buffer_store_dword v4, v5, s[%d:%d], 0 offen" % (S_DBG, S_DBG + 3))
                a("s_mov_b64 exec, -1")
            a.label(sk)
        a("s_lshl_b32 s%d, s2, 3" % sT0)
        a("s_add_u32 s%d, s%d, s%d" % (sT0, sT0, sW))
        a("s_lshl_b32 s%d, s%d, 7" % (sT0, sT0))
        a("s_add_u32 s%d, s%d, 0x%x" % (sT0, sT0, WS_STAMP))
        a("v_lshlrev_b32 v2, 2, v1")
        a("v_add_u32 v2, s%d, v2" % sT0)
        a("s_mov_b32 exec_lo, -1")
        a("s_mov_b32 exec_hi, 0")
        a("buffer_store_dword v255, v2, s[%d:%d], 0 offen" % (S_WS, S_WS + 3))
        a("s_mov_b64 exec, -1")

    def run(self, x):
        if callable(x): x()
        else: self.a(x)

    def spread(self, seq, extra):
        a = self.a
        if not extra:
            for x in seq: self.run(x)
            return
        step = max(1, len(seq) // (len(extra) + 1))
        k = 0
        for i, ins in enumerate(seq):
            self.run(ins)
            if (i + 1) % step == 0 and k < len(extra):
                self.run(extra[k]); k += 1
        while k < len(extra):
            self.run(extra[k]); k += 1

    def map_rc(self):
        a = self.a
        if "map42" in self.exp:
            a("s_and_b32 s%d, s2, 3" % sR)
            a("s_lshl_b32 s%d, s%d, 3" % (sR, sR))
            a("s_bfe_u32 s3, s2, 0x30003")
            a("s_add_u32 s%d, s%d, s3" % (sR, sR))
            a("s_bfe_u32 s%d, s2, 0x10002" % sC)
            a("s_lshl_b32 s%d, s%d, 2" % (sC, sC))
            a("s_lshr_b32 s3, s2, 6")
            a("s_add_u32 s%d, s%d, s3" % (sC, sC))
        else:
            a("s_and_b32 s%d, s2, 7" % sR)
            a("s_lshr_b32 s3, s2, 6")
            a("s_lshl_b32 s3, s3, 3")
            a("s_add_u32 s%d, s%d, s3" % (sR, sR))
            a("s_bfe_u32 s%d, s2, 0x30003" % sC)

    def rot_calc(self):
        a = self.a
        if "map42" in self.exp:
            a("s_lshl_b32 s%d, s%d, 1" % (sT0, sC))
            a("s_add_u32 s%d, s%d, s%d" % (sT0, sT0, sR))
            a("s_and_b32 s%d, s%d, 7" % (sROT, sT0))
        else:
            a("s_lshr_b32 s%d, s%d, 3" % (sT0, sR))
            a("s_lshl_b32 s%d, s%d, 1" % (sT0, sT0))
            a("s_add_u32 s%d, s%d, s%d" % (sT0, sT0, sC))
            a("s_add_u32 s%d, s%d, s%d" % (sT0, sT0, sR))
            a("s_and_b32 s%d, s%d, 7" % (sROT, sT0))
        if "norot" in self.exp: a("s_mov_b32 s%d, 0" % sROT)

    def p0(self):
        a = self.a
        if self.stamps and "entry" in self.exp:
            a("s_memrealtime s[90:91]")
        a("s_load_dwordx8 s[64:71], s[0:1], 0")
        a("s_cmp_ge_u32 s2, 256")
        a("s_cbranch_scc1 L_end")
        if self.stamps: a("v_mov_b32 v255, 0")
        a("v_lshrrev_b32 v2, 6, v0")
        a("v_and_b32 v1, 63, v0")
        if "codepf0" in self.exp:
            a("s_getpc_b64 s[82:83]")
            a.label("L_pc")
            a("s_sub_u32 s82, s82, L_pc-%s" % KNAME)
            a("s_subb_u32 s83, s83, 0")
            a("v_and_b32 v4, 255, v0")
            a("v_lshlrev_b32 v4, 7, v4")
            a("v_min_u32 v4, L_codeend-%s, v4" % KNAME)
            a("v_mov_b32 v5, s83")
            a("v_add_co_u32 v4, vcc, s82, v4")
            a("v_addc_co_u32 v5, vcc, 0, v5, vcc")
            a.vmem("global_load_dword v244, v[4:5], off", "cpf")
        self.map_rc()
        a("v_readfirstlane_b32 s%d, v2" % sW)
        a("s_mov_b32 s10, 0x200000")
        a("s_mov_b32 s11, 0x00020000")
        a("s_mov_b32 s14, 0x200000")
        a("s_mov_b32 s15, 0x00020000")
        a("s_mov_b32 s18, 0x200000")
        a("s_mov_b32 s19, 0x00020000")
        a("s_movk_i32 s42, 0x1000")
        a("s_mov_b32 s43, 0x00020000")
        a("s_and_b32 s%d, s%d, 3" % (sRW, sW))
        a("s_cmp_ge_u32 s%d, 4" % sW)
        a("s_cbranch_scc1 L_Hfirst")

    def p0_rest(self):
        a = self.a
        for dst, off in ((S_W1, 56), (S_SSM, 32), (S_WS, 88), (S_DBG, 80), (S_W2, 64), (S_OUT, 72), (sDP, 40)):
            a("s_load_dwordx2 s[%d:%d], s[0:1], %d" % (dst, dst + 1, off))
        for dst, size in ((S_W1, 1409024), (S_SSM, 2097152), (S_WS, WS_SIZE), (S_DBG, 256), (S_W2, 1409024), (S_OUT, 2097152)):
            a("s_mov_b32 s%d, 0x%x" % (dst + 2, size))
            a("s_mov_b32 s%d, 0x00020000" % (dst + 3))
        if "dshift" in self.exp:
            a("s_add_u32 s%d, s%d, 1" % (sD, sC))
            a("s_and_b32 s%d, s%d, 7" % (sD, sD))
        else:
            a("s_mov_b32 s%d, s%d" % (sD, sC))
        a("s_lshl_b32 s%d, s%d, 5" % (sID, sC))
        a("s_add_u32 s%d, s%d, s%d" % (sID, sID, sR))
        a("s_mul_i32 s%d, s%d, 6" % (sBP, sC))
        a("s_sub_i32 s%d, s%d, 3" % (sT0, sC))
        a("s_max_i32 s%d, s%d, 0" % (sT0, sT0))
        a("s_sub_u32 s%d, s%d, s%d" % (sBP, sBP, sT0))
        a("s_lshl_b32 s%d, s%d, 5" % (sF0, sBP))
        a("s_cmp_lt_u32 s%d, 3" % sC)
        a("s_cselect_b32 s%d, 12, 10" % sNB)
        a("v_mov_b32 v%d, 0xffff" % vMLO)
        a("v_mov_b32 v%d, 0xffff0000" % vMHI)
        a("v_mov_b32 v%d, 0x3f80" % vONELO)
        a("v_mov_b32 v%d, 0x3f800000" % vONEHI)
        a("v_mov_b32 v%d, 0x3f803f80" % vONES)
        a("s_mov_b32 s%d, 0x05040100" % sP0)
        a("s_mov_b32 s%d, 0x07060302" % sP1)
        a("v_and_b32 v3, 15, v0")
        a("v_lshlrev_b32 v3, 2, v3")
        a("v_add_u32 v3, %d, v3" % L_SYNC)
        a("v_mov_b32 v4, 0")
        a("ds_write_b32 v3, v4")

    def w1_dma_ops(self, j):
        a = self.a
        slot = j % NW1
        ops = []
        def head():
            a("s_add_u32 s%d, s%d, %d" % (sT1, sROT, j))
            a("s_and_b32 s%d, s%d, 7" % (sT1, sT1))
            a("s_mul_i32 s%d, s%d, %d" % (sT1, sT1, 64 * 2752))
            a("s_add_u32 m0, s%d, %d" % (sM0B, slot * W1_SLOT))
            a.vmem("buffer_load_dwordx4 v12, s[%d:%d], s%d offen lds" % (S_W1, S_W1 + 3, sT1), "w1c%d" % j)
        ops.append(head)
        for i in range(1, 6):
            def nxt(i=i):
                a("s_add_u32 m0, s%d, %d" % (sM0B, slot * W1_SLOT + 1024 * i))
                a.vmem("buffer_load_dwordx4 v%d, s[%d:%d], s%d offen lds" % (12 + i, S_W1, S_W1 + 3, sT1), "w1c%d" % j)
            ops.append(nxt)
        return ops

    def w1_voffs(self):
        a = self.a
        V = 12
        a("s_mul_i32 s%d, s%d, %d" % (sT0, sRW, 16 * 2752))
        a("s_lshl_b32 s%d, s%d, 1" % (sT1, sF0))
        a("s_add_u32 s%d, s%d, s%d" % (sT0, sT0, sT1))
        a("s_lshl_b32 s%d, s%d, 1" % (sT1, sNB))
        a("v_mov_b32 v7, 0x40000000")
        for i in range(6):
            a("v_add_u32 v2, %d, v1" % (64 * i))
            a("v_mul_u32_u24 v3, 2731, v2")
            a("v_lshrrev_b32 v3, 16, v3")
            a("v_mul_u32_u24 v4, 24, v3")
            a("v_sub_u32 v4, v2, v4")
            a("v_and_b32 v5, 2, v3")
            a("v_lshrrev_b32 v6, 1, v3")
            a("v_and_b32 v6, 4, v6")
            a("v_or_b32 v5, v5, v6")
            a("v_xor_b32 v4, v4, v5")
            a("v_mul_u32_u24 v5, 2752, v3")
            a("v_lshl_add_u32 v5, v4, 4, v5")
            a("v_add_u32 v5, s%d, v5" % sT0)
            a("v_cmp_gt_u32 vcc, s%d, v4" % sT1)
            a("v_cndmask_b32 v%d, v7, v5, vcc" % (V + i))
        a("s_mul_i32 s%d, s%d, %d" % (sM0B, sRW, 16 * 384))
        a("s_add_u32 s%d, s%d, %d" % (sM0B, sM0B, L_W1))

    def line_prefetch(self, which, vd):
        a = self.a
        a("s_lshr_b32 s%d, s2, 3" % sT0)
        a("v_and_b32 v2, 255, v0")
        if "map42" not in self.exp:
            srd = S_W1 if which == "w1" else S_W2
            a("s_mul_i32 s%d, s%d, %d" % (sT0, sT0, 344 * 128))
            a("v_lshlrev_b32 v3, 7, v2")
            a("v_add_u32 v3, s%d, v3" % sT0)
            a.vmem("buffer_load_dword v%d, v3, s[%d:%d], 0 offen" % (vd, srd, srd + 3), "pf")
            a("v_cmp_gt_u32 vcc, %d, v2" % (344 - 256))
            a("v_add_u32 v3, 32768, v3")
            a("v_mov_b32 v4, 0x40000000")
            a("v_cndmask_b32 v3, v4, v3, vcc")
            a.vmem("buffer_load_dword v%d, v3, s[%d:%d], 0 offen" % (vd + 1, srd, srd + 3), "pf")
        elif which == "w2":
            a("s_mul_i32 s%d, s%d, 43" % (sT0, sT0))
            a("s_bfe_u32 s%d, s2, 0x10002" % sT1)
            a("s_lshl_b32 s%d, s%d, 9" % (sT1, sT1))
            a("s_lshl_b32 s%d, s%d, 10" % (sT0, sT0))
            a("s_add_u32 s%d, s%d, s%d" % (sT0, sT0, sT1))
            a("v_lshrrev_b32 v3, 2, v2")
            a("v_lshlrev_b32 v3, 10, v3")
            a("v_and_b32 v4, 3, v2")
            a("v_lshl_add_u32 v3, v4, 7, v3")
            a("v_add_u32 v3, s%d, v3" % sT0)
            a("v_cmp_gt_u32 vcc, 172, v2")
            a("v_mov_b32 v4, 0x40000000")
            a("v_cndmask_b32 v3, v4, v3, vcc")
            a.vmem("buffer_load_dword v%d, v3, s[%d:%d], 0 offen" % (vd, S_W2, S_W2 + 3), "pf")
        else:
            a("s_lshl_b32 s%d, s%d, 4" % (sT0, sT0))
            a("s_mul_i32 s%d, s%d, 2752" % (sT0, sT0))
            a("s_bfe_u32 s%d, s2, 0x10002" % sT1)
            a("s_mul_i32 s%d, s%d, 1472" % (sT1, sT1))
            a("s_add_u32 s%d, s%d, s%d" % (sT0, sT0, sT1))
            a("v_mul_u32_u24 v3, 5462, v2")
            a("v_lshrrev_b32 v3, 16, v3")
            a("v_mul_u32_u24 v4, 12, v3")
            a("v_sub_u32 v4, v2, v4")
            a("v_mul_u32_u24 v3, 2752, v3")
            a("v_lshl_add_u32 v3, v4, 7, v3")
            a("v_add_u32 v3, s%d, v3" % sT0)
            a("v_cmp_gt_u32 vcc, 192, v2")
            a("v_mov_b32 v4, 0x40000000")
            a("v_cndmask_b32 v3, v4, v3, vcc")
            a.vmem("buffer_load_dword v%d, v3, s[%d:%d], 0 offen" % (vd, S_W1, S_W1 + 3), "pf")

    def m_front(self):
        a = self.a
        a("v_lshrrev_b32 v3, 5, v0")
        a("v_and_b32 v4, 31, v0")
        a("s_lshl_b32 s%d, s%d, 16" % (sT0, sR))
        a("s_lshl_b32 s%d, s%d, 7" % (sT1, sC))
        a("s_add_u32 s%d, s%d, s%d" % (sT0, sT0, sT1))
        a("v_lshlrev_b32 v2, 13, v3")
        a("v_lshl_add_u32 v2, v4, 2, v2")
        a("v_add_u32 v2, s%d, v2" % sT0)
        a("v_add_u32 v5, 0xfffff400, v2")
        a("v_add_u32 v6, 0xfffff800, v2")
        a("v_add_u32 v7, 0xfffffc00, v2")
        a("v_add_u32 v8, 4096, v2")
        a("s_lshl_b32 s%d, s%d, 9" % (sT2, sC))
        a("v_lshlrev_b32 v9, 4, v4")
        a("v_add_u32 v9, s%d, v9" % sT2)
        a.lg0()
        a("s_mov_b64 s[12:13], s[66:67]")
        a("s_mov_b64 s[16:17], s[68:69]")
        a("s_mov_b64 s[40:41], s[70:71]")
        a("s_mov_b64 s[8:9], s[64:65]")
        if self.stamps:
            a("s_memrealtime s[4:5]"); a.lg0(); a("v_writelane_b32 v255, s4, 0")
        K, V, SH = 20, 32, 40
        for t, r in enumerate((5, 6, 7)):
            a.vmem("buffer_load_dword v%d, v%d, s[%d:%d], 0 offen" % (K + t, r, S_K, S_K + 3), "prep")
        for t in range(8):
            a.vmem("buffer_load_dword v%d, v%d, s[%d:%d], 0 offen offset:%d" % (K + 3 + t, 2 if t < 4 else 8, S_K, S_K + 3, 1024 * (t & 3)), "prep")
        a.vmem("buffer_load_dwordx4 v[40:43], v9, s[%d:%d], 0 offen" % (S_SH, S_SH + 3), "prep")
        for t in range(8):
            a.vmem("buffer_load_dword v%d, v%d, s[%d:%d], 0 offen offset:%d" % (V + t, 2 if t < 4 else 8, S_V, S_V + 3, 1024 * (t & 3)), "prep")
        a("s_branch L_Mrest")
        self.h_first()
        a.label("L_Mrest")
        a.vm = self.vm_m_first
        self.rot_calc()
        self.p0_rest()
        a("s_waitcnt lgkmcnt(0)")
        a("s_barrier")
        if "pfM" in self.exp:
            self.line_prefetch("w1", 240)
        if not self.noflags:
            a("s_or_b32 s%d, s2, s%d" % (sT1, sW))
            a("s_cmp_lg_u32 s%d, 0" % sT1)
            a("s_cbranch_scc1 L_nononce")
            a("s_memrealtime s[4:5]")
            a("s_waitcnt lgkmcnt(0)")
            a("s_or_b32 s4, s4, 1")
            a("v_mov_b32 v2, s4")
            a("v_mov_b32 v3, 0")
            a("s_mov_b64 exec, 1")
            a("buffer_store_dword v2, v3, s[%d:%d], 0 offen sc1" % (S_DBG, S_DBG + 3))
            a("s_mov_b64 exec, -1")
            a.label("L_nononce")
        self.w1_voffs()
        self.m_gemm1_setup()
        a("s_lshl_b32 s%d, s%d, 7" % (sT0, sC))
        a("s_lshl_b32 s%d, s%d, 2" % (sT1, sR))
        a("s_add_u32 s%d, s%d, s%d" % (sT0, sT0, sT1))
        a("s_load_dword s%d, s[%d:%d], s%d" % (sDD, sDP, sDP + 1, sT0))

    def m_gemm1_setup(self):
        a = self.a
        AX = 8; AW = [9, 10, 11]
        a("v_and_b32 v2, 15, v1")
        a("v_lshrrev_b32 v3, 4, v1")
        a("v_lshlrev_b32 v4, 1, v3")
        a("v_xor_b32 v4, v2, v4")
        a("v_lshlrev_b32 v4, 4, v4")
        a("v_lshl_add_u32 v%d, v3, 8, v4" % AX)
        a("v_lshrrev_b32 v5, 2, v2")
        a("v_lshl_add_u32 v4, v3, 3, v5")
        a("v_mul_u32_u24 v4, 384, v4")
        a("v_and_b32 v6, 3, v1")
        a("v_lshl_add_u32 v4, v6, 3, v4")
        a("v_lshrrev_b32 v5, 1, v5")
        a("v_and_b32 v6, 1, v3")
        a("v_lshl_add_u32 v5, v6, 1, v5")
        a("s_mul_i32 s%d, s%d, 3" % (sT0, sRW))
        for b in range(3):
            a("s_add_u32 s%d, s%d, %d" % (sT1, sT0, b))
            a("v_xor_b32 v6, s%d, v5" % sT1)
            a("v_lshl_add_u32 v6, v6, 5, v4")
            a("v_add_u32 v%d, %d, v6" % (AW[b], L_W1))
        a("v_lshlrev_b32 v5, 4, v2")
        a("v_lshrrev_b32 v4, 1, v3")
        a("v_lshl_add_u32 v5, v4, 8, v5")
        a("v_and_b32 v4, 1, v3")
        if "st16" in self.exp:
            a("v_mul_u32_u24 v4, 44032, v4")
            a("v_add_u32 v5, v5, v4")
        else:
            a("v_lshl_add_u32 v5, v4, 3, v5")
        a("s_lshr_b32 s%d, s%d, 4" % (sBP, sF0))
        a("s_mul_i32 s%d, s%d, %d" % (sT0, sR, 4 * 44032))
        a("s_mul_i32 s%d, s%d, 3" % (sT1, sRW))
        a("s_add_u32 s%d, s%d, s%d" % (sT2, sT1, sBP))
        a("s_lshl_b32 s%d, s%d, 9" % (sT2, sT2))
        a("s_add_u32 s%d, s%d, s%d" % (sT0, sT0, sT2))
        a("s_add_u32 s%d, s%d, 0x%x" % (sT0, sT0, WS_H))
        a("v_add_u32 v168, s%d, v5" % sT0)
        for tb in range(1, 4):
            a("v_add_u32 v%d, %d, v168" % (168 + tb, 44032 * tb))
        for b, sr_ in ((1, sINV1), (2, sINV2)):
            a("s_add_u32 s%d, s%d, %d" % (sT2, sT1, b))
            a("s_cmp_lt_u32 s%d, s%d" % (sT2, sNB))
            a("s_cselect_b32 s%d, 0, 0x40000000" % sr_)

    def m_prep(self):
        a = self.a
        K, V, SH = 20, 32, 40
        WL, WH = 44, 48
        PL, PH = 52, 56
        PP, AC = 60, 64
        TA, TB = 68, 72
        KV = 76
        OUT = 92
        dma = []
        if "V2" in self.exp:
            for f in self.w1_dma_ops(0) + self.w1_dma_ops(1): f()
        if "V4" in self.exp:
            for f in self.w1_dma_ops(0): f()
            dma = self.w1_dma_ops(1) + self.w1_dma_ops(2)
        if "V5" in self.exp:
            for f in self.w1_dma_ops(0) + self.w1_dma_ops(1): f()
            dma = self.w1_dma_ops(2)
        a.wait_vm("prep")
        self.stamp(12)
        seq = []; e = seq.append
        e("v_and_b32 v%d, v%d, v%d" % (WL + 0, vMLO, SH + 0)); e("v_lshrrev_b32 v%d, 16, v%d" % (WL + 1, SH + 0))
        e("v_and_b32 v%d, v%d, v%d" % (WL + 2, vMLO, SH + 1)); e("v_lshrrev_b32 v%d, 16, v%d" % (WL + 3, SH + 1))
        e("v_lshlrev_b32 v%d, 16, v%d" % (WH + 0, SH + 2)); e("v_and_b32 v%d, v%d, v%d" % (WH + 1, vMHI, SH + 2))
        e("v_lshlrev_b32 v%d, 16, v%d" % (WH + 2, SH + 3)); e("v_and_b32 v%d, v%d, v%d" % (WH + 3, vMHI, SH + 3))
        for hb in range(2):
            r0 = 4 * hb
            if "relax_prep" in self.exp:
                for r in range(4):
                    e("v_dot2_f32_bf16 v%d, v%d, v%d, 0" % (PL + r, K + r0 + r, WL + 3))
                    e("v_dot2_f32_bf16 v%d, v%d, v%d, 0" % (PH + r, K + r0 + r, WH + 3))
                for j in (2, 1, 0):
                    for r in range(4):
                        e("v_dot2_f32_bf16 v%d, v%d, v%d, v%d" % (PL + r, K + 3 + r0 + r - j, WL + j, PL + r))
                        e("v_dot2_f32_bf16 v%d, v%d, v%d, v%d" % (PH + r, K + 3 + r0 + r - j, WH + j, PH + r))
                for r in range(4):
                    e("v_cvt_pk_bf16_f32 v%d, v%d, v%d" % (AC + r, PL + r, PH + r))
            else:
                for j in (3, 2, 1, 0):
                    for r in range(4):
                        e("v_dot2_f32_bf16 v%d, v%d, v%d, 0" % (PL + r, K + 3 + r0 + r - j, WL + j))
                        e("v_dot2_f32_bf16 v%d, v%d, v%d, 0" % (PH + r, K + 3 + r0 + r - j, WH + j))
                    dstp = AC if j == 3 else PP
                    for r in range(4):
                        e("v_cvt_pk_bf16_f32 v%d, v%d, v%d" % (dstp + r, PL + r, PH + r))
                    if j != 3:
                        for r in range(4):
                            e("v_perm_b32 v%d, v%d, v%d, s%d" % (TA + r, PP + r, AC + r, sP0))
                            e("v_perm_b32 v%d, v%d, v%d, s%d" % (TB + r, PP + r, AC + r, sP1))
                        for r in range(4):
                            e("v_dot2_f32_bf16 v%d, v%d, v%d, 0" % (PL + r, TA + r, vONES))
                            e("v_dot2_f32_bf16 v%d, v%d, v%d, 0" % (PH + r, TB + r, vONES))
                        for r in range(4):
                            e("v_cvt_pk_bf16_f32 v%d, v%d, v%d" % (AC + r, PL + r, PH + r))
            for r in range(4):
                e("v_and_b32 v%d, v%d, v%d" % (TA + r, vMLO, V + r0 + r))
                e("v_and_b32 v%d, v%d, v%d" % (TB + r, vMHI, V + r0 + r))
            for r in range(4):
                e("v_dot2_f32_bf16 v%d, v%d, v%d, 0" % (KV + r0 + r, AC + r, TA + r))
                e("v_dot2_f32_bf16 v%d, v%d, v%d, 0" % (KV + 8 + r0 + r, AC + r, TB + r))
        e("v_and_b32 v2, 31, v0"); e("v_mul_u32_u24 v2, 288, v2"); e("v_lshrrev_b32 v3, 5, v0"); e("v_lshlrev_b32 v3, 4, v3")
        e("v_sub_u32 v2, v2, v3"); e("v_add_u32 v2, %d, v2" % (L_PREP + 112))
        for ch in range(2):
            for d in range(4):
                e("v_cvt_pk_bf16_f32 v%d, v%d, v%d" % (OUT + 4 * ch + d, KV + 8 * ch + 7 - 2 * d, KV + 8 * ch + 6 - 2 * d))
        self.spread(seq, dma)
        self.stamp(20)
        a("ds_write_b128 v2, v[%d:%d]" % (OUT, OUT + 3))
        a("ds_write_b128 v2, v[%d:%d] offset:144" % (OUT + 4, OUT + 7))
        a("v_lshrrev_b32 v2, 3, v0")
        a("v_and_b32 v3, 7, v0")
        a("v_mul_u32_u24 v4, 144, v2")
        a("v_lshl_add_u32 v4, v3, 4, v4")
        a("v_add_u32 v4, %d, v4" % L_PREP)
        a("s_lshl_b32 s%d, s%d, 18" % (sT0, sC))
        a("s_lshl_b32 s%d, s%d, 7" % (sT1, sR))
        a("s_sub_u32 s%d, s%d, s%d" % (sT0, sT0, sT1))
        a("s_add_u32 s%d, s%d, %d" % (sT0, sT0, WS_KVT + 3968))
        a("v_lshlrev_b32 v5, 12, v2")
        a("v_lshl_add_u32 v5, v3, 4, v5")
        a("v_add_u32 v5, s%d, v5" % sT0)
        a("v_add_u32 v6, %d, v5" % (32 * 4096))
        if "dmafirst" in self.exp:
            for f in self.w1_dma_ops(0) + self.w1_dma_ops(1) + self.w1_dma_ops(2): f()
            self.stamp(15)
        self.m_sync(13, va=2, vb=3)
        a("ds_read_b128 v[92:95], v4")
        a("ds_read_b128 v[96:99], v4 offset:%d" % (32 * 144))
        a.lg0()
        a.vmem("buffer_store_dwordx4 v[92:95], v5, s[%d:%d], 0 offen sc1" % (S_WS, S_WS + 3), "kvt")
        a.vmem("buffer_store_dwordx4 v[96:99], v6, s[%d:%d], 0 offen sc1" % (S_WS, S_WS + 3), "kvt")
        if not self.noflags:
            a("v_mov_b32 v7, 0")
            a.vmem("buffer_load_dword v19, v7, s[%d:%d], 0 offen sc1" % (S_DBG, S_DBG + 3), "nonce")
        if "dmafirst" not in self.exp:
            self.stamp(15)
            if "V3" in self.exp: lst = self.w1_dma_ops(2) + self.w1_dma_ops(3)
            elif "V2" in self.exp: lst = self.w1_dma_ops(2)
            elif "V4" in self.exp or "V5" in self.exp: lst = []
            else: lst = self.w1_dma_ops(0) + self.w1_dma_ops(1) + self.w1_dma_ops(2)
            for f in lst: f()

    def m_gemm1(self):
        a = self.a
        ACC = 20
        BUF = [68, 96, 124]
        AX = 8; AW = [9, 10, 11]
        UREG = 152
        for i in range(48):
            a("v_mov_b32 v%d, 0" % (ACC + i))

        def read_ops(ks):
            buf = BUF[ks % 3]
            j = ks >> 1; ksl = ks & 1; slot = j % NW1
            pre = []
            if ksl == 0 and j > 0:
                d = W1_SLOT if slot != 0 else -(NW1 - 1) * W1_SLOT
                for b in range(3):
                    pre.append("v_add_u32 v%d, %d, v%d" % (AW[b], d & 0xffffffff, AW[b]))
            so = ksl * 32 * 384
            def rx(t):
                return lambda: a.lds("ds_read_b128 v[%d:%d], v%d offset:%d" % (buf + 4 * t, buf + 4 * t + 3, AX, L_XN + (j % NXN) * 8192 + t * 2048 + ksl * 1024), "x%d_%d" % (ks, t))
            def rw(b, hh):
                r0 = buf + 16 + 4 * b + 2 * hh
                return lambda: a.lds("ds_read_b64_tr_b16 v[%d:%d], v%d offset:%d" % (r0, r0 + 1, AW[b], so + hh * 4 * 384), "w%d_%d" % (ks, b))
            if "mnoreads" in self.exp: return pre
            return pre + [rw(0, 0), rw(0, 1), rx(0), rx(1), rx(2), rx(3), rw(1, 0), rw(1, 1), rw(2, 0), rw(2, 1)]

        def mfma_ops(ks):
            cur = BUF[ks % 3]
            ops = []
            for b in range(3):
                for t in range(4):
                    def f(b=b, t=t):
                        if "finewait" in self.exp:
                            a.need_lds("w%d_%d" % (ks, b), "x%d_%d" % (ks, t))
                        elif b == 0 and t == 0:
                            a.need_lds(*(["w%d_%d" % (ks, bb) for bb in range(3)] + ["x%d_%d" % (ks, tt) for tt in range(4)]))
                        acc = ACC + (b * 4 + t) * 4
                        if "mnomfma" in self.exp: return
                        a("v_mfma_f32_16x16x32_bf16 v[%d:%d], v[%d:%d], v[%d:%d], v[%d:%d]" % (
                            acc, acc + 3, cur + 16 + 4 * b, cur + 19 + 4 * b, cur + 4 * t, cur + 4 * t + 3, acc, acc + 3))
                    ops.append(f)
            return ops

        if not self.noflags and "V1" in self.exp: self.publish_h1()
        if "V3" not in self.exp: a.wait_vm("w1c1")
        a("s_barrier")
        self.stamp(14)
        for f in read_ops(0): self.run(f)
        if self.h1j == 0 and not self.noflags and "V1" not in self.exp:
            q_l = (list(a.lg.q), a.lg_done)
            self.publish_h1()
        for f in read_ops(1)[:5]: self.run(f)
        pend = read_ops(1)[5:]
        for j in range(8):
            if j >= 1 and j <= 6:
                if not ("mnodma" in self.exp and j + 1 >= 3) and "novmw" not in self.exp: a.wait_vm("w1c%d" % (j + 1))
                a("s_barrier")
                if "itst" in self.exp: self.stamp(22 + j)
                if j == self.h1j and not self.noflags and "V1" not in self.exp: self.publish_h1()
            dm = self.w1_dma_ops(j + 4) if (j + 4 <= 7) else []
            if j == 0 and "V3" not in self.exp: dm = self.w1_dma_ops(3) + dm
            if "mnodma" in self.exp:
                for _ in dm: a.vm.issue("dummy")
                dm = []
            ex = []
            for half in range(2):
                ks = 2 * j + half
                fill = list(pend); pend = []
                if ks + 2 <= 15:
                    fill += read_ops(ks + 2)
                hlf = (len(dm) + 1) // 2
                extra = (dm[:hlf] + ex if half == 0 else dm[hlf:])
                interleave(a, mfma_ops(ks), merge(fill, extra))
        a.lg0()
        self.stamp(2)
        HB = 68
        for i in range(12):
            a("v_cvt_pk_bf16_f32 v%d, v%d, v%d" % (HB + 2 * i, ACC + 4 * i, ACC + 4 * i + 1))
            a("v_cvt_pk_bf16_f32 v%d, v%d, v%d" % (HB + 2 * i + 1, ACC + 4 * i + 2, ACC + 4 * i + 3))
        for i in range(24):
            a("v_pk_max_i16 v%d, v%d, 0" % (HB + i, HB + i))
        if "st16" in self.exp:
            for b in range(3):
                for u in range(2):
                    r = HB + 8 * b + 4 * u
                    a("v_permlane16_swap_b32 v%d, v%d" % (r, r + 2))
                    a("v_permlane16_swap_b32 v%d, v%d" % (r + 1, r + 3))
            for b in range(3):
                so = "0" if b == 0 else "s%d" % (sINV1 if b == 1 else sINV2)
                for u in range(2):
                    r = HB + 8 * b + 4 * u
                    a.vmem("buffer_store_dwordx4 v[%d:%d], v%d, s[%d:%d], %s offen offset:%d sc1" % (r, r + 3, 168 + 2 * u, S_WS, S_WS + 3, so, 512 * b), "hst")
        elif "nohst" in self.exp:
            a.vm.issue("hst")
        else:
          for b in range(3):
            so = "0" if b == 0 else "s%d" % (sINV1 if b == 1 else sINV2)
            for t in range(4):
                r = HB + (b * 4 + t) * 2
                a.vmem("buffer_store_dwordx2 v[%d:%d], v%d, s[%d:%d], %s offen offset:%d sc1" % (r, r + 1, 168 + t, S_WS, S_WS + 3, so, 512 * b), "hst")
        if "h2pre" in self.exp and not self.noflags:
            self.publish_h2()
        a("s_barrier")

    def get_nonce(self):
        if self.noflags: return
        a = self.a
        a.wait_vm("nonce")
        lo = a.newlabel("L_nz"); lp = a.newlabel("L_nl")
        a("v_readfirstlane_b32 s%d, v19" % sNONCE)
        a("s_nop 3")
        a("s_cmp_lg_u32 s%d, 0" % sNONCE)
        a("s_cbranch_scc1 %s" % lo)
        a("s_mov_b32 s%d, 0" % sT3)
        a.label(lp)
        a("v_mov_b32 v7, 0")
        a("buffer_load_dword v19, v7, s[%d:%d], 0 offen sc1" % (S_DBG, S_DBG + 3))
        a("s_waitcnt vmcnt(0)")
        a("v_readfirstlane_b32 s%d, v19" % sNONCE)
        a("s_add_u32 s%d, s%d, 1" % (sT3, sT3))
        a("s_cmp_gt_u32 s%d, 100000" % sT3)
        a("s_cbranch_scc1 %s" % lo)
        a("s_cmp_eq_u32 s%d, 0" % sNONCE)
        a("s_cbranch_scc1 %s" % lp)
        a.label(lo)

    def flag_store(self, off_sreg, tag, va=2, vb=3):
        if self.noflags: return
        a = self.a
        a("v_mov_b32 v%d, s%d" % (va, off_sreg))
        a("v_mov_b32 v%d, s%d" % (vb, sNONCE))
        a("s_mov_b64 exec, 1")
        a.vmem("buffer_store_dword v%d, v%d, s[%d:%d], 0 offen sc1" % (vb, va, S_WS, S_WS + 3), tag)
        a("s_mov_b64 exec, -1")

    def publish_h1(self):
        a = self.a
        self.get_nonce()
        a.wait_vm("kvt")
        a("s_lshl_b32 s%d, s%d, 7" % (sT0, sID))
        a("s_lshl_b32 s%d, s%d, 2" % (sT2, sRW))
        a("s_add_u32 s%d, s%d, s%d" % (sT0, sT0, sT2))
        a("s_add_u32 s%d, s%d, 0x%x" % (sT0, sT0, F_H1))
        self.flag_store(sT0, "flag")

    def poll(self, base_sreg, nlanes, width, stride):
        if self.noflags: return
        a = self.a
        lp = a.newlabel("L_poll"); dn = a.newlabel("L_pdone")
        a("v_mul_u32_u24 v2, %d, v1" % stride)
        a("v_add_u32 v2, s%d, v2" % base_sreg)
        a("s_mov_b32 s%d, 0" % sT3)
        if nlanes <= 16: a("s_mov_b64 exec, 0x%x" % ((1 << nlanes) - 1))
        else:
            a("s_mov_b32 exec_lo, -1"); a("s_mov_b32 exec_hi, 0")
        a.label(lp)
        if width == 1:
            a("buffer_load_dword v4, v2, s[%d:%d], 0 offen sc1" % (S_WS, S_WS + 3))
            a("s_waitcnt vmcnt(0)")
            a("v_cmp_ne_u32 vcc, s%d, v4" % sNONCE)
        else:
            a("buffer_load_dwordx4 v[4:7], v2, s[%d:%d], 0 offen sc1" % (S_WS, S_WS + 3))
            a("s_waitcnt vmcnt(0)")
            for i in range(4): a("v_xor_b32 v%d, s%d, v%d" % (4 + i, sNONCE, 4 + i))
            a("v_or3_b32 v4, v4, v5, v6")
            a("v_or_b32 v4, v4, v7")
            a("v_cmp_ne_u32 vcc, 0, v4")
        a("s_add_u32 s%d, s%d, 1" % (sT3, sT3))
        a("s_cmp_gt_u32 s%d, 100000" % sT3)
        a("s_cbranch_scc1 %s" % dn)
        a("s_cbranch_vccnz %s" % lp)
        a.label(dn)
        a("s_mov_b64 exec, -1")

    def lds_wait(self, addr_sreg, val=1, va=16, vb=17):
        a = self.a
        lp = a.newlabel("L_ps"); dn = a.newlabel("L_psd")
        a("v_mov_b32 v%d, s%d" % (va, addr_sreg))
        a("s_mov_b32 s%d, 0" % sT3)
        a.label(lp)
        a("ds_read_b32 v%d, v%d" % (vb, va))
        a("s_waitcnt lgkmcnt(0)")
        a("v_readfirstlane_b32 s4, v%d" % vb)
        a("s_add_u32 s%d, s%d, 1" % (sT3, sT3))
        a("s_cmp_ge_u32 s4, %d" % val)
        a("s_cbranch_scc1 %s" % dn)
        a("s_cmp_lt_u32 s%d, 1000000" % sT3)
        a("s_cbranch_scc1 %s" % lp)
        a.label(dn)
        a.lg_clear()

    def m_sync(self, word, n=4, va=16, vb=17):
        a = self.a
        a("v_mov_b32 v%d, %d" % (va, L_SYNC + 4 * word))
        a("v_mov_b32 v%d, 1" % vb)
        a.lg0()
        a("s_mov_b64 exec, 1")
        a("ds_add_u32 v%d, v%d" % (va, vb))
        a("s_mov_b64 exec, -1")
        a("s_mov_b32 s5, %d" % (L_SYNC + 4 * word))
        self.lds_wait(5, n, va, vb)

    def pair_sync(self, stage, va=16, vb=17):
        a = self.a
        a("s_lshl_b32 s4, s%d, 2" % sRW)
        a("s_add_u32 s4, s4, %d" % (L_SYNC + 16 * stage))
        a("s_xor_b32 s5, s4, 4")
        a("v_mov_b32 v%d, s4" % va)
        a("v_mov_b32 v%d, 1" % vb)
        a.lg0()
        a("ds_write_b32 v%d, v%d" % (va, vb))
        self.lds_wait(5, 1, va, vb)

    def publish_h2(self):
        a = self.a
        a.wait_vm("hst")
        a("s_lshl_b32 s4, s%d, 3" % sR)
        a("s_add_u32 s4, s4, s%d" % sC)
        a("s_lshl_b32 s4, s4, 7")
        a("s_lshl_b32 s5, s%d, 2" % sRW)
        a("s_add_u32 s4, s4, s5")
        a("s_add_u32 s%d, s4, 0x%x" % (sT2, F_H2))
        self.flag_store(sT2, "flag", 4, 5)

    def m_conv(self):
        a = self.a
        BF, ACC, AF, NA = 20, 148, 180, 16
        AU, AT = 2, 3
        a("v_and_b32 v8, 15, v1")
        a("v_lshrrev_b32 v9, 4, v1")
        a("v_lshlrev_b32 v10, 4, v9")
        a("v_lshlrev_b32 v11, 5, v8")
        a("v_sub_u32 v10, v10, v11")
        a("s_lshr_b32 s%d, s%d, 1" % (sT0, sRW))
        a("s_and_b32 s%d, s%d, 1" % (sT1, sRW))
        a("s_mul_i32 s%d, s%d, %d" % (sT2, sT0, U_CH))
        a("s_add_u32 s%d, s%d, %d" % (sT2, sT2, L_U + 2 * 2032 - 64 * 56))
        a("s_lshl_b32 s4, s%d, 6" % sT1)
        a("s_add_u32 s%d, s%d, s4" % (sT2, sT2))
        a("v_add_u32 v%d, s%d, v10" % (AU, sT2))
        a("v_and_b32 v10, 3, v8")
        a("v_mul_u32_u24 v10, %d, v10" % T_CP)
        a("v_lshrrev_b32 v11, 2, v8")
        a("v_lshl_add_u32 v10, v11, 3, v10")
        a("v_lshl_add_u32 v10, v9, 4, v10")
        a("s_mul_i32 s%d, s%d, %d" % (sT2, sT0, T_CH))
        a("s_add_u32 s%d, s%d, s4" % (sT2, sT2))
        a("s_add_u32 s%d, s%d, %d" % (sT2, sT2, L_T))
        a("v_add_u32 v%d, s%d, v10" % (AT, sT2))
        a("v_lshl_add_u32 v10, v9, 3, v8")
        a("s_lshl_b32 s4, s%d, 5" % sT1)
        a("v_add_u32 v10, s4, v10")
        MK = 12
        for d in range(4):
            a("v_sub_u32 v11, %d, v10" % (15 - 2 * d))
            a("v_med3_i32 v11, v11, 0, 2")
            a("v_lshlrev_b32 v11, 4, v11")
            a("v_mov_b32 v%d, -1" % (MK + d))
            a("v_lshlrev_b32 v16, v11, v%d" % (MK + d))
            a("v_cmp_eq_u32 vcc, 32, v11")
            a("v_cndmask_b32_e64 v%d, v16, 0, vcc" % (MK + d))
        for i in range(32):
            a("v_mov_b32 v%d, 0" % (ACC + i))
        def emit_A(ee):
            r = AF + 4 * (ee % NA)
            a.lds("ds_read_b64 v[%d:%d], v%d offset:%d" % (r, r + 1, AT, 128 * ee), ("A", ee))
            a.lds("ds_read_b64 v[%d:%d], v%d offset:%d" % (r + 2, r + 3, AT, 128 * ee + 8), ("A", ee))
        def emit_B(idx):
            r = BF + 4 * idx
            a.lds("ds_read_b128 v[%d:%d], v%d offset:%d" % (r, r + 3, AU, 128 * idx), ("B", idx))
        sched = []
        for ee in range(32):
            for j in range(7, (ee >> 2) - 1, -1):
                sched.append((ee, j, 28 - 4 * j + ee))
        order = []; seen = set(); last_use_A = {}
        for n, (ee, j, idx) in enumerate(sched):
            for it in (("A", ee), ("B", idx)):
                if it not in seen:
                    seen.add(it); order.append(it)
            last_use_A[ee] = n
        ptr = 0; issued = set()
        def can_issue(item, n):
            if item[0] == "A" and item[1] >= NA:
                return last_use_A[item[1] - NA] < n
            return True
        def issue_next(n_now):
            nonlocal ptr
            if ptr < len(order) and can_issue(order[ptr], n_now):
                it = order[ptr]
                (emit_A if it[0] == "A" else emit_B)(it[1])
                issued.add(it); ptr += 1
                return True
            return False
        def inflight():
            return len(a.lg.q) - a.lg_done
        GRP = 4
        while inflight() < 14 and issue_next(0): pass
        masked = False
        for n, (ee, j, idx) in enumerate(sched):
            while ("A", ee) not in issued or ("B", idx) not in issued:
                assert issue_next(n)
            if not (a.lds_done(("A", ee)) and a.lds_done(("B", idx))):
                tags = [("A", ee), ("B", idx)]
                for (e2, j2, i2) in sched[n + 1:n + GRP]:
                    if ("A", e2) in issued and ("B", i2) in issued: tags += [("A", e2), ("B", i2)]
                    else: break
                a.need_lds(*tags)
            ar = AF + 4 * (ee % NA); br = BF + 4 * idx; acc = ACC + 4 * j
            if ee == 0 and not masked:
                for d in range(4): a("v_and_b32 v%d, v%d, v%d" % (ar + d, MK + d, ar + d))
                masked = True
            a("v_mfma_f32_16x16x32_bf16 v[%d:%d], v[%d:%d], v[%d:%d], v[%d:%d]" % (acc, acc + 3, ar, ar + 3, br, br + 3, acc, acc + 3))
            if inflight() < 14:
                issue_next(n + 1)
                if n < 40 and inflight() < 14: issue_next(n + 1)
            if n == self.h2n and not self.noflags and "h2pre" not in self.exp:
                self.publish_h2()
        self.stamp(16)
        self.pair_sync(0)
        a("v_lshlrev_b32 v4, 4, v1")
        a("s_mul_i32 s%d, s%d, %d" % (sT0, sT0, T_CH))
        a("s_add_u32 s%d, s%d, %d" % (sT0, sT0, L_T + 8))
        a("s_lshl_b32 s%d, s%d, 12" % (sT2, sT1))
        a("s_add_u32 s%d, s%d, s%d" % (sT2, sT2, sT0))
        a("v_add_u32 v5, s%d, v4" % sT2)
        a("s_xor_b32 s%d, s%d, 1" % (sT2, sT1))
        a("s_lshl_b32 s%d, s%d, 12" % (sT2, sT2))
        a("s_add_u32 s%d, s%d, s%d" % (sT2, sT2, sT0))
        a("v_add_u32 v6, s%d, v4" % sT2)
        l0 = a.newlabel("L_cr0"); l1 = a.newlabel("L_cr1")
        a("s_cmp_eq_u32 s%d, 0" % sT1)
        a("s_cbranch_scc1 %s" % l0)
        for i in range(4):
            a("ds_write_b128 v5, v[%d:%d] offset:%d" % (ACC + 4 * i, ACC + 4 * i + 3, 1024 * i))
        for i in range(16):
            a("v_mov_b32 v%d, v%d" % (200 + i, ACC + 16 + i))
        a("s_branch %s" % l1)
        a.label(l0)
        for i in range(4):
            a("ds_write_b128 v5, v[%d:%d] offset:%d" % (ACC + 16 + 4 * i, ACC + 16 + 4 * i + 3, 1024 * i))
        for i in range(16):
            a("v_mov_b32 v%d, v%d" % (200 + i, ACC + i))
        a.label(l1)
        a("v_and_b32 v4, 15, v1")
        a("v_lshrrev_b32 v7, 4, v1")
        a("v_lshlrev_b32 v4, 5, v4")
        a("v_lshl_add_u32 v4, v7, 3, v4")
        a("s_lshr_b32 s%d, s%d, 1" % (sT0, sRW))
        a("s_mul_i32 s%d, s%d, %d" % (sT2, sT0, U_CH))
        a("s_add_u32 s%d, s%d, %d" % (sT2, sT2, L_U + 2 * 2044 - 3 * 512))
        a("s_lshl_b32 s4, s%d, 11" % sT1)
        a("s_sub_u32 s%d, s%d, s4" % (sT2, sT2))
        a("v_sub_u32 v4, s%d, v4" % sT2)
        for i in range(4):
            a("ds_read_b64 v[%d:%d], v4 offset:%d" % (236 + 2 * i, 237 + 2 * i, (3 - i) * 512))
        a("s_and_b32 s4, s%d, 0xffff" % sDD)
        a("s_lshr_b32 s5, s%d, 16" % sDD)
        a("s_cmp_eq_u32 s%d, 0" % sT0)
        a("s_cselect_b32 s4, s4, s5")
        a("s_lshl_b32 s5, s4, 16")
        a("v_mov_b32 v8, s4")
        a("v_mov_b32 v9, s5")
        self.pair_sync(1)
        for i in range(4):
            a("ds_read_b128 v[%d:%d], v6 offset:%d" % (220 + 4 * i, 223 + 4 * i, 1024 * i))
        TT = 148
        for i in range(4):
            u0, u1 = 236 + 2 * i, 237 + 2 * i
            a("v_dot2_f32_bf16 v%d, v%d, v9, 0" % (TT + 4 * i + 0, u1))
            a("v_dot2_f32_bf16 v%d, v%d, v8, 0" % (TT + 4 * i + 1, u1))
            a("v_dot2_f32_bf16 v%d, v%d, v9, 0" % (TT + 4 * i + 2, u0))
            a("v_dot2_f32_bf16 v%d, v%d, v8, 0" % (TT + 4 * i + 3, u0))
        TB = 164
        for i in range(4):
            a("v_cvt_pk_bf16_f32 v%d, v%d, v%d" % (TB + 2 * i, TT + 4 * i, TT + 4 * i + 1))
            a("v_cvt_pk_bf16_f32 v%d, v%d, v%d" % (TB + 2 * i + 1, TT + 4 * i + 2, TT + 4 * i + 3))
        a("v_and_b32 v4, 15, v1")
        a("v_lshrrev_b32 v5, 2, v4")
        a("v_lshlrev_b32 v5, 16, v5")
        a("v_and_b32 v4, 3, v4")
        a("v_lshl_add_u32 v5, v4, 5, v5")
        a("v_lshrrev_b32 v7, 4, v1")
        if "st16" in self.exp:
            a("v_lshrrev_b32 v4, 1, v7")
            a("v_lshl_add_u32 v5, v4, 4, v5")
            a("v_and_b32 v4, 1, v7")
            a("v_lshl_add_u32 v5, v4, 18, v5")
        else:
            a("v_lshl_add_u32 v5, v7, 3, v5")
        a("s_lshl_b32 s%d, s%d, 6" % (sT2, sC))
        a("s_lshl_b32 s4, s%d, 1" % sR)
        a("s_add_u32 s%d, s%d, s4" % (sT2, sT2))
        a("s_add_u32 s%d, s%d, s%d" % (sT2, sT2, sT0))
        a("s_lshl_b32 s%d, s%d, 7" % (sT2, sT2))
        a("s_lshl_b32 s4, s%d, 20" % sT1)
        a("s_add_u32 s%d, s%d, s4" % (sT2, sT2))
        a("s_add_u32 s%d, s%d, 0x%x" % (sT2, sT2, WS_YT))
        a("v_add_u32 v5, s%d, v5" % sT2)
        a.lg0()
        for i in range(16):
            a("v_add_f32 v%d, v%d, v%d" % (200 + i, 200 + i, 220 + i))
        YB = 172
        for i in range(8):
            a("v_cvt_pk_bf16_f32 v%d, v%d, v%d" % (YB + i, 200 + 2 * i, 201 + 2 * i))
        for i in range(8):
            a("v_perm_b32 v%d, v%d, v%d, s%d" % (200 + 2 * i, TB + i, YB + i, sP0))
            a("v_perm_b32 v%d, v%d, v%d, s%d" % (201 + 2 * i, TB + i, YB + i, sP1))
        for i in range(16):
            a("v_dot2_f32_bf16 v%d, v%d, v%d, 0" % (220 + i, 200 + i, vONES))
        for i in range(8):
            a("v_cvt_pk_bf16_f32 v%d, v%d, v%d" % (180 + i, 220 + 2 * i, 221 + 2 * i))
        if "st16" in self.exp:
            for u in range(2):
                r = 180 + 4 * u
                a("v_permlane16_swap_b32 v%d, v%d" % (r, r + 2))
                a("v_permlane16_swap_b32 v%d, v%d" % (r + 1, r + 3))
            for u in range(2):
                if u: a("v_add_u32 v5, 0x80000, v5")
                a.vmem("buffer_store_dwordx4 v[%d:%d], v5, s[%d:%d], 0 offen sc1" % (180 + 4 * u, 183 + 4 * u, S_WS, S_WS + 3), "yst")
        else:
          for i in range(4):
            if i: a("v_add_u32 v5, 0x40000, v5")
            a.vmem("buffer_store_dwordx2 v[%d:%d], v5, s[%d:%d], 0 offen sc1" % (180 + 2 * i, 181 + 2 * i, S_WS, S_WS + 3), "yst")
        self.stamp(17)

    def w2_voff(self):
        a = self.a
        sh = 7 if self.w2s else 10
        a("v_lshrrev_b32 v2, 3, v1")
        a("v_and_b32 v2, 3, v2")
        a("v_lshrrev_b32 v3, 5, v1")
        a("v_lshl_add_u32 v2, v3, 3, v2")
        a("v_lshlrev_b32 v2, %d, v2" % sh)
        a("v_lshrrev_b32 v3, 4, v1")
        a("v_and_b32 v3, 3, v3")
        a("v_lshlrev_b32 v3, 1, v3")
        a("v_and_b32 v4, 7, v1")
        a("v_xor_b32 v3, v3, v4")
        a("v_lshl_add_u32 v2, v3, 4, v2")
        if self.w2s:
            a("s_mul_i32 s%d, s%d, 176128" % (sT0, sD))
            a("s_add_u32 s%d, s%d, 0x%x" % (sT0, sT0, WS_W2S))
        else:
            a("s_lshl_b32 s%d, s%d, 7" % (sT0, sD))
        a("v_add_u32 v14, s%d, v2" % sT0)

    def w2_dma(self, lds_base_sreg, lds_off, src_base_sreg, ks_off, tag):
        a = self.a
        inc = [0, 512, 1536, 512] if self.w2s else [0, 4096, 12288, 4096]
        srd = S_WS if self.w2s else S_W2
        fl = " sc1" if self.w2s else ""
        a("s_add_u32 s%d, s%d, %d" % (sT2, src_base_sreg, ks_off * self.KS))
        for m in range(4):
            a("s_add_u32 m0, s%d, %d" % (lds_base_sreg, lds_off + 1024 * m))
            if m: a("s_add_u32 s%d, s%d, %d" % (sT2, sT2, inc[m]))
            a.vmem("buffer_load_dwordx4 v14, s[%d:%d], s%d offen%s lds" % (srd, srd + 3, sT2, fl), tag)

    def w2_slot_dma(self, tag):
        a = self.a
        a("s_lshl_b32 s71, s%d, 12" % sT0)
        a("s_add_u32 s70, s%d, 9" % sT0)
        a("s_cmp_lt_u32 s%d, 13" % sT0)
        a("s_cselect_b32 s70, s%d, s70" % sT0)
        a("s_lshl_b32 s70, s70, %d" % (12 if self.w2s else 15))
        self.w2_dma(71, L_B, 70, 0, tag)

    def w2_early(self):
        a = self.a
        for m in range(3):
            a("s_add_u32 s%d, s%d, %d" % (sT0, sRW, 4 * m))
            if m == 2: a("s_min_u32 s%d, s%d, 9" % (sT0, sT0))
            if m >= 1: a("s_add_u32 s%d, s%d, 4" % (sT0, sT0))
            self.w2_slot_dma("w2e")

    def m_regionA(self):
        a = self.a
        self.w2_voff()
        a("s_lshr_b32 s75, s%d, 1" % sRW)
        a("s_and_b32 s76, s%d, 1" % sRW)
        a("s_mul_i32 s70, s75, %d" % (22 * self.KS))
        self.m_sync(12)
        a("s_mul_i32 s71, s75, %d" % (NA_H * 4096))
        a("s_add_u32 s71, s71, %d" % L_A)
        a("s_lshl_b32 s4, s76, 12")
        a("s_add_u32 s71, s71, s4")
        a("s_lshl_b32 s4, s76, %d" % (12 if self.w2s else 15))
        a("s_add_u32 s70, s70, s4")
        for m in range(3):
            self.w2_dma(71, 8192 * m, 70, 13 + 2 * m, "w2a")

    def n_after_w2a_min(self):
        return (0 if self.noflags else 1) + 4 + 1

    def m_tail(self):
        a = self.a
        self.m_regionA()
        a.wait_vm("yst")
        if not self.noflags:
            a("s_lshl_b32 s4, s%d, 7" % sID)
            a("s_lshl_b32 s5, s%d, 2" % sRW)
            a("s_add_u32 s4, s4, s5")
            a("s_add_u32 s%d, s4, 0x%x" % (sT2, F_H3))
            self.flag_store(sT2, "flag", 2, 3)
        self.stamp(21)
        a("s_mov_b32 s5, %d" % (L_SYNC + 56))
        self.lds_wait(5, 4)
        a("s_mul_i32 s71, s75, %d" % B_HALF)
        a("s_lshl_b32 s4, s76, 12")
        a("s_add_u32 s71, s71, s4")
        if L_B: a("s_add_u32 s71, s71, %d" % L_B)
        self.w2_dma(71, 0, 70, 19, "w2l")
        skl = a.newlabel("L_ml")
        a("s_cmp_eq_u32 s76, 1")
        a("s_cbranch_scc1 %s" % skl)
        self.w2_dma(71, 8192, 70, 21, "w2l")
        a.label(skl)
        self.final_x_load(240, 244)
        a("v_lshrrev_b32 v3, 2, v0")
        a("v_and_b32 v4, 3, v0")
        a("v_lshlrev_b32 v5, 7, v3")
        a("v_lshl_add_u32 v5, v4, 5, v5")
        a("s_lshl_b32 s%d, s%d, 16" % (sT0, sR))
        a("s_lshl_b32 s%d, s%d, 13" % (sT1, sD))
        a("s_add_u32 s%d, s%d, s%d" % (sT0, sT0, sT1))
        a("s_add_u32 s%d, s%d, 0x%x" % (sT0, sT0, WS_YT))
        a("v_add_u32 v8, s%d, v5" % sT0)
        a("v_mul_u32_u24 v9, 144, v3")
        a("v_lshl_add_u32 v9, v4, 5, v9")
        a("v_add_u32 v9, %d, v9" % L_Y)
        early = "yearly" in self.exp and not self.noflags
        if early:
            a("s_lshl_b32 s%d, s%d, 12" % (sT0, sD))
            a("s_add_u32 s%d, s%d, 0x%x" % (sT0, sT0, F_H3))
            a("v_and_b32 v2, 31, v1")
            a("v_lshlrev_b32 v2, 7, v2")
            a("v_add_u32 v2, s%d, v2" % sT0)
            a("buffer_load_dwordx4 v[28:31], v2, s[%d:%d], 0 offen sc1" % (S_WS, S_WS + 3))
        a("s_waitcnt vmcnt(%d)" % (self.n_after_w2a_min() + (1 if early else 0)))
        self.stamp(18)
        a("s_barrier")
        a("s_waitcnt vmcnt(0)")
        def yloads():
            a("buffer_load_dwordx4 v[20:23], v8, s[%d:%d], 0 offen sc1" % (S_WS, S_WS + 3))
            a("buffer_load_dwordx4 v[24:27], v8, s[%d:%d], 0 offen offset:16 sc1" % (S_WS, S_WS + 3))
        if early:
            lslow = "L_yslow"; lback = "L_yback"
            for i in range(4): a("v_xor_b32 v%d, s%d, v%d" % (28 + i, sNONCE, 28 + i))
            a("v_or3_b32 v28, v28, v29, v30")
            a("v_or_b32 v28, v28, v31")
            a("v_cmp_ne_u32 vcc, 0, v28")
            a("s_cbranch_vccnz %s" % lslow)
            yloads()
            a("s_barrier")
            a.label(lback)
            self.yslow_body = yloads
        else:
            a("s_barrier")
            if not self.noflags and "noh3" not in self.exp:
                a("s_lshl_b32 s%d, s%d, 12" % (sT0, sD))
                a("s_add_u32 s%d, s%d, 0x%x" % (sT0, sT0, F_H3))
                self.poll(sT0, 32, 4, 128)
            yloads()
        self.stamp(7)
        a("s_waitcnt vmcnt(0)")
        a("ds_write_b128 v9, v[20:23]")
        a("ds_write_b128 v9, v[24:27] offset:16")
        a.lg0()
        a("s_barrier")

    def y_slow(self):
        a = self.a
        a.label("L_yslow")
        a("s_barrier")
        a("s_lshl_b32 s%d, s%d, 12" % (sT0, sD))
        a("s_add_u32 s%d, s%d, 0x%x" % (sT0, sT0, F_H3))
        self.poll(sT0, 32, 4, 128)
        self.yslow_body()
        a("s_branch L_yback")

    def final_x_load(self, xr, ar):
        a = self.a
        a("s_and_b32 s%d, s%d, 3" % (sT0, sW))
        a("s_lshl_b32 s%d, s%d, 4" % (sT0, sT0))
        a("s_lshl_b32 s%d, s%d, 6" % (sT1, sR))
        a("s_add_u32 s%d, s%d, s%d" % (sT0, sT0, sT1))
        a("s_lshl_b32 s%d, s%d, 10" % (sT0, sT0))
        a("s_lshl_b32 s%d, s%d, 7" % (sT1, sD))
        a("s_add_u32 s%d, s%d, s%d" % (sT0, sT0, sT1))
        a("s_lshr_b32 s%d, s%d, 2" % (sT1, sW))
        a("s_lshl_b32 s%d, s%d, 6" % (sT1, sT1))
        a("s_add_u32 s%d, s%d, s%d" % (sT0, sT0, sT1))
        a("v_lshrrev_b32 v2, 2, v1")
        a("v_lshlrev_b32 v2, 10, v2")
        a("v_and_b32 v3, 3, v1")
        a("v_lshl_add_u32 v2, v3, 4, v2")
        a("v_add_u32 v%d, s%d, v2" % (ar, sT0))
        a.vmem("buffer_load_dwordx4 v[%d:%d], v%d, s[%d:%d], 0 offen" % (xr, xr + 3, ar, S_X, S_X + 3), "xf")

    def u_slow(self):
        a = self.a
        a.label("L_uslow")
        a("s_lshl_b32 s%d, s%d, 12" % (sT0, sC))
        a("s_add_u32 s%d, s%d, 0x%x" % (sT0, sT0, F_H1))
        self.poll(sT0, 32, 1, 128)
        for i in range(4):
            a("buffer_load_dwordx4 v[%d:%d], v172, s[%d:%d], 0 offen offset:%d sc1" % (152 + 4 * i, 155 + 4 * i, S_WS, S_WS + 3, 1024 * i))
        a("s_waitcnt vmcnt(0)")
        for i in range(4):
            a("ds_write_b128 v174, v[%d:%d] offset:%d" % (152 + 4 * i, 155 + 4 * i, 1024 * i))
        a("s_waitcnt lgkmcnt(0)")
        a("s_branch L_uback")

    NEGM, RS, NMRS = 100, 101, 102
    def norm2(self, X, t):
        L = []
        L.append("v_lshlrev_b32 v%d, 16, v%d" % (t + 0, X))
        L.append("v_and_b32 v%d, v%d, v%d" % (t + 1, vMHI, X))
        L.append("v_lshlrev_b32 v%d, 16, v%d" % (t + 2, X + 1))
        L.append("v_and_b32 v%d, v%d, v%d" % (t + 3, vMHI, X + 1))
        if self.relax_ln:
            for i in range(4):
                L.append("v_fma_f32 v%d, v%d, v%d, v%d" % (t + i, t + i, self.RS, self.NMRS))
        else:
            for i in range(4):
                L.append("v_add_f32 v%d, v%d, v%d" % (t + i, t + i, self.NEGM))
            L.append("v_cvt_pk_bf16_f32 v%d, v%d, v%d" % (t + 4, t + 0, t + 1))
            L.append("v_cvt_pk_bf16_f32 v%d, v%d, v%d" % (t + 5, t + 2, t + 3))
            L.append("v_lshlrev_b32 v%d, 16, v%d" % (t + 0, t + 4))
            L.append("v_and_b32 v%d, v%d, v%d" % (t + 1, vMHI, t + 4))
            L.append("v_lshlrev_b32 v%d, 16, v%d" % (t + 2, t + 5))
            L.append("v_and_b32 v%d, v%d, v%d" % (t + 3, vMHI, t + 5))
            for i in range(4):
                L.append("v_mul_f32 v%d, v%d, v%d" % (t + i, t + i, self.RS))
        L.append("v_cvt_pk_bf16_f32 v%d, v%d, v%d" % (X, t + 0, t + 1))
        L.append("v_cvt_pk_bf16_f32 v%d, v%d, v%d" % (X + 1, t + 2, t + 3))
        return L

    def norm_chunk(self, j):
        a = self.a
        X = 20 + 8 * j
        for half in range(2):
            s1 = self.norm2(X + 4 * half, 104); s2 = self.norm2(X + 4 * half + 2, 110)
            for x, y in zip(s1, s2):
                a(x); a(y)
            a.lds("ds_write_b128 v116, v[%d:%d] offset:%d" % (X + 4 * half, X + 4 * half + 3, L_XN + (j % NXN) * 8192 + half * 1024), "xw")

    def h_first(self):
        a = self.a
        self.vm_m_first = a.vm
        a.vm = Q(["cpf"] if "codepf0" in self.exp else [])
        a.label("L_Hfirst")
        self.rot_calc()
        a("s_lshl_b32 s%d, s%d, 16" % (sT0, sR))
        a("s_lshl_b32 s%d, s%d, 14" % (sT1, sRW))
        a("s_add_u32 s%d, s%d, s%d" % (sT0, sT0, sT1))
        a("v_lshrrev_b32 v6, 2, v1")
        a("v_lshlrev_b32 v6, 10, v6")
        a("v_and_b32 v7, 3, v1")
        a("v_lshl_add_u32 v6, v7, 4, v6")
        a("v_add_u32 v6, s%d, v6" % sT0)
        a("s_lshl_b32 s%d, s%d, 7" % (sT0, sROT))
        a("s_waitcnt lgkmcnt(0)")
        a("s_mov_b64 s[8:9], s[64:65]")
        if self.stamps:
            a("s_memrealtime s[4:5]"); a("s_waitcnt lgkmcnt(0)"); a("v_writelane_b32 v255, s4, 0")
        for j in range(8):
            if j:
                a("s_add_u32 s%d, s%d, 128" % (sT0, sT0))
                a("s_and_b32 s%d, s%d, 1023" % (sT0, sT0))
            a.vmem("buffer_load_dwordx4 v[%d:%d], v6, s[%d:%d], s%d offen" % (20 + 8 * j, 23 + 8 * j, S_X, S_X + 3, sT0), "x%d" % j)
            a.vmem("buffer_load_dwordx4 v[%d:%d], v6, s[%d:%d], s%d offen offset:64" % (24 + 8 * j, 27 + 8 * j, S_X, S_X + 3, sT0), "x%d" % j)
        a("s_branch L_H")
        self.vm_h_first = a.vm

    def h_front(self):
        a = self.a
        a.vm = self.vm_h_first; a.lg_clear()
        self.p0_rest()
        a("s_waitcnt lgkmcnt(0)")
        if "tlbpf" in self.exp:
            a("v_lshlrev_b32 v2, 19, v1")
            a("v_cmp_gt_u32 vcc, 28, v1")
            a("v_mov_b32 v3, 0x40000000")
            a("v_cndmask_b32 v2, v3, v2, vcc")
            a.vmem("buffer_load_dword v245, v2, s[%d:%d], 0 offen" % (S_WS, S_WS + 3), "tlb")
            a("v_lshlrev_b32 v2, 19, v1")
            a.vmem("buffer_load_dword v246, v2, s[%d:%d], 0 offen" % (S_OUT, S_OUT + 3), "tlb")
            a.vmem("buffer_load_dword v247, v2, s[%d:%d], 0 offen" % (S_W2, S_W2 + 3), "tlb")
            a.vmem("buffer_load_dword v243, v2, s[%d:%d], 0 offen" % (S_SSM, S_SSM + 3), "tlb")
        if self.w2s:
            a("s_lshl_b32 s%d, s2, 13" % sT2)
            a("v_and_b32 v2, 255, v0")
            a("v_lshlrev_b32 v3, 4, v2")
            a("v_add_u32 v3, s%d, v3" % sT2)
            a("s_cmp_lt_u32 s2, 172")
            a("s_cselect_b32 s86, 0, 0x40000000")
            a.vmem("buffer_load_dwordx4 v[224:227], v3, s[%d:%d], s86 offen" % (S_W2, S_W2 + 3), "w2sl")
            a("v_add_u32 v3, 4096, v3")
            a.vmem("buffer_load_dwordx4 v[228:231], v3, s[%d:%d], s86 offen" % (S_W2, S_W2 + 3), "w2sl")
            a("v_bfe_u32 v4, v2, 3, 3")
            a("v_mul_u32_u24 v4, 176128, v4")
            a("v_lshrrev_b32 v5, 6, v2")
            a("v_lshl_add_u32 v4, v5, 7, v4")
            a("v_and_b32 v5, 7, v2")
            a("v_lshl_add_u32 v4, v5, 4, v4")
            a("s_lshl_b32 s%d, s2, 10" % sT2)
            a("s_add_u32 s%d, s%d, 0x%x" % (sT2, sT2, WS_W2S))
            a("v_add_u32 v232, s%d, v4" % sT2)
        if "codepf" in self.exp:
            a("s_getpc_b64 s[82:83]")
            a.label("L_pc")
            a("s_sub_u32 s82, s82, L_pc-%s" % KNAME)
            a("s_subb_u32 s83, s83, 0")
            a("v_lshlrev_b32 v2, 7, v1")
            a("s_lshl_b32 s84, s%d, 13" % sRW)
            a("v_add_u32 v2, s84, v2")
            a("v_min_u32 v2, L_codeend-%s, v2" % KNAME)
            a("v_mov_b32 v3, s83")
            a("v_add_co_u32 v2, vcc, s82, v2")
            a("v_addc_co_u32 v3, vcc, 0, v3, vcc")
            a.vmem("global_load_dword v244, v[2:3], off", "cpf")
        a("s_waitcnt lgkmcnt(0)")
        a("s_barrier")

        if "V3" in self.exp:
            self.w1_voffs()
            for f in self.w1_dma_ops(0) + self.w1_dma_ops(1): f()
        a("s_setprio 0")
        if not self.noflags:
            a("v_mov_b32 v7, 0")
        a("v_lshrrev_b32 v4, 2, v1")
        a("v_and_b32 v5, 3, v1")
        a("v_lshlrev_b32 v2, 1, v5")
        a("v_xor_b32 v4, v4, v2")
        a("v_lshlrev_b32 v4, 4, v4")
        a("v_lshl_add_u32 v4, v5, 8, v4")
        a("s_lshl_b32 s%d, s%d, 11" % (sT2, sRW))
        a("v_add_u32 v116, s%d, v4" % sT2)

    def h_ssm_load(self):
        a = self.a
        a("s_lshl_b32 s%d, s%d, 6" % (sT2, sC))
        a("s_lshl_b32 s%d, s%d, 1" % (sT1, sR))
        a("s_add_u32 s%d, s%d, s%d" % (sT2, sT2, sT1))
        a("s_lshl_b32 s%d, s%d, 12" % (sT2, sT2))
        a("v_and_b32 v3, 255, v0")
        a("v_lshlrev_b32 v3, 4, v3")
        a("v_add_u32 v2, s%d, v3" % sT2)
        a("v_add_u32 v4, -8, v2")
        for ch in range(2):
            a.vmem("buffer_load_dwordx2 v[%d:%d], v4, s[%d:%d], 0 offen" % (84 + 6 * ch, 85 + 6 * ch, S_SSM, S_SSM + 3), "ssm")
            a.vmem("buffer_load_dwordx4 v[%d:%d], v2, s[%d:%d], 0 offen" % (86 + 6 * ch, 89 + 6 * ch, S_SSM, S_SSM + 3), "ssm")
            if ch == 0:
                a("v_add_u32 v2, 4096, v2")
                a("v_add_u32 v4, 4096, v4")

    def h_stats(self):
        a = self.a
        X = 20
        for i in range(8): a("v_mov_b32 v%d, 0" % (104 + i))
        for i in range(64):
            if i % 8 == 0:
                a.wait_vm("x%d" % (i // 8))
                if i == 0: self.stamp(13)
            a("v_dot2_f32_bf16 v%d, v%d, v%d, v%d" % (104 + (i & 3), X + i, vONES, 104 + (i & 3)))
            a("v_dot2_f32_bf16 v%d, v%d, v%d, v%d" % (108 + (i & 3), X + i, X + i, 108 + (i & 3)))
        a("v_add_f32 v104, v104, v105"); a("v_add_f32 v106, v106, v107")
        a("v_add_f32 v108, v108, v109"); a("v_add_f32 v110, v110, v111")
        a("v_add_f32 v2, v104, v106"); a("v_add_f32 v3, v108, v110")
        for ctl in ("quad_perm:[1,0,3,2]", "quad_perm:[2,3,0,1]"):
            a("v_add_f32_dpp v2, v2, v2 %s row_mask:0xf bank_mask:0xf" % ctl)
            a("v_add_f32_dpp v3, v3, v3 %s row_mask:0xf bank_mask:0xf" % ctl)
        a("v_mul_f32 v2, 0x3b000000, v2")
        a("v_mul_f32 v3, 0x3b000000, v3")
        a("v_cvt_pk_bf16_f32 v4, v2, v2")
        a("v_fma_f32 v3, -v2, v2, v3")
        a("v_lshlrev_b32 v4, 16, v4")
        a("v_max_f32 v3, 0, v3")
        a("v_cvt_pk_bf16_f32 v3, v3, v3")
        a("v_lshlrev_b32 v3, 16, v3")
        a("v_add_f32 v3, 0x3727c5ac, v3")
        a("v_cvt_pk_bf16_f32 v3, v3, v3")
        a("v_lshlrev_b32 v3, 16, v3")
        a("v_sqrt_f32 v3, v3")
        a("v_cvt_pk_bf16_f32 v3, v3, v3")
        a("v_lshlrev_b32 v3, 16, v3")
        a("v_rcp_f32 v%d, v3" % self.RS)
        a("v_sub_f32 v%d, 0, v4" % self.NEGM)
        a("v_mul_f32 v%d, v%d, v%d" % (self.NMRS, self.NEGM, self.RS))
        a("v_lshrrev_b32 v6, 2, v1")
        a("s_lshl_b32 s%d, s%d, 4" % (sT2, sRW))
        a("v_add_u32 v6, s%d, v6" % sT2)
        a("v_lshlrev_b32 v5, 3, v6")
        a("v_add_u32 v5, %d, v5" % L_STATS)
        a("v_mov_b32 v2, v4")
        a("v_mov_b32 v3, v%d" % self.RS)
        a.lds("ds_write_b64 v5, v[2:3]", "st")

    def h_tbuild(self, ch):
        a = self.a
        D = 84 + 6 * ch
        E = 118
        for p in range(5):
            a("v_alignbit_b32 v%d, v%d, v%d, 16" % (E + p, D + p + 1, D + p))
        for p in range(4):
            a("v_mov_b32 v%d, v%d" % (124 + p, D + 1 + p))
            a("v_mov_b32 v%d, v%d" % (128 + p, E + 1 + p))
        a("v_and_b32 v3, 255, v0")
        a("v_lshlrev_b32 v3, 4, v3")
        a("v_add_u32 v3, %d, v3" % (L_T + ch * T_CH + 24))
        a("ds_write_b128 v3, v[118:121]")
        a("ds_write_b128 v3, v[124:127] offset:%d" % T_CP)
        a("ds_write_b128 v3, v[128:131] offset:%d" % (2 * T_CP))
        a("ds_write_b128 v3, v[%d:%d] offset:%d" % (D + 2, D + 5, 3 * T_CP))

    def w2flag_loads(self, tag):
        a = self.a
        for i in range(3):
            a("v_add_u32 v3, %d, v1" % (64 * i))
            if i == 2:
                a("v_cmp_gt_u32 vcc, 172, v3")
                a("v_cndmask_b32 v3, 0, v3, vcc")
            a("v_lshlrev_b32 v3, 7, v3")
            a("v_add_u32 v3, 0x%x, v3" % F_H4)
            ins = "buffer_load_dword v%d, v3, s[%d:%d], 0 offen sc1" % (100 + i, S_WS, S_WS + 3)
            if tag: a.vmem(ins, tag)
            else: a(ins)

    def w2flag_check(self):
        a = self.a
        for i in range(3): a("v_xor_b32 v%d, s%d, v%d" % (104 + i, sNONCE, 100 + i))
        a("v_or3_b32 v104, v104, v105, v106")
        a("v_cmp_ne_u32 vcc, 0, v104")

    def h_uload(self):
        a = self.a
        if self.noflags: a.wait_vm("ssm")
        if not self.noflags:
            dn = a.newlabel("L_h1ok")
            a.wait_vm("h1f")
            for i in range(4): a("v_xor_b32 v%d, s%d, v%d" % (96 + i, sNONCE, 96 + i))
            a("v_or3_b32 v96, v96, v97, v98")
            a("v_or_b32 v96, v96, v99")
            a("v_cmp_ne_u32 vcc, 0, v96")
            a("s_cbranch_vccz %s" % dn)
            a("s_lshl_b32 s%d, s%d, 12" % (sT0, sC))
            a("s_add_u32 s%d, s%d, 0x%x" % (sT0, sT0, F_H1))
            self.poll(sT0, 32, 4, 128)
            a.label(dn)
        self.stamp(3)
        a("s_lshl_b32 s%d, s%d, 6" % (sT0, sC))
        a("s_lshl_b32 s%d, s%d, 1" % (sT1, sR))
        a("s_add_u32 s%d, s%d, s%d" % (sT0, sT0, sT1))
        a("s_lshl_b32 s%d, s%d, 12" % (sT0, sT0))
        a("s_lshl_b32 s%d, s%d, 11" % (sT1, sRW))
        a("s_add_u32 s%d, s%d, s%d" % (sT0, sT0, sT1))
        a("v_lshlrev_b32 v4, 4, v1")
        a("v_add_u32 v5, s%d, v4" % sT0)
        a.vmem("buffer_load_dwordx4 v[20:23], v5, s[%d:%d], 0 offen sc1" % (S_WS, S_WS + 3), "u")
        a.vmem("buffer_load_dwordx4 v[24:27], v5, s[%d:%d], 0 offen offset:1024 sc1" % (S_WS, S_WS + 3), "u")
        self.h_tbuild(0)
        self.h_tbuild(1)
        if "w2early" in self.exp:
            self.w2_voff()
            self.w2_early()
        a("v_lshlrev_b32 v4, 4, v1")
        a("s_lshr_b32 s%d, s%d, 1" % (sT0, sRW))
        a("s_mul_i32 s%d, s%d, %d" % (sT0, sT0, U_CH))
        a("s_and_b32 s%d, s%d, 1" % (sT1, sRW))
        a("s_lshl_b32 s%d, s%d, 11" % (sT2, sT1))
        a("s_add_u32 s%d, s%d, s%d" % (sT0, sT0, sT2))
        a("s_add_u32 s%d, s%d, %d" % (sT0, sT0, L_U))
        a("v_add_u32 v6, s%d, v4" % sT0)
        for i in range(4): a("v_mov_b32 v%d, 0" % (28 + i))
        a("s_cmp_eq_u32 s%d, 1" % sT1)
        a("s_cselect_b32 exec_lo, -1, 0")
        a("s_mov_b32 exec_hi, 0")
        a("ds_write_b128 v6, v[28:31] offset:2048")
        a("s_mov_b64 exec, -1")
        a.wait_vm("u")
        a("ds_write_b128 v6, v[20:23]")
        a("ds_write_b128 v6, v[24:27] offset:1024")

    def norm_seq(self, j):
        a = self.a
        X = 20 + 8 * j
        seq = []
        for half in range(2):
            s1 = self.norm2(X + 4 * half, 104); s2 = self.norm2(X + 4 * half + 2, 110)
            if "hnonorm" in self.exp and j >= 2:
                s1 = ["s_nop 0"] * 8; s2 = ["s_nop 0"] * 8
            for x, y in zip(s1, s2):
                seq.append(x); seq.append(y)
            if "wmid" in self.exp:
                seq.append(lambda half=half: a.lds("ds_write_b128 v116, v[%d:%d] offset:%d" % (X + 4 * half, X + 4 * half + 3, L_XN + (j % NXN) * 8192 + half * 1024), "xw%d" % j))
        if not ("hnowrite" in self.exp and j >= 2) and "wmid" not in self.exp:
            for half in range(2):
                seq.append(lambda half=half: a.lds("ds_write_b128 v116, v[%d:%d] offset:%d" % (X + 4 * half, X + 4 * half + 3, L_XN + (j % NXN) * 8192 + half * 1024), "xw%d" % j))
        return seq

    def h_gemm1_side(self):
        a = self.a
        if self.w2s:
            a.wait_vm("w2sl")
            a.vmem("buffer_store_dwordx4 v[224:227], v232, s[%d:%d], s86 offen sc1" % (S_WS, S_WS + 3), "w2st")
            a.vmem("buffer_store_dwordx4 v[228:231], v232, s[%d:%d], s86 offen offset:512 sc1" % (S_WS, S_WS + 3), "w2st")
        if "hprio" in self.exp: a("s_setprio 2")
        if "lnpre" in self.exp:
            def split(j):
                sq = self.norm_seq(j)
                return sq[:-2], sq[-2:]
            wr = {}
            for j in range(8):
                v_, w_ = split(j)
                for x in v_: self.run(x)
                if j < 4:
                    for x in w_: self.run(x)
                else:
                    wr[j] = w_
                if j == 1 and not self.noflags:
                    a.vmem("buffer_load_dword v19, v7, s[%d:%d], 0 offen sc1" % (S_DBG, S_DBG + 3), "nonce")
            a.need_lds("xw0", "xw1")
            a("s_barrier")
        else:
            for x in self.norm_seq(0): self.run(x)
            s1 = self.norm_seq(1)
            h = len(s1) // 2
            for x in s1[:h]: self.run(x)
            for x in s1[h:]: self.run(x)
            if not self.noflags:
                a.vmem("buffer_load_dword v19, v7, s[%d:%d], 0 offen sc1" % (S_DBG, S_DBG + 3), "nonce")
            s2 = self.norm_seq(2)
            for x in s2[:h]: self.run(x)
            a.need_lds("xw0", "xw1")
            if "V3" in self.exp: a.wait_vm("w1c1")
            a("s_barrier")
            for x in s2[h:]: self.run(x)
        for j in range(8):
            if "lnpre" in self.exp:
                if j >= 1 and j + 3 <= 7:
                    for x in wr[j + 3]: self.run(x)
            elif j + 3 <= 7:
                for x in self.norm_seq(j + 3): self.run(x)
            if j == self.pf2j and "pf2" in self.exp: self.line_prefetch("w2", 242)
            if j == 1: self.h_ssm_load()
            if j == (self.w2j if self.w2s else 4) and not self.noflags:
                self.get_nonce()
            if j == 5:
                if not self.noflags:
                    a("s_lshl_b32 s%d, s%d, 12" % (sT0, sC))
                    a("s_add_u32 s%d, s%d, 0x%x" % (sT0, sT0, F_H1))
                    a("v_and_b32 v2, 31, v1")
                    a("v_lshlrev_b32 v2, 7, v2")
                    a("v_add_u32 v2, s%d, v2" % sT0)
                if self.w2s:
                    skf = a.newlabel("L_w2f")
                    a("s_cmp_lg_u32 s%d, 0" % sRW)
                    a("s_cbranch_scc1 %s" % skf)
                    self.w2flag_loads(tag=None)
                    a.label(skf)
                if not self.noflags:
                    a.vmem("buffer_load_dwordx4 v[96:99], v2, s[%d:%d], 0 offen sc1" % (S_WS, S_WS + 3), "h1f")
            if j + 1 <= 6:
                if j + 2 <= 7 and "hnowrite" not in self.exp: a.need_lds("xw%d" % (j + 2))
                if j == self.w2j and self.w2s: a.wait_vm("w2st")
                a("s_barrier")
                if j == self.w2j and self.w2s:
                    sk = a.newlabel("L_w2c")
                    a("s_cmp_lt_u32 s2, 172")
                    a("s_cselect_b32 s4, s%d, 1" % sRW)
                    a("s_cmp_lg_u32 s4, 0")
                    a("s_cbranch_scc1 %s" % sk)
                    a("s_lshl_b32 s4, s2, 7")
                    a("s_add_u32 s%d, s4, 0x%x" % (sT2, F_H4))
                    q = list(a.vm.q)
                    self.flag_store(sT2, "flag", 2, 3)
                    a.vm.q = q
                    a.label(sk)
                if "itst" in self.exp: self.stamp(23 + j)
        if "hprio" in self.exp: a("s_setprio 0")
        self.h_uload()
        if self.w2s:
            lp = a.newlabel("L_w2p"); dn = a.newlabel("L_w2d")
            a("s_cmp_lg_u32 s%d, 0" % sRW)
            a("s_cbranch_scc1 %s" % dn)
            a("s_mov_b32 s%d, 0" % sT3)
            a.label(lp)
            self.w2flag_check()
            a("s_cbranch_vccz %s" % dn)
            self.w2flag_loads(tag=None)
            a("s_waitcnt vmcnt(0)")
            a("s_add_u32 s%d, s%d, 1" % (sT3, sT3))
            a("s_cmp_lt_u32 s%d, 100000" % sT3)
            a("s_cbranch_scc1 %s" % lp)
            if "pf4" in self.exp:
                lok = a.newlabel("L_w2ok")
                a.lines.pop()
                a("s_cbranch_scc1 %s" % lp)
            a.label(dn)
            if "pf4" in self.exp:
                skp = a.newlabel("L_pf4")
                a("s_cmp_lg_u32 s%d, 0" % sRW)
                a("s_cbranch_scc1 %s" % skp)
                a("s_lshr_b32 s%d, s2, 3" % sT0)
                if "map42" in self.exp:
                    a("s_mul_i32 s%d, s%d, %d" % (sT0, sT0, 172 * 128))
                    a("s_bfe_u32 s%d, s2, 0x10002" % sT1)
                    a("s_mul_i32 s%d, s%d, %d" % (sT1, sT1, 4 * 176128))
                    a("s_add_u32 s%d, s%d, s%d" % (sT0, sT0, sT1))
                    nl = 172
                else:
                    a("s_mul_i32 s%d, s%d, %d" % (sT0, sT0, 344 * 128))
                    nl = 344
                a("s_add_u32 s%d, s%d, 0x%x" % (sT0, sT0, WS_W2S))
                for i in range((nl + 63) // 64):
                    a("v_add_u32 v3, %d, v1" % (64 * i))
                    a("v_min_u32 v3, %d, v3" % (nl - 1))
                    a("v_lshlrev_b32 v3, 7, v3")
                    a("v_add_u32 v3, s%d, v3" % sT0)
                    a("buffer_load_dword v%d, v3, s[%d:%d], 0 offen sc1" % (240 + (i & 3), S_WS, S_WS + 3))
                a.label(skp)
        self.w2_voff()
        a.lg0()
        a("s_barrier")
        self.stamp(2)

    def h_gemm2(self):
        a = self.a
        HF, ACC = 20, 196
        WBUF = [228, 2]
        AB = 244
        PF = 10
        a("s_lshr_b32 s75, s%d, 1" % sRW)
        a("s_and_b32 s76, s%d, 1" % sRW)
        if "poller3" in self.exp:
            lp3 = a.newlabel("L_hp3"); lgo = a.newlabel("L_hgo")
            a("s_cmp_eq_u32 s%d, 3" % sRW)
            a("s_cbranch_scc1 %s" % lp3)
            q0 = list(a.vm.q)
            for m in range(9):
                a("s_add_u32 s%d, s%d, %d" % (sT0, sRW, 3 * m))
                if m == 8: a("s_min_u32 s%d, s%d, 25" % (sT0, sT0))
                a("s_lshr_b32 s%d, s%d, 1" % (sT1, sT0))
                a("s_and_b32 s%d, s%d, 1" % (sT0, sT0))
                a("s_mul_i32 s71, s%d, %d" % (sT0, NB_H))
                a("s_add_u32 s71, s71, s%d" % sT1)
                a("s_lshl_b32 s71, s71, 12")
                a("s_mul_i32 s70, s%d, 22" % sT0)
                a("s_add_u32 s70, s70, s%d" % sT1)
                a("s_lshl_b32 s70, s70, %d" % (12 if self.w2s else 15))
                self.w2_dma(71, L_B, 70, 0, "w2b")
            a("s_branch %s" % lgo)
            a.label(lp3)
            if not self.noflags:
                a("s_lshl_b32 s%d, s%d, 10" % (sT0, sR))
                a("s_add_u32 s%d, s%d, 0x%x" % (sT0, sT0, F_H2))
                self.poll(sT0, 8, 4, 128)
            a("v_mov_b32 v2, %d" % (L_SYNC + 60))
            a("v_mov_b32 v3, 1")
            a("ds_write_b32 v2, v3")
            a.label(lgo)
        else:
            def w2b_slot(m):
                a("s_add_u32 s%d, s%d, %d" % (sT0, sRW, 4 * m))
                if m == 6: a("s_min_u32 s%d, s%d, 25" % (sT0, sT0))
                a("s_lshr_b32 s%d, s%d, 1" % (sT1, sT0))
                a("s_and_b32 s%d, s%d, 1" % (sT0, sT0))
                a("s_mul_i32 s71, s%d, %d" % (sT0, NB_H))
                a("s_add_u32 s71, s71, s%d" % sT1)
                a("s_lshl_b32 s71, s71, 12")
                a("s_mul_i32 s70, s%d, 22" % sT0)
                a("s_add_u32 s70, s70, s%d" % sT1)
                a("s_lshl_b32 s70, s70, %d" % (12 if self.w2s else 15))
                self.w2_dma(71, L_B, 70, 0, "w2b" if m < self.w2p1 else "w2b2")
            self.w2b_slot = w2b_slot
            if "w2early" in self.exp:
                for m in range(4):
                    a("s_add_u32 s%d, s%d, %d" % (sT0, sRW, 4 * m + (4 if m == 0 else 10)))
                    self.w2_slot_dma("w2b")
            else:
                for m in range(self.w2p1):
                    w2b_slot(m)
        a("s_lshl_b32 s%d, s%d, 2" % (sT2, sR))
        a("s_lshl_b32 s4, s76, 1")
        a("s_add_u32 s%d, s%d, s4" % (sT2, sT2))
        a("s_mul_i32 s%d, s%d, 44032" % (sT2, sT2))
        a("s_mul_i32 s4, s75, %d" % (22 * 1024))
        a("s_add_u32 s%d, s%d, s4" % (sT2, sT2))
        a("s_add_u32 s%d, s%d, 0x%x" % (sT2, sT2, WS_H))
        a("v_lshlrev_b32 v18, 4, v1")
        a("v_add_u32 v18, s%d, v18" % sT2)
        a("v_add_u32 v19, 44032, v18")
        a("v_lshrrev_b32 v2, 4, v1")
        a("v_and_b32 v3, 15, v1")
        a("v_lshrrev_b32 v3, 2, v3")
        a("v_lshrrev_b32 v4, 1, v2")
        a("v_lshlrev_b32 v4, 4, v4")
        a("v_and_b32 v5, 1, v2")
        a("v_lshl_add_u32 v4, v5, 2, v4")
        a("v_add_u32 v4, v4, v3")
        a("v_lshlrev_b32 v4, 7, v4")
        a("v_and_b32 v6, 1, v1")
        a("v_lshl_add_u32 v4, v6, 3, v4")
        a("v_lshlrev_b32 v5, 1, v5")
        a("v_lshrrev_b32 v6, 1, v3")
        a("v_add_u32 v5, v5, v6")
        a("v_lshlrev_b32 v5, 1, v5")
        a("v_and_b32 v6, 3, v1")
        a("v_lshrrev_b32 v6, 1, v6")
        a("s_mul_i32 s4, s75, %d" % B_HALF)
        if L_B: a("s_add_u32 s4, s4, %d" % L_B)
        for b in range(4):
            a("v_add_u32 v7, %d, v6" % (2 * b))
            a("v_xor_b32 v7, v7, v5")
            a("v_lshl_add_u32 v7, v7, 4, v4")
            a("v_add_u32 v%d, s4, v7" % (AB + b))
        a("s_mul_i32 s5, s75, %d" % (NA_H * 4096))
        a("s_add_u32 s5, s5, %d" % L_A)
        a("s_sub_u32 s77, s5, s4")
        a("s_sub_u32 s79, s4, s5")
        for i in range(32): a("v_mov_b32 v%d, 0" % (ACC + i))
        if "poller3" in self.exp:
            a("s_mov_b32 s5, %d" % (L_SYNC + 60))
            self.lds_wait(5, 1, 253, 254)
        else:
            self.stamp(5)
            if not self.noflags and "noh2" not in self.exp:
                a("s_lshl_b32 s%d, s%d, 10" % (sT0, sR))
                a("s_add_u32 s%d, s%d, 0x%x" % (sT0, sT0, F_H2))
                self.poll(sT0, 8, 4, 128)
        self.stamp(6)

        def hload(i):
            ops = []
            for t in range(2):
                def f(t=t):
                    r = HF + (i * 2 + t) * 4
                    so = i * 1024
                    if so < 4096:
                        a.vmem("buffer_load_dwordx4 v[%d:%d], v%d, s[%d:%d], 0 offen offset:%d sc1" % (r, r + 3, 18 + t, S_WS, S_WS + 3, so), "h%d" % i)
                    else:
                        if t == 0: a("s_mov_b32 s80, %d" % (so & ~4095))
                        a.vmem("buffer_load_dwordx4 v[%d:%d], v%d, s[%d:%d], s80 offen offset:%d sc1" % (r, r + 3, 18 + t, S_WS, S_WS + 3, so & 4095), "h%d" % i)
                ops.append(f)
            return ops

        def read_ops(i):
            buf = WBUF[i & 1]
            if i < 13: so = i * 4096
            elif i < 19: so = (i - 13) * 4096
            else: so = (i - 19) * 4096
            ops = []
            sw = {13: 77, 19: 79}.get(i)
            if sw:
                for b in range(4): ops.append("v_add_u32 v%d, s%d, v%d" % (AB + b, sw, AB + b))
            for b in range(4):
                for hh in range(2):
                    r0 = buf + 4 * b + 2 * hh
                    ops.append(lambda r0=r0, b=b, hh=hh: a.lds("ds_read_b64_tr_b16 v[%d:%d], v%d offset:%d" % (r0, r0 + 1, AB + b, so + hh * 1024), "w%d_%d" % (i, b)))
            return ops

        def mfma_ops(i):
            buf = WBUF[i & 1]
            ops = []
            for b in range(4):
                for t in range(2):
                    def f(b=b, t=t):
                        if b == 0 and t == 0:
                            a.wait_both("h%d" % i, ["w%d_%d" % (i, bb) for bb in range(4)])
                        acc = ACC + (b * 2 + t) * 4
                        hr = HF + (i * 2 + t) * 4
                        a("v_mfma_f32_16x16x32_bf16 v[%d:%d], v[%d:%d], v[%d:%d], v[%d:%d]" % (acc, acc + 3, buf + 4 * b, buf + 4 * b + 3, hr, hr + 3, acc, acc + 3))
                    ops.append(f)
            return ops

        allh = []
        for i in range(22): allh += hload(i)
        hp = 0
        for f in allh[:self.hinit]: f()
        hp = self.hinit
        for m in range(self.w2p1, 7):
            self.w2b_slot(m)
        a("s_waitcnt vmcnt(%d)" % min(63, self.hinit + 4 * (7 - self.w2p1)))
        self.m_sync(11, va=253, vb=254)
        self.stamp(19)
        for f in read_ops(0): self.run(f)
        last = a.newlabel("L_g2l")
        for i in range(22):
            if i == 12:
                a.lg0()
                a("s_barrier")
            if i == 18:
                a.lg0()
                a("s_barrier")
            if self.w2p1 < 7 and i == 2 * self.w2p1 - 1:
                a.wait_vm("w2b2")
                self.m_sync(10, va=253, vb=254)
            if i == 4:
                a("v_mov_b32 v253, %d" % (L_SYNC + 56))
                a("v_mov_b32 v254, 1")
                a("s_mov_b64 exec, 1")
                a.lds("ds_add_u32 v253, v254", "sig")
                a("s_mov_b64 exec, -1")
            if i == 21:
                a("s_cmp_eq_u32 s75, 1")
                a("s_cbranch_scc1 %s" % last)
            fill = []
            if i < 21: fill += read_ops(i + 1)
            nl = self.hper if hp < 2 * (i + self.hwin) else 2
            nl = min(nl, len(allh) - hp)
            fill = allh[hp:hp + nl] + fill
            hp += nl
            interleave(a, mfma_ops(i), fill)
        a.label(last)
        a.lg0()
        self.stamp(22)
        a("v_and_b32 v2, 15, v1")
        a("v_lshrrev_b32 v3, 4, v1")
        a("v_mul_u32_u24 v2, 272, v2")
        a("v_lshl_add_u32 v2, v3, 4, v2")
        a("s_mul_i32 s4, s75, %d" % P_STRIDE)
        a("s_mul_i32 s5, s76, %d" % (32 * 272))
        a("s_add_u32 s4, s4, s5")
        a("s_add_u32 s4, s4, %d" % L_P)
        a("v_add_u32 v2, s4, v2")
        for b in range(4):
            for t in range(2):
                acc = ACC + (b * 2 + t) * 4
                a("ds_write_b128 v2, v[%d:%d] offset:%d" % (acc, acc + 3, t * 16 * 272 + b * 64))
        self.final_x_load(240, 244)
        a.lg0()
        a("s_barrier")

    def final(self):
        a = self.a
        P0 = L_P; P1 = L_P + P_STRIDE; YL = L_Y
        XR = 240; OA = 244
        a("s_and_b32 s%d, s%d, 3" % (sT0, sW))
        a("s_lshr_b32 s%d, s%d, 2" % (sT1, sW))
        a("v_lshrrev_b32 v2, 2, v1")
        a("v_and_b32 v3, 3, v1")
        a("s_lshl_b32 s4, s%d, 4" % sT0)
        a("v_add_u32 v2, s4, v2")
        a("v_mul_u32_u24 v4, 272, v2")
        a("v_lshl_add_u32 v4, v3, 5, v4")
        a("s_lshl_b32 s4, s%d, 7" % sT1)
        a("s_add_u32 s4, s4, %d" % P0)
        a("v_add_u32 v4, s4, v4")
        a("ds_read_b128 v[20:23], v4")
        a("ds_read_b128 v[24:27], v4 offset:16")
        a("ds_read_b128 v[28:31], v4 offset:%d" % (P1 - P0))
        a("ds_read_b128 v[32:35], v4 offset:%d" % (P1 - P0 + 16))
        a("v_lshlrev_b32 v6, 3, v2")
        a("v_add_u32 v6, %d, v6" % L_STATS)
        a("ds_read_b64 v[36:37], v6")
        a("v_lshrrev_b32 v7, 4, v1")
        a("v_lshlrev_b32 v7, 3, v7")
        a("v_and_b32 v8, 15, v1")
        a("v_lshrrev_b32 v8, 2, v8")
        a("v_add_u32 v7, v7, v8")
        a("s_lshl_b32 s4, s%d, 5" % sT1)
        a("v_add_u32 v7, s4, v7")
        a("v_mul_u32_u24 v7, 144, v7")
        a("v_and_b32 v8, 3, v1")
        a("v_lshl_add_u32 v7, v8, 3, v7")
        a("s_lshl_b32 s4, s%d, 5" % sT0)
        a("s_add_u32 s4, s4, %d" % YL)
        a("v_add_u32 v7, s4, v7")
        a("ds_read_b64_tr_b16 v[38:39], v7")
        a("ds_read_b64_tr_b16 v[40:41], v7 offset:%d" % (4 * 144))
        a("v_and_b32 v8, 3, v1")
        a("v_lshlrev_b32 v8, 4, v8")
        a("v_lshrrev_b32 v9, 2, v1")
        a("v_or_b32 v8, v8, v9")
        a("v_lshlrev_b32 v8, 2, v8")
        a("v_mov_b32 v10, 0xbfb8aa3b")
        a("v_mov_b32 v11, 1.0")
        a("s_waitcnt lgkmcnt(0)")
        for i in range(4):
            a("ds_bpermute_b32 v%d, v8, v%d" % (42 + i, 38 + i))
        for i in range(8):
            a("v_add_f32 v%d, v%d, v%d" % (20 + i, 20 + i, 28 + i))
        for i in range(4):
            a("v_cvt_pk_bf16_f32 v%d, v%d, v%d" % (28 + i, 20 + 2 * i, 21 + 2 * i))
        for i in range(4):
            a("v_alignbit_b32 v%d, v%d, 0, 16" % (20 + 2 * i, 28 + i))
            a("v_and_b32 v%d, v%d, v%d" % (21 + 2 * i, vMHI, 28 + i))
        for i in range(8):
            a("v_mul_f32 v%d, v10, v%d" % (48 + i, 20 + i))
        for i in range(8):
            a("v_exp_f32 v%d, v%d" % (48 + i, 48 + i))
        a("s_waitcnt vmcnt(0)")
        a("v_sub_f32 v12, 0, v36")
        for i in range(4):
            a("v_dot2_f32_bf16 v%d, v%d, v%d, v12" % (72 + 2 * i, XR + i, vONELO))
            a("v_dot2_f32_bf16 v%d, v%d, v%d, v12" % (73 + 2 * i, XR + i, vONEHI))
        for i in range(8):
            a("v_add_f32 v%d, v11, v%d" % (48 + i, 48 + i))
        for i in range(4):
            a("v_cvt_pk_bf16_f32 v%d, v%d, v%d" % (80 + i, 72 + 2 * i, 73 + 2 * i))
        for i in range(8):
            a("v_rcp_f32 v%d, v%d" % (48 + i, 48 + i))
        for i in range(4):
            a("v_alignbit_b32 v%d, v%d, 0, 16" % (72 + 2 * i, 80 + i))
            a("v_and_b32 v%d, v%d, v%d" % (73 + 2 * i, vMHI, 80 + i))
        for i in range(8):
            a("v_mul_f32 v%d, v%d, v37" % (72 + i, 72 + i))
        for i in range(8):
            a("v_mul_f32 v%d, v%d, v%d" % (20 + i, 20 + i, 48 + i))
        if "relax_fin" in self.exp:
            a("s_waitcnt lgkmcnt(0)")
            for i in range(4):
                a("v_alignbit_b32 v%d, v%d, 0, 16" % (56 + 2 * i, 42 + i))
                a("v_and_b32 v%d, v%d, v%d" % (57 + 2 * i, vMHI, 42 + i))
                a("v_alignbit_b32 v%d, v%d, 0, 16" % (88 + 2 * i, XR + i))
                a("v_and_b32 v%d, v%d, v%d" % (89 + 2 * i, vMHI, XR + i))
            for i in range(8):
                a("v_mul_f32 v%d, v%d, v%d" % (72 + i, 72 + i, 56 + i))
            for i in range(8):
                a("v_fma_f32 v%d, v%d, v%d, v%d" % (72 + i, 72 + i, 20 + i, 88 + i))
            for i in range(4):
                a("v_cvt_pk_bf16_f32 v%d, v%d, v%d" % (80 + i, 72 + 2 * i, 73 + 2 * i))
        else:
            for i in range(4):
                a("v_cvt_pk_bf16_f32 v%d, v%d, v%d" % (80 + i, 72 + 2 * i, 73 + 2 * i))
            for i in range(4):
                a("v_cvt_pk_bf16_f32 v%d, v%d, v%d" % (28 + i, 20 + 2 * i, 21 + 2 * i))
            a("s_waitcnt lgkmcnt(0)")
            for i in range(4):
                a("v_and_b32 v%d, v%d, v%d" % (56 + 2 * i, vMLO, 42 + i))
                a("v_and_b32 v%d, v%d, v%d" % (57 + 2 * i, vMHI, 42 + i))
                a("v_and_b32 v%d, v%d, v%d" % (64 + 2 * i, vMLO, 28 + i))
                a("v_and_b32 v%d, v%d, v%d" % (65 + 2 * i, vMHI, 28 + i))
            for i in range(4):
                a("v_dot2_f32_bf16 v%d, v%d, v%d, 0" % (72 + 2 * i, 80 + i, 56 + 2 * i))
                a("v_dot2_f32_bf16 v%d, v%d, v%d, 0" % (73 + 2 * i, 80 + i, 57 + 2 * i))
            for i in range(4):
                a("v_alignbit_b32 v%d, v%d, 0, 16" % (88 + 2 * i, XR + i))
                a("v_and_b32 v%d, v%d, v%d" % (89 + 2 * i, vMHI, XR + i))
            for i in range(4):
                a("v_cvt_pk_bf16_f32 v%d, v%d, v%d" % (80 + i, 72 + 2 * i, 73 + 2 * i))
            for i in range(4):
                a("v_dot2_f32_bf16 v%d, v%d, v%d, 0" % (72 + 2 * i, 80 + i, 64 + 2 * i))
                a("v_dot2_f32_bf16 v%d, v%d, v%d, 0" % (73 + 2 * i, 80 + i, 65 + 2 * i))
            for i in range(4):
                a("v_cvt_pk_bf16_f32 v%d, v%d, v%d" % (80 + i, 72 + 2 * i, 73 + 2 * i))
            for i in range(4):
                a("v_dot2_f32_bf16 v%d, v%d, v%d, v%d" % (72 + 2 * i, 80 + i, vONELO, 88 + 2 * i))
                a("v_dot2_f32_bf16 v%d, v%d, v%d, v%d" % (73 + 2 * i, 80 + i, vONEHI, 89 + 2 * i))
            for i in range(4):
                a("v_cvt_pk_bf16_f32 v%d, v%d, v%d" % (80 + i, 72 + 2 * i, 73 + 2 * i))
        fl = " sc1" if "outsc1" in self.exp else (" nt" if "outnt" in self.exp else (" sc0 sc1" if "outsc01" in self.exp else ""))
        a("buffer_store_dwordx4 v[80:83], v%d, s[%d:%d], 0 offen%s" % (OA, S_OUT, S_OUT + 3, fl))

    def build(self):
        a = self.a
        self.p0()
        self.m_front()
        self.stamp(1)
        self.m_prep()
        self.stamp(10)
        self.m_gemm1()
        self.stamp(4)
        self.m_conv()
        self.m_tail()
        a("s_branch L_final")
        a.label("L_H")
        self.h_front()
        self.stamp(1)
        self.h_stats()
        self.stamp(11)
        self.h_gemm1_side()
        self.h_gemm2()
        a.label("L_final")
        a.lg_clear()
        self.stamp(8)
        self.final()
        self.stamp(9)
        self.dump_stamps()
        if "noendwait" not in self.exp: a("s_waitcnt vmcnt(0)")
        a.label("L_end")
        a("s_endpgm")
        if "yearly" in self.exp and not self.noflags:
            self.y_slow()
        a.label("L_codeend")
        a("s_endpgm")
        lines, n = hazard.fix(a.lines)
        self.nnops = n
        hdr = """; Kernarg layout: x,k,v,shift_k,ssm_k,ssm_D,B_x,w1,w2,out,debug,ws (8-byte pointers)
; @launch grid=(256,1,1) block=(512,1,1) lds=%d
.amdgcn_target "amdgcn-amd-amdhsa--gfx950"
.text
.globl %s
.p2align 8
.type %s,@function
%s:
""" % (LDS_SIZE, KNAME, KNAME, KNAME)
        ftr = """.section .rodata,"a"
.p2align 6
.amdhsa_kernel %s
  .amdhsa_next_free_vgpr 256
  .amdhsa_next_free_sgpr 102
  .amdhsa_accum_offset 256
  .amdhsa_group_segment_fixed_size 0
  .amdhsa_kernarg_size 96
  .amdhsa_user_sgpr_count 2
  .amdhsa_user_sgpr_kernarg_segment_ptr 1
  .amdhsa_system_sgpr_workgroup_id_x 1
.end_amdhsa_kernel
""" % KNAME
        return hdr + "\n".join(lines) + "\n" + ftr

if __name__ == "__main__":
    import argparse
    ap = argparse.ArgumentParser()
    ap.add_argument("-o", default="k.s")
    ap.add_argument("--stamps", action="store_true")
    ap.add_argument("--noflags", action="store_true")
    ap.add_argument("--exp", default="")
    args = ap.parse_args()
    g = Gen(stamps=args.stamps, noflags=args.noflags, exp=args.exp)
    txt = g.build()
    open(args.o, "w").write(txt)
    print("wrote", args.o, len(txt.splitlines()), "lines; hazard nops:", g.nnops)
```

```python
import sys
from emit import *
import hazard

KNAME = "recurrent_scan__ssm_conv_h3__dense_activation_relu__prompt_kernel"

WS_KVT = 0
WS_YT = 2 << 20
WS_H = 4 << 20
WS_FLAG = 10 << 20
F_H1 = WS_FLAG
F_H2 = WS_FLAG + 32768
F_H3 = WS_FLAG + 65536
F_H4 = WS_FLAG + 98304
WS_STAMP = WS_FLAG + (256 << 10)
WS_W2S = 12 << 20
WS_SIZE = 16 << 20

L_XN = 0
NXN = 4
L_W1 = 32768
W1_SLOT = 24576
NW1 = 5
L_PREP = L_W1 + 4 * W1_SLOT
L_A = L_W1 + 3 * W1_SLOT
NA_H = 6
L_T = L_A + 8
T_CH = 16640
T_CP = 4160
L_U = L_A + 33408
U_CH = 4608
L_B = 0
NB_H = 13
B_HALF = NB_H * 4096
L_Y = 16384
L_P = L_B + 7 * 4096
P_STRIDE = B_HALF
L_STATS = 161792
L_SYNC = 162304
LDS_SIZE = 163840
assert L_U % 16 == 0 and L_U + 2 * U_CH <= L_W1 + 5 * W1_SLOT and L_T + 2 * T_CH <= L_U
assert L_A + 2 * NA_H * 4096 <= L_STATS and 2 * B_HALF <= L_A and L_W1 + NW1 * W1_SLOT <= L_STATS

S_X, S_K, S_V, S_W1, S_W2, S_OUT, S_SSM, S_WS, S_SH, S_DBG = 8, 12, 16, 20, 24, 28, 32, 36, 40, 44
sR, sC, sW, sNONCE = 48, 49, 50, 51
sF0, sBP, sNB = 52, 53, 54
sT0, sT1, sT2, sT3 = 55, 56, 57, 58
sRW = 59
sEX = 60
sROT = 62
sDP = 64
sDD = 66
sM0B = 67
sP0, sP1 = 68, 69
sUOK = 72
sID = 81
sD = 85
sINV1, sINV2 = 73, 74
vMLO, vMHI, vONELO, vONEHI, vONES = 248, 249, 250, 251, 252

def merge(*lists):
    lists = [l for l in lists if l]
    tot = sum(len(l) for l in lists)
    out = []; idx = [0] * len(lists)
    for s in range(tot):
        best = min((i for i in range(len(lists)) if idx[i] < len(lists[i])), key=lambda i: (idx[i] + 0.5) / len(lists[i]))
        out.append(lists[best][idx[best]]); idx[best] += 1
    return out

class Gen:
    def __init__(self, stamps=False, noflags=False, exp=""):
        self.exp = set(exp.split(",")) if exp else set()
        self.a = Asm()
        self.stamps = stamps
        self.noflags = noflags
        self.relax_ln = "relax_ln" in self.exp
        self.stampset = None
        self.h2n = 75
        self.h1j = 0
        self.w2p1 = 7
        for e in self.exp:
            if e.startswith('p1='): self.w2p1 = int(e[3:])
        for e in self.exp:
            if e.startswith('h1j='): self.h1j = int(e[4:])
        self.w2j = 0
        self.w2s = 'w2s' in self.exp
        self.KS = 4096 if self.w2s else 32768
        self.pf2j = 0
        for e in self.exp:
            if e.startswith('pj='): self.pf2j = int(e[3:])
            if e.startswith('h2n='): self.h2n = int(e[4:])
        self.hwin = 22; self.hper = 6; self.hinit = 12
        for e in self.exp:
            if e.startswith('hw='): self.hwin, self.hper, self.hinit = [int(x) for x in e[3:].split('+')]
        for e in self.exp:
            if e.startswith("st="):
                self.stampset = set(int(x) for x in e[3:].split("+"))

    def stamp(self, idx):
        if not self.stamps: return
        if self.stampset is not None and idx not in self.stampset: return
        a = self.a
        a("s_memrealtime s[4:5]")
        if "clk" in self.exp and idx in (14, 2, 4, 16):
            a("s_memtime s[6:7]")
        a.lg0()
        a("v_writelane_b32 v255, s4, %d" % idx)
        if "clk" in self.exp and idx in (14, 2, 4, 16):
            a("v_writelane_b32 v255, s6, %d" % {14: 29, 2: 30, 4: 31, 16: 15}[idx])

    def dump_stamps(self):
        if not self.stamps: return
        a = self.a
        if "entry" in self.exp:
            a("v_writelane_b32 v255, s90, 31")
        if "dbgst" in self.exp:
            sk = a.newlabel("L_ds")
            a("s_or_b32 s4, s2, s%d" % sW)
            a("s_cmp_lg_u32 s4, 0")
            a("s_cbranch_scc1 %s" % sk)
            a("v_readlane_b32 s4, v255, 0")
            a("s_nop 3")
            a("v_subrev_u32 v3, s4, v255")
            order = [12, 10, 14, 2, 4, 16, 17, 18, 7, 8, 9]
            for k, i in enumerate(order):
                a("v_readlane_b32 s5, v3, %d" % i)
                a("s_nop 3")
                a("v_mov_b32 v4, s5")
                a("v_mov_b32 v5, %d" % (4 * (k + 1)))
                a("s_mov_b64 exec, 1")
                a("buffer_store_dword v4, v5, s[%d:%d], 0 offen" % (S_DBG, S_DBG + 3))
                a("s_mov_b64 exec, -1")
            a.label(sk)
        a("s_lshl_b32 s%d, s2, 3" % sT0)
        a("s_add_u32 s%d, s%d, s%d" % (sT0, sT0, sW))
        a("s_lshl_b32 s%d, s%d, 7" % (sT0, sT0))
        a("s_add_u32 s%d, s%d, 0x%x" % (sT0, sT0, WS_STAMP))
        a("v_lshlrev_b32 v2, 2, v1")
        a("v_add_u32 v2, s%d, v2" % sT0)
        a("s_mov_b32 exec_lo, -1")
        a("s_mov_b32 exec_hi, 0")
        a("buffer_store_dword v255, v2, s[%d:%d], 0 offen" % (S_WS, S_WS + 3))
        a("s_mov_b64 exec, -1")

    def run(self, x):
        if callable(x): x()
        else: self.a(x)

    def spread(self, seq, extra):
        a = self.a
        if not extra:
            for x in seq: self.run(x)
            return
        step = max(1, len(seq) // (len(extra) + 1))
        k = 0
        for i, ins in enumerate(seq):
            self.run(ins)
            if (i + 1) % step == 0 and k < len(extra):
                self.run(extra[k]); k += 1
        while k < len(extra):
            self.run(extra[k]); k += 1

    def map_rc(self):
        a = self.a
        if "map42" in self.exp:
            a("s_and_b32 s%d, s2, 3" % sR)
            a("s_lshl_b32 s%d, s%d, 3" % (sR, sR))
            a("s_bfe_u32 s3, s2, 0x30003")
            a("s_add_u32 s%d, s%d, s3" % (sR, sR))
            a("s_bfe_u32 s%d, s2, 0x10002" % sC)
            a("s_lshl_b32 s%d, s%d, 2" % (sC, sC))
            a("s_lshr_b32 s3, s2, 6")
            a("s_add_u32 s%d, s%d, s3" % (sC, sC))
        else:
            a("s_and_b32 s%d, s2, 7" % sR)
            a("s_lshr_b32 s3, s2, 6")
            a("s_lshl_b32 s3, s3, 3")
            a("s_add_u32 s%d, s%d, s3" % (sR, sR))
            a("s_bfe_u32 s%d, s2, 0x30003" % sC)

    def rot_calc(self):
        a = self.a
        if "map42" in self.exp:
            a("s_lshl_b32 s%d, s%d, 1" % (sT0, sC))
            a("s_add_u32 s%d, s%d, s%d" % (sT0, sT0, sR))
            a("s_and_b32 s%d, s%d, 7" % (sROT, sT0))
        else:
            a("s_lshr_b32 s%d, s%d, 3" % (sT0, sR))
            a("s_lshl_b32 s%d, s%d, 1" % (sT0, sT0))
            a("s_add_u32 s%d, s%d, s%d" % (sT0, sT0, sC))
            a("s_add_u32 s%d, s%d, s%d" % (sT0, sT0, sR))
            a("s_and_b32 s%d, s%d, 7" % (sROT, sT0))
        if "norot" in self.exp: a("s_mov_b32 s%d, 0" % sROT)

    def p0(self):
        a = self.a
        if self.stamps and "entry" in self.exp:
            a("s_memrealtime s[90:91]")
        a("s_load_dwordx8 s[64:71], s[0:1], 0")
        a("s_cmp_ge_u32 s2, 256")
        a("s_cbranch_scc1 L_end")
        if self.stamps: a("v_mov_b32 v255, 0")
        a("v_lshrrev_b32 v2, 6, v0")
        a("v_and_b32 v1, 63, v0")
        if "codepf0" in self.exp:
            a("s_getpc_b64 s[82:83]")
            a.label("L_pc")
            a("s_sub_u32 s82, s82, L_pc-%s" % KNAME)
            a("s_subb_u32 s83, s83, 0")
            a("v_and_b32 v4, 255, v0")
            a("v_lshlrev_b32 v4, 7, v4")
            a("v_min_u32 v4, L_codeend-%s, v4" % KNAME)
            a("v_mov_b32 v5, s83")
            a("v_add_co_u32 v4, vcc, s82, v4")
            a("v_addc_co_u32 v5, vcc, 0, v5, vcc")
            a.vmem("global_load_dword v244, v[4:5], off", "cpf")
        self.map_rc()
        a("v_readfirstlane_b32 s%d, v2" % sW)
        a("s_mov_b32 s10, 0x200000")
        a("s_mov_b32 s11, 0x00020000")
        a("s_mov_b32 s14, 0x200000")
        a("s_mov_b32 s15, 0x00020000")
        a("s_mov_b32 s18, 0x200000")
        a("s_mov_b32 s19, 0x00020000")
        a("s_movk_i32 s42, 0x1000")
        a("s_mov_b32 s43, 0x00020000")
        a("s_and_b32 s%d, s%d, 3" % (sRW, sW))
        a("s_cmp_ge_u32 s%d, 4" % sW)
        a("s_cbranch_scc1 L_Hfirst")

    def p0_rest(self):
        a = self.a
        for dst, off in ((S_W1, 56), (S_SSM, 32), (S_WS, 88), (S_DBG, 80), (S_W2, 64), (S_OUT, 72), (sDP, 40)):
            a("s_load_dwordx2 s[%d:%d], s[0:1], %d" % (dst, dst + 1, off))
        for dst, size in ((S_W1, 1409024), (S_SSM, 2097152), (S_WS, WS_SIZE), (S_DBG, 256), (S_W2, 1409024), (S_OUT, 2097152)):
            a("s_mov_b32 s%d, 0x%x" % (dst + 2, size))
            a("s_mov_b32 s%d, 0x00020000" % (dst + 3))
        if "dshift" in self.exp:
            a("s_add_u32 s%d, s%d, 1" % (sD, sC))
            a("s_and_b32 s%d, s%d, 7" % (sD, sD))
        else:
            a("s_mov_b32 s%d, s%d" % (sD, sC))
        a("s_lshl_b32 s%d, s%d, 5" % (sID, sC))
        a("s_add_u32 s%d, s%d, s%d" % (sID, sID, sR))
        a("s_mul_i32 s%d, s%d, 6" % (sBP, sC))
        a("s_sub_i32 s%d, s%d, 3" % (sT0, sC))
        a("s_max_i32 s%d, s%d, 0" % (sT0, sT0))
        a("s_sub_u32 s%d, s%d, s%d" % (sBP, sBP, sT0))
        a("s_lshl_b32 s%d, s%d, 5" % (sF0, sBP))
        a("s_cmp_lt_u32 s%d, 3" % sC)
        a("s_cselect_b32 s%d, 12, 10" % sNB)
        a("v_mov_b32 v%d, 0xffff" % vMLO)
        a("v_mov_b32 v%d, 0xffff0000" % vMHI)
        a("v_mov_b32 v%d, 0x3f80" % vONELO)
        a("v_mov_b32 v%d, 0x3f800000" % vONEHI)
        a("v_mov_b32 v%d, 0x3f803f80" % vONES)
        a("s_mov_b32 s%d, 0x05040100" % sP0)
        a("s_mov_b32 s%d, 0x07060302" % sP1)
        a("v_and_b32 v3, 15, v0")
        a("v_lshlrev_b32 v3, 2, v3")
        a("v_add_u32 v3, %d, v3" % L_SYNC)
        a("v_mov_b32 v4, 0")
        a("ds_write_b32 v3, v4")

    def w1_dma_ops(self, j):
        a = self.a
        slot = j % NW1
        ops = []
        def head():
            a("s_add_u32 s%d, s%d, %d" % (sT1, sROT, j))
            a("s_and_b32 s%d, s%d, 7" % (sT1, sT1))
            a("s_mul_i32 s%d, s%d, %d" % (sT1, sT1, 64 * 2752))
            a("s_add_u32 m0, s%d, %d" % (sM0B, slot * W1_SLOT))
            a.vmem("buffer_load_dwordx4 v12, s[%d:%d], s%d offen lds" % (S_W1, S_W1 + 3, sT1), "w1c%d" % j)
        ops.append(head)
        for i in range(1, 6):
            def nxt(i=i):
                a("s_add_u32 m0, s%d, %d" % (sM0B, slot * W1_SLOT + 1024 * i))
                a.vmem("buffer_load_dwordx4 v%d, s[%d:%d], s%d offen lds" % (12 + i, S_W1, S_W1 + 3, sT1), "w1c%d" % j)
            ops.append(nxt)
        return ops

    def w1_voffs(self):
        a = self.a
        V = 12
        a("s_mul_i32 s%d, s%d, %d" % (sT0, sRW, 16 * 2752))
        a("s_lshl_b32 s%d, s%d, 1" % (sT1, sF0))
        a("s_add_u32 s%d, s%d, s%d" % (sT0, sT0, sT1))
        a("s_lshl_b32 s%d, s%d, 1" % (sT1, sNB))
        a("v_mov_b32 v7, 0x40000000")
        for i in range(6):
            a("v_add_u32 v2, %d, v1" % (64 * i))
            a("v_mul_u32_u24 v3, 2731, v2")
            a("v_lshrrev_b32 v3, 16, v3")
            a("v_mul_u32_u24 v4, 24, v3")
            a("v_sub_u32 v4, v2, v4")
            a("v_and_b32 v5, 2, v3")
            a("v_lshrrev_b32 v6, 1, v3")
            a("v_and_b32 v6, 4, v6")
            a("v_or_b32 v5, v5, v6")
            a("v_xor_b32 v4, v4, v5")
            a("v_mul_u32_u24 v5, 2752, v3")
            a("v_lshl_add_u32 v5, v4, 4, v5")
            a("v_add_u32 v5, s%d, v5" % sT0)
            a("v_cmp_gt_u32 vcc, s%d, v4" % sT1)
            a("v_cndmask_b32 v%d, v7, v5, vcc" % (V + i))
        a("s_mul_i32 s%d, s%d, %d" % (sM0B, sRW, 16 * 384))
        a("s_add_u32 s%d, s%d, %d" % (sM0B, sM0B, L_W1))

    def line_prefetch(self, which, vd):
        a = self.a
        a("s_lshr_b32 s%d, s2, 3" % sT0)
        a("v_and_b32 v2, 255, v0")
        if "map42" not in self.exp:
            srd = S_W1 if which == "w1" else S_W2
            a("s_mul_i32 s%d, s%d, %d" % (sT0, sT0, 344 * 128))
            a("v_lshlrev_b32 v3, 7, v2")
            a("v_add_u32 v3, s%d, v3" % sT0)
            a.vmem("buffer_load_dword v%d, v3, s[%d:%d], 0 offen" % (vd, srd, srd + 3), "pf")
            a("v_cmp_gt_u32 vcc, %d, v2" % (344 - 256))
            a("v_add_u32 v3, 32768, v3")
            a("v_mov_b32 v4, 0x40000000")
            a("v_cndmask_b32 v3, v4, v3, vcc")
            a.vmem("buffer_load_dword v%d, v3, s[%d:%d], 0 offen" % (vd + 1, srd, srd + 3), "pf")
        elif which == "w2":
            a("s_mul_i32 s%d, s%d, 43" % (sT0, sT0))
            a("s_bfe_u32 s%d, s2, 0x10002" % sT1)
            a("s_lshl_b32 s%d, s%d, 9" % (sT1, sT1))
            a("s_lshl_b32 s%d, s%d, 10" % (sT0, sT0))
            a("s_add_u32 s%d, s%d, s%d" % (sT0, sT0, sT1))
            a("v_lshrrev_b32 v3, 2, v2")
            a("v_lshlrev_b32 v3, 10, v3")
            a("v_and_b32 v4, 3, v2")
            a("v_lshl_add_u32 v3, v4, 7, v3")
            a("v_add_u32 v3, s%d, v3" % sT0)
            a("v_cmp_gt_u32 vcc, 172, v2")
            a("v_mov_b32 v4, 0x40000000")
            a("v_cndmask_b32 v3, v4, v3, vcc")
            a.vmem("buffer_load_dword v%d, v3, s[%d:%d], 0 offen" % (vd, S_W2, S_W2 + 3), "pf")
        else:
            a("s_lshl_b32 s%d, s%d, 4" % (sT0, sT0))
            a("s_mul_i32 s%d, s%d, 2752" % (sT0, sT0))
            a("s_bfe_u32 s%d, s2, 0x10002" % sT1)
            a("s_mul_i32 s%d, s%d, 1472" % (sT1, sT1))
            a("s_add_u32 s%d, s%d, s%d" % (sT0, sT0, sT1))
            a("v_mul_u32_u24 v3, 5462, v2")
            a("v_lshrrev_b32 v3, 16, v3")
            a("v_mul_u32_u24 v4, 12, v3")
            a("v_sub_u32 v4, v2, v4")
            a("v_mul_u32_u24 v3, 2752, v3")
            a("v_lshl_add_u32 v3, v4, 7, v3")
            a("v_add_u32 v3, s%d, v3" % sT0)
            a("v_cmp_gt_u32 vcc, 192, v2")
            a("v_mov_b32 v4, 0x40000000")
            a("v_cndmask_b32 v3, v4, v3, vcc")
            a.vmem("buffer_load_dword v%d, v3, s[%d:%d], 0 offen" % (vd, S_W1, S_W1 + 3), "pf")

    def w1_tail_prefetch(self, vd):
        a = self.a
        a("s_lshr_b32 s%d, s2, 3" % sT0)
        a("s_mul_i32 s%d, s%d, 10" % (sT0, sT0))
        a("s_add_u32 s%d, s%d, 192" % (sT0, sT0))
        a("s_mul_i32 s%d, s%d, 2752" % (sT0, sT0))
        a("s_bfe_u32 s%d, s2, 0x10002" % sT1)
        a("s_mul_i32 s%d, s%d, 1472" % (sT1, sT1))
        a("s_add_u32 s%d, s%d, s%d" % (sT0, sT0, sT1))
        a("v_and_b32 v2, 255, v0")
        a("v_mul_u32_u24 v3, 5462, v2")
        a("v_lshrrev_b32 v3, 16, v3")
        a("v_mul_u32_u24 v4, 12, v3")
        a("v_sub_u32 v4, v2, v4")
        a("v_mul_u32_u24 v3, 2752, v3")
        a("v_lshl_add_u32 v3, v4, 7, v3")
        a("v_add_u32 v3, s%d, v3" % sT0)
        a("v_cmp_gt_u32 vcc, 120, v2")
        a("v_mov_b32 v4, 0x40000000")
        a("v_cndmask_b32 v3, v4, v3, vcc")
        a.vmem("buffer_load_dword v%d, v3, s[%d:%d], 0 offen" % (vd, S_W1, S_W1 + 3), "pf")

    def m_front(self):
        a = self.a
        a("v_lshrrev_b32 v3, 5, v0")
        a("v_and_b32 v4, 31, v0")
        a("s_lshl_b32 s%d, s%d, 16" % (sT0, sR))
        a("s_lshl_b32 s%d, s%d, 7" % (sT1, sC))
        a("s_add_u32 s%d, s%d, s%d" % (sT0, sT0, sT1))
        a("v_lshlrev_b32 v2, 13, v3")
        a("v_lshl_add_u32 v2, v4, 2, v2")
        a("v_add_u32 v2, s%d, v2" % sT0)
        a("v_add_u32 v5, 0xfffff400, v2")
        a("v_add_u32 v6, 0xfffff800, v2")
        a("v_add_u32 v7, 0xfffffc00, v2")
        a("v_add_u32 v8, 4096, v2")
        a("s_lshl_b32 s%d, s%d, 9" % (sT2, sC))
        a("v_lshlrev_b32 v9, 4, v4")
        a("v_add_u32 v9, s%d, v9" % sT2)
        a.lg0()
        a("s_mov_b64 s[12:13], s[66:67]")
        a("s_mov_b64 s[16:17], s[68:69]")
        a("s_mov_b64 s[40:41], s[70:71]")
        a("s_mov_b64 s[8:9], s[64:65]")
        if self.stamps:
            a("s_memrealtime s[4:5]"); a.lg0(); a("v_writelane_b32 v255, s4, 0")
        K, V, SH = 20, 32, 40
        if "noprep" in self.exp:
            a.vm.issue("prep")
        else:
          for t, r in enumerate((5, 6, 7)):
            a.vmem("buffer_load_dword v%d, v%d, s[%d:%d], 0 offen" % (K + t, r, S_K, S_K + 3), "prep")
          for t in range(8):
            a.vmem("buffer_load_dword v%d, v%d, s[%d:%d], 0 offen offset:%d" % (K + 3 + t, 2 if t < 4 else 8, S_K, S_K + 3, 1024 * (t & 3)), "prep")
          a.vmem("buffer_load_dwordx4 v[40:43], v9, s[%d:%d], 0 offen" % (S_SH, S_SH + 3), "prep")
          for t in range(8):
            a.vmem("buffer_load_dword v%d, v%d, s[%d:%d], 0 offen offset:%d" % (V + t, 2 if t < 4 else 8, S_V, S_V + 3, 1024 * (t & 3)), "prep")
        a("s_branch L_Mrest")
        self.h_first()
        a.label("L_Mrest")
        a.vm = self.vm_m_first
        self.rot_calc()
        self.p0_rest()
        a("s_waitcnt lgkmcnt(0)")
        a("s_barrier")
        if "pfM" in self.exp:
            self.line_prefetch("w1", 240)
        if not self.noflags:
            a("s_or_b32 s%d, s2, s%d" % (sT1, sW))
            a("s_cmp_lg_u32 s%d, 0" % sT1)
            a("s_cbranch_scc1 L_nononce")
            a("s_memrealtime s[4:5]")
            a("s_waitcnt lgkmcnt(0)")
            a("s_or_b32 s4, s4, 1")
            a("v_mov_b32 v2, s4")
            a("v_mov_b32 v3, 0")
            a("s_mov_b64 exec, 1")
            a("buffer_store_dword v2, v3, s[%d:%d], 0 offen sc1" % (S_DBG, S_DBG + 3))
            a("s_mov_b64 exec, -1")
            a.label("L_nononce")
        self.w1_voffs()
        self.m_gemm1_setup()
        a("s_lshl_b32 s%d, s%d, 7" % (sT0, sC))
        a("s_lshl_b32 s%d, s%d, 2" % (sT1, sR))
        a("s_add_u32 s%d, s%d, s%d" % (sT0, sT0, sT1))
        a("s_load_dword s%d, s[%d:%d], s%d" % (sDD, sDP, sDP + 1, sT0))

    def m_gemm1_setup(self):
        a = self.a
        AX = 8; AW = [9, 10, 11]
        a("v_and_b32 v2, 15, v1")
        a("v_lshrrev_b32 v3, 4, v1")
        a("v_lshlrev_b32 v4, 1, v3")
        a("v_xor_b32 v4, v2, v4")
        a("v_lshlrev_b32 v4, 4, v4")
        a("v_lshl_add_u32 v%d, v3, 8, v4" % AX)
        a("v_lshrrev_b32 v5, 2, v2")
        a("v_lshl_add_u32 v4, v3, 3, v5")
        a("v_mul_u32_u24 v4, 384, v4")
        a("v_and_b32 v6, 3, v1")
        a("v_lshl_add_u32 v4, v6, 3, v4")
        a("v_lshrrev_b32 v5, 1, v5")
        a("v_and_b32 v6, 1, v3")
        a("v_lshl_add_u32 v5, v6, 1, v5")
        a("s_mul_i32 s%d, s%d, 3" % (sT0, sRW))
        for b in range(3):
            a("s_add_u32 s%d, s%d, %d" % (sT1, sT0, b))
            a("v_xor_b32 v6, s%d, v5" % sT1)
            a("v_lshl_add_u32 v6, v6, 5, v4")
            a("v_add_u32 v%d, %d, v6" % (AW[b], L_W1))
        a("v_lshlrev_b32 v5, 4, v2")
        a("v_lshrrev_b32 v4, 1, v3")
        a("v_lshl_add_u32 v5, v4, 8, v5")
        a("v_and_b32 v4, 1, v3")
        if "st16" in self.exp:
            a("v_mul_u32_u24 v4, 44032, v4")
            a("v_add_u32 v5, v5, v4")
        else:
            a("v_lshl_add_u32 v5, v4, 3, v5")
        a("s_lshr_b32 s%d, s%d, 4" % (sBP, sF0))
        a("s_mul_i32 s%d, s%d, %d" % (sT0, sR, 4 * 44032))
        a("s_mul_i32 s%d, s%d, 3" % (sT1, sRW))
        a("s_add_u32 s%d, s%d, s%d" % (sT2, sT1, sBP))
        a("s_lshl_b32 s%d, s%d, 9" % (sT2, sT2))
        a("s_add_u32 s%d, s%d, s%d" % (sT0, sT0, sT2))
        a("s_add_u32 s%d, s%d, 0x%x" % (sT0, sT0, WS_H))
        a("v_add_u32 v168, s%d, v5" % sT0)
        for tb in range(1, 4):
            a("v_add_u32 v%d, %d, v168" % (168 + tb, 44032 * tb))
        for b, sr_ in ((1, sINV1), (2, sINV2)):
            a("s_add_u32 s%d, s%d, %d" % (sT2, sT1, b))
            a("s_cmp_lt_u32 s%d, s%d" % (sT2, sNB))
            a("s_cselect_b32 s%d, 0, 0x40000000" % sr_)

    def m_prep(self):
        a = self.a
        K, V, SH = 20, 32, 40
        WL, WH = 44, 48
        PL, PH = 52, 56
        PP, AC = 60, 64
        TA, TB = 68, 72
        KV = 76
        OUT = 92
        dma = []
        if "V2" in self.exp:
            for f in self.w1_dma_ops(0) + self.w1_dma_ops(1): f()
        if "V4" in self.exp:
            for f in self.w1_dma_ops(0): f()
            dma = self.w1_dma_ops(1) + self.w1_dma_ops(2)
        if "V5" in self.exp:
            for f in self.w1_dma_ops(0) + self.w1_dma_ops(1): f()
            dma = self.w1_dma_ops(2)
        if "pfWa" in self.exp: self.w1_tail_prefetch(241)
        if "noprep" in self.exp:
            a.vm.issue("kvt")
            if not self.noflags:
                a("v_mov_b32 v7, 0")
                a.vmem("buffer_load_dword v19, v7, s[%d:%d], 0 offen sc1" % (S_DBG, S_DBG + 3), "nonce")
            for f in self.w1_dma_ops(2): f()
            return
        a.wait_vm("prep")
        self.stamp(12)
        seq = []; e = seq.append
        e("v_and_b32 v%d, v%d, v%d" % (WL + 0, vMLO, SH + 0)); e("v_lshrrev_b32 v%d, 16, v%d" % (WL + 1, SH + 0))
        e("v_and_b32 v%d, v%d, v%d" % (WL + 2, vMLO, SH + 1)); e("v_lshrrev_b32 v%d, 16, v%d" % (WL + 3, SH + 1))
        e("v_lshlrev_b32 v%d, 16, v%d" % (WH + 0, SH + 2)); e("v_and_b32 v%d, v%d, v%d" % (WH + 1, vMHI, SH + 2))
        e("v_lshlrev_b32 v%d, 16, v%d" % (WH + 2, SH + 3)); e("v_and_b32 v%d, v%d, v%d" % (WH + 3, vMHI, SH + 3))
        for hb in range(2):
            r0 = 4 * hb
            if "relax_prep" in self.exp:
                for r in range(4):
                    e("v_dot2_f32_bf16 v%d, v%d, v%d, 0" % (PL + r, K + r0 + r, WL + 3))
                    e("v_dot2_f32_bf16 v%d, v%d, v%d, 0" % (PH + r, K + r0 + r, WH + 3))
                for j in (2, 1, 0):
                    for r in range(4):
                        e("v_dot2_f32_bf16 v%d, v%d, v%d, v%d" % (PL + r, K + 3 + r0 + r - j, WL + j, PL + r))
                        e("v_dot2_f32_bf16 v%d, v%d, v%d, v%d" % (PH + r, K + 3 + r0 + r - j, WH + j, PH + r))
                for r in range(4):
                    e("v_cvt_pk_bf16_f32 v%d, v%d, v%d" % (AC + r, PL + r, PH + r))
            else:
                for j in (3, 2, 1, 0):
                    for r in range(4):
                        e("v_dot2_f32_bf16 v%d, v%d, v%d, 0" % (PL + r, K + 3 + r0 + r - j, WL + j))
                        e("v_dot2_f32_bf16 v%d, v%d, v%d, 0" % (PH + r, K + 3 + r0 + r - j, WH + j))
                    dstp = AC if j == 3 else PP
                    for r in range(4):
                        e("v_cvt_pk_bf16_f32 v%d, v%d, v%d" % (dstp + r, PL + r, PH + r))
                    if j != 3:
                        for r in range(4):
                            e("v_perm_b32 v%d, v%d, v%d, s%d" % (TA + r, PP + r, AC + r, sP0))
                            e("v_perm_b32 v%d, v%d, v%d, s%d" % (TB + r, PP + r, AC + r, sP1))
                        for r in range(4):
                            e("v_dot2_f32_bf16 v%d, v%d, v%d, 0" % (PL + r, TA + r, vONES))
                            e("v_dot2_f32_bf16 v%d, v%d, v%d, 0" % (PH + r, TB + r, vONES))
                        for r in range(4):
                            e("v_cvt_pk_bf16_f32 v%d, v%d, v%d" % (AC + r, PL + r, PH + r))
            for r in range(4):
                e("v_and_b32 v%d, v%d, v%d" % (TA + r, vMLO, V + r0 + r))
                e("v_and_b32 v%d, v%d, v%d" % (TB + r, vMHI, V + r0 + r))
            for r in range(4):
                e("v_dot2_f32_bf16 v%d, v%d, v%d, 0" % (KV + r0 + r, AC + r, TA + r))
                e("v_dot2_f32_bf16 v%d, v%d, v%d, 0" % (KV + 8 + r0 + r, AC + r, TB + r))
        e("v_and_b32 v2, 31, v0"); e("v_mul_u32_u24 v2, 288, v2"); e("v_lshrrev_b32 v3, 5, v0"); e("v_lshlrev_b32 v3, 4, v3")
        e("v_sub_u32 v2, v2, v3"); e("v_add_u32 v2, %d, v2" % (L_PREP + 112))
        for ch in range(2):
            for d in range(4):
                e("v_cvt_pk_bf16_f32 v%d, v%d, v%d" % (OUT + 4 * ch + d, KV + 8 * ch + 7 - 2 * d, KV + 8 * ch + 6 - 2 * d))
        self.spread(seq, dma)
        self.stamp(20)
        a("ds_write_b128 v2, v[%d:%d]" % (OUT, OUT + 3))
        a("ds_write_b128 v2, v[%d:%d] offset:144" % (OUT + 4, OUT + 7))
        a("v_lshrrev_b32 v2, 3, v0")
        a("v_and_b32 v3, 7, v0")
        a("v_mul_u32_u24 v4, 144, v2")
        a("v_lshl_add_u32 v4, v3, 4, v4")
        a("v_add_u32 v4, %d, v4" % L_PREP)
        a("s_lshl_b32 s%d, s%d, 18" % (sT0, sC))
        a("s_lshl_b32 s%d, s%d, 7" % (sT1, sR))
        a("s_sub_u32 s%d, s%d, s%d" % (sT0, sT0, sT1))
        a("s_add_u32 s%d, s%d, %d" % (sT0, sT0, WS_KVT + 3968))
        a("v_lshlrev_b32 v5, 12, v2")
        a("v_lshl_add_u32 v5, v3, 4, v5")
        a("v_add_u32 v5, s%d, v5" % sT0)
        a("v_add_u32 v6, %d, v5" % (32 * 4096))
        if "dmafirst" in self.exp:
            for f in self.w1_dma_ops(0) + self.w1_dma_ops(1) + self.w1_dma_ops(2): f()
            self.stamp(15)
        self.m_sync(13, va=2, vb=3)
        a("ds_read_b128 v[92:95], v4")
        a("ds_read_b128 v[96:99], v4 offset:%d" % (32 * 144))
        a.lg0()
        a.vmem("buffer_store_dwordx4 v[92:95], v5, s[%d:%d], 0 offen sc1" % (S_WS, S_WS + 3), "kvt")
        a.vmem("buffer_store_dwordx4 v[96:99], v6, s[%d:%d], 0 offen sc1" % (S_WS, S_WS + 3), "kvt")
        if not self.noflags:
            a("v_mov_b32 v7, 0")
            a.vmem("buffer_load_dword v19, v7, s[%d:%d], 0 offen sc1" % (S_DBG, S_DBG + 3), "nonce")
        if "pfWb" in self.exp: self.w1_tail_prefetch(241)
        if "dmafirst" not in self.exp:
            self.stamp(15)
            if "V3" in self.exp: lst = self.w1_dma_ops(2) + self.w1_dma_ops(3)
            elif "V2" in self.exp: lst = self.w1_dma_ops(2)
            elif "V4" in self.exp or "V5" in self.exp: lst = []
            else: lst = self.w1_dma_ops(0) + self.w1_dma_ops(1) + self.w1_dma_ops(2)
            for f in lst: f()

    def m_gemm1(self):
        a = self.a
        ACC = 20
        BUF = [68, 96, 124]
        AX = 8; AW = [9, 10, 11]
        UREG = 152
        for i in range(48):
            a("v_mov_b32 v%d, 0" % (ACC + i))

        def read_ops(ks):
            buf = BUF[ks % 3]
            j = ks >> 1; ksl = ks & 1; slot = j % NW1
            pre = []
            if ksl == 0 and j > 0:
                d = W1_SLOT if slot != 0 else -(NW1 - 1) * W1_SLOT
                for b in range(3):
                    pre.append("v_add_u32 v%d, %d, v%d" % (AW[b], d & 0xffffffff, AW[b]))
            so = ksl * 32 * 384
            def rx(t):
                return lambda: a.lds("ds_read_b128 v[%d:%d], v%d offset:%d" % (buf + 4 * t, buf + 4 * t + 3, AX, L_XN + (j % NXN) * 8192 + t * 2048 + ksl * 1024), "x%d_%d" % (ks, t))
            def rw(b, hh):
                r0 = buf + 16 + 4 * b + 2 * hh
                return lambda: a.lds("ds_read_b64_tr_b16 v[%d:%d], v%d offset:%d" % (r0, r0 + 1, AW[b], so + hh * 4 * 384), "w%d_%d" % (ks, b))
            if "mnoreads" in self.exp: return pre
            return pre + [rw(0, 0), rw(0, 1), rx(0), rx(1), rx(2), rx(3), rw(1, 0), rw(1, 1), rw(2, 0), rw(2, 1)]

        def mfma_ops(ks):
            cur = BUF[ks % 3]
            ops = []
            for b in range(3):
                for t in range(4):
                    def f(b=b, t=t):
                        if "finewait" in self.exp:
                            a.need_lds("w%d_%d" % (ks, b), "x%d_%d" % (ks, t))
                        elif b == 0 and t == 0:
                            a.need_lds(*(["w%d_%d" % (ks, bb) for bb in range(3)] + ["x%d_%d" % (ks, tt) for tt in range(4)]))
                        acc = ACC + (b * 4 + t) * 4
                        if "mnomfma" in self.exp: return
                        a("v_mfma_f32_16x16x32_bf16 v[%d:%d], v[%d:%d], v[%d:%d], v[%d:%d]" % (
                            acc, acc + 3, cur + 16 + 4 * b, cur + 19 + 4 * b, cur + 4 * t, cur + 4 * t + 3, acc, acc + 3))
                    ops.append(f)
            return ops

        if not self.noflags and "V1" in self.exp: self.publish_h1()
        if "V3" not in self.exp: a.wait_vm("w1c1")
        a("s_barrier")
        self.stamp(14)
        for f in read_ops(0): self.run(f)
        if self.h1j == 0 and not self.noflags and "V1" not in self.exp:
            q_l = (list(a.lg.q), a.lg_done)
            self.publish_h1()
        for f in read_ops(1)[:5]: self.run(f)
        pend = read_ops(1)[5:]
        for j in range(8):
            if j >= 1 and j <= 6:
                if not ("mnodma" in self.exp and j + 1 >= 3) and "novmw" not in self.exp: a.wait_vm("w1c%d" % (j + 1))
                a("s_barrier")
                if "itst" in self.exp: self.stamp(22 + j)
                if j == self.h1j and not self.noflags and "V1" not in self.exp: self.publish_h1()
            dm = self.w1_dma_ops(j + 4) if (j + 4 <= 7) else []
            if j == 0 and "V3" not in self.exp: dm = self.w1_dma_ops(3) + dm
            if "mnodma" in self.exp:
                for _ in dm: a.vm.issue("dummy")
                dm = []
            ex = []
            for half in range(2):
                ks = 2 * j + half
                fill = list(pend); pend = []
                if ks + 2 <= 15:
                    fill += read_ops(ks + 2)
                hlf = (len(dm) + 1) // 2
                extra = (dm[:hlf] + ex if half == 0 else dm[hlf:])
                interleave(a, mfma_ops(ks), merge(fill, extra))
        a.lg0()
        self.stamp(2)
        HB = 68
        for i in range(12):
            a("v_cvt_pk_bf16_f32 v%d, v%d, v%d" % (HB + 2 * i, ACC + 4 * i, ACC + 4 * i + 1))
            a("v_cvt_pk_bf16_f32 v%d, v%d, v%d" % (HB + 2 * i + 1, ACC + 4 * i + 2, ACC + 4 * i + 3))
        for i in range(24):
            a("v_pk_max_i16 v%d, v%d, 0" % (HB + i, HB + i))
        if "st16" in self.exp:
            for b in range(3):
                for u in range(2):
                    r = HB + 8 * b + 4 * u
                    a("v_permlane16_swap_b32 v%d, v%d" % (r, r + 2))
                    a("v_permlane16_swap_b32 v%d, v%d" % (r + 1, r + 3))
            for b in range(3):
                so = "0" if b == 0 else "s%d" % (sINV1 if b == 1 else sINV2)
                for u in range(2):
                    r = HB + 8 * b + 4 * u
                    a.vmem("buffer_store_dwordx4 v[%d:%d], v%d, s[%d:%d], %s offen offset:%d sc1" % (r, r + 3, 168 + 2 * u, S_WS, S_WS + 3, so, 512 * b), "hst")
        elif "nohst" in self.exp:
            a.vm.issue("hst")
        else:
          for b in range(3):
            so = "0" if b == 0 else "s%d" % (sINV1 if b == 1 else sINV2)
            for t in range(4):
                r = HB + (b * 4 + t) * 2
                a.vmem("buffer_store_dwordx2 v[%d:%d], v%d, s[%d:%d], %s offen offset:%d sc1" % (r, r + 1, 168 + t, S_WS, S_WS + 3, so, 512 * b), "hst")
        if "h2pre" in self.exp and not self.noflags:
            self.publish_h2()
        a("s_barrier")

    def get_nonce(self):
        if self.noflags: return
        a = self.a
        a.wait_vm("nonce")
        lo = a.newlabel("L_nz"); lp = a.newlabel("L_nl")
        a("v_readfirstlane_b32 s%d, v19" % sNONCE)
        a("s_nop 3")
        a("s_cmp_lg_u32 s%d, 0" % sNONCE)
        a("s_cbranch_scc1 %s" % lo)
        a("s_mov_b32 s%d, 0" % sT3)
        a.label(lp)
        a("v_mov_b32 v7, 0")
        a("buffer_load_dword v19, v7, s[%d:%d], 0 offen sc1" % (S_DBG, S_DBG + 3))
        a("s_waitcnt vmcnt(0)")
        a("v_readfirstlane_b32 s%d, v19" % sNONCE)
        a("s_add_u32 s%d, s%d, 1" % (sT3, sT3))
        a("s_cmp_gt_u32 s%d, 100000" % sT3)
        a("s_cbranch_scc1 %s" % lo)
        a("s_cmp_eq_u32 s%d, 0" % sNONCE)
        a("s_cbranch_scc1 %s" % lp)
        a.label(lo)

    def flag_store(self, off_sreg, tag, va=2, vb=3):
        if self.noflags: return
        a = self.a
        a("v_mov_b32 v%d, s%d" % (va, off_sreg))
        a("v_mov_b32 v%d, s%d" % (vb, sNONCE))
        a("s_mov_b64 exec, 1")
        a.vmem("buffer_store_dword v%d, v%d, s[%d:%d], 0 offen sc1" % (vb, va, S_WS, S_WS + 3), tag)
        a("s_mov_b64 exec, -1")

    def publish_h1(self):
        a = self.a
        self.get_nonce()
        if "noprep" in self.exp: return
        a.wait_vm("kvt")
        a("s_lshl_b32 s%d, s%d, 7" % (sT0, sID))
        a("s_lshl_b32 s%d, s%d, 2" % (sT2, sRW))
        a("s_add_u32 s%d, s%d, s%d" % (sT0, sT0, sT2))
        a("s_add_u32 s%d, s%d, 0x%x" % (sT0, sT0, F_H1))
        self.flag_store(sT0, "flag")

    def poll(self, base_sreg, nlanes, width, stride):
        if self.noflags: return
        a = self.a
        lp = a.newlabel("L_poll"); dn = a.newlabel("L_pdone")
        a("v_mul_u32_u24 v2, %d, v1" % stride)
        a("v_add_u32 v2, s%d, v2" % base_sreg)
        a("s_mov_b32 s%d, 0" % sT3)
        if nlanes <= 16: a("s_mov_b64 exec, 0x%x" % ((1 << nlanes) - 1))
        else:
            a("s_mov_b32 exec_lo, -1"); a("s_mov_b32 exec_hi, 0")
        a.label(lp)
        if width == 1:
            a("buffer_load_dword v4, v2, s[%d:%d], 0 offen sc1" % (S_WS, S_WS + 3))
            a("s_waitcnt vmcnt(0)")
            a("v_cmp_ne_u32 vcc, s%d, v4" % sNONCE)
        else:
            a("buffer_load_dwordx4 v[4:7], v2, s[%d:%d], 0 offen sc1" % (S_WS, S_WS + 3))
            a("s_waitcnt vmcnt(0)")
            for i in range(4): a("v_xor_b32 v%d, s%d, v%d" % (4 + i, sNONCE, 4 + i))
            a("v_or3_b32 v4, v4, v5, v6")
            a("v_or_b32 v4, v4, v7")
            a("v_cmp_ne_u32 vcc, 0, v4")
        a("s_add_u32 s%d, s%d, 1" % (sT3, sT3))
        a("s_cmp_gt_u32 s%d, 100000" % sT3)
        a("s_cbranch_scc1 %s" % dn)
        a("s_cbranch_vccnz %s" % lp)
        a.label(dn)
        a("s_mov_b64 exec, -1")

    def lds_wait(self, addr_sreg, val=1, va=16, vb=17):
        a = self.a
        lp = a.newlabel("L_ps"); dn = a.newlabel("L_psd")
        a("v_mov_b32 v%d, s%d" % (va, addr_sreg))
        a("s_mov_b32 s%d, 0" % sT3)
        a.label(lp)
        a("ds_read_b32 v%d, v%d" % (vb, va))
        a("s_waitcnt lgkmcnt(0)")
        a("v_readfirstlane_b32 s4, v%d" % vb)
        a("s_add_u32 s%d, s%d, 1" % (sT3, sT3))
        a("s_cmp_ge_u32 s4, %d" % val)
        a("s_cbranch_scc1 %s" % dn)
        a("s_cmp_lt_u32 s%d, 1000000" % sT3)
        a("s_cbranch_scc1 %s" % lp)
        a.label(dn)
        a.lg_clear()

    def m_sync(self, word, n=4, va=16, vb=17):
        a = self.a
        a("v_mov_b32 v%d, %d" % (va, L_SYNC + 4 * word))
        a("v_mov_b32 v%d, 1" % vb)
        a.lg0()
        a("s_mov_b64 exec, 1")
        a("ds_add_u32 v%d, v%d" % (va, vb))
        a("s_mov_b64 exec, -1")
        a("s_mov_b32 s5, %d" % (L_SYNC + 4 * word))
        self.lds_wait(5, n, va, vb)

    def pair_sync(self, stage, va=16, vb=17):
        a = self.a
        a("s_lshl_b32 s4, s%d, 2" % sRW)
        a("s_add_u32 s4, s4, %d" % (L_SYNC + 16 * stage))
        a("s_xor_b32 s5, s4, 4")
        a("v_mov_b32 v%d, s4" % va)
        a("v_mov_b32 v%d, 1" % vb)
        a.lg0()
        a("ds_write_b32 v%d, v%d" % (va, vb))
        self.lds_wait(5, 1, va, vb)

    def publish_h2(self):
        a = self.a
        a.wait_vm("hst")
        a("s_lshl_b32 s4, s%d, 3" % sR)
        a("s_add_u32 s4, s4, s%d" % sC)
        a("s_lshl_b32 s4, s4, 7")
        a("s_lshl_b32 s5, s%d, 2" % sRW)
        a("s_add_u32 s4, s4, s5")
        a("s_add_u32 s%d, s4, 0x%x" % (sT2, F_H2))
        self.flag_store(sT2, "flag", 4, 5)

    def m_conv(self):
        a = self.a
        BF, ACC, AF, NA = 20, 148, 180, 16
        AU, AT = 2, 3
        a("v_and_b32 v8, 15, v1")
        a("v_lshrrev_b32 v9, 4, v1")
        a("v_lshlrev_b32 v10, 4, v9")
        a("v_lshlrev_b32 v11, 5, v8")
        a("v_sub_u32 v10, v10, v11")
        a("s_lshr_b32 s%d, s%d, 1" % (sT0, sRW))
        a("s_and_b32 s%d, s%d, 1" % (sT1, sRW))
        a("s_mul_i32 s%d, s%d, %d" % (sT2, sT0, U_CH))
        a("s_add_u32 s%d, s%d, %d" % (sT2, sT2, L_U + 2 * 2032 - 64 * 56))
        a("s_lshl_b32 s4, s%d, 6" % sT1)
        a("s_add_u32 s%d, s%d, s4" % (sT2, sT2))
        a("v_add_u32 v%d, s%d, v10" % (AU, sT2))
        a("v_and_b32 v10, 3, v8")
        a("v_mul_u32_u24 v10, %d, v10" % T_CP)
        a("v_lshrrev_b32 v11, 2, v8")
        a("v_lshl_add_u32 v10, v11, 3, v10")
        a("v_lshl_add_u32 v10, v9, 4, v10")
        a("s_mul_i32 s%d, s%d, %d" % (sT2, sT0, T_CH))
        a("s_add_u32 s%d, s%d, s4" % (sT2, sT2))
        a("s_add_u32 s%d, s%d, %d" % (sT2, sT2, L_T))
        a("v_add_u32 v%d, s%d, v10" % (AT, sT2))
        a("v_lshl_add_u32 v10, v9, 3, v8")
        a("s_lshl_b32 s4, s%d, 5" % sT1)
        a("v_add_u32 v10, s4, v10")
        MK = 12
        for d in range(4):
            a("v_sub_u32 v11, %d, v10" % (15 - 2 * d))
            a("v_med3_i32 v11, v11, 0, 2")
            a("v_lshlrev_b32 v11, 4, v11")
            a("v_mov_b32 v%d, -1" % (MK + d))
            a("v_lshlrev_b32 v16, v11, v%d" % (MK + d))
            a("v_cmp_eq_u32 vcc, 32, v11")
            a("v_cndmask_b32_e64 v%d, v16, 0, vcc" % (MK + d))
        for i in range(32):
            a("v_mov_b32 v%d, 0" % (ACC + i))
        def emit_A(ee):
            r = AF + 4 * (ee % NA)
            a.lds("ds_read_b64 v[%d:%d], v%d offset:%d" % (r, r + 1, AT, 128 * ee), ("A", ee))
            a.lds("ds_read_b64 v[%d:%d], v%d offset:%d" % (r + 2, r + 3, AT, 128 * ee + 8), ("A", ee))
        def emit_B(idx):
            r = BF + 4 * idx
            a.lds("ds_read_b128 v[%d:%d], v%d offset:%d" % (r, r + 3, AU, 128 * idx), ("B", idx))
        sched = []
        for ee in range(32):
            for j in range(7, (ee >> 2) - 1, -1):
                sched.append((ee, j, 28 - 4 * j + ee))
        order = []; seen = set(); last_use_A = {}
        for n, (ee, j, idx) in enumerate(sched):
            for it in (("A", ee), ("B", idx)):
                if it not in seen:
                    seen.add(it); order.append(it)
            last_use_A[ee] = n
        ptr = 0; issued = set()
        def can_issue(item, n):
            if item[0] == "A" and item[1] >= NA:
                return last_use_A[item[1] - NA] < n
            return True
        def issue_next(n_now):
            nonlocal ptr
            if ptr < len(order) and can_issue(order[ptr], n_now):
                it = order[ptr]
                (emit_A if it[0] == "A" else emit_B)(it[1])
                issued.add(it); ptr += 1
                return True
            return False
        def inflight():
            return len(a.lg.q) - a.lg_done
        GRP = 4
        while inflight() < 14 and issue_next(0): pass
        masked = False
        for n, (ee, j, idx) in enumerate(sched):
            while ("A", ee) not in issued or ("B", idx) not in issued:
                assert issue_next(n)
            if not (a.lds_done(("A", ee)) and a.lds_done(("B", idx))):
                tags = [("A", ee), ("B", idx)]
                for (e2, j2, i2) in sched[n + 1:n + GRP]:
                    if ("A", e2) in issued and ("B", i2) in issued: tags += [("A", e2), ("B", i2)]
                    else: break
                a.need_lds(*tags)
            ar = AF + 4 * (ee % NA); br = BF + 4 * idx; acc = ACC + 4 * j
            if ee == 0 and not masked:
                for d in range(4): a("v_and_b32 v%d, v%d, v%d" % (ar + d, MK + d, ar + d))
                masked = True
            a("v_mfma_f32_16x16x32_bf16 v[%d:%d], v[%d:%d], v[%d:%d], v[%d:%d]" % (acc, acc + 3, ar, ar + 3, br, br + 3, acc, acc + 3))
            if inflight() < 14:
                issue_next(n + 1)
                if n < 40 and inflight() < 14: issue_next(n + 1)
            if n == self.h2n and not self.noflags and "h2pre" not in self.exp:
                self.publish_h2()
        self.stamp(16)
        self.pair_sync(0)
        a("v_lshlrev_b32 v4, 4, v1")
        a("s_mul_i32 s%d, s%d, %d" % (sT0, sT0, T_CH))
        a("s_add_u32 s%d, s%d, %d" % (sT0, sT0, L_T + 8))
        a("s_lshl_b32 s%d, s%d, 12" % (sT2, sT1))
        a("s_add_u32 s%d, s%d, s%d" % (sT2, sT2, sT0))
        a("v_add_u32 v5, s%d, v4" % sT2)
        a("s_xor_b32 s%d, s%d, 1" % (sT2, sT1))
        a("s_lshl_b32 s%d, s%d, 12" % (sT2, sT2))
        a("s_add_u32 s%d, s%d, s%d" % (sT2, sT2, sT0))
        a("v_add_u32 v6, s%d, v4" % sT2)
        l0 = a.newlabel("L_cr0"); l1 = a.newlabel("L_cr1")
        a("s_cmp_eq_u32 s%d, 0" % sT1)
        a("s_cbranch_scc1 %s" % l0)
        for i in range(4):
            a("ds_write_b128 v5, v[%d:%d] offset:%d" % (ACC + 4 * i, ACC + 4 * i + 3, 1024 * i))
        for i in range(16):
            a("v_mov_b32 v%d, v%d" % (200 + i, ACC + 16 + i))
        a("s_branch %s" % l1)
        a.label(l0)
        for i in range(4):
            a("ds_write_b128 v5, v[%d:%d] offset:%d" % (ACC + 16 + 4 * i, ACC + 16 + 4 * i + 3, 1024 * i))
        for i in range(16):
            a("v_mov_b32 v%d, v%d" % (200 + i, ACC + i))
        a.label(l1)
        a("v_and_b32 v4, 15, v1")
        a("v_lshrrev_b32 v7, 4, v1")
        a("v_lshlrev_b32 v4, 5, v4")
        a("v_lshl_add_u32 v4, v7, 3, v4")
        a("s_lshr_b32 s%d, s%d, 1" % (sT0, sRW))
        a("s_mul_i32 s%d, s%d, %d" % (sT2, sT0, U_CH))
        a("s_add_u32 s%d, s%d, %d" % (sT2, sT2, L_U + 2 * 2044 - 3 * 512))
        a("s_lshl_b32 s4, s%d, 11" % sT1)
        a("s_sub_u32 s%d, s%d, s4" % (sT2, sT2))
        a("v_sub_u32 v4, s%d, v4" % sT2)
        for i in range(4):
            a("ds_read_b64 v[%d:%d], v4 offset:%d" % (236 + 2 * i, 237 + 2 * i, (3 - i) * 512))
        a("s_and_b32 s4, s%d, 0xffff" % sDD)
        a("s_lshr_b32 s5, s%d, 16" % sDD)
        a("s_cmp_eq_u32 s%d, 0" % sT0)
        a("s_cselect_b32 s4, s4, s5")
        a("s_lshl_b32 s5, s4, 16")
        a("v_mov_b32 v8, s4")
        a("v_mov_b32 v9, s5")
        self.pair_sync(1)
        for i in range(4):
            a("ds_read_b128 v[%d:%d], v6 offset:%d" % (220 + 4 * i, 223 + 4 * i, 1024 * i))
        TT = 148
        for i in range(4):
            u0, u1 = 236 + 2 * i, 237 + 2 * i
            a("v_dot2_f32_bf16 v%d, v%d, v9, 0" % (TT + 4 * i + 0, u1))
            a("v_dot2_f32_bf16 v%d, v%d, v8, 0" % (TT + 4 * i + 1, u1))
            a("v_dot2_f32_bf16 v%d, v%d, v9, 0" % (TT + 4 * i + 2, u0))
            a("v_dot2_f32_bf16 v%d, v%d, v8, 0" % (TT + 4 * i + 3, u0))
        TB = 164
        for i in range(4):
            a("v_cvt_pk_bf16_f32 v%d, v%d, v%d" % (TB + 2 * i, TT + 4 * i, TT + 4 * i + 1))
            a("v_cvt_pk_bf16_f32 v%d, v%d, v%d" % (TB + 2 * i + 1, TT + 4 * i + 2, TT + 4 * i + 3))
        a("v_and_b32 v4, 15, v1")
        a("v_lshrrev_b32 v5, 2, v4")
        a("v_lshlrev_b32 v5, 16, v5")
        a("v_and_b32 v4, 3, v4")
        a("v_lshl_add_u32 v5, v4, 5, v5")
        a("v_lshrrev_b32 v7, 4, v1")
        if "st16" in self.exp:
            a("v_lshrrev_b32 v4, 1, v7")
            a("v_lshl_add_u32 v5, v4, 4, v5")
            a("v_and_b32 v4, 1, v7")
            a("v_lshl_add_u32 v5, v4, 18, v5")
        else:
            a("v_lshl_add_u32 v5, v7, 3, v5")
        a("s_lshl_b32 s%d, s%d, 6" % (sT2, sC))
        a("s_lshl_b32 s4, s%d, 1" % sR)
        a("s_add_u32 s%d, s%d, s4" % (sT2, sT2))
        a("s_add_u32 s%d, s%d, s%d" % (sT2, sT2, sT0))
        a("s_lshl_b32 s%d, s%d, 7" % (sT2, sT2))
        a("s_lshl_b32 s4, s%d, 20" % sT1)
        a("s_add_u32 s%d, s%d, s4" % (sT2, sT2))
        a("s_add_u32 s%d, s%d, 0x%x" % (sT2, sT2, WS_YT))
        a("v_add_u32 v5, s%d, v5" % sT2)
        a.lg0()
        for i in range(16):
            a("v_add_f32 v%d, v%d, v%d" % (200 + i, 200 + i, 220 + i))
        YB = 172
        for i in range(8):
            a("v_cvt_pk_bf16_f32 v%d, v%d, v%d" % (YB + i, 200 + 2 * i, 201 + 2 * i))
        for i in range(8):
            a("v_perm_b32 v%d, v%d, v%d, s%d" % (200 + 2 * i, TB + i, YB + i, sP0))
            a("v_perm_b32 v%d, v%d, v%d, s%d" % (201 + 2 * i, TB + i, YB + i, sP1))
        for i in range(16):
            a("v_dot2_f32_bf16 v%d, v%d, v%d, 0" % (220 + i, 200 + i, vONES))
        for i in range(8):
            a("v_cvt_pk_bf16_f32 v%d, v%d, v%d" % (180 + i, 220 + 2 * i, 221 + 2 * i))
        if "st16" in self.exp:
            for u in range(2):
                r = 180 + 4 * u
                a("v_permlane16_swap_b32 v%d, v%d" % (r, r + 2))
                a("v_permlane16_swap_b32 v%d, v%d" % (r + 1, r + 3))
            for u in range(2):
                if u: a("v_add_u32 v5, 0x80000, v5")
                a.vmem("buffer_store_dwordx4 v[%d:%d], v5, s[%d:%d], 0 offen sc1" % (180 + 4 * u, 183 + 4 * u, S_WS, S_WS + 3), "yst")
        else:
          for i in range(4):
            if i: a("v_add_u32 v5, 0x40000, v5")
            a.vmem("buffer_store_dwordx2 v[%d:%d], v5, s[%d:%d], 0 offen sc1" % (180 + 2 * i, 181 + 2 * i, S_WS, S_WS + 3), "yst")
        self.stamp(17)

    def w2_voff(self):
        a = self.a
        sh = 7 if self.w2s else 10
        a("v_lshrrev_b32 v2, 3, v1")
        a("v_and_b32 v2, 3, v2")
        a("v_lshrrev_b32 v3, 5, v1")
        a("v_lshl_add_u32 v2, v3, 3, v2")
        a("v_lshlrev_b32 v2, %d, v2" % sh)
        a("v_lshrrev_b32 v3, 4, v1")
        a("v_and_b32 v3, 3, v3")
        a("v_lshlrev_b32 v3, 1, v3")
        a("v_and_b32 v4, 7, v1")
        a("v_xor_b32 v3, v3, v4")
        a("v_lshl_add_u32 v2, v3, 4, v2")
        if self.w2s:
            a("s_mul_i32 s%d, s%d, 176128" % (sT0, sD))
            a("s_add_u32 s%d, s%d, 0x%x" % (sT0, sT0, WS_W2S))
        else:
            a("s_lshl_b32 s%d, s%d, 7" % (sT0, sD))
        a("v_add_u32 v14, s%d, v2" % sT0)

    def w2_dma(self, lds_base_sreg, lds_off, src_base_sreg, ks_off, tag):
        a = self.a
        inc = [0, 512, 1536, 512] if self.w2s else [0, 4096, 12288, 4096]
        srd = S_WS if self.w2s else S_W2
        fl = " sc1" if self.w2s else ""
        a("s_add_u32 s%d, s%d, %d" % (sT2, src_base_sreg, ks_off * self.KS))
        for m in range(4):
            a("s_add_u32 m0, s%d, %d" % (lds_base_sreg, lds_off + 1024 * m))
            if m: a("s_add_u32 s%d, s%d, %d" % (sT2, sT2, inc[m]))
            a.vmem("buffer_load_dwordx4 v14, s[%d:%d], s%d offen%s lds" % (srd, srd + 3, sT2, fl), tag)

    def w2_slot_dma(self, tag):
        a = self.a
        a("s_lshl_b32 s71, s%d, 12" % sT0)
        a("s_add_u32 s70, s%d, 9" % sT0)
        a("s_cmp_lt_u32 s%d, 13" % sT0)
        a("s_cselect_b32 s70, s%d, s70" % sT0)
        a("s_lshl_b32 s70, s70, %d" % (12 if self.w2s else 15))
        self.w2_dma(71, L_B, 70, 0, tag)

    def w2_early(self):
        a = self.a
        for m in range(3):
            a("s_add_u32 s%d, s%d, %d" % (sT0, sRW, 4 * m))
            if m == 2: a("s_min_u32 s%d, s%d, 9" % (sT0, sT0))
            if m >= 1: a("s_add_u32 s%d, s%d, 4" % (sT0, sT0))
            self.w2_slot_dma("w2e")

    def m_regionA(self):
        a = self.a
        self.w2_voff()
        a("s_lshr_b32 s75, s%d, 1" % sRW)
        a("s_and_b32 s76, s%d, 1" % sRW)
        a("s_mul_i32 s70, s75, %d" % (22 * self.KS))
        self.m_sync(12)
        a("s_mul_i32 s71, s75, %d" % (NA_H * 4096))
        a("s_add_u32 s71, s71, %d" % L_A)
        a("s_lshl_b32 s4, s76, 12")
        a("s_add_u32 s71, s71, s4")
        a("s_lshl_b32 s4, s76, %d" % (12 if self.w2s else 15))
        a("s_add_u32 s70, s70, s4")
        for m in range(3):
            self.w2_dma(71, 8192 * m, 70, 13 + 2 * m, "w2a")

    def n_after_w2a_min(self):
        return (0 if self.noflags else 1) + 4 + 1

    def m_tail(self):
        a = self.a
        self.m_regionA()
        a.wait_vm("yst")
        if not self.noflags:
            a("s_lshl_b32 s4, s%d, 7" % sID)
            a("s_lshl_b32 s5, s%d, 2" % sRW)
            a("s_add_u32 s4, s4, s5")
            a("s_add_u32 s%d, s4, 0x%x" % (sT2, F_H3))
            self.flag_store(sT2, "flag", 2, 3)
        self.stamp(21)
        a("s_mov_b32 s5, %d" % (L_SYNC + 56))
        self.lds_wait(5, 4)
        a("s_mul_i32 s71, s75, %d" % B_HALF)
        a("s_lshl_b32 s4, s76, 12")
        a("s_add_u32 s71, s71, s4")
        if L_B: a("s_add_u32 s71, s71, %d" % L_B)
        self.w2_dma(71, 0, 70, 19, "w2l")
        skl = a.newlabel("L_ml")
        a("s_cmp_eq_u32 s76, 1")
        a("s_cbranch_scc1 %s" % skl)
        self.w2_dma(71, 8192, 70, 21, "w2l")
        a.label(skl)
        self.final_x_load(240, 244)
        a("v_lshrrev_b32 v3, 2, v0")
        a("v_and_b32 v4, 3, v0")
        a("v_lshlrev_b32 v5, 7, v3")
        a("v_lshl_add_u32 v5, v4, 5, v5")
        a("s_lshl_b32 s%d, s%d, 16" % (sT0, sR))
        a("s_lshl_b32 s%d, s%d, 13" % (sT1, sD))
        a("s_add_u32 s%d, s%d, s%d" % (sT0, sT0, sT1))
        a("s_add_u32 s%d, s%d, 0x%x" % (sT0, sT0, WS_YT))
        a("v_add_u32 v8, s%d, v5" % sT0)
        a("v_mul_u32_u24 v9, 144, v3")
        a("v_lshl_add_u32 v9, v4, 5, v9")
        a("v_add_u32 v9, %d, v9" % L_Y)
        early = "yearly" in self.exp and not self.noflags
        if early:
            a("s_lshl_b32 s%d, s%d, 12" % (sT0, sD))
            a("s_add_u32 s%d, s%d, 0x%x" % (sT0, sT0, F_H3))
            a("v_and_b32 v2, 31, v1")
            a("v_lshlrev_b32 v2, 7, v2")
            a("v_add_u32 v2, s%d, v2" % sT0)
            a("buffer_load_dwordx4 v[28:31], v2, s[%d:%d], 0 offen sc1" % (S_WS, S_WS + 3))
        a("s_waitcnt vmcnt(%d)" % (self.n_after_w2a_min() + (1 if early else 0)))
        self.stamp(18)
        a("s_barrier")
        a("s_waitcnt vmcnt(0)")
        def yloads():
            a("buffer_load_dwordx4 v[20:23], v8, s[%d:%d], 0 offen sc1" % (S_WS, S_WS + 3))
            a("buffer_load_dwordx4 v[24:27], v8, s[%d:%d], 0 offen offset:16 sc1" % (S_WS, S_WS + 3))
        if early:
            lslow = "L_yslow"; lback = "L_yback"
            for i in range(4): a("v_xor_b32 v%d, s%d, v%d" % (28 + i, sNONCE, 28 + i))
            a("v_or3_b32 v28, v28, v29, v30")
            a("v_or_b32 v28, v28, v31")
            a("v_cmp_ne_u32 vcc, 0, v28")
            a("s_cbranch_vccnz %s" % lslow)
            yloads()
            a("s_barrier")
            a.label(lback)
            self.yslow_body = yloads
        else:
            a("s_barrier")
            if not self.noflags and "noh3" not in self.exp:
                a("s_lshl_b32 s%d, s%d, 12" % (sT0, sD))
                a("s_add_u32 s%d, s%d, 0x%x" % (sT0, sT0, F_H3))
                self.poll(sT0, 32, 4, 128)
            yloads()
        self.stamp(7)
        a("s_waitcnt vmcnt(0)")
        a("ds_write_b128 v9, v[20:23]")
        a("ds_write_b128 v9, v[24:27] offset:16")
        a.lg0()
        a("s_barrier")

    def y_slow(self):
        a = self.a
        a.label("L_yslow")
        a("s_barrier")
        a("s_lshl_b32 s%d, s%d, 12" % (sT0, sD))
        a("s_add_u32 s%d, s%d, 0x%x" % (sT0, sT0, F_H3))
        self.poll(sT0, 32, 4, 128)
        self.yslow_body()
        a("s_branch L_yback")

    def final_x_load(self, xr, ar):
        a = self.a
        a("s_and_b32 s%d, s%d, 3" % (sT0, sW))
        a("s_lshl_b32 s%d, s%d, 4" % (sT0, sT0))
        a("s_lshl_b32 s%d, s%d, 6" % (sT1, sR))
        a("s_add_u32 s%d, s%d, s%d" % (sT0, sT0, sT1))
        a("s_lshl_b32 s%d, s%d, 10" % (sT0, sT0))
        a("s_lshl_b32 s%d, s%d, 7" % (sT1, sD))
        a("s_add_u32 s%d, s%d, s%d" % (sT0, sT0, sT1))
        a("s_lshr_b32 s%d, s%d, 2" % (sT1, sW))
        a("s_lshl_b32 s%d, s%d, 6" % (sT1, sT1))
        a("s_add_u32 s%d, s%d, s%d" % (sT0, sT0, sT1))
        a("v_lshrrev_b32 v2, 2, v1")
        a("v_lshlrev_b32 v2, 10, v2")
        a("v_and_b32 v3, 3, v1")
        a("v_lshl_add_u32 v2, v3, 4, v2")
        a("v_add_u32 v%d, s%d, v2" % (ar, sT0))
        a.vmem("buffer_load_dwordx4 v[%d:%d], v%d, s[%d:%d], 0 offen" % (xr, xr + 3, ar, S_X, S_X + 3), "xf")

    def u_slow(self):
        a = self.a
        a.label("L_uslow")
        a("s_lshl_b32 s%d, s%d, 12" % (sT0, sC))
        a("s_add_u32 s%d, s%d, 0x%x" % (sT0, sT0, F_H1))
        self.poll(sT0, 32, 1, 128)
        for i in range(4):
            a("buffer_load_dwordx4 v[%d:%d], v172, s[%d:%d], 0 offen offset:%d sc1" % (152 + 4 * i, 155 + 4 * i, S_WS, S_WS + 3, 1024 * i))
        a("s_waitcnt vmcnt(0)")
        for i in range(4):
            a("ds_write_b128 v174, v[%d:%d] offset:%d" % (152 + 4 * i, 155 + 4 * i, 1024 * i))
        a("s_waitcnt lgkmcnt(0)")
        a("s_branch L_uback")

    NEGM, RS, NMRS = 100, 101, 102
    def norm2(self, X, t):
        L = []
        L.append("v_lshlrev_b32 v%d, 16, v%d" % (t + 0, X))
        L.append("v_and_b32 v%d, v%d, v%d" % (t + 1, vMHI, X))
        L.append("v_lshlrev_b32 v%d, 16, v%d" % (t + 2, X + 1))
        L.append("v_and_b32 v%d, v%d, v%d" % (t + 3, vMHI, X + 1))
        if self.relax_ln:
            for i in range(4):
                L.append("v_fma_f32 v%d, v%d, v%d, v%d" % (t + i, t + i, self.RS, self.NMRS))
        else:
            for i in range(4):
                L.append("v_add_f32 v%d, v%d, v%d" % (t + i, t + i, self.NEGM))
            L.append("v_cvt_pk_bf16_f32 v%d, v%d, v%d" % (t + 4, t + 0, t + 1))
            L.append("v_cvt_pk_bf16_f32 v%d, v%d, v%d" % (t + 5, t + 2, t + 3))
            L.append("v_lshlrev_b32 v%d, 16, v%d" % (t + 0, t + 4))
            L.append("v_and_b32 v%d, v%d, v%d" % (t + 1, vMHI, t + 4))
            L.append("v_lshlrev_b32 v%d, 16, v%d" % (t + 2, t + 5))
            L.append("v_and_b32 v%d, v%d, v%d" % (t + 3, vMHI, t + 5))
            for i in range(4):
                L.append("v_mul_f32 v%d, v%d, v%d" % (t + i, t + i, self.RS))
        L.append("v_cvt_pk_bf16_f32 v%d, v%d, v%d" % (X, t + 0, t + 1))
        L.append("v_cvt_pk_bf16_f32 v%d, v%d, v%d" % (X + 1, t + 2, t + 3))
        return L

    def norm_chunk(self, j):
        a = self.a
        X = 20 + 8 * j
        for half in range(2):
            s1 = self.norm2(X + 4 * half, 104); s2 = self.norm2(X + 4 * half + 2, 110)
            for x, y in zip(s1, s2):
                a(x); a(y)
            a.lds("ds_write_b128 v116, v[%d:%d] offset:%d" % (X + 4 * half, X + 4 * half + 3, L_XN + (j % NXN) * 8192 + half * 1024), "xw")

    def h_first(self):
        a = self.a
        self.vm_m_first = a.vm
        a.vm = Q(["cpf"] if "codepf0" in self.exp else [])
        a.label("L_Hfirst")
        self.rot_calc()
        a("s_lshl_b32 s%d, s%d, 16" % (sT0, sR))
        a("s_lshl_b32 s%d, s%d, 14" % (sT1, sRW))
        a("s_add_u32 s%d, s%d, s%d" % (sT0, sT0, sT1))
        a("v_lshrrev_b32 v6, 2, v1")
        a("v_lshlrev_b32 v6, 10, v6")
        a("v_and_b32 v7, 3, v1")
        a("v_lshl_add_u32 v6, v7, 4, v6")
        a("v_add_u32 v6, s%d, v6" % sT0)
        a("s_lshl_b32 s%d, s%d, 7" % (sT0, sROT))
        a("s_waitcnt lgkmcnt(0)")
        a("s_mov_b64 s[8:9], s[64:65]")
        if self.stamps:
            a("s_memrealtime s[4:5]"); a("s_waitcnt lgkmcnt(0)"); a("v_writelane_b32 v255, s4, 0")
        for j in range(8):
            if j:
                a("s_add_u32 s%d, s%d, 128" % (sT0, sT0))
                a("s_and_b32 s%d, s%d, 1023" % (sT0, sT0))
            a.vmem("buffer_load_dwordx4 v[%d:%d], v6, s[%d:%d], s%d offen" % (20 + 8 * j, 23 + 8 * j, S_X, S_X + 3, sT0), "x%d" % j)
            a.vmem("buffer_load_dwordx4 v[%d:%d], v6, s[%d:%d], s%d offen offset:64" % (24 + 8 * j, 27 + 8 * j, S_X, S_X + 3, sT0), "x%d" % j)
        a("s_branch L_H")
        self.vm_h_first = a.vm

    def h_front(self):
        a = self.a
        a.vm = self.vm_h_first; a.lg_clear()
        self.p0_rest()
        a("s_waitcnt lgkmcnt(0)")
        if "tlbpf" in self.exp:
            a("v_lshlrev_b32 v2, 19, v1")
            a("v_cmp_gt_u32 vcc, 28, v1")
            a("v_mov_b32 v3, 0x40000000")
            a("v_cndmask_b32 v2, v3, v2, vcc")
            a.vmem("buffer_load_dword v245, v2, s[%d:%d], 0 offen" % (S_WS, S_WS + 3), "tlb")
            a("v_lshlrev_b32 v2, 19, v1")
            a.vmem("buffer_load_dword v246, v2, s[%d:%d], 0 offen" % (S_OUT, S_OUT + 3), "tlb")
            a.vmem("buffer_load_dword v247, v2, s[%d:%d], 0 offen" % (S_W2, S_W2 + 3), "tlb")
            a.vmem("buffer_load_dword v243, v2, s[%d:%d], 0 offen" % (S_SSM, S_SSM + 3), "tlb")
        if self.w2s:
            a("s_lshl_b32 s%d, s2, 13" % sT2)
            a("v_and_b32 v2, 255, v0")
            a("v_lshlrev_b32 v3, 4, v2")
            a("v_add_u32 v3, s%d, v3" % sT2)
            a("s_cmp_lt_u32 s2, 172")
            a("s_cselect_b32 s86, 0, 0x40000000")
            a.vmem("buffer_load_dwordx4 v[224:227], v3, s[%d:%d], s86 offen" % (S_W2, S_W2 + 3), "w2sl")
            a("v_add_u32 v3, 4096, v3")
            a.vmem("buffer_load_dwordx4 v[228:231], v3, s[%d:%d], s86 offen" % (S_W2, S_W2 + 3), "w2sl")
            a("v_bfe_u32 v4, v2, 3, 3")
            a("v_mul_u32_u24 v4, 176128, v4")
            a("v_lshrrev_b32 v5, 6, v2")
            a("v_lshl_add_u32 v4, v5, 7, v4")
            a("v_and_b32 v5, 7, v2")
            a("v_lshl_add_u32 v4, v5, 4, v4")
            a("s_lshl_b32 s%d, s2, 10" % sT2)
            a("s_add_u32 s%d, s%d, 0x%x" % (sT2, sT2, WS_W2S))
            a("v_add_u32 v232, s%d, v4" % sT2)
        if "codepf" in self.exp:
            a("s_getpc_b64 s[82:83]")
            a.label("L_pc")
            a("s_sub_u32 s82, s82, L_pc-%s" % KNAME)
            a("s_subb_u32 s83, s83, 0")
            a("v_lshlrev_b32 v2, 7, v1")
            a("s_lshl_b32 s84, s%d, 13" % sRW)
            a("v_add_u32 v2, s84, v2")
            a("v_min_u32 v2, L_codeend-%s, v2" % KNAME)
            a("v_mov_b32 v3, s83")
            a("v_add_co_u32 v2, vcc, s82, v2")
            a("v_addc_co_u32 v3, vcc, 0, v3, vcc")
            a.vmem("global_load_dword v244, v[2:3], off", "cpf")
        a("s_waitcnt lgkmcnt(0)")
        a("s_barrier")

        if "V3" in self.exp:
            self.w1_voffs()
            for f in self.w1_dma_ops(0) + self.w1_dma_ops(1): f()
        a("s_setprio 0")
        if not self.noflags:
            a("v_mov_b32 v7, 0")
        a("v_lshrrev_b32 v4, 2, v1")
        a("v_and_b32 v5, 3, v1")
        a("v_lshlrev_b32 v2, 1, v5")
        a("v_xor_b32 v4, v4, v2")
        a("v_lshlrev_b32 v4, 4, v4")
        a("v_lshl_add_u32 v4, v5, 8, v4")
        a("s_lshl_b32 s%d, s%d, 11" % (sT2, sRW))
        a("v_add_u32 v116, s%d, v4" % sT2)

    def h_ssm_load(self):
        a = self.a
        a("s_lshl_b32 s%d, s%d, 6" % (sT2, sC))
        a("s_lshl_b32 s%d, s%d, 1" % (sT1, sR))
        a("s_add_u32 s%d, s%d, s%d" % (sT2, sT2, sT1))
        a("s_lshl_b32 s%d, s%d, 12" % (sT2, sT2))
        a("v_and_b32 v3, 255, v0")
        a("v_lshlrev_b32 v3, 4, v3")
        a("v_add_u32 v2, s%d, v3" % sT2)
        a("v_add_u32 v4, -8, v2")
        for ch in range(2):
            a.vmem("buffer_load_dwordx2 v[%d:%d], v4, s[%d:%d], 0 offen" % (84 + 6 * ch, 85 + 6 * ch, S_SSM, S_SSM + 3), "ssm")
            a.vmem("buffer_load_dwordx4 v[%d:%d], v2, s[%d:%d], 0 offen" % (86 + 6 * ch, 89 + 6 * ch, S_SSM, S_SSM + 3), "ssm")
            if ch == 0:
                a("v_add_u32 v2, 4096, v2")
                a("v_add_u32 v4, 4096, v4")

    def h_stats(self):
        a = self.a
        X = 20
        for i in range(8): a("v_mov_b32 v%d, 0" % (104 + i))
        for i in range(64):
            if i % 8 == 0:
                a.wait_vm("x%d" % (i // 8))
                if i == 0: self.stamp(13)
            a("v_dot2_f32_bf16 v%d, v%d, v%d, v%d" % (104 + (i & 3), X + i, vONES, 104 + (i & 3)))
            a("v_dot2_f32_bf16 v%d, v%d, v%d, v%d" % (108 + (i & 3), X + i, X + i, 108 + (i & 3)))
        a("v_add_f32 v104, v104, v105"); a("v_add_f32 v106, v106, v107")
        a("v_add_f32 v108, v108, v109"); a("v_add_f32 v110, v110, v111")
        a("v_add_f32 v2, v104, v106"); a("v_add_f32 v3, v108, v110")
        for ctl in ("quad_perm:[1,0,3,2]", "quad_perm:[2,3,0,1]"):
            a("v_add_f32_dpp v2, v2, v2 %s row_mask:0xf bank_mask:0xf" % ctl)
            a("v_add_f32_dpp v3, v3, v3 %s row_mask:0xf bank_mask:0xf" % ctl)
        a("v_mul_f32 v2, 0x3b000000, v2")
        a("v_mul_f32 v3, 0x3b000000, v3")
        a("v_cvt_pk_bf16_f32 v4, v2, v2")
        a("v_fma_f32 v3, -v2, v2, v3")
        a("v_lshlrev_b32 v4, 16, v4")
        a("v_max_f32 v3, 0, v3")
        a("v_cvt_pk_bf16_f32 v3, v3, v3")
        a("v_lshlrev_b32 v3, 16, v3")
        a("v_add_f32 v3, 0x3727c5ac, v3")
        a("v_cvt_pk_bf16_f32 v3, v3, v3")
        a("v_lshlrev_b32 v3, 16, v3")
        a("v_sqrt_f32 v3, v3")
        a("v_cvt_pk_bf16_f32 v3, v3, v3")
        a("v_lshlrev_b32 v3, 16, v3")
        a("v_rcp_f32 v%d, v3" % self.RS)
        a("v_sub_f32 v%d, 0, v4" % self.NEGM)
        a("v_mul_f32 v%d, v%d, v%d" % (self.NMRS, self.NEGM, self.RS))
        a("v_lshrrev_b32 v6, 2, v1")
        a("s_lshl_b32 s%d, s%d, 4" % (sT2, sRW))
        a("v_add_u32 v6, s%d, v6" % sT2)
        a("v_lshlrev_b32 v5, 3, v6")
        a("v_add_u32 v5, %d, v5" % L_STATS)
        a("v_mov_b32 v2, v4")
        a("v_mov_b32 v3, v%d" % self.RS)
        a.lds("ds_write_b64 v5, v[2:3]", "st")

    def h_tbuild(self, ch):
        a = self.a
        D = 84 + 6 * ch
        E = 118
        for p in range(5):
            a("v_alignbit_b32 v%d, v%d, v%d, 16" % (E + p, D + p + 1, D + p))
        for p in range(4):
            a("v_mov_b32 v%d, v%d" % (124 + p, D + 1 + p))
            a("v_mov_b32 v%d, v%d" % (128 + p, E + 1 + p))
        a("v_and_b32 v3, 255, v0")
        a("v_lshlrev_b32 v3, 4, v3")
        a("v_add_u32 v3, %d, v3" % (L_T + ch * T_CH + 24))
        a("ds_write_b128 v3, v[118:121]")
        a("ds_write_b128 v3, v[124:127] offset:%d" % T_CP)
        a("ds_write_b128 v3, v[128:131] offset:%d" % (2 * T_CP))
        a("ds_write_b128 v3, v[%d:%d] offset:%d" % (D + 2, D + 5, 3 * T_CP))

    def w2flag_loads(self, tag):
        a = self.a
        for i in range(3):
            a("v_add_u32 v3, %d, v1" % (64 * i))
            if i == 2:
                a("v_cmp_gt_u32 vcc, 172, v3")
                a("v_cndmask_b32 v3, 0, v3, vcc")
            a("v_lshlrev_b32 v3, 7, v3")
            a("v_add_u32 v3, 0x%x, v3" % F_H4)
            ins = "buffer_load_dword v%d, v3, s[%d:%d], 0 offen sc1" % (100 + i, S_WS, S_WS + 3)
            if tag: a.vmem(ins, tag)
            else: a(ins)

    def w2flag_check(self):
        a = self.a
        for i in range(3): a("v_xor_b32 v%d, s%d, v%d" % (104 + i, sNONCE, 100 + i))
        a("v_or3_b32 v104, v104, v105, v106")
        a("v_cmp_ne_u32 vcc, 0, v104")

    def h_uload(self):
        a = self.a
        if self.noflags: a.wait_vm("ssm")
        if not self.noflags:
            dn = a.newlabel("L_h1ok")
            a.wait_vm("h1f")
            for i in range(4): a("v_xor_b32 v%d, s%d, v%d" % (96 + i, sNONCE, 96 + i))
            a("v_or3_b32 v96, v96, v97, v98")
            a("v_or_b32 v96, v96, v99")
            a("v_cmp_ne_u32 vcc, 0, v96")
            a("s_cbranch_vccz %s" % dn)
            if "noprep" not in self.exp:
                a("s_lshl_b32 s%d, s%d, 12" % (sT0, sC))
                a("s_add_u32 s%d, s%d, 0x%x" % (sT0, sT0, F_H1))
                self.poll(sT0, 32, 4, 128)
            a.label(dn)
        self.stamp(3)
        a("s_lshl_b32 s%d, s%d, 6" % (sT0, sC))
        a("s_lshl_b32 s%d, s%d, 1" % (sT1, sR))
        a("s_add_u32 s%d, s%d, s%d" % (sT0, sT0, sT1))
        a("s_lshl_b32 s%d, s%d, 12" % (sT0, sT0))
        a("s_lshl_b32 s%d, s%d, 11" % (sT1, sRW))
        a("s_add_u32 s%d, s%d, s%d" % (sT0, sT0, sT1))
        a("v_lshlrev_b32 v4, 4, v1")
        a("v_add_u32 v5, s%d, v4" % sT0)
        a.vmem("buffer_load_dwordx4 v[20:23], v5, s[%d:%d], 0 offen sc1" % (S_WS, S_WS + 3), "u")
        a.vmem("buffer_load_dwordx4 v[24:27], v5, s[%d:%d], 0 offen offset:1024 sc1" % (S_WS, S_WS + 3), "u")
        self.h_tbuild(0)
        self.h_tbuild(1)
        if "w2early" in self.exp:
            self.w2_voff()
            self.w2_early()
        a("v_lshlrev_b32 v4, 4, v1")
        a("s_lshr_b32 s%d, s%d, 1" % (sT0, sRW))
        a("s_mul_i32 s%d, s%d, %d" % (sT0, sT0, U_CH))
        a("s_and_b32 s%d, s%d, 1" % (sT1, sRW))
        a("s_lshl_b32 s%d, s%d, 11" % (sT2, sT1))
        a("s_add_u32 s%d, s%d, s%d" % (sT0, sT0, sT2))
        a("s_add_u32 s%d, s%d, %d" % (sT0, sT0, L_U))
        a("v_add_u32 v6, s%d, v4" % sT0)
        for i in range(4): a("v_mov_b32 v%d, 0" % (28 + i))
        a("s_cmp_eq_u32 s%d, 1" % sT1)
        a("s_cselect_b32 exec_lo, -1, 0")
        a("s_mov_b32 exec_hi, 0")
        a("ds_write_b128 v6, v[28:31] offset:2048")
        a("s_mov_b64 exec, -1")
        a.wait_vm("u")
        a("ds_write_b128 v6, v[20:23]")
        a("ds_write_b128 v6, v[24:27] offset:1024")

    def norm_seq(self, j):
        a = self.a
        X = 20 + 8 * j
        seq = []
        for half in range(2):
            s1 = self.norm2(X + 4 * half, 104); s2 = self.norm2(X + 4 * half + 2, 110)
            if "hnonorm" in self.exp and j >= 2:
                s1 = ["s_nop 0"] * 8; s2 = ["s_nop 0"] * 8
            for x, y in zip(s1, s2):
                seq.append(x); seq.append(y)
            if "wmid" in self.exp:
                seq.append(lambda half=half: a.lds("ds_write_b128 v116, v[%d:%d] offset:%d" % (X + 4 * half, X + 4 * half + 3, L_XN + (j % NXN) * 8192 + half * 1024), "xw%d" % j))
        if not ("hnowrite" in self.exp and j >= 2) and "wmid" not in self.exp:
            for half in range(2):
                seq.append(lambda half=half: a.lds("ds_write_b128 v116, v[%d:%d] offset:%d" % (X + 4 * half, X + 4 * half + 3, L_XN + (j % NXN) * 8192 + half * 1024), "xw%d" % j))
        return seq

    def h_gemm1_side(self):
        a = self.a
        if self.w2s:
            a.wait_vm("w2sl")
            a.vmem("buffer_store_dwordx4 v[224:227], v232, s[%d:%d], s86 offen sc1" % (S_WS, S_WS + 3), "w2st")
            a.vmem("buffer_store_dwordx4 v[228:231], v232, s[%d:%d], s86 offen offset:512 sc1" % (S_WS, S_WS + 3), "w2st")
        if "hprio" in self.exp: a("s_setprio 2")
        if "pfWc" in self.exp: self.w1_tail_prefetch(241)
        if "lnpre" in self.exp:
            def split(j):
                sq = self.norm_seq(j)
                return sq[:-2], sq[-2:]
            wr = {}
            for j in range(8):
                v_, w_ = split(j)
                for x in v_: self.run(x)
                if j < 4:
                    for x in w_: self.run(x)
                else:
                    wr[j] = w_
                if j == 1 and not self.noflags:
                    a.vmem("buffer_load_dword v19, v7, s[%d:%d], 0 offen sc1" % (S_DBG, S_DBG + 3), "nonce")
            a.need_lds("xw0", "xw1")
            a("s_barrier")
        else:
            for x in self.norm_seq(0): self.run(x)
            s1 = self.norm_seq(1)
            h = len(s1) // 2
            for x in s1[:h]: self.run(x)
            for x in s1[h:]: self.run(x)
            if not self.noflags:
                a.vmem("buffer_load_dword v19, v7, s[%d:%d], 0 offen sc1" % (S_DBG, S_DBG + 3), "nonce")
            s2 = self.norm_seq(2)
            for x in s2[:h]: self.run(x)
            a.need_lds("xw0", "xw1")
            if "V3" in self.exp: a.wait_vm("w1c1")
            a("s_barrier")
            for x in s2[h:]: self.run(x)
        for j in range(8):
            if "lnpre" in self.exp:
                if j >= 1 and j + 3 <= 7:
                    for x in wr[j + 3]: self.run(x)
            elif j + 3 <= 7:
                for x in self.norm_seq(j + 3): self.run(x)
            if j == self.pf2j and "pf2" in self.exp: self.line_prefetch("w2", 242)
            if j == 1: self.h_ssm_load()
            if j == (self.w2j if self.w2s else 4) and not self.noflags:
                self.get_nonce()
            if j == 5:
                if not self.noflags:
                    a("s_lshl_b32 s%d, s%d, 12" % (sT0, sC))
                    a("s_add_u32 s%d, s%d, 0x%x" % (sT0, sT0, F_H1))
                    a("v_and_b32 v2, 31, v1")
                    a("v_lshlrev_b32 v2, 7, v2")
                    a("v_add_u32 v2, s%d, v2" % sT0)
                if self.w2s:
                    skf = a.newlabel("L_w2f")
                    a("s_cmp_lg_u32 s%d, 0" % sRW)
                    a("s_cbranch_scc1 %s" % skf)
                    self.w2flag_loads(tag=None)
                    a.label(skf)
                if not self.noflags:
                    a.vmem("buffer_load_dwordx4 v[96:99], v2, s[%d:%d], 0 offen sc1" % (S_WS, S_WS + 3), "h1f")
            if j + 1 <= 6:
                if j + 2 <= 7 and "hnowrite" not in self.exp: a.need_lds("xw%d" % (j + 2))
                if j == self.w2j and self.w2s: a.wait_vm("w2st")
                a("s_barrier")
                if j == self.w2j and self.w2s:
                    sk = a.newlabel("L_w2c")
                    a("s_cmp_lt_u32 s2, 172")
                    a("s_cselect_b32 s4, s%d, 1" % sRW)
                    a("s_cmp_lg_u32 s4, 0")
                    a("s_cbranch_scc1 %s" % sk)
                    a("s_lshl_b32 s4, s2, 7")
                    a("s_add_u32 s%d, s4, 0x%x" % (sT2, F_H4))
                    q = list(a.vm.q)
                    self.flag_store(sT2, "flag", 2, 3)
                    a.vm.q = q
                    a.label(sk)
                if "itst" in self.exp: self.stamp(23 + j)
        if "hprio" in self.exp: a("s_setprio 0")
        self.h_uload()
        if self.w2s:
            lp = a.newlabel("L_w2p"); dn = a.newlabel("L_w2d")
            a("s_cmp_lg_u32 s%d, 0" % sRW)
            a("s_cbranch_scc1 %s" % dn)
            a("s_mov_b32 s%d, 0" % sT3)
            a.label(lp)
            self.w2flag_check()
            a("s_cbranch_vccz %s" % dn)
            self.w2flag_loads(tag=None)
            a("s_waitcnt vmcnt(0)")
            a("s_add_u32 s%d, s%d, 1" % (sT3, sT3))
            a("s_cmp_lt_u32 s%d, 100000" % sT3)
            a("s_cbranch_scc1 %s" % lp)
            if "pf4" in self.exp:
                lok = a.newlabel("L_w2ok")
                a.lines.pop()
                a("s_cbranch_scc1 %s" % lp)
            a.label(dn)
            if "pf4" in self.exp:
                skp = a.newlabel("L_pf4")
                a("s_cmp_lg_u32 s%d, 0" % sRW)
                a("s_cbranch_scc1 %s" % skp)
                a("s_lshr_b32 s%d, s2, 3" % sT0)
                if "map42" in self.exp:
                    a("s_mul_i32 s%d, s%d, %d" % (sT0, sT0, 172 * 128))
                    a("s_bfe_u32 s%d, s2, 0x10002" % sT1)
                    a("s_mul_i32 s%d, s%d, %d" % (sT1, sT1, 4 * 176128))
                    a("s_add_u32 s%d, s%d, s%d" % (sT0, sT0, sT1))
                    nl = 172
                else:
                    a("s_mul_i32 s%d, s%d, %d" % (sT0, sT0, 344 * 128))
                    nl = 344
                a("s_add_u32 s%d, s%d, 0x%x" % (sT0, sT0, WS_W2S))
                for i in range((nl + 63) // 64):
                    a("v_add_u32 v3, %d, v1" % (64 * i))
                    a("v_min_u32 v3, %d, v3" % (nl - 1))
                    a("v_lshlrev_b32 v3, 7, v3")
                    a("v_add_u32 v3, s%d, v3" % sT0)
                    a("buffer_load_dword v%d, v3, s[%d:%d], 0 offen sc1" % (240 + (i & 3), S_WS, S_WS + 3))
                a.label(skp)
        self.w2_voff()
        a.lg0()
        a("s_barrier")
        self.stamp(2)

    def h_gemm2(self):
        a = self.a
        HF, ACC = 20, 196
        WBUF = [228, 2]
        AB = 244
        PF = 10
        a("s_lshr_b32 s75, s%d, 1" % sRW)
        a("s_and_b32 s76, s%d, 1" % sRW)
        if "poller3" in self.exp:
            lp3 = a.newlabel("L_hp3"); lgo = a.newlabel("L_hgo")
            a("s_cmp_eq_u32 s%d, 3" % sRW)
            a("s_cbranch_scc1 %s" % lp3)
            q0 = list(a.vm.q)
            for m in range(9):
                a("s_add_u32 s%d, s%d, %d" % (sT0, sRW, 3 * m))
                if m == 8: a("s_min_u32 s%d, s%d, 25" % (sT0, sT0))
                a("s_lshr_b32 s%d, s%d, 1" % (sT1, sT0))
                a("s_and_b32 s%d, s%d, 1" % (sT0, sT0))
                a("s_mul_i32 s71, s%d, %d" % (sT0, NB_H))
                a("s_add_u32 s71, s71, s%d" % sT1)
                a("s_lshl_b32 s71, s71, 12")
                a("s_mul_i32 s70, s%d, 22" % sT0)
                a("s_add_u32 s70, s70, s%d" % sT1)
                a("s_lshl_b32 s70, s70, %d" % (12 if self.w2s else 15))
                self.w2_dma(71, L_B, 70, 0, "w2b")
            a("s_branch %s" % lgo)
            a.label(lp3)
            if not self.noflags:
                a("s_lshl_b32 s%d, s%d, 10" % (sT0, sR))
                a("s_add_u32 s%d, s%d, 0x%x" % (sT0, sT0, F_H2))
                self.poll(sT0, 8, 4, 128)
            a("v_mov_b32 v2, %d" % (L_SYNC + 60))
            a("v_mov_b32 v3, 1")
            a("ds_write_b32 v2, v3")
            a.label(lgo)
        else:
            def w2b_slot(m):
                a("s_add_u32 s%d, s%d, %d" % (sT0, sRW, 4 * m))
                if m == 6: a("s_min_u32 s%d, s%d, 25" % (sT0, sT0))
                a("s_lshr_b32 s%d, s%d, 1" % (sT1, sT0))
                a("s_and_b32 s%d, s%d, 1" % (sT0, sT0))
                a("s_mul_i32 s71, s%d, %d" % (sT0, NB_H))
                a("s_add_u32 s71, s71, s%d" % sT1)
                a("s_lshl_b32 s71, s71, 12")
                a("s_mul_i32 s70, s%d, 22" % sT0)
                a("s_add_u32 s70, s70, s%d" % sT1)
                a("s_lshl_b32 s70, s70, %d" % (12 if self.w2s else 15))
                self.w2_dma(71, L_B, 70, 0, "w2b" if m < self.w2p1 else "w2b2")
            self.w2b_slot = w2b_slot
            if "w2early" in self.exp:
                for m in range(4):
                    a("s_add_u32 s%d, s%d, %d" % (sT0, sRW, 4 * m + (4 if m == 0 else 10)))
                    self.w2_slot_dma("w2b")
            else:
                for m in range(self.w2p1):
                    w2b_slot(m)
        a("s_lshl_b32 s%d, s%d, 2" % (sT2, sR))
        a("s_lshl_b32 s4, s76, 1")
        a("s_add_u32 s%d, s%d, s4" % (sT2, sT2))
        a("s_mul_i32 s%d, s%d, 44032" % (sT2, sT2))
        a("s_mul_i32 s4, s75, %d" % (22 * 1024))
        a("s_add_u32 s%d, s%d, s4" % (sT2, sT2))
        a("s_add_u32 s%d, s%d, 0x%x" % (sT2, sT2, WS_H))
        a("v_lshlrev_b32 v18, 4, v1")
        a("v_add_u32 v18, s%d, v18" % sT2)
        a("v_add_u32 v19, 44032, v18")
        a("v_lshrrev_b32 v2, 4, v1")
        a("v_and_b32 v3, 15, v1")
        a("v_lshrrev_b32 v3, 2, v3")
        a("v_lshrrev_b32 v4, 1, v2")
        a("v_lshlrev_b32 v4, 4, v4")
        a("v_and_b32 v5, 1, v2")
        a("v_lshl_add_u32 v4, v5, 2, v4")
        a("v_add_u32 v4, v4, v3")
        a("v_lshlrev_b32 v4, 7, v4")
        a("v_and_b32 v6, 1, v1")
        a("v_lshl_add_u32 v4, v6, 3, v4")
        a("v_lshlrev_b32 v5, 1, v5")
        a("v_lshrrev_b32 v6, 1, v3")
        a("v_add_u32 v5, v5, v6")
        a("v_lshlrev_b32 v5, 1, v5")
        a("v_and_b32 v6, 3, v1")
        a("v_lshrrev_b32 v6, 1, v6")
        a("s_mul_i32 s4, s75, %d" % B_HALF)
        if L_B: a("s_add_u32 s4, s4, %d" % L_B)
        for b in range(4):
            a("v_add_u32 v7, %d, v6" % (2 * b))
            a("v_xor_b32 v7, v7, v5")
            a("v_lshl_add_u32 v7, v7, 4, v4")
            a("v_add_u32 v%d, s4, v7" % (AB + b))
        a("s_mul_i32 s5, s75, %d" % (NA_H * 4096))
        a("s_add_u32 s5, s5, %d" % L_A)
        a("s_sub_u32 s77, s5, s4")
        a("s_sub_u32 s79, s4, s5")
        for i in range(32): a("v_mov_b32 v%d, 0" % (ACC + i))
        if "poller3" in self.exp:
            a("s_mov_b32 s5, %d" % (L_SYNC + 60))
            self.lds_wait(5, 1, 253, 254)
        else:
            self.stamp(5)
            if not self.noflags and "noh2" not in self.exp:
                a("s_lshl_b32 s%d, s%d, 10" % (sT0, sR))
                a("s_add_u32 s%d, s%d, 0x%x" % (sT0, sT0, F_H2))
                self.poll(sT0, 8, 4, 128)
        self.stamp(6)

        def hload(i):
            ops = []
            for t in range(2):
                def f(t=t):
                    r = HF + (i * 2 + t) * 4
                    so = i * 1024
                    if so < 4096:
                        a.vmem("buffer_load_dwordx4 v[%d:%d], v%d, s[%d:%d], 0 offen offset:%d sc1" % (r, r + 3, 18 + t, S_WS, S_WS + 3, so), "h%d" % i)
                    else:
                        if t == 0: a("s_mov_b32 s80, %d" % (so & ~4095))
                        a.vmem("buffer_load_dwordx4 v[%d:%d], v%d, s[%d:%d], s80 offen offset:%d sc1" % (r, r + 3, 18 + t, S_WS, S_WS + 3, so & 4095), "h%d" % i)
                ops.append(f)
            return ops

        def read_ops(i):
            buf = WBUF[i & 1]
            if i < 13: so = i * 4096
            elif i < 19: so = (i - 13) * 4096
            else: so = (i - 19) * 4096
            ops = []
            sw = {13: 77, 19: 79}.get(i)
            if sw:
                for b in range(4): ops.append("v_add_u32 v%d, s%d, v%d" % (AB + b, sw, AB + b))
            for b in range(4):
                for hh in range(2):
                    r0 = buf + 4 * b + 2 * hh
                    ops.append(lambda r0=r0, b=b, hh=hh: a.lds("ds_read_b64_tr_b16 v[%d:%d], v%d offset:%d" % (r0, r0 + 1, AB + b, so + hh * 1024), "w%d_%d" % (i, b)))
            return ops

        def mfma_ops(i):
            buf = WBUF[i & 1]
            ops = []
            for b in range(4):
                for t in range(2):
                    def f(b=b, t=t):
                        if b == 0 and t == 0:
                            a.wait_both("h%d" % i, ["w%d_%d" % (i, bb) for bb in range(4)])
                        acc = ACC + (b * 2 + t) * 4
                        hr = HF + (i * 2 + t) * 4
                        a("v_mfma_f32_16x16x32_bf16 v[%d:%d], v[%d:%d], v[%d:%d], v[%d:%d]" % (acc, acc + 3, buf + 4 * b, buf + 4 * b + 3, hr, hr + 3, acc, acc + 3))
                    ops.append(f)
            return ops

        allh = []
        for i in range(22): allh += hload(i)
        hp = 0
        for f in allh[:self.hinit]: f()
        hp = self.hinit
        for m in range(self.w2p1, 7):
            self.w2b_slot(m)
        a("s_waitcnt vmcnt(%d)" % min(63, self.hinit + 4 * (7 - self.w2p1)))
        self.m_sync(11, va=253, vb=254)
        self.stamp(19)
        for f in read_ops(0): self.run(f)
        last = a.newlabel("L_g2l")
        for i in range(22):
            if i == 12:
                a.lg0()
                a("s_barrier")
            if i == 18:
                a.lg0()
                a("s_barrier")
            if self.w2p1 < 7 and i == 2 * self.w2p1 - 1:
                a.wait_vm("w2b2")
                self.m_sync(10, va=253, vb=254)
            if i == 4:
                a("v_mov_b32 v253, %d" % (L_SYNC + 56))
                a("v_mov_b32 v254, 1")
                a("s_mov_b64 exec, 1")
                a.lds("ds_add_u32 v253, v254", "sig")
                a("s_mov_b64 exec, -1")
            if i == 21:
                a("s_cmp_eq_u32 s75, 1")
                a("s_cbranch_scc1 %s" % last)
            fill = []
            if i < 21: fill += read_ops(i + 1)
            nl = self.hper if hp < 2 * (i + self.hwin) else 2
            nl = min(nl, len(allh) - hp)
            fill = allh[hp:hp + nl] + fill
            hp += nl
            interleave(a, mfma_ops(i), fill)
        a.label(last)
        a.lg0()
        self.stamp(22)
        a("v_and_b32 v2, 15, v1")
        a("v_lshrrev_b32 v3, 4, v1")
        a("v_mul_u32_u24 v2, 272, v2")
        a("v_lshl_add_u32 v2, v3, 4, v2")
        a("s_mul_i32 s4, s75, %d" % P_STRIDE)
        a("s_mul_i32 s5, s76, %d" % (32 * 272))
        a("s_add_u32 s4, s4, s5")
        a("s_add_u32 s4, s4, %d" % L_P)
        a("v_add_u32 v2, s4, v2")
        for b in range(4):
            for t in range(2):
                acc = ACC + (b * 2 + t) * 4
                a("ds_write_b128 v2, v[%d:%d] offset:%d" % (acc, acc + 3, t * 16 * 272 + b * 64))
        self.final_x_load(240, 244)
        a.lg0()
        a("s_barrier")

    def final(self):
        a = self.a
        P0 = L_P; P1 = L_P + P_STRIDE; YL = L_Y
        XR = 240; OA = 244
        a("s_and_b32 s%d, s%d, 3" % (sT0, sW))
        a("s_lshr_b32 s%d, s%d, 2" % (sT1, sW))
        a("v_lshrrev_b32 v2, 2, v1")
        a("v_and_b32 v3, 3, v1")
        a("s_lshl_b32 s4, s%d, 4" % sT0)
        a("v_add_u32 v2, s4, v2")
        a("v_mul_u32_u24 v4, 272, v2")
        a("v_lshl_add_u32 v4, v3, 5, v4")
        a("s_lshl_b32 s4, s%d, 7" % sT1)
        a("s_add_u32 s4, s4, %d" % P0)
        a("v_add_u32 v4, s4, v4")
        a("ds_read_b128 v[20:23], v4")
        a("ds_read_b128 v[24:27], v4 offset:16")
        a("ds_read_b128 v[28:31], v4 offset:%d" % (P1 - P0))
        a("ds_read_b128 v[32:35], v4 offset:%d" % (P1 - P0 + 16))
        a("v_lshlrev_b32 v6, 3, v2")
        a("v_add_u32 v6, %d, v6" % L_STATS)
        a("ds_read_b64 v[36:37], v6")
        a("v_lshrrev_b32 v7, 4, v1")
        a("v_lshlrev_b32 v7, 3, v7")
        a("v_and_b32 v8, 15, v1")
        a("v_lshrrev_b32 v8, 2, v8")
        a("v_add_u32 v7, v7, v8")
        a("s_lshl_b32 s4, s%d, 5" % sT1)
        a("v_add_u32 v7, s4, v7")
        a("v_mul_u32_u24 v7, 144, v7")
        a("v_and_b32 v8, 3, v1")
        a("v_lshl_add_u32 v7, v8, 3, v7")
        a("s_lshl_b32 s4, s%d, 5" % sT0)
        a("s_add_u32 s4, s4, %d" % YL)
        a("v_add_u32 v7, s4, v7")
        a("ds_read_b64_tr_b16 v[38:39], v7")
        a("ds_read_b64_tr_b16 v[40:41], v7 offset:%d" % (4 * 144))
        a("v_and_b32 v8, 3, v1")
        a("v_lshlrev_b32 v8, 4, v8")
        a("v_lshrrev_b32 v9, 2, v1")
        a("v_or_b32 v8, v8, v9")
        a("v_lshlrev_b32 v8, 2, v8")
        a("v_mov_b32 v10, 0xbfb8aa3b")
        a("v_mov_b32 v11, 1.0")
        a("s_waitcnt lgkmcnt(0)")
        for i in range(4):
            a("ds_bpermute_b32 v%d, v8, v%d" % (42 + i, 38 + i))
        for i in range(8):
            a("v_add_f32 v%d, v%d, v%d" % (20 + i, 20 + i, 28 + i))
        for i in range(4):
            a("v_cvt_pk_bf16_f32 v%d, v%d, v%d" % (28 + i, 20 + 2 * i, 21 + 2 * i))
        for i in range(4):
            a("v_alignbit_b32 v%d, v%d, 0, 16" % (20 + 2 * i, 28 + i))
            a("v_and_b32 v%d, v%d, v%d" % (21 + 2 * i, vMHI, 28 + i))
        for i in range(8):
            a("v_mul_f32 v%d, v10, v%d" % (48 + i, 20 + i))
        for i in range(8):
            a("v_exp_f32 v%d, v%d" % (48 + i, 48 + i))
        a("s_waitcnt vmcnt(0)")
        a("v_sub_f32 v12, 0, v36")
        for i in range(4):
            a("v_dot2_f32_bf16 v%d, v%d, v%d, v12" % (72 + 2 * i, XR + i, vONELO))
            a("v_dot2_f32_bf16 v%d, v%d, v%d, v12" % (73 + 2 * i, XR + i, vONEHI))
        for i in range(8):
            a("v_add_f32 v%d, v11, v%d" % (48 + i, 48 + i))
        for i in range(4):
            a("v_cvt_pk_bf16_f32 v%d, v%d, v%d" % (80 + i, 72 + 2 * i, 73 + 2 * i))
        for i in range(8):
            a("v_rcp_f32 v%d, v%d" % (48 + i, 48 + i))
        for i in range(4):
            a("v_alignbit_b32 v%d, v%d, 0, 16" % (72 + 2 * i, 80 + i))
            a("v_and_b32 v%d, v%d, v%d" % (73 + 2 * i, vMHI, 80 + i))
        for i in range(8):
            a("v_mul_f32 v%d, v%d, v37" % (72 + i, 72 + i))
        for i in range(8):
            a("v_mul_f32 v%d, v%d, v%d" % (20 + i, 20 + i, 48 + i))
        if "relax_fin" in self.exp:
            a("s_waitcnt lgkmcnt(0)")
            for i in range(4):
                a("v_alignbit_b32 v%d, v%d, 0, 16" % (56 + 2 * i, 42 + i))
                a("v_and_b32 v%d, v%d, v%d" % (57 + 2 * i, vMHI, 42 + i))
                a("v_alignbit_b32 v%d, v%d, 0, 16" % (88 + 2 * i, XR + i))
                a("v_and_b32 v%d, v%d, v%d" % (89 + 2 * i, vMHI, XR + i))
            for i in range(8):
                a("v_mul_f32 v%d, v%d, v%d" % (72 + i, 72 + i, 56 + i))
            for i in range(8):
                a("v_fma_f32 v%d, v%d, v%d, v%d" % (72 + i, 72 + i, 20 + i, 88 + i))
            for i in range(4):
                a("v_cvt_pk_bf16_f32 v%d, v%d, v%d" % (80 + i, 72 + 2 * i, 73 + 2 * i))
        else:
            for i in range(4):
                a("v_cvt_pk_bf16_f32 v%d, v%d, v%d" % (80 + i, 72 + 2 * i, 73 + 2 * i))
            for i in range(4):
                a("v_cvt_pk_bf16_f32 v%d, v%d, v%d" % (28 + i, 20 + 2 * i, 21 + 2 * i))
            a("s_waitcnt lgkmcnt(0)")
            for i in range(4):
                a("v_and_b32 v%d, v%d, v%d" % (56 + 2 * i, vMLO, 42 + i))
                a("v_and_b32 v%d, v%d, v%d" % (57 + 2 * i, vMHI, 42 + i))
                a("v_and_b32 v%d, v%d, v%d" % (64 + 2 * i, vMLO, 28 + i))
                a("v_and_b32 v%d, v%d, v%d" % (65 + 2 * i, vMHI, 28 + i))
            for i in range(4):
                a("v_dot2_f32_bf16 v%d, v%d, v%d, 0" % (72 + 2 * i, 80 + i, 56 + 2 * i))
                a("v_dot2_f32_bf16 v%d, v%d, v%d, 0" % (73 + 2 * i, 80 + i, 57 + 2 * i))
            for i in range(4):
                a("v_alignbit_b32 v%d, v%d, 0, 16" % (88 + 2 * i, XR + i))
                a("v_and_b32 v%d, v%d, v%d" % (89 + 2 * i, vMHI, XR + i))
            for i in range(4):
                a("v_cvt_pk_bf16_f32 v%d, v%d, v%d" % (80 + i, 72 + 2 * i, 73 + 2 * i))
            for i in range(4):
                a("v_dot2_f32_bf16 v%d, v%d, v%d, 0" % (72 + 2 * i, 80 + i, 64 + 2 * i))
                a("v_dot2_f32_bf16 v%d, v%d, v%d, 0" % (73 + 2 * i, 80 + i, 65 + 2 * i))
            for i in range(4):
                a("v_cvt_pk_bf16_f32 v%d, v%d, v%d" % (80 + i, 72 + 2 * i, 73 + 2 * i))
            for i in range(4):
                a("v_dot2_f32_bf16 v%d, v%d, v%d, v%d" % (72 + 2 * i, 80 + i, vONELO, 88 + 2 * i))
                a("v_dot2_f32_bf16 v%d, v%d, v%d, v%d" % (73 + 2 * i, 80 + i, vONEHI, 89 + 2 * i))
            for i in range(4):
                a("v_cvt_pk_bf16_f32 v%d, v%d, v%d" % (80 + i, 72 + 2 * i, 73 + 2 * i))
        fl = " sc1" if "outsc1" in self.exp else (" nt" if "outnt" in self.exp else (" sc0 sc1" if "outsc01" in self.exp else ""))
        a("buffer_store_dwordx4 v[80:83], v%d, s[%d:%d], 0 offen%s" % (OA, S_OUT, S_OUT + 3, fl))

    def build(self):
        a = self.a
        self.p0()
        self.m_front()
        self.stamp(1)
        self.m_prep()
        self.stamp(10)
        self.m_gemm1()
        self.stamp(4)
        self.m_conv()
        self.m_tail()
        a("s_branch L_final")
        a.label("L_H")
        self.h_front()
        self.stamp(1)
        self.h_stats()
        self.stamp(11)
        self.h_gemm1_side()
        self.h_gemm2()
        a.label("L_final")
        a.lg_clear()
        self.stamp(8)
        self.final()
        self.stamp(9)
        self.dump_stamps()
        if "noendwait" not in self.exp: a("s_waitcnt vmcnt(0)")
        a.label("L_end")
        a("s_endpgm")
        if "yearly" in self.exp and not self.noflags:
            self.y_slow()
        a.label("L_codeend")
        a("s_endpgm")
        lines, n = hazard.fix(a.lines)
        self.nnops = n
        hdr = """; Kernarg layout: x,k,v,shift_k,ssm_k,ssm_D,B_x,w1,w2,out,debug,ws (8-byte pointers)
; @launch grid=(256,1,1) block=(512,1,1) lds=%d
.amdgcn_target "amdgcn-amd-amdhsa--gfx950"
.text
.globl %s
.p2align 8
.type %s,@function
%s:
""" % (LDS_SIZE, KNAME, KNAME, KNAME)
        ftr = """.section .rodata,"a"
.p2align 6
.amdhsa_kernel %s
  .amdhsa_next_free_vgpr 256
  .amdhsa_next_free_sgpr 102
  .amdhsa_accum_offset 256
  .amdhsa_group_segment_fixed_size 0
  .amdhsa_kernarg_size 96
  .amdhsa_user_sgpr_count 2
  .amdhsa_user_sgpr_kernarg_segment_ptr 1
  .amdhsa_system_sgpr_workgroup_id_x 1
.end_amdhsa_kernel
""" % KNAME
        return hdr + "\n".join(lines) + "\n" + ftr

if __name__ == "__main__":
    import argparse
    ap = argparse.ArgumentParser()
    ap.add_argument("-o", default="k.s")
    ap.add_argument("--stamps", action="store_true")
    ap.add_argument("--noflags", action="store_true")
    ap.add_argument("--exp", default="")
    args = ap.parse_args()
    g = Gen(stamps=args.stamps, noflags=args.noflags, exp=args.exp)
    txt = g.build()
    open(args.o, "w").write(txt)
    print("wrote", args.o, len(txt.splitlines()), "lines; hazard nops:", g.nnops)
```

```python
import sys
from emit import *
import hazard

KNAME = "recurrent_scan__ssm_conv_h3__dense_activation_relu__prompt_kernel"

WS_KVT = 0
WS_YT = 2 << 20
WS_H = 4 << 20
WS_FLAG = 10 << 20
F_H1 = WS_FLAG
F_H2 = WS_FLAG + 32768
F_H3 = WS_FLAG + 65536
F_H4 = WS_FLAG + 98304
WS_STAMP = WS_FLAG + (256 << 10)
WS_W2S = 12 << 20
WS_SIZE = 16 << 20

L_XN = 0
NXN = 4
L_W1 = 32768
W1_SLOT = 24576
NW1 = 5
L_PREP = L_W1 + 4 * W1_SLOT
L_A = L_W1 + 3 * W1_SLOT
NA_H = 6
L_T = L_A + 8
T_CH = 16640
T_CP = 4160
L_U = L_A + 33408
U_CH = 4608
L_B = 0
NB_H = 13
B_HALF = NB_H * 4096
L_Y = 16384
L_P = L_B + 7 * 4096
P_STRIDE = B_HALF
L_STATS = 161792
L_SYNC = 162304
LDS_SIZE = 163840
assert L_U % 16 == 0 and L_U + 2 * U_CH <= L_W1 + 5 * W1_SLOT and L_T + 2 * T_CH <= L_U
assert L_A + 2 * NA_H * 4096 <= L_STATS and 2 * B_HALF <= L_A and L_W1 + NW1 * W1_SLOT <= L_STATS

S_X, S_K, S_V, S_W1, S_W2, S_OUT, S_SSM, S_WS, S_SH, S_DBG = 8, 12, 16, 20, 24, 28, 32, 36, 40, 44
sR, sC, sW, sNONCE = 48, 49, 50, 51
sF0, sBP, sNB = 52, 53, 54
sT0, sT1, sT2, sT3 = 55, 56, 57, 58
sRW = 59
sEX = 60
sROT = 62
sDP = 64
sDD = 66
sM0B = 67
sP0, sP1 = 68, 69
sUOK = 72
sID = 81
sD = 85
sINV1, sINV2 = 73, 74
vMLO, vMHI, vONELO, vONEHI, vONES = 248, 249, 250, 251, 252

def merge(*lists):
    lists = [l for l in lists if l]
    tot = sum(len(l) for l in lists)
    out = []; idx = [0] * len(lists)
    for s in range(tot):
        best = min((i for i in range(len(lists)) if idx[i] < len(lists[i])), key=lambda i: (idx[i] + 0.5) / len(lists[i]))
        out.append(lists[best][idx[best]]); idx[best] += 1
    return out

class Gen:
    def __init__(self, stamps=False, noflags=False, exp=""):
        self.exp = set(exp.split(",")) if exp else set()
        self.a = Asm()
        self.stamps = stamps
        self.noflags = noflags
        self.relax_ln = "relax_ln" in self.exp
        self.stampset = None
        self.h2n = 75
        self.XR, self.OA = (84, 96) if 'xearly' in self.exp else (240, 244)
        self.h1j = 0
        self.w2p1 = 7
        for e in self.exp:
            if e.startswith('p1='): self.w2p1 = int(e[3:])
        for e in self.exp:
            if e.startswith('h1j='): self.h1j = int(e[4:])
        self.w2j = 0
        self.w2s = 'w2s' in self.exp
        self.KS = 4096 if self.w2s else 32768
        self.pf2j = 0
        for e in self.exp:
            if e.startswith('pj='): self.pf2j = int(e[3:])
            if e.startswith('h2n='): self.h2n = int(e[4:])
        self.hwin = 22; self.hper = 6; self.hinit = 12
        for e in self.exp:
            if e.startswith('hw='): self.hwin, self.hper, self.hinit = [int(x) for x in e[3:].split('+')]
        for e in self.exp:
            if e.startswith("st="):
                self.stampset = set(int(x) for x in e[3:].split("+"))

    def stamp(self, idx):
        if not self.stamps: return
        if self.stampset is not None and idx not in self.stampset: return
        a = self.a
        a("s_memrealtime s[4:5]")
        if "clk" in self.exp and idx in (14, 2, 4, 16):
            a("s_memtime s[6:7]")
        a.lg0()
        a("v_writelane_b32 v255, s4, %d" % idx)
        if "clk" in self.exp and idx in (14, 2, 4, 16):
            a("v_writelane_b32 v255, s6, %d" % {14: 29, 2: 30, 4: 31, 16: 15}[idx])

    def dump_stamps(self):
        if not self.stamps: return
        a = self.a
        if "entry" in self.exp:
            a("v_writelane_b32 v255, s90, 31")
        if "dbgst" in self.exp:
            sk = a.newlabel("L_ds")
            a("s_or_b32 s4, s2, s%d" % sW)
            a("s_cmp_lg_u32 s4, 0")
            a("s_cbranch_scc1 %s" % sk)
            a("v_readlane_b32 s4, v255, 0")
            a("s_nop 3")
            a("v_subrev_u32 v3, s4, v255")
            order = [12, 10, 14, 2, 4, 16, 17, 18, 7, 8, 9]
            for k, i in enumerate(order):
                a("v_readlane_b32 s5, v3, %d" % i)
                a("s_nop 3")
                a("v_mov_b32 v4, s5")
                a("v_mov_b32 v5, %d" % (4 * (k + 1)))
                a("s_mov_b64 exec, 1")
                a("buffer_store_dword v4, v5, s[%d:%d], 0 offen" % (S_DBG, S_DBG + 3))
                a("s_mov_b64 exec, -1")
            a.label(sk)
        a("s_lshl_b32 s%d, s2, 3" % sT0)
        a("s_add_u32 s%d, s%d, s%d" % (sT0, sT0, sW))
        a("s_lshl_b32 s%d, s%d, 7" % (sT0, sT0))
        a("s_add_u32 s%d, s%d, 0x%x" % (sT0, sT0, WS_STAMP))
        a("v_lshlrev_b32 v2, 2, v1")
        a("v_add_u32 v2, s%d, v2" % sT0)
        a("s_mov_b32 exec_lo, -1")
        a("s_mov_b32 exec_hi, 0")
        a("buffer_store_dword v255, v2, s[%d:%d], 0 offen" % (S_WS, S_WS + 3))
        a("s_mov_b64 exec, -1")

    def run(self, x):
        if callable(x): x()
        else: self.a(x)

    def spread(self, seq, extra):
        a = self.a
        if not extra:
            for x in seq: self.run(x)
            return
        step = max(1, len(seq) // (len(extra) + 1))
        k = 0
        for i, ins in enumerate(seq):
            self.run(ins)
            if (i + 1) % step == 0 and k < len(extra):
                self.run(extra[k]); k += 1
        while k < len(extra):
            self.run(extra[k]); k += 1

    def map_rc(self):
        a = self.a
        if "map42" in self.exp:
            a("s_and_b32 s%d, s2, 3" % sR)
            a("s_lshl_b32 s%d, s%d, 3" % (sR, sR))
            a("s_bfe_u32 s3, s2, 0x30003")
            a("s_add_u32 s%d, s%d, s3" % (sR, sR))
            a("s_bfe_u32 s%d, s2, 0x10002" % sC)
            a("s_lshl_b32 s%d, s%d, 2" % (sC, sC))
            a("s_lshr_b32 s3, s2, 6")
            a("s_add_u32 s%d, s%d, s3" % (sC, sC))
        else:
            a("s_and_b32 s%d, s2, 7" % sR)
            a("s_lshr_b32 s3, s2, 6")
            a("s_lshl_b32 s3, s3, 3")
            a("s_add_u32 s%d, s%d, s3" % (sR, sR))
            a("s_bfe_u32 s%d, s2, 0x30003" % sC)

    def rot_calc(self):
        a = self.a
        if "map42" in self.exp:
            a("s_lshl_b32 s%d, s%d, 1" % (sT0, sC))
            a("s_add_u32 s%d, s%d, s%d" % (sT0, sT0, sR))
            a("s_and_b32 s%d, s%d, 7" % (sROT, sT0))
        else:
            a("s_lshr_b32 s%d, s%d, 3" % (sT0, sR))
            a("s_lshl_b32 s%d, s%d, 1" % (sT0, sT0))
            a("s_add_u32 s%d, s%d, s%d" % (sT0, sT0, sC))
            a("s_add_u32 s%d, s%d, s%d" % (sT0, sT0, sR))
            a("s_and_b32 s%d, s%d, 7" % (sROT, sT0))
        if "norot" in self.exp: a("s_mov_b32 s%d, 0" % sROT)

    def p0(self):
        a = self.a
        if self.stamps and "entry" in self.exp:
            a("s_memrealtime s[90:91]")
        a("s_load_dwordx8 s[64:71], s[0:1], 0")
        a("s_cmp_ge_u32 s2, 256")
        a("s_cbranch_scc1 L_end")
        if self.stamps: a("v_mov_b32 v255, 0")
        a("v_lshrrev_b32 v2, 6, v0")
        a("v_and_b32 v1, 63, v0")
        if "codepf0" in self.exp:
            a("s_getpc_b64 s[82:83]")
            a.label("L_pc")
            a("s_sub_u32 s82, s82, L_pc-%s" % KNAME)
            a("s_subb_u32 s83, s83, 0")
            a("v_and_b32 v4, 255, v0")
            a("v_lshlrev_b32 v4, 7, v4")
            a("v_min_u32 v4, L_codeend-%s, v4" % KNAME)
            a("v_mov_b32 v5, s83")
            a("v_add_co_u32 v4, vcc, s82, v4")
            a("v_addc_co_u32 v5, vcc, 0, v5, vcc")
            a.vmem("global_load_dword v244, v[4:5], off", "cpf")
        self.map_rc()
        a("v_readfirstlane_b32 s%d, v2" % sW)
        a("s_mov_b32 s10, 0x200000")
        a("s_mov_b32 s11, 0x00020000")
        a("s_mov_b32 s14, 0x200000")
        a("s_mov_b32 s15, 0x00020000")
        a("s_mov_b32 s18, 0x200000")
        a("s_mov_b32 s19, 0x00020000")
        a("s_movk_i32 s42, 0x1000")
        a("s_mov_b32 s43, 0x00020000")
        a("s_and_b32 s%d, s%d, 3" % (sRW, sW))
        a("s_cmp_ge_u32 s%d, 4" % sW)
        a("s_cbranch_scc1 L_Hfirst")

    def p0_rest(self):
        a = self.a
        for dst, off in ((S_W1, 56), (S_SSM, 32), (S_WS, 88), (S_DBG, 80), (S_W2, 64), (S_OUT, 72), (sDP, 40)):
            a("s_load_dwordx2 s[%d:%d], s[0:1], %d" % (dst, dst + 1, off))
        for dst, size in ((S_W1, 1409024), (S_SSM, 2097152), (S_WS, WS_SIZE), (S_DBG, 256), (S_W2, 1409024), (S_OUT, 2097152)):
            a("s_mov_b32 s%d, 0x%x" % (dst + 2, size))
            a("s_mov_b32 s%d, 0x00020000" % (dst + 3))
        if "dshift" in self.exp:
            a("s_add_u32 s%d, s%d, 1" % (sD, sC))
            a("s_and_b32 s%d, s%d, 7" % (sD, sD))
        else:
            a("s_mov_b32 s%d, s%d" % (sD, sC))
        a("s_lshl_b32 s%d, s%d, 5" % (sID, sC))
        a("s_add_u32 s%d, s%d, s%d" % (sID, sID, sR))
        a("s_mul_i32 s%d, s%d, 6" % (sBP, sC))
        a("s_sub_i32 s%d, s%d, 3" % (sT0, sC))
        a("s_max_i32 s%d, s%d, 0" % (sT0, sT0))
        a("s_sub_u32 s%d, s%d, s%d" % (sBP, sBP, sT0))
        a("s_lshl_b32 s%d, s%d, 5" % (sF0, sBP))
        a("s_cmp_lt_u32 s%d, 3" % sC)
        a("s_cselect_b32 s%d, 12, 10" % sNB)
        a("v_mov_b32 v%d, 0xffff" % vMLO)
        a("v_mov_b32 v%d, 0xffff0000" % vMHI)
        a("v_mov_b32 v%d, 0x3f80" % vONELO)
        a("v_mov_b32 v%d, 0x3f800000" % vONEHI)
        a("v_mov_b32 v%d, 0x3f803f80" % vONES)
        a("s_mov_b32 s%d, 0x05040100" % sP0)
        a("s_mov_b32 s%d, 0x07060302" % sP1)
        a("v_and_b32 v3, 15, v0")
        a("v_lshlrev_b32 v3, 2, v3")
        a("v_add_u32 v3, %d, v3" % L_SYNC)
        a("v_mov_b32 v4, 0")
        a("ds_write_b32 v3, v4")

    def w1_dma_ops(self, j):
        a = self.a
        slot = j % NW1
        ops = []
        def head():
            a("s_add_u32 s%d, s%d, %d" % (sT1, sROT, j))
            a("s_and_b32 s%d, s%d, 7" % (sT1, sT1))
            a("s_mul_i32 s%d, s%d, %d" % (sT1, sT1, 64 * 2752))
            a("s_add_u32 m0, s%d, %d" % (sM0B, slot * W1_SLOT))
            a.vmem("buffer_load_dwordx4 v12, s[%d:%d], s%d offen lds" % (S_W1, S_W1 + 3, sT1), "w1c%d" % j)
        ops.append(head)
        for i in range(1, 6):
            def nxt(i=i):
                a("s_add_u32 m0, s%d, %d" % (sM0B, slot * W1_SLOT + 1024 * i))
                a.vmem("buffer_load_dwordx4 v%d, s[%d:%d], s%d offen lds" % (12 + i, S_W1, S_W1 + 3, sT1), "w1c%d" % j)
            ops.append(nxt)
        return ops

    def w1_voffs(self):
        a = self.a
        V = 12
        a("s_mul_i32 s%d, s%d, %d" % (sT0, sRW, 16 * 2752))
        a("s_lshl_b32 s%d, s%d, 1" % (sT1, sF0))
        a("s_add_u32 s%d, s%d, s%d" % (sT0, sT0, sT1))
        a("s_lshl_b32 s%d, s%d, 1" % (sT1, sNB))
        a("v_mov_b32 v7, 0x40000000")
        for i in range(6):
            a("v_add_u32 v2, %d, v1" % (64 * i))
            a("v_mul_u32_u24 v3, 2731, v2")
            a("v_lshrrev_b32 v3, 16, v3")
            a("v_mul_u32_u24 v4, 24, v3")
            a("v_sub_u32 v4, v2, v4")
            a("v_and_b32 v5, 2, v3")
            a("v_lshrrev_b32 v6, 1, v3")
            a("v_and_b32 v6, 4, v6")
            a("v_or_b32 v5, v5, v6")
            a("v_xor_b32 v4, v4, v5")
            a("v_mul_u32_u24 v5, 2752, v3")
            a("v_lshl_add_u32 v5, v4, 4, v5")
            a("v_add_u32 v5, s%d, v5" % sT0)
            a("v_cmp_gt_u32 vcc, s%d, v4" % sT1)
            a("v_cndmask_b32 v%d, v7, v5, vcc" % (V + i))
        a("s_mul_i32 s%d, s%d, %d" % (sM0B, sRW, 16 * 384))
        a("s_add_u32 s%d, s%d, %d" % (sM0B, sM0B, L_W1))

    def line_prefetch(self, which, vd):
        a = self.a
        a("s_lshr_b32 s%d, s2, 3" % sT0)
        a("v_and_b32 v2, 255, v0")
        if "map42" not in self.exp:
            srd = S_W1 if which == "w1" else S_W2
            a("s_mul_i32 s%d, s%d, %d" % (sT0, sT0, 344 * 128))
            a("v_lshlrev_b32 v3, 7, v2")
            a("v_add_u32 v3, s%d, v3" % sT0)
            a.vmem("buffer_load_dword v%d, v3, s[%d:%d], 0 offen" % (vd, srd, srd + 3), "pf")
            a("v_cmp_gt_u32 vcc, %d, v2" % (344 - 256))
            a("v_add_u32 v3, 32768, v3")
            a("v_mov_b32 v4, 0x40000000")
            a("v_cndmask_b32 v3, v4, v3, vcc")
            a.vmem("buffer_load_dword v%d, v3, s[%d:%d], 0 offen" % (vd + 1, srd, srd + 3), "pf")
        elif which == "w2":
            a("s_mul_i32 s%d, s%d, 43" % (sT0, sT0))
            a("s_bfe_u32 s%d, s2, 0x10002" % sT1)
            a("s_lshl_b32 s%d, s%d, 9" % (sT1, sT1))
            a("s_lshl_b32 s%d, s%d, 10" % (sT0, sT0))
            a("s_add_u32 s%d, s%d, s%d" % (sT0, sT0, sT1))
            a("v_lshrrev_b32 v3, 2, v2")
            a("v_lshlrev_b32 v3, 10, v3")
            a("v_and_b32 v4, 3, v2")
            a("v_lshl_add_u32 v3, v4, 7, v3")
            a("v_add_u32 v3, s%d, v3" % sT0)
            a("v_cmp_gt_u32 vcc, 172, v2")
            a("v_mov_b32 v4, 0x40000000")
            a("v_cndmask_b32 v3, v4, v3, vcc")
            a.vmem("buffer_load_dword v%d, v3, s[%d:%d], 0 offen" % (vd, S_W2, S_W2 + 3), "pf")
        else:
            a("s_lshl_b32 s%d, s%d, 4" % (sT0, sT0))
            a("s_mul_i32 s%d, s%d, 2752" % (sT0, sT0))
            a("s_bfe_u32 s%d, s2, 0x10002" % sT1)
            a("s_mul_i32 s%d, s%d, 1472" % (sT1, sT1))
            a("s_add_u32 s%d, s%d, s%d" % (sT0, sT0, sT1))
            a("v_mul_u32_u24 v3, 5462, v2")
            a("v_lshrrev_b32 v3, 16, v3")
            a("v_mul_u32_u24 v4, 12, v3")
            a("v_sub_u32 v4, v2, v4")
            a("v_mul_u32_u24 v3, 2752, v3")
            a("v_lshl_add_u32 v3, v4, 7, v3")
            a("v_add_u32 v3, s%d, v3" % sT0)
            a("v_cmp_gt_u32 vcc, 192, v2")
            a("v_mov_b32 v4, 0x40000000")
            a("v_cndmask_b32 v3, v4, v3, vcc")
            a.vmem("buffer_load_dword v%d, v3, s[%d:%d], 0 offen" % (vd, S_W1, S_W1 + 3), "pf")

    def w1_tail_prefetch(self, vd):
        a = self.a
        a("s_lshr_b32 s%d, s2, 3" % sT0)
        a("s_mul_i32 s%d, s%d, 10" % (sT0, sT0))
        a("s_add_u32 s%d, s%d, 192" % (sT0, sT0))
        a("s_mul_i32 s%d, s%d, 2752" % (sT0, sT0))
        a("s_bfe_u32 s%d, s2, 0x10002" % sT1)
        a("s_mul_i32 s%d, s%d, 1472" % (sT1, sT1))
        a("s_add_u32 s%d, s%d, s%d" % (sT0, sT0, sT1))
        a("v_and_b32 v2, 255, v0")
        a("v_mul_u32_u24 v3, 5462, v2")
        a("v_lshrrev_b32 v3, 16, v3")
        a("v_mul_u32_u24 v4, 12, v3")
        a("v_sub_u32 v4, v2, v4")
        a("v_mul_u32_u24 v3, 2752, v3")
        a("v_lshl_add_u32 v3, v4, 7, v3")
        a("v_add_u32 v3, s%d, v3" % sT0)
        a("v_cmp_gt_u32 vcc, 120, v2")
        a("v_mov_b32 v4, 0x40000000")
        a("v_cndmask_b32 v3, v4, v3, vcc")
        a.vmem("buffer_load_dword v%d, v3, s[%d:%d], 0 offen" % (vd, S_W1, S_W1 + 3), "pf")

    def m_front(self):
        a = self.a
        a("v_lshrrev_b32 v3, 5, v0")
        a("v_and_b32 v4, 31, v0")
        a("s_lshl_b32 s%d, s%d, 16" % (sT0, sR))
        a("s_lshl_b32 s%d, s%d, 7" % (sT1, sC))
        a("s_add_u32 s%d, s%d, s%d" % (sT0, sT0, sT1))
        a("v_lshlrev_b32 v2, 13, v3")
        a("v_lshl_add_u32 v2, v4, 2, v2")
        a("v_add_u32 v2, s%d, v2" % sT0)
        a("v_add_u32 v5, 0xfffff400, v2")
        a("v_add_u32 v6, 0xfffff800, v2")
        a("v_add_u32 v7, 0xfffffc00, v2")
        a("v_add_u32 v8, 4096, v2")
        a("s_lshl_b32 s%d, s%d, 9" % (sT2, sC))
        a("v_lshlrev_b32 v9, 4, v4")
        a("v_add_u32 v9, s%d, v9" % sT2)
        a.lg0()
        a("s_mov_b64 s[12:13], s[66:67]")
        a("s_mov_b64 s[16:17], s[68:69]")
        a("s_mov_b64 s[40:41], s[70:71]")
        a("s_mov_b64 s[8:9], s[64:65]")
        if self.stamps:
            a("s_memrealtime s[4:5]"); a.lg0(); a("v_writelane_b32 v255, s4, 0")
        K, V, SH = 20, 32, 40
        if "noprep" in self.exp:
            a.vm.issue("prep")
        else:
          for t, r in enumerate((5, 6, 7)):
            a.vmem("buffer_load_dword v%d, v%d, s[%d:%d], 0 offen" % (K + t, r, S_K, S_K + 3), "prep")
          for t in range(8):
            a.vmem("buffer_load_dword v%d, v%d, s[%d:%d], 0 offen offset:%d" % (K + 3 + t, 2 if t < 4 else 8, S_K, S_K + 3, 1024 * (t & 3)), "prep")
          a.vmem("buffer_load_dwordx4 v[40:43], v9, s[%d:%d], 0 offen" % (S_SH, S_SH + 3), "prep")
          for t in range(8):
            a.vmem("buffer_load_dword v%d, v%d, s[%d:%d], 0 offen offset:%d" % (V + t, 2 if t < 4 else 8, S_V, S_V + 3, 1024 * (t & 3)), "prep")
        a("s_branch L_Mrest")
        self.h_first()
        a.label("L_Mrest")
        a.vm = self.vm_m_first
        self.rot_calc()
        self.p0_rest()
        a("s_waitcnt lgkmcnt(0)")
        a("s_barrier")
        if "pfM" in self.exp:
            self.line_prefetch("w1", 240)
        if not self.noflags:
            a("s_or_b32 s%d, s2, s%d" % (sT1, sW))
            a("s_cmp_lg_u32 s%d, 0" % sT1)
            a("s_cbranch_scc1 L_nononce")
            a("s_memrealtime s[4:5]")
            a("s_waitcnt lgkmcnt(0)")
            a("s_or_b32 s4, s4, 1")
            a("v_mov_b32 v2, s4")
            a("v_mov_b32 v3, 0")
            a("s_mov_b64 exec, 1")
            a("buffer_store_dword v2, v3, s[%d:%d], 0 offen sc1" % (S_DBG, S_DBG + 3))
            a("s_mov_b64 exec, -1")
            a.label("L_nononce")
        self.w1_voffs()
        self.m_gemm1_setup()
        a("s_lshl_b32 s%d, s%d, 7" % (sT0, sC))
        a("s_lshl_b32 s%d, s%d, 2" % (sT1, sR))
        a("s_add_u32 s%d, s%d, s%d" % (sT0, sT0, sT1))
        a("s_load_dword s%d, s[%d:%d], s%d" % (sDD, sDP, sDP + 1, sT0))

    def m_gemm1_setup(self):
        a = self.a
        AX = 8; AW = [9, 10, 11]
        a("v_and_b32 v2, 15, v1")
        a("v_lshrrev_b32 v3, 4, v1")
        a("v_lshlrev_b32 v4, 1, v3")
        a("v_xor_b32 v4, v2, v4")
        a("v_lshlrev_b32 v4, 4, v4")
        a("v_lshl_add_u32 v%d, v3, 8, v4" % AX)
        a("v_lshrrev_b32 v5, 2, v2")
        a("v_lshl_add_u32 v4, v3, 3, v5")
        a("v_mul_u32_u24 v4, 384, v4")
        a("v_and_b32 v6, 3, v1")
        a("v_lshl_add_u32 v4, v6, 3, v4")
        a("v_lshrrev_b32 v5, 1, v5")
        a("v_and_b32 v6, 1, v3")
        a("v_lshl_add_u32 v5, v6, 1, v5")
        a("s_mul_i32 s%d, s%d, 3" % (sT0, sRW))
        for b in range(3):
            a("s_add_u32 s%d, s%d, %d" % (sT1, sT0, b))
            a("v_xor_b32 v6, s%d, v5" % sT1)
            a("v_lshl_add_u32 v6, v6, 5, v4")
            a("v_add_u32 v%d, %d, v6" % (AW[b], L_W1))
        a("v_lshlrev_b32 v5, 4, v2")
        a("v_lshrrev_b32 v4, 1, v3")
        a("v_lshl_add_u32 v5, v4, 8, v5")
        a("v_and_b32 v4, 1, v3")
        if "st16" in self.exp:
            a("v_mul_u32_u24 v4, 44032, v4")
            a("v_add_u32 v5, v5, v4")
        else:
            a("v_lshl_add_u32 v5, v4, 3, v5")
        a("s_lshr_b32 s%d, s%d, 4" % (sBP, sF0))
        a("s_mul_i32 s%d, s%d, %d" % (sT0, sR, 4 * 44032))
        a("s_mul_i32 s%d, s%d, 3" % (sT1, sRW))
        a("s_add_u32 s%d, s%d, s%d" % (sT2, sT1, sBP))
        a("s_lshl_b32 s%d, s%d, 9" % (sT2, sT2))
        a("s_add_u32 s%d, s%d, s%d" % (sT0, sT0, sT2))
        a("s_add_u32 s%d, s%d, 0x%x" % (sT0, sT0, WS_H))
        a("v_add_u32 v168, s%d, v5" % sT0)
        for tb in range(1, 4):
            a("v_add_u32 v%d, %d, v168" % (168 + tb, 44032 * tb))
        for b, sr_ in ((1, sINV1), (2, sINV2)):
            a("s_add_u32 s%d, s%d, %d" % (sT2, sT1, b))
            a("s_cmp_lt_u32 s%d, s%d" % (sT2, sNB))
            a("s_cselect_b32 s%d, 0, 0x40000000" % sr_)

    def m_prep(self):
        a = self.a
        K, V, SH = 20, 32, 40
        WL, WH = 44, 48
        PL, PH = 52, 56
        PP, AC = 60, 64
        TA, TB = 68, 72
        KV = 76
        OUT = 92
        dma = []
        if "V2" in self.exp:
            for f in self.w1_dma_ops(0) + self.w1_dma_ops(1): f()
        if "V4" in self.exp:
            for f in self.w1_dma_ops(0): f()
            dma = self.w1_dma_ops(1) + self.w1_dma_ops(2)
        if "V5" in self.exp:
            for f in self.w1_dma_ops(0) + self.w1_dma_ops(1): f()
            dma = self.w1_dma_ops(2)
        if "pfWa" in self.exp: self.w1_tail_prefetch(241)
        if "noprep" in self.exp:
            a.vm.issue("kvt")
            if not self.noflags:
                a("v_mov_b32 v7, 0")
                a.vmem("buffer_load_dword v19, v7, s[%d:%d], 0 offen sc1" % (S_DBG, S_DBG + 3), "nonce")
            for f in self.w1_dma_ops(2): f()
            return
        a.wait_vm("prep")
        self.stamp(12)
        seq = []; e = seq.append
        e("v_and_b32 v%d, v%d, v%d" % (WL + 0, vMLO, SH + 0)); e("v_lshrrev_b32 v%d, 16, v%d" % (WL + 1, SH + 0))
        e("v_and_b32 v%d, v%d, v%d" % (WL + 2, vMLO, SH + 1)); e("v_lshrrev_b32 v%d, 16, v%d" % (WL + 3, SH + 1))
        e("v_lshlrev_b32 v%d, 16, v%d" % (WH + 0, SH + 2)); e("v_and_b32 v%d, v%d, v%d" % (WH + 1, vMHI, SH + 2))
        e("v_lshlrev_b32 v%d, 16, v%d" % (WH + 2, SH + 3)); e("v_and_b32 v%d, v%d, v%d" % (WH + 3, vMHI, SH + 3))
        for hb in range(2):
            r0 = 4 * hb
            if "relax_prep" in self.exp:
                for r in range(4):
                    e("v_dot2_f32_bf16 v%d, v%d, v%d, 0" % (PL + r, K + r0 + r, WL + 3))
                    e("v_dot2_f32_bf16 v%d, v%d, v%d, 0" % (PH + r, K + r0 + r, WH + 3))
                for j in (2, 1, 0):
                    for r in range(4):
                        e("v_dot2_f32_bf16 v%d, v%d, v%d, v%d" % (PL + r, K + 3 + r0 + r - j, WL + j, PL + r))
                        e("v_dot2_f32_bf16 v%d, v%d, v%d, v%d" % (PH + r, K + 3 + r0 + r - j, WH + j, PH + r))
                for r in range(4):
                    e("v_cvt_pk_bf16_f32 v%d, v%d, v%d" % (AC + r, PL + r, PH + r))
            else:
                for j in (3, 2, 1, 0):
                    for r in range(4):
                        e("v_dot2_f32_bf16 v%d, v%d, v%d, 0" % (PL + r, K + 3 + r0 + r - j, WL + j))
                        e("v_dot2_f32_bf16 v%d, v%d, v%d, 0" % (PH + r, K + 3 + r0 + r - j, WH + j))
                    dstp = AC if j == 3 else PP
                    for r in range(4):
                        e("v_cvt_pk_bf16_f32 v%d, v%d, v%d" % (dstp + r, PL + r, PH + r))
                    if j != 3:
                        for r in range(4):
                            e("v_perm_b32 v%d, v%d, v%d, s%d" % (TA + r, PP + r, AC + r, sP0))
                            e("v_perm_b32 v%d, v%d, v%d, s%d" % (TB + r, PP + r, AC + r, sP1))
                        for r in range(4):
                            e("v_dot2_f32_bf16 v%d, v%d, v%d, 0" % (PL + r, TA + r, vONES))
                            e("v_dot2_f32_bf16 v%d, v%d, v%d, 0" % (PH + r, TB + r, vONES))
                        for r in range(4):
                            e("v_cvt_pk_bf16_f32 v%d, v%d, v%d" % (AC + r, PL + r, PH + r))
            for r in range(4):
                e("v_and_b32 v%d, v%d, v%d" % (TA + r, vMLO, V + r0 + r))
                e("v_and_b32 v%d, v%d, v%d" % (TB + r, vMHI, V + r0 + r))
            for r in range(4):
                e("v_dot2_f32_bf16 v%d, v%d, v%d, 0" % (KV + r0 + r, AC + r, TA + r))
                e("v_dot2_f32_bf16 v%d, v%d, v%d, 0" % (KV + 8 + r0 + r, AC + r, TB + r))
        e("v_and_b32 v2, 31, v0"); e("v_mul_u32_u24 v2, 288, v2"); e("v_lshrrev_b32 v3, 5, v0"); e("v_lshlrev_b32 v3, 4, v3")
        e("v_sub_u32 v2, v2, v3"); e("v_add_u32 v2, %d, v2" % (L_PREP + 112))
        for ch in range(2):
            for d in range(4):
                e("v_cvt_pk_bf16_f32 v%d, v%d, v%d" % (OUT + 4 * ch + d, KV + 8 * ch + 7 - 2 * d, KV + 8 * ch + 6 - 2 * d))
        self.spread(seq, dma)
        self.stamp(20)
        a("ds_write_b128 v2, v[%d:%d]" % (OUT, OUT + 3))
        a("ds_write_b128 v2, v[%d:%d] offset:144" % (OUT + 4, OUT + 7))
        a("v_lshrrev_b32 v2, 3, v0")
        a("v_and_b32 v3, 7, v0")
        a("v_mul_u32_u24 v4, 144, v2")
        a("v_lshl_add_u32 v4, v3, 4, v4")
        a("v_add_u32 v4, %d, v4" % L_PREP)
        a("s_lshl_b32 s%d, s%d, 18" % (sT0, sC))
        a("s_lshl_b32 s%d, s%d, 7" % (sT1, sR))
        a("s_sub_u32 s%d, s%d, s%d" % (sT0, sT0, sT1))
        a("s_add_u32 s%d, s%d, %d" % (sT0, sT0, WS_KVT + 3968))
        a("v_lshlrev_b32 v5, 12, v2")
        a("v_lshl_add_u32 v5, v3, 4, v5")
        a("v_add_u32 v5, s%d, v5" % sT0)
        a("v_add_u32 v6, %d, v5" % (32 * 4096))
        if "dmafirst" in self.exp:
            for f in self.w1_dma_ops(0) + self.w1_dma_ops(1) + self.w1_dma_ops(2): f()
            self.stamp(15)
        self.m_sync(13, va=2, vb=3)
        a("ds_read_b128 v[92:95], v4")
        a("ds_read_b128 v[96:99], v4 offset:%d" % (32 * 144))
        a.lg0()
        a.vmem("buffer_store_dwordx4 v[92:95], v5, s[%d:%d], 0 offen sc1" % (S_WS, S_WS + 3), "kvt")
        a.vmem("buffer_store_dwordx4 v[96:99], v6, s[%d:%d], 0 offen sc1" % (S_WS, S_WS + 3), "kvt")
        if not self.noflags:
            a("v_mov_b32 v7, 0")
            a.vmem("buffer_load_dword v19, v7, s[%d:%d], 0 offen sc1" % (S_DBG, S_DBG + 3), "nonce")
        if "pfWb" in self.exp: self.w1_tail_prefetch(241)
        if "dmafirst" not in self.exp:
            self.stamp(15)
            if "V3" in self.exp: lst = self.w1_dma_ops(2) + self.w1_dma_ops(3)
            elif "V2" in self.exp: lst = self.w1_dma_ops(2)
            elif "V4" in self.exp or "V5" in self.exp: lst = []
            else: lst = self.w1_dma_ops(0) + self.w1_dma_ops(1) + self.w1_dma_ops(2)
            for f in lst: f()

    def m_gemm1(self):
        a = self.a
        ACC = 20
        BUF = [68, 96, 124]
        AX = 8; AW = [9, 10, 11]
        UREG = 152
        for i in range(48):
            a("v_mov_b32 v%d, 0" % (ACC + i))

        def read_ops(ks):
            buf = BUF[ks % 3]
            j = ks >> 1; ksl = ks & 1; slot = j % NW1
            pre = []
            if ksl == 0 and j > 0:
                d = W1_SLOT if slot != 0 else -(NW1 - 1) * W1_SLOT
                for b in range(3):
                    pre.append("v_add_u32 v%d, %d, v%d" % (AW[b], d & 0xffffffff, AW[b]))
            so = ksl * 32 * 384
            def rx(t):
                return lambda: a.lds("ds_read_b128 v[%d:%d], v%d offset:%d" % (buf + 4 * t, buf + 4 * t + 3, AX, L_XN + (j % NXN) * 8192 + t * 2048 + ksl * 1024), "x%d_%d" % (ks, t))
            def rw(b, hh):
                r0 = buf + 16 + 4 * b + 2 * hh
                return lambda: a.lds("ds_read_b64_tr_b16 v[%d:%d], v%d offset:%d" % (r0, r0 + 1, AW[b], so + hh * 4 * 384), "w%d_%d" % (ks, b))
            if "mnoreads" in self.exp: return pre
            return pre + [rw(0, 0), rw(0, 1), rx(0), rx(1), rx(2), rx(3), rw(1, 0), rw(1, 1), rw(2, 0), rw(2, 1)]

        def mfma_ops(ks):
            cur = BUF[ks % 3]
            ops = []
            for b in range(3):
                for t in range(4):
                    def f(b=b, t=t):
                        if "finewait" in self.exp:
                            a.need_lds("w%d_%d" % (ks, b), "x%d_%d" % (ks, t))
                        elif b == 0 and t == 0:
                            a.need_lds(*(["w%d_%d" % (ks, bb) for bb in range(3)] + ["x%d_%d" % (ks, tt) for tt in range(4)]))
                        acc = ACC + (b * 4 + t) * 4
                        if "mnomfma" in self.exp: return
                        a("v_mfma_f32_16x16x32_bf16 v[%d:%d], v[%d:%d], v[%d:%d], v[%d:%d]" % (
                            acc, acc + 3, cur + 16 + 4 * b, cur + 19 + 4 * b, cur + 4 * t, cur + 4 * t + 3, acc, acc + 3))
                    ops.append(f)
            return ops

        if not self.noflags and "V1" in self.exp: self.publish_h1()
        if "V3" not in self.exp: a.wait_vm("w1c1")
        a("s_barrier")
        self.stamp(14)
        for f in read_ops(0): self.run(f)
        if self.h1j == 0 and not self.noflags and "V1" not in self.exp:
            q_l = (list(a.lg.q), a.lg_done)
            self.publish_h1()
        for f in read_ops(1)[:5]: self.run(f)
        pend = read_ops(1)[5:]
        for j in range(8):
            if j >= 1 and j <= 6:
                if not ("mnodma" in self.exp and j + 1 >= 3) and "novmw" not in self.exp: a.wait_vm("w1c%d" % (j + 1))
                a("s_barrier")
                if "itst" in self.exp: self.stamp(22 + j)
                if j == self.h1j and not self.noflags and "V1" not in self.exp: self.publish_h1()
            dm = self.w1_dma_ops(j + 4) if (j + 4 <= 7) else []
            if j == 0 and "V3" not in self.exp: dm = self.w1_dma_ops(3) + dm
            if "mnodma" in self.exp:
                for _ in dm: a.vm.issue("dummy")
                dm = []
            ex = []
            for half in range(2):
                ks = 2 * j + half
                fill = list(pend); pend = []
                if ks + 2 <= 15:
                    fill += read_ops(ks + 2)
                hlf = (len(dm) + 1) // 2
                extra = (dm[:hlf] + ex if half == 0 else dm[hlf:])
                interleave(a, mfma_ops(ks), merge(fill, extra))
        a.lg0()
        self.stamp(2)
        HB = 68
        for i in range(12):
            a("v_cvt_pk_bf16_f32 v%d, v%d, v%d" % (HB + 2 * i, ACC + 4 * i, ACC + 4 * i + 1))
            a("v_cvt_pk_bf16_f32 v%d, v%d, v%d" % (HB + 2 * i + 1, ACC + 4 * i + 2, ACC + 4 * i + 3))
        for i in range(24):
            a("v_pk_max_i16 v%d, v%d, 0" % (HB + i, HB + i))
        if "st16" in self.exp:
            for b in range(3):
                for u in range(2):
                    r = HB + 8 * b + 4 * u
                    a("v_permlane16_swap_b32 v%d, v%d" % (r, r + 2))
                    a("v_permlane16_swap_b32 v%d, v%d" % (r + 1, r + 3))
            for b in range(3):
                so = "0" if b == 0 else "s%d" % (sINV1 if b == 1 else sINV2)
                for u in range(2):
                    r = HB + 8 * b + 4 * u
                    a.vmem("buffer_store_dwordx4 v[%d:%d], v%d, s[%d:%d], %s offen offset:%d sc1" % (r, r + 3, 168 + 2 * u, S_WS, S_WS + 3, so, 512 * b), "hst")
        elif "nohst" in self.exp:
            a.vm.issue("hst")
        else:
          for b in range(3):
            so = "0" if b == 0 else "s%d" % (sINV1 if b == 1 else sINV2)
            for t in range(4):
                r = HB + (b * 4 + t) * 2
                a.vmem("buffer_store_dwordx2 v[%d:%d], v%d, s[%d:%d], %s offen offset:%d sc1" % (r, r + 1, 168 + t, S_WS, S_WS + 3, so, 512 * b), "hst")
        if "h2pre" in self.exp and not self.noflags:
            self.publish_h2()
        a("s_barrier")

    def get_nonce(self):
        if self.noflags: return
        a = self.a
        a.wait_vm("nonce")
        lo = a.newlabel("L_nz"); lp = a.newlabel("L_nl")
        a("v_readfirstlane_b32 s%d, v19" % sNONCE)
        a("s_nop 3")
        a("s_cmp_lg_u32 s%d, 0" % sNONCE)
        a("s_cbranch_scc1 %s" % lo)
        a("s_mov_b32 s%d, 0" % sT3)
        a.label(lp)
        a("v_mov_b32 v7, 0")
        a("buffer_load_dword v19, v7, s[%d:%d], 0 offen sc1" % (S_DBG, S_DBG + 3))
        a("s_waitcnt vmcnt(0)")
        a("v_readfirstlane_b32 s%d, v19" % sNONCE)
        a("s_add_u32 s%d, s%d, 1" % (sT3, sT3))
        a("s_cmp_gt_u32 s%d, 100000" % sT3)
        a("s_cbranch_scc1 %s" % lo)
        a("s_cmp_eq_u32 s%d, 0" % sNONCE)
        a("s_cbranch_scc1 %s" % lp)
        a.label(lo)

    def flag_store(self, off_sreg, tag, va=2, vb=3):
        if self.noflags: return
        a = self.a
        a("v_mov_b32 v%d, s%d" % (va, off_sreg))
        a("v_mov_b32 v%d, s%d" % (vb, sNONCE))
        a("s_mov_b64 exec, 1")
        a.vmem("buffer_store_dword v%d, v%d, s[%d:%d], 0 offen sc1" % (vb, va, S_WS, S_WS + 3), tag)
        a("s_mov_b64 exec, -1")

    def publish_h1(self):
        a = self.a
        self.get_nonce()
        if "noprep" in self.exp: return
        a.wait_vm("kvt")
        a("s_lshl_b32 s%d, s%d, 7" % (sT0, sID))
        a("s_lshl_b32 s%d, s%d, 2" % (sT2, sRW))
        a("s_add_u32 s%d, s%d, s%d" % (sT0, sT0, sT2))
        a("s_add_u32 s%d, s%d, 0x%x" % (sT0, sT0, F_H1))
        self.flag_store(sT0, "flag")

    def poll(self, base_sreg, nlanes, width, stride):
        if self.noflags: return
        a = self.a
        lp = a.newlabel("L_poll"); dn = a.newlabel("L_pdone")
        a("v_mul_u32_u24 v2, %d, v1" % stride)
        a("v_add_u32 v2, s%d, v2" % base_sreg)
        a("s_mov_b32 s%d, 0" % sT3)
        if nlanes <= 16: a("s_mov_b64 exec, 0x%x" % ((1 << nlanes) - 1))
        else:
            a("s_mov_b32 exec_lo, -1"); a("s_mov_b32 exec_hi, 0")
        a.label(lp)
        if width == 1:
            a("buffer_load_dword v4, v2, s[%d:%d], 0 offen sc1" % (S_WS, S_WS + 3))
            a("s_waitcnt vmcnt(0)")
            a("v_cmp_ne_u32 vcc, s%d, v4" % sNONCE)
        else:
            a("buffer_load_dwordx4 v[4:7], v2, s[%d:%d], 0 offen sc1" % (S_WS, S_WS + 3))
            a("s_waitcnt vmcnt(0)")
            for i in range(4): a("v_xor_b32 v%d, s%d, v%d" % (4 + i, sNONCE, 4 + i))
            a("v_or3_b32 v4, v4, v5, v6")
            a("v_or_b32 v4, v4, v7")
            a("v_cmp_ne_u32 vcc, 0, v4")
        a("s_add_u32 s%d, s%d, 1" % (sT3, sT3))
        a("s_cmp_gt_u32 s%d, 100000" % sT3)
        a("s_cbranch_scc1 %s" % dn)
        a("s_cbranch_vccnz %s" % lp)
        a.label(dn)
        a("s_mov_b64 exec, -1")

    def lds_wait(self, addr_sreg, val=1, va=16, vb=17):
        a = self.a
        lp = a.newlabel("L_ps"); dn = a.newlabel("L_psd")
        a("v_mov_b32 v%d, s%d" % (va, addr_sreg))
        a("s_mov_b32 s%d, 0" % sT3)
        a.label(lp)
        a("ds_read_b32 v%d, v%d" % (vb, va))
        a("s_waitcnt lgkmcnt(0)")
        a("v_readfirstlane_b32 s4, v%d" % vb)
        a("s_add_u32 s%d, s%d, 1" % (sT3, sT3))
        a("s_cmp_ge_u32 s4, %d" % val)
        a("s_cbranch_scc1 %s" % dn)
        a("s_cmp_lt_u32 s%d, 1000000" % sT3)
        a("s_cbranch_scc1 %s" % lp)
        a.label(dn)
        a.lg_clear()

    def m_sync(self, word, n=4, va=16, vb=17):
        a = self.a
        a("v_mov_b32 v%d, %d" % (va, L_SYNC + 4 * word))
        a("v_mov_b32 v%d, 1" % vb)
        a.lg0()
        a("s_mov_b64 exec, 1")
        a("ds_add_u32 v%d, v%d" % (va, vb))
        a("s_mov_b64 exec, -1")
        a("s_mov_b32 s5, %d" % (L_SYNC + 4 * word))
        self.lds_wait(5, n, va, vb)

    def pair_sync(self, stage, va=16, vb=17):
        a = self.a
        a("s_lshl_b32 s4, s%d, 2" % sRW)
        a("s_add_u32 s4, s4, %d" % (L_SYNC + 16 * stage))
        a("s_xor_b32 s5, s4, 4")
        a("v_mov_b32 v%d, s4" % va)
        a("v_mov_b32 v%d, 1" % vb)
        a.lg0()
        a("ds_write_b32 v%d, v%d" % (va, vb))
        self.lds_wait(5, 1, va, vb)

    def publish_h2(self):
        a = self.a
        a.wait_vm("hst")
        a("s_lshl_b32 s4, s%d, 3" % sR)
        a("s_add_u32 s4, s4, s%d" % sC)
        a("s_lshl_b32 s4, s4, 7")
        a("s_lshl_b32 s5, s%d, 2" % sRW)
        a("s_add_u32 s4, s4, s5")
        a("s_add_u32 s%d, s4, 0x%x" % (sT2, F_H2))
        self.flag_store(sT2, "flag", 4, 5)

    def m_conv(self):
        a = self.a
        BF, ACC, AF, NA = 20, 148, 180, 16
        AU, AT = 2, 3
        a("v_and_b32 v8, 15, v1")
        a("v_lshrrev_b32 v9, 4, v1")
        a("v_lshlrev_b32 v10, 4, v9")
        a("v_lshlrev_b32 v11, 5, v8")
        a("v_sub_u32 v10, v10, v11")
        a("s_lshr_b32 s%d, s%d, 1" % (sT0, sRW))
        a("s_and_b32 s%d, s%d, 1" % (sT1, sRW))
        a("s_mul_i32 s%d, s%d, %d" % (sT2, sT0, U_CH))
        a("s_add_u32 s%d, s%d, %d" % (sT2, sT2, L_U + 2 * 2032 - 64 * 56))
        a("s_lshl_b32 s4, s%d, 6" % sT1)
        a("s_add_u32 s%d, s%d, s4" % (sT2, sT2))
        a("v_add_u32 v%d, s%d, v10" % (AU, sT2))
        a("v_and_b32 v10, 3, v8")
        a("v_mul_u32_u24 v10, %d, v10" % T_CP)
        a("v_lshrrev_b32 v11, 2, v8")
        a("v_lshl_add_u32 v10, v11, 3, v10")
        a("v_lshl_add_u32 v10, v9, 4, v10")
        a("s_mul_i32 s%d, s%d, %d" % (sT2, sT0, T_CH))
        a("s_add_u32 s%d, s%d, s4" % (sT2, sT2))
        a("s_add_u32 s%d, s%d, %d" % (sT2, sT2, L_T))
        a("v_add_u32 v%d, s%d, v10" % (AT, sT2))
        a("v_lshl_add_u32 v10, v9, 3, v8")
        a("s_lshl_b32 s4, s%d, 5" % sT1)
        a("v_add_u32 v10, s4, v10")
        MK = 12
        for d in range(4):
            a("v_sub_u32 v11, %d, v10" % (15 - 2 * d))
            a("v_med3_i32 v11, v11, 0, 2")
            a("v_lshlrev_b32 v11, 4, v11")
            a("v_mov_b32 v%d, -1" % (MK + d))
            a("v_lshlrev_b32 v16, v11, v%d" % (MK + d))
            a("v_cmp_eq_u32 vcc, 32, v11")
            a("v_cndmask_b32_e64 v%d, v16, 0, vcc" % (MK + d))
        for i in range(32):
            a("v_mov_b32 v%d, 0" % (ACC + i))
        def emit_A(ee):
            r = AF + 4 * (ee % NA)
            a.lds("ds_read_b64 v[%d:%d], v%d offset:%d" % (r, r + 1, AT, 128 * ee), ("A", ee))
            a.lds("ds_read_b64 v[%d:%d], v%d offset:%d" % (r + 2, r + 3, AT, 128 * ee + 8), ("A", ee))
        def emit_B(idx):
            r = BF + 4 * idx
            a.lds("ds_read_b128 v[%d:%d], v%d offset:%d" % (r, r + 3, AU, 128 * idx), ("B", idx))
        sched = []
        for ee in range(32):
            for j in range(7, (ee >> 2) - 1, -1):
                sched.append((ee, j, 28 - 4 * j + ee))
        order = []; seen = set(); last_use_A = {}
        for n, (ee, j, idx) in enumerate(sched):
            for it in (("A", ee), ("B", idx)):
                if it not in seen:
                    seen.add(it); order.append(it)
            last_use_A[ee] = n
        ptr = 0; issued = set()
        def can_issue(item, n):
            if item[0] == "A" and item[1] >= NA:
                return last_use_A[item[1] - NA] < n
            return True
        def issue_next(n_now):
            nonlocal ptr
            if ptr < len(order) and can_issue(order[ptr], n_now):
                it = order[ptr]
                (emit_A if it[0] == "A" else emit_B)(it[1])
                issued.add(it); ptr += 1
                return True
            return False
        def inflight():
            return len(a.lg.q) - a.lg_done
        GRP = 4
        while inflight() < 14 and issue_next(0): pass
        masked = False
        for n, (ee, j, idx) in enumerate(sched):
            while ("A", ee) not in issued or ("B", idx) not in issued:
                assert issue_next(n)
            if not (a.lds_done(("A", ee)) and a.lds_done(("B", idx))):
                tags = [("A", ee), ("B", idx)]
                for (e2, j2, i2) in sched[n + 1:n + GRP]:
                    if ("A", e2) in issued and ("B", i2) in issued: tags += [("A", e2), ("B", i2)]
                    else: break
                a.need_lds(*tags)
            ar = AF + 4 * (ee % NA); br = BF + 4 * idx; acc = ACC + 4 * j
            if ee == 0 and not masked:
                for d in range(4): a("v_and_b32 v%d, v%d, v%d" % (ar + d, MK + d, ar + d))
                masked = True
            a("v_mfma_f32_16x16x32_bf16 v[%d:%d], v[%d:%d], v[%d:%d], v[%d:%d]" % (acc, acc + 3, ar, ar + 3, br, br + 3, acc, acc + 3))
            if inflight() < 14:
                issue_next(n + 1)
                if n < 40 and inflight() < 14: issue_next(n + 1)
            if n == self.h2n and not self.noflags and "h2pre" not in self.exp:
                self.publish_h2()
        self.stamp(16)
        self.pair_sync(0)
        a("v_lshlrev_b32 v4, 4, v1")
        a("s_mul_i32 s%d, s%d, %d" % (sT0, sT0, T_CH))
        a("s_add_u32 s%d, s%d, %d" % (sT0, sT0, L_T + 8))
        a("s_lshl_b32 s%d, s%d, 12" % (sT2, sT1))
        a("s_add_u32 s%d, s%d, s%d" % (sT2, sT2, sT0))
        a("v_add_u32 v5, s%d, v4" % sT2)
        a("s_xor_b32 s%d, s%d, 1" % (sT2, sT1))
        a("s_lshl_b32 s%d, s%d, 12" % (sT2, sT2))
        a("s_add_u32 s%d, s%d, s%d" % (sT2, sT2, sT0))
        a("v_add_u32 v6, s%d, v4" % sT2)
        l0 = a.newlabel("L_cr0"); l1 = a.newlabel("L_cr1")
        a("s_cmp_eq_u32 s%d, 0" % sT1)
        a("s_cbranch_scc1 %s" % l0)
        for i in range(4):
            a("ds_write_b128 v5, v[%d:%d] offset:%d" % (ACC + 4 * i, ACC + 4 * i + 3, 1024 * i))
        for i in range(16):
            a("v_mov_b32 v%d, v%d" % (200 + i, ACC + 16 + i))
        a("s_branch %s" % l1)
        a.label(l0)
        for i in range(4):
            a("ds_write_b128 v5, v[%d:%d] offset:%d" % (ACC + 16 + 4 * i, ACC + 16 + 4 * i + 3, 1024 * i))
        for i in range(16):
            a("v_mov_b32 v%d, v%d" % (200 + i, ACC + i))
        a.label(l1)
        a("v_and_b32 v4, 15, v1")
        a("v_lshrrev_b32 v7, 4, v1")
        a("v_lshlrev_b32 v4, 5, v4")
        a("v_lshl_add_u32 v4, v7, 3, v4")
        a("s_lshr_b32 s%d, s%d, 1" % (sT0, sRW))
        a("s_mul_i32 s%d, s%d, %d" % (sT2, sT0, U_CH))
        a("s_add_u32 s%d, s%d, %d" % (sT2, sT2, L_U + 2 * 2044 - 3 * 512))
        a("s_lshl_b32 s4, s%d, 11" % sT1)
        a("s_sub_u32 s%d, s%d, s4" % (sT2, sT2))
        a("v_sub_u32 v4, s%d, v4" % sT2)
        for i in range(4):
            a("ds_read_b64 v[%d:%d], v4 offset:%d" % (236 + 2 * i, 237 + 2 * i, (3 - i) * 512))
        a("s_and_b32 s4, s%d, 0xffff" % sDD)
        a("s_lshr_b32 s5, s%d, 16" % sDD)
        a("s_cmp_eq_u32 s%d, 0" % sT0)
        a("s_cselect_b32 s4, s4, s5")
        a("s_lshl_b32 s5, s4, 16")
        a("v_mov_b32 v8, s4")
        a("v_mov_b32 v9, s5")
        self.pair_sync(1)
        for i in range(4):
            a("ds_read_b128 v[%d:%d], v6 offset:%d" % (220 + 4 * i, 223 + 4 * i, 1024 * i))
        TT = 148
        for i in range(4):
            u0, u1 = 236 + 2 * i, 237 + 2 * i
            a("v_dot2_f32_bf16 v%d, v%d, v9, 0" % (TT + 4 * i + 0, u1))
            a("v_dot2_f32_bf16 v%d, v%d, v8, 0" % (TT + 4 * i + 1, u1))
            a("v_dot2_f32_bf16 v%d, v%d, v9, 0" % (TT + 4 * i + 2, u0))
            a("v_dot2_f32_bf16 v%d, v%d, v8, 0" % (TT + 4 * i + 3, u0))
        TB = 164
        for i in range(4):
            a("v_cvt_pk_bf16_f32 v%d, v%d, v%d" % (TB + 2 * i, TT + 4 * i, TT + 4 * i + 1))
            a("v_cvt_pk_bf16_f32 v%d, v%d, v%d" % (TB + 2 * i + 1, TT + 4 * i + 2, TT + 4 * i + 3))
        a("v_and_b32 v4, 15, v1")
        a("v_lshrrev_b32 v5, 2, v4")
        a("v_lshlrev_b32 v5, 16, v5")
        a("v_and_b32 v4, 3, v4")
        a("v_lshl_add_u32 v5, v4, 5, v5")
        a("v_lshrrev_b32 v7, 4, v1")
        if "st16" in self.exp:
            a("v_lshrrev_b32 v4, 1, v7")
            a("v_lshl_add_u32 v5, v4, 4, v5")
            a("v_and_b32 v4, 1, v7")
            a("v_lshl_add_u32 v5, v4, 18, v5")
        else:
            a("v_lshl_add_u32 v5, v7, 3, v5")
        a("s_lshl_b32 s%d, s%d, 6" % (sT2, sC))
        a("s_lshl_b32 s4, s%d, 1" % sR)
        a("s_add_u32 s%d, s%d, s4" % (sT2, sT2))
        a("s_add_u32 s%d, s%d, s%d" % (sT2, sT2, sT0))
        a("s_lshl_b32 s%d, s%d, 7" % (sT2, sT2))
        a("s_lshl_b32 s4, s%d, 20" % sT1)
        a("s_add_u32 s%d, s%d, s4" % (sT2, sT2))
        a("s_add_u32 s%d, s%d, 0x%x" % (sT2, sT2, WS_YT))
        a("v_add_u32 v5, s%d, v5" % sT2)
        a.lg0()
        for i in range(16):
            a("v_add_f32 v%d, v%d, v%d" % (200 + i, 200 + i, 220 + i))
        YB = 172
        for i in range(8):
            a("v_cvt_pk_bf16_f32 v%d, v%d, v%d" % (YB + i, 200 + 2 * i, 201 + 2 * i))
        for i in range(8):
            a("v_perm_b32 v%d, v%d, v%d, s%d" % (200 + 2 * i, TB + i, YB + i, sP0))
            a("v_perm_b32 v%d, v%d, v%d, s%d" % (201 + 2 * i, TB + i, YB + i, sP1))
        for i in range(16):
            a("v_dot2_f32_bf16 v%d, v%d, v%d, 0" % (220 + i, 200 + i, vONES))
        for i in range(8):
            a("v_cvt_pk_bf16_f32 v%d, v%d, v%d" % (180 + i, 220 + 2 * i, 221 + 2 * i))
        if "st16" in self.exp:
            for u in range(2):
                r = 180 + 4 * u
                a("v_permlane16_swap_b32 v%d, v%d" % (r, r + 2))
                a("v_permlane16_swap_b32 v%d, v%d" % (r + 1, r + 3))
            for u in range(2):
                if u: a("v_add_u32 v5, 0x80000, v5")
                a.vmem("buffer_store_dwordx4 v[%d:%d], v5, s[%d:%d], 0 offen sc1" % (180 + 4 * u, 183 + 4 * u, S_WS, S_WS + 3), "yst")
        else:
          for i in range(4):
            if i: a("v_add_u32 v5, 0x40000, v5")
            a.vmem("buffer_store_dwordx2 v[%d:%d], v5, s[%d:%d], 0 offen sc1" % (180 + 2 * i, 181 + 2 * i, S_WS, S_WS + 3), "yst")
        self.stamp(17)

    def w2_voff(self):
        a = self.a
        sh = 7 if self.w2s else 10
        a("v_lshrrev_b32 v2, 3, v1")
        a("v_and_b32 v2, 3, v2")
        a("v_lshrrev_b32 v3, 5, v1")
        a("v_lshl_add_u32 v2, v3, 3, v2")
        a("v_lshlrev_b32 v2, %d, v2" % sh)
        a("v_lshrrev_b32 v3, 4, v1")
        a("v_and_b32 v3, 3, v3")
        a("v_lshlrev_b32 v3, 1, v3")
        a("v_and_b32 v4, 7, v1")
        a("v_xor_b32 v3, v3, v4")
        a("v_lshl_add_u32 v2, v3, 4, v2")
        if self.w2s:
            a("s_mul_i32 s%d, s%d, 176128" % (sT0, sD))
            a("s_add_u32 s%d, s%d, 0x%x" % (sT0, sT0, WS_W2S))
        else:
            a("s_lshl_b32 s%d, s%d, 7" % (sT0, sD))
        a("v_add_u32 v14, s%d, v2" % sT0)

    def w2_dma(self, lds_base_sreg, lds_off, src_base_sreg, ks_off, tag):
        a = self.a
        inc = [0, 512, 1536, 512] if self.w2s else [0, 4096, 12288, 4096]
        srd = S_WS if self.w2s else S_W2
        fl = " sc1" if self.w2s else ""
        a("s_add_u32 s%d, s%d, %d" % (sT2, src_base_sreg, ks_off * self.KS))
        for m in range(4):
            a("s_add_u32 m0, s%d, %d" % (lds_base_sreg, lds_off + 1024 * m))
            if m: a("s_add_u32 s%d, s%d, %d" % (sT2, sT2, inc[m]))
            a.vmem("buffer_load_dwordx4 v14, s[%d:%d], s%d offen%s lds" % (srd, srd + 3, sT2, fl), tag)

    def w2_slot_dma(self, tag):
        a = self.a
        a("s_lshl_b32 s71, s%d, 12" % sT0)
        a("s_add_u32 s70, s%d, 9" % sT0)
        a("s_cmp_lt_u32 s%d, 13" % sT0)
        a("s_cselect_b32 s70, s%d, s70" % sT0)
        a("s_lshl_b32 s70, s70, %d" % (12 if self.w2s else 15))
        self.w2_dma(71, L_B, 70, 0, tag)

    def w2_early(self):
        a = self.a
        for m in range(3):
            a("s_add_u32 s%d, s%d, %d" % (sT0, sRW, 4 * m))
            if m == 2: a("s_min_u32 s%d, s%d, 9" % (sT0, sT0))
            if m >= 1: a("s_add_u32 s%d, s%d, 4" % (sT0, sT0))
            self.w2_slot_dma("w2e")

    def m_regionA(self):
        a = self.a
        self.w2_voff()
        a("s_lshr_b32 s75, s%d, 1" % sRW)
        a("s_and_b32 s76, s%d, 1" % sRW)
        a("s_mul_i32 s70, s75, %d" % (22 * self.KS))
        self.m_sync(12)
        a("s_mul_i32 s71, s75, %d" % (NA_H * 4096))
        a("s_add_u32 s71, s71, %d" % L_A)
        a("s_lshl_b32 s4, s76, 12")
        a("s_add_u32 s71, s71, s4")
        a("s_lshl_b32 s4, s76, %d" % (12 if self.w2s else 15))
        a("s_add_u32 s70, s70, s4")
        for m in range(3):
            self.w2_dma(71, 8192 * m, 70, 13 + 2 * m, "w2a")

    def n_after_w2a_min(self):
        return (0 if self.noflags else 1) + 4 + 1

    def m_tail(self):
        a = self.a
        self.m_regionA()
        a.wait_vm("yst")
        if not self.noflags:
            a("s_lshl_b32 s4, s%d, 7" % sID)
            a("s_lshl_b32 s5, s%d, 2" % sRW)
            a("s_add_u32 s4, s4, s5")
            a("s_add_u32 s%d, s4, 0x%x" % (sT2, F_H3))
            self.flag_store(sT2, "flag", 2, 3)
        self.stamp(21)
        a("s_mov_b32 s5, %d" % (L_SYNC + 56))
        self.lds_wait(5, 4)
        a("s_mul_i32 s71, s75, %d" % B_HALF)
        a("s_lshl_b32 s4, s76, 12")
        a("s_add_u32 s71, s71, s4")
        if L_B: a("s_add_u32 s71, s71, %d" % L_B)
        self.w2_dma(71, 0, 70, 19, "w2l")
        skl = a.newlabel("L_ml")
        a("s_cmp_eq_u32 s76, 1")
        a("s_cbranch_scc1 %s" % skl)
        self.w2_dma(71, 8192, 70, 21, "w2l")
        a.label(skl)
        self.final_x_load(self.XR, self.OA)
        a("v_lshrrev_b32 v3, 2, v0")
        a("v_and_b32 v4, 3, v0")
        a("v_lshlrev_b32 v5, 7, v3")
        a("v_lshl_add_u32 v5, v4, 5, v5")
        a("s_lshl_b32 s%d, s%d, 16" % (sT0, sR))
        a("s_lshl_b32 s%d, s%d, 13" % (sT1, sD))
        a("s_add_u32 s%d, s%d, s%d" % (sT0, sT0, sT1))
        a("s_add_u32 s%d, s%d, 0x%x" % (sT0, sT0, WS_YT))
        a("v_add_u32 v8, s%d, v5" % sT0)
        a("v_mul_u32_u24 v9, 144, v3")
        a("v_lshl_add_u32 v9, v4, 5, v9")
        a("v_add_u32 v9, %d, v9" % L_Y)
        early = "yearly" in self.exp and not self.noflags
        if early:
            a("s_lshl_b32 s%d, s%d, 12" % (sT0, sD))
            a("s_add_u32 s%d, s%d, 0x%x" % (sT0, sT0, F_H3))
            a("v_and_b32 v2, 31, v1")
            a("v_lshlrev_b32 v2, 7, v2")
            a("v_add_u32 v2, s%d, v2" % sT0)
            a("buffer_load_dwordx4 v[28:31], v2, s[%d:%d], 0 offen sc1" % (S_WS, S_WS + 3))
        a("s_waitcnt vmcnt(%d)" % (self.n_after_w2a_min() + (1 if early else 0)))
        self.stamp(18)
        a("s_barrier")
        a("s_waitcnt vmcnt(0)")
        def yloads():
            a("buffer_load_dwordx4 v[20:23], v8, s[%d:%d], 0 offen sc1" % (S_WS, S_WS + 3))
            a("buffer_load_dwordx4 v[24:27], v8, s[%d:%d], 0 offen offset:16 sc1" % (S_WS, S_WS + 3))
        if early:
            lslow = "L_yslow"; lback = "L_yback"
            for i in range(4): a("v_xor_b32 v%d, s%d, v%d" % (28 + i, sNONCE, 28 + i))
            a("v_or3_b32 v28, v28, v29, v30")
            a("v_or_b32 v28, v28, v31")
            a("v_cmp_ne_u32 vcc, 0, v28")
            a("s_cbranch_vccnz %s" % lslow)
            yloads()
            a("s_barrier")
            a.label(lback)
            self.yslow_body = yloads
        else:
            a("s_barrier")
            if not self.noflags and "noh3" not in self.exp:
                a("s_lshl_b32 s%d, s%d, 12" % (sT0, sD))
                a("s_add_u32 s%d, s%d, 0x%x" % (sT0, sT0, F_H3))
                self.poll(sT0, 32, 4, 128)
            yloads()
        self.stamp(7)
        a("s_waitcnt vmcnt(0)")
        a("ds_write_b128 v9, v[20:23]")
        a("ds_write_b128 v9, v[24:27] offset:16")
        a.lg0()
        a("s_barrier")

    def y_slow(self):
        a = self.a
        a.label("L_yslow")
        a("s_barrier")
        a("s_lshl_b32 s%d, s%d, 12" % (sT0, sD))
        a("s_add_u32 s%d, s%d, 0x%x" % (sT0, sT0, F_H3))
        self.poll(sT0, 32, 4, 128)
        self.yslow_body()
        a("s_branch L_yback")

    def final_x_load(self, xr, ar, t0=2, t1=3):
        a = self.a
        a("s_and_b32 s%d, s%d, 3" % (sT0, sW))
        a("s_lshl_b32 s%d, s%d, 4" % (sT0, sT0))
        a("s_lshl_b32 s%d, s%d, 6" % (sT1, sR))
        a("s_add_u32 s%d, s%d, s%d" % (sT0, sT0, sT1))
        a("s_lshl_b32 s%d, s%d, 10" % (sT0, sT0))
        a("s_lshl_b32 s%d, s%d, 7" % (sT1, sD))
        a("s_add_u32 s%d, s%d, s%d" % (sT0, sT0, sT1))
        a("s_lshr_b32 s%d, s%d, 2" % (sT1, sW))
        a("s_lshl_b32 s%d, s%d, 6" % (sT1, sT1))
        a("s_add_u32 s%d, s%d, s%d" % (sT0, sT0, sT1))
        a("v_lshrrev_b32 v%d, 2, v1" % t0)
        a("v_lshlrev_b32 v%d, 10, v%d" % (t0, t0))
        a("v_and_b32 v%d, 3, v1" % t1)
        a("v_lshl_add_u32 v%d, v%d, 4, v%d" % (t0, t1, t0))
        a("v_add_u32 v%d, s%d, v%d" % (ar, sT0, t0))
        a.vmem("buffer_load_dwordx4 v[%d:%d], v%d, s[%d:%d], 0 offen" % (xr, xr + 3, ar, S_X, S_X + 3), "xf")

    def u_slow(self):
        a = self.a
        a.label("L_uslow")
        a("s_lshl_b32 s%d, s%d, 12" % (sT0, sC))
        a("s_add_u32 s%d, s%d, 0x%x" % (sT0, sT0, F_H1))
        self.poll(sT0, 32, 1, 128)
        for i in range(4):
            a("buffer_load_dwordx4 v[%d:%d], v172, s[%d:%d], 0 offen offset:%d sc1" % (152 + 4 * i, 155 + 4 * i, S_WS, S_WS + 3, 1024 * i))
        a("s_waitcnt vmcnt(0)")
        for i in range(4):
            a("ds_write_b128 v174, v[%d:%d] offset:%d" % (152 + 4 * i, 155 + 4 * i, 1024 * i))
        a("s_waitcnt lgkmcnt(0)")
        a("s_branch L_uback")

    NEGM, RS, NMRS = 100, 101, 102
    def norm2(self, X, t):
        L = []
        L.append("v_lshlrev_b32 v%d, 16, v%d" % (t + 0, X))
        L.append("v_and_b32 v%d, v%d, v%d" % (t + 1, vMHI, X))
        L.append("v_lshlrev_b32 v%d, 16, v%d" % (t + 2, X + 1))
        L.append("v_and_b32 v%d, v%d, v%d" % (t + 3, vMHI, X + 1))
        if self.relax_ln:
            for i in range(4):
                L.append("v_fma_f32 v%d, v%d, v%d, v%d" % (t + i, t + i, self.RS, self.NMRS))
        else:
            for i in range(4):
                L.append("v_add_f32 v%d, v%d, v%d" % (t + i, t + i, self.NEGM))
            L.append("v_cvt_pk_bf16_f32 v%d, v%d, v%d" % (t + 4, t + 0, t + 1))
            L.append("v_cvt_pk_bf16_f32 v%d, v%d, v%d" % (t + 5, t + 2, t + 3))
            L.append("v_lshlrev_b32 v%d, 16, v%d" % (t + 0, t + 4))
            L.append("v_and_b32 v%d, v%d, v%d" % (t + 1, vMHI, t + 4))
            L.append("v_lshlrev_b32 v%d, 16, v%d" % (t + 2, t + 5))
            L.append("v_and_b32 v%d, v%d, v%d" % (t + 3, vMHI, t + 5))
            for i in range(4):
                L.append("v_mul_f32 v%d, v%d, v%d" % (t + i, t + i, self.RS))
        L.append("v_cvt_pk_bf16_f32 v%d, v%d, v%d" % (X, t + 0, t + 1))
        L.append("v_cvt_pk_bf16_f32 v%d, v%d, v%d" % (X + 1, t + 2, t + 3))
        return L

    def norm_chunk(self, j):
        a = self.a
        X = 20 + 8 * j
        for half in range(2):
            s1 = self.norm2(X + 4 * half, 104); s2 = self.norm2(X + 4 * half + 2, 110)
            for x, y in zip(s1, s2):
                a(x); a(y)
            a.lds("ds_write_b128 v116, v[%d:%d] offset:%d" % (X + 4 * half, X + 4 * half + 3, L_XN + (j % NXN) * 8192 + half * 1024), "xw")

    def h_first(self):
        a = self.a
        self.vm_m_first = a.vm
        a.vm = Q(["cpf"] if "codepf0" in self.exp else [])
        a.label("L_Hfirst")
        self.rot_calc()
        a("s_lshl_b32 s%d, s%d, 16" % (sT0, sR))
        a("s_lshl_b32 s%d, s%d, 14" % (sT1, sRW))
        a("s_add_u32 s%d, s%d, s%d" % (sT0, sT0, sT1))
        a("v_lshrrev_b32 v6, 2, v1")
        a("v_lshlrev_b32 v6, 10, v6")
        a("v_and_b32 v7, 3, v1")
        a("v_lshl_add_u32 v6, v7, 4, v6")
        a("v_add_u32 v6, s%d, v6" % sT0)
        a("s_lshl_b32 s%d, s%d, 7" % (sT0, sROT))
        a("s_waitcnt lgkmcnt(0)")
        a("s_mov_b64 s[8:9], s[64:65]")
        if self.stamps:
            a("s_memrealtime s[4:5]"); a("s_waitcnt lgkmcnt(0)"); a("v_writelane_b32 v255, s4, 0")
        for j in range(8):
            if j:
                a("s_add_u32 s%d, s%d, 128" % (sT0, sT0))
                a("s_and_b32 s%d, s%d, 1023" % (sT0, sT0))
            a.vmem("buffer_load_dwordx4 v[%d:%d], v6, s[%d:%d], s%d offen" % (20 + 8 * j, 23 + 8 * j, S_X, S_X + 3, sT0), "x%d" % j)
            a.vmem("buffer_load_dwordx4 v[%d:%d], v6, s[%d:%d], s%d offen offset:64" % (24 + 8 * j, 27 + 8 * j, S_X, S_X + 3, sT0), "x%d" % j)
        a("s_branch L_H")
        self.vm_h_first = a.vm

    def h_front(self):
        a = self.a
        a.vm = self.vm_h_first; a.lg_clear()
        self.p0_rest()
        a("s_waitcnt lgkmcnt(0)")
        if "tlbpf" in self.exp:
            a("v_lshlrev_b32 v2, 19, v1")
            a("v_cmp_gt_u32 vcc, 28, v1")
            a("v_mov_b32 v3, 0x40000000")
            a("v_cndmask_b32 v2, v3, v2, vcc")
            a.vmem("buffer_load_dword v245, v2, s[%d:%d], 0 offen" % (S_WS, S_WS + 3), "tlb")
            a("v_lshlrev_b32 v2, 19, v1")
            a.vmem("buffer_load_dword v246, v2, s[%d:%d], 0 offen" % (S_OUT, S_OUT + 3), "tlb")
            a.vmem("buffer_load_dword v247, v2, s[%d:%d], 0 offen" % (S_W2, S_W2 + 3), "tlb")
            a.vmem("buffer_load_dword v243, v2, s[%d:%d], 0 offen" % (S_SSM, S_SSM + 3), "tlb")
        if self.w2s:
            a("s_lshl_b32 s%d, s2, 13" % sT2)
            a("v_and_b32 v2, 255, v0")
            a("v_lshlrev_b32 v3, 4, v2")
            a("v_add_u32 v3, s%d, v3" % sT2)
            a("s_cmp_lt_u32 s2, 172")
            a("s_cselect_b32 s86, 0, 0x40000000")
            a.vmem("buffer_load_dwordx4 v[224:227], v3, s[%d:%d], s86 offen" % (S_W2, S_W2 + 3), "w2sl")
            a("v_add_u32 v3, 4096, v3")
            a.vmem("buffer_load_dwordx4 v[228:231], v3, s[%d:%d], s86 offen" % (S_W2, S_W2 + 3), "w2sl")
            a("v_bfe_u32 v4, v2, 3, 3")
            a("v_mul_u32_u24 v4, 176128, v4")
            a("v_lshrrev_b32 v5, 6, v2")
            a("v_lshl_add_u32 v4, v5, 7, v4")
            a("v_and_b32 v5, 7, v2")
            a("v_lshl_add_u32 v4, v5, 4, v4")
            a("s_lshl_b32 s%d, s2, 10" % sT2)
            a("s_add_u32 s%d, s%d, 0x%x" % (sT2, sT2, WS_W2S))
            a("v_add_u32 v232, s%d, v4" % sT2)
        if "codepf" in self.exp:
            a("s_getpc_b64 s[82:83]")
            a.label("L_pc")
            a("s_sub_u32 s82, s82, L_pc-%s" % KNAME)
            a("s_subb_u32 s83, s83, 0")
            a("v_lshlrev_b32 v2, 7, v1")
            a("s_lshl_b32 s84, s%d, 13" % sRW)
            a("v_add_u32 v2, s84, v2")
            a("v_min_u32 v2, L_codeend-%s, v2" % KNAME)
            a("v_mov_b32 v3, s83")
            a("v_add_co_u32 v2, vcc, s82, v2")
            a("v_addc_co_u32 v3, vcc, 0, v3, vcc")
            a.vmem("global_load_dword v244, v[2:3], off", "cpf")
        a("s_waitcnt lgkmcnt(0)")
        a("s_barrier")

        if "V3" in self.exp:
            self.w1_voffs()
            for f in self.w1_dma_ops(0) + self.w1_dma_ops(1): f()
        a("s_setprio 0")
        if not self.noflags:
            a("v_mov_b32 v7, 0")
        a("v_lshrrev_b32 v4, 2, v1")
        a("v_and_b32 v5, 3, v1")
        a("v_lshlrev_b32 v2, 1, v5")
        a("v_xor_b32 v4, v4, v2")
        a("v_lshlrev_b32 v4, 4, v4")
        a("v_lshl_add_u32 v4, v5, 8, v4")
        a("s_lshl_b32 s%d, s%d, 11" % (sT2, sRW))
        a("v_add_u32 v116, s%d, v4" % sT2)

    def h_ssm_load(self):
        a = self.a
        a("s_lshl_b32 s%d, s%d, 6" % (sT2, sC))
        a("s_lshl_b32 s%d, s%d, 1" % (sT1, sR))
        a("s_add_u32 s%d, s%d, s%d" % (sT2, sT2, sT1))
        a("s_lshl_b32 s%d, s%d, 12" % (sT2, sT2))
        a("v_and_b32 v3, 255, v0")
        a("v_lshlrev_b32 v3, 4, v3")
        a("v_add_u32 v2, s%d, v3" % sT2)
        a("v_add_u32 v4, -8, v2")
        for ch in range(2):
            a.vmem("buffer_load_dwordx2 v[%d:%d], v4, s[%d:%d], 0 offen" % (84 + 6 * ch, 85 + 6 * ch, S_SSM, S_SSM + 3), "ssm")
            a.vmem("buffer_load_dwordx4 v[%d:%d], v2, s[%d:%d], 0 offen" % (86 + 6 * ch, 89 + 6 * ch, S_SSM, S_SSM + 3), "ssm")
            if ch == 0:
                a("v_add_u32 v2, 4096, v2")
                a("v_add_u32 v4, 4096, v4")

    def h_stats(self):
        a = self.a
        X = 20
        for i in range(8): a("v_mov_b32 v%d, 0" % (104 + i))
        for i in range(64):
            if i % 8 == 0:
                a.wait_vm("x%d" % (i // 8))
                if i == 0: self.stamp(13)
            a("v_dot2_f32_bf16 v%d, v%d, v%d, v%d" % (104 + (i & 3), X + i, vONES, 104 + (i & 3)))
            a("v_dot2_f32_bf16 v%d, v%d, v%d, v%d" % (108 + (i & 3), X + i, X + i, 108 + (i & 3)))
        a("v_add_f32 v104, v104, v105"); a("v_add_f32 v106, v106, v107")
        a("v_add_f32 v108, v108, v109"); a("v_add_f32 v110, v110, v111")
        a("v_add_f32 v2, v104, v106"); a("v_add_f32 v3, v108, v110")
        for ctl in ("quad_perm:[1,0,3,2]", "quad_perm:[2,3,0,1]"):
            a("v_add_f32_dpp v2, v2, v2 %s row_mask:0xf bank_mask:0xf" % ctl)
            a("v_add_f32_dpp v3, v3, v3 %s row_mask:0xf bank_mask:0xf" % ctl)
        a("v_mul_f32 v2, 0x3b000000, v2")
        a("v_mul_f32 v3, 0x3b000000, v3")
        a("v_cvt_pk_bf16_f32 v4, v2, v2")
        a("v_fma_f32 v3, -v2, v2, v3")
        a("v_lshlrev_b32 v4, 16, v4")
        a("v_max_f32 v3, 0, v3")
        a("v_cvt_pk_bf16_f32 v3, v3, v3")
        a("v_lshlrev_b32 v3, 16, v3")
        a("v_add_f32 v3, 0x3727c5ac, v3")
        a("v_cvt_pk_bf16_f32 v3, v3, v3")
        a("v_lshlrev_b32 v3, 16, v3")
        a("v_sqrt_f32 v3, v3")
        a("v_cvt_pk_bf16_f32 v3, v3, v3")
        a("v_lshlrev_b32 v3, 16, v3")
        a("v_rcp_f32 v%d, v3" % self.RS)
        a("v_sub_f32 v%d, 0, v4" % self.NEGM)
        a("v_mul_f32 v%d, v%d, v%d" % (self.NMRS, self.NEGM, self.RS))
        a("v_lshrrev_b32 v6, 2, v1")
        a("s_lshl_b32 s%d, s%d, 4" % (sT2, sRW))
        a("v_add_u32 v6, s%d, v6" % sT2)
        a("v_lshlrev_b32 v5, 3, v6")
        a("v_add_u32 v5, %d, v5" % L_STATS)
        a("v_mov_b32 v2, v4")
        a("v_mov_b32 v3, v%d" % self.RS)
        a.lds("ds_write_b64 v5, v[2:3]", "st")

    def h_tbuild(self, ch):
        a = self.a
        D = 84 + 6 * ch
        E = 118
        for p in range(5):
            a("v_alignbit_b32 v%d, v%d, v%d, 16" % (E + p, D + p + 1, D + p))
        for p in range(4):
            a("v_mov_b32 v%d, v%d" % (124 + p, D + 1 + p))
            a("v_mov_b32 v%d, v%d" % (128 + p, E + 1 + p))
        a("v_and_b32 v3, 255, v0")
        a("v_lshlrev_b32 v3, 4, v3")
        a("v_add_u32 v3, %d, v3" % (L_T + ch * T_CH + 24))
        a("ds_write_b128 v3, v[118:121]")
        a("ds_write_b128 v3, v[124:127] offset:%d" % T_CP)
        a("ds_write_b128 v3, v[128:131] offset:%d" % (2 * T_CP))
        a("ds_write_b128 v3, v[%d:%d] offset:%d" % (D + 2, D + 5, 3 * T_CP))

    def w2flag_loads(self, tag):
        a = self.a
        for i in range(3):
            a("v_add_u32 v3, %d, v1" % (64 * i))
            if i == 2:
                a("v_cmp_gt_u32 vcc, 172, v3")
                a("v_cndmask_b32 v3, 0, v3, vcc")
            a("v_lshlrev_b32 v3, 7, v3")
            a("v_add_u32 v3, 0x%x, v3" % F_H4)
            ins = "buffer_load_dword v%d, v3, s[%d:%d], 0 offen sc1" % (100 + i, S_WS, S_WS + 3)
            if tag: a.vmem(ins, tag)
            else: a(ins)

    def w2flag_check(self):
        a = self.a
        for i in range(3): a("v_xor_b32 v%d, s%d, v%d" % (104 + i, sNONCE, 100 + i))
        a("v_or3_b32 v104, v104, v105, v106")
        a("v_cmp_ne_u32 vcc, 0, v104")

    def h_uload(self):
        a = self.a
        if self.noflags: a.wait_vm("ssm")
        if not self.noflags:
            dn = a.newlabel("L_h1ok")
            a.wait_vm("h1f")
            for i in range(4): a("v_xor_b32 v%d, s%d, v%d" % (96 + i, sNONCE, 96 + i))
            a("v_or3_b32 v96, v96, v97, v98")
            a("v_or_b32 v96, v96, v99")
            a("v_cmp_ne_u32 vcc, 0, v96")
            a("s_cbranch_vccz %s" % dn)
            if "noprep" not in self.exp:
                a("s_lshl_b32 s%d, s%d, 12" % (sT0, sC))
                a("s_add_u32 s%d, s%d, 0x%x" % (sT0, sT0, F_H1))
                self.poll(sT0, 32, 4, 128)
            a.label(dn)
        self.stamp(3)
        a("s_lshl_b32 s%d, s%d, 6" % (sT0, sC))
        a("s_lshl_b32 s%d, s%d, 1" % (sT1, sR))
        a("s_add_u32 s%d, s%d, s%d" % (sT0, sT0, sT1))
        a("s_lshl_b32 s%d, s%d, 12" % (sT0, sT0))
        a("s_lshl_b32 s%d, s%d, 11" % (sT1, sRW))
        a("s_add_u32 s%d, s%d, s%d" % (sT0, sT0, sT1))
        a("v_lshlrev_b32 v4, 4, v1")
        a("v_add_u32 v5, s%d, v4" % sT0)
        a.vmem("buffer_load_dwordx4 v[20:23], v5, s[%d:%d], 0 offen sc1" % (S_WS, S_WS + 3), "u")
        a.vmem("buffer_load_dwordx4 v[24:27], v5, s[%d:%d], 0 offen offset:1024 sc1" % (S_WS, S_WS + 3), "u")
        self.h_tbuild(0)
        self.h_tbuild(1)
        if "w2early" in self.exp:
            self.w2_voff()
            self.w2_early()
        a("v_lshlrev_b32 v4, 4, v1")
        a("s_lshr_b32 s%d, s%d, 1" % (sT0, sRW))
        a("s_mul_i32 s%d, s%d, %d" % (sT0, sT0, U_CH))
        a("s_and_b32 s%d, s%d, 1" % (sT1, sRW))
        a("s_lshl_b32 s%d, s%d, 11" % (sT2, sT1))
        a("s_add_u32 s%d, s%d, s%d" % (sT0, sT0, sT2))
        a("s_add_u32 s%d, s%d, %d" % (sT0, sT0, L_U))
        a("v_add_u32 v6, s%d, v4" % sT0)
        for i in range(4): a("v_mov_b32 v%d, 0" % (28 + i))
        a("s_cmp_eq_u32 s%d, 1" % sT1)
        a("s_cselect_b32 exec_lo, -1, 0")
        a("s_mov_b32 exec_hi, 0")
        a("ds_write_b128 v6, v[28:31] offset:2048")
        a("s_mov_b64 exec, -1")
        a.wait_vm("u")
        a("ds_write_b128 v6, v[20:23]")
        a("ds_write_b128 v6, v[24:27] offset:1024")

    def norm_seq(self, j):
        a = self.a
        X = 20 + 8 * j
        seq = []
        for half in range(2):
            s1 = self.norm2(X + 4 * half, 104); s2 = self.norm2(X + 4 * half + 2, 110)
            if "hnonorm" in self.exp and j >= 2:
                s1 = ["s_nop 0"] * 8; s2 = ["s_nop 0"] * 8
            for x, y in zip(s1, s2):
                seq.append(x); seq.append(y)
            if "wmid" in self.exp:
                seq.append(lambda half=half: a.lds("ds_write_b128 v116, v[%d:%d] offset:%d" % (X + 4 * half, X + 4 * half + 3, L_XN + (j % NXN) * 8192 + half * 1024), "xw%d" % j))
        if not ("hnowrite" in self.exp and j >= 2) and "wmid" not in self.exp:
            for half in range(2):
                seq.append(lambda half=half: a.lds("ds_write_b128 v116, v[%d:%d] offset:%d" % (X + 4 * half, X + 4 * half + 3, L_XN + (j % NXN) * 8192 + half * 1024), "xw%d" % j))
        return seq

    def h_gemm1_side(self):
        a = self.a
        if self.w2s:
            a.wait_vm("w2sl")
            a.vmem("buffer_store_dwordx4 v[224:227], v232, s[%d:%d], s86 offen sc1" % (S_WS, S_WS + 3), "w2st")
            a.vmem("buffer_store_dwordx4 v[228:231], v232, s[%d:%d], s86 offen offset:512 sc1" % (S_WS, S_WS + 3), "w2st")
        if "hprio" in self.exp: a("s_setprio 2")
        if "pfWc" in self.exp: self.w1_tail_prefetch(241)
        if "lnpre" in self.exp:
            def split(j):
                sq = self.norm_seq(j)
                return sq[:-2], sq[-2:]
            wr = {}
            for j in range(8):
                v_, w_ = split(j)
                for x in v_: self.run(x)
                if j < 4:
                    for x in w_: self.run(x)
                else:
                    wr[j] = w_
                if j == 1 and not self.noflags:
                    a.vmem("buffer_load_dword v19, v7, s[%d:%d], 0 offen sc1" % (S_DBG, S_DBG + 3), "nonce")
            a.need_lds("xw0", "xw1")
            a("s_barrier")
        else:
            for x in self.norm_seq(0): self.run(x)
            s1 = self.norm_seq(1)
            h = len(s1) // 2
            for x in s1[:h]: self.run(x)
            for x in s1[h:]: self.run(x)
            if not self.noflags:
                a.vmem("buffer_load_dword v19, v7, s[%d:%d], 0 offen sc1" % (S_DBG, S_DBG + 3), "nonce")
            s2 = self.norm_seq(2)
            for x in s2[:h]: self.run(x)
            a.need_lds("xw0", "xw1")
            if "V3" in self.exp: a.wait_vm("w1c1")
            a("s_barrier")
            for x in s2[h:]: self.run(x)
        for j in range(8):
            if "lnpre" in self.exp:
                if j >= 1 and j + 3 <= 7:
                    for x in wr[j + 3]: self.run(x)
            elif j + 3 <= 7:
                for x in self.norm_seq(j + 3): self.run(x)
            if j == self.pf2j and "pf2" in self.exp: self.line_prefetch("w2", 242)
            if j == 1: self.h_ssm_load()
            if j == (self.w2j if self.w2s else 4) and not self.noflags:
                self.get_nonce()
            if j == 5:
                if not self.noflags:
                    a("s_lshl_b32 s%d, s%d, 12" % (sT0, sC))
                    a("s_add_u32 s%d, s%d, 0x%x" % (sT0, sT0, F_H1))
                    a("v_and_b32 v2, 31, v1")
                    a("v_lshlrev_b32 v2, 7, v2")
                    a("v_add_u32 v2, s%d, v2" % sT0)
                if self.w2s:
                    skf = a.newlabel("L_w2f")
                    a("s_cmp_lg_u32 s%d, 0" % sRW)
                    a("s_cbranch_scc1 %s" % skf)
                    self.w2flag_loads(tag=None)
                    a.label(skf)
                if not self.noflags:
                    a.vmem("buffer_load_dwordx4 v[96:99], v2, s[%d:%d], 0 offen sc1" % (S_WS, S_WS + 3), "h1f")
            if j + 1 <= 6:
                if j + 2 <= 7 and "hnowrite" not in self.exp: a.need_lds("xw%d" % (j + 2))
                if j == self.w2j and self.w2s: a.wait_vm("w2st")
                a("s_barrier")
                if j == self.w2j and self.w2s:
                    sk = a.newlabel("L_w2c")
                    a("s_cmp_lt_u32 s2, 172")
                    a("s_cselect_b32 s4, s%d, 1" % sRW)
                    a("s_cmp_lg_u32 s4, 0")
                    a("s_cbranch_scc1 %s" % sk)
                    a("s_lshl_b32 s4, s2, 7")
                    a("s_add_u32 s%d, s4, 0x%x" % (sT2, F_H4))
                    q = list(a.vm.q)
                    self.flag_store(sT2, "flag", 2, 3)
                    a.vm.q = q
                    a.label(sk)
                if "itst" in self.exp: self.stamp(23 + j)
        if "hprio" in self.exp: a("s_setprio 0")
        self.h_uload()
        if self.w2s:
            lp = a.newlabel("L_w2p"); dn = a.newlabel("L_w2d")
            a("s_cmp_lg_u32 s%d, 0" % sRW)
            a("s_cbranch_scc1 %s" % dn)
            a("s_mov_b32 s%d, 0" % sT3)
            a.label(lp)
            self.w2flag_check()
            a("s_cbranch_vccz %s" % dn)
            self.w2flag_loads(tag=None)
            a("s_waitcnt vmcnt(0)")
            a("s_add_u32 s%d, s%d, 1" % (sT3, sT3))
            a("s_cmp_lt_u32 s%d, 100000" % sT3)
            a("s_cbranch_scc1 %s" % lp)
            if "pf4" in self.exp:
                lok = a.newlabel("L_w2ok")
                a.lines.pop()
                a("s_cbranch_scc1 %s" % lp)
            a.label(dn)
            if "pf4" in self.exp:
                skp = a.newlabel("L_pf4")
                a("s_cmp_lg_u32 s%d, 0" % sRW)
                a("s_cbranch_scc1 %s" % skp)
                a("s_lshr_b32 s%d, s2, 3" % sT0)
                if "map42" in self.exp:
                    a("s_mul_i32 s%d, s%d, %d" % (sT0, sT0, 172 * 128))
                    a("s_bfe_u32 s%d, s2, 0x10002" % sT1)
                    a("s_mul_i32 s%d, s%d, %d" % (sT1, sT1, 4 * 176128))
                    a("s_add_u32 s%d, s%d, s%d" % (sT0, sT0, sT1))
                    nl = 172
                else:
                    a("s_mul_i32 s%d, s%d, %d" % (sT0, sT0, 344 * 128))
                    nl = 344
                a("s_add_u32 s%d, s%d, 0x%x" % (sT0, sT0, WS_W2S))
                for i in range((nl + 63) // 64):
                    a("v_add_u32 v3, %d, v1" % (64 * i))
                    a("v_min_u32 v3, %d, v3" % (nl - 1))
                    a("v_lshlrev_b32 v3, 7, v3")
                    a("v_add_u32 v3, s%d, v3" % sT0)
                    a("buffer_load_dword v%d, v3, s[%d:%d], 0 offen sc1" % (240 + (i & 3), S_WS, S_WS + 3))
                a.label(skp)
        self.w2_voff()
        a.lg0()
        a("s_barrier")
        self.stamp(2)

    def h_gemm2(self):
        a = self.a
        HF, ACC = 20, 196
        WBUF = [228, 2]
        AB = 244
        PF = 10
        a("s_lshr_b32 s75, s%d, 1" % sRW)
        a("s_and_b32 s76, s%d, 1" % sRW)
        if "poller3" in self.exp:
            lp3 = a.newlabel("L_hp3"); lgo = a.newlabel("L_hgo")
            a("s_cmp_eq_u32 s%d, 3" % sRW)
            a("s_cbranch_scc1 %s" % lp3)
            q0 = list(a.vm.q)
            for m in range(9):
                a("s_add_u32 s%d, s%d, %d" % (sT0, sRW, 3 * m))
                if m == 8: a("s_min_u32 s%d, s%d, 25" % (sT0, sT0))
                a("s_lshr_b32 s%d, s%d, 1" % (sT1, sT0))
                a("s_and_b32 s%d, s%d, 1" % (sT0, sT0))
                a("s_mul_i32 s71, s%d, %d" % (sT0, NB_H))
                a("s_add_u32 s71, s71, s%d" % sT1)
                a("s_lshl_b32 s71, s71, 12")
                a("s_mul_i32 s70, s%d, 22" % sT0)
                a("s_add_u32 s70, s70, s%d" % sT1)
                a("s_lshl_b32 s70, s70, %d" % (12 if self.w2s else 15))
                self.w2_dma(71, L_B, 70, 0, "w2b")
            a("s_branch %s" % lgo)
            a.label(lp3)
            if not self.noflags:
                a("s_lshl_b32 s%d, s%d, 10" % (sT0, sR))
                a("s_add_u32 s%d, s%d, 0x%x" % (sT0, sT0, F_H2))
                self.poll(sT0, 8, 4, 128)
            a("v_mov_b32 v2, %d" % (L_SYNC + 60))
            a("v_mov_b32 v3, 1")
            a("ds_write_b32 v2, v3")
            a.label(lgo)
        else:
            def w2b_slot(m):
                a("s_add_u32 s%d, s%d, %d" % (sT0, sRW, 4 * m))
                if m == 6: a("s_min_u32 s%d, s%d, 25" % (sT0, sT0))
                a("s_lshr_b32 s%d, s%d, 1" % (sT1, sT0))
                a("s_and_b32 s%d, s%d, 1" % (sT0, sT0))
                a("s_mul_i32 s71, s%d, %d" % (sT0, NB_H))
                a("s_add_u32 s71, s71, s%d" % sT1)
                a("s_lshl_b32 s71, s71, 12")
                a("s_mul_i32 s70, s%d, 22" % sT0)
                a("s_add_u32 s70, s70, s%d" % sT1)
                a("s_lshl_b32 s70, s70, %d" % (12 if self.w2s else 15))
                self.w2_dma(71, L_B, 70, 0, "w2b" if m < self.w2p1 else "w2b2")
            self.w2b_slot = w2b_slot
            if "w2early" in self.exp:
                for m in range(4):
                    a("s_add_u32 s%d, s%d, %d" % (sT0, sRW, 4 * m + (4 if m == 0 else 10)))
                    self.w2_slot_dma("w2b")
            else:
                for m in range(self.w2p1):
                    w2b_slot(m)
        a("s_lshl_b32 s%d, s%d, 2" % (sT2, sR))
        a("s_lshl_b32 s4, s76, 1")
        a("s_add_u32 s%d, s%d, s4" % (sT2, sT2))
        a("s_mul_i32 s%d, s%d, 44032" % (sT2, sT2))
        a("s_mul_i32 s4, s75, %d" % (22 * 1024))
        a("s_add_u32 s%d, s%d, s4" % (sT2, sT2))
        a("s_add_u32 s%d, s%d, 0x%x" % (sT2, sT2, WS_H))
        a("v_lshlrev_b32 v18, 4, v1")
        a("v_add_u32 v18, s%d, v18" % sT2)
        a("v_add_u32 v19, 44032, v18")
        a("v_lshrrev_b32 v2, 4, v1")
        a("v_and_b32 v3, 15, v1")
        a("v_lshrrev_b32 v3, 2, v3")
        a("v_lshrrev_b32 v4, 1, v2")
        a("v_lshlrev_b32 v4, 4, v4")
        a("v_and_b32 v5, 1, v2")
        a("v_lshl_add_u32 v4, v5, 2, v4")
        a("v_add_u32 v4, v4, v3")
        a("v_lshlrev_b32 v4, 7, v4")
        a("v_and_b32 v6, 1, v1")
        a("v_lshl_add_u32 v4, v6, 3, v4")
        a("v_lshlrev_b32 v5, 1, v5")
        a("v_lshrrev_b32 v6, 1, v3")
        a("v_add_u32 v5, v5, v6")
        a("v_lshlrev_b32 v5, 1, v5")
        a("v_and_b32 v6, 3, v1")
        a("v_lshrrev_b32 v6, 1, v6")
        a("s_mul_i32 s4, s75, %d" % B_HALF)
        if L_B: a("s_add_u32 s4, s4, %d" % L_B)
        for b in range(4):
            a("v_add_u32 v7, %d, v6" % (2 * b))
            a("v_xor_b32 v7, v7, v5")
            a("v_lshl_add_u32 v7, v7, 4, v4")
            a("v_add_u32 v%d, s4, v7" % (AB + b))
        a("s_mul_i32 s5, s75, %d" % (NA_H * 4096))
        a("s_add_u32 s5, s5, %d" % L_A)
        a("s_sub_u32 s77, s5, s4")
        a("s_sub_u32 s79, s4, s5")
        for i in range(32): a("v_mov_b32 v%d, 0" % (ACC + i))
        if "poller3" in self.exp:
            a("s_mov_b32 s5, %d" % (L_SYNC + 60))
            self.lds_wait(5, 1, 253, 254)
        else:
            self.stamp(5)
            if not self.noflags and "noh2" not in self.exp:
                a("s_lshl_b32 s%d, s%d, 10" % (sT0, sR))
                a("s_add_u32 s%d, s%d, 0x%x" % (sT0, sT0, F_H2))
                self.poll(sT0, 8, 4, 128)
        self.stamp(6)

        def hload(i):
            ops = []
            for t in range(2):
                def f(t=t):
                    r = HF + (i * 2 + t) * 4
                    so = i * 1024
                    if so < 4096:
                        a.vmem("buffer_load_dwordx4 v[%d:%d], v%d, s[%d:%d], 0 offen offset:%d sc1" % (r, r + 3, 18 + t, S_WS, S_WS + 3, so), "h%d" % i)
                    else:
                        if t == 0: a("s_mov_b32 s80, %d" % (so & ~4095))
                        a.vmem("buffer_load_dwordx4 v[%d:%d], v%d, s[%d:%d], s80 offen offset:%d sc1" % (r, r + 3, 18 + t, S_WS, S_WS + 3, so & 4095), "h%d" % i)
                ops.append(f)
            return ops

        def read_ops(i):
            buf = WBUF[i & 1]
            if i < 13: so = i * 4096
            elif i < 19: so = (i - 13) * 4096
            else: so = (i - 19) * 4096
            ops = []
            sw = {13: 77, 19: 79}.get(i)
            if sw:
                for b in range(4): ops.append("v_add_u32 v%d, s%d, v%d" % (AB + b, sw, AB + b))
            for b in range(4):
                for hh in range(2):
                    r0 = buf + 4 * b + 2 * hh
                    ops.append(lambda r0=r0, b=b, hh=hh: a.lds("ds_read_b64_tr_b16 v[%d:%d], v%d offset:%d" % (r0, r0 + 1, AB + b, so + hh * 1024), "w%d_%d" % (i, b)))
            return ops

        def mfma_ops(i):
            buf = WBUF[i & 1]
            ops = []
            for b in range(4):
                for t in range(2):
                    def f(b=b, t=t):
                        if b == 0 and t == 0:
                            a.wait_both("h%d" % i, ["w%d_%d" % (i, bb) for bb in range(4)])
                        acc = ACC + (b * 2 + t) * 4
                        hr = HF + (i * 2 + t) * 4
                        a("v_mfma_f32_16x16x32_bf16 v[%d:%d], v[%d:%d], v[%d:%d], v[%d:%d]" % (acc, acc + 3, buf + 4 * b, buf + 4 * b + 3, hr, hr + 3, acc, acc + 3))
                    ops.append(f)
            return ops

        allh = []
        for i in range(22): allh += hload(i)
        hp = 0
        for f in allh[:self.hinit]: f()
        hp = self.hinit
        for m in range(self.w2p1, 7):
            self.w2b_slot(m)
        a("s_waitcnt vmcnt(%d)" % min(63, self.hinit + 4 * (7 - self.w2p1)))
        self.m_sync(11, va=253, vb=254)
        self.stamp(19)
        for f in read_ops(0): self.run(f)
        last = a.newlabel("L_g2l")
        for i in range(22):
            if i == 12:
                a.lg0()
                a("s_barrier")
            if i == 18:
                a.lg0()
                a("s_barrier")
            if self.w2p1 < 7 and i == 2 * self.w2p1 - 1:
                a.wait_vm("w2b2")
                self.m_sync(10, va=253, vb=254)
            if i == 11 and "xearly" in self.exp:
                self.final_x_load(self.XR, self.OA, 253, 254)
            if i == 4:
                a("v_mov_b32 v253, %d" % (L_SYNC + 56))
                a("v_mov_b32 v254, 1")
                a("s_mov_b64 exec, 1")
                a.lds("ds_add_u32 v253, v254", "sig")
                a("s_mov_b64 exec, -1")
            if i == 21:
                a("s_cmp_eq_u32 s75, 1")
                a("s_cbranch_scc1 %s" % last)
            fill = []
            if i < 21: fill += read_ops(i + 1)
            nl = self.hper if hp < 2 * (i + self.hwin) else 2
            nl = min(nl, len(allh) - hp)
            fill = allh[hp:hp + nl] + fill
            hp += nl
            interleave(a, mfma_ops(i), fill)
        a.label(last)
        a.lg0()
        self.stamp(22)
        a("v_and_b32 v2, 15, v1")
        a("v_lshrrev_b32 v3, 4, v1")
        a("v_mul_u32_u24 v2, 272, v2")
        a("v_lshl_add_u32 v2, v3, 4, v2")
        a("s_mul_i32 s4, s75, %d" % P_STRIDE)
        a("s_mul_i32 s5, s76, %d" % (32 * 272))
        a("s_add_u32 s4, s4, s5")
        a("s_add_u32 s4, s4, %d" % L_P)
        a("v_add_u32 v2, s4, v2")
        for b in range(4):
            for t in range(2):
                acc = ACC + (b * 2 + t) * 4
                a("ds_write_b128 v2, v[%d:%d] offset:%d" % (acc, acc + 3, t * 16 * 272 + b * 64))
        if "xearly" not in self.exp: self.final_x_load(self.XR, self.OA)
        a.lg0()
        a("s_barrier")

    def final(self):
        a = self.a
        P0 = L_P; P1 = L_P + P_STRIDE; YL = L_Y
        XR = self.XR; OA = self.OA
        a("s_and_b32 s%d, s%d, 3" % (sT0, sW))
        a("s_lshr_b32 s%d, s%d, 2" % (sT1, sW))
        a("v_lshrrev_b32 v2, 2, v1")
        a("v_and_b32 v3, 3, v1")
        a("s_lshl_b32 s4, s%d, 4" % sT0)
        a("v_add_u32 v2, s4, v2")
        a("v_mul_u32_u24 v4, 272, v2")
        a("v_lshl_add_u32 v4, v3, 5, v4")
        a("s_lshl_b32 s4, s%d, 7" % sT1)
        a("s_add_u32 s4, s4, %d" % P0)
        a("v_add_u32 v4, s4, v4")
        a("ds_read_b128 v[20:23], v4")
        a("ds_read_b128 v[24:27], v4 offset:16")
        a("ds_read_b128 v[28:31], v4 offset:%d" % (P1 - P0))
        a("ds_read_b128 v[32:35], v4 offset:%d" % (P1 - P0 + 16))
        a("v_lshlrev_b32 v6, 3, v2")
        a("v_add_u32 v6, %d, v6" % L_STATS)
        a("ds_read_b64 v[36:37], v6")
        a("v_lshrrev_b32 v7, 4, v1")
        a("v_lshlrev_b32 v7, 3, v7")
        a("v_and_b32 v8, 15, v1")
        a("v_lshrrev_b32 v8, 2, v8")
        a("v_add_u32 v7, v7, v8")
        a("s_lshl_b32 s4, s%d, 5" % sT1)
        a("v_add_u32 v7, s4, v7")
        a("v_mul_u32_u24 v7, 144, v7")
        a("v_and_b32 v8, 3, v1")
        a("v_lshl_add_u32 v7, v8, 3, v7")
        a("s_lshl_b32 s4, s%d, 5" % sT0)
        a("s_add_u32 s4, s4, %d" % YL)
        a("v_add_u32 v7, s4, v7")
        a("ds_read_b64_tr_b16 v[38:39], v7")
        a("ds_read_b64_tr_b16 v[40:41], v7 offset:%d" % (4 * 144))
        a("v_and_b32 v8, 3, v1")
        a("v_lshlrev_b32 v8, 4, v8")
        a("v_lshrrev_b32 v9, 2, v1")
        a("v_or_b32 v8, v8, v9")
        a("v_lshlrev_b32 v8, 2, v8")
        a("v_mov_b32 v10, 0xbfb8aa3b")
        a("v_mov_b32 v11, 1.0")
        a("s_waitcnt lgkmcnt(0)")
        for i in range(4):
            a("ds_bpermute_b32 v%d, v8, v%d" % (42 + i, 38 + i))
        for i in range(8):
            a("v_add_f32 v%d, v%d, v%d" % (20 + i, 20 + i, 28 + i))
        for i in range(4):
            a("v_cvt_pk_bf16_f32 v%d, v%d, v%d" % (28 + i, 20 + 2 * i, 21 + 2 * i))
        for i in range(4):
            a("v_alignbit_b32 v%d, v%d, 0, 16" % (20 + 2 * i, 28 + i))
            a("v_and_b32 v%d, v%d, v%d" % (21 + 2 * i, vMHI, 28 + i))
        for i in range(8):
            a("v_mul_f32 v%d, v10, v%d" % (48 + i, 20 + i))
        for i in range(8):
            a("v_exp_f32 v%d, v%d" % (48 + i, 48 + i))
        a("s_waitcnt vmcnt(0)")
        a("v_sub_f32 v12, 0, v36")
        for i in range(4):
            a("v_dot2_f32_bf16 v%d, v%d, v%d, v12" % (72 + 2 * i, XR + i, vONELO))
            a("v_dot2_f32_bf16 v%d, v%d, v%d, v12" % (73 + 2 * i, XR + i, vONEHI))
        for i in range(8):
            a("v_add_f32 v%d, v11, v%d" % (48 + i, 48 + i))
        for i in range(4):
            a("v_cvt_pk_bf16_f32 v%d, v%d, v%d" % (80 + i, 72 + 2 * i, 73 + 2 * i))
        for i in range(8):
            a("v_rcp_f32 v%d, v%d" % (48 + i, 48 + i))
        for i in range(4):
            a("v_alignbit_b32 v%d, v%d, 0, 16" % (72 + 2 * i, 80 + i))
            a("v_and_b32 v%d, v%d, v%d" % (73 + 2 * i, vMHI, 80 + i))
        for i in range(8):
            a("v_mul_f32 v%d, v%d, v37" % (72 + i, 72 + i))
        for i in range(8):
            a("v_mul_f32 v%d, v%d, v%d" % (20 + i, 20 + i, 48 + i))
        if "relax_fin" in self.exp:
            a("s_waitcnt lgkmcnt(0)")
            for i in range(4):
                a("v_alignbit_b32 v%d, v%d, 0, 16" % (56 + 2 * i, 42 + i))
                a("v_and_b32 v%d, v%d, v%d" % (57 + 2 * i, vMHI, 42 + i))
                a("v_alignbit_b32 v%d, v%d, 0, 16" % (88 + 2 * i, XR + i))
                a("v_and_b32 v%d, v%d, v%d" % (89 + 2 * i, vMHI, XR + i))
            for i in range(8):
                a("v_mul_f32 v%d, v%d, v%d" % (72 + i, 72 + i, 56 + i))
            for i in range(8):
                a("v_fma_f32 v%d, v%d, v%d, v%d" % (72 + i, 72 + i, 20 + i, 88 + i))
            for i in range(4):
                a("v_cvt_pk_bf16_f32 v%d, v%d, v%d" % (80 + i, 72 + 2 * i, 73 + 2 * i))
        else:
            for i in range(4):
                a("v_cvt_pk_bf16_f32 v%d, v%d, v%d" % (80 + i, 72 + 2 * i, 73 + 2 * i))
            for i in range(4):
                a("v_cvt_pk_bf16_f32 v%d, v%d, v%d" % (28 + i, 20 + 2 * i, 21 + 2 * i))
            a("s_waitcnt lgkmcnt(0)")
            for i in range(4):
                a("v_and_b32 v%d, v%d, v%d" % (56 + 2 * i, vMLO, 42 + i))
                a("v_and_b32 v%d, v%d, v%d" % (57 + 2 * i, vMHI, 42 + i))
                a("v_and_b32 v%d, v%d, v%d" % (64 + 2 * i, vMLO, 28 + i))
                a("v_and_b32 v%d, v%d, v%d" % (65 + 2 * i, vMHI, 28 + i))
            for i in range(4):
                a("v_dot2_f32_bf16 v%d, v%d, v%d, 0" % (72 + 2 * i, 80 + i, 56 + 2 * i))
                a("v_dot2_f32_bf16 v%d, v%d, v%d, 0" % (73 + 2 * i, 80 + i, 57 + 2 * i))
            for i in range(4):
                a("v_alignbit_b32 v%d, v%d, 0, 16" % (88 + 2 * i, XR + i))
                a("v_and_b32 v%d, v%d, v%d" % (89 + 2 * i, vMHI, XR + i))
            for i in range(4):
                a("v_cvt_pk_bf16_f32 v%d, v%d, v%d" % (80 + i, 72 + 2 * i, 73 + 2 * i))
            for i in range(4):
                a("v_dot2_f32_bf16 v%d, v%d, v%d, 0" % (72 + 2 * i, 80 + i, 64 + 2 * i))
                a("v_dot2_f32_bf16 v%d, v%d, v%d, 0" % (73 + 2 * i, 80 + i, 65 + 2 * i))
            for i in range(4):
                a("v_cvt_pk_bf16_f32 v%d, v%d, v%d" % (80 + i, 72 + 2 * i, 73 + 2 * i))
            for i in range(4):
                a("v_dot2_f32_bf16 v%d, v%d, v%d, v%d" % (72 + 2 * i, 80 + i, vONELO, 88 + 2 * i))
                a("v_dot2_f32_bf16 v%d, v%d, v%d, v%d" % (73 + 2 * i, 80 + i, vONEHI, 89 + 2 * i))
            for i in range(4):
                a("v_cvt_pk_bf16_f32 v%d, v%d, v%d" % (80 + i, 72 + 2 * i, 73 + 2 * i))
        fl = " sc1" if "outsc1" in self.exp else (" nt" if "outnt" in self.exp else (" sc0 sc1" if "outsc01" in self.exp else ""))
        a("buffer_store_dwordx4 v[80:83], v%d, s[%d:%d], 0 offen%s" % (OA, S_OUT, S_OUT + 3, fl))

    def build(self):
        a = self.a
        self.p0()
        self.m_front()
        self.stamp(1)
        self.m_prep()
        self.stamp(10)
        self.m_gemm1()
        self.stamp(4)
        self.m_conv()
        self.m_tail()
        a("s_branch L_final")
        a.label("L_H")
        self.h_front()
        self.stamp(1)
        self.h_stats()
        self.stamp(11)
        self.h_gemm1_side()
        self.h_gemm2()
        a.label("L_final")
        a.lg_clear()
        self.stamp(8)
        self.final()
        self.stamp(9)
        self.dump_stamps()
        if "noendwait" not in self.exp: a("s_waitcnt vmcnt(0)")
        a.label("L_end")
        a("s_endpgm")
        if "yearly" in self.exp and not self.noflags:
            self.y_slow()
        a.label("L_codeend")
        a("s_endpgm")
        lines, n = hazard.fix(a.lines)
        self.nnops = n
        hdr = """; Kernarg layout: x,k,v,shift_k,ssm_k,ssm_D,B_x,w1,w2,out,debug,ws (8-byte pointers)
; @launch grid=(256,1,1) block=(512,1,1) lds=%d
.amdgcn_target "amdgcn-amd-amdhsa--gfx950"
.text
.globl %s
.p2align 8
.type %s,@function
%s:
""" % (LDS_SIZE, KNAME, KNAME, KNAME)
        ftr = """.section .rodata,"a"
.p2align 6
.amdhsa_kernel %s
  .amdhsa_next_free_vgpr 256
  .amdhsa_next_free_sgpr 102
  .amdhsa_accum_offset 256
  .amdhsa_group_segment_fixed_size 0
  .amdhsa_kernarg_size 96
  .amdhsa_user_sgpr_count 2
  .amdhsa_user_sgpr_kernarg_segment_ptr 1
  .amdhsa_system_sgpr_workgroup_id_x 1
.end_amdhsa_kernel
""" % KNAME
        return hdr + "\n".join(lines) + "\n" + ftr

if __name__ == "__main__":
    import argparse
    ap = argparse.ArgumentParser()
    ap.add_argument("-o", default="k.s")
    ap.add_argument("--stamps", action="store_true")
    ap.add_argument("--noflags", action="store_true")
    ap.add_argument("--exp", default="")
    args = ap.parse_args()
    g = Gen(stamps=args.stamps, noflags=args.noflags, exp=args.exp)
    txt = g.build()
    open(args.o, "w").write(txt)
    print("wrote", args.o, len(txt.splitlines()), "lines; hazard nops:", g.nnops)
```

```python
import sys
from emit import *
import hazard

KNAME = "recurrent_scan__ssm_conv_h3__dense_activation_relu__prompt_kernel"

WS_KVT = 0
WS_YT = 2 << 20
WS_H = 4 << 20
WS_FLAG = 10 << 20
F_H1 = WS_FLAG
F_H2 = WS_FLAG + 32768
F_H3 = WS_FLAG + 65536
F_H4 = WS_FLAG + 98304
WS_STAMP = WS_FLAG + (256 << 10)
WS_W2S = 12 << 20
WS_SIZE = 16 << 20

L_XN = 0
NXN = 4
L_W1 = 32768
W1_SLOT = 24576
NW1 = 5
L_PREP = L_W1 + 4 * W1_SLOT
L_A = L_W1 + 3 * W1_SLOT
NA_H = 6
L_T = L_A + 8
T_CH = 16640
T_CP = 4160
L_U = L_A + 33408
U_CH = 4608
L_B = 0
NB_H = 13
B_HALF = NB_H * 4096
L_Y = 16384
L_P = L_B + 7 * 4096
P_STRIDE = B_HALF
L_STATS = 161792
L_SYNC = 162304
LDS_SIZE = 163840
assert L_U % 16 == 0 and L_U + 2 * U_CH <= L_W1 + 5 * W1_SLOT and L_T + 2 * T_CH <= L_U
assert L_A + 2 * NA_H * 4096 <= L_STATS and 2 * B_HALF <= L_A and L_W1 + NW1 * W1_SLOT <= L_STATS

S_X, S_K, S_V, S_W1, S_W2, S_OUT, S_SSM, S_WS, S_SH, S_DBG = 8, 12, 16, 20, 24, 28, 32, 36, 40, 44
sR, sC, sW, sNONCE = 48, 49, 50, 51
sF0, sBP, sNB = 52, 53, 54
sT0, sT1, sT2, sT3 = 55, 56, 57, 58
sRW = 59
sEX = 60
sROT = 62
sDP = 64
sDD = 66
sM0B = 67
sP0, sP1 = 68, 69
sUOK = 72
sID = 81
sD = 85
sINV1, sINV2 = 73, 74
vMLO, vMHI, vONELO, vONEHI, vONES = 248, 249, 250, 251, 252

def merge(*lists):
    lists = [l for l in lists if l]
    tot = sum(len(l) for l in lists)
    out = []; idx = [0] * len(lists)
    for s in range(tot):
        best = min((i for i in range(len(lists)) if idx[i] < len(lists[i])), key=lambda i: (idx[i] + 0.5) / len(lists[i]))
        out.append(lists[best][idx[best]]); idx[best] += 1
    return out

class Gen:
    def __init__(self, stamps=False, noflags=False, exp=""):
        self.exp = set(exp.split(",")) if exp else set()
        self.a = Asm()
        self.stamps = stamps
        self.noflags = noflags
        self.relax_ln = "relax_ln" in self.exp
        self.stampset = None
        self.h2n = 75
        self.XR, self.OA = (84, 96) if 'xearly' in self.exp else (240, 244)
        self.h1j = 0
        self.w2p1 = 7
        for e in self.exp:
            if e.startswith('p1='): self.w2p1 = int(e[3:])
        for e in self.exp:
            if e.startswith('h1j='): self.h1j = int(e[4:])
        self.w2j = 0
        self.w2s = 'w2s' in self.exp
        self.KS = 4096 if self.w2s else 32768
        self.pf2j = 0
        for e in self.exp:
            if e.startswith('pj='): self.pf2j = int(e[3:])
            if e.startswith('h2n='): self.h2n = int(e[4:])
        self.hwin = 22; self.hper = 6; self.hinit = 12
        for e in self.exp:
            if e.startswith('hw='): self.hwin, self.hper, self.hinit = [int(x) for x in e[3:].split('+')]
        for e in self.exp:
            if e.startswith("st="):
                self.stampset = set(int(x) for x in e[3:].split("+"))

    def stamp(self, idx):
        if not self.stamps: return
        if self.stampset is not None and idx not in self.stampset: return
        a = self.a
        a("s_memrealtime s[4:5]")
        if "clk" in self.exp and idx in (14, 2, 4, 16):
            a("s_memtime s[6:7]")
        a.lg0()
        a("v_writelane_b32 v255, s4, %d" % idx)
        if "clk" in self.exp and idx in (14, 2, 4, 16):
            a("v_writelane_b32 v255, s6, %d" % {14: 29, 2: 30, 4: 31, 16: 15}[idx])

    def dump_stamps(self):
        if not self.stamps: return
        a = self.a
        if "entry" in self.exp:
            a("v_writelane_b32 v255, s90, 31")
        if "dbgst" in self.exp:
            sk = a.newlabel("L_ds")
            a("s_or_b32 s4, s2, s%d" % sW)
            a("s_cmp_lg_u32 s4, 0")
            a("s_cbranch_scc1 %s" % sk)
            a("v_readlane_b32 s4, v255, 0")
            a("s_nop 3")
            a("v_subrev_u32 v3, s4, v255")
            order = [12, 10, 14, 2, 4, 16, 17, 18, 7, 8, 9]
            for k, i in enumerate(order):
                a("v_readlane_b32 s5, v3, %d" % i)
                a("s_nop 3")
                a("v_mov_b32 v4, s5")
                a("v_mov_b32 v5, %d" % (4 * (k + 1)))
                a("s_mov_b64 exec, 1")
                a("buffer_store_dword v4, v5, s[%d:%d], 0 offen" % (S_DBG, S_DBG + 3))
                a("s_mov_b64 exec, -1")
            a.label(sk)
        a("s_lshl_b32 s%d, s2, 3" % sT0)
        a("s_add_u32 s%d, s%d, s%d" % (sT0, sT0, sW))
        a("s_lshl_b32 s%d, s%d, 7" % (sT0, sT0))
        a("s_add_u32 s%d, s%d, 0x%x" % (sT0, sT0, WS_STAMP))
        a("v_lshlrev_b32 v2, 2, v1")
        a("v_add_u32 v2, s%d, v2" % sT0)
        a("s_mov_b32 exec_lo, -1")
        a("s_mov_b32 exec_hi, 0")
        a("buffer_store_dword v255, v2, s[%d:%d], 0 offen" % (S_WS, S_WS + 3))
        a("s_mov_b64 exec, -1")

    def run(self, x):
        if callable(x): x()
        else: self.a(x)

    def spread(self, seq, extra):
        a = self.a
        if not extra:
            for x in seq: self.run(x)
            return
        step = max(1, len(seq) // (len(extra) + 1))
        k = 0
        for i, ins in enumerate(seq):
            self.run(ins)
            if (i + 1) % step == 0 and k < len(extra):
                self.run(extra[k]); k += 1
        while k < len(extra):
            self.run(extra[k]); k += 1

    def map_rc(self):
        a = self.a
        if "map42" in self.exp:
            a("s_and_b32 s%d, s2, 3" % sR)
            a("s_lshl_b32 s%d, s%d, 3" % (sR, sR))
            a("s_bfe_u32 s3, s2, 0x30003")
            a("s_add_u32 s%d, s%d, s3" % (sR, sR))
            a("s_bfe_u32 s%d, s2, 0x10002" % sC)
            a("s_lshl_b32 s%d, s%d, 2" % (sC, sC))
            a("s_lshr_b32 s3, s2, 6")
            a("s_add_u32 s%d, s%d, s3" % (sC, sC))
        else:
            a("s_and_b32 s%d, s2, 7" % sR)
            a("s_lshr_b32 s3, s2, 6")
            a("s_lshl_b32 s3, s3, 3")
            a("s_add_u32 s%d, s%d, s3" % (sR, sR))
            a("s_bfe_u32 s%d, s2, 0x30003" % sC)

    def rot_calc(self):
        a = self.a
        if "map42" in self.exp:
            a("s_lshl_b32 s%d, s%d, 1" % (sT0, sC))
            a("s_add_u32 s%d, s%d, s%d" % (sT0, sT0, sR))
            a("s_and_b32 s%d, s%d, 7" % (sROT, sT0))
        else:
            a("s_lshr_b32 s%d, s%d, 3" % (sT0, sR))
            a("s_lshl_b32 s%d, s%d, 1" % (sT0, sT0))
            a("s_add_u32 s%d, s%d, s%d" % (sT0, sT0, sC))
            a("s_add_u32 s%d, s%d, s%d" % (sT0, sT0, sR))
            a("s_and_b32 s%d, s%d, 7" % (sROT, sT0))
        if "norot" in self.exp: a("s_mov_b32 s%d, 0" % sROT)

    def p0(self):
        a = self.a
        if self.stamps and "entry" in self.exp:
            a("s_memrealtime s[90:91]")
        a("s_load_dwordx8 s[64:71], s[0:1], 0")
        a("s_cmp_ge_u32 s2, 256")
        a("s_cbranch_scc1 L_end")
        if self.stamps: a("v_mov_b32 v255, 0")
        a("v_lshrrev_b32 v2, 6, v0")
        a("v_and_b32 v1, 63, v0")
        if "codepf0" in self.exp:
            a("s_getpc_b64 s[82:83]")
            a.label("L_pc")
            a("s_sub_u32 s82, s82, L_pc-%s" % KNAME)
            a("s_subb_u32 s83, s83, 0")
            a("v_and_b32 v4, 255, v0")
            a("v_lshlrev_b32 v4, 7, v4")
            a("v_min_u32 v4, L_codeend-%s, v4" % KNAME)
            a("v_mov_b32 v5, s83")
            a("v_add_co_u32 v4, vcc, s82, v4")
            a("v_addc_co_u32 v5, vcc, 0, v5, vcc")
            a.vmem("global_load_dword v244, v[4:5], off", "cpf")
        self.map_rc()
        a("v_readfirstlane_b32 s%d, v2" % sW)
        a("s_mov_b32 s10, 0x200000")
        a("s_mov_b32 s11, 0x00020000")
        a("s_mov_b32 s14, 0x200000")
        a("s_mov_b32 s15, 0x00020000")
        a("s_mov_b32 s18, 0x200000")
        a("s_mov_b32 s19, 0x00020000")
        a("s_movk_i32 s42, 0x1000")
        a("s_mov_b32 s43, 0x00020000")
        a("s_and_b32 s%d, s%d, 3" % (sRW, sW))
        a("s_cmp_ge_u32 s%d, 4" % sW)
        a("s_cbranch_scc1 L_Hfirst")

    def p0_rest(self):
        a = self.a
        for dst, off in ((S_W1, 56), (S_SSM, 32), (S_WS, 88), (S_DBG, 80), (S_W2, 64), (S_OUT, 72), (sDP, 40)):
            a("s_load_dwordx2 s[%d:%d], s[0:1], %d" % (dst, dst + 1, off))
        for dst, size in ((S_W1, 1409024), (S_SSM, 2097152), (S_WS, WS_SIZE), (S_DBG, 256), (S_W2, 1409024), (S_OUT, 2097152)):
            a("s_mov_b32 s%d, 0x%x" % (dst + 2, size))
            a("s_mov_b32 s%d, 0x00020000" % (dst + 3))
        if "dshift" in self.exp:
            a("s_add_u32 s%d, s%d, 1" % (sD, sC))
            a("s_and_b32 s%d, s%d, 7" % (sD, sD))
        else:
            a("s_mov_b32 s%d, s%d" % (sD, sC))
        a("s_lshl_b32 s%d, s%d, 5" % (sID, sC))
        a("s_add_u32 s%d, s%d, s%d" % (sID, sID, sR))
        a("s_mul_i32 s%d, s%d, 6" % (sBP, sC))
        a("s_sub_i32 s%d, s%d, 3" % (sT0, sC))
        a("s_max_i32 s%d, s%d, 0" % (sT0, sT0))
        a("s_sub_u32 s%d, s%d, s%d" % (sBP, sBP, sT0))
        a("s_lshl_b32 s%d, s%d, 5" % (sF0, sBP))
        a("s_cmp_lt_u32 s%d, 3" % sC)
        a("s_cselect_b32 s%d, 12, 10" % sNB)
        a("v_mov_b32 v%d, 0xffff" % vMLO)
        a("v_mov_b32 v%d, 0xffff0000" % vMHI)
        a("v_mov_b32 v%d, 0x3f80" % vONELO)
        a("v_mov_b32 v%d, 0x3f800000" % vONEHI)
        a("v_mov_b32 v%d, 0x3f803f80" % vONES)
        a("s_mov_b32 s%d, 0x05040100" % sP0)
        a("s_mov_b32 s%d, 0x07060302" % sP1)
        a("v_and_b32 v3, 15, v0")
        a("v_lshlrev_b32 v3, 2, v3")
        a("v_add_u32 v3, %d, v3" % L_SYNC)
        a("v_mov_b32 v4, 0")
        a("ds_write_b32 v3, v4")

    def w1_dma_ops(self, j):
        a = self.a
        slot = j % NW1
        ops = []
        def head():
            a("s_add_u32 s%d, s%d, %d" % (sT1, sROT, j))
            a("s_and_b32 s%d, s%d, 7" % (sT1, sT1))
            a("s_mul_i32 s%d, s%d, %d" % (sT1, sT1, 64 * 2752))
            a("s_add_u32 m0, s%d, %d" % (sM0B, slot * W1_SLOT))
            a.vmem("buffer_load_dwordx4 v12, s[%d:%d], s%d offen lds" % (S_W1, S_W1 + 3, sT1), "w1c%d" % j)
        ops.append(head)
        for i in range(1, 6):
            def nxt(i=i):
                a("s_add_u32 m0, s%d, %d" % (sM0B, slot * W1_SLOT + 1024 * i))
                a.vmem("buffer_load_dwordx4 v%d, s[%d:%d], s%d offen lds" % (12 + i, S_W1, S_W1 + 3, sT1), "w1c%d" % j)
            ops.append(nxt)
        return ops

    def w1_voffs(self):
        a = self.a
        V = 12
        a("s_mul_i32 s%d, s%d, %d" % (sT0, sRW, 16 * 2752))
        a("s_lshl_b32 s%d, s%d, 1" % (sT1, sF0))
        a("s_add_u32 s%d, s%d, s%d" % (sT0, sT0, sT1))
        a("s_lshl_b32 s%d, s%d, 1" % (sT1, sNB))
        a("v_mov_b32 v7, 0x40000000")
        for i in range(6):
            a("v_add_u32 v2, %d, v1" % (64 * i))
            a("v_mul_u32_u24 v3, 2731, v2")
            a("v_lshrrev_b32 v3, 16, v3")
            a("v_mul_u32_u24 v4, 24, v3")
            a("v_sub_u32 v4, v2, v4")
            a("v_and_b32 v5, 2, v3")
            a("v_lshrrev_b32 v6, 1, v3")
            a("v_and_b32 v6, 4, v6")
            a("v_or_b32 v5, v5, v6")
            a("v_xor_b32 v4, v4, v5")
            a("v_mul_u32_u24 v5, 2752, v3")
            a("v_lshl_add_u32 v5, v4, 4, v5")
            a("v_add_u32 v5, s%d, v5" % sT0)
            a("v_cmp_gt_u32 vcc, s%d, v4" % sT1)
            a("v_cndmask_b32 v%d, v7, v5, vcc" % (V + i))
        a("s_mul_i32 s%d, s%d, %d" % (sM0B, sRW, 16 * 384))
        a("s_add_u32 s%d, s%d, %d" % (sM0B, sM0B, L_W1))

    def line_prefetch(self, which, vd):
        a = self.a
        a("s_lshr_b32 s%d, s2, 3" % sT0)
        a("v_and_b32 v2, 255, v0")
        if "map42" not in self.exp:
            srd = S_W1 if which == "w1" else S_W2
            a("s_mul_i32 s%d, s%d, %d" % (sT0, sT0, 344 * 128))
            a("v_lshlrev_b32 v3, 7, v2")
            a("v_add_u32 v3, s%d, v3" % sT0)
            a.vmem("buffer_load_dword v%d, v3, s[%d:%d], 0 offen" % (vd, srd, srd + 3), "pf")
            a("v_cmp_gt_u32 vcc, %d, v2" % (344 - 256))
            a("v_add_u32 v3, 32768, v3")
            a("v_mov_b32 v4, 0x40000000")
            a("v_cndmask_b32 v3, v4, v3, vcc")
            a.vmem("buffer_load_dword v%d, v3, s[%d:%d], 0 offen" % (vd + 1, srd, srd + 3), "pf")
        elif which == "w2":
            a("s_mul_i32 s%d, s%d, 43" % (sT0, sT0))
            a("s_bfe_u32 s%d, s2, 0x10002" % sT1)
            a("s_lshl_b32 s%d, s%d, 9" % (sT1, sT1))
            a("s_lshl_b32 s%d, s%d, 10" % (sT0, sT0))
            a("s_add_u32 s%d, s%d, s%d" % (sT0, sT0, sT1))
            a("v_lshrrev_b32 v3, 2, v2")
            a("v_lshlrev_b32 v3, 10, v3")
            a("v_and_b32 v4, 3, v2")
            a("v_lshl_add_u32 v3, v4, 7, v3")
            a("v_add_u32 v3, s%d, v3" % sT0)
            a("v_cmp_gt_u32 vcc, 172, v2")
            a("v_mov_b32 v4, 0x40000000")
            a("v_cndmask_b32 v3, v4, v3, vcc")
            a.vmem("buffer_load_dword v%d, v3, s[%d:%d], 0 offen" % (vd, S_W2, S_W2 + 3), "pf")
        else:
            a("s_lshl_b32 s%d, s%d, 4" % (sT0, sT0))
            a("s_mul_i32 s%d, s%d, 2752" % (sT0, sT0))
            a("s_bfe_u32 s%d, s2, 0x10002" % sT1)
            a("s_mul_i32 s%d, s%d, 1472" % (sT1, sT1))
            a("s_add_u32 s%d, s%d, s%d" % (sT0, sT0, sT1))
            a("v_mul_u32_u24 v3, 5462, v2")
            a("v_lshrrev_b32 v3, 16, v3")
            a("v_mul_u32_u24 v4, 12, v3")
            a("v_sub_u32 v4, v2, v4")
            a("v_mul_u32_u24 v3, 2752, v3")
            a("v_lshl_add_u32 v3, v4, 7, v3")
            a("v_add_u32 v3, s%d, v3" % sT0)
            a("v_cmp_gt_u32 vcc, 192, v2")
            a("v_mov_b32 v4, 0x40000000")
            a("v_cndmask_b32 v3, v4, v3, vcc")
            a.vmem("buffer_load_dword v%d, v3, s[%d:%d], 0 offen" % (vd, S_W1, S_W1 + 3), "pf")

    def w1_tail_prefetch(self, vd):
        a = self.a
        a("s_lshr_b32 s%d, s2, 3" % sT0)
        a("s_mul_i32 s%d, s%d, 10" % (sT0, sT0))
        a("s_add_u32 s%d, s%d, 192" % (sT0, sT0))
        a("s_mul_i32 s%d, s%d, 2752" % (sT0, sT0))
        a("s_bfe_u32 s%d, s2, 0x10002" % sT1)
        a("s_mul_i32 s%d, s%d, 1472" % (sT1, sT1))
        a("s_add_u32 s%d, s%d, s%d" % (sT0, sT0, sT1))
        a("v_and_b32 v2, 255, v0")
        a("v_mul_u32_u24 v3, 5462, v2")
        a("v_lshrrev_b32 v3, 16, v3")
        a("v_mul_u32_u24 v4, 12, v3")
        a("v_sub_u32 v4, v2, v4")
        a("v_mul_u32_u24 v3, 2752, v3")
        a("v_lshl_add_u32 v3, v4, 7, v3")
        a("v_add_u32 v3, s%d, v3" % sT0)
        a("v_cmp_gt_u32 vcc, 120, v2")
        a("v_mov_b32 v4, 0x40000000")
        a("v_cndmask_b32 v3, v4, v3, vcc")
        a.vmem("buffer_load_dword v%d, v3, s[%d:%d], 0 offen" % (vd, S_W1, S_W1 + 3), "pf")

    def m_front(self):
        a = self.a
        a("v_lshrrev_b32 v3, 5, v0")
        a("v_and_b32 v4, 31, v0")
        a("s_lshl_b32 s%d, s%d, 16" % (sT0, sR))
        a("s_lshl_b32 s%d, s%d, 7" % (sT1, sC))
        a("s_add_u32 s%d, s%d, s%d" % (sT0, sT0, sT1))
        a("v_lshlrev_b32 v2, 13, v3")
        a("v_lshl_add_u32 v2, v4, 2, v2")
        a("v_add_u32 v2, s%d, v2" % sT0)
        a("v_add_u32 v5, 0xfffff400, v2")
        a("v_add_u32 v6, 0xfffff800, v2")
        a("v_add_u32 v7, 0xfffffc00, v2")
        a("v_add_u32 v8, 4096, v2")
        a("s_lshl_b32 s%d, s%d, 9" % (sT2, sC))
        a("v_lshlrev_b32 v9, 4, v4")
        a("v_add_u32 v9, s%d, v9" % sT2)
        a.lg0()
        a("s_mov_b64 s[12:13], s[66:67]")
        a("s_mov_b64 s[16:17], s[68:69]")
        a("s_mov_b64 s[40:41], s[70:71]")
        a("s_mov_b64 s[8:9], s[64:65]")
        if self.stamps:
            a("s_memrealtime s[4:5]"); a.lg0(); a("v_writelane_b32 v255, s4, 0")
        K, V, SH = 20, 32, 40
        if "noprep" in self.exp:
            a.vm.issue("prep")
        else:
          for t, r in enumerate((5, 6, 7)):
            a.vmem("buffer_load_dword v%d, v%d, s[%d:%d], 0 offen" % (K + t, r, S_K, S_K + 3), "prep")
          for t in range(8):
            a.vmem("buffer_load_dword v%d, v%d, s[%d:%d], 0 offen offset:%d" % (K + 3 + t, 2 if t < 4 else 8, S_K, S_K + 3, 1024 * (t & 3)), "prep")
          a.vmem("buffer_load_dwordx4 v[40:43], v9, s[%d:%d], 0 offen" % (S_SH, S_SH + 3), "prep")
          for t in range(8):
            a.vmem("buffer_load_dword v%d, v%d, s[%d:%d], 0 offen offset:%d" % (V + t, 2 if t < 4 else 8, S_V, S_V + 3, 1024 * (t & 3)), "prep")
        a("s_branch L_Mrest")
        self.h_first()
        a.label("L_Mrest")
        a.vm = self.vm_m_first
        self.rot_calc()
        self.p0_rest()
        a("s_waitcnt lgkmcnt(0)")
        a("s_barrier")
        if "pfM" in self.exp:
            self.line_prefetch("w1", 240)
        if not self.noflags:
            a("s_or_b32 s%d, s2, s%d" % (sT1, sW))
            a("s_cmp_lg_u32 s%d, 0" % sT1)
            a("s_cbranch_scc1 L_nononce")
            a("s_memrealtime s[4:5]")
            a("s_waitcnt lgkmcnt(0)")
            a("s_or_b32 s4, s4, 1")
            a("v_mov_b32 v2, s4")
            a("v_mov_b32 v3, 0")
            a("s_mov_b64 exec, 1")
            a("buffer_store_dword v2, v3, s[%d:%d], 0 offen sc1" % (S_DBG, S_DBG + 3))
            a("s_mov_b64 exec, -1")
            a.label("L_nononce")
        if "flagpf" in self.exp:
            a("s_lshl_b32 s%d, s%d, 7" % (sT0, sID))
            a("s_lshl_b32 s%d, s%d, 3" % (sT1, sR))
            a("s_add_u32 s%d, s%d, s%d" % (sT1, sT1, sC))
            a("s_lshl_b32 s%d, s%d, 7" % (sT1, sT1))
            a("s_add_u32 s%d, s%d, 0x%x" % (sT2, sT0, F_H1))
            a("v_mov_b32 v2, s%d" % sT2)
            a("s_add_u32 s%d, s%d, 0x%x" % (sT2, sT1, F_H2))
            a("v_writelane_b32 v2, s%d, 1" % sT2)
            a("s_add_u32 s%d, s%d, 0x%x" % (sT2, sT0, F_H3))
            a("v_writelane_b32 v2, s%d, 2" % sT2)
            a("s_mov_b64 exec, 7")
            a.vmem("buffer_load_dword v243, v2, s[%d:%d], 0 offen" % (S_WS, S_WS + 3), "pf")
            a("s_mov_b64 exec, -1")
        self.w1_voffs()
        self.m_gemm1_setup()
        a("s_lshl_b32 s%d, s%d, 7" % (sT0, sC))
        a("s_lshl_b32 s%d, s%d, 2" % (sT1, sR))
        a("s_add_u32 s%d, s%d, s%d" % (sT0, sT0, sT1))
        a("s_load_dword s%d, s[%d:%d], s%d" % (sDD, sDP, sDP + 1, sT0))

    def m_gemm1_setup(self):
        a = self.a
        AX = 8; AW = [9, 10, 11]
        a("v_and_b32 v2, 15, v1")
        a("v_lshrrev_b32 v3, 4, v1")
        a("v_lshlrev_b32 v4, 1, v3")
        a("v_xor_b32 v4, v2, v4")
        a("v_lshlrev_b32 v4, 4, v4")
        a("v_lshl_add_u32 v%d, v3, 8, v4" % AX)
        a("v_lshrrev_b32 v5, 2, v2")
        a("v_lshl_add_u32 v4, v3, 3, v5")
        a("v_mul_u32_u24 v4, 384, v4")
        a("v_and_b32 v6, 3, v1")
        a("v_lshl_add_u32 v4, v6, 3, v4")
        a("v_lshrrev_b32 v5, 1, v5")
        a("v_and_b32 v6, 1, v3")
        a("v_lshl_add_u32 v5, v6, 1, v5")
        a("s_mul_i32 s%d, s%d, 3" % (sT0, sRW))
        for b in range(3):
            a("s_add_u32 s%d, s%d, %d" % (sT1, sT0, b))
            a("v_xor_b32 v6, s%d, v5" % sT1)
            a("v_lshl_add_u32 v6, v6, 5, v4")
            a("v_add_u32 v%d, %d, v6" % (AW[b], L_W1))
        a("v_lshlrev_b32 v5, 4, v2")
        a("v_lshrrev_b32 v4, 1, v3")
        a("v_lshl_add_u32 v5, v4, 8, v5")
        a("v_and_b32 v4, 1, v3")
        if "st16" in self.exp:
            a("v_mul_u32_u24 v4, 44032, v4")
            a("v_add_u32 v5, v5, v4")
        else:
            a("v_lshl_add_u32 v5, v4, 3, v5")
        a("s_lshr_b32 s%d, s%d, 4" % (sBP, sF0))
        a("s_mul_i32 s%d, s%d, %d" % (sT0, sR, 4 * 44032))
        a("s_mul_i32 s%d, s%d, 3" % (sT1, sRW))
        a("s_add_u32 s%d, s%d, s%d" % (sT2, sT1, sBP))
        a("s_lshl_b32 s%d, s%d, 9" % (sT2, sT2))
        a("s_add_u32 s%d, s%d, s%d" % (sT0, sT0, sT2))
        a("s_add_u32 s%d, s%d, 0x%x" % (sT0, sT0, WS_H))
        a("v_add_u32 v168, s%d, v5" % sT0)
        for tb in range(1, 4):
            a("v_add_u32 v%d, %d, v168" % (168 + tb, 44032 * tb))
        for b, sr_ in ((1, sINV1), (2, sINV2)):
            a("s_add_u32 s%d, s%d, %d" % (sT2, sT1, b))
            a("s_cmp_lt_u32 s%d, s%d" % (sT2, sNB))
            a("s_cselect_b32 s%d, 0, 0x40000000" % sr_)

    def m_prep(self):
        a = self.a
        K, V, SH = 20, 32, 40
        WL, WH = 44, 48
        PL, PH = 52, 56
        PP, AC = 60, 64
        TA, TB = 68, 72
        KV = 76
        OUT = 92
        dma = []
        if "V2" in self.exp:
            for f in self.w1_dma_ops(0) + self.w1_dma_ops(1): f()
        if "V4" in self.exp:
            for f in self.w1_dma_ops(0): f()
            dma = self.w1_dma_ops(1) + self.w1_dma_ops(2)
        if "V5" in self.exp:
            for f in self.w1_dma_ops(0) + self.w1_dma_ops(1): f()
            dma = self.w1_dma_ops(2)
        if "pfWa" in self.exp: self.w1_tail_prefetch(241)
        if "noprep" in self.exp:
            a.vm.issue("kvt")
            if not self.noflags:
                a("v_mov_b32 v7, 0")
                a.vmem("buffer_load_dword v19, v7, s[%d:%d], 0 offen sc1" % (S_DBG, S_DBG + 3), "nonce")
            for f in self.w1_dma_ops(2): f()
            return
        a.wait_vm("prep")
        self.stamp(12)
        seq = []; e = seq.append
        e("v_and_b32 v%d, v%d, v%d" % (WL + 0, vMLO, SH + 0)); e("v_lshrrev_b32 v%d, 16, v%d" % (WL + 1, SH + 0))
        e("v_and_b32 v%d, v%d, v%d" % (WL + 2, vMLO, SH + 1)); e("v_lshrrev_b32 v%d, 16, v%d" % (WL + 3, SH + 1))
        e("v_lshlrev_b32 v%d, 16, v%d" % (WH + 0, SH + 2)); e("v_and_b32 v%d, v%d, v%d" % (WH + 1, vMHI, SH + 2))
        e("v_lshlrev_b32 v%d, 16, v%d" % (WH + 2, SH + 3)); e("v_and_b32 v%d, v%d, v%d" % (WH + 3, vMHI, SH + 3))
        for hb in range(2):
            r0 = 4 * hb
            if "relax_prep" in self.exp:
                for r in range(4):
                    e("v_dot2_f32_bf16 v%d, v%d, v%d, 0" % (PL + r, K + r0 + r, WL + 3))
                    e("v_dot2_f32_bf16 v%d, v%d, v%d, 0" % (PH + r, K + r0 + r, WH + 3))
                for j in (2, 1, 0):
                    for r in range(4):
                        e("v_dot2_f32_bf16 v%d, v%d, v%d, v%d" % (PL + r, K + 3 + r0 + r - j, WL + j, PL + r))
                        e("v_dot2_f32_bf16 v%d, v%d, v%d, v%d" % (PH + r, K + 3 + r0 + r - j, WH + j, PH + r))
                for r in range(4):
                    e("v_cvt_pk_bf16_f32 v%d, v%d, v%d" % (AC + r, PL + r, PH + r))
            else:
                for j in (3, 2, 1, 0):
                    for r in range(4):
                        e("v_dot2_f32_bf16 v%d, v%d, v%d, 0" % (PL + r, K + 3 + r0 + r - j, WL + j))
                        e("v_dot2_f32_bf16 v%d, v%d, v%d, 0" % (PH + r, K + 3 + r0 + r - j, WH + j))
                    dstp = AC if j == 3 else PP
                    for r in range(4):
                        e("v_cvt_pk_bf16_f32 v%d, v%d, v%d" % (dstp + r, PL + r, PH + r))
                    if j != 3:
                        for r in range(4):
                            e("v_perm_b32 v%d, v%d, v%d, s%d" % (TA + r, PP + r, AC + r, sP0))
                            e("v_perm_b32 v%d, v%d, v%d, s%d" % (TB + r, PP + r, AC + r, sP1))
                        for r in range(4):
                            e("v_dot2_f32_bf16 v%d, v%d, v%d, 0" % (PL + r, TA + r, vONES))
                            e("v_dot2_f32_bf16 v%d, v%d, v%d, 0" % (PH + r, TB + r, vONES))
                        for r in range(4):
                            e("v_cvt_pk_bf16_f32 v%d, v%d, v%d" % (AC + r, PL + r, PH + r))
            for r in range(4):
                e("v_and_b32 v%d, v%d, v%d" % (TA + r, vMLO, V + r0 + r))
                e("v_and_b32 v%d, v%d, v%d" % (TB + r, vMHI, V + r0 + r))
            for r in range(4):
                e("v_dot2_f32_bf16 v%d, v%d, v%d, 0" % (KV + r0 + r, AC + r, TA + r))
                e("v_dot2_f32_bf16 v%d, v%d, v%d, 0" % (KV + 8 + r0 + r, AC + r, TB + r))
        e("v_and_b32 v2, 31, v0"); e("v_mul_u32_u24 v2, 288, v2"); e("v_lshrrev_b32 v3, 5, v0"); e("v_lshlrev_b32 v3, 4, v3")
        e("v_sub_u32 v2, v2, v3"); e("v_add_u32 v2, %d, v2" % (L_PREP + 112))
        for ch in range(2):
            for d in range(4):
                e("v_cvt_pk_bf16_f32 v%d, v%d, v%d" % (OUT + 4 * ch + d, KV + 8 * ch + 7 - 2 * d, KV + 8 * ch + 6 - 2 * d))
        self.spread(seq, dma)
        self.stamp(20)
        a("ds_write_b128 v2, v[%d:%d]" % (OUT, OUT + 3))
        a("ds_write_b128 v2, v[%d:%d] offset:144" % (OUT + 4, OUT + 7))
        a("v_lshrrev_b32 v2, 3, v0")
        a("v_and_b32 v3, 7, v0")
        a("v_mul_u32_u24 v4, 144, v2")
        a("v_lshl_add_u32 v4, v3, 4, v4")
        a("v_add_u32 v4, %d, v4" % L_PREP)
        a("s_lshl_b32 s%d, s%d, 18" % (sT0, sC))
        a("s_lshl_b32 s%d, s%d, 7" % (sT1, sR))
        a("s_sub_u32 s%d, s%d, s%d" % (sT0, sT0, sT1))
        a("s_add_u32 s%d, s%d, %d" % (sT0, sT0, WS_KVT + 3968))
        a("v_lshlrev_b32 v5, 12, v2")
        a("v_lshl_add_u32 v5, v3, 4, v5")
        a("v_add_u32 v5, s%d, v5" % sT0)
        a("v_add_u32 v6, %d, v5" % (32 * 4096))
        if "dmafirst" in self.exp:
            for f in self.w1_dma_ops(0) + self.w1_dma_ops(1) + self.w1_dma_ops(2): f()
            self.stamp(15)
        self.m_sync(13, va=2, vb=3)
        a("ds_read_b128 v[92:95], v4")
        a("ds_read_b128 v[96:99], v4 offset:%d" % (32 * 144))
        a.lg0()
        a.vmem("buffer_store_dwordx4 v[92:95], v5, s[%d:%d], 0 offen sc1" % (S_WS, S_WS + 3), "kvt")
        a.vmem("buffer_store_dwordx4 v[96:99], v6, s[%d:%d], 0 offen sc1" % (S_WS, S_WS + 3), "kvt")
        if not self.noflags:
            a("v_mov_b32 v7, 0")
            a.vmem("buffer_load_dword v19, v7, s[%d:%d], 0 offen sc1" % (S_DBG, S_DBG + 3), "nonce")
        if "pfWb" in self.exp: self.w1_tail_prefetch(241)
        if "dmafirst" not in self.exp:
            self.stamp(15)
            if "V3" in self.exp: lst = self.w1_dma_ops(2) + self.w1_dma_ops(3)
            elif "V2" in self.exp: lst = self.w1_dma_ops(2)
            elif "V4" in self.exp or "V5" in self.exp: lst = []
            else: lst = self.w1_dma_ops(0) + self.w1_dma_ops(1) + self.w1_dma_ops(2)
            for f in lst: f()

    def m_gemm1(self):
        a = self.a
        ACC = 20
        BUF = [68, 96, 124]
        AX = 8; AW = [9, 10, 11]
        UREG = 152
        for i in range(48):
            a("v_mov_b32 v%d, 0" % (ACC + i))

        def read_ops(ks):
            buf = BUF[ks % 3]
            j = ks >> 1; ksl = ks & 1; slot = j % NW1
            pre = []
            if ksl == 0 and j > 0:
                d = W1_SLOT if slot != 0 else -(NW1 - 1) * W1_SLOT
                for b in range(3):
                    pre.append("v_add_u32 v%d, %d, v%d" % (AW[b], d & 0xffffffff, AW[b]))
            so = ksl * 32 * 384
            def rx(t):
                return lambda: a.lds("ds_read_b128 v[%d:%d], v%d offset:%d" % (buf + 4 * t, buf + 4 * t + 3, AX, L_XN + (j % NXN) * 8192 + t * 2048 + ksl * 1024), "x%d_%d" % (ks, t))
            def rw(b, hh):
                r0 = buf + 16 + 4 * b + 2 * hh
                return lambda: a.lds("ds_read_b64_tr_b16 v[%d:%d], v%d offset:%d" % (r0, r0 + 1, AW[b], so + hh * 4 * 384), "w%d_%d" % (ks, b))
            if "mnoreads" in self.exp: return pre
            return pre + [rw(0, 0), rw(0, 1), rx(0), rx(1), rx(2), rx(3), rw(1, 0), rw(1, 1), rw(2, 0), rw(2, 1)]

        def mfma_ops(ks):
            cur = BUF[ks % 3]
            ops = []
            for b in range(3):
                for t in range(4):
                    def f(b=b, t=t):
                        if "finewait" in self.exp:
                            a.need_lds("w%d_%d" % (ks, b), "x%d_%d" % (ks, t))
                        elif b == 0 and t == 0:
                            a.need_lds(*(["w%d_%d" % (ks, bb) for bb in range(3)] + ["x%d_%d" % (ks, tt) for tt in range(4)]))
                        acc = ACC + (b * 4 + t) * 4
                        if "mnomfma" in self.exp: return
                        a("v_mfma_f32_16x16x32_bf16 v[%d:%d], v[%d:%d], v[%d:%d], v[%d:%d]" % (
                            acc, acc + 3, cur + 16 + 4 * b, cur + 19 + 4 * b, cur + 4 * t, cur + 4 * t + 3, acc, acc + 3))
                    ops.append(f)
            return ops

        if not self.noflags and "V1" in self.exp: self.publish_h1()
        if "V3" not in self.exp: a.wait_vm("w1c1")
        a("s_barrier")
        self.stamp(14)
        for f in read_ops(0): self.run(f)
        if self.h1j == 0 and not self.noflags and "V1" not in self.exp:
            q_l = (list(a.lg.q), a.lg_done)
            self.publish_h1()
        for f in read_ops(1)[:5]: self.run(f)
        pend = read_ops(1)[5:]
        for j in range(8):
            if j >= 1 and j <= 6:
                if not ("mnodma" in self.exp and j + 1 >= 3) and "novmw" not in self.exp: a.wait_vm("w1c%d" % (j + 1))
                a("s_barrier")
                if "itst" in self.exp: self.stamp(22 + j)
                if j == self.h1j and not self.noflags and "V1" not in self.exp: self.publish_h1()
            dm = self.w1_dma_ops(j + 4) if (j + 4 <= 7) else []
            if j == 0 and "V3" not in self.exp: dm = self.w1_dma_ops(3) + dm
            if "mnodma" in self.exp:
                for _ in dm: a.vm.issue("dummy")
                dm = []
            ex = []
            for half in range(2):
                ks = 2 * j + half
                fill = list(pend); pend = []
                if ks + 2 <= 15:
                    fill += read_ops(ks + 2)
                hlf = (len(dm) + 1) // 2
                extra = (dm[:hlf] + ex if half == 0 else dm[hlf:])
                interleave(a, mfma_ops(ks), merge(fill, extra))
        a.lg0()
        self.stamp(2)
        HB = 68
        for i in range(12):
            a("v_cvt_pk_bf16_f32 v%d, v%d, v%d" % (HB + 2 * i, ACC + 4 * i, ACC + 4 * i + 1))
            a("v_cvt_pk_bf16_f32 v%d, v%d, v%d" % (HB + 2 * i + 1, ACC + 4 * i + 2, ACC + 4 * i + 3))
        for i in range(24):
            a("v_pk_max_i16 v%d, v%d, 0" % (HB + i, HB + i))
        if "st16" in self.exp:
            for b in range(3):
                for u in range(2):
                    r = HB + 8 * b + 4 * u
                    a("v_permlane16_swap_b32 v%d, v%d" % (r, r + 2))
                    a("v_permlane16_swap_b32 v%d, v%d" % (r + 1, r + 3))
            for b in range(3):
                so = "0" if b == 0 else "s%d" % (sINV1 if b == 1 else sINV2)
                for u in range(2):
                    r = HB + 8 * b + 4 * u
                    a.vmem("buffer_store_dwordx4 v[%d:%d], v%d, s[%d:%d], %s offen offset:%d sc1" % (r, r + 3, 168 + 2 * u, S_WS, S_WS + 3, so, 512 * b), "hst")
        elif "nohst" in self.exp:
            a.vm.issue("hst")
        else:
          for b in range(3):
            so = "0" if b == 0 else "s%d" % (sINV1 if b == 1 else sINV2)
            for t in range(4):
                r = HB + (b * 4 + t) * 2
                a.vmem("buffer_store_dwordx2 v[%d:%d], v%d, s[%d:%d], %s offen offset:%d sc1" % (r, r + 1, 168 + t, S_WS, S_WS + 3, so, 512 * b), "hst")
        if "h2pre" in self.exp and not self.noflags:
            self.publish_h2()
        a("s_barrier")

    def get_nonce(self):
        if self.noflags: return
        a = self.a
        a.wait_vm("nonce")
        lo = a.newlabel("L_nz"); lp = a.newlabel("L_nl")
        a("v_readfirstlane_b32 s%d, v19" % sNONCE)
        a("s_nop 3")
        a("s_cmp_lg_u32 s%d, 0" % sNONCE)
        a("s_cbranch_scc1 %s" % lo)
        a("s_mov_b32 s%d, 0" % sT3)
        a.label(lp)
        a("v_mov_b32 v7, 0")
        a("buffer_load_dword v19, v7, s[%d:%d], 0 offen sc1" % (S_DBG, S_DBG + 3))
        a("s_waitcnt vmcnt(0)")
        a("v_readfirstlane_b32 s%d, v19" % sNONCE)
        a("s_add_u32 s%d, s%d, 1" % (sT3, sT3))
        a("s_cmp_gt_u32 s%d, 100000" % sT3)
        a("s_cbranch_scc1 %s" % lo)
        a("s_cmp_eq_u32 s%d, 0" % sNONCE)
        a("s_cbranch_scc1 %s" % lp)
        a.label(lo)

    def flag_store(self, off_sreg, tag, va=2, vb=3):
        if self.noflags: return
        a = self.a
        a("v_mov_b32 v%d, s%d" % (va, off_sreg))
        a("v_mov_b32 v%d, s%d" % (vb, sNONCE))
        a("s_mov_b64 exec, 1")
        a.vmem("buffer_store_dword v%d, v%d, s[%d:%d], 0 offen sc1" % (vb, va, S_WS, S_WS + 3), tag)
        a("s_mov_b64 exec, -1")

    def publish_h1(self):
        a = self.a
        self.get_nonce()
        if "noprep" in self.exp: return
        a.wait_vm("kvt")
        a("s_lshl_b32 s%d, s%d, 7" % (sT0, sID))
        a("s_lshl_b32 s%d, s%d, 2" % (sT2, sRW))
        a("s_add_u32 s%d, s%d, s%d" % (sT0, sT0, sT2))
        a("s_add_u32 s%d, s%d, 0x%x" % (sT0, sT0, F_H1))
        self.flag_store(sT0, "flag")

    def poll(self, base_sreg, nlanes, width, stride):
        if self.noflags: return
        a = self.a
        lp = a.newlabel("L_poll"); dn = a.newlabel("L_pdone")
        a("v_mul_u32_u24 v2, %d, v1" % stride)
        a("v_add_u32 v2, s%d, v2" % base_sreg)
        a("s_mov_b32 s%d, 0" % sT3)
        if nlanes <= 16: a("s_mov_b64 exec, 0x%x" % ((1 << nlanes) - 1))
        else:
            a("s_mov_b32 exec_lo, -1"); a("s_mov_b32 exec_hi, 0")
        a.label(lp)
        if width == 1:
            a("buffer_load_dword v4, v2, s[%d:%d], 0 offen sc1" % (S_WS, S_WS + 3))
            a("s_waitcnt vmcnt(0)")
            a("v_cmp_ne_u32 vcc, s%d, v4" % sNONCE)
        else:
            a("buffer_load_dwordx4 v[4:7], v2, s[%d:%d], 0 offen sc1" % (S_WS, S_WS + 3))
            a("s_waitcnt vmcnt(0)")
            for i in range(4): a("v_xor_b32 v%d, s%d, v%d" % (4 + i, sNONCE, 4 + i))
            a("v_or3_b32 v4, v4, v5, v6")
            a("v_or_b32 v4, v4, v7")
            a("v_cmp_ne_u32 vcc, 0, v4")
        a("s_add_u32 s%d, s%d, 1" % (sT3, sT3))
        a("s_cmp_gt_u32 s%d, 100000" % sT3)
        a("s_cbranch_scc1 %s" % dn)
        a("s_cbranch_vccnz %s" % lp)
        a.label(dn)
        a("s_mov_b64 exec, -1")

    def lds_wait(self, addr_sreg, val=1, va=16, vb=17):
        a = self.a
        lp = a.newlabel("L_ps"); dn = a.newlabel("L_psd")
        a("v_mov_b32 v%d, s%d" % (va, addr_sreg))
        a("s_mov_b32 s%d, 0" % sT3)
        a.label(lp)
        a("ds_read_b32 v%d, v%d" % (vb, va))
        a("s_waitcnt lgkmcnt(0)")
        a("v_readfirstlane_b32 s4, v%d" % vb)
        a("s_add_u32 s%d, s%d, 1" % (sT3, sT3))
        a("s_cmp_ge_u32 s4, %d" % val)
        a("s_cbranch_scc1 %s" % dn)
        a("s_cmp_lt_u32 s%d, 1000000" % sT3)
        a("s_cbranch_scc1 %s" % lp)
        a.label(dn)
        a.lg_clear()

    def m_sync(self, word, n=4, va=16, vb=17):
        a = self.a
        a("v_mov_b32 v%d, %d" % (va, L_SYNC + 4 * word))
        a("v_mov_b32 v%d, 1" % vb)
        a.lg0()
        a("s_mov_b64 exec, 1")
        a("ds_add_u32 v%d, v%d" % (va, vb))
        a("s_mov_b64 exec, -1")
        a("s_mov_b32 s5, %d" % (L_SYNC + 4 * word))
        self.lds_wait(5, n, va, vb)

    def pair_sync(self, stage, va=16, vb=17):
        a = self.a
        a("s_lshl_b32 s4, s%d, 2" % sRW)
        a("s_add_u32 s4, s4, %d" % (L_SYNC + 16 * stage))
        a("s_xor_b32 s5, s4, 4")
        a("v_mov_b32 v%d, s4" % va)
        a("v_mov_b32 v%d, 1" % vb)
        a.lg0()
        a("ds_write_b32 v%d, v%d" % (va, vb))
        self.lds_wait(5, 1, va, vb)

    def publish_h2(self):
        a = self.a
        a.wait_vm("hst")
        a("s_lshl_b32 s4, s%d, 3" % sR)
        a("s_add_u32 s4, s4, s%d" % sC)
        a("s_lshl_b32 s4, s4, 7")
        a("s_lshl_b32 s5, s%d, 2" % sRW)
        a("s_add_u32 s4, s4, s5")
        a("s_add_u32 s%d, s4, 0x%x" % (sT2, F_H2))
        self.flag_store(sT2, "flag", 4, 5)

    def m_conv(self):
        a = self.a
        BF, ACC, AF, NA = 20, 148, 180, 16
        AU, AT = 2, 3
        a("v_and_b32 v8, 15, v1")
        a("v_lshrrev_b32 v9, 4, v1")
        a("v_lshlrev_b32 v10, 4, v9")
        a("v_lshlrev_b32 v11, 5, v8")
        a("v_sub_u32 v10, v10, v11")
        a("s_lshr_b32 s%d, s%d, 1" % (sT0, sRW))
        a("s_and_b32 s%d, s%d, 1" % (sT1, sRW))
        a("s_mul_i32 s%d, s%d, %d" % (sT2, sT0, U_CH))
        a("s_add_u32 s%d, s%d, %d" % (sT2, sT2, L_U + 2 * 2032 - 64 * 56))
        a("s_lshl_b32 s4, s%d, 6" % sT1)
        a("s_add_u32 s%d, s%d, s4" % (sT2, sT2))
        a("v_add_u32 v%d, s%d, v10" % (AU, sT2))
        a("v_and_b32 v10, 3, v8")
        a("v_mul_u32_u24 v10, %d, v10" % T_CP)
        a("v_lshrrev_b32 v11, 2, v8")
        a("v_lshl_add_u32 v10, v11, 3, v10")
        a("v_lshl_add_u32 v10, v9, 4, v10")
        a("s_mul_i32 s%d, s%d, %d" % (sT2, sT0, T_CH))
        a("s_add_u32 s%d, s%d, s4" % (sT2, sT2))
        a("s_add_u32 s%d, s%d, %d" % (sT2, sT2, L_T))
        a("v_add_u32 v%d, s%d, v10" % (AT, sT2))
        a("v_lshl_add_u32 v10, v9, 3, v8")
        a("s_lshl_b32 s4, s%d, 5" % sT1)
        a("v_add_u32 v10, s4, v10")
        MK = 12
        for d in range(4):
            a("v_sub_u32 v11, %d, v10" % (15 - 2 * d))
            a("v_med3_i32 v11, v11, 0, 2")
            a("v_lshlrev_b32 v11, 4, v11")
            a("v_mov_b32 v%d, -1" % (MK + d))
            a("v_lshlrev_b32 v16, v11, v%d" % (MK + d))
            a("v_cmp_eq_u32 vcc, 32, v11")
            a("v_cndmask_b32_e64 v%d, v16, 0, vcc" % (MK + d))
        for i in range(32):
            a("v_mov_b32 v%d, 0" % (ACC + i))
        def emit_A(ee):
            r = AF + 4 * (ee % NA)
            a.lds("ds_read_b64 v[%d:%d], v%d offset:%d" % (r, r + 1, AT, 128 * ee), ("A", ee))
            a.lds("ds_read_b64 v[%d:%d], v%d offset:%d" % (r + 2, r + 3, AT, 128 * ee + 8), ("A", ee))
        def emit_B(idx):
            r = BF + 4 * idx
            a.lds("ds_read_b128 v[%d:%d], v%d offset:%d" % (r, r + 3, AU, 128 * idx), ("B", idx))
        sched = []
        for ee in range(32):
            for j in range(7, (ee >> 2) - 1, -1):
                sched.append((ee, j, 28 - 4 * j + ee))
        order = []; seen = set(); last_use_A = {}
        for n, (ee, j, idx) in enumerate(sched):
            for it in (("A", ee), ("B", idx)):
                if it not in seen:
                    seen.add(it); order.append(it)
            last_use_A[ee] = n
        ptr = 0; issued = set()
        def can_issue(item, n):
            if item[0] == "A" and item[1] >= NA:
                return last_use_A[item[1] - NA] < n
            return True
        def issue_next(n_now):
            nonlocal ptr
            if ptr < len(order) and can_issue(order[ptr], n_now):
                it = order[ptr]
                (emit_A if it[0] == "A" else emit_B)(it[1])
                issued.add(it); ptr += 1
                return True
            return False
        def inflight():
            return len(a.lg.q) - a.lg_done
        GRP = 4
        while inflight() < 14 and issue_next(0): pass
        masked = False
        for n, (ee, j, idx) in enumerate(sched):
            while ("A", ee) not in issued or ("B", idx) not in issued:
                assert issue_next(n)
            if not (a.lds_done(("A", ee)) and a.lds_done(("B", idx))):
                tags = [("A", ee), ("B", idx)]
                for (e2, j2, i2) in sched[n + 1:n + GRP]:
                    if ("A", e2) in issued and ("B", i2) in issued: tags += [("A", e2), ("B", i2)]
                    else: break
                a.need_lds(*tags)
            ar = AF + 4 * (ee % NA); br = BF + 4 * idx; acc = ACC + 4 * j
            if ee == 0 and not masked:
                for d in range(4): a("v_and_b32 v%d, v%d, v%d" % (ar + d, MK + d, ar + d))
                masked = True
            a("v_mfma_f32_16x16x32_bf16 v[%d:%d], v[%d:%d], v[%d:%d], v[%d:%d]" % (acc, acc + 3, ar, ar + 3, br, br + 3, acc, acc + 3))
            if inflight() < 14:
                issue_next(n + 1)
                if n < 40 and inflight() < 14: issue_next(n + 1)
            if n == self.h2n and not self.noflags and "h2pre" not in self.exp:
                self.publish_h2()
        self.stamp(16)
        self.pair_sync(0)
        a("v_lshlrev_b32 v4, 4, v1")
        a("s_mul_i32 s%d, s%d, %d" % (sT0, sT0, T_CH))
        a("s_add_u32 s%d, s%d, %d" % (sT0, sT0, L_T + 8))
        a("s_lshl_b32 s%d, s%d, 12" % (sT2, sT1))
        a("s_add_u32 s%d, s%d, s%d" % (sT2, sT2, sT0))
        a("v_add_u32 v5, s%d, v4" % sT2)
        a("s_xor_b32 s%d, s%d, 1" % (sT2, sT1))
        a("s_lshl_b32 s%d, s%d, 12" % (sT2, sT2))
        a("s_add_u32 s%d, s%d, s%d" % (sT2, sT2, sT0))
        a("v_add_u32 v6, s%d, v4" % sT2)
        l0 = a.newlabel("L_cr0"); l1 = a.newlabel("L_cr1")
        a("s_cmp_eq_u32 s%d, 0" % sT1)
        a("s_cbranch_scc1 %s" % l0)
        for i in range(4):
            a("ds_write_b128 v5, v[%d:%d] offset:%d" % (ACC + 4 * i, ACC + 4 * i + 3, 1024 * i))
        for i in range(16):
            a("v_mov_b32 v%d, v%d" % (200 + i, ACC + 16 + i))
        a("s_branch %s" % l1)
        a.label(l0)
        for i in range(4):
            a("ds_write_b128 v5, v[%d:%d] offset:%d" % (ACC + 16 + 4 * i, ACC + 16 + 4 * i + 3, 1024 * i))
        for i in range(16):
            a("v_mov_b32 v%d, v%d" % (200 + i, ACC + i))
        a.label(l1)
        a("v_and_b32 v4, 15, v1")
        a("v_lshrrev_b32 v7, 4, v1")
        a("v_lshlrev_b32 v4, 5, v4")
        a("v_lshl_add_u32 v4, v7, 3, v4")
        a("s_lshr_b32 s%d, s%d, 1" % (sT0, sRW))
        a("s_mul_i32 s%d, s%d, %d" % (sT2, sT0, U_CH))
        a("s_add_u32 s%d, s%d, %d" % (sT2, sT2, L_U + 2 * 2044 - 3 * 512))
        a("s_lshl_b32 s4, s%d, 11" % sT1)
        a("s_sub_u32 s%d, s%d, s4" % (sT2, sT2))
        a("v_sub_u32 v4, s%d, v4" % sT2)
        for i in range(4):
            a("ds_read_b64 v[%d:%d], v4 offset:%d" % (236 + 2 * i, 237 + 2 * i, (3 - i) * 512))
        a("s_and_b32 s4, s%d, 0xffff" % sDD)
        a("s_lshr_b32 s5, s%d, 16" % sDD)
        a("s_cmp_eq_u32 s%d, 0" % sT0)
        a("s_cselect_b32 s4, s4, s5")
        a("s_lshl_b32 s5, s4, 16")
        a("v_mov_b32 v8, s4")
        a("v_mov_b32 v9, s5")
        self.pair_sync(1)
        for i in range(4):
            a("ds_read_b128 v[%d:%d], v6 offset:%d" % (220 + 4 * i, 223 + 4 * i, 1024 * i))
        TT = 148
        for i in range(4):
            u0, u1 = 236 + 2 * i, 237 + 2 * i
            a("v_dot2_f32_bf16 v%d, v%d, v9, 0" % (TT + 4 * i + 0, u1))
            a("v_dot2_f32_bf16 v%d, v%d, v8, 0" % (TT + 4 * i + 1, u1))
            a("v_dot2_f32_bf16 v%d, v%d, v9, 0" % (TT + 4 * i + 2, u0))
            a("v_dot2_f32_bf16 v%d, v%d, v8, 0" % (TT + 4 * i + 3, u0))
        TB = 164
        for i in range(4):
            a("v_cvt_pk_bf16_f32 v%d, v%d, v%d" % (TB + 2 * i, TT + 4 * i, TT + 4 * i + 1))
            a("v_cvt_pk_bf16_f32 v%d, v%d, v%d" % (TB + 2 * i + 1, TT + 4 * i + 2, TT + 4 * i + 3))
        a("v_and_b32 v4, 15, v1")
        a("v_lshrrev_b32 v5, 2, v4")
        a("v_lshlrev_b32 v5, 16, v5")
        a("v_and_b32 v4, 3, v4")
        a("v_lshl_add_u32 v5, v4, 5, v5")
        a("v_lshrrev_b32 v7, 4, v1")
        if "st16" in self.exp:
            a("v_lshrrev_b32 v4, 1, v7")
            a("v_lshl_add_u32 v5, v4, 4, v5")
            a("v_and_b32 v4, 1, v7")
            a("v_lshl_add_u32 v5, v4, 18, v5")
        else:
            a("v_lshl_add_u32 v5, v7, 3, v5")
        a("s_lshl_b32 s%d, s%d, 6" % (sT2, sC))
        a("s_lshl_b32 s4, s%d, 1" % sR)
        a("s_add_u32 s%d, s%d, s4" % (sT2, sT2))
        a("s_add_u32 s%d, s%d, s%d" % (sT2, sT2, sT0))
        a("s_lshl_b32 s%d, s%d, 7" % (sT2, sT2))
        a("s_lshl_b32 s4, s%d, 20" % sT1)
        a("s_add_u32 s%d, s%d, s4" % (sT2, sT2))
        a("s_add_u32 s%d, s%d, 0x%x" % (sT2, sT2, WS_YT))
        a("v_add_u32 v5, s%d, v5" % sT2)
        a.lg0()
        for i in range(16):
            a("v_add_f32 v%d, v%d, v%d" % (200 + i, 200 + i, 220 + i))
        YB = 172
        for i in range(8):
            a("v_cvt_pk_bf16_f32 v%d, v%d, v%d" % (YB + i, 200 + 2 * i, 201 + 2 * i))
        for i in range(8):
            a("v_perm_b32 v%d, v%d, v%d, s%d" % (200 + 2 * i, TB + i, YB + i, sP0))
            a("v_perm_b32 v%d, v%d, v%d, s%d" % (201 + 2 * i, TB + i, YB + i, sP1))
        for i in range(16):
            a("v_dot2_f32_bf16 v%d, v%d, v%d, 0" % (220 + i, 200 + i, vONES))
        for i in range(8):
            a("v_cvt_pk_bf16_f32 v%d, v%d, v%d" % (180 + i, 220 + 2 * i, 221 + 2 * i))
        if "st16" in self.exp:
            for u in range(2):
                r = 180 + 4 * u
                a("v_permlane16_swap_b32 v%d, v%d" % (r, r + 2))
                a("v_permlane16_swap_b32 v%d, v%d" % (r + 1, r + 3))
            for u in range(2):
                if u: a("v_add_u32 v5, 0x80000, v5")
                a.vmem("buffer_store_dwordx4 v[%d:%d], v5, s[%d:%d], 0 offen sc1" % (180 + 4 * u, 183 + 4 * u, S_WS, S_WS + 3), "yst")
        else:
          for i in range(4):
            if i: a("v_add_u32 v5, 0x40000, v5")
            a.vmem("buffer_store_dwordx2 v[%d:%d], v5, s[%d:%d], 0 offen sc1" % (180 + 2 * i, 181 + 2 * i, S_WS, S_WS + 3), "yst")
        self.stamp(17)

    def w2_voff(self):
        a = self.a
        sh = 7 if self.w2s else 10
        a("v_lshrrev_b32 v2, 3, v1")
        a("v_and_b32 v2, 3, v2")
        a("v_lshrrev_b32 v3, 5, v1")
        a("v_lshl_add_u32 v2, v3, 3, v2")
        a("v_lshlrev_b32 v2, %d, v2" % sh)
        a("v_lshrrev_b32 v3, 4, v1")
        a("v_and_b32 v3, 3, v3")
        a("v_lshlrev_b32 v3, 1, v3")
        a("v_and_b32 v4, 7, v1")
        a("v_xor_b32 v3, v3, v4")
        a("v_lshl_add_u32 v2, v3, 4, v2")
        if self.w2s:
            a("s_mul_i32 s%d, s%d, 176128" % (sT0, sD))
            a("s_add_u32 s%d, s%d, 0x%x" % (sT0, sT0, WS_W2S))
        else:
            a("s_lshl_b32 s%d, s%d, 7" % (sT0, sD))
        a("v_add_u32 v14, s%d, v2" % sT0)

    def w2_dma(self, lds_base_sreg, lds_off, src_base_sreg, ks_off, tag):
        a = self.a
        inc = [0, 512, 1536, 512] if self.w2s else [0, 4096, 12288, 4096]
        srd = S_WS if self.w2s else S_W2
        fl = " sc1" if self.w2s else ""
        a("s_add_u32 s%d, s%d, %d" % (sT2, src_base_sreg, ks_off * self.KS))
        for m in range(4):
            a("s_add_u32 m0, s%d, %d" % (lds_base_sreg, lds_off + 1024 * m))
            if m: a("s_add_u32 s%d, s%d, %d" % (sT2, sT2, inc[m]))
            a.vmem("buffer_load_dwordx4 v14, s[%d:%d], s%d offen%s lds" % (srd, srd + 3, sT2, fl), tag)

    def w2_slot_dma(self, tag):
        a = self.a
        a("s_lshl_b32 s71, s%d, 12" % sT0)
        a("s_add_u32 s70, s%d, 9" % sT0)
        a("s_cmp_lt_u32 s%d, 13" % sT0)
        a("s_cselect_b32 s70, s%d, s70" % sT0)
        a("s_lshl_b32 s70, s70, %d" % (12 if self.w2s else 15))
        self.w2_dma(71, L_B, 70, 0, tag)

    def w2_early(self):
        a = self.a
        for m in range(3):
            a("s_add_u32 s%d, s%d, %d" % (sT0, sRW, 4 * m))
            if m == 2: a("s_min_u32 s%d, s%d, 9" % (sT0, sT0))
            if m >= 1: a("s_add_u32 s%d, s%d, 4" % (sT0, sT0))
            self.w2_slot_dma("w2e")

    def m_regionA(self):
        a = self.a
        self.w2_voff()
        a("s_lshr_b32 s75, s%d, 1" % sRW)
        a("s_and_b32 s76, s%d, 1" % sRW)
        a("s_mul_i32 s70, s75, %d" % (22 * self.KS))
        self.m_sync(12)
        a("s_mul_i32 s71, s75, %d" % (NA_H * 4096))
        a("s_add_u32 s71, s71, %d" % L_A)
        a("s_lshl_b32 s4, s76, 12")
        a("s_add_u32 s71, s71, s4")
        a("s_lshl_b32 s4, s76, %d" % (12 if self.w2s else 15))
        a("s_add_u32 s70, s70, s4")
        for m in range(3):
            self.w2_dma(71, 8192 * m, 70, 13 + 2 * m, "w2a")

    def n_after_w2a_min(self):
        return (0 if self.noflags else 1) + 4 + 1

    def m_tail(self):
        a = self.a
        self.m_regionA()
        a.wait_vm("yst")
        if not self.noflags:
            a("s_lshl_b32 s4, s%d, 7" % sID)
            a("s_lshl_b32 s5, s%d, 2" % sRW)
            a("s_add_u32 s4, s4, s5")
            a("s_add_u32 s%d, s4, 0x%x" % (sT2, F_H3))
            self.flag_store(sT2, "flag", 2, 3)
        self.stamp(21)
        a("s_mov_b32 s5, %d" % (L_SYNC + 56))
        self.lds_wait(5, 4)
        a("s_mul_i32 s71, s75, %d" % B_HALF)
        a("s_lshl_b32 s4, s76, 12")
        a("s_add_u32 s71, s71, s4")
        if L_B: a("s_add_u32 s71, s71, %d" % L_B)
        self.w2_dma(71, 0, 70, 19, "w2l")
        skl = a.newlabel("L_ml")
        a("s_cmp_eq_u32 s76, 1")
        a("s_cbranch_scc1 %s" % skl)
        self.w2_dma(71, 8192, 70, 21, "w2l")
        a.label(skl)
        self.final_x_load(self.XR, self.OA)
        a("v_lshrrev_b32 v3, 2, v0")
        a("v_and_b32 v4, 3, v0")
        a("v_lshlrev_b32 v5, 7, v3")
        a("v_lshl_add_u32 v5, v4, 5, v5")
        a("s_lshl_b32 s%d, s%d, 16" % (sT0, sR))
        a("s_lshl_b32 s%d, s%d, 13" % (sT1, sD))
        a("s_add_u32 s%d, s%d, s%d" % (sT0, sT0, sT1))
        a("s_add_u32 s%d, s%d, 0x%x" % (sT0, sT0, WS_YT))
        a("v_add_u32 v8, s%d, v5" % sT0)
        a("v_mul_u32_u24 v9, 144, v3")
        a("v_lshl_add_u32 v9, v4, 5, v9")
        a("v_add_u32 v9, %d, v9" % L_Y)
        early = "yearly" in self.exp and not self.noflags
        if early:
            a("s_lshl_b32 s%d, s%d, 12" % (sT0, sD))
            a("s_add_u32 s%d, s%d, 0x%x" % (sT0, sT0, F_H3))
            a("v_and_b32 v2, 31, v1")
            a("v_lshlrev_b32 v2, 7, v2")
            a("v_add_u32 v2, s%d, v2" % sT0)
            a("buffer_load_dwordx4 v[28:31], v2, s[%d:%d], 0 offen sc1" % (S_WS, S_WS + 3))
        a("s_waitcnt vmcnt(%d)" % (self.n_after_w2a_min() + (1 if early else 0)))
        self.stamp(18)
        a("s_barrier")
        a("s_waitcnt vmcnt(0)")
        def yloads():
            a("buffer_load_dwordx4 v[20:23], v8, s[%d:%d], 0 offen sc1" % (S_WS, S_WS + 3))
            a("buffer_load_dwordx4 v[24:27], v8, s[%d:%d], 0 offen offset:16 sc1" % (S_WS, S_WS + 3))
        if early:
            lslow = "L_yslow"; lback = "L_yback"
            for i in range(4): a("v_xor_b32 v%d, s%d, v%d" % (28 + i, sNONCE, 28 + i))
            a("v_or3_b32 v28, v28, v29, v30")
            a("v_or_b32 v28, v28, v31")
            a("v_cmp_ne_u32 vcc, 0, v28")
            a("s_cbranch_vccnz %s" % lslow)
            yloads()
            a("s_barrier")
            a.label(lback)
            self.yslow_body = yloads
        else:
            a("s_barrier")
            if not self.noflags and "noh3" not in self.exp:
                a("s_lshl_b32 s%d, s%d, 12" % (sT0, sD))
                a("s_add_u32 s%d, s%d, 0x%x" % (sT0, sT0, F_H3))
                self.poll(sT0, 32, 4, 128)
            yloads()
        self.stamp(7)
        a("s_waitcnt vmcnt(0)")
        a("ds_write_b128 v9, v[20:23]")
        a("ds_write_b128 v9, v[24:27] offset:16")
        a.lg0()
        a("s_barrier")

    def y_slow(self):
        a = self.a
        a.label("L_yslow")
        a("s_barrier")
        a("s_lshl_b32 s%d, s%d, 12" % (sT0, sD))
        a("s_add_u32 s%d, s%d, 0x%x" % (sT0, sT0, F_H3))
        self.poll(sT0, 32, 4, 128)
        self.yslow_body()
        a("s_branch L_yback")

    def final_x_load(self, xr, ar, t0=2, t1=3):
        a = self.a
        a("s_and_b32 s%d, s%d, 3" % (sT0, sW))
        a("s_lshl_b32 s%d, s%d, 4" % (sT0, sT0))
        a("s_lshl_b32 s%d, s%d, 6" % (sT1, sR))
        a("s_add_u32 s%d, s%d, s%d" % (sT0, sT0, sT1))
        a("s_lshl_b32 s%d, s%d, 10" % (sT0, sT0))
        a("s_lshl_b32 s%d, s%d, 7" % (sT1, sD))
        a("s_add_u32 s%d, s%d, s%d" % (sT0, sT0, sT1))
        a("s_lshr_b32 s%d, s%d, 2" % (sT1, sW))
        a("s_lshl_b32 s%d, s%d, 6" % (sT1, sT1))
        a("s_add_u32 s%d, s%d, s%d" % (sT0, sT0, sT1))
        a("v_lshrrev_b32 v%d, 2, v1" % t0)
        a("v_lshlrev_b32 v%d, 10, v%d" % (t0, t0))
        a("v_and_b32 v%d, 3, v1" % t1)
        a("v_lshl_add_u32 v%d, v%d, 4, v%d" % (t0, t1, t0))
        a("v_add_u32 v%d, s%d, v%d" % (ar, sT0, t0))
        a.vmem("buffer_load_dwordx4 v[%d:%d], v%d, s[%d:%d], 0 offen" % (xr, xr + 3, ar, S_X, S_X + 3), "xf")

    def u_slow(self):
        a = self.a
        a.label("L_uslow")
        a("s_lshl_b32 s%d, s%d, 12" % (sT0, sC))
        a("s_add_u32 s%d, s%d, 0x%x" % (sT0, sT0, F_H1))
        self.poll(sT0, 32, 1, 128)
        for i in range(4):
            a("buffer_load_dwordx4 v[%d:%d], v172, s[%d:%d], 0 offen offset:%d sc1" % (152 + 4 * i, 155 + 4 * i, S_WS, S_WS + 3, 1024 * i))
        a("s_waitcnt vmcnt(0)")
        for i in range(4):
            a("ds_write_b128 v174, v[%d:%d] offset:%d" % (152 + 4 * i, 155 + 4 * i, 1024 * i))
        a("s_waitcnt lgkmcnt(0)")
        a("s_branch L_uback")

    NEGM, RS, NMRS = 100, 101, 102
    def norm2(self, X, t):
        L = []
        L.append("v_lshlrev_b32 v%d, 16, v%d" % (t + 0, X))
        L.append("v_and_b32 v%d, v%d, v%d" % (t + 1, vMHI, X))
        L.append("v_lshlrev_b32 v%d, 16, v%d" % (t + 2, X + 1))
        L.append("v_and_b32 v%d, v%d, v%d" % (t + 3, vMHI, X + 1))
        if self.relax_ln:
            for i in range(4):
                L.append("v_fma_f32 v%d, v%d, v%d, v%d" % (t + i, t + i, self.RS, self.NMRS))
        else:
            for i in range(4):
                L.append("v_add_f32 v%d, v%d, v%d" % (t + i, t + i, self.NEGM))
            L.append("v_cvt_pk_bf16_f32 v%d, v%d, v%d" % (t + 4, t + 0, t + 1))
            L.append("v_cvt_pk_bf16_f32 v%d, v%d, v%d" % (t + 5, t + 2, t + 3))
            L.append("v_lshlrev_b32 v%d, 16, v%d" % (t + 0, t + 4))
            L.append("v_and_b32 v%d, v%d, v%d" % (t + 1, vMHI, t + 4))
            L.append("v_lshlrev_b32 v%d, 16, v%d" % (t + 2, t + 5))
            L.append("v_and_b32 v%d, v%d, v%d" % (t + 3, vMHI, t + 5))
            for i in range(4):
                L.append("v_mul_f32 v%d, v%d, v%d" % (t + i, t + i, self.RS))
        L.append("v_cvt_pk_bf16_f32 v%d, v%d, v%d" % (X, t + 0, t + 1))
        L.append("v_cvt_pk_bf16_f32 v%d, v%d, v%d" % (X + 1, t + 2, t + 3))
        return L

    def norm_chunk(self, j):
        a = self.a
        X = 20 + 8 * j
        for half in range(2):
            s1 = self.norm2(X + 4 * half, 104); s2 = self.norm2(X + 4 * half + 2, 110)
            for x, y in zip(s1, s2):
                a(x); a(y)
            a.lds("ds_write_b128 v116, v[%d:%d] offset:%d" % (X + 4 * half, X + 4 * half + 3, L_XN + (j % NXN) * 8192 + half * 1024), "xw")

    def h_first(self):
        a = self.a
        self.vm_m_first = a.vm
        a.vm = Q(["cpf"] if "codepf0" in self.exp else [])
        a.label("L_Hfirst")
        self.rot_calc()
        a("s_lshl_b32 s%d, s%d, 16" % (sT0, sR))
        a("s_lshl_b32 s%d, s%d, 14" % (sT1, sRW))
        a("s_add_u32 s%d, s%d, s%d" % (sT0, sT0, sT1))
        a("v_lshrrev_b32 v6, 2, v1")
        a("v_lshlrev_b32 v6, 10, v6")
        a("v_and_b32 v7, 3, v1")
        a("v_lshl_add_u32 v6, v7, 4, v6")
        a("v_add_u32 v6, s%d, v6" % sT0)
        a("s_lshl_b32 s%d, s%d, 7" % (sT0, sROT))
        a("s_waitcnt lgkmcnt(0)")
        a("s_mov_b64 s[8:9], s[64:65]")
        if self.stamps:
            a("s_memrealtime s[4:5]"); a("s_waitcnt lgkmcnt(0)"); a("v_writelane_b32 v255, s4, 0")
        for j in range(8):
            if j:
                a("s_add_u32 s%d, s%d, 128" % (sT0, sT0))
                a("s_and_b32 s%d, s%d, 1023" % (sT0, sT0))
            a.vmem("buffer_load_dwordx4 v[%d:%d], v6, s[%d:%d], s%d offen" % (20 + 8 * j, 23 + 8 * j, S_X, S_X + 3, sT0), "x%d" % j)
            a.vmem("buffer_load_dwordx4 v[%d:%d], v6, s[%d:%d], s%d offen offset:64" % (24 + 8 * j, 27 + 8 * j, S_X, S_X + 3, sT0), "x%d" % j)
        a("s_branch L_H")
        self.vm_h_first = a.vm

    def h_front(self):
        a = self.a
        a.vm = self.vm_h_first; a.lg_clear()
        self.p0_rest()
        a("s_waitcnt lgkmcnt(0)")
        if "tlbpf" in self.exp:
            a("v_lshlrev_b32 v2, 19, v1")
            a("v_cmp_gt_u32 vcc, 28, v1")
            a("v_mov_b32 v3, 0x40000000")
            a("v_cndmask_b32 v2, v3, v2, vcc")
            a.vmem("buffer_load_dword v245, v2, s[%d:%d], 0 offen" % (S_WS, S_WS + 3), "tlb")
            a("v_lshlrev_b32 v2, 19, v1")
            a.vmem("buffer_load_dword v246, v2, s[%d:%d], 0 offen" % (S_OUT, S_OUT + 3), "tlb")
            a.vmem("buffer_load_dword v247, v2, s[%d:%d], 0 offen" % (S_W2, S_W2 + 3), "tlb")
            a.vmem("buffer_load_dword v243, v2, s[%d:%d], 0 offen" % (S_SSM, S_SSM + 3), "tlb")
        if self.w2s:
            a("s_lshl_b32 s%d, s2, 13" % sT2)
            a("v_and_b32 v2, 255, v0")
            a("v_lshlrev_b32 v3, 4, v2")
            a("v_add_u32 v3, s%d, v3" % sT2)
            a("s_cmp_lt_u32 s2, 172")
            a("s_cselect_b32 s86, 0, 0x40000000")
            a.vmem("buffer_load_dwordx4 v[224:227], v3, s[%d:%d], s86 offen" % (S_W2, S_W2 + 3), "w2sl")
            a("v_add_u32 v3, 4096, v3")
            a.vmem("buffer_load_dwordx4 v[228:231], v3, s[%d:%d], s86 offen" % (S_W2, S_W2 + 3), "w2sl")
            a("v_bfe_u32 v4, v2, 3, 3")
            a("v_mul_u32_u24 v4, 176128, v4")
            a("v_lshrrev_b32 v5, 6, v2")
            a("v_lshl_add_u32 v4, v5, 7, v4")
            a("v_and_b32 v5, 7, v2")
            a("v_lshl_add_u32 v4, v5, 4, v4")
            a("s_lshl_b32 s%d, s2, 10" % sT2)
            a("s_add_u32 s%d, s%d, 0x%x" % (sT2, sT2, WS_W2S))
            a("v_add_u32 v232, s%d, v4" % sT2)
        if "codepf" in self.exp:
            a("s_getpc_b64 s[82:83]")
            a.label("L_pc")
            a("s_sub_u32 s82, s82, L_pc-%s" % KNAME)
            a("s_subb_u32 s83, s83, 0")
            a("v_lshlrev_b32 v2, 7, v1")
            a("s_lshl_b32 s84, s%d, 13" % sRW)
            a("v_add_u32 v2, s84, v2")
            a("v_min_u32 v2, L_codeend-%s, v2" % KNAME)
            a("v_mov_b32 v3, s83")
            a("v_add_co_u32 v2, vcc, s82, v2")
            a("v_addc_co_u32 v3, vcc, 0, v3, vcc")
            a.vmem("global_load_dword v244, v[2:3], off", "cpf")
        a("s_waitcnt lgkmcnt(0)")
        a("s_barrier")

        if "V3" in self.exp:
            self.w1_voffs()
            for f in self.w1_dma_ops(0) + self.w1_dma_ops(1): f()
        a("s_setprio 0")
        if not self.noflags:
            a("v_mov_b32 v7, 0")
        a("v_lshrrev_b32 v4, 2, v1")
        a("v_and_b32 v5, 3, v1")
        a("v_lshlrev_b32 v2, 1, v5")
        a("v_xor_b32 v4, v4, v2")
        a("v_lshlrev_b32 v4, 4, v4")
        a("v_lshl_add_u32 v4, v5, 8, v4")
        a("s_lshl_b32 s%d, s%d, 11" % (sT2, sRW))
        a("v_add_u32 v116, s%d, v4" % sT2)

    def h_ssm_load(self):
        a = self.a
        a("s_lshl_b32 s%d, s%d, 6" % (sT2, sC))
        a("s_lshl_b32 s%d, s%d, 1" % (sT1, sR))
        a("s_add_u32 s%d, s%d, s%d" % (sT2, sT2, sT1))
        a("s_lshl_b32 s%d, s%d, 12" % (sT2, sT2))
        a("v_and_b32 v3, 255, v0")
        a("v_lshlrev_b32 v3, 4, v3")
        a("v_add_u32 v2, s%d, v3" % sT2)
        a("v_add_u32 v4, -8, v2")
        for ch in range(2):
            a.vmem("buffer_load_dwordx2 v[%d:%d], v4, s[%d:%d], 0 offen" % (84 + 6 * ch, 85 + 6 * ch, S_SSM, S_SSM + 3), "ssm")
            a.vmem("buffer_load_dwordx4 v[%d:%d], v2, s[%d:%d], 0 offen" % (86 + 6 * ch, 89 + 6 * ch, S_SSM, S_SSM + 3), "ssm")
            if ch == 0:
                a("v_add_u32 v2, 4096, v2")
                a("v_add_u32 v4, 4096, v4")

    def h_stats(self):
        a = self.a
        X = 20
        for i in range(8): a("v_mov_b32 v%d, 0" % (104 + i))
        for i in range(64):
            if i % 8 == 0:
                a.wait_vm("x%d" % (i // 8))
                if i == 0: self.stamp(13)
            a("v_dot2_f32_bf16 v%d, v%d, v%d, v%d" % (104 + (i & 3), X + i, vONES, 104 + (i & 3)))
            a("v_dot2_f32_bf16 v%d, v%d, v%d, v%d" % (108 + (i & 3), X + i, X + i, 108 + (i & 3)))
        a("v_add_f32 v104, v104, v105"); a("v_add_f32 v106, v106, v107")
        a("v_add_f32 v108, v108, v109"); a("v_add_f32 v110, v110, v111")
        a("v_add_f32 v2, v104, v106"); a("v_add_f32 v3, v108, v110")
        for ctl in ("quad_perm:[1,0,3,2]", "quad_perm:[2,3,0,1]"):
            a("v_add_f32_dpp v2, v2, v2 %s row_mask:0xf bank_mask:0xf" % ctl)
            a("v_add_f32_dpp v3, v3, v3 %s row_mask:0xf bank_mask:0xf" % ctl)
        a("v_mul_f32 v2, 0x3b000000, v2")
        a("v_mul_f32 v3, 0x3b000000, v3")
        a("v_cvt_pk_bf16_f32 v4, v2, v2")
        a("v_fma_f32 v3, -v2, v2, v3")
        a("v_lshlrev_b32 v4, 16, v4")
        a("v_max_f32 v3, 0, v3")
        a("v_cvt_pk_bf16_f32 v3, v3, v3")
        a("v_lshlrev_b32 v3, 16, v3")
        a("v_add_f32 v3, 0x3727c5ac, v3")
        a("v_cvt_pk_bf16_f32 v3, v3, v3")
        a("v_lshlrev_b32 v3, 16, v3")
        a("v_sqrt_f32 v3, v3")
        a("v_cvt_pk_bf16_f32 v3, v3, v3")
        a("v_lshlrev_b32 v3, 16, v3")
        a("v_rcp_f32 v%d, v3" % self.RS)
        a("v_sub_f32 v%d, 0, v4" % self.NEGM)
        a("v_mul_f32 v%d, v%d, v%d" % (self.NMRS, self.NEGM, self.RS))
        a("v_lshrrev_b32 v6, 2, v1")
        a("s_lshl_b32 s%d, s%d, 4" % (sT2, sRW))
        a("v_add_u32 v6, s%d, v6" % sT2)
        a("v_lshlrev_b32 v5, 3, v6")
        a("v_add_u32 v5, %d, v5" % L_STATS)
        a("v_mov_b32 v2, v4")
        a("v_mov_b32 v3, v%d" % self.RS)
        a.lds("ds_write_b64 v5, v[2:3]", "st")

    def h_tbuild(self, ch):
        a = self.a
        D = 84 + 6 * ch
        E = 118
        for p in range(5):
            a("v_alignbit_b32 v%d, v%d, v%d, 16" % (E + p, D + p + 1, D + p))
        for p in range(4):
            a("v_mov_b32 v%d, v%d" % (124 + p, D + 1 + p))
            a("v_mov_b32 v%d, v%d" % (128 + p, E + 1 + p))
        a("v_and_b32 v3, 255, v0")
        a("v_lshlrev_b32 v3, 4, v3")
        a("v_add_u32 v3, %d, v3" % (L_T + ch * T_CH + 24))
        a("ds_write_b128 v3, v[118:121]")
        a("ds_write_b128 v3, v[124:127] offset:%d" % T_CP)
        a("ds_write_b128 v3, v[128:131] offset:%d" % (2 * T_CP))
        a("ds_write_b128 v3, v[%d:%d] offset:%d" % (D + 2, D + 5, 3 * T_CP))

    def w2flag_loads(self, tag):
        a = self.a
        for i in range(3):
            a("v_add_u32 v3, %d, v1" % (64 * i))
            if i == 2:
                a("v_cmp_gt_u32 vcc, 172, v3")
                a("v_cndmask_b32 v3, 0, v3, vcc")
            a("v_lshlrev_b32 v3, 7, v3")
            a("v_add_u32 v3, 0x%x, v3" % F_H4)
            ins = "buffer_load_dword v%d, v3, s[%d:%d], 0 offen sc1" % (100 + i, S_WS, S_WS + 3)
            if tag: a.vmem(ins, tag)
            else: a(ins)

    def w2flag_check(self):
        a = self.a
        for i in range(3): a("v_xor_b32 v%d, s%d, v%d" % (104 + i, sNONCE, 100 + i))
        a("v_or3_b32 v104, v104, v105, v106")
        a("v_cmp_ne_u32 vcc, 0, v104")

    def h_uload(self):
        a = self.a
        if self.noflags: a.wait_vm("ssm")
        if not self.noflags:
            dn = a.newlabel("L_h1ok")
            a.wait_vm("h1f")
            for i in range(4): a("v_xor_b32 v%d, s%d, v%d" % (96 + i, sNONCE, 96 + i))
            a("v_or3_b32 v96, v96, v97, v98")
            a("v_or_b32 v96, v96, v99")
            a("v_cmp_ne_u32 vcc, 0, v96")
            a("s_cbranch_vccz %s" % dn)
            if "noprep" not in self.exp:
                a("s_lshl_b32 s%d, s%d, 12" % (sT0, sC))
                a("s_add_u32 s%d, s%d, 0x%x" % (sT0, sT0, F_H1))
                self.poll(sT0, 32, 4, 128)
            a.label(dn)
        self.stamp(3)
        a("s_lshl_b32 s%d, s%d, 6" % (sT0, sC))
        a("s_lshl_b32 s%d, s%d, 1" % (sT1, sR))
        a("s_add_u32 s%d, s%d, s%d" % (sT0, sT0, sT1))
        a("s_lshl_b32 s%d, s%d, 12" % (sT0, sT0))
        a("s_lshl_b32 s%d, s%d, 11" % (sT1, sRW))
        a("s_add_u32 s%d, s%d, s%d" % (sT0, sT0, sT1))
        a("v_lshlrev_b32 v4, 4, v1")
        a("v_add_u32 v5, s%d, v4" % sT0)
        a.vmem("buffer_load_dwordx4 v[20:23], v5, s[%d:%d], 0 offen sc1" % (S_WS, S_WS + 3), "u")
        a.vmem("buffer_load_dwordx4 v[24:27], v5, s[%d:%d], 0 offen offset:1024 sc1" % (S_WS, S_WS + 3), "u")
        self.h_tbuild(0)
        self.h_tbuild(1)
        if "w2early" in self.exp:
            self.w2_voff()
            self.w2_early()
        a("v_lshlrev_b32 v4, 4, v1")
        a("s_lshr_b32 s%d, s%d, 1" % (sT0, sRW))
        a("s_mul_i32 s%d, s%d, %d" % (sT0, sT0, U_CH))
        a("s_and_b32 s%d, s%d, 1" % (sT1, sRW))
        a("s_lshl_b32 s%d, s%d, 11" % (sT2, sT1))
        a("s_add_u32 s%d, s%d, s%d" % (sT0, sT0, sT2))
        a("s_add_u32 s%d, s%d, %d" % (sT0, sT0, L_U))
        a("v_add_u32 v6, s%d, v4" % sT0)
        for i in range(4): a("v_mov_b32 v%d, 0" % (28 + i))
        a("s_cmp_eq_u32 s%d, 1" % sT1)
        a("s_cselect_b32 exec_lo, -1, 0")
        a("s_mov_b32 exec_hi, 0")
        a("ds_write_b128 v6, v[28:31] offset:2048")
        a("s_mov_b64 exec, -1")
        a.wait_vm("u")
        a("ds_write_b128 v6, v[20:23]")
        a("ds_write_b128 v6, v[24:27] offset:1024")

    def norm_seq(self, j):
        a = self.a
        X = 20 + 8 * j
        seq = []
        for half in range(2):
            s1 = self.norm2(X + 4 * half, 104); s2 = self.norm2(X + 4 * half + 2, 110)
            if "hnonorm" in self.exp and j >= 2:
                s1 = ["s_nop 0"] * 8; s2 = ["s_nop 0"] * 8
            for x, y in zip(s1, s2):
                seq.append(x); seq.append(y)
            if "wmid" in self.exp:
                seq.append(lambda half=half: a.lds("ds_write_b128 v116, v[%d:%d] offset:%d" % (X + 4 * half, X + 4 * half + 3, L_XN + (j % NXN) * 8192 + half * 1024), "xw%d" % j))
        if not ("hnowrite" in self.exp and j >= 2) and "wmid" not in self.exp:
            for half in range(2):
                seq.append(lambda half=half: a.lds("ds_write_b128 v116, v[%d:%d] offset:%d" % (X + 4 * half, X + 4 * half + 3, L_XN + (j % NXN) * 8192 + half * 1024), "xw%d" % j))
        return seq

    def h_gemm1_side(self):
        a = self.a
        if self.w2s:
            a.wait_vm("w2sl")
            a.vmem("buffer_store_dwordx4 v[224:227], v232, s[%d:%d], s86 offen sc1" % (S_WS, S_WS + 3), "w2st")
            a.vmem("buffer_store_dwordx4 v[228:231], v232, s[%d:%d], s86 offen offset:512 sc1" % (S_WS, S_WS + 3), "w2st")
        if "hprio" in self.exp: a("s_setprio 2")
        if "pfWc" in self.exp: self.w1_tail_prefetch(241)
        if "lnpre" in self.exp:
            def split(j):
                sq = self.norm_seq(j)
                return sq[:-2], sq[-2:]
            wr = {}
            for j in range(8):
                v_, w_ = split(j)
                for x in v_: self.run(x)
                if j < 4:
                    for x in w_: self.run(x)
                else:
                    wr[j] = w_
                if j == 1 and not self.noflags:
                    a.vmem("buffer_load_dword v19, v7, s[%d:%d], 0 offen sc1" % (S_DBG, S_DBG + 3), "nonce")
            a.need_lds("xw0", "xw1")
            a("s_barrier")
        else:
            for x in self.norm_seq(0): self.run(x)
            s1 = self.norm_seq(1)
            h = len(s1) // 2
            for x in s1[:h]: self.run(x)
            for x in s1[h:]: self.run(x)
            if not self.noflags:
                a.vmem("buffer_load_dword v19, v7, s[%d:%d], 0 offen sc1" % (S_DBG, S_DBG + 3), "nonce")
            s2 = self.norm_seq(2)
            for x in s2[:h]: self.run(x)
            a.need_lds("xw0", "xw1")
            if "V3" in self.exp: a.wait_vm("w1c1")
            a("s_barrier")
            for x in s2[h:]: self.run(x)
        for j in range(8):
            if "lnpre" in self.exp:
                if j >= 1 and j + 3 <= 7:
                    for x in wr[j + 3]: self.run(x)
            elif j + 3 <= 7:
                for x in self.norm_seq(j + 3): self.run(x)
            if j == self.pf2j and "pf2" in self.exp: self.line_prefetch("w2", 242)
            if j == 1: self.h_ssm_load()
            if j == (self.w2j if self.w2s else 4) and not self.noflags:
                self.get_nonce()
            if j == 5:
                if not self.noflags:
                    a("s_lshl_b32 s%d, s%d, 12" % (sT0, sC))
                    a("s_add_u32 s%d, s%d, 0x%x" % (sT0, sT0, F_H1))
                    a("v_and_b32 v2, 31, v1")
                    a("v_lshlrev_b32 v2, 7, v2")
                    a("v_add_u32 v2, s%d, v2" % sT0)
                if self.w2s:
                    skf = a.newlabel("L_w2f")
                    a("s_cmp_lg_u32 s%d, 0" % sRW)
                    a("s_cbranch_scc1 %s" % skf)
                    self.w2flag_loads(tag=None)
                    a.label(skf)
                if not self.noflags:
                    a.vmem("buffer_load_dwordx4 v[96:99], v2, s[%d:%d], 0 offen sc1" % (S_WS, S_WS + 3), "h1f")
            if j + 1 <= 6:
                if j + 2 <= 7 and "hnowrite" not in self.exp: a.need_lds("xw%d" % (j + 2))
                if j == self.w2j and self.w2s: a.wait_vm("w2st")
                a("s_barrier")
                if j == self.w2j and self.w2s:
                    sk = a.newlabel("L_w2c")
                    a("s_cmp_lt_u32 s2, 172")
                    a("s_cselect_b32 s4, s%d, 1" % sRW)
                    a("s_cmp_lg_u32 s4, 0")
                    a("s_cbranch_scc1 %s" % sk)
                    a("s_lshl_b32 s4, s2, 7")
                    a("s_add_u32 s%d, s4, 0x%x" % (sT2, F_H4))
                    q = list(a.vm.q)
                    self.flag_store(sT2, "flag", 2, 3)
                    a.vm.q = q
                    a.label(sk)
                if "itst" in self.exp: self.stamp(23 + j)
        if "hprio" in self.exp: a("s_setprio 0")
        self.h_uload()
        if self.w2s:
            lp = a.newlabel("L_w2p"); dn = a.newlabel("L_w2d")
            a("s_cmp_lg_u32 s%d, 0" % sRW)
            a("s_cbranch_scc1 %s" % dn)
            a("s_mov_b32 s%d, 0" % sT3)
            a.label(lp)
            self.w2flag_check()
            a("s_cbranch_vccz %s" % dn)
            self.w2flag_loads(tag=None)
            a("s_waitcnt vmcnt(0)")
            a("s_add_u32 s%d, s%d, 1" % (sT3, sT3))
            a("s_cmp_lt_u32 s%d, 100000" % sT3)
            a("s_cbranch_scc1 %s" % lp)
            if "pf4" in self.exp:
                lok = a.newlabel("L_w2ok")
                a.lines.pop()
                a("s_cbranch_scc1 %s" % lp)
            a.label(dn)
            if "pf4" in self.exp:
                skp = a.newlabel("L_pf4")
                a("s_cmp_lg_u32 s%d, 0" % sRW)
                a("s_cbranch_scc1 %s" % skp)
                a("s_lshr_b32 s%d, s2, 3" % sT0)
                if "map42" in self.exp:
                    a("s_mul_i32 s%d, s%d, %d" % (sT0, sT0, 172 * 128))
                    a("s_bfe_u32 s%d, s2, 0x10002" % sT1)
                    a("s_mul_i32 s%d, s%d, %d" % (sT1, sT1, 4 * 176128))
                    a("s_add_u32 s%d, s%d, s%d" % (sT0, sT0, sT1))
                    nl = 172
                else:
                    a("s_mul_i32 s%d, s%d, %d" % (sT0, sT0, 344 * 128))
                    nl = 344
                a("s_add_u32 s%d, s%d, 0x%x" % (sT0, sT0, WS_W2S))
                for i in range((nl + 63) // 64):
                    a("v_add_u32 v3, %d, v1" % (64 * i))
                    a("v_min_u32 v3, %d, v3" % (nl - 1))
                    a("v_lshlrev_b32 v3, 7, v3")
                    a("v_add_u32 v3, s%d, v3" % sT0)
                    a("buffer_load_dword v%d, v3, s[%d:%d], 0 offen sc1" % (240 + (i & 3), S_WS, S_WS + 3))
                a.label(skp)
        self.w2_voff()
        a.lg0()
        a("s_barrier")
        self.stamp(2)

    def h_gemm2(self):
        a = self.a
        HF, ACC = 20, 196
        WBUF = [228, 2]
        AB = 244
        PF = 10
        a("s_lshr_b32 s75, s%d, 1" % sRW)
        a("s_and_b32 s76, s%d, 1" % sRW)
        if "poller3" in self.exp:
            lp3 = a.newlabel("L_hp3"); lgo = a.newlabel("L_hgo")
            a("s_cmp_eq_u32 s%d, 3" % sRW)
            a("s_cbranch_scc1 %s" % lp3)
            q0 = list(a.vm.q)
            for m in range(9):
                a("s_add_u32 s%d, s%d, %d" % (sT0, sRW, 3 * m))
                if m == 8: a("s_min_u32 s%d, s%d, 25" % (sT0, sT0))
                a("s_lshr_b32 s%d, s%d, 1" % (sT1, sT0))
                a("s_and_b32 s%d, s%d, 1" % (sT0, sT0))
                a("s_mul_i32 s71, s%d, %d" % (sT0, NB_H))
                a("s_add_u32 s71, s71, s%d" % sT1)
                a("s_lshl_b32 s71, s71, 12")
                a("s_mul_i32 s70, s%d, 22" % sT0)
                a("s_add_u32 s70, s70, s%d" % sT1)
                a("s_lshl_b32 s70, s70, %d" % (12 if self.w2s else 15))
                self.w2_dma(71, L_B, 70, 0, "w2b")
            a("s_branch %s" % lgo)
            a.label(lp3)
            if not self.noflags:
                a("s_lshl_b32 s%d, s%d, 10" % (sT0, sR))
                a("s_add_u32 s%d, s%d, 0x%x" % (sT0, sT0, F_H2))
                self.poll(sT0, 8, 4, 128)
            a("v_mov_b32 v2, %d" % (L_SYNC + 60))
            a("v_mov_b32 v3, 1")
            a("ds_write_b32 v2, v3")
            a.label(lgo)
        else:
            def w2b_slot(m):
                a("s_add_u32 s%d, s%d, %d" % (sT0, sRW, 4 * m))
                if m == 6: a("s_min_u32 s%d, s%d, 25" % (sT0, sT0))
                a("s_lshr_b32 s%d, s%d, 1" % (sT1, sT0))
                a("s_and_b32 s%d, s%d, 1" % (sT0, sT0))
                a("s_mul_i32 s71, s%d, %d" % (sT0, NB_H))
                a("s_add_u32 s71, s71, s%d" % sT1)
                a("s_lshl_b32 s71, s71, 12")
                a("s_mul_i32 s70, s%d, 22" % sT0)
                a("s_add_u32 s70, s70, s%d" % sT1)
                a("s_lshl_b32 s70, s70, %d" % (12 if self.w2s else 15))
                self.w2_dma(71, L_B, 70, 0, "w2b" if m < self.w2p1 else "w2b2")
            self.w2b_slot = w2b_slot
            if "w2early" in self.exp:
                for m in range(4):
                    a("s_add_u32 s%d, s%d, %d" % (sT0, sRW, 4 * m + (4 if m == 0 else 10)))
                    self.w2_slot_dma("w2b")
            else:
                for m in range(self.w2p1):
                    w2b_slot(m)
        a("s_lshl_b32 s%d, s%d, 2" % (sT2, sR))
        a("s_lshl_b32 s4, s76, 1")
        a("s_add_u32 s%d, s%d, s4" % (sT2, sT2))
        a("s_mul_i32 s%d, s%d, 44032" % (sT2, sT2))
        a("s_mul_i32 s4, s75, %d" % (22 * 1024))
        a("s_add_u32 s%d, s%d, s4" % (sT2, sT2))
        a("s_add_u32 s%d, s%d, 0x%x" % (sT2, sT2, WS_H))
        a("v_lshlrev_b32 v18, 4, v1")
        a("v_add_u32 v18, s%d, v18" % sT2)
        a("v_add_u32 v19, 44032, v18")
        a("v_lshrrev_b32 v2, 4, v1")
        a("v_and_b32 v3, 15, v1")
        a("v_lshrrev_b32 v3, 2, v3")
        a("v_lshrrev_b32 v4, 1, v2")
        a("v_lshlrev_b32 v4, 4, v4")
        a("v_and_b32 v5, 1, v2")
        a("v_lshl_add_u32 v4, v5, 2, v4")
        a("v_add_u32 v4, v4, v3")
        a("v_lshlrev_b32 v4, 7, v4")
        a("v_and_b32 v6, 1, v1")
        a("v_lshl_add_u32 v4, v6, 3, v4")
        a("v_lshlrev_b32 v5, 1, v5")
        a("v_lshrrev_b32 v6, 1, v3")
        a("v_add_u32 v5, v5, v6")
        a("v_lshlrev_b32 v5, 1, v5")
        a("v_and_b32 v6, 3, v1")
        a("v_lshrrev_b32 v6, 1, v6")
        a("s_mul_i32 s4, s75, %d" % B_HALF)
        if L_B: a("s_add_u32 s4, s4, %d" % L_B)
        for b in range(4):
            a("v_add_u32 v7, %d, v6" % (2 * b))
            a("v_xor_b32 v7, v7, v5")
            a("v_lshl_add_u32 v7, v7, 4, v4")
            a("v_add_u32 v%d, s4, v7" % (AB + b))
        a("s_mul_i32 s5, s75, %d" % (NA_H * 4096))
        a("s_add_u32 s5, s5, %d" % L_A)
        a("s_sub_u32 s77, s5, s4")
        a("s_sub_u32 s79, s4, s5")
        for i in range(32): a("v_mov_b32 v%d, 0" % (ACC + i))
        if "poller3" in self.exp:
            a("s_mov_b32 s5, %d" % (L_SYNC + 60))
            self.lds_wait(5, 1, 253, 254)
        else:
            self.stamp(5)
            if not self.noflags and "noh2" not in self.exp:
                a("s_lshl_b32 s%d, s%d, 10" % (sT0, sR))
                a("s_add_u32 s%d, s%d, 0x%x" % (sT0, sT0, F_H2))
                self.poll(sT0, 8, 4, 128)
        self.stamp(6)

        def hload(i):
            ops = []
            for t in range(2):
                def f(t=t):
                    r = HF + (i * 2 + t) * 4
                    so = i * 1024
                    if so < 4096:
                        a.vmem("buffer_load_dwordx4 v[%d:%d], v%d, s[%d:%d], 0 offen offset:%d sc1" % (r, r + 3, 18 + t, S_WS, S_WS + 3, so), "h%d" % i)
                    else:
                        if t == 0: a("s_mov_b32 s80, %d" % (so & ~4095))
                        a.vmem("buffer_load_dwordx4 v[%d:%d], v%d, s[%d:%d], s80 offen offset:%d sc1" % (r, r + 3, 18 + t, S_WS, S_WS + 3, so & 4095), "h%d" % i)
                ops.append(f)
            return ops

        def read_ops(i):
            buf = WBUF[i & 1]
            if i < 13: so = i * 4096
            elif i < 19: so = (i - 13) * 4096
            else: so = (i - 19) * 4096
            ops = []
            sw = {13: 77, 19: 79}.get(i)
            if sw:
                for b in range(4): ops.append("v_add_u32 v%d, s%d, v%d" % (AB + b, sw, AB + b))
            for b in range(4):
                for hh in range(2):
                    r0 = buf + 4 * b + 2 * hh
                    ops.append(lambda r0=r0, b=b, hh=hh: a.lds("ds_read_b64_tr_b16 v[%d:%d], v%d offset:%d" % (r0, r0 + 1, AB + b, so + hh * 1024), "w%d_%d" % (i, b)))
            return ops

        def mfma_ops(i):
            buf = WBUF[i & 1]
            ops = []
            for b in range(4):
                for t in range(2):
                    def f(b=b, t=t):
                        if b == 0 and t == 0:
                            a.wait_both("h%d" % i, ["w%d_%d" % (i, bb) for bb in range(4)])
                        acc = ACC + (b * 2 + t) * 4
                        hr = HF + (i * 2 + t) * 4
                        a("v_mfma_f32_16x16x32_bf16 v[%d:%d], v[%d:%d], v[%d:%d], v[%d:%d]" % (acc, acc + 3, buf + 4 * b, buf + 4 * b + 3, hr, hr + 3, acc, acc + 3))
                    ops.append(f)
            return ops

        allh = []
        for i in range(22): allh += hload(i)
        hp = 0
        for f in allh[:self.hinit]: f()
        hp = self.hinit
        for m in range(self.w2p1, 7):
            self.w2b_slot(m)
        a("s_waitcnt vmcnt(%d)" % min(63, self.hinit + 4 * (7 - self.w2p1)))
        self.m_sync(11, va=253, vb=254)
        self.stamp(19)
        for f in read_ops(0): self.run(f)
        last = a.newlabel("L_g2l")
        for i in range(22):
            if i == 12:
                a.lg0()
                a("s_barrier")
            if i == 18:
                a.lg0()
                a("s_barrier")
            if self.w2p1 < 7 and i == 2 * self.w2p1 - 1:
                a.wait_vm("w2b2")
                self.m_sync(10, va=253, vb=254)
            if i == 11 and "xearly" in self.exp:
                self.final_x_load(self.XR, self.OA, 253, 254)
            if i == 4:
                a("v_mov_b32 v253, %d" % (L_SYNC + 56))
                a("v_mov_b32 v254, 1")
                a("s_mov_b64 exec, 1")
                a.lds("ds_add_u32 v253, v254", "sig")
                a("s_mov_b64 exec, -1")
            if i == 21:
                a("s_cmp_eq_u32 s75, 1")
                a("s_cbranch_scc1 %s" % last)
            fill = []
            if i < 21: fill += read_ops(i + 1)
            nl = self.hper if hp < 2 * (i + self.hwin) else 2
            nl = min(nl, len(allh) - hp)
            fill = allh[hp:hp + nl] + fill
            hp += nl
            interleave(a, mfma_ops(i), fill)
        a.label(last)
        a.lg0()
        self.stamp(22)
        a("v_and_b32 v2, 15, v1")
        a("v_lshrrev_b32 v3, 4, v1")
        a("v_mul_u32_u24 v2, 272, v2")
        a("v_lshl_add_u32 v2, v3, 4, v2")
        a("s_mul_i32 s4, s75, %d" % P_STRIDE)
        a("s_mul_i32 s5, s76, %d" % (32 * 272))
        a("s_add_u32 s4, s4, s5")
        a("s_add_u32 s4, s4, %d" % L_P)
        a("v_add_u32 v2, s4, v2")
        for b in range(4):
            for t in range(2):
                acc = ACC + (b * 2 + t) * 4
                a("ds_write_b128 v2, v[%d:%d] offset:%d" % (acc, acc + 3, t * 16 * 272 + b * 64))
        if "xearly" not in self.exp: self.final_x_load(self.XR, self.OA)
        a.lg0()
        a("s_barrier")

    def final(self):
        a = self.a
        P0 = L_P; P1 = L_P + P_STRIDE; YL = L_Y
        XR = self.XR; OA = self.OA
        a("s_and_b32 s%d, s%d, 3" % (sT0, sW))
        a("s_lshr_b32 s%d, s%d, 2" % (sT1, sW))
        a("v_lshrrev_b32 v2, 2, v1")
        a("v_and_b32 v3, 3, v1")
        a("s_lshl_b32 s4, s%d, 4" % sT0)
        a("v_add_u32 v2, s4, v2")
        a("v_mul_u32_u24 v4, 272, v2")
        a("v_lshl_add_u32 v4, v3, 5, v4")
        a("s_lshl_b32 s4, s%d, 7" % sT1)
        a("s_add_u32 s4, s4, %d" % P0)
        a("v_add_u32 v4, s4, v4")
        a("ds_read_b128 v[20:23], v4")
        a("ds_read_b128 v[24:27], v4 offset:16")
        a("ds_read_b128 v[28:31], v4 offset:%d" % (P1 - P0))
        a("ds_read_b128 v[32:35], v4 offset:%d" % (P1 - P0 + 16))
        a("v_lshlrev_b32 v6, 3, v2")
        a("v_add_u32 v6, %d, v6" % L_STATS)
        a("ds_read_b64 v[36:37], v6")
        a("v_lshrrev_b32 v7, 4, v1")
        a("v_lshlrev_b32 v7, 3, v7")
        a("v_and_b32 v8, 15, v1")
        a("v_lshrrev_b32 v8, 2, v8")
        a("v_add_u32 v7, v7, v8")
        a("s_lshl_b32 s4, s%d, 5" % sT1)
        a("v_add_u32 v7, s4, v7")
        a("v_mul_u32_u24 v7, 144, v7")
        a("v_and_b32 v8, 3, v1")
        a("v_lshl_add_u32 v7, v8, 3, v7")
        a("s_lshl_b32 s4, s%d, 5" % sT0)
        a("s_add_u32 s4, s4, %d" % YL)
        a("v_add_u32 v7, s4, v7")
        a("ds_read_b64_tr_b16 v[38:39], v7")
        a("ds_read_b64_tr_b16 v[40:41], v7 offset:%d" % (4 * 144))
        a("v_and_b32 v8, 3, v1")
        a("v_lshlrev_b32 v8, 4, v8")
        a("v_lshrrev_b32 v9, 2, v1")
        a("v_or_b32 v8, v8, v9")
        a("v_lshlrev_b32 v8, 2, v8")
        a("v_mov_b32 v10, 0xbfb8aa3b")
        a("v_mov_b32 v11, 1.0")
        a("s_waitcnt lgkmcnt(0)")
        for i in range(4):
            a("ds_bpermute_b32 v%d, v8, v%d" % (42 + i, 38 + i))
        for i in range(8):
            a("v_add_f32 v%d, v%d, v%d" % (20 + i, 20 + i, 28 + i))
        for i in range(4):
            a("v_cvt_pk_bf16_f32 v%d, v%d, v%d" % (28 + i, 20 + 2 * i, 21 + 2 * i))
        for i in range(4):
            a("v_alignbit_b32 v%d, v%d, 0, 16" % (20 + 2 * i, 28 + i))
            a("v_and_b32 v%d, v%d, v%d" % (21 + 2 * i, vMHI, 28 + i))
        for i in range(8):
            a("v_mul_f32 v%d, v10, v%d" % (48 + i, 20 + i))
        for i in range(8):
            a("v_exp_f32 v%d, v%d" % (48 + i, 48 + i))
        a("s_waitcnt vmcnt(0)")
        a("v_sub_f32 v12, 0, v36")
        for i in range(4):
            a("v_dot2_f32_bf16 v%d, v%d, v%d, v12" % (72 + 2 * i, XR + i, vONELO))
            a("v_dot2_f32_bf16 v%d, v%d, v%d, v12" % (73 + 2 * i, XR + i, vONEHI))
        for i in range(8):
            a("v_add_f32 v%d, v11, v%d" % (48 + i, 48 + i))
        for i in range(4):
            a("v_cvt_pk_bf16_f32 v%d, v%d, v%d" % (80 + i, 72 + 2 * i, 73 + 2 * i))
        for i in range(8):
            a("v_rcp_f32 v%d, v%d" % (48 + i, 48 + i))
        for i in range(4):
            a("v_alignbit_b32 v%d, v%d, 0, 16" % (72 + 2 * i, 80 + i))
            a("v_and_b32 v%d, v%d, v%d" % (73 + 2 * i, vMHI, 80 + i))
        for i in range(8):
            a("v_mul_f32 v%d, v%d, v37" % (72 + i, 72 + i))
        for i in range(8):
            a("v_mul_f32 v%d, v%d, v%d" % (20 + i, 20 + i, 48 + i))
        if "relax_fin" in self.exp:
            a("s_waitcnt lgkmcnt(0)")
            for i in range(4):
                a("v_alignbit_b32 v%d, v%d, 0, 16" % (56 + 2 * i, 42 + i))
                a("v_and_b32 v%d, v%d, v%d" % (57 + 2 * i, vMHI, 42 + i))
                a("v_alignbit_b32 v%d, v%d, 0, 16" % (88 + 2 * i, XR + i))
                a("v_and_b32 v%d, v%d, v%d" % (89 + 2 * i, vMHI, XR + i))
            for i in range(8):
                a("v_mul_f32 v%d, v%d, v%d" % (72 + i, 72 + i, 56 + i))
            for i in range(8):
                a("v_fma_f32 v%d, v%d, v%d, v%d" % (72 + i, 72 + i, 20 + i, 88 + i))
            for i in range(4):
                a("v_cvt_pk_bf16_f32 v%d, v%d, v%d" % (80 + i, 72 + 2 * i, 73 + 2 * i))
        else:
            for i in range(4):
                a("v_cvt_pk_bf16_f32 v%d, v%d, v%d" % (80 + i, 72 + 2 * i, 73 + 2 * i))
            for i in range(4):
                a("v_cvt_pk_bf16_f32 v%d, v%d, v%d" % (28 + i, 20 + 2 * i, 21 + 2 * i))
            a("s_waitcnt lgkmcnt(0)")
            for i in range(4):
                a("v_and_b32 v%d, v%d, v%d" % (56 + 2 * i, vMLO, 42 + i))
                a("v_and_b32 v%d, v%d, v%d" % (57 + 2 * i, vMHI, 42 + i))
                a("v_and_b32 v%d, v%d, v%d" % (64 + 2 * i, vMLO, 28 + i))
                a("v_and_b32 v%d, v%d, v%d" % (65 + 2 * i, vMHI, 28 + i))
            for i in range(4):
                a("v_dot2_f32_bf16 v%d, v%d, v%d, 0" % (72 + 2 * i, 80 + i, 56 + 2 * i))
                a("v_dot2_f32_bf16 v%d, v%d, v%d, 0" % (73 + 2 * i, 80 + i, 57 + 2 * i))
            for i in range(4):
                a("v_alignbit_b32 v%d, v%d, 0, 16" % (88 + 2 * i, XR + i))
                a("v_and_b32 v%d, v%d, v%d" % (89 + 2 * i, vMHI, XR + i))
            for i in range(4):
                a("v_cvt_pk_bf16_f32 v%d, v%d, v%d" % (80 + i, 72 + 2 * i, 73 + 2 * i))
            for i in range(4):
                a("v_dot2_f32_bf16 v%d, v%d, v%d, 0" % (72 + 2 * i, 80 + i, 64 + 2 * i))
                a("v_dot2_f32_bf16 v%d, v%d, v%d, 0" % (73 + 2 * i, 80 + i, 65 + 2 * i))
            for i in range(4):
                a("v_cvt_pk_bf16_f32 v%d, v%d, v%d" % (80 + i, 72 + 2 * i, 73 + 2 * i))
            for i in range(4):
                a("v_dot2_f32_bf16 v%d, v%d, v%d, v%d" % (72 + 2 * i, 80 + i, vONELO, 88 + 2 * i))
                a("v_dot2_f32_bf16 v%d, v%d, v%d, v%d" % (73 + 2 * i, 80 + i, vONEHI, 89 + 2 * i))
            for i in range(4):
                a("v_cvt_pk_bf16_f32 v%d, v%d, v%d" % (80 + i, 72 + 2 * i, 73 + 2 * i))
        fl = " sc1" if "outsc1" in self.exp else (" nt" if "outnt" in self.exp else (" sc0 sc1" if "outsc01" in self.exp else ""))
        a("buffer_store_dwordx4 v[80:83], v%d, s[%d:%d], 0 offen%s" % (OA, S_OUT, S_OUT + 3, fl))

    def build(self):
        a = self.a
        self.p0()
        self.m_front()
        self.stamp(1)
        self.m_prep()
        self.stamp(10)
        self.m_gemm1()
        self.stamp(4)
        self.m_conv()
        self.m_tail()
        a("s_branch L_final")
        a.label("L_H")
        self.h_front()
        self.stamp(1)
        self.h_stats()
        self.stamp(11)
        self.h_gemm1_side()
        self.h_gemm2()
        a.label("L_final")
        a.lg_clear()
        self.stamp(8)
        self.final()
        self.stamp(9)
        self.dump_stamps()
        if "noendwait" not in self.exp: a("s_waitcnt vmcnt(0)")
        a.label("L_end")
        a("s_endpgm")
        if "yearly" in self.exp and not self.noflags:
            self.y_slow()
        a.label("L_codeend")
        a("s_endpgm")
        lines, n = hazard.fix(a.lines)
        self.nnops = n
        hdr = """; Kernarg layout: x,k,v,shift_k,ssm_k,ssm_D,B_x,w1,w2,out,debug,ws (8-byte pointers)
; @launch grid=(256,1,1) block=(512,1,1) lds=%d
.amdgcn_target "amdgcn-amd-amdhsa--gfx950"
.text
.globl %s
.p2align 8
.type %s,@function
%s:
""" % (LDS_SIZE, KNAME, KNAME, KNAME)
        ftr = """.section .rodata,"a"
.p2align 6
.amdhsa_kernel %s
  .amdhsa_next_free_vgpr 256
  .amdhsa_next_free_sgpr 102
  .amdhsa_accum_offset 256
  .amdhsa_group_segment_fixed_size 0
  .amdhsa_kernarg_size 96
  .amdhsa_user_sgpr_count 2
  .amdhsa_user_sgpr_kernarg_segment_ptr 1
  .amdhsa_system_sgpr_workgroup_id_x 1
.end_amdhsa_kernel
""" % KNAME
        return hdr + "\n".join(lines) + "\n" + ftr

if __name__ == "__main__":
    import argparse
    ap = argparse.ArgumentParser()
    ap.add_argument("-o", default="k.s")
    ap.add_argument("--stamps", action="store_true")
    ap.add_argument("--noflags", action="store_true")
    ap.add_argument("--exp", default="")
    args = ap.parse_args()
    g = Gen(stamps=args.stamps, noflags=args.noflags, exp=args.exp)
    txt = g.build()
    open(args.o, "w").write(txt)
    print("wrote", args.o, len(txt.splitlines()), "lines; hazard nops:", g.nnops)
```

```python
import sys
from emit import *
import hazard

KNAME = "recurrent_scan__ssm_conv_h3__dense_activation_relu__prompt_kernel"

WS_KVT = 0
WS_YT = 2 << 20
WS_H = 4 << 20
WS_FLAG = 10 << 20
F_H1 = WS_FLAG
F_H2 = WS_FLAG + 32768
F_H3 = WS_FLAG + 65536
F_H4 = WS_FLAG + 98304
WS_STAMP = WS_FLAG + (256 << 10)
WS_W2S = 12 << 20
WS_SIZE = 16 << 20

L_XN = 0
NXN = 4
L_W1 = 32768
W1_SLOT = 24576
NW1 = 5
L_PREP = L_W1 + 4 * W1_SLOT
L_A = L_W1 + 3 * W1_SLOT
NA_H = 6
L_T = L_A + 8
T_CH = 16640
T_CP = 4160
L_U = L_A + 33408
U_CH = 4608
L_B = 0
NB_H = 13
B_HALF = NB_H * 4096
L_Y = 16384
L_P = L_B + 7 * 4096
P_STRIDE = B_HALF
L_STATS = 161792
L_SYNC = 162304
LDS_SIZE = 163840
assert L_U % 16 == 0 and L_U + 2 * U_CH <= L_W1 + 5 * W1_SLOT and L_T + 2 * T_CH <= L_U
assert L_A + 2 * NA_H * 4096 <= L_STATS and 2 * B_HALF <= L_A and L_W1 + NW1 * W1_SLOT <= L_STATS

S_X, S_K, S_V, S_W1, S_W2, S_OUT, S_SSM, S_WS, S_SH, S_DBG = 8, 12, 16, 20, 24, 28, 32, 36, 40, 44
sR, sC, sW, sNONCE = 48, 49, 50, 51
sF0, sBP, sNB = 52, 53, 54
sT0, sT1, sT2, sT3 = 55, 56, 57, 58
sRW = 59
sEX = 60
sROT = 62
sDP = 64
sDD = 66
sM0B = 67
sP0, sP1 = 68, 69
sUOK = 72
sID = 81
sD = 85
sINV1, sINV2 = 73, 74
vMLO, vMHI, vONELO, vONEHI, vONES = 248, 249, 250, 251, 252

def merge(*lists):
    lists = [l for l in lists if l]
    tot = sum(len(l) for l in lists)
    out = []; idx = [0] * len(lists)
    for s in range(tot):
        best = min((i for i in range(len(lists)) if idx[i] < len(lists[i])), key=lambda i: (idx[i] + 0.5) / len(lists[i]))
        out.append(lists[best][idx[best]]); idx[best] += 1
    return out

class Gen:
    def __init__(self, stamps=False, noflags=False, exp=""):
        self.exp = set(exp.split(",")) if exp else set()
        self.a = Asm()
        self.stamps = stamps
        self.noflags = noflags
        self.relax_ln = "relax_ln" in self.exp
        self.stampset = None
        self.h2n = 75
        self.pfw_r0 = 192
        self.pfd = 0
        for e in self.exp:
            if e.startswith('pfd='): self.pfd = int(e[4:])
        for e in self.exp:
            if e.startswith('r0='): self.pfw_r0 = int(e[3:])
        self.XR, self.OA = (84, 96) if 'xearly' in self.exp else (240, 244)
        self.h1j = 0
        self.w2p1 = 7
        for e in self.exp:
            if e.startswith('p1='): self.w2p1 = int(e[3:])
        for e in self.exp:
            if e.startswith('h1j='): self.h1j = int(e[4:])
        self.w2j = 0
        self.w2s = 'w2s' in self.exp
        self.KS = 4096 if self.w2s else 32768
        self.pf2j = 0
        for e in self.exp:
            if e.startswith('pj='): self.pf2j = int(e[3:])
            if e.startswith('h2n='): self.h2n = int(e[4:])
        self.hwin = 22; self.hper = 6; self.hinit = 12
        for e in self.exp:
            if e.startswith('hw='): self.hwin, self.hper, self.hinit = [int(x) for x in e[3:].split('+')]
        for e in self.exp:
            if e.startswith("st="):
                self.stampset = set(int(x) for x in e[3:].split("+"))

    def stamp(self, idx):
        if not self.stamps: return
        if self.stampset is not None and idx not in self.stampset: return
        a = self.a
        a("s_memrealtime s[4:5]")
        if "clk" in self.exp and idx in (14, 2, 4, 16):
            a("s_memtime s[6:7]")
        a.lg0()
        a("v_writelane_b32 v255, s4, %d" % idx)
        if "clk" in self.exp and idx in (14, 2, 4, 16):
            a("v_writelane_b32 v255, s6, %d" % {14: 29, 2: 30, 4: 31, 16: 15}[idx])

    def dump_stamps(self):
        if not self.stamps: return
        a = self.a
        if "entry" in self.exp:
            a("v_writelane_b32 v255, s90, 31")
        if "dbgst" in self.exp:
            sk = a.newlabel("L_ds")
            a("s_or_b32 s4, s2, s%d" % sW)
            a("s_cmp_lg_u32 s4, 0")
            a("s_cbranch_scc1 %s" % sk)
            a("v_readlane_b32 s4, v255, 0")
            a("s_nop 3")
            a("v_subrev_u32 v3, s4, v255")
            order = [12, 10, 14, 2, 4, 16, 17, 18, 7, 8, 9]
            for k, i in enumerate(order):
                a("v_readlane_b32 s5, v3, %d" % i)
                a("s_nop 3")
                a("v_mov_b32 v4, s5")
                a("v_mov_b32 v5, %d" % (4 * (k + 1)))
                a("s_mov_b64 exec, 1")
                a("buffer_store_dword v4, v5, s[%d:%d], 0 offen" % (S_DBG, S_DBG + 3))
                a("s_mov_b64 exec, -1")
            a.label(sk)
        a("s_lshl_b32 s%d, s2, 3" % sT0)
        a("s_add_u32 s%d, s%d, s%d" % (sT0, sT0, sW))
        a("s_lshl_b32 s%d, s%d, 7" % (sT0, sT0))
        a("s_add_u32 s%d, s%d, 0x%x" % (sT0, sT0, WS_STAMP))
        a("v_lshlrev_b32 v2, 2, v1")
        a("v_add_u32 v2, s%d, v2" % sT0)
        a("s_mov_b32 exec_lo, -1")
        a("s_mov_b32 exec_hi, 0")
        a("buffer_store_dword v255, v2, s[%d:%d], 0 offen" % (S_WS, S_WS + 3))
        a("s_mov_b64 exec, -1")

    def run(self, x):
        if callable(x): x()
        else: self.a(x)

    def spread(self, seq, extra):
        a = self.a
        if not extra:
            for x in seq: self.run(x)
            return
        step = max(1, len(seq) // (len(extra) + 1))
        k = 0
        for i, ins in enumerate(seq):
            self.run(ins)
            if (i + 1) % step == 0 and k < len(extra):
                self.run(extra[k]); k += 1
        while k < len(extra):
            self.run(extra[k]); k += 1

    def map_rc(self):
        a = self.a
        if "map42" in self.exp:
            a("s_and_b32 s%d, s2, 3" % sR)
            a("s_lshl_b32 s%d, s%d, 3" % (sR, sR))
            a("s_bfe_u32 s3, s2, 0x30003")
            a("s_add_u32 s%d, s%d, s3" % (sR, sR))
            a("s_bfe_u32 s%d, s2, 0x10002" % sC)
            a("s_lshl_b32 s%d, s%d, 2" % (sC, sC))
            a("s_lshr_b32 s3, s2, 6")
            a("s_add_u32 s%d, s%d, s3" % (sC, sC))
        else:
            a("s_and_b32 s%d, s2, 7" % sR)
            a("s_lshr_b32 s3, s2, 6")
            a("s_lshl_b32 s3, s3, 3")
            a("s_add_u32 s%d, s%d, s3" % (sR, sR))
            a("s_bfe_u32 s%d, s2, 0x30003" % sC)

    def rot_calc(self):
        a = self.a
        if "norot" in self.exp: return
        if "map42" in self.exp:
            a("s_lshl_b32 s%d, s%d, 1" % (sT0, sC))
            a("s_add_u32 s%d, s%d, s%d" % (sT0, sT0, sR))
            a("s_and_b32 s%d, s%d, 7" % (sROT, sT0))
        else:
            a("s_lshr_b32 s%d, s%d, 3" % (sT0, sR))
            a("s_lshl_b32 s%d, s%d, 1" % (sT0, sT0))
            a("s_add_u32 s%d, s%d, s%d" % (sT0, sT0, sC))
            a("s_add_u32 s%d, s%d, s%d" % (sT0, sT0, sR))
            a("s_and_b32 s%d, s%d, 7" % (sROT, sT0))
        if "norot" in self.exp: a("s_mov_b32 s%d, 0" % sROT)

    def p0(self):
        a = self.a
        if self.stamps and "entry" in self.exp:
            a("s_memrealtime s[90:91]")
        a("s_load_dwordx8 s[64:71], s[0:1], 0")
        a("s_cmp_ge_u32 s2, 256")
        a("s_cbranch_scc1 L_end")
        if self.stamps: a("v_mov_b32 v255, 0")
        a("v_lshrrev_b32 v2, 6, v0")
        a("v_and_b32 v1, 63, v0")
        if "codepf0" in self.exp:
            a("s_getpc_b64 s[82:83]")
            a.label("L_pc")
            a("s_sub_u32 s82, s82, L_pc-%s" % KNAME)
            a("s_subb_u32 s83, s83, 0")
            a("v_and_b32 v4, 255, v0")
            a("v_lshlrev_b32 v4, 7, v4")
            a("v_min_u32 v4, L_codeend-%s, v4" % KNAME)
            a("v_mov_b32 v5, s83")
            a("v_add_co_u32 v4, vcc, s82, v4")
            a("v_addc_co_u32 v5, vcc, 0, v5, vcc")
            a.vmem("global_load_dword v244, v[4:5], off", "cpf")
        self.map_rc()
        a("v_readfirstlane_b32 s%d, v2" % sW)
        a("s_mov_b32 s10, 0x200000")
        a("s_mov_b32 s11, 0x00020000")
        a("s_mov_b32 s14, 0x200000")
        a("s_mov_b32 s15, 0x00020000")
        a("s_mov_b32 s18, 0x200000")
        a("s_mov_b32 s19, 0x00020000")
        a("s_movk_i32 s42, 0x1000")
        a("s_mov_b32 s43, 0x00020000")
        a("s_and_b32 s%d, s%d, 3" % (sRW, sW))
        a("s_cmp_ge_u32 s%d, 4" % sW)
        a("s_cbranch_scc1 L_Hfirst")

    def p0_rest(self):
        a = self.a
        for dst, off in ((S_W1, 56), (S_SSM, 32), (S_WS, 88), (S_DBG, 80), (S_W2, 64), (S_OUT, 72), (sDP, 40)):
            a("s_load_dwordx2 s[%d:%d], s[0:1], %d" % (dst, dst + 1, off))
        for dst, size in ((S_W1, 1409024), (S_SSM, 2097152), (S_WS, WS_SIZE), (S_DBG, 256), (S_W2, 1409024), (S_OUT, 2097152)):
            a("s_mov_b32 s%d, 0x%x" % (dst + 2, size))
            a("s_mov_b32 s%d, 0x00020000" % (dst + 3))
        if "dshift" in self.exp:
            a("s_add_u32 s%d, s%d, 1" % (sD, sC))
            a("s_and_b32 s%d, s%d, 7" % (sD, sD))
        else:
            a("s_mov_b32 s%d, s%d" % (sD, sC))
        a("s_lshl_b32 s%d, s%d, 5" % (sID, sC))
        a("s_add_u32 s%d, s%d, s%d" % (sID, sID, sR))
        a("s_mul_i32 s%d, s%d, 6" % (sBP, sC))
        a("s_sub_i32 s%d, s%d, 3" % (sT0, sC))
        a("s_max_i32 s%d, s%d, 0" % (sT0, sT0))
        a("s_sub_u32 s%d, s%d, s%d" % (sBP, sBP, sT0))
        a("s_lshl_b32 s%d, s%d, 5" % (sF0, sBP))
        a("s_cmp_lt_u32 s%d, 3" % sC)
        a("s_cselect_b32 s%d, 12, 10" % sNB)
        a("v_mov_b32 v%d, 0xffff" % vMLO)
        a("v_mov_b32 v%d, 0xffff0000" % vMHI)
        a("v_mov_b32 v%d, 0x3f80" % vONELO)
        a("v_mov_b32 v%d, 0x3f800000" % vONEHI)
        a("v_mov_b32 v%d, 0x3f803f80" % vONES)
        a("s_mov_b32 s%d, 0x05040100" % sP0)
        a("s_mov_b32 s%d, 0x07060302" % sP1)
        a("v_and_b32 v3, 15, v0")
        a("v_lshlrev_b32 v3, 2, v3")
        a("v_add_u32 v3, %d, v3" % L_SYNC)
        a("v_mov_b32 v4, 0")
        a("ds_write_b32 v3, v4")

    def w1_dma_ops(self, j):
        a = self.a
        slot = j % NW1
        ops = []
        def head():
            if "norot" in self.exp:
                a("s_mov_b32 s%d, %d" % (sT1, j * 64 * 2752))
            else:
                a("s_add_u32 s%d, s%d, %d" % (sT1, sROT, j))
                a("s_and_b32 s%d, s%d, 7" % (sT1, sT1))
                a("s_mul_i32 s%d, s%d, %d" % (sT1, sT1, 64 * 2752))
            a("s_add_u32 m0, s%d, %d" % (sM0B, slot * W1_SLOT))
            a.vmem("buffer_load_dwordx4 v12, s[%d:%d], s%d offen lds" % (S_W1, S_W1 + 3, sT1), "w1c%d" % j)
        ops.append(head)
        for i in range(1, 6):
            def nxt(i=i):
                a("s_add_u32 m0, s%d, %d" % (sM0B, slot * W1_SLOT + 1024 * i))
                a.vmem("buffer_load_dwordx4 v%d, s[%d:%d], s%d offen lds" % (12 + i, S_W1, S_W1 + 3, sT1), "w1c%d" % j)
            ops.append(nxt)
        return ops

    def w1_voffs(self):
        a = self.a
        V = 12
        a("s_mul_i32 s%d, s%d, %d" % (sT0, sRW, 16 * 2752))
        a("s_lshl_b32 s%d, s%d, 1" % (sT1, sF0))
        a("s_add_u32 s%d, s%d, s%d" % (sT0, sT0, sT1))
        a("s_lshl_b32 s%d, s%d, 1" % (sT1, sNB))
        a("v_mov_b32 v7, 0x40000000")
        for i in range(6):
            a("v_add_u32 v2, %d, v1" % (64 * i))
            a("v_mul_u32_u24 v3, 2731, v2")
            a("v_lshrrev_b32 v3, 16, v3")
            a("v_mul_u32_u24 v4, 24, v3")
            a("v_sub_u32 v4, v2, v4")
            a("v_and_b32 v5, 2, v3")
            a("v_lshrrev_b32 v6, 1, v3")
            a("v_and_b32 v6, 4, v6")
            a("v_or_b32 v5, v5, v6")
            a("v_xor_b32 v4, v4, v5")
            a("v_mul_u32_u24 v5, 2752, v3")
            a("v_lshl_add_u32 v5, v4, 4, v5")
            a("v_add_u32 v5, s%d, v5" % sT0)
            a("v_cmp_gt_u32 vcc, s%d, v4" % sT1)
            a("v_cndmask_b32 v%d, v7, v5, vcc" % (V + i))
        a("s_mul_i32 s%d, s%d, %d" % (sM0B, sRW, 16 * 384))
        a("s_add_u32 s%d, s%d, %d" % (sM0B, sM0B, L_W1))

    def line_prefetch(self, which, vd):
        a = self.a
        a("s_lshr_b32 s%d, s2, 3" % sT0)
        a("v_and_b32 v2, 255, v0")
        if "map42" not in self.exp:
            srd = S_W1 if which == "w1" else S_W2
            a("s_mul_i32 s%d, s%d, %d" % (sT0, sT0, 344 * 128))
            a("v_lshlrev_b32 v3, 7, v2")
            a("v_add_u32 v3, s%d, v3" % sT0)
            a.vmem("buffer_load_dword v%d, v3, s[%d:%d], 0 offen" % (vd, srd, srd + 3), "pf")
            a("v_cmp_gt_u32 vcc, %d, v2" % (344 - 256))
            a("v_add_u32 v3, 32768, v3")
            a("v_mov_b32 v4, 0x40000000")
            a("v_cndmask_b32 v3, v4, v3, vcc")
            a.vmem("buffer_load_dword v%d, v3, s[%d:%d], 0 offen" % (vd + 1, srd, srd + 3), "pf")
        elif which == "w2":
            a("s_mul_i32 s%d, s%d, 43" % (sT0, sT0))
            a("s_bfe_u32 s%d, s2, 0x10002" % sT1)
            a("s_lshl_b32 s%d, s%d, 9" % (sT1, sT1))
            a("s_lshl_b32 s%d, s%d, 10" % (sT0, sT0))
            a("s_add_u32 s%d, s%d, s%d" % (sT0, sT0, sT1))
            a("v_lshrrev_b32 v3, 2, v2")
            a("v_lshlrev_b32 v3, 10, v3")
            a("v_and_b32 v4, 3, v2")
            a("v_lshl_add_u32 v3, v4, 7, v3")
            a("v_add_u32 v3, s%d, v3" % sT0)
            a("v_cmp_gt_u32 vcc, 172, v2")
            a("v_mov_b32 v4, 0x40000000")
            a("v_cndmask_b32 v3, v4, v3, vcc")
            a.vmem("buffer_load_dword v%d, v3, s[%d:%d], 0 offen" % (vd, S_W2, S_W2 + 3), "pf")
        else:
            a("s_lshl_b32 s%d, s%d, 4" % (sT0, sT0))
            a("s_mul_i32 s%d, s%d, 2752" % (sT0, sT0))
            a("s_bfe_u32 s%d, s2, 0x10002" % sT1)
            a("s_mul_i32 s%d, s%d, 1472" % (sT1, sT1))
            a("s_add_u32 s%d, s%d, s%d" % (sT0, sT0, sT1))
            a("v_mul_u32_u24 v3, 5462, v2")
            a("v_lshrrev_b32 v3, 16, v3")
            a("v_mul_u32_u24 v4, 12, v3")
            a("v_sub_u32 v4, v2, v4")
            a("v_mul_u32_u24 v3, 2752, v3")
            a("v_lshl_add_u32 v3, v4, 7, v3")
            a("v_add_u32 v3, s%d, v3" % sT0)
            a("v_cmp_gt_u32 vcc, 192, v2")
            a("v_mov_b32 v4, 0x40000000")
            a("v_cndmask_b32 v3, v4, v3, vcc")
            a.vmem("buffer_load_dword v%d, v3, s[%d:%d], 0 offen" % (vd, S_W1, S_W1 + 3), "pf")

    def w1_tail_prefetch(self, vd):
        a = self.a
        a("s_lshr_b32 s%d, s2, 3" % sT0)
        r0 = self.pfw_r0; per = (512 - r0) // 32
        a("s_mul_i32 s%d, s%d, %d" % (sT0, sT0, per))
        a("s_add_u32 s%d, s%d, %d" % (sT0, sT0, r0))
        a("s_mul_i32 s%d, s%d, 2752" % (sT0, sT0))
        a("s_bfe_u32 s%d, s2, 0x10002" % sT1)
        a("s_mul_i32 s%d, s%d, 1472" % (sT1, sT1))
        a("s_add_u32 s%d, s%d, s%d" % (sT0, sT0, sT1))
        a("v_and_b32 v2, 255, v0")
        a("v_mul_u32_u24 v3, 5462, v2")
        a("v_lshrrev_b32 v3, 16, v3")
        a("v_mul_u32_u24 v4, 12, v3")
        a("v_sub_u32 v4, v2, v4")
        a("v_mul_u32_u24 v3, 2752, v3")
        a("v_lshl_add_u32 v3, v4, 7, v3")
        a("v_add_u32 v3, s%d, v3" % sT0)
        a("v_cmp_gt_u32 vcc, %d, v2" % (12 * per))
        a("v_mov_b32 v4, 0x40000000")
        a("v_cndmask_b32 v3, v4, v3, vcc")
        a.vmem("buffer_load_dword v%d, v3, s[%d:%d], 0 offen" % (vd, S_W1, S_W1 + 3), "pf")

    def m_front(self):
        a = self.a
        a("v_lshrrev_b32 v3, 5, v0")
        a("v_and_b32 v4, 31, v0")
        a("s_lshl_b32 s%d, s%d, 16" % (sT0, sR))
        a("s_lshl_b32 s%d, s%d, 7" % (sT1, sC))
        a("s_add_u32 s%d, s%d, s%d" % (sT0, sT0, sT1))
        a("v_lshlrev_b32 v2, 13, v3")
        a("v_lshl_add_u32 v2, v4, 2, v2")
        a("v_add_u32 v2, s%d, v2" % sT0)
        a("v_add_u32 v5, 0xfffff400, v2")
        a("v_add_u32 v6, 0xfffff800, v2")
        a("v_add_u32 v7, 0xfffffc00, v2")
        a("v_add_u32 v8, 4096, v2")
        a("s_lshl_b32 s%d, s%d, 9" % (sT2, sC))
        a("v_lshlrev_b32 v9, 4, v4")
        a("v_add_u32 v9, s%d, v9" % sT2)
        a.lg0()
        a("s_mov_b64 s[12:13], s[66:67]")
        a("s_mov_b64 s[16:17], s[68:69]")
        a("s_mov_b64 s[40:41], s[70:71]")
        a("s_mov_b64 s[8:9], s[64:65]")
        if self.stamps:
            a("s_memrealtime s[4:5]"); a.lg0(); a("v_writelane_b32 v255, s4, 0")
        K, V, SH = 20, 32, 40
        if "noprep" in self.exp:
            a.vm.issue("prep")
        else:
          for t, r in enumerate((5, 6, 7)):
            a.vmem("buffer_load_dword v%d, v%d, s[%d:%d], 0 offen" % (K + t, r, S_K, S_K + 3), "prep")
          for t in range(8):
            a.vmem("buffer_load_dword v%d, v%d, s[%d:%d], 0 offen offset:%d" % (K + 3 + t, 2 if t < 4 else 8, S_K, S_K + 3, 1024 * (t & 3)), "prep")
          a.vmem("buffer_load_dwordx4 v[40:43], v9, s[%d:%d], 0 offen" % (S_SH, S_SH + 3), "prep")
          for t in range(8):
            a.vmem("buffer_load_dword v%d, v%d, s[%d:%d], 0 offen offset:%d" % (V + t, 2 if t < 4 else 8, S_V, S_V + 3, 1024 * (t & 3)), "prep")
        a("s_branch L_Mrest")
        self.h_first()
        a.label("L_Mrest")
        a.vm = self.vm_m_first
        self.rot_calc()
        self.p0_rest()
        a("s_waitcnt lgkmcnt(0)")
        a("s_barrier")
        if "pfM" in self.exp:
            self.line_prefetch("w1", 240)
        if not self.noflags:
            a("s_or_b32 s%d, s2, s%d" % (sT1, sW))
            a("s_cmp_lg_u32 s%d, 0" % sT1)
            a("s_cbranch_scc1 L_nononce")
            a("s_memrealtime s[4:5]")
            a("s_waitcnt lgkmcnt(0)")
            a("s_or_b32 s4, s4, 1")
            a("v_mov_b32 v2, s4")
            a("v_mov_b32 v3, 0")
            a("s_mov_b64 exec, 1")
            a("buffer_store_dword v2, v3, s[%d:%d], 0 offen sc1" % (S_DBG, S_DBG + 3))
            a("s_mov_b64 exec, -1")
            a.label("L_nononce")
        if "flagpf" in self.exp:
            a("s_lshl_b32 s%d, s%d, 7" % (sT0, sID))
            a("s_lshl_b32 s%d, s%d, 3" % (sT1, sR))
            a("s_add_u32 s%d, s%d, s%d" % (sT1, sT1, sC))
            a("s_lshl_b32 s%d, s%d, 7" % (sT1, sT1))
            a("s_add_u32 s%d, s%d, 0x%x" % (sT2, sT0, F_H1))
            a("v_mov_b32 v2, s%d" % sT2)
            a("s_add_u32 s%d, s%d, 0x%x" % (sT2, sT1, F_H2))
            a("v_writelane_b32 v2, s%d, 1" % sT2)
            a("s_add_u32 s%d, s%d, 0x%x" % (sT2, sT0, F_H3))
            a("v_writelane_b32 v2, s%d, 2" % sT2)
            a("s_mov_b64 exec, 7")
            a.vmem("buffer_load_dword v243, v2, s[%d:%d], 0 offen" % (S_WS, S_WS + 3), "pf")
            a("s_mov_b64 exec, -1")
        self.w1_voffs()
        self.m_gemm1_setup()
        a("s_lshl_b32 s%d, s%d, 7" % (sT0, sC))
        a("s_lshl_b32 s%d, s%d, 2" % (sT1, sR))
        a("s_add_u32 s%d, s%d, s%d" % (sT0, sT0, sT1))
        a("s_load_dword s%d, s[%d:%d], s%d" % (sDD, sDP, sDP + 1, sT0))

    def m_gemm1_setup(self):
        a = self.a
        AX = 8; AW = [9, 10, 11]
        a("v_and_b32 v2, 15, v1")
        a("v_lshrrev_b32 v3, 4, v1")
        a("v_lshlrev_b32 v4, 1, v3")
        a("v_xor_b32 v4, v2, v4")
        a("v_lshlrev_b32 v4, 4, v4")
        a("v_lshl_add_u32 v%d, v3, 8, v4" % AX)
        a("v_lshrrev_b32 v5, 2, v2")
        a("v_lshl_add_u32 v4, v3, 3, v5")
        a("v_mul_u32_u24 v4, 384, v4")
        a("v_and_b32 v6, 3, v1")
        a("v_lshl_add_u32 v4, v6, 3, v4")
        a("v_lshrrev_b32 v5, 1, v5")
        a("v_and_b32 v6, 1, v3")
        a("v_lshl_add_u32 v5, v6, 1, v5")
        a("s_mul_i32 s%d, s%d, 3" % (sT0, sRW))
        for b in range(3):
            a("s_add_u32 s%d, s%d, %d" % (sT1, sT0, b))
            a("v_xor_b32 v6, s%d, v5" % sT1)
            a("v_lshl_add_u32 v6, v6, 5, v4")
            a("v_add_u32 v%d, %d, v6" % (AW[b], L_W1))
        a("v_lshlrev_b32 v5, 4, v2")
        a("v_lshrrev_b32 v4, 1, v3")
        a("v_lshl_add_u32 v5, v4, 8, v5")
        a("v_and_b32 v4, 1, v3")
        if "st16" in self.exp:
            a("v_mul_u32_u24 v4, 44032, v4")
            a("v_add_u32 v5, v5, v4")
        else:
            a("v_lshl_add_u32 v5, v4, 3, v5")
        a("s_lshr_b32 s%d, s%d, 4" % (sBP, sF0))
        a("s_mul_i32 s%d, s%d, %d" % (sT0, sR, 4 * 44032))
        a("s_mul_i32 s%d, s%d, 3" % (sT1, sRW))
        a("s_add_u32 s%d, s%d, s%d" % (sT2, sT1, sBP))
        a("s_lshl_b32 s%d, s%d, 9" % (sT2, sT2))
        a("s_add_u32 s%d, s%d, s%d" % (sT0, sT0, sT2))
        a("s_add_u32 s%d, s%d, 0x%x" % (sT0, sT0, WS_H))
        a("v_add_u32 v168, s%d, v5" % sT0)
        for tb in range(1, 4):
            a("v_add_u32 v%d, %d, v168" % (168 + tb, 44032 * tb))
        for b, sr_ in ((1, sINV1), (2, sINV2)):
            a("s_add_u32 s%d, s%d, %d" % (sT2, sT1, b))
            a("s_cmp_lt_u32 s%d, s%d" % (sT2, sNB))
            a("s_cselect_b32 s%d, 0, 0x40000000" % sr_)

    def m_prep(self):
        a = self.a
        K, V, SH = 20, 32, 40
        WL, WH = 44, 48
        PL, PH = 52, 56
        PP, AC = 60, 64
        TA, TB = 68, 72
        KV = 76
        OUT = 92
        dma = []
        if "V2" in self.exp:
            for f in self.w1_dma_ops(0) + self.w1_dma_ops(1): f()
        if "V4" in self.exp:
            for f in self.w1_dma_ops(0): f()
            dma = self.w1_dma_ops(1) + self.w1_dma_ops(2)
        if "V5" in self.exp:
            for f in self.w1_dma_ops(0) + self.w1_dma_ops(1): f()
            dma = self.w1_dma_ops(2)
        if "pfWa" in self.exp: self.w1_tail_prefetch(241)
        if "noprep" in self.exp:
            a.vm.issue("kvt")
            if not self.noflags:
                a("v_mov_b32 v7, 0")
                a.vmem("buffer_load_dword v19, v7, s[%d:%d], 0 offen sc1" % (S_DBG, S_DBG + 3), "nonce")
            for f in self.w1_dma_ops(2): f()
            return
        a.wait_vm("prep")
        self.stamp(12)
        seq = []; e = seq.append
        e("v_and_b32 v%d, v%d, v%d" % (WL + 0, vMLO, SH + 0)); e("v_lshrrev_b32 v%d, 16, v%d" % (WL + 1, SH + 0))
        e("v_and_b32 v%d, v%d, v%d" % (WL + 2, vMLO, SH + 1)); e("v_lshrrev_b32 v%d, 16, v%d" % (WL + 3, SH + 1))
        e("v_lshlrev_b32 v%d, 16, v%d" % (WH + 0, SH + 2)); e("v_and_b32 v%d, v%d, v%d" % (WH + 1, vMHI, SH + 2))
        e("v_lshlrev_b32 v%d, 16, v%d" % (WH + 2, SH + 3)); e("v_and_b32 v%d, v%d, v%d" % (WH + 3, vMHI, SH + 3))
        for hb in range(2):
            r0 = 4 * hb
            if "relax_prep" in self.exp:
                for r in range(4):
                    e("v_dot2_f32_bf16 v%d, v%d, v%d, 0" % (PL + r, K + r0 + r, WL + 3))
                    e("v_dot2_f32_bf16 v%d, v%d, v%d, 0" % (PH + r, K + r0 + r, WH + 3))
                for j in (2, 1, 0):
                    for r in range(4):
                        e("v_dot2_f32_bf16 v%d, v%d, v%d, v%d" % (PL + r, K + 3 + r0 + r - j, WL + j, PL + r))
                        e("v_dot2_f32_bf16 v%d, v%d, v%d, v%d" % (PH + r, K + 3 + r0 + r - j, WH + j, PH + r))
                for r in range(4):
                    e("v_cvt_pk_bf16_f32 v%d, v%d, v%d" % (AC + r, PL + r, PH + r))
            else:
                for j in (3, 2, 1, 0):
                    for r in range(4):
                        e("v_dot2_f32_bf16 v%d, v%d, v%d, 0" % (PL + r, K + 3 + r0 + r - j, WL + j))
                        e("v_dot2_f32_bf16 v%d, v%d, v%d, 0" % (PH + r, K + 3 + r0 + r - j, WH + j))
                    dstp = AC if j == 3 else PP
                    for r in range(4):
                        e("v_cvt_pk_bf16_f32 v%d, v%d, v%d" % (dstp + r, PL + r, PH + r))
                    if j != 3:
                        for r in range(4):
                            e("v_perm_b32 v%d, v%d, v%d, s%d" % (TA + r, PP + r, AC + r, sP0))
                            e("v_perm_b32 v%d, v%d, v%d, s%d" % (TB + r, PP + r, AC + r, sP1))
                        for r in range(4):
                            e("v_dot2_f32_bf16 v%d, v%d, v%d, 0" % (PL + r, TA + r, vONES))
                            e("v_dot2_f32_bf16 v%d, v%d, v%d, 0" % (PH + r, TB + r, vONES))
                        for r in range(4):
                            e("v_cvt_pk_bf16_f32 v%d, v%d, v%d" % (AC + r, PL + r, PH + r))
            for r in range(4):
                e("v_and_b32 v%d, v%d, v%d" % (TA + r, vMLO, V + r0 + r))
                e("v_and_b32 v%d, v%d, v%d" % (TB + r, vMHI, V + r0 + r))
            for r in range(4):
                e("v_dot2_f32_bf16 v%d, v%d, v%d, 0" % (KV + r0 + r, AC + r, TA + r))
                e("v_dot2_f32_bf16 v%d, v%d, v%d, 0" % (KV + 8 + r0 + r, AC + r, TB + r))
        e("v_and_b32 v2, 31, v0"); e("v_mul_u32_u24 v2, 288, v2"); e("v_lshrrev_b32 v3, 5, v0"); e("v_lshlrev_b32 v3, 4, v3")
        e("v_sub_u32 v2, v2, v3"); e("v_add_u32 v2, %d, v2" % (L_PREP + 112))
        for ch in range(2):
            for d in range(4):
                e("v_cvt_pk_bf16_f32 v%d, v%d, v%d" % (OUT + 4 * ch + d, KV + 8 * ch + 7 - 2 * d, KV + 8 * ch + 6 - 2 * d))
        self.spread(seq, dma)
        self.stamp(20)
        a("ds_write_b128 v2, v[%d:%d]" % (OUT, OUT + 3))
        a("ds_write_b128 v2, v[%d:%d] offset:144" % (OUT + 4, OUT + 7))
        a("v_lshrrev_b32 v2, 3, v0")
        a("v_and_b32 v3, 7, v0")
        a("v_mul_u32_u24 v4, 144, v2")
        a("v_lshl_add_u32 v4, v3, 4, v4")
        a("v_add_u32 v4, %d, v4" % L_PREP)
        a("s_lshl_b32 s%d, s%d, 18" % (sT0, sC))
        a("s_lshl_b32 s%d, s%d, 7" % (sT1, sR))
        a("s_sub_u32 s%d, s%d, s%d" % (sT0, sT0, sT1))
        a("s_add_u32 s%d, s%d, %d" % (sT0, sT0, WS_KVT + 3968))
        a("v_lshlrev_b32 v5, 12, v2")
        a("v_lshl_add_u32 v5, v3, 4, v5")
        a("v_add_u32 v5, s%d, v5" % sT0)
        a("v_add_u32 v6, %d, v5" % (32 * 4096))
        if "dmafirst" in self.exp:
            for f in self.w1_dma_ops(0) + self.w1_dma_ops(1) + self.w1_dma_ops(2): f()
            self.stamp(15)
        self.m_sync(13, va=2, vb=3)
        a("ds_read_b128 v[92:95], v4")
        a("ds_read_b128 v[96:99], v4 offset:%d" % (32 * 144))
        a.lg0()
        a.vmem("buffer_store_dwordx4 v[92:95], v5, s[%d:%d], 0 offen sc1" % (S_WS, S_WS + 3), "kvt")
        a.vmem("buffer_store_dwordx4 v[96:99], v6, s[%d:%d], 0 offen sc1" % (S_WS, S_WS + 3), "kvt")
        if not self.noflags:
            a("v_mov_b32 v7, 0")
            a.vmem("buffer_load_dword v19, v7, s[%d:%d], 0 offen sc1" % (S_DBG, S_DBG + 3), "nonce")
        if "pfWb" in self.exp: self.w1_tail_prefetch(241)
        if "dmafirst" not in self.exp:
            self.stamp(15)
            if "V3" in self.exp: lst = self.w1_dma_ops(2) + self.w1_dma_ops(3)
            elif "V2" in self.exp: lst = self.w1_dma_ops(2)
            elif "V4" in self.exp or "V5" in self.exp: lst = []
            else: lst = self.w1_dma_ops(0) + self.w1_dma_ops(1) + self.w1_dma_ops(2)
            for f in lst: f()

    def m_gemm1(self):
        a = self.a
        ACC = 20
        BUF = [68, 96, 124]
        AX = 8; AW = [9, 10, 11]
        UREG = 152
        for i in range(48):
            a("v_mov_b32 v%d, 0" % (ACC + i))

        def read_ops(ks):
            buf = BUF[ks % 3]
            j = ks >> 1; ksl = ks & 1; slot = j % NW1
            pre = []
            if ksl == 0 and j > 0:
                d = W1_SLOT if slot != 0 else -(NW1 - 1) * W1_SLOT
                for b in range(3):
                    pre.append("v_add_u32 v%d, %d, v%d" % (AW[b], d & 0xffffffff, AW[b]))
            so = ksl * 32 * 384
            def rx(t):
                return lambda: a.lds("ds_read_b128 v[%d:%d], v%d offset:%d" % (buf + 4 * t, buf + 4 * t + 3, AX, L_XN + (j % NXN) * 8192 + t * 2048 + ksl * 1024), "x%d_%d" % (ks, t))
            def rw(b, hh):
                r0 = buf + 16 + 4 * b + 2 * hh
                return lambda: a.lds("ds_read_b64_tr_b16 v[%d:%d], v%d offset:%d" % (r0, r0 + 1, AW[b], so + hh * 4 * 384), "w%d_%d" % (ks, b))
            if "mnoreads" in self.exp: return pre
            return pre + [rw(0, 0), rw(0, 1), rx(0), rx(1), rx(2), rx(3), rw(1, 0), rw(1, 1), rw(2, 0), rw(2, 1)]

        def mfma_ops(ks):
            cur = BUF[ks % 3]
            ops = []
            for b in range(3):
                for t in range(4):
                    def f(b=b, t=t):
                        if "finewait" in self.exp:
                            a.need_lds("w%d_%d" % (ks, b), "x%d_%d" % (ks, t))
                        elif b == 0 and t == 0:
                            a.need_lds(*(["w%d_%d" % (ks, bb) for bb in range(3)] + ["x%d_%d" % (ks, tt) for tt in range(4)]))
                        acc = ACC + (b * 4 + t) * 4
                        if "mnomfma" in self.exp: return
                        a("v_mfma_f32_16x16x32_bf16 v[%d:%d], v[%d:%d], v[%d:%d], v[%d:%d]" % (
                            acc, acc + 3, cur + 16 + 4 * b, cur + 19 + 4 * b, cur + 4 * t, cur + 4 * t + 3, acc, acc + 3))
                    ops.append(f)
            return ops

        if not self.noflags and "V1" in self.exp: self.publish_h1()
        if "V3" not in self.exp: a.wait_vm("w1c1")
        a("s_barrier")
        self.stamp(14)
        for f in read_ops(0): self.run(f)
        if self.h1j == 0 and not self.noflags and "V1" not in self.exp:
            q_l = (list(a.lg.q), a.lg_done)
            self.publish_h1()
        for f in read_ops(1)[:5]: self.run(f)
        pend = read_ops(1)[5:]
        for j in range(8):
            if j >= 1 and j <= 6:
                if not ("mnodma" in self.exp and j + 1 >= 3) and "novmw" not in self.exp: a.wait_vm("w1c%d" % (j + 1))
                a("s_barrier")
                if "itst" in self.exp: self.stamp(22 + j)
                if j == self.h1j and not self.noflags and "V1" not in self.exp: self.publish_h1()
            dm = self.w1_dma_ops(j + 4) if (j + 4 <= 7) else []
            if j == 0 and "V3" not in self.exp: dm = self.w1_dma_ops(3) + dm
            if "mnodma" in self.exp:
                for _ in dm: a.vm.issue("dummy")
                dm = []
            ex = []
            for half in range(2):
                ks = 2 * j + half
                fill = list(pend); pend = []
                if ks + 2 <= 15:
                    fill += read_ops(ks + 2)
                hlf = (len(dm) + 1) // 2
                extra = (dm[:hlf] + ex if half == 0 else dm[hlf:])
                interleave(a, mfma_ops(ks), merge(fill, extra))
        a.lg0()
        self.stamp(2)
        HB = 68
        for i in range(12):
            a("v_cvt_pk_bf16_f32 v%d, v%d, v%d" % (HB + 2 * i, ACC + 4 * i, ACC + 4 * i + 1))
            a("v_cvt_pk_bf16_f32 v%d, v%d, v%d" % (HB + 2 * i + 1, ACC + 4 * i + 2, ACC + 4 * i + 3))
        for i in range(24):
            a("v_pk_max_i16 v%d, v%d, 0" % (HB + i, HB + i))
        if "st16" in self.exp:
            for b in range(3):
                for u in range(2):
                    r = HB + 8 * b + 4 * u
                    a("v_permlane16_swap_b32 v%d, v%d" % (r, r + 2))
                    a("v_permlane16_swap_b32 v%d, v%d" % (r + 1, r + 3))
            for b in range(3):
                so = "0" if b == 0 else "s%d" % (sINV1 if b == 1 else sINV2)
                for u in range(2):
                    r = HB + 8 * b + 4 * u
                    a.vmem("buffer_store_dwordx4 v[%d:%d], v%d, s[%d:%d], %s offen offset:%d sc1" % (r, r + 3, 168 + 2 * u, S_WS, S_WS + 3, so, 512 * b), "hst")
        elif "nohst" in self.exp:
            a.vm.issue("hst")
        else:
          for b in range(3):
            so = "0" if b == 0 else "s%d" % (sINV1 if b == 1 else sINV2)
            for t in range(4):
                r = HB + (b * 4 + t) * 2
                a.vmem("buffer_store_dwordx2 v[%d:%d], v%d, s[%d:%d], %s offen offset:%d sc1" % (r, r + 1, 168 + t, S_WS, S_WS + 3, so, 512 * b), "hst")
        if "h2pre" in self.exp and not self.noflags:
            self.publish_h2()
        a("s_barrier")

    def get_nonce(self):
        if self.noflags: return
        a = self.a
        a.wait_vm("nonce")
        lo = a.newlabel("L_nz"); lp = a.newlabel("L_nl")
        a("v_readfirstlane_b32 s%d, v19" % sNONCE)
        a("s_nop 3")
        a("s_cmp_lg_u32 s%d, 0" % sNONCE)
        a("s_cbranch_scc1 %s" % lo)
        a("s_mov_b32 s%d, 0" % sT3)
        a.label(lp)
        a("v_mov_b32 v7, 0")
        a("buffer_load_dword v19, v7, s[%d:%d], 0 offen sc1" % (S_DBG, S_DBG + 3))
        a("s_waitcnt vmcnt(0)")
        a("v_readfirstlane_b32 s%d, v19" % sNONCE)
        a("s_add_u32 s%d, s%d, 1" % (sT3, sT3))
        a("s_cmp_gt_u32 s%d, 100000" % sT3)
        a("s_cbranch_scc1 %s" % lo)
        a("s_cmp_eq_u32 s%d, 0" % sNONCE)
        a("s_cbranch_scc1 %s" % lp)
        a.label(lo)

    def flag_store(self, off_sreg, tag, va=2, vb=3):
        if self.noflags: return
        a = self.a
        a("v_mov_b32 v%d, s%d" % (va, off_sreg))
        a("v_mov_b32 v%d, s%d" % (vb, sNONCE))
        a("s_mov_b64 exec, 1")
        a.vmem("buffer_store_dword v%d, v%d, s[%d:%d], 0 offen sc1" % (vb, va, S_WS, S_WS + 3), tag)
        a("s_mov_b64 exec, -1")

    def publish_h1(self):
        a = self.a
        self.get_nonce()
        if "noprep" in self.exp: return
        a.wait_vm("kvt")
        a("s_lshl_b32 s%d, s%d, 7" % (sT0, sID))
        a("s_lshl_b32 s%d, s%d, 2" % (sT2, sRW))
        a("s_add_u32 s%d, s%d, s%d" % (sT0, sT0, sT2))
        a("s_add_u32 s%d, s%d, 0x%x" % (sT0, sT0, F_H1))
        self.flag_store(sT0, "flag")

    def poll(self, base_sreg, nlanes, width, stride):
        if self.noflags: return
        a = self.a
        lp = a.newlabel("L_poll"); dn = a.newlabel("L_pdone")
        a("v_mul_u32_u24 v2, %d, v1" % stride)
        a("v_add_u32 v2, s%d, v2" % base_sreg)
        a("s_mov_b32 s%d, 0" % sT3)
        if nlanes <= 16: a("s_mov_b64 exec, 0x%x" % ((1 << nlanes) - 1))
        else:
            a("s_mov_b32 exec_lo, -1"); a("s_mov_b32 exec_hi, 0")
        a.label(lp)
        if width == 1:
            a("buffer_load_dword v4, v2, s[%d:%d], 0 offen sc1" % (S_WS, S_WS + 3))
            a("s_waitcnt vmcnt(0)")
            a("v_cmp_ne_u32 vcc, s%d, v4" % sNONCE)
        else:
            a("buffer_load_dwordx4 v[4:7], v2, s[%d:%d], 0 offen sc1" % (S_WS, S_WS + 3))
            a("s_waitcnt vmcnt(0)")
            for i in range(4): a("v_xor_b32 v%d, s%d, v%d" % (4 + i, sNONCE, 4 + i))
            a("v_or3_b32 v4, v4, v5, v6")
            a("v_or_b32 v4, v4, v7")
            a("v_cmp_ne_u32 vcc, 0, v4")
        a("s_add_u32 s%d, s%d, 1" % (sT3, sT3))
        a("s_cmp_gt_u32 s%d, 100000" % sT3)
        a("s_cbranch_scc1 %s" % dn)
        a("s_cbranch_vccnz %s" % lp)
        a.label(dn)
        a("s_mov_b64 exec, -1")

    def lds_wait(self, addr_sreg, val=1, va=16, vb=17):
        a = self.a
        lp = a.newlabel("L_ps"); dn = a.newlabel("L_psd")
        a("v_mov_b32 v%d, s%d" % (va, addr_sreg))
        a("s_mov_b32 s%d, 0" % sT3)
        a.label(lp)
        a("ds_read_b32 v%d, v%d" % (vb, va))
        a("s_waitcnt lgkmcnt(0)")
        a("v_readfirstlane_b32 s4, v%d" % vb)
        a("s_add_u32 s%d, s%d, 1" % (sT3, sT3))
        a("s_cmp_ge_u32 s4, %d" % val)
        a("s_cbranch_scc1 %s" % dn)
        a("s_cmp_lt_u32 s%d, 1000000" % sT3)
        a("s_cbranch_scc1 %s" % lp)
        a.label(dn)
        a.lg_clear()

    def m_sync(self, word, n=4, va=16, vb=17):
        a = self.a
        a("v_mov_b32 v%d, %d" % (va, L_SYNC + 4 * word))
        a("v_mov_b32 v%d, 1" % vb)
        a.lg0()
        a("s_mov_b64 exec, 1")
        a("ds_add_u32 v%d, v%d" % (va, vb))
        a("s_mov_b64 exec, -1")
        a("s_mov_b32 s5, %d" % (L_SYNC + 4 * word))
        self.lds_wait(5, n, va, vb)

    def pair_sync(self, stage, va=16, vb=17):
        a = self.a
        a("s_lshl_b32 s4, s%d, 2" % sRW)
        a("s_add_u32 s4, s4, %d" % (L_SYNC + 16 * stage))
        a("s_xor_b32 s5, s4, 4")
        a("v_mov_b32 v%d, s4" % va)
        a("v_mov_b32 v%d, 1" % vb)
        a.lg0()
        a("ds_write_b32 v%d, v%d" % (va, vb))
        self.lds_wait(5, 1, va, vb)

    def publish_h2(self):
        a = self.a
        a.wait_vm("hst")
        a("s_lshl_b32 s4, s%d, 3" % sR)
        a("s_add_u32 s4, s4, s%d" % sC)
        a("s_lshl_b32 s4, s4, 7")
        a("s_lshl_b32 s5, s%d, 2" % sRW)
        a("s_add_u32 s4, s4, s5")
        a("s_add_u32 s%d, s4, 0x%x" % (sT2, F_H2))
        self.flag_store(sT2, "flag", 4, 5)

    def m_conv(self):
        a = self.a
        BF, ACC, AF, NA = 20, 148, 180, 16
        AU, AT = 2, 3
        a("v_and_b32 v8, 15, v1")
        a("v_lshrrev_b32 v9, 4, v1")
        a("v_lshlrev_b32 v10, 4, v9")
        a("v_lshlrev_b32 v11, 5, v8")
        a("v_sub_u32 v10, v10, v11")
        a("s_lshr_b32 s%d, s%d, 1" % (sT0, sRW))
        a("s_and_b32 s%d, s%d, 1" % (sT1, sRW))
        a("s_mul_i32 s%d, s%d, %d" % (sT2, sT0, U_CH))
        a("s_add_u32 s%d, s%d, %d" % (sT2, sT2, L_U + 2 * 2032 - 64 * 56))
        a("s_lshl_b32 s4, s%d, 6" % sT1)
        a("s_add_u32 s%d, s%d, s4" % (sT2, sT2))
        a("v_add_u32 v%d, s%d, v10" % (AU, sT2))
        a("v_and_b32 v10, 3, v8")
        a("v_mul_u32_u24 v10, %d, v10" % T_CP)
        a("v_lshrrev_b32 v11, 2, v8")
        a("v_lshl_add_u32 v10, v11, 3, v10")
        a("v_lshl_add_u32 v10, v9, 4, v10")
        a("s_mul_i32 s%d, s%d, %d" % (sT2, sT0, T_CH))
        a("s_add_u32 s%d, s%d, s4" % (sT2, sT2))
        a("s_add_u32 s%d, s%d, %d" % (sT2, sT2, L_T))
        a("v_add_u32 v%d, s%d, v10" % (AT, sT2))
        a("v_lshl_add_u32 v10, v9, 3, v8")
        a("s_lshl_b32 s4, s%d, 5" % sT1)
        a("v_add_u32 v10, s4, v10")
        MK = 12
        for d in range(4):
            a("v_sub_u32 v11, %d, v10" % (15 - 2 * d))
            a("v_med3_i32 v11, v11, 0, 2")
            a("v_lshlrev_b32 v11, 4, v11")
            a("v_mov_b32 v%d, -1" % (MK + d))
            a("v_lshlrev_b32 v16, v11, v%d" % (MK + d))
            a("v_cmp_eq_u32 vcc, 32, v11")
            a("v_cndmask_b32_e64 v%d, v16, 0, vcc" % (MK + d))
        for i in range(32):
            a("v_mov_b32 v%d, 0" % (ACC + i))
        def emit_A(ee):
            r = AF + 4 * (ee % NA)
            a.lds("ds_read_b64 v[%d:%d], v%d offset:%d" % (r, r + 1, AT, 128 * ee), ("A", ee))
            a.lds("ds_read_b64 v[%d:%d], v%d offset:%d" % (r + 2, r + 3, AT, 128 * ee + 8), ("A", ee))
        def emit_B(idx):
            r = BF + 4 * idx
            a.lds("ds_read_b128 v[%d:%d], v%d offset:%d" % (r, r + 3, AU, 128 * idx), ("B", idx))
        sched = []
        for ee in range(32):
            for j in range(7, (ee >> 2) - 1, -1):
                sched.append((ee, j, 28 - 4 * j + ee))
        order = []; seen = set(); last_use_A = {}
        for n, (ee, j, idx) in enumerate(sched):
            for it in (("A", ee), ("B", idx)):
                if it not in seen:
                    seen.add(it); order.append(it)
            last_use_A[ee] = n
        ptr = 0; issued = set()
        def can_issue(item, n):
            if item[0] == "A" and item[1] >= NA:
                return last_use_A[item[1] - NA] < n
            return True
        def issue_next(n_now):
            nonlocal ptr
            if ptr < len(order) and can_issue(order[ptr], n_now):
                it = order[ptr]
                (emit_A if it[0] == "A" else emit_B)(it[1])
                issued.add(it); ptr += 1
                return True
            return False
        def inflight():
            return len(a.lg.q) - a.lg_done
        GRP = 4
        while inflight() < 14 and issue_next(0): pass
        masked = False
        for n, (ee, j, idx) in enumerate(sched):
            while ("A", ee) not in issued or ("B", idx) not in issued:
                assert issue_next(n)
            if not (a.lds_done(("A", ee)) and a.lds_done(("B", idx))):
                tags = [("A", ee), ("B", idx)]
                for (e2, j2, i2) in sched[n + 1:n + GRP]:
                    if ("A", e2) in issued and ("B", i2) in issued: tags += [("A", e2), ("B", i2)]
                    else: break
                a.need_lds(*tags)
            ar = AF + 4 * (ee % NA); br = BF + 4 * idx; acc = ACC + 4 * j
            if ee == 0 and not masked:
                for d in range(4): a("v_and_b32 v%d, v%d, v%d" % (ar + d, MK + d, ar + d))
                masked = True
            a("v_mfma_f32_16x16x32_bf16 v[%d:%d], v[%d:%d], v[%d:%d], v[%d:%d]" % (acc, acc + 3, ar, ar + 3, br, br + 3, acc, acc + 3))
            if inflight() < 14:
                issue_next(n + 1)
                if n < 40 and inflight() < 14: issue_next(n + 1)
            if n == self.h2n and not self.noflags and "h2pre" not in self.exp:
                self.publish_h2()
        self.stamp(16)
        self.pair_sync(0)
        a("v_lshlrev_b32 v4, 4, v1")
        a("s_mul_i32 s%d, s%d, %d" % (sT0, sT0, T_CH))
        a("s_add_u32 s%d, s%d, %d" % (sT0, sT0, L_T + 8))
        a("s_lshl_b32 s%d, s%d, 12" % (sT2, sT1))
        a("s_add_u32 s%d, s%d, s%d" % (sT2, sT2, sT0))
        a("v_add_u32 v5, s%d, v4" % sT2)
        a("s_xor_b32 s%d, s%d, 1" % (sT2, sT1))
        a("s_lshl_b32 s%d, s%d, 12" % (sT2, sT2))
        a("s_add_u32 s%d, s%d, s%d" % (sT2, sT2, sT0))
        a("v_add_u32 v6, s%d, v4" % sT2)
        l0 = a.newlabel("L_cr0"); l1 = a.newlabel("L_cr1")
        a("s_cmp_eq_u32 s%d, 0" % sT1)
        a("s_cbranch_scc1 %s" % l0)
        for i in range(4):
            a("ds_write_b128 v5, v[%d:%d] offset:%d" % (ACC + 4 * i, ACC + 4 * i + 3, 1024 * i))
        for i in range(16):
            a("v_mov_b32 v%d, v%d" % (200 + i, ACC + 16 + i))
        a("s_branch %s" % l1)
        a.label(l0)
        for i in range(4):
            a("ds_write_b128 v5, v[%d:%d] offset:%d" % (ACC + 16 + 4 * i, ACC + 16 + 4 * i + 3, 1024 * i))
        for i in range(16):
            a("v_mov_b32 v%d, v%d" % (200 + i, ACC + i))
        a.label(l1)
        a("v_and_b32 v4, 15, v1")
        a("v_lshrrev_b32 v7, 4, v1")
        a("v_lshlrev_b32 v4, 5, v4")
        a("v_lshl_add_u32 v4, v7, 3, v4")
        a("s_lshr_b32 s%d, s%d, 1" % (sT0, sRW))
        a("s_mul_i32 s%d, s%d, %d" % (sT2, sT0, U_CH))
        a("s_add_u32 s%d, s%d, %d" % (sT2, sT2, L_U + 2 * 2044 - 3 * 512))
        a("s_lshl_b32 s4, s%d, 11" % sT1)
        a("s_sub_u32 s%d, s%d, s4" % (sT2, sT2))
        a("v_sub_u32 v4, s%d, v4" % sT2)
        for i in range(4):
            a("ds_read_b64 v[%d:%d], v4 offset:%d" % (236 + 2 * i, 237 + 2 * i, (3 - i) * 512))
        a("s_and_b32 s4, s%d, 0xffff" % sDD)
        a("s_lshr_b32 s5, s%d, 16" % sDD)
        a("s_cmp_eq_u32 s%d, 0" % sT0)
        a("s_cselect_b32 s4, s4, s5")
        a("s_lshl_b32 s5, s4, 16")
        a("v_mov_b32 v8, s4")
        a("v_mov_b32 v9, s5")
        self.pair_sync(1)
        for i in range(4):
            a("ds_read_b128 v[%d:%d], v6 offset:%d" % (220 + 4 * i, 223 + 4 * i, 1024 * i))
        TT = 148
        for i in range(4):
            u0, u1 = 236 + 2 * i, 237 + 2 * i
            a("v_dot2_f32_bf16 v%d, v%d, v9, 0" % (TT + 4 * i + 0, u1))
            a("v_dot2_f32_bf16 v%d, v%d, v8, 0" % (TT + 4 * i + 1, u1))
            a("v_dot2_f32_bf16 v%d, v%d, v9, 0" % (TT + 4 * i + 2, u0))
            a("v_dot2_f32_bf16 v%d, v%d, v8, 0" % (TT + 4 * i + 3, u0))
        TB = 164
        for i in range(4):
            a("v_cvt_pk_bf16_f32 v%d, v%d, v%d" % (TB + 2 * i, TT + 4 * i, TT + 4 * i + 1))
            a("v_cvt_pk_bf16_f32 v%d, v%d, v%d" % (TB + 2 * i + 1, TT + 4 * i + 2, TT + 4 * i + 3))
        a("v_and_b32 v4, 15, v1")
        a("v_lshrrev_b32 v5, 2, v4")
        a("v_lshlrev_b32 v5, 16, v5")
        a("v_and_b32 v4, 3, v4")
        a("v_lshl_add_u32 v5, v4, 5, v5")
        a("v_lshrrev_b32 v7, 4, v1")
        if "st16" in self.exp:
            a("v_lshrrev_b32 v4, 1, v7")
            a("v_lshl_add_u32 v5, v4, 4, v5")
            a("v_and_b32 v4, 1, v7")
            a("v_lshl_add_u32 v5, v4, 18, v5")
        else:
            a("v_lshl_add_u32 v5, v7, 3, v5")
        a("s_lshl_b32 s%d, s%d, 6" % (sT2, sC))
        a("s_lshl_b32 s4, s%d, 1" % sR)
        a("s_add_u32 s%d, s%d, s4" % (sT2, sT2))
        a("s_add_u32 s%d, s%d, s%d" % (sT2, sT2, sT0))
        a("s_lshl_b32 s%d, s%d, 7" % (sT2, sT2))
        a("s_lshl_b32 s4, s%d, 20" % sT1)
        a("s_add_u32 s%d, s%d, s4" % (sT2, sT2))
        a("s_add_u32 s%d, s%d, 0x%x" % (sT2, sT2, WS_YT))
        a("v_add_u32 v5, s%d, v5" % sT2)
        a.lg0()
        for i in range(16):
            a("v_add_f32 v%d, v%d, v%d" % (200 + i, 200 + i, 220 + i))
        YB = 172
        for i in range(8):
            a("v_cvt_pk_bf16_f32 v%d, v%d, v%d" % (YB + i, 200 + 2 * i, 201 + 2 * i))
        for i in range(8):
            a("v_perm_b32 v%d, v%d, v%d, s%d" % (200 + 2 * i, TB + i, YB + i, sP0))
            a("v_perm_b32 v%d, v%d, v%d, s%d" % (201 + 2 * i, TB + i, YB + i, sP1))
        for i in range(16):
            a("v_dot2_f32_bf16 v%d, v%d, v%d, 0" % (220 + i, 200 + i, vONES))
        for i in range(8):
            a("v_cvt_pk_bf16_f32 v%d, v%d, v%d" % (180 + i, 220 + 2 * i, 221 + 2 * i))
        if "st16" in self.exp:
            for u in range(2):
                r = 180 + 4 * u
                a("v_permlane16_swap_b32 v%d, v%d" % (r, r + 2))
                a("v_permlane16_swap_b32 v%d, v%d" % (r + 1, r + 3))
            for u in range(2):
                if u: a("v_add_u32 v5, 0x80000, v5")
                a.vmem("buffer_store_dwordx4 v[%d:%d], v5, s[%d:%d], 0 offen sc1" % (180 + 4 * u, 183 + 4 * u, S_WS, S_WS + 3), "yst")
        else:
          for i in range(4):
            if i: a("v_add_u32 v5, 0x40000, v5")
            a.vmem("buffer_store_dwordx2 v[%d:%d], v5, s[%d:%d], 0 offen sc1" % (180 + 2 * i, 181 + 2 * i, S_WS, S_WS + 3), "yst")
        self.stamp(17)

    def w2_voff(self):
        a = self.a
        sh = 7 if self.w2s else 10
        a("v_lshrrev_b32 v2, 3, v1")
        a("v_and_b32 v2, 3, v2")
        a("v_lshrrev_b32 v3, 5, v1")
        a("v_lshl_add_u32 v2, v3, 3, v2")
        a("v_lshlrev_b32 v2, %d, v2" % sh)
        a("v_lshrrev_b32 v3, 4, v1")
        a("v_and_b32 v3, 3, v3")
        a("v_lshlrev_b32 v3, 1, v3")
        a("v_and_b32 v4, 7, v1")
        a("v_xor_b32 v3, v3, v4")
        a("v_lshl_add_u32 v2, v3, 4, v2")
        if self.w2s:
            a("s_mul_i32 s%d, s%d, 176128" % (sT0, sD))
            a("s_add_u32 s%d, s%d, 0x%x" % (sT0, sT0, WS_W2S))
        else:
            a("s_lshl_b32 s%d, s%d, 7" % (sT0, sD))
        a("v_add_u32 v14, s%d, v2" % sT0)

    def w2_dma(self, lds_base_sreg, lds_off, src_base_sreg, ks_off, tag):
        a = self.a
        inc = [0, 512, 1536, 512] if self.w2s else [0, 4096, 12288, 4096]
        srd = S_WS if self.w2s else S_W2
        fl = " sc1" if self.w2s else ""
        a("s_add_u32 s%d, s%d, %d" % (sT2, src_base_sreg, ks_off * self.KS))
        for m in range(4):
            a("s_add_u32 m0, s%d, %d" % (lds_base_sreg, lds_off + 1024 * m))
            if m: a("s_add_u32 s%d, s%d, %d" % (sT2, sT2, inc[m]))
            a.vmem("buffer_load_dwordx4 v14, s[%d:%d], s%d offen%s lds" % (srd, srd + 3, sT2, fl), tag)

    def w2_slot_dma(self, tag):
        a = self.a
        a("s_lshl_b32 s71, s%d, 12" % sT0)
        a("s_add_u32 s70, s%d, 9" % sT0)
        a("s_cmp_lt_u32 s%d, 13" % sT0)
        a("s_cselect_b32 s70, s%d, s70" % sT0)
        a("s_lshl_b32 s70, s70, %d" % (12 if self.w2s else 15))
        self.w2_dma(71, L_B, 70, 0, tag)

    def w2_early(self):
        a = self.a
        for m in range(3):
            a("s_add_u32 s%d, s%d, %d" % (sT0, sRW, 4 * m))
            if m == 2: a("s_min_u32 s%d, s%d, 9" % (sT0, sT0))
            if m >= 1: a("s_add_u32 s%d, s%d, 4" % (sT0, sT0))
            self.w2_slot_dma("w2e")

    def m_regionA(self):
        a = self.a
        self.w2_voff()
        a("s_lshr_b32 s75, s%d, 1" % sRW)
        a("s_and_b32 s76, s%d, 1" % sRW)
        a("s_mul_i32 s70, s75, %d" % (22 * self.KS))
        self.m_sync(12)
        a("s_mul_i32 s71, s75, %d" % (NA_H * 4096))
        a("s_add_u32 s71, s71, %d" % L_A)
        a("s_lshl_b32 s4, s76, 12")
        a("s_add_u32 s71, s71, s4")
        a("s_lshl_b32 s4, s76, %d" % (12 if self.w2s else 15))
        a("s_add_u32 s70, s70, s4")
        for m in range(3):
            self.w2_dma(71, 8192 * m, 70, 13 + 2 * m, "w2a")

    def n_after_w2a_min(self):
        return (0 if self.noflags else 1) + 4 + 1

    def m_tail(self):
        a = self.a
        self.m_regionA()
        a.wait_vm("yst")
        if not self.noflags:
            a("s_lshl_b32 s4, s%d, 7" % sID)
            a("s_lshl_b32 s5, s%d, 2" % sRW)
            a("s_add_u32 s4, s4, s5")
            a("s_add_u32 s%d, s4, 0x%x" % (sT2, F_H3))
            self.flag_store(sT2, "flag", 2, 3)
        self.stamp(21)
        a("s_mov_b32 s5, %d" % (L_SYNC + 56))
        self.lds_wait(5, 4)
        a("s_mul_i32 s71, s75, %d" % B_HALF)
        a("s_lshl_b32 s4, s76, 12")
        a("s_add_u32 s71, s71, s4")
        if L_B: a("s_add_u32 s71, s71, %d" % L_B)
        self.w2_dma(71, 0, 70, 19, "w2l")
        skl = a.newlabel("L_ml")
        a("s_cmp_eq_u32 s76, 1")
        a("s_cbranch_scc1 %s" % skl)
        self.w2_dma(71, 8192, 70, 21, "w2l")
        a.label(skl)
        self.final_x_load(self.XR, self.OA)
        a("v_lshrrev_b32 v3, 2, v0")
        a("v_and_b32 v4, 3, v0")
        a("v_lshlrev_b32 v5, 7, v3")
        a("v_lshl_add_u32 v5, v4, 5, v5")
        a("s_lshl_b32 s%d, s%d, 16" % (sT0, sR))
        a("s_lshl_b32 s%d, s%d, 13" % (sT1, sD))
        a("s_add_u32 s%d, s%d, s%d" % (sT0, sT0, sT1))
        a("s_add_u32 s%d, s%d, 0x%x" % (sT0, sT0, WS_YT))
        a("v_add_u32 v8, s%d, v5" % sT0)
        a("v_mul_u32_u24 v9, 144, v3")
        a("v_lshl_add_u32 v9, v4, 5, v9")
        a("v_add_u32 v9, %d, v9" % L_Y)
        early = "yearly" in self.exp and not self.noflags
        if early:
            a("s_lshl_b32 s%d, s%d, 12" % (sT0, sD))
            a("s_add_u32 s%d, s%d, 0x%x" % (sT0, sT0, F_H3))
            a("v_and_b32 v2, 31, v1")
            a("v_lshlrev_b32 v2, 7, v2")
            a("v_add_u32 v2, s%d, v2" % sT0)
            a("buffer_load_dwordx4 v[28:31], v2, s[%d:%d], 0 offen sc1" % (S_WS, S_WS + 3))
        a("s_waitcnt vmcnt(%d)" % (self.n_after_w2a_min() + (1 if early else 0)))
        self.stamp(18)
        a("s_barrier")
        a("s_waitcnt vmcnt(0)")
        def yloads():
            a("buffer_load_dwordx4 v[20:23], v8, s[%d:%d], 0 offen sc1" % (S_WS, S_WS + 3))
            a("buffer_load_dwordx4 v[24:27], v8, s[%d:%d], 0 offen offset:16 sc1" % (S_WS, S_WS + 3))
        if early:
            lslow = "L_yslow"; lback = "L_yback"
            for i in range(4): a("v_xor_b32 v%d, s%d, v%d" % (28 + i, sNONCE, 28 + i))
            a("v_or3_b32 v28, v28, v29, v30")
            a("v_or_b32 v28, v28, v31")
            a("v_cmp_ne_u32 vcc, 0, v28")
            a("s_cbranch_vccnz %s" % lslow)
            yloads()
            a("s_barrier")
            a.label(lback)
            self.yslow_body = yloads
        else:
            a("s_barrier")
            if not self.noflags and "noh3" not in self.exp:
                a("s_lshl_b32 s%d, s%d, 12" % (sT0, sD))
                a("s_add_u32 s%d, s%d, 0x%x" % (sT0, sT0, F_H3))
                self.poll(sT0, 32, 4, 128)
            yloads()
        self.stamp(7)
        a("s_waitcnt vmcnt(0)")
        a("ds_write_b128 v9, v[20:23]")
        a("ds_write_b128 v9, v[24:27] offset:16")
        a.lg0()
        a("s_barrier")

    def y_slow(self):
        a = self.a
        a.label("L_yslow")
        a("s_barrier")
        a("s_lshl_b32 s%d, s%d, 12" % (sT0, sD))
        a("s_add_u32 s%d, s%d, 0x%x" % (sT0, sT0, F_H3))
        self.poll(sT0, 32, 4, 128)
        self.yslow_body()
        a("s_branch L_yback")

    def final_x_load(self, xr, ar, t0=2, t1=3):
        a = self.a
        a("s_and_b32 s%d, s%d, 3" % (sT0, sW))
        a("s_lshl_b32 s%d, s%d, 4" % (sT0, sT0))
        a("s_lshl_b32 s%d, s%d, 6" % (sT1, sR))
        a("s_add_u32 s%d, s%d, s%d" % (sT0, sT0, sT1))
        a("s_lshl_b32 s%d, s%d, 10" % (sT0, sT0))
        a("s_lshl_b32 s%d, s%d, 7" % (sT1, sD))
        a("s_add_u32 s%d, s%d, s%d" % (sT0, sT0, sT1))
        a("s_lshr_b32 s%d, s%d, 2" % (sT1, sW))
        a("s_lshl_b32 s%d, s%d, 6" % (sT1, sT1))
        a("s_add_u32 s%d, s%d, s%d" % (sT0, sT0, sT1))
        a("v_lshrrev_b32 v%d, 2, v1" % t0)
        a("v_lshlrev_b32 v%d, 10, v%d" % (t0, t0))
        a("v_and_b32 v%d, 3, v1" % t1)
        a("v_lshl_add_u32 v%d, v%d, 4, v%d" % (t0, t1, t0))
        a("v_add_u32 v%d, s%d, v%d" % (ar, sT0, t0))
        a.vmem("buffer_load_dwordx4 v[%d:%d], v%d, s[%d:%d], 0 offen" % (xr, xr + 3, ar, S_X, S_X + 3), "xf")

    def u_slow(self):
        a = self.a
        a.label("L_uslow")
        a("s_lshl_b32 s%d, s%d, 12" % (sT0, sC))
        a("s_add_u32 s%d, s%d, 0x%x" % (sT0, sT0, F_H1))
        self.poll(sT0, 32, 1, 128)
        for i in range(4):
            a("buffer_load_dwordx4 v[%d:%d], v172, s[%d:%d], 0 offen offset:%d sc1" % (152 + 4 * i, 155 + 4 * i, S_WS, S_WS + 3, 1024 * i))
        a("s_waitcnt vmcnt(0)")
        for i in range(4):
            a("ds_write_b128 v174, v[%d:%d] offset:%d" % (152 + 4 * i, 155 + 4 * i, 1024 * i))
        a("s_waitcnt lgkmcnt(0)")
        a("s_branch L_uback")

    NEGM, RS, NMRS = 100, 101, 102
    def norm2(self, X, t):
        L = []
        L.append("v_lshlrev_b32 v%d, 16, v%d" % (t + 0, X))
        L.append("v_and_b32 v%d, v%d, v%d" % (t + 1, vMHI, X))
        L.append("v_lshlrev_b32 v%d, 16, v%d" % (t + 2, X + 1))
        L.append("v_and_b32 v%d, v%d, v%d" % (t + 3, vMHI, X + 1))
        if self.relax_ln:
            for i in range(4):
                L.append("v_fma_f32 v%d, v%d, v%d, v%d" % (t + i, t + i, self.RS, self.NMRS))
        else:
            for i in range(4):
                L.append("v_add_f32 v%d, v%d, v%d" % (t + i, t + i, self.NEGM))
            L.append("v_cvt_pk_bf16_f32 v%d, v%d, v%d" % (t + 4, t + 0, t + 1))
            L.append("v_cvt_pk_bf16_f32 v%d, v%d, v%d" % (t + 5, t + 2, t + 3))
            L.append("v_lshlrev_b32 v%d, 16, v%d" % (t + 0, t + 4))
            L.append("v_and_b32 v%d, v%d, v%d" % (t + 1, vMHI, t + 4))
            L.append("v_lshlrev_b32 v%d, 16, v%d" % (t + 2, t + 5))
            L.append("v_and_b32 v%d, v%d, v%d" % (t + 3, vMHI, t + 5))
            for i in range(4):
                L.append("v_mul_f32 v%d, v%d, v%d" % (t + i, t + i, self.RS))
        L.append("v_cvt_pk_bf16_f32 v%d, v%d, v%d" % (X, t + 0, t + 1))
        L.append("v_cvt_pk_bf16_f32 v%d, v%d, v%d" % (X + 1, t + 2, t + 3))
        return L

    def norm_chunk(self, j):
        a = self.a
        X = 20 + 8 * j
        for half in range(2):
            s1 = self.norm2(X + 4 * half, 104); s2 = self.norm2(X + 4 * half + 2, 110)
            for x, y in zip(s1, s2):
                a(x); a(y)
            a.lds("ds_write_b128 v116, v[%d:%d] offset:%d" % (X + 4 * half, X + 4 * half + 3, L_XN + (j % NXN) * 8192 + half * 1024), "xw")

    def h_first(self):
        a = self.a
        self.vm_m_first = a.vm
        a.vm = Q(["cpf"] if "codepf0" in self.exp else [])
        a.label("L_Hfirst")
        self.rot_calc()
        a("s_lshl_b32 s%d, s%d, 16" % (sT0, sR))
        a("s_lshl_b32 s%d, s%d, 14" % (sT1, sRW))
        a("s_add_u32 s%d, s%d, s%d" % (sT0, sT0, sT1))
        a("v_lshrrev_b32 v6, 2, v1")
        a("v_lshlrev_b32 v6, 10, v6")
        a("v_and_b32 v7, 3, v1")
        a("v_lshl_add_u32 v6, v7, 4, v6")
        a("v_add_u32 v6, s%d, v6" % sT0)
        if "norot" not in self.exp: a("s_lshl_b32 s%d, s%d, 7" % (sT0, sROT))
        a("s_waitcnt lgkmcnt(0)")
        a("s_mov_b64 s[8:9], s[64:65]")
        if self.stamps:
            a("s_memrealtime s[4:5]"); a("s_waitcnt lgkmcnt(0)"); a("v_writelane_b32 v255, s4, 0")
        for j in range(8):
            if "norot" in self.exp:
                a.vmem("buffer_load_dwordx4 v[%d:%d], v6, s[%d:%d], 0 offen offset:%d" % (20 + 8 * j, 23 + 8 * j, S_X, S_X + 3, 128 * j), "x%d" % j)
                a.vmem("buffer_load_dwordx4 v[%d:%d], v6, s[%d:%d], 0 offen offset:%d" % (24 + 8 * j, 27 + 8 * j, S_X, S_X + 3, 128 * j + 64), "x%d" % j)
                continue
            if j:
                a("s_add_u32 s%d, s%d, 128" % (sT0, sT0))
                a("s_and_b32 s%d, s%d, 1023" % (sT0, sT0))
            a.vmem("buffer_load_dwordx4 v[%d:%d], v6, s[%d:%d], s%d offen" % (20 + 8 * j, 23 + 8 * j, S_X, S_X + 3, sT0), "x%d" % j)
            a.vmem("buffer_load_dwordx4 v[%d:%d], v6, s[%d:%d], s%d offen offset:64" % (24 + 8 * j, 27 + 8 * j, S_X, S_X + 3, sT0), "x%d" % j)
        a("s_branch L_H")
        self.vm_h_first = a.vm

    def h_front(self):
        a = self.a
        a.vm = self.vm_h_first; a.lg_clear()
        self.p0_rest()
        a("s_waitcnt lgkmcnt(0)")
        if "tlbpf" in self.exp:
            a("v_lshlrev_b32 v2, 19, v1")
            a("v_cmp_gt_u32 vcc, 28, v1")
            a("v_mov_b32 v3, 0x40000000")
            a("v_cndmask_b32 v2, v3, v2, vcc")
            a.vmem("buffer_load_dword v245, v2, s[%d:%d], 0 offen" % (S_WS, S_WS + 3), "tlb")
            a("v_lshlrev_b32 v2, 19, v1")
            a.vmem("buffer_load_dword v246, v2, s[%d:%d], 0 offen" % (S_OUT, S_OUT + 3), "tlb")
            a.vmem("buffer_load_dword v247, v2, s[%d:%d], 0 offen" % (S_W2, S_W2 + 3), "tlb")
            a.vmem("buffer_load_dword v243, v2, s[%d:%d], 0 offen" % (S_SSM, S_SSM + 3), "tlb")
        if self.w2s:
            a("s_lshl_b32 s%d, s2, 13" % sT2)
            a("v_and_b32 v2, 255, v0")
            a("v_lshlrev_b32 v3, 4, v2")
            a("v_add_u32 v3, s%d, v3" % sT2)
            a("s_cmp_lt_u32 s2, 172")
            a("s_cselect_b32 s86, 0, 0x40000000")
            a.vmem("buffer_load_dwordx4 v[224:227], v3, s[%d:%d], s86 offen" % (S_W2, S_W2 + 3), "w2sl")
            a("v_add_u32 v3, 4096, v3")
            a.vmem("buffer_load_dwordx4 v[228:231], v3, s[%d:%d], s86 offen" % (S_W2, S_W2 + 3), "w2sl")
            a("v_bfe_u32 v4, v2, 3, 3")
            a("v_mul_u32_u24 v4, 176128, v4")
            a("v_lshrrev_b32 v5, 6, v2")
            a("v_lshl_add_u32 v4, v5, 7, v4")
            a("v_and_b32 v5, 7, v2")
            a("v_lshl_add_u32 v4, v5, 4, v4")
            a("s_lshl_b32 s%d, s2, 10" % sT2)
            a("s_add_u32 s%d, s%d, 0x%x" % (sT2, sT2, WS_W2S))
            a("v_add_u32 v232, s%d, v4" % sT2)
        if "codepf" in self.exp:
            a("s_getpc_b64 s[82:83]")
            a.label("L_pc")
            a("s_sub_u32 s82, s82, L_pc-%s" % KNAME)
            a("s_subb_u32 s83, s83, 0")
            a("v_lshlrev_b32 v2, 7, v1")
            a("s_lshl_b32 s84, s%d, 13" % sRW)
            a("v_add_u32 v2, s84, v2")
            a("v_min_u32 v2, L_codeend-%s, v2" % KNAME)
            a("v_mov_b32 v3, s83")
            a("v_add_co_u32 v2, vcc, s82, v2")
            a("v_addc_co_u32 v3, vcc, 0, v3, vcc")
            a.vmem("global_load_dword v244, v[2:3], off", "cpf")
        a("s_waitcnt lgkmcnt(0)")
        a("s_barrier")

        if "V3" in self.exp:
            self.w1_voffs()
            for f in self.w1_dma_ops(0) + self.w1_dma_ops(1): f()
        a("s_setprio 0")
        if not self.noflags:
            a("v_mov_b32 v7, 0")
        a("v_lshrrev_b32 v4, 2, v1")
        a("v_and_b32 v5, 3, v1")
        a("v_lshlrev_b32 v2, 1, v5")
        a("v_xor_b32 v4, v4, v2")
        a("v_lshlrev_b32 v4, 4, v4")
        a("v_lshl_add_u32 v4, v5, 8, v4")
        a("s_lshl_b32 s%d, s%d, 11" % (sT2, sRW))
        a("v_add_u32 v116, s%d, v4" % sT2)

    def h_ssm_load(self):
        a = self.a
        a("s_lshl_b32 s%d, s%d, 6" % (sT2, sC))
        a("s_lshl_b32 s%d, s%d, 1" % (sT1, sR))
        a("s_add_u32 s%d, s%d, s%d" % (sT2, sT2, sT1))
        a("s_lshl_b32 s%d, s%d, 12" % (sT2, sT2))
        a("v_and_b32 v3, 255, v0")
        a("v_lshlrev_b32 v3, 4, v3")
        a("v_add_u32 v2, s%d, v3" % sT2)
        a("v_add_u32 v4, -8, v2")
        for ch in range(2):
            a.vmem("buffer_load_dwordx2 v[%d:%d], v4, s[%d:%d], 0 offen" % (84 + 6 * ch, 85 + 6 * ch, S_SSM, S_SSM + 3), "ssm")
            a.vmem("buffer_load_dwordx4 v[%d:%d], v2, s[%d:%d], 0 offen" % (86 + 6 * ch, 89 + 6 * ch, S_SSM, S_SSM + 3), "ssm")
            if ch == 0:
                a("v_add_u32 v2, 4096, v2")
                a("v_add_u32 v4, 4096, v4")

    def h_stats(self):
        a = self.a
        X = 20
        for i in range(8): a("v_mov_b32 v%d, 0" % (104 + i))
        for i in range(64):
            if i % 8 == 0:
                a.wait_vm("x%d" % (i // 8))
                if i == 0: self.stamp(13)
                if i == 8 * self.pfd and "pfWd" in self.exp: self.w1_tail_prefetch(241)
            a("v_dot2_f32_bf16 v%d, v%d, v%d, v%d" % (104 + (i & 3), X + i, vONES, 104 + (i & 3)))
            a("v_dot2_f32_bf16 v%d, v%d, v%d, v%d" % (108 + (i & 3), X + i, X + i, 108 + (i & 3)))
        a("v_add_f32 v104, v104, v105"); a("v_add_f32 v106, v106, v107")
        a("v_add_f32 v108, v108, v109"); a("v_add_f32 v110, v110, v111")
        a("v_add_f32 v2, v104, v106"); a("v_add_f32 v3, v108, v110")
        for ctl in ("quad_perm:[1,0,3,2]", "quad_perm:[2,3,0,1]"):
            a("v_add_f32_dpp v2, v2, v2 %s row_mask:0xf bank_mask:0xf" % ctl)
            a("v_add_f32_dpp v3, v3, v3 %s row_mask:0xf bank_mask:0xf" % ctl)
        a("v_mul_f32 v2, 0x3b000000, v2")
        a("v_mul_f32 v3, 0x3b000000, v3")
        a("v_cvt_pk_bf16_f32 v4, v2, v2")
        a("v_fma_f32 v3, -v2, v2, v3")
        a("v_lshlrev_b32 v4, 16, v4")
        a("v_max_f32 v3, 0, v3")
        a("v_cvt_pk_bf16_f32 v3, v3, v3")
        a("v_lshlrev_b32 v3, 16, v3")
        a("v_add_f32 v3, 0x3727c5ac, v3")
        a("v_cvt_pk_bf16_f32 v3, v3, v3")
        a("v_lshlrev_b32 v3, 16, v3")
        a("v_sqrt_f32 v3, v3")
        a("v_cvt_pk_bf16_f32 v3, v3, v3")
        a("v_lshlrev_b32 v3, 16, v3")
        a("v_rcp_f32 v%d, v3" % self.RS)
        a("v_sub_f32 v%d, 0, v4" % self.NEGM)
        a("v_mul_f32 v%d, v%d, v%d" % (self.NMRS, self.NEGM, self.RS))
        a("v_lshrrev_b32 v6, 2, v1")
        a("s_lshl_b32 s%d, s%d, 4" % (sT2, sRW))
        a("v_add_u32 v6, s%d, v6" % sT2)
        a("v_lshlrev_b32 v5, 3, v6")
        a("v_add_u32 v5, %d, v5" % L_STATS)
        a("v_mov_b32 v2, v4")
        a("v_mov_b32 v3, v%d" % self.RS)
        a.lds("ds_write_b64 v5, v[2:3]", "st")

    def h_tbuild(self, ch):
        a = self.a
        D = 84 + 6 * ch
        E = 118
        for p in range(5):
            a("v_alignbit_b32 v%d, v%d, v%d, 16" % (E + p, D + p + 1, D + p))
        for p in range(4):
            a("v_mov_b32 v%d, v%d" % (124 + p, D + 1 + p))
            a("v_mov_b32 v%d, v%d" % (128 + p, E + 1 + p))
        a("v_and_b32 v3, 255, v0")
        a("v_lshlrev_b32 v3, 4, v3")
        a("v_add_u32 v3, %d, v3" % (L_T + ch * T_CH + 24))
        a("ds_write_b128 v3, v[118:121]")
        a("ds_write_b128 v3, v[124:127] offset:%d" % T_CP)
        a("ds_write_b128 v3, v[128:131] offset:%d" % (2 * T_CP))
        a("ds_write_b128 v3, v[%d:%d] offset:%d" % (D + 2, D + 5, 3 * T_CP))

    def w2flag_loads(self, tag):
        a = self.a
        for i in range(3):
            a("v_add_u32 v3, %d, v1" % (64 * i))
            if i == 2:
                a("v_cmp_gt_u32 vcc, 172, v3")
                a("v_cndmask_b32 v3, 0, v3, vcc")
            a("v_lshlrev_b32 v3, 7, v3")
            a("v_add_u32 v3, 0x%x, v3" % F_H4)
            ins = "buffer_load_dword v%d, v3, s[%d:%d], 0 offen sc1" % (100 + i, S_WS, S_WS + 3)
            if tag: a.vmem(ins, tag)
            else: a(ins)

    def w2flag_check(self):
        a = self.a
        for i in range(3): a("v_xor_b32 v%d, s%d, v%d" % (104 + i, sNONCE, 100 + i))
        a("v_or3_b32 v104, v104, v105, v106")
        a("v_cmp_ne_u32 vcc, 0, v104")

    def h_uload(self):
        a = self.a
        if self.noflags: a.wait_vm("ssm")
        if not self.noflags:
            dn = a.newlabel("L_h1ok")
            a.wait_vm("h1f")
            for i in range(4): a("v_xor_b32 v%d, s%d, v%d" % (96 + i, sNONCE, 96 + i))
            a("v_or3_b32 v96, v96, v97, v98")
            a("v_or_b32 v96, v96, v99")
            a("v_cmp_ne_u32 vcc, 0, v96")
            a("s_cbranch_vccz %s" % dn)
            if "noprep" not in self.exp:
                a("s_lshl_b32 s%d, s%d, 12" % (sT0, sC))
                a("s_add_u32 s%d, s%d, 0x%x" % (sT0, sT0, F_H1))
                self.poll(sT0, 32, 4, 128)
            a.label(dn)
        self.stamp(3)
        a("s_lshl_b32 s%d, s%d, 6" % (sT0, sC))
        a("s_lshl_b32 s%d, s%d, 1" % (sT1, sR))
        a("s_add_u32 s%d, s%d, s%d" % (sT0, sT0, sT1))
        a("s_lshl_b32 s%d, s%d, 12" % (sT0, sT0))
        a("s_lshl_b32 s%d, s%d, 11" % (sT1, sRW))
        a("s_add_u32 s%d, s%d, s%d" % (sT0, sT0, sT1))
        a("v_lshlrev_b32 v4, 4, v1")
        a("v_add_u32 v5, s%d, v4" % sT0)
        a.vmem("buffer_load_dwordx4 v[20:23], v5, s[%d:%d], 0 offen sc1" % (S_WS, S_WS + 3), "u")
        a.vmem("buffer_load_dwordx4 v[24:27], v5, s[%d:%d], 0 offen offset:1024 sc1" % (S_WS, S_WS + 3), "u")
        self.h_tbuild(0)
        self.h_tbuild(1)
        if "w2early" in self.exp:
            self.w2_voff()
            self.w2_early()
        a("v_lshlrev_b32 v4, 4, v1")
        a("s_lshr_b32 s%d, s%d, 1" % (sT0, sRW))
        a("s_mul_i32 s%d, s%d, %d" % (sT0, sT0, U_CH))
        a("s_and_b32 s%d, s%d, 1" % (sT1, sRW))
        a("s_lshl_b32 s%d, s%d, 11" % (sT2, sT1))
        a("s_add_u32 s%d, s%d, s%d" % (sT0, sT0, sT2))
        a("s_add_u32 s%d, s%d, %d" % (sT0, sT0, L_U))
        a("v_add_u32 v6, s%d, v4" % sT0)
        for i in range(4): a("v_mov_b32 v%d, 0" % (28 + i))
        a("s_cmp_eq_u32 s%d, 1" % sT1)
        a("s_cselect_b32 exec_lo, -1, 0")
        a("s_mov_b32 exec_hi, 0")
        a("ds_write_b128 v6, v[28:31] offset:2048")
        a("s_mov_b64 exec, -1")
        a.wait_vm("u")
        a("ds_write_b128 v6, v[20:23]")
        a("ds_write_b128 v6, v[24:27] offset:1024")

    def norm_seq(self, j):
        a = self.a
        X = 20 + 8 * j
        seq = []
        for half in range(2):
            s1 = self.norm2(X + 4 * half, 104); s2 = self.norm2(X + 4 * half + 2, 110)
            if "hnonorm" in self.exp and j >= 2:
                s1 = ["s_nop 0"] * 8; s2 = ["s_nop 0"] * 8
            for x, y in zip(s1, s2):
                seq.append(x); seq.append(y)
            if "wmid" in self.exp:
                seq.append(lambda half=half: a.lds("ds_write_b128 v116, v[%d:%d] offset:%d" % (X + 4 * half, X + 4 * half + 3, L_XN + (j % NXN) * 8192 + half * 1024), "xw%d" % j))
        if not ("hnowrite" in self.exp and j >= 2) and "wmid" not in self.exp:
            for half in range(2):
                seq.append(lambda half=half: a.lds("ds_write_b128 v116, v[%d:%d] offset:%d" % (X + 4 * half, X + 4 * half + 3, L_XN + (j % NXN) * 8192 + half * 1024), "xw%d" % j))
        return seq

    def h_gemm1_side(self):
        a = self.a
        if self.w2s:
            a.wait_vm("w2sl")
            a.vmem("buffer_store_dwordx4 v[224:227], v232, s[%d:%d], s86 offen sc1" % (S_WS, S_WS + 3), "w2st")
            a.vmem("buffer_store_dwordx4 v[228:231], v232, s[%d:%d], s86 offen offset:512 sc1" % (S_WS, S_WS + 3), "w2st")
        if "hprio" in self.exp: a("s_setprio 2")
        if "pfWc" in self.exp: self.w1_tail_prefetch(241)
        if "lnpre" in self.exp:
            def split(j):
                sq = self.norm_seq(j)
                return sq[:-2], sq[-2:]
            wr = {}
            for j in range(8):
                v_, w_ = split(j)
                for x in v_: self.run(x)
                if j < 4:
                    for x in w_: self.run(x)
                else:
                    wr[j] = w_
                if j == 1 and not self.noflags:
                    a.vmem("buffer_load_dword v19, v7, s[%d:%d], 0 offen sc1" % (S_DBG, S_DBG + 3), "nonce")
            a.need_lds("xw0", "xw1")
            a("s_barrier")
        else:
            for x in self.norm_seq(0): self.run(x)
            s1 = self.norm_seq(1)
            h = len(s1) // 2
            for x in s1[:h]: self.run(x)
            for x in s1[h:]: self.run(x)
            if not self.noflags:
                a.vmem("buffer_load_dword v19, v7, s[%d:%d], 0 offen sc1" % (S_DBG, S_DBG + 3), "nonce")
            s2 = self.norm_seq(2)
            for x in s2[:h]: self.run(x)
            a.need_lds("xw0", "xw1")
            if "V3" in self.exp: a.wait_vm("w1c1")
            a("s_barrier")
            for x in s2[h:]: self.run(x)
        for j in range(8):
            if "lnpre" in self.exp:
                if j >= 1 and j + 3 <= 7:
                    for x in wr[j + 3]: self.run(x)
            elif j + 3 <= 7:
                for x in self.norm_seq(j + 3): self.run(x)
            if j == self.pf2j and "pf2" in self.exp: self.line_prefetch("w2", 242)
            if j == 1: self.h_ssm_load()
            if j == (self.w2j if self.w2s else 4) and not self.noflags:
                self.get_nonce()
            if j == 5:
                if not self.noflags:
                    a("s_lshl_b32 s%d, s%d, 12" % (sT0, sC))
                    a("s_add_u32 s%d, s%d, 0x%x" % (sT0, sT0, F_H1))
                    a("v_and_b32 v2, 31, v1")
                    a("v_lshlrev_b32 v2, 7, v2")
                    a("v_add_u32 v2, s%d, v2" % sT0)
                if self.w2s:
                    skf = a.newlabel("L_w2f")
                    a("s_cmp_lg_u32 s%d, 0" % sRW)
                    a("s_cbranch_scc1 %s" % skf)
                    self.w2flag_loads(tag=None)
                    a.label(skf)
                if not self.noflags:
                    a.vmem("buffer_load_dwordx4 v[96:99], v2, s[%d:%d], 0 offen sc1" % (S_WS, S_WS + 3), "h1f")
            if j + 1 <= 6:
                if j + 2 <= 7 and "hnowrite" not in self.exp: a.need_lds("xw%d" % (j + 2))
                if j == self.w2j and self.w2s: a.wait_vm("w2st")
                a("s_barrier")
                if j == self.w2j and self.w2s:
                    sk = a.newlabel("L_w2c")
                    a("s_cmp_lt_u32 s2, 172")
                    a("s_cselect_b32 s4, s%d, 1" % sRW)
                    a("s_cmp_lg_u32 s4, 0")
                    a("s_cbranch_scc1 %s" % sk)
                    a("s_lshl_b32 s4, s2, 7")
                    a("s_add_u32 s%d, s4, 0x%x" % (sT2, F_H4))
                    q = list(a.vm.q)
                    self.flag_store(sT2, "flag", 2, 3)
                    a.vm.q = q
                    a.label(sk)
                if "itst" in self.exp: self.stamp(23 + j)
        if "hprio" in self.exp: a("s_setprio 0")
        self.h_uload()
        if self.w2s:
            lp = a.newlabel("L_w2p"); dn = a.newlabel("L_w2d")
            a("s_cmp_lg_u32 s%d, 0" % sRW)
            a("s_cbranch_scc1 %s" % dn)
            a("s_mov_b32 s%d, 0" % sT3)
            a.label(lp)
            self.w2flag_check()
            a("s_cbranch_vccz %s" % dn)
            self.w2flag_loads(tag=None)
            a("s_waitcnt vmcnt(0)")
            a("s_add_u32 s%d, s%d, 1" % (sT3, sT3))
            a("s_cmp_lt_u32 s%d, 100000" % sT3)
            a("s_cbranch_scc1 %s" % lp)
            if "pf4" in self.exp:
                lok = a.newlabel("L_w2ok")
                a.lines.pop()
                a("s_cbranch_scc1 %s" % lp)
            a.label(dn)
            if "pf4" in self.exp:
                skp = a.newlabel("L_pf4")
                a("s_cmp_lg_u32 s%d, 0" % sRW)
                a("s_cbranch_scc1 %s" % skp)
                a("s_lshr_b32 s%d, s2, 3" % sT0)
                if "map42" in self.exp:
                    a("s_mul_i32 s%d, s%d, %d" % (sT0, sT0, 172 * 128))
                    a("s_bfe_u32 s%d, s2, 0x10002" % sT1)
                    a("s_mul_i32 s%d, s%d, %d" % (sT1, sT1, 4 * 176128))
                    a("s_add_u32 s%d, s%d, s%d" % (sT0, sT0, sT1))
                    nl = 172
                else:
                    a("s_mul_i32 s%d, s%d, %d" % (sT0, sT0, 344 * 128))
                    nl = 344
                a("s_add_u32 s%d, s%d, 0x%x" % (sT0, sT0, WS_W2S))
                for i in range((nl + 63) // 64):
                    a("v_add_u32 v3, %d, v1" % (64 * i))
                    a("v_min_u32 v3, %d, v3" % (nl - 1))
                    a("v_lshlrev_b32 v3, 7, v3")
                    a("v_add_u32 v3, s%d, v3" % sT0)
                    a("buffer_load_dword v%d, v3, s[%d:%d], 0 offen sc1" % (240 + (i & 3), S_WS, S_WS + 3))
                a.label(skp)
        self.w2_voff()
        a.lg0()
        a("s_barrier")
        self.stamp(2)

    def h_gemm2(self):
        a = self.a
        HF, ACC = 20, 196
        WBUF = [228, 2]
        AB = 244
        PF = 10
        a("s_lshr_b32 s75, s%d, 1" % sRW)
        a("s_and_b32 s76, s%d, 1" % sRW)
        if "poller3" in self.exp:
            lp3 = a.newlabel("L_hp3"); lgo = a.newlabel("L_hgo")
            a("s_cmp_eq_u32 s%d, 3" % sRW)
            a("s_cbranch_scc1 %s" % lp3)
            q0 = list(a.vm.q)
            for m in range(9):
                a("s_add_u32 s%d, s%d, %d" % (sT0, sRW, 3 * m))
                if m == 8: a("s_min_u32 s%d, s%d, 25" % (sT0, sT0))
                a("s_lshr_b32 s%d, s%d, 1" % (sT1, sT0))
                a("s_and_b32 s%d, s%d, 1" % (sT0, sT0))
                a("s_mul_i32 s71, s%d, %d" % (sT0, NB_H))
                a("s_add_u32 s71, s71, s%d" % sT1)
                a("s_lshl_b32 s71, s71, 12")
                a("s_mul_i32 s70, s%d, 22" % sT0)
                a("s_add_u32 s70, s70, s%d" % sT1)
                a("s_lshl_b32 s70, s70, %d" % (12 if self.w2s else 15))
                self.w2_dma(71, L_B, 70, 0, "w2b")
            a("s_branch %s" % lgo)
            a.label(lp3)
            if not self.noflags:
                a("s_lshl_b32 s%d, s%d, 10" % (sT0, sR))
                a("s_add_u32 s%d, s%d, 0x%x" % (sT0, sT0, F_H2))
                self.poll(sT0, 8, 4, 128)
            a("v_mov_b32 v2, %d" % (L_SYNC + 60))
            a("v_mov_b32 v3, 1")
            a("ds_write_b32 v2, v3")
            a.label(lgo)
        else:
            def w2b_slot(m):
                a("s_add_u32 s%d, s%d, %d" % (sT0, sRW, 4 * m))
                if m == 6: a("s_min_u32 s%d, s%d, 25" % (sT0, sT0))
                a("s_lshr_b32 s%d, s%d, 1" % (sT1, sT0))
                a("s_and_b32 s%d, s%d, 1" % (sT0, sT0))
                a("s_mul_i32 s71, s%d, %d" % (sT0, NB_H))
                a("s_add_u32 s71, s71, s%d" % sT1)
                a("s_lshl_b32 s71, s71, 12")
                a("s_mul_i32 s70, s%d, 22" % sT0)
                a("s_add_u32 s70, s70, s%d" % sT1)
                a("s_lshl_b32 s70, s70, %d" % (12 if self.w2s else 15))
                self.w2_dma(71, L_B, 70, 0, "w2b" if m < self.w2p1 else "w2b2")
            self.w2b_slot = w2b_slot
            if "w2early" in self.exp:
                for m in range(4):
                    a("s_add_u32 s%d, s%d, %d" % (sT0, sRW, 4 * m + (4 if m == 0 else 10)))
                    self.w2_slot_dma("w2b")
            else:
                for m in range(self.w2p1):
                    w2b_slot(m)
        a("s_lshl_b32 s%d, s%d, 2" % (sT2, sR))
        a("s_lshl_b32 s4, s76, 1")
        a("s_add_u32 s%d, s%d, s4" % (sT2, sT2))
        a("s_mul_i32 s%d, s%d, 44032" % (sT2, sT2))
        a("s_mul_i32 s4, s75, %d" % (22 * 1024))
        a("s_add_u32 s%d, s%d, s4" % (sT2, sT2))
        a("s_add_u32 s%d, s%d, 0x%x" % (sT2, sT2, WS_H))
        a("v_lshlrev_b32 v18, 4, v1")
        a("v_add_u32 v18, s%d, v18" % sT2)
        a("v_add_u32 v19, 44032, v18")
        a("v_lshrrev_b32 v2, 4, v1")
        a("v_and_b32 v3, 15, v1")
        a("v_lshrrev_b32 v3, 2, v3")
        a("v_lshrrev_b32 v4, 1, v2")
        a("v_lshlrev_b32 v4, 4, v4")
        a("v_and_b32 v5, 1, v2")
        a("v_lshl_add_u32 v4, v5, 2, v4")
        a("v_add_u32 v4, v4, v3")
        a("v_lshlrev_b32 v4, 7, v4")
        a("v_and_b32 v6, 1, v1")
        a("v_lshl_add_u32 v4, v6, 3, v4")
        a("v_lshlrev_b32 v5, 1, v5")
        a("v_lshrrev_b32 v6, 1, v3")
        a("v_add_u32 v5, v5, v6")
        a("v_lshlrev_b32 v5, 1, v5")
        a("v_and_b32 v6, 3, v1")
        a("v_lshrrev_b32 v6, 1, v6")
        a("s_mul_i32 s4, s75, %d" % B_HALF)
        if L_B: a("s_add_u32 s4, s4, %d" % L_B)
        for b in range(4):
            a("v_add_u32 v7, %d, v6" % (2 * b))
            a("v_xor_b32 v7, v7, v5")
            a("v_lshl_add_u32 v7, v7, 4, v4")
            a("v_add_u32 v%d, s4, v7" % (AB + b))
        a("s_mul_i32 s5, s75, %d" % (NA_H * 4096))
        a("s_add_u32 s5, s5, %d" % L_A)
        a("s_sub_u32 s77, s5, s4")
        a("s_sub_u32 s79, s4, s5")
        for i in range(32): a("v_mov_b32 v%d, 0" % (ACC + i))
        if "poller3" in self.exp:
            a("s_mov_b32 s5, %d" % (L_SYNC + 60))
            self.lds_wait(5, 1, 253, 254)
        else:
            self.stamp(5)
            if not self.noflags and "noh2" not in self.exp:
                a("s_lshl_b32 s%d, s%d, 10" % (sT0, sR))
                a("s_add_u32 s%d, s%d, 0x%x" % (sT0, sT0, F_H2))
                self.poll(sT0, 8, 4, 128)
        self.stamp(6)

        def hload(i):
            ops = []
            for t in range(2):
                def f(t=t):
                    r = HF + (i * 2 + t) * 4
                    so = i * 1024
                    if so < 4096:
                        a.vmem("buffer_load_dwordx4 v[%d:%d], v%d, s[%d:%d], 0 offen offset:%d sc1" % (r, r + 3, 18 + t, S_WS, S_WS + 3, so), "h%d" % i)
                    else:
                        if t == 0: a("s_mov_b32 s80, %d" % (so & ~4095))
                        a.vmem("buffer_load_dwordx4 v[%d:%d], v%d, s[%d:%d], s80 offen offset:%d sc1" % (r, r + 3, 18 + t, S_WS, S_WS + 3, so & 4095), "h%d" % i)
                ops.append(f)
            return ops

        def read_ops(i):
            buf = WBUF[i & 1]
            if i < 13: so = i * 4096
            elif i < 19: so = (i - 13) * 4096
            else: so = (i - 19) * 4096
            ops = []
            sw = {13: 77, 19: 79}.get(i)
            if sw:
                for b in range(4): ops.append("v_add_u32 v%d, s%d, v%d" % (AB + b, sw, AB + b))
            for b in range(4):
                for hh in range(2):
                    r0 = buf + 4 * b + 2 * hh
                    ops.append(lambda r0=r0, b=b, hh=hh: a.lds("ds_read_b64_tr_b16 v[%d:%d], v%d offset:%d" % (r0, r0 + 1, AB + b, so + hh * 1024), "w%d_%d" % (i, b)))
            return ops

        def mfma_ops(i):
            buf = WBUF[i & 1]
            ops = []
            for b in range(4):
                for t in range(2):
                    def f(b=b, t=t):
                        if b == 0 and t == 0:
                            a.wait_both("h%d" % i, ["w%d_%d" % (i, bb) for bb in range(4)])
                        acc = ACC + (b * 2 + t) * 4
                        hr = HF + (i * 2 + t) * 4
                        a("v_mfma_f32_16x16x32_bf16 v[%d:%d], v[%d:%d], v[%d:%d], v[%d:%d]" % (acc, acc + 3, buf + 4 * b, buf + 4 * b + 3, hr, hr + 3, acc, acc + 3))
                    ops.append(f)
            return ops

        allh = []
        for i in range(22): allh += hload(i)
        hp = 0
        for f in allh[:self.hinit]: f()
        hp = self.hinit
        for m in range(self.w2p1, 7):
            self.w2b_slot(m)
        a("s_waitcnt vmcnt(%d)" % min(63, self.hinit + 4 * (7 - self.w2p1)))
        self.m_sync(11, va=253, vb=254)
        self.stamp(19)
        for f in read_ops(0): self.run(f)
        last = a.newlabel("L_g2l")
        for i in range(22):
            if i == 12:
                a.lg0()
                a("s_barrier")
            if i == 18:
                a.lg0()
                a("s_barrier")
            if self.w2p1 < 7 and i == 2 * self.w2p1 - 1:
                a.wait_vm("w2b2")
                self.m_sync(10, va=253, vb=254)
            if i == 11 and "xearly" in self.exp:
                self.final_x_load(self.XR, self.OA, 253, 254)
            if i == 4:
                a("v_mov_b32 v253, %d" % (L_SYNC + 56))
                a("v_mov_b32 v254, 1")
                a("s_mov_b64 exec, 1")
                a.lds("ds_add_u32 v253, v254", "sig")
                a("s_mov_b64 exec, -1")
            if i == 21:
                a("s_cmp_eq_u32 s75, 1")
                a("s_cbranch_scc1 %s" % last)
            fill = []
            if i < 21: fill += read_ops(i + 1)
            nl = self.hper if hp < 2 * (i + self.hwin) else 2
            nl = min(nl, len(allh) - hp)
            fill = allh[hp:hp + nl] + fill
            hp += nl
            interleave(a, mfma_ops(i), fill)
        a.label(last)
        a.lg0()
        self.stamp(22)
        a("v_and_b32 v2, 15, v1")
        a("v_lshrrev_b32 v3, 4, v1")
        a("v_mul_u32_u24 v2, 272, v2")
        a("v_lshl_add_u32 v2, v3, 4, v2")
        a("s_mul_i32 s4, s75, %d" % P_STRIDE)
        a("s_mul_i32 s5, s76, %d" % (32 * 272))
        a("s_add_u32 s4, s4, s5")
        a("s_add_u32 s4, s4, %d" % L_P)
        a("v_add_u32 v2, s4, v2")
        for b in range(4):
            for t in range(2):
                acc = ACC + (b * 2 + t) * 4
                a("ds_write_b128 v2, v[%d:%d] offset:%d" % (acc, acc + 3, t * 16 * 272 + b * 64))
        if "xearly" not in self.exp: self.final_x_load(self.XR, self.OA)
        a.lg0()
        a("s_barrier")

    def final(self):
        a = self.a
        P0 = L_P; P1 = L_P + P_STRIDE; YL = L_Y
        XR = self.XR; OA = self.OA
        a("s_and_b32 s%d, s%d, 3" % (sT0, sW))
        a("s_lshr_b32 s%d, s%d, 2" % (sT1, sW))
        a("v_lshrrev_b32 v2, 2, v1")
        a("v_and_b32 v3, 3, v1")
        a("s_lshl_b32 s4, s%d, 4" % sT0)
        a("v_add_u32 v2, s4, v2")
        a("v_mul_u32_u24 v4, 272, v2")
        a("v_lshl_add_u32 v4, v3, 5, v4")
        a("s_lshl_b32 s4, s%d, 7" % sT1)
        a("s_add_u32 s4, s4, %d" % P0)
        a("v_add_u32 v4, s4, v4")
        a("ds_read_b128 v[20:23], v4")
        a("ds_read_b128 v[24:27], v4 offset:16")
        a("ds_read_b128 v[28:31], v4 offset:%d" % (P1 - P0))
        a("ds_read_b128 v[32:35], v4 offset:%d" % (P1 - P0 + 16))
        a("v_lshlrev_b32 v6, 3, v2")
        a("v_add_u32 v6, %d, v6" % L_STATS)
        a("ds_read_b64 v[36:37], v6")
        a("v_lshrrev_b32 v7, 4, v1")
        a("v_lshlrev_b32 v7, 3, v7")
        a("v_and_b32 v8, 15, v1")
        a("v_lshrrev_b32 v8, 2, v8")
        a("v_add_u32 v7, v7, v8")
        a("s_lshl_b32 s4, s%d, 5" % sT1)
        a("v_add_u32 v7, s4, v7")
        a("v_mul_u32_u24 v7, 144, v7")
        a("v_and_b32 v8, 3, v1")
        a("v_lshl_add_u32 v7, v8, 3, v7")
        a("s_lshl_b32 s4, s%d, 5" % sT0)
        a("s_add_u32 s4, s4, %d" % YL)
        a("v_add_u32 v7, s4, v7")
        a("ds_read_b64_tr_b16 v[38:39], v7")
        a("ds_read_b64_tr_b16 v[40:41], v7 offset:%d" % (4 * 144))
        a("v_and_b32 v8, 3, v1")
        a("v_lshlrev_b32 v8, 4, v8")
        a("v_lshrrev_b32 v9, 2, v1")
        a("v_or_b32 v8, v8, v9")
        a("v_lshlrev_b32 v8, 2, v8")
        a("v_mov_b32 v10, 0xbfb8aa3b")
        a("v_mov_b32 v11, 1.0")
        a("s_waitcnt lgkmcnt(0)")
        for i in range(4):
            a("ds_bpermute_b32 v%d, v8, v%d" % (42 + i, 38 + i))
        for i in range(8):
            a("v_add_f32 v%d, v%d, v%d" % (20 + i, 20 + i, 28 + i))
        for i in range(4):
            a("v_cvt_pk_bf16_f32 v%d, v%d, v%d" % (28 + i, 20 + 2 * i, 21 + 2 * i))
        for i in range(4):
            a("v_alignbit_b32 v%d, v%d, 0, 16" % (20 + 2 * i, 28 + i))
            a("v_and_b32 v%d, v%d, v%d" % (21 + 2 * i, vMHI, 28 + i))
        for i in range(8):
            a("v_mul_f32 v%d, v10, v%d" % (48 + i, 20 + i))
        for i in range(8):
            a("v_exp_f32 v%d, v%d" % (48 + i, 48 + i))
        a("s_waitcnt vmcnt(0)")
        a("v_sub_f32 v12, 0, v36")
        for i in range(4):
            a("v_dot2_f32_bf16 v%d, v%d, v%d, v12" % (72 + 2 * i, XR + i, vONELO))
            a("v_dot2_f32_bf16 v%d, v%d, v%d, v12" % (73 + 2 * i, XR + i, vONEHI))
        for i in range(8):
            a("v_add_f32 v%d, v11, v%d" % (48 + i, 48 + i))
        for i in range(4):
            a("v_cvt_pk_bf16_f32 v%d, v%d, v%d" % (80 + i, 72 + 2 * i, 73 + 2 * i))
        for i in range(8):
            a("v_rcp_f32 v%d, v%d" % (48 + i, 48 + i))
        for i in range(4):
            a("v_alignbit_b32 v%d, v%d, 0, 16" % (72 + 2 * i, 80 + i))
            a("v_and_b32 v%d, v%d, v%d" % (73 + 2 * i, vMHI, 80 + i))
        for i in range(8):
            a("v_mul_f32 v%d, v%d, v37" % (72 + i, 72 + i))
        for i in range(8):
            a("v_mul_f32 v%d, v%d, v%d" % (20 + i, 20 + i, 48 + i))
        if "relax_fin" in self.exp:
            a("s_waitcnt lgkmcnt(0)")
            for i in range(4):
                a("v_alignbit_b32 v%d, v%d, 0, 16" % (56 + 2 * i, 42 + i))
                a("v_and_b32 v%d, v%d, v%d" % (57 + 2 * i, vMHI, 42 + i))
                a("v_alignbit_b32 v%d, v%d, 0, 16" % (88 + 2 * i, XR + i))
                a("v_and_b32 v%d, v%d, v%d" % (89 + 2 * i, vMHI, XR + i))
            for i in range(8):
                a("v_mul_f32 v%d, v%d, v%d" % (72 + i, 72 + i, 56 + i))
            for i in range(8):
                a("v_fma_f32 v%d, v%d, v%d, v%d" % (72 + i, 72 + i, 20 + i, 88 + i))
            for i in range(4):
                a("v_cvt_pk_bf16_f32 v%d, v%d, v%d" % (80 + i, 72 + 2 * i, 73 + 2 * i))
        else:
            for i in range(4):
                a("v_cvt_pk_bf16_f32 v%d, v%d, v%d" % (80 + i, 72 + 2 * i, 73 + 2 * i))
            for i in range(4):
                a("v_cvt_pk_bf16_f32 v%d, v%d, v%d" % (28 + i, 20 + 2 * i, 21 + 2 * i))
            a("s_waitcnt lgkmcnt(0)")
            for i in range(4):
                a("v_and_b32 v%d, v%d, v%d" % (56 + 2 * i, vMLO, 42 + i))
                a("v_and_b32 v%d, v%d, v%d" % (57 + 2 * i, vMHI, 42 + i))
                a("v_and_b32 v%d, v%d, v%d" % (64 + 2 * i, vMLO, 28 + i))
                a("v_and_b32 v%d, v%d, v%d" % (65 + 2 * i, vMHI, 28 + i))
            for i in range(4):
                a("v_dot2_f32_bf16 v%d, v%d, v%d, 0" % (72 + 2 * i, 80 + i, 56 + 2 * i))
                a("v_dot2_f32_bf16 v%d, v%d, v%d, 0" % (73 + 2 * i, 80 + i, 57 + 2 * i))
            for i in range(4):
                a("v_alignbit_b32 v%d, v%d, 0, 16" % (88 + 2 * i, XR + i))
                a("v_and_b32 v%d, v%d, v%d" % (89 + 2 * i, vMHI, XR + i))
            for i in range(4):
                a("v_cvt_pk_bf16_f32 v%d, v%d, v%d" % (80 + i, 72 + 2 * i, 73 + 2 * i))
            for i in range(4):
                a("v_dot2_f32_bf16 v%d, v%d, v%d, 0" % (72 + 2 * i, 80 + i, 64 + 2 * i))
                a("v_dot2_f32_bf16 v%d, v%d, v%d, 0" % (73 + 2 * i, 80 + i, 65 + 2 * i))
            for i in range(4):
                a("v_cvt_pk_bf16_f32 v%d, v%d, v%d" % (80 + i, 72 + 2 * i, 73 + 2 * i))
            for i in range(4):
                a("v_dot2_f32_bf16 v%d, v%d, v%d, v%d" % (72 + 2 * i, 80 + i, vONELO, 88 + 2 * i))
                a("v_dot2_f32_bf16 v%d, v%d, v%d, v%d" % (73 + 2 * i, 80 + i, vONEHI, 89 + 2 * i))
            for i in range(4):
                a("v_cvt_pk_bf16_f32 v%d, v%d, v%d" % (80 + i, 72 + 2 * i, 73 + 2 * i))
        fl = " sc1" if "outsc1" in self.exp else (" nt" if "outnt" in self.exp else (" sc0 sc1" if "outsc01" in self.exp else ""))
        a("buffer_store_dwordx4 v[80:83], v%d, s[%d:%d], 0 offen%s" % (OA, S_OUT, S_OUT + 3, fl))

    def build(self):
        a = self.a
        self.p0()
        self.m_front()
        self.stamp(1)
        self.m_prep()
        self.stamp(10)
        self.m_gemm1()
        self.stamp(4)
        self.m_conv()
        self.m_tail()
        a("s_branch L_final")
        a.label("L_H")
        self.h_front()
        self.stamp(1)
        self.h_stats()
        self.stamp(11)
        self.h_gemm1_side()
        self.h_gemm2()
        a.label("L_final")
        a.lg_clear()
        self.stamp(8)
        self.final()
        self.stamp(9)
        self.dump_stamps()
        if "noendwait" not in self.exp: a("s_waitcnt vmcnt(0)")
        a.label("L_end")
        a("s_endpgm")
        if "yearly" in self.exp and not self.noflags:
            self.y_slow()
        a.label("L_codeend")
        a("s_endpgm")
        lines, n = hazard.fix(a.lines)
        self.nnops = n
        hdr = """; Kernarg layout: x,k,v,shift_k,ssm_k,ssm_D,B_x,w1,w2,out,debug,ws (8-byte pointers)
; @launch grid=(256,1,1) block=(512,1,1) lds=%d
.amdgcn_target "amdgcn-amd-amdhsa--gfx950"
.text
.globl %s
.p2align 8
.type %s,@function
%s:
""" % (LDS_SIZE, KNAME, KNAME, KNAME)
        ftr = """.section .rodata,"a"
.p2align 6
.amdhsa_kernel %s
  .amdhsa_next_free_vgpr 256
  .amdhsa_next_free_sgpr 102
  .amdhsa_accum_offset 256
  .amdhsa_group_segment_fixed_size 0
  .amdhsa_kernarg_size 96
  .amdhsa_user_sgpr_count 2
  .amdhsa_user_sgpr_kernarg_segment_ptr 1
  .amdhsa_system_sgpr_workgroup_id_x 1
.end_amdhsa_kernel
""" % KNAME
        return hdr + "\n".join(lines) + "\n" + ftr

if __name__ == "__main__":
    import argparse
    ap = argparse.ArgumentParser()
    ap.add_argument("-o", default="k.s")
    ap.add_argument("--stamps", action="store_true")
    ap.add_argument("--noflags", action="store_true")
    ap.add_argument("--exp", default="")
    args = ap.parse_args()
    g = Gen(stamps=args.stamps, noflags=args.noflags, exp=args.exp)
    txt = g.build()
    open(args.o, "w").write(txt)
    print("wrote", args.o, len(txt.splitlines()), "lines; hazard nops:", g.nnops)
```

```python
import sys
from emit import *
import hazard

KNAME = "recurrent_scan__ssm_conv_h3__dense_activation_relu__prompt_kernel"

WS_KVT = 0
WS_YT = 2 << 20
WS_H = 4 << 20
WS_FLAG = 10 << 20
F_H1 = WS_FLAG
F_H2 = WS_FLAG + 32768
F_H3 = WS_FLAG + 65536
F_H4 = WS_FLAG + 98304
WS_STAMP = WS_FLAG + (256 << 10)
WS_W2S = 12 << 20
WS_SIZE = 16 << 20

L_XN = 0
NXN = 4
L_W1 = 32768
W1_SLOT = 24576
NW1 = 5
L_PREP = L_W1 + 4 * W1_SLOT
L_A = L_W1 + 3 * W1_SLOT
NA_H = 6
L_T = L_A + 8
T_CH = 16640
T_CP = 4160
L_U = L_A + 33408
U_CH = 4608
L_B = 0
NB_H = 13
B_HALF = NB_H * 4096
L_Y = 16384
L_P = L_B + 7 * 4096
P_STRIDE = B_HALF
L_STATS = 161792
L_SYNC = 162304
LDS_SIZE = 163840
assert L_U % 16 == 0 and L_U + 2 * U_CH <= L_W1 + 5 * W1_SLOT and L_T + 2 * T_CH <= L_U
assert L_A + 2 * NA_H * 4096 <= L_STATS and 2 * B_HALF <= L_A and L_W1 + NW1 * W1_SLOT <= L_STATS

S_X, S_K, S_V, S_W1, S_W2, S_OUT, S_SSM, S_WS, S_SH, S_DBG = 8, 12, 16, 20, 24, 28, 32, 36, 40, 44
sR, sC, sW, sNONCE = 48, 49, 50, 51
sF0, sBP, sNB = 52, 53, 54
sT0, sT1, sT2, sT3 = 55, 56, 57, 58
sRW = 59
sEX = 60
sROT = 62
sDP = 64
sDD = 66
sM0B = 67
sP0, sP1 = 68, 69
sUOK = 72
sID = 81
sD = 85
sINV1, sINV2 = 73, 74
vMLO, vMHI, vONELO, vONEHI, vONES = 248, 249, 250, 251, 252

def merge(*lists):
    lists = [l for l in lists if l]
    tot = sum(len(l) for l in lists)
    out = []; idx = [0] * len(lists)
    for s in range(tot):
        best = min((i for i in range(len(lists)) if idx[i] < len(lists[i])), key=lambda i: (idx[i] + 0.5) / len(lists[i]))
        out.append(lists[best][idx[best]]); idx[best] += 1
    return out

class Gen:
    def __init__(self, stamps=False, noflags=False, exp=""):
        self.exp = set(exp.split(",")) if exp else set()
        self.a = Asm()
        self.stamps = stamps
        self.noflags = noflags
        self.relax_ln = "relax_ln" in self.exp
        self.stampset = None
        self.h2n = 75
        self.pfw_r0 = 192
        self.pfd = 0
        for e in self.exp:
            if e.startswith('pfd='): self.pfd = int(e[4:])
        for e in self.exp:
            if e.startswith('r0='): self.pfw_r0 = int(e[3:])
        self.XR, self.OA = (84, 96) if 'xearly' in self.exp else (240, 244)
        self.h1j = 0
        self.w2p1 = 7
        for e in self.exp:
            if e.startswith('p1='): self.w2p1 = int(e[3:])
        for e in self.exp:
            if e.startswith('h1j='): self.h1j = int(e[4:])
        self.w2j = 0
        self.w2s = 'w2s' in self.exp
        self.KS = 4096 if self.w2s else 32768
        self.pf2j = 0
        for e in self.exp:
            if e.startswith('pj='): self.pf2j = int(e[3:])
            if e.startswith('h2n='): self.h2n = int(e[4:])
        self.hwin = 22; self.hper = 6; self.hinit = 12
        for e in self.exp:
            if e.startswith('hw='): self.hwin, self.hper, self.hinit = [int(x) for x in e[3:].split('+')]
        for e in self.exp:
            if e.startswith("st="):
                self.stampset = set(int(x) for x in e[3:].split("+"))

    def stamp(self, idx):
        if not self.stamps: return
        if self.stampset is not None and idx not in self.stampset: return
        a = self.a
        a("s_memrealtime s[4:5]")
        if "clk" in self.exp and idx in (14, 2, 4, 16):
            a("s_memtime s[6:7]")
        a.lg0()
        a("v_writelane_b32 v255, s4, %d" % idx)
        if "clk" in self.exp and idx in (14, 2, 4, 16):
            a("v_writelane_b32 v255, s6, %d" % {14: 29, 2: 30, 4: 31, 16: 15}[idx])

    def dump_stamps(self):
        if not self.stamps: return
        a = self.a
        if "entry" in self.exp:
            a("v_writelane_b32 v255, s90, 31")
        if "dbgst" in self.exp:
            sk = a.newlabel("L_ds")
            a("s_or_b32 s4, s2, s%d" % sW)
            a("s_cmp_lg_u32 s4, 0")
            a("s_cbranch_scc1 %s" % sk)
            a("v_readlane_b32 s4, v255, 0")
            a("s_nop 3")
            a("v_subrev_u32 v3, s4, v255")
            order = [12, 10, 14, 2, 4, 16, 17, 18, 7, 8, 9]
            for k, i in enumerate(order):
                a("v_readlane_b32 s5, v3, %d" % i)
                a("s_nop 3")
                a("v_mov_b32 v4, s5")
                a("v_mov_b32 v5, %d" % (4 * (k + 1)))
                a("s_mov_b64 exec, 1")
                a("buffer_store_dword v4, v5, s[%d:%d], 0 offen" % (S_DBG, S_DBG + 3))
                a("s_mov_b64 exec, -1")
            a.label(sk)
        a("s_lshl_b32 s%d, s2, 3" % sT0)
        a("s_add_u32 s%d, s%d, s%d" % (sT0, sT0, sW))
        a("s_lshl_b32 s%d, s%d, 7" % (sT0, sT0))
        a("s_add_u32 s%d, s%d, 0x%x" % (sT0, sT0, WS_STAMP))
        a("v_lshlrev_b32 v2, 2, v1")
        a("v_add_u32 v2, s%d, v2" % sT0)
        a("s_mov_b32 exec_lo, -1")
        a("s_mov_b32 exec_hi, 0")
        a("buffer_store_dword v255, v2, s[%d:%d], 0 offen" % (S_WS, S_WS + 3))
        a("s_mov_b64 exec, -1")

    def jit(self, point):
        for e in self.exp:
            if e.startswith("jit="):
                P, N, M = [int(x) for x in e[4:].split("+")]
                if P != point: continue
                a = self.a
                sk = a.newlabel("L_jit")
                if M:
                    a("s_xor_b32 s92, s2, s%d" % sW)
                    a("s_and_b32 s92, s92, %d" % M)
                    a("s_cmp_eq_u32 s92, 0")
                    a("s_cbranch_scc1 %s" % sk)
                for _ in range(N // 100): a("s_sleep 100")
                a("s_sleep %d" % (N % 100))
                a.label(sk)

    def run(self, x):
        if callable(x): x()
        else: self.a(x)

    def spread(self, seq, extra):
        a = self.a
        if not extra:
            for x in seq: self.run(x)
            return
        step = max(1, len(seq) // (len(extra) + 1))
        k = 0
        for i, ins in enumerate(seq):
            self.run(ins)
            if (i + 1) % step == 0 and k < len(extra):
                self.run(extra[k]); k += 1
        while k < len(extra):
            self.run(extra[k]); k += 1

    def map_rc(self):
        a = self.a
        if "map42" in self.exp:
            a("s_and_b32 s%d, s2, 3" % sR)
            a("s_lshl_b32 s%d, s%d, 3" % (sR, sR))
            a("s_bfe_u32 s3, s2, 0x30003")
            a("s_add_u32 s%d, s%d, s3" % (sR, sR))
            a("s_bfe_u32 s%d, s2, 0x10002" % sC)
            a("s_lshl_b32 s%d, s%d, 2" % (sC, sC))
            a("s_lshr_b32 s3, s2, 6")
            a("s_add_u32 s%d, s%d, s3" % (sC, sC))
        else:
            a("s_and_b32 s%d, s2, 7" % sR)
            a("s_lshr_b32 s3, s2, 6")
            a("s_lshl_b32 s3, s3, 3")
            a("s_add_u32 s%d, s%d, s3" % (sR, sR))
            a("s_bfe_u32 s%d, s2, 0x30003" % sC)

    def rot_calc(self):
        a = self.a
        if "norot" in self.exp: return
        if "map42" in self.exp:
            a("s_lshl_b32 s%d, s%d, 1" % (sT0, sC))
            a("s_add_u32 s%d, s%d, s%d" % (sT0, sT0, sR))
            a("s_and_b32 s%d, s%d, 7" % (sROT, sT0))
        else:
            a("s_lshr_b32 s%d, s%d, 3" % (sT0, sR))
            a("s_lshl_b32 s%d, s%d, 1" % (sT0, sT0))
            a("s_add_u32 s%d, s%d, s%d" % (sT0, sT0, sC))
            a("s_add_u32 s%d, s%d, s%d" % (sT0, sT0, sR))
            a("s_and_b32 s%d, s%d, 7" % (sROT, sT0))
        if "norot" in self.exp: a("s_mov_b32 s%d, 0" % sROT)

    def p0(self):
        a = self.a
        if self.stamps and "entry" in self.exp:
            a("s_memrealtime s[90:91]")
        a("s_load_dwordx8 s[64:71], s[0:1], 0")
        a("s_cmp_ge_u32 s2, 256")
        a("s_cbranch_scc1 L_end")
        if self.stamps: a("v_mov_b32 v255, 0")
        a("v_lshrrev_b32 v2, 6, v0")
        a("v_and_b32 v1, 63, v0")
        if "codepf0" in self.exp:
            a("s_getpc_b64 s[82:83]")
            a.label("L_pc")
            a("s_sub_u32 s82, s82, L_pc-%s" % KNAME)
            a("s_subb_u32 s83, s83, 0")
            a("v_and_b32 v4, 255, v0")
            a("v_lshlrev_b32 v4, 7, v4")
            a("v_min_u32 v4, L_codeend-%s, v4" % KNAME)
            a("v_mov_b32 v5, s83")
            a("v_add_co_u32 v4, vcc, s82, v4")
            a("v_addc_co_u32 v5, vcc, 0, v5, vcc")
            a.vmem("global_load_dword v244, v[4:5], off", "cpf")
        self.map_rc()
        a("v_readfirstlane_b32 s%d, v2" % sW)
        a("s_mov_b32 s10, 0x200000")
        a("s_mov_b32 s11, 0x00020000")
        a("s_mov_b32 s14, 0x200000")
        a("s_mov_b32 s15, 0x00020000")
        a("s_mov_b32 s18, 0x200000")
        a("s_mov_b32 s19, 0x00020000")
        a("s_movk_i32 s42, 0x1000")
        a("s_mov_b32 s43, 0x00020000")
        a("s_and_b32 s%d, s%d, 3" % (sRW, sW))
        a("s_cmp_ge_u32 s%d, 4" % sW)
        a("s_cbranch_scc1 L_Hfirst")

    def p0_rest(self):
        a = self.a
        for dst, off in ((S_W1, 56), (S_SSM, 32), (S_WS, 88), (S_DBG, 80), (S_W2, 64), (S_OUT, 72), (sDP, 40)):
            a("s_load_dwordx2 s[%d:%d], s[0:1], %d" % (dst, dst + 1, off))
        for dst, size in ((S_W1, 1409024), (S_SSM, 2097152), (S_WS, WS_SIZE), (S_DBG, 256), (S_W2, 1409024), (S_OUT, 2097152)):
            a("s_mov_b32 s%d, 0x%x" % (dst + 2, size))
            a("s_mov_b32 s%d, 0x00020000" % (dst + 3))
        if "dshift" in self.exp:
            a("s_add_u32 s%d, s%d, 1" % (sD, sC))
            a("s_and_b32 s%d, s%d, 7" % (sD, sD))
        else:
            a("s_mov_b32 s%d, s%d" % (sD, sC))
        a("s_lshl_b32 s%d, s%d, 5" % (sID, sC))
        a("s_add_u32 s%d, s%d, s%d" % (sID, sID, sR))
        a("s_mul_i32 s%d, s%d, 6" % (sBP, sC))
        a("s_sub_i32 s%d, s%d, 3" % (sT0, sC))
        a("s_max_i32 s%d, s%d, 0" % (sT0, sT0))
        a("s_sub_u32 s%d, s%d, s%d" % (sBP, sBP, sT0))
        a("s_lshl_b32 s%d, s%d, 5" % (sF0, sBP))
        a("s_cmp_lt_u32 s%d, 3" % sC)
        a("s_cselect_b32 s%d, 12, 10" % sNB)
        a("v_mov_b32 v%d, 0xffff" % vMLO)
        a("v_mov_b32 v%d, 0xffff0000" % vMHI)
        a("v_mov_b32 v%d, 0x3f80" % vONELO)
        a("v_mov_b32 v%d, 0x3f800000" % vONEHI)
        a("v_mov_b32 v%d, 0x3f803f80" % vONES)
        a("s_mov_b32 s%d, 0x05040100" % sP0)
        a("s_mov_b32 s%d, 0x07060302" % sP1)
        a("v_and_b32 v3, 15, v0")
        a("v_lshlrev_b32 v3, 2, v3")
        a("v_add_u32 v3, %d, v3" % L_SYNC)
        a("v_mov_b32 v4, 0")
        a("ds_write_b32 v3, v4")

    def w1_dma_ops(self, j):
        a = self.a
        slot = j % NW1
        ops = []
        def head():
            if "norot" in self.exp:
                a("s_mov_b32 s%d, %d" % (sT1, j * 64 * 2752))
            else:
                a("s_add_u32 s%d, s%d, %d" % (sT1, sROT, j))
                a("s_and_b32 s%d, s%d, 7" % (sT1, sT1))
                a("s_mul_i32 s%d, s%d, %d" % (sT1, sT1, 64 * 2752))
            a("s_add_u32 m0, s%d, %d" % (sM0B, slot * W1_SLOT))
            a.vmem("buffer_load_dwordx4 v12, s[%d:%d], s%d offen lds" % (S_W1, S_W1 + 3, sT1), "w1c%d" % j)
        ops.append(head)
        for i in range(1, 6):
            def nxt(i=i):
                a("s_add_u32 m0, s%d, %d" % (sM0B, slot * W1_SLOT + 1024 * i))
                a.vmem("buffer_load_dwordx4 v%d, s[%d:%d], s%d offen lds" % (12 + i, S_W1, S_W1 + 3, sT1), "w1c%d" % j)
            ops.append(nxt)
        return ops

    def w1_voffs(self):
        a = self.a
        V = 12
        a("s_mul_i32 s%d, s%d, %d" % (sT0, sRW, 16 * 2752))
        a("s_lshl_b32 s%d, s%d, 1" % (sT1, sF0))
        a("s_add_u32 s%d, s%d, s%d" % (sT0, sT0, sT1))
        a("s_lshl_b32 s%d, s%d, 1" % (sT1, sNB))
        a("v_mov_b32 v7, 0x40000000")
        for i in range(6):
            a("v_add_u32 v2, %d, v1" % (64 * i))
            a("v_mul_u32_u24 v3, 2731, v2")
            a("v_lshrrev_b32 v3, 16, v3")
            a("v_mul_u32_u24 v4, 24, v3")
            a("v_sub_u32 v4, v2, v4")
            a("v_and_b32 v5, 2, v3")
            a("v_lshrrev_b32 v6, 1, v3")
            a("v_and_b32 v6, 4, v6")
            a("v_or_b32 v5, v5, v6")
            a("v_xor_b32 v4, v4, v5")
            a("v_mul_u32_u24 v5, 2752, v3")
            a("v_lshl_add_u32 v5, v4, 4, v5")
            a("v_add_u32 v5, s%d, v5" % sT0)
            a("v_cmp_gt_u32 vcc, s%d, v4" % sT1)
            a("v_cndmask_b32 v%d, v7, v5, vcc" % (V + i))
        a("s_mul_i32 s%d, s%d, %d" % (sM0B, sRW, 16 * 384))
        a("s_add_u32 s%d, s%d, %d" % (sM0B, sM0B, L_W1))

    def line_prefetch(self, which, vd):
        a = self.a
        a("s_lshr_b32 s%d, s2, 3" % sT0)
        a("v_and_b32 v2, 255, v0")
        if "map42" not in self.exp:
            srd = S_W1 if which == "w1" else S_W2
            a("s_mul_i32 s%d, s%d, %d" % (sT0, sT0, 344 * 128))
            a("v_lshlrev_b32 v3, 7, v2")
            a("v_add_u32 v3, s%d, v3" % sT0)
            a.vmem("buffer_load_dword v%d, v3, s[%d:%d], 0 offen" % (vd, srd, srd + 3), "pf")
            a("v_cmp_gt_u32 vcc, %d, v2" % (344 - 256))
            a("v_add_u32 v3, 32768, v3")
            a("v_mov_b32 v4, 0x40000000")
            a("v_cndmask_b32 v3, v4, v3, vcc")
            a.vmem("buffer_load_dword v%d, v3, s[%d:%d], 0 offen" % (vd + 1, srd, srd + 3), "pf")
        elif which == "w2":
            a("s_mul_i32 s%d, s%d, 43" % (sT0, sT0))
            a("s_bfe_u32 s%d, s2, 0x10002" % sT1)
            a("s_lshl_b32 s%d, s%d, 9" % (sT1, sT1))
            a("s_lshl_b32 s%d, s%d, 10" % (sT0, sT0))
            a("s_add_u32 s%d, s%d, s%d" % (sT0, sT0, sT1))
            a("v_lshrrev_b32 v3, 2, v2")
            a("v_lshlrev_b32 v3, 10, v3")
            a("v_and_b32 v4, 3, v2")
            a("v_lshl_add_u32 v3, v4, 7, v3")
            a("v_add_u32 v3, s%d, v3" % sT0)
            a("v_cmp_gt_u32 vcc, 172, v2")
            a("v_mov_b32 v4, 0x40000000")
            a("v_cndmask_b32 v3, v4, v3, vcc")
            a.vmem("buffer_load_dword v%d, v3, s[%d:%d], 0 offen" % (vd, S_W2, S_W2 + 3), "pf")
        else:
            a("s_lshl_b32 s%d, s%d, 4" % (sT0, sT0))
            a("s_mul_i32 s%d, s%d, 2752" % (sT0, sT0))
            a("s_bfe_u32 s%d, s2, 0x10002" % sT1)
            a("s_mul_i32 s%d, s%d, 1472" % (sT1, sT1))
            a("s_add_u32 s%d, s%d, s%d" % (sT0, sT0, sT1))
            a("v_mul_u32_u24 v3, 5462, v2")
            a("v_lshrrev_b32 v3, 16, v3")
            a("v_mul_u32_u24 v4, 12, v3")
            a("v_sub_u32 v4, v2, v4")
            a("v_mul_u32_u24 v3, 2752, v3")
            a("v_lshl_add_u32 v3, v4, 7, v3")
            a("v_add_u32 v3, s%d, v3" % sT0)
            a("v_cmp_gt_u32 vcc, 192, v2")
            a("v_mov_b32 v4, 0x40000000")
            a("v_cndmask_b32 v3, v4, v3, vcc")
            a.vmem("buffer_load_dword v%d, v3, s[%d:%d], 0 offen" % (vd, S_W1, S_W1 + 3), "pf")

    def w1_tail_prefetch(self, vd):
        a = self.a
        a("s_lshr_b32 s%d, s2, 3" % sT0)
        r0 = self.pfw_r0; per = (512 - r0) // 32
        a("s_mul_i32 s%d, s%d, %d" % (sT0, sT0, per))
        a("s_add_u32 s%d, s%d, %d" % (sT0, sT0, r0))
        a("s_mul_i32 s%d, s%d, 2752" % (sT0, sT0))
        a("s_bfe_u32 s%d, s2, 0x10002" % sT1)
        a("s_mul_i32 s%d, s%d, 1472" % (sT1, sT1))
        a("s_add_u32 s%d, s%d, s%d" % (sT0, sT0, sT1))
        a("v_and_b32 v2, 255, v0")
        a("v_mul_u32_u24 v3, 5462, v2")
        a("v_lshrrev_b32 v3, 16, v3")
        a("v_mul_u32_u24 v4, 12, v3")
        a("v_sub_u32 v4, v2, v4")
        a("v_mul_u32_u24 v3, 2752, v3")
        a("v_lshl_add_u32 v3, v4, 7, v3")
        a("v_add_u32 v3, s%d, v3" % sT0)
        a("v_cmp_gt_u32 vcc, %d, v2" % (12 * per))
        a("v_mov_b32 v4, 0x40000000")
        a("v_cndmask_b32 v3, v4, v3, vcc")
        a.vmem("buffer_load_dword v%d, v3, s[%d:%d], 0 offen" % (vd, S_W1, S_W1 + 3), "pf")

    def m_front(self):
        a = self.a
        a("v_lshrrev_b32 v3, 5, v0")
        a("v_and_b32 v4, 31, v0")
        a("s_lshl_b32 s%d, s%d, 16" % (sT0, sR))
        a("s_lshl_b32 s%d, s%d, 7" % (sT1, sC))
        a("s_add_u32 s%d, s%d, s%d" % (sT0, sT0, sT1))
        a("v_lshlrev_b32 v2, 13, v3")
        a("v_lshl_add_u32 v2, v4, 2, v2")
        a("v_add_u32 v2, s%d, v2" % sT0)
        a("v_add_u32 v5, 0xfffff400, v2")
        a("v_add_u32 v6, 0xfffff800, v2")
        a("v_add_u32 v7, 0xfffffc00, v2")
        a("v_add_u32 v8, 4096, v2")
        a("s_lshl_b32 s%d, s%d, 9" % (sT2, sC))
        a("v_lshlrev_b32 v9, 4, v4")
        a("v_add_u32 v9, s%d, v9" % sT2)
        a.lg0()
        a("s_mov_b64 s[12:13], s[66:67]")
        a("s_mov_b64 s[16:17], s[68:69]")
        a("s_mov_b64 s[40:41], s[70:71]")
        a("s_mov_b64 s[8:9], s[64:65]")
        if self.stamps:
            a("s_memrealtime s[4:5]"); a.lg0(); a("v_writelane_b32 v255, s4, 0")
        K, V, SH = 20, 32, 40
        if "noprep" in self.exp:
            a.vm.issue("prep")
        else:
          for t, r in enumerate((5, 6, 7)):
            a.vmem("buffer_load_dword v%d, v%d, s[%d:%d], 0 offen" % (K + t, r, S_K, S_K + 3), "prep")
          for t in range(8):
            a.vmem("buffer_load_dword v%d, v%d, s[%d:%d], 0 offen offset:%d" % (K + 3 + t, 2 if t < 4 else 8, S_K, S_K + 3, 1024 * (t & 3)), "prep")
          a.vmem("buffer_load_dwordx4 v[40:43], v9, s[%d:%d], 0 offen" % (S_SH, S_SH + 3), "prep")
          for t in range(8):
            a.vmem("buffer_load_dword v%d, v%d, s[%d:%d], 0 offen offset:%d" % (V + t, 2 if t < 4 else 8, S_V, S_V + 3, 1024 * (t & 3)), "prep")
        a("s_branch L_Mrest")
        self.h_first()
        a.label("L_Mrest")
        self.jit(6)
        a.vm = self.vm_m_first
        self.rot_calc()
        self.p0_rest()
        a("s_waitcnt lgkmcnt(0)")
        a("s_barrier")
        if "pfM" in self.exp:
            self.line_prefetch("w1", 240)
        if not self.noflags:
            a("s_or_b32 s%d, s2, s%d" % (sT1, sW))
            a("s_cmp_lg_u32 s%d, 0" % sT1)
            a("s_cbranch_scc1 L_nononce")
            a("s_memrealtime s[4:5]")
            a("s_waitcnt lgkmcnt(0)")
            a("s_or_b32 s4, s4, 1")
            a("v_mov_b32 v2, s4")
            a("v_mov_b32 v3, 0")
            a("s_mov_b64 exec, 1")
            a("buffer_store_dword v2, v3, s[%d:%d], 0 offen sc1" % (S_DBG, S_DBG + 3))
            a("s_mov_b64 exec, -1")
            a.label("L_nononce")
        if "flagpf" in self.exp:
            a("s_lshl_b32 s%d, s%d, 7" % (sT0, sID))
            a("s_lshl_b32 s%d, s%d, 3" % (sT1, sR))
            a("s_add_u32 s%d, s%d, s%d" % (sT1, sT1, sC))
            a("s_lshl_b32 s%d, s%d, 7" % (sT1, sT1))
            a("s_add_u32 s%d, s%d, 0x%x" % (sT2, sT0, F_H1))
            a("v_mov_b32 v2, s%d" % sT2)
            a("s_add_u32 s%d, s%d, 0x%x" % (sT2, sT1, F_H2))
            a("v_writelane_b32 v2, s%d, 1" % sT2)
            a("s_add_u32 s%d, s%d, 0x%x" % (sT2, sT0, F_H3))
            a("v_writelane_b32 v2, s%d, 2" % sT2)
            a("s_mov_b64 exec, 7")
            a.vmem("buffer_load_dword v243, v2, s[%d:%d], 0 offen" % (S_WS, S_WS + 3), "pf")
            a("s_mov_b64 exec, -1")
        self.w1_voffs()
        self.m_gemm1_setup()
        a("s_lshl_b32 s%d, s%d, 7" % (sT0, sC))
        a("s_lshl_b32 s%d, s%d, 2" % (sT1, sR))
        a("s_add_u32 s%d, s%d, s%d" % (sT0, sT0, sT1))
        a("s_load_dword s%d, s[%d:%d], s%d" % (sDD, sDP, sDP + 1, sT0))

    def m_gemm1_setup(self):
        a = self.a
        AX = 8; AW = [9, 10, 11]
        a("v_and_b32 v2, 15, v1")
        a("v_lshrrev_b32 v3, 4, v1")
        a("v_lshlrev_b32 v4, 1, v3")
        a("v_xor_b32 v4, v2, v4")
        a("v_lshlrev_b32 v4, 4, v4")
        a("v_lshl_add_u32 v%d, v3, 8, v4" % AX)
        a("v_lshrrev_b32 v5, 2, v2")
        a("v_lshl_add_u32 v4, v3, 3, v5")
        a("v_mul_u32_u24 v4, 384, v4")
        a("v_and_b32 v6, 3, v1")
        a("v_lshl_add_u32 v4, v6, 3, v4")
        a("v_lshrrev_b32 v5, 1, v5")
        a("v_and_b32 v6, 1, v3")
        a("v_lshl_add_u32 v5, v6, 1, v5")
        a("s_mul_i32 s%d, s%d, 3" % (sT0, sRW))
        for b in range(3):
            a("s_add_u32 s%d, s%d, %d" % (sT1, sT0, b))
            a("v_xor_b32 v6, s%d, v5" % sT1)
            a("v_lshl_add_u32 v6, v6, 5, v4")
            a("v_add_u32 v%d, %d, v6" % (AW[b], L_W1))
        a("v_lshlrev_b32 v5, 4, v2")
        a("v_lshrrev_b32 v4, 1, v3")
        a("v_lshl_add_u32 v5, v4, 8, v5")
        a("v_and_b32 v4, 1, v3")
        if "st16" in self.exp:
            a("v_mul_u32_u24 v4, 44032, v4")
            a("v_add_u32 v5, v5, v4")
        else:
            a("v_lshl_add_u32 v5, v4, 3, v5")
        a("s_lshr_b32 s%d, s%d, 4" % (sBP, sF0))
        a("s_mul_i32 s%d, s%d, %d" % (sT0, sR, 4 * 44032))
        a("s_mul_i32 s%d, s%d, 3" % (sT1, sRW))
        a("s_add_u32 s%d, s%d, s%d" % (sT2, sT1, sBP))
        a("s_lshl_b32 s%d, s%d, 9" % (sT2, sT2))
        a("s_add_u32 s%d, s%d, s%d" % (sT0, sT0, sT2))
        a("s_add_u32 s%d, s%d, 0x%x" % (sT0, sT0, WS_H))
        a("v_add_u32 v168, s%d, v5" % sT0)
        for tb in range(1, 4):
            a("v_add_u32 v%d, %d, v168" % (168 + tb, 44032 * tb))
        for b, sr_ in ((1, sINV1), (2, sINV2)):
            a("s_add_u32 s%d, s%d, %d" % (sT2, sT1, b))
            a("s_cmp_lt_u32 s%d, s%d" % (sT2, sNB))
            a("s_cselect_b32 s%d, 0, 0x40000000" % sr_)

    def m_prep(self):
        a = self.a
        K, V, SH = 20, 32, 40
        WL, WH = 44, 48
        PL, PH = 52, 56
        PP, AC = 60, 64
        TA, TB = 68, 72
        KV = 76
        OUT = 92
        dma = []
        if "V2" in self.exp:
            for f in self.w1_dma_ops(0) + self.w1_dma_ops(1): f()
        if "V4" in self.exp:
            for f in self.w1_dma_ops(0): f()
            dma = self.w1_dma_ops(1) + self.w1_dma_ops(2)
        if "V5" in self.exp:
            for f in self.w1_dma_ops(0) + self.w1_dma_ops(1): f()
            dma = self.w1_dma_ops(2)
        if "pfWa" in self.exp: self.w1_tail_prefetch(241)
        if "noprep" in self.exp:
            a.vm.issue("kvt")
            if not self.noflags:
                a("v_mov_b32 v7, 0")
                a.vmem("buffer_load_dword v19, v7, s[%d:%d], 0 offen sc1" % (S_DBG, S_DBG + 3), "nonce")
            for f in self.w1_dma_ops(2): f()
            return
        a.wait_vm("prep")
        self.stamp(12)
        seq = []; e = seq.append
        e("v_and_b32 v%d, v%d, v%d" % (WL + 0, vMLO, SH + 0)); e("v_lshrrev_b32 v%d, 16, v%d" % (WL + 1, SH + 0))
        e("v_and_b32 v%d, v%d, v%d" % (WL + 2, vMLO, SH + 1)); e("v_lshrrev_b32 v%d, 16, v%d" % (WL + 3, SH + 1))
        e("v_lshlrev_b32 v%d, 16, v%d" % (WH + 0, SH + 2)); e("v_and_b32 v%d, v%d, v%d" % (WH + 1, vMHI, SH + 2))
        e("v_lshlrev_b32 v%d, 16, v%d" % (WH + 2, SH + 3)); e("v_and_b32 v%d, v%d, v%d" % (WH + 3, vMHI, SH + 3))
        for hb in range(2):
            r0 = 4 * hb
            if "relax_prep" in self.exp:
                for r in range(4):
                    e("v_dot2_f32_bf16 v%d, v%d, v%d, 0" % (PL + r, K + r0 + r, WL + 3))
                    e("v_dot2_f32_bf16 v%d, v%d, v%d, 0" % (PH + r, K + r0 + r, WH + 3))
                for j in (2, 1, 0):
                    for r in range(4):
                        e("v_dot2_f32_bf16 v%d, v%d, v%d, v%d" % (PL + r, K + 3 + r0 + r - j, WL + j, PL + r))
                        e("v_dot2_f32_bf16 v%d, v%d, v%d, v%d" % (PH + r, K + 3 + r0 + r - j, WH + j, PH + r))
                for r in range(4):
                    e("v_cvt_pk_bf16_f32 v%d, v%d, v%d" % (AC + r, PL + r, PH + r))
            else:
                for j in (3, 2, 1, 0):
                    for r in range(4):
                        e("v_dot2_f32_bf16 v%d, v%d, v%d, 0" % (PL + r, K + 3 + r0 + r - j, WL + j))
                        e("v_dot2_f32_bf16 v%d, v%d, v%d, 0" % (PH + r, K + 3 + r0 + r - j, WH + j))
                    dstp = AC if j == 3 else PP
                    for r in range(4):
                        e("v_cvt_pk_bf16_f32 v%d, v%d, v%d" % (dstp + r, PL + r, PH + r))
                    if j != 3:
                        for r in range(4):
                            e("v_perm_b32 v%d, v%d, v%d, s%d" % (TA + r, PP + r, AC + r, sP0))
                            e("v_perm_b32 v%d, v%d, v%d, s%d" % (TB + r, PP + r, AC + r, sP1))
                        for r in range(4):
                            e("v_dot2_f32_bf16 v%d, v%d, v%d, 0" % (PL + r, TA + r, vONES))
                            e("v_dot2_f32_bf16 v%d, v%d, v%d, 0" % (PH + r, TB + r, vONES))
                        for r in range(4):
                            e("v_cvt_pk_bf16_f32 v%d, v%d, v%d" % (AC + r, PL + r, PH + r))
            for r in range(4):
                e("v_and_b32 v%d, v%d, v%d" % (TA + r, vMLO, V + r0 + r))
                e("v_and_b32 v%d, v%d, v%d" % (TB + r, vMHI, V + r0 + r))
            for r in range(4):
                e("v_dot2_f32_bf16 v%d, v%d, v%d, 0" % (KV + r0 + r, AC + r, TA + r))
                e("v_dot2_f32_bf16 v%d, v%d, v%d, 0" % (KV + 8 + r0 + r, AC + r, TB + r))
        e("v_and_b32 v2, 31, v0"); e("v_mul_u32_u24 v2, 288, v2"); e("v_lshrrev_b32 v3, 5, v0"); e("v_lshlrev_b32 v3, 4, v3")
        e("v_sub_u32 v2, v2, v3"); e("v_add_u32 v2, %d, v2" % (L_PREP + 112))
        for ch in range(2):
            for d in range(4):
                e("v_cvt_pk_bf16_f32 v%d, v%d, v%d" % (OUT + 4 * ch + d, KV + 8 * ch + 7 - 2 * d, KV + 8 * ch + 6 - 2 * d))
        self.spread(seq, dma)
        self.stamp(20)
        a("ds_write_b128 v2, v[%d:%d]" % (OUT, OUT + 3))
        a("ds_write_b128 v2, v[%d:%d] offset:144" % (OUT + 4, OUT + 7))
        a("v_lshrrev_b32 v2, 3, v0")
        a("v_and_b32 v3, 7, v0")
        a("v_mul_u32_u24 v4, 144, v2")
        a("v_lshl_add_u32 v4, v3, 4, v4")
        a("v_add_u32 v4, %d, v4" % L_PREP)
        a("s_lshl_b32 s%d, s%d, 18" % (sT0, sC))
        a("s_lshl_b32 s%d, s%d, 7" % (sT1, sR))
        a("s_sub_u32 s%d, s%d, s%d" % (sT0, sT0, sT1))
        a("s_add_u32 s%d, s%d, %d" % (sT0, sT0, WS_KVT + 3968))
        a("v_lshlrev_b32 v5, 12, v2")
        a("v_lshl_add_u32 v5, v3, 4, v5")
        a("v_add_u32 v5, s%d, v5" % sT0)
        a("v_add_u32 v6, %d, v5" % (32 * 4096))
        if "dmafirst" in self.exp:
            for f in self.w1_dma_ops(0) + self.w1_dma_ops(1) + self.w1_dma_ops(2): f()
            self.stamp(15)
        self.m_sync(13, va=2, vb=3)
        a("ds_read_b128 v[92:95], v4")
        a("ds_read_b128 v[96:99], v4 offset:%d" % (32 * 144))
        a.lg0()
        a.vmem("buffer_store_dwordx4 v[92:95], v5, s[%d:%d], 0 offen sc1" % (S_WS, S_WS + 3), "kvt")
        a.vmem("buffer_store_dwordx4 v[96:99], v6, s[%d:%d], 0 offen sc1" % (S_WS, S_WS + 3), "kvt")
        if not self.noflags:
            a("v_mov_b32 v7, 0")
            a.vmem("buffer_load_dword v19, v7, s[%d:%d], 0 offen sc1" % (S_DBG, S_DBG + 3), "nonce")
        if "pfWb" in self.exp: self.w1_tail_prefetch(241)
        if "dmafirst" not in self.exp:
            self.stamp(15)
            if "V3" in self.exp: lst = self.w1_dma_ops(2) + self.w1_dma_ops(3)
            elif "V2" in self.exp: lst = self.w1_dma_ops(2)
            elif "V4" in self.exp or "V5" in self.exp: lst = []
            else: lst = self.w1_dma_ops(0) + self.w1_dma_ops(1) + self.w1_dma_ops(2)
            for f in lst: f()

    def m_gemm1(self):
        a = self.a
        ACC = 20
        BUF = [68, 96, 124]
        AX = 8; AW = [9, 10, 11]
        UREG = 152
        for i in range(48):
            a("v_mov_b32 v%d, 0" % (ACC + i))

        def read_ops(ks):
            buf = BUF[ks % 3]
            j = ks >> 1; ksl = ks & 1; slot = j % NW1
            pre = []
            if ksl == 0 and j > 0:
                d = W1_SLOT if slot != 0 else -(NW1 - 1) * W1_SLOT
                for b in range(3):
                    pre.append("v_add_u32 v%d, %d, v%d" % (AW[b], d & 0xffffffff, AW[b]))
            so = ksl * 32 * 384
            def rx(t):
                return lambda: a.lds("ds_read_b128 v[%d:%d], v%d offset:%d" % (buf + 4 * t, buf + 4 * t + 3, AX, L_XN + (j % NXN) * 8192 + t * 2048 + ksl * 1024), "x%d_%d" % (ks, t))
            def rw(b, hh):
                r0 = buf + 16 + 4 * b + 2 * hh
                return lambda: a.lds("ds_read_b64_tr_b16 v[%d:%d], v%d offset:%d" % (r0, r0 + 1, AW[b], so + hh * 4 * 384), "w%d_%d" % (ks, b))
            if "mnoreads" in self.exp: return pre
            return pre + [rw(0, 0), rw(0, 1), rx(0), rx(1), rx(2), rx(3), rw(1, 0), rw(1, 1), rw(2, 0), rw(2, 1)]

        def mfma_ops(ks):
            cur = BUF[ks % 3]
            ops = []
            for b in range(3):
                for t in range(4):
                    def f(b=b, t=t):
                        if "finewait" in self.exp:
                            a.need_lds("w%d_%d" % (ks, b), "x%d_%d" % (ks, t))
                        elif b == 0 and t == 0:
                            a.need_lds(*(["w%d_%d" % (ks, bb) for bb in range(3)] + ["x%d_%d" % (ks, tt) for tt in range(4)]))
                        acc = ACC + (b * 4 + t) * 4
                        if "mnomfma" in self.exp: return
                        a("v_mfma_f32_16x16x32_bf16 v[%d:%d], v[%d:%d], v[%d:%d], v[%d:%d]" % (
                            acc, acc + 3, cur + 16 + 4 * b, cur + 19 + 4 * b, cur + 4 * t, cur + 4 * t + 3, acc, acc + 3))
                    ops.append(f)
            return ops

        if not self.noflags and "V1" in self.exp: self.publish_h1()
        if "V3" not in self.exp: a.wait_vm("w1c1")
        a("s_barrier")
        self.stamp(14)
        for f in read_ops(0): self.run(f)
        if self.h1j == 0 and not self.noflags and "V1" not in self.exp:
            q_l = (list(a.lg.q), a.lg_done)
            self.publish_h1()
        for f in read_ops(1)[:5]: self.run(f)
        pend = read_ops(1)[5:]
        for j in range(8):
            if j == 3: self.jit(10)
            if j >= 1 and j <= 6:
                if not ("mnodma" in self.exp and j + 1 >= 3) and "novmw" not in self.exp: a.wait_vm("w1c%d" % (j + 1))
                a("s_barrier")
                if "itst" in self.exp: self.stamp(22 + j)
                if j == self.h1j and not self.noflags and "V1" not in self.exp: self.publish_h1()
            dm = self.w1_dma_ops(j + 4) if (j + 4 <= 7) else []
            if j == 0 and "V3" not in self.exp: dm = self.w1_dma_ops(3) + dm
            if "mnodma" in self.exp:
                for _ in dm: a.vm.issue("dummy")
                dm = []
            ex = []
            for half in range(2):
                ks = 2 * j + half
                fill = list(pend); pend = []
                if ks + 2 <= 15:
                    fill += read_ops(ks + 2)
                hlf = (len(dm) + 1) // 2
                extra = (dm[:hlf] + ex if half == 0 else dm[hlf:])
                interleave(a, mfma_ops(ks), merge(fill, extra))
        a.lg0()
        self.stamp(2)
        HB = 68
        for i in range(12):
            a("v_cvt_pk_bf16_f32 v%d, v%d, v%d" % (HB + 2 * i, ACC + 4 * i, ACC + 4 * i + 1))
            a("v_cvt_pk_bf16_f32 v%d, v%d, v%d" % (HB + 2 * i + 1, ACC + 4 * i + 2, ACC + 4 * i + 3))
        for i in range(24):
            a("v_pk_max_i16 v%d, v%d, 0" % (HB + i, HB + i))
        if "st16" in self.exp:
            for b in range(3):
                for u in range(2):
                    r = HB + 8 * b + 4 * u
                    a("v_permlane16_swap_b32 v%d, v%d" % (r, r + 2))
                    a("v_permlane16_swap_b32 v%d, v%d" % (r + 1, r + 3))
            for b in range(3):
                so = "0" if b == 0 else "s%d" % (sINV1 if b == 1 else sINV2)
                for u in range(2):
                    r = HB + 8 * b + 4 * u
                    a.vmem("buffer_store_dwordx4 v[%d:%d], v%d, s[%d:%d], %s offen offset:%d sc1" % (r, r + 3, 168 + 2 * u, S_WS, S_WS + 3, so, 512 * b), "hst")
        elif "nohst" in self.exp:
            a.vm.issue("hst")
        else:
          for b in range(3):
            so = "0" if b == 0 else "s%d" % (sINV1 if b == 1 else sINV2)
            for t in range(4):
                r = HB + (b * 4 + t) * 2
                a.vmem("buffer_store_dwordx2 v[%d:%d], v%d, s[%d:%d], %s offen offset:%d sc1" % (r, r + 1, 168 + t, S_WS, S_WS + 3, so, 512 * b), "hst")
        if "h2pre" in self.exp and not self.noflags:
            self.publish_h2()
        self.jit(1)
        a("s_barrier")

    def get_nonce(self):
        if self.noflags: return
        a = self.a
        a.wait_vm("nonce")
        lo = a.newlabel("L_nz"); lp = a.newlabel("L_nl")
        a("v_readfirstlane_b32 s%d, v19" % sNONCE)
        a("s_nop 3")
        a("s_cmp_lg_u32 s%d, 0" % sNONCE)
        a("s_cbranch_scc1 %s" % lo)
        a("s_mov_b32 s%d, 0" % sT3)
        a.label(lp)
        a("v_mov_b32 v7, 0")
        a("buffer_load_dword v19, v7, s[%d:%d], 0 offen sc1" % (S_DBG, S_DBG + 3))
        a("s_waitcnt vmcnt(0)")
        a("v_readfirstlane_b32 s%d, v19" % sNONCE)
        a("s_add_u32 s%d, s%d, 1" % (sT3, sT3))
        a("s_cmp_gt_u32 s%d, 100000" % sT3)
        a("s_cbranch_scc1 %s" % lo)
        a("s_cmp_eq_u32 s%d, 0" % sNONCE)
        a("s_cbranch_scc1 %s" % lp)
        a.label(lo)

    def flag_store(self, off_sreg, tag, va=2, vb=3):
        if self.noflags: return
        a = self.a
        a("v_mov_b32 v%d, s%d" % (va, off_sreg))
        a("v_mov_b32 v%d, s%d" % (vb, sNONCE))
        a("s_mov_b64 exec, 1")
        a.vmem("buffer_store_dword v%d, v%d, s[%d:%d], 0 offen sc1" % (vb, va, S_WS, S_WS + 3), tag)
        a("s_mov_b64 exec, -1")

    def publish_h1(self):
        a = self.a
        self.get_nonce()
        if "noprep" in self.exp: return
        a.wait_vm("kvt")
        a("s_lshl_b32 s%d, s%d, 7" % (sT0, sID))
        a("s_lshl_b32 s%d, s%d, 2" % (sT2, sRW))
        a("s_add_u32 s%d, s%d, s%d" % (sT0, sT0, sT2))
        a("s_add_u32 s%d, s%d, 0x%x" % (sT0, sT0, F_H1))
        self.flag_store(sT0, "flag")

    def poll(self, base_sreg, nlanes, width, stride):
        if self.noflags: return
        a = self.a
        lp = a.newlabel("L_poll"); dn = a.newlabel("L_pdone")
        a("v_mul_u32_u24 v2, %d, v1" % stride)
        a("v_add_u32 v2, s%d, v2" % base_sreg)
        a("s_mov_b32 s%d, 0" % sT3)
        if nlanes <= 16: a("s_mov_b64 exec, 0x%x" % ((1 << nlanes) - 1))
        else:
            a("s_mov_b32 exec_lo, -1"); a("s_mov_b32 exec_hi, 0")
        a.label(lp)
        if width == 1:
            a("buffer_load_dword v4, v2, s[%d:%d], 0 offen sc1" % (S_WS, S_WS + 3))
            a("s_waitcnt vmcnt(0)")
            a("v_cmp_ne_u32 vcc, s%d, v4" % sNONCE)
        else:
            a("buffer_load_dwordx4 v[4:7], v2, s[%d:%d], 0 offen sc1" % (S_WS, S_WS + 3))
            a("s_waitcnt vmcnt(0)")
            for i in range(4): a("v_xor_b32 v%d, s%d, v%d" % (4 + i, sNONCE, 4 + i))
            a("v_or3_b32 v4, v4, v5, v6")
            a("v_or_b32 v4, v4, v7")
            a("v_cmp_ne_u32 vcc, 0, v4")
        a("s_add_u32 s%d, s%d, 1" % (sT3, sT3))
        a("s_cmp_gt_u32 s%d, 100000" % sT3)
        a("s_cbranch_scc1 %s" % dn)
        a("s_cbranch_vccnz %s" % lp)
        a.label(dn)
        a("s_mov_b64 exec, -1")

    def lds_wait(self, addr_sreg, val=1, va=16, vb=17):
        a = self.a
        lp = a.newlabel("L_ps"); dn = a.newlabel("L_psd")
        a("v_mov_b32 v%d, s%d" % (va, addr_sreg))
        a("s_mov_b32 s%d, 0" % sT3)
        a.label(lp)
        a("ds_read_b32 v%d, v%d" % (vb, va))
        a("s_waitcnt lgkmcnt(0)")
        a("v_readfirstlane_b32 s4, v%d" % vb)
        a("s_add_u32 s%d, s%d, 1" % (sT3, sT3))
        a("s_cmp_ge_u32 s4, %d" % val)
        a("s_cbranch_scc1 %s" % dn)
        a("s_cmp_lt_u32 s%d, 1000000" % sT3)
        a("s_cbranch_scc1 %s" % lp)
        a.label(dn)
        a.lg_clear()

    def m_sync(self, word, n=4, va=16, vb=17):
        a = self.a
        a("v_mov_b32 v%d, %d" % (va, L_SYNC + 4 * word))
        a("v_mov_b32 v%d, 1" % vb)
        a.lg0()
        a("s_mov_b64 exec, 1")
        a("ds_add_u32 v%d, v%d" % (va, vb))
        a("s_mov_b64 exec, -1")
        a("s_mov_b32 s5, %d" % (L_SYNC + 4 * word))
        self.lds_wait(5, n, va, vb)

    def pair_sync(self, stage, va=16, vb=17):
        a = self.a
        a("s_lshl_b32 s4, s%d, 2" % sRW)
        a("s_add_u32 s4, s4, %d" % (L_SYNC + 16 * stage))
        a("s_xor_b32 s5, s4, 4")
        a("v_mov_b32 v%d, s4" % va)
        a("v_mov_b32 v%d, 1" % vb)
        a.lg0()
        a("ds_write_b32 v%d, v%d" % (va, vb))
        self.lds_wait(5, 1, va, vb)

    def publish_h2(self):
        a = self.a
        a.wait_vm("hst")
        a("s_lshl_b32 s4, s%d, 3" % sR)
        a("s_add_u32 s4, s4, s%d" % sC)
        a("s_lshl_b32 s4, s4, 7")
        a("s_lshl_b32 s5, s%d, 2" % sRW)
        a("s_add_u32 s4, s4, s5")
        a("s_add_u32 s%d, s4, 0x%x" % (sT2, F_H2))
        self.flag_store(sT2, "flag", 4, 5)

    def m_conv(self):
        a = self.a
        BF, ACC, AF, NA = 20, 148, 180, 16
        AU, AT = 2, 3
        a("v_and_b32 v8, 15, v1")
        a("v_lshrrev_b32 v9, 4, v1")
        a("v_lshlrev_b32 v10, 4, v9")
        a("v_lshlrev_b32 v11, 5, v8")
        a("v_sub_u32 v10, v10, v11")
        a("s_lshr_b32 s%d, s%d, 1" % (sT0, sRW))
        a("s_and_b32 s%d, s%d, 1" % (sT1, sRW))
        a("s_mul_i32 s%d, s%d, %d" % (sT2, sT0, U_CH))
        a("s_add_u32 s%d, s%d, %d" % (sT2, sT2, L_U + 2 * 2032 - 64 * 56))
        a("s_lshl_b32 s4, s%d, 6" % sT1)
        a("s_add_u32 s%d, s%d, s4" % (sT2, sT2))
        a("v_add_u32 v%d, s%d, v10" % (AU, sT2))
        a("v_and_b32 v10, 3, v8")
        a("v_mul_u32_u24 v10, %d, v10" % T_CP)
        a("v_lshrrev_b32 v11, 2, v8")
        a("v_lshl_add_u32 v10, v11, 3, v10")
        a("v_lshl_add_u32 v10, v9, 4, v10")
        a("s_mul_i32 s%d, s%d, %d" % (sT2, sT0, T_CH))
        a("s_add_u32 s%d, s%d, s4" % (sT2, sT2))
        a("s_add_u32 s%d, s%d, %d" % (sT2, sT2, L_T))
        a("v_add_u32 v%d, s%d, v10" % (AT, sT2))
        a("v_lshl_add_u32 v10, v9, 3, v8")
        a("s_lshl_b32 s4, s%d, 5" % sT1)
        a("v_add_u32 v10, s4, v10")
        MK = 12
        for d in range(4):
            a("v_sub_u32 v11, %d, v10" % (15 - 2 * d))
            a("v_med3_i32 v11, v11, 0, 2")
            a("v_lshlrev_b32 v11, 4, v11")
            a("v_mov_b32 v%d, -1" % (MK + d))
            a("v_lshlrev_b32 v16, v11, v%d" % (MK + d))
            a("v_cmp_eq_u32 vcc, 32, v11")
            a("v_cndmask_b32_e64 v%d, v16, 0, vcc" % (MK + d))
        for i in range(32):
            a("v_mov_b32 v%d, 0" % (ACC + i))
        def emit_A(ee):
            r = AF + 4 * (ee % NA)
            a.lds("ds_read_b64 v[%d:%d], v%d offset:%d" % (r, r + 1, AT, 128 * ee), ("A", ee))
            a.lds("ds_read_b64 v[%d:%d], v%d offset:%d" % (r + 2, r + 3, AT, 128 * ee + 8), ("A", ee))
        def emit_B(idx):
            r = BF + 4 * idx
            a.lds("ds_read_b128 v[%d:%d], v%d offset:%d" % (r, r + 3, AU, 128 * idx), ("B", idx))
        sched = []
        for ee in range(32):
            for j in range(7, (ee >> 2) - 1, -1):
                sched.append((ee, j, 28 - 4 * j + ee))
        order = []; seen = set(); last_use_A = {}
        for n, (ee, j, idx) in enumerate(sched):
            for it in (("A", ee), ("B", idx)):
                if it not in seen:
                    seen.add(it); order.append(it)
            last_use_A[ee] = n
        ptr = 0; issued = set()
        def can_issue(item, n):
            if item[0] == "A" and item[1] >= NA:
                return last_use_A[item[1] - NA] < n
            return True
        def issue_next(n_now):
            nonlocal ptr
            if ptr < len(order) and can_issue(order[ptr], n_now):
                it = order[ptr]
                (emit_A if it[0] == "A" else emit_B)(it[1])
                issued.add(it); ptr += 1
                return True
            return False
        def inflight():
            return len(a.lg.q) - a.lg_done
        GRP = 4
        while inflight() < 14 and issue_next(0): pass
        masked = False
        for n, (ee, j, idx) in enumerate(sched):
            while ("A", ee) not in issued or ("B", idx) not in issued:
                assert issue_next(n)
            if not (a.lds_done(("A", ee)) and a.lds_done(("B", idx))):
                tags = [("A", ee), ("B", idx)]
                for (e2, j2, i2) in sched[n + 1:n + GRP]:
                    if ("A", e2) in issued and ("B", i2) in issued: tags += [("A", e2), ("B", i2)]
                    else: break
                a.need_lds(*tags)
            ar = AF + 4 * (ee % NA); br = BF + 4 * idx; acc = ACC + 4 * j
            if ee == 0 and not masked:
                for d in range(4): a("v_and_b32 v%d, v%d, v%d" % (ar + d, MK + d, ar + d))
                masked = True
            a("v_mfma_f32_16x16x32_bf16 v[%d:%d], v[%d:%d], v[%d:%d], v[%d:%d]" % (acc, acc + 3, ar, ar + 3, br, br + 3, acc, acc + 3))
            if inflight() < 14:
                issue_next(n + 1)
                if n < 40 and inflight() < 14: issue_next(n + 1)
            if n == self.h2n and not self.noflags and "h2pre" not in self.exp:
                self.publish_h2()
        self.stamp(16)
        self.jit(8)
        self.pair_sync(0)
        a("v_lshlrev_b32 v4, 4, v1")
        a("s_mul_i32 s%d, s%d, %d" % (sT0, sT0, T_CH))
        a("s_add_u32 s%d, s%d, %d" % (sT0, sT0, L_T + 8))
        a("s_lshl_b32 s%d, s%d, 12" % (sT2, sT1))
        a("s_add_u32 s%d, s%d, s%d" % (sT2, sT2, sT0))
        a("v_add_u32 v5, s%d, v4" % sT2)
        a("s_xor_b32 s%d, s%d, 1" % (sT2, sT1))
        a("s_lshl_b32 s%d, s%d, 12" % (sT2, sT2))
        a("s_add_u32 s%d, s%d, s%d" % (sT2, sT2, sT0))
        a("v_add_u32 v6, s%d, v4" % sT2)
        l0 = a.newlabel("L_cr0"); l1 = a.newlabel("L_cr1")
        a("s_cmp_eq_u32 s%d, 0" % sT1)
        a("s_cbranch_scc1 %s" % l0)
        for i in range(4):
            a("ds_write_b128 v5, v[%d:%d] offset:%d" % (ACC + 4 * i, ACC + 4 * i + 3, 1024 * i))
        for i in range(16):
            a("v_mov_b32 v%d, v%d" % (200 + i, ACC + 16 + i))
        a("s_branch %s" % l1)
        a.label(l0)
        for i in range(4):
            a("ds_write_b128 v5, v[%d:%d] offset:%d" % (ACC + 16 + 4 * i, ACC + 16 + 4 * i + 3, 1024 * i))
        for i in range(16):
            a("v_mov_b32 v%d, v%d" % (200 + i, ACC + i))
        a.label(l1)
        a("v_and_b32 v4, 15, v1")
        a("v_lshrrev_b32 v7, 4, v1")
        a("v_lshlrev_b32 v4, 5, v4")
        a("v_lshl_add_u32 v4, v7, 3, v4")
        a("s_lshr_b32 s%d, s%d, 1" % (sT0, sRW))
        a("s_mul_i32 s%d, s%d, %d" % (sT2, sT0, U_CH))
        a("s_add_u32 s%d, s%d, %d" % (sT2, sT2, L_U + 2 * 2044 - 3 * 512))
        a("s_lshl_b32 s4, s%d, 11" % sT1)
        a("s_sub_u32 s%d, s%d, s4" % (sT2, sT2))
        a("v_sub_u32 v4, s%d, v4" % sT2)
        for i in range(4):
            a("ds_read_b64 v[%d:%d], v4 offset:%d" % (236 + 2 * i, 237 + 2 * i, (3 - i) * 512))
        a("s_and_b32 s4, s%d, 0xffff" % sDD)
        a("s_lshr_b32 s5, s%d, 16" % sDD)
        a("s_cmp_eq_u32 s%d, 0" % sT0)
        a("s_cselect_b32 s4, s4, s5")
        a("s_lshl_b32 s5, s4, 16")
        a("v_mov_b32 v8, s4")
        a("v_mov_b32 v9, s5")
        self.pair_sync(1)
        for i in range(4):
            a("ds_read_b128 v[%d:%d], v6 offset:%d" % (220 + 4 * i, 223 + 4 * i, 1024 * i))
        TT = 148
        for i in range(4):
            u0, u1 = 236 + 2 * i, 237 + 2 * i
            a("v_dot2_f32_bf16 v%d, v%d, v9, 0" % (TT + 4 * i + 0, u1))
            a("v_dot2_f32_bf16 v%d, v%d, v8, 0" % (TT + 4 * i + 1, u1))
            a("v_dot2_f32_bf16 v%d, v%d, v9, 0" % (TT + 4 * i + 2, u0))
            a("v_dot2_f32_bf16 v%d, v%d, v8, 0" % (TT + 4 * i + 3, u0))
        TB = 164
        for i in range(4):
            a("v_cvt_pk_bf16_f32 v%d, v%d, v%d" % (TB + 2 * i, TT + 4 * i, TT + 4 * i + 1))
            a("v_cvt_pk_bf16_f32 v%d, v%d, v%d" % (TB + 2 * i + 1, TT + 4 * i + 2, TT + 4 * i + 3))
        a("v_and_b32 v4, 15, v1")
        a("v_lshrrev_b32 v5, 2, v4")
        a("v_lshlrev_b32 v5, 16, v5")
        a("v_and_b32 v4, 3, v4")
        a("v_lshl_add_u32 v5, v4, 5, v5")
        a("v_lshrrev_b32 v7, 4, v1")
        if "st16" in self.exp:
            a("v_lshrrev_b32 v4, 1, v7")
            a("v_lshl_add_u32 v5, v4, 4, v5")
            a("v_and_b32 v4, 1, v7")
            a("v_lshl_add_u32 v5, v4, 18, v5")
        else:
            a("v_lshl_add_u32 v5, v7, 3, v5")
        a("s_lshl_b32 s%d, s%d, 6" % (sT2, sC))
        a("s_lshl_b32 s4, s%d, 1" % sR)
        a("s_add_u32 s%d, s%d, s4" % (sT2, sT2))
        a("s_add_u32 s%d, s%d, s%d" % (sT2, sT2, sT0))
        a("s_lshl_b32 s%d, s%d, 7" % (sT2, sT2))
        a("s_lshl_b32 s4, s%d, 20" % sT1)
        a("s_add_u32 s%d, s%d, s4" % (sT2, sT2))
        a("s_add_u32 s%d, s%d, 0x%x" % (sT2, sT2, WS_YT))
        a("v_add_u32 v5, s%d, v5" % sT2)
        a.lg0()
        for i in range(16):
            a("v_add_f32 v%d, v%d, v%d" % (200 + i, 200 + i, 220 + i))
        YB = 172
        for i in range(8):
            a("v_cvt_pk_bf16_f32 v%d, v%d, v%d" % (YB + i, 200 + 2 * i, 201 + 2 * i))
        for i in range(8):
            a("v_perm_b32 v%d, v%d, v%d, s%d" % (200 + 2 * i, TB + i, YB + i, sP0))
            a("v_perm_b32 v%d, v%d, v%d, s%d" % (201 + 2 * i, TB + i, YB + i, sP1))
        for i in range(16):
            a("v_dot2_f32_bf16 v%d, v%d, v%d, 0" % (220 + i, 200 + i, vONES))
        for i in range(8):
            a("v_cvt_pk_bf16_f32 v%d, v%d, v%d" % (180 + i, 220 + 2 * i, 221 + 2 * i))
        if "st16" in self.exp:
            for u in range(2):
                r = 180 + 4 * u
                a("v_permlane16_swap_b32 v%d, v%d" % (r, r + 2))
                a("v_permlane16_swap_b32 v%d, v%d" % (r + 1, r + 3))
            for u in range(2):
                if u: a("v_add_u32 v5, 0x80000, v5")
                a.vmem("buffer_store_dwordx4 v[%d:%d], v5, s[%d:%d], 0 offen sc1" % (180 + 4 * u, 183 + 4 * u, S_WS, S_WS + 3), "yst")
        else:
          for i in range(4):
            if i: a("v_add_u32 v5, 0x40000, v5")
            a.vmem("buffer_store_dwordx2 v[%d:%d], v5, s[%d:%d], 0 offen sc1" % (180 + 2 * i, 181 + 2 * i, S_WS, S_WS + 3), "yst")
        self.stamp(17)

    def w2_voff(self):
        a = self.a
        sh = 7 if self.w2s else 10
        a("v_lshrrev_b32 v2, 3, v1")
        a("v_and_b32 v2, 3, v2")
        a("v_lshrrev_b32 v3, 5, v1")
        a("v_lshl_add_u32 v2, v3, 3, v2")
        a("v_lshlrev_b32 v2, %d, v2" % sh)
        a("v_lshrrev_b32 v3, 4, v1")
        a("v_and_b32 v3, 3, v3")
        a("v_lshlrev_b32 v3, 1, v3")
        a("v_and_b32 v4, 7, v1")
        a("v_xor_b32 v3, v3, v4")
        a("v_lshl_add_u32 v2, v3, 4, v2")
        if self.w2s:
            a("s_mul_i32 s%d, s%d, 176128" % (sT0, sD))
            a("s_add_u32 s%d, s%d, 0x%x" % (sT0, sT0, WS_W2S))
        else:
            a("s_lshl_b32 s%d, s%d, 7" % (sT0, sD))
        a("v_add_u32 v14, s%d, v2" % sT0)

    def w2_dma(self, lds_base_sreg, lds_off, src_base_sreg, ks_off, tag):
        a = self.a
        inc = [0, 512, 1536, 512] if self.w2s else [0, 4096, 12288, 4096]
        srd = S_WS if self.w2s else S_W2
        fl = " sc1" if self.w2s else ""
        a("s_add_u32 s%d, s%d, %d" % (sT2, src_base_sreg, ks_off * self.KS))
        for m in range(4):
            a("s_add_u32 m0, s%d, %d" % (lds_base_sreg, lds_off + 1024 * m))
            if m: a("s_add_u32 s%d, s%d, %d" % (sT2, sT2, inc[m]))
            a.vmem("buffer_load_dwordx4 v14, s[%d:%d], s%d offen%s lds" % (srd, srd + 3, sT2, fl), tag)

    def w2_slot_dma(self, tag):
        a = self.a
        a("s_lshl_b32 s71, s%d, 12" % sT0)
        a("s_add_u32 s70, s%d, 9" % sT0)
        a("s_cmp_lt_u32 s%d, 13" % sT0)
        a("s_cselect_b32 s70, s%d, s70" % sT0)
        a("s_lshl_b32 s70, s70, %d" % (12 if self.w2s else 15))
        self.w2_dma(71, L_B, 70, 0, tag)

    def w2_early(self):
        a = self.a
        for m in range(3):
            a("s_add_u32 s%d, s%d, %d" % (sT0, sRW, 4 * m))
            if m == 2: a("s_min_u32 s%d, s%d, 9" % (sT0, sT0))
            if m >= 1: a("s_add_u32 s%d, s%d, 4" % (sT0, sT0))
            self.w2_slot_dma("w2e")

    def m_regionA(self):
        a = self.a
        self.w2_voff()
        a("s_lshr_b32 s75, s%d, 1" % sRW)
        a("s_and_b32 s76, s%d, 1" % sRW)
        a("s_mul_i32 s70, s75, %d" % (22 * self.KS))
        self.m_sync(12)
        a("s_mul_i32 s71, s75, %d" % (NA_H * 4096))
        a("s_add_u32 s71, s71, %d" % L_A)
        a("s_lshl_b32 s4, s76, 12")
        a("s_add_u32 s71, s71, s4")
        a("s_lshl_b32 s4, s76, %d" % (12 if self.w2s else 15))
        a("s_add_u32 s70, s70, s4")
        for m in range(3):
            self.w2_dma(71, 8192 * m, 70, 13 + 2 * m, "w2a")

    def n_after_w2a_min(self):
        return (0 if self.noflags else 1) + 4 + 1

    def m_tail(self):
        a = self.a
        self.jit(2)
        self.m_regionA()
        self.jit(3)
        a.wait_vm("yst")
        if not self.noflags:
            a("s_lshl_b32 s4, s%d, 7" % sID)
            a("s_lshl_b32 s5, s%d, 2" % sRW)
            a("s_add_u32 s4, s4, s5")
            a("s_add_u32 s%d, s4, 0x%x" % (sT2, F_H3))
            self.flag_store(sT2, "flag", 2, 3)
        self.stamp(21)
        a("s_mov_b32 s5, %d" % (L_SYNC + 56))
        self.lds_wait(5, 4)
        a("s_mul_i32 s71, s75, %d" % B_HALF)
        a("s_lshl_b32 s4, s76, 12")
        a("s_add_u32 s71, s71, s4")
        if L_B: a("s_add_u32 s71, s71, %d" % L_B)
        self.w2_dma(71, 0, 70, 19, "w2l")
        skl = a.newlabel("L_ml")
        a("s_cmp_eq_u32 s76, 1")
        a("s_cbranch_scc1 %s" % skl)
        self.w2_dma(71, 8192, 70, 21, "w2l")
        a.label(skl)
        self.final_x_load(self.XR, self.OA)
        a("v_lshrrev_b32 v3, 2, v0")
        a("v_and_b32 v4, 3, v0")
        a("v_lshlrev_b32 v5, 7, v3")
        a("v_lshl_add_u32 v5, v4, 5, v5")
        a("s_lshl_b32 s%d, s%d, 16" % (sT0, sR))
        a("s_lshl_b32 s%d, s%d, 13" % (sT1, sD))
        a("s_add_u32 s%d, s%d, s%d" % (sT0, sT0, sT1))
        a("s_add_u32 s%d, s%d, 0x%x" % (sT0, sT0, WS_YT))
        a("v_add_u32 v8, s%d, v5" % sT0)
        a("v_mul_u32_u24 v9, 144, v3")
        a("v_lshl_add_u32 v9, v4, 5, v9")
        a("v_add_u32 v9, %d, v9" % L_Y)
        early = "yearly" in self.exp and not self.noflags
        if early:
            a("s_lshl_b32 s%d, s%d, 12" % (sT0, sD))
            a("s_add_u32 s%d, s%d, 0x%x" % (sT0, sT0, F_H3))
            a("v_and_b32 v2, 31, v1")
            a("v_lshlrev_b32 v2, 7, v2")
            a("v_add_u32 v2, s%d, v2" % sT0)
            a("buffer_load_dwordx4 v[28:31], v2, s[%d:%d], 0 offen sc1" % (S_WS, S_WS + 3))
        a("s_waitcnt vmcnt(%d)" % (self.n_after_w2a_min() + (1 if early else 0)))
        self.stamp(18)
        a("s_barrier")
        a("s_waitcnt vmcnt(0)")
        def yloads():
            a("buffer_load_dwordx4 v[20:23], v8, s[%d:%d], 0 offen sc1" % (S_WS, S_WS + 3))
            a("buffer_load_dwordx4 v[24:27], v8, s[%d:%d], 0 offen offset:16 sc1" % (S_WS, S_WS + 3))
        if early:
            lslow = "L_yslow"; lback = "L_yback"
            for i in range(4): a("v_xor_b32 v%d, s%d, v%d" % (28 + i, sNONCE, 28 + i))
            a("v_or3_b32 v28, v28, v29, v30")
            a("v_or_b32 v28, v28, v31")
            a("v_cmp_ne_u32 vcc, 0, v28")
            a("s_cbranch_vccnz %s" % lslow)
            yloads()
            a("s_barrier")
            a.label(lback)
            self.yslow_body = yloads
        else:
            a("s_barrier")
            if not self.noflags and "noh3" not in self.exp:
                a("s_lshl_b32 s%d, s%d, 12" % (sT0, sD))
                a("s_add_u32 s%d, s%d, 0x%x" % (sT0, sT0, F_H3))
                self.poll(sT0, 32, 4, 128)
            yloads()
        self.stamp(7)
        a("s_waitcnt vmcnt(0)")
        a("ds_write_b128 v9, v[20:23]")
        a("ds_write_b128 v9, v[24:27] offset:16")
        a.lg0()
        a("s_barrier")

    def y_slow(self):
        a = self.a
        a.label("L_yslow")
        a("s_barrier")
        a("s_lshl_b32 s%d, s%d, 12" % (sT0, sD))
        a("s_add_u32 s%d, s%d, 0x%x" % (sT0, sT0, F_H3))
        self.poll(sT0, 32, 4, 128)
        self.yslow_body()
        a("s_branch L_yback")

    def final_x_load(self, xr, ar, t0=2, t1=3):
        a = self.a
        a("s_and_b32 s%d, s%d, 3" % (sT0, sW))
        a("s_lshl_b32 s%d, s%d, 4" % (sT0, sT0))
        a("s_lshl_b32 s%d, s%d, 6" % (sT1, sR))
        a("s_add_u32 s%d, s%d, s%d" % (sT0, sT0, sT1))
        a("s_lshl_b32 s%d, s%d, 10" % (sT0, sT0))
        a("s_lshl_b32 s%d, s%d, 7" % (sT1, sD))
        a("s_add_u32 s%d, s%d, s%d" % (sT0, sT0, sT1))
        a("s_lshr_b32 s%d, s%d, 2" % (sT1, sW))
        a("s_lshl_b32 s%d, s%d, 6" % (sT1, sT1))
        a("s_add_u32 s%d, s%d, s%d" % (sT0, sT0, sT1))
        a("v_lshrrev_b32 v%d, 2, v1" % t0)
        a("v_lshlrev_b32 v%d, 10, v%d" % (t0, t0))
        a("v_and_b32 v%d, 3, v1" % t1)
        a("v_lshl_add_u32 v%d, v%d, 4, v%d" % (t0, t1, t0))
        a("v_add_u32 v%d, s%d, v%d" % (ar, sT0, t0))
        a.vmem("buffer_load_dwordx4 v[%d:%d], v%d, s[%d:%d], 0 offen" % (xr, xr + 3, ar, S_X, S_X + 3), "xf")

    def u_slow(self):
        a = self.a
        a.label("L_uslow")
        a("s_lshl_b32 s%d, s%d, 12" % (sT0, sC))
        a("s_add_u32 s%d, s%d, 0x%x" % (sT0, sT0, F_H1))
        self.poll(sT0, 32, 1, 128)
        for i in range(4):
            a("buffer_load_dwordx4 v[%d:%d], v172, s[%d:%d], 0 offen offset:%d sc1" % (152 + 4 * i, 155 + 4 * i, S_WS, S_WS + 3, 1024 * i))
        a("s_waitcnt vmcnt(0)")
        for i in range(4):
            a("ds_write_b128 v174, v[%d:%d] offset:%d" % (152 + 4 * i, 155 + 4 * i, 1024 * i))
        a("s_waitcnt lgkmcnt(0)")
        a("s_branch L_uback")

    NEGM, RS, NMRS = 100, 101, 102
    def norm2(self, X, t):
        L = []
        L.append("v_lshlrev_b32 v%d, 16, v%d" % (t + 0, X))
        L.append("v_and_b32 v%d, v%d, v%d" % (t + 1, vMHI, X))
        L.append("v_lshlrev_b32 v%d, 16, v%d" % (t + 2, X + 1))
        L.append("v_and_b32 v%d, v%d, v%d" % (t + 3, vMHI, X + 1))
        if self.relax_ln:
            for i in range(4):
                L.append("v_fma_f32 v%d, v%d, v%d, v%d" % (t + i, t + i, self.RS, self.NMRS))
        else:
            for i in range(4):
                L.append("v_add_f32 v%d, v%d, v%d" % (t + i, t + i, self.NEGM))
            L.append("v_cvt_pk_bf16_f32 v%d, v%d, v%d" % (t + 4, t + 0, t + 1))
            L.append("v_cvt_pk_bf16_f32 v%d, v%d, v%d" % (t + 5, t + 2, t + 3))
            L.append("v_lshlrev_b32 v%d, 16, v%d" % (t + 0, t + 4))
            L.append("v_and_b32 v%d, v%d, v%d" % (t + 1, vMHI, t + 4))
            L.append("v_lshlrev_b32 v%d, 16, v%d" % (t + 2, t + 5))
            L.append("v_and_b32 v%d, v%d, v%d" % (t + 3, vMHI, t + 5))
            for i in range(4):
                L.append("v_mul_f32 v%d, v%d, v%d" % (t + i, t + i, self.RS))
        L.append("v_cvt_pk_bf16_f32 v%d, v%d, v%d" % (X, t + 0, t + 1))
        L.append("v_cvt_pk_bf16_f32 v%d, v%d, v%d" % (X + 1, t + 2, t + 3))
        return L

    def norm_chunk(self, j):
        a = self.a
        X = 20 + 8 * j
        for half in range(2):
            s1 = self.norm2(X + 4 * half, 104); s2 = self.norm2(X + 4 * half + 2, 110)
            for x, y in zip(s1, s2):
                a(x); a(y)
            a.lds("ds_write_b128 v116, v[%d:%d] offset:%d" % (X + 4 * half, X + 4 * half + 3, L_XN + (j % NXN) * 8192 + half * 1024), "xw")

    def h_first(self):
        a = self.a
        self.vm_m_first = a.vm
        a.vm = Q(["cpf"] if "codepf0" in self.exp else [])
        a.label("L_Hfirst")
        self.rot_calc()
        a("s_lshl_b32 s%d, s%d, 16" % (sT0, sR))
        a("s_lshl_b32 s%d, s%d, 14" % (sT1, sRW))
        a("s_add_u32 s%d, s%d, s%d" % (sT0, sT0, sT1))
        a("v_lshrrev_b32 v6, 2, v1")
        a("v_lshlrev_b32 v6, 10, v6")
        a("v_and_b32 v7, 3, v1")
        a("v_lshl_add_u32 v6, v7, 4, v6")
        a("v_add_u32 v6, s%d, v6" % sT0)
        if "norot" not in self.exp: a("s_lshl_b32 s%d, s%d, 7" % (sT0, sROT))
        a("s_waitcnt lgkmcnt(0)")
        a("s_mov_b64 s[8:9], s[64:65]")
        if self.stamps:
            a("s_memrealtime s[4:5]"); a("s_waitcnt lgkmcnt(0)"); a("v_writelane_b32 v255, s4, 0")
        for j in range(8):
            if "norot" in self.exp:
                a.vmem("buffer_load_dwordx4 v[%d:%d], v6, s[%d:%d], 0 offen offset:%d" % (20 + 8 * j, 23 + 8 * j, S_X, S_X + 3, 128 * j), "x%d" % j)
                a.vmem("buffer_load_dwordx4 v[%d:%d], v6, s[%d:%d], 0 offen offset:%d" % (24 + 8 * j, 27 + 8 * j, S_X, S_X + 3, 128 * j + 64), "x%d" % j)
                continue
            if j:
                a("s_add_u32 s%d, s%d, 128" % (sT0, sT0))
                a("s_and_b32 s%d, s%d, 1023" % (sT0, sT0))
            a.vmem("buffer_load_dwordx4 v[%d:%d], v6, s[%d:%d], s%d offen" % (20 + 8 * j, 23 + 8 * j, S_X, S_X + 3, sT0), "x%d" % j)
            a.vmem("buffer_load_dwordx4 v[%d:%d], v6, s[%d:%d], s%d offen offset:64" % (24 + 8 * j, 27 + 8 * j, S_X, S_X + 3, sT0), "x%d" % j)
        a("s_branch L_H")
        self.vm_h_first = a.vm

    def h_front(self):
        a = self.a
        a.vm = self.vm_h_first; a.lg_clear()
        self.jit(7)
        self.p0_rest()
        a("s_waitcnt lgkmcnt(0)")
        if "tlbpf" in self.exp:
            a("v_lshlrev_b32 v2, 19, v1")
            a("v_cmp_gt_u32 vcc, 28, v1")
            a("v_mov_b32 v3, 0x40000000")
            a("v_cndmask_b32 v2, v3, v2, vcc")
            a.vmem("buffer_load_dword v245, v2, s[%d:%d], 0 offen" % (S_WS, S_WS + 3), "tlb")
            a("v_lshlrev_b32 v2, 19, v1")
            a.vmem("buffer_load_dword v246, v2, s[%d:%d], 0 offen" % (S_OUT, S_OUT + 3), "tlb")
            a.vmem("buffer_load_dword v247, v2, s[%d:%d], 0 offen" % (S_W2, S_W2 + 3), "tlb")
            a.vmem("buffer_load_dword v243, v2, s[%d:%d], 0 offen" % (S_SSM, S_SSM + 3), "tlb")
        if self.w2s:
            a("s_lshl_b32 s%d, s2, 13" % sT2)
            a("v_and_b32 v2, 255, v0")
            a("v_lshlrev_b32 v3, 4, v2")
            a("v_add_u32 v3, s%d, v3" % sT2)
            a("s_cmp_lt_u32 s2, 172")
            a("s_cselect_b32 s86, 0, 0x40000000")
            a.vmem("buffer_load_dwordx4 v[224:227], v3, s[%d:%d], s86 offen" % (S_W2, S_W2 + 3), "w2sl")
            a("v_add_u32 v3, 4096, v3")
            a.vmem("buffer_load_dwordx4 v[228:231], v3, s[%d:%d], s86 offen" % (S_W2, S_W2 + 3), "w2sl")
            a("v_bfe_u32 v4, v2, 3, 3")
            a("v_mul_u32_u24 v4, 176128, v4")
            a("v_lshrrev_b32 v5, 6, v2")
            a("v_lshl_add_u32 v4, v5, 7, v4")
            a("v_and_b32 v5, 7, v2")
            a("v_lshl_add_u32 v4, v5, 4, v4")
            a("s_lshl_b32 s%d, s2, 10" % sT2)
            a("s_add_u32 s%d, s%d, 0x%x" % (sT2, sT2, WS_W2S))
            a("v_add_u32 v232, s%d, v4" % sT2)
        if "codepf" in self.exp:
            a("s_getpc_b64 s[82:83]")
            a.label("L_pc")
            a("s_sub_u32 s82, s82, L_pc-%s" % KNAME)
            a("s_subb_u32 s83, s83, 0")
            a("v_lshlrev_b32 v2, 7, v1")
            a("s_lshl_b32 s84, s%d, 13" % sRW)
            a("v_add_u32 v2, s84, v2")
            a("v_min_u32 v2, L_codeend-%s, v2" % KNAME)
            a("v_mov_b32 v3, s83")
            a("v_add_co_u32 v2, vcc, s82, v2")
            a("v_addc_co_u32 v3, vcc, 0, v3, vcc")
            a.vmem("global_load_dword v244, v[2:3], off", "cpf")
        a("s_waitcnt lgkmcnt(0)")
        a("s_barrier")

        if "V3" in self.exp:
            self.w1_voffs()
            for f in self.w1_dma_ops(0) + self.w1_dma_ops(1): f()
        a("s_setprio 0")
        if not self.noflags:
            a("v_mov_b32 v7, 0")
        a("v_lshrrev_b32 v4, 2, v1")
        a("v_and_b32 v5, 3, v1")
        a("v_lshlrev_b32 v2, 1, v5")
        a("v_xor_b32 v4, v4, v2")
        a("v_lshlrev_b32 v4, 4, v4")
        a("v_lshl_add_u32 v4, v5, 8, v4")
        a("s_lshl_b32 s%d, s%d, 11" % (sT2, sRW))
        a("v_add_u32 v116, s%d, v4" % sT2)

    def h_ssm_load(self):
        a = self.a
        a("s_lshl_b32 s%d, s%d, 6" % (sT2, sC))
        a("s_lshl_b32 s%d, s%d, 1" % (sT1, sR))
        a("s_add_u32 s%d, s%d, s%d" % (sT2, sT2, sT1))
        a("s_lshl_b32 s%d, s%d, 12" % (sT2, sT2))
        a("v_and_b32 v3, 255, v0")
        a("v_lshlrev_b32 v3, 4, v3")
        a("v_add_u32 v2, s%d, v3" % sT2)
        a("v_add_u32 v4, -8, v2")
        for ch in range(2):
            a.vmem("buffer_load_dwordx2 v[%d:%d], v4, s[%d:%d], 0 offen" % (84 + 6 * ch, 85 + 6 * ch, S_SSM, S_SSM + 3), "ssm")
            a.vmem("buffer_load_dwordx4 v[%d:%d], v2, s[%d:%d], 0 offen" % (86 + 6 * ch, 89 + 6 * ch, S_SSM, S_SSM + 3), "ssm")
            if ch == 0:
                a("v_add_u32 v2, 4096, v2")
                a("v_add_u32 v4, 4096, v4")

    def h_stats(self):
        a = self.a
        X = 20
        for i in range(8): a("v_mov_b32 v%d, 0" % (104 + i))
        for i in range(64):
            if i % 8 == 0:
                a.wait_vm("x%d" % (i // 8))
                if i == 0: self.stamp(13)
                if i == 8 * self.pfd and "pfWd" in self.exp: self.w1_tail_prefetch(241)
            a("v_dot2_f32_bf16 v%d, v%d, v%d, v%d" % (104 + (i & 3), X + i, vONES, 104 + (i & 3)))
            a("v_dot2_f32_bf16 v%d, v%d, v%d, v%d" % (108 + (i & 3), X + i, X + i, 108 + (i & 3)))
        a("v_add_f32 v104, v104, v105"); a("v_add_f32 v106, v106, v107")
        a("v_add_f32 v108, v108, v109"); a("v_add_f32 v110, v110, v111")
        a("v_add_f32 v2, v104, v106"); a("v_add_f32 v3, v108, v110")
        for ctl in ("quad_perm:[1,0,3,2]", "quad_perm:[2,3,0,1]"):
            a("v_add_f32_dpp v2, v2, v2 %s row_mask:0xf bank_mask:0xf" % ctl)
            a("v_add_f32_dpp v3, v3, v3 %s row_mask:0xf bank_mask:0xf" % ctl)
        a("v_mul_f32 v2, 0x3b000000, v2")
        a("v_mul_f32 v3, 0x3b000000, v3")
        a("v_cvt_pk_bf16_f32 v4, v2, v2")
        a("v_fma_f32 v3, -v2, v2, v3")
        a("v_lshlrev_b32 v4, 16, v4")
        a("v_max_f32 v3, 0, v3")
        a("v_cvt_pk_bf16_f32 v3, v3, v3")
        a("v_lshlrev_b32 v3, 16, v3")
        a("v_add_f32 v3, 0x3727c5ac, v3")
        a("v_cvt_pk_bf16_f32 v3, v3, v3")
        a("v_lshlrev_b32 v3, 16, v3")
        a("v_sqrt_f32 v3, v3")
        a("v_cvt_pk_bf16_f32 v3, v3, v3")
        a("v_lshlrev_b32 v3, 16, v3")
        a("v_rcp_f32 v%d, v3" % self.RS)
        a("v_sub_f32 v%d, 0, v4" % self.NEGM)
        a("v_mul_f32 v%d, v%d, v%d" % (self.NMRS, self.NEGM, self.RS))
        a("v_lshrrev_b32 v6, 2, v1")
        a("s_lshl_b32 s%d, s%d, 4" % (sT2, sRW))
        a("v_add_u32 v6, s%d, v6" % sT2)
        a("v_lshlrev_b32 v5, 3, v6")
        a("v_add_u32 v5, %d, v5" % L_STATS)
        a("v_mov_b32 v2, v4")
        a("v_mov_b32 v3, v%d" % self.RS)
        a.lds("ds_write_b64 v5, v[2:3]", "st")

    def h_tbuild(self, ch):
        a = self.a
        D = 84 + 6 * ch
        E = 118
        for p in range(5):
            a("v_alignbit_b32 v%d, v%d, v%d, 16" % (E + p, D + p + 1, D + p))
        for p in range(4):
            a("v_mov_b32 v%d, v%d" % (124 + p, D + 1 + p))
            a("v_mov_b32 v%d, v%d" % (128 + p, E + 1 + p))
        a("v_and_b32 v3, 255, v0")
        a("v_lshlrev_b32 v3, 4, v3")
        a("v_add_u32 v3, %d, v3" % (L_T + ch * T_CH + 24))
        a("ds_write_b128 v3, v[118:121]")
        a("ds_write_b128 v3, v[124:127] offset:%d" % T_CP)
        a("ds_write_b128 v3, v[128:131] offset:%d" % (2 * T_CP))
        a("ds_write_b128 v3, v[%d:%d] offset:%d" % (D + 2, D + 5, 3 * T_CP))

    def w2flag_loads(self, tag):
        a = self.a
        for i in range(3):
            a("v_add_u32 v3, %d, v1" % (64 * i))
            if i == 2:
                a("v_cmp_gt_u32 vcc, 172, v3")
                a("v_cndmask_b32 v3, 0, v3, vcc")
            a("v_lshlrev_b32 v3, 7, v3")
            a("v_add_u32 v3, 0x%x, v3" % F_H4)
            ins = "buffer_load_dword v%d, v3, s[%d:%d], 0 offen sc1" % (100 + i, S_WS, S_WS + 3)
            if tag: a.vmem(ins, tag)
            else: a(ins)

    def w2flag_check(self):
        a = self.a
        for i in range(3): a("v_xor_b32 v%d, s%d, v%d" % (104 + i, sNONCE, 100 + i))
        a("v_or3_b32 v104, v104, v105, v106")
        a("v_cmp_ne_u32 vcc, 0, v104")

    def h_uload(self):
        a = self.a
        if self.noflags: a.wait_vm("ssm")
        if not self.noflags:
            dn = a.newlabel("L_h1ok")
            a.wait_vm("h1f")
            for i in range(4): a("v_xor_b32 v%d, s%d, v%d" % (96 + i, sNONCE, 96 + i))
            a("v_or3_b32 v96, v96, v97, v98")
            a("v_or_b32 v96, v96, v99")
            a("v_cmp_ne_u32 vcc, 0, v96")
            a("s_cbranch_vccz %s" % dn)
            if "noprep" not in self.exp:
                a("s_lshl_b32 s%d, s%d, 12" % (sT0, sC))
                a("s_add_u32 s%d, s%d, 0x%x" % (sT0, sT0, F_H1))
                self.poll(sT0, 32, 4, 128)
            a.label(dn)
        self.stamp(3)
        a("s_lshl_b32 s%d, s%d, 6" % (sT0, sC))
        a("s_lshl_b32 s%d, s%d, 1" % (sT1, sR))
        a("s_add_u32 s%d, s%d, s%d" % (sT0, sT0, sT1))
        a("s_lshl_b32 s%d, s%d, 12" % (sT0, sT0))
        a("s_lshl_b32 s%d, s%d, 11" % (sT1, sRW))
        a("s_add_u32 s%d, s%d, s%d" % (sT0, sT0, sT1))
        a("v_lshlrev_b32 v4, 4, v1")
        a("v_add_u32 v5, s%d, v4" % sT0)
        a.vmem("buffer_load_dwordx4 v[20:23], v5, s[%d:%d], 0 offen sc1" % (S_WS, S_WS + 3), "u")
        a.vmem("buffer_load_dwordx4 v[24:27], v5, s[%d:%d], 0 offen offset:1024 sc1" % (S_WS, S_WS + 3), "u")
        self.h_tbuild(0)
        self.h_tbuild(1)
        if "w2early" in self.exp:
            self.w2_voff()
            self.w2_early()
        a("v_lshlrev_b32 v4, 4, v1")
        a("s_lshr_b32 s%d, s%d, 1" % (sT0, sRW))
        a("s_mul_i32 s%d, s%d, %d" % (sT0, sT0, U_CH))
        a("s_and_b32 s%d, s%d, 1" % (sT1, sRW))
        a("s_lshl_b32 s%d, s%d, 11" % (sT2, sT1))
        a("s_add_u32 s%d, s%d, s%d" % (sT0, sT0, sT2))
        a("s_add_u32 s%d, s%d, %d" % (sT0, sT0, L_U))
        a("v_add_u32 v6, s%d, v4" % sT0)
        for i in range(4): a("v_mov_b32 v%d, 0" % (28 + i))
        a("s_cmp_eq_u32 s%d, 1" % sT1)
        a("s_cselect_b32 exec_lo, -1, 0")
        a("s_mov_b32 exec_hi, 0")
        a("ds_write_b128 v6, v[28:31] offset:2048")
        a("s_mov_b64 exec, -1")
        a.wait_vm("u")
        a("ds_write_b128 v6, v[20:23]")
        a("ds_write_b128 v6, v[24:27] offset:1024")

    def norm_seq(self, j):
        a = self.a
        X = 20 + 8 * j
        seq = []
        for half in range(2):
            s1 = self.norm2(X + 4 * half, 104); s2 = self.norm2(X + 4 * half + 2, 110)
            if "hnonorm" in self.exp and j >= 2:
                s1 = ["s_nop 0"] * 8; s2 = ["s_nop 0"] * 8
            for x, y in zip(s1, s2):
                seq.append(x); seq.append(y)
            if "wmid" in self.exp:
                seq.append(lambda half=half: a.lds("ds_write_b128 v116, v[%d:%d] offset:%d" % (X + 4 * half, X + 4 * half + 3, L_XN + (j % NXN) * 8192 + half * 1024), "xw%d" % j))
        if not ("hnowrite" in self.exp and j >= 2) and "wmid" not in self.exp:
            for half in range(2):
                seq.append(lambda half=half: a.lds("ds_write_b128 v116, v[%d:%d] offset:%d" % (X + 4 * half, X + 4 * half + 3, L_XN + (j % NXN) * 8192 + half * 1024), "xw%d" % j))
        return seq

    def h_gemm1_side(self):
        a = self.a
        if self.w2s:
            a.wait_vm("w2sl")
            a.vmem("buffer_store_dwordx4 v[224:227], v232, s[%d:%d], s86 offen sc1" % (S_WS, S_WS + 3), "w2st")
            a.vmem("buffer_store_dwordx4 v[228:231], v232, s[%d:%d], s86 offen offset:512 sc1" % (S_WS, S_WS + 3), "w2st")
        if "hprio" in self.exp: a("s_setprio 2")
        if "pfWc" in self.exp: self.w1_tail_prefetch(241)
        if "lnpre" in self.exp:
            def split(j):
                sq = self.norm_seq(j)
                return sq[:-2], sq[-2:]
            wr = {}
            for j in range(8):
                v_, w_ = split(j)
                for x in v_: self.run(x)
                if j < 4:
                    for x in w_: self.run(x)
                else:
                    wr[j] = w_
                if j == 1 and not self.noflags:
                    a.vmem("buffer_load_dword v19, v7, s[%d:%d], 0 offen sc1" % (S_DBG, S_DBG + 3), "nonce")
            a.need_lds("xw0", "xw1")
            a("s_barrier")
        else:
            for x in self.norm_seq(0): self.run(x)
            s1 = self.norm_seq(1)
            h = len(s1) // 2
            for x in s1[:h]: self.run(x)
            for x in s1[h:]: self.run(x)
            if not self.noflags:
                a.vmem("buffer_load_dword v19, v7, s[%d:%d], 0 offen sc1" % (S_DBG, S_DBG + 3), "nonce")
            s2 = self.norm_seq(2)
            for x in s2[:h]: self.run(x)
            a.need_lds("xw0", "xw1")
            if "V3" in self.exp: a.wait_vm("w1c1")
            a("s_barrier")
            for x in s2[h:]: self.run(x)
        for j in range(8):
            if "lnpre" in self.exp:
                if j >= 1 and j + 3 <= 7:
                    for x in wr[j + 3]: self.run(x)
            elif j + 3 <= 7:
                for x in self.norm_seq(j + 3): self.run(x)
            if j == self.pf2j and "pf2" in self.exp: self.line_prefetch("w2", 242)
            if j == 1: self.h_ssm_load()
            if j == (self.w2j if self.w2s else 4) and not self.noflags:
                self.get_nonce()
            if j == 5:
                if not self.noflags:
                    a("s_lshl_b32 s%d, s%d, 12" % (sT0, sC))
                    a("s_add_u32 s%d, s%d, 0x%x" % (sT0, sT0, F_H1))
                    a("v_and_b32 v2, 31, v1")
                    a("v_lshlrev_b32 v2, 7, v2")
                    a("v_add_u32 v2, s%d, v2" % sT0)
                if self.w2s:
                    skf = a.newlabel("L_w2f")
                    a("s_cmp_lg_u32 s%d, 0" % sRW)
                    a("s_cbranch_scc1 %s" % skf)
                    self.w2flag_loads(tag=None)
                    a.label(skf)
                if not self.noflags:
                    a.vmem("buffer_load_dwordx4 v[96:99], v2, s[%d:%d], 0 offen sc1" % (S_WS, S_WS + 3), "h1f")
            if j + 1 <= 6:
                if j + 2 <= 7 and "hnowrite" not in self.exp: a.need_lds("xw%d" % (j + 2))
                if j == self.w2j and self.w2s: a.wait_vm("w2st")
                a("s_barrier")
                if j == self.w2j and self.w2s:
                    sk = a.newlabel("L_w2c")
                    a("s_cmp_lt_u32 s2, 172")
                    a("s_cselect_b32 s4, s%d, 1" % sRW)
                    a("s_cmp_lg_u32 s4, 0")
                    a("s_cbranch_scc1 %s" % sk)
                    a("s_lshl_b32 s4, s2, 7")
                    a("s_add_u32 s%d, s4, 0x%x" % (sT2, F_H4))
                    q = list(a.vm.q)
                    self.flag_store(sT2, "flag", 2, 3)
                    a.vm.q = q
                    a.label(sk)
                if "itst" in self.exp: self.stamp(23 + j)
        if "hprio" in self.exp: a("s_setprio 0")
        self.h_uload()
        if self.w2s:
            lp = a.newlabel("L_w2p"); dn = a.newlabel("L_w2d")
            a("s_cmp_lg_u32 s%d, 0" % sRW)
            a("s_cbranch_scc1 %s" % dn)
            a("s_mov_b32 s%d, 0" % sT3)
            a.label(lp)
            self.w2flag_check()
            a("s_cbranch_vccz %s" % dn)
            self.w2flag_loads(tag=None)
            a("s_waitcnt vmcnt(0)")
            a("s_add_u32 s%d, s%d, 1" % (sT3, sT3))
            a("s_cmp_lt_u32 s%d, 100000" % sT3)
            a("s_cbranch_scc1 %s" % lp)
            if "pf4" in self.exp:
                lok = a.newlabel("L_w2ok")
                a.lines.pop()
                a("s_cbranch_scc1 %s" % lp)
            a.label(dn)
            if "pf4" in self.exp:
                skp = a.newlabel("L_pf4")
                a("s_cmp_lg_u32 s%d, 0" % sRW)
                a("s_cbranch_scc1 %s" % skp)
                a("s_lshr_b32 s%d, s2, 3" % sT0)
                if "map42" in self.exp:
                    a("s_mul_i32 s%d, s%d, %d" % (sT0, sT0, 172 * 128))
                    a("s_bfe_u32 s%d, s2, 0x10002" % sT1)
                    a("s_mul_i32 s%d, s%d, %d" % (sT1, sT1, 4 * 176128))
                    a("s_add_u32 s%d, s%d, s%d" % (sT0, sT0, sT1))
                    nl = 172
                else:
                    a("s_mul_i32 s%d, s%d, %d" % (sT0, sT0, 344 * 128))
                    nl = 344
                a("s_add_u32 s%d, s%d, 0x%x" % (sT0, sT0, WS_W2S))
                for i in range((nl + 63) // 64):
                    a("v_add_u32 v3, %d, v1" % (64 * i))
                    a("v_min_u32 v3, %d, v3" % (nl - 1))
                    a("v_lshlrev_b32 v3, 7, v3")
                    a("v_add_u32 v3, s%d, v3" % sT0)
                    a("buffer_load_dword v%d, v3, s[%d:%d], 0 offen sc1" % (240 + (i & 3), S_WS, S_WS + 3))
                a.label(skp)
        self.w2_voff()
        a.lg0()
        a("s_barrier")
        self.stamp(2)

    def h_gemm2(self):
        a = self.a
        HF, ACC = 20, 196
        WBUF = [228, 2]
        AB = 244
        PF = 10
        self.jit(4)
        a("s_lshr_b32 s75, s%d, 1" % sRW)
        a("s_and_b32 s76, s%d, 1" % sRW)
        if "poller3" in self.exp:
            lp3 = a.newlabel("L_hp3"); lgo = a.newlabel("L_hgo")
            a("s_cmp_eq_u32 s%d, 3" % sRW)
            a("s_cbranch_scc1 %s" % lp3)
            q0 = list(a.vm.q)
            for m in range(9):
                a("s_add_u32 s%d, s%d, %d" % (sT0, sRW, 3 * m))
                if m == 8: a("s_min_u32 s%d, s%d, 25" % (sT0, sT0))
                a("s_lshr_b32 s%d, s%d, 1" % (sT1, sT0))
                a("s_and_b32 s%d, s%d, 1" % (sT0, sT0))
                a("s_mul_i32 s71, s%d, %d" % (sT0, NB_H))
                a("s_add_u32 s71, s71, s%d" % sT1)
                a("s_lshl_b32 s71, s71, 12")
                a("s_mul_i32 s70, s%d, 22" % sT0)
                a("s_add_u32 s70, s70, s%d" % sT1)
                a("s_lshl_b32 s70, s70, %d" % (12 if self.w2s else 15))
                self.w2_dma(71, L_B, 70, 0, "w2b")
            a("s_branch %s" % lgo)
            a.label(lp3)
            if not self.noflags:
                a("s_lshl_b32 s%d, s%d, 10" % (sT0, sR))
                a("s_add_u32 s%d, s%d, 0x%x" % (sT0, sT0, F_H2))
                self.poll(sT0, 8, 4, 128)
            a("v_mov_b32 v2, %d" % (L_SYNC + 60))
            a("v_mov_b32 v3, 1")
            a("ds_write_b32 v2, v3")
            a.label(lgo)
        else:
            def w2b_slot(m):
                a("s_add_u32 s%d, s%d, %d" % (sT0, sRW, 4 * m))
                if m == 6: a("s_min_u32 s%d, s%d, 25" % (sT0, sT0))
                a("s_lshr_b32 s%d, s%d, 1" % (sT1, sT0))
                a("s_and_b32 s%d, s%d, 1" % (sT0, sT0))
                a("s_mul_i32 s71, s%d, %d" % (sT0, NB_H))
                a("s_add_u32 s71, s71, s%d" % sT1)
                a("s_lshl_b32 s71, s71, 12")
                a("s_mul_i32 s70, s%d, 22" % sT0)
                a("s_add_u32 s70, s70, s%d" % sT1)
                a("s_lshl_b32 s70, s70, %d" % (12 if self.w2s else 15))
                self.w2_dma(71, L_B, 70, 0, "w2b" if m < self.w2p1 else "w2b2")
            self.w2b_slot = w2b_slot
            if "w2early" in self.exp:
                for m in range(4):
                    a("s_add_u32 s%d, s%d, %d" % (sT0, sRW, 4 * m + (4 if m == 0 else 10)))
                    self.w2_slot_dma("w2b")
            else:
                for m in range(self.w2p1):
                    w2b_slot(m)
        a("s_lshl_b32 s%d, s%d, 2" % (sT2, sR))
        a("s_lshl_b32 s4, s76, 1")
        a("s_add_u32 s%d, s%d, s4" % (sT2, sT2))
        a("s_mul_i32 s%d, s%d, 44032" % (sT2, sT2))
        a("s_mul_i32 s4, s75, %d" % (22 * 1024))
        a("s_add_u32 s%d, s%d, s4" % (sT2, sT2))
        a("s_add_u32 s%d, s%d, 0x%x" % (sT2, sT2, WS_H))
        a("v_lshlrev_b32 v18, 4, v1")
        a("v_add_u32 v18, s%d, v18" % sT2)
        a("v_add_u32 v19, 44032, v18")
        a("v_lshrrev_b32 v2, 4, v1")
        a("v_and_b32 v3, 15, v1")
        a("v_lshrrev_b32 v3, 2, v3")
        a("v_lshrrev_b32 v4, 1, v2")
        a("v_lshlrev_b32 v4, 4, v4")
        a("v_and_b32 v5, 1, v2")
        a("v_lshl_add_u32 v4, v5, 2, v4")
        a("v_add_u32 v4, v4, v3")
        a("v_lshlrev_b32 v4, 7, v4")
        a("v_and_b32 v6, 1, v1")
        a("v_lshl_add_u32 v4, v6, 3, v4")
        a("v_lshlrev_b32 v5, 1, v5")
        a("v_lshrrev_b32 v6, 1, v3")
        a("v_add_u32 v5, v5, v6")
        a("v_lshlrev_b32 v5, 1, v5")
        a("v_and_b32 v6, 3, v1")
        a("v_lshrrev_b32 v6, 1, v6")
        a("s_mul_i32 s4, s75, %d" % B_HALF)
        if L_B: a("s_add_u32 s4, s4, %d" % L_B)
        for b in range(4):
            a("v_add_u32 v7, %d, v6" % (2 * b))
            a("v_xor_b32 v7, v7, v5")
            a("v_lshl_add_u32 v7, v7, 4, v4")
            a("v_add_u32 v%d, s4, v7" % (AB + b))
        a("s_mul_i32 s5, s75, %d" % (NA_H * 4096))
        a("s_add_u32 s5, s5, %d" % L_A)
        a("s_sub_u32 s77, s5, s4")
        a("s_sub_u32 s79, s4, s5")
        for i in range(32): a("v_mov_b32 v%d, 0" % (ACC + i))
        if "poller3" in self.exp:
            a("s_mov_b32 s5, %d" % (L_SYNC + 60))
            self.lds_wait(5, 1, 253, 254)
        else:
            self.stamp(5)
            if not self.noflags and "noh2" not in self.exp:
                a("s_lshl_b32 s%d, s%d, 10" % (sT0, sR))
                a("s_add_u32 s%d, s%d, 0x%x" % (sT0, sT0, F_H2))
                self.poll(sT0, 8, 4, 128)
        self.stamp(6)

        def hload(i):
            ops = []
            for t in range(2):
                def f(t=t):
                    r = HF + (i * 2 + t) * 4
                    so = i * 1024
                    if so < 4096:
                        a.vmem("buffer_load_dwordx4 v[%d:%d], v%d, s[%d:%d], 0 offen offset:%d sc1" % (r, r + 3, 18 + t, S_WS, S_WS + 3, so), "h%d" % i)
                    else:
                        if t == 0: a("s_mov_b32 s80, %d" % (so & ~4095))
                        a.vmem("buffer_load_dwordx4 v[%d:%d], v%d, s[%d:%d], s80 offen offset:%d sc1" % (r, r + 3, 18 + t, S_WS, S_WS + 3, so & 4095), "h%d" % i)
                ops.append(f)
            return ops

        def read_ops(i):
            buf = WBUF[i & 1]
            if i < 13: so = i * 4096
            elif i < 19: so = (i - 13) * 4096
            else: so = (i - 19) * 4096
            ops = []
            sw = {13: 77, 19: 79}.get(i)
            if sw:
                for b in range(4): ops.append("v_add_u32 v%d, s%d, v%d" % (AB + b, sw, AB + b))
            for b in range(4):
                for hh in range(2):
                    r0 = buf + 4 * b + 2 * hh
                    ops.append(lambda r0=r0, b=b, hh=hh: a.lds("ds_read_b64_tr_b16 v[%d:%d], v%d offset:%d" % (r0, r0 + 1, AB + b, so + hh * 1024), "w%d_%d" % (i, b)))
            return ops

        def mfma_ops(i):
            buf = WBUF[i & 1]
            ops = []
            for b in range(4):
                for t in range(2):
                    def f(b=b, t=t):
                        if b == 0 and t == 0:
                            a.wait_both("h%d" % i, ["w%d_%d" % (i, bb) for bb in range(4)])
                        acc = ACC + (b * 2 + t) * 4
                        hr = HF + (i * 2 + t) * 4
                        a("v_mfma_f32_16x16x32_bf16 v[%d:%d], v[%d:%d], v[%d:%d], v[%d:%d]" % (acc, acc + 3, buf + 4 * b, buf + 4 * b + 3, hr, hr + 3, acc, acc + 3))
                    ops.append(f)
            return ops

        self.jit(5)
        allh = []
        for i in range(22): allh += hload(i)
        hp = 0
        for f in allh[:self.hinit]: f()
        hp = self.hinit
        for m in range(self.w2p1, 7):
            self.w2b_slot(m)
        a("s_waitcnt vmcnt(%d)" % min(63, self.hinit + 4 * (7 - self.w2p1)))
        self.m_sync(11, va=253, vb=254)
        self.stamp(19)
        for f in read_ops(0): self.run(f)
        last = a.newlabel("L_g2l")
        for i in range(22):
            if i == 6: self.jit(9)
            if i == 12:
                a.lg0()
                a("s_barrier")
            if i == 18:
                a.lg0()
                a("s_barrier")
            if self.w2p1 < 7 and i == 2 * self.w2p1 - 1:
                a.wait_vm("w2b2")
                self.m_sync(10, va=253, vb=254)
            if i == 11 and "xearly" in self.exp:
                self.final_x_load(self.XR, self.OA, 253, 254)
            if i == 4:
                a("v_mov_b32 v253, %d" % (L_SYNC + 56))
                a("v_mov_b32 v254, 1")
                a("s_mov_b64 exec, 1")
                a.lds("ds_add_u32 v253, v254", "sig")
                a("s_mov_b64 exec, -1")
            if i == 21:
                a("s_cmp_eq_u32 s75, 1")
                a("s_cbranch_scc1 %s" % last)
            fill = []
            if i < 21: fill += read_ops(i + 1)
            nl = self.hper if hp < 2 * (i + self.hwin) else 2
            nl = min(nl, len(allh) - hp)
            fill = allh[hp:hp + nl] + fill
            hp += nl
            interleave(a, mfma_ops(i), fill)
        a.label(last)
        a.lg0()
        self.stamp(22)
        a("v_and_b32 v2, 15, v1")
        a("v_lshrrev_b32 v3, 4, v1")
        a("v_mul_u32_u24 v2, 272, v2")
        a("v_lshl_add_u32 v2, v3, 4, v2")
        a("s_mul_i32 s4, s75, %d" % P_STRIDE)
        a("s_mul_i32 s5, s76, %d" % (32 * 272))
        a("s_add_u32 s4, s4, s5")
        a("s_add_u32 s4, s4, %d" % L_P)
        a("v_add_u32 v2, s4, v2")
        for b in range(4):
            for t in range(2):
                acc = ACC + (b * 2 + t) * 4
                a("ds_write_b128 v2, v[%d:%d] offset:%d" % (acc, acc + 3, t * 16 * 272 + b * 64))
        if "xearly" not in self.exp: self.final_x_load(self.XR, self.OA)
        a.lg0()
        a("s_barrier")

    def final(self):
        a = self.a
        P0 = L_P; P1 = L_P + P_STRIDE; YL = L_Y
        XR = self.XR; OA = self.OA
        a("s_and_b32 s%d, s%d, 3" % (sT0, sW))
        a("s_lshr_b32 s%d, s%d, 2" % (sT1, sW))
        a("v_lshrrev_b32 v2, 2, v1")
        a("v_and_b32 v3, 3, v1")
        a("s_lshl_b32 s4, s%d, 4" % sT0)
        a("v_add_u32 v2, s4, v2")
        a("v_mul_u32_u24 v4, 272, v2")
        a("v_lshl_add_u32 v4, v3, 5, v4")
        a("s_lshl_b32 s4, s%d, 7" % sT1)
        a("s_add_u32 s4, s4, %d" % P0)
        a("v_add_u32 v4, s4, v4")
        a("ds_read_b128 v[20:23], v4")
        a("ds_read_b128 v[24:27], v4 offset:16")
        a("ds_read_b128 v[28:31], v4 offset:%d" % (P1 - P0))
        a("ds_read_b128 v[32:35], v4 offset:%d" % (P1 - P0 + 16))
        a("v_lshlrev_b32 v6, 3, v2")
        a("v_add_u32 v6, %d, v6" % L_STATS)
        a("ds_read_b64 v[36:37], v6")
        a("v_lshrrev_b32 v7, 4, v1")
        a("v_lshlrev_b32 v7, 3, v7")
        a("v_and_b32 v8, 15, v1")
        a("v_lshrrev_b32 v8, 2, v8")
        a("v_add_u32 v7, v7, v8")
        a("s_lshl_b32 s4, s%d, 5" % sT1)
        a("v_add_u32 v7, s4, v7")
        a("v_mul_u32_u24 v7, 144, v7")
        a("v_and_b32 v8, 3, v1")
        a("v_lshl_add_u32 v7, v8, 3, v7")
        a("s_lshl_b32 s4, s%d, 5" % sT0)
        a("s_add_u32 s4, s4, %d" % YL)
        a("v_add_u32 v7, s4, v7")
        a("ds_read_b64_tr_b16 v[38:39], v7")
        a("ds_read_b64_tr_b16 v[40:41], v7 offset:%d" % (4 * 144))
        a("v_and_b32 v8, 3, v1")
        a("v_lshlrev_b32 v8, 4, v8")
        a("v_lshrrev_b32 v9, 2, v1")
        a("v_or_b32 v8, v8, v9")
        a("v_lshlrev_b32 v8, 2, v8")
        a("v_mov_b32 v10, 0xbfb8aa3b")
        a("v_mov_b32 v11, 1.0")
        a("s_waitcnt lgkmcnt(0)")
        for i in range(4):
            a("ds_bpermute_b32 v%d, v8, v%d" % (42 + i, 38 + i))
        for i in range(8):
            a("v_add_f32 v%d, v%d, v%d" % (20 + i, 20 + i, 28 + i))
        for i in range(4):
            a("v_cvt_pk_bf16_f32 v%d, v%d, v%d" % (28 + i, 20 + 2 * i, 21 + 2 * i))
        for i in range(4):
            a("v_alignbit_b32 v%d, v%d, 0, 16" % (20 + 2 * i, 28 + i))
            a("v_and_b32 v%d, v%d, v%d" % (21 + 2 * i, vMHI, 28 + i))
        for i in range(8):
            a("v_mul_f32 v%d, v10, v%d" % (48 + i, 20 + i))
        for i in range(8):
            a("v_exp_f32 v%d, v%d" % (48 + i, 48 + i))
        a("s_waitcnt vmcnt(0)")
        a("v_sub_f32 v12, 0, v36")
        for i in range(4):
            a("v_dot2_f32_bf16 v%d, v%d, v%d, v12" % (72 + 2 * i, XR + i, vONELO))
            a("v_dot2_f32_bf16 v%d, v%d, v%d, v12" % (73 + 2 * i, XR + i, vONEHI))
        for i in range(8):
            a("v_add_f32 v%d, v11, v%d" % (48 + i, 48 + i))
        for i in range(4):
            a("v_cvt_pk_bf16_f32 v%d, v%d, v%d" % (80 + i, 72 + 2 * i, 73 + 2 * i))
        for i in range(8):
            a("v_rcp_f32 v%d, v%d" % (48 + i, 48 + i))
        for i in range(4):
            a("v_alignbit_b32 v%d, v%d, 0, 16" % (72 + 2 * i, 80 + i))
            a("v_and_b32 v%d, v%d, v%d" % (73 + 2 * i, vMHI, 80 + i))
        for i in range(8):
            a("v_mul_f32 v%d, v%d, v37" % (72 + i, 72 + i))
        for i in range(8):
            a("v_mul_f32 v%d, v%d, v%d" % (20 + i, 20 + i, 48 + i))
        if "relax_fin" in self.exp:
            a("s_waitcnt lgkmcnt(0)")
            for i in range(4):
                a("v_alignbit_b32 v%d, v%d, 0, 16" % (56 + 2 * i, 42 + i))
                a("v_and_b32 v%d, v%d, v%d" % (57 + 2 * i, vMHI, 42 + i))
                a("v_alignbit_b32 v%d, v%d, 0, 16" % (88 + 2 * i, XR + i))
                a("v_and_b32 v%d, v%d, v%d" % (89 + 2 * i, vMHI, XR + i))
            for i in range(8):
                a("v_mul_f32 v%d, v%d, v%d" % (72 + i, 72 + i, 56 + i))
            for i in range(8):
                a("v_fma_f32 v%d, v%d, v%d, v%d" % (72 + i, 72 + i, 20 + i, 88 + i))
            for i in range(4):
                a("v_cvt_pk_bf16_f32 v%d, v%d, v%d" % (80 + i, 72 + 2 * i, 73 + 2 * i))
        else:
            for i in range(4):
                a("v_cvt_pk_bf16_f32 v%d, v%d, v%d" % (80 + i, 72 + 2 * i, 73 + 2 * i))
            for i in range(4):
                a("v_cvt_pk_bf16_f32 v%d, v%d, v%d" % (28 + i, 20 + 2 * i, 21 + 2 * i))
            a("s_waitcnt lgkmcnt(0)")
            for i in range(4):
                a("v_and_b32 v%d, v%d, v%d" % (56 + 2 * i, vMLO, 42 + i))
                a("v_and_b32 v%d, v%d, v%d" % (57 + 2 * i, vMHI, 42 + i))
                a("v_and_b32 v%d, v%d, v%d" % (64 + 2 * i, vMLO, 28 + i))
                a("v_and_b32 v%d, v%d, v%d" % (65 + 2 * i, vMHI, 28 + i))
            for i in range(4):
                a("v_dot2_f32_bf16 v%d, v%d, v%d, 0" % (72 + 2 * i, 80 + i, 56 + 2 * i))
                a("v_dot2_f32_bf16 v%d, v%d, v%d, 0" % (73 + 2 * i, 80 + i, 57 + 2 * i))
            for i in range(4):
                a("v_alignbit_b32 v%d, v%d, 0, 16" % (88 + 2 * i, XR + i))
                a("v_and_b32 v%d, v%d, v%d" % (89 + 2 * i, vMHI, XR + i))
            for i in range(4):
                a("v_cvt_pk_bf16_f32 v%d, v%d, v%d" % (80 + i, 72 + 2 * i, 73 + 2 * i))
            for i in range(4):
                a("v_dot2_f32_bf16 v%d, v%d, v%d, 0" % (72 + 2 * i, 80 + i, 64 + 2 * i))
                a("v_dot2_f32_bf16 v%d, v%d, v%d, 0" % (73 + 2 * i, 80 + i, 65 + 2 * i))
            for i in range(4):
                a("v_cvt_pk_bf16_f32 v%d, v%d, v%d" % (80 + i, 72 + 2 * i, 73 + 2 * i))
            for i in range(4):
                a("v_dot2_f32_bf16 v%d, v%d, v%d, v%d" % (72 + 2 * i, 80 + i, vONELO, 88 + 2 * i))
                a("v_dot2_f32_bf16 v%d, v%d, v%d, v%d" % (73 + 2 * i, 80 + i, vONEHI, 89 + 2 * i))
            for i in range(4):
                a("v_cvt_pk_bf16_f32 v%d, v%d, v%d" % (80 + i, 72 + 2 * i, 73 + 2 * i))
        fl = " sc1" if "outsc1" in self.exp else (" nt" if "outnt" in self.exp else (" sc0 sc1" if "outsc01" in self.exp else ""))
        a("buffer_store_dwordx4 v[80:83], v%d, s[%d:%d], 0 offen%s" % (OA, S_OUT, S_OUT + 3, fl))

    def build(self):
        a = self.a
        self.p0()
        self.m_front()
        self.stamp(1)
        self.m_prep()
        self.stamp(10)
        self.m_gemm1()
        self.stamp(4)
        self.m_conv()
        self.m_tail()
        a("s_branch L_final")
        a.label("L_H")
        self.h_front()
        self.stamp(1)
        self.h_stats()
        self.stamp(11)
        self.h_gemm1_side()
        self.h_gemm2()
        a.label("L_final")
        a.lg_clear()
        self.stamp(8)
        self.final()
        self.stamp(9)
        self.dump_stamps()
        if "noendwait" not in self.exp: a("s_waitcnt vmcnt(0)")
        a.label("L_end")
        a("s_endpgm")
        if "yearly" in self.exp and not self.noflags:
            self.y_slow()
        a.label("L_codeend")
        a("s_endpgm")
        lines, n = hazard.fix(a.lines)
        self.nnops = n
        hdr = """; Fused H3-style block: out = x + (LN(x) * (longconv(kv) + kv*D)) * silu(relu(LN(x) W1) W2),  kv = shiftconv(k) * v
; Kernarg (8-byte pointers): 0 x(A_q) 8 k 16 v 24 shift_k 32 ssm_k 40 ssm_D 48 B_x(unused) 56 w1 64 w2 72 out 80 debug 88 ws
; One persistent launch, 256 workgroups (one per CU, all co-resident: 160 KiB LDS each), 8 waves:
;   waves 0-3 ("M"): kv prep, GEMM1 MFMAs, long conv (Toeplitz MFMA), helper DMA ; waves 4-7 ("H"): LayerNorm, T/U staging, GEMM2.
; Cross-workgroup hand-offs (kv^T, h, y^T) go through d_ws with write-through stores + per-wave flags tagged with a
; per-launch nonce that workgroup 0 publishes in d_debug[0]; every spin is bounded.
; @launch grid=(256,1,1) block=(512,1,1) lds=%d
.amdgcn_target "amdgcn-amd-amdhsa--gfx950"
.text
.globl %s
.p2align 8
.type %s,@function
%s:
""" % (LDS_SIZE, KNAME, KNAME, KNAME)
        ftr = """.section .rodata,"a"
.p2align 6
.amdhsa_kernel %s
  .amdhsa_next_free_vgpr 256
  .amdhsa_next_free_sgpr 102
  .amdhsa_accum_offset 256
  .amdhsa_group_segment_fixed_size 0
  .amdhsa_kernarg_size 96
  .amdhsa_user_sgpr_count 2
  .amdhsa_user_sgpr_kernarg_segment_ptr 1
  .amdhsa_system_sgpr_workgroup_id_x 1
.end_amdhsa_kernel
""" % KNAME
        return hdr + "\n".join(lines) + "\n" + ftr

if __name__ == "__main__":
    import argparse
    ap = argparse.ArgumentParser()
    ap.add_argument("-o", default="k.s")
    ap.add_argument("--stamps", action="store_true")
    ap.add_argument("--noflags", action="store_true")
    ap.add_argument("--exp", default="")
    args = ap.parse_args()
    g = Gen(stamps=args.stamps, noflags=args.noflags, exp=args.exp)
    txt = g.build()
    open(args.o, "w").write(txt)
    print("wrote", args.o, len(txt.splitlines()), "lines; hazard nops:", g.nnops)
```

```python
import sys
from emit import *
import hazard

KNAME = "recurrent_scan__ssm_conv_h3__dense_activation_relu__prompt_kernel"

WS_KVT = 0
WS_YT = 2 << 20
WS_H = 4 << 20
WS_FLAG = 10 << 20
F_H1 = WS_FLAG
F_H2 = WS_FLAG + 32768
F_H3 = WS_FLAG + 65536
F_H4 = WS_FLAG + 98304
WS_STAMP = WS_FLAG + (256 << 10)
WS_W2S = 12 << 20
WS_SIZE = 16 << 20

L_XN = 0
NXN = 4
L_W1 = 32768
W1_SLOT = 24576
NW1 = 5
L_PREP = L_W1 + 4 * W1_SLOT
L_A = L_W1 + 3 * W1_SLOT
NA_H = 6
L_T = L_A + 8
T_CH = 16640
T_CP = 4160
L_U = L_A + 33408
U_CH = 4608
L_B = 0
NB_H = 13
B_HALF = NB_H * 4096
L_Y = 16384
L_P = L_B + 7 * 4096
P_STRIDE = B_HALF
L_STATS = 161792
L_SYNC = 162304
LDS_SIZE = 163840
assert L_U % 16 == 0 and L_U + 2 * U_CH <= L_W1 + 5 * W1_SLOT and L_T + 2 * T_CH <= L_U
assert L_A + 2 * NA_H * 4096 <= L_STATS and 2 * B_HALF <= L_A and L_W1 + NW1 * W1_SLOT <= L_STATS

S_X, S_K, S_V, S_W1, S_W2, S_OUT, S_SSM, S_WS, S_SH, S_DBG = 8, 12, 16, 20, 24, 28, 32, 36, 40, 44
sR, sC, sW, sNONCE = 48, 49, 50, 51
sF0, sBP, sNB = 52, 53, 54
sT0, sT1, sT2, sT3 = 55, 56, 57, 58
sRW = 59
sEX = 60
sROT = 62
sDP = 64
sDD = 66
sM0B = 67
sP0, sP1 = 68, 69
sUOK = 72
sID = 81
sD = 85
sINV1, sINV2 = 73, 74
vMLO, vMHI, vONELO, vONEHI, vONES = 248, 249, 250, 251, 252

def merge(*lists):
    lists = [l for l in lists if l]
    tot = sum(len(l) for l in lists)
    out = []; idx = [0] * len(lists)
    for s in range(tot):
        best = min((i for i in range(len(lists)) if idx[i] < len(lists[i])), key=lambda i: (idx[i] + 0.5) / len(lists[i]))
        out.append(lists[best][idx[best]]); idx[best] += 1
    return out

class Gen:
    def __init__(self, stamps=False, noflags=False, exp=""):
        self.exp = set(exp.split(",")) if exp else set()
        self.a = Asm()
        self.stamps = stamps
        self.noflags = noflags
        self.relax_ln = "relax_ln" in self.exp
        self.stampset = None
        self.h2n = 75
        self.lnk = 8
        for e in self.exp:
            if e.startswith('lnk='): self.lnk = int(e[4:])
        self.pfw_r0 = 192
        self.pfd = 0
        for e in self.exp:
            if e.startswith('pfd='): self.pfd = int(e[4:])
        for e in self.exp:
            if e.startswith('r0='): self.pfw_r0 = int(e[3:])
        self.XR, self.OA = (84, 96) if 'xearly' in self.exp else (240, 244)
        self.h1j = 0
        self.w2p1 = 7
        for e in self.exp:
            if e.startswith('p1='): self.w2p1 = int(e[3:])
        for e in self.exp:
            if e.startswith('h1j='): self.h1j = int(e[4:])
        self.w2j = 0
        self.w2s = 'w2s' in self.exp
        self.KS = 4096 if self.w2s else 32768
        self.pf2j = 0
        for e in self.exp:
            if e.startswith('pj='): self.pf2j = int(e[3:])
            if e.startswith('h2n='): self.h2n = int(e[4:])
        self.hwin = 22; self.hper = 6; self.hinit = 12
        for e in self.exp:
            if e.startswith('hw='): self.hwin, self.hper, self.hinit = [int(x) for x in e[3:].split('+')]
        for e in self.exp:
            if e.startswith("st="):
                self.stampset = set(int(x) for x in e[3:].split("+"))

    def stamp(self, idx):
        if not self.stamps: return
        if self.stampset is not None and idx not in self.stampset: return
        a = self.a
        a("s_memrealtime s[4:5]")
        if "clk" in self.exp and idx in (14, 2, 4, 16):
            a("s_memtime s[6:7]")
        a.lg0()
        a("v_writelane_b32 v255, s4, %d" % idx)
        if "clk" in self.exp and idx in (14, 2, 4, 16):
            a("v_writelane_b32 v255, s6, %d" % {14: 29, 2: 30, 4: 31, 16: 15}[idx])

    def dump_stamps(self):
        if not self.stamps: return
        a = self.a
        if "entry" in self.exp:
            a("v_writelane_b32 v255, s90, 31")
        if "dbgst" in self.exp:
            sk = a.newlabel("L_ds")
            a("s_or_b32 s4, s2, s%d" % sW)
            a("s_cmp_lg_u32 s4, 0")
            a("s_cbranch_scc1 %s" % sk)
            a("v_readlane_b32 s4, v255, 0")
            a("s_nop 3")
            a("v_subrev_u32 v3, s4, v255")
            order = [12, 10, 14, 2, 4, 16, 17, 18, 7, 8, 9]
            for k, i in enumerate(order):
                a("v_readlane_b32 s5, v3, %d" % i)
                a("s_nop 3")
                a("v_mov_b32 v4, s5")
                a("v_mov_b32 v5, %d" % (4 * (k + 1)))
                a("s_mov_b64 exec, 1")
                a("buffer_store_dword v4, v5, s[%d:%d], 0 offen" % (S_DBG, S_DBG + 3))
                a("s_mov_b64 exec, -1")
            a.label(sk)
        a("s_lshl_b32 s%d, s2, 3" % sT0)
        a("s_add_u32 s%d, s%d, s%d" % (sT0, sT0, sW))
        a("s_lshl_b32 s%d, s%d, 7" % (sT0, sT0))
        a("s_add_u32 s%d, s%d, 0x%x" % (sT0, sT0, WS_STAMP))
        a("v_lshlrev_b32 v2, 2, v1")
        a("v_add_u32 v2, s%d, v2" % sT0)
        a("s_mov_b32 exec_lo, -1")
        a("s_mov_b32 exec_hi, 0")
        a("buffer_store_dword v255, v2, s[%d:%d], 0 offen" % (S_WS, S_WS + 3))
        a("s_mov_b64 exec, -1")

    def jit(self, point):
        for e in self.exp:
            if e.startswith("jit="):
                P, N, M = [int(x) for x in e[4:].split("+")]
                if P != point: continue
                a = self.a
                sk = a.newlabel("L_jit")
                if M:
                    a("s_xor_b32 s92, s2, s%d" % sW)
                    a("s_and_b32 s92, s92, %d" % M)
                    a("s_cmp_eq_u32 s92, 0")
                    a("s_cbranch_scc1 %s" % sk)
                for _ in range(N // 100): a("s_sleep 100")
                a("s_sleep %d" % (N % 100))
                a.label(sk)

    def run(self, x):
        if callable(x): x()
        else: self.a(x)

    def spread(self, seq, extra):
        a = self.a
        if not extra:
            for x in seq: self.run(x)
            return
        step = max(1, len(seq) // (len(extra) + 1))
        k = 0
        for i, ins in enumerate(seq):
            self.run(ins)
            if (i + 1) % step == 0 and k < len(extra):
                self.run(extra[k]); k += 1
        while k < len(extra):
            self.run(extra[k]); k += 1

    def map_rc(self):
        a = self.a
        if "map42" in self.exp:
            a("s_and_b32 s%d, s2, 3" % sR)
            a("s_lshl_b32 s%d, s%d, 3" % (sR, sR))
            a("s_bfe_u32 s3, s2, 0x30003")
            a("s_add_u32 s%d, s%d, s3" % (sR, sR))
            a("s_bfe_u32 s%d, s2, 0x10002" % sC)
            a("s_lshl_b32 s%d, s%d, 2" % (sC, sC))
            a("s_lshr_b32 s3, s2, 6")
            a("s_add_u32 s%d, s%d, s3" % (sC, sC))
        else:
            a("s_and_b32 s%d, s2, 7" % sR)
            a("s_lshr_b32 s3, s2, 6")
            a("s_lshl_b32 s3, s3, 3")
            a("s_add_u32 s%d, s%d, s3" % (sR, sR))
            a("s_bfe_u32 s%d, s2, 0x30003" % sC)

    def rot_calc(self):
        a = self.a
        if "norot" in self.exp: return
        if "map42" in self.exp:
            a("s_lshl_b32 s%d, s%d, 1" % (sT0, sC))
            a("s_add_u32 s%d, s%d, s%d" % (sT0, sT0, sR))
            a("s_and_b32 s%d, s%d, 7" % (sROT, sT0))
        else:
            a("s_lshr_b32 s%d, s%d, 3" % (sT0, sR))
            a("s_lshl_b32 s%d, s%d, 1" % (sT0, sT0))
            a("s_add_u32 s%d, s%d, s%d" % (sT0, sT0, sC))
            a("s_add_u32 s%d, s%d, s%d" % (sT0, sT0, sR))
            a("s_and_b32 s%d, s%d, 7" % (sROT, sT0))
        if "norot" in self.exp: a("s_mov_b32 s%d, 0" % sROT)

    def p0(self):
        a = self.a
        if self.stamps and "entry" in self.exp:
            a("s_memrealtime s[90:91]")
        a("s_load_dwordx8 s[64:71], s[0:1], 0")
        a("s_cmp_ge_u32 s2, 256")
        a("s_cbranch_scc1 L_end")
        if self.stamps: a("v_mov_b32 v255, 0")
        a("v_lshrrev_b32 v2, 6, v0")
        a("v_and_b32 v1, 63, v0")
        if "codepf0" in self.exp:
            a("s_getpc_b64 s[82:83]")
            a.label("L_pc")
            a("s_sub_u32 s82, s82, L_pc-%s" % KNAME)
            a("s_subb_u32 s83, s83, 0")
            a("v_and_b32 v4, 255, v0")
            a("v_lshlrev_b32 v4, 7, v4")
            a("v_min_u32 v4, L_codeend-%s, v4" % KNAME)
            a("v_mov_b32 v5, s83")
            a("v_add_co_u32 v4, vcc, s82, v4")
            a("v_addc_co_u32 v5, vcc, 0, v5, vcc")
            a.vmem("global_load_dword v244, v[4:5], off", "cpf")
        self.map_rc()
        a("v_readfirstlane_b32 s%d, v2" % sW)
        a("s_mov_b32 s10, 0x200000")
        a("s_mov_b32 s11, 0x00020000")
        a("s_mov_b32 s14, 0x200000")
        a("s_mov_b32 s15, 0x00020000")
        a("s_mov_b32 s18, 0x200000")
        a("s_mov_b32 s19, 0x00020000")
        a("s_movk_i32 s42, 0x1000")
        a("s_mov_b32 s43, 0x00020000")
        a("s_and_b32 s%d, s%d, 3" % (sRW, sW))
        a("s_cmp_ge_u32 s%d, 4" % sW)
        a("s_cbranch_scc1 L_Hfirst")

    def p0_rest(self):
        a = self.a
        for dst, off in ((S_W1, 56), (S_SSM, 32), (S_WS, 88), (S_DBG, 80), (S_W2, 64), (S_OUT, 72), (sDP, 40)):
            a("s_load_dwordx2 s[%d:%d], s[0:1], %d" % (dst, dst + 1, off))
        for dst, size in ((S_W1, 1409024), (S_SSM, 2097152), (S_WS, WS_SIZE), (S_DBG, 256), (S_W2, 1409024), (S_OUT, 2097152)):
            a("s_mov_b32 s%d, 0x%x" % (dst + 2, size))
            a("s_mov_b32 s%d, 0x00020000" % (dst + 3))
        if "dshift" in self.exp:
            a("s_add_u32 s%d, s%d, 1" % (sD, sC))
            a("s_and_b32 s%d, s%d, 7" % (sD, sD))
        else:
            a("s_mov_b32 s%d, s%d" % (sD, sC))
        a("s_lshl_b32 s%d, s%d, 5" % (sID, sC))
        a("s_add_u32 s%d, s%d, s%d" % (sID, sID, sR))
        a("s_mul_i32 s%d, s%d, 6" % (sBP, sC))
        a("s_sub_i32 s%d, s%d, 3" % (sT0, sC))
        a("s_max_i32 s%d, s%d, 0" % (sT0, sT0))
        a("s_sub_u32 s%d, s%d, s%d" % (sBP, sBP, sT0))
        a("s_lshl_b32 s%d, s%d, 5" % (sF0, sBP))
        a("s_cmp_lt_u32 s%d, 3" % sC)
        a("s_cselect_b32 s%d, 12, 10" % sNB)
        a("v_mov_b32 v%d, 0xffff" % vMLO)
        a("v_mov_b32 v%d, 0xffff0000" % vMHI)
        a("v_mov_b32 v%d, 0x3f80" % vONELO)
        a("v_mov_b32 v%d, 0x3f800000" % vONEHI)
        a("v_mov_b32 v%d, 0x3f803f80" % vONES)
        a("s_mov_b32 s%d, 0x05040100" % sP0)
        a("s_mov_b32 s%d, 0x07060302" % sP1)
        a("v_and_b32 v3, 15, v0")
        a("v_lshlrev_b32 v3, 2, v3")
        a("v_add_u32 v3, %d, v3" % L_SYNC)
        a("v_mov_b32 v4, 0")
        a("ds_write_b32 v3, v4")

    def w1_dma_ops(self, j):
        a = self.a
        slot = j % NW1
        ops = []
        def head():
            if "norot" in self.exp:
                a("s_mov_b32 s%d, %d" % (sT1, j * 64 * 2752))
            else:
                a("s_add_u32 s%d, s%d, %d" % (sT1, sROT, j))
                a("s_and_b32 s%d, s%d, 7" % (sT1, sT1))
                a("s_mul_i32 s%d, s%d, %d" % (sT1, sT1, 64 * 2752))
            a("s_add_u32 m0, s%d, %d" % (sM0B, slot * W1_SLOT))
            a.vmem("buffer_load_dwordx4 v12, s[%d:%d], s%d offen lds" % (S_W1, S_W1 + 3, sT1), "w1c%d" % j)
        ops.append(head)
        for i in range(1, 6):
            def nxt(i=i):
                a("s_add_u32 m0, s%d, %d" % (sM0B, slot * W1_SLOT + 1024 * i))
                a.vmem("buffer_load_dwordx4 v%d, s[%d:%d], s%d offen lds" % (12 + i, S_W1, S_W1 + 3, sT1), "w1c%d" % j)
            ops.append(nxt)
        return ops

    def w1_voffs(self):
        a = self.a
        V = 12
        a("s_mul_i32 s%d, s%d, %d" % (sT0, sRW, 16 * 2752))
        a("s_lshl_b32 s%d, s%d, 1" % (sT1, sF0))
        a("s_add_u32 s%d, s%d, s%d" % (sT0, sT0, sT1))
        a("s_lshl_b32 s%d, s%d, 1" % (sT1, sNB))
        a("v_mov_b32 v7, 0x40000000")
        for i in range(6):
            a("v_add_u32 v2, %d, v1" % (64 * i))
            a("v_mul_u32_u24 v3, 2731, v2")
            a("v_lshrrev_b32 v3, 16, v3")
            a("v_mul_u32_u24 v4, 24, v3")
            a("v_sub_u32 v4, v2, v4")
            a("v_and_b32 v5, 2, v3")
            a("v_lshrrev_b32 v6, 1, v3")
            a("v_and_b32 v6, 4, v6")
            a("v_or_b32 v5, v5, v6")
            a("v_xor_b32 v4, v4, v5")
            a("v_mul_u32_u24 v5, 2752, v3")
            a("v_lshl_add_u32 v5, v4, 4, v5")
            a("v_add_u32 v5, s%d, v5" % sT0)
            a("v_cmp_gt_u32 vcc, s%d, v4" % sT1)
            a("v_cndmask_b32 v%d, v7, v5, vcc" % (V + i))
        a("s_mul_i32 s%d, s%d, %d" % (sM0B, sRW, 16 * 384))
        a("s_add_u32 s%d, s%d, %d" % (sM0B, sM0B, L_W1))

    def line_prefetch(self, which, vd):
        a = self.a
        a("s_lshr_b32 s%d, s2, 3" % sT0)
        a("v_and_b32 v2, 255, v0")
        if "map42" not in self.exp:
            srd = S_W1 if which == "w1" else S_W2
            a("s_mul_i32 s%d, s%d, %d" % (sT0, sT0, 344 * 128))
            a("v_lshlrev_b32 v3, 7, v2")
            a("v_add_u32 v3, s%d, v3" % sT0)
            a.vmem("buffer_load_dword v%d, v3, s[%d:%d], 0 offen" % (vd, srd, srd + 3), "pf")
            a("v_cmp_gt_u32 vcc, %d, v2" % (344 - 256))
            a("v_add_u32 v3, 32768, v3")
            a("v_mov_b32 v4, 0x40000000")
            a("v_cndmask_b32 v3, v4, v3, vcc")
            a.vmem("buffer_load_dword v%d, v3, s[%d:%d], 0 offen" % (vd + 1, srd, srd + 3), "pf")
        elif which == "w2":
            a("s_mul_i32 s%d, s%d, 43" % (sT0, sT0))
            a("s_bfe_u32 s%d, s2, 0x10002" % sT1)
            a("s_lshl_b32 s%d, s%d, 9" % (sT1, sT1))
            a("s_lshl_b32 s%d, s%d, 10" % (sT0, sT0))
            a("s_add_u32 s%d, s%d, s%d" % (sT0, sT0, sT1))
            a("v_lshrrev_b32 v3, 2, v2")
            a("v_lshlrev_b32 v3, 10, v3")
            a("v_and_b32 v4, 3, v2")
            a("v_lshl_add_u32 v3, v4, 7, v3")
            a("v_add_u32 v3, s%d, v3" % sT0)
            a("v_cmp_gt_u32 vcc, 172, v2")
            a("v_mov_b32 v4, 0x40000000")
            a("v_cndmask_b32 v3, v4, v3, vcc")
            a.vmem("buffer_load_dword v%d, v3, s[%d:%d], 0 offen" % (vd, S_W2, S_W2 + 3), "pf")
        else:
            a("s_lshl_b32 s%d, s%d, 4" % (sT0, sT0))
            a("s_mul_i32 s%d, s%d, 2752" % (sT0, sT0))
            a("s_bfe_u32 s%d, s2, 0x10002" % sT1)
            a("s_mul_i32 s%d, s%d, 1472" % (sT1, sT1))
            a("s_add_u32 s%d, s%d, s%d" % (sT0, sT0, sT1))
            a("v_mul_u32_u24 v3, 5462, v2")
            a("v_lshrrev_b32 v3, 16, v3")
            a("v_mul_u32_u24 v4, 12, v3")
            a("v_sub_u32 v4, v2, v4")
            a("v_mul_u32_u24 v3, 2752, v3")
            a("v_lshl_add_u32 v3, v4, 7, v3")
            a("v_add_u32 v3, s%d, v3" % sT0)
            a("v_cmp_gt_u32 vcc, 192, v2")
            a("v_mov_b32 v4, 0x40000000")
            a("v_cndmask_b32 v3, v4, v3, vcc")
            a.vmem("buffer_load_dword v%d, v3, s[%d:%d], 0 offen" % (vd, S_W1, S_W1 + 3), "pf")

    def w1_tail_prefetch(self, vd):
        a = self.a
        a("s_lshr_b32 s%d, s2, 3" % sT0)
        r0 = self.pfw_r0; per = (512 - r0) // 32
        a("s_mul_i32 s%d, s%d, %d" % (sT0, sT0, per))
        a("s_add_u32 s%d, s%d, %d" % (sT0, sT0, r0))
        a("s_mul_i32 s%d, s%d, 2752" % (sT0, sT0))
        a("s_bfe_u32 s%d, s2, 0x10002" % sT1)
        a("s_mul_i32 s%d, s%d, 1472" % (sT1, sT1))
        a("s_add_u32 s%d, s%d, s%d" % (sT0, sT0, sT1))
        a("v_and_b32 v2, 255, v0")
        a("v_mul_u32_u24 v3, 5462, v2")
        a("v_lshrrev_b32 v3, 16, v3")
        a("v_mul_u32_u24 v4, 12, v3")
        a("v_sub_u32 v4, v2, v4")
        a("v_mul_u32_u24 v3, 2752, v3")
        a("v_lshl_add_u32 v3, v4, 7, v3")
        a("v_add_u32 v3, s%d, v3" % sT0)
        a("v_cmp_gt_u32 vcc, %d, v2" % (12 * per))
        a("v_mov_b32 v4, 0x40000000")
        a("v_cndmask_b32 v3, v4, v3, vcc")
        a.vmem("buffer_load_dword v%d, v3, s[%d:%d], 0 offen" % (vd, S_W1, S_W1 + 3), "pf")

    def m_front(self):
        a = self.a
        a("v_lshrrev_b32 v3, 5, v0")
        a("v_and_b32 v4, 31, v0")
        a("s_lshl_b32 s%d, s%d, 16" % (sT0, sR))
        a("s_lshl_b32 s%d, s%d, 7" % (sT1, sC))
        a("s_add_u32 s%d, s%d, s%d" % (sT0, sT0, sT1))
        a("v_lshlrev_b32 v2, 13, v3")
        a("v_lshl_add_u32 v2, v4, 2, v2")
        a("v_add_u32 v2, s%d, v2" % sT0)
        a("v_add_u32 v5, 0xfffff400, v2")
        a("v_add_u32 v6, 0xfffff800, v2")
        a("v_add_u32 v7, 0xfffffc00, v2")
        a("v_add_u32 v8, 4096, v2")
        a("s_lshl_b32 s%d, s%d, 9" % (sT2, sC))
        a("v_lshlrev_b32 v9, 4, v4")
        a("v_add_u32 v9, s%d, v9" % sT2)
        a.lg0()
        a("s_mov_b64 s[12:13], s[66:67]")
        a("s_mov_b64 s[16:17], s[68:69]")
        a("s_mov_b64 s[40:41], s[70:71]")
        a("s_mov_b64 s[8:9], s[64:65]")
        if self.stamps:
            a("s_memrealtime s[4:5]"); a.lg0(); a("v_writelane_b32 v255, s4, 0")
        K, V, SH = 20, 32, 40
        if "noprep" in self.exp:
            a.vm.issue("prep")
        else:
          for t, r in enumerate((5, 6, 7)):
            a.vmem("buffer_load_dword v%d, v%d, s[%d:%d], 0 offen" % (K + t, r, S_K, S_K + 3), "prep")
          for t in range(8):
            a.vmem("buffer_load_dword v%d, v%d, s[%d:%d], 0 offen offset:%d" % (K + 3 + t, 2 if t < 4 else 8, S_K, S_K + 3, 1024 * (t & 3)), "prep")
          a.vmem("buffer_load_dwordx4 v[40:43], v9, s[%d:%d], 0 offen" % (S_SH, S_SH + 3), "prep")
          for t in range(8):
            a.vmem("buffer_load_dword v%d, v%d, s[%d:%d], 0 offen offset:%d" % (V + t, 2 if t < 4 else 8, S_V, S_V + 3, 1024 * (t & 3)), "prep")
        a("s_branch L_Mrest")
        self.h_first()
        a.label("L_Mrest")
        self.jit(6)
        a.vm = self.vm_m_first
        self.rot_calc()
        self.p0_rest()
        a("s_waitcnt lgkmcnt(0)")
        a("s_barrier")
        if "pfM" in self.exp:
            self.line_prefetch("w1", 240)
        if not self.noflags:
            a("s_or_b32 s%d, s2, s%d" % (sT1, sW))
            a("s_cmp_lg_u32 s%d, 0" % sT1)
            a("s_cbranch_scc1 L_nononce")
            a("s_memrealtime s[4:5]")
            a("s_waitcnt lgkmcnt(0)")
            a("s_or_b32 s4, s4, 1")
            a("v_mov_b32 v2, s4")
            a("v_mov_b32 v3, 0")
            a("s_mov_b64 exec, 1")
            a("buffer_store_dword v2, v3, s[%d:%d], 0 offen sc1" % (S_DBG, S_DBG + 3))
            a("s_mov_b64 exec, -1")
            a.label("L_nononce")
        if "flagpf" in self.exp:
            a("s_lshl_b32 s%d, s%d, 7" % (sT0, sID))
            a("s_lshl_b32 s%d, s%d, 3" % (sT1, sR))
            a("s_add_u32 s%d, s%d, s%d" % (sT1, sT1, sC))
            a("s_lshl_b32 s%d, s%d, 7" % (sT1, sT1))
            a("s_add_u32 s%d, s%d, 0x%x" % (sT2, sT0, F_H1))
            a("v_mov_b32 v2, s%d" % sT2)
            a("s_add_u32 s%d, s%d, 0x%x" % (sT2, sT1, F_H2))
            a("v_writelane_b32 v2, s%d, 1" % sT2)
            a("s_add_u32 s%d, s%d, 0x%x" % (sT2, sT0, F_H3))
            a("v_writelane_b32 v2, s%d, 2" % sT2)
            a("s_mov_b64 exec, 7")
            a.vmem("buffer_load_dword v243, v2, s[%d:%d], 0 offen" % (S_WS, S_WS + 3), "pf")
            a("s_mov_b64 exec, -1")
        self.w1_voffs()
        self.m_gemm1_setup()
        a("s_lshl_b32 s%d, s%d, 7" % (sT0, sC))
        a("s_lshl_b32 s%d, s%d, 2" % (sT1, sR))
        a("s_add_u32 s%d, s%d, s%d" % (sT0, sT0, sT1))
        a("s_load_dword s%d, s[%d:%d], s%d" % (sDD, sDP, sDP + 1, sT0))

    def m_gemm1_setup(self):
        a = self.a
        AX = 8; AW = [9, 10, 11]
        a("v_and_b32 v2, 15, v1")
        a("v_lshrrev_b32 v3, 4, v1")
        a("v_lshlrev_b32 v4, 1, v3")
        a("v_xor_b32 v4, v2, v4")
        a("v_lshlrev_b32 v4, 4, v4")
        a("v_lshl_add_u32 v%d, v3, 8, v4" % AX)
        a("v_lshrrev_b32 v5, 2, v2")
        a("v_lshl_add_u32 v4, v3, 3, v5")
        a("v_mul_u32_u24 v4, 384, v4")
        a("v_and_b32 v6, 3, v1")
        a("v_lshl_add_u32 v4, v6, 3, v4")
        a("v_lshrrev_b32 v5, 1, v5")
        a("v_and_b32 v6, 1, v3")
        a("v_lshl_add_u32 v5, v6, 1, v5")
        a("s_mul_i32 s%d, s%d, 3" % (sT0, sRW))
        for b in range(3):
            a("s_add_u32 s%d, s%d, %d" % (sT1, sT0, b))
            a("v_xor_b32 v6, s%d, v5" % sT1)
            a("v_lshl_add_u32 v6, v6, 5, v4")
            a("v_add_u32 v%d, %d, v6" % (AW[b], L_W1))
        a("v_lshlrev_b32 v5, 4, v2")
        a("v_lshrrev_b32 v4, 1, v3")
        a("v_lshl_add_u32 v5, v4, 8, v5")
        a("v_and_b32 v4, 1, v3")
        if "st16" in self.exp:
            a("v_mul_u32_u24 v4, 44032, v4")
            a("v_add_u32 v5, v5, v4")
        else:
            a("v_lshl_add_u32 v5, v4, 3, v5")
        a("s_lshr_b32 s%d, s%d, 4" % (sBP, sF0))
        a("s_mul_i32 s%d, s%d, %d" % (sT0, sR, 4 * 44032))
        a("s_mul_i32 s%d, s%d, 3" % (sT1, sRW))
        a("s_add_u32 s%d, s%d, s%d" % (sT2, sT1, sBP))
        a("s_lshl_b32 s%d, s%d, 9" % (sT2, sT2))
        a("s_add_u32 s%d, s%d, s%d" % (sT0, sT0, sT2))
        a("s_add_u32 s%d, s%d, 0x%x" % (sT0, sT0, WS_H))
        a("v_add_u32 v168, s%d, v5" % sT0)
        for tb in range(1, 4):
            a("v_add_u32 v%d, %d, v168" % (168 + tb, 44032 * tb))
        for b, sr_ in ((1, sINV1), (2, sINV2)):
            a("s_add_u32 s%d, s%d, %d" % (sT2, sT1, b))
            a("s_cmp_lt_u32 s%d, s%d" % (sT2, sNB))
            a("s_cselect_b32 s%d, 0, 0x40000000" % sr_)

    def m_prep(self):
        a = self.a
        K, V, SH = 20, 32, 40
        WL, WH = 44, 48
        PL, PH = 52, 56
        PP, AC = 60, 64
        TA, TB = 68, 72
        KV = 76
        OUT = 92
        dma = []
        if "V2" in self.exp:
            for f in self.w1_dma_ops(0) + self.w1_dma_ops(1): f()
        if "V4" in self.exp:
            for f in self.w1_dma_ops(0): f()
            dma = self.w1_dma_ops(1) + self.w1_dma_ops(2)
        if "V5" in self.exp:
            for f in self.w1_dma_ops(0) + self.w1_dma_ops(1): f()
            dma = self.w1_dma_ops(2)
        if "pfWa" in self.exp: self.w1_tail_prefetch(241)
        if "noprep" in self.exp:
            a.vm.issue("kvt")
            if not self.noflags:
                a("v_mov_b32 v7, 0")
                a.vmem("buffer_load_dword v19, v7, s[%d:%d], 0 offen sc1" % (S_DBG, S_DBG + 3), "nonce")
            for f in self.w1_dma_ops(2): f()
            return
        a.wait_vm("prep")
        self.stamp(12)
        seq = []; e = seq.append
        e("v_and_b32 v%d, v%d, v%d" % (WL + 0, vMLO, SH + 0)); e("v_lshrrev_b32 v%d, 16, v%d" % (WL + 1, SH + 0))
        e("v_and_b32 v%d, v%d, v%d" % (WL + 2, vMLO, SH + 1)); e("v_lshrrev_b32 v%d, 16, v%d" % (WL + 3, SH + 1))
        e("v_lshlrev_b32 v%d, 16, v%d" % (WH + 0, SH + 2)); e("v_and_b32 v%d, v%d, v%d" % (WH + 1, vMHI, SH + 2))
        e("v_lshlrev_b32 v%d, 16, v%d" % (WH + 2, SH + 3)); e("v_and_b32 v%d, v%d, v%d" % (WH + 3, vMHI, SH + 3))
        for hb in range(2):
            r0 = 4 * hb
            if "relax_prep" in self.exp:
                for r in range(4):
                    e("v_dot2_f32_bf16 v%d, v%d, v%d, 0" % (PL + r, K + r0 + r, WL + 3))
                    e("v_dot2_f32_bf16 v%d, v%d, v%d, 0" % (PH + r, K + r0 + r, WH + 3))
                for j in (2, 1, 0):
                    for r in range(4):
                        e("v_dot2_f32_bf16 v%d, v%d, v%d, v%d" % (PL + r, K + 3 + r0 + r - j, WL + j, PL + r))
                        e("v_dot2_f32_bf16 v%d, v%d, v%d, v%d" % (PH + r, K + 3 + r0 + r - j, WH + j, PH + r))
                for r in range(4):
                    e("v_cvt_pk_bf16_f32 v%d, v%d, v%d" % (AC + r, PL + r, PH + r))
            else:
                for j in (3, 2, 1, 0):
                    for r in range(4):
                        e("v_dot2_f32_bf16 v%d, v%d, v%d, 0" % (PL + r, K + 3 + r0 + r - j, WL + j))
                        e("v_dot2_f32_bf16 v%d, v%d, v%d, 0" % (PH + r, K + 3 + r0 + r - j, WH + j))
                    dstp = AC if j == 3 else PP
                    for r in range(4):
                        e("v_cvt_pk_bf16_f32 v%d, v%d, v%d" % (dstp + r, PL + r, PH + r))
                    if j != 3:
                        for r in range(4):
                            e("v_perm_b32 v%d, v%d, v%d, s%d" % (TA + r, PP + r, AC + r, sP0))
                            e("v_perm_b32 v%d, v%d, v%d, s%d" % (TB + r, PP + r, AC + r, sP1))
                        for r in range(4):
                            e("v_dot2_f32_bf16 v%d, v%d, v%d, 0" % (PL + r, TA + r, vONES))
                            e("v_dot2_f32_bf16 v%d, v%d, v%d, 0" % (PH + r, TB + r, vONES))
                        for r in range(4):
                            e("v_cvt_pk_bf16_f32 v%d, v%d, v%d" % (AC + r, PL + r, PH + r))
            for r in range(4):
                e("v_and_b32 v%d, v%d, v%d" % (TA + r, vMLO, V + r0 + r))
                e("v_and_b32 v%d, v%d, v%d" % (TB + r, vMHI, V + r0 + r))
            for r in range(4):
                e("v_dot2_f32_bf16 v%d, v%d, v%d, 0" % (KV + r0 + r, AC + r, TA + r))
                e("v_dot2_f32_bf16 v%d, v%d, v%d, 0" % (KV + 8 + r0 + r, AC + r, TB + r))
        e("v_and_b32 v2, 31, v0"); e("v_mul_u32_u24 v2, 288, v2"); e("v_lshrrev_b32 v3, 5, v0"); e("v_lshlrev_b32 v3, 4, v3")
        e("v_sub_u32 v2, v2, v3"); e("v_add_u32 v2, %d, v2" % (L_PREP + 112))
        for ch in range(2):
            for d in range(4):
                e("v_cvt_pk_bf16_f32 v%d, v%d, v%d" % (OUT + 4 * ch + d, KV + 8 * ch + 7 - 2 * d, KV + 8 * ch + 6 - 2 * d))
        self.spread(seq, dma)
        self.stamp(20)
        a("ds_write_b128 v2, v[%d:%d]" % (OUT, OUT + 3))
        a("ds_write_b128 v2, v[%d:%d] offset:144" % (OUT + 4, OUT + 7))
        a("v_lshrrev_b32 v2, 3, v0")
        a("v_and_b32 v3, 7, v0")
        a("v_mul_u32_u24 v4, 144, v2")
        a("v_lshl_add_u32 v4, v3, 4, v4")
        a("v_add_u32 v4, %d, v4" % L_PREP)
        a("s_lshl_b32 s%d, s%d, 18" % (sT0, sC))
        a("s_lshl_b32 s%d, s%d, 7" % (sT1, sR))
        a("s_sub_u32 s%d, s%d, s%d" % (sT0, sT0, sT1))
        a("s_add_u32 s%d, s%d, %d" % (sT0, sT0, WS_KVT + 3968))
        a("v_lshlrev_b32 v5, 12, v2")
        a("v_lshl_add_u32 v5, v3, 4, v5")
        a("v_add_u32 v5, s%d, v5" % sT0)
        a("v_add_u32 v6, %d, v5" % (32 * 4096))
        if "dmafirst" in self.exp:
            for f in self.w1_dma_ops(0) + self.w1_dma_ops(1) + self.w1_dma_ops(2): f()
            self.stamp(15)
        self.m_sync(13, va=2, vb=3)
        a("ds_read_b128 v[92:95], v4")
        a("ds_read_b128 v[96:99], v4 offset:%d" % (32 * 144))
        a.lg0()
        a.vmem("buffer_store_dwordx4 v[92:95], v5, s[%d:%d], 0 offen sc1" % (S_WS, S_WS + 3), "kvt")
        a.vmem("buffer_store_dwordx4 v[96:99], v6, s[%d:%d], 0 offen sc1" % (S_WS, S_WS + 3), "kvt")
        if not self.noflags:
            a("v_mov_b32 v7, 0")
            a.vmem("buffer_load_dword v19, v7, s[%d:%d], 0 offen sc1" % (S_DBG, S_DBG + 3), "nonce")
        if "pfWb" in self.exp: self.w1_tail_prefetch(241)
        if "dmafirst" not in self.exp:
            self.stamp(15)
            if "V3" in self.exp: lst = self.w1_dma_ops(2) + self.w1_dma_ops(3)
            elif "V2" in self.exp: lst = self.w1_dma_ops(2)
            elif "V4" in self.exp or "V5" in self.exp: lst = []
            else: lst = self.w1_dma_ops(0) + self.w1_dma_ops(1) + self.w1_dma_ops(2)
            for f in lst: f()

    def m_gemm1(self):
        a = self.a
        ACC = 20
        BUF = [68, 96, 124]
        AX = 8; AW = [9, 10, 11]
        UREG = 152
        for i in range(48):
            a("v_mov_b32 v%d, 0" % (ACC + i))

        def read_ops(ks):
            buf = BUF[ks % 3]
            j = ks >> 1; ksl = ks & 1; slot = j % NW1
            pre = []
            if ksl == 0 and j > 0:
                d = W1_SLOT if slot != 0 else -(NW1 - 1) * W1_SLOT
                for b in range(3):
                    pre.append("v_add_u32 v%d, %d, v%d" % (AW[b], d & 0xffffffff, AW[b]))
            so = ksl * 32 * 384
            def rx(t):
                return lambda: a.lds("ds_read_b128 v[%d:%d], v%d offset:%d" % (buf + 4 * t, buf + 4 * t + 3, AX, L_XN + (j % NXN) * 8192 + t * 2048 + ksl * 1024), "x%d_%d" % (ks, t))
            def rw(b, hh):
                r0 = buf + 16 + 4 * b + 2 * hh
                return lambda: a.lds("ds_read_b64_tr_b16 v[%d:%d], v%d offset:%d" % (r0, r0 + 1, AW[b], so + hh * 4 * 384), "w%d_%d" % (ks, b))
            if "mnoreads" in self.exp: return pre
            return pre + [rw(0, 0), rw(0, 1), rx(0), rx(1), rx(2), rx(3), rw(1, 0), rw(1, 1), rw(2, 0), rw(2, 1)]

        def mfma_ops(ks):
            cur = BUF[ks % 3]
            ops = []
            for b in range(3):
                for t in range(4):
                    def f(b=b, t=t):
                        if "finewait" in self.exp:
                            a.need_lds("w%d_%d" % (ks, b), "x%d_%d" % (ks, t))
                        elif b == 0 and t == 0:
                            a.need_lds(*(["w%d_%d" % (ks, bb) for bb in range(3)] + ["x%d_%d" % (ks, tt) for tt in range(4)]))
                        acc = ACC + (b * 4 + t) * 4
                        if "mnomfma" in self.exp: return
                        a("v_mfma_f32_16x16x32_bf16 v[%d:%d], v[%d:%d], v[%d:%d], v[%d:%d]" % (
                            acc, acc + 3, cur + 16 + 4 * b, cur + 19 + 4 * b, cur + 4 * t, cur + 4 * t + 3, acc, acc + 3))
                    ops.append(f)
            return ops

        if not self.noflags and "V1" in self.exp: self.publish_h1()
        if "V3" not in self.exp: a.wait_vm("w1c1")
        a("s_barrier")
        self.stamp(14)
        for f in read_ops(0): self.run(f)
        if self.h1j == 0 and not self.noflags and "V1" not in self.exp:
            q_l = (list(a.lg.q), a.lg_done)
            self.publish_h1()
        for f in read_ops(1)[:5]: self.run(f)
        pend = read_ops(1)[5:]
        for j in range(8):
            if j == 3: self.jit(10)
            if j >= 1 and j <= 6:
                if not ("mnodma" in self.exp and j + 1 >= 3) and "novmw" not in self.exp: a.wait_vm("w1c%d" % (j + 1))
                a("s_barrier")
                if "itst" in self.exp: self.stamp(22 + j)
                if j == self.h1j and not self.noflags and "V1" not in self.exp: self.publish_h1()
            dm = self.w1_dma_ops(j + 4) if (j + 4 <= 7) else []
            if j == 0 and "V3" not in self.exp: dm = self.w1_dma_ops(3) + dm
            if "mnodma" in self.exp:
                for _ in dm: a.vm.issue("dummy")
                dm = []
            ex = []
            for half in range(2):
                ks = 2 * j + half
                fill = list(pend); pend = []
                if ks + 2 <= 15:
                    fill += read_ops(ks + 2)
                hlf = (len(dm) + 1) // 2
                extra = (dm[:hlf] + ex if half == 0 else dm[hlf:])
                interleave(a, mfma_ops(ks), merge(fill, extra))
        a.lg0()
        self.stamp(2)
        HB = 68
        for i in range(12):
            a("v_cvt_pk_bf16_f32 v%d, v%d, v%d" % (HB + 2 * i, ACC + 4 * i, ACC + 4 * i + 1))
            a("v_cvt_pk_bf16_f32 v%d, v%d, v%d" % (HB + 2 * i + 1, ACC + 4 * i + 2, ACC + 4 * i + 3))
        for i in range(24):
            a("v_pk_max_i16 v%d, v%d, 0" % (HB + i, HB + i))
        if "st16" in self.exp:
            for b in range(3):
                for u in range(2):
                    r = HB + 8 * b + 4 * u
                    a("v_permlane16_swap_b32 v%d, v%d" % (r, r + 2))
                    a("v_permlane16_swap_b32 v%d, v%d" % (r + 1, r + 3))
            for b in range(3):
                so = "0" if b == 0 else "s%d" % (sINV1 if b == 1 else sINV2)
                for u in range(2):
                    r = HB + 8 * b + 4 * u
                    a.vmem("buffer_store_dwordx4 v[%d:%d], v%d, s[%d:%d], %s offen offset:%d sc1" % (r, r + 3, 168 + 2 * u, S_WS, S_WS + 3, so, 512 * b), "hst")
        elif "nohst" in self.exp:
            a.vm.issue("hst")
        else:
          for b in range(3):
            so = "0" if b == 0 else "s%d" % (sINV1 if b == 1 else sINV2)
            for t in range(4):
                r = HB + (b * 4 + t) * 2
                a.vmem("buffer_store_dwordx2 v[%d:%d], v%d, s[%d:%d], %s offen offset:%d sc1" % (r, r + 1, 168 + t, S_WS, S_WS + 3, so, 512 * b), "hst")
        if "h2pre" in self.exp and not self.noflags:
            self.publish_h2()
        self.jit(1)
        a("s_barrier")

    def get_nonce(self):
        if self.noflags: return
        a = self.a
        a.wait_vm("nonce")
        lo = a.newlabel("L_nz"); lp = a.newlabel("L_nl")
        a("v_readfirstlane_b32 s%d, v19" % sNONCE)
        a("s_nop 3")
        a("s_cmp_lg_u32 s%d, 0" % sNONCE)
        a("s_cbranch_scc1 %s" % lo)
        a("s_mov_b32 s%d, 0" % sT3)
        a.label(lp)
        a("v_mov_b32 v7, 0")
        a("buffer_load_dword v19, v7, s[%d:%d], 0 offen sc1" % (S_DBG, S_DBG + 3))
        a("s_waitcnt vmcnt(0)")
        a("v_readfirstlane_b32 s%d, v19" % sNONCE)
        a("s_add_u32 s%d, s%d, 1" % (sT3, sT3))
        a("s_cmp_gt_u32 s%d, 100000" % sT3)
        a("s_cbranch_scc1 %s" % lo)
        a("s_cmp_eq_u32 s%d, 0" % sNONCE)
        a("s_cbranch_scc1 %s" % lp)
        a.label(lo)

    def flag_store(self, off_sreg, tag, va=2, vb=3):
        if self.noflags: return
        a = self.a
        a("v_mov_b32 v%d, s%d" % (va, off_sreg))
        a("v_mov_b32 v%d, s%d" % (vb, sNONCE))
        a("s_mov_b64 exec, 1")
        a.vmem("buffer_store_dword v%d, v%d, s[%d:%d], 0 offen sc1" % (vb, va, S_WS, S_WS + 3), tag)
        a("s_mov_b64 exec, -1")

    def publish_h1(self):
        a = self.a
        self.get_nonce()
        if "noprep" in self.exp: return
        a.wait_vm("kvt")
        a("s_lshl_b32 s%d, s%d, 7" % (sT0, sID))
        a("s_lshl_b32 s%d, s%d, 2" % (sT2, sRW))
        a("s_add_u32 s%d, s%d, s%d" % (sT0, sT0, sT2))
        a("s_add_u32 s%d, s%d, 0x%x" % (sT0, sT0, F_H1))
        self.flag_store(sT0, "flag")

    def poll(self, base_sreg, nlanes, width, stride):
        if self.noflags: return
        a = self.a
        lp = a.newlabel("L_poll"); dn = a.newlabel("L_pdone")
        a("v_mul_u32_u24 v2, %d, v1" % stride)
        a("v_add_u32 v2, s%d, v2" % base_sreg)
        a("s_mov_b32 s%d, 0" % sT3)
        if nlanes <= 16: a("s_mov_b64 exec, 0x%x" % ((1 << nlanes) - 1))
        else:
            a("s_mov_b32 exec_lo, -1"); a("s_mov_b32 exec_hi, 0")
        a.label(lp)
        if width == 1:
            a("buffer_load_dword v4, v2, s[%d:%d], 0 offen sc1" % (S_WS, S_WS + 3))
            a("s_waitcnt vmcnt(0)")
            a("v_cmp_ne_u32 vcc, s%d, v4" % sNONCE)
        else:
            a("buffer_load_dwordx4 v[4:7], v2, s[%d:%d], 0 offen sc1" % (S_WS, S_WS + 3))
            a("s_waitcnt vmcnt(0)")
            for i in range(4): a("v_xor_b32 v%d, s%d, v%d" % (4 + i, sNONCE, 4 + i))
            a("v_or3_b32 v4, v4, v5, v6")
            a("v_or_b32 v4, v4, v7")
            a("v_cmp_ne_u32 vcc, 0, v4")
        a("s_add_u32 s%d, s%d, 1" % (sT3, sT3))
        a("s_cmp_gt_u32 s%d, 100000" % sT3)
        a("s_cbranch_scc1 %s" % dn)
        a("s_cbranch_vccnz %s" % lp)
        a.label(dn)
        a("s_mov_b64 exec, -1")

    def lds_wait(self, addr_sreg, val=1, va=16, vb=17):
        a = self.a
        lp = a.newlabel("L_ps"); dn = a.newlabel("L_psd")
        a("v_mov_b32 v%d, s%d" % (va, addr_sreg))
        a("s_mov_b32 s%d, 0" % sT3)
        a.label(lp)
        a("ds_read_b32 v%d, v%d" % (vb, va))
        a("s_waitcnt lgkmcnt(0)")
        a("v_readfirstlane_b32 s4, v%d" % vb)
        a("s_add_u32 s%d, s%d, 1" % (sT3, sT3))
        a("s_cmp_ge_u32 s4, %d" % val)
        a("s_cbranch_scc1 %s" % dn)
        a("s_cmp_lt_u32 s%d, 1000000" % sT3)
        a("s_cbranch_scc1 %s" % lp)
        a.label(dn)
        a.lg_clear()

    def m_sync(self, word, n=4, va=16, vb=17):
        a = self.a
        a("v_mov_b32 v%d, %d" % (va, L_SYNC + 4 * word))
        a("v_mov_b32 v%d, 1" % vb)
        a.lg0()
        a("s_mov_b64 exec, 1")
        a("ds_add_u32 v%d, v%d" % (va, vb))
        a("s_mov_b64 exec, -1")
        a("s_mov_b32 s5, %d" % (L_SYNC + 4 * word))
        self.lds_wait(5, n, va, vb)

    def pair_sync(self, stage, va=16, vb=17):
        a = self.a
        a("s_lshl_b32 s4, s%d, 2" % sRW)
        a("s_add_u32 s4, s4, %d" % (L_SYNC + 16 * stage))
        a("s_xor_b32 s5, s4, 4")
        a("v_mov_b32 v%d, s4" % va)
        a("v_mov_b32 v%d, 1" % vb)
        a.lg0()
        a("ds_write_b32 v%d, v%d" % (va, vb))
        self.lds_wait(5, 1, va, vb)

    def publish_h2(self):
        a = self.a
        a.wait_vm("hst")
        a("s_lshl_b32 s4, s%d, 3" % sR)
        a("s_add_u32 s4, s4, s%d" % sC)
        a("s_lshl_b32 s4, s4, 7")
        a("s_lshl_b32 s5, s%d, 2" % sRW)
        a("s_add_u32 s4, s4, s5")
        a("s_add_u32 s%d, s4, 0x%x" % (sT2, F_H2))
        self.flag_store(sT2, "flag", 4, 5)

    def m_conv(self):
        a = self.a
        BF, ACC, AF, NA = 20, 148, 180, 16
        AU, AT = 2, 3
        a("v_and_b32 v8, 15, v1")
        a("v_lshrrev_b32 v9, 4, v1")
        a("v_lshlrev_b32 v10, 4, v9")
        a("v_lshlrev_b32 v11, 5, v8")
        a("v_sub_u32 v10, v10, v11")
        a("s_lshr_b32 s%d, s%d, 1" % (sT0, sRW))
        a("s_and_b32 s%d, s%d, 1" % (sT1, sRW))
        a("s_mul_i32 s%d, s%d, %d" % (sT2, sT0, U_CH))
        a("s_add_u32 s%d, s%d, %d" % (sT2, sT2, L_U + 2 * 2032 - 64 * 56))
        a("s_lshl_b32 s4, s%d, 6" % sT1)
        a("s_add_u32 s%d, s%d, s4" % (sT2, sT2))
        a("v_add_u32 v%d, s%d, v10" % (AU, sT2))
        a("v_and_b32 v10, 3, v8")
        a("v_mul_u32_u24 v10, %d, v10" % T_CP)
        a("v_lshrrev_b32 v11, 2, v8")
        a("v_lshl_add_u32 v10, v11, 3, v10")
        a("v_lshl_add_u32 v10, v9, 4, v10")
        a("s_mul_i32 s%d, s%d, %d" % (sT2, sT0, T_CH))
        a("s_add_u32 s%d, s%d, s4" % (sT2, sT2))
        a("s_add_u32 s%d, s%d, %d" % (sT2, sT2, L_T))
        a("v_add_u32 v%d, s%d, v10" % (AT, sT2))
        a("v_lshl_add_u32 v10, v9, 3, v8")
        a("s_lshl_b32 s4, s%d, 5" % sT1)
        a("v_add_u32 v10, s4, v10")
        MK = 12
        for d in range(4):
            a("v_sub_u32 v11, %d, v10" % (15 - 2 * d))
            a("v_med3_i32 v11, v11, 0, 2")
            a("v_lshlrev_b32 v11, 4, v11")
            a("v_mov_b32 v%d, -1" % (MK + d))
            a("v_lshlrev_b32 v16, v11, v%d" % (MK + d))
            a("v_cmp_eq_u32 vcc, 32, v11")
            a("v_cndmask_b32_e64 v%d, v16, 0, vcc" % (MK + d))
        for i in range(32):
            a("v_mov_b32 v%d, 0" % (ACC + i))
        def emit_A(ee):
            r = AF + 4 * (ee % NA)
            a.lds("ds_read_b64 v[%d:%d], v%d offset:%d" % (r, r + 1, AT, 128 * ee), ("A", ee))
            a.lds("ds_read_b64 v[%d:%d], v%d offset:%d" % (r + 2, r + 3, AT, 128 * ee + 8), ("A", ee))
        def emit_B(idx):
            r = BF + 4 * idx
            a.lds("ds_read_b128 v[%d:%d], v%d offset:%d" % (r, r + 3, AU, 128 * idx), ("B", idx))
        sched = []
        for ee in range(32):
            for j in range(7, (ee >> 2) - 1, -1):
                sched.append((ee, j, 28 - 4 * j + ee))
        order = []; seen = set(); last_use_A = {}
        for n, (ee, j, idx) in enumerate(sched):
            for it in (("A", ee), ("B", idx)):
                if it not in seen:
                    seen.add(it); order.append(it)
            last_use_A[ee] = n
        ptr = 0; issued = set()
        def can_issue(item, n):
            if item[0] == "A" and item[1] >= NA:
                return last_use_A[item[1] - NA] < n
            return True
        def issue_next(n_now):
            nonlocal ptr
            if ptr < len(order) and can_issue(order[ptr], n_now):
                it = order[ptr]
                (emit_A if it[0] == "A" else emit_B)(it[1])
                issued.add(it); ptr += 1
                return True
            return False
        def inflight():
            return len(a.lg.q) - a.lg_done
        GRP = 4
        while inflight() < 14 and issue_next(0): pass
        masked = False
        for n, (ee, j, idx) in enumerate(sched):
            while ("A", ee) not in issued or ("B", idx) not in issued:
                assert issue_next(n)
            if not (a.lds_done(("A", ee)) and a.lds_done(("B", idx))):
                tags = [("A", ee), ("B", idx)]
                for (e2, j2, i2) in sched[n + 1:n + GRP]:
                    if ("A", e2) in issued and ("B", i2) in issued: tags += [("A", e2), ("B", i2)]
                    else: break
                a.need_lds(*tags)
            ar = AF + 4 * (ee % NA); br = BF + 4 * idx; acc = ACC + 4 * j
            if ee == 0 and not masked:
                for d in range(4): a("v_and_b32 v%d, v%d, v%d" % (ar + d, MK + d, ar + d))
                masked = True
            a("v_mfma_f32_16x16x32_bf16 v[%d:%d], v[%d:%d], v[%d:%d], v[%d:%d]" % (acc, acc + 3, ar, ar + 3, br, br + 3, acc, acc + 3))
            if inflight() < 14:
                issue_next(n + 1)
                if n < 40 and inflight() < 14: issue_next(n + 1)
            if n == self.h2n and not self.noflags and "h2pre" not in self.exp:
                self.publish_h2()
        self.stamp(16)
        self.jit(8)
        self.pair_sync(0)
        a("v_lshlrev_b32 v4, 4, v1")
        a("s_mul_i32 s%d, s%d, %d" % (sT0, sT0, T_CH))
        a("s_add_u32 s%d, s%d, %d" % (sT0, sT0, L_T + 8))
        a("s_lshl_b32 s%d, s%d, 12" % (sT2, sT1))
        a("s_add_u32 s%d, s%d, s%d" % (sT2, sT2, sT0))
        a("v_add_u32 v5, s%d, v4" % sT2)
        a("s_xor_b32 s%d, s%d, 1" % (sT2, sT1))
        a("s_lshl_b32 s%d, s%d, 12" % (sT2, sT2))
        a("s_add_u32 s%d, s%d, s%d" % (sT2, sT2, sT0))
        a("v_add_u32 v6, s%d, v4" % sT2)
        l0 = a.newlabel("L_cr0"); l1 = a.newlabel("L_cr1")
        a("s_cmp_eq_u32 s%d, 0" % sT1)
        a("s_cbranch_scc1 %s" % l0)
        for i in range(4):
            a("ds_write_b128 v5, v[%d:%d] offset:%d" % (ACC + 4 * i, ACC + 4 * i + 3, 1024 * i))
        for i in range(16):
            a("v_mov_b32 v%d, v%d" % (200 + i, ACC + 16 + i))
        a("s_branch %s" % l1)
        a.label(l0)
        for i in range(4):
            a("ds_write_b128 v5, v[%d:%d] offset:%d" % (ACC + 16 + 4 * i, ACC + 16 + 4 * i + 3, 1024 * i))
        for i in range(16):
            a("v_mov_b32 v%d, v%d" % (200 + i, ACC + i))
        a.label(l1)
        a("v_and_b32 v4, 15, v1")
        a("v_lshrrev_b32 v7, 4, v1")
        a("v_lshlrev_b32 v4, 5, v4")
        a("v_lshl_add_u32 v4, v7, 3, v4")
        a("s_lshr_b32 s%d, s%d, 1" % (sT0, sRW))
        a("s_mul_i32 s%d, s%d, %d" % (sT2, sT0, U_CH))
        a("s_add_u32 s%d, s%d, %d" % (sT2, sT2, L_U + 2 * 2044 - 3 * 512))
        a("s_lshl_b32 s4, s%d, 11" % sT1)
        a("s_sub_u32 s%d, s%d, s4" % (sT2, sT2))
        a("v_sub_u32 v4, s%d, v4" % sT2)
        for i in range(4):
            a("ds_read_b64 v[%d:%d], v4 offset:%d" % (236 + 2 * i, 237 + 2 * i, (3 - i) * 512))
        a("s_and_b32 s4, s%d, 0xffff" % sDD)
        a("s_lshr_b32 s5, s%d, 16" % sDD)
        a("s_cmp_eq_u32 s%d, 0" % sT0)
        a("s_cselect_b32 s4, s4, s5")
        a("s_lshl_b32 s5, s4, 16")
        a("v_mov_b32 v8, s4")
        a("v_mov_b32 v9, s5")
        self.pair_sync(1)
        for i in range(4):
            a("ds_read_b128 v[%d:%d], v6 offset:%d" % (220 + 4 * i, 223 + 4 * i, 1024 * i))
        TT = 148
        for i in range(4):
            u0, u1 = 236 + 2 * i, 237 + 2 * i
            a("v_dot2_f32_bf16 v%d, v%d, v9, 0" % (TT + 4 * i + 0, u1))
            a("v_dot2_f32_bf16 v%d, v%d, v8, 0" % (TT + 4 * i + 1, u1))
            a("v_dot2_f32_bf16 v%d, v%d, v9, 0" % (TT + 4 * i + 2, u0))
            a("v_dot2_f32_bf16 v%d, v%d, v8, 0" % (TT + 4 * i + 3, u0))
        TB = 164
        for i in range(4):
            a("v_cvt_pk_bf16_f32 v%d, v%d, v%d" % (TB + 2 * i, TT + 4 * i, TT + 4 * i + 1))
            a("v_cvt_pk_bf16_f32 v%d, v%d, v%d" % (TB + 2 * i + 1, TT + 4 * i + 2, TT + 4 * i + 3))
        a("v_and_b32 v4, 15, v1")
        a("v_lshrrev_b32 v5, 2, v4")
        a("v_lshlrev_b32 v5, 16, v5")
        a("v_and_b32 v4, 3, v4")
        a("v_lshl_add_u32 v5, v4, 5, v5")
        a("v_lshrrev_b32 v7, 4, v1")
        if "st16" in self.exp:
            a("v_lshrrev_b32 v4, 1, v7")
            a("v_lshl_add_u32 v5, v4, 4, v5")
            a("v_and_b32 v4, 1, v7")
            a("v_lshl_add_u32 v5, v4, 18, v5")
        else:
            a("v_lshl_add_u32 v5, v7, 3, v5")
        a("s_lshl_b32 s%d, s%d, 6" % (sT2, sC))
        a("s_lshl_b32 s4, s%d, 1" % sR)
        a("s_add_u32 s%d, s%d, s4" % (sT2, sT2))
        a("s_add_u32 s%d, s%d, s%d" % (sT2, sT2, sT0))
        a("s_lshl_b32 s%d, s%d, 7" % (sT2, sT2))
        a("s_lshl_b32 s4, s%d, 20" % sT1)
        a("s_add_u32 s%d, s%d, s4" % (sT2, sT2))
        a("s_add_u32 s%d, s%d, 0x%x" % (sT2, sT2, WS_YT))
        a("v_add_u32 v5, s%d, v5" % sT2)
        a.lg0()
        for i in range(16):
            a("v_add_f32 v%d, v%d, v%d" % (200 + i, 200 + i, 220 + i))
        YB = 172
        for i in range(8):
            a("v_cvt_pk_bf16_f32 v%d, v%d, v%d" % (YB + i, 200 + 2 * i, 201 + 2 * i))
        for i in range(8):
            a("v_perm_b32 v%d, v%d, v%d, s%d" % (200 + 2 * i, TB + i, YB + i, sP0))
            a("v_perm_b32 v%d, v%d, v%d, s%d" % (201 + 2 * i, TB + i, YB + i, sP1))
        for i in range(16):
            a("v_dot2_f32_bf16 v%d, v%d, v%d, 0" % (220 + i, 200 + i, vONES))
        for i in range(8):
            a("v_cvt_pk_bf16_f32 v%d, v%d, v%d" % (180 + i, 220 + 2 * i, 221 + 2 * i))
        if "st16" in self.exp:
            for u in range(2):
                r = 180 + 4 * u
                a("v_permlane16_swap_b32 v%d, v%d" % (r, r + 2))
                a("v_permlane16_swap_b32 v%d, v%d" % (r + 1, r + 3))
            for u in range(2):
                if u: a("v_add_u32 v5, 0x80000, v5")
                a.vmem("buffer_store_dwordx4 v[%d:%d], v5, s[%d:%d], 0 offen sc1" % (180 + 4 * u, 183 + 4 * u, S_WS, S_WS + 3), "yst")
        else:
          for i in range(4):
            if i: a("v_add_u32 v5, 0x40000, v5")
            a.vmem("buffer_store_dwordx2 v[%d:%d], v5, s[%d:%d], 0 offen sc1" % (180 + 2 * i, 181 + 2 * i, S_WS, S_WS + 3), "yst")
        self.stamp(17)

    def w2_voff(self):
        a = self.a
        sh = 7 if self.w2s else 10
        a("v_lshrrev_b32 v2, 3, v1")
        a("v_and_b32 v2, 3, v2")
        a("v_lshrrev_b32 v3, 5, v1")
        a("v_lshl_add_u32 v2, v3, 3, v2")
        a("v_lshlrev_b32 v2, %d, v2" % sh)
        a("v_lshrrev_b32 v3, 4, v1")
        a("v_and_b32 v3, 3, v3")
        a("v_lshlrev_b32 v3, 1, v3")
        a("v_and_b32 v4, 7, v1")
        a("v_xor_b32 v3, v3, v4")
        a("v_lshl_add_u32 v2, v3, 4, v2")
        if self.w2s:
            a("s_mul_i32 s%d, s%d, 176128" % (sT0, sD))
            a("s_add_u32 s%d, s%d, 0x%x" % (sT0, sT0, WS_W2S))
        else:
            a("s_lshl_b32 s%d, s%d, 7" % (sT0, sD))
        a("v_add_u32 v14, s%d, v2" % sT0)

    def w2_dma(self, lds_base_sreg, lds_off, src_base_sreg, ks_off, tag):
        a = self.a
        inc = [0, 512, 1536, 512] if self.w2s else [0, 4096, 12288, 4096]
        srd = S_WS if self.w2s else S_W2
        fl = " sc1" if self.w2s else ""
        a("s_add_u32 s%d, s%d, %d" % (sT2, src_base_sreg, ks_off * self.KS))
        for m in range(4):
            a("s_add_u32 m0, s%d, %d" % (lds_base_sreg, lds_off + 1024 * m))
            if m: a("s_add_u32 s%d, s%d, %d" % (sT2, sT2, inc[m]))
            a.vmem("buffer_load_dwordx4 v14, s[%d:%d], s%d offen%s lds" % (srd, srd + 3, sT2, fl), tag)

    def w2_slot_dma(self, tag):
        a = self.a
        a("s_lshl_b32 s71, s%d, 12" % sT0)
        a("s_add_u32 s70, s%d, 9" % sT0)
        a("s_cmp_lt_u32 s%d, 13" % sT0)
        a("s_cselect_b32 s70, s%d, s70" % sT0)
        a("s_lshl_b32 s70, s70, %d" % (12 if self.w2s else 15))
        self.w2_dma(71, L_B, 70, 0, tag)

    def w2_early(self):
        a = self.a
        for m in range(3):
            a("s_add_u32 s%d, s%d, %d" % (sT0, sRW, 4 * m))
            if m == 2: a("s_min_u32 s%d, s%d, 9" % (sT0, sT0))
            if m >= 1: a("s_add_u32 s%d, s%d, 4" % (sT0, sT0))
            self.w2_slot_dma("w2e")

    def m_regionA(self):
        a = self.a
        self.w2_voff()
        a("s_lshr_b32 s75, s%d, 1" % sRW)
        a("s_and_b32 s76, s%d, 1" % sRW)
        a("s_mul_i32 s70, s75, %d" % (22 * self.KS))
        self.m_sync(12)
        a("s_mul_i32 s71, s75, %d" % (NA_H * 4096))
        a("s_add_u32 s71, s71, %d" % L_A)
        a("s_lshl_b32 s4, s76, 12")
        a("s_add_u32 s71, s71, s4")
        a("s_lshl_b32 s4, s76, %d" % (12 if self.w2s else 15))
        a("s_add_u32 s70, s70, s4")
        for m in range(3):
            self.w2_dma(71, 8192 * m, 70, 13 + 2 * m, "w2a")

    def n_after_w2a_min(self):
        return (0 if self.noflags else 1) + 4 + 1

    def m_tail(self):
        a = self.a
        self.jit(2)
        self.m_regionA()
        self.jit(3)
        a.wait_vm("yst")
        if not self.noflags:
            a("s_lshl_b32 s4, s%d, 7" % sID)
            a("s_lshl_b32 s5, s%d, 2" % sRW)
            a("s_add_u32 s4, s4, s5")
            a("s_add_u32 s%d, s4, 0x%x" % (sT2, F_H3))
            self.flag_store(sT2, "flag", 2, 3)
        self.stamp(21)
        a("s_mov_b32 s5, %d" % (L_SYNC + 56))
        self.lds_wait(5, 4)
        a("s_mul_i32 s71, s75, %d" % B_HALF)
        a("s_lshl_b32 s4, s76, 12")
        a("s_add_u32 s71, s71, s4")
        if L_B: a("s_add_u32 s71, s71, %d" % L_B)
        self.w2_dma(71, 0, 70, 19, "w2l")
        skl = a.newlabel("L_ml")
        a("s_cmp_eq_u32 s76, 1")
        a("s_cbranch_scc1 %s" % skl)
        self.w2_dma(71, 8192, 70, 21, "w2l")
        a.label(skl)
        self.final_x_load(self.XR, self.OA)
        a("v_lshrrev_b32 v3, 2, v0")
        a("v_and_b32 v4, 3, v0")
        a("v_lshlrev_b32 v5, 7, v3")
        a("v_lshl_add_u32 v5, v4, 5, v5")
        a("s_lshl_b32 s%d, s%d, 16" % (sT0, sR))
        a("s_lshl_b32 s%d, s%d, 13" % (sT1, sD))
        a("s_add_u32 s%d, s%d, s%d" % (sT0, sT0, sT1))
        a("s_add_u32 s%d, s%d, 0x%x" % (sT0, sT0, WS_YT))
        a("v_add_u32 v8, s%d, v5" % sT0)
        a("v_mul_u32_u24 v9, 144, v3")
        a("v_lshl_add_u32 v9, v4, 5, v9")
        a("v_add_u32 v9, %d, v9" % L_Y)
        early = "yearly" in self.exp and not self.noflags
        if early:
            a("s_lshl_b32 s%d, s%d, 12" % (sT0, sD))
            a("s_add_u32 s%d, s%d, 0x%x" % (sT0, sT0, F_H3))
            a("v_and_b32 v2, 31, v1")
            a("v_lshlrev_b32 v2, 7, v2")
            a("v_add_u32 v2, s%d, v2" % sT0)
            a("buffer_load_dwordx4 v[28:31], v2, s[%d:%d], 0 offen sc1" % (S_WS, S_WS + 3))
        a("s_waitcnt vmcnt(%d)" % (self.n_after_w2a_min() + (1 if early else 0)))
        self.stamp(18)
        a("s_barrier")
        a("s_waitcnt vmcnt(0)")
        def yloads():
            a("buffer_load_dwordx4 v[20:23], v8, s[%d:%d], 0 offen sc1" % (S_WS, S_WS + 3))
            a("buffer_load_dwordx4 v[24:27], v8, s[%d:%d], 0 offen offset:16 sc1" % (S_WS, S_WS + 3))
        if early:
            lslow = "L_yslow"; lback = "L_yback"
            for i in range(4): a("v_xor_b32 v%d, s%d, v%d" % (28 + i, sNONCE, 28 + i))
            a("v_or3_b32 v28, v28, v29, v30")
            a("v_or_b32 v28, v28, v31")
            a("v_cmp_ne_u32 vcc, 0, v28")
            a("s_cbranch_vccnz %s" % lslow)
            yloads()
            a("s_barrier")
            a.label(lback)
            self.yslow_body = yloads
        else:
            a("s_barrier")
            if not self.noflags and "noh3" not in self.exp:
                a("s_lshl_b32 s%d, s%d, 12" % (sT0, sD))
                a("s_add_u32 s%d, s%d, 0x%x" % (sT0, sT0, F_H3))
                self.poll(sT0, 32, 4, 128)
            yloads()
        self.stamp(7)
        a("s_waitcnt vmcnt(0)")
        a("ds_write_b128 v9, v[20:23]")
        a("ds_write_b128 v9, v[24:27] offset:16")
        a.lg0()
        a("s_barrier")

    def y_slow(self):
        a = self.a
        a.label("L_yslow")
        a("s_barrier")
        a("s_lshl_b32 s%d, s%d, 12" % (sT0, sD))
        a("s_add_u32 s%d, s%d, 0x%x" % (sT0, sT0, F_H3))
        self.poll(sT0, 32, 4, 128)
        self.yslow_body()
        a("s_branch L_yback")

    def final_x_load(self, xr, ar, t0=2, t1=3):
        a = self.a
        a("s_and_b32 s%d, s%d, 3" % (sT0, sW))
        a("s_lshl_b32 s%d, s%d, 4" % (sT0, sT0))
        a("s_lshl_b32 s%d, s%d, 6" % (sT1, sR))
        a("s_add_u32 s%d, s%d, s%d" % (sT0, sT0, sT1))
        a("s_lshl_b32 s%d, s%d, 10" % (sT0, sT0))
        a("s_lshl_b32 s%d, s%d, 7" % (sT1, sD))
        a("s_add_u32 s%d, s%d, s%d" % (sT0, sT0, sT1))
        a("s_lshr_b32 s%d, s%d, 2" % (sT1, sW))
        a("s_lshl_b32 s%d, s%d, 6" % (sT1, sT1))
        a("s_add_u32 s%d, s%d, s%d" % (sT0, sT0, sT1))
        a("v_lshrrev_b32 v%d, 2, v1" % t0)
        a("v_lshlrev_b32 v%d, 10, v%d" % (t0, t0))
        a("v_and_b32 v%d, 3, v1" % t1)
        a("v_lshl_add_u32 v%d, v%d, 4, v%d" % (t0, t1, t0))
        a("v_add_u32 v%d, s%d, v%d" % (ar, sT0, t0))
        a.vmem("buffer_load_dwordx4 v[%d:%d], v%d, s[%d:%d], 0 offen" % (xr, xr + 3, ar, S_X, S_X + 3), "xf")

    def u_slow(self):
        a = self.a
        a.label("L_uslow")
        a("s_lshl_b32 s%d, s%d, 12" % (sT0, sC))
        a("s_add_u32 s%d, s%d, 0x%x" % (sT0, sT0, F_H1))
        self.poll(sT0, 32, 1, 128)
        for i in range(4):
            a("buffer_load_dwordx4 v[%d:%d], v172, s[%d:%d], 0 offen offset:%d sc1" % (152 + 4 * i, 155 + 4 * i, S_WS, S_WS + 3, 1024 * i))
        a("s_waitcnt vmcnt(0)")
        for i in range(4):
            a("ds_write_b128 v174, v[%d:%d] offset:%d" % (152 + 4 * i, 155 + 4 * i, 1024 * i))
        a("s_waitcnt lgkmcnt(0)")
        a("s_branch L_uback")

    NEGM, RS, NMRS = 100, 101, 102
    def norm2(self, X, t):
        L = []
        L.append("v_lshlrev_b32 v%d, 16, v%d" % (t + 0, X))
        L.append("v_and_b32 v%d, v%d, v%d" % (t + 1, vMHI, X))
        L.append("v_lshlrev_b32 v%d, 16, v%d" % (t + 2, X + 1))
        L.append("v_and_b32 v%d, v%d, v%d" % (t + 3, vMHI, X + 1))
        if self.relax_ln:
            for i in range(4):
                L.append("v_fma_f32 v%d, v%d, v%d, v%d" % (t + i, t + i, self.RS, self.NMRS))
        else:
            for i in range(4):
                L.append("v_add_f32 v%d, v%d, v%d" % (t + i, t + i, self.NEGM))
            L.append("v_cvt_pk_bf16_f32 v%d, v%d, v%d" % (t + 4, t + 0, t + 1))
            L.append("v_cvt_pk_bf16_f32 v%d, v%d, v%d" % (t + 5, t + 2, t + 3))
            L.append("v_lshlrev_b32 v%d, 16, v%d" % (t + 0, t + 4))
            L.append("v_and_b32 v%d, v%d, v%d" % (t + 1, vMHI, t + 4))
            L.append("v_lshlrev_b32 v%d, 16, v%d" % (t + 2, t + 5))
            L.append("v_and_b32 v%d, v%d, v%d" % (t + 3, vMHI, t + 5))
            for i in range(4):
                L.append("v_mul_f32 v%d, v%d, v%d" % (t + i, t + i, self.RS))
        L.append("v_cvt_pk_bf16_f32 v%d, v%d, v%d" % (X, t + 0, t + 1))
        L.append("v_cvt_pk_bf16_f32 v%d, v%d, v%d" % (X + 1, t + 2, t + 3))
        return L

    def norm_chunk(self, j):
        a = self.a
        X = 20 + 8 * j
        for half in range(2):
            s1 = self.norm2(X + 4 * half, 104); s2 = self.norm2(X + 4 * half + 2, 110)
            for x, y in zip(s1, s2):
                a(x); a(y)
            a.lds("ds_write_b128 v116, v[%d:%d] offset:%d" % (X + 4 * half, X + 4 * half + 3, L_XN + (j % NXN) * 8192 + half * 1024), "xw")

    def h_first(self):
        a = self.a
        self.vm_m_first = a.vm
        a.vm = Q(["cpf"] if "codepf0" in self.exp else [])
        a.label("L_Hfirst")
        self.rot_calc()
        a("s_lshl_b32 s%d, s%d, 16" % (sT0, sR))
        a("s_lshl_b32 s%d, s%d, 14" % (sT1, sRW))
        a("s_add_u32 s%d, s%d, s%d" % (sT0, sT0, sT1))
        a("v_lshrrev_b32 v6, 2, v1")
        a("v_lshlrev_b32 v6, 10, v6")
        a("v_and_b32 v7, 3, v1")
        a("v_lshl_add_u32 v6, v7, 4, v6")
        a("v_add_u32 v6, s%d, v6" % sT0)
        if "norot" not in self.exp: a("s_lshl_b32 s%d, s%d, 7" % (sT0, sROT))
        a("s_waitcnt lgkmcnt(0)")
        a("s_mov_b64 s[8:9], s[64:65]")
        if self.stamps:
            a("s_memrealtime s[4:5]"); a("s_waitcnt lgkmcnt(0)"); a("v_writelane_b32 v255, s4, 0")
        for j in range(8):
            if "norot" in self.exp:
                a.vmem("buffer_load_dwordx4 v[%d:%d], v6, s[%d:%d], 0 offen offset:%d" % (20 + 8 * j, 23 + 8 * j, S_X, S_X + 3, 128 * j), "x%d" % j)
                a.vmem("buffer_load_dwordx4 v[%d:%d], v6, s[%d:%d], 0 offen offset:%d" % (24 + 8 * j, 27 + 8 * j, S_X, S_X + 3, 128 * j + 64), "x%d" % j)
                continue
            if j:
                a("s_add_u32 s%d, s%d, 128" % (sT0, sT0))
                a("s_and_b32 s%d, s%d, 1023" % (sT0, sT0))
            a.vmem("buffer_load_dwordx4 v[%d:%d], v6, s[%d:%d], s%d offen" % (20 + 8 * j, 23 + 8 * j, S_X, S_X + 3, sT0), "x%d" % j)
            a.vmem("buffer_load_dwordx4 v[%d:%d], v6, s[%d:%d], s%d offen offset:64" % (24 + 8 * j, 27 + 8 * j, S_X, S_X + 3, sT0), "x%d" % j)
        a("s_branch L_H")
        self.vm_h_first = a.vm

    def h_front(self):
        a = self.a
        a.vm = self.vm_h_first; a.lg_clear()
        self.jit(7)
        self.p0_rest()
        a("s_waitcnt lgkmcnt(0)")
        if "tlbpf" in self.exp:
            a("v_lshlrev_b32 v2, 19, v1")
            a("v_cmp_gt_u32 vcc, 28, v1")
            a("v_mov_b32 v3, 0x40000000")
            a("v_cndmask_b32 v2, v3, v2, vcc")
            a.vmem("buffer_load_dword v245, v2, s[%d:%d], 0 offen" % (S_WS, S_WS + 3), "tlb")
            a("v_lshlrev_b32 v2, 19, v1")
            a.vmem("buffer_load_dword v246, v2, s[%d:%d], 0 offen" % (S_OUT, S_OUT + 3), "tlb")
            a.vmem("buffer_load_dword v247, v2, s[%d:%d], 0 offen" % (S_W2, S_W2 + 3), "tlb")
            a.vmem("buffer_load_dword v243, v2, s[%d:%d], 0 offen" % (S_SSM, S_SSM + 3), "tlb")
        if self.w2s:
            a("s_lshl_b32 s%d, s2, 13" % sT2)
            a("v_and_b32 v2, 255, v0")
            a("v_lshlrev_b32 v3, 4, v2")
            a("v_add_u32 v3, s%d, v3" % sT2)
            a("s_cmp_lt_u32 s2, 172")
            a("s_cselect_b32 s86, 0, 0x40000000")
            a.vmem("buffer_load_dwordx4 v[224:227], v3, s[%d:%d], s86 offen" % (S_W2, S_W2 + 3), "w2sl")
            a("v_add_u32 v3, 4096, v3")
            a.vmem("buffer_load_dwordx4 v[228:231], v3, s[%d:%d], s86 offen" % (S_W2, S_W2 + 3), "w2sl")
            a("v_bfe_u32 v4, v2, 3, 3")
            a("v_mul_u32_u24 v4, 176128, v4")
            a("v_lshrrev_b32 v5, 6, v2")
            a("v_lshl_add_u32 v4, v5, 7, v4")
            a("v_and_b32 v5, 7, v2")
            a("v_lshl_add_u32 v4, v5, 4, v4")
            a("s_lshl_b32 s%d, s2, 10" % sT2)
            a("s_add_u32 s%d, s%d, 0x%x" % (sT2, sT2, WS_W2S))
            a("v_add_u32 v232, s%d, v4" % sT2)
        if "codepf" in self.exp:
            a("s_getpc_b64 s[82:83]")
            a.label("L_pc")
            a("s_sub_u32 s82, s82, L_pc-%s" % KNAME)
            a("s_subb_u32 s83, s83, 0")
            a("v_lshlrev_b32 v2, 7, v1")
            a("s_lshl_b32 s84, s%d, 13" % sRW)
            a("v_add_u32 v2, s84, v2")
            a("v_min_u32 v2, L_codeend-%s, v2" % KNAME)
            a("v_mov_b32 v3, s83")
            a("v_add_co_u32 v2, vcc, s82, v2")
            a("v_addc_co_u32 v3, vcc, 0, v3, vcc")
            a.vmem("global_load_dword v244, v[2:3], off", "cpf")
        a("s_waitcnt lgkmcnt(0)")
        a("s_barrier")

        if "V3" in self.exp:
            self.w1_voffs()
            for f in self.w1_dma_ops(0) + self.w1_dma_ops(1): f()
        a("s_setprio 0")
        if not self.noflags:
            a("v_mov_b32 v7, 0")
        a("v_lshrrev_b32 v4, 2, v1")
        a("v_and_b32 v5, 3, v1")
        a("v_lshlrev_b32 v2, 1, v5")
        a("v_xor_b32 v4, v4, v2")
        a("v_lshlrev_b32 v4, 4, v4")
        a("v_lshl_add_u32 v4, v5, 8, v4")
        a("s_lshl_b32 s%d, s%d, 11" % (sT2, sRW))
        a("v_add_u32 v116, s%d, v4" % sT2)

    def h_ssm_load(self):
        a = self.a
        a("s_lshl_b32 s%d, s%d, 6" % (sT2, sC))
        a("s_lshl_b32 s%d, s%d, 1" % (sT1, sR))
        a("s_add_u32 s%d, s%d, s%d" % (sT2, sT2, sT1))
        a("s_lshl_b32 s%d, s%d, 12" % (sT2, sT2))
        a("v_and_b32 v3, 255, v0")
        a("v_lshlrev_b32 v3, 4, v3")
        a("v_add_u32 v2, s%d, v3" % sT2)
        a("v_add_u32 v4, -8, v2")
        for ch in range(2):
            a.vmem("buffer_load_dwordx2 v[%d:%d], v4, s[%d:%d], 0 offen" % (84 + 6 * ch, 85 + 6 * ch, S_SSM, S_SSM + 3), "ssm")
            a.vmem("buffer_load_dwordx4 v[%d:%d], v2, s[%d:%d], 0 offen" % (86 + 6 * ch, 89 + 6 * ch, S_SSM, S_SSM + 3), "ssm")
            if ch == 0:
                a("v_add_u32 v2, 4096, v2")
                a("v_add_u32 v4, 4096, v4")

    def h_stats(self):
        a = self.a
        X = 20
        for i in range(8): a("v_mov_b32 v%d, 0" % (104 + i))
        for i in range(64):
            if i % 8 == 0:
                a.wait_vm("x%d" % (i // 8))
                if i == 0: self.stamp(13)
                if i == 8 * self.pfd and "pfWd" in self.exp: self.w1_tail_prefetch(241)
            a("v_dot2_f32_bf16 v%d, v%d, v%d, v%d" % (104 + (i & 3), X + i, vONES, 104 + (i & 3)))
            a("v_dot2_f32_bf16 v%d, v%d, v%d, v%d" % (108 + (i & 3), X + i, X + i, 108 + (i & 3)))
        a("v_add_f32 v104, v104, v105"); a("v_add_f32 v106, v106, v107")
        a("v_add_f32 v108, v108, v109"); a("v_add_f32 v110, v110, v111")
        a("v_add_f32 v2, v104, v106"); a("v_add_f32 v3, v108, v110")
        for ctl in ("quad_perm:[1,0,3,2]", "quad_perm:[2,3,0,1]"):
            a("v_add_f32_dpp v2, v2, v2 %s row_mask:0xf bank_mask:0xf" % ctl)
            a("v_add_f32_dpp v3, v3, v3 %s row_mask:0xf bank_mask:0xf" % ctl)
        a("v_mul_f32 v2, 0x3b000000, v2")
        a("v_mul_f32 v3, 0x3b000000, v3")
        a("v_cvt_pk_bf16_f32 v4, v2, v2")
        a("v_fma_f32 v3, -v2, v2, v3")
        a("v_lshlrev_b32 v4, 16, v4")
        a("v_max_f32 v3, 0, v3")
        a("v_cvt_pk_bf16_f32 v3, v3, v3")
        a("v_lshlrev_b32 v3, 16, v3")
        a("v_add_f32 v3, 0x3727c5ac, v3")
        a("v_cvt_pk_bf16_f32 v3, v3, v3")
        a("v_lshlrev_b32 v3, 16, v3")
        a("v_sqrt_f32 v3, v3")
        a("v_cvt_pk_bf16_f32 v3, v3, v3")
        a("v_lshlrev_b32 v3, 16, v3")
        a("v_rcp_f32 v%d, v3" % self.RS)
        a("v_sub_f32 v%d, 0, v4" % self.NEGM)
        a("v_mul_f32 v%d, v%d, v%d" % (self.NMRS, self.NEGM, self.RS))
        a("v_lshrrev_b32 v6, 2, v1")
        a("s_lshl_b32 s%d, s%d, 4" % (sT2, sRW))
        a("v_add_u32 v6, s%d, v6" % sT2)
        a("v_lshlrev_b32 v5, 3, v6")
        a("v_add_u32 v5, %d, v5" % L_STATS)
        a("v_mov_b32 v2, v4")
        a("v_mov_b32 v3, v%d" % self.RS)
        a.lds("ds_write_b64 v5, v[2:3]", "st")

    def h_tbuild(self, ch):
        a = self.a
        D = 84 + 6 * ch
        E = 118
        for p in range(5):
            a("v_alignbit_b32 v%d, v%d, v%d, 16" % (E + p, D + p + 1, D + p))
        for p in range(4):
            a("v_mov_b32 v%d, v%d" % (124 + p, D + 1 + p))
            a("v_mov_b32 v%d, v%d" % (128 + p, E + 1 + p))
        a("v_and_b32 v3, 255, v0")
        a("v_lshlrev_b32 v3, 4, v3")
        a("v_add_u32 v3, %d, v3" % (L_T + ch * T_CH + 24))
        a("ds_write_b128 v3, v[118:121]")
        a("ds_write_b128 v3, v[124:127] offset:%d" % T_CP)
        a("ds_write_b128 v3, v[128:131] offset:%d" % (2 * T_CP))
        a("ds_write_b128 v3, v[%d:%d] offset:%d" % (D + 2, D + 5, 3 * T_CP))

    def w2flag_loads(self, tag):
        a = self.a
        for i in range(3):
            a("v_add_u32 v3, %d, v1" % (64 * i))
            if i == 2:
                a("v_cmp_gt_u32 vcc, 172, v3")
                a("v_cndmask_b32 v3, 0, v3, vcc")
            a("v_lshlrev_b32 v3, 7, v3")
            a("v_add_u32 v3, 0x%x, v3" % F_H4)
            ins = "buffer_load_dword v%d, v3, s[%d:%d], 0 offen sc1" % (100 + i, S_WS, S_WS + 3)
            if tag: a.vmem(ins, tag)
            else: a(ins)

    def w2flag_check(self):
        a = self.a
        for i in range(3): a("v_xor_b32 v%d, s%d, v%d" % (104 + i, sNONCE, 100 + i))
        a("v_or3_b32 v104, v104, v105, v106")
        a("v_cmp_ne_u32 vcc, 0, v104")

    def h_uload(self):
        a = self.a
        if self.noflags: a.wait_vm("ssm")
        if not self.noflags:
            dn = a.newlabel("L_h1ok")
            a.wait_vm("h1f")
            for i in range(4): a("v_xor_b32 v%d, s%d, v%d" % (96 + i, sNONCE, 96 + i))
            a("v_or3_b32 v96, v96, v97, v98")
            a("v_or_b32 v96, v96, v99")
            a("v_cmp_ne_u32 vcc, 0, v96")
            a("s_cbranch_vccz %s" % dn)
            if "noprep" not in self.exp:
                a("s_lshl_b32 s%d, s%d, 12" % (sT0, sC))
                a("s_add_u32 s%d, s%d, 0x%x" % (sT0, sT0, F_H1))
                self.poll(sT0, 32, 4, 128)
            a.label(dn)
        self.stamp(3)
        a("s_lshl_b32 s%d, s%d, 6" % (sT0, sC))
        a("s_lshl_b32 s%d, s%d, 1" % (sT1, sR))
        a("s_add_u32 s%d, s%d, s%d" % (sT0, sT0, sT1))
        a("s_lshl_b32 s%d, s%d, 12" % (sT0, sT0))
        a("s_lshl_b32 s%d, s%d, 11" % (sT1, sRW))
        a("s_add_u32 s%d, s%d, s%d" % (sT0, sT0, sT1))
        a("v_lshlrev_b32 v4, 4, v1")
        a("v_add_u32 v5, s%d, v4" % sT0)
        a.vmem("buffer_load_dwordx4 v[20:23], v5, s[%d:%d], 0 offen sc1" % (S_WS, S_WS + 3), "u")
        a.vmem("buffer_load_dwordx4 v[24:27], v5, s[%d:%d], 0 offen offset:1024 sc1" % (S_WS, S_WS + 3), "u")
        self.h_tbuild(0)
        self.h_tbuild(1)
        if "w2early" in self.exp:
            self.w2_voff()
            self.w2_early()
        a("v_lshlrev_b32 v4, 4, v1")
        a("s_lshr_b32 s%d, s%d, 1" % (sT0, sRW))
        a("s_mul_i32 s%d, s%d, %d" % (sT0, sT0, U_CH))
        a("s_and_b32 s%d, s%d, 1" % (sT1, sRW))
        a("s_lshl_b32 s%d, s%d, 11" % (sT2, sT1))
        a("s_add_u32 s%d, s%d, s%d" % (sT0, sT0, sT2))
        a("s_add_u32 s%d, s%d, %d" % (sT0, sT0, L_U))
        a("v_add_u32 v6, s%d, v4" % sT0)
        for i in range(4): a("v_mov_b32 v%d, 0" % (28 + i))
        a("s_cmp_eq_u32 s%d, 1" % sT1)
        a("s_cselect_b32 exec_lo, -1, 0")
        a("s_mov_b32 exec_hi, 0")
        a("ds_write_b128 v6, v[28:31] offset:2048")
        a("s_mov_b64 exec, -1")
        a.wait_vm("u")
        a("ds_write_b128 v6, v[20:23]")
        a("ds_write_b128 v6, v[24:27] offset:1024")

    def norm_seq(self, j):
        a = self.a
        X = 20 + 8 * j
        seq = []
        for half in range(2):
            s1 = self.norm2(X + 4 * half, 104); s2 = self.norm2(X + 4 * half + 2, 110)
            if "hnonorm" in self.exp and j >= 2:
                s1 = ["s_nop 0"] * 8; s2 = ["s_nop 0"] * 8
            for x, y in zip(s1, s2):
                seq.append(x); seq.append(y)
            if "wmid" in self.exp:
                seq.append(lambda half=half: a.lds("ds_write_b128 v116, v[%d:%d] offset:%d" % (X + 4 * half, X + 4 * half + 3, L_XN + (j % NXN) * 8192 + half * 1024), "xw%d" % j))
        if not ("hnowrite" in self.exp and j >= 2) and "wmid" not in self.exp:
            for half in range(2):
                seq.append(lambda half=half: a.lds("ds_write_b128 v116, v[%d:%d] offset:%d" % (X + 4 * half, X + 4 * half + 3, L_XN + (j % NXN) * 8192 + half * 1024), "xw%d" % j))
        return seq

    def h_gemm1_side(self):
        a = self.a
        if self.w2s:
            a.wait_vm("w2sl")
            a.vmem("buffer_store_dwordx4 v[224:227], v232, s[%d:%d], s86 offen sc1" % (S_WS, S_WS + 3), "w2st")
            a.vmem("buffer_store_dwordx4 v[228:231], v232, s[%d:%d], s86 offen offset:512 sc1" % (S_WS, S_WS + 3), "w2st")
        if "hprio" in self.exp: a("s_setprio 2")
        if "pfWc" in self.exp: self.w1_tail_prefetch(241)
        if "lnpre" in self.exp:
            def split(j):
                sq = self.norm_seq(j)
                return sq[:-2], sq[-2:]
            wr = {}; late = {}
            for j in range(8):
                v_, w_ = split(j)
                if j < self.lnk:
                    for x in v_: self.run(x)
                else:
                    late[j] = v_
                if j < 4:
                    for x in w_: self.run(x)
                else:
                    wr[j] = w_
                if j == 1 and not self.noflags:
                    a.vmem("buffer_load_dword v19, v7, s[%d:%d], 0 offen sc1" % (S_DBG, S_DBG + 3), "nonce")
            a.need_lds("xw0", "xw1")
            a("s_barrier")
        else:
            for x in self.norm_seq(0): self.run(x)
            s1 = self.norm_seq(1)
            h = len(s1) // 2
            for x in s1[:h]: self.run(x)
            for x in s1[h:]: self.run(x)
            if not self.noflags:
                a.vmem("buffer_load_dword v19, v7, s[%d:%d], 0 offen sc1" % (S_DBG, S_DBG + 3), "nonce")
            s2 = self.norm_seq(2)
            for x in s2[:h]: self.run(x)
            a.need_lds("xw0", "xw1")
            if "V3" in self.exp: a.wait_vm("w1c1")
            a("s_barrier")
            for x in s2[h:]: self.run(x)
        for j in range(8):
            if "lnpre" in self.exp:
                if j >= 1 and j + 3 <= 7:
                    for x in wr[j + 3]: self.run(x)
                for c in ([4, 5] if j == 0 else [j + 5]):
                    if c in late:
                        for x in late.pop(c): self.run(x)
            elif j + 3 <= 7:
                for x in self.norm_seq(j + 3): self.run(x)
            if j == self.pf2j and "pf2" in self.exp: self.line_prefetch("w2", 242)
            if j == 1: self.h_ssm_load()
            if j == (self.w2j if self.w2s else 4) and not self.noflags:
                self.get_nonce()
            if j == 5:
                if not self.noflags:
                    a("s_lshl_b32 s%d, s%d, 12" % (sT0, sC))
                    a("s_add_u32 s%d, s%d, 0x%x" % (sT0, sT0, F_H1))
                    a("v_and_b32 v2, 31, v1")
                    a("v_lshlrev_b32 v2, 7, v2")
                    a("v_add_u32 v2, s%d, v2" % sT0)
                if self.w2s:
                    skf = a.newlabel("L_w2f")
                    a("s_cmp_lg_u32 s%d, 0" % sRW)
                    a("s_cbranch_scc1 %s" % skf)
                    self.w2flag_loads(tag=None)
                    a.label(skf)
                if not self.noflags:
                    a.vmem("buffer_load_dwordx4 v[96:99], v2, s[%d:%d], 0 offen sc1" % (S_WS, S_WS + 3), "h1f")
            if j + 1 <= 6:
                if j + 2 <= 7 and "hnowrite" not in self.exp: a.need_lds("xw%d" % (j + 2))
                if j == self.w2j and self.w2s: a.wait_vm("w2st")
                a("s_barrier")
                if j == self.w2j and self.w2s:
                    sk = a.newlabel("L_w2c")
                    a("s_cmp_lt_u32 s2, 172")
                    a("s_cselect_b32 s4, s%d, 1" % sRW)
                    a("s_cmp_lg_u32 s4, 0")
                    a("s_cbranch_scc1 %s" % sk)
                    a("s_lshl_b32 s4, s2, 7")
                    a("s_add_u32 s%d, s4, 0x%x" % (sT2, F_H4))
                    q = list(a.vm.q)
                    self.flag_store(sT2, "flag", 2, 3)
                    a.vm.q = q
                    a.label(sk)
                if "itst" in self.exp: self.stamp(23 + j)
        if "hprio" in self.exp: a("s_setprio 0")
        self.h_uload()
        if self.w2s:
            lp = a.newlabel("L_w2p"); dn = a.newlabel("L_w2d")
            a("s_cmp_lg_u32 s%d, 0" % sRW)
            a("s_cbranch_scc1 %s" % dn)
            a("s_mov_b32 s%d, 0" % sT3)
            a.label(lp)
            self.w2flag_check()
            a("s_cbranch_vccz %s" % dn)
            self.w2flag_loads(tag=None)
            a("s_waitcnt vmcnt(0)")
            a("s_add_u32 s%d, s%d, 1" % (sT3, sT3))
            a("s_cmp_lt_u32 s%d, 100000" % sT3)
            a("s_cbranch_scc1 %s" % lp)
            if "pf4" in self.exp:
                lok = a.newlabel("L_w2ok")
                a.lines.pop()
                a("s_cbranch_scc1 %s" % lp)
            a.label(dn)
            if "pf4" in self.exp:
                skp = a.newlabel("L_pf4")
                a("s_cmp_lg_u32 s%d, 0" % sRW)
                a("s_cbranch_scc1 %s" % skp)
                a("s_lshr_b32 s%d, s2, 3" % sT0)
                if "map42" in self.exp:
                    a("s_mul_i32 s%d, s%d, %d" % (sT0, sT0, 172 * 128))
                    a("s_bfe_u32 s%d, s2, 0x10002" % sT1)
                    a("s_mul_i32 s%d, s%d, %d" % (sT1, sT1, 4 * 176128))
                    a("s_add_u32 s%d, s%d, s%d" % (sT0, sT0, sT1))
                    nl = 172
                else:
                    a("s_mul_i32 s%d, s%d, %d" % (sT0, sT0, 344 * 128))
                    nl = 344
                a("s_add_u32 s%d, s%d, 0x%x" % (sT0, sT0, WS_W2S))
                for i in range((nl + 63) // 64):
                    a("v_add_u32 v3, %d, v1" % (64 * i))
                    a("v_min_u32 v3, %d, v3" % (nl - 1))
                    a("v_lshlrev_b32 v3, 7, v3")
                    a("v_add_u32 v3, s%d, v3" % sT0)
                    a("buffer_load_dword v%d, v3, s[%d:%d], 0 offen sc1" % (240 + (i & 3), S_WS, S_WS + 3))
                a.label(skp)
        self.w2_voff()
        a.lg0()
        a("s_barrier")
        self.stamp(2)

    def h_gemm2(self):
        a = self.a
        HF, ACC = 20, 196
        WBUF = [228, 2]
        AB = 244
        PF = 10
        self.jit(4)
        a("s_lshr_b32 s75, s%d, 1" % sRW)
        a("s_and_b32 s76, s%d, 1" % sRW)
        if "poller3" in self.exp:
            lp3 = a.newlabel("L_hp3"); lgo = a.newlabel("L_hgo")
            a("s_cmp_eq_u32 s%d, 3" % sRW)
            a("s_cbranch_scc1 %s" % lp3)
            q0 = list(a.vm.q)
            for m in range(9):
                a("s_add_u32 s%d, s%d, %d" % (sT0, sRW, 3 * m))
                if m == 8: a("s_min_u32 s%d, s%d, 25" % (sT0, sT0))
                a("s_lshr_b32 s%d, s%d, 1" % (sT1, sT0))
                a("s_and_b32 s%d, s%d, 1" % (sT0, sT0))
                a("s_mul_i32 s71, s%d, %d" % (sT0, NB_H))
                a("s_add_u32 s71, s71, s%d" % sT1)
                a("s_lshl_b32 s71, s71, 12")
                a("s_mul_i32 s70, s%d, 22" % sT0)
                a("s_add_u32 s70, s70, s%d" % sT1)
                a("s_lshl_b32 s70, s70, %d" % (12 if self.w2s else 15))
                self.w2_dma(71, L_B, 70, 0, "w2b")
            a("s_branch %s" % lgo)
            a.label(lp3)
            if not self.noflags:
                a("s_lshl_b32 s%d, s%d, 10" % (sT0, sR))
                a("s_add_u32 s%d, s%d, 0x%x" % (sT0, sT0, F_H2))
                self.poll(sT0, 8, 4, 128)
            a("v_mov_b32 v2, %d" % (L_SYNC + 60))
            a("v_mov_b32 v3, 1")
            a("ds_write_b32 v2, v3")
            a.label(lgo)
        else:
            def w2b_slot(m):
                a("s_add_u32 s%d, s%d, %d" % (sT0, sRW, 4 * m))
                if m == 6: a("s_min_u32 s%d, s%d, 25" % (sT0, sT0))
                a("s_lshr_b32 s%d, s%d, 1" % (sT1, sT0))
                a("s_and_b32 s%d, s%d, 1" % (sT0, sT0))
                a("s_mul_i32 s71, s%d, %d" % (sT0, NB_H))
                a("s_add_u32 s71, s71, s%d" % sT1)
                a("s_lshl_b32 s71, s71, 12")
                a("s_mul_i32 s70, s%d, 22" % sT0)
                a("s_add_u32 s70, s70, s%d" % sT1)
                a("s_lshl_b32 s70, s70, %d" % (12 if self.w2s else 15))
                self.w2_dma(71, L_B, 70, 0, "w2b" if m < self.w2p1 else "w2b2")
            self.w2b_slot = w2b_slot
            if "w2early" in self.exp:
                for m in range(4):
                    a("s_add_u32 s%d, s%d, %d" % (sT0, sRW, 4 * m + (4 if m == 0 else 10)))
                    self.w2_slot_dma("w2b")
            else:
                for m in range(self.w2p1):
                    w2b_slot(m)
        a("s_lshl_b32 s%d, s%d, 2" % (sT2, sR))
        a("s_lshl_b32 s4, s76, 1")
        a("s_add_u32 s%d, s%d, s4" % (sT2, sT2))
        a("s_mul_i32 s%d, s%d, 44032" % (sT2, sT2))
        a("s_mul_i32 s4, s75, %d" % (22 * 1024))
        a("s_add_u32 s%d, s%d, s4" % (sT2, sT2))
        a("s_add_u32 s%d, s%d, 0x%x" % (sT2, sT2, WS_H))
        a("v_lshlrev_b32 v18, 4, v1")
        a("v_add_u32 v18, s%d, v18" % sT2)
        a("v_add_u32 v19, 44032, v18")
        a("v_lshrrev_b32 v2, 4, v1")
        a("v_and_b32 v3, 15, v1")
        a("v_lshrrev_b32 v3, 2, v3")
        a("v_lshrrev_b32 v4, 1, v2")
        a("v_lshlrev_b32 v4, 4, v4")
        a("v_and_b32 v5, 1, v2")
        a("v_lshl_add_u32 v4, v5, 2, v4")
        a("v_add_u32 v4, v4, v3")
        a("v_lshlrev_b32 v4, 7, v4")
        a("v_and_b32 v6, 1, v1")
        a("v_lshl_add_u32 v4, v6, 3, v4")
        a("v_lshlrev_b32 v5, 1, v5")
        a("v_lshrrev_b32 v6, 1, v3")
        a("v_add_u32 v5, v5, v6")
        a("v_lshlrev_b32 v5, 1, v5")
        a("v_and_b32 v6, 3, v1")
        a("v_lshrrev_b32 v6, 1, v6")
        a("s_mul_i32 s4, s75, %d" % B_HALF)
        if L_B: a("s_add_u32 s4, s4, %d" % L_B)
        for b in range(4):
            a("v_add_u32 v7, %d, v6" % (2 * b))
            a("v_xor_b32 v7, v7, v5")
            a("v_lshl_add_u32 v7, v7, 4, v4")
            a("v_add_u32 v%d, s4, v7" % (AB + b))
        a("s_mul_i32 s5, s75, %d" % (NA_H * 4096))
        a("s_add_u32 s5, s5, %d" % L_A)
        a("s_sub_u32 s77, s5, s4")
        a("s_sub_u32 s79, s4, s5")
        for i in range(32): a("v_mov_b32 v%d, 0" % (ACC + i))
        if "poller3" in self.exp:
            a("s_mov_b32 s5, %d" % (L_SYNC + 60))
            self.lds_wait(5, 1, 253, 254)
        else:
            self.stamp(5)
            if not self.noflags and "noh2" not in self.exp:
                a("s_lshl_b32 s%d, s%d, 10" % (sT0, sR))
                a("s_add_u32 s%d, s%d, 0x%x" % (sT0, sT0, F_H2))
                self.poll(sT0, 8, 4, 128)
        self.stamp(6)

        def hload(i):
            ops = []
            for t in range(2):
                def f(t=t):
                    r = HF + (i * 2 + t) * 4
                    so = i * 1024
                    if so < 4096:
                        a.vmem("buffer_load_dwordx4 v[%d:%d], v%d, s[%d:%d], 0 offen offset:%d sc1" % (r, r + 3, 18 + t, S_WS, S_WS + 3, so), "h%d" % i)
                    else:
                        if t == 0: a("s_mov_b32 s80, %d" % (so & ~4095))
                        a.vmem("buffer_load_dwordx4 v[%d:%d], v%d, s[%d:%d], s80 offen offset:%d sc1" % (r, r + 3, 18 + t, S_WS, S_WS + 3, so & 4095), "h%d" % i)
                ops.append(f)
            return ops

        def read_ops(i):
            buf = WBUF[i & 1]
            if i < 13: so = i * 4096
            elif i < 19: so = (i - 13) * 4096
            else: so = (i - 19) * 4096
            ops = []
            sw = {13: 77, 19: 79}.get(i)
            if sw:
                for b in range(4): ops.append("v_add_u32 v%d, s%d, v%d" % (AB + b, sw, AB + b))
            for b in range(4):
                for hh in range(2):
                    r0 = buf + 4 * b + 2 * hh
                    ops.append(lambda r0=r0, b=b, hh=hh: a.lds("ds_read_b64_tr_b16 v[%d:%d], v%d offset:%d" % (r0, r0 + 1, AB + b, so + hh * 1024), "w%d_%d" % (i, b)))
            return ops

        def mfma_ops(i):
            buf = WBUF[i & 1]
            ops = []
            for b in range(4):
                for t in range(2):
                    def f(b=b, t=t):
                        if b == 0 and t == 0:
                            a.wait_both("h%d" % i, ["w%d_%d" % (i, bb) for bb in range(4)])
                        acc = ACC + (b * 2 + t) * 4
                        hr = HF + (i * 2 + t) * 4
                        a("v_mfma_f32_16x16x32_bf16 v[%d:%d], v[%d:%d], v[%d:%d], v[%d:%d]" % (acc, acc + 3, buf + 4 * b, buf + 4 * b + 3, hr, hr + 3, acc, acc + 3))
                    ops.append(f)
            return ops

        self.jit(5)
        allh = []
        for i in range(22): allh += hload(i)
        hp = 0
        for f in allh[:self.hinit]: f()
        hp = self.hinit
        for m in range(self.w2p1, 7):
            self.w2b_slot(m)
        a("s_waitcnt vmcnt(%d)" % min(63, self.hinit + 4 * (7 - self.w2p1)))
        self.m_sync(11, va=253, vb=254)
        self.stamp(19)
        for f in read_ops(0): self.run(f)
        last = a.newlabel("L_g2l")
        for i in range(22):
            if i == 6: self.jit(9)
            if i == 12:
                a.lg0()
                a("s_barrier")
            if i == 18:
                a.lg0()
                a("s_barrier")
            if self.w2p1 < 7 and i == 2 * self.w2p1 - 1:
                a.wait_vm("w2b2")
                self.m_sync(10, va=253, vb=254)
            if i == 11 and "xearly" in self.exp:
                self.final_x_load(self.XR, self.OA, 253, 254)
            if i == 4:
                a("v_mov_b32 v253, %d" % (L_SYNC + 56))
                a("v_mov_b32 v254, 1")
                a("s_mov_b64 exec, 1")
                a.lds("ds_add_u32 v253, v254", "sig")
                a("s_mov_b64 exec, -1")
            if i == 21:
                a("s_cmp_eq_u32 s75, 1")
                a("s_cbranch_scc1 %s" % last)
            fill = []
            if i < 21: fill += read_ops(i + 1)
            nl = self.hper if hp < 2 * (i + self.hwin) else 2
            nl = min(nl, len(allh) - hp)
            fill = allh[hp:hp + nl] + fill
            hp += nl
            interleave(a, mfma_ops(i), fill)
        a.label(last)
        a.lg0()
        self.stamp(22)
        a("v_and_b32 v2, 15, v1")
        a("v_lshrrev_b32 v3, 4, v1")
        a("v_mul_u32_u24 v2, 272, v2")
        a("v_lshl_add_u32 v2, v3, 4, v2")
        a("s_mul_i32 s4, s75, %d" % P_STRIDE)
        a("s_mul_i32 s5, s76, %d" % (32 * 272))
        a("s_add_u32 s4, s4, s5")
        a("s_add_u32 s4, s4, %d" % L_P)
        a("v_add_u32 v2, s4, v2")
        for b in range(4):
            for t in range(2):
                acc = ACC + (b * 2 + t) * 4
                a("ds_write_b128 v2, v[%d:%d] offset:%d" % (acc, acc + 3, t * 16 * 272 + b * 64))
        if "xearly" not in self.exp: self.final_x_load(self.XR, self.OA)
        a.lg0()
        a("s_barrier")

    def final(self):
        a = self.a
        P0 = L_P; P1 = L_P + P_STRIDE; YL = L_Y
        XR = self.XR; OA = self.OA
        a("s_and_b32 s%d, s%d, 3" % (sT0, sW))
        a("s_lshr_b32 s%d, s%d, 2" % (sT1, sW))
        a("v_lshrrev_b32 v2, 2, v1")
        a("v_and_b32 v3, 3, v1")
        a("s_lshl_b32 s4, s%d, 4" % sT0)
        a("v_add_u32 v2, s4, v2")
        a("v_mul_u32_u24 v4, 272, v2")
        a("v_lshl_add_u32 v4, v3, 5, v4")
        a("s_lshl_b32 s4, s%d, 7" % sT1)
        a("s_add_u32 s4, s4, %d" % P0)
        a("v_add_u32 v4, s4, v4")
        a("ds_read_b128 v[20:23], v4")
        a("ds_read_b128 v[24:27], v4 offset:16")
        a("ds_read_b128 v[28:31], v4 offset:%d" % (P1 - P0))
        a("ds_read_b128 v[32:35], v4 offset:%d" % (P1 - P0 + 16))
        a("v_lshlrev_b32 v6, 3, v2")
        a("v_add_u32 v6, %d, v6" % L_STATS)
        a("ds_read_b64 v[36:37], v6")
        a("v_lshrrev_b32 v7, 4, v1")
        a("v_lshlrev_b32 v7, 3, v7")
        a("v_and_b32 v8, 15, v1")
        a("v_lshrrev_b32 v8, 2, v8")
        a("v_add_u32 v7, v7, v8")
        a("s_lshl_b32 s4, s%d, 5" % sT1)
        a("v_add_u32 v7, s4, v7")
        a("v_mul_u32_u24 v7, 144, v7")
        a("v_and_b32 v8, 3, v1")
        a("v_lshl_add_u32 v7, v8, 3, v7")
        a("s_lshl_b32 s4, s%d, 5" % sT0)
        a("s_add_u32 s4, s4, %d" % YL)
        a("v_add_u32 v7, s4, v7")
        a("ds_read_b64_tr_b16 v[38:39], v7")
        a("ds_read_b64_tr_b16 v[40:41], v7 offset:%d" % (4 * 144))
        a("v_and_b32 v8, 3, v1")
        a("v_lshlrev_b32 v8, 4, v8")
        a("v_lshrrev_b32 v9, 2, v1")
        a("v_or_b32 v8, v8, v9")
        a("v_lshlrev_b32 v8, 2, v8")
        a("v_mov_b32 v10, 0xbfb8aa3b")
        a("v_mov_b32 v11, 1.0")
        a("s_waitcnt lgkmcnt(0)")
        for i in range(4):
            a("ds_bpermute_b32 v%d, v8, v%d" % (42 + i, 38 + i))
        for i in range(8):
            a("v_add_f32 v%d, v%d, v%d" % (20 + i, 20 + i, 28 + i))
        for i in range(4):
            a("v_cvt_pk_bf16_f32 v%d, v%d, v%d" % (28 + i, 20 + 2 * i, 21 + 2 * i))
        for i in range(4):
            a("v_alignbit_b32 v%d, v%d, 0, 16" % (20 + 2 * i, 28 + i))
            a("v_and_b32 v%d, v%d, v%d" % (21 + 2 * i, vMHI, 28 + i))
        for i in range(8):
            a("v_mul_f32 v%d, v10, v%d" % (48 + i, 20 + i))
        for i in range(8):
            a("v_exp_f32 v%d, v%d" % (48 + i, 48 + i))
        a("s_waitcnt vmcnt(0)")
        a("v_sub_f32 v12, 0, v36")
        for i in range(4):
            a("v_dot2_f32_bf16 v%d, v%d, v%d, v12" % (72 + 2 * i, XR + i, vONELO))
            a("v_dot2_f32_bf16 v%d, v%d, v%d, v12" % (73 + 2 * i, XR + i, vONEHI))
        for i in range(8):
            a("v_add_f32 v%d, v11, v%d" % (48 + i, 48 + i))
        for i in range(4):
            a("v_cvt_pk_bf16_f32 v%d, v%d, v%d" % (80 + i, 72 + 2 * i, 73 + 2 * i))
        for i in range(8):
            a("v_rcp_f32 v%d, v%d" % (48 + i, 48 + i))
        for i in range(4):
            a("v_alignbit_b32 v%d, v%d, 0, 16" % (72 + 2 * i, 80 + i))
            a("v_and_b32 v%d, v%d, v%d" % (73 + 2 * i, vMHI, 80 + i))
        for i in range(8):
            a("v_mul_f32 v%d, v%d, v37" % (72 + i, 72 + i))
        for i in range(8):
            a("v_mul_f32 v%d, v%d, v%d" % (20 + i, 20 + i, 48 + i))
        if "relax_fin" in self.exp:
            a("s_waitcnt lgkmcnt(0)")
            for i in range(4):
                a("v_alignbit_b32 v%d, v%d, 0, 16" % (56 + 2 * i, 42 + i))
                a("v_and_b32 v%d, v%d, v%d" % (57 + 2 * i, vMHI, 42 + i))
                a("v_alignbit_b32 v%d, v%d, 0, 16" % (88 + 2 * i, XR + i))
                a("v_and_b32 v%d, v%d, v%d" % (89 + 2 * i, vMHI, XR + i))
            for i in range(8):
                a("v_mul_f32 v%d, v%d, v%d" % (72 + i, 72 + i, 56 + i))
            for i in range(8):
                a("v_fma_f32 v%d, v%d, v%d, v%d" % (72 + i, 72 + i, 20 + i, 88 + i))
            for i in range(4):
                a("v_cvt_pk_bf16_f32 v%d, v%d, v%d" % (80 + i, 72 + 2 * i, 73 + 2 * i))
        else:
            for i in range(4):
                a("v_cvt_pk_bf16_f32 v%d, v%d, v%d" % (80 + i, 72 + 2 * i, 73 + 2 * i))
            for i in range(4):
                a("v_cvt_pk_bf16_f32 v%d, v%d, v%d" % (28 + i, 20 + 2 * i, 21 + 2 * i))
            a("s_waitcnt lgkmcnt(0)")
            for i in range(4):
                a("v_and_b32 v%d, v%d, v%d" % (56 + 2 * i, vMLO, 42 + i))
                a("v_and_b32 v%d, v%d, v%d" % (57 + 2 * i, vMHI, 42 + i))
                a("v_and_b32 v%d, v%d, v%d" % (64 + 2 * i, vMLO, 28 + i))
                a("v_and_b32 v%d, v%d, v%d" % (65 + 2 * i, vMHI, 28 + i))
            for i in range(4):
                a("v_dot2_f32_bf16 v%d, v%d, v%d, 0" % (72 + 2 * i, 80 + i, 56 + 2 * i))
                a("v_dot2_f32_bf16 v%d, v%d, v%d, 0" % (73 + 2 * i, 80 + i, 57 + 2 * i))
            for i in range(4):
                a("v_alignbit_b32 v%d, v%d, 0, 16" % (88 + 2 * i, XR + i))
                a("v_and_b32 v%d, v%d, v%d" % (89 + 2 * i, vMHI, XR + i))
            for i in range(4):
                a("v_cvt_pk_bf16_f32 v%d, v%d, v%d" % (80 + i, 72 + 2 * i, 73 + 2 * i))
            for i in range(4):
                a("v_dot2_f32_bf16 v%d, v%d, v%d, 0" % (72 + 2 * i, 80 + i, 64 + 2 * i))
                a("v_dot2_f32_bf16 v%d, v%d, v%d, 0" % (73 + 2 * i, 80 + i, 65 + 2 * i))
            for i in range(4):
                a("v_cvt_pk_bf16_f32 v%d, v%d, v%d" % (80 + i, 72 + 2 * i, 73 + 2 * i))
            for i in range(4):
                a("v_dot2_f32_bf16 v%d, v%d, v%d, v%d" % (72 + 2 * i, 80 + i, vONELO, 88 + 2 * i))
                a("v_dot2_f32_bf16 v%d, v%d, v%d, v%d" % (73 + 2 * i, 80 + i, vONEHI, 89 + 2 * i))
            for i in range(4):
                a("v_cvt_pk_bf16_f32 v%d, v%d, v%d" % (80 + i, 72 + 2 * i, 73 + 2 * i))
        fl = " sc1" if "outsc1" in self.exp else (" nt" if "outnt" in self.exp else (" sc0 sc1" if "outsc01" in self.exp else ""))
        a("buffer_store_dwordx4 v[80:83], v%d, s[%d:%d], 0 offen%s" % (OA, S_OUT, S_OUT + 3, fl))

    def build(self):
        a = self.a
        self.p0()
        self.m_front()
        self.stamp(1)
        self.m_prep()
        self.stamp(10)
        self.m_gemm1()
        self.stamp(4)
        self.m_conv()
        self.m_tail()
        a("s_branch L_final")
        a.label("L_H")
        self.h_front()
        self.stamp(1)
        self.h_stats()
        self.stamp(11)
        self.h_gemm1_side()
        self.h_gemm2()
        a.label("L_final")
        a.lg_clear()
        self.stamp(8)
        self.final()
        self.stamp(9)
        self.dump_stamps()
        if "noendwait" not in self.exp: a("s_waitcnt vmcnt(0)")
        a.label("L_end")
        a("s_endpgm")
        if "yearly" in self.exp and not self.noflags:
            self.y_slow()
        a.label("L_codeend")
        a("s_endpgm")
        lines, n = hazard.fix(a.lines)
        self.nnops = n
        hdr = """; Fused H3-style block: out = x + (LN(x) * (longconv(kv) + kv*D)) * silu(relu(LN(x) W1) W2),  kv = shiftconv(k) * v
; Kernarg (8-byte pointers): 0 x(A_q) 8 k 16 v 24 shift_k 32 ssm_k 40 ssm_D 48 B_x(unused) 56 w1 64 w2 72 out 80 debug 88 ws
; One persistent launch, 256 workgroups (one per CU, all co-resident: 160 KiB LDS each), 8 waves:
;   waves 0-3 ("M"): kv prep, GEMM1 MFMAs, long conv (Toeplitz MFMA), helper DMA ; waves 4-7 ("H"): LayerNorm, T/U staging, GEMM2.
; Cross-workgroup hand-offs (kv^T, h, y^T) go through d_ws with write-through stores + per-wave flags tagged with a
; per-launch nonce that workgroup 0 publishes in d_debug[0]; every spin is bounded.
; @launch grid=(256,1,1) block=(512,1,1) lds=%d
.amdgcn_target "amdgcn-amd-amdhsa--gfx950"
.text
.globl %s
.p2align 8
.type %s,@function
%s:
""" % (LDS_SIZE, KNAME, KNAME, KNAME)
        ftr = """.section .rodata,"a"
.p2align 6
.amdhsa_kernel %s
  .amdhsa_next_free_vgpr 256
  .amdhsa_next_free_sgpr 102
  .amdhsa_accum_offset 256
  .amdhsa_group_segment_fixed_size 0
  .amdhsa_kernarg_size 96
  .amdhsa_user_sgpr_count 2
  .amdhsa_user_sgpr_kernarg_segment_ptr 1
  .amdhsa_system_sgpr_workgroup_id_x 1
.end_amdhsa_kernel
""" % KNAME
        return hdr + "\n".join(lines) + "\n" + ftr

if __name__ == "__main__":
    import argparse
    ap = argparse.ArgumentParser()
    ap.add_argument("-o", default="k.s")
    ap.add_argument("--stamps", action="store_true")
    ap.add_argument("--noflags", action="store_true")
    ap.add_argument("--exp", default="")
    args = ap.parse_args()
    g = Gen(stamps=args.stamps, noflags=args.noflags, exp=args.exp)
    txt = g.build()
    open(args.o, "w").write(txt)
    print("wrote", args.o, len(txt.splitlines()), "lines; hazard nops:", g.nnops)
```

```python
import sys
from emit import *
import hazard

KNAME = "recurrent_scan__ssm_conv_h3__dense_activation_relu__prompt_kernel"

WS_KVT = 0
WS_YT = 2 << 20
WS_H = 4 << 20
WS_FLAG = 10 << 20
F_H1 = WS_FLAG
F_H2 = WS_FLAG + 32768
F_H3 = WS_FLAG + 65536
F_H4 = WS_FLAG + 98304
WS_STAMP = WS_FLAG + (256 << 10)
WS_W2S = 12 << 20
WS_SIZE = 16 << 20

L_XN = 0
NXN = 4
L_W1 = 32768
W1_SLOT = 24576
NW1 = 5
L_PREP = L_W1 + 4 * W1_SLOT
L_A = L_W1 + 3 * W1_SLOT
NA_H = 6
L_T = L_A + 8
T_CH = 16640
T_CP = 4160
L_U = L_A + 33408
U_CH = 4608
L_B = 0
NB_H = 13
B_HALF = NB_H * 4096
L_Y = 16384
L_P = L_B + 7 * 4096
P_STRIDE = B_HALF
L_STATS = 161792
L_SYNC = 162304
LDS_SIZE = 163840
assert L_U % 16 == 0 and L_U + 2 * U_CH <= L_W1 + 5 * W1_SLOT and L_T + 2 * T_CH <= L_U
assert L_A + 2 * NA_H * 4096 <= L_STATS and 2 * B_HALF <= L_A and L_W1 + NW1 * W1_SLOT <= L_STATS

S_X, S_K, S_V, S_W1, S_W2, S_OUT, S_SSM, S_WS, S_SH, S_DBG = 8, 12, 16, 20, 24, 28, 32, 36, 40, 44
sR, sC, sW, sNONCE = 48, 49, 50, 51
sF0, sBP, sNB = 52, 53, 54
sT0, sT1, sT2, sT3 = 55, 56, 57, 58
sRW = 59
sEX = 60
sROT = 62
sDP = 64
sDD = 66
sM0B = 67
sP0, sP1 = 68, 69
sUOK = 72
sID = 81
sD = 85
sINV1, sINV2 = 73, 74
vMLO, vMHI, vONELO, vONEHI, vONES = 248, 249, 250, 251, 252

def merge(*lists):
    lists = [l for l in lists if l]
    tot = sum(len(l) for l in lists)
    out = []; idx = [0] * len(lists)
    for s in range(tot):
        best = min((i for i in range(len(lists)) if idx[i] < len(lists[i])), key=lambda i: (idx[i] + 0.5) / len(lists[i]))
        out.append(lists[best][idx[best]]); idx[best] += 1
    return out

class Gen:
    def __init__(self, stamps=False, noflags=False, exp=""):
        self.exp = set(exp.split(",")) if exp else set()
        self.a = Asm()
        self.stamps = stamps
        self.noflags = noflags
        self.relax_ln = "relax_ln" in self.exp
        self.stampset = None
        self.h2n = 75
        self.lnk = 8
        for e in self.exp:
            if e.startswith('lnk='): self.lnk = int(e[4:])
        self.pfw_r0 = 192
        self.pfd = 0
        for e in self.exp:
            if e.startswith('pfd='): self.pfd = int(e[4:])
        for e in self.exp:
            if e.startswith('r0='): self.pfw_r0 = int(e[3:])
        self.XR, self.OA = (84, 96) if 'xearly' in self.exp else (240, 244)
        self.h1j = 0
        self.w2p1 = 7
        for e in self.exp:
            if e.startswith('p1='): self.w2p1 = int(e[3:])
        for e in self.exp:
            if e.startswith('h1j='): self.h1j = int(e[4:])
        self.w2j = 0
        self.w2s = 'w2s' in self.exp
        self.KS = 4096 if self.w2s else 32768
        self.pf2j = 0
        for e in self.exp:
            if e.startswith('pj='): self.pf2j = int(e[3:])
            if e.startswith('h2n='): self.h2n = int(e[4:])
        self.hwin = 22; self.hper = 6; self.hinit = 12
        for e in self.exp:
            if e.startswith('hw='): self.hwin, self.hper, self.hinit = [int(x) for x in e[3:].split('+')]
        for e in self.exp:
            if e.startswith("st="):
                self.stampset = set(int(x) for x in e[3:].split("+"))

    def stamp(self, idx):
        if not self.stamps: return
        if self.stampset is not None and idx not in self.stampset: return
        a = self.a
        a("s_memrealtime s[4:5]")
        if "clk" in self.exp and idx in (14, 2, 4, 16):
            a("s_memtime s[6:7]")
        a.lg0()
        a("v_writelane_b32 v255, s4, %d" % idx)
        if "clk" in self.exp and idx in (14, 2, 4, 16):
            a("v_writelane_b32 v255, s6, %d" % {14: 29, 2: 30, 4: 31, 16: 15}[idx])

    def dump_stamps(self):
        if not self.stamps: return
        a = self.a
        if "entry" in self.exp:
            a("v_writelane_b32 v255, s90, 31")
        if "dbgst" in self.exp:
            sk = a.newlabel("L_ds")
            a("s_or_b32 s4, s2, s%d" % sW)
            a("s_cmp_lg_u32 s4, 0")
            a("s_cbranch_scc1 %s" % sk)
            a("v_readlane_b32 s4, v255, 0")
            a("s_nop 3")
            a("v_subrev_u32 v3, s4, v255")
            order = [12, 10, 14, 2, 4, 16, 17, 18, 7, 8, 9]
            for k, i in enumerate(order):
                a("v_readlane_b32 s5, v3, %d" % i)
                a("s_nop 3")
                a("v_mov_b32 v4, s5")
                a("v_mov_b32 v5, %d" % (4 * (k + 1)))
                a("s_mov_b64 exec, 1")
                a("buffer_store_dword v4, v5, s[%d:%d], 0 offen" % (S_DBG, S_DBG + 3))
                a("s_mov_b64 exec, -1")
            a.label(sk)
        a("s_lshl_b32 s%d, s2, 3" % sT0)
        a("s_add_u32 s%d, s%d, s%d" % (sT0, sT0, sW))
        a("s_lshl_b32 s%d, s%d, 7" % (sT0, sT0))
        a("s_add_u32 s%d, s%d, 0x%x" % (sT0, sT0, WS_STAMP))
        a("v_lshlrev_b32 v2, 2, v1")
        a("v_add_u32 v2, s%d, v2" % sT0)
        a("s_mov_b32 exec_lo, -1")
        a("s_mov_b32 exec_hi, 0")
        a("buffer_store_dword v255, v2, s[%d:%d], 0 offen" % (S_WS, S_WS + 3))
        a("s_mov_b64 exec, -1")

    def jit(self, point):
        for e in self.exp:
            if e.startswith("jit="):
                P, N, M = [int(x) for x in e[4:].split("+")]
                if P != point: continue
                a = self.a
                sk = a.newlabel("L_jit")
                if M:
                    a("s_xor_b32 s92, s2, s%d" % sW)
                    a("s_and_b32 s92, s92, %d" % M)
                    a("s_cmp_eq_u32 s92, 0")
                    a("s_cbranch_scc1 %s" % sk)
                for _ in range(N // 100): a("s_sleep 100")
                a("s_sleep %d" % (N % 100))
                a.label(sk)

    def run(self, x):
        if callable(x): x()
        else: self.a(x)

    def spread(self, seq, extra):
        a = self.a
        if not extra:
            for x in seq: self.run(x)
            return
        step = max(1, len(seq) // (len(extra) + 1))
        k = 0
        for i, ins in enumerate(seq):
            self.run(ins)
            if (i + 1) % step == 0 and k < len(extra):
                self.run(extra[k]); k += 1
        while k < len(extra):
            self.run(extra[k]); k += 1

    def map_rc(self):
        a = self.a
        if "map42" in self.exp:
            a("s_and_b32 s%d, s2, 3" % sR)
            a("s_lshl_b32 s%d, s%d, 3" % (sR, sR))
            a("s_bfe_u32 s3, s2, 0x30003")
            a("s_add_u32 s%d, s%d, s3" % (sR, sR))
            a("s_bfe_u32 s%d, s2, 0x10002" % sC)
            a("s_lshl_b32 s%d, s%d, 2" % (sC, sC))
            a("s_lshr_b32 s3, s2, 6")
            a("s_add_u32 s%d, s%d, s3" % (sC, sC))
        else:
            a("s_and_b32 s%d, s2, 7" % sR)
            a("s_lshr_b32 s3, s2, 6")
            a("s_lshl_b32 s3, s3, 3")
            a("s_add_u32 s%d, s%d, s3" % (sR, sR))
            a("s_bfe_u32 s%d, s2, 0x30003" % sC)

    def rot_calc(self):
        a = self.a
        if "norot" in self.exp: return
        if "map42" in self.exp:
            a("s_lshl_b32 s%d, s%d, 1" % (sT0, sC))
            a("s_add_u32 s%d, s%d, s%d" % (sT0, sT0, sR))
            a("s_and_b32 s%d, s%d, 7" % (sROT, sT0))
        else:
            a("s_lshr_b32 s%d, s%d, 3" % (sT0, sR))
            a("s_lshl_b32 s%d, s%d, 1" % (sT0, sT0))
            a("s_add_u32 s%d, s%d, s%d" % (sT0, sT0, sC))
            a("s_add_u32 s%d, s%d, s%d" % (sT0, sT0, sR))
            a("s_and_b32 s%d, s%d, 7" % (sROT, sT0))
        if "norot" in self.exp: a("s_mov_b32 s%d, 0" % sROT)

    def p0(self):
        a = self.a
        if self.stamps and "entry" in self.exp:
            a("s_memrealtime s[90:91]")
        a("s_load_dwordx8 s[64:71], s[0:1], 0")
        a("s_cmp_ge_u32 s2, 256")
        a("s_cbranch_scc1 L_end")
        if self.stamps: a("v_mov_b32 v255, 0")
        a("v_lshrrev_b32 v2, 6, v0")
        a("v_and_b32 v1, 63, v0")
        if "codepf0" in self.exp:
            a("s_getpc_b64 s[82:83]")
            a.label("L_pc")
            a("s_sub_u32 s82, s82, L_pc-%s" % KNAME)
            a("s_subb_u32 s83, s83, 0")
            a("v_and_b32 v4, 255, v0")
            a("v_lshlrev_b32 v4, 7, v4")
            a("v_min_u32 v4, L_codeend-%s, v4" % KNAME)
            a("v_mov_b32 v5, s83")
            a("v_add_co_u32 v4, vcc, s82, v4")
            a("v_addc_co_u32 v5, vcc, 0, v5, vcc")
            a.vmem("global_load_dword v244, v[4:5], off", "cpf")
        self.map_rc()
        a("v_readfirstlane_b32 s%d, v2" % sW)
        a("s_mov_b32 s10, 0x200000")
        a("s_mov_b32 s11, 0x00020000")
        a("s_mov_b32 s14, 0x200000")
        a("s_mov_b32 s15, 0x00020000")
        a("s_mov_b32 s18, 0x200000")
        a("s_mov_b32 s19, 0x00020000")
        a("s_movk_i32 s42, 0x1000")
        a("s_mov_b32 s43, 0x00020000")
        a("s_and_b32 s%d, s%d, 3" % (sRW, sW))
        a("s_cmp_ge_u32 s%d, 4" % sW)
        a("s_cbranch_scc1 L_Hfirst")

    def p0_rest(self):
        a = self.a
        for dst, off in ((S_W1, 56), (S_SSM, 32), (S_WS, 88), (S_DBG, 80), (S_W2, 64), (S_OUT, 72), (sDP, 40)):
            a("s_load_dwordx2 s[%d:%d], s[0:1], %d" % (dst, dst + 1, off))
        for dst, size in ((S_W1, 1409024), (S_SSM, 2097152), (S_WS, WS_SIZE), (S_DBG, 256), (S_W2, 1409024), (S_OUT, 2097152)):
            a("s_mov_b32 s%d, 0x%x" % (dst + 2, size))
            a("s_mov_b32 s%d, 0x00020000" % (dst + 3))
        if "dshift" in self.exp:
            a("s_add_u32 s%d, s%d, 1" % (sD, sC))
            a("s_and_b32 s%d, s%d, 7" % (sD, sD))
        else:
            a("s_mov_b32 s%d, s%d" % (sD, sC))
        a("s_lshl_b32 s%d, s%d, 5" % (sID, sC))
        a("s_add_u32 s%d, s%d, s%d" % (sID, sID, sR))
        a("s_mul_i32 s%d, s%d, 6" % (sBP, sC))
        a("s_sub_i32 s%d, s%d, 3" % (sT0, sC))
        a("s_max_i32 s%d, s%d, 0" % (sT0, sT0))
        a("s_sub_u32 s%d, s%d, s%d" % (sBP, sBP, sT0))
        a("s_lshl_b32 s%d, s%d, 5" % (sF0, sBP))
        a("s_cmp_lt_u32 s%d, 3" % sC)
        a("s_cselect_b32 s%d, 12, 10" % sNB)
        a("v_mov_b32 v%d, 0xffff" % vMLO)
        a("v_mov_b32 v%d, 0xffff0000" % vMHI)
        a("v_mov_b32 v%d, 0x3f80" % vONELO)
        a("v_mov_b32 v%d, 0x3f800000" % vONEHI)
        a("v_mov_b32 v%d, 0x3f803f80" % vONES)
        a("s_mov_b32 s%d, 0x05040100" % sP0)
        a("s_mov_b32 s%d, 0x07060302" % sP1)
        a("v_and_b32 v3, 15, v0")
        a("v_lshlrev_b32 v3, 2, v3")
        a("v_add_u32 v3, %d, v3" % L_SYNC)
        a("v_mov_b32 v4, 0")
        a("ds_write_b32 v3, v4")

    def w1_dma_ops(self, j):
        a = self.a
        slot = j % NW1
        ops = []
        def head():
            if "norot" in self.exp:
                a("s_mov_b32 s%d, %d" % (sT1, j * 64 * 2752))
            else:
                a("s_add_u32 s%d, s%d, %d" % (sT1, sROT, j))
                a("s_and_b32 s%d, s%d, 7" % (sT1, sT1))
                a("s_mul_i32 s%d, s%d, %d" % (sT1, sT1, 64 * 2752))
            a("s_add_u32 m0, s%d, %d" % (sM0B, slot * W1_SLOT))
            a.vmem("buffer_load_dwordx4 v12, s[%d:%d], s%d offen lds" % (S_W1, S_W1 + 3, sT1), "w1c%d" % j)
        ops.append(head)
        for i in range(1, 6):
            def nxt(i=i):
                a("s_add_u32 m0, s%d, %d" % (sM0B, slot * W1_SLOT + 1024 * i))
                a.vmem("buffer_load_dwordx4 v%d, s[%d:%d], s%d offen lds" % (12 + i, S_W1, S_W1 + 3, sT1), "w1c%d" % j)
            ops.append(nxt)
        return ops

    def w1_voffs(self):
        a = self.a
        V = 12
        a("s_mul_i32 s%d, s%d, %d" % (sT0, sRW, 16 * 2752))
        a("s_lshl_b32 s%d, s%d, 1" % (sT1, sF0))
        a("s_add_u32 s%d, s%d, s%d" % (sT0, sT0, sT1))
        a("s_lshl_b32 s%d, s%d, 1" % (sT1, sNB))
        a("v_mov_b32 v7, 0x40000000")
        for i in range(6):
            a("v_add_u32 v2, %d, v1" % (64 * i))
            a("v_mul_u32_u24 v3, 2731, v2")
            a("v_lshrrev_b32 v3, 16, v3")
            a("v_mul_u32_u24 v4, 24, v3")
            a("v_sub_u32 v4, v2, v4")
            a("v_and_b32 v5, 2, v3")
            a("v_lshrrev_b32 v6, 1, v3")
            a("v_and_b32 v6, 4, v6")
            a("v_or_b32 v5, v5, v6")
            a("v_xor_b32 v4, v4, v5")
            a("v_mul_u32_u24 v5, 2752, v3")
            a("v_lshl_add_u32 v5, v4, 4, v5")
            a("v_add_u32 v5, s%d, v5" % sT0)
            a("v_cmp_gt_u32 vcc, s%d, v4" % sT1)
            a("v_cndmask_b32 v%d, v7, v5, vcc" % (V + i))
        a("s_mul_i32 s%d, s%d, %d" % (sM0B, sRW, 16 * 384))
        a("s_add_u32 s%d, s%d, %d" % (sM0B, sM0B, L_W1))

    def line_prefetch(self, which, vd):
        a = self.a
        a("s_lshr_b32 s%d, s2, 3" % sT0)
        a("v_and_b32 v2, 255, v0")
        if "map42" not in self.exp:
            srd = S_W1 if which == "w1" else S_W2
            a("s_mul_i32 s%d, s%d, %d" % (sT0, sT0, 344 * 128))
            a("v_lshlrev_b32 v3, 7, v2")
            a("v_add_u32 v3, s%d, v3" % sT0)
            a.vmem("buffer_load_dword v%d, v3, s[%d:%d], 0 offen" % (vd, srd, srd + 3), "pf")
            a("v_cmp_gt_u32 vcc, %d, v2" % (344 - 256))
            a("v_add_u32 v3, 32768, v3")
            a("v_mov_b32 v4, 0x40000000")
            a("v_cndmask_b32 v3, v4, v3, vcc")
            a.vmem("buffer_load_dword v%d, v3, s[%d:%d], 0 offen" % (vd + 1, srd, srd + 3), "pf")
        elif which == "w2":
            a("s_mul_i32 s%d, s%d, 43" % (sT0, sT0))
            a("s_bfe_u32 s%d, s2, 0x10002" % sT1)
            a("s_lshl_b32 s%d, s%d, 9" % (sT1, sT1))
            a("s_lshl_b32 s%d, s%d, 10" % (sT0, sT0))
            a("s_add_u32 s%d, s%d, s%d" % (sT0, sT0, sT1))
            a("v_lshrrev_b32 v3, 2, v2")
            a("v_lshlrev_b32 v3, 10, v3")
            a("v_and_b32 v4, 3, v2")
            a("v_lshl_add_u32 v3, v4, 7, v3")
            a("v_add_u32 v3, s%d, v3" % sT0)
            a("v_cmp_gt_u32 vcc, 172, v2")
            a("v_mov_b32 v4, 0x40000000")
            a("v_cndmask_b32 v3, v4, v3, vcc")
            a.vmem("buffer_load_dword v%d, v3, s[%d:%d], 0 offen" % (vd, S_W2, S_W2 + 3), "pf")
        else:
            a("s_lshl_b32 s%d, s%d, 4" % (sT0, sT0))
            a("s_mul_i32 s%d, s%d, 2752" % (sT0, sT0))
            a("s_bfe_u32 s%d, s2, 0x10002" % sT1)
            a("s_mul_i32 s%d, s%d, 1472" % (sT1, sT1))
            a("s_add_u32 s%d, s%d, s%d" % (sT0, sT0, sT1))
            a("v_mul_u32_u24 v3, 5462, v2")
            a("v_lshrrev_b32 v3, 16, v3")
            a("v_mul_u32_u24 v4, 12, v3")
            a("v_sub_u32 v4, v2, v4")
            a("v_mul_u32_u24 v3, 2752, v3")
            a("v_lshl_add_u32 v3, v4, 7, v3")
            a("v_add_u32 v3, s%d, v3" % sT0)
            a("v_cmp_gt_u32 vcc, 192, v2")
            a("v_mov_b32 v4, 0x40000000")
            a("v_cndmask_b32 v3, v4, v3, vcc")
            a.vmem("buffer_load_dword v%d, v3, s[%d:%d], 0 offen" % (vd, S_W1, S_W1 + 3), "pf")

    def w1_tail_prefetch(self, vd):
        a = self.a
        a("s_lshr_b32 s%d, s2, 3" % sT0)
        r0 = self.pfw_r0; per = (512 - r0) // 32
        a("s_mul_i32 s%d, s%d, %d" % (sT0, sT0, per))
        a("s_add_u32 s%d, s%d, %d" % (sT0, sT0, r0))
        a("s_mul_i32 s%d, s%d, 2752" % (sT0, sT0))
        a("s_bfe_u32 s%d, s2, 0x10002" % sT1)
        a("s_mul_i32 s%d, s%d, 1472" % (sT1, sT1))
        a("s_add_u32 s%d, s%d, s%d" % (sT0, sT0, sT1))
        a("v_and_b32 v2, 255, v0")
        a("v_mul_u32_u24 v3, 5462, v2")
        a("v_lshrrev_b32 v3, 16, v3")
        a("v_mul_u32_u24 v4, 12, v3")
        a("v_sub_u32 v4, v2, v4")
        a("v_mul_u32_u24 v3, 2752, v3")
        a("v_lshl_add_u32 v3, v4, 7, v3")
        a("v_add_u32 v3, s%d, v3" % sT0)
        a("v_cmp_gt_u32 vcc, %d, v2" % (12 * per))
        a("v_mov_b32 v4, 0x40000000")
        a("v_cndmask_b32 v3, v4, v3, vcc")
        a.vmem("buffer_load_dword v%d, v3, s[%d:%d], 0 offen" % (vd, S_W1, S_W1 + 3), "pf")

    def m_front(self):
        a = self.a
        a("v_lshrrev_b32 v3, 5, v0")
        a("v_and_b32 v4, 31, v0")
        a("s_lshl_b32 s%d, s%d, 16" % (sT0, sR))
        a("s_lshl_b32 s%d, s%d, 7" % (sT1, sC))
        a("s_add_u32 s%d, s%d, s%d" % (sT0, sT0, sT1))
        a("v_lshlrev_b32 v2, 13, v3")
        a("v_lshl_add_u32 v2, v4, 2, v2")
        a("v_add_u32 v2, s%d, v2" % sT0)
        a("v_add_u32 v5, 0xfffff400, v2")
        a("v_add_u32 v6, 0xfffff800, v2")
        a("v_add_u32 v7, 0xfffffc00, v2")
        a("v_add_u32 v8, 4096, v2")
        a("s_lshl_b32 s%d, s%d, 9" % (sT2, sC))
        a("v_lshlrev_b32 v9, 4, v4")
        a("v_add_u32 v9, s%d, v9" % sT2)
        a.lg0()
        a("s_mov_b64 s[12:13], s[66:67]")
        a("s_mov_b64 s[16:17], s[68:69]")
        a("s_mov_b64 s[40:41], s[70:71]")
        a("s_mov_b64 s[8:9], s[64:65]")
        if self.stamps:
            a("s_memrealtime s[4:5]"); a.lg0(); a("v_writelane_b32 v255, s4, 0")
        K, V, SH = 20, 32, 40
        if "noprep" in self.exp:
            a.vm.issue("prep")
        else:
          for t, r in enumerate((5, 6, 7)):
            a.vmem("buffer_load_dword v%d, v%d, s[%d:%d], 0 offen" % (K + t, r, S_K, S_K + 3), "prep")
          for t in range(8):
            a.vmem("buffer_load_dword v%d, v%d, s[%d:%d], 0 offen offset:%d" % (K + 3 + t, 2 if t < 4 else 8, S_K, S_K + 3, 1024 * (t & 3)), "prep")
          a.vmem("buffer_load_dwordx4 v[40:43], v9, s[%d:%d], 0 offen" % (S_SH, S_SH + 3), "prep")
          for t in range(8):
            a.vmem("buffer_load_dword v%d, v%d, s[%d:%d], 0 offen offset:%d" % (V + t, 2 if t < 4 else 8, S_V, S_V + 3, 1024 * (t & 3)), "prep")
        a("s_branch L_Mrest")
        self.h_first()
        a.label("L_Mrest")
        self.jit(6)
        a.vm = self.vm_m_first
        self.rot_calc()
        self.p0_rest()
        a("s_waitcnt lgkmcnt(0)")
        a("s_barrier")
        if "pfM" in self.exp:
            self.line_prefetch("w1", 240)
        if not self.noflags:
            a("s_or_b32 s%d, s2, s%d" % (sT1, sW))
            a("s_cmp_lg_u32 s%d, 0" % sT1)
            a("s_cbranch_scc1 L_nononce")
            a("s_memrealtime s[4:5]")
            a("s_waitcnt lgkmcnt(0)")
            a("s_or_b32 s4, s4, 1")
            a("v_mov_b32 v2, s4")
            a("v_mov_b32 v3, 0")
            a("s_mov_b64 exec, 1")
            a("buffer_store_dword v2, v3, s[%d:%d], 0 offen sc1" % (S_DBG, S_DBG + 3))
            a("s_mov_b64 exec, -1")
            a.label("L_nononce")
        if "flagpf" in self.exp:
            a("s_lshl_b32 s%d, s%d, 7" % (sT0, sID))
            a("s_lshl_b32 s%d, s%d, 3" % (sT1, sR))
            a("s_add_u32 s%d, s%d, s%d" % (sT1, sT1, sC))
            a("s_lshl_b32 s%d, s%d, 7" % (sT1, sT1))
            a("s_add_u32 s%d, s%d, 0x%x" % (sT2, sT0, F_H1))
            a("v_mov_b32 v2, s%d" % sT2)
            a("s_add_u32 s%d, s%d, 0x%x" % (sT2, sT1, F_H2))
            a("v_writelane_b32 v2, s%d, 1" % sT2)
            a("s_add_u32 s%d, s%d, 0x%x" % (sT2, sT0, F_H3))
            a("v_writelane_b32 v2, s%d, 2" % sT2)
            a("s_mov_b64 exec, 7")
            a.vmem("buffer_load_dword v243, v2, s[%d:%d], 0 offen" % (S_WS, S_WS + 3), "pf")
            a("s_mov_b64 exec, -1")
        self.w1_voffs()
        self.m_gemm1_setup()
        a("s_lshl_b32 s%d, s%d, 7" % (sT0, sC))
        a("s_lshl_b32 s%d, s%d, 2" % (sT1, sR))
        a("s_add_u32 s%d, s%d, s%d" % (sT0, sT0, sT1))
        a("s_load_dword s%d, s[%d:%d], s%d" % (sDD, sDP, sDP + 1, sT0))

    def m_gemm1_setup(self):
        a = self.a
        AX = 8; AW = [9, 10, 11]
        a("v_and_b32 v2, 15, v1")
        a("v_lshrrev_b32 v3, 4, v1")
        a("v_lshlrev_b32 v4, 1, v3")
        a("v_xor_b32 v4, v2, v4")
        a("v_lshlrev_b32 v4, 4, v4")
        a("v_lshl_add_u32 v%d, v3, 8, v4" % AX)
        a("v_lshrrev_b32 v5, 2, v2")
        a("v_lshl_add_u32 v4, v3, 3, v5")
        a("v_mul_u32_u24 v4, 384, v4")
        a("v_and_b32 v6, 3, v1")
        a("v_lshl_add_u32 v4, v6, 3, v4")
        a("v_lshrrev_b32 v5, 1, v5")
        a("v_and_b32 v6, 1, v3")
        a("v_lshl_add_u32 v5, v6, 1, v5")
        a("s_mul_i32 s%d, s%d, 3" % (sT0, sRW))
        for b in range(3):
            a("s_add_u32 s%d, s%d, %d" % (sT1, sT0, b))
            a("v_xor_b32 v6, s%d, v5" % sT1)
            a("v_lshl_add_u32 v6, v6, 5, v4")
            a("v_add_u32 v%d, %d, v6" % (AW[b], L_W1))
        a("v_lshlrev_b32 v5, 4, v2")
        a("v_lshrrev_b32 v4, 1, v3")
        a("v_lshl_add_u32 v5, v4, 8, v5")
        a("v_and_b32 v4, 1, v3")
        if "st16" in self.exp:
            a("v_mul_u32_u24 v4, 44032, v4")
            a("v_add_u32 v5, v5, v4")
        else:
            a("v_lshl_add_u32 v5, v4, 3, v5")
        a("s_lshr_b32 s%d, s%d, 4" % (sBP, sF0))
        a("s_mul_i32 s%d, s%d, %d" % (sT0, sR, 4 * 44032))
        a("s_mul_i32 s%d, s%d, 3" % (sT1, sRW))
        a("s_add_u32 s%d, s%d, s%d" % (sT2, sT1, sBP))
        a("s_lshl_b32 s%d, s%d, 9" % (sT2, sT2))
        a("s_add_u32 s%d, s%d, s%d" % (sT0, sT0, sT2))
        a("s_add_u32 s%d, s%d, 0x%x" % (sT0, sT0, WS_H))
        a("v_add_u32 v168, s%d, v5" % sT0)
        for tb in range(1, 4):
            a("v_add_u32 v%d, %d, v168" % (168 + tb, 44032 * tb))
        for b, sr_ in ((1, sINV1), (2, sINV2)):
            a("s_add_u32 s%d, s%d, %d" % (sT2, sT1, b))
            a("s_cmp_lt_u32 s%d, s%d" % (sT2, sNB))
            a("s_cselect_b32 s%d, 0, 0x40000000" % sr_)

    def m_prep(self):
        a = self.a
        K, V, SH = 20, 32, 40
        WL, WH = 44, 48
        PL, PH = 52, 56
        PP, AC = 60, 64
        TA, TB = 68, 72
        KV = 76
        OUT = 92
        dma = []
        if "V2" in self.exp:
            for f in self.w1_dma_ops(0) + self.w1_dma_ops(1): f()
        if "V4" in self.exp:
            for f in self.w1_dma_ops(0): f()
            dma = self.w1_dma_ops(1) + self.w1_dma_ops(2)
        if "V5" in self.exp:
            for f in self.w1_dma_ops(0) + self.w1_dma_ops(1): f()
            dma = self.w1_dma_ops(2)
        if "pfWa" in self.exp: self.w1_tail_prefetch(241)
        if "noprep" in self.exp:
            a.vm.issue("kvt")
            if not self.noflags:
                a("v_mov_b32 v7, 0")
                a.vmem("buffer_load_dword v19, v7, s[%d:%d], 0 offen sc1" % (S_DBG, S_DBG + 3), "nonce")
            for f in self.w1_dma_ops(2): f()
            return
        a.wait_vm("prep")
        self.stamp(12)
        seq = []; e = seq.append
        e("v_and_b32 v%d, v%d, v%d" % (WL + 0, vMLO, SH + 0)); e("v_lshrrev_b32 v%d, 16, v%d" % (WL + 1, SH + 0))
        e("v_and_b32 v%d, v%d, v%d" % (WL + 2, vMLO, SH + 1)); e("v_lshrrev_b32 v%d, 16, v%d" % (WL + 3, SH + 1))
        e("v_lshlrev_b32 v%d, 16, v%d" % (WH + 0, SH + 2)); e("v_and_b32 v%d, v%d, v%d" % (WH + 1, vMHI, SH + 2))
        e("v_lshlrev_b32 v%d, 16, v%d" % (WH + 2, SH + 3)); e("v_and_b32 v%d, v%d, v%d" % (WH + 3, vMHI, SH + 3))
        for hb in range(2):
            r0 = 4 * hb
            if "relax_prep" in self.exp:
                for r in range(4):
                    e("v_dot2_f32_bf16 v%d, v%d, v%d, 0" % (PL + r, K + r0 + r, WL + 3))
                    e("v_dot2_f32_bf16 v%d, v%d, v%d, 0" % (PH + r, K + r0 + r, WH + 3))
                for j in (2, 1, 0):
                    for r in range(4):
                        e("v_dot2_f32_bf16 v%d, v%d, v%d, v%d" % (PL + r, K + 3 + r0 + r - j, WL + j, PL + r))
                        e("v_dot2_f32_bf16 v%d, v%d, v%d, v%d" % (PH + r, K + 3 + r0 + r - j, WH + j, PH + r))
                for r in range(4):
                    e("v_cvt_pk_bf16_f32 v%d, v%d, v%d" % (AC + r, PL + r, PH + r))
            else:
                for j in (3, 2, 1, 0):
                    for r in range(4):
                        e("v_dot2_f32_bf16 v%d, v%d, v%d, 0" % (PL + r, K + 3 + r0 + r - j, WL + j))
                        e("v_dot2_f32_bf16 v%d, v%d, v%d, 0" % (PH + r, K + 3 + r0 + r - j, WH + j))
                    dstp = AC if j == 3 else PP
                    for r in range(4):
                        e("v_cvt_pk_bf16_f32 v%d, v%d, v%d" % (dstp + r, PL + r, PH + r))
                    if j != 3:
                        for r in range(4):
                            e("v_perm_b32 v%d, v%d, v%d, s%d" % (TA + r, PP + r, AC + r, sP0))
                            e("v_perm_b32 v%d, v%d, v%d, s%d" % (TB + r, PP + r, AC + r, sP1))
                        for r in range(4):
                            e("v_dot2_f32_bf16 v%d, v%d, v%d, 0" % (PL + r, TA + r, vONES))
                            e("v_dot2_f32_bf16 v%d, v%d, v%d, 0" % (PH + r, TB + r, vONES))
                        for r in range(4):
                            e("v_cvt_pk_bf16_f32 v%d, v%d, v%d" % (AC + r, PL + r, PH + r))
            for r in range(4):
                e("v_and_b32 v%d, v%d, v%d" % (TA + r, vMLO, V + r0 + r))
                e("v_and_b32 v%d, v%d, v%d" % (TB + r, vMHI, V + r0 + r))
            for r in range(4):
                e("v_dot2_f32_bf16 v%d, v%d, v%d, 0" % (KV + r0 + r, AC + r, TA + r))
                e("v_dot2_f32_bf16 v%d, v%d, v%d, 0" % (KV + 8 + r0 + r, AC + r, TB + r))
        e("v_and_b32 v2, 31, v0"); e("v_mul_u32_u24 v2, 288, v2"); e("v_lshrrev_b32 v3, 5, v0"); e("v_lshlrev_b32 v3, 4, v3")
        e("v_sub_u32 v2, v2, v3"); e("v_add_u32 v2, %d, v2" % (L_PREP + 112))
        for ch in range(2):
            for d in range(4):
                e("v_cvt_pk_bf16_f32 v%d, v%d, v%d" % (OUT + 4 * ch + d, KV + 8 * ch + 7 - 2 * d, KV + 8 * ch + 6 - 2 * d))
        self.spread(seq, dma)
        self.stamp(20)
        a("ds_write_b128 v2, v[%d:%d]" % (OUT, OUT + 3))
        a("ds_write_b128 v2, v[%d:%d] offset:144" % (OUT + 4, OUT + 7))
        a("v_lshrrev_b32 v2, 3, v0")
        a("v_and_b32 v3, 7, v0")
        a("v_mul_u32_u24 v4, 144, v2")
        a("v_lshl_add_u32 v4, v3, 4, v4")
        a("v_add_u32 v4, %d, v4" % L_PREP)
        a("s_lshl_b32 s%d, s%d, 18" % (sT0, sC))
        a("s_lshl_b32 s%d, s%d, 7" % (sT1, sR))
        a("s_sub_u32 s%d, s%d, s%d" % (sT0, sT0, sT1))
        a("s_add_u32 s%d, s%d, %d" % (sT0, sT0, WS_KVT + 3968))
        a("v_lshlrev_b32 v5, 12, v2")
        a("v_lshl_add_u32 v5, v3, 4, v5")
        a("v_add_u32 v5, s%d, v5" % sT0)
        a("v_add_u32 v6, %d, v5" % (32 * 4096))
        if "dmafirst" in self.exp:
            for f in self.w1_dma_ops(0) + self.w1_dma_ops(1) + self.w1_dma_ops(2): f()
            self.stamp(15)
        self.m_sync(13, va=2, vb=3)
        a("ds_read_b128 v[92:95], v4")
        a("ds_read_b128 v[96:99], v4 offset:%d" % (32 * 144))
        a.lg0()
        a.vmem("buffer_store_dwordx4 v[92:95], v5, s[%d:%d], 0 offen sc1" % (S_WS, S_WS + 3), "kvt")
        a.vmem("buffer_store_dwordx4 v[96:99], v6, s[%d:%d], 0 offen sc1" % (S_WS, S_WS + 3), "kvt")
        if not self.noflags:
            a("v_mov_b32 v7, 0")
            a.vmem("buffer_load_dword v19, v7, s[%d:%d], 0 offen sc1" % (S_DBG, S_DBG + 3), "nonce")
        if "pfWb" in self.exp: self.w1_tail_prefetch(241)
        if "dmafirst" not in self.exp:
            self.stamp(15)
            if "V3" in self.exp: lst = self.w1_dma_ops(2) + self.w1_dma_ops(3)
            elif "V2" in self.exp: lst = self.w1_dma_ops(2)
            elif "V4" in self.exp or "V5" in self.exp: lst = []
            else: lst = self.w1_dma_ops(0) + self.w1_dma_ops(1) + self.w1_dma_ops(2)
            for f in lst: f()

    def m_gemm1(self):
        a = self.a
        ACC = 20
        BUF = [68, 96, 124]
        AX = 8; AW = [9, 10, 11]
        UREG = 152
        for i in range(48):
            a("v_mov_b32 v%d, 0" % (ACC + i))

        def read_ops(ks):
            buf = BUF[ks % 3]
            j = ks >> 1; ksl = ks & 1; slot = j % NW1
            pre = []
            if ksl == 0 and j > 0:
                d = W1_SLOT if slot != 0 else -(NW1 - 1) * W1_SLOT
                for b in range(3):
                    pre.append("v_add_u32 v%d, %d, v%d" % (AW[b], d & 0xffffffff, AW[b]))
            so = ksl * 32 * 384
            def rx(t):
                return lambda: a.lds("ds_read_b128 v[%d:%d], v%d offset:%d" % (buf + 4 * t, buf + 4 * t + 3, AX, L_XN + (j % NXN) * 8192 + t * 2048 + ksl * 1024), "x%d_%d" % (ks, t))
            def rw(b, hh):
                r0 = buf + 16 + 4 * b + 2 * hh
                return lambda: a.lds("ds_read_b64_tr_b16 v[%d:%d], v%d offset:%d" % (r0, r0 + 1, AW[b], so + hh * 4 * 384), "w%d_%d" % (ks, b))
            if "mnoreads" in self.exp: return pre
            return pre + [rw(0, 0), rw(0, 1), rx(0), rx(1), rx(2), rx(3), rw(1, 0), rw(1, 1), rw(2, 0), rw(2, 1)]

        def mfma_ops(ks):
            cur = BUF[ks % 3]
            ops = []
            for b in range(3):
                for t in range(4):
                    def f(b=b, t=t):
                        if "finewait" in self.exp:
                            a.need_lds("w%d_%d" % (ks, b), "x%d_%d" % (ks, t))
                        elif b == 0 and t == 0:
                            a.need_lds(*(["w%d_%d" % (ks, bb) for bb in range(3)] + ["x%d_%d" % (ks, tt) for tt in range(4)]))
                        acc = ACC + (b * 4 + t) * 4
                        if "mnomfma" in self.exp: return
                        a("v_mfma_f32_16x16x32_bf16 v[%d:%d], v[%d:%d], v[%d:%d], v[%d:%d]" % (
                            acc, acc + 3, cur + 16 + 4 * b, cur + 19 + 4 * b, cur + 4 * t, cur + 4 * t + 3, acc, acc + 3))
                    ops.append(f)
            return ops

        if not self.noflags and "V1" in self.exp: self.publish_h1()
        if "V3" not in self.exp: a.wait_vm("w1c1")
        a("s_barrier")
        self.stamp(14)
        for f in read_ops(0): self.run(f)
        if self.h1j == 0 and not self.noflags and "V1" not in self.exp:
            q_l = (list(a.lg.q), a.lg_done)
            self.publish_h1()
        for f in read_ops(1)[:5]: self.run(f)
        pend = read_ops(1)[5:]
        for j in range(8):
            if j == 3: self.jit(10)
            if j >= 1 and j <= 6:
                if not ("mnodma" in self.exp and j + 1 >= 3) and "novmw" not in self.exp: a.wait_vm("w1c%d" % (j + 1))
                a("s_barrier")
                if "itst" in self.exp: self.stamp(22 + j)
                if j == self.h1j and not self.noflags and "V1" not in self.exp: self.publish_h1()
            dm = self.w1_dma_ops(j + 4) if (j + 4 <= 7) else []
            if j == 0 and "V3" not in self.exp: dm = self.w1_dma_ops(3) + dm
            if "mnodma" in self.exp:
                for _ in dm: a.vm.issue("dummy")
                dm = []
            ex = []
            for half in range(2):
                ks = 2 * j + half
                fill = list(pend); pend = []
                if ks + 2 <= 15:
                    fill += read_ops(ks + 2)
                hlf = (len(dm) + 1) // 2
                extra = (dm[:hlf] + ex if half == 0 else dm[hlf:])
                interleave(a, mfma_ops(ks), merge(fill, extra))
        a.lg0()
        self.stamp(2)
        HB = 68
        for i in range(12):
            a("v_cvt_pk_bf16_f32 v%d, v%d, v%d" % (HB + 2 * i, ACC + 4 * i, ACC + 4 * i + 1))
            a("v_cvt_pk_bf16_f32 v%d, v%d, v%d" % (HB + 2 * i + 1, ACC + 4 * i + 2, ACC + 4 * i + 3))
        for i in range(24):
            a("v_pk_max_i16 v%d, v%d, 0" % (HB + i, HB + i))
        if "st16" in self.exp:
            for b in range(3):
                for u in range(2):
                    r = HB + 8 * b + 4 * u
                    a("v_permlane16_swap_b32 v%d, v%d" % (r, r + 2))
                    a("v_permlane16_swap_b32 v%d, v%d" % (r + 1, r + 3))
            for b in range(3):
                so = "0" if b == 0 else "s%d" % (sINV1 if b == 1 else sINV2)
                for u in range(2):
                    r = HB + 8 * b + 4 * u
                    a.vmem("buffer_store_dwordx4 v[%d:%d], v%d, s[%d:%d], %s offen offset:%d sc1" % (r, r + 3, 168 + 2 * u, S_WS, S_WS + 3, so, 512 * b), "hst")
        elif "nohst" in self.exp:
            a.vm.issue("hst")
        else:
          for b in range(3):
            so = "0" if b == 0 else "s%d" % (sINV1 if b == 1 else sINV2)
            for t in range(4):
                r = HB + (b * 4 + t) * 2
                a.vmem("buffer_store_dwordx2 v[%d:%d], v%d, s[%d:%d], %s offen offset:%d sc1" % (r, r + 1, 168 + t, S_WS, S_WS + 3, so, 512 * b), "hst")
        if "h2pre" in self.exp and not self.noflags:
            self.publish_h2()
        self.jit(1)
        a("s_barrier")

    def get_nonce(self):
        if self.noflags: return
        a = self.a
        a.wait_vm("nonce")
        lo = a.newlabel("L_nz"); lp = a.newlabel("L_nl")
        a("v_readfirstlane_b32 s%d, v19" % sNONCE)
        a("s_nop 3")
        a("s_cmp_lg_u32 s%d, 0" % sNONCE)
        a("s_cbranch_scc1 %s" % lo)
        a("s_mov_b32 s%d, 0" % sT3)
        a.label(lp)
        a("v_mov_b32 v7, 0")
        a("buffer_load_dword v19, v7, s[%d:%d], 0 offen sc1" % (S_DBG, S_DBG + 3))
        a("s_waitcnt vmcnt(0)")
        a("v_readfirstlane_b32 s%d, v19" % sNONCE)
        a("s_add_u32 s%d, s%d, 1" % (sT3, sT3))
        a("s_cmp_gt_u32 s%d, 100000" % sT3)
        a("s_cbranch_scc1 %s" % lo)
        a("s_cmp_eq_u32 s%d, 0" % sNONCE)
        a("s_cbranch_scc1 %s" % lp)
        a.label(lo)

    def flag_store(self, off_sreg, tag, va=2, vb=3):
        if self.noflags: return
        a = self.a
        a("v_mov_b32 v%d, s%d" % (va, off_sreg))
        a("v_mov_b32 v%d, s%d" % (vb, sNONCE))
        a("s_mov_b64 exec, 1")
        a.vmem("buffer_store_dword v%d, v%d, s[%d:%d], 0 offen sc1" % (vb, va, S_WS, S_WS + 3), tag)
        a("s_mov_b64 exec, -1")

    def publish_h1(self):
        a = self.a
        self.get_nonce()
        if "noprep" in self.exp: return
        a.wait_vm("kvt")
        a("s_lshl_b32 s%d, s%d, 7" % (sT0, sID))
        a("s_lshl_b32 s%d, s%d, 2" % (sT2, sRW))
        a("s_add_u32 s%d, s%d, s%d" % (sT0, sT0, sT2))
        a("s_add_u32 s%d, s%d, 0x%x" % (sT0, sT0, F_H1))
        self.flag_store(sT0, "flag")

    def poll(self, base_sreg, nlanes, width, stride):
        if self.noflags: return
        a = self.a
        lp = a.newlabel("L_poll"); dn = a.newlabel("L_pdone")
        a("v_mul_u32_u24 v2, %d, v1" % stride)
        a("v_add_u32 v2, s%d, v2" % base_sreg)
        a("s_mov_b32 s%d, 0" % sT3)
        if nlanes <= 16: a("s_mov_b64 exec, 0x%x" % ((1 << nlanes) - 1))
        else:
            a("s_mov_b32 exec_lo, -1"); a("s_mov_b32 exec_hi, 0")
        a.label(lp)
        if width == 1:
            a("buffer_load_dword v4, v2, s[%d:%d], 0 offen sc1" % (S_WS, S_WS + 3))
            a("s_waitcnt vmcnt(0)")
            a("v_cmp_ne_u32 vcc, s%d, v4" % sNONCE)
        else:
            a("buffer_load_dwordx4 v[4:7], v2, s[%d:%d], 0 offen sc1" % (S_WS, S_WS + 3))
            a("s_waitcnt vmcnt(0)")
            for i in range(4): a("v_xor_b32 v%d, s%d, v%d" % (4 + i, sNONCE, 4 + i))
            a("v_or3_b32 v4, v4, v5, v6")
            a("v_or_b32 v4, v4, v7")
            a("v_cmp_ne_u32 vcc, 0, v4")
        a("s_add_u32 s%d, s%d, 1" % (sT3, sT3))
        a("s_cmp_gt_u32 s%d, 100000" % sT3)
        a("s_cbranch_scc1 %s" % dn)
        a("s_cbranch_vccnz %s" % lp)
        a.label(dn)
        a("s_mov_b64 exec, -1")

    def lds_wait(self, addr_sreg, val=1, va=16, vb=17):
        a = self.a
        lp = a.newlabel("L_ps"); dn = a.newlabel("L_psd")
        a("v_mov_b32 v%d, s%d" % (va, addr_sreg))
        a("s_mov_b32 s%d, 0" % sT3)
        a.label(lp)
        a("ds_read_b32 v%d, v%d" % (vb, va))
        a("s_waitcnt lgkmcnt(0)")
        a("v_readfirstlane_b32 s4, v%d" % vb)
        a("s_add_u32 s%d, s%d, 1" % (sT3, sT3))
        a("s_cmp_ge_u32 s4, %d" % val)
        a("s_cbranch_scc1 %s" % dn)
        a("s_cmp_lt_u32 s%d, 1000000" % sT3)
        a("s_cbranch_scc1 %s" % lp)
        a.label(dn)
        a.lg_clear()

    def m_sync(self, word, n=4, va=16, vb=17):
        a = self.a
        a("v_mov_b32 v%d, %d" % (va, L_SYNC + 4 * word))
        a("v_mov_b32 v%d, 1" % vb)
        a.lg0()
        a("s_mov_b64 exec, 1")
        a("ds_add_u32 v%d, v%d" % (va, vb))
        a("s_mov_b64 exec, -1")
        a("s_mov_b32 s5, %d" % (L_SYNC + 4 * word))
        self.lds_wait(5, n, va, vb)

    def pair_sync(self, stage, va=16, vb=17):
        a = self.a
        a("s_lshl_b32 s4, s%d, 2" % sRW)
        a("s_add_u32 s4, s4, %d" % (L_SYNC + 16 * stage))
        a("s_xor_b32 s5, s4, 4")
        a("v_mov_b32 v%d, s4" % va)
        a("v_mov_b32 v%d, 1" % vb)
        a.lg0()
        a("ds_write_b32 v%d, v%d" % (va, vb))
        self.lds_wait(5, 1, va, vb)

    def publish_h2(self):
        a = self.a
        a.wait_vm("hst")
        a("s_lshl_b32 s4, s%d, 3" % sR)
        a("s_add_u32 s4, s4, s%d" % sC)
        a("s_lshl_b32 s4, s4, 7")
        a("s_lshl_b32 s5, s%d, 2" % sRW)
        a("s_add_u32 s4, s4, s5")
        a("s_add_u32 s%d, s4, 0x%x" % (sT2, F_H2))
        self.flag_store(sT2, "flag", 4, 5)

    def m_conv(self):
        a = self.a
        BF, ACC, AF, NA = 20, 148, 180, 16
        AU, AT = 2, 3
        a("v_and_b32 v8, 15, v1")
        a("v_lshrrev_b32 v9, 4, v1")
        a("v_lshlrev_b32 v10, 4, v9")
        a("v_lshlrev_b32 v11, 5, v8")
        a("v_sub_u32 v10, v10, v11")
        a("s_lshr_b32 s%d, s%d, 1" % (sT0, sRW))
        a("s_and_b32 s%d, s%d, 1" % (sT1, sRW))
        a("s_mul_i32 s%d, s%d, %d" % (sT2, sT0, U_CH))
        a("s_add_u32 s%d, s%d, %d" % (sT2, sT2, L_U + 2 * 2032 - 64 * 56))
        a("s_lshl_b32 s4, s%d, 6" % sT1)
        a("s_add_u32 s%d, s%d, s4" % (sT2, sT2))
        a("v_add_u32 v%d, s%d, v10" % (AU, sT2))
        a("v_and_b32 v10, 3, v8")
        a("v_mul_u32_u24 v10, %d, v10" % T_CP)
        a("v_lshrrev_b32 v11, 2, v8")
        a("v_lshl_add_u32 v10, v11, 3, v10")
        a("v_lshl_add_u32 v10, v9, 4, v10")
        a("s_mul_i32 s%d, s%d, %d" % (sT2, sT0, T_CH))
        a("s_add_u32 s%d, s%d, s4" % (sT2, sT2))
        a("s_add_u32 s%d, s%d, %d" % (sT2, sT2, L_T))
        a("v_add_u32 v%d, s%d, v10" % (AT, sT2))
        a("v_lshl_add_u32 v10, v9, 3, v8")
        a("s_lshl_b32 s4, s%d, 5" % sT1)
        a("v_add_u32 v10, s4, v10")
        MK = 12
        for d in range(4):
            a("v_sub_u32 v11, %d, v10" % (15 - 2 * d))
            a("v_med3_i32 v11, v11, 0, 2")
            a("v_lshlrev_b32 v11, 4, v11")
            a("v_mov_b32 v%d, -1" % (MK + d))
            a("v_lshlrev_b32 v16, v11, v%d" % (MK + d))
            a("v_cmp_eq_u32 vcc, 32, v11")
            a("v_cndmask_b32_e64 v%d, v16, 0, vcc" % (MK + d))
        for i in range(32):
            a("v_mov_b32 v%d, 0" % (ACC + i))
        def emit_A(ee):
            r = AF + 4 * (ee % NA)
            a.lds("ds_read_b64 v[%d:%d], v%d offset:%d" % (r, r + 1, AT, 128 * ee), ("A", ee))
            a.lds("ds_read_b64 v[%d:%d], v%d offset:%d" % (r + 2, r + 3, AT, 128 * ee + 8), ("A", ee))
        def emit_B(idx):
            r = BF + 4 * idx
            a.lds("ds_read_b128 v[%d:%d], v%d offset:%d" % (r, r + 3, AU, 128 * idx), ("B", idx))
        sched = []
        for ee in range(32):
            for j in range(7, (ee >> 2) - 1, -1):
                sched.append((ee, j, 28 - 4 * j + ee))
        order = []; seen = set(); last_use_A = {}
        for n, (ee, j, idx) in enumerate(sched):
            for it in (("A", ee), ("B", idx)):
                if it not in seen:
                    seen.add(it); order.append(it)
            last_use_A[ee] = n
        ptr = 0; issued = set()
        def can_issue(item, n):
            if item[0] == "A" and item[1] >= NA:
                return last_use_A[item[1] - NA] < n
            return True
        def issue_next(n_now):
            nonlocal ptr
            if ptr < len(order) and can_issue(order[ptr], n_now):
                it = order[ptr]
                (emit_A if it[0] == "A" else emit_B)(it[1])
                issued.add(it); ptr += 1
                return True
            return False
        def inflight():
            return len(a.lg.q) - a.lg_done
        GRP = 4
        while inflight() < 14 and issue_next(0): pass
        masked = False
        for n, (ee, j, idx) in enumerate(sched):
            while ("A", ee) not in issued or ("B", idx) not in issued:
                assert issue_next(n)
            if not (a.lds_done(("A", ee)) and a.lds_done(("B", idx))):
                tags = [("A", ee), ("B", idx)]
                for (e2, j2, i2) in sched[n + 1:n + GRP]:
                    if ("A", e2) in issued and ("B", i2) in issued: tags += [("A", e2), ("B", i2)]
                    else: break
                a.need_lds(*tags)
            ar = AF + 4 * (ee % NA); br = BF + 4 * idx; acc = ACC + 4 * j
            if ee == 0 and not masked:
                for d in range(4): a("v_and_b32 v%d, v%d, v%d" % (ar + d, MK + d, ar + d))
                masked = True
            a("v_mfma_f32_16x16x32_bf16 v[%d:%d], v[%d:%d], v[%d:%d], v[%d:%d]" % (acc, acc + 3, ar, ar + 3, br, br + 3, acc, acc + 3))
            if inflight() < 14:
                issue_next(n + 1)
                if n < 40 and inflight() < 14: issue_next(n + 1)
            if n == self.h2n and not self.noflags and "h2pre" not in self.exp:
                self.publish_h2()
        self.stamp(16)
        self.jit(8)
        self.pair_sync(0)
        a("v_lshlrev_b32 v4, 4, v1")
        a("s_mul_i32 s%d, s%d, %d" % (sT0, sT0, T_CH))
        a("s_add_u32 s%d, s%d, %d" % (sT0, sT0, L_T + 8))
        a("s_lshl_b32 s%d, s%d, 12" % (sT2, sT1))
        a("s_add_u32 s%d, s%d, s%d" % (sT2, sT2, sT0))
        a("v_add_u32 v5, s%d, v4" % sT2)
        a("s_xor_b32 s%d, s%d, 1" % (sT2, sT1))
        a("s_lshl_b32 s%d, s%d, 12" % (sT2, sT2))
        a("s_add_u32 s%d, s%d, s%d" % (sT2, sT2, sT0))
        a("v_add_u32 v6, s%d, v4" % sT2)
        l0 = a.newlabel("L_cr0"); l1 = a.newlabel("L_cr1")
        a("s_cmp_eq_u32 s%d, 0" % sT1)
        a("s_cbranch_scc1 %s" % l0)
        for i in range(4):
            a("ds_write_b128 v5, v[%d:%d] offset:%d" % (ACC + 4 * i, ACC + 4 * i + 3, 1024 * i))
        for i in range(16):
            a("v_mov_b32 v%d, v%d" % (200 + i, ACC + 16 + i))
        a("s_branch %s" % l1)
        a.label(l0)
        for i in range(4):
            a("ds_write_b128 v5, v[%d:%d] offset:%d" % (ACC + 16 + 4 * i, ACC + 16 + 4 * i + 3, 1024 * i))
        for i in range(16):
            a("v_mov_b32 v%d, v%d" % (200 + i, ACC + i))
        a.label(l1)
        a("v_and_b32 v4, 15, v1")
        a("v_lshrrev_b32 v7, 4, v1")
        a("v_lshlrev_b32 v4, 5, v4")
        a("v_lshl_add_u32 v4, v7, 3, v4")
        a("s_lshr_b32 s%d, s%d, 1" % (sT0, sRW))
        a("s_mul_i32 s%d, s%d, %d" % (sT2, sT0, U_CH))
        a("s_add_u32 s%d, s%d, %d" % (sT2, sT2, L_U + 2 * 2044 - 3 * 512))
        a("s_lshl_b32 s4, s%d, 11" % sT1)
        a("s_sub_u32 s%d, s%d, s4" % (sT2, sT2))
        a("v_sub_u32 v4, s%d, v4" % sT2)
        for i in range(4):
            a("ds_read_b64 v[%d:%d], v4 offset:%d" % (236 + 2 * i, 237 + 2 * i, (3 - i) * 512))
        a("s_and_b32 s4, s%d, 0xffff" % sDD)
        a("s_lshr_b32 s5, s%d, 16" % sDD)
        a("s_cmp_eq_u32 s%d, 0" % sT0)
        a("s_cselect_b32 s4, s4, s5")
        a("s_lshl_b32 s5, s4, 16")
        a("v_mov_b32 v8, s4")
        a("v_mov_b32 v9, s5")
        self.pair_sync(1)
        for i in range(4):
            a("ds_read_b128 v[%d:%d], v6 offset:%d" % (220 + 4 * i, 223 + 4 * i, 1024 * i))
        TT = 148
        for i in range(4):
            u0, u1 = 236 + 2 * i, 237 + 2 * i
            a("v_dot2_f32_bf16 v%d, v%d, v9, 0" % (TT + 4 * i + 0, u1))
            a("v_dot2_f32_bf16 v%d, v%d, v8, 0" % (TT + 4 * i + 1, u1))
            a("v_dot2_f32_bf16 v%d, v%d, v9, 0" % (TT + 4 * i + 2, u0))
            a("v_dot2_f32_bf16 v%d, v%d, v8, 0" % (TT + 4 * i + 3, u0))
        TB = 164
        for i in range(4):
            a("v_cvt_pk_bf16_f32 v%d, v%d, v%d" % (TB + 2 * i, TT + 4 * i, TT + 4 * i + 1))
            a("v_cvt_pk_bf16_f32 v%d, v%d, v%d" % (TB + 2 * i + 1, TT + 4 * i + 2, TT + 4 * i + 3))
        a("v_and_b32 v4, 15, v1")
        a("v_lshrrev_b32 v5, 2, v4")
        a("v_lshlrev_b32 v5, 16, v5")
        a("v_and_b32 v4, 3, v4")
        a("v_lshl_add_u32 v5, v4, 5, v5")
        a("v_lshrrev_b32 v7, 4, v1")
        if "st16" in self.exp:
            a("v_lshrrev_b32 v4, 1, v7")
            a("v_lshl_add_u32 v5, v4, 4, v5")
            a("v_and_b32 v4, 1, v7")
            a("v_lshl_add_u32 v5, v4, 18, v5")
        else:
            a("v_lshl_add_u32 v5, v7, 3, v5")
        a("s_lshl_b32 s%d, s%d, 6" % (sT2, sC))
        a("s_lshl_b32 s4, s%d, 1" % sR)
        a("s_add_u32 s%d, s%d, s4" % (sT2, sT2))
        a("s_add_u32 s%d, s%d, s%d" % (sT2, sT2, sT0))
        a("s_lshl_b32 s%d, s%d, 7" % (sT2, sT2))
        a("s_lshl_b32 s4, s%d, 20" % sT1)
        a("s_add_u32 s%d, s%d, s4" % (sT2, sT2))
        a("s_add_u32 s%d, s%d, 0x%x" % (sT2, sT2, WS_YT))
        a("v_add_u32 v5, s%d, v5" % sT2)
        a.lg0()
        for i in range(16):
            a("v_add_f32 v%d, v%d, v%d" % (200 + i, 200 + i, 220 + i))
        YB = 172
        for i in range(8):
            a("v_cvt_pk_bf16_f32 v%d, v%d, v%d" % (YB + i, 200 + 2 * i, 201 + 2 * i))
        for i in range(8):
            a("v_perm_b32 v%d, v%d, v%d, s%d" % (200 + 2 * i, TB + i, YB + i, sP0))
            a("v_perm_b32 v%d, v%d, v%d, s%d" % (201 + 2 * i, TB + i, YB + i, sP1))
        for i in range(16):
            a("v_dot2_f32_bf16 v%d, v%d, v%d, 0" % (220 + i, 200 + i, vONES))
        for i in range(8):
            a("v_cvt_pk_bf16_f32 v%d, v%d, v%d" % (180 + i, 220 + 2 * i, 221 + 2 * i))
        if "st16" in self.exp:
            for u in range(2):
                r = 180 + 4 * u
                a("v_permlane16_swap_b32 v%d, v%d" % (r, r + 2))
                a("v_permlane16_swap_b32 v%d, v%d" % (r + 1, r + 3))
            for u in range(2):
                if u: a("v_add_u32 v5, 0x80000, v5")
                a.vmem("buffer_store_dwordx4 v[%d:%d], v5, s[%d:%d], 0 offen sc1" % (180 + 4 * u, 183 + 4 * u, S_WS, S_WS + 3), "yst")
        else:
          for i in range(4):
            if i: a("v_add_u32 v5, 0x40000, v5")
            a.vmem("buffer_store_dwordx2 v[%d:%d], v5, s[%d:%d], 0 offen sc1" % (180 + 2 * i, 181 + 2 * i, S_WS, S_WS + 3), "yst")
        self.stamp(17)

    def w2_voff(self):
        a = self.a
        sh = 7 if self.w2s else 10
        a("v_lshrrev_b32 v2, 3, v1")
        a("v_and_b32 v2, 3, v2")
        a("v_lshrrev_b32 v3, 5, v1")
        a("v_lshl_add_u32 v2, v3, 3, v2")
        a("v_lshlrev_b32 v2, %d, v2" % sh)
        a("v_lshrrev_b32 v3, 4, v1")
        a("v_and_b32 v3, 3, v3")
        a("v_lshlrev_b32 v3, 1, v3")
        a("v_and_b32 v4, 7, v1")
        a("v_xor_b32 v3, v3, v4")
        a("v_lshl_add_u32 v2, v3, 4, v2")
        if self.w2s:
            a("s_mul_i32 s%d, s%d, 176128" % (sT0, sD))
            a("s_add_u32 s%d, s%d, 0x%x" % (sT0, sT0, WS_W2S))
        else:
            a("s_lshl_b32 s%d, s%d, 7" % (sT0, sD))
        a("v_add_u32 v14, s%d, v2" % sT0)

    def w2_dma(self, lds_base_sreg, lds_off, src_base_sreg, ks_off, tag):
        a = self.a
        inc = [0, 512, 1536, 512] if self.w2s else [0, 4096, 12288, 4096]
        srd = S_WS if self.w2s else S_W2
        fl = " sc1" if self.w2s else ""
        a("s_add_u32 s%d, s%d, %d" % (sT2, src_base_sreg, ks_off * self.KS))
        for m in range(4):
            a("s_add_u32 m0, s%d, %d" % (lds_base_sreg, lds_off + 1024 * m))
            if m: a("s_add_u32 s%d, s%d, %d" % (sT2, sT2, inc[m]))
            a.vmem("buffer_load_dwordx4 v14, s[%d:%d], s%d offen%s lds" % (srd, srd + 3, sT2, fl), tag)

    def w2_slot_dma(self, tag):
        a = self.a
        a("s_lshl_b32 s71, s%d, 12" % sT0)
        a("s_add_u32 s70, s%d, 9" % sT0)
        a("s_cmp_lt_u32 s%d, 13" % sT0)
        a("s_cselect_b32 s70, s%d, s70" % sT0)
        a("s_lshl_b32 s70, s70, %d" % (12 if self.w2s else 15))
        self.w2_dma(71, L_B, 70, 0, tag)

    def w2_early(self):
        a = self.a
        for m in range(3):
            a("s_add_u32 s%d, s%d, %d" % (sT0, sRW, 4 * m))
            if m == 2: a("s_min_u32 s%d, s%d, 9" % (sT0, sT0))
            if m >= 1: a("s_add_u32 s%d, s%d, 4" % (sT0, sT0))
            self.w2_slot_dma("w2e")

    def m_regionA(self):
        a = self.a
        self.w2_voff()
        a("s_lshr_b32 s75, s%d, 1" % sRW)
        a("s_and_b32 s76, s%d, 1" % sRW)
        a("s_mul_i32 s70, s75, %d" % (22 * self.KS))
        self.m_sync(12)
        a("s_mul_i32 s71, s75, %d" % (NA_H * 4096))
        a("s_add_u32 s71, s71, %d" % L_A)
        a("s_lshl_b32 s4, s76, 12")
        a("s_add_u32 s71, s71, s4")
        a("s_lshl_b32 s4, s76, %d" % (12 if self.w2s else 15))
        a("s_add_u32 s70, s70, s4")
        for m in range(3):
            self.w2_dma(71, 8192 * m, 70, 13 + 2 * m, "w2a")

    def n_after_w2a_min(self):
        return (0 if self.noflags else 1) + 4 + 1

    def m_tail(self):
        a = self.a
        self.jit(2)
        self.m_regionA()
        self.jit(3)
        a.wait_vm("yst")
        if not self.noflags:
            a("s_lshl_b32 s4, s%d, 7" % sID)
            a("s_lshl_b32 s5, s%d, 2" % sRW)
            a("s_add_u32 s4, s4, s5")
            a("s_add_u32 s%d, s4, 0x%x" % (sT2, F_H3))
            self.flag_store(sT2, "flag", 2, 3)
        self.stamp(21)
        a("s_mov_b32 s5, %d" % (L_SYNC + 56))
        self.lds_wait(5, 4)
        a("s_mul_i32 s71, s75, %d" % B_HALF)
        a("s_lshl_b32 s4, s76, 12")
        a("s_add_u32 s71, s71, s4")
        if L_B: a("s_add_u32 s71, s71, %d" % L_B)
        self.w2_dma(71, 0, 70, 19, "w2l")
        skl = a.newlabel("L_ml")
        a("s_cmp_eq_u32 s76, 1")
        a("s_cbranch_scc1 %s" % skl)
        self.w2_dma(71, 8192, 70, 21, "w2l")
        a.label(skl)
        self.final_x_load(self.XR, self.OA)
        a("v_lshrrev_b32 v3, 2, v0")
        a("v_and_b32 v4, 3, v0")
        a("v_lshlrev_b32 v5, 7, v3")
        a("v_lshl_add_u32 v5, v4, 5, v5")
        a("s_lshl_b32 s%d, s%d, 16" % (sT0, sR))
        a("s_lshl_b32 s%d, s%d, 13" % (sT1, sD))
        a("s_add_u32 s%d, s%d, s%d" % (sT0, sT0, sT1))
        a("s_add_u32 s%d, s%d, 0x%x" % (sT0, sT0, WS_YT))
        a("v_add_u32 v8, s%d, v5" % sT0)
        a("v_mul_u32_u24 v9, 144, v3")
        a("v_lshl_add_u32 v9, v4, 5, v9")
        a("v_add_u32 v9, %d, v9" % L_Y)
        early = "yearly" in self.exp and not self.noflags
        if early:
            a("s_lshl_b32 s%d, s%d, 12" % (sT0, sD))
            a("s_add_u32 s%d, s%d, 0x%x" % (sT0, sT0, F_H3))
            a("v_and_b32 v2, 31, v1")
            a("v_lshlrev_b32 v2, 7, v2")
            a("v_add_u32 v2, s%d, v2" % sT0)
            a("buffer_load_dwordx4 v[28:31], v2, s[%d:%d], 0 offen sc1" % (S_WS, S_WS + 3))
        a("s_waitcnt vmcnt(%d)" % (self.n_after_w2a_min() + (1 if early else 0)))
        self.stamp(18)
        a("s_barrier")
        a("s_waitcnt vmcnt(0)")
        def yloads():
            a("buffer_load_dwordx4 v[20:23], v8, s[%d:%d], 0 offen sc1" % (S_WS, S_WS + 3))
            a("buffer_load_dwordx4 v[24:27], v8, s[%d:%d], 0 offen offset:16 sc1" % (S_WS, S_WS + 3))
        if early:
            lslow = "L_yslow"; lback = "L_yback"
            for i in range(4): a("v_xor_b32 v%d, s%d, v%d" % (28 + i, sNONCE, 28 + i))
            a("v_or3_b32 v28, v28, v29, v30")
            a("v_or_b32 v28, v28, v31")
            a("v_cmp_ne_u32 vcc, 0, v28")
            a("s_cbranch_vccnz %s" % lslow)
            yloads()
            a("s_barrier")
            a.label(lback)
            self.yslow_body = yloads
        else:
            a("s_barrier")
            if not self.noflags and "noh3" not in self.exp:
                a("s_lshl_b32 s%d, s%d, 12" % (sT0, sD))
                a("s_add_u32 s%d, s%d, 0x%x" % (sT0, sT0, F_H3))
                self.poll(sT0, 32, 4, 128)
            yloads()
        self.stamp(7)
        a("s_waitcnt vmcnt(0)")
        a("ds_write_b128 v9, v[20:23]")
        a("ds_write_b128 v9, v[24:27] offset:16")
        a.lg0()
        a("s_barrier")

    def y_slow(self):
        a = self.a
        a.label("L_yslow")
        a("s_barrier")
        a("s_lshl_b32 s%d, s%d, 12" % (sT0, sD))
        a("s_add_u32 s%d, s%d, 0x%x" % (sT0, sT0, F_H3))
        self.poll(sT0, 32, 4, 128)
        self.yslow_body()
        a("s_branch L_yback")

    def final_x_load(self, xr, ar, t0=2, t1=3):
        a = self.a
        if "fl" in self.exp:
            a("s_lshl_b32 s%d, s%d, 3" % (sT0, sW))
            a("s_lshl_b32 s%d, s%d, 6" % (sT1, sR))
            a("s_add_u32 s%d, s%d, s%d" % (sT0, sT0, sT1))
            a("s_lshl_b32 s%d, s%d, 10" % (sT0, sT0))
            a("s_lshl_b32 s%d, s%d, 7" % (sT1, sD))
            a("s_add_u32 s%d, s%d, s%d" % (sT0, sT0, sT1))
            a("v_lshrrev_b32 v%d, 3, v1" % t0)
            a("v_lshlrev_b32 v%d, 10, v%d" % (t0, t0))
            a("v_and_b32 v%d, 7, v1" % t1)
            a("v_lshl_add_u32 v%d, v%d, 4, v%d" % (t0, t1, t0))
            a("v_add_u32 v%d, s%d, v%d" % (ar, sT0, t0))
            a.vmem("buffer_load_dwordx4 v[%d:%d], v%d, s[%d:%d], 0 offen" % (xr, xr + 3, ar, S_X, S_X + 3), "xf")
            return
        a("s_and_b32 s%d, s%d, 3" % (sT0, sW))
        a("s_lshl_b32 s%d, s%d, 4" % (sT0, sT0))
        a("s_lshl_b32 s%d, s%d, 6" % (sT1, sR))
        a("s_add_u32 s%d, s%d, s%d" % (sT0, sT0, sT1))
        a("s_lshl_b32 s%d, s%d, 10" % (sT0, sT0))
        a("s_lshl_b32 s%d, s%d, 7" % (sT1, sD))
        a("s_add_u32 s%d, s%d, s%d" % (sT0, sT0, sT1))
        a("s_lshr_b32 s%d, s%d, 2" % (sT1, sW))
        a("s_lshl_b32 s%d, s%d, 6" % (sT1, sT1))
        a("s_add_u32 s%d, s%d, s%d" % (sT0, sT0, sT1))
        a("v_lshrrev_b32 v%d, 2, v1" % t0)
        a("v_lshlrev_b32 v%d, 10, v%d" % (t0, t0))
        a("v_and_b32 v%d, 3, v1" % t1)
        a("v_lshl_add_u32 v%d, v%d, 4, v%d" % (t0, t1, t0))
        a("v_add_u32 v%d, s%d, v%d" % (ar, sT0, t0))
        a.vmem("buffer_load_dwordx4 v[%d:%d], v%d, s[%d:%d], 0 offen" % (xr, xr + 3, ar, S_X, S_X + 3), "xf")

    def u_slow(self):
        a = self.a
        a.label("L_uslow")
        a("s_lshl_b32 s%d, s%d, 12" % (sT0, sC))
        a("s_add_u32 s%d, s%d, 0x%x" % (sT0, sT0, F_H1))
        self.poll(sT0, 32, 1, 128)
        for i in range(4):
            a("buffer_load_dwordx4 v[%d:%d], v172, s[%d:%d], 0 offen offset:%d sc1" % (152 + 4 * i, 155 + 4 * i, S_WS, S_WS + 3, 1024 * i))
        a("s_waitcnt vmcnt(0)")
        for i in range(4):
            a("ds_write_b128 v174, v[%d:%d] offset:%d" % (152 + 4 * i, 155 + 4 * i, 1024 * i))
        a("s_waitcnt lgkmcnt(0)")
        a("s_branch L_uback")

    NEGM, RS, NMRS = 100, 101, 102
    def norm2(self, X, t):
        L = []
        L.append("v_lshlrev_b32 v%d, 16, v%d" % (t + 0, X))
        L.append("v_and_b32 v%d, v%d, v%d" % (t + 1, vMHI, X))
        L.append("v_lshlrev_b32 v%d, 16, v%d" % (t + 2, X + 1))
        L.append("v_and_b32 v%d, v%d, v%d" % (t + 3, vMHI, X + 1))
        if self.relax_ln:
            for i in range(4):
                L.append("v_fma_f32 v%d, v%d, v%d, v%d" % (t + i, t + i, self.RS, self.NMRS))
        else:
            for i in range(4):
                L.append("v_add_f32 v%d, v%d, v%d" % (t + i, t + i, self.NEGM))
            L.append("v_cvt_pk_bf16_f32 v%d, v%d, v%d" % (t + 4, t + 0, t + 1))
            L.append("v_cvt_pk_bf16_f32 v%d, v%d, v%d" % (t + 5, t + 2, t + 3))
            L.append("v_lshlrev_b32 v%d, 16, v%d" % (t + 0, t + 4))
            L.append("v_and_b32 v%d, v%d, v%d" % (t + 1, vMHI, t + 4))
            L.append("v_lshlrev_b32 v%d, 16, v%d" % (t + 2, t + 5))
            L.append("v_and_b32 v%d, v%d, v%d" % (t + 3, vMHI, t + 5))
            for i in range(4):
                L.append("v_mul_f32 v%d, v%d, v%d" % (t + i, t + i, self.RS))
        L.append("v_cvt_pk_bf16_f32 v%d, v%d, v%d" % (X, t + 0, t + 1))
        L.append("v_cvt_pk_bf16_f32 v%d, v%d, v%d" % (X + 1, t + 2, t + 3))
        return L

    def norm_chunk(self, j):
        a = self.a
        X = 20 + 8 * j
        for half in range(2):
            s1 = self.norm2(X + 4 * half, 104); s2 = self.norm2(X + 4 * half + 2, 110)
            for x, y in zip(s1, s2):
                a(x); a(y)
            a.lds("ds_write_b128 v116, v[%d:%d] offset:%d" % (X + 4 * half, X + 4 * half + 3, L_XN + (j % NXN) * 8192 + half * 1024), "xw")

    def h_first(self):
        a = self.a
        self.vm_m_first = a.vm
        a.vm = Q(["cpf"] if "codepf0" in self.exp else [])
        a.label("L_Hfirst")
        self.rot_calc()
        a("s_lshl_b32 s%d, s%d, 16" % (sT0, sR))
        a("s_lshl_b32 s%d, s%d, 14" % (sT1, sRW))
        a("s_add_u32 s%d, s%d, s%d" % (sT0, sT0, sT1))
        a("v_lshrrev_b32 v6, 2, v1")
        a("v_lshlrev_b32 v6, 10, v6")
        a("v_and_b32 v7, 3, v1")
        a("v_lshl_add_u32 v6, v7, 4, v6")
        a("v_add_u32 v6, s%d, v6" % sT0)
        if "norot" not in self.exp: a("s_lshl_b32 s%d, s%d, 7" % (sT0, sROT))
        a("s_waitcnt lgkmcnt(0)")
        a("s_mov_b64 s[8:9], s[64:65]")
        if self.stamps:
            a("s_memrealtime s[4:5]"); a("s_waitcnt lgkmcnt(0)"); a("v_writelane_b32 v255, s4, 0")
        for j in range(8):
            if "norot" in self.exp:
                a.vmem("buffer_load_dwordx4 v[%d:%d], v6, s[%d:%d], 0 offen offset:%d" % (20 + 8 * j, 23 + 8 * j, S_X, S_X + 3, 128 * j), "x%d" % j)
                a.vmem("buffer_load_dwordx4 v[%d:%d], v6, s[%d:%d], 0 offen offset:%d" % (24 + 8 * j, 27 + 8 * j, S_X, S_X + 3, 128 * j + 64), "x%d" % j)
                continue
            if j:
                a("s_add_u32 s%d, s%d, 128" % (sT0, sT0))
                a("s_and_b32 s%d, s%d, 1023" % (sT0, sT0))
            a.vmem("buffer_load_dwordx4 v[%d:%d], v6, s[%d:%d], s%d offen" % (20 + 8 * j, 23 + 8 * j, S_X, S_X + 3, sT0), "x%d" % j)
            a.vmem("buffer_load_dwordx4 v[%d:%d], v6, s[%d:%d], s%d offen offset:64" % (24 + 8 * j, 27 + 8 * j, S_X, S_X + 3, sT0), "x%d" % j)
        a("s_branch L_H")
        self.vm_h_first = a.vm

    def h_front(self):
        a = self.a
        a.vm = self.vm_h_first; a.lg_clear()
        self.jit(7)
        self.p0_rest()
        a("s_waitcnt lgkmcnt(0)")
        if "tlbpf" in self.exp:
            a("v_lshlrev_b32 v2, 19, v1")
            a("v_cmp_gt_u32 vcc, 28, v1")
            a("v_mov_b32 v3, 0x40000000")
            a("v_cndmask_b32 v2, v3, v2, vcc")
            a.vmem("buffer_load_dword v245, v2, s[%d:%d], 0 offen" % (S_WS, S_WS + 3), "tlb")
            a("v_lshlrev_b32 v2, 19, v1")
            a.vmem("buffer_load_dword v246, v2, s[%d:%d], 0 offen" % (S_OUT, S_OUT + 3), "tlb")
            a.vmem("buffer_load_dword v247, v2, s[%d:%d], 0 offen" % (S_W2, S_W2 + 3), "tlb")
            a.vmem("buffer_load_dword v243, v2, s[%d:%d], 0 offen" % (S_SSM, S_SSM + 3), "tlb")
        if self.w2s:
            a("s_lshl_b32 s%d, s2, 13" % sT2)
            a("v_and_b32 v2, 255, v0")
            a("v_lshlrev_b32 v3, 4, v2")
            a("v_add_u32 v3, s%d, v3" % sT2)
            a("s_cmp_lt_u32 s2, 172")
            a("s_cselect_b32 s86, 0, 0x40000000")
            a.vmem("buffer_load_dwordx4 v[224:227], v3, s[%d:%d], s86 offen" % (S_W2, S_W2 + 3), "w2sl")
            a("v_add_u32 v3, 4096, v3")
            a.vmem("buffer_load_dwordx4 v[228:231], v3, s[%d:%d], s86 offen" % (S_W2, S_W2 + 3), "w2sl")
            a("v_bfe_u32 v4, v2, 3, 3")
            a("v_mul_u32_u24 v4, 176128, v4")
            a("v_lshrrev_b32 v5, 6, v2")
            a("v_lshl_add_u32 v4, v5, 7, v4")
            a("v_and_b32 v5, 7, v2")
            a("v_lshl_add_u32 v4, v5, 4, v4")
            a("s_lshl_b32 s%d, s2, 10" % sT2)
            a("s_add_u32 s%d, s%d, 0x%x" % (sT2, sT2, WS_W2S))
            a("v_add_u32 v232, s%d, v4" % sT2)
        if "codepf" in self.exp:
            a("s_getpc_b64 s[82:83]")
            a.label("L_pc")
            a("s_sub_u32 s82, s82, L_pc-%s" % KNAME)
            a("s_subb_u32 s83, s83, 0")
            a("v_lshlrev_b32 v2, 7, v1")
            a("s_lshl_b32 s84, s%d, 13" % sRW)
            a("v_add_u32 v2, s84, v2")
            a("v_min_u32 v2, L_codeend-%s, v2" % KNAME)
            a("v_mov_b32 v3, s83")
            a("v_add_co_u32 v2, vcc, s82, v2")
            a("v_addc_co_u32 v3, vcc, 0, v3, vcc")
            a.vmem("global_load_dword v244, v[2:3], off", "cpf")
        a("s_waitcnt lgkmcnt(0)")
        a("s_barrier")

        if "V3" in self.exp:
            self.w1_voffs()
            for f in self.w1_dma_ops(0) + self.w1_dma_ops(1): f()
        a("s_setprio 0")
        if not self.noflags:
            a("v_mov_b32 v7, 0")
        a("v_lshrrev_b32 v4, 2, v1")
        a("v_and_b32 v5, 3, v1")
        a("v_lshlrev_b32 v2, 1, v5")
        a("v_xor_b32 v4, v4, v2")
        a("v_lshlrev_b32 v4, 4, v4")
        a("v_lshl_add_u32 v4, v5, 8, v4")
        a("s_lshl_b32 s%d, s%d, 11" % (sT2, sRW))
        a("v_add_u32 v116, s%d, v4" % sT2)

    def h_ssm_load(self):
        a = self.a
        a("s_lshl_b32 s%d, s%d, 6" % (sT2, sC))
        a("s_lshl_b32 s%d, s%d, 1" % (sT1, sR))
        a("s_add_u32 s%d, s%d, s%d" % (sT2, sT2, sT1))
        a("s_lshl_b32 s%d, s%d, 12" % (sT2, sT2))
        a("v_and_b32 v3, 255, v0")
        a("v_lshlrev_b32 v3, 4, v3")
        a("v_add_u32 v2, s%d, v3" % sT2)
        a("v_add_u32 v4, -8, v2")
        for ch in range(2):
            a.vmem("buffer_load_dwordx2 v[%d:%d], v4, s[%d:%d], 0 offen" % (84 + 6 * ch, 85 + 6 * ch, S_SSM, S_SSM + 3), "ssm")
            a.vmem("buffer_load_dwordx4 v[%d:%d], v2, s[%d:%d], 0 offen" % (86 + 6 * ch, 89 + 6 * ch, S_SSM, S_SSM + 3), "ssm")
            if ch == 0:
                a("v_add_u32 v2, 4096, v2")
                a("v_add_u32 v4, 4096, v4")

    def h_stats(self):
        a = self.a
        X = 20
        for i in range(8): a("v_mov_b32 v%d, 0" % (104 + i))
        for i in range(64):
            if i % 8 == 0:
                a.wait_vm("x%d" % (i // 8))
                if i == 0: self.stamp(13)
                if i == 8 * self.pfd and "pfWd" in self.exp: self.w1_tail_prefetch(241)
            a("v_dot2_f32_bf16 v%d, v%d, v%d, v%d" % (104 + (i & 3), X + i, vONES, 104 + (i & 3)))
            a("v_dot2_f32_bf16 v%d, v%d, v%d, v%d" % (108 + (i & 3), X + i, X + i, 108 + (i & 3)))
        a("v_add_f32 v104, v104, v105"); a("v_add_f32 v106, v106, v107")
        a("v_add_f32 v108, v108, v109"); a("v_add_f32 v110, v110, v111")
        a("v_add_f32 v2, v104, v106"); a("v_add_f32 v3, v108, v110")
        for ctl in ("quad_perm:[1,0,3,2]", "quad_perm:[2,3,0,1]"):
            a("v_add_f32_dpp v2, v2, v2 %s row_mask:0xf bank_mask:0xf" % ctl)
            a("v_add_f32_dpp v3, v3, v3 %s row_mask:0xf bank_mask:0xf" % ctl)
        a("v_mul_f32 v2, 0x3b000000, v2")
        a("v_mul_f32 v3, 0x3b000000, v3")
        a("v_cvt_pk_bf16_f32 v4, v2, v2")
        a("v_fma_f32 v3, -v2, v2, v3")
        a("v_lshlrev_b32 v4, 16, v4")
        a("v_max_f32 v3, 0, v3")
        a("v_cvt_pk_bf16_f32 v3, v3, v3")
        a("v_lshlrev_b32 v3, 16, v3")
        a("v_add_f32 v3, 0x3727c5ac, v3")
        a("v_cvt_pk_bf16_f32 v3, v3, v3")
        a("v_lshlrev_b32 v3, 16, v3")
        a("v_sqrt_f32 v3, v3")
        a("v_cvt_pk_bf16_f32 v3, v3, v3")
        a("v_lshlrev_b32 v3, 16, v3")
        a("v_rcp_f32 v%d, v3" % self.RS)
        a("v_sub_f32 v%d, 0, v4" % self.NEGM)
        a("v_mul_f32 v%d, v%d, v%d" % (self.NMRS, self.NEGM, self.RS))
        a("v_lshrrev_b32 v6, 2, v1")
        a("s_lshl_b32 s%d, s%d, 4" % (sT2, sRW))
        a("v_add_u32 v6, s%d, v6" % sT2)
        a("v_lshlrev_b32 v5, 3, v6")
        a("v_add_u32 v5, %d, v5" % L_STATS)
        a("v_mov_b32 v2, v4")
        a("v_mov_b32 v3, v%d" % self.RS)
        a.lds("ds_write_b64 v5, v[2:3]", "st")

    def h_tbuild(self, ch):
        a = self.a
        D = 84 + 6 * ch
        E = 118
        for p in range(5):
            a("v_alignbit_b32 v%d, v%d, v%d, 16" % (E + p, D + p + 1, D + p))
        for p in range(4):
            a("v_mov_b32 v%d, v%d" % (124 + p, D + 1 + p))
            a("v_mov_b32 v%d, v%d" % (128 + p, E + 1 + p))
        a("v_and_b32 v3, 255, v0")
        a("v_lshlrev_b32 v3, 4, v3")
        a("v_add_u32 v3, %d, v3" % (L_T + ch * T_CH + 24))
        a("ds_write_b128 v3, v[118:121]")
        a("ds_write_b128 v3, v[124:127] offset:%d" % T_CP)
        a("ds_write_b128 v3, v[128:131] offset:%d" % (2 * T_CP))
        a("ds_write_b128 v3, v[%d:%d] offset:%d" % (D + 2, D + 5, 3 * T_CP))

    def w2flag_loads(self, tag):
        a = self.a
        for i in range(3):
            a("v_add_u32 v3, %d, v1" % (64 * i))
            if i == 2:
                a("v_cmp_gt_u32 vcc, 172, v3")
                a("v_cndmask_b32 v3, 0, v3, vcc")
            a("v_lshlrev_b32 v3, 7, v3")
            a("v_add_u32 v3, 0x%x, v3" % F_H4)
            ins = "buffer_load_dword v%d, v3, s[%d:%d], 0 offen sc1" % (100 + i, S_WS, S_WS + 3)
            if tag: a.vmem(ins, tag)
            else: a(ins)

    def w2flag_check(self):
        a = self.a
        for i in range(3): a("v_xor_b32 v%d, s%d, v%d" % (104 + i, sNONCE, 100 + i))
        a("v_or3_b32 v104, v104, v105, v106")
        a("v_cmp_ne_u32 vcc, 0, v104")

    def h_uload(self):
        a = self.a
        if self.noflags: a.wait_vm("ssm")
        if not self.noflags:
            dn = a.newlabel("L_h1ok")
            a.wait_vm("h1f")
            for i in range(4): a("v_xor_b32 v%d, s%d, v%d" % (96 + i, sNONCE, 96 + i))
            a("v_or3_b32 v96, v96, v97, v98")
            a("v_or_b32 v96, v96, v99")
            a("v_cmp_ne_u32 vcc, 0, v96")
            a("s_cbranch_vccz %s" % dn)
            if "noprep" not in self.exp:
                a("s_lshl_b32 s%d, s%d, 12" % (sT0, sC))
                a("s_add_u32 s%d, s%d, 0x%x" % (sT0, sT0, F_H1))
                self.poll(sT0, 32, 4, 128)
            a.label(dn)
        self.stamp(3)
        a("s_lshl_b32 s%d, s%d, 6" % (sT0, sC))
        a("s_lshl_b32 s%d, s%d, 1" % (sT1, sR))
        a("s_add_u32 s%d, s%d, s%d" % (sT0, sT0, sT1))
        a("s_lshl_b32 s%d, s%d, 12" % (sT0, sT0))
        a("s_lshl_b32 s%d, s%d, 11" % (sT1, sRW))
        a("s_add_u32 s%d, s%d, s%d" % (sT0, sT0, sT1))
        a("v_lshlrev_b32 v4, 4, v1")
        a("v_add_u32 v5, s%d, v4" % sT0)
        a.vmem("buffer_load_dwordx4 v[20:23], v5, s[%d:%d], 0 offen sc1" % (S_WS, S_WS + 3), "u")
        a.vmem("buffer_load_dwordx4 v[24:27], v5, s[%d:%d], 0 offen offset:1024 sc1" % (S_WS, S_WS + 3), "u")
        self.h_tbuild(0)
        self.h_tbuild(1)
        if "w2early" in self.exp:
            self.w2_voff()
            self.w2_early()
        a("v_lshlrev_b32 v4, 4, v1")
        a("s_lshr_b32 s%d, s%d, 1" % (sT0, sRW))
        a("s_mul_i32 s%d, s%d, %d" % (sT0, sT0, U_CH))
        a("s_and_b32 s%d, s%d, 1" % (sT1, sRW))
        a("s_lshl_b32 s%d, s%d, 11" % (sT2, sT1))
        a("s_add_u32 s%d, s%d, s%d" % (sT0, sT0, sT2))
        a("s_add_u32 s%d, s%d, %d" % (sT0, sT0, L_U))
        a("v_add_u32 v6, s%d, v4" % sT0)
        for i in range(4): a("v_mov_b32 v%d, 0" % (28 + i))
        a("s_cmp_eq_u32 s%d, 1" % sT1)
        a("s_cselect_b32 exec_lo, -1, 0")
        a("s_mov_b32 exec_hi, 0")
        a("ds_write_b128 v6, v[28:31] offset:2048")
        a("s_mov_b64 exec, -1")
        a.wait_vm("u")
        a("ds_write_b128 v6, v[20:23]")
        a("ds_write_b128 v6, v[24:27] offset:1024")

    def norm_seq(self, j):
        a = self.a
        X = 20 + 8 * j
        seq = []
        for half in range(2):
            s1 = self.norm2(X + 4 * half, 104); s2 = self.norm2(X + 4 * half + 2, 110)
            if "hnonorm" in self.exp and j >= 2:
                s1 = ["s_nop 0"] * 8; s2 = ["s_nop 0"] * 8
            for x, y in zip(s1, s2):
                seq.append(x); seq.append(y)
            if "wmid" in self.exp:
                seq.append(lambda half=half: a.lds("ds_write_b128 v116, v[%d:%d] offset:%d" % (X + 4 * half, X + 4 * half + 3, L_XN + (j % NXN) * 8192 + half * 1024), "xw%d" % j))
        if not ("hnowrite" in self.exp and j >= 2) and "wmid" not in self.exp:
            for half in range(2):
                seq.append(lambda half=half: a.lds("ds_write_b128 v116, v[%d:%d] offset:%d" % (X + 4 * half, X + 4 * half + 3, L_XN + (j % NXN) * 8192 + half * 1024), "xw%d" % j))
        return seq

    def h_gemm1_side(self):
        a = self.a
        if self.w2s:
            a.wait_vm("w2sl")
            a.vmem("buffer_store_dwordx4 v[224:227], v232, s[%d:%d], s86 offen sc1" % (S_WS, S_WS + 3), "w2st")
            a.vmem("buffer_store_dwordx4 v[228:231], v232, s[%d:%d], s86 offen offset:512 sc1" % (S_WS, S_WS + 3), "w2st")
        if "hprio" in self.exp: a("s_setprio 2")
        if "pfWc" in self.exp: self.w1_tail_prefetch(241)
        if "lnpre" in self.exp:
            def split(j):
                sq = self.norm_seq(j)
                return sq[:-2], sq[-2:]
            wr = {}; late = {}
            for j in range(8):
                v_, w_ = split(j)
                if j < self.lnk:
                    for x in v_: self.run(x)
                else:
                    late[j] = v_
                if j < 4:
                    for x in w_: self.run(x)
                else:
                    wr[j] = w_
                if j == 1 and not self.noflags:
                    a.vmem("buffer_load_dword v19, v7, s[%d:%d], 0 offen sc1" % (S_DBG, S_DBG + 3), "nonce")
            a.need_lds("xw0", "xw1")
            a("s_barrier")
        else:
            for x in self.norm_seq(0): self.run(x)
            s1 = self.norm_seq(1)
            h = len(s1) // 2
            for x in s1[:h]: self.run(x)
            for x in s1[h:]: self.run(x)
            if not self.noflags:
                a.vmem("buffer_load_dword v19, v7, s[%d:%d], 0 offen sc1" % (S_DBG, S_DBG + 3), "nonce")
            s2 = self.norm_seq(2)
            for x in s2[:h]: self.run(x)
            a.need_lds("xw0", "xw1")
            if "V3" in self.exp: a.wait_vm("w1c1")
            a("s_barrier")
            for x in s2[h:]: self.run(x)
        for j in range(8):
            if "lnpre" in self.exp:
                if j >= 1 and j + 3 <= 7:
                    for x in wr[j + 3]: self.run(x)
                for c in ([4, 5] if j == 0 else [j + 5]):
                    if c in late:
                        for x in late.pop(c): self.run(x)
            elif j + 3 <= 7:
                for x in self.norm_seq(j + 3): self.run(x)
            if j == self.pf2j and "pf2" in self.exp: self.line_prefetch("w2", 242)
            if j == 1: self.h_ssm_load()
            if j == (self.w2j if self.w2s else 4) and not self.noflags:
                self.get_nonce()
            if j == 5:
                if not self.noflags:
                    a("s_lshl_b32 s%d, s%d, 12" % (sT0, sC))
                    a("s_add_u32 s%d, s%d, 0x%x" % (sT0, sT0, F_H1))
                    a("v_and_b32 v2, 31, v1")
                    a("v_lshlrev_b32 v2, 7, v2")
                    a("v_add_u32 v2, s%d, v2" % sT0)
                if self.w2s:
                    skf = a.newlabel("L_w2f")
                    a("s_cmp_lg_u32 s%d, 0" % sRW)
                    a("s_cbranch_scc1 %s" % skf)
                    self.w2flag_loads(tag=None)
                    a.label(skf)
                if not self.noflags:
                    a.vmem("buffer_load_dwordx4 v[96:99], v2, s[%d:%d], 0 offen sc1" % (S_WS, S_WS + 3), "h1f")
            if j + 1 <= 6:
                if j + 2 <= 7 and "hnowrite" not in self.exp: a.need_lds("xw%d" % (j + 2))
                if j == self.w2j and self.w2s: a.wait_vm("w2st")
                a("s_barrier")
                if j == self.w2j and self.w2s:
                    sk = a.newlabel("L_w2c")
                    a("s_cmp_lt_u32 s2, 172")
                    a("s_cselect_b32 s4, s%d, 1" % sRW)
                    a("s_cmp_lg_u32 s4, 0")
                    a("s_cbranch_scc1 %s" % sk)
                    a("s_lshl_b32 s4, s2, 7")
                    a("s_add_u32 s%d, s4, 0x%x" % (sT2, F_H4))
                    q = list(a.vm.q)
                    self.flag_store(sT2, "flag", 2, 3)
                    a.vm.q = q
                    a.label(sk)
                if "itst" in self.exp: self.stamp(23 + j)
        if "hprio" in self.exp: a("s_setprio 0")
        self.h_uload()
        if self.w2s:
            lp = a.newlabel("L_w2p"); dn = a.newlabel("L_w2d")
            a("s_cmp_lg_u32 s%d, 0" % sRW)
            a("s_cbranch_scc1 %s" % dn)
            a("s_mov_b32 s%d, 0" % sT3)
            a.label(lp)
            self.w2flag_check()
            a("s_cbranch_vccz %s" % dn)
            self.w2flag_loads(tag=None)
            a("s_waitcnt vmcnt(0)")
            a("s_add_u32 s%d, s%d, 1" % (sT3, sT3))
            a("s_cmp_lt_u32 s%d, 100000" % sT3)
            a("s_cbranch_scc1 %s" % lp)
            if "pf4" in self.exp:
                lok = a.newlabel("L_w2ok")
                a.lines.pop()
                a("s_cbranch_scc1 %s" % lp)
            a.label(dn)
            if "pf4" in self.exp:
                skp = a.newlabel("L_pf4")
                a("s_cmp_lg_u32 s%d, 0" % sRW)
                a("s_cbranch_scc1 %s" % skp)
                a("s_lshr_b32 s%d, s2, 3" % sT0)
                if "map42" in self.exp:
                    a("s_mul_i32 s%d, s%d, %d" % (sT0, sT0, 172 * 128))
                    a("s_bfe_u32 s%d, s2, 0x10002" % sT1)
                    a("s_mul_i32 s%d, s%d, %d" % (sT1, sT1, 4 * 176128))
                    a("s_add_u32 s%d, s%d, s%d" % (sT0, sT0, sT1))
                    nl = 172
                else:
                    a("s_mul_i32 s%d, s%d, %d" % (sT0, sT0, 344 * 128))
                    nl = 344
                a("s_add_u32 s%d, s%d, 0x%x" % (sT0, sT0, WS_W2S))
                for i in range((nl + 63) // 64):
                    a("v_add_u32 v3, %d, v1" % (64 * i))
                    a("v_min_u32 v3, %d, v3" % (nl - 1))
                    a("v_lshlrev_b32 v3, 7, v3")
                    a("v_add_u32 v3, s%d, v3" % sT0)
                    a("buffer_load_dword v%d, v3, s[%d:%d], 0 offen sc1" % (240 + (i & 3), S_WS, S_WS + 3))
                a.label(skp)
        self.w2_voff()
        a.lg0()
        a("s_barrier")
        self.stamp(2)

    def h_gemm2(self):
        a = self.a
        HF, ACC = 20, 196
        WBUF = [228, 2]
        AB = 244
        PF = 10
        self.jit(4)
        a("s_lshr_b32 s75, s%d, 1" % sRW)
        a("s_and_b32 s76, s%d, 1" % sRW)
        if "poller3" in self.exp:
            lp3 = a.newlabel("L_hp3"); lgo = a.newlabel("L_hgo")
            a("s_cmp_eq_u32 s%d, 3" % sRW)
            a("s_cbranch_scc1 %s" % lp3)
            q0 = list(a.vm.q)
            for m in range(9):
                a("s_add_u32 s%d, s%d, %d" % (sT0, sRW, 3 * m))
                if m == 8: a("s_min_u32 s%d, s%d, 25" % (sT0, sT0))
                a("s_lshr_b32 s%d, s%d, 1" % (sT1, sT0))
                a("s_and_b32 s%d, s%d, 1" % (sT0, sT0))
                a("s_mul_i32 s71, s%d, %d" % (sT0, NB_H))
                a("s_add_u32 s71, s71, s%d" % sT1)
                a("s_lshl_b32 s71, s71, 12")
                a("s_mul_i32 s70, s%d, 22" % sT0)
                a("s_add_u32 s70, s70, s%d" % sT1)
                a("s_lshl_b32 s70, s70, %d" % (12 if self.w2s else 15))
                self.w2_dma(71, L_B, 70, 0, "w2b")
            a("s_branch %s" % lgo)
            a.label(lp3)
            if not self.noflags:
                a("s_lshl_b32 s%d, s%d, 10" % (sT0, sR))
                a("s_add_u32 s%d, s%d, 0x%x" % (sT0, sT0, F_H2))
                self.poll(sT0, 8, 4, 128)
            a("v_mov_b32 v2, %d" % (L_SYNC + 60))
            a("v_mov_b32 v3, 1")
            a("ds_write_b32 v2, v3")
            a.label(lgo)
        else:
            def w2b_slot(m):
                a("s_add_u32 s%d, s%d, %d" % (sT0, sRW, 4 * m))
                if m == 6: a("s_min_u32 s%d, s%d, 25" % (sT0, sT0))
                a("s_lshr_b32 s%d, s%d, 1" % (sT1, sT0))
                a("s_and_b32 s%d, s%d, 1" % (sT0, sT0))
                a("s_mul_i32 s71, s%d, %d" % (sT0, NB_H))
                a("s_add_u32 s71, s71, s%d" % sT1)
                a("s_lshl_b32 s71, s71, 12")
                a("s_mul_i32 s70, s%d, 22" % sT0)
                a("s_add_u32 s70, s70, s%d" % sT1)
                a("s_lshl_b32 s70, s70, %d" % (12 if self.w2s else 15))
                self.w2_dma(71, L_B, 70, 0, "w2b" if m < self.w2p1 else "w2b2")
            self.w2b_slot = w2b_slot
            if "w2early" in self.exp:
                for m in range(4):
                    a("s_add_u32 s%d, s%d, %d" % (sT0, sRW, 4 * m + (4 if m == 0 else 10)))
                    self.w2_slot_dma("w2b")
            else:
                for m in range(self.w2p1):
                    w2b_slot(m)
        a("s_lshl_b32 s%d, s%d, 2" % (sT2, sR))
        a("s_lshl_b32 s4, s76, 1")
        a("s_add_u32 s%d, s%d, s4" % (sT2, sT2))
        a("s_mul_i32 s%d, s%d, 44032" % (sT2, sT2))
        a("s_mul_i32 s4, s75, %d" % (22 * 1024))
        a("s_add_u32 s%d, s%d, s4" % (sT2, sT2))
        a("s_add_u32 s%d, s%d, 0x%x" % (sT2, sT2, WS_H))
        a("v_lshlrev_b32 v18, 4, v1")
        a("v_add_u32 v18, s%d, v18" % sT2)
        a("v_add_u32 v19, 44032, v18")
        a("v_lshrrev_b32 v2, 4, v1")
        a("v_and_b32 v3, 15, v1")
        a("v_lshrrev_b32 v3, 2, v3")
        a("v_lshrrev_b32 v4, 1, v2")
        a("v_lshlrev_b32 v4, 4, v4")
        a("v_and_b32 v5, 1, v2")
        a("v_lshl_add_u32 v4, v5, 2, v4")
        a("v_add_u32 v4, v4, v3")
        a("v_lshlrev_b32 v4, 7, v4")
        a("v_and_b32 v6, 1, v1")
        a("v_lshl_add_u32 v4, v6, 3, v4")
        a("v_lshlrev_b32 v5, 1, v5")
        a("v_lshrrev_b32 v6, 1, v3")
        a("v_add_u32 v5, v5, v6")
        a("v_lshlrev_b32 v5, 1, v5")
        a("v_and_b32 v6, 3, v1")
        a("v_lshrrev_b32 v6, 1, v6")
        a("s_mul_i32 s4, s75, %d" % B_HALF)
        if L_B: a("s_add_u32 s4, s4, %d" % L_B)
        for b in range(4):
            a("v_add_u32 v7, %d, v6" % (2 * b))
            a("v_xor_b32 v7, v7, v5")
            a("v_lshl_add_u32 v7, v7, 4, v4")
            a("v_add_u32 v%d, s4, v7" % (AB + b))
        a("s_mul_i32 s5, s75, %d" % (NA_H * 4096))
        a("s_add_u32 s5, s5, %d" % L_A)
        a("s_sub_u32 s77, s5, s4")
        a("s_sub_u32 s79, s4, s5")
        for i in range(32): a("v_mov_b32 v%d, 0" % (ACC + i))
        if "poller3" in self.exp:
            a("s_mov_b32 s5, %d" % (L_SYNC + 60))
            self.lds_wait(5, 1, 253, 254)
        else:
            self.stamp(5)
            if not self.noflags and "noh2" not in self.exp:
                a("s_lshl_b32 s%d, s%d, 10" % (sT0, sR))
                a("s_add_u32 s%d, s%d, 0x%x" % (sT0, sT0, F_H2))
                self.poll(sT0, 8, 4, 128)
        self.stamp(6)

        def hload(i):
            ops = []
            for t in range(2):
                def f(t=t):
                    r = HF + (i * 2 + t) * 4
                    so = i * 1024
                    if so < 4096:
                        a.vmem("buffer_load_dwordx4 v[%d:%d], v%d, s[%d:%d], 0 offen offset:%d sc1" % (r, r + 3, 18 + t, S_WS, S_WS + 3, so), "h%d" % i)
                    else:
                        if t == 0: a("s_mov_b32 s80, %d" % (so & ~4095))
                        a.vmem("buffer_load_dwordx4 v[%d:%d], v%d, s[%d:%d], s80 offen offset:%d sc1" % (r, r + 3, 18 + t, S_WS, S_WS + 3, so & 4095), "h%d" % i)
                ops.append(f)
            return ops

        def read_ops(i):
            buf = WBUF[i & 1]
            if i < 13: so = i * 4096
            elif i < 19: so = (i - 13) * 4096
            else: so = (i - 19) * 4096
            ops = []
            sw = {13: 77, 19: 79}.get(i)
            if sw:
                for b in range(4): ops.append("v_add_u32 v%d, s%d, v%d" % (AB + b, sw, AB + b))
            for b in range(4):
                for hh in range(2):
                    r0 = buf + 4 * b + 2 * hh
                    ops.append(lambda r0=r0, b=b, hh=hh: a.lds("ds_read_b64_tr_b16 v[%d:%d], v%d offset:%d" % (r0, r0 + 1, AB + b, so + hh * 1024), "w%d_%d" % (i, b)))
            return ops

        def mfma_ops(i):
            buf = WBUF[i & 1]
            ops = []
            for b in range(4):
                for t in range(2):
                    def f(b=b, t=t):
                        if b == 0 and t == 0:
                            a.wait_both("h%d" % i, ["w%d_%d" % (i, bb) for bb in range(4)])
                        acc = ACC + (b * 2 + t) * 4
                        hr = HF + (i * 2 + t) * 4
                        a("v_mfma_f32_16x16x32_bf16 v[%d:%d], v[%d:%d], v[%d:%d], v[%d:%d]" % (acc, acc + 3, buf + 4 * b, buf + 4 * b + 3, hr, hr + 3, acc, acc + 3))
                    ops.append(f)
            return ops

        self.jit(5)
        allh = []
        for i in range(22): allh += hload(i)
        hp = 0
        for f in allh[:self.hinit]: f()
        hp = self.hinit
        for m in range(self.w2p1, 7):
            self.w2b_slot(m)
        a("s_waitcnt vmcnt(%d)" % min(63, self.hinit + 4 * (7 - self.w2p1)))
        self.m_sync(11, va=253, vb=254)
        self.stamp(19)
        for f in read_ops(0): self.run(f)
        last = a.newlabel("L_g2l")
        for i in range(22):
            if i == 6: self.jit(9)
            if i == 12:
                a.lg0()
                a("s_barrier")
            if i == 18:
                a.lg0()
                a("s_barrier")
            if self.w2p1 < 7 and i == 2 * self.w2p1 - 1:
                a.wait_vm("w2b2")
                self.m_sync(10, va=253, vb=254)
            if i == 11 and "xearly" in self.exp:
                self.final_x_load(self.XR, self.OA, 253, 254)
            if i == 4:
                a("v_mov_b32 v253, %d" % (L_SYNC + 56))
                a("v_mov_b32 v254, 1")
                a("s_mov_b64 exec, 1")
                a.lds("ds_add_u32 v253, v254", "sig")
                a("s_mov_b64 exec, -1")
            if i == 21:
                a("s_cmp_eq_u32 s75, 1")
                a("s_cbranch_scc1 %s" % last)
            fill = []
            if i < 21: fill += read_ops(i + 1)
            nl = self.hper if hp < 2 * (i + self.hwin) else 2
            nl = min(nl, len(allh) - hp)
            fill = allh[hp:hp + nl] + fill
            hp += nl
            interleave(a, mfma_ops(i), fill)
        a.label(last)
        a.lg0()
        self.stamp(22)
        a("v_and_b32 v2, 15, v1")
        a("v_lshrrev_b32 v3, 4, v1")
        a("v_mul_u32_u24 v2, 272, v2")
        a("v_lshl_add_u32 v2, v3, 4, v2")
        a("s_mul_i32 s4, s75, %d" % P_STRIDE)
        a("s_mul_i32 s5, s76, %d" % (32 * 272))
        a("s_add_u32 s4, s4, s5")
        a("s_add_u32 s4, s4, %d" % L_P)
        a("v_add_u32 v2, s4, v2")
        for b in range(4):
            for t in range(2):
                acc = ACC + (b * 2 + t) * 4
                a("ds_write_b128 v2, v[%d:%d] offset:%d" % (acc, acc + 3, t * 16 * 272 + b * 64))
        if "xearly" not in self.exp: self.final_x_load(self.XR, self.OA)
        a.lg0()
        a("s_barrier")

    def final(self):
        a = self.a
        P0 = L_P; P1 = L_P + P_STRIDE; YL = L_Y
        XR = self.XR; OA = self.OA
        if "fl" in self.exp:
            a("v_lshrrev_b32 v2, 3, v1")
            a("v_and_b32 v3, 7, v1")
            a("s_lshl_b32 s4, s%d, 3" % sW)
            a("v_add_u32 v2, s4, v2")
            a("v_mul_u32_u24 v4, 272, v2")
            a("v_lshl_add_u32 v4, v3, 5, v4")
            a("v_add_u32 v4, %d, v4" % P0)
            a("ds_read_b128 v[20:23], v4")
            a("ds_read_b128 v[24:27], v4 offset:16")
            a("ds_read_b128 v[28:31], v4 offset:%d" % (P1 - P0))
            a("ds_read_b128 v[32:35], v4 offset:%d" % (P1 - P0 + 16))
            a("v_lshlrev_b32 v6, 3, v2")
            a("v_add_u32 v6, %d, v6" % L_STATS)
            a("ds_read_b64 v[36:37], v6")
            a("v_lshrrev_b32 v7, 4, v1")
            a("v_lshlrev_b32 v7, 1, v7")
            a("v_bfe_u32 v8, v1, 1, 1")
            a("v_add_u32 v7, v7, v8")
            a("v_lshlrev_b32 v7, 3, v7")
            a("v_bfe_u32 v8, v1, 2, 2")
            a("v_add_u32 v7, v7, v8")
            a("v_mul_u32_u24 v7, 144, v7")
            a("v_and_b32 v8, 1, v1")
            a("v_lshl_add_u32 v7, v8, 3, v7")
            a("s_lshl_b32 s4, s%d, 4" % sW)
            a("s_add_u32 s4, s4, %d" % YL)
            a("v_add_u32 v7, s4, v7")
            a("ds_read_b64_tr_b16 v[38:39], v7")
            a("ds_read_b64_tr_b16 v[40:41], v7 offset:%d" % (4 * 144))
            a("v_and_b32 v8, 7, v1")
            a("v_lshlrev_b32 v8, 3, v8")
            a("v_lshrrev_b32 v9, 3, v1")
            a("v_or_b32 v8, v8, v9")
            a("v_lshlrev_b32 v8, 2, v8")
        else:
            a("s_and_b32 s%d, s%d, 3" % (sT0, sW))
            a("s_lshr_b32 s%d, s%d, 2" % (sT1, sW))
            a("v_lshrrev_b32 v2, 2, v1")
            a("v_and_b32 v3, 3, v1")
            a("s_lshl_b32 s4, s%d, 4" % sT0)
            a("v_add_u32 v2, s4, v2")
            a("v_mul_u32_u24 v4, 272, v2")
            a("v_lshl_add_u32 v4, v3, 5, v4")
            a("s_lshl_b32 s4, s%d, 7" % sT1)
            a("s_add_u32 s4, s4, %d" % P0)
            a("v_add_u32 v4, s4, v4")
            a("ds_read_b128 v[20:23], v4")
            a("ds_read_b128 v[24:27], v4 offset:16")
            a("ds_read_b128 v[28:31], v4 offset:%d" % (P1 - P0))
            a("ds_read_b128 v[32:35], v4 offset:%d" % (P1 - P0 + 16))
            a("v_lshlrev_b32 v6, 3, v2")
            a("v_add_u32 v6, %d, v6" % L_STATS)
            a("ds_read_b64 v[36:37], v6")
            a("v_lshrrev_b32 v7, 4, v1")
            a("v_lshlrev_b32 v7, 3, v7")
            a("v_and_b32 v8, 15, v1")
            a("v_lshrrev_b32 v8, 2, v8")
            a("v_add_u32 v7, v7, v8")
            a("s_lshl_b32 s4, s%d, 5" % sT1)
            a("v_add_u32 v7, s4, v7")
            a("v_mul_u32_u24 v7, 144, v7")
            a("v_and_b32 v8, 3, v1")
            a("v_lshl_add_u32 v7, v8, 3, v7")
            a("s_lshl_b32 s4, s%d, 5" % sT0)
            a("s_add_u32 s4, s4, %d" % YL)
            a("v_add_u32 v7, s4, v7")
            a("ds_read_b64_tr_b16 v[38:39], v7")
            a("ds_read_b64_tr_b16 v[40:41], v7 offset:%d" % (4 * 144))
            a("v_and_b32 v8, 3, v1")
            a("v_lshlrev_b32 v8, 4, v8")
            a("v_lshrrev_b32 v9, 2, v1")
            a("v_or_b32 v8, v8, v9")
            a("v_lshlrev_b32 v8, 2, v8")
        a("v_mov_b32 v10, 0xbfb8aa3b")
        a("v_mov_b32 v11, 1.0")
        a("s_waitcnt lgkmcnt(0)")
        for i in range(4):
            a("ds_bpermute_b32 v%d, v8, v%d" % (42 + i, 38 + i))
        for i in range(8):
            a("v_add_f32 v%d, v%d, v%d" % (20 + i, 20 + i, 28 + i))
        for i in range(4):
            a("v_cvt_pk_bf16_f32 v%d, v%d, v%d" % (28 + i, 20 + 2 * i, 21 + 2 * i))
        for i in range(4):
            a("v_alignbit_b32 v%d, v%d, 0, 16" % (20 + 2 * i, 28 + i))
            a("v_and_b32 v%d, v%d, v%d" % (21 + 2 * i, vMHI, 28 + i))
        for i in range(8):
            a("v_mul_f32 v%d, v10, v%d" % (48 + i, 20 + i))
        for i in range(8):
            a("v_exp_f32 v%d, v%d" % (48 + i, 48 + i))
        a("s_waitcnt vmcnt(0)")
        a("v_sub_f32 v12, 0, v36")
        for i in range(4):
            a("v_dot2_f32_bf16 v%d, v%d, v%d, v12" % (72 + 2 * i, XR + i, vONELO))
            a("v_dot2_f32_bf16 v%d, v%d, v%d, v12" % (73 + 2 * i, XR + i, vONEHI))
        for i in range(8):
            a("v_add_f32 v%d, v11, v%d" % (48 + i, 48 + i))
        for i in range(4):
            a("v_cvt_pk_bf16_f32 v%d, v%d, v%d" % (80 + i, 72 + 2 * i, 73 + 2 * i))
        for i in range(8):
            a("v_rcp_f32 v%d, v%d" % (48 + i, 48 + i))
        for i in range(4):
            a("v_alignbit_b32 v%d, v%d, 0, 16" % (72 + 2 * i, 80 + i))
            a("v_and_b32 v%d, v%d, v%d" % (73 + 2 * i, vMHI, 80 + i))
        for i in range(8):
            a("v_mul_f32 v%d, v%d, v37" % (72 + i, 72 + i))
        for i in range(8):
            a("v_mul_f32 v%d, v%d, v%d" % (20 + i, 20 + i, 48 + i))
        if "relax_fin" in self.exp:
            a("s_waitcnt lgkmcnt(0)")
            for i in range(4):
                a("v_alignbit_b32 v%d, v%d, 0, 16" % (56 + 2 * i, 42 + i))
                a("v_and_b32 v%d, v%d, v%d" % (57 + 2 * i, vMHI, 42 + i))
                a("v_alignbit_b32 v%d, v%d, 0, 16" % (88 + 2 * i, XR + i))
                a("v_and_b32 v%d, v%d, v%d" % (89 + 2 * i, vMHI, XR + i))
            for i in range(8):
                a("v_mul_f32 v%d, v%d, v%d" % (72 + i, 72 + i, 56 + i))
            for i in range(8):
                a("v_fma_f32 v%d, v%d, v%d, v%d" % (72 + i, 72 + i, 20 + i, 88 + i))
            for i in range(4):
                a("v_cvt_pk_bf16_f32 v%d, v%d, v%d" % (80 + i, 72 + 2 * i, 73 + 2 * i))
        else:
            for i in range(4):
                a("v_cvt_pk_bf16_f32 v%d, v%d, v%d" % (80 + i, 72 + 2 * i, 73 + 2 * i))
            for i in range(4):
                a("v_cvt_pk_bf16_f32 v%d, v%d, v%d" % (28 + i, 20 + 2 * i, 21 + 2 * i))
            a("s_waitcnt lgkmcnt(0)")
            for i in range(4):
                a("v_and_b32 v%d, v%d, v%d" % (56 + 2 * i, vMLO, 42 + i))
                a("v_and_b32 v%d, v%d, v%d" % (57 + 2 * i, vMHI, 42 + i))
                a("v_and_b32 v%d, v%d, v%d" % (64 + 2 * i, vMLO, 28 + i))
                a("v_and_b32 v%d, v%d, v%d" % (65 + 2 * i, vMHI, 28 + i))
            for i in range(4):
                a("v_dot2_f32_bf16 v%d, v%d, v%d, 0" % (72 + 2 * i, 80 + i, 56 + 2 * i))
                a("v_dot2_f32_bf16 v%d, v%d, v%d, 0" % (73 + 2 * i, 80 + i, 57 + 2 * i))
            for i in range(4):
                a("v_alignbit_b32 v%d, v%d, 0, 16" % (88 + 2 * i, XR + i))
                a("v_and_b32 v%d, v%d, v%d" % (89 + 2 * i, vMHI, XR + i))
            for i in range(4):
                a("v_cvt_pk_bf16_f32 v%d, v%d, v%d" % (80 + i, 72 + 2 * i, 73 + 2 * i))
            for i in range(4):
                a("v_dot2_f32_bf16 v%d, v%d, v%d, 0" % (72 + 2 * i, 80 + i, 64 + 2 * i))
                a("v_dot2_f32_bf16 v%d, v%d, v%d, 0" % (73 + 2 * i, 80 + i, 65 + 2 * i))
            for i in range(4):
                a("v_cvt_pk_bf16_f32 v%d, v%d, v%d" % (80 + i, 72 + 2 * i, 73 + 2 * i))
            for i in range(4):
                a("v_dot2_f32_bf16 v%d, v%d, v%d, v%d" % (72 + 2 * i, 80 + i, vONELO, 88 + 2 * i))
                a("v_dot2_f32_bf16 v%d, v%d, v%d, v%d" % (73 + 2 * i, 80 + i, vONEHI, 89 + 2 * i))
            for i in range(4):
                a("v_cvt_pk_bf16_f32 v%d, v%d, v%d" % (80 + i, 72 + 2 * i, 73 + 2 * i))
        fl = " sc1" if "outsc1" in self.exp else (" nt" if "outnt" in self.exp else (" sc0 sc1" if "outsc01" in self.exp else ""))
        a("buffer_store_dwordx4 v[80:83], v%d, s[%d:%d], 0 offen%s" % (OA, S_OUT, S_OUT + 3, fl))

    def build(self):
        a = self.a
        self.p0()
        self.m_front()
        self.stamp(1)
        self.m_prep()
        self.stamp(10)
        self.m_gemm1()
        self.stamp(4)
        self.m_conv()
        self.m_tail()
        a("s_branch L_final")
        a.label("L_H")
        self.h_front()
        self.stamp(1)
        self.h_stats()
        self.stamp(11)
        self.h_gemm1_side()
        self.h_gemm2()
        a.label("L_final")
        a.lg_clear()
        self.stamp(8)
        self.final()
        self.stamp(9)
        self.dump_stamps()
        if "noendwait" not in self.exp: a("s_waitcnt vmcnt(0)")
        a.label("L_end")
        a("s_endpgm")
        if "yearly" in self.exp and not self.noflags:
            self.y_slow()
        a.label("L_codeend")
        a("s_endpgm")
        lines, n = hazard.fix(a.lines)
        self.nnops = n
        hdr = """; Fused H3-style block: out = x + (LN(x) * (longconv(kv) + kv*D)) * silu(relu(LN(x) W1) W2),  kv = shiftconv(k) * v
; Kernarg (8-byte pointers): 0 x(A_q) 8 k 16 v 24 shift_k 32 ssm_k 40 ssm_D 48 B_x(unused) 56 w1 64 w2 72 out 80 debug 88 ws
; One persistent launch, 256 workgroups (one per CU, all co-resident: 160 KiB LDS each), 8 waves:
;   waves 0-3 ("M"): kv prep, GEMM1 MFMAs, long conv (Toeplitz MFMA), helper DMA ; waves 4-7 ("H"): LayerNorm, T/U staging, GEMM2.
; Cross-workgroup hand-offs (kv^T, h, y^T) go through d_ws with write-through stores + per-wave flags tagged with a
; per-launch nonce that workgroup 0 publishes in d_debug[0]; every spin is bounded.
; @launch grid=(256,1,1) block=(512,1,1) lds=%d
.amdgcn_target "amdgcn-amd-amdhsa--gfx950"
.text
.globl %s
.p2align 8
.type %s,@function
%s:
""" % (LDS_SIZE, KNAME, KNAME, KNAME)
        ftr = """.section .rodata,"a"
.p2align 6
.amdhsa_kernel %s
  .amdhsa_next_free_vgpr 256
  .amdhsa_next_free_sgpr 102
  .amdhsa_accum_offset 256
  .amdhsa_group_segment_fixed_size 0
  .amdhsa_kernarg_size 96
  .amdhsa_user_sgpr_count 2
  .amdhsa_user_sgpr_kernarg_segment_ptr 1
  .amdhsa_system_sgpr_workgroup_id_x 1
.end_amdhsa_kernel
""" % KNAME
        return hdr + "\n".join(lines) + "\n" + ftr

if __name__ == "__main__":
    import argparse
    ap = argparse.ArgumentParser()
    ap.add_argument("-o", default="k.s")
    ap.add_argument("--stamps", action="store_true")
    ap.add_argument("--noflags", action="store_true")
    ap.add_argument("--exp", default="")
    args = ap.parse_args()
    g = Gen(stamps=args.stamps, noflags=args.noflags, exp=args.exp)
    txt = g.build()
    open(args.o, "w").write(txt)
    print("wrote", args.o, len(txt.splitlines()), "lines; hazard nops:", g.nnops)
```
